```python
import torch

def _softmax(x, axis=-1):
    return torch.softmax(x, dim=axis)
def _gelu(x):
    return torch.nn.functional.gelu(x, approximate="tanh")
def _silu(x):
    return torch.nn.functional.silu(x)
def _sigmoid(x):
    return torch.sigmoid(x)
def _layernorm(x, axis=-1, eps=1e-5):
    m = x.mean(dim=axis, keepdim=True)
    v = x.var(dim=axis, keepdim=True, unbiased=False)
    return (x - m) / torch.sqrt(v + eps)
def _scatter_add(tgt, idx, src, axis=0):
    return tgt.clone().index_add_(axis, idx, src)
def _segment_sum(src, seg, n):
    out = torch.zeros((n,) + src.shape[1:], dtype=src.dtype)
    return out.index_add_(0, seg, src)
def _pad(x, pw):
    flat = tuple(v for pair in reversed(pw) for v in pair)
    return torch.nn.functional.pad(x, flat)

kernel_name = 'parallel_sum__ssm_conv_s4__dense_activation_gelu__prompt'

def setup_inputs():

    _w = (lambda a: (lambda t: t.to(torch.bfloat16) if t.is_floating_point() else t)(torch.as_tensor(a)))
    def _A_setup():
        B, L, D, N = 1, 2048, 512, 128
        A_re = -(lambda _x: torch.exp(torch.as_tensor(_x)))((lambda *s: torch.randn(*s, dtype=torch.bfloat16) * 12.8)(D, N))
        A_im = torch.pi * (lambda *s: torch.randn(*s, dtype=torch.bfloat16) * 0.05)(D, N)
        B_re = (lambda *s: torch.randn(*s, dtype=torch.bfloat16) * 0.1)(D, N)
        B_im = (lambda *s: torch.randn(*s, dtype=torch.bfloat16) * 0.1)(D, N)
        C_re = (lambda *s: torch.randn(*s, dtype=torch.bfloat16) * 0.2)(D, N)
        C_im = (lambda *s: torch.randn(*s, dtype=torch.bfloat16) * 0.2)(D, N)
        log_dt = (lambda *s: torch.randn(*s, dtype=torch.bfloat16) * 0.05)(D) * 0.5 - 4.0
        Dskip = (lambda *s: torch.randn(*s, dtype=torch.bfloat16) * 0.05)(D)
        return {
            "u": _w((lambda *s: torch.randn(*s, dtype=torch.bfloat16) * 0.05)(B, L, D)),
            "A_re": _w(A_re),
            "A_im": _w(A_im),
            "B_re": _w(B_re),
            "B_im": _w(B_im),
            "C_re": _w(C_re),
            "C_im": _w(C_im),
            "log_dt": _w(log_dt),
            "Dskip": _w(Dskip),
        }
    _A_in = _A_setup()

    def _B_setup():
        B, S, D, F = 1, 2048, 512, 1792
        return {
            "x": _w((lambda *s: torch.randn(*s, dtype=torch.bfloat16) * 0.05)(B, S, D)),
            "w1": _w((lambda *s: torch.randn(*s, dtype=torch.bfloat16) * 0.8)(D, F) * (D ** -0.5)),
            "b1": _w((lambda *s: torch.randn(*s, dtype=torch.bfloat16) * 12.8)(F) * 0.01),
            "w2": _w((lambda *s: torch.randn(*s, dtype=torch.bfloat16) * 0.8)(F, D) * (F ** -0.5)),
            "b2": _w((lambda *s: torch.randn(*s, dtype=torch.bfloat16) * 12.8)(D) * 0.01),
        }
    _B_in = _B_setup()

    return {
        "A_u": _A_in["u"],
        "A_A_re": _A_in["A_re"],
        "A_A_im": _A_in["A_im"],
        "A_B_re": _A_in["B_re"],
        "A_B_im": _A_in["B_im"],
        "A_C_re": _A_in["C_re"],
        "A_C_im": _A_in["C_im"],
        "A_log_dt": _A_in["log_dt"],
        "A_Dskip": _A_in["Dskip"],
        "B_x": _B_in["x"],
        "B_w1": _B_in["w1"],
        "B_b1": _B_in["b1"],
        "B_w2": _B_in["w2"],
        "B_b2": _B_in["b2"],
    }

def reference(A_u, A_A_re, A_A_im, A_B_re, A_B_im, A_C_re, A_C_im, A_log_dt, A_Dskip, B_x, B_w1, B_b1, B_w2, B_b2):
    def _A_ref(u, A_re, A_im, B_re, B_im, C_re, C_im, log_dt, Dskip):
        Bsz, L, D = u.shape
        dt = torch.exp(log_dt)[:, None]
        A = A_re + 1j * A_im
        Bc = B_re + 1j * B_im
        Cc = C_re + 1j * C_im
        logdA = dt * A
        dB = dt * Bc
        l = (lambda x, dt: x.to(dt))(torch.arange(L), A_re.dtype)
        P = torch.exp(logdA[:, :, None] * l[None, None, :])
        K = torch.einsum("dn,dnl,dn->dl", Cc, P, dB).real
        L2 = 2 * L
        Kp = _pad(K, ((0, 0), (0, L)))
        up = (lambda x, *d: x.permute(*d))(u, 0, 2, 1)
        up = _pad(up, ((0, 0), (0, 0), (0, L)))
        Kf = (lambda x, axes=(-2,-1): torch.fft.rfft2(x.float(), dim=axes))(Kp[:, None, :], axes=(-2, -1))
        Uf = (lambda x, axes=(-2,-1): torch.fft.rfft2(x.float(), dim=axes))(up[:, :, None, :], axes=(-2, -1))
        Yf = Uf * Kf[None, :, :, :]
        y = (lambda x, s, axes=(-2,-1): torch.fft.irfft2(x, s=s, dim=axes).to(torch.bfloat16))(Yf, (1, L2), axes=(-2, -1))[:, :, 0, :L]
        y = (lambda x, *d: x.permute(*d))(y, 0, 2, 1) + u * Dskip[None, None, :]
        return y

    def _B_ref(x, w1, b1, w2, b2):
        h = torch.einsum("bsd,df->bsf", x, w1) + b1
        h = _gelu(h)
        return torch.einsum("bsf,fd->bsd", h, w2) + b2

    x = A_u
    xn = _layernorm(x, axis=-1)
    return x + _A_ref(xn, A_A_re, A_A_im, A_B_re, A_B_im, A_C_re, A_C_im, A_log_dt, A_Dskip) + _B_ref(xn, B_w1, B_b1, B_w2, B_b2)
```

```python
import re

TRANS = ("v_exp_f32", "v_log_f32", "v_rcp_f32", "v_rsq_f32", "v_sqrt_f32", "v_sin_f32", "v_cos_f32", "v_rcp_iflag_f32")
REG_RE = re.compile(r"(?<![\w.])([vas])(?:(\d+)|\[(\d+):(\d+)\])(?![\w])")


def regs_of(tok):
    out = set()
    for m in REG_RE.finditer(tok):
        k = m.group(1)
        if m.group(2) is not None:
            out.add((k, int(m.group(2))))
        else:
            for i in range(int(m.group(3)), int(m.group(4)) + 1):
                out.add((k, i))
    t = tok.strip().lstrip("-").strip("|")
    if t in ("vcc", "vcc_lo", "vcc_hi"):
        out.add(("s", "vcc"))
    if t in ("exec", "exec_lo", "exec_hi"):
        out.add(("s", "exec"))
    if t == "m0":
        out.add(("s", "m0"))
    return out


def mfma_passes(op):
    if "4x4x4" in op:
        return 2
    if "32x32x16" in op or "32x32x8" in op:
        return 8
    if "16x16x32" in op or "16x16x16" in op:
        return 4
    raise ValueError(op)


class Ins:
    def __init__(self, text):
        self.text = text
        t = text.split(";")[0].strip()
        self.label = t.endswith(":")
        self.directive = t.startswith(".")
        self.empty = t == ""
        self.op = ""
        self.vw = set(); self.vr = set(); self.sw = set(); self.sr = set()
        self.valu = self.mfma = self.trans = self.dot = self.dpp = self.permlane = self.readlane = False
        self.salu = self.smem = self.ds = self.vmem = self.branch = self.sdwa = False
        self.store_wide = False; self.data = set(); self.uses_m0 = False
        self.isload = False
        self.A = self.B = self.C = set()
        self.ws = 1
        if self.label or self.directive or self.empty:
            self.ws = 0
            return
        parts = t.split(None, 1)
        op = self.op = parts[0]
        rest = parts[1] if len(parts) > 1 else ""
        ops = []
        depth = 0; cur = ""
        for ch in rest:
            if ch == "[": depth += 1
            if ch == "]": depth -= 1
            if ch == "," and depth == 0:
                ops.append(cur.strip()); cur = ""
            else:
                cur += ch
        if cur.strip(): ops.append(cur.strip())
        mods = ""
        if ops:
            sp = ops[-1].split(None, 1)
            ops[-1] = sp[0]
            mods = sp[1] if len(sp) > 1 else ""
        self.ops = ops; self.mods = mods
        R = [regs_of(o) for o in ops]
        def split(rs):
            v = set(r for r in rs if r[0] in "va"); s = set(r for r in rs if r[0] == "s"); return v, s
        def rd(*idx):
            for i in idx:
                if i < len(R):
                    v, s = split(R[i]); self.vr |= v; self.sr |= s
        def wr(*idx):
            for i in idx:
                v, s = split(R[i]); self.vw |= v; self.sw |= s
        n = len(ops)
        if op == "s_nop":
            self.ws = int(ops[0], 0) + 1
        elif op in ("s_waitcnt", "s_barrier", "s_endpgm", "s_setprio", "s_sleep"):
            pass
        elif op.startswith("s_cbranch") or op == "s_branch":
            self.branch = True
        elif op.startswith("s_load") or op.startswith("s_buffer_load") or op in ("s_memtime", "s_memrealtime"):
            self.smem = True; wr(0); rd(*range(1, n))
        elif op.startswith("s_cmp") or op.startswith("s_bitcmp"):
            self.salu = True; rd(*range(n))
        elif op.startswith("s_"):
            self.salu = True; wr(0); rd(*range(1, n))
            if "saveexec" in op:
                self.sw.add(("s", "exec")); self.sr.add(("s", "exec"))
            if op in ("s_addk_i32", "s_mulk_i32"): rd(0)
        elif op.startswith("v_mfma"):
            self.valu = self.mfma = True
            self.passes = mfma_passes(op)
            wr(0); rd(1, 2, 3)
            self.A, self.B, self.C = R[1], R[2], R[3]
        elif op.startswith("v_"):
            self.valu = True
            base = op.replace("_e32", "").replace("_e64", "").replace("_dpp", "").replace("_sdwa", "")
            self.trans = base in TRANS
            self.dot = base.startswith("v_dot")
            self.dpp = "_dpp" in op or "quad_perm" in mods or "row_" in mods or "wave_" in mods
            self.sdwa = "_sdwa" in op
            self.permlane = base.startswith("v_permlane")
            self.readlane = base in ("v_readlane_b32", "v_readfirstlane_b32", "v_writelane_b32")
            if self.permlane:
                wr(0, 1); rd(0, 1)
            elif base.startswith("v_cmpx"):
                raise ValueError("avoid v_cmpx")
            elif base in ("v_add_co_u32", "v_sub_co_u32", "v_addc_co_u32", "v_subb_co_u32", "v_mad_u64_u32", "v_div_scale_f32"):
                wr(0, 1); rd(*range(2, n))
            else:
                wr(0); rd(*range(1, n))
                if base in ("v_fmac_f32", "v_dot2c_f32_bf16", "v_writelane_b32", "v_pk_fmac_f16") or self.dpp or self.sdwa:
                    rd(0)
        elif op.startswith("ds_"):
            self.ds = True
            if op.startswith("ds_read") or "_rtn" in op or op.startswith("ds_bpermute") or op.startswith("ds_permute") or op.startswith("ds_swizzle"):
                wr(0); rd(*range(1, n)); self.isload = True
                if "d16" in op: rd(0)
            else:
                rd(*range(n))
        elif op.startswith("buffer_") or op.startswith("global_"):
            self.vmem = True
            toks = mods.split()
            if op in ("buffer_inv", "buffer_wbl2"):
                pass
            elif "_load" in op:
                if "lds" in toks or "load_lds" in op:
                    rd(*range(n)); self.uses_m0 = True
                else:
                    wr(0); rd(*range(1, n)); self.isload = True
                    if "d16" in op: rd(0)
            elif "atomic" in op:
                rd(*range(n))
                if "sc0" in toks:
                    wr(0); self.isload = True
            else:
                rd(*range(n))
                if "x3" in op or "x4" in op:
                    self.store_wide = True
                    self.data = R[0] if op.startswith("buffer_") else R[1]
        else:
            raise ValueError("unknown op: " + text)


TB_V = {2: 5, 4: 8, 8: 12, 16: 20}
TB_C = {2: 4, 4: 6, 8: 10, 16: 18}
TB_W = {2: 1, 4: 3, 8: 7, 16: 15}


def req(p, c):
    r = 0
    if p.valu and not p.mfma:
        ov = p.vw & c.vr
        if ov:
            if c.mfma or c.dpp or c.permlane: r = max(r, 2)
            if c.readlane: r = max(r, 1)
            if p.trans and not c.trans: r = max(r, 1)
            if p.sdwa or ("op_sel" in p.mods and not p.op.startswith("v_pk_")): r = max(r, 1)
            if p.dot:
                if c.op == p.op and len(c.ops) >= 3 and not (ov & (regs_of(c.ops[1]) | regs_of(c.ops[2]))):
                    pass
                else:
                    r = max(r, 3)
        if p.dot and (p.vw & c.vw) and c.op != p.op: r = max(r, 3)
        if p.sdwa and (p.vw & c.vw): r = max(r, 1)
        ovs = p.sw & c.sr
        if ovs:
            if c.valu: r = max(r, 4 if c.readlane else 2)
            if c.vmem: r = max(r, 5)
            if c.salu or c.smem: r = max(r, 1)
        if ("s", "vcc") in p.sw and c.branch and "vcc" in c.op: r = max(r, 1)
    if p.mfma:
        n = p.passes
        if c.mfma:
            if p.vw & (c.A | c.B): r = max(r, TB_V[n])
            if p.vw & c.C:
                if p.vw == c.C and c.passes == n: r = max(r, 2 if n == 2 else 0)
                else: r = max(r, TB_C[n])
            elif p.vw & c.vw: r = max(r, TB_C[n])
        else:
            if p.vw & (c.vr | c.vw): r = max(r, TB_V[n])
            if (p.C & c.vw) and c.valu: r = max(r, TB_W[n])
    if p.salu and ("s", "m0") in p.sw and c.uses_m0: r = max(r, 1)
    if p.store_wide and (p.data & c.vw): r = max(r, 2 if c.valu else 1)
    return r


def fix_hazards(lines, verbose=False):
    out = []
    hist = []
    pos = 0
    added = 0
    for text in lines:
        c = Ins(text)
        if c.ws == 0:
            out.append(text); continue
        need = 0
        for p, pp in hist:
            d = pos - pp - 1
            rq = req(p, c)
            if rq > d: need = max(need, rq - d)
        if c.op == "s_nop": need = 0
        while need > 0:
            k = min(need, 16)
            out.append(f"    s_nop {k-1}    ; hz")
            pos += k; need -= k; added += k
        out.append(text)
        pos += c.ws
        hist.append((c, pos - 1))
        hist = [(p, pp) for p, pp in hist if pos - pp <= 24]
    if verbose: print("hazard nops added:", added)
    return out


WAIT_RE = re.compile(r"(vmcnt|lgkmcnt)\((\d+)\)")


def check_waits(lines, name=""):
    vm = []
    lg = []
    errs = 0
    for ln, text in enumerate(lines):
        c = Ins(text)
        if c.ws == 0: continue
        if c.op == "s_endpgm" or "RESETSB" in text:
            vm = []; lg = []
            continue
        if c.op == "s_waitcnt":
            for k, n in WAIT_RE.findall(text.split(";")[0]):
                n = int(n)
                if k == "vmcnt":
                    if len(vm) > n: vm = vm[len(vm) - n:] if n else []
                else:
                    if n == 0: lg = []
                    else:
                        sm = [e for e in lg if e[1]]; dsl = [e for e in lg if not e[1]]
                        if len(dsl) > n: dsl = dsl[len(dsl) - n:]
                        lg = sm + dsl
            continue
        touched = c.vr | c.vw | c.sr | c.sw
        if errs > 10: break
        if c.op in ("s_memtime", "s_memrealtime"): touched = set()
        for d in vm:
            if d & touched:
                if c.vmem and c.isload and not (d & (c.vr | c.sr)): continue
                print(f"[{name}] line {ln}: '{text.strip()}' touches pending vmem dst {sorted(d & touched)[:4]}"); errs += 1; break
        for d, s in lg:
            if d & touched:
                if c.ds and c.isload and not s and not (d & (c.vr | c.sr)): continue
                print(f"[{name}] line {ln}: '{text.strip()}' touches pending lgkm dst {sorted(d & touched, key=str)[:4]}"); errs += 1; break
        if c.vmem:
            vm.append(set(c.vw))
            if len(vm) > 63: print(f"[{name}] line {ln}: vmcnt overflow ({len(vm)})")
        if c.ds: lg.append((set(c.vw), False))
        if c.smem: lg.append((set(c.sw), True))
    return errs


import os
STAMPS = bool(os.environ.get("STAMPS"))
ST_BASE = 80

class Asm:
    def __init__(self):
        self.lines = []
    def stamp(self, k, real=False):
        if STAMPS: self(f"{'s_memrealtime' if real else 's_memtime'} s[{ST_BASE+2*k}:{ST_BASE+2*k+1}]")
    def stamp_flush(self, kidx, wave="s20", n=11):
        if not STAMPS: return
        self.stamp(9); self.stamp(10, True)
        self("s_waitcnt vmcnt(0) lgkmcnt(0)")
        self("s_mov_b64 exec, -1")
        self("v_mov_b32 v1, 0")
        for k in range(n): self(f"v_writelane_b32 v1, s{ST_BASE+2*k}, {k}")
        self(f"""
        s_add_u32 s4, s42, {(32<<20) + kidx*(1<<20)}
        s_addc_u32 s5, s43, 0
        s_mov_b32 s6, 0x100000
        s_mov_b32 s7, 0x00020000
        s_lshl_b32 s8, s2, 3
        s_add_u32 s8, s8, {wave}
        s_lshl_b32 s8, s8, 8
        v_lshlrev_b32 v2, 2, v0
        buffer_store_dword v1, v2, s[4:7], s8 offen
        """)
    def __call__(self, s):
        for l in s.split("\n"):
            if l.strip(): self.lines.append("    " + l.strip() if not l.strip().endswith(":") else l.strip())
    def label(self, n): self.lines.append(n + ":")
    def extend(self, ls):
        for l in ls: self(l)


def v(i, n=1): return f"v{i}" if n == 1 else f"v[{i}:{i+n-1}]"
def a(i, n=1): return f"a{i}" if n == 1 else f"a[{i}:{i+n-1}]"
def s(i, n=1): return f"s{i}" if n == 1 else f"s[{i}:{i+n-1}]"


def interleave(main, fill, start=0, end=None, weights=None):
    if end is None: end = len(main)
    out = []
    n = end - start
    k = 0
    for i, m in enumerate(main):
        out.append(m)
        if start <= i < end:
            tgt = (len(fill) * (i - start + 1) + n - 1) // n
            while k < min(tgt, len(fill)):
                out.append(fill[k]); k += 1
    out.extend(fill[k:])
    return out


def kernel_section(name, lines, vgpr, sgpr, accum):
    body = "\n".join(lines)
    return f""".text
.globl {name}
.p2align 8
.type {name},@function
{name}:
{body}
.section .rodata,"a"
.p2align 6
.amdhsa_kernel {name}
  .amdhsa_next_free_vgpr {vgpr}
  .amdhsa_next_free_sgpr {sgpr}
  .amdhsa_accum_offset {accum}
  .amdhsa_group_segment_fixed_size 0
  .amdhsa_kernarg_size 136
  .amdhsa_user_sgpr_count 2
  .amdhsa_user_sgpr_kernarg_segment_ptr 1
  .amdhsa_system_sgpr_workgroup_id_x 1
.end_amdhsa_kernel
"""
```

```python
import sys
from asmlib import *
import gen_k1
HEADER = open("parallel_sum__ssm_conv_s4__dense_activation_gelu__prompt.s.ref").read().split("; Override launch")[0]
def build(kernels):
    s = HEADER
    for name, g, b, lds, _ in kernels:
        s += f"; @launch kernel={name} grid=({g},1,1) block=({b},1,1) lds={lds}\n"
    s += '.amdgcn_target "amdgcn-amd-amdhsa--gfx950"\n'
    seen = set()
    for name, g, b, lds, text in kernels:
        if name in seen: continue
        seen.add(name); s += text
    return s
if __name__ == "__main__":
    ks = [("k1_kernel", 256, 256, gen_k1.K1_LDS, gen_k1.gen_k1())]
    try:
        import gen_k2
        ks += gen_k2.kernels()
    except ImportError:
        pass
    out = sys.argv[1] if len(sys.argv) > 1 else "cur.s"
    open(out, "w").write(build(ks))
    print("wrote", out)
```

```python
from asmlib import *
import struct

def f2u(x): return struct.unpack("<I", struct.pack("<f", x))[0]

WS_HF = 0
HF_SIZE = 64 * 112 * 1024
WS_XNT = 8 << 20
XNT_SIZE = 2 << 20
WS_YA = 12 << 20
YA_SIZE = 2 << 20

KA = dict(u=0, A_re=8, A_im=16, B_re=24, B_im=32, C_re=40, C_im=48, log_dt=56, Dskip=64, Bx=72, w1=80, b1=88, w2=96, b2=104,
          out=112, dbg=120, ws=128)

K1_LDS_W1 = 0
K1_LDS_BNC = 131072
K1_LDS_CS = 131072 + 16384
K1_LDS_B1 = K1_LDS_CS + 512
K1_LDS = K1_LDS_B1 + 512

LOG2E = 1.4426950408889634
GC1 = -2.0 * LOG2E * 0.7978845608028654
GC2 = GC1 * 0.044715


def srd(A, d, lo, hi, size):
    A(f"s_mov_b32 s{d}, {lo}")
    A(f"s_mov_b32 s{d+1}, {hi}")
    A(f"s_mov_b32 s{d+2}, {size}")
    A(f"s_mov_b32 s{d+3}, 0x00020000")


def round_bf16(A, r):
    A(f"v_cvt_pk_bf16_f32 v{r}, v{r}, v{r}")
    A(f"v_and_b32 v{r}, 0xffff0000, v{r}")


def stats_finish(A, s1, s2, vm, vr_, vt):
    A(f"v_mul_f32 v{vm}, {hex(f2u(1/512))}, v{s1}")
    A(f"v_mul_f32 v{vr_}, {hex(f2u(1/512))}, v{s2}")
    A(f"v_fma_f32 v{vr_}, -v{vm}, v{vm}, v{vr_}")
    A(f"v_max_f32 v{vr_}, 0, v{vr_}")
    round_bf16(A, vm)
    round_bf16(A, vr_)
    A(f"v_add_f32 v{vr_}, {hex(f2u(1e-5))}, v{vr_}")
    round_bf16(A, vr_)
    A(f"v_sqrt_f32 v{vr_}, v{vr_}")
    round_bf16(A, vr_)
    A(f"v_rcp_f32 v{vt}, v{vr_}")
    A(f"v_fma_f32 v{vr_}, -v{vr_}, v{vt}, 1.0")
    A(f"v_fma_f32 v{vr_}, v{vr_}, v{vt}, v{vt}")


def gen_k1_gemm(A):
    VL = 0
    VXO = 1
    VWO = 2
    VBW = 3
    VBR = 4
    VTR = 8
    VONE = 16
    VNM, VR = 18, 19
    VC1, VC2 = 20, 21
    VHO = 22
    VCSA = 23
    VEP = 24
    VT = 25
    W = 32
    ACC = 64
    S1, S2, CS = 128, 136, 144
    ECS, EB1 = 152, 184
    GT = 216
    PK = 232
    NR = 4

    A(f"""
    s_load_dwordx2 s[40:41], s[0:1], {KA['u']}
    s_load_dwordx4 s[44:47], s[0:1], {KA['w1']}
    s_load_dwordx2 s[42:43], s[0:1], {KA['ws']}
    """)
    A(f"""
    v_lshrrev_b32 v{VT}, 3, v{VL}              ; row = l>>3
    v_and_b32 v{VT+1}, 7, v{VL}                ; c8
    v_lshlrev_b32 v{VXO}, 10, v{VT}
    v_lshl_add_u32 v{VXO}, v{VT+1}, 4, v{VXO}  ; x voffset
    v_lshrrev_b32 v{VT+2}, 2, v{VL}
    v_and_b32 v{VT+2}, 4, v{VT+2}              ; 4*((l>>4)&1)
    v_xor_b32 v{VT+2}, v{VT+2}, v{VT+1}
    v_mul_u32_u24 v{VWO}, 3584, v{VT}
    v_lshl_add_u32 v{VWO}, v{VT+2}, 4, v{VWO}  ; w1 voffset
    """)
    A(f"""
    s_lshl_b32 s23, s21, 7
    s_lshl_b32 s28, s20, 5
    s_add_u32 s23, s23, s28
    s_lshl_b32 s24, s23, 10
    s_add_u32 s25, s24, 8192
    s_add_u32 s26, s24, 16384
    s_add_u32 s27, s24, 24576
    s_mul_i32 s29, s20, {16*3584}
    s_lshl_b32 s28, s22, 8
    s_add_u32 s29, s29, s28
    s_lshl_b32 s30, s20, 11
    s_waitcnt lgkmcnt(0)
    """)
    srd(A, 4, "s40", "s41", 2 << 20)
    srd(A, 8, "s44", "s45", 512 * 3584)
    srd(A, 16, "s46", "s47", 3584)
    srd(A, 12, "s42", "s43", HF_SIZE)

    def xload(kc, i):
        return [f"buffer_load_dwordx4 a[{16*kc+4*i}:{16*kc+4*i+3}], v{VXO}, s[4:7], s{24+i} offen offset:{128*kc}"]
    def wdma(half, kc, j):
        return [f"s_add_u32 m0, s30, {half*65536 + (64*kc+8*j)*128}",
                f"s_add_u32 s31, s29, {(64*kc+8*j)*3584 + 128*half}",
                f"buffer_load_dwordx4 v{VWO}, s[8:11], s31 offen lds"]
    A(f"""
    v_mov_b32 v{VT+3}, 0
    s_lshl_b32 s28, s20, 7
    v_lshl_add_u32 v{VT+4}, v{VL}, 1, s28      ; tid*2
    s_lshl_b32 s28, s22, 8
    buffer_load_short_d16_hi v{VT+3}, v{VT+4}, s[16:19], s28 offen
    """)
    nvm = 1
    for kc in range(8):
        for i in range(4): A.extend(xload(kc, i))
        for j in range(2): A.extend(wdma(0, kc, j))
        nvm += 6
    lateB = []
    for kc in range(8):
        for j in range(2):
            if nvm < 62:
                A.extend(wdma(1, kc, j)); nvm += 1
            else:
                lateB.append(wdma(1, kc, j))
    A(f"""
    s_lshl_b32 s28, s20, 12
    s_add_u32 s28, s28, {K1_LDS_BNC}
    v_lshrrev_b32 v{VT+2}, 4, v{VL}            ; l>>4 (0..3)
    v_xor_b32 v{VT+2}, v{VT+2}, v{VT+1}        ; c8 ^ (l>>4)
    v_lshlrev_b32 v{VBW}, 7, v{VT}
    v_lshl_add_u32 v{VBW}, v{VT+2}, 4, v{VBW}
    v_add_u32 v{VBW}, s28, v{VBW}
    v_xor_b32 v{VT+5}, 64, v{VBW}
    """)
    VBW2 = VT + 5
    A(f"""
    v_and_b32 v{VT}, 31, v{VL}
    v_lshrrev_b32 v{VT+1}, 5, v{VL}            ; hh
    v_bfe_u32 v{VT+2}, v{VL}, 1, 3             ; (row>>1)&7
    v_xor_b32 v{VT+2}, v{VT+2}, v{VT+1}
    s_lshl_b32 s31, s20, 1
    v_xor_b32 v{VT+2}, s31, v{VT+2}            ; ^ 2w
    v_lshlrev_b32 v{VBR}, 7, v{VT}
    v_lshl_add_u32 v{VBR}, v{VT+2}, 4, v{VBR}
    v_add_u32 v{VBR}, s28, v{VBR}
    v_xor_b32 v{VBR+1}, 32, v{VBR}
    v_xor_b32 v{VBR+2}, 64, v{VBR}
    v_xor_b32 v{VBR+3}, 96, v{VBR}
    """)
    A(f"""
    v_bfe_u32 v{VT+2}, v{VL}, 2, 2             ; r
    v_lshl_add_u32 v{VTR}, v{VT+1}, 3, v{VT+2}
    v_lshlrev_b32 v{VTR}, 7, v{VTR}
    v_bfe_u32 v{VT+6}, v{VL}, 4, 1             ; dsub
    v_lshl_add_u32 v{VTR}, v{VT+6}, 5, v{VTR}
    v_and_b32 v{VT+6}, 3, v{VL}
    v_lshl_add_u32 v{VTR}, v{VT+6}, 3, v{VTR}
    v_bfe_u32 v{VT+6}, v{VL}, 3, 1             ; r>>1
    v_lshl_add_u32 v{VTR}, v{VT+6}, 6, v{VTR}
    s_lshl_b32 s31, s20, 11
    v_add_u32 v{VTR}, s31, v{VTR}
    """)
    for i in range(4):
        for ft in range(2):
            if i == 0 and ft == 0: continue
            A(f"v_xor_b32 v{VTR+2*i+ft}, {i*2048 + ft*64}, v{VTR}")
    A(f"""
    v_mov_b32 v{VONE}, 0x3f803f80
    v_mov_b32 v{VONE+1}, 0x3f803f80
    v_mov_b32 v{VC1}, {hex(f2u(GC1))}
    v_mov_b32 v{VC2}, {hex(f2u(GC2))}
    v_lshlrev_b32 v{VHO}, 4, v{VL}
    v_lshlrev_b32 v{VCSA}, 2, v{VT}            ; (l&31)*4
    v_add_u32 v{VCSA}, {K1_LDS_CS}, v{VCSA}
    v_lshlrev_b32 v{VEP}, 4, v{VT+1}           ; hh*16
    v_add_u32 v{VEP}, {K1_LDS_CS}, v{VEP}
    s_lshl_b32 s32, s21, 2
    s_add_u32 s32, s32, s20
    s_mul_i32 s32, s32, {112*1024}
    s_lshl_b32 s28, s22, 13
    s_add_u32 s32, s32, s28
    """)
    for i in range(64): A(f"v_mov_b32 v{ACC+i}, 0")
    for i in range(24): A(f"v_mov_b32 v{S1+i}, 0")
    A(f"""
    v_lshlrev_b32 v{VT+4}, 1, v{VT+4}          ; tid*4
    v_add_u32 v{VT+4}, {K1_LDS_B1}, v{VT+4}
    s_cmp_lt_u32 s20, 2
    s_cbranch_scc1 L_k1_b1
    v_subrev_u32 v{VT+4}, 1024, v{VT+4}
    ds_write_b32 v{VT+4}, v{ACC}
    s_branch L_k1_b1done
    L_k1_b1:
    s_waitcnt vmcnt({nvm-1})
    ds_write_b32 v{VT+4}, v{VT+3}
    L_k1_b1done:
    s_waitcnt vmcnt({nvm-1})
    """)
    nvm -= 1

    def trreads(kc, i, slot):
        base = W + 8 * slot
        o = []
        for ft in range(2):
            for sec in range(2):
                o.append(f"ds_read_b64_tr_b16 v[{base+4*ft+2*sec}:{base+4*ft+2*sec+1}], v{VTR+2*i+ft} offset:{kc*8192+sec*512}")
        return o
    def mfmas(half, kc, i, slot, stats, cs):
        base = W + 8 * slot
        xa = 16 * kc + 4 * i
        o = []
        small = []
        if stats:
            small += [f"v_mfma_f32_4x4x4_16b_bf16 v[{S1}:{S1+3}], v[{VONE}:{VONE+1}], a[{xa}:{xa+1}], v[{S1}:{S1+3}]",
                      f"v_mfma_f32_4x4x4_16b_bf16 v[{S2}:{S2+3}], a[{xa}:{xa+1}], a[{xa}:{xa+1}], v[{S2}:{S2+3}]",
                      f"v_mfma_f32_4x4x4_16b_bf16 v[{S1+4}:{S1+7}], v[{VONE}:{VONE+1}], a[{xa+2}:{xa+3}], v[{S1+4}:{S1+7}]",
                      f"v_mfma_f32_4x4x4_16b_bf16 v[{S2+4}:{S2+7}], a[{xa+2}:{xa+3}], a[{xa+2}:{xa+3}], v[{S2+4}:{S2+7}]"]
        big = [f"v_mfma_f32_32x32x16_bf16 v[{ACC+32*half+16*ft}:{ACC+32*half+16*ft+15}], v[{base+4*ft}:{base+4*ft+3}], a[{xa}:{xa+3}], v[{ACC+32*half+16*ft}:{ACC+32*half+16*ft+15}]"
               for ft in range(2)]
        if cs:
            c = lambda ft, sec: f"v_mfma_f32_4x4x4_16b_bf16 v[{CS+4*ft}:{CS+4*ft+3}], v[{VONE}:{VONE+1}], v[{base+4*ft+2*sec}:{base+4*ft+2*sec+1}], v[{CS+4*ft}:{CS+4*ft+3}]"
            o = [c(0, 0), c(1, 0), big[0]] + small[:2] + [c(0, 1), c(1, 1), big[1]] + small[2:]
        else:
            o = [big[0]] + small[:2] + [big[1]] + small[2:]
        return o
    def sync_chunk(kc):
        nonlocal nvm
        nvm -= 6
        o = [f"s_waitcnt vmcnt({nvm})"]
        for i in range(4):
            o.append(f"ds_write_b128 v{VBW if i % 2 == 0 else VBW2}, a[{16*kc+4*i}:{16*kc+4*i+3}] offset:{i*1024}")
        for i in range(4):
            o.append(f"ds_read_b128 a[{16*kc+4*i}:{16*kc+4*i+3}], v{VBR+i}")
        return o

    AHEAD = 2
    steps = [(kc, i) for kc in range(8) for i in range(4)]
    A.stamp(2)
    A.extend(sync_chunk(0))
    A("s_waitcnt lgkmcnt(8)")
    A("s_barrier")
    A.stamp(3)
    for l in lateB: A.extend(l); nvm += 1
    q = ["x0"] * 8
    def emit_reads(g):
        kc, i = steps[g]
        A.extend(trreads(kc, i, g % NR)); q.extend([("w", g)] * 4)
    def wait_for(tags):
        idx = max((k for k, t in enumerate(q) if t in tags), default=-1)
        n = len(q) - 1 - idx
        if idx >= 0:
            A(f"s_waitcnt lgkmcnt({min(n, 15)})")
            del q[:len(q) - min(n, 15)]
    for g in range(AHEAD): emit_reads(g)
    for g in range(32):
        kc, i = steps[g]
        gn = g + AHEAD
        if gn < 32:
            if steps[gn][1] == 0:
                A.extend(sync_chunk(steps[gn][0])); q.extend([f"x{steps[gn][0]}"] * 8)
                A("s_barrier")
            emit_reads(gn)
        wait_for([("w", g), f"x{kc}"])
        A.extend(mfmas(0, kc, i, g % NR, True, i == 0))
    A.stamp(4)
    for k in range(8): A(f"v_add_u32 v{VTR+k}, 0x10000, v{VTR+k}")
    A(f"ds_add_f32 v{VCSA}, v{CS}")
    A(f"ds_add_f32 v{VCSA}, v{CS+4} offset:128")
    A(f"s_waitcnt vmcnt(0) lgkmcnt(0)")
    A("s_barrier")
    q.clear()
    A.stamp(5)
    stepsB = [(kc, 0) for kc in range(8)] + [(kc, i) for kc in range(8) for i in range(1, 4)]
    def emit_readsB(g):
        kc, i = stepsB[g]
        A.extend(trreads(kc, i, g % NR)); q.extend([("w", g)] * 4)
    for g in range(AHEAD): emit_readsB(g)
    def ep_reads(half):
        o = []
        for ft in range(2):
            for qq in range(4):
                o.append(f"ds_read_b128 v[{ECS+16*ft+4*qq}:{ECS+16*ft+4*qq+3}], v{VEP} offset:{half*256+ft*128+qq*32}")
                o.append(f"ds_read_b128 v[{EB1+16*ft+4*qq}:{EB1+16*ft+4*qq+3}], v{VEP} offset:{512+half*256+ft*128+qq*32}")
        return o
    er = ep_reads(0)
    A.extend(er[:8]); q.extend(["e0"] * 8)
    for k in range(8): A(f"v_mov_b32 v{CS+k}, 0")
    A(f"""
    v_add_f32 v{S1}, v{S1}, v{S1+4}
    v_add_f32 v{S2}, v{S2}, v{S2+4}
    v_add_f32 v{S2+1}, v{S2+1}, v{S2+5}
    v_add_f32 v{S2+2}, v{S2+2}, v{S2+6}
    v_add_f32 v{S2+3}, v{S2+3}, v{S2+7}
    s_mov_b32 s34, 0x22222222
    s_mov_b32 s35, 0x22222222
    s_mov_b32 s36, 0x44444444
    s_mov_b32 s37, 0x44444444
    s_mov_b32 s38, 0x88888888
    s_mov_b32 s39, 0x88888888
    v_cndmask_b32 v{S2}, v{S2}, v{S2+1}, s[34:35]
    v_cndmask_b32 v{S2}, v{S2}, v{S2+2}, s[36:37]
    v_cndmask_b32 v{S2}, v{S2}, v{S2+3}, s[38:39]
    v_mov_b32 v{S1+1}, v{S1}
    v_mov_b32 v{S2+1}, v{S2}
    v_permlane32_swap_b32 v{S1}, v{S1+1}
    v_permlane32_swap_b32 v{S2}, v{S2+1}
    v_add_f32 v{S1}, v{S1}, v{S1+1}
    v_add_f32 v{S2}, v{S2}, v{S2+1}
    """)
    stats_finish(A, S1, S2, VNM, VR, VT)
    A(f"v_sub_f32 v{VNM}, 0, v{VNM}")

    def gelu_group(half, ft, r0, n):
        o = []
        c = [ACC + 32 * half + 16 * ft + r0 + k for k in range(n)]
        cs = [ECS + 16 * ft + r0 + k for k in range(n)]
        b = [EB1 + 16 * ft + r0 + k for k in range(n)]
        t = [GT + k for k in range(n)]
        for k in range(n): o.append(f"v_fma_f32 v{c[k]}, v{VNM}, v{cs[k]}, v{c[k]}")
        for k in range(n): o.append(f"v_fma_f32 v{c[k]}, v{c[k]}, v{VR}, v{b[k]}")
        for k in range(n): o.append(f"v_mul_f32 v{t[k]}, v{c[k]}, v{c[k]}")
        for k in range(n): o.append(f"v_fma_f32 v{t[k]}, v{t[k]}, v{VC2}, v{VC1}")
        for k in range(n): o.append(f"v_mul_f32 v{t[k]}, v{t[k]}, v{c[k]}")
        for k in range(n): o.append(f"v_exp_f32 v{t[k]}, v{t[k]}")
        for k in range(n): o.append(f"v_add_f32 v{t[k]}, 1.0, v{t[k]}")
        for k in range(n): o.append(f"v_rcp_f32 v{t[k]}, v{t[k]}")
        for k in range(n): o.append(f"v_mul_f32 v{c[k]}, v{c[k]}, v{t[k]}")
        return o
    def gelu_group_pk(half, ft, r0, n):
        o = []
        P = lambda x: f"v[{x}:{x+1}]"
        c = [ACC + 32 * half + 16 * ft + r0 + k for k in range(0, n, 2)]
        cs = [ECS + 16 * ft + r0 + k for k in range(0, n, 2)]
        b = [EB1 + 16 * ft + r0 + k for k in range(0, n, 2)]
        t = [GT + k for k in range(0, n, 2)]
        m = len(c)
        for k in range(m): o.append(f"v_pk_fma_f32 {P(c[k])}, {P(VNM)}, {P(cs[k])}, {P(c[k])} op_sel:[0,0,0] op_sel_hi:[0,1,1]")
        for k in range(m): o.append(f"v_pk_fma_f32 {P(c[k])}, {P(c[k])}, {P(VNM)}, {P(b[k])} op_sel:[0,1,0] op_sel_hi:[1,1,1]")
        for k in range(m): o.append(f"v_pk_mul_f32 {P(t[k])}, {P(c[k])}, {P(c[k])}")
        for k in range(m): o.append(f"v_pk_fma_f32 {P(t[k])}, {P(t[k])}, {P(VC1)}, {P(VC1)} op_sel:[0,1,0] op_sel_hi:[1,1,0]")
        for k in range(m): o.append(f"v_pk_mul_f32 {P(t[k])}, {P(t[k])}, {P(c[k])}")
        for k in range(n): o.append(f"v_exp_f32 v{GT+k}, v{GT+k}")
        for k in range(m): o.append(f"v_pk_add_f32 {P(t[k])}, {P(t[k])}, 1.0 op_sel_hi:[1,0]")
        for k in range(n): o.append(f"v_rcp_f32 v{GT+k}, v{GT+k}")
        for k in range(m): o.append(f"v_pk_mul_f32 {P(c[k])}, {P(c[k])}, {P(t[k])}")
        return o
    def pack_store(half, ft, fr, pk):
        c = ACC + 32 * half + 16 * ft + 8 * fr
        o = [f"v_cvt_pk_bf16_f32 v{pk+k}, v{c+2*k}, v{c+2*k+1}" for k in range(4)]
        ks = 4 * half + 2 * ft + fr
        o.append(f"s_add_u32 s31, s32, {(ks//4)*4096}" )
        o.append(f"buffer_store_dwordx4 v[{pk}:{pk+3}], v{VHO}, s[12:15], s31 offen offset:{(ks%4)*1024}")
        return o

    fill = []
    for ft in range(2):
        for fr in range(2):
            fill += gelu_group(0, ft, 8 * fr, 4) + gelu_group(0, ft, 8 * fr + 4, 4) + pack_store(0, ft, fr, PK + 4 * (2 * ft + fr))
    nf = len(fill); fpos = 0
    FSTART = 1
    for g in range(32):
        kc, i = stepsB[g]
        gn = g + AHEAD
        if gn < 32: emit_readsB(gn)
        if g == 0:
            A.extend(er[8:]); q.extend(["e1"] * 8)
        if g == FSTART: wait_for(["e0"])
        if g == FSTART + 4: wait_for(["e1"])
        wait_for([("w", g)])
        ms = mfmas(1, kc, i, g % NR, False, i == 0)
        if g >= FSTART:
            tgt = nf * (g - FSTART + 1) // (32 - FSTART)
            ff = fill[fpos:tgt]; fpos = tgt
            ms = interleave(ms, ff)
        A.extend(ms)
        if g == 9:
            A(f"ds_add_f32 v{VCSA}, v{CS} offset:256")
            A(f"ds_add_f32 v{VCSA}, v{CS+4} offset:384")
            q.extend(["cs"] * 2)
        if g == 13:
            wait_for(["cs"])
            A("s_barrier")
    A.stamp(6)
    er = ep_reads(1)
    A.extend(er)
    A("s_waitcnt lgkmcnt(8)")
    for ft in range(2):
        if ft == 1: A("s_waitcnt lgkmcnt(0)")
        for fr in range(2):
            A.extend(gelu_group_pk(1, ft, 8 * fr, 8))
            A.extend(pack_store(1, ft, fr, PK + 4 * (2 * ft + fr)))
    A.stamp(7)
    if STAMPS: A("s_waitcnt vmcnt(0)")
    A.stamp_flush(0)
    A("s_endpgm")


def gen_k1_ln(A):
    VL = 0
    Q = 16
    R = 80
    O = 144
    VT = 1
    A(f"""
    s_load_dwordx2 s[40:41], s[0:1], {KA['u']}
    s_load_dwordx2 s[42:43], s[0:1], {KA['ws']}
    v_lshrrev_b32 v1, 2, v{VL}
    v_and_b32 v2, 3, v{VL}
    v_lshlrev_b32 v3, 10, v1
    v_lshl_add_u32 v3, v2, 4, v3           ; Q voffset
    v_lshlrev_b32 v4, 4, v{VL}             ; R voffset
    s_lshl_b32 s23, s21, 6
    s_lshl_b32 s28, s20, 4
    s_add_u32 s23, s23, s28
    s_lshl_b32 s24, s23, 10
    s_waitcnt lgkmcnt(0)
    """)
    srd(A, 4, "s40", "s41", 2 << 20)
    A(f"s_add_u32 s44, s42, {WS_XNT}")
    A(f"s_addc_u32 s45, s43, 0")
    srd(A, 8, "s44", "s45", XNT_SIZE)
    A(f"s_add_u32 s46, s42, {WS_YA}")
    A(f"s_addc_u32 s47, s43, 0")
    srd(A, 12, "s46", "s47", YA_SIZE)
    for i in range(16):
        A(f"buffer_load_dwordx4 v[{Q+4*i}:{Q+4*i+3}], v3, s[4:7], s24 offen offset:{64*i}")
    for t in range(16):
        if t % 4 == 0: A(f"s_add_u32 s25, s24, {t*1024}")
        A(f"buffer_load_dwordx4 v[{R+4*t}:{R+4*t+3}], v4, s[4:7], s25 offen offset:{(t%4)*1024}")
    A(f"""
    v_mov_b32 v8, -1
    v_mov_b32 v9, -1
    v_mov_b32 v10, -1
    v_mov_b32 v11, -1
    s_lshl_b32 s26, s21, 16
    s_lshl_b32 s28, s20, 14
    s_add_u32 s26, s26, s28
    """)
    for t in range(16):
        if t % 4 == 0: A(f"s_add_u32 s25, s26, {t*1024}")
        A(f"buffer_store_dwordx4 v[8:11], v4, s[12:15], s25 offen offset:{(t%4)*1024}")
    A(f"""
    v_mov_b32 v5, 0x3f803f80
    v_mov_b32 v6, 0
    v_mov_b32 v7, 0
    v_mov_b32 v12, 0
    v_mov_b32 v13, 0
    v_mov_b32 v14, 0x00003f80
    v_mov_b32 v15, 0x3f800000
    """)
    for i in range(16):
        A(f"s_waitcnt vmcnt({32 + 15 - i})")
        for k in range(4):
            r = Q + 4 * i + k
            A(f"v_dot2_f32_bf16 v{6 if k%2==0 else 12}, v{r}, v5, v{6 if k%2==0 else 12}")
            A(f"v_dot2_f32_bf16 v{7 if k%2==0 else 13}, v{r}, v{r}, v{7 if k%2==0 else 13}")
    A(f"""
    v_add_f32 v6, v6, v12
    v_add_f32 v7, v7, v13
    v_add_f32_dpp v6, v6, v6 quad_perm:[1,0,3,2] row_mask:0xf bank_mask:0xf
    v_add_f32_dpp v7, v7, v7 quad_perm:[1,0,3,2] row_mask:0xf bank_mask:0xf
    v_add_f32_dpp v6, v6, v6 quad_perm:[2,3,0,1] row_mask:0xf bank_mask:0xf
    v_add_f32_dpp v7, v7, v7 quad_perm:[2,3,0,1] row_mask:0xf bank_mask:0xf
    """)
    A.stamp(3)
    stats_finish(A, 6, 7, 12, 13, 1)
    A("v_sub_f32 v12, 0, v12")
    for t in range(16):
        A(f"v_readlane_b32 s{48+t}, v12, {4*t}")
        A(f"v_readlane_b32 s{64+t}, v13, {4*t}")
    A(f"""
    v_and_b32 v1, 7, v{VL}
    s_lshl_b32 s28, s20, 1
    v_xor_b32 v1, s28, v1
    v_lshlrev_b32 v2, 10, v{VL}
    v_lshl_add_u32 v2, v1, 4, v2           ; half 0
    v_xor_b32 v3, 16, v2                   ; half 1
    s_waitcnt vmcnt(16)
    """)
    T = Q
    for tp in range(8):
        t0, t1 = 2 * tp, 2 * tp + 1
        for k in range(4):
            for h in range(2):
                e = 2 * k + h
                a0, a1 = T + 4 * e, T + 4 * e + 1
                A(f"v_dot2_f32_bf16 v{a0}, v{R+4*t0+k}, v{14+h}, s{48+t0}")
                A(f"v_dot2_f32_bf16 v{a1}, v{R+4*t1+k}, v{14+h}, s{48+t1}")
        for e in range(8):
            a0 = T + 4 * e
            A(f"v_cvt_pk_bf16_f32 v{a0+1}, v{a0}, v{a0+1}")
        for e in range(8):
            a0 = T + 4 * e
            A(f"v_lshlrev_b32 v{a0}, 16, v{a0+1}")
            A(f"v_and_b32 v{a0+1}, 0xffff0000, v{a0+1}")
        for e in range(8):
            a0 = T + 4 * e
            A(f"v_pk_mul_f32 v[{a0}:{a0+1}], v[{a0}:{a0+1}], s[{64+t0}:{64+t1}]")
        for e in range(8):
            a0 = T + 4 * e
            A(f"v_cvt_pk_bf16_f32 v{O+8*e+tp}, v{a0}, v{a0+1}")
        if tp in (3, 7):
            half = tp // 4
            for e in range(8):
                A(f"ds_write_b128 v{2+half}, v[{O+8*e+4*half}:{O+8*e+4*half+3}] offset:{e*128}")
    A(f"""
    v_lshrrev_b32 v1, 3, v{VL}
    v_and_b32 v5, 7, v{VL}
    v_lshlrev_b32 v6, 7, v1
    v_lshl_add_u32 v6, v5, 4, v6
    s_lshl_b32 s28, s20, 14
    v_add_u32 v6, s28, v6
    v_lshlrev_b32 v7, 12, v1
    v_lshl_add_u32 v7, v5, 4, v7
    s_lshl_b32 s26, s20, 19                ; 128w * 4096
    s_lshl_b32 s28, s21, 7
    s_add_u32 s26, s26, s28                ; + token0*2
    """)
    A.stamp(4)
    for i in range(8): A(f"v_xor_b32 v{8+i}, {16*i}, v6")
    A("s_waitcnt lgkmcnt(0)")
    A("s_barrier")
    for i in range(16):
        A(f"ds_read_b128 v[{R+4*i}:{R+4*i+3}], v{8+(i&7)} offset:{i*1024}")
    for i in range(16):
        A(f"s_waitcnt lgkmcnt({15-i})")
        A(f"s_add_u32 s25, s26, {i*32768}")
        A(f"buffer_store_dwordx4 v[{R+4*i}:{R+4*i+3}], v7, s[8:11], s25 offen")
    A.stamp(7)
    if STAMPS: A("s_waitcnt vmcnt(0)")
    A.stamp_flush(0)
    A("s_endpgm")


def gen_k1():
    A = Asm()
    A.stamp(0, True); A.stamp(1)
    for k in range(2, 9): A.stamp(k)
    A(f"""
    s_cmp_ge_u32 s2, 256
    s_cbranch_scc1 L_k1_exit
    v_lshrrev_b32 v1, 6, v0
    v_and_b32 v0, 63, v0
    s_and_b32 s23, s2, 7                   ; xcd
    s_lshr_b32 s24, s2, 3                  ; idx
    v_readfirstlane_b32 s20, v1
    s_and_b32 s25, s24, 3                  ; rbl
    s_lshr_b32 s26, s24, 2                 ; nsl
    s_cmp_eq_u32 s26, 7
    s_cbranch_scc1 L_k1_ln
    s_lshr_b32 s21, s23, 1
    s_lshl_b32 s21, s21, 2
    s_add_u32 s21, s21, s25                ; rb
    s_and_b32 s22, s23, 1
    s_mul_i32 s22, s22, 7
    s_add_u32 s22, s22, s26                ; ns
    """)
    gen_k1_gemm(A)
    A.label("L_k1_ln")
    A(f"""
    s_lshl_b32 s21, s23, 2
    s_add_u32 s21, s21, s25
    """)
    gen_k1_ln(A)
    A.label("L_k1_exit")
    A("s_endpgm")
    lines = fix_hazards(A.lines, verbose=True)
    check_waits(lines, "k1")
    return kernel_section("k1_kernel", lines, 256 + 128, 102, 256)
```

```python
from asmlib import *
from gen_k1 import KA, WS_HF, HF_SIZE, WS_XNT, XNT_SIZE, WS_YA, YA_SIZE, srd, f2u, round_bf16, LOG2E
import math, struct

DEPTH = 10
RING = DEPTH * 2048
L_RING = 0
L_CH = 4 * RING
CH_SIZE = 13056
OFF_E, OFF_O = 4608, 8768
L_STG = L_CH + 2 * CH_SIZE
STG = 8704
L_Y2 = L_STG + 4 * STG
L_FLAG = L_Y2 + 8192
K2_LDS = L_FLAG + 64
assert K2_LDS <= 163840, K2_LDS

USE_PK = True

VX, VB2 = 4, 8
VOO = 12


def bf16_split(x):
    u = f2u(x) & 0xFFFFFF00
    hi = struct.unpack("<f", struct.pack("<I", u))[0]
    return hi, x - hi


def gen_prologue(A):
    A(f"""
    s_cmp_ge_u32 s2, 256
    s_cbranch_scc1 L_k2_exit
    s_load_dwordx2 s[40:41], s[0:1], {KA['u']}
    s_load_dwordx4 s[44:47], s[0:1], {KA['w2']}
    s_load_dwordx2 s[48:49], s[0:1], {KA['out']}
    s_load_dwordx2 s[42:43], s[0:1], {KA['ws']}
    v_lshrrev_b32 v1, 6, v0
    v_and_b32 v0, 63, v0
    s_and_b32 s23, s2, 7
    s_lshr_b32 s24, s2, 3
    v_readfirstlane_b32 s20, v1
    s_and_b32 s25, s24, 3
    s_lshl_b32 s21, s23, 2
    s_add_u32 s21, s21, s25                ; rb
    s_lshr_b32 s22, s24, 2                 ; cb
    v_lshrrev_b32 v1, 3, v0
    v_and_b32 v2, 7, v0
    v_lshlrev_b32 v{VOO}, 10, v1
    v_lshl_add_u32 v{VOO}, v2, 4, v{VOO}   ; (l>>3)*1024 + (l&7)*16
    v_lshlrev_b32 v3, 4, v2                ; b2 voffset
    s_lshl_b32 s33, s21, 6
    s_lshl_b32 s28, s20, 3
    s_add_u32 s33, s33, s28
    s_lshl_b32 s33, s33, 10
    s_lshl_b32 s34, s22, 7
    s_add_u32 s33, s33, s34
    s_cmp_ge_u32 s20, 4
    s_cbranch_scc1 L_k2_conv
    """)


def ep_loads(A):
    srd(A, 4, "s40", "s41", 2 << 20)
    srd(A, 16, "s46", "s47", 1024)
    A(f"buffer_load_dwordx4 v[{VX}:{VX+3}], v{VOO}, s[4:7], s33 offen")
    A(f"buffer_load_dwordx4 v[{VB2}:{VB2+3}], v3, s[16:19], s34 offen")


def gen_gemm(A):
    VHO, VWO, VTR, VP = 13, 14, 15, 17
    VT = 21
    WF = 32
    ACC = 48
    H = 112
    A(f"""
    v_lshlrev_b32 v{VHO}, 4, v0
    v_lshrrev_b32 v{VT}, 2, v0
    v_and_b32 v{VT}, 4, v{VT}
    v_xor_b32 v{VT}, v{VT}, v2
    v_lshlrev_b32 v{VWO}, 10, v1
    v_lshl_add_u32 v{VWO}, v{VT}, 4, v{VWO}
    s_mul_i32 s24, s21, {2*112*1024}
    s_mul_i32 s28, s20, {28*1024}
    s_add_u32 s24, s24, s28
    s_add_u32 s25, s24, {112*1024}         ; tb1
    s_mul_i32 s26, s20, {448*1024}
    s_add_u32 s26, s26, s34                ; w2 base
    s_mul_i32 s27, s20, {RING}
    s_waitcnt lgkmcnt(0)
    """)
    srd(A, 8, "s44", "s45", 1792 * 1024)
    srd(A, 12, "s42", "s43", HF_SIZE)
    def loads(st):
        sl = st % DEPTH
        o = []
        for j in range(2):
            o += [f"s_add_u32 m0, s27, {sl*2048 + j*1024}",
                  f"s_add_u32 s31, s26, {(16*st + 8*j)*1024}",
                  f"buffer_load_dwordx4 v{VWO}, s[8:11], s31 offen lds"]
        if st % 4 == 0 and st > 0:
            o += ["s_add_u32 s24, s24, 4096", "s_add_u32 s25, s25, 4096"]
        for tb in range(2):
            o.append(f"buffer_load_dwordx4 v[{H+8*sl+4*tb}:{H+8*sl+4*tb+3}], v{VHO}, s[12:15], s{24+tb} offen offset:{(st%4)*1024}")
        return o
    for st in range(DEPTH): A.extend(loads(st))
    ep_loads(A)
    issued = DEPTH
    extra = 2
    A(f"""
    v_lshrrev_b32 v{VT+1}, 5, v0               ; hh
    v_bfe_u32 v{VT+2}, v0, 2, 2                ; r
    v_lshl_add_u32 v{VTR}, v{VT+1}, 2, v{VT+2}
    v_lshlrev_b32 v{VTR}, 7, v{VTR}
    v_bfe_u32 v{VT+2}, v0, 4, 1
    v_lshl_add_u32 v{VTR}, v{VT+2}, 5, v{VTR}
    v_and_b32 v{VT+2}, 3, v0
    v_lshl_add_u32 v{VTR}, v{VT+2}, 3, v{VTR}
    v_bfe_u32 v{VT+2}, v0, 3, 1
    v_lshl_add_u32 v{VTR}, v{VT+2}, 6, v{VTR}
    v_add_u32 v{VTR}, s27, v{VTR}
    v_xor_b32 v{VTR+1}, 64, v{VTR}
    v_and_b32 v{VT+2}, 31, v0
    v_xor_b32 v{VT+3}, v{VT+1}, v2             ; hh ^ (t&7)
    v_lshlrev_b32 v{VP}, 8, v{VT+2}
    v_lshl_add_u32 v{VP}, v{VT+3}, 4, v{VP}
    v_add_u32 v{VP}, s27, v{VP}
    v_xor_b32 v{VP+1}, 32, v{VP}
    v_xor_b32 v{VP+2}, 64, v{VP}
    v_xor_b32 v{VP+3}, 96, v{VP}
    """)
    for i in range(64): A(f"v_mov_b32 v{ACC+i}, 0")
    A("s_barrier")
    def outstanding_after(st):
        n = 4 * (issued - 1 - st)
        if st < DEPTH: n += extra
        return n
    def tr(st):
        sl = st % DEPTH; b = WF + 8 * (st % 2)
        return [f"ds_read_b64_tr_b16 v[{b+4*db+2*sec}:{b+4*db+2*sec+1}], v{VTR+db} offset:{sl*2048+sec*1024}" for db in range(2) for sec in range(2)]
    A.stamp(2)
    A(f"s_waitcnt vmcnt({outstanding_after(0)})")
    A.stamp(3)
    A.extend(tr(0))
    for st in range(28):
        if st + 1 < 28:
            A(f"s_waitcnt vmcnt({outstanding_after(st+1)})")
            A.extend(tr(st + 1))
            A("s_waitcnt lgkmcnt(4)")
        else:
            A("s_waitcnt lgkmcnt(0)")
        sl = st % DEPTH; b = WF + 8 * (st % 2)
        for tb in range(2):
            for db in range(2):
                c = ACC + 32 * tb + 16 * db
                A(f"v_mfma_f32_32x32x16_bf16 v[{c}:{c+15}], v[{b+4*db}:{b+4*db+3}], v[{H+8*sl+4*tb}:{H+8*sl+4*tb+3}], v[{c}:{c+15}]")
        if st + DEPTH < 28:
            A.extend(loads(st + DEPTH)); issued += 1
        if st == 13: A.stamp(4)
    A.stamp(5)
    for tb in range(2):
        for db in range(2):
            for q in range(4):
                c = ACC + 32 * tb + 16 * db + 4 * q
                A(f"ds_write_b128 v{VP+q}, v[{c}:{c+3}] offset:{tb*8192+db*128}")
    A("s_waitcnt vmcnt(0) lgkmcnt(0)")
    A.stamp(6)
    A("s_branch L_k2_final")


def cmul(d, x, y, t=None):
    P = lambda r: f"v[{r}:{r+1}]"
    if USE_PK:
        assert d != x and d != y
        return [f"v_pk_mul_f32 {P(d)}, {P(x)}, {P(y)} op_sel:[0,0] op_sel_hi:[0,1]",
                f"v_pk_fma_f32 {P(d)}, {P(x)}, {P(y)}, {P(d)} op_sel:[1,1,0] op_sel_hi:[1,0,1] neg_lo:[0,1,0]"]
    assert d != x and d != y
    return [f"v_mul_f32 v{d}, v{x}, v{y}", f"v_mul_f32 v{d+1}, v{x}, v{y+1}",
            f"v_fma_f32 v{d}, -v{x+1}, v{y+1}, v{d}", f"v_fma_f32 v{d+1}, v{x+1}, v{y}, v{d+1}"]


def zipm(*lists):
    o = []
    for k in range(max(len(l) for l in lists)):
        for l in lists:
            if k < len(l): o.append(l[k])
    return o


def pair_signal(A, idx):
    A(f"ds_write_b32 v14, v13 offset:{idx*16}")


def pair_sync(A, idx, name, signal=True):
    if signal: pair_signal(A, idx)
    A.label(name)
    A(f"""
    ds_read_b32 v16, v15 offset:{idx*16}
    s_waitcnt lgkmcnt(0)
    v_readfirstlane_b32 s28, v16
    s_cmp_eq_u32 s28, 1
    s_cbranch_scc0 {name}
    """)


def gen_conv(A):
    A(f"""
    s_load_dwordx8 s[52:59], s[0:1], {KA['A_re']}
    s_load_dwordx8 s[60:67], s[0:1], {KA['C_re']}
    s_sub_u32 s20, s20, 4
    s_lshr_b32 s35, s20, 1
    s_and_b32 s36, s20, 1
    s_lshl_b32 s37, s2, 1
    s_add_u32 s37, s37, s35                ; channel d
    s_mul_i32 s38, s35, {CH_SIZE}
    s_add_u32 s38, s38, {L_CH}
    s_mul_i32 s39, s20, {STG}
    s_add_u32 s39, s39, {L_STG}
    s_xor_b32 s28, s20, 1
    s_mul_i32 s50, s28, {STG}
    s_add_u32 s50, s50, {L_STG}
    v_mov_b32 v13, 1
    s_lshl_b32 s29, s20, 2
    s_add_u32 s29, s29, {L_FLAG}
    v_mov_b32 v14, s29
    s_lshl_b32 s29, s28, 2
    s_add_u32 s29, s29, {L_FLAG}
    v_mov_b32 v15, s29
    v_lshlrev_b32 v17, 1, v0
    v_lshlrev_b32 v18, 4, v0               ; l*16
    s_lshl_b32 s29, s37, 8
    s_lshl_b32 s28, s36, 7
    s_add_u32 s29, s29, s28
    s_lshl_b32 s30, s37, 1                 ; d*2
    v_mov_b32 v19, 0
    """)
    P0 = 20
    for k in range(8): A(f"v_mov_b32 v{P0+k}, 0")
    A("s_waitcnt lgkmcnt(0)")
    for k in range(6):
        srd(A, 8, f"s{52+2*k}", f"s{53+2*k}", 131072)
        A(f"buffer_load_short_d16_hi v{P0+k}, v17, s[8:11], s29 offen")
    for k in range(6, 8):
        srd(A, 8, f"s{52+2*k}", f"s{53+2*k}", 1024)
        A(f"buffer_load_short_d16_hi v{P0+k}, v19, s[8:11], s30 offen")
    A(f"""
    s_add_u32 s52, s42, {WS_XNT}
    s_addc_u32 s53, s43, 0
    s_add_u32 s54, s42, {WS_YA}
    s_addc_u32 s55, s43, 0
    """)
    srd(A, 8, "s52", "s53", XNT_SIZE)
    srd(A, 12, "s54", "s55", YA_SIZE)
    A(f"""
    s_lshl_b32 s29, s37, 12
    s_lshl_b32 s28, s36, 11
    s_add_u32 s29, s29, s28
    s_add_u32 s30, s38, s28
    s_add_u32 m0, s30, 512
    s_nop 0
    buffer_load_dwordx4 v18, s[8:11], s29 offen lds
    buffer_load_dwordx4 v18, s[8:11], s29 offen offset:1024 lds
    """)
    ep_loads(A)
    A(f"""
    v_lshlrev_b32 v28, 3, v0
    v_add_u32 v28, s38, v28
    v_mov_b32 v30, 0
    v_mov_b32 v31, 0
    ds_write_b64 v28, v[30:31]                        ; U pad 512B
    s_mov_b64 exec, 0xf
    ds_write_b64 v28, v[30:31] offset:{OFF_E+4096}
    ds_write_b64 v28, v[30:31] offset:{OFF_O+4096}
    s_mov_b64 exec, 1
    ds_write_b32 v14, v30
    ds_write_b32 v14, v30 offset:16
    ds_write_b32 v14, v30 offset:32
    s_mov_b64 exec, -1
    s_waitcnt lgkmcnt(0)
    s_barrier
    """)
    VW, VRD = 28, 29
    VEA, VEB = 30, 31
    VTA = 32
    VF = 36
    VYW, VYR, VYP, VXR = 37, 38, 39, 40
    VYO = 41
    T0 = 42
    A(f"""
    v_lshlrev_b32 v{VW}, 2, v0
    v_add_u32 v{VW}, s39, v{VW}
    v_and_b32 v{T0}, 31, v0
    v_lshrrev_b32 v{T0+1}, 5, v0
    v_mul_u32_u24 v{VRD}, 272, v{T0}
    v_lshl_add_u32 v{VRD}, v{T0+1}, 4, v{VRD}
    v_add_u32 v{VRD}, s39, v{VRD}
    v_lshlrev_b32 v{T0+2}, 4, v{T0}            ; 16 j
    s_add_u32 s28, s38, {OFF_E + 4080 - 1024}
    v_sub_u32 v{VEA}, s28, v{T0+2}
    v_lshlrev_b32 v{T0+3}, 9, v{T0+1}
    v_sub_u32 v{VEA}, v{VEA}, v{T0+3}
    s_add_u32 s28, s38, {OFF_E + 4080 - 2560}
    v_sub_u32 v{VEB}, s28, v{T0+2}
    v_lshlrev_b32 v{T0+3}, 10, v{T0+1}
    v_sub_u32 v{VEB}, v{VEB}, v{T0+3}
    v_and_b32 v{T0}, 15, v0                    ; rho / c
    v_lshrrev_b32 v{T0+1}, 4, v0               ; g
    v_and_b32 v{T0+2}, 1, v0
    v_mul_u32_u24 v{T0+2}, {OFF_O + 2 - OFF_E}, v{T0+2}
    s_lshl_b32 s28, s36, 8
    s_sub_u32 s28, s38, s28
    s_add_u32 s29, s28, {OFF_O + 2*2032 - 512 - 192}
    v_lshlrev_b32 v{T0+3}, 1, v{T0}
    v_sub_u32 v{VTA}, s29, v{T0+3}
    v_lshl_add_u32 v{VTA}, v{T0+1}, 4, v{VTA}
    v_sub_u32 v{VTA}, v{VTA}, v{T0+2}
    v_subrev_u32 v{VTA+1}, 1024, v{VTA}
    v_subrev_u32 v{VTA+2}, 2048, v{VTA}
    v_subrev_u32 v{VTA+3}, 3072, v{VTA}
    s_add_u32 s29, s28, {480 - 192}
    v_lshlrev_b32 v{VF}, 5, v{T0}
    v_lshl_add_u32 v{VF}, v{T0+1}, 4, v{VF}
    v_add_u32 v{VF}, s29, v{VF}
    v_bfe_u32 v{T0+2}, v0, 1, 2                ; (c>>1)&3
    v_xor_b32 v{T0+2}, v{T0+2}, v{T0+1}
    v_lshlrev_b32 v{VYW}, 6, v{T0}
    v_lshl_add_u32 v{VYW}, v{T0+2}, 4, v{VYW}
    v_add_u32 v{VYW}, s39, v{VYW}
    v_bfe_u32 v{T0+2}, v0, 2, 2
    v_lshlrev_b32 v{T0+3}, 1, v0
    v_xor_b32 v{T0+2}, v{T0+2}, v{T0+3}        ; (2l) ^ ((l>>2)&3)
    v_lshlrev_b32 v{T0+2}, 4, v{T0+2}
    s_lshl_b32 s28, s36, 12
    v_add_u32 v{T0+2}, s28, v{T0+2}
    v_add_u32 v{VYR}, s39, v{T0+2}
    v_add_u32 v{VYP}, s50, v{T0+2}
    s_lshl_b32 s28, s36, 11
    s_add_u32 s28, s28, s38
    v_add_u32 v{VXR}, s28, v18
    v_lshlrev_b32 v{VYO}, 13, v1
    v_lshl_add_u32 v{VYO}, v2, 4, v{VYO}       ; (l>>3)*8192 + (l&7)*16
    s_lshr_b32 s51, s37, 6
    s_lshl_b32 s51, s51, 18
    s_and_b32 s28, s37, 63
    s_lshl_b32 s28, s28, 7
    s_add_u32 s51, s51, s28
    s_lshl_b32 s28, s36, 17
    s_add_u32 s51, s51, s28
    """)
    ar, ai, br, bi, cr, ci, ld, dsk = range(P0, P0 + 8)
    lh, ll = bf16_split(LOG2E)
    Z = 48
    E1, E8, E16 = 50, 52, 54
    G = 56
    Lr = 70
    Va, Vb = 88, 92
    PKT = 96
    BF = 104
    AF = 136
    DK = 168
    DP = 184
    EX = 200
    A(f"""
    s_waitcnt vmcnt(4)
    v_mul_f32 v{T0}, {hex(f2u(lh))}, v{ld}
    v_mul_f32 v{T0+1}, {hex(f2u(ll * math.log(2)))}, v{ld}
    v_exp_f32 v{T0}, v{T0}
    v_fma_f32 v{T0}, v{T0}, v{T0+1}, v{T0}
    """)
    A.stamp(2)
    round_bf16(A, T0)
    A(f"""
    v_mul_f32 v{Z}, v{T0}, v{ar}
    v_mul_f32 v{Z+1}, v{T0}, v{ai}
    v_mul_f32 v{br}, v{T0}, v{br}
    v_mul_f32 v{bi}, v{T0}, v{bi}
    v_mul_f32 v{Z}, {hex(f2u(LOG2E))}, v{Z}
    v_mul_f32 v{Z+1}, 0.15915494, v{Z+1}
    """)
    def cexp(d, x, t):
        xs = {1: None, 8: hex(f2u(8.0)), 256: hex(f2u(256.0))}[x]
        o = []
        if xs is None:
            o += [f"v_exp_f32 v{t}, v{Z}", f"v_fract_f32 v{t+1}, v{Z+1}"]
        else:
            o += [f"v_mul_f32 v{t}, {xs}, v{Z}", f"v_mul_f32 v{t+1}, {xs}, v{Z+1}",
                  f"v_exp_f32 v{t}, v{t}", f"v_fract_f32 v{t+1}, v{t+1}"]
        o += [f"v_cos_f32 v{d}, v{t+1}", f"v_sin_f32 v{d+1}, v{t+1}",
              f"v_mul_f32 v{d}, v{d}, v{t}", f"v_mul_f32 v{d+1}, v{d+1}, v{t}"]
        return o
    A.extend(zipm(cexp(E8, 8, T0), cexp(E1, 1, T0 + 2), cexp(G, 256, T0 + 4)))
    A.extend(zipm(cmul(E16, E8, E8), cmul(Lr, cr, br)))
    npk = [0]
    def emit(src, rows, conj):
        t = PKT + (npk[0] % 8); npk[0] += 1
        o = [f"v_cvt_pk_bf16_f32 v{t}, v{src}, {'-' if conj else ''}v{src+1}"]
        for row in rows: o.append(f"ds_write_b32 v{VW}, v{t} offset:{row*272}")
        return o
    A(f"v_mov_b32 v{PKT+7}, 0x00003f80")
    A(f"ds_write_b32 v{VW}, v{PKT+7}")
    A.extend(emit(E8, [1], False)); A.extend(emit(E16, [2], False))
    ev, od = E16, E8
    for j in range(3, 32, 2):
        d1 = Va + 2 * (((j - 3) // 2) % 2)
        d2 = Vb + 2 * (((j - 3) // 2) % 2)
        l1 = cmul(d1, od, E16) + emit(d1, [j], False)
        l2 = (cmul(d2, ev, E16) + emit(d2, [j + 1], False)) if j + 1 < 32 else []
        A.extend(zipm(l1, l2))
        od, ev = d1, d2
    for st in range(8): A(f"ds_read_b128 v[{BF+4*st}:{BF+4*st+3}], v{VRD} offset:{32*st}")
    urow = lambda hh, r: 8 * (r >> 2) + 4 * hh + (r & 3)
    lch = emit(Lr, [urow(0, 0)], True)
    for a_ in range(1, 9):
        lch += cmul(Lr + 2 * a_, Lr + 2 * (a_ - 1), E1) + emit(Lr + 2 * a_, [urow(0, a_)], True)
    gch = []
    for k in range(2, 8):
        gch += cmul(G + 2 * (k - 1), G + 2 * (k - 2), G)
    A.extend(zipm(lch, gch))
    jobs = [(0, 1, [urow(1, 0), urow(1, 1)]), (2, 1, [urow(1, 2)]), (4, 1, [urow(1, 3), urow(1, 4), urow(1, 5)]), (6, 1, [urow(1, 6)]),
            (8, 1, [urow(1, 7), urow(1, 8)]),
            (0, 2, [urow(0, 9)]), (4, 2, [urow(0, 10)]), (8, 2, [urow(0, 11)]),
            (0, 3, [urow(1, 9)]), (4, 3, [urow(1, 10)]), (8, 3, [urow(1, 11)]),
            (0, 4, [urow(0, 12)]), (8, 4, [urow(0, 13)]), (0, 5, [urow(0, 14)]), (8, 5, [urow(0, 15)]),
            (0, 6, [urow(1, 12)]), (8, 6, [urow(1, 13)]), (0, 7, [urow(1, 14)]), (8, 7, [urow(1, 15)])]
    for k in range(0, len(jobs), 2):
        ls = []
        for u_, (a_, gk, rows) in enumerate(jobs[k:k + 2]):
            d = Va + 4 * u_ + 2 * ((k // 2) % 2)
            ls.append(cmul(d, Lr + 2 * a_, G + 2 * (gk - 1)) + emit(d, rows, True))
        A.extend(zipm(*ls))
    for st in range(8): A(f"ds_read_b128 v[{AF+4*st}:{AF+4*st+3}], v{VRD} offset:{32*st}")
    for st in range(8):
        A(f"s_waitcnt lgkmcnt({7-st})")
        cin = "0" if st == 0 else f"v[{DK}:{DK+15}]"
        A(f"v_mfma_f32_32x32x16_bf16 v[{DK}:{DK+15}], v[{AF+4*st}:{AF+4*st+3}], v[{BF+4*st}:{BF+4*st+3}], {cin}")
    A.stamp(3)
    A(f"v_add_u32 v{T0}, s39, v18")
    A(f"v_add_u32 v{T0+1}, s50, v18")
    for q in range(4): A(f"ds_write_b128 v{T0}, v[{DK+4*q}:{DK+4*q+3}] offset:{q*1024}")
    A("s_waitcnt vmcnt(0)")
    pair_sync(A, 0, "L_k2_ps0")
    for q in range(4): A(f"ds_read_b128 v[{DP+4*q}:{DP+4*q+3}], v{T0+1} offset:{q*1024}")
    ACC = 48; FB = [80, 112]; TB = [144, 176]
    def freads(rp, fb): return [f"ds_read_b128 v[{fb+4*m}:{fb+4*m+3}], v{VF} offset:{512*m + 64*(3-rp)}" for m in range(8)]
    def treads(rp, tb):
        o = []
        for i in range(8):
            off = 128 * (1 - (i & 1)) + 16 * (3 - rp)
            o.append(f"ds_read2_b32 v[{tb+4*i}:{tb+4*i+1}], v{VTA+i//2} offset0:{off} offset1:{off+1}")
            o.append(f"ds_read2_b32 v[{tb+4*i+2}:{tb+4*i+3}], v{VTA+i//2} offset0:{off+2} offset1:{off+3}")
        return o
    A.extend(freads(0, FB[0]))
    A("s_mov_b32 s28, 0xaaaaaaaa")
    A("s_mov_b32 s29, 0xaaaaaaaa")
    for q in range(4):
        A(f"s_waitcnt lgkmcnt({8 + 3 - q})")
        for k in range(4): A(f"v_add_f32 v{DK+4*q+k}, v{DK+4*q+k}, v{DP+4*q+k}")
    pair_signal(A, 1)
    k_ = lambda r: DK + r
    def grp(base, kk, va, off):
        o = []
        for i, (lo, hi) in enumerate([(7, 6), (5, 4), (3, 2), (1, 0)]): o.append(f"v_cvt_pk_bf16_f32 v{base+i}, v{kk[lo]}, v{kk[hi]}")
        o.append(f"ds_write_b128 v{va}, v[{base}:{base+3}] offset:{off}")
        for i, (lo, hi) in enumerate([(8, 7), (6, 5), (4, 3), (2, 1)]): o.append(f"v_cvt_pk_bf16_f32 v{base+4+i}, v{kk[lo]}, v{kk[hi]}")
        o.append(f"ds_write_b128 v{va}, v[{base+4}:{base+7}] offset:{off + OFF_O - OFF_E}")
        return o
    A(f"v_cndmask_b32 v{DP}, v{k_(12)}, v{k_(13)}, s[28:29]")
    A(f"v_cndmask_b32 v{DP+1}, v{k_(14)}, v{k_(15)}, s[28:29]")
    A.extend(grp(EX, [k_(i) for i in range(9)], VEA, 1024))
    A(f"s_add_u32 s28, s38, {OFF_O + 4096}")
    A(f"v_mov_b32 v{T0+2}, s28")
    A("s_mov_b64 exec, 1")
    A(f"ds_write_b16_d16_hi v{T0+2}, v{EX+3}")
    A("s_mov_b64 exec, -1")
    A.extend(grp(EX + 8, [k_(9)] * 3 + [k_(10)] * 3 + [k_(11)] * 3, VEA, 0))
    A.extend(grp(EX + 16, [k_(12)] * 4 + [DP] + [k_(13)] * 4, VEB, 512))
    A.extend(grp(EX + 24, [k_(14)] * 4 + [DP + 1] + [k_(15)] * 4, VEB, 0))
    A.extend(treads(0, TB[0]))
    A.stamp(4)
    for rp in range(4):
        fb, tb = FB[rp % 2], TB[rp % 2]
        ms = []
        for i in range(8):
            for j in range(i, 8):
                cin = "0" if (rp == 0 and i == 0) else f"v[{ACC+4*j}:{ACC+4*j+3}]"
                ms.append(f"v_mfma_f32_16x16x32_bf16 v[{ACC+4*j}:{ACC+4*j+3}], v[{tb+4*i}:{tb+4*i+3}], v[{fb+4*(j-i)}:{fb+4*(j-i)+3}], {cin}")
        A("s_waitcnt lgkmcnt(0)")
        if rp < 3:
            ms = interleave(ms, freads(rp + 1, FB[(rp + 1) % 2]) + treads(rp + 1, TB[(rp + 1) % 2]), 0, 26)
        A.extend(ms)
    A.stamp(5)
    pair_sync(A, 1, "L_k2_ps1", signal=False)
    for j in range(8): A(f"ds_write_b128 v{VYW}, v[{ACC+4*j}:{ACC+4*j+3}] offset:{j*1024}")
    pair_sync(A, 2, "L_k2_ps2")
    YO, YQ, XN = 80, 96, 112
    A(f"v_xor_b32 v{T0}, 16, v{VYR}")
    A(f"v_xor_b32 v{T0+1}, 16, v{VYP}")
    for h in range(2):
        A(f"ds_read_b128 v[{YO+8*h}:{YO+8*h+3}], v{VYR} offset:{h*2048}")
        A(f"ds_read_b128 v[{YO+8*h+4}:{YO+8*h+7}], v{T0} offset:{h*2048}")
        A(f"ds_read_b128 v[{YQ+8*h}:{YQ+8*h+3}], v{VYP} offset:{h*2048}")
        A(f"ds_read_b128 v[{YQ+8*h+4}:{YQ+8*h+7}], v{T0+1} offset:{h*2048}")
        A(f"ds_read_b128 v[{XN+4*h}:{XN+4*h+3}], v{VXR} offset:{512 + h*1024}")
    A(f"v_mov_b32 v{T0+2}, 0xfffffffe")
    for h in range(2):
        A(f"s_waitcnt lgkmcnt({5 - 5*h})")
        y = YO + 8 * h; z = YQ + 8 * h; xx = XN + 4 * h; t = 120 + 16 * h
        for k in range(8): A(f"v_add_f32 v{y+k}, v{y+k}, v{z+k}")
        for k in range(4):
            A(f"v_lshlrev_b32 v{t+2*k}, 16, v{xx+k}")
            A(f"v_and_b32 v{t+2*k+1}, 0xffff0000, v{xx+k}")
        for k in range(8): A(f"v_mul_f32 v{t+k}, v{t+k}, v{dsk}")
        for k in range(4):
            A(f"v_cvt_pk_bf16_f32 v{z+k}, v{y+2*k}, v{y+2*k+1}")
            A(f"v_cvt_pk_bf16_f32 v{z+4+k}, v{t+2*k}, v{t+2*k+1}")
        for k in range(4):
            A(f"v_lshlrev_b32 v{y+2*k}, 16, v{z+k}")
            A(f"v_and_b32 v{y+2*k+1}, 0xffff0000, v{z+k}")
            A(f"v_lshlrev_b32 v{t+2*k}, 16, v{z+4+k}")
            A(f"v_and_b32 v{t+2*k+1}, 0xffff0000, v{z+4+k}")
        for k in range(8): A(f"v_add_f32 v{y+k}, v{y+k}, v{t+k}")
        for k in range(4): A(f"v_cvt_pk_bf16_f32 v{t+8+k}, v{y+2*k}, v{y+2*k+1}")
        for k in range(4): A(f"v_min_u32 v{t+8+k}, v{t+8+k}, v{T0+2}")
        A(f"s_add_u32 s28, s51, {h*65536}")
        A(f"buffer_store_dwordx4 v[{t+8}:{t+11}], v{VYO}, s[12:15], s28 offen sc0 sc1")
    Y = 160
    A(f"""
    v_lshlrev_b32 v{T0}, 8, v1
    v_lshl_add_u32 v{T0}, v2, 4, v{T0}         ; (l>>3)*256 + tg*16
    s_lshl_b32 s28, s22, 5
    s_add_u32 s28, s28, s21
    s_lshl_b32 s28, s28, 13
    s_lshl_b32 s29, s20, 11
    s_add_u32 s28, s28, s29
    v_lshrrev_b32 v{T0+1}, 5, v0
    s_lshl_b32 s29, s20, 1
    v_add_u32 v{T0+1}, s29, v{T0+1}
    v_xor_b32 v{T0+1}, v{T0+1}, v2             ; ^ tg
    v_lshlrev_b32 v{T0+1}, 4, v{T0+1}
    v_lshl_add_u32 v{T0+1}, v2, 10, v{T0+1}    ; + tg*1024
    v_and_b32 v{T0+2}, 3, v1
    v_lshl_add_u32 v{T0+1}, v{T0+2}, 2, v{T0+1}
    v_add_u32 v{T0+1}, {L_Y2}, v{T0+1}
    v_mov_b32 v{T0+3}, 0x05040100
    v_mov_b32 v{T0+4}, 0x07060302
    s_mov_b32 s30, 0
    """)
    A.stamp(6)
    A.label("L_k2_poll")
    A(f"""
    buffer_load_dwordx4 v[{Y}:{Y+3}], v{T0}, s[12:15], s28 offen sc0 sc1
    buffer_load_dwordx4 v[{Y+4}:{Y+7}], v{T0}, s[12:15], s28 offen offset:128 sc0 sc1
    s_waitcnt vmcnt(0)
    v_max_u32 v{Y+8}, v{Y}, v{Y+1}
    v_max3_u32 v{Y+8}, v{Y+8}, v{Y+2}, v{Y+3}
    v_max3_u32 v{Y+8}, v{Y+8}, v{Y+4}, v{Y+5}
    v_max3_u32 v{Y+8}, v{Y+8}, v{Y+6}, v{Y+7}
    v_cmp_eq_u32 vcc, -1, v{Y+8}
    s_cbranch_vccz L_k2_got
    s_sleep 4
    s_add_u32 s30, s30, 1
    s_cmp_lt_u32 s30, 0x40000
    s_cbranch_scc1 L_k2_poll
    """)
    A.label("L_k2_got")
    A.stamp(7)
    for k in range(4):
        A(f"v_perm_b32 v{Y+8+2*k}, v{Y+4+k}, v{Y+k}, v{T0+3}")
        A(f"v_perm_b32 v{Y+9+2*k}, v{Y+4+k}, v{Y+k}, v{T0+4}")
    for i in range(8): A(f"ds_write_b32 v{T0+1}, v{Y+8+i} offset:{i*128}")
    A("s_add_u32 s20, s20, 4")
    A("s_waitcnt lgkmcnt(0)")


def gen_final(A):
    P = 32
    A(f"""
    v_lshlrev_b32 v13, 1, v2
    v_xor_b32 v13, v13, v1                 ; (2c) ^ (t&7)
    v_lshlrev_b32 v13, 4, v13
    v_lshl_add_u32 v13, v1, 8, v13
    s_lshl_b32 s28, s20, 11
    v_add_u32 v13, s28, v13
    v_xor_b32 v14, 16, v13
    v_xor_b32 v15, s20, v2                 ; c ^ (t>>3)
    v_lshlrev_b32 v15, 4, v15
    v_lshl_add_u32 v15, v1, 7, v15
    s_lshl_b32 s28, s20, 10
    s_add_u32 s28, s28, {L_Y2}
    v_add_u32 v15, s28, v15
    """)
    srd(A, 8, "s48", "s49", 2 << 20)
    A("s_barrier")
    A.stamp(8)
    A(f"ds_read_b128 v[16:19], v15")
    for w in range(4):
        A(f"ds_read_b128 v[{P+8*w}:{P+8*w+3}], v13 offset:{w*RING}")
        A(f"ds_read_b128 v[{P+8*w+4}:{P+8*w+7}], v14 offset:{w*RING}")
    X, Yv, B = 64, 72, 80
    def unpack(d, s_):
        for k in range(4):
            A(f"v_lshlrev_b32 v{d+2*k}, 16, v{s_+k}")
            A(f"v_and_b32 v{d+2*k+1}, 0xffff0000, v{s_+k}")
    def pack(d, s_):
        for k in range(4): A(f"v_cvt_pk_bf16_f32 v{d+k}, v{s_+2*k}, v{s_+2*k+1}")
    unpack(X, VX); unpack(B, VB2)
    A("s_waitcnt lgkmcnt(8)")
    unpack(Yv, 16)
    for k in range(8): A(f"v_add_f32 v{X+k}, v{X+k}, v{Yv+k}")
    pack(20, X); unpack(X, 20)
    A("s_waitcnt lgkmcnt(4)")
    for k in range(8): A(f"v_add_f32 v{P+k}, v{P+k}, v{P+8+k}")
    A("s_waitcnt lgkmcnt(0)")
    for k in range(8): A(f"v_add_f32 v{P+16+k}, v{P+16+k}, v{P+24+k}")
    for k in range(8): A(f"v_add_f32 v{P+k}, v{P+k}, v{P+16+k}")
    pack(24, P); unpack(P, 24)
    for k in range(8): A(f"v_add_f32 v{P+k}, v{P+k}, v{B+k}")
    pack(24, P); unpack(P, 24)
    for k in range(8): A(f"v_add_f32 v{P+k}, v{P+k}, v{X+k}")
    pack(28, P)
    A(f"buffer_store_dwordx4 v[28:31], v{VOO}, s[8:11], s33 offen")
    if STAMPS: A("s_waitcnt vmcnt(0)")
    A.stamp_flush(1)
    A("s_endpgm")


def gen_k2():
    A = Asm()
    A.stamp(0, True); A.stamp(1)
    for k in range(2, 9): A.stamp(k)
    gen_prologue(A)
    gen_gemm(A)
    A.label("L_k2_conv")
    A("s_nop 0 ; RESETSB")
    gen_conv(A)
    A.label("L_k2_final")
    A("s_nop 7")
    gen_final(A)
    A.label("L_k2_exit")
    A("s_endpgm")
    lines = fix_hazards(A.lines, verbose=True)
    check_waits(lines, "k2")
    return kernel_section("k2_kernel", lines, 256, 102, 256)


def kernels():
    return [("k2_kernel", 256, 512, K2_LDS, gen_k2())]
```

```python
import gen, gen_k1, gen_k2
from asmlib import *
base = [("k1_kernel", 256, 256, gen_k1.K1_LDS, gen_k1.gen_k1())] + gen_k2.kernels()
empty = ("e_kernel", 256, 256, 0, kernel_section("e_kernel", ["    s_endpgm"], 8, 16, 8))
open("var_a.s","w").write(gen.build(base))
open("var_b.s","w").write(gen.build(base + [empty]))
open("var_c.s","w").write(gen.build(base + [empty]*4))
open("var_d.s","w").write(gen.build([empty] + base))
```

```python
import re

TRANS = ("v_exp_f32", "v_log_f32", "v_rcp_f32", "v_rsq_f32", "v_sqrt_f32", "v_sin_f32", "v_cos_f32", "v_rcp_iflag_f32")
REG_RE = re.compile(r"(?<![\w.])([vas])(?:(\d+)|\[(\d+):(\d+)\])(?![\w])")


def regs_of(tok):
    out = set()
    for m in REG_RE.finditer(tok):
        k = m.group(1)
        if m.group(2) is not None:
            out.add((k, int(m.group(2))))
        else:
            for i in range(int(m.group(3)), int(m.group(4)) + 1):
                out.add((k, i))
    t = tok.strip().lstrip("-").strip("|")
    if t in ("vcc", "vcc_lo", "vcc_hi"):
        out.add(("s", "vcc"))
    if t in ("exec", "exec_lo", "exec_hi"):
        out.add(("s", "exec"))
    if t == "m0":
        out.add(("s", "m0"))
    return out


def mfma_passes(op):
    if "4x4x4" in op:
        return 2
    if "32x32x16" in op or "32x32x8" in op:
        return 8
    if "16x16x32" in op or "16x16x16" in op:
        return 4
    raise ValueError(op)


class Ins:
    def __init__(self, text):
        self.text = text
        t = text.split(";")[0].strip()
        self.label = t.endswith(":")
        self.directive = t.startswith(".")
        self.empty = t == ""
        self.op = ""
        self.vw = set(); self.vr = set(); self.sw = set(); self.sr = set()
        self.valu = self.mfma = self.trans = self.dot = self.dpp = self.permlane = self.readlane = False
        self.salu = self.smem = self.ds = self.vmem = self.branch = self.sdwa = False
        self.store_wide = False; self.data = set(); self.uses_m0 = False
        self.isload = False
        self.A = self.B = self.C = set()
        self.ws = 1
        if self.label or self.directive or self.empty:
            self.ws = 0
            return
        parts = t.split(None, 1)
        op = self.op = parts[0]
        rest = parts[1] if len(parts) > 1 else ""
        ops = []
        depth = 0; cur = ""
        for ch in rest:
            if ch == "[": depth += 1
            if ch == "]": depth -= 1
            if ch == "," and depth == 0:
                ops.append(cur.strip()); cur = ""
            else:
                cur += ch
        if cur.strip(): ops.append(cur.strip())
        mods = ""
        if ops:
            sp = ops[-1].split(None, 1)
            ops[-1] = sp[0]
            mods = sp[1] if len(sp) > 1 else ""
        self.ops = ops; self.mods = mods
        R = [regs_of(o) for o in ops]
        def split(rs):
            v = set(r for r in rs if r[0] in "va"); s = set(r for r in rs if r[0] == "s"); return v, s
        def rd(*idx):
            for i in idx:
                if i < len(R):
                    v, s = split(R[i]); self.vr |= v; self.sr |= s
        def wr(*idx):
            for i in idx:
                v, s = split(R[i]); self.vw |= v; self.sw |= s
        n = len(ops)
        if op == "s_nop":
            self.ws = int(ops[0], 0) + 1
        elif op in ("s_waitcnt", "s_barrier", "s_endpgm", "s_setprio", "s_sleep"):
            pass
        elif op.startswith("s_cbranch") or op == "s_branch":
            self.branch = True
        elif op.startswith("s_load") or op.startswith("s_buffer_load") or op in ("s_memtime", "s_memrealtime"):
            self.smem = True; wr(0); rd(*range(1, n))
        elif op.startswith("s_atomic"):
            self.smem = True; wr(0); rd(*range(n))
        elif op == "s_getpc_b64":
            self.salu = True; wr(0)
        elif op.startswith("s_cmp") or op.startswith("s_bitcmp"):
            self.salu = True; rd(*range(n))
        elif op.startswith("s_"):
            self.salu = True; wr(0); rd(*range(1, n))
            if "saveexec" in op:
                self.sw.add(("s", "exec")); self.sr.add(("s", "exec"))
            if op in ("s_addk_i32", "s_mulk_i32"): rd(0)
        elif op.startswith("v_mfma"):
            self.valu = self.mfma = True
            self.passes = mfma_passes(op)
            wr(0); rd(1, 2, 3)
            self.A, self.B, self.C = R[1], R[2], R[3]
        elif op.startswith("v_"):
            self.valu = True
            base = op.replace("_e32", "").replace("_e64", "").replace("_dpp", "").replace("_sdwa", "")
            self.trans = base in TRANS
            self.dot = base.startswith("v_dot")
            self.dpp = "_dpp" in op or "quad_perm" in mods or "row_" in mods or "wave_" in mods
            self.sdwa = "_sdwa" in op
            self.permlane = base.startswith("v_permlane")
            self.readlane = base in ("v_readlane_b32", "v_readfirstlane_b32", "v_writelane_b32")
            if self.permlane:
                wr(0, 1); rd(0, 1)
            elif base.startswith("v_cmpx"):
                raise ValueError("avoid v_cmpx")
            elif base in ("v_add_co_u32", "v_sub_co_u32", "v_addc_co_u32", "v_subb_co_u32", "v_mad_u64_u32", "v_div_scale_f32"):
                wr(0, 1); rd(*range(2, n))
            else:
                wr(0); rd(*range(1, n))
                if base in ("v_fmac_f32", "v_dot2c_f32_bf16", "v_writelane_b32", "v_pk_fmac_f16") or self.dpp or self.sdwa:
                    rd(0)
        elif op.startswith("ds_"):
            self.ds = True
            if op.startswith("ds_read") or "_rtn" in op or op.startswith("ds_bpermute") or op.startswith("ds_permute") or op.startswith("ds_swizzle"):
                wr(0); rd(*range(1, n)); self.isload = True
                if "d16" in op: rd(0)
            else:
                rd(*range(n))
        elif op.startswith("buffer_") or op.startswith("global_"):
            self.vmem = True
            toks = mods.split()
            if op in ("buffer_inv", "buffer_wbl2"):
                pass
            elif "_load" in op:
                if "lds" in toks or "load_lds" in op:
                    rd(*range(n)); self.uses_m0 = True
                else:
                    wr(0); rd(*range(1, n)); self.isload = True
                    if "d16" in op: rd(0)
            elif "atomic" in op:
                rd(*range(n))
                if "sc0" in toks:
                    wr(0); self.isload = True
            else:
                rd(*range(n))
                if "x3" in op or "x4" in op:
                    self.store_wide = True
                    self.data = R[0] if op.startswith("buffer_") else R[1]
        else:
            raise ValueError("unknown op: " + text)


TB_V = {2: 5, 4: 8, 8: 12, 16: 20}
TB_C = {2: 4, 4: 6, 8: 10, 16: 18}
TB_W = {2: 1, 4: 3, 8: 7, 16: 15}


def req(p, c):
    r = 0
    if p.valu and not p.mfma:
        ov = p.vw & c.vr
        if ov:
            if c.mfma or c.dpp or c.permlane: r = max(r, 2)
            if c.readlane: r = max(r, 1)
            if p.trans and not c.trans: r = max(r, 1)
            if p.sdwa or ("op_sel" in p.mods and not p.op.startswith("v_pk_")): r = max(r, 1)
            if p.dot:
                if c.op == p.op and len(c.ops) >= 3 and not (ov & (regs_of(c.ops[1]) | regs_of(c.ops[2]))):
                    pass
                else:
                    r = max(r, 3)
        if p.dot and (p.vw & c.vw) and c.op != p.op: r = max(r, 3)
        if p.sdwa and (p.vw & c.vw): r = max(r, 1)
        ovs = p.sw & c.sr
        if ovs:
            if c.valu: r = max(r, 4 if c.readlane else 2)
            if c.vmem: r = max(r, 5)
            if c.salu or c.smem: r = max(r, 1)
        if ("s", "vcc") in p.sw and c.branch and "vcc" in c.op: r = max(r, 1)
    if p.mfma:
        n = p.passes
        if c.mfma:
            if p.vw & (c.A | c.B): r = max(r, TB_V[n])
            if p.vw & c.C:
                if p.vw == c.C and c.passes == n: r = max(r, 2 if n == 2 else 0)
                else: r = max(r, TB_C[n])
            elif p.vw & c.vw: r = max(r, TB_C[n])
        else:
            if p.vw & (c.vr | c.vw): r = max(r, TB_V[n])
            if (p.C & c.vw) and c.valu: r = max(r, TB_W[n])
    if p.salu and ("s", "m0") in p.sw and c.uses_m0: r = max(r, 1)
    if p.store_wide and (p.data & c.vw): r = max(r, 2 if c.valu else 1)
    return r


def fix_hazards(lines, verbose=False):
    out = []
    hist = []
    pos = 0
    added = 0
    for text in lines:
        c = Ins(text)
        if c.ws == 0:
            out.append(text); continue
        need = 0
        for p, pp in hist:
            d = pos - pp - 1
            rq = req(p, c)
            if rq > d: need = max(need, rq - d)
        if c.op == "s_nop": need = 0
        while need > 0:
            k = min(need, 16)
            out.append(f"    s_nop {k-1}    ; hz")
            pos += k; need -= k; added += k
        out.append(text)
        pos += c.ws
        hist.append((c, pos - 1))
        hist = [(p, pp) for p, pp in hist if pos - pp <= 24]
    if verbose: print("hazard nops added:", added)
    return out


WAIT_RE = re.compile(r"(vmcnt|lgkmcnt)\((\d+)\)")


def check_waits(lines, name=""):
    vm = []
    lg = []
    errs = 0
    for ln, text in enumerate(lines):
        c = Ins(text)
        if c.ws == 0: continue
        if c.op == "s_endpgm" or "RESETSB" in text:
            vm = []; lg = []
            continue
        if c.op == "s_waitcnt":
            for k, n in WAIT_RE.findall(text.split(";")[0]):
                n = int(n)
                if k == "vmcnt":
                    if len(vm) > n: vm = vm[len(vm) - n:] if n else []
                else:
                    if n == 0: lg = []
                    else:
                        sm = [e for e in lg if e[1]]; dsl = [e for e in lg if not e[1]]
                        if len(dsl) > n: dsl = dsl[len(dsl) - n:]
                        lg = sm + dsl
            continue
        touched = c.vr | c.vw | c.sr | c.sw
        if errs > 10: break
        if c.op in ("s_memtime", "s_memrealtime"): touched = set()
        for d in vm:
            if d & touched:
                if c.vmem and c.isload and not (d & (c.vr | c.sr)): continue
                print(f"[{name}] line {ln}: '{text.strip()}' touches pending vmem dst {sorted(d & touched)[:4]}"); errs += 1; break
        for d, s in lg:
            if d & touched:
                if c.ds and c.isload and not s and not (d & (c.vr | c.sr)): continue
                print(f"[{name}] line {ln}: '{text.strip()}' touches pending lgkm dst {sorted(d & touched, key=str)[:4]}"); errs += 1; break
        if c.vmem:
            vm.append(set(c.vw))
            if len(vm) > 63: print(f"[{name}] line {ln}: vmcnt overflow ({len(vm)})")
        if c.ds: lg.append((set(c.vw), False))
        if c.smem: lg.append((set(c.sw), True))
    return errs


import os
STAMPS = bool(os.environ.get("STAMPS"))
ST_BASE = 80

class Asm:
    def __init__(self):
        self.lines = []
    def stamp(self, k, real=False):
        if STAMPS: self(f"{'s_memrealtime' if real else 's_memtime'} s[{ST_BASE+2*k}:{ST_BASE+2*k+1}]")
    def st(self, name):
        names = os.environ.get("STN", "b0,loop,p2bar,s5,s6,s7,fin").split(",")
        if name in names: self.stamp(2 + names.index(name))
    def stamp_flush(self, kidx, wave="s20", n=11):
        if not STAMPS: return
        self.stamp(9); self.stamp(10, True)
        self("s_waitcnt vmcnt(0) lgkmcnt(0)")
        self("s_mov_b64 exec, -1")
        self("v_mov_b32 v1, 0")
        for k in range(n): self(f"v_writelane_b32 v1, s{ST_BASE+2*k}, {k}")
        self(f"""
        s_add_u32 s4, s42, {(32<<20) + kidx*(1<<20)}
        s_addc_u32 s5, s43, 0
        s_mov_b32 s6, 0x100000
        s_mov_b32 s7, 0x00020000
        s_lshl_b32 s8, s2, 3
        s_add_u32 s8, s8, {wave}
        s_lshl_b32 s8, s8, 8
        v_lshlrev_b32 v2, 2, v0
        buffer_store_dword v1, v2, s[4:7], s8 offen
        """)
        if os.environ.get("DBGST"):
            self(f"""
            s_not_b32 s8, s{ST_BASE}
            s_atomic_umax s8, s[54:55], 4
            s_mov_b32 s9, s{ST_BASE+20}
            s_atomic_umax s9, s[54:55], 8
            s_cmp_lg_u32 s2, 9
            s_cbranch_scc1 L_dbg_skip
            s_cmp_lg_u32 {wave}, {os.environ.get("DBGST")}
            s_cbranch_scc1 L_dbg_skip
            v_readlane_b32 s8, v1, 1
            s_mov_b32 s4, s54
            s_mov_b32 s5, s55
            s_mov_b32 s6, 64
            s_nop 3
            v_subrev_u32 v1, s8, v1
            buffer_store_dword v1, v2, s[4:7], 0 offen offset:16
            L_dbg_skip:
            s_waitcnt lgkmcnt(0)
            """)
    def __call__(self, s):
        for l in s.split("\n"):
            if l.strip(): self.lines.append("    " + l.strip() if not l.strip().endswith(":") else l.strip())
    def label(self, n): self.lines.append(n + ":")
    def extend(self, ls):
        for l in ls: self(l)


def v(i, n=1): return f"v{i}" if n == 1 else f"v[{i}:{i+n-1}]"
def a(i, n=1): return f"a{i}" if n == 1 else f"a[{i}:{i+n-1}]"
def s(i, n=1): return f"s{i}" if n == 1 else f"s[{i}:{i+n-1}]"


def interleave(main, fill, start=0, end=None, weights=None):
    if end is None: end = len(main)
    out = []
    n = end - start
    k = 0
    for i, m in enumerate(main):
        out.append(m)
        if start <= i < end:
            tgt = (len(fill) * (i - start + 1) + n - 1) // n
            while k < min(tgt, len(fill)):
                out.append(fill[k]); k += 1
    out.extend(fill[k:])
    return out


def kernel_section(name, lines, vgpr, sgpr, accum):
    body = "\n".join(lines)
    return f""".text
.globl {name}
.p2align 8
.type {name},@function
{name}:
{body}
.section .rodata,"a"
.p2align 6
.amdhsa_kernel {name}
  .amdhsa_next_free_vgpr {vgpr}
  .amdhsa_next_free_sgpr {sgpr}
  .amdhsa_accum_offset {accum}
  .amdhsa_group_segment_fixed_size 0
  .amdhsa_kernarg_size 136
  .amdhsa_user_sgpr_count 2
  .amdhsa_user_sgpr_kernarg_segment_ptr 1
  .amdhsa_system_sgpr_workgroup_id_x 1
.end_amdhsa_kernel
"""
```

```python
from asmlib import *
import struct, math, os, sys

def f2u(x): return struct.unpack("<I", struct.pack("<f", x))[0]
def env(n, d): return int(os.environ.get(n, str(d)))

KNAME = "parallel_sum__ssm_conv_s4__dense_activation_gelu__prompt_kernel"
KA = dict(u=0, A_re=8, A_im=16, B_re=24, B_im=32, C_re=40, C_im=48, log_dt=56, Dskip=64, Bx=72, w1=80, b1=88, w2=96, b2=104,
          out=112, dbg=120, ws=128)
WS_FLL = 32768
WS_EPOCH = 49152
WS_DUMMY = 53248
WS_STAT = 65536
WS_FLH = 131072
WS_FLY = 262144
WS_HF = 1 << 20
WS_XNT = 8 << 20
WS_YA = 12 << 20
WS_USED = 14 << 20

LOG2E = 1.4426950408889634
GC1 = -2.0 * LOG2E * 0.7978845608028654
GC2 = GC1 * 0.044715

NS, STAGE = 4, 32768
RSL = 12
RING = RSL * 2048
L_KST = 98304; KST = 8704
L_ST2 = 98304; ST2 = 8192
L_CH = 131072; CH_SIZE = 13056
OFF_E, OFF_O = 4608, 8768
L_FLAG = L_CH + 2 * CH_SIZE
L_CS = L_FLAG + 512
LDS_TOTAL = 163840
L_VS = 98304; L_US = 98304

OPT_PF = env("PF", 1)
PRE = env("PRE", 3)
PRIO_C = env("PRIOC", 1)
PRIO_G = env("PRIOG", 0)
PRIO_E = env("PRIOE", 0)
ROT = env("ROT", 3)
BARP = env("BARP", 2)
STATG = env("STATG", 21)
SC = os.environ.get("SC", "sc1")
PFG = [int(x) for x in os.environ.get("PFG", "").split(",") if x]
HD = 9
SCH = os.environ.get('SCH', SC)
LOC = env('LOC', 0)
GPK = env('GPK', 0)
ULN = env('ULN', 3)
HT = env('HT', 0)
SCL = os.environ.get('SCL', SC)
SPIN = 0x40000

DK, DP, EX, P0 = 224, 128, 160, 244
BF, AF, KG_G, KG_E1, KG_L, KG_V, KG_PK, KG_VW, KG_VRD = 160, 192, 108, 122, 224, 124, 132, 136, 137
L_KS2 = 131072; KS2 = 4352
XL = 180
VDUM, LNF = 252, 253
VX, VB2, VOO = 4, 8, 12
VW2 = 23
W2R, HR, ACC2 = 160, 88, 24
VTL = 24

def srd(A, d, lo, hi, size):
    A(f"s_mov_b32 s{d}, {lo}\ns_mov_b32 s{d+1}, {hi}\ns_mov_b32 s{d+2}, {size}\ns_mov_b32 s{d+3}, 0x00020000")
def round_bf16(A, r):
    A(f"v_cvt_pk_bf16_f32 v{r}, v{r}, v{r}")
    A(f"v_and_b32 v{r}, 0xffff0000, v{r}")
def zipm(*lists):
    o = []
    for k in range(max(len(l) for l in lists)):
        for l in lists:
            if k < len(l): o.append(l[k])
    return o
def mask(lo, hi=None):
    hi = lo if hi is None else hi
    return [f"s_mov_b32 s28, {lo}", f"s_mov_b32 s29, {hi}"]

class VMQ:
    def __init__(self): self.q = []
    def note(self, tag, n=1): self.q.extend([tag] * n)
    def wait(self, *tags):
        idx = max((k for k, t in enumerate(self.q) if t in tags), default=-1)
        if idx < 0: return []
        n = len(self.q) - 1 - idx
        del self.q[:idx + 1]
        return [f"s_waitcnt vmcnt({n})"]
    def younger(self): return len(self.q)

ORDER = [0, 1] + list(range(12, 24)) + list(range(2, 12)) + list(range(24, 28))

def koff(dst, lab, base="s74"):
    return [f"s_add_u32 {dst}, {base}, {lab*1024}", f"s_sub_u32 s75, {dst}, {28*1024}", f"s_min_u32 {dst}, {dst}, s75"]

def slot_addr(sl): return (sl >> 2) * 32768 + (sl & 3) * 2048

def w2_setup(A, vt):
    srd(A, 16, "s48", "s49", 1792 * 1024)
    A(f"""
    v_lshrrev_b32 v{vt}, 2, v0
    v_and_b32 v{vt}, 4, v{vt}
    v_and_b32 v{vt+1}, 7, v0
    v_xor_b32 v{vt}, v{vt}, v{vt+1}
    v_lshrrev_b32 v{vt+1}, 3, v0
    v_lshlrev_b32 v{VW2}, 10, v{vt+1}
    v_lshl_add_u32 v{VW2}, v{vt}, 4, v{VW2}
    s_mul_i32 s72, s39, {448*1024}
    s_lshl_b32 s75, s79, 7
    s_add_u32 s72, s72, s75
    s_lshl_b32 s73, s39, 13
    v_lshrrev_b32 v{vt+1}, 5, v0
    v_bfe_u32 v{vt}, v0, 2, 2
    v_lshl_add_u32 v{VTL}, v{vt+1}, 2, v{vt}
    v_lshlrev_b32 v{VTL}, 7, v{VTL}
    v_bfe_u32 v{vt}, v0, 4, 1
    v_lshl_add_u32 v{VTL}, v{vt}, 5, v{VTL}
    v_and_b32 v{vt}, 3, v0
    v_lshl_add_u32 v{VTL}, v{vt}, 3, v{VTL}
    v_bfe_u32 v{vt}, v0, 3, 1
    v_lshl_add_u32 v{VTL}, v{vt}, 6, v{VTL}
    v_add_u32 v{VTL}, s73, v{VTL}
    v_xor_b32 v{VTL+1}, 64, v{VTL}
    v_add_u32 v{VTL+2}, 0x10000, v{VTL}
    v_add_u32 v{VTL+3}, 0x10000, v{VTL+1}
    """)
def wdma(slot, lab):
    a_ = slot_addr(slot)
    return koff("s31", lab) + [f"s_add_u32 m0, s73, {a_}", "s_lshl4_add_u32 s31, s31, s72",
                               f"buffer_load_dwordx4 v{VW2}, s[16:19], s31 offen lds",
                               f"s_add_u32 m0, s73, {a_+1024}", "s_add_u32 s31, s31, 8192",
                               f"buffer_load_dwordx4 v{VW2}, s[16:19], s31 offen lds"]
def w2tr(slot, ws_, vtl=VTL):
    b = W2R + 8 * ws_; a_ = slot_addr(slot); hi = a_ >> 16; a_ &= 0xffff
    return [f"ds_read_b64_tr_b16 v[{b+4*db+2*sec}:{b+4*db+2*sec+1}], v{vtl+2*hi+db} offset:{a_+sec*1024}" for db in range(2) for sec in range(2)]

def param_loads(A, vt):
    A(f"""
    s_lshr_b32 s28, s39, 1
    s_lshl_b32 s30, s2, 1
    s_add_u32 s30, s30, s28
    v_lshlrev_b32 v{vt}, 1, v0
    v_mov_b32 v{vt+1}, 0
    s_lshl_b32 s29, s30, 8
    s_and_b32 s28, s20, 1
    s_lshl_b32 s28, s28, 7
    s_add_u32 s29, s29, s28
    s_lshl_b32 s30, s30, 1
    s_mov_b32 s18, 1024
    s_mov_b32 s19, 0x00020000
    """)
    for k in range(8): A(f"v_mov_b32 v{P0+k}, 0")
    A("s_waitcnt lgkmcnt(0)")
    for k in (6, 7, 0, 1, 2, 3, 4, 5):
        if k == 0: A("s_mov_b32 s18, 131072")
        A(f"s_mov_b32 s16, s{56+2*k}\ns_mov_b32 s17, s{57+2*k}")
        if k < 6: A(f"buffer_load_short_d16_hi v{P0+k}, v{vt}, s[16:19], s29 offen")
        else: A(f"buffer_load_short_d16_hi v{P0+k}, v{vt+1}, s[16:19], s30 offen")

def lnflag_load(vt):
    return ["s_lshl_b32 s29, s79, 6", "s_lshl_b32 s28, s39, 4", "s_add_u32 s29, s29, s28", "s_lshr_b32 s28, s78, 4", "s_lshl_b32 s28, s28, 9",
            "s_add_u32 s29, s29, s28", "s_lshl_b32 s29, s29, 7", f"s_add_u32 s29, s29, {WS_FLY}",
            f"v_lshlrev_b32 v{vt}, 7, v0", f"v_add_u32 v{vt}, {WS_FLL}, v{vt}",
            f"v_and_b32 v{vt+1}, 15, v0", f"v_lshl_add_u32 v{vt+1}, v{vt+1}, 7, s29", "s_mov_b32 s28, 0", "s_mov_b32 s29, -1",
            f"v_cndmask_b32 v{vt}, v{vt}, v{vt+1}, s[28:29]",
            f"buffer_load_dword v{LNF}, v{vt}, s[12:15], 0 offen {SC}"]

def u_issue(A, vl16):
    A(f"""
    s_lshr_b32 s28, s39, 1
    s_lshl_b32 s29, s2, 1
    s_add_u32 s29, s29, s28
    s_lshl_b32 s29, s29, 12
    s_add_u32 s29, s29, {WS_XNT}
    """)
    for k in range(4): A(f"buffer_load_dwordx4 v[{XL+4*k}:{XL+4*k+3}], v{vl16}, s[12:15], s29 offen offset:{k*1024} {SC}")

def u_try(A, vl16):
    A(f"""
    v_cmp_ne_u32 vcc, s76, v{LNF}
    s_mov_b32 s37, 0
    s_cbranch_vccnz L_ut_no
    s_mov_b32 s37, 1
    """)
    u_issue(A, vl16)
    A.label("L_ut_no")

def u_spin(A, vt, vl16, tag=''):
    A("s_mov_b32 s30, 0")
    A.label(f"L_us_poll{tag}")
    A.extend(lnflag_load(vt))
    A(f"""
    s_add_u32 s30, s30, 1
    s_waitcnt vmcnt(0)
    v_cmp_ne_u32 vcc, s76, v{LNF}
    s_cmp_gt_u32 s30, {SPIN}
    s_cbranch_scc1 L_us_ok{tag}
    s_cbranch_vccnz L_us_poll{tag}
    """)
    A.label(f"L_us_ok{tag}")
    u_issue(A, vl16)
    A("s_waitcnt vmcnt(0)")

def ya_addr(vd, vt):
    return [f"v_lshrrev_b32 v{vd}, 3, v0", f"v_and_b32 v{vt}, 7, v0", f"v_lshlrev_b32 v{vd}, 13, v{vd}", f"v_lshl_add_u32 v{vd}, v{vt}, 4, v{vd}",
            "s_lshr_b32 s28, s39, 1", "s_lshl_b32 s31, s2, 1", "s_add_u32 s31, s31, s28",
            "s_lshr_b32 s29, s31, 6", "s_lshl_b32 s29, s29, 18", "s_and_b32 s28, s31, 63", "s_lshl_b32 s28, s28, 7", "s_add_u32 s29, s29, s28",
            f"s_add_u32 s29, s29, {WS_YA}", "s_and_b32 s30, s39, 1", "s_lshl_b32 s30, s30, 17", "s_add_u32 s30, s30, s29", "s_add_u32 s31, s30, 65536"]
def ya_prefill(vd, vt, vm4):
    return ya_addr(vd, vt) + [f"v_mov_b32 v{vm4+k}, -1" for k in range(4)] + \
           [f"buffer_store_dwordx4 v[{vm4}:{vm4+3}], v{vd}, s[12:15], s{30+h} offen {SC}" for h in range(2)]

def publish_flag(A, soff, vt, tag, wave, both=False):
    A(f"""
    s_cmp_lg_u32 s20, {wave}
    s_cbranch_scc1 L_pub_skip{tag}
    v_mov_b32 v{vt}, 0
    v_mov_b32 v{vt+1}, s76
    s_mov_b64 exec, 1
    buffer_store_dword v{vt+1}, v{vt}, s[12:15], {soff} offen {SC}
    """)
    if both:
        A(f"""
        s_lshl_b32 s28, s2, 7
        s_add_u32 s28, s28, {WS_FLW}
        buffer_store_dword v{vt+1}, v{vt}, s[12:15], s28 offen {SC}
        """)
    A(f"""
    s_mov_b64 exec, -1
    L_pub_skip{tag}:
    """)
def mktag(A):
    A("s_mul_i32 s76, s76, 0x9E3779B1")
    A("s_add_u32 s76, s76, 0x7F4A7C15")
def arrive(A, tag):
    A(f"""
    s_cmp_lg_u32 s20, 3
    s_cbranch_scc1 L_arr{tag}
    s_atomic_add s77, s[54:55], 0 glc
    L_arr{tag}:
    """)

def coop_prefetch(A, vt):
    A(f"""
    s_lshl_b32 s28, s24, 2
    s_add_u32 s28, s28, s39
    s_lshl_b32 s30, s28, 6
    v_add_u32 v{vt}, s30, v0
    v_mul_u32_u24 v{vt+1}, 0x4925, v{vt}
    v_lshrrev_b32 v{vt+1}, 18, v{vt+1}
    v_mul_u32_u24 v{vt+2}, 14, v{vt+1}
    v_sub_u32 v{vt}, v{vt}, v{vt+2}
    v_lshlrev_b32 v{vt}, 7, v{vt}
    v_mul_u32_u24 v{vt+1}, 3584, v{vt+1}
    v_add_u32 v{vt}, v{vt}, v{vt+1}
    s_and_b32 s29, s23, 1
    s_mul_i32 s29, s29, 1792
    buffer_load_dword v{VDUM}, v{vt}, s[8:11], s29 offen
    s_lshr_b32 s29, s23, 1
    s_lshl_b32 s29, s29, 19
    s_lshl_b32 s30, s28, 13
    s_add_u32 s29, s29, s30
    s_cmp_lt_u32 s28, 64
    s_cselect_b32 s29, s29, 0x400000
    v_lshlrev_b32 v{vt+2}, 7, v0
    buffer_load_dword v{VDUM}, v{vt+2}, s[4:7], s29 offen
    """)
def w2_prefetch(vt, piece):
    return ["s_lshl_b32 s28, s24, 2", "s_add_u32 s28, s28, s39", "s_lshl_b32 s28, s28, 14", f"s_add_u32 s28, s28, {piece*8192}",
            f"v_lshlrev_b32 v{vt}, 7, v0", f"buffer_load_dword v{VDUM}, v{vt}, s[16:19], s28 offen"]

def cmul(d, x, y, pk=True):
    P = lambda r: f"v[{r}:{r+1}]"
    assert d != x and d != y
    if pk:
        return [f"v_pk_mul_f32 {P(d)}, {P(x)}, {P(y)} op_sel:[0,0] op_sel_hi:[0,1]",
                f"v_pk_fma_f32 {P(d)}, {P(x)}, {P(y)}, {P(d)} op_sel:[1,1,0] op_sel_hi:[1,0,1] neg_lo:[0,1,0]"]
    return [f"v_mul_f32 v{d}, v{x}, v{y}", f"v_mul_f32 v{d+1}, v{x}, v{y+1}",
            f"v_fma_f32 v{d}, -v{x+1}, v{y+1}, v{d}", f"v_fma_f32 v{d+1}, v{x+1}, v{y}, v{d+1}"]

def kg_common(A, base, T0, Z, WA):
    ar, ai, br, bi, cr, ci, ld, dsk = range(P0, P0 + 8)
    u_ = f2u(LOG2E) & 0xFFFFFF00
    lh = struct.unpack("<f", struct.pack("<I", u_))[0]; ll = LOG2E - lh
    A(f"""
    v_mul_f32 v{T0}, {hex(f2u(lh))}, v{ld}
    v_mul_f32 v{T0+1}, {hex(f2u(ll * math.log(2)))}, v{ld}
    v_exp_f32 v{T0}, v{T0}
    s_nop 0
    v_fma_f32 v{T0}, v{T0}, v{T0+1}, v{T0}
    """)
    round_bf16(A, T0)
    A(f"""
    v_mul_f32 v{Z}, v{T0}, v{ar}
    v_mul_f32 v{Z+1}, v{T0}, v{ai}
    v_mul_f32 v{br}, v{T0}, v{br}
    v_mul_f32 v{bi}, v{T0}, v{bi}
    v_mul_f32 v{Z}, {hex(f2u(LOG2E))}, v{Z}
    v_mul_f32 v{Z+1}, 0.15915494, v{Z+1}
    """)
def kg_waddr(A, base, WA):
    A(f"s_lshl_b32 s28, s39, 13\ns_add_u32 s28, s28, {base}\nv_lshl_add_u32 v{WA}, v0, 2, s28")
    for k in range(1, 16): A(f"v_xor_b32 v{WA+k}, {16*k}, v{WA}")
def kg_raddr(base, d, t):
    o = ["s_lshl_b32 s28, s39, 13", f"s_add_u32 s28, s28, {base}", f"v_and_b32 v{t}, 15, v0", f"v_lshrrev_b32 v{t+1}, 5, v0", f"v_xor_b32 v{t}, v{t}, v{t+1}",
         f"v_and_b32 v{t+1}, 31, v0", f"v_lshlrev_b32 v{t+1}, 8, v{t+1}", f"v_lshl_add_u32 v{d}, v{t}, 4, v{t+1}", f"v_add_u32 v{d}, s28, v{d}"]
    return o + [f"v_xor_b32 v{d+k}, {32*k}, v{d}" for k in range(1, 8)]
def cexp(d, x, t, Z):
    xs = {1: None, 8: hex(f2u(8.0)), 256: hex(f2u(256.0))}[x]
    o = []
    if xs is None: o += [f"v_exp_f32 v{t}, v{Z}", f"v_fract_f32 v{t+1}, v{Z+1}"]
    else: o += [f"v_mul_f32 v{t}, {xs}, v{Z}", f"v_mul_f32 v{t+1}, {xs}, v{Z+1}", f"v_exp_f32 v{t}, v{t}", f"v_fract_f32 v{t+1}, v{t+1}"]
    o += [f"v_cos_f32 v{d}, v{t+1}", f"v_sin_f32 v{d+1}, v{t+1}", f"v_mul_f32 v{d}, v{d}, v{t}", f"v_mul_f32 v{d+1}, v{d+1}, v{t}"]
    return o
KWA = 100
KRA = 116

def gen_kgen_v(A):
    T0, Z, E8, E16, Va, Vb, PKT = 34, 144, 44, 46, 80, 84, 88
    kg_common(A, L_VS, T0, Z, KWA)
    A.extend(cexp(E8, 8, T0, Z))
    A.extend(cmul(E16, E8, E8))
    npk = [0]
    def emit(src, row):
        t = PKT + (npk[0] % 8); npk[0] += 1
        return [f"v_cvt_pk_bf16_f32 v{t}, v{src}, v{src+1}", f"ds_write_b32 v{KWA + (row & 15)}, v{t} offset:{row*256}"]
    A(f"v_mov_b32 v{PKT+7}, 0x00003f80")
    A(f"ds_write_b32 v{KWA}, v{PKT+7}")
    A.extend(emit(E8, 1)); A.extend(emit(E16, 2))
    ev, od = E16, E8
    for j in range(3, 32, 2):
        d1 = Va + 2 * (((j - 3) // 2) % 2)
        d2 = Vb + 2 * (((j - 3) // 2) % 2)
        l1 = cmul(d1, od, E16) + emit(d1, j)
        l2 = (cmul(d2, ev, E16) + emit(d2, j + 1)) if j + 1 < 32 else []
        A.extend(zipm(l1, l2))
        od, ev = d1, d2
    for st in range(8): A(f"ds_read_b128 v[{BF+4*st}:{BF+4*st+3}], v{KRA+st}")

UPK = 192
def kgen_u_lists(rebase):
    T0, Z, E1, G, Lr, Va = 34, 144, 42, 44, 58, 76
    ar, ai, br, bi, cr, ci, ld, dsk = range(P0, P0 + 8)
    cm = lambda d, x, y: cmul(d, x, y, False)
    V = []; Wr = []
    if rebase: V += [f"v_subrev_u32 v{KWA+k}, {rebase}, v{KWA+k}" for k in range(24)]
    V += zipm(cexp(E1, 1, T0 + 2, Z), cexp(G, 256, T0 + 4, Z), cm(Lr, cr, br))
    npk = [0]
    def emit(src, rows):
        t = UPK + npk[0]; npk[0] += 1
        Wr.extend(f"ds_write_b32 v{KWA + (row & 15)}, v{t} offset:{row*256}" for row in rows)
        return [f"v_cvt_pk_bf16_f32 v{t}, v{src}, -v{src+1}"]
    urow = lambda hh, r: 8 * (r >> 2) + 4 * hh + (r & 3)
    lch = emit(Lr, [urow(0, 0)])
    for a_ in range(1, 9): lch += cm(Lr + 2 * a_, Lr + 2 * (a_ - 1), E1) + emit(Lr + 2 * a_, [urow(0, a_)])
    gch = []
    for k in range(2, 8): gch += cm(G + 2 * (k - 1), G + 2 * (k - 2), G)
    V += zipm(lch, gch)
    jobs = [(0, 1, [urow(1, 0), urow(1, 1)]), (2, 1, [urow(1, 2)]), (4, 1, [urow(1, 3), urow(1, 4), urow(1, 5)]), (6, 1, [urow(1, 6)]),
            (8, 1, [urow(1, 7), urow(1, 8)]),
            (0, 2, [urow(0, 9)]), (4, 2, [urow(0, 10)]), (8, 2, [urow(0, 11)]),
            (0, 3, [urow(1, 9)]), (4, 3, [urow(1, 10)]), (8, 3, [urow(1, 11)]),
            (0, 4, [urow(0, 12)]), (8, 4, [urow(0, 13)]), (0, 5, [urow(0, 14)]), (8, 5, [urow(0, 15)]),
            (0, 6, [urow(1, 12)]), (8, 6, [urow(1, 13)]), (0, 7, [urow(1, 14)]), (8, 7, [urow(1, 15)])]
    for k in range(0, len(jobs), 2):
        ls = []
        for q_, (a_, gk, rows) in enumerate(jobs[k:k + 2]):
            d = Va + 4 * q_ + 2 * ((k // 2) % 2)
            ls.append(cm(d, Lr + 2 * a_, G + 2 * (gk - 1)) + emit(d, rows))
        V += zipm(*ls)
    assert npk[0] <= 32
    return V, Wr

def kg_atoms_m():
    at = [[f"ds_read_b128 v[{AF+4*k}:{AF+4*k+3}], v{KRA+k} offset:{L_US - L_VS}", ("tag", ("af", k))] for k in range(8)]
    mm = []
    for st in range(8):
        cin = "0" if st == 0 else f"v[{DK}:{DK+15}]"
        mm.append([("wait", ("af", st)), f"v_mfma_f32_32x32x16_bf16 v[{DK}:{DK+15}], v[{AF+4*st}:{AF+4*st+3}], v[{BF+4*st}:{BF+4*st+3}], {cin}"])
    return at, mm

def kg_atoms_x1():
    T0 = P0
    at = [[f"s_lshr_b32 s30, s39, 1", f"s_mul_i32 s30, s30, {CH_SIZE}", f"s_add_u32 s38, s30, {L_CH}", f"v_lshl_add_u32 v{T0}, v0, 4, s38"]]
    at.append(["s_bitcmp1_b32 s39, 0", "s_cselect_b64 exec, -1, 0"] + [f"ds_write_b128 v{T0}, v[{DK+4*q}:{DK+4*q+3}] offset:{512+q*1024}" for q in range(3)] +
              ["s_not_b64 exec, exec", f"ds_write_b128 v{T0}, v[{DK+12}:{DK+15}] offset:{512+3072}", "s_mov_b64 exec, -1"])
    return at

def kg_atoms_x2(tag):
    T0 = P0; VEA, VEB = 254, 255
    at = []
    at.append([f"ds_read_b128 v[{DP+4*q}:{DP+4*q+3}], v{T0} offset:{512+q*1024}" for q in range(4)] + [("tag", "dp")])
    for i in [f"v_and_b32 v{T0+4}, 31, v0", f"v_lshrrev_b32 v{T0+1}, 5, v0", f"v_lshlrev_b32 v{T0+2}, 4, v{T0+4}"]: at.append([i])
    at.append([f"s_add_u32 s28, s38, {OFF_E + 4080 - 1024}", f"v_sub_u32 v{VEA}, s28, v{T0+2}"])
    at.append([f"v_lshlrev_b32 v{T0+3}, 9, v{T0+1}"]); at.append([f"v_sub_u32 v{VEA}, v{VEA}, v{T0+3}"])
    at.append([f"s_add_u32 s28, s38, {OFF_E + 4080 - 2560}", f"v_sub_u32 v{VEB}, s28, v{T0+2}"])
    at.append([f"v_lshlrev_b32 v{T0+3}, 10, v{T0+1}"]); at.append([f"v_sub_u32 v{VEB}, v{VEB}, v{T0+3}"])
    at.append([f"v_lshl_add_u32 v{T0}, v0, 3, s38"]); at.append([f"v_mov_b32 v{T0+2}, 0"]); at.append([f"v_mov_b32 v{T0+3}, 0"])
    at.append(["s_lshl_b32 s28, s39, 2", f"s_add_u32 s28, s28, {L_FLAG}", f"v_mov_b32 v{T0+1}, s28"])
    for k in range(16): at.append(([("wait", "dp")] if k == 0 else []) + [f"v_add_f32 v{DK+k}, v{DK+k}, v{DP+k}"])
    at.append(mask("0xaaaaaaaa") + [f"v_cndmask_b32 v{DP}, v{DK+12}, v{DK+13}, s[28:29]", f"v_cndmask_b32 v{DP+1}, v{DK+14}, v{DK+15}, s[28:29]"])
    k_ = lambda r: DK + r
    def half(base, kk, va, off, odd):
        prs = [(8, 7), (6, 5), (4, 3), (2, 1)] if odd else [(7, 6), (5, 4), (3, 2), (1, 0)]
        return [f"v_cvt_pk_bf16_f32 v{base+i}, v{kk[lo]}, v{kk[hi]}" for i, (lo, hi) in enumerate(prs)] + \
               [f"ds_write_b128 v{va}, v[{base}:{base+3}] offset:{off + (OFF_O - OFF_E if odd else 0)}"]
    ev = [([k_(i) for i in range(9)], VEA, 1024), ([k_(9)] * 3 + [k_(10)] * 3 + [k_(11)] * 3, VEA, 0)]
    od = [([k_(12)] * 4 + [DP] + [k_(13)] * 4, VEB, 512), ([k_(14)] * 4 + [DP + 1] + [k_(15)] * 4, VEB, 0)]
    n = 0
    for gi in range(2):
        for o_ in range(2):
            b_ = EX + 4 * n
            at.append(["s_bitcmp1_b32 s39, 0", f"s_cbranch_scc1 L_xo{tag}{n}"] + half(b_, *ev[gi], o_)[:-1] + [("nods", half(b_, *ev[gi], o_)[-1]), f"s_branch L_xd{tag}{n}",
                       f"L_xo{tag}{n}:"] + half(b_, *od[gi], o_) + [f"L_xd{tag}{n}:"])
            n += 1
    at.append(["s_bitcmp0_b32 s39, 0", "s_cselect_b64 s[28:29], -1, 0", "s_mov_b64 exec, s[28:29]",
               f"ds_write_b64 v{T0}, v[{T0+2}:{T0+3}]", "s_and_b64 exec, s[28:29], 15",
               f"ds_write_b64 v{T0}, v[{T0+2}:{T0+3}] offset:{OFF_E+4096}", f"ds_write_b64 v{T0}, v[{T0+2}:{T0+3}] offset:{OFF_O+4096}",
               "s_and_b64 exec, s[28:29], 1", f"ds_write_b16_d16_hi v{T0}, v{EX+3} offset:{OFF_O+4096}",
               "s_mov_b64 exec, -1"])
    at.append([f"v_mov_b32 v{T0+2}, 1", f"ds_write_b32 v{T0+1}, v{T0+2} offset:64"])
    return at

def flag_zero():
    return [[f"v_lshlrev_b32 v{VT1}, 2, v0", f"v_mov_b32 v{VT1+1}, 0", f"v_add_u32 v{VT1}, {L_FLAG}, v{VT1}", f"ds_write_b32 v{VT1}, v{VT1+1}"]]

class LQ:
    def __init__(self, A): self.A = A; self.q = []
    def emit(self, items, tag=None):
        maybe0 = any(isinstance(it, str) and "s_cselect_b64" in it for it in items)
        for it in items:
            if maybe0 and isinstance(it, str):
                self.A(it); continue
            if isinstance(it, tuple):
                if it[0] == "tag": self.q[-1] = it[1]
                elif it[0] == "wait": self.wait(it[1])
                elif it[0] == "nods": self.A(it[1])
                continue
            self.A(it)
            if it.strip().startswith("ds_"): self.q.append(tag)
            if "lgkmcnt(0)" in it: self.q = []
    def wait(self, tag):
        idx = max((k for k, t in enumerate(self.q) if t == tag), default=-1)
        if idx < 0: return
        n = min(len(self.q) - 1 - idx, 15)
        self.A(f"s_waitcnt lgkmcnt({n})")
        self.q = self.q[len(self.q) - n:] if n else []

def spread(atoms, g0, g1):
    pts = [(g, p) for g in range(g0, g1) for p in range(2)]
    tot = sum(len(a_) for a_ in atoms); out = {p: [] for p in pts}; acc = 0
    for a_ in atoms:
        out[pts[min(len(pts) - 1, acc * len(pts) // tot)]].append(a_); acc += len(a_)
    return out

VXO, VWO, VXO2 = 1, 2, 3
VXR, VTR = 4, 8
VONE, VHO1, VB1 = 16, 18, 19
VCW, VCR, VSO = 20, 21, 22
VT1 = 28
NR = 3
W1, X1, ACC1, CS = 32, 56, 80, 144
HI = 152
GT, PK, SG = 164, 180, 188
EA, EB = 192, 196
VS, K1r, K3r = 212, 214, 216

def wave_flag(soff, vt):
    return [f"v_mov_b32 v{vt}, 0", f"v_mov_b32 v{vt+1}, s76", "s_mov_b64 exec, 1",
            f"buffer_store_dword v{vt+1}, v{vt}, s[12:15], {soff} offen {SC}", "s_mov_b64 exec, -1"]

def dma_setup(A):
    VT = VT1
    A(f"""
    v_lshrrev_b32 v{VT}, 3, v0
    v_and_b32 v{VT+1}, 7, v0
    v_lshrrev_b32 v{VT+2}, 4, v0
    v_xor_b32 v{VT+3}, v{VT+2}, v{VT+1}
    v_lshlrev_b32 v{VXO}, 10, v{VT}
    v_lshl_add_u32 v{VXO}, v{VT+3}, 4, v{VXO}
    v_xor_b32 v{VXO2}, 64, v{VXO}
    v_add_u32 v{VXO2}, 8192, v{VXO2}
    v_and_b32 v{VT+3}, 15, v0
    v_lshlrev_b32 v{VT}, 2, v{VT+2}
    v_xor_b32 v{VT+3}, v{VT+3}, v{VT}
    v_mul_u32_u24 v{VWO}, 3584, v{VT+2}
    v_lshl_add_u32 v{VWO}, v{VT+3}, 4, v{VWO}
    s_lshl_b32 s25, s21, 17
    s_lshl_b32 s28, s39, 15
    s_add_u32 s25, s25, s28
    s_mul_i32 s26, s39, {16*3584}
    s_lshl_b32 s28, s22, 8
    s_add_u32 s26, s26, s28
    s_lshl_b32 s27, s39, 12
    """)

def g1_dma(kc, part):
    st = (kc % NS) * STAGE
    return [f"s_add_u32 m0, s27, {st + part*1024}", f"s_add_u32 s31, s25, {128*kc + (part//2)*16384}",
            f"buffer_load_dwordx4 v{VXO if part % 2 == 0 else VXO2}, s[4:7], s31 offen lds",
            f"s_add_u32 m0, s27, {st + 16384 + part*1024}", f"s_add_u32 s37, s26, {(64*kc + 4*part)*3584}",
            f"buffer_load_dwordx4 v{VWO}, s[8:11], s37 offen lds"]

def c_setup(A):
    VT = VT1
    A(f"""
    v_and_b32 v{VT}, 31, v0
    v_lshrrev_b32 v{VT+1}, 5, v0
    v_bfe_u32 v{VT+2}, v0, 1, 3
    v_xor_b32 v{VT+2}, v{VT+2}, v{VT+1}
    s_lshl_b32 s31, s34, 1
    v_xor_b32 v{VT+2}, s31, v{VT+2}
    v_lshlrev_b32 v{VXR}, 7, v{VT}
    v_lshl_add_u32 v{VXR}, v{VT+2}, 4, v{VXR}
    s_lshl_b32 s28, s34, 13
    v_add_u32 v{VXR}, s28, v{VXR}
    v_xor_b32 v{VXR+1}, 32, v{VXR}
    v_xor_b32 v{VXR+2}, 64, v{VXR}
    v_xor_b32 v{VXR+3}, 96, v{VXR}
    v_lshlrev_b32 v{VSO}, 3, v0
    v_bfe_u32 v{VT+2}, v0, 2, 2
    v_lshl_add_u32 v{VTR}, v{VT+1}, 3, v{VT+2}
    v_lshlrev_b32 v{VTR}, 8, v{VTR}
    v_bfe_u32 v{VT+3}, v0, 4, 1
    v_lshl_add_u32 v{VTR}, v{VT+3}, 5, v{VTR}
    v_and_b32 v{VT+3}, 3, v0
    v_lshl_add_u32 v{VTR}, v{VT+3}, 3, v{VTR}
    s_lshl_b32 s31, s35, 1
    v_xor_b32 v{VT+2}, s31, v{VT+2}
    v_lshl_add_u32 v{VTR}, v{VT+2}, 6, v{VTR}
    s_lshl_b32 s31, s34, 12
    s_add_u32 s31, s31, 16384
    v_add_u32 v{VTR}, s31, v{VTR}
    """)
    for i in range(4):
        for ft in range(2):
            if i == 0 and ft == 0: continue
            A(f"v_xor_b32 v{VTR+2*i+ft}, {i*4096 + ft*64}, v{VTR}")
    A(f"""
    v_mov_b32 v{VONE}, 0x3f803f80
    v_mov_b32 v{VONE+1}, 0x3f803f80
    v_lshlrev_b32 v{VHO1}, 4, v0
    s_lshl_b32 s33, s21, 1
    s_add_u32 s33, s33, s34
    s_lshl_b32 s36, s33, 9
    s_add_u32 s36, s36, {WS_STAT}
    s_mul_i32 s32, s33, {2*112*1024}
    s_lshl_b32 s28, s22, 1
    s_add_u32 s28, s28, s35
    s_lshl_b32 s29, s28, 12
    s_add_u32 s32, s32, s29
    s_add_u32 s32, s32, {WS_HF}
    s_add_u32 s38, s32, {112*1024}
    s_lshl_b32 s33, s33, 5
    s_add_u32 s33, s33, s28
    s_lshl_b32 s33, s33, 7
    s_add_u32 s33, s33, {WS_FLH}
    s_lshl_b32 s29, s20, 8
    v_lshl_add_u32 v{VCW}, v0, 2, s29
    v_add_u32 v{VCW}, {L_CS}, v{VCW}
    v_xor_b32 v{VCR}, 256, v{VCW}
    """)
    srd(A, 16, "s46", "s47", 3584)
    A(f"""
    v_mov_b32 v{VB1}, 0
    v_lshlrev_b32 v{VT1}, 1, v0
    s_lshl_b32 s28, s28, 7
    buffer_load_short_d16_hi v{VB1}, v{VT1}, s[16:19], s28 offen
    """)
    for k in range(20): A(f"v_mov_b32 v{EA+k}, 0")
    for k in range(12): A(f"v_add_u32 v{HI+k}, 0x10000, v{VXR+k}")

def c_reads(g):
    kc, i = divmod(g, 4)
    st = kc % NS
    b = (VXR if st < 2 else HI); off = (st % 2) * STAGE
    sl = g % NR
    tr = lambda ft, sec: f"ds_read_b64_tr_b16 v[{W1+8*sl+4*ft+2*sec}:{W1+8*sl+4*ft+2*sec+1}], v{b+4+2*i+ft} offset:{off + sec*1024}"
    xr = lambda tt: f"ds_read_b128 v[{X1+8*sl+4*tt}:{X1+8*sl+4*tt+3}], v{b+i} offset:{off + tt*4096}"
    return [xr(0), tr(0, 0), tr(0, 1), tr(1, 0), tr(1, 1), xr(1)]

def gen_c1(A):
    VT = VT1
    dma_setup(A)
    A(f"""
    s_and_b32 s34, s20, 1
    s_lshr_b32 s35, s20, 1
    s_waitcnt lgkmcnt(0)
    s_load_dword s76, s[42:43], {WS_EPOCH}
    """)
    vm = VMQ()
    srd(A, 4, "s40", "s41", 2 << 20)
    srd(A, 8, "s44", "s45", 512 * 3584)
    srd(A, 12, "s42", "s43", WS_USED)
    for kc in range(3):
        for part in range(4): A.extend(g1_dma(kc, part))
        vm.note(kc, 8)
        if kc == 0:
            c_setup(A); vm.note("b1")
        if kc == env("PFAT", 1) and OPT_PF: coop_prefetch(A, VT); vm.note("pf", 2)
    A.extend(ya_prefill(VT, VT + 1, PK)); vm.note(2, 2)
    w2_setup(A, VT)
    A.st("pre")
    A(vm.wait(0)[0] + " lgkmcnt(0)"); A("s_barrier")
    A.st("b0")
    T = GT
    lq = LQ(A)
    lq.emit(c_reads(0), 0); lq.emit(c_reads(1), 1)
    mktag(A)
    def big(g, tt, ft):
        sl = g % NR; c = ACC1 + 32 * tt + 16 * ft
        cin = "0" if g == 0 else f"v[{c}:{c+15}]"
        return f"v_mfma_f32_32x32x16_bf16 v[{c}:{c+15}], v[{W1+8*sl+4*ft}:{W1+8*sl+4*ft+3}], v[{X1+8*sl+4*tt}:{X1+8*sl+4*tt+3}], {cin}"
    for g in range(32):
        kc, i = divmod(g, 4); w = W1 + 8 * (g % NR)
        m = lambda d, b_, z: f"v_mfma_f32_4x4x4_16b_bf16 v[{d}:{d+3}], v[{VONE}:{VONE+1}], v[{b_}:{b_+1}], " + ("0" if z else f"v[{d}:{d+3}]")
        o1, o2 = [], []
        if i < 2 and False: pass
        if i in (0, 2) and g < 28 or g in (28, 29):
            o1 = [m(CS, w, g == 0), m(CS + 4, w + 4, g == 0)]; o2 = [m(CS, w + 2, False), m(CS + 4, w + 6, False)]
        A.st(f"g{g}")
        gn = g + 2
        rd = c_reads(PERM(gn))[:] if gn < 32 else []
        rd = c_reads_slot(gn) if gn < 32 else []
        x1, x2 = [], []
        if i == 2 and kc + 1 < 8: x1 += vm.wait(kc + 1) + ["s_barrier"]
        if g == 30:
            x1 += [f"v_permlane32_swap_b32 v{CS}, v{CS+4}", f"v_add_f32 v{CS}, v{CS}, v{CS+4}", f"ds_write_b32 v{VCW}, v{CS}",
                   "s_waitcnt lgkmcnt(0)", "s_barrier", f"ds_read_b32 v{T+2}, v{VCR}"]
        if g == STATG: x2 += [f"buffer_load_dwordx2 v[{SG}:{SG+1}], v{VSO}, s[12:15], s36 offen {SC}"]; vm.note("sg")
        if g == env("YFG", 8) - 1: x2 += yflag_off()
        if g == env("YFG", 8): x2 += wave_flag("s28", VT); vm.note("yf")
        lq.wait(g)
        A(big(g, 0, 0))
        if i == 2: A.st(f"pb{kc+1}")
        lq.emit(x1)
        if i == 2: A.st(f"ab{kc+1}")
        lq.emit(rd[:2], gn)
        A(big(g, 0, 1)); lq.emit(rd[2:4], gn); A.extend(o1)
        A(big(g, 1, 0)); lq.emit(rd[4:], gn)
        A(big(g, 1, 1)); lq.emit(x2); A.extend(o2)
    A.st("loop")
    A.extend(vm.wait("sg", "b1"))
    A(f"""
    v_cmp_ne_u32 vcc, s76, v{SG+1}
    s_cbranch_vccz L_g1_sok
    s_mov_b32 s30, 0
    L_g1_spoll:
    buffer_load_dwordx2 v[{SG}:{SG+1}], v{VSO}, s[12:15], s36 offen {SC}
    s_add_u32 s30, s30, 1
    s_waitcnt vmcnt(0)
    v_cmp_ne_u32 vcc, s76, v{SG+1}
    s_cmp_gt_u32 s30, {SPIN}
    s_cbranch_scc1 L_g1_sok
    s_cbranch_vccnz L_g1_spoll
    L_g1_sok:
    v_mov_b32 v{SG+1}, v{SG}
    s_mov_b32 s28, -1
    s_mov_b32 s29, 0
    v_permlane32_swap_b32 v{SG}, v{SG+1}
    s_waitcnt lgkmcnt(0)
    v_add_f32 v{T+2}, v{T+2}, v{CS}
    """)
    l1 = []
    for tt in range(2):
        l1 += [f"v_and_b32 v{VS+tt}, 0xffff0000, v{SG+tt}", f"v_and_b32 v{T+8+tt}, 0xffff, v{SG+tt}", f"v_rcp_f32 v{T+6+tt}, v{VS+tt}",
               f"v_lshl_or_b32 v{T+8+tt}, v{T+8+tt}, 16, v{T+8+tt}",
               f"v_cndmask_b32 v{EB+8*tt}, 0, v{T+8+tt}, s[28:29]", f"v_cndmask_b32 v{EB+8*tt+1}, 0, v{SG+tt}, s[28:29]",
               f"v_cndmask_b32 v{EB+8*tt+4}, v{T+8+tt}, 0, s[28:29]", f"v_cndmask_b32 v{EB+8*tt+5}, v{SG+tt}, 0, s[28:29]"]
    l2 = [f"v_and_b32 v{T+3}, 0xffff0000, v{T+2}", f"v_sub_f32 v{T+3}, v{T+2}, v{T+3}", f"v_lshrrev_b32 v{T+2}, 16, v{T+2}",
          f"v_and_b32 v{T+4}, 0xffff0000, v{T+3}", f"v_sub_f32 v{T+5}, v{T+3}, v{T+4}", f"v_or_b32 v{EA}, v{T+2}, v{T+4}",
          f"v_lshrrev_b32 v{T+5}, 16, v{T+5}", f"v_or_b32 v{EA+1}, v{T+5}, v{VB1}"]
    A.extend(zipm(l1, l2))
    l3 = []
    for tt in range(2):
        l3.append([f"v_fma_f32 v{T+10+tt}, -v{VS+tt}, v{T+6+tt}, 1.0", f"v_fma_f32 v{T+6+tt}, v{T+10+tt}, v{T+6+tt}, v{T+6+tt}",
                   f"v_mul_f32 v{K1r+tt}, {hex(f2u(GC1))}, v{T+6+tt}", f"v_mul_f32 v{T+10+tt}, v{T+6+tt}, v{T+6+tt}",
                   f"v_mul_f32 v{K3r+tt}, {hex(f2u(GC2))}, v{T+6+tt}", f"v_mul_f32 v{K3r+tt}, v{K3r+tt}, v{T+10+tt}"])
    l3 = zipm(*l3)
    for tt in range(2):
        for ft in range(2):
            c = ACC1 + 32 * tt + 16 * ft
            A(f"v_mfma_f32_32x32x16_bf16 v[{c}:{c+15}], v[{EA}:{EA+3}], v[{EB+8*tt+4*ft}:{EB+8*tt+4*ft+3}], v[{c}:{c+15}]")
            A.extend(l3[3 * (2 * tt + ft):3 * (2 * tt + ft) + 3])
    A.st("gstart")
    for n in range(8):
        tt = n // 4
        c0 = ACC1 + 8 * n
        t0 = GT + 8 * (n % 2)
        if GPK:
            P = lambda x: f"v[{x}:{x+1}]"
            sel = f"op_sel:[0,{tt},{tt}] op_sel_hi:[1,{tt},{tt}]"
            for k in range(0, 8, 2): A(f"v_pk_mul_f32 {P(t0+k)}, {P(c0+k)}, {P(c0+k)}")
            for k in range(0, 8, 2): A(f"v_pk_fma_f32 {P(t0+k)}, {P(t0+k)}, {P(K3r)}, {P(K1r)} {sel}")
            for k in range(0, 8, 2): A(f"v_pk_mul_f32 {P(t0+k)}, {P(t0+k)}, {P(c0+k)}")
            for k in range(8): A(f"v_exp_f32 v{t0+k}, v{t0+k}")
            for k in range(0, 8, 2): A(f"v_pk_fma_f32 {P(t0+k)}, {P(t0+k)}, {P(VS)}, {P(VS)} {sel}")
            for k in range(8): A(f"v_rcp_f32 v{t0+k}, v{t0+k}")
            for k in range(0, 8, 2): A(f"v_pk_mul_f32 {P(c0+k)}, {P(c0+k)}, {P(t0+k)}")
        else:
            for k in range(8): A(f"v_mul_f32 v{t0+k}, v{c0+k}, v{c0+k}")
            for k in range(8): A(f"v_fma_f32 v{t0+k}, v{t0+k}, v{K3r+tt}, v{K1r+tt}")
            for k in range(8): A(f"v_mul_f32 v{t0+k}, v{t0+k}, v{c0+k}")
            for k in range(8): A(f"v_exp_f32 v{t0+k}, v{t0+k}")
            for k in range(8): A(f"v_fma_f32 v{t0+k}, v{t0+k}, v{VS+tt}, v{VS+tt}")
            for k in range(8): A(f"v_rcp_f32 v{t0+k}, v{t0+k}")
            for k in range(8): A(f"v_mul_f32 v{c0+k}, v{c0+k}, v{t0+k}")
        pk = PK + 4 * (n % 2)
        for k in range(4): A(f"v_cvt_pk_bf16_f32 v{pk+k}, v{c0+2*k}, v{c0+2*k+1}")
        A(f"buffer_store_dwordx4 v[{pk}:{pk+3}], v{VHO1}, s[12:15], s{32 if tt == 0 else 38} offen offset:{(n%4)*1024} {SCH}")
        if env("DBL", 0): A(f"buffer_store_dwordx4 v[{pk}:{pk+3}], v{VHO1}, s[12:15], s{32 if tt == 0 else 38} offen offset:{(n%4)*1024}")
    A.st("gend")
    A("s_mov_b32 s37, 0")
    A("s_branch L_gemm2")

def PERM(g): return g
def c_reads_slot(g):
    if g < 28: return c_reads(g)
    i = [0, 2, 1, 3][g - 28]
    r = c_reads(28 + i)
    kc = 7; st = kc % NS; b = HI; off = (st % 2) * STAGE; sl = g % NR
    tr = lambda ft, sec: f"ds_read_b64_tr_b16 v[{W1+8*sl+4*ft+2*sec}:{W1+8*sl+4*ft+2*sec+1}], v{b+4+2*i+ft} offset:{off + sec*1024}"
    xr = lambda tt: f"ds_read_b128 v[{X1+8*sl+4*tt}:{X1+8*sl+4*tt+3}], v{b+i} offset:{off + tt*4096}"
    return [xr(0), tr(0, 0), tr(0, 1), tr(1, 0), tr(1, 1), xr(1)]

def yflag_off():
    return ["s_lshr_b32 s28, s39, 1", "s_lshl_b32 s29, s2, 1", "s_add_u32 s28, s28, s29", "s_and_b32 s29, s39, 1", "s_lshl_b32 s29, s29, 9",
            "s_add_u32 s28, s28, s29", "s_lshl_b32 s28, s28, 7", f"s_add_u32 s28, s28, {WS_FLY}"]
def ring_ready(vt):
    return ["s_lshl_b32 s28, s39, 2", f"s_add_u32 s28, s28, {L_FLAG+16}", f"v_mov_b32 v{vt}, s28", f"v_mov_b32 v{vt+1}, 1", f"ds_write_b32 v{vt}, v{vt+1}"]

def lds_wait(A, name, vaddr, off, vt):
    A(f"""
    {name}:
    ds_read_b32 v{vt}, v{vaddr} offset:{off}
    s_waitcnt lgkmcnt(0)
    v_readfirstlane_b32 s28, v{vt}
    s_cmp_eq_u32 s28, 1
    s_cbranch_scc0 {name}
    """)

def gen_h1(A):
    VT = VT1
    vm = VMQ()
    param_loads(A, VT); vm.note("prm", 8)
    A(f"s_load_dword s76, s[42:43], {WS_EPOCH}")
    srd(A, 4, "s40", "s41", 2 << 20)
    srd(A, 8, "s44", "s45", 512 * 3584)
    srd(A, 12, "s42", "s43", WS_USED)
    dma_setup(A)
    w2_setup(A, VT)
    kg_waddr(A, L_VS, KWA); A.extend(kg_raddr(L_VS, KRA, VT))
    for a_ in flag_zero(): A.extend(a_)
    A.st("pre")
    A.extend(vm.wait("prm"))
    A.st("prm")
    A.label("L_kgen_v")
    gen_kgen_v(A)
    A("s_cmp_eq_u32 s79, 7")
    A("s_cbranch_scc1 L_ln_H2")
    A.st("kg")
    A("s_waitcnt lgkmcnt(0)"); A("s_barrier")
    A.st("b0")
    mktag(A)
    UV, UW = kgen_u_lists(0)
    wts = [2, 3, 3, 3, 3, 3]; cum = 0
    for k in range(8):
        if k <= 5:
            sl_ = UV[len(UV) * cum // sum(wts):len(UV) * (cum + wts[k]) // sum(wts)]; cum += wts[k]
            if k >= 1:
                pcs = []
                for part in range(4):
                    dd = g1_dma(k + 2, part); pcs += [dd[:3], dd[3:]]
                vm.note(k + 2, 8)
                for q, dd in enumerate(pcs):
                    A.extend(dd); A.extend(sl_[len(sl_) * q // 8:len(sl_) * (q + 1) // 8])
            else: A.extend(sl_)
        else:
            for sl in range(4 * (k - 6), 4 * (k - 6) + 4): A.extend(wdma(sl, sl))
            vm.note("f", 8)
        A.st(f"pi{k+1}")
        A.extend(vm.wait(k + 1))
        A("s_barrier")
        A.st(f"ab{k+1}")
    A.st("loop")
    FE = env("FE", 1)
    if FE:
        for sl in range(8, 12): A.extend(wdma(sl, sl))
    A.label("L_h_tail")
    A(f"s_setprio {env('PRIOX', 1)}")
    lq = LQ(A)
    ar_, mm_ = kg_atoms_m()
    lq.emit(UW)
    for a_ in ar_ + mm_ + kg_atoms_x1(): lq.emit(a_)
    A(f"""
    s_lshl_b32 s28, s39, 2
    s_add_u32 s28, s28, {L_FLAG}
    v_mov_b32 v{VT}, s28
    v_mov_b32 v{VT+1}, 1
    ds_write_b32 v{VT}, v{VT+1} offset:80
    v_xor_b32 v{VT+2}, 4, v{VT}
    """)
    lds_wait(A, "L_h_x1", VT + 2, 80, 32)
    lq.q = []
    for a_ in kg_atoms_x2("g"): lq.emit(a_)
    A("s_setprio 0")
    A.extend(lnflag_load(VT))
    A("s_waitcnt lgkmcnt(0)")
    A.st("ku")
    A(f"v_lshlrev_b32 v18, 4, v0")
    A("s_waitcnt vmcnt(0)")
    u_try(A, 18)
    if not FE:
        A("s_cmp_eq_u32 s79, 7")
        A("s_cbranch_scc1 L_h_nof")
        for sl in range(8, 12): A.extend(wdma(sl, sl))
        A("s_waitcnt vmcnt(0)")
        A.label("L_h_nof")
    A.extend(ring_ready(VT))
    A.st("gend")
    A("s_branch L_conv")
    A.label("L_ln_H2")
    A("s_nop 0 ; RESETSB")
    A.extend(UV)
    A("s_branch L_h_tail")

def gen_gemm1(A):
    A(f"""
    s_load_dwordx8 s[56:63], s[0:1], {KA['A_re']}
    s_load_dwordx8 s[64:71], s[0:1], {KA['C_re']}
    """)
    A("s_cmp_ge_u32 s20, 4")
    A("s_cbranch_scc1 L_g1_H")
    gen_c1(A)
    A.label("L_g1_H")
    A("s_nop 0 ; RESETSB")
    gen_h1(A)


def gen_ln(A):
    Q, R, O, T = 16, 48, 80, 112
    A(f"""
    v_lshrrev_b32 v1, 3, v0
    v_and_b32 v2, 7, v0
    v_lshlrev_b32 v3, 10, v1
    v_lshl_add_u32 v3, v2, 4, v3
    v_lshlrev_b32 v4, 4, v0
    s_lshl_b32 s25, s21, 6
    s_lshl_b32 s28, s20, 3
    s_add_u32 s25, s25, s28
    s_lshl_b32 s36, s25, 3
    s_add_u32 s36, s36, {WS_STAT}
    s_lshl_b32 s25, s25, 10
    s_add_u32 s26, s25, 4096
    s_waitcnt lgkmcnt(0)
    s_load_dword s76, s[42:43], {WS_EPOCH}
    """)
    srd(A, 4, "s40", "s41", 2 << 20)
    for i in range(8): A(f"buffer_load_dwordx4 v[{Q+4*i}:{Q+4*i+3}], v3, s[4:7], s25 offen offset:{128*i}")
    srd(A, 12, "s42", "s43", WS_USED)
    A("s_waitcnt lgkmcnt(0)")
    mktag(A)
    for t in range(8): A(f"buffer_load_dwordx4 v[{R+4*t}:{R+4*t+3}], v4, s[4:7], s{25 + t//4} offen offset:{(t%4)*1024}")
    A(f"""
    v_mov_b32 v5, 0x3f803f80
    v_mov_b32 v6, 0
    v_mov_b32 v7, 0
    v_mov_b32 v12, 0
    v_mov_b32 v13, 0
    v_mov_b32 v14, 0x00003f80
    v_mov_b32 v15, 0x3f800000
    v_lshlrev_b32 v8, 3, v1
    v_mov_b32 v11, s76
    """)
    for i in range(8):
        A(f"s_waitcnt vmcnt({8 + 7 - i})")
        for k in range(4):
            r = Q + 4 * i + k
            A(f"v_dot2_f32_bf16 v{6 if k%2==0 else 12}, v{r}, v5, v{6 if k%2==0 else 12}")
            A(f"v_dot2_f32_bf16 v{7 if k%2==0 else 13}, v{r}, v{r}, v{7 if k%2==0 else 13}")
    A(f"""
    v_add_f32 v6, v6, v12
    v_add_f32 v7, v7, v13
    v_add_f32_dpp v6, v6, v6 quad_perm:[1,0,3,2] row_mask:0xf bank_mask:0xf
    v_add_f32_dpp v7, v7, v7 quad_perm:[1,0,3,2] row_mask:0xf bank_mask:0xf
    v_add_f32_dpp v6, v6, v6 quad_perm:[2,3,0,1] row_mask:0xf bank_mask:0xf
    v_add_f32_dpp v7, v7, v7 quad_perm:[2,3,0,1] row_mask:0xf bank_mask:0xf
    v_add_f32_dpp v6, v6, v6 row_half_mirror row_mask:0xf bank_mask:0xf
    v_add_f32_dpp v7, v7, v7 row_half_mirror row_mask:0xf bank_mask:0xf
    v_mul_f32 v12, {hex(f2u(1/512))}, v6
    v_mul_f32 v13, {hex(f2u(1/512))}, v7
    v_fma_f32 v13, -v12, v12, v13
    v_max_f32 v13, 0, v13
    """)
    round_bf16(A, 13)
    A(f"v_add_f32 v13, {hex(f2u(1e-5))}, v13")
    round_bf16(A, 13)
    A(f"""
    v_sqrt_f32 v13, v13
    v_cvt_pk_bf16_f32 v10, -v12, v13
    s_mov_b32 exec_lo, 0x01010101
    s_mov_b32 exec_hi, 0x01010101
    buffer_store_dwordx2 v[10:11], v8, s[12:15], s36 offen {SC}
    s_mov_b64 exec, -1
    """)
    A.st("b0")
    A(f"""
    v_and_b32 v13, 0xffff0000, v10
    v_lshlrev_b32 v12, 16, v10
    v_rcp_f32 v5, v13
    s_nop 0
    v_fma_f32 v13, -v13, v5, 1.0
    v_fma_f32 v13, v13, v5, v5
    """)
    for t in range(8):
        A(f"v_readlane_b32 s{56+t}, v12, {8*t}")
        A(f"v_readlane_b32 s{64+t}, v13, {8*t}")
    A(f"""
    v_xor_b32 v5, s20, v2
    v_lshlrev_b32 v6, 10, v0
    v_lshl_add_u32 v6, v5, 4, v6
    v_add_u32 v6, 98304, v6
    s_waitcnt vmcnt(1)
    """)

    for tp in range(4):
        t0, t1 = 2 * tp, 2 * tp + 1
        for k in range(4):
            for h in range(2):
                e = 2 * k + h
                A(f"v_dot2_f32_bf16 v{T+2*e}, v{R+4*t0+k}, v{14+h}, s{56+t0}")
                A(f"v_dot2_f32_bf16 v{T+2*e+1}, v{R+4*t1+k}, v{14+h}, s{56+t1}")
        for e in range(8): A(f"v_cvt_pk_bf16_f32 v{T+2*e+1}, v{T+2*e}, v{T+2*e+1}")
        for e in range(8):
            A(f"v_lshlrev_b32 v{T+2*e}, 16, v{T+2*e+1}")
            A(f"v_and_b32 v{T+2*e+1}, 0xffff0000, v{T+2*e+1}")
        for e in range(8): A(f"v_pk_mul_f32 v[{T+2*e}:{T+2*e+1}], v[{T+2*e}:{T+2*e+1}], s[{64+t0}:{64+t1}]")
        for e in range(8): A(f"v_cvt_pk_bf16_f32 v{O+4*e+tp}, v{T+2*e}, v{T+2*e+1}")
        if tp == env("LFP", 3):
            w2_setup(A, 28)
            LF = env("LF", 0)
            A("s_cmp_ge_u32 s20, 4")
            A("s_cbranch_scc1 L_ln_nofill")
            for sl in range(LF): A.extend(wdma(sl, sl))
            A.label("L_ln_nofill")
    for e in range(8): A(f"ds_write_b128 v6, v[{O+4*e}:{O+4*e+3}] offset:{e*128}")
    A(f"""
    s_lshl_b32 s28, s20, 13
    v_lshlrev_b32 v6, 7, v1
    v_lshl_add_u32 v6, v2, 4, v6
    v_add_u32 v6, s28, v6
    v_add_u32 v6, 98304, v6
    v_lshlrev_b32 v7, 12, v1
    v_lshl_add_u32 v7, v2, 4, v7
    s_load_dwordx8 s[56:63], s[0:1], {KA['A_re']}
    s_load_dwordx8 s[64:71], s[0:1], {KA['C_re']}
    s_lshl_b32 s26, s20, 18
    s_lshl_b32 s28, s21, 7
    s_add_u32 s26, s26, s28
    s_add_u32 s26, s26, {WS_XNT}
    s_lshl_b32 s33, s21, 7
    s_add_u32 s33, s33, {WS_FLL}
    """)
    for i in range(8): A(f"v_xor_b32 v{8+i}, {16*i}, v6")
    A.st("g8")
    param_loads(A, T)
    A.extend(ya_prefill(T + 2, T + 3, T + 4))
    A("s_barrier")
    for i in range(8): A(f"ds_read_b128 v[{R+4*i}:{R+4*i+3}], v{8+i} offset:{i*1024}")
    for i in range(8):
        A(f"s_waitcnt lgkmcnt({7-i})")
        A(f"s_add_u32 s25, s26, {i*32768}")
        A(f"buffer_store_dwordx4 v[{R+4*i}:{R+4*i+3}], v7, s[12:15], s25 offen {SC}")
    A.st("loop")
    A("s_waitcnt vmcnt(0)")
    A("s_barrier")
    publish_flag(A, "s33", 28, "l", 7)
    A.st("gstart")
    A(f"s_mov_b32 s33, {WS_DUMMY}")
    srd(A, 16, "s48", "s49", 1792 * 1024)
    for a_ in flag_zero(): A.extend(a_)
    A("s_waitcnt lgkmcnt(0)")
    A("s_barrier")
    A("s_cmp_lt_u32 s20, 4")
    A("s_cbranch_scc1 L_ln_C")
    A.extend(yflag_off()); A.extend(wave_flag("s28", 28))
    kg_waddr(A, L_VS, KWA); A.extend(kg_raddr(L_VS, KRA, 28))
    A("s_branch L_kgen_v")
    A.label("L_ln_C")
    for sl in range(LF, 12): A.extend(wdma(sl, sl))
    A("s_waitcnt vmcnt(0)")
    for sl in range(12): A.extend(w2tr(sl, sl))
    A("s_waitcnt lgkmcnt(0)")
    for sl in range(12): A.extend(wdma(sl, 12 + sl))
    A(f"""
    v_mov_b32 v28, {L_FLAG+16}
    L_ln_cw:
    ds_read_b128 v[32:35], v28
    s_waitcnt lgkmcnt(0)
    v_and_b32 v32, v32, v33
    v_and_b32 v34, v34, v35
    v_and_b32 v32, v32, v34
    s_nop 0
    v_readfirstlane_b32 s28, v32
    s_cmp_eq_u32 s28, 1
    s_cbranch_scc0 L_ln_cw
    """)
    A(f"""
    s_lshl_b32 s28, s20, 8
    s_add_u32 s28, s28, s2
    s_cmp_lg_u32 s28, 255
    s_cbranch_scc1 L_nobump
    v_lshlrev_b32 v28, 8, v0
    s_mov_b32 s30, 0
    L_bump_poll:
    """)
    for k in range(4):
        A(f"s_mov_b32 s28, {WS_FLY + k*16384}")
        A(f"buffer_load_dword v{32+k}, v28, s[12:15], s28 offen {SC}")
    A(f"""
    s_add_u32 s30, s30, 1
    s_waitcnt vmcnt(0)
    v_xor_b32 v32, s76, v32
    v_xor_b32 v33, s76, v33
    v_xor_b32 v34, s76, v34
    v_xor_b32 v35, s76, v35
    v_or3_b32 v32, v32, v33, v34
    v_or_b32 v32, v32, v35
    v_cmp_ne_u32 vcc, 0, v32
    s_cmp_gt_u32 s30, {SPIN}
    s_cbranch_scc1 L_bump_go
    s_cbranch_vccnz L_bump_poll
    L_bump_go:
    s_mov_b32 s28, {WS_EPOCH}
    """)
    A.extend(wave_flag("s28", 28))
    A.label("L_nobump")
    A("s_mov_b32 s37, 1")
    A("s_branch L_gemm2")


def final_addr(A):
    A(f"""
    v_lshrrev_b32 v1, 3, v0
    v_and_b32 v2, 7, v0
    v_lshlrev_b32 v{VOO}, 10, v1
    v_lshl_add_u32 v{VOO}, v2, 4, v{VOO}
    v_lshlrev_b32 v3, 4, v2
    s_lshl_b32 s33, s78, 6
    s_lshl_b32 s28, s20, 3
    s_add_u32 s33, s33, s28
    s_lshl_b32 s33, s33, 10
    s_lshl_b32 s34, s79, 7
    s_add_u32 s33, s33, s34
    """)
def ep_loads():
    o = Asm()
    srd(o, 8, "s50", "s51", 1024)
    o(f"buffer_load_dwordx4 v[{VX}:{VX+3}], v{VOO}, s[4:7], s33 offen")
    o(f"buffer_load_dwordx4 v[{VB2}:{VB2+3}], v3, s[8:11], s34 offen")
    return o.lines


def gen_gemm2(A):
    VHO, VTR2, VP, VT = 13, 14, 18, 22
    ACC, W, H = ACC2, W2R, HR
    if PRIO_G: A(f"s_setprio {PRIO_G}")
    A("s_mov_b32 s22, s33")
    final_addr(A)
    for k in range(4): A(f"v_mov_b32 v{VTR2+k}, v{VTL+k}")
    A(f"""
    v_lshlrev_b32 v{VHO}, 4, v0
    v_lshrrev_b32 v{VT}, 5, v0
    v_xor_b32 v{VT}, v{VT}, v2
    v_and_b32 v{VP}, 31, v0
    v_lshlrev_b32 v{VP}, 8, v{VP}
    v_lshl_add_u32 v{VP}, v{VT}, 4, v{VP}
    v_add_u32 v{VP}, s73, v{VP}
    v_xor_b32 v{VP+1}, 32, v{VP}
    v_xor_b32 v{VP+2}, 64, v{VP}
    v_xor_b32 v{VP+3}, 96, v{VP}
    s_mul_i32 s24, s78, {2*112*1024}
    s_mul_i32 s28, s20, {28*1024}
    s_add_u32 s24, s24, s28
    s_add_u32 s24, s24, {WS_HF}
    s_add_u32 s25, s24, {112*1024}
    s_mul_i32 s26, s20, 7
    s_lshl_b32 s28, s78, 5
    s_add_u32 s26, s26, s28
    s_lshl_b32 s26, s26, 7
    s_add_u32 s26, s26, {WS_FLH}
    v_min_u32 v{VT}, 6, v2
    v_lshlrev_b32 v{VT}, 7, v{VT}
    s_lshl_b32 s28, s20, 2
    s_add_u32 s28, s28, {L_FLAG+16}
    v_mov_b32 v{ACC+4}, s28
    v_mov_b32 v{ACC+5}, 1
    ds_write_b32 v{ACC+4}, v{ACC+5} offset:16
    s_mov_b32 s30, 0
    s_cmp_eq_u32 s37, 1
    s_cbranch_scc1 L_g2_poll
    """)
    A.st("prew")
    A("s_waitcnt vmcnt(0)")
    A.extend(wave_flag("s22", ACC))
    A.st("p2bar")
    A(f"""
    L_g2_rr:
    ds_read_b32 v{ACC+5}, v{ACC+4}
    s_waitcnt lgkmcnt(0)
    v_readfirstlane_b32 s28, v{ACC+5}
    s_cmp_eq_u32 s28, 1
    s_cbranch_scc0 L_g2_rr
    """)
    for sl in range(3): A.extend(w2tr(sl, sl, VTR2))
    for sl in range(12):
        left = min(12, sl + 3) - sl - 1
        A(f"s_waitcnt lgkmcnt({4*left})")
        if sl + 3 < 12: A.extend(w2tr(sl + 3, sl + 3, VTR2))
        A.extend(wdma(sl, 12 + sl))
    A.st("s5")
    A.label("L_g2_poll")
    A(f"""
    buffer_load_dword v{ACC+2}, v{VT}, s[12:15], s26 offen {SC}
    s_add_u32 s30, s30, 1
    s_waitcnt vmcnt(0)
    v_cmp_ne_u32 vcc, s76, v{ACC+2}
    s_cmp_gt_u32 s30, {SPIN}
    s_cbranch_scc1 L_g2_go
    s_cbranch_vccnz L_g2_poll
    """)
    A.label("L_g2_go")
    vm = VMQ()
    A.st("s6")
    def hload(kp):
        sl = kp % HD
        vm.note(("h", kp), 2)
        return koff("s31", ORDER[kp]) + ["s_add_u32 s27, s31, s24", "s_add_u32 s31, s31, s25",
                                  f"buffer_load_dwordx4 v[{H+8*sl}:{H+8*sl+3}], v{VHO}, s[12:15], s27 offen {SCL}",
                                  f"buffer_load_dwordx4 v[{H+8*sl+4}:{H+8*sl+7}], v{VHO}, s[12:15], s31 offen {SCL}"]
    for kp in range(HD): A.extend(hload(kp))
    inring = lambda k: ORDER[k] >= 12
    wset = lambda k: (k % 2) if inring(k) else ORDER[k]
    slot_of = lambda k: (ORDER[k] - 12) % 12
    for kp in range(28):
        nx = kp + 1
        if nx < 28 and inring(nx):
            A.extend(vm.wait(("w", ORDER[nx])))
            A.extend(w2tr(slot_of(nx), wset(nx), VTR2))
        if inring(kp): A(f"s_waitcnt lgkmcnt({4 if (nx < 28 and inring(nx)) else 0})")
        A.extend(vm.wait(("h", kp)))
        if kp in (4, 9, 14, 19): A.st(f"k{kp}")
        b = W + 8 * wset(kp); sl = kp % HD
        for tb in range(2):
            for db in range(2):
                c = ACC + 32 * tb + 16 * db
                cin = "0" if kp == 0 else f"v[{c}:{c+15}]"
                A(f"v_mfma_f32_32x32x16_bf16 v[{c}:{c+15}], v[{b+4*db}:{b+4*db+3}], v[{H+8*sl+4*tb}:{H+8*sl+4*tb+3}], {cin}")
        if kp == 0: A.st("k0")
        if kp + HD < 28: A.extend(hload(kp + HD))
        if 12 <= ORDER[kp] < 16:
            A.extend(wdma(ORDER[kp] - 12, ORDER[kp] + 12)); vm.note(("w", ORDER[kp] + 12), 2)
        if kp == 19:
            A.extend(ep_loads()); vm.note("ep", 2)
        if kp == env("SIGK", 18):
            A(f"""
            s_lshl_b32 s28, s20, 2
            s_add_u32 s28, s28, {L_FLAG+48}
            v_mov_b32 v{VT}, s28
            v_mov_b32 v{W}, 1
            ds_write_b32 v{VT}, v{W}
            """)
    A.st("s7")
    for tb in range(2):
        for db in range(2):
            for q in range(4):
                c = ACC + 32 * tb + 16 * db + 4 * q
                A(f"ds_write_b128 v{VP+q}, v[{c}:{c+3}] offset:{tb*32768+db*128}")
    A("s_waitcnt vmcnt(0) lgkmcnt(0)")
    A("s_branch L_final")


def gen_conv(A):
    if PRIO_C: A(f"s_setprio {PRIO_C}")
    VTA, VF = 32, 36
    VXN, VBW, VOWN, VPAR = 37, 38, 39, 40
    T0 = 42
    dsk = P0 + 7
    ACC = 48; FB = [80, 112]; TB = [144, 208]
    XN = 196
    final_addr(A)
    A(f"""
    s_mov_b32 s21, s39
    s_lshr_b32 s35, s21, 1
    s_and_b32 s36, s21, 1
    s_mul_i32 s38, s35, {CH_SIZE}
    s_add_u32 s38, s38, {L_CH}
    s_lshl_b32 s27, s21, 13
    s_add_u32 s27, s27, {L_ST2}
    s_xor_b32 s32, s27, {ST2}
    v_and_b32 v{T0}, 15, v0
    v_lshrrev_b32 v{T0+1}, 4, v0
    v_and_b32 v{T0+2}, 1, v0
    v_mul_u32_u24 v{T0+2}, {OFF_O + 2 - OFF_E}, v{T0+2}
    s_lshl_b32 s31, s36, 8
    s_sub_u32 s31, s38, s31
    s_add_u32 s29, s31, {OFF_O + 2*2032 - 512 - 192}
    v_lshlrev_b32 v{T0+3}, 1, v{T0}
    v_sub_u32 v{VTA}, s29, v{T0+3}
    v_lshl_add_u32 v{VTA}, v{T0+1}, 4, v{VTA}
    v_sub_u32 v{VTA}, v{VTA}, v{T0+2}
    v_subrev_u32 v{VTA+1}, 1024, v{VTA}
    v_subrev_u32 v{VTA+2}, 2048, v{VTA}
    v_subrev_u32 v{VTA+3}, 3072, v{VTA}
    """)
    def freads(rr, fb): return [f"ds_read_b128 v[{fb+4*m}:{fb+4*m+3}], v{VF} offset:{512*m + 64*(3-rr)}" for m in range(8)]
    def treads(rr, tb):
        o = []
        for i in range(8):
            off = 128 * (1 - (i & 1)) + 16 * (3 - rr)
            o.append(f"ds_read2_b32 v[{tb+4*i}:{tb+4*i+1}], v{VTA+i//2} offset0:{off} offset1:{off+1}")
            o.append(f"ds_read2_b32 v[{tb+4*i+2}:{tb+4*i+3}], v{VTA+i//2} offset0:{off+2} offset1:{off+3}")
        return o
    A(f"""
    v_lshl_add_u32 v19, v0, 4, s38
    s_add_u32 s29, s31, {480 - 192}
    v_lshlrev_b32 v{VF}, 5, v{T0}
    v_lshl_add_u32 v{VF}, v{T0+1}, 4, v{VF}
    v_add_u32 v{VF}, s29, v{VF}
    v_lshlrev_b32 v{VXN}, 5, v{T0}
    v_lshl_add_u32 v{VXN}, v{T0+1}, 3, v{VXN}
    v_add_u32 v{VBW}, s27, v{VXN}
    s_lshl_b32 s28, s36, 11
    s_add_u32 s28, s28, s38
    v_add_u32 v{VXN}, s28, v{VXN}
    v_lshl_add_u32 v{VOWN}, v0, 4, s27
    v_lshl_add_u32 v{VPAR}, v0, 4, s32
    v_mov_b32 v13, 1
    s_lshl_b32 s29, s21, 2
    s_add_u32 s29, s29, {L_FLAG}
    v_mov_b32 v14, s29
    s_xor_b32 s29, s29, 4
    v_mov_b32 v15, s29
    v_lshlrev_b32 v18, 4, v0
    """)
    A(f"""
    L_cv_ex:
    ds_read_b32 v16, v15 offset:64
    s_waitcnt lgkmcnt(0)
    v_readfirstlane_b32 s28, v16
    s_cmp_eq_u32 s28, 1
    s_cbranch_scc0 L_cv_ex
    """)
    A.extend(treads(0, TB[0]))
    A("s_cmp_eq_u32 s37, 1")
    A("s_cbranch_scc1 L_cv_uok")
    u_spin(A, 20, 18)
    A.label("L_cv_uok")
    A("s_waitcnt vmcnt(0)")
    for k in range(4): A(f"ds_write_b128 v19, v[{XL+4*k}:{XL+4*k+3}] offset:{512 + k*1024}")
    A.extend(freads(0, FB[0]))
    A.st("s4")
    if GPK:
        A(f"""
        v_mov_b32 v17, {L_FLAG+32}
        L_cv_gd:
        ds_read_b128 v[20:23], v17
        s_waitcnt lgkmcnt(0)
        v_and_b32 v20, v20, v21
        v_and_b32 v22, v22, v23
        v_and_b32 v20, v20, v22
        s_nop 0
        v_readfirstlane_b32 s28, v20
        s_cmp_eq_u32 s28, 1
        s_cbranch_scc0 L_cv_gd
        """)
    A.st("s5")
    for rp in range(4):
        fb, tb = FB[rp % 2], TB[rp % 2]
        mm = []
        for i in range(8):
            for j in range(i, 8):
                cin = "0" if (rp == 0 and i == 0) else f"v[{ACC+4*j}:{ACC+4*j+3}]"
                mm.append(f"v_mfma_f32_16x16x32_bf16 v[{ACC+4*j}:{ACC+4*j+3}], v[{tb+4*i}:{tb+4*i+3}], v[{fb+4*(j-i)}:{fb+4*(j-i)+3}], {cin}")
        if rp == 1: A.extend(ep_loads())
        if HT and rp == env("HTP", 3):
            A(f"""
            s_lshl_b32 s28, s24, 2
            s_add_u32 s28, s28, s21
            s_mul_i32 s28, s28, {56*128}
            s_mul_i32 s29, s23, {8*112*1024}
            s_add_u32 s28, s28, s29
            s_add_u32 s28, s28, {WS_HF}
            v_min_u32 v{T0}, 55, v0
            v_lshlrev_b32 v{T0}, 7, v{T0}
            buffer_load_dword v20, v{T0}, s[12:15], s28 offen {SC}
            """)
        if rp == 0:
            o = []
            for j in range(8): o += [f"s_waitcnt lgkmcnt({7-j})", mm[j]]
            mm = o + interleave(mm[8:], freads(1, FB[1]) + treads(1, TB[1]), 0, 22)
        else:
            A("s_waitcnt lgkmcnt(0)")
            if rp < 3: mm = interleave(mm, freads(rp + 1, FB[(rp + 1) % 2]) + treads(rp + 1, TB[(rp + 1) % 2]), 0, 26)
            else: mm = interleave(mm, [f"ds_read_b64 v[{XN+2*a_}:{XN+2*a_+1}], v{VXN} offset:{512 + a_*512}" for a_ in range(4)], 0, 8)
        A.extend(mm)
    A.st("s6")
    A("s_cmp_eq_u32 s36, 1")
    A("s_cbranch_scc1 L_cv_x1")
    for a_ in range(4): A(f"ds_write_b128 v{VOWN}, v[{ACC+16+4*a_}:{ACC+16+4*a_+3}] offset:{4096 + a_*1024}")
    A("ds_write_b32 v14, v13")
    A("s_branch L_cv_out")
    A.label("L_cv_x1")
    A("s_nop 7")
    for a_ in range(4): A(f"ds_write_b128 v{VOWN}, v[{ACC+4*a_}:{ACC+4*a_+3}] offset:{4096 + a_*1024}")
    A("ds_write_b32 v14, v13")
    for k in range(16): A(f"v_mov_b32 v{ACC+k}, v{ACC+16+k}")
    A.label("L_cv_out")
    A(f"""
    """)
    A.extend(ya_addr(41, T0))
    A(f"""
    v_mov_b32 v{T0+2}, 0xfffffffe
    s_waitcnt lgkmcnt(5)
    """)
    t = 80; z = 96; YP = 112
    for k in range(8):
        A(f"v_lshlrev_b32 v{t+2*k}, 16, v{XN+k}")
        A(f"v_and_b32 v{t+2*k+1}, 0xffff0000, v{XN+k}")
    for k in range(16): A(f"v_fma_f32 v{ACC+k}, v{t+k}, v{dsk}, v{ACC+k}")
    A.label("L_cv_ps1")
    A(f"""
    ds_read_b32 v16, v15
    s_waitcnt lgkmcnt(0)
    v_readfirstlane_b32 s28, v16
    s_cmp_eq_u32 s28, 1
    s_cbranch_scc0 L_cv_ps1
    """)
    for a_ in range(4): A(f"ds_read_b128 v[{YP+4*a_}:{YP+4*a_+3}], v{VPAR} offset:{4096 + a_*1024}")
    for a_ in range(4):
        A("s_waitcnt lgkmcnt(3)")
        for k in range(4): A(f"v_add_f32 v{ACC+4*a_+k}, v{ACC+4*a_+k}, v{YP+4*a_+k}")
        for k in range(2): A(f"v_cvt_pk_bf16_f32 v{z+2*a_+k}, v{ACC+4*a_+2*k}, v{ACC+4*a_+2*k+1}")
        for k in range(2): A(f"v_min_u32 v{z+2*a_+k}, v{z+2*a_+k}, v{T0+2}")
        A(f"ds_write_b64 v{VBW}, v[{z+2*a_}:{z+2*a_+1}] offset:{a_*512}")
    for h in range(2): A(f"ds_read_b128 v[{t+4*h}:{t+4*h+3}], v{VOWN} offset:{h*1024}")
    for h in range(2):
        A(f"s_waitcnt lgkmcnt({1-h})")
        A(f"buffer_store_dwordx4 v[{t+4*h}:{t+4*h+3}], v41, s[12:15], s{30+h} offen {SC}")
    Y = 160
    A(f"""
    v_lshlrev_b32 v{T0}, 8, v1
    v_lshl_add_u32 v{T0}, v2, 4, v{T0}
    s_lshl_b32 s28, s79, 5
    s_add_u32 s28, s28, s78
    s_lshl_b32 s28, s28, 13
    s_lshl_b32 s29, s21, 11
    s_add_u32 s28, s28, s29
    s_add_u32 s28, s28, {WS_YA}
    v_lshlrev_b32 v{T0+1}, 8, v2
    v_lshl_add_u32 v{T0+1}, v2, 4, v{T0+1}
    v_lshl_add_u32 v{T0+1}, v1, 2, v{T0+1}
    v_add_u32 v{T0+1}, s27, v{T0+1}
    v_mov_b32 v{T0+3}, 0x05040100
    v_mov_b32 v{T0+4}, 0x07060302
    s_mov_b32 s30, 0
    """)
    A.st("s7")
    A(f"""
    v_mov_b32 v17, {L_FLAG+48}
    L_cv_w19:
    s_sleep 2
    ds_read_b128 v[20:23], v17
    s_waitcnt lgkmcnt(0)
    v_and_b32 v20, v20, v21
    v_and_b32 v22, v22, v23
    v_and_b32 v20, v20, v22
    s_nop 0
    v_readfirstlane_b32 s29, v20
    s_cmp_eq_u32 s29, 1
    s_cbranch_scc0 L_cv_w19
    L_cv_poll2:
    buffer_load_dwordx4 v[{Y}:{Y+3}], v{T0}, s[12:15], s28 offen {SC}
    buffer_load_dwordx4 v[{Y+4}:{Y+7}], v{T0}, s[12:15], s28 offen offset:128 {SC}
    s_waitcnt vmcnt(0)
    v_max_u32 v{Y+8}, v{Y}, v{Y+1}
    v_max3_u32 v{Y+8}, v{Y+8}, v{Y+2}, v{Y+3}
    v_max3_u32 v{Y+8}, v{Y+8}, v{Y+4}, v{Y+5}
    v_max3_u32 v{Y+8}, v{Y+8}, v{Y+6}, v{Y+7}
    v_cmp_eq_u32 vcc, -1, v{Y+8}
    s_cbranch_vccz L_cv_got
    s_sleep 4
    s_add_u32 s30, s30, 1
    s_cmp_lt_u32 s30, {SPIN}
    s_cbranch_scc1 L_cv_poll2
    """)
    A.label("L_cv_got")
    A.st("got")
    for k in range(4):
        A(f"v_perm_b32 v{Y+8+2*k}, v{Y+4+k}, v{Y+k}, v{T0+3}")
        A(f"v_perm_b32 v{Y+9+2*k}, v{Y+4+k}, v{Y+k}, v{T0+4}")
    for i in range(8): A(f"ds_write_b32 v{T0+1}, v{Y+8+i} offset:{i*32}")
    A("s_waitcnt lgkmcnt(0)")


def gen_final(A):
    P = 32
    A(f"""
    v_lshlrev_b32 v13, 1, v2
    v_xor_b32 v13, v13, v1
    v_lshlrev_b32 v13, 4, v13
    v_lshl_add_u32 v13, v1, 8, v13
    s_and_b32 s28, s20, 3
    s_lshl_b32 s28, s28, 11
    s_lshr_b32 s29, s20, 2
    s_lshl_b32 s29, s29, 15
    s_add_u32 s28, s28, s29
    v_add_u32 v13, s28, v13
    v_xor_b32 v14, 16, v13
    v_lshrrev_b32 v15, 1, v2
    v_lshlrev_b32 v15, 13, v15
    v_lshl_add_u32 v15, v1, 5, v15
    v_and_b32 v16, 1, v2
    v_lshl_add_u32 v15, v16, 4, v15
    s_mul_i32 s28, s20, 272
    s_add_u32 s28, s28, {L_ST2}
    v_add_u32 v15, s28, v15
    """)
    srd(A, 8, "s52", "s53", 2 << 20)
    X, Yv, B = 64, 72, 80
    def unpack(d, s_):
        for k in range(4):
            A(f"v_lshlrev_b32 v{d+2*k}, 16, v{s_+k}")
            A(f"v_and_b32 v{d+2*k+1}, 0xffff0000, v{s_+k}")
    def pack(d, s_):
        for k in range(4): A(f"v_cvt_pk_bf16_f32 v{d+k}, v{s_+2*k}, v{s_+2*k+1}")
    unpack(X, VX); unpack(B, VB2)
    A("s_barrier")
    A.st("fin")
    A(f"ds_read_b128 v[16:19], v15")
    for w in range(4):
        A(f"ds_read_b128 v[{P+8*w}:{P+8*w+3}], v13 offset:{w*8192}")
        A(f"ds_read_b128 v[{P+8*w+4}:{P+8*w+7}], v14 offset:{w*8192}")
    A("s_waitcnt lgkmcnt(8)")
    unpack(Yv, 16)
    for k in range(8): A(f"v_add_f32 v{X+k}, v{X+k}, v{Yv+k}")
    pack(20, X); unpack(X, 20)
    A("s_waitcnt lgkmcnt(4)")
    for k in range(8): A(f"v_add_f32 v{P+k}, v{P+k}, v{P+8+k}")
    A("s_waitcnt lgkmcnt(0)")
    for k in range(8): A(f"v_add_f32 v{P+16+k}, v{P+16+k}, v{P+24+k}")
    for k in range(8): A(f"v_add_f32 v{P+k}, v{P+k}, v{P+16+k}")
    pack(24, P); unpack(P, 24)
    for k in range(8): A(f"v_add_f32 v{P+k}, v{P+k}, v{B+k}")
    pack(24, P); unpack(P, 24)
    for k in range(8): A(f"v_add_f32 v{P+k}, v{P+k}, v{X+k}")
    pack(28, P)
    A(f"buffer_store_dwordx4 v[28:31], v{VOO}, s[8:11], s33 offen")
    if STAMPS: A("s_waitcnt vmcnt(0)")
    A.stamp_flush(0)
    A("s_endpgm")


def gen():
    A = Asm()
    A.stamp(0, True); A.stamp(1)
    for k in range(2, 9): A.stamp(k)
    A(f"""
    s_cmp_ge_u32 s2, 256
    s_cbranch_scc1 L_exit
    s_load_dwordx2 s[40:41], s[0:1], {KA['u']}
    s_load_dwordx8 s[44:51], s[0:1], {KA['w1']}
    s_load_dwordx4 s[52:55], s[0:1], {KA['out']}
    s_load_dwordx2 s[42:43], s[0:1], {KA['ws']}
    v_lshrrev_b32 v1, 6, v0
    v_and_b32 v0, 63, v0
    s_and_b32 s23, s2, 7
    s_lshr_b32 s24, s2, 3
    v_readfirstlane_b32 s20, v1
    s_and_b32 s25, s24, 3
    s_lshr_b32 s79, s24, 2
    s_lshl_b32 s78, s23, 2
    s_add_u32 s78, s78, s25
    s_mul_i32 s74, s79, {3584 if ROT & 1 else 0}
    s_and_b32 s74, s74, 0xfffffc00
    s_mul_i32 s75, s25, {7168 if ROT & 2 else 0}
    s_add_u32 s74, s74, s75
    s_sub_u32 s75, s74, {28*1024}
    s_min_u32 s74, s74, s75
    s_mov_b32 s77, 1
    s_and_b32 s39, s20, 3
    s_cmp_eq_u32 s79, 7
    s_cbranch_scc1 L_ln
    """)
    if LOC:
        A("""
        s_and_b32 s21, s24, 1
        s_lshl_b32 s22, s23, 1
        s_add_u32 s21, s21, s22
        s_lshr_b32 s22, s24, 1
        """)
    else:
        A("""
        s_lshr_b32 s21, s23, 1
        s_lshl_b32 s21, s21, 2
        s_add_u32 s21, s21, s25
        s_and_b32 s22, s23, 1
        s_mul_i32 s22, s22, 7
        s_add_u32 s22, s22, s79
        """)
    gen_gemm1(A)
    A.label("L_ln")
    A("s_nop 0 ; RESETSB")
    A("s_mov_b32 s21, s78")
    gen_ln(A)
    A.label("L_gemm2")
    A("s_nop 1 ; RESETSB")
    gen_gemm2(A)
    A.label("L_conv")
    A("s_nop 1 ; RESETSB")
    gen_conv(A)
    A.label("L_final")
    A("s_nop 7")
    gen_final(A)
    A.label("L_exit")
    A("s_endpgm")
    lines = fix_hazards(A.lines, verbose=True)
    check_waits(lines, "s")
    head = open("parallel_sum__ssm_conv_s4__dense_activation_gelu__prompt.s.ref").read().split("; Override launch")[0]
    head += f"; @launch grid=(256,1,1) block=(512,1,1) lds={LDS_TOTAL}\n.amdgcn_target \"amdgcn-amd-amdhsa--gfx950\"\n"
    return head + kernel_section(KNAME, lines, 256, 102, 256)

if __name__ == "__main__":
    out = sys.argv[1] if len(sys.argv) > 1 else "cur8.s"
    open(out, "w").write(gen())
    print("wrote", out)
```

```python
from asmlib import *
import struct, math, os, sys

def f2u(x): return struct.unpack("<I", struct.pack("<f", x))[0]
def env(n, d): return int(os.environ.get(n, str(d)))

KNAME = "parallel_sum__ssm_conv_s4__dense_activation_gelu__prompt_kernel"
KA = dict(u=0, A_re=8, A_im=16, B_re=24, B_im=32, C_re=40, C_im=48, log_dt=56, Dskip=64, Bx=72, w1=80, b1=88, w2=96, b2=104,
          out=112, dbg=120, ws=128)
WS_FLL = 32768
WS_EPOCH = 49152
WS_DUMMY = 53248
WS_STAT = 65536
WS_FLH = 131072
WS_FLY = 262144
WS_HF = 1 << 20
WS_XNT = 8 << 20
WS_YA = 12 << 20
WS_USED = 14 << 20

LOG2E = 1.4426950408889634
GC1 = -2.0 * LOG2E * 0.7978845608028654
GC2 = GC1 * 0.044715

NS, STAGE = 4, 32768
RSL = 12
RING = RSL * 2048
L_KST = 98304; KST = 8704
L_ST2 = 98304; ST2 = 8192
L_CH = 131072; CH_SIZE = 13056
OFF_E, OFF_O = 4608, 8768
L_FLAG = L_CH + 2 * CH_SIZE
L_CS = L_FLAG + 512
LDS_TOTAL = 163840
L_VS = 98304; L_US = 98304

OPT_PF = env("PF", 1)
PRE = env("PRE", 3)
PRIO_C = env("PRIOC", 1)
PRIO_G = env("PRIOG", 0)
PRIO_E = env("PRIOE", 0)
ROT = env("ROT", 3)
BARP = env("BARP", 2)
STATG = env("STATG", 21)
SC = os.environ.get("SC", "sc1")
PFG = [int(x) for x in os.environ.get("PFG", "").split(",") if x]
HD = 9
SCH = os.environ.get('SCH', SC)
LOC = env('LOC', 0)
GPK = env('GPK', 0)
ULN = env('ULN', 3)
HT = env('HT', 0)
SCL = os.environ.get('SCL', SC)
SPIN = 0x40000

DK, DP, EX, P0 = 224, 128, 160, 244
BF, AF, KG_G, KG_E1, KG_L, KG_V, KG_PK, KG_VW, KG_VRD = 160, 192, 108, 122, 224, 124, 132, 136, 137
L_KS2 = 131072; KS2 = 4352
XL = 180
VDUM, LNF = 252, 253
VX, VB2, VOO = 4, 8, 12
VW2 = 23
W2R, HR, ACC2 = 160, 88, 24
VTL = 24

def srd(A, d, lo, hi, size):
    A(f"s_mov_b32 s{d}, {lo}\ns_mov_b32 s{d+1}, {hi}\ns_mov_b32 s{d+2}, {size}\ns_mov_b32 s{d+3}, 0x00020000")
def round_bf16(A, r):
    A(f"v_cvt_pk_bf16_f32 v{r}, v{r}, v{r}")
    A(f"v_and_b32 v{r}, 0xffff0000, v{r}")
def zipm(*lists):
    o = []
    for k in range(max(len(l) for l in lists)):
        for l in lists:
            if k < len(l): o.append(l[k])
    return o
def mask(lo, hi=None):
    hi = lo if hi is None else hi
    return [f"s_mov_b32 s28, {lo}", f"s_mov_b32 s29, {hi}"]

class VMQ:
    def __init__(self): self.q = []
    def note(self, tag, n=1): self.q.extend([tag] * n)
    def wait(self, *tags):
        idx = max((k for k, t in enumerate(self.q) if t in tags), default=-1)
        if idx < 0: return []
        n = len(self.q) - 1 - idx
        del self.q[:idx + 1]
        return [f"s_waitcnt vmcnt({n})"]
    def younger(self): return len(self.q)

ORDER = [0, 1] + list(range(12, 24)) + list(range(2, 12)) + list(range(24, 28))

def koff(dst, lab, base="s74"):
    return [f"s_add_u32 {dst}, {base}, {lab*1024}", f"s_sub_u32 s75, {dst}, {28*1024}", f"s_min_u32 {dst}, {dst}, s75"]

def slot_addr(sl): return (sl >> 2) * 32768 + (sl & 3) * 2048

def w2_setup(A, vt):
    srd(A, 16, "s48", "s49", 1792 * 1024)
    A(f"""
    v_lshrrev_b32 v{vt}, 2, v0
    v_and_b32 v{vt}, 4, v{vt}
    v_and_b32 v{vt+1}, 7, v0
    v_xor_b32 v{vt}, v{vt}, v{vt+1}
    v_lshrrev_b32 v{vt+1}, 3, v0
    v_lshlrev_b32 v{VW2}, 10, v{vt+1}
    v_lshl_add_u32 v{VW2}, v{vt}, 4, v{VW2}
    s_mul_i32 s72, s39, {448*1024}
    s_lshl_b32 s75, s79, 7
    s_add_u32 s72, s72, s75
    s_lshl_b32 s73, s39, 13
    v_lshrrev_b32 v{vt+1}, 5, v0
    v_bfe_u32 v{vt}, v0, 2, 2
    v_lshl_add_u32 v{VTL}, v{vt+1}, 2, v{vt}
    v_lshlrev_b32 v{VTL}, 7, v{VTL}
    v_bfe_u32 v{vt}, v0, 4, 1
    v_lshl_add_u32 v{VTL}, v{vt}, 5, v{VTL}
    v_and_b32 v{vt}, 3, v0
    v_lshl_add_u32 v{VTL}, v{vt}, 3, v{VTL}
    v_bfe_u32 v{vt}, v0, 3, 1
    v_lshl_add_u32 v{VTL}, v{vt}, 6, v{VTL}
    v_add_u32 v{VTL}, s73, v{VTL}
    v_xor_b32 v{VTL+1}, 64, v{VTL}
    v_add_u32 v{VTL+2}, 0x10000, v{VTL}
    v_add_u32 v{VTL+3}, 0x10000, v{VTL+1}
    """)
def wdma(slot, lab):
    a_ = slot_addr(slot)
    return koff("s31", lab) + [f"s_add_u32 m0, s73, {a_}", "s_lshl4_add_u32 s31, s31, s72",
                               f"buffer_load_dwordx4 v{VW2}, s[16:19], s31 offen lds",
                               f"s_add_u32 m0, s73, {a_+1024}", "s_add_u32 s31, s31, 8192",
                               f"buffer_load_dwordx4 v{VW2}, s[16:19], s31 offen lds"]
def w2tr(slot, ws_, vtl=VTL):
    b = W2R + 8 * ws_; a_ = slot_addr(slot); hi = a_ >> 16; a_ &= 0xffff
    return [f"ds_read_b64_tr_b16 v[{b+4*db+2*sec}:{b+4*db+2*sec+1}], v{vtl+2*hi+db} offset:{a_+sec*1024}" for db in range(2) for sec in range(2)]

def param_loads(A, vt):
    A(f"""
    s_lshr_b32 s28, s39, 1
    s_lshl_b32 s30, s2, 1
    s_add_u32 s30, s30, s28
    v_lshlrev_b32 v{vt}, 1, v0
    v_mov_b32 v{vt+1}, 0
    s_lshl_b32 s29, s30, 8
    s_and_b32 s28, s20, 1
    s_lshl_b32 s28, s28, 7
    s_add_u32 s29, s29, s28
    s_lshl_b32 s30, s30, 1
    s_mov_b32 s18, 1024
    s_mov_b32 s19, 0x00020000
    """)
    for k in range(8): A(f"v_mov_b32 v{P0+k}, 0")
    A("s_waitcnt lgkmcnt(0)")
    for k in (6, 7, 0, 1, 2, 3, 4, 5):
        if k == 0: A("s_mov_b32 s18, 131072")
        A(f"s_mov_b32 s16, s{56+2*k}\ns_mov_b32 s17, s{57+2*k}")
        if k < 6: A(f"buffer_load_short_d16_hi v{P0+k}, v{vt}, s[16:19], s29 offen")
        else: A(f"buffer_load_short_d16_hi v{P0+k}, v{vt+1}, s[16:19], s30 offen")

def lnflag_load(vt):
    return ["s_lshl_b32 s29, s79, 6", "s_lshl_b32 s28, s39, 4", "s_add_u32 s29, s29, s28", "s_lshr_b32 s28, s78, 4", "s_lshl_b32 s28, s28, 9",
            "s_add_u32 s29, s29, s28", "s_lshl_b32 s29, s29, 7", f"s_add_u32 s29, s29, {WS_FLY}",
            f"v_lshlrev_b32 v{vt}, 7, v0", f"v_add_u32 v{vt}, {WS_FLL}, v{vt}",
            f"v_and_b32 v{vt+1}, 15, v0", f"v_lshl_add_u32 v{vt+1}, v{vt+1}, 7, s29", "s_mov_b32 s28, 0", "s_mov_b32 s29, -1",
            f"v_cndmask_b32 v{vt}, v{vt}, v{vt+1}, s[28:29]",
            f"buffer_load_dword v{LNF}, v{vt}, s[12:15], 0 offen {SC}"]

def u_issue(A, vl16):
    A(f"""
    s_lshr_b32 s28, s39, 1
    s_lshl_b32 s29, s2, 1
    s_add_u32 s29, s29, s28
    s_lshl_b32 s29, s29, 12
    s_add_u32 s29, s29, {WS_XNT}
    """)
    for k in range(4): A(f"buffer_load_dwordx4 v[{XL+4*k}:{XL+4*k+3}], v{vl16}, s[12:15], s29 offen offset:{k*1024} {SC}")

def u_try(A, vl16):
    A(f"""
    v_cmp_ne_u32 vcc, s76, v{LNF}
    s_mov_b32 s37, 0
    s_cbranch_vccnz L_ut_no
    s_mov_b32 s37, 1
    """)
    u_issue(A, vl16)
    A.label("L_ut_no")

def u_spin(A, vt, vl16, tag=''):
    A("s_mov_b32 s30, 0")
    A.label(f"L_us_poll{tag}")
    A.extend(lnflag_load(vt))
    A(f"""
    s_add_u32 s30, s30, 1
    s_waitcnt vmcnt(0)
    v_cmp_ne_u32 vcc, s76, v{LNF}
    s_cmp_gt_u32 s30, {SPIN}
    s_cbranch_scc1 L_us_ok{tag}
    s_cbranch_vccnz L_us_poll{tag}
    """)
    A.label(f"L_us_ok{tag}")
    u_issue(A, vl16)
    A("s_waitcnt vmcnt(0)")

def ya_addr(vd, vt):
    return [f"v_lshrrev_b32 v{vd}, 3, v0", f"v_and_b32 v{vt}, 7, v0", f"v_lshlrev_b32 v{vd}, 13, v{vd}", f"v_lshl_add_u32 v{vd}, v{vt}, 4, v{vd}",
            "s_lshr_b32 s28, s39, 1", "s_lshl_b32 s31, s2, 1", "s_add_u32 s31, s31, s28",
            "s_lshr_b32 s29, s31, 6", "s_lshl_b32 s29, s29, 18", "s_and_b32 s28, s31, 63", "s_lshl_b32 s28, s28, 7", "s_add_u32 s29, s29, s28",
            f"s_add_u32 s29, s29, {WS_YA}", "s_and_b32 s30, s39, 1", "s_lshl_b32 s30, s30, 17", "s_add_u32 s30, s30, s29", "s_add_u32 s31, s30, 65536"]
def ya_prefill(vd, vt, vm4):
    return ya_addr(vd, vt) + [f"v_mov_b32 v{vm4+k}, -1" for k in range(4)] + \
           [f"buffer_store_dwordx4 v[{vm4}:{vm4+3}], v{vd}, s[12:15], s{30+h} offen {SC}" for h in range(2)]

def publish_flag(A, soff, vt, tag, wave, both=False):
    A(f"""
    s_cmp_lg_u32 s20, {wave}
    s_cbranch_scc1 L_pub_skip{tag}
    v_mov_b32 v{vt}, 0
    v_mov_b32 v{vt+1}, s76
    s_mov_b64 exec, 1
    buffer_store_dword v{vt+1}, v{vt}, s[12:15], {soff} offen {SC}
    """)
    if both:
        A(f"""
        s_lshl_b32 s28, s2, 7
        s_add_u32 s28, s28, {WS_FLW}
        buffer_store_dword v{vt+1}, v{vt}, s[12:15], s28 offen {SC}
        """)
    A(f"""
    s_mov_b64 exec, -1
    L_pub_skip{tag}:
    """)
def mktag(A):
    A("s_mul_i32 s76, s76, 0x9E3779B1")
    A("s_add_u32 s76, s76, 0x7F4A7C15")
def arrive(A, tag):
    A(f"""
    s_cmp_lg_u32 s20, 3
    s_cbranch_scc1 L_arr{tag}
    s_atomic_add s77, s[54:55], 0 glc
    L_arr{tag}:
    """)

def coop_prefetch(A, vt):
    A(f"""
    s_lshl_b32 s28, s24, 2
    s_add_u32 s28, s28, s39
    s_lshl_b32 s30, s28, 6
    v_add_u32 v{vt}, s30, v0
    v_mul_u32_u24 v{vt+1}, 0x4925, v{vt}
    v_lshrrev_b32 v{vt+1}, 18, v{vt+1}
    v_mul_u32_u24 v{vt+2}, 14, v{vt+1}
    v_sub_u32 v{vt}, v{vt}, v{vt+2}
    v_lshlrev_b32 v{vt}, 7, v{vt}
    v_mul_u32_u24 v{vt+1}, 3584, v{vt+1}
    v_add_u32 v{vt}, v{vt}, v{vt+1}
    s_and_b32 s29, s23, 1
    s_mul_i32 s29, s29, 1792
    buffer_load_dword v{VDUM}, v{vt}, s[8:11], s29 offen
    s_lshr_b32 s29, s23, 1
    s_lshl_b32 s29, s29, 19
    s_lshl_b32 s30, s28, 13
    s_add_u32 s29, s29, s30
    s_cmp_lt_u32 s28, 64
    s_cselect_b32 s29, s29, 0x400000
    v_lshlrev_b32 v{vt+2}, 7, v0
    buffer_load_dword v{VDUM}, v{vt+2}, s[4:7], s29 offen
    """)
def w2_prefetch(vt, piece):
    return ["s_lshl_b32 s28, s24, 2", "s_add_u32 s28, s28, s39", "s_lshl_b32 s28, s28, 14", f"s_add_u32 s28, s28, {piece*8192}",
            f"v_lshlrev_b32 v{vt}, 7, v0", f"buffer_load_dword v{VDUM}, v{vt}, s[16:19], s28 offen"]

def cmul(d, x, y, pk=True):
    P = lambda r: f"v[{r}:{r+1}]"
    assert d != x and d != y
    if pk:
        return [f"v_pk_mul_f32 {P(d)}, {P(x)}, {P(y)} op_sel:[0,0] op_sel_hi:[0,1]",
                f"v_pk_fma_f32 {P(d)}, {P(x)}, {P(y)}, {P(d)} op_sel:[1,1,0] op_sel_hi:[1,0,1] neg_lo:[0,1,0]"]
    return [f"v_mul_f32 v{d}, v{x}, v{y}", f"v_mul_f32 v{d+1}, v{x}, v{y+1}",
            f"v_fma_f32 v{d}, -v{x+1}, v{y+1}, v{d}", f"v_fma_f32 v{d+1}, v{x+1}, v{y}, v{d+1}"]

def kg_common(A, base, T0, Z, WA):
    ar, ai, br, bi, cr, ci, ld, dsk = range(P0, P0 + 8)
    u_ = f2u(LOG2E) & 0xFFFFFF00
    lh = struct.unpack("<f", struct.pack("<I", u_))[0]; ll = LOG2E - lh
    A(f"""
    v_mul_f32 v{T0}, {hex(f2u(lh))}, v{ld}
    v_mul_f32 v{T0+1}, {hex(f2u(ll * math.log(2)))}, v{ld}
    v_exp_f32 v{T0}, v{T0}
    s_nop 0
    v_fma_f32 v{T0}, v{T0}, v{T0+1}, v{T0}
    """)
    round_bf16(A, T0)
    A(f"""
    v_mul_f32 v{Z}, v{T0}, v{ar}
    v_mul_f32 v{Z+1}, v{T0}, v{ai}
    v_mul_f32 v{br}, v{T0}, v{br}
    v_mul_f32 v{bi}, v{T0}, v{bi}
    v_mul_f32 v{Z}, {hex(f2u(LOG2E))}, v{Z}
    v_mul_f32 v{Z+1}, 0.15915494, v{Z+1}
    """)
def kg_waddr(A, base, WA):
    A(f"s_lshl_b32 s28, s39, 13\ns_add_u32 s28, s28, {base}\nv_lshl_add_u32 v{WA}, v0, 2, s28")
    for k in range(1, 16): A(f"v_xor_b32 v{WA+k}, {16*k}, v{WA}")
def kg_raddr(base, d, t):
    o = ["s_lshl_b32 s28, s39, 13", f"s_add_u32 s28, s28, {base}", f"v_and_b32 v{t}, 15, v0", f"v_lshrrev_b32 v{t+1}, 5, v0", f"v_xor_b32 v{t}, v{t}, v{t+1}",
         f"v_and_b32 v{t+1}, 31, v0", f"v_lshlrev_b32 v{t+1}, 8, v{t+1}", f"v_lshl_add_u32 v{d}, v{t}, 4, v{t+1}", f"v_add_u32 v{d}, s28, v{d}"]
    return o + [f"v_xor_b32 v{d+k}, {32*k}, v{d}" for k in range(1, 8)]
def cexp(d, x, t, Z):
    xs = {1: None, 8: hex(f2u(8.0)), 256: hex(f2u(256.0))}[x]
    o = []
    if xs is None: o += [f"v_exp_f32 v{t}, v{Z}", f"v_fract_f32 v{t+1}, v{Z+1}"]
    else: o += [f"v_mul_f32 v{t}, {xs}, v{Z}", f"v_mul_f32 v{t+1}, {xs}, v{Z+1}", f"v_exp_f32 v{t}, v{t}", f"v_fract_f32 v{t+1}, v{t+1}"]
    o += [f"v_cos_f32 v{d}, v{t+1}", f"v_sin_f32 v{d+1}, v{t+1}", f"v_mul_f32 v{d}, v{d}, v{t}", f"v_mul_f32 v{d+1}, v{d+1}, v{t}"]
    return o
KWA = 100
KRA = 116

def gen_kgen_v(A):
    T0, Z, E8, E16, Va, Vb, PKT = 34, 144, 44, 46, 80, 84, 88
    kg_common(A, L_VS, T0, Z, KWA)
    A.extend(cexp(E8, 8, T0, Z))
    A.extend(cmul(E16, E8, E8))
    npk = [0]
    def emit(src, row):
        t = PKT + (npk[0] % 8); npk[0] += 1
        return [f"v_cvt_pk_bf16_f32 v{t}, v{src}, v{src+1}", f"ds_write_b32 v{KWA + (row & 15)}, v{t} offset:{row*256}"]
    A(f"v_mov_b32 v{PKT+7}, 0x00003f80")
    A(f"ds_write_b32 v{KWA}, v{PKT+7}")
    A.extend(emit(E8, 1)); A.extend(emit(E16, 2))
    ev, od = E16, E8
    for j in range(3, 32, 2):
        d1 = Va + 2 * (((j - 3) // 2) % 2)
        d2 = Vb + 2 * (((j - 3) // 2) % 2)
        l1 = cmul(d1, od, E16) + emit(d1, j)
        l2 = (cmul(d2, ev, E16) + emit(d2, j + 1)) if j + 1 < 32 else []
        A.extend(zipm(l1, l2))
        od, ev = d1, d2
    for st in range(8): A(f"ds_read_b128 v[{BF+4*st}:{BF+4*st+3}], v{KRA+st}")

UPK = 192
def kgen_u_lists(rebase):
    T0, Z, E1, G, Lr, Va = 34, 144, 42, 44, 58, 76
    ar, ai, br, bi, cr, ci, ld, dsk = range(P0, P0 + 8)
    cm = lambda d, x, y: cmul(d, x, y, False)
    V = []; Wr = []
    if rebase: V += [f"v_subrev_u32 v{KWA+k}, {rebase}, v{KWA+k}" for k in range(24)]
    V += zipm(cexp(E1, 1, T0 + 2, Z), cexp(G, 256, T0 + 4, Z), cm(Lr, cr, br))
    npk = [0]
    def emit(src, rows):
        t = UPK + npk[0]; npk[0] += 1
        Wr.extend(f"ds_write_b32 v{KWA + (row & 15)}, v{t} offset:{row*256}" for row in rows)
        return [f"v_cvt_pk_bf16_f32 v{t}, v{src}, -v{src+1}"]
    urow = lambda hh, r: 8 * (r >> 2) + 4 * hh + (r & 3)
    lch = emit(Lr, [urow(0, 0)])
    for a_ in range(1, 9): lch += cm(Lr + 2 * a_, Lr + 2 * (a_ - 1), E1) + emit(Lr + 2 * a_, [urow(0, a_)])
    gch = []
    for k in range(2, 8): gch += cm(G + 2 * (k - 1), G + 2 * (k - 2), G)
    V += zipm(lch, gch)
    jobs = [(0, 1, [urow(1, 0), urow(1, 1)]), (2, 1, [urow(1, 2)]), (4, 1, [urow(1, 3), urow(1, 4), urow(1, 5)]), (6, 1, [urow(1, 6)]),
            (8, 1, [urow(1, 7), urow(1, 8)]),
            (0, 2, [urow(0, 9)]), (4, 2, [urow(0, 10)]), (8, 2, [urow(0, 11)]),
            (0, 3, [urow(1, 9)]), (4, 3, [urow(1, 10)]), (8, 3, [urow(1, 11)]),
            (0, 4, [urow(0, 12)]), (8, 4, [urow(0, 13)]), (0, 5, [urow(0, 14)]), (8, 5, [urow(0, 15)]),
            (0, 6, [urow(1, 12)]), (8, 6, [urow(1, 13)]), (0, 7, [urow(1, 14)]), (8, 7, [urow(1, 15)])]
    for k in range(0, len(jobs), 2):
        ls = []
        for q_, (a_, gk, rows) in enumerate(jobs[k:k + 2]):
            d = Va + 4 * q_ + 2 * ((k // 2) % 2)
            ls.append(cm(d, Lr + 2 * a_, G + 2 * (gk - 1)) + emit(d, rows))
        V += zipm(*ls)
    assert npk[0] <= 32
    return V, Wr

def kg_atoms_m():
    at = [[f"ds_read_b128 v[{AF+4*k}:{AF+4*k+3}], v{KRA+k} offset:{L_US - L_VS}", ("tag", ("af", k))] for k in range(8)]
    mm = []
    for st in range(8):
        cin = "0" if st == 0 else f"v[{DK}:{DK+15}]"
        mm.append([("wait", ("af", st)), f"v_mfma_f32_32x32x16_bf16 v[{DK}:{DK+15}], v[{AF+4*st}:{AF+4*st+3}], v[{BF+4*st}:{BF+4*st+3}], {cin}"])
    return at, mm

def kg_atoms_x1():
    T0 = P0
    at = [[f"s_lshr_b32 s30, s39, 1", f"s_mul_i32 s30, s30, {CH_SIZE}", f"s_add_u32 s38, s30, {L_CH}", f"v_lshl_add_u32 v{T0}, v0, 4, s38"]]
    at.append(["s_bitcmp1_b32 s39, 0", "s_cselect_b64 exec, -1, 0"] + [f"ds_write_b128 v{T0}, v[{DK+4*q}:{DK+4*q+3}] offset:{512+q*1024}" for q in range(3)] +
              ["s_not_b64 exec, exec", f"ds_write_b128 v{T0}, v[{DK+12}:{DK+15}] offset:{512+3072}", "s_mov_b64 exec, -1"])
    return at

def kg_atoms_x2(tag):
    T0 = P0; VEA, VEB = 254, 255
    at = []
    at.append([f"ds_read_b128 v[{DP+4*q}:{DP+4*q+3}], v{T0} offset:{512+q*1024}" for q in range(4)] + [("tag", "dp")])
    for i in [f"v_and_b32 v{T0+4}, 31, v0", f"v_lshrrev_b32 v{T0+1}, 5, v0", f"v_lshlrev_b32 v{T0+2}, 4, v{T0+4}"]: at.append([i])
    at.append([f"s_add_u32 s28, s38, {OFF_E + 4080 - 1024}", f"v_sub_u32 v{VEA}, s28, v{T0+2}"])
    at.append([f"v_lshlrev_b32 v{T0+3}, 9, v{T0+1}"]); at.append([f"v_sub_u32 v{VEA}, v{VEA}, v{T0+3}"])
    at.append([f"s_add_u32 s28, s38, {OFF_E + 4080 - 2560}", f"v_sub_u32 v{VEB}, s28, v{T0+2}"])
    at.append([f"v_lshlrev_b32 v{T0+3}, 10, v{T0+1}"]); at.append([f"v_sub_u32 v{VEB}, v{VEB}, v{T0+3}"])
    at.append([f"v_lshl_add_u32 v{T0}, v0, 3, s38"]); at.append([f"v_mov_b32 v{T0+2}, 0"]); at.append([f"v_mov_b32 v{T0+3}, 0"])
    at.append(["s_lshl_b32 s28, s39, 2", f"s_add_u32 s28, s28, {L_FLAG}", f"v_mov_b32 v{T0+1}, s28"])
    for k in range(16): at.append(([("wait", "dp")] if k == 0 else []) + [f"v_add_f32 v{DK+k}, v{DK+k}, v{DP+k}"])
    at.append(mask("0xaaaaaaaa") + [f"v_cndmask_b32 v{DP}, v{DK+12}, v{DK+13}, s[28:29]", f"v_cndmask_b32 v{DP+1}, v{DK+14}, v{DK+15}, s[28:29]"])
    k_ = lambda r: DK + r
    def half(base, kk, va, off, odd):
        prs = [(8, 7), (6, 5), (4, 3), (2, 1)] if odd else [(7, 6), (5, 4), (3, 2), (1, 0)]
        return [f"v_cvt_pk_bf16_f32 v{base+i}, v{kk[lo]}, v{kk[hi]}" for i, (lo, hi) in enumerate(prs)] + \
               [f"ds_write_b128 v{va}, v[{base}:{base+3}] offset:{off + (OFF_O - OFF_E if odd else 0)}"]
    ev = [([k_(i) for i in range(9)], VEA, 1024), ([k_(9)] * 3 + [k_(10)] * 3 + [k_(11)] * 3, VEA, 0)]
    od = [([k_(12)] * 4 + [DP] + [k_(13)] * 4, VEB, 512), ([k_(14)] * 4 + [DP + 1] + [k_(15)] * 4, VEB, 0)]
    n = 0
    for gi in range(2):
        for o_ in range(2):
            b_ = EX + 4 * n
            at.append(["s_bitcmp1_b32 s39, 0", f"s_cbranch_scc1 L_xo{tag}{n}"] + half(b_, *ev[gi], o_)[:-1] + [("nods", half(b_, *ev[gi], o_)[-1]), f"s_branch L_xd{tag}{n}",
                       f"L_xo{tag}{n}:"] + half(b_, *od[gi], o_) + [f"L_xd{tag}{n}:"])
            n += 1
    at.append(["s_bitcmp0_b32 s39, 0", "s_cselect_b64 s[28:29], -1, 0", "s_mov_b64 exec, s[28:29]",
               f"ds_write_b64 v{T0}, v[{T0+2}:{T0+3}]", "s_and_b64 exec, s[28:29], 15",
               f"ds_write_b64 v{T0}, v[{T0+2}:{T0+3}] offset:{OFF_E+4096}", f"ds_write_b64 v{T0}, v[{T0+2}:{T0+3}] offset:{OFF_O+4096}",
               "s_and_b64 exec, s[28:29], 1", f"ds_write_b16_d16_hi v{T0}, v{EX+3} offset:{OFF_O+4096}",
               "s_mov_b64 exec, -1"])
    at.append([f"v_mov_b32 v{T0+2}, 1", f"ds_write_b32 v{T0+1}, v{T0+2} offset:64"])
    return at

def flag_zero():
    return [[f"v_lshlrev_b32 v{VT1}, 2, v0", f"v_mov_b32 v{VT1+1}, 0", f"v_add_u32 v{VT1}, {L_FLAG}, v{VT1}", f"ds_write_b32 v{VT1}, v{VT1+1}"]]

class LQ:
    def __init__(self, A): self.A = A; self.q = []
    def emit(self, items, tag=None):
        maybe0 = any(isinstance(it, str) and "s_cselect_b64" in it for it in items)
        for it in items:
            if maybe0 and isinstance(it, str):
                self.A(it); continue
            if isinstance(it, tuple):
                if it[0] == "tag": self.q[-1] = it[1]
                elif it[0] == "wait": self.wait(it[1])
                elif it[0] == "nods": self.A(it[1])
                continue
            self.A(it)
            if it.strip().startswith("ds_"): self.q.append(tag)
            if "lgkmcnt(0)" in it: self.q = []
    def wait(self, tag):
        idx = max((k for k, t in enumerate(self.q) if t == tag), default=-1)
        if idx < 0: return
        n = min(len(self.q) - 1 - idx, 15)
        self.A(f"s_waitcnt lgkmcnt({n})")
        self.q = self.q[len(self.q) - n:] if n else []

def spread(atoms, g0, g1):
    pts = [(g, p) for g in range(g0, g1) for p in range(2)]
    tot = sum(len(a_) for a_ in atoms); out = {p: [] for p in pts}; acc = 0
    for a_ in atoms:
        out[pts[min(len(pts) - 1, acc * len(pts) // tot)]].append(a_); acc += len(a_)
    return out

VXO, VWO, VXO2 = 1, 2, 3
VXR, VTR = 4, 8
VONE, VHO1, VB1 = 16, 18, 19
VCW, VCR, VSO = 20, 21, 22
VT1 = 28
NR = 3
W1, X1, ACC1, CS = 32, 56, 80, 144
HI = 152
GT, PK, SG = 164, 180, 188
EA, EB = 192, 196
VS, K1r, K3r = 212, 214, 216

def wave_flag(soff, vt):
    return [f"v_mov_b32 v{vt}, 0", f"v_mov_b32 v{vt+1}, s76", "s_mov_b64 exec, 1",
            f"buffer_store_dword v{vt+1}, v{vt}, s[12:15], {soff} offen {SC}", "s_mov_b64 exec, -1"]

def dma_setup(A):
    VT = VT1
    A(f"""
    v_lshrrev_b32 v{VT}, 3, v0
    v_and_b32 v{VT+1}, 7, v0
    v_lshrrev_b32 v{VT+2}, 4, v0
    v_xor_b32 v{VT+3}, v{VT+2}, v{VT+1}
    v_lshlrev_b32 v{VXO}, 10, v{VT}
    v_lshl_add_u32 v{VXO}, v{VT+3}, 4, v{VXO}
    v_xor_b32 v{VXO2}, 64, v{VXO}
    v_add_u32 v{VXO2}, 8192, v{VXO2}
    v_and_b32 v{VT+3}, 15, v0
    v_lshlrev_b32 v{VT}, 2, v{VT+2}
    v_xor_b32 v{VT+3}, v{VT+3}, v{VT}
    v_mul_u32_u24 v{VWO}, 3584, v{VT+2}
    v_lshl_add_u32 v{VWO}, v{VT+3}, 4, v{VWO}
    s_lshl_b32 s25, s21, 17
    s_lshl_b32 s28, s39, 15
    s_add_u32 s25, s25, s28
    s_mul_i32 s26, s39, {16*3584}
    s_lshl_b32 s28, s22, 8
    s_add_u32 s26, s26, s28
    s_lshl_b32 s27, s39, 12
    """)

def g1_dma(kc, part):
    st = (kc % NS) * STAGE
    return [f"s_add_u32 m0, s27, {st + part*1024}", f"s_add_u32 s31, s25, {128*kc + (part//2)*16384}",
            f"buffer_load_dwordx4 v{VXO if part % 2 == 0 else VXO2}, s[4:7], s31 offen lds",
            f"s_add_u32 m0, s27, {st + 16384 + part*1024}", f"s_add_u32 s37, s26, {(64*kc + 4*part)*3584}",
            f"buffer_load_dwordx4 v{VWO}, s[8:11], s37 offen lds"]

def c_setup(A):
    VT = VT1
    A(f"""
    v_and_b32 v{VT}, 31, v0
    v_lshrrev_b32 v{VT+1}, 5, v0
    v_bfe_u32 v{VT+2}, v0, 1, 3
    v_xor_b32 v{VT+2}, v{VT+2}, v{VT+1}
    s_lshl_b32 s31, s34, 1
    v_xor_b32 v{VT+2}, s31, v{VT+2}
    v_lshlrev_b32 v{VXR}, 7, v{VT}
    v_lshl_add_u32 v{VXR}, v{VT+2}, 4, v{VXR}
    s_lshl_b32 s28, s34, 13
    v_add_u32 v{VXR}, s28, v{VXR}
    v_xor_b32 v{VXR+1}, 32, v{VXR}
    v_xor_b32 v{VXR+2}, 64, v{VXR}
    v_xor_b32 v{VXR+3}, 96, v{VXR}
    v_lshlrev_b32 v{VSO}, 3, v0
    v_bfe_u32 v{VT+2}, v0, 2, 2
    v_lshl_add_u32 v{VTR}, v{VT+1}, 3, v{VT+2}
    v_lshlrev_b32 v{VTR}, 8, v{VTR}
    v_bfe_u32 v{VT+3}, v0, 4, 1
    v_lshl_add_u32 v{VTR}, v{VT+3}, 5, v{VTR}
    v_and_b32 v{VT+3}, 3, v0
    v_lshl_add_u32 v{VTR}, v{VT+3}, 3, v{VTR}
    s_lshl_b32 s31, s35, 1
    v_xor_b32 v{VT+2}, s31, v{VT+2}
    v_lshl_add_u32 v{VTR}, v{VT+2}, 6, v{VTR}
    s_lshl_b32 s31, s34, 12
    s_add_u32 s31, s31, 16384
    v_add_u32 v{VTR}, s31, v{VTR}
    """)
    for i in range(4):
        for ft in range(2):
            if i == 0 and ft == 0: continue
            A(f"v_xor_b32 v{VTR+2*i+ft}, {i*4096 + ft*64}, v{VTR}")
    A(f"""
    v_mov_b32 v{VONE}, 0x3f803f80
    v_mov_b32 v{VONE+1}, 0x3f803f80
    v_lshlrev_b32 v{VHO1}, 4, v0
    s_lshl_b32 s33, s21, 1
    s_add_u32 s33, s33, s34
    s_lshl_b32 s36, s33, 9
    s_add_u32 s36, s36, {WS_STAT}
    s_mul_i32 s32, s33, {2*112*1024}
    s_lshl_b32 s28, s22, 1
    s_add_u32 s28, s28, s35
    s_lshl_b32 s29, s28, 12
    s_add_u32 s32, s32, s29
    s_add_u32 s32, s32, {WS_HF}
    s_add_u32 s38, s32, {112*1024}
    s_lshl_b32 s33, s33, 5
    s_add_u32 s33, s33, s28
    s_lshl_b32 s33, s33, 7
    s_add_u32 s33, s33, {WS_FLH}
    s_lshl_b32 s29, s20, 8
    v_lshl_add_u32 v{VCW}, v0, 2, s29
    v_add_u32 v{VCW}, {L_CS}, v{VCW}
    v_xor_b32 v{VCR}, 256, v{VCW}
    """)
    srd(A, 16, "s46", "s47", 3584)
    A(f"""
    v_mov_b32 v{VB1}, 0
    v_lshlrev_b32 v{VT1}, 1, v0
    s_lshl_b32 s28, s28, 7
    buffer_load_short_d16_hi v{VB1}, v{VT1}, s[16:19], s28 offen
    """)
    for k in range(20): A(f"v_mov_b32 v{EA+k}, 0")
    for k in range(12): A(f"v_add_u32 v{HI+k}, 0x10000, v{VXR+k}")

def c_reads(g):
    kc, i = divmod(g, 4)
    st = kc % NS
    b = (VXR if st < 2 else HI); off = (st % 2) * STAGE
    sl = g % NR
    tr = lambda ft, sec: f"ds_read_b64_tr_b16 v[{W1+8*sl+4*ft+2*sec}:{W1+8*sl+4*ft+2*sec+1}], v{b+4+2*i+ft} offset:{off + sec*1024}"
    xr = lambda tt: f"ds_read_b128 v[{X1+8*sl+4*tt}:{X1+8*sl+4*tt+3}], v{b+i} offset:{off + tt*4096}"
    return [xr(0), tr(0, 0), tr(0, 1), tr(1, 0), tr(1, 1), xr(1)]

def gen_c1(A):
    VT = VT1
    dma_setup(A)
    A(f"""
    s_and_b32 s34, s20, 1
    s_lshr_b32 s35, s20, 1
    s_waitcnt lgkmcnt(0)
    s_load_dword s76, s[42:43], {WS_EPOCH}
    """)
    vm = VMQ()
    srd(A, 4, "s40", "s41", 2 << 20)
    srd(A, 8, "s44", "s45", 512 * 3584)
    srd(A, 12, "s42", "s43", WS_USED)
    for kc in range(3):
        for part in range(4): A.extend(g1_dma(kc, part))
        vm.note(kc, 8)
        if kc == 0:
            c_setup(A); vm.note("b1")
        if kc == env("PFAT", 1) and OPT_PF: coop_prefetch(A, VT); vm.note("pf", 2)
    A.extend(ya_prefill(VT, VT + 1, PK)); vm.note(2, 2)
    w2_setup(A, VT)
    A.st("pre")
    A(vm.wait(0)[0] + " lgkmcnt(0)"); A("s_barrier")
    A.st("b0")
    T = GT
    lq = LQ(A)
    lq.emit(c_reads(0), 0); lq.emit(c_reads(1), 1)
    mktag(A)
    def big(g, tt, ft):
        sl = g % NR; c = ACC1 + 32 * tt + 16 * ft
        cin = "0" if g == 0 else f"v[{c}:{c+15}]"
        return f"v_mfma_f32_32x32x16_bf16 v[{c}:{c+15}], v[{W1+8*sl+4*ft}:{W1+8*sl+4*ft+3}], v[{X1+8*sl+4*tt}:{X1+8*sl+4*tt+3}], {cin}"
    for g in range(32):
        kc, i = divmod(g, 4); w = W1 + 8 * (g % NR)
        m = lambda d, b_, z: f"v_mfma_f32_4x4x4_16b_bf16 v[{d}:{d+3}], v[{VONE}:{VONE+1}], v[{b_}:{b_+1}], " + ("0" if z else f"v[{d}:{d+3}]")
        o1, o2 = [], []
        if i < 2 and False: pass
        if i in (0, 2) and g < 28 or g in (28, 29):
            o1 = [m(CS, w, g == 0), m(CS + 4, w + 4, g == 0)]; o2 = [m(CS, w + 2, False), m(CS + 4, w + 6, False)]
        A.st(f"g{g}")
        gn = g + 2
        rd = c_reads(PERM(gn))[:] if gn < 32 else []
        rd = c_reads_slot(gn) if gn < 32 else []
        x1, x2 = [], []
        if i == 2 and kc + 1 < 8: x1 += vm.wait(kc + 1) + ["s_barrier"]
        if g == 30:
            x1 += [f"v_permlane32_swap_b32 v{CS}, v{CS+4}", f"v_add_f32 v{CS}, v{CS}, v{CS+4}", f"ds_write_b32 v{VCW}, v{CS}",
                   "s_waitcnt lgkmcnt(0)", "s_barrier", f"ds_read_b32 v{T+2}, v{VCR}"]
        if g == STATG: x2 += [f"buffer_load_dwordx2 v[{SG}:{SG+1}], v{VSO}, s[12:15], s36 offen {SC}"]; vm.note("sg")
        if g == env("YFG", 8) - 1: x2 += yflag_off()
        if g == env("YFG", 8): x2 += wave_flag("s28", VT); vm.note("yf")
        lq.wait(g)
        A(big(g, 0, 0))
        if i == 2: A.st(f"pb{kc+1}")
        lq.emit(x1)
        if i == 2: A.st(f"ab{kc+1}")
        lq.emit(rd[:2], gn)
        A(big(g, 0, 1)); lq.emit(rd[2:4], gn); A.extend(o1)
        A(big(g, 1, 0)); lq.emit(rd[4:], gn)
        A(big(g, 1, 1)); lq.emit(x2); A.extend(o2)
    A.st("loop")
    A.extend(vm.wait("sg", "b1"))
    A(f"""
    v_cmp_ne_u32 vcc, s76, v{SG+1}
    s_cbranch_vccz L_g1_sok
    s_mov_b32 s30, 0
    L_g1_spoll:
    buffer_load_dwordx2 v[{SG}:{SG+1}], v{VSO}, s[12:15], s36 offen {SC}
    s_add_u32 s30, s30, 1
    s_waitcnt vmcnt(0)
    v_cmp_ne_u32 vcc, s76, v{SG+1}
    s_cmp_gt_u32 s30, {SPIN}
    s_cbranch_scc1 L_g1_sok
    s_cbranch_vccnz L_g1_spoll
    L_g1_sok:
    v_mov_b32 v{SG+1}, v{SG}
    s_mov_b32 s28, -1
    s_mov_b32 s29, 0
    v_permlane32_swap_b32 v{SG}, v{SG+1}
    s_waitcnt lgkmcnt(0)
    v_add_f32 v{T+2}, v{T+2}, v{CS}
    """)
    l1 = []
    for tt in range(2):
        l1 += [f"v_and_b32 v{VS+tt}, 0xffff0000, v{SG+tt}", f"v_and_b32 v{T+8+tt}, 0xffff, v{SG+tt}", f"v_rcp_f32 v{T+6+tt}, v{VS+tt}",
               f"v_lshl_or_b32 v{T+8+tt}, v{T+8+tt}, 16, v{T+8+tt}",
               f"v_cndmask_b32 v{EB+8*tt}, 0, v{T+8+tt}, s[28:29]", f"v_cndmask_b32 v{EB+8*tt+1}, 0, v{SG+tt}, s[28:29]",
               f"v_cndmask_b32 v{EB+8*tt+4}, v{T+8+tt}, 0, s[28:29]", f"v_cndmask_b32 v{EB+8*tt+5}, v{SG+tt}, 0, s[28:29]"]
    l2 = [f"v_and_b32 v{T+3}, 0xffff0000, v{T+2}", f"v_sub_f32 v{T+3}, v{T+2}, v{T+3}", f"v_lshrrev_b32 v{T+2}, 16, v{T+2}",
          f"v_and_b32 v{T+4}, 0xffff0000, v{T+3}", f"v_sub_f32 v{T+5}, v{T+3}, v{T+4}", f"v_or_b32 v{EA}, v{T+2}, v{T+4}",
          f"v_lshrrev_b32 v{T+5}, 16, v{T+5}", f"v_or_b32 v{EA+1}, v{T+5}, v{VB1}"]
    A.extend(zipm(l1, l2))
    l3 = []
    for tt in range(2):
        l3.append([f"v_fma_f32 v{T+10+tt}, -v{VS+tt}, v{T+6+tt}, 1.0", f"v_fma_f32 v{T+6+tt}, v{T+10+tt}, v{T+6+tt}, v{T+6+tt}",
                   f"v_mul_f32 v{K1r+tt}, {hex(f2u(GC1))}, v{T+6+tt}", f"v_mul_f32 v{T+10+tt}, v{T+6+tt}, v{T+6+tt}",
                   f"v_mul_f32 v{K3r+tt}, {hex(f2u(GC2))}, v{T+6+tt}", f"v_mul_f32 v{K3r+tt}, v{K3r+tt}, v{T+10+tt}"])
    l3 = zipm(*l3)
    for tt in range(2):
        for ft in range(2):
            c = ACC1 + 32 * tt + 16 * ft
            A(f"v_mfma_f32_32x32x16_bf16 v[{c}:{c+15}], v[{EA}:{EA+3}], v[{EB+8*tt+4*ft}:{EB+8*tt+4*ft+3}], v[{c}:{c+15}]")
            A.extend(l3[3 * (2 * tt + ft):3 * (2 * tt + ft) + 3])
    A.st("gstart")
    for n in range(8):
        tt = n // 4
        c0 = ACC1 + 8 * n
        t0 = GT + 8 * (n % 2)
        if GPK:
            P = lambda x: f"v[{x}:{x+1}]"
            sel = f"op_sel:[0,{tt},{tt}] op_sel_hi:[1,{tt},{tt}]"
            for k in range(0, 8, 2): A(f"v_pk_mul_f32 {P(t0+k)}, {P(c0+k)}, {P(c0+k)}")
            for k in range(0, 8, 2): A(f"v_pk_fma_f32 {P(t0+k)}, {P(t0+k)}, {P(K3r)}, {P(K1r)} {sel}")
            for k in range(0, 8, 2): A(f"v_pk_mul_f32 {P(t0+k)}, {P(t0+k)}, {P(c0+k)}")
            for k in range(8): A(f"v_exp_f32 v{t0+k}, v{t0+k}")
            for k in range(0, 8, 2): A(f"v_pk_fma_f32 {P(t0+k)}, {P(t0+k)}, {P(VS)}, {P(VS)} {sel}")
            for k in range(8): A(f"v_rcp_f32 v{t0+k}, v{t0+k}")
            for k in range(0, 8, 2): A(f"v_pk_mul_f32 {P(c0+k)}, {P(c0+k)}, {P(t0+k)}")
        else:
            for k in range(8): A(f"v_mul_f32 v{t0+k}, v{c0+k}, v{c0+k}")
            for k in range(8): A(f"v_fma_f32 v{t0+k}, v{t0+k}, v{K3r+tt}, v{K1r+tt}")
            for k in range(8): A(f"v_mul_f32 v{t0+k}, v{t0+k}, v{c0+k}")
            for k in range(8): A(f"v_exp_f32 v{t0+k}, v{t0+k}")
            for k in range(8): A(f"v_fma_f32 v{t0+k}, v{t0+k}, v{VS+tt}, v{VS+tt}")
            for k in range(8): A(f"v_rcp_f32 v{t0+k}, v{t0+k}")
            for k in range(8): A(f"v_mul_f32 v{c0+k}, v{c0+k}, v{t0+k}")
        pk = PK + 4 * (n % 2)
        for k in range(4): A(f"v_cvt_pk_bf16_f32 v{pk+k}, v{c0+2*k}, v{c0+2*k+1}")
        A(f"buffer_store_dwordx4 v[{pk}:{pk+3}], v{VHO1}, s[12:15], s{32 if tt == 0 else 38} offen offset:{(n%4)*1024} {SCH}")
        if env("DBL", 0): A(f"buffer_store_dwordx4 v[{pk}:{pk+3}], v{VHO1}, s[12:15], s{32 if tt == 0 else 38} offen offset:{(n%4)*1024}")
    A.st("gend")
    A("s_mov_b32 s37, 0")
    A("s_branch L_gemm2")

def PERM(g): return g
def c_reads_slot(g):
    if g < 28: return c_reads(g)
    i = [0, 2, 1, 3][g - 28]
    r = c_reads(28 + i)
    kc = 7; st = kc % NS; b = HI; off = (st % 2) * STAGE; sl = g % NR
    tr = lambda ft, sec: f"ds_read_b64_tr_b16 v[{W1+8*sl+4*ft+2*sec}:{W1+8*sl+4*ft+2*sec+1}], v{b+4+2*i+ft} offset:{off + sec*1024}"
    xr = lambda tt: f"ds_read_b128 v[{X1+8*sl+4*tt}:{X1+8*sl+4*tt+3}], v{b+i} offset:{off + tt*4096}"
    return [xr(0), tr(0, 0), tr(0, 1), tr(1, 0), tr(1, 1), xr(1)]

def yflag_off():
    return ["s_lshr_b32 s28, s39, 1", "s_lshl_b32 s29, s2, 1", "s_add_u32 s28, s28, s29", "s_and_b32 s29, s39, 1", "s_lshl_b32 s29, s29, 9",
            "s_add_u32 s28, s28, s29", "s_lshl_b32 s28, s28, 7", f"s_add_u32 s28, s28, {WS_FLY}"]
def ring_ready(vt):
    return ["s_lshl_b32 s28, s39, 2", f"s_add_u32 s28, s28, {L_FLAG+16}", f"v_mov_b32 v{vt}, s28", f"v_mov_b32 v{vt+1}, 1", f"ds_write_b32 v{vt}, v{vt+1}"]

def lds_wait(A, name, vaddr, off, vt):
    A(f"""
    {name}:
    ds_read_b32 v{vt}, v{vaddr} offset:{off}
    s_waitcnt lgkmcnt(0)
    v_readfirstlane_b32 s28, v{vt}
    s_cmp_eq_u32 s28, 1
    s_cbranch_scc0 {name}
    """)

def gen_h1(A):
    VT = VT1
    vm = VMQ()
    param_loads(A, VT); vm.note("prm", 8)
    A(f"s_load_dword s76, s[42:43], {WS_EPOCH}")
    srd(A, 4, "s40", "s41", 2 << 20)
    srd(A, 8, "s44", "s45", 512 * 3584)
    srd(A, 12, "s42", "s43", WS_USED)
    if env("CPF", 1):
        A(f"""
        s_getpc_b64 s[28:29]
        L_pc0:
        s_sub_u32 s28, s28, L_pc0-{KNAME}
        s_subb_u32 s29, s29, 0
        s_lshl_b32 s30, s39, 13
        v_lshl_add_u32 v{VT+2}, v0, 7, s30
        v_min_u32 v{VT+2}, L_exit-{KNAME}, v{VT+2}
        s_cmp_lt_u32 s24, {env("CPFN", 4)}
        s_cselect_b64 exec, -1, 1
        global_load_dword v{VDUM}, v{VT+2}, s[28:29]
        s_mov_b64 exec, -1
        """)
    dma_setup(A)
    w2_setup(A, VT)
    if env("TLBW", 0):
        A(f"""
        v_lshlrev_b32 v{VT+2}, {env("TLBS", 20)}, v0
        s_mov_b64 exec, {hex((1 << (WS_USED >> env("TLBS", 20))) - 1)}
        buffer_load_dword v{VDUM}, v{VT+2}, s[12:15], 0 offen
        s_mov_b64 exec, 3
        buffer_load_dword v{VDUM}, v{VT+2}, s[16:19], 0 offen
        global_load_dword v{VDUM}, v{VT+2}, s[52:53]
        s_mov_b64 exec, 1
        global_load_dword v{VDUM}, v{VT+2}, s[50:51]
        s_mov_b64 exec, -1
        """)
        vm.note("tlb", 4)
    kg_waddr(A, L_VS, KWA); A.extend(kg_raddr(L_VS, KRA, VT))
    for a_ in flag_zero(): A.extend(a_)
    A.st("pre")
    A.extend(vm.wait("prm"))
    A.st("prm")
    A.label("L_kgen_v")
    gen_kgen_v(A)
    A("s_cmp_eq_u32 s79, 7")
    A("s_cbranch_scc1 L_ln_H2")
    A.st("kg")
    A("s_waitcnt lgkmcnt(0)"); A("s_barrier")
    A.st("b0")
    mktag(A)
    UV, UW = kgen_u_lists(0)
    wts = [2, 3, 3, 3, 3, 3]; cum = 0
    for k in range(8):
        if k <= 5:
            sl_ = UV[len(UV) * cum // sum(wts):len(UV) * (cum + wts[k]) // sum(wts)]; cum += wts[k]
            if k >= 1:
                pcs = []
                for part in range(4):
                    dd = g1_dma(k + 2, part); pcs += [dd[:3], dd[3:]]
                vm.note(k + 2, 8)
                for q, dd in enumerate(pcs):
                    A.extend(dd); A.extend(sl_[len(sl_) * q // 8:len(sl_) * (q + 1) // 8])
            else: A.extend(sl_)
        else:
            for sl in range(4 * (k - 6), 4 * (k - 6) + 4): A.extend(wdma(sl, sl))
            vm.note("f", 8)
        A.st(f"pi{k+1}")
        A.extend(vm.wait(k + 1))
        A("s_barrier")
        A.st(f"ab{k+1}")
    A.st("loop")
    FE = env("FE", 1)
    if FE:
        for sl in range(8, 12): A.extend(wdma(sl, sl))
    A.label("L_h_tail")
    A(f"s_setprio {env('PRIOX', 1)}")
    lq = LQ(A)
    ar_, mm_ = kg_atoms_m()
    lq.emit(UW)
    for a_ in ar_ + mm_ + kg_atoms_x1(): lq.emit(a_)
    A(f"""
    s_lshl_b32 s28, s39, 2
    s_add_u32 s28, s28, {L_FLAG}
    v_mov_b32 v{VT}, s28
    v_mov_b32 v{VT+1}, 1
    ds_write_b32 v{VT}, v{VT+1} offset:80
    v_xor_b32 v{VT+2}, 4, v{VT}
    """)
    lds_wait(A, "L_h_x1", VT + 2, 80, 32)
    lq.q = []
    for a_ in kg_atoms_x2("g"): lq.emit(a_)
    A("s_setprio 0")
    A.extend(lnflag_load(VT))
    A("s_waitcnt lgkmcnt(0)")
    A.st("ku")
    A(f"v_lshlrev_b32 v18, 4, v0")
    A("s_waitcnt vmcnt(0)")
    u_try(A, 18)
    if not FE:
        A("s_cmp_eq_u32 s79, 7")
        A("s_cbranch_scc1 L_h_nof")
        for sl in range(8, 12): A.extend(wdma(sl, sl))
        A("s_waitcnt vmcnt(0)")
        A.label("L_h_nof")
    A.extend(ring_ready(VT))
    A.st("gend")
    A("s_branch L_conv")
    A.label("L_ln_H2")
    A("s_nop 0 ; RESETSB")
    A.extend(UV)
    A("s_branch L_h_tail")

def gen_gemm1(A):
    A(f"""
    s_load_dwordx8 s[56:63], s[0:1], {KA['A_re']}
    s_load_dwordx8 s[64:71], s[0:1], {KA['C_re']}
    """)
    A("s_cmp_ge_u32 s20, 4")
    A("s_cbranch_scc1 L_g1_H")
    gen_c1(A)
    A.label("L_g1_H")
    A("s_nop 0 ; RESETSB")
    gen_h1(A)


def gen_ln(A):
    Q, R, O, T = 16, 48, 80, 112
    A(f"""
    v_lshrrev_b32 v1, 3, v0
    v_and_b32 v2, 7, v0
    v_lshlrev_b32 v3, 10, v1
    v_lshl_add_u32 v3, v2, 4, v3
    v_lshlrev_b32 v4, 4, v0
    s_lshl_b32 s25, s21, 6
    s_lshl_b32 s28, s20, 3
    s_add_u32 s25, s25, s28
    s_lshl_b32 s36, s25, 3
    s_add_u32 s36, s36, {WS_STAT}
    s_lshl_b32 s25, s25, 10
    s_add_u32 s26, s25, 4096
    s_waitcnt lgkmcnt(0)
    s_load_dword s76, s[42:43], {WS_EPOCH}
    """)
    srd(A, 4, "s40", "s41", 2 << 20)
    for i in range(8): A(f"buffer_load_dwordx4 v[{Q+4*i}:{Q+4*i+3}], v3, s[4:7], s25 offen offset:{128*i}")
    srd(A, 12, "s42", "s43", WS_USED)
    A("s_waitcnt lgkmcnt(0)")
    mktag(A)
    for t in range(8): A(f"buffer_load_dwordx4 v[{R+4*t}:{R+4*t+3}], v4, s[4:7], s{25 + t//4} offen offset:{(t%4)*1024}")
    A(f"""
    v_mov_b32 v5, 0x3f803f80
    v_mov_b32 v6, 0
    v_mov_b32 v7, 0
    v_mov_b32 v12, 0
    v_mov_b32 v13, 0
    v_mov_b32 v14, 0x00003f80
    v_mov_b32 v15, 0x3f800000
    v_lshlrev_b32 v8, 3, v1
    v_mov_b32 v11, s76
    """)
    for i in range(8):
        A(f"s_waitcnt vmcnt({8 + 7 - i})")
        for k in range(4):
            r = Q + 4 * i + k
            A(f"v_dot2_f32_bf16 v{6 if k%2==0 else 12}, v{r}, v5, v{6 if k%2==0 else 12}")
            A(f"v_dot2_f32_bf16 v{7 if k%2==0 else 13}, v{r}, v{r}, v{7 if k%2==0 else 13}")
    A(f"""
    v_add_f32 v6, v6, v12
    v_add_f32 v7, v7, v13
    v_add_f32_dpp v6, v6, v6 quad_perm:[1,0,3,2] row_mask:0xf bank_mask:0xf
    v_add_f32_dpp v7, v7, v7 quad_perm:[1,0,3,2] row_mask:0xf bank_mask:0xf
    v_add_f32_dpp v6, v6, v6 quad_perm:[2,3,0,1] row_mask:0xf bank_mask:0xf
    v_add_f32_dpp v7, v7, v7 quad_perm:[2,3,0,1] row_mask:0xf bank_mask:0xf
    v_add_f32_dpp v6, v6, v6 row_half_mirror row_mask:0xf bank_mask:0xf
    v_add_f32_dpp v7, v7, v7 row_half_mirror row_mask:0xf bank_mask:0xf
    v_mul_f32 v12, {hex(f2u(1/512))}, v6
    v_mul_f32 v13, {hex(f2u(1/512))}, v7
    v_fma_f32 v13, -v12, v12, v13
    v_max_f32 v13, 0, v13
    """)
    round_bf16(A, 13)
    A(f"v_add_f32 v13, {hex(f2u(1e-5))}, v13")
    round_bf16(A, 13)
    A(f"""
    v_sqrt_f32 v13, v13
    v_cvt_pk_bf16_f32 v10, -v12, v13
    s_mov_b32 exec_lo, 0x01010101
    s_mov_b32 exec_hi, 0x01010101
    buffer_store_dwordx2 v[10:11], v8, s[12:15], s36 offen {SC}
    s_mov_b64 exec, -1
    """)
    A.st("b0")
    A(f"""
    v_and_b32 v13, 0xffff0000, v10
    v_lshlrev_b32 v12, 16, v10
    v_rcp_f32 v5, v13
    s_nop 0
    v_fma_f32 v13, -v13, v5, 1.0
    v_fma_f32 v13, v13, v5, v5
    """)
    for t in range(8):
        A(f"v_readlane_b32 s{56+t}, v12, {8*t}")
        A(f"v_readlane_b32 s{64+t}, v13, {8*t}")
    A(f"""
    v_xor_b32 v5, s20, v2
    v_lshlrev_b32 v6, 10, v0
    v_lshl_add_u32 v6, v5, 4, v6
    v_add_u32 v6, 98304, v6
    s_waitcnt vmcnt(1)
    """)

    for tp in range(4):
        t0, t1 = 2 * tp, 2 * tp + 1
        for k in range(4):
            for h in range(2):
                e = 2 * k + h
                A(f"v_dot2_f32_bf16 v{T+2*e}, v{R+4*t0+k}, v{14+h}, s{56+t0}")
                A(f"v_dot2_f32_bf16 v{T+2*e+1}, v{R+4*t1+k}, v{14+h}, s{56+t1}")
        for e in range(8): A(f"v_cvt_pk_bf16_f32 v{T+2*e+1}, v{T+2*e}, v{T+2*e+1}")
        for e in range(8):
            A(f"v_lshlrev_b32 v{T+2*e}, 16, v{T+2*e+1}")
            A(f"v_and_b32 v{T+2*e+1}, 0xffff0000, v{T+2*e+1}")
        for e in range(8): A(f"v_pk_mul_f32 v[{T+2*e}:{T+2*e+1}], v[{T+2*e}:{T+2*e+1}], s[{64+t0}:{64+t1}]")
        for e in range(8): A(f"v_cvt_pk_bf16_f32 v{O+4*e+tp}, v{T+2*e}, v{T+2*e+1}")
        if tp == env("LFP", 3):
            w2_setup(A, 28)
            LF = env("LF", 0)
            A("s_cmp_ge_u32 s20, 4")
            A("s_cbranch_scc1 L_ln_nofill")
            for sl in range(LF): A.extend(wdma(sl, sl))
            A.label("L_ln_nofill")
    for e in range(8): A(f"ds_write_b128 v6, v[{O+4*e}:{O+4*e+3}] offset:{e*128}")
    A(f"""
    s_lshl_b32 s28, s20, 13
    v_lshlrev_b32 v6, 7, v1
    v_lshl_add_u32 v6, v2, 4, v6
    v_add_u32 v6, s28, v6
    v_add_u32 v6, 98304, v6
    v_lshlrev_b32 v7, 12, v1
    v_lshl_add_u32 v7, v2, 4, v7
    s_load_dwordx8 s[56:63], s[0:1], {KA['A_re']}
    s_load_dwordx8 s[64:71], s[0:1], {KA['C_re']}
    s_lshl_b32 s26, s20, 18
    s_lshl_b32 s28, s21, 7
    s_add_u32 s26, s26, s28
    s_add_u32 s26, s26, {WS_XNT}
    s_lshl_b32 s33, s21, 7
    s_add_u32 s33, s33, {WS_FLL}
    """)
    for i in range(8): A(f"v_xor_b32 v{8+i}, {16*i}, v6")
    A.st("g8")
    param_loads(A, T)
    A.extend(ya_prefill(T + 2, T + 3, T + 4))
    A("s_barrier")
    for i in range(8): A(f"ds_read_b128 v[{R+4*i}:{R+4*i+3}], v{8+i} offset:{i*1024}")
    for i in range(8):
        A(f"s_waitcnt lgkmcnt({7-i})")
        A(f"s_add_u32 s25, s26, {i*32768}")
        A(f"buffer_store_dwordx4 v[{R+4*i}:{R+4*i+3}], v7, s[12:15], s25 offen {SC}")
    A.st("loop")
    A("s_waitcnt vmcnt(0)")
    A("s_barrier")
    publish_flag(A, "s33", 28, "l", 7)
    A.st("gstart")
    A(f"s_mov_b32 s33, {WS_DUMMY}")
    srd(A, 16, "s48", "s49", 1792 * 1024)
    for a_ in flag_zero(): A.extend(a_)
    A("s_waitcnt lgkmcnt(0)")
    A("s_barrier")
    A("s_cmp_lt_u32 s20, 4")
    A("s_cbranch_scc1 L_ln_C")
    A.extend(yflag_off()); A.extend(wave_flag("s28", 28))
    kg_waddr(A, L_VS, KWA); A.extend(kg_raddr(L_VS, KRA, 28))
    A("s_branch L_kgen_v")
    A.label("L_ln_C")
    for sl in range(LF, 12): A.extend(wdma(sl, sl))
    A("s_waitcnt vmcnt(0)")
    for sl in range(12): A.extend(w2tr(sl, sl))
    A("s_waitcnt lgkmcnt(0)")
    for sl in range(12): A.extend(wdma(sl, 12 + sl))
    A(f"""
    v_mov_b32 v28, {L_FLAG+16}
    L_ln_cw:
    ds_read_b128 v[32:35], v28
    s_waitcnt lgkmcnt(0)
    v_and_b32 v32, v32, v33
    v_and_b32 v34, v34, v35
    v_and_b32 v32, v32, v34
    s_nop 0
    v_readfirstlane_b32 s28, v32
    s_cmp_eq_u32 s28, 1
    s_cbranch_scc0 L_ln_cw
    """)
    A(f"""
    s_lshl_b32 s28, s20, 8
    s_add_u32 s28, s28, s2
    s_cmp_lg_u32 s28, 255
    s_cbranch_scc1 L_nobump
    v_lshlrev_b32 v28, 8, v0
    s_mov_b32 s30, 0
    L_bump_poll:
    """)
    for k in range(4):
        A(f"s_mov_b32 s28, {WS_FLY + k*16384}")
        A(f"buffer_load_dword v{32+k}, v28, s[12:15], s28 offen {SC}")
    A(f"""
    s_add_u32 s30, s30, 1
    s_waitcnt vmcnt(0)
    v_xor_b32 v32, s76, v32
    v_xor_b32 v33, s76, v33
    v_xor_b32 v34, s76, v34
    v_xor_b32 v35, s76, v35
    v_or3_b32 v32, v32, v33, v34
    v_or_b32 v32, v32, v35
    v_cmp_ne_u32 vcc, 0, v32
    s_cmp_gt_u32 s30, {SPIN}
    s_cbranch_scc1 L_bump_go
    s_cbranch_vccnz L_bump_poll
    L_bump_go:
    s_mov_b32 s28, {WS_EPOCH}
    """)
    A.extend(wave_flag("s28", 28))
    A.label("L_nobump")
    A("s_mov_b32 s37, 1")
    A("s_branch L_gemm2")


def final_addr(A):
    A(f"""
    v_lshrrev_b32 v1, 3, v0
    v_and_b32 v2, 7, v0
    v_lshlrev_b32 v{VOO}, 10, v1
    v_lshl_add_u32 v{VOO}, v2, 4, v{VOO}
    v_lshlrev_b32 v3, 4, v2
    s_lshl_b32 s33, s78, 6
    s_lshl_b32 s28, s20, 3
    s_add_u32 s33, s33, s28
    s_lshl_b32 s33, s33, 10
    s_lshl_b32 s34, s79, 7
    s_add_u32 s33, s33, s34
    """)
def ep_loads():
    o = Asm()
    srd(o, 8, "s50", "s51", 1024)
    o(f"buffer_load_dwordx4 v[{VX}:{VX+3}], v{VOO}, s[4:7], s33 offen")
    o(f"buffer_load_dwordx4 v[{VB2}:{VB2+3}], v3, s[8:11], s34 offen")
    return o.lines


def gen_gemm2(A):
    VHO, VTR2, VP, VT = 13, 14, 18, 22
    ACC, W, H = ACC2, W2R, HR
    if PRIO_G: A(f"s_setprio {PRIO_G}")
    A("s_mov_b32 s22, s33")
    final_addr(A)
    for k in range(4): A(f"v_mov_b32 v{VTR2+k}, v{VTL+k}")
    A(f"""
    v_lshlrev_b32 v{VHO}, 4, v0
    v_lshrrev_b32 v{VT}, 5, v0
    v_xor_b32 v{VT}, v{VT}, v2
    v_and_b32 v{VP}, 31, v0
    v_lshlrev_b32 v{VP}, 8, v{VP}
    v_lshl_add_u32 v{VP}, v{VT}, 4, v{VP}
    v_add_u32 v{VP}, s73, v{VP}
    v_xor_b32 v{VP+1}, 32, v{VP}
    v_xor_b32 v{VP+2}, 64, v{VP}
    v_xor_b32 v{VP+3}, 96, v{VP}
    s_mul_i32 s24, s78, {2*112*1024}
    s_mul_i32 s28, s20, {28*1024}
    s_add_u32 s24, s24, s28
    s_add_u32 s24, s24, {WS_HF}
    s_add_u32 s25, s24, {112*1024}
    s_mul_i32 s26, s20, 7
    s_lshl_b32 s28, s78, 5
    s_add_u32 s26, s26, s28
    s_lshl_b32 s26, s26, 7
    s_add_u32 s26, s26, {WS_FLH}
    v_min_u32 v{VT}, 6, v2
    v_lshlrev_b32 v{VT}, 7, v{VT}
    s_lshl_b32 s28, s20, 2
    s_add_u32 s28, s28, {L_FLAG+16}
    v_mov_b32 v{ACC+4}, s28
    v_mov_b32 v{ACC+5}, 1
    ds_write_b32 v{ACC+4}, v{ACC+5} offset:16
    s_mov_b32 s30, 0
    s_cmp_eq_u32 s37, 1
    s_cbranch_scc1 L_g2_poll
    """)
    A.st("prew")
    A("s_waitcnt vmcnt(0)")
    A.extend(wave_flag("s22", ACC))
    A.st("p2bar")
    A(f"""
    L_g2_rr:
    ds_read_b32 v{ACC+5}, v{ACC+4}
    s_waitcnt lgkmcnt(0)
    v_readfirstlane_b32 s28, v{ACC+5}
    s_cmp_eq_u32 s28, 1
    s_cbranch_scc0 L_g2_rr
    """)
    for sl in range(3): A.extend(w2tr(sl, sl, VTR2))
    for sl in range(12):
        left = min(12, sl + 3) - sl - 1
        A(f"s_waitcnt lgkmcnt({4*left})")
        if sl + 3 < 12: A.extend(w2tr(sl + 3, sl + 3, VTR2))
        A.extend(wdma(sl, 12 + sl))
    A.st("s5")
    A.label("L_g2_poll")
    A(f"""
    buffer_load_dword v{ACC+2}, v{VT}, s[12:15], s26 offen {SC}
    s_add_u32 s30, s30, 1
    s_waitcnt vmcnt(0)
    v_cmp_ne_u32 vcc, s76, v{ACC+2}
    s_cmp_gt_u32 s30, {SPIN}
    s_cbranch_scc1 L_g2_go
    s_cbranch_vccnz L_g2_poll
    """)
    A.label("L_g2_go")
    vm = VMQ()
    A.st("s6")
    def hload(kp):
        sl = kp % HD
        vm.note(("h", kp), 2)
        return koff("s31", ORDER[kp]) + ["s_add_u32 s27, s31, s24", "s_add_u32 s31, s31, s25",
                                  f"buffer_load_dwordx4 v[{H+8*sl}:{H+8*sl+3}], v{VHO}, s[12:15], s27 offen {SCL}",
                                  f"buffer_load_dwordx4 v[{H+8*sl+4}:{H+8*sl+7}], v{VHO}, s[12:15], s31 offen {SCL}"]
    for kp in range(HD): A.extend(hload(kp))
    inring = lambda k: ORDER[k] >= 12
    wset = lambda k: (k % 2) if inring(k) else ORDER[k]
    slot_of = lambda k: (ORDER[k] - 12) % 12
    for kp in range(28):
        nx = kp + 1
        if nx < 28 and inring(nx):
            A.extend(vm.wait(("w", ORDER[nx])))
            A.extend(w2tr(slot_of(nx), wset(nx), VTR2))
        if inring(kp): A(f"s_waitcnt lgkmcnt({4 if (nx < 28 and inring(nx)) else 0})")
        A.extend(vm.wait(("h", kp)))
        if kp in (4, 9, 14, 19): A.st(f"k{kp}")
        b = W + 8 * wset(kp); sl = kp % HD
        for tb in range(2):
            for db in range(2):
                c = ACC + 32 * tb + 16 * db
                cin = "0" if kp == 0 else f"v[{c}:{c+15}]"
                A(f"v_mfma_f32_32x32x16_bf16 v[{c}:{c+15}], v[{b+4*db}:{b+4*db+3}], v[{H+8*sl+4*tb}:{H+8*sl+4*tb+3}], {cin}")
        if kp == 0: A.st("k0")
        if kp + HD < 28: A.extend(hload(kp + HD))
        if 12 <= ORDER[kp] < 16:
            A.extend(wdma(ORDER[kp] - 12, ORDER[kp] + 12)); vm.note(("w", ORDER[kp] + 12), 2)
        if kp == 19:
            A.extend(ep_loads()); vm.note("ep", 2)
        if kp == env("SIGK", 18):
            A(f"""
            s_lshl_b32 s28, s20, 2
            s_add_u32 s28, s28, {L_FLAG+48}
            v_mov_b32 v{VT}, s28
            v_mov_b32 v{W}, 1
            ds_write_b32 v{VT}, v{W}
            """)
    A.st("s7")
    for tb in range(2):
        for db in range(2):
            for q in range(4):
                c = ACC + 32 * tb + 16 * db + 4 * q
                A(f"ds_write_b128 v{VP+q}, v[{c}:{c+3}] offset:{tb*32768+db*128}")
    A("s_waitcnt vmcnt(0) lgkmcnt(0)")
    A("s_branch L_final")


def gen_conv(A):
    if PRIO_C: A(f"s_setprio {PRIO_C}")
    VTA, VF = 32, 36
    VXN, VBW, VOWN, VPAR = 37, 38, 39, 40
    T0 = 42
    dsk = P0 + 7
    ACC = 48; FB = [80, 112]; TB = [144, 208]
    XN = 196
    final_addr(A)
    A(f"""
    s_mov_b32 s21, s39
    s_lshr_b32 s35, s21, 1
    s_and_b32 s36, s21, 1
    s_mul_i32 s38, s35, {CH_SIZE}
    s_add_u32 s38, s38, {L_CH}
    s_lshl_b32 s27, s21, 13
    s_add_u32 s27, s27, {L_ST2}
    s_xor_b32 s32, s27, {ST2}
    v_and_b32 v{T0}, 15, v0
    v_lshrrev_b32 v{T0+1}, 4, v0
    v_and_b32 v{T0+2}, 1, v0
    v_mul_u32_u24 v{T0+2}, {OFF_O + 2 - OFF_E}, v{T0+2}
    s_lshl_b32 s31, s36, 8
    s_sub_u32 s31, s38, s31
    s_add_u32 s29, s31, {OFF_O + 2*2032 - 512 - 192}
    v_lshlrev_b32 v{T0+3}, 1, v{T0}
    v_sub_u32 v{VTA}, s29, v{T0+3}
    v_lshl_add_u32 v{VTA}, v{T0+1}, 4, v{VTA}
    v_sub_u32 v{VTA}, v{VTA}, v{T0+2}
    v_subrev_u32 v{VTA+1}, 1024, v{VTA}
    v_subrev_u32 v{VTA+2}, 2048, v{VTA}
    v_subrev_u32 v{VTA+3}, 3072, v{VTA}
    """)
    def freads(rr, fb): return [f"ds_read_b128 v[{fb+4*m}:{fb+4*m+3}], v{VF} offset:{512*m + 64*(3-rr)}" for m in range(8)]
    def treads(rr, tb):
        o = []
        for i in range(8):
            off = 128 * (1 - (i & 1)) + 16 * (3 - rr)
            o.append(f"ds_read2_b32 v[{tb+4*i}:{tb+4*i+1}], v{VTA+i//2} offset0:{off} offset1:{off+1}")
            o.append(f"ds_read2_b32 v[{tb+4*i+2}:{tb+4*i+3}], v{VTA+i//2} offset0:{off+2} offset1:{off+3}")
        return o
    A(f"""
    v_lshl_add_u32 v19, v0, 4, s38
    s_add_u32 s29, s31, {480 - 192}
    v_lshlrev_b32 v{VF}, 5, v{T0}
    v_lshl_add_u32 v{VF}, v{T0+1}, 4, v{VF}
    v_add_u32 v{VF}, s29, v{VF}
    v_lshlrev_b32 v{VXN}, 5, v{T0}
    v_lshl_add_u32 v{VXN}, v{T0+1}, 3, v{VXN}
    v_add_u32 v{VBW}, s27, v{VXN}
    s_lshl_b32 s28, s36, 11
    s_add_u32 s28, s28, s38
    v_add_u32 v{VXN}, s28, v{VXN}
    v_lshl_add_u32 v{VOWN}, v0, 4, s27
    v_lshl_add_u32 v{VPAR}, v0, 4, s32
    v_mov_b32 v13, 1
    s_lshl_b32 s29, s21, 2
    s_add_u32 s29, s29, {L_FLAG}
    v_mov_b32 v14, s29
    s_xor_b32 s29, s29, 4
    v_mov_b32 v15, s29
    v_lshlrev_b32 v18, 4, v0
    """)
    A(f"""
    L_cv_ex:
    ds_read_b32 v16, v15 offset:64
    s_waitcnt lgkmcnt(0)
    v_readfirstlane_b32 s28, v16
    s_cmp_eq_u32 s28, 1
    s_cbranch_scc0 L_cv_ex
    """)
    A.extend(treads(0, TB[0]))
    A("s_cmp_eq_u32 s37, 1")
    A("s_cbranch_scc1 L_cv_uok")
    u_spin(A, 20, 18)
    A.label("L_cv_uok")
    A("s_waitcnt vmcnt(0)")
    for k in range(4): A(f"ds_write_b128 v19, v[{XL+4*k}:{XL+4*k+3}] offset:{512 + k*1024}")
    A.extend(freads(0, FB[0]))
    A.st("s4")
    if GPK:
        A(f"""
        v_mov_b32 v17, {L_FLAG+32}
        L_cv_gd:
        ds_read_b128 v[20:23], v17
        s_waitcnt lgkmcnt(0)
        v_and_b32 v20, v20, v21
        v_and_b32 v22, v22, v23
        v_and_b32 v20, v20, v22
        s_nop 0
        v_readfirstlane_b32 s28, v20
        s_cmp_eq_u32 s28, 1
        s_cbranch_scc0 L_cv_gd
        """)
    A.st("s5")
    for rp in range(4):
        fb, tb = FB[rp % 2], TB[rp % 2]
        mm = []
        for i in range(8):
            for j in range(i, 8):
                cin = "0" if (rp == 0 and i == 0) else f"v[{ACC+4*j}:{ACC+4*j+3}]"
                mm.append(f"v_mfma_f32_16x16x32_bf16 v[{ACC+4*j}:{ACC+4*j+3}], v[{tb+4*i}:{tb+4*i+3}], v[{fb+4*(j-i)}:{fb+4*(j-i)+3}], {cin}")
        if rp == 1: A.extend(ep_loads())
        if HT and rp == env("HTP", 3):
            A(f"""
            s_lshl_b32 s28, s24, 2
            s_add_u32 s28, s28, s21
            s_mul_i32 s28, s28, {56*128}
            s_mul_i32 s29, s23, {8*112*1024}
            s_add_u32 s28, s28, s29
            s_add_u32 s28, s28, {WS_HF}
            v_min_u32 v{T0}, 55, v0
            v_lshlrev_b32 v{T0}, 7, v{T0}
            buffer_load_dword v20, v{T0}, s[12:15], s28 offen {SC}
            """)
        if rp == 0:
            o = []
            for j in range(8): o += [f"s_waitcnt lgkmcnt({7-j})", mm[j]]
            mm = o + interleave(mm[8:], freads(1, FB[1]) + treads(1, TB[1]), 0, 22)
        else:
            A("s_waitcnt lgkmcnt(0)")
            if rp < 3: mm = interleave(mm, freads(rp + 1, FB[(rp + 1) % 2]) + treads(rp + 1, TB[(rp + 1) % 2]), 0, 26)
            else: mm = interleave(mm, [f"ds_read_b64 v[{XN+2*a_}:{XN+2*a_+1}], v{VXN} offset:{512 + a_*512}" for a_ in range(4)], 0, 8)
        A.extend(mm)
    A.st("s6")
    A("s_cmp_eq_u32 s36, 1")
    A("s_cbranch_scc1 L_cv_x1")
    for a_ in range(4): A(f"ds_write_b128 v{VOWN}, v[{ACC+16+4*a_}:{ACC+16+4*a_+3}] offset:{4096 + a_*1024}")
    A("ds_write_b32 v14, v13")
    A("s_branch L_cv_out")
    A.label("L_cv_x1")
    A("s_nop 7")
    for a_ in range(4): A(f"ds_write_b128 v{VOWN}, v[{ACC+4*a_}:{ACC+4*a_+3}] offset:{4096 + a_*1024}")
    A("ds_write_b32 v14, v13")
    for k in range(16): A(f"v_mov_b32 v{ACC+k}, v{ACC+16+k}")
    A.label("L_cv_out")
    A(f"""
    """)
    A.extend(ya_addr(41, T0))
    A(f"""
    v_mov_b32 v{T0+2}, 0xfffffffe
    s_waitcnt lgkmcnt(5)
    """)
    t = 80; z = 96; YP = 112
    for k in range(8):
        A(f"v_lshlrev_b32 v{t+2*k}, 16, v{XN+k}")
        A(f"v_and_b32 v{t+2*k+1}, 0xffff0000, v{XN+k}")
    for k in range(16): A(f"v_fma_f32 v{ACC+k}, v{t+k}, v{dsk}, v{ACC+k}")
    A.label("L_cv_ps1")
    A(f"""
    ds_read_b32 v16, v15
    s_waitcnt lgkmcnt(0)
    v_readfirstlane_b32 s28, v16
    s_cmp_eq_u32 s28, 1
    s_cbranch_scc0 L_cv_ps1
    """)
    for a_ in range(4): A(f"ds_read_b128 v[{YP+4*a_}:{YP+4*a_+3}], v{VPAR} offset:{4096 + a_*1024}")
    for a_ in range(4):
        A("s_waitcnt lgkmcnt(3)")
        for k in range(4): A(f"v_add_f32 v{ACC+4*a_+k}, v{ACC+4*a_+k}, v{YP+4*a_+k}")
        for k in range(2): A(f"v_cvt_pk_bf16_f32 v{z+2*a_+k}, v{ACC+4*a_+2*k}, v{ACC+4*a_+2*k+1}")
        for k in range(2): A(f"v_min_u32 v{z+2*a_+k}, v{z+2*a_+k}, v{T0+2}")
        A(f"ds_write_b64 v{VBW}, v[{z+2*a_}:{z+2*a_+1}] offset:{a_*512}")
    for h in range(2): A(f"ds_read_b128 v[{t+4*h}:{t+4*h+3}], v{VOWN} offset:{h*1024}")
    for h in range(2):
        A(f"s_waitcnt lgkmcnt({1-h})")
        A(f"buffer_store_dwordx4 v[{t+4*h}:{t+4*h+3}], v41, s[12:15], s{30+h} offen {SC}")
    Y = 160
    A(f"""
    v_lshlrev_b32 v{T0}, 8, v1
    v_lshl_add_u32 v{T0}, v2, 4, v{T0}
    s_lshl_b32 s28, s79, 5
    s_add_u32 s28, s28, s78
    s_lshl_b32 s28, s28, 13
    s_lshl_b32 s29, s21, 11
    s_add_u32 s28, s28, s29
    s_add_u32 s28, s28, {WS_YA}
    v_lshlrev_b32 v{T0+1}, 8, v2
    v_lshl_add_u32 v{T0+1}, v2, 4, v{T0+1}
    v_lshl_add_u32 v{T0+1}, v1, 2, v{T0+1}
    v_add_u32 v{T0+1}, s27, v{T0+1}
    v_mov_b32 v{T0+3}, 0x05040100
    v_mov_b32 v{T0+4}, 0x07060302
    s_mov_b32 s30, 0
    """)
    A.st("s7")
    A(f"""
    v_mov_b32 v17, {L_FLAG+48}
    L_cv_w19:
    s_sleep 2
    ds_read_b128 v[20:23], v17
    s_waitcnt lgkmcnt(0)
    v_and_b32 v20, v20, v21
    v_and_b32 v22, v22, v23
    v_and_b32 v20, v20, v22
    s_nop 0
    v_readfirstlane_b32 s29, v20
    s_cmp_eq_u32 s29, 1
    s_cbranch_scc0 L_cv_w19
    L_cv_poll2:
    buffer_load_dwordx4 v[{Y}:{Y+3}], v{T0}, s[12:15], s28 offen {SC}
    buffer_load_dwordx4 v[{Y+4}:{Y+7}], v{T0}, s[12:15], s28 offen offset:128 {SC}
    s_waitcnt vmcnt(0)
    v_max_u32 v{Y+8}, v{Y}, v{Y+1}
    v_max3_u32 v{Y+8}, v{Y+8}, v{Y+2}, v{Y+3}
    v_max3_u32 v{Y+8}, v{Y+8}, v{Y+4}, v{Y+5}
    v_max3_u32 v{Y+8}, v{Y+8}, v{Y+6}, v{Y+7}
    v_cmp_eq_u32 vcc, -1, v{Y+8}
    s_cbranch_vccz L_cv_got
    s_sleep 4
    s_add_u32 s30, s30, 1
    s_cmp_lt_u32 s30, {SPIN}
    s_cbranch_scc1 L_cv_poll2
    """)
    A.label("L_cv_got")
    A.st("got")
    for k in range(4):
        A(f"v_perm_b32 v{Y+8+2*k}, v{Y+4+k}, v{Y+k}, v{T0+3}")
        A(f"v_perm_b32 v{Y+9+2*k}, v{Y+4+k}, v{Y+k}, v{T0+4}")
    for i in range(8): A(f"ds_write_b32 v{T0+1}, v{Y+8+i} offset:{i*32}")
    A("s_waitcnt lgkmcnt(0)")


def gen_final(A):
    P = 32
    A(f"""
    v_lshlrev_b32 v13, 1, v2
    v_xor_b32 v13, v13, v1
    v_lshlrev_b32 v13, 4, v13
    v_lshl_add_u32 v13, v1, 8, v13
    s_and_b32 s28, s20, 3
    s_lshl_b32 s28, s28, 11
    s_lshr_b32 s29, s20, 2
    s_lshl_b32 s29, s29, 15
    s_add_u32 s28, s28, s29
    v_add_u32 v13, s28, v13
    v_xor_b32 v14, 16, v13
    v_lshrrev_b32 v15, 1, v2
    v_lshlrev_b32 v15, 13, v15
    v_lshl_add_u32 v15, v1, 5, v15
    v_and_b32 v16, 1, v2
    v_lshl_add_u32 v15, v16, 4, v15
    s_mul_i32 s28, s20, 272
    s_add_u32 s28, s28, {L_ST2}
    v_add_u32 v15, s28, v15
    """)
    srd(A, 8, "s52", "s53", 2 << 20)
    X, Yv, B = 64, 72, 80
    def unpack(d, s_):
        for k in range(4):
            A(f"v_lshlrev_b32 v{d+2*k}, 16, v{s_+k}")
            A(f"v_and_b32 v{d+2*k+1}, 0xffff0000, v{s_+k}")
    def pack(d, s_):
        for k in range(4): A(f"v_cvt_pk_bf16_f32 v{d+k}, v{s_+2*k}, v{s_+2*k+1}")
    unpack(X, VX); unpack(B, VB2)
    A("s_barrier")
    A.st("fin")
    A(f"ds_read_b128 v[16:19], v15")
    for w in range(4):
        A(f"ds_read_b128 v[{P+8*w}:{P+8*w+3}], v13 offset:{w*8192}")
        A(f"ds_read_b128 v[{P+8*w+4}:{P+8*w+7}], v14 offset:{w*8192}")
    A("s_waitcnt lgkmcnt(8)")
    unpack(Yv, 16)
    for k in range(8): A(f"v_add_f32 v{X+k}, v{X+k}, v{Yv+k}")
    pack(20, X); unpack(X, 20)
    A("s_waitcnt lgkmcnt(4)")
    for k in range(8): A(f"v_add_f32 v{P+k}, v{P+k}, v{P+8+k}")
    A("s_waitcnt lgkmcnt(0)")
    for k in range(8): A(f"v_add_f32 v{P+16+k}, v{P+16+k}, v{P+24+k}")
    for k in range(8): A(f"v_add_f32 v{P+k}, v{P+k}, v{P+16+k}")
    pack(24, P); unpack(P, 24)
    for k in range(8): A(f"v_add_f32 v{P+k}, v{P+k}, v{B+k}")
    pack(24, P); unpack(P, 24)
    for k in range(8): A(f"v_add_f32 v{P+k}, v{P+k}, v{X+k}")
    pack(28, P)
    A(f"buffer_store_dwordx4 v[28:31], v{VOO}, s[8:11], s33 offen")
    if STAMPS: A("s_waitcnt vmcnt(0)")
    A.stamp_flush(0)
    A("s_endpgm")


def gen():
    A = Asm()
    A.stamp(0, True); A.stamp(1)
    for k in range(2, 9): A.stamp(k)
    A(f"""
    s_cmp_ge_u32 s2, 256
    s_cbranch_scc1 L_exit
    s_load_dwordx2 s[40:41], s[0:1], {KA['u']}
    s_load_dwordx8 s[44:51], s[0:1], {KA['w1']}
    s_load_dwordx4 s[52:55], s[0:1], {KA['out']}
    s_load_dwordx2 s[42:43], s[0:1], {KA['ws']}
    v_lshrrev_b32 v1, 6, v0
    v_and_b32 v0, 63, v0
    s_and_b32 s23, s2, 7
    s_lshr_b32 s24, s2, 3
    v_readfirstlane_b32 s20, v1
    s_and_b32 s25, s24, 3
    s_lshr_b32 s79, s24, 2
    s_lshl_b32 s78, s23, 2
    s_add_u32 s78, s78, s25
    s_mul_i32 s74, s79, {3584 if ROT & 1 else 0}
    s_and_b32 s74, s74, 0xfffffc00
    s_mul_i32 s75, s25, {7168 if ROT & 2 else 0}
    s_add_u32 s74, s74, s75
    s_sub_u32 s75, s74, {28*1024}
    s_min_u32 s74, s74, s75
    s_mov_b32 s77, 1
    s_and_b32 s39, s20, 3
    s_cmp_eq_u32 s79, 7
    s_cbranch_scc1 L_ln
    """)
    if LOC:
        A("""
        s_and_b32 s21, s24, 1
        s_lshl_b32 s22, s23, 1
        s_add_u32 s21, s21, s22
        s_lshr_b32 s22, s24, 1
        """)
    else:
        A("""
        s_lshr_b32 s21, s23, 1
        s_lshl_b32 s21, s21, 2
        s_add_u32 s21, s21, s25
        s_and_b32 s22, s23, 1
        s_mul_i32 s22, s22, 7
        s_add_u32 s22, s22, s79
        """)
    gen_gemm1(A)
    A.label("L_ln")
    A("s_nop 0 ; RESETSB")
    A("s_mov_b32 s21, s78")
    gen_ln(A)
    A.label("L_gemm2")
    A("s_nop 1 ; RESETSB")
    gen_gemm2(A)
    A.label("L_conv")
    A("s_nop 1 ; RESETSB")
    gen_conv(A)
    A.label("L_final")
    A("s_nop 7")
    gen_final(A)
    A.label("L_exit")
    A("s_endpgm")
    lines = fix_hazards(A.lines, verbose=True)
    check_waits(lines, "s")
    head = open("parallel_sum__ssm_conv_s4__dense_activation_gelu__prompt.s.ref").read().split("; Override launch")[0]
    head += f"; @launch grid=(256,1,1) block=(512,1,1) lds={LDS_TOTAL}\n.amdgcn_target \"amdgcn-amd-amdhsa--gfx950\"\n"
    return head + kernel_section(KNAME, lines, 256, 102, 256)

if __name__ == "__main__":
    out = sys.argv[1] if len(sys.argv) > 1 else "cur8.s"
    open(out, "w").write(gen())
    print("wrote", out)
```

```python
from asmlib import *
import struct, math, os, sys

def f2u(x): return struct.unpack("<I", struct.pack("<f", x))[0]
def env(n, d): return int(os.environ.get(n, str(d)))

KNAME = "parallel_sum__ssm_conv_s4__dense_activation_gelu__prompt_kernel"
KA = dict(u=0, A_re=8, A_im=16, B_re=24, B_im=32, C_re=40, C_im=48, log_dt=56, Dskip=64, Bx=72, w1=80, b1=88, w2=96, b2=104,
          out=112, dbg=120, ws=128)
WS_FLL = 32768
WS_EPOCH = 49152
WS_DUMMY = 53248
WS_STAT = 65536
WS_FLH = 131072
WS_FLY = 262144
WS_HF = 1 << 20
WS_XNT = 8 << 20
WS_YA = 12 << 20
WS_USED = 14 << 20

LOG2E = 1.4426950408889634
GC1 = -2.0 * LOG2E * 0.7978845608028654
GC2 = GC1 * 0.044715

NS, STAGE = 4, 32768
RSL = 12
RING = RSL * 2048
L_KST = 98304; KST = 8704
L_ST2 = 98304; ST2 = 8192
L_CH = 131072; CH_SIZE = 13056
OFF_E, OFF_O = 4608, 8768
L_FLAG = L_CH + 2 * CH_SIZE
L_CS = L_FLAG + 512
LDS_TOTAL = 163840
L_VS = 98304; L_US = 98304

OPT_PF = env("PF", 1)
PRE = env("PRE", 3)
PRIO_C = env("PRIOC", 1)
PRIO_G = env("PRIOG", 0)
PRIO_E = env("PRIOE", 0)
ROT = env("ROT", 3)
BARP = env("BARP", 2)
STATG = env("STATG", 21)
SC = os.environ.get("SC", "sc1")
PFG = [int(x) for x in os.environ.get("PFG", "").split(",") if x]
HD = 9
WSOFF = env('WSOFF', 0) << 20
SCH = os.environ.get('SCH', SC)
LOC = env('LOC', 0)
GPK = env('GPK', 0)
ULN = env('ULN', 3)
HT = env('HT', 0)
SCL = os.environ.get('SCL', SC)
SPIN = 0x40000

DK, DP, EX, P0 = 224, 128, 160, 244
BF, AF, KG_G, KG_E1, KG_L, KG_V, KG_PK, KG_VW, KG_VRD = 160, 192, 108, 122, 224, 124, 132, 136, 137
L_KS2 = 131072; KS2 = 4352
XL = 180
VDUM, LNF = 252, 253
VX, VB2, VOO = 4, 8, 12
VW2 = 23
W2R, HR, ACC2 = 160, 88, 24
VTL = 24

def srd(A, d, lo, hi, size):
    A(f"s_mov_b32 s{d}, {lo}\ns_mov_b32 s{d+1}, {hi}\ns_mov_b32 s{d+2}, {size}\ns_mov_b32 s{d+3}, 0x00020000")
def round_bf16(A, r):
    A(f"v_cvt_pk_bf16_f32 v{r}, v{r}, v{r}")
    A(f"v_and_b32 v{r}, 0xffff0000, v{r}")
def zipm(*lists):
    o = []
    for k in range(max(len(l) for l in lists)):
        for l in lists:
            if k < len(l): o.append(l[k])
    return o
def mask(lo, hi=None):
    hi = lo if hi is None else hi
    return [f"s_mov_b32 s28, {lo}", f"s_mov_b32 s29, {hi}"]

class VMQ:
    def __init__(self): self.q = []
    def note(self, tag, n=1): self.q.extend([tag] * n)
    def wait(self, *tags):
        idx = max((k for k, t in enumerate(self.q) if t in tags), default=-1)
        if idx < 0: return []
        n = len(self.q) - 1 - idx
        del self.q[:idx + 1]
        return [f"s_waitcnt vmcnt({n})"]
    def younger(self): return len(self.q)

ORDER = [0, 1] + list(range(12, 24)) + list(range(2, 12)) + list(range(24, 28))

def koff(dst, lab, base="s74"):
    return [f"s_add_u32 {dst}, {base}, {lab*1024}", f"s_sub_u32 s75, {dst}, {28*1024}", f"s_min_u32 {dst}, {dst}, s75"]

def slot_addr(sl): return (sl >> 2) * 32768 + (sl & 3) * 2048

def w2_setup(A, vt):
    srd(A, 16, "s48", "s49", 1792 * 1024)
    A(f"""
    v_lshrrev_b32 v{vt}, 2, v0
    v_and_b32 v{vt}, 4, v{vt}
    v_and_b32 v{vt+1}, 7, v0
    v_xor_b32 v{vt}, v{vt}, v{vt+1}
    v_lshrrev_b32 v{vt+1}, 3, v0
    v_lshlrev_b32 v{VW2}, 10, v{vt+1}
    v_lshl_add_u32 v{VW2}, v{vt}, 4, v{VW2}
    s_mul_i32 s72, s39, {448*1024}
    s_lshl_b32 s75, s79, 7
    s_add_u32 s72, s72, s75
    s_lshl_b32 s73, s39, 13
    v_lshrrev_b32 v{vt+1}, 5, v0
    v_bfe_u32 v{vt}, v0, 2, 2
    v_lshl_add_u32 v{VTL}, v{vt+1}, 2, v{vt}
    v_lshlrev_b32 v{VTL}, 7, v{VTL}
    v_bfe_u32 v{vt}, v0, 4, 1
    v_lshl_add_u32 v{VTL}, v{vt}, 5, v{VTL}
    v_and_b32 v{vt}, 3, v0
    v_lshl_add_u32 v{VTL}, v{vt}, 3, v{VTL}
    v_bfe_u32 v{vt}, v0, 3, 1
    v_lshl_add_u32 v{VTL}, v{vt}, 6, v{VTL}
    v_add_u32 v{VTL}, s73, v{VTL}
    v_xor_b32 v{VTL+1}, 64, v{VTL}
    v_add_u32 v{VTL+2}, 0x10000, v{VTL}
    v_add_u32 v{VTL+3}, 0x10000, v{VTL+1}
    """)
def wdma(slot, lab):
    a_ = slot_addr(slot)
    return koff("s31", lab) + [f"s_add_u32 m0, s73, {a_}", "s_lshl4_add_u32 s31, s31, s72",
                               f"buffer_load_dwordx4 v{VW2}, s[16:19], s31 offen lds",
                               f"s_add_u32 m0, s73, {a_+1024}", "s_add_u32 s31, s31, 8192",
                               f"buffer_load_dwordx4 v{VW2}, s[16:19], s31 offen lds"]
def w2tr(slot, ws_, vtl=VTL):
    b = W2R + 8 * ws_; a_ = slot_addr(slot); hi = a_ >> 16; a_ &= 0xffff
    return [f"ds_read_b64_tr_b16 v[{b+4*db+2*sec}:{b+4*db+2*sec+1}], v{vtl+2*hi+db} offset:{a_+sec*1024}" for db in range(2) for sec in range(2)]

def param_loads(A, vt):
    A(f"""
    s_lshr_b32 s28, s39, 1
    s_lshl_b32 s30, s2, 1
    s_add_u32 s30, s30, s28
    v_lshlrev_b32 v{vt}, 1, v0
    v_mov_b32 v{vt+1}, 0
    s_lshl_b32 s29, s30, 8
    s_and_b32 s28, s20, 1
    s_lshl_b32 s28, s28, 7
    s_add_u32 s29, s29, s28
    s_lshl_b32 s30, s30, 1
    s_mov_b32 s18, 1024
    s_mov_b32 s19, 0x00020000
    """)
    for k in range(8): A(f"v_mov_b32 v{P0+k}, 0")
    A("s_waitcnt lgkmcnt(0)")
    for k in (6, 7, 0, 1, 2, 3, 4, 5):
        if k == 0: A("s_mov_b32 s18, 131072")
        A(f"s_mov_b32 s16, s{56+2*k}\ns_mov_b32 s17, s{57+2*k}")
        if k < 6: A(f"buffer_load_short_d16_hi v{P0+k}, v{vt}, s[16:19], s29 offen")
        else: A(f"buffer_load_short_d16_hi v{P0+k}, v{vt+1}, s[16:19], s30 offen")

def lnflag_load(vt):
    return ["s_lshl_b32 s29, s79, 6", "s_lshl_b32 s28, s39, 4", "s_add_u32 s29, s29, s28", "s_lshr_b32 s28, s78, 4", "s_lshl_b32 s28, s28, 9",
            "s_add_u32 s29, s29, s28", "s_lshl_b32 s29, s29, 7", f"s_add_u32 s29, s29, {WS_FLY}",
            f"v_lshlrev_b32 v{vt}, 7, v0", f"v_add_u32 v{vt}, {WS_FLL}, v{vt}",
            f"v_and_b32 v{vt+1}, 15, v0", f"v_lshl_add_u32 v{vt+1}, v{vt+1}, 7, s29", "s_mov_b32 s28, 0", "s_mov_b32 s29, -1",
            f"v_cndmask_b32 v{vt}, v{vt}, v{vt+1}, s[28:29]",
            f"buffer_load_dword v{LNF}, v{vt}, s[12:15], 0 offen {SC}"]

def u_issue(A, vl16):
    A(f"""
    s_lshr_b32 s28, s39, 1
    s_lshl_b32 s29, s2, 1
    s_add_u32 s29, s29, s28
    s_lshl_b32 s29, s29, 12
    s_add_u32 s29, s29, {WS_XNT}
    """)
    for k in range(4): A(f"buffer_load_dwordx4 v[{XL+4*k}:{XL+4*k+3}], v{vl16}, s[12:15], s29 offen offset:{k*1024} {SC}")

def u_try(A, vl16):
    A(f"""
    v_cmp_ne_u32 vcc, s76, v{LNF}
    s_mov_b32 s37, 0
    s_cbranch_vccnz L_ut_no
    s_mov_b32 s37, 1
    """)
    u_issue(A, vl16)
    A.label("L_ut_no")

def u_spin(A, vt, vl16, tag=''):
    A("s_mov_b32 s30, 0")
    A.label(f"L_us_poll{tag}")
    A.extend(lnflag_load(vt))
    A(f"""
    s_add_u32 s30, s30, 1
    s_waitcnt vmcnt(0)
    v_cmp_ne_u32 vcc, s76, v{LNF}
    s_cmp_gt_u32 s30, {SPIN}
    s_cbranch_scc1 L_us_ok{tag}
    s_cbranch_vccnz L_us_poll{tag}
    """)
    A.label(f"L_us_ok{tag}")
    u_issue(A, vl16)
    A("s_waitcnt vmcnt(0)")

def ya_addr(vd, vt):
    return [f"v_lshrrev_b32 v{vd}, 3, v0", f"v_and_b32 v{vt}, 7, v0", f"v_lshlrev_b32 v{vd}, 13, v{vd}", f"v_lshl_add_u32 v{vd}, v{vt}, 4, v{vd}",
            "s_lshr_b32 s28, s39, 1", "s_lshl_b32 s31, s2, 1", "s_add_u32 s31, s31, s28",
            "s_lshr_b32 s29, s31, 6", "s_lshl_b32 s29, s29, 18", "s_and_b32 s28, s31, 63", "s_lshl_b32 s28, s28, 7", "s_add_u32 s29, s29, s28",
            f"s_add_u32 s29, s29, {WS_YA}", "s_and_b32 s30, s39, 1", "s_lshl_b32 s30, s30, 17", "s_add_u32 s30, s30, s29", "s_add_u32 s31, s30, 65536"]
def ya_prefill(vd, vt, vm4):
    return ya_addr(vd, vt) + [f"v_mov_b32 v{vm4+k}, -1" for k in range(4)] + \
           [f"buffer_store_dwordx4 v[{vm4}:{vm4+3}], v{vd}, s[12:15], s{30+h} offen {SC}" for h in range(2)]

def publish_flag(A, soff, vt, tag, wave, both=False):
    A(f"""
    s_cmp_lg_u32 s20, {wave}
    s_cbranch_scc1 L_pub_skip{tag}
    v_mov_b32 v{vt}, 0
    v_mov_b32 v{vt+1}, s76
    s_mov_b64 exec, 1
    buffer_store_dword v{vt+1}, v{vt}, s[12:15], {soff} offen {SC}
    """)
    if both:
        A(f"""
        s_lshl_b32 s28, s2, 7
        s_add_u32 s28, s28, {WS_FLW}
        buffer_store_dword v{vt+1}, v{vt}, s[12:15], s28 offen {SC}
        """)
    A(f"""
    s_mov_b64 exec, -1
    L_pub_skip{tag}:
    """)
def mktag(A):
    A("s_mul_i32 s76, s76, 0x9E3779B1")
    A("s_add_u32 s76, s76, 0x7F4A7C15")
def arrive(A, tag):
    A(f"""
    s_cmp_lg_u32 s20, 3
    s_cbranch_scc1 L_arr{tag}
    s_atomic_add s77, s[54:55], 0 glc
    L_arr{tag}:
    """)

def coop_prefetch(A, vt):
    A(f"""
    s_lshl_b32 s28, s24, 2
    s_add_u32 s28, s28, s39
    s_lshl_b32 s30, s28, 6
    v_add_u32 v{vt}, s30, v0
    v_mul_u32_u24 v{vt+1}, 0x4925, v{vt}
    v_lshrrev_b32 v{vt+1}, 18, v{vt+1}
    v_mul_u32_u24 v{vt+2}, 14, v{vt+1}
    v_sub_u32 v{vt}, v{vt}, v{vt+2}
    v_lshlrev_b32 v{vt}, 7, v{vt}
    v_mul_u32_u24 v{vt+1}, 3584, v{vt+1}
    v_add_u32 v{vt}, v{vt}, v{vt+1}
    s_and_b32 s29, s23, 1
    s_mul_i32 s29, s29, 1792
    buffer_load_dword v{VDUM}, v{vt}, s[8:11], s29 offen
    s_lshr_b32 s29, s23, 1
    s_lshl_b32 s29, s29, 19
    s_lshl_b32 s30, s28, 13
    s_add_u32 s29, s29, s30
    s_cmp_lt_u32 s28, 64
    s_cselect_b32 s29, s29, 0x400000
    v_lshlrev_b32 v{vt+2}, 7, v0
    buffer_load_dword v{VDUM}, v{vt+2}, s[4:7], s29 offen
    """)
def w2_prefetch(vt, piece):
    return ["s_lshl_b32 s28, s24, 2", "s_add_u32 s28, s28, s39", "s_lshl_b32 s28, s28, 14", f"s_add_u32 s28, s28, {piece*8192}",
            f"v_lshlrev_b32 v{vt}, 7, v0", f"buffer_load_dword v{VDUM}, v{vt}, s[16:19], s28 offen"]

def cmul(d, x, y, pk=True):
    P = lambda r: f"v[{r}:{r+1}]"
    assert d != x and d != y
    if pk:
        return [f"v_pk_mul_f32 {P(d)}, {P(x)}, {P(y)} op_sel:[0,0] op_sel_hi:[0,1]",
                f"v_pk_fma_f32 {P(d)}, {P(x)}, {P(y)}, {P(d)} op_sel:[1,1,0] op_sel_hi:[1,0,1] neg_lo:[0,1,0]"]
    return [f"v_mul_f32 v{d}, v{x}, v{y}", f"v_mul_f32 v{d+1}, v{x}, v{y+1}",
            f"v_fma_f32 v{d}, -v{x+1}, v{y+1}, v{d}", f"v_fma_f32 v{d+1}, v{x+1}, v{y}, v{d+1}"]

def kg_common(A, base, T0, Z, WA):
    ar, ai, br, bi, cr, ci, ld, dsk = range(P0, P0 + 8)
    u_ = f2u(LOG2E) & 0xFFFFFF00
    lh = struct.unpack("<f", struct.pack("<I", u_))[0]; ll = LOG2E - lh
    A(f"""
    v_mul_f32 v{T0}, {hex(f2u(lh))}, v{ld}
    v_mul_f32 v{T0+1}, {hex(f2u(ll * math.log(2)))}, v{ld}
    v_exp_f32 v{T0}, v{T0}
    s_nop 0
    v_fma_f32 v{T0}, v{T0}, v{T0+1}, v{T0}
    """)
    round_bf16(A, T0)
    A(f"""
    v_mul_f32 v{Z}, v{T0}, v{ar}
    v_mul_f32 v{Z+1}, v{T0}, v{ai}
    v_mul_f32 v{br}, v{T0}, v{br}
    v_mul_f32 v{bi}, v{T0}, v{bi}
    v_mul_f32 v{Z}, {hex(f2u(LOG2E))}, v{Z}
    v_mul_f32 v{Z+1}, 0.15915494, v{Z+1}
    """)
def kg_waddr(A, base, WA):
    A(f"s_lshl_b32 s28, s39, 13\ns_add_u32 s28, s28, {base}\nv_lshl_add_u32 v{WA}, v0, 2, s28")
    for k in range(1, 16): A(f"v_xor_b32 v{WA+k}, {16*k}, v{WA}")
def kg_raddr(base, d, t):
    o = ["s_lshl_b32 s28, s39, 13", f"s_add_u32 s28, s28, {base}", f"v_and_b32 v{t}, 15, v0", f"v_lshrrev_b32 v{t+1}, 5, v0", f"v_xor_b32 v{t}, v{t}, v{t+1}",
         f"v_and_b32 v{t+1}, 31, v0", f"v_lshlrev_b32 v{t+1}, 8, v{t+1}", f"v_lshl_add_u32 v{d}, v{t}, 4, v{t+1}", f"v_add_u32 v{d}, s28, v{d}"]
    return o + [f"v_xor_b32 v{d+k}, {32*k}, v{d}" for k in range(1, 8)]
def cexp(d, x, t, Z):
    xs = {1: None, 8: hex(f2u(8.0)), 256: hex(f2u(256.0))}[x]
    o = []
    if xs is None: o += [f"v_exp_f32 v{t}, v{Z}", f"v_fract_f32 v{t+1}, v{Z+1}"]
    else: o += [f"v_mul_f32 v{t}, {xs}, v{Z}", f"v_mul_f32 v{t+1}, {xs}, v{Z+1}", f"v_exp_f32 v{t}, v{t}", f"v_fract_f32 v{t+1}, v{t+1}"]
    o += [f"v_cos_f32 v{d}, v{t+1}", f"v_sin_f32 v{d+1}, v{t+1}", f"v_mul_f32 v{d}, v{d}, v{t}", f"v_mul_f32 v{d+1}, v{d+1}, v{t}"]
    return o
KWA = 100
KRA = 116

def gen_kgen_v(A):
    T0, Z, E8, E16, Va, Vb, PKT = 34, 144, 44, 46, 80, 84, 88
    kg_common(A, L_VS, T0, Z, KWA)
    A.extend(cexp(E8, 8, T0, Z))
    A.extend(cmul(E16, E8, E8))
    npk = [0]
    def emit(src, row):
        t = PKT + (npk[0] % 8); npk[0] += 1
        return [f"v_cvt_pk_bf16_f32 v{t}, v{src}, v{src+1}", f"ds_write_b32 v{KWA + (row & 15)}, v{t} offset:{row*256}"]
    A(f"v_mov_b32 v{PKT+7}, 0x00003f80")
    A(f"ds_write_b32 v{KWA}, v{PKT+7}")
    A.extend(emit(E8, 1)); A.extend(emit(E16, 2))
    ev, od = E16, E8
    for j in range(3, 32, 2):
        d1 = Va + 2 * (((j - 3) // 2) % 2)
        d2 = Vb + 2 * (((j - 3) // 2) % 2)
        l1 = cmul(d1, od, E16) + emit(d1, j)
        l2 = (cmul(d2, ev, E16) + emit(d2, j + 1)) if j + 1 < 32 else []
        A.extend(zipm(l1, l2))
        od, ev = d1, d2
    for st in range(8): A(f"ds_read_b128 v[{BF+4*st}:{BF+4*st+3}], v{KRA+st}")

UPK = 192
def kgen_u_lists(rebase):
    T0, Z, E1, G, Lr, Va = 34, 144, 42, 44, 58, 76
    ar, ai, br, bi, cr, ci, ld, dsk = range(P0, P0 + 8)
    cm = lambda d, x, y: cmul(d, x, y, False)
    V = []; Wr = []
    if rebase: V += [f"v_subrev_u32 v{KWA+k}, {rebase}, v{KWA+k}" for k in range(24)]
    V += zipm(cexp(E1, 1, T0 + 2, Z), cexp(G, 256, T0 + 4, Z), cm(Lr, cr, br))
    npk = [0]
    def emit(src, rows):
        t = UPK + npk[0]; npk[0] += 1
        Wr.extend(f"ds_write_b32 v{KWA + (row & 15)}, v{t} offset:{row*256}" for row in rows)
        return [f"v_cvt_pk_bf16_f32 v{t}, v{src}, -v{src+1}"]
    urow = lambda hh, r: 8 * (r >> 2) + 4 * hh + (r & 3)
    lch = emit(Lr, [urow(0, 0)])
    for a_ in range(1, 9): lch += cm(Lr + 2 * a_, Lr + 2 * (a_ - 1), E1) + emit(Lr + 2 * a_, [urow(0, a_)])
    gch = []
    for k in range(2, 8): gch += cm(G + 2 * (k - 1), G + 2 * (k - 2), G)
    V += zipm(lch, gch)
    jobs = [(0, 1, [urow(1, 0), urow(1, 1)]), (2, 1, [urow(1, 2)]), (4, 1, [urow(1, 3), urow(1, 4), urow(1, 5)]), (6, 1, [urow(1, 6)]),
            (8, 1, [urow(1, 7), urow(1, 8)]),
            (0, 2, [urow(0, 9)]), (4, 2, [urow(0, 10)]), (8, 2, [urow(0, 11)]),
            (0, 3, [urow(1, 9)]), (4, 3, [urow(1, 10)]), (8, 3, [urow(1, 11)]),
            (0, 4, [urow(0, 12)]), (8, 4, [urow(0, 13)]), (0, 5, [urow(0, 14)]), (8, 5, [urow(0, 15)]),
            (0, 6, [urow(1, 12)]), (8, 6, [urow(1, 13)]), (0, 7, [urow(1, 14)]), (8, 7, [urow(1, 15)])]
    for k in range(0, len(jobs), 2):
        ls = []
        for q_, (a_, gk, rows) in enumerate(jobs[k:k + 2]):
            d = Va + 4 * q_ + 2 * ((k // 2) % 2)
            ls.append(cm(d, Lr + 2 * a_, G + 2 * (gk - 1)) + emit(d, rows))
        V += zipm(*ls)
    assert npk[0] <= 32
    return V, Wr

def kg_atoms_m():
    at = [[f"ds_read_b128 v[{AF+4*k}:{AF+4*k+3}], v{KRA+k} offset:{L_US - L_VS}", ("tag", ("af", k))] for k in range(8)]
    mm = []
    for st in range(8):
        cin = "0" if st == 0 else f"v[{DK}:{DK+15}]"
        mm.append([("wait", ("af", st)), f"v_mfma_f32_32x32x16_bf16 v[{DK}:{DK+15}], v[{AF+4*st}:{AF+4*st+3}], v[{BF+4*st}:{BF+4*st+3}], {cin}"])
    return at, mm

def kg_atoms_x1():
    T0 = P0
    at = [[f"s_lshr_b32 s30, s39, 1", f"s_mul_i32 s30, s30, {CH_SIZE}", f"s_add_u32 s38, s30, {L_CH}", f"v_lshl_add_u32 v{T0}, v0, 4, s38"]]
    at.append(["s_bitcmp1_b32 s39, 0", "s_cselect_b64 exec, -1, 0"] + [f"ds_write_b128 v{T0}, v[{DK+4*q}:{DK+4*q+3}] offset:{512+q*1024}" for q in range(3)] +
              ["s_not_b64 exec, exec", f"ds_write_b128 v{T0}, v[{DK+12}:{DK+15}] offset:{512+3072}", "s_mov_b64 exec, -1"])
    return at

def kg_atoms_x2(tag):
    T0 = P0; VEA, VEB = 254, 255
    at = []
    at.append([f"ds_read_b128 v[{DP+4*q}:{DP+4*q+3}], v{T0} offset:{512+q*1024}" for q in range(4)] + [("tag", "dp")])
    for i in [f"v_and_b32 v{T0+4}, 31, v0", f"v_lshrrev_b32 v{T0+1}, 5, v0", f"v_lshlrev_b32 v{T0+2}, 4, v{T0+4}"]: at.append([i])
    at.append([f"s_add_u32 s28, s38, {OFF_E + 4080 - 1024}", f"v_sub_u32 v{VEA}, s28, v{T0+2}"])
    at.append([f"v_lshlrev_b32 v{T0+3}, 9, v{T0+1}"]); at.append([f"v_sub_u32 v{VEA}, v{VEA}, v{T0+3}"])
    at.append([f"s_add_u32 s28, s38, {OFF_E + 4080 - 2560}", f"v_sub_u32 v{VEB}, s28, v{T0+2}"])
    at.append([f"v_lshlrev_b32 v{T0+3}, 10, v{T0+1}"]); at.append([f"v_sub_u32 v{VEB}, v{VEB}, v{T0+3}"])
    at.append([f"v_lshl_add_u32 v{T0}, v0, 3, s38"]); at.append([f"v_mov_b32 v{T0+2}, 0"]); at.append([f"v_mov_b32 v{T0+3}, 0"])
    at.append(["s_lshl_b32 s28, s39, 2", f"s_add_u32 s28, s28, {L_FLAG}", f"v_mov_b32 v{T0+1}, s28"])
    for k in range(16): at.append(([("wait", "dp")] if k == 0 else []) + [f"v_add_f32 v{DK+k}, v{DK+k}, v{DP+k}"])
    at.append(mask("0xaaaaaaaa") + [f"v_cndmask_b32 v{DP}, v{DK+12}, v{DK+13}, s[28:29]", f"v_cndmask_b32 v{DP+1}, v{DK+14}, v{DK+15}, s[28:29]"])
    k_ = lambda r: DK + r
    def half(base, kk, va, off, odd):
        prs = [(8, 7), (6, 5), (4, 3), (2, 1)] if odd else [(7, 6), (5, 4), (3, 2), (1, 0)]
        return [f"v_cvt_pk_bf16_f32 v{base+i}, v{kk[lo]}, v{kk[hi]}" for i, (lo, hi) in enumerate(prs)] + \
               [f"ds_write_b128 v{va}, v[{base}:{base+3}] offset:{off + (OFF_O - OFF_E if odd else 0)}"]
    ev = [([k_(i) for i in range(9)], VEA, 1024), ([k_(9)] * 3 + [k_(10)] * 3 + [k_(11)] * 3, VEA, 0)]
    od = [([k_(12)] * 4 + [DP] + [k_(13)] * 4, VEB, 512), ([k_(14)] * 4 + [DP + 1] + [k_(15)] * 4, VEB, 0)]
    n = 0
    for gi in range(2):
        for o_ in range(2):
            b_ = EX + 4 * n
            at.append(["s_bitcmp1_b32 s39, 0", f"s_cbranch_scc1 L_xo{tag}{n}"] + half(b_, *ev[gi], o_)[:-1] + [("nods", half(b_, *ev[gi], o_)[-1]), f"s_branch L_xd{tag}{n}",
                       f"L_xo{tag}{n}:"] + half(b_, *od[gi], o_) + [f"L_xd{tag}{n}:"])
            n += 1
    at.append(["s_bitcmp0_b32 s39, 0", "s_cselect_b64 s[28:29], -1, 0", "s_mov_b64 exec, s[28:29]",
               f"ds_write_b64 v{T0}, v[{T0+2}:{T0+3}]", "s_and_b64 exec, s[28:29], 15",
               f"ds_write_b64 v{T0}, v[{T0+2}:{T0+3}] offset:{OFF_E+4096}", f"ds_write_b64 v{T0}, v[{T0+2}:{T0+3}] offset:{OFF_O+4096}",
               "s_and_b64 exec, s[28:29], 1", f"ds_write_b16_d16_hi v{T0}, v{EX+3} offset:{OFF_O+4096}",
               "s_mov_b64 exec, -1"])
    at.append([f"v_mov_b32 v{T0+2}, 1", f"ds_write_b32 v{T0+1}, v{T0+2} offset:64"])
    return at

def flag_zero():
    return [[f"v_lshlrev_b32 v{VT1}, 2, v0", f"v_mov_b32 v{VT1+1}, 0", f"v_add_u32 v{VT1}, {L_FLAG}, v{VT1}", f"ds_write_b32 v{VT1}, v{VT1+1}"]]

class LQ:
    def __init__(self, A): self.A = A; self.q = []
    def emit(self, items, tag=None):
        maybe0 = any(isinstance(it, str) and "s_cselect_b64" in it for it in items)
        for it in items:
            if maybe0 and isinstance(it, str):
                self.A(it); continue
            if isinstance(it, tuple):
                if it[0] == "tag": self.q[-1] = it[1]
                elif it[0] == "wait": self.wait(it[1])
                elif it[0] == "nods": self.A(it[1])
                continue
            self.A(it)
            if it.strip().startswith("ds_"): self.q.append(tag)
            if "lgkmcnt(0)" in it: self.q = []
    def wait(self, tag):
        idx = max((k for k, t in enumerate(self.q) if t == tag), default=-1)
        if idx < 0: return
        n = min(len(self.q) - 1 - idx, 15)
        self.A(f"s_waitcnt lgkmcnt({n})")
        self.q = self.q[len(self.q) - n:] if n else []

def spread(atoms, g0, g1):
    pts = [(g, p) for g in range(g0, g1) for p in range(2)]
    tot = sum(len(a_) for a_ in atoms); out = {p: [] for p in pts}; acc = 0
    for a_ in atoms:
        out[pts[min(len(pts) - 1, acc * len(pts) // tot)]].append(a_); acc += len(a_)
    return out

VXO, VWO, VXO2 = 1, 2, 3
VXR, VTR = 4, 8
VONE, VHO1, VB1 = 16, 18, 19
VCW, VCR, VSO = 20, 21, 22
VT1 = 28
NR = 3
W1, X1, ACC1, CS = 32, 56, 80, 144
HI = 152
GT, PK, SG = 164, 180, 188
EA, EB = 192, 196
VS, K1r, K3r = 212, 214, 216

def wave_flag(soff, vt):
    return [f"v_mov_b32 v{vt}, 0", f"v_mov_b32 v{vt+1}, s76", "s_mov_b64 exec, 1",
            f"buffer_store_dword v{vt+1}, v{vt}, s[12:15], {soff} offen {SC}", "s_mov_b64 exec, -1"]

def dma_setup(A):
    VT = VT1
    A(f"""
    v_lshrrev_b32 v{VT}, 3, v0
    v_and_b32 v{VT+1}, 7, v0
    v_lshrrev_b32 v{VT+2}, 4, v0
    v_xor_b32 v{VT+3}, v{VT+2}, v{VT+1}
    v_lshlrev_b32 v{VXO}, 10, v{VT}
    v_lshl_add_u32 v{VXO}, v{VT+3}, 4, v{VXO}
    v_xor_b32 v{VXO2}, 64, v{VXO}
    v_add_u32 v{VXO2}, 8192, v{VXO2}
    v_and_b32 v{VT+3}, 15, v0
    v_lshlrev_b32 v{VT}, 2, v{VT+2}
    v_xor_b32 v{VT+3}, v{VT+3}, v{VT}
    v_mul_u32_u24 v{VWO}, 3584, v{VT+2}
    v_lshl_add_u32 v{VWO}, v{VT+3}, 4, v{VWO}
    s_lshl_b32 s25, s21, 17
    s_lshl_b32 s28, s39, 15
    s_add_u32 s25, s25, s28
    s_mul_i32 s26, s39, {16*3584}
    s_lshl_b32 s28, s22, 8
    s_add_u32 s26, s26, s28
    s_lshl_b32 s27, s39, 12
    """)

def g1_dma(kc, part):
    st = (kc % NS) * STAGE
    return [f"s_add_u32 m0, s27, {st + part*1024}", f"s_add_u32 s31, s25, {128*kc + (part//2)*16384}",
            f"buffer_load_dwordx4 v{VXO if part % 2 == 0 else VXO2}, s[4:7], s31 offen lds",
            f"s_add_u32 m0, s27, {st + 16384 + part*1024}", f"s_add_u32 s37, s26, {(64*kc + 4*part)*3584}",
            f"buffer_load_dwordx4 v{VWO}, s[8:11], s37 offen lds"]

def c_setup(A):
    VT = VT1
    A(f"""
    v_and_b32 v{VT}, 31, v0
    v_lshrrev_b32 v{VT+1}, 5, v0
    v_bfe_u32 v{VT+2}, v0, 1, 3
    v_xor_b32 v{VT+2}, v{VT+2}, v{VT+1}
    s_lshl_b32 s31, s34, 1
    v_xor_b32 v{VT+2}, s31, v{VT+2}
    v_lshlrev_b32 v{VXR}, 7, v{VT}
    v_lshl_add_u32 v{VXR}, v{VT+2}, 4, v{VXR}
    s_lshl_b32 s28, s34, 13
    v_add_u32 v{VXR}, s28, v{VXR}
    v_xor_b32 v{VXR+1}, 32, v{VXR}
    v_xor_b32 v{VXR+2}, 64, v{VXR}
    v_xor_b32 v{VXR+3}, 96, v{VXR}
    v_lshlrev_b32 v{VSO}, 3, v0
    v_bfe_u32 v{VT+2}, v0, 2, 2
    v_lshl_add_u32 v{VTR}, v{VT+1}, 3, v{VT+2}
    v_lshlrev_b32 v{VTR}, 8, v{VTR}
    v_bfe_u32 v{VT+3}, v0, 4, 1
    v_lshl_add_u32 v{VTR}, v{VT+3}, 5, v{VTR}
    v_and_b32 v{VT+3}, 3, v0
    v_lshl_add_u32 v{VTR}, v{VT+3}, 3, v{VTR}
    s_lshl_b32 s31, s35, 1
    v_xor_b32 v{VT+2}, s31, v{VT+2}
    v_lshl_add_u32 v{VTR}, v{VT+2}, 6, v{VTR}
    s_lshl_b32 s31, s34, 12
    s_add_u32 s31, s31, 16384
    v_add_u32 v{VTR}, s31, v{VTR}
    """)
    for i in range(4):
        for ft in range(2):
            if i == 0 and ft == 0: continue
            A(f"v_xor_b32 v{VTR+2*i+ft}, {i*4096 + ft*64}, v{VTR}")
    A(f"""
    v_mov_b32 v{VONE}, 0x3f803f80
    v_mov_b32 v{VONE+1}, 0x3f803f80
    v_lshlrev_b32 v{VHO1}, 4, v0
    s_lshl_b32 s33, s21, 1
    s_add_u32 s33, s33, s34
    s_lshl_b32 s36, s33, 9
    s_add_u32 s36, s36, {WS_STAT}
    s_mul_i32 s32, s33, {2*112*1024}
    s_lshl_b32 s28, s22, 1
    s_add_u32 s28, s28, s35
    s_lshl_b32 s29, s28, 12
    s_add_u32 s32, s32, s29
    s_add_u32 s32, s32, {WS_HF}
    s_add_u32 s38, s32, {112*1024}
    s_lshl_b32 s33, s33, 5
    s_add_u32 s33, s33, s28
    s_lshl_b32 s33, s33, 7
    s_add_u32 s33, s33, {WS_FLH}
    s_lshl_b32 s29, s20, 8
    v_lshl_add_u32 v{VCW}, v0, 2, s29
    v_add_u32 v{VCW}, {L_CS}, v{VCW}
    v_xor_b32 v{VCR}, 256, v{VCW}
    """)
    srd(A, 16, "s46", "s47", 3584)
    A(f"""
    v_mov_b32 v{VB1}, 0
    v_lshlrev_b32 v{VT1}, 1, v0
    s_lshl_b32 s28, s28, 7
    buffer_load_short_d16_hi v{VB1}, v{VT1}, s[16:19], s28 offen
    """)
    for k in range(20): A(f"v_mov_b32 v{EA+k}, 0")
    for k in range(12): A(f"v_add_u32 v{HI+k}, 0x10000, v{VXR+k}")

def c_reads(g):
    kc, i = divmod(g, 4)
    st = kc % NS
    b = (VXR if st < 2 else HI); off = (st % 2) * STAGE
    sl = g % NR
    tr = lambda ft, sec: f"ds_read_b64_tr_b16 v[{W1+8*sl+4*ft+2*sec}:{W1+8*sl+4*ft+2*sec+1}], v{b+4+2*i+ft} offset:{off + sec*1024}"
    xr = lambda tt: f"ds_read_b128 v[{X1+8*sl+4*tt}:{X1+8*sl+4*tt+3}], v{b+i} offset:{off + tt*4096}"
    return [xr(0), tr(0, 0), tr(0, 1), tr(1, 0), tr(1, 1), xr(1)]

def gen_c1(A):
    VT = VT1
    dma_setup(A)
    A(f"""
    s_and_b32 s34, s20, 1
    s_lshr_b32 s35, s20, 1
    s_waitcnt lgkmcnt(0)
    s_add_u32 s42, s42, {WSOFF}
    s_addc_u32 s43, s43, 0
    s_load_dword s76, s[42:43], {WS_EPOCH}
    """)
    vm = VMQ()
    srd(A, 4, "s40", "s41", 2 << 20)
    srd(A, 8, "s44", "s45", 512 * 3584)
    srd(A, 12, "s42", "s43", WS_USED)
    for kc in range(3):
        for part in range(4): A.extend(g1_dma(kc, part))
        vm.note(kc, 8)
        if kc == 0:
            c_setup(A); vm.note("b1")
        if kc == env("PFAT", 1) and OPT_PF: coop_prefetch(A, VT); vm.note("pf", 2)
    A.extend(ya_prefill(VT, VT + 1, PK)); vm.note(2, 2)
    w2_setup(A, VT)
    A.st("pre")
    A(vm.wait(0)[0] + " lgkmcnt(0)"); A("s_barrier")
    A.st("b0")
    T = GT
    lq = LQ(A)
    lq.emit(c_reads(0), 0); lq.emit(c_reads(1), 1)
    mktag(A)
    def big(g, tt, ft):
        sl = g % NR; c = ACC1 + 32 * tt + 16 * ft
        cin = "0" if g == 0 else f"v[{c}:{c+15}]"
        return f"v_mfma_f32_32x32x16_bf16 v[{c}:{c+15}], v[{W1+8*sl+4*ft}:{W1+8*sl+4*ft+3}], v[{X1+8*sl+4*tt}:{X1+8*sl+4*tt+3}], {cin}"
    for g in range(32):
        kc, i = divmod(g, 4); w = W1 + 8 * (g % NR)
        m = lambda d, b_, z: f"v_mfma_f32_4x4x4_16b_bf16 v[{d}:{d+3}], v[{VONE}:{VONE+1}], v[{b_}:{b_+1}], " + ("0" if z else f"v[{d}:{d+3}]")
        o1, o2 = [], []
        if i < 2 and False: pass
        if i in (0, 2) and g < 28 or g in (28, 29):
            o1 = [m(CS, w, g == 0), m(CS + 4, w + 4, g == 0)]; o2 = [m(CS, w + 2, False), m(CS + 4, w + 6, False)]
        A.st(f"g{g}")
        gn = g + 2
        rd = c_reads(PERM(gn))[:] if gn < 32 else []
        rd = c_reads_slot(gn) if gn < 32 else []
        x1, x2 = [], []
        if i == 2 and kc + 1 < 8: x1 += vm.wait(kc + 1) + ["s_barrier"]
        if g == 30:
            x1 += [f"v_permlane32_swap_b32 v{CS}, v{CS+4}", f"v_add_f32 v{CS}, v{CS}, v{CS+4}", f"ds_write_b32 v{VCW}, v{CS}",
                   "s_waitcnt lgkmcnt(0)", "s_barrier", f"ds_read_b32 v{T+2}, v{VCR}"]
        if g == STATG: x2 += [f"buffer_load_dwordx2 v[{SG}:{SG+1}], v{VSO}, s[12:15], s36 offen {SC}"]; vm.note("sg")
        if g == env("YFG", 8) - 1: x2 += yflag_off()
        if g == env("YFG", 8): x2 += wave_flag("s28", VT); vm.note("yf")
        lq.wait(g)
        A(big(g, 0, 0))
        if i == 2: A.st(f"pb{kc+1}")
        lq.emit(x1)
        if i == 2: A.st(f"ab{kc+1}")
        lq.emit(rd[:2], gn)
        A(big(g, 0, 1)); lq.emit(rd[2:4], gn); A.extend(o1)
        A(big(g, 1, 0)); lq.emit(rd[4:], gn)
        A(big(g, 1, 1)); lq.emit(x2); A.extend(o2)
    A.st("loop")
    A.extend(vm.wait("sg", "b1"))
    A(f"""
    v_cmp_ne_u32 vcc, s76, v{SG+1}
    s_cbranch_vccz L_g1_sok
    s_mov_b32 s30, 0
    L_g1_spoll:
    buffer_load_dwordx2 v[{SG}:{SG+1}], v{VSO}, s[12:15], s36 offen {SC}
    s_add_u32 s30, s30, 1
    s_waitcnt vmcnt(0)
    v_cmp_ne_u32 vcc, s76, v{SG+1}
    s_cmp_gt_u32 s30, {SPIN}
    s_cbranch_scc1 L_g1_sok
    s_cbranch_vccnz L_g1_spoll
    L_g1_sok:
    v_mov_b32 v{SG+1}, v{SG}
    s_mov_b32 s28, -1
    s_mov_b32 s29, 0
    v_permlane32_swap_b32 v{SG}, v{SG+1}
    s_waitcnt lgkmcnt(0)
    v_add_f32 v{T+2}, v{T+2}, v{CS}
    """)
    l1 = []
    for tt in range(2):
        l1 += [f"v_and_b32 v{VS+tt}, 0xffff0000, v{SG+tt}", f"v_and_b32 v{T+8+tt}, 0xffff, v{SG+tt}", f"v_rcp_f32 v{T+6+tt}, v{VS+tt}",
               f"v_lshl_or_b32 v{T+8+tt}, v{T+8+tt}, 16, v{T+8+tt}",
               f"v_cndmask_b32 v{EB+8*tt}, 0, v{T+8+tt}, s[28:29]", f"v_cndmask_b32 v{EB+8*tt+1}, 0, v{SG+tt}, s[28:29]",
               f"v_cndmask_b32 v{EB+8*tt+4}, v{T+8+tt}, 0, s[28:29]", f"v_cndmask_b32 v{EB+8*tt+5}, v{SG+tt}, 0, s[28:29]"]
    l2 = [f"v_and_b32 v{T+3}, 0xffff0000, v{T+2}", f"v_sub_f32 v{T+3}, v{T+2}, v{T+3}", f"v_lshrrev_b32 v{T+2}, 16, v{T+2}",
          f"v_and_b32 v{T+4}, 0xffff0000, v{T+3}", f"v_sub_f32 v{T+5}, v{T+3}, v{T+4}", f"v_or_b32 v{EA}, v{T+2}, v{T+4}",
          f"v_lshrrev_b32 v{T+5}, 16, v{T+5}", f"v_or_b32 v{EA+1}, v{T+5}, v{VB1}"]
    A.extend(zipm(l1, l2))
    l3 = []
    for tt in range(2):
        l3.append([f"v_fma_f32 v{T+10+tt}, -v{VS+tt}, v{T+6+tt}, 1.0", f"v_fma_f32 v{T+6+tt}, v{T+10+tt}, v{T+6+tt}, v{T+6+tt}",
                   f"v_mul_f32 v{K1r+tt}, {hex(f2u(GC1))}, v{T+6+tt}", f"v_mul_f32 v{T+10+tt}, v{T+6+tt}, v{T+6+tt}",
                   f"v_mul_f32 v{K3r+tt}, {hex(f2u(GC2))}, v{T+6+tt}", f"v_mul_f32 v{K3r+tt}, v{K3r+tt}, v{T+10+tt}"])
    l3 = zipm(*l3)
    for tt in range(2):
        for ft in range(2):
            c = ACC1 + 32 * tt + 16 * ft
            A(f"v_mfma_f32_32x32x16_bf16 v[{c}:{c+15}], v[{EA}:{EA+3}], v[{EB+8*tt+4*ft}:{EB+8*tt+4*ft+3}], v[{c}:{c+15}]")
            A.extend(l3[3 * (2 * tt + ft):3 * (2 * tt + ft) + 3])
    A.st("gstart")
    for n in range(8):
        tt = n // 4
        c0 = ACC1 + 8 * n
        t0 = GT + 8 * (n % 2)
        if GPK:
            P = lambda x: f"v[{x}:{x+1}]"
            sel = f"op_sel:[0,{tt},{tt}] op_sel_hi:[1,{tt},{tt}]"
            for k in range(0, 8, 2): A(f"v_pk_mul_f32 {P(t0+k)}, {P(c0+k)}, {P(c0+k)}")
            for k in range(0, 8, 2): A(f"v_pk_fma_f32 {P(t0+k)}, {P(t0+k)}, {P(K3r)}, {P(K1r)} {sel}")
            for k in range(0, 8, 2): A(f"v_pk_mul_f32 {P(t0+k)}, {P(t0+k)}, {P(c0+k)}")
            for k in range(8): A(f"v_exp_f32 v{t0+k}, v{t0+k}")
            for k in range(0, 8, 2): A(f"v_pk_fma_f32 {P(t0+k)}, {P(t0+k)}, {P(VS)}, {P(VS)} {sel}")
            for k in range(8): A(f"v_rcp_f32 v{t0+k}, v{t0+k}")
            for k in range(0, 8, 2): A(f"v_pk_mul_f32 {P(c0+k)}, {P(c0+k)}, {P(t0+k)}")
        else:
            for k in range(8): A(f"v_mul_f32 v{t0+k}, v{c0+k}, v{c0+k}")
            for k in range(8): A(f"v_fma_f32 v{t0+k}, v{t0+k}, v{K3r+tt}, v{K1r+tt}")
            for k in range(8): A(f"v_mul_f32 v{t0+k}, v{t0+k}, v{c0+k}")
            for k in range(8): A(f"v_exp_f32 v{t0+k}, v{t0+k}")
            for k in range(8): A(f"v_fma_f32 v{t0+k}, v{t0+k}, v{VS+tt}, v{VS+tt}")
            for k in range(8): A(f"v_rcp_f32 v{t0+k}, v{t0+k}")
            for k in range(8): A(f"v_mul_f32 v{c0+k}, v{c0+k}, v{t0+k}")
        pk = PK + 4 * (n % 2)
        for k in range(4): A(f"v_cvt_pk_bf16_f32 v{pk+k}, v{c0+2*k}, v{c0+2*k+1}")
        A(f"buffer_store_dwordx4 v[{pk}:{pk+3}], v{VHO1}, s[12:15], s{32 if tt == 0 else 38} offen offset:{(n%4)*1024} {SCH}")
        if env("DBL", 0): A(f"buffer_store_dwordx4 v[{pk}:{pk+3}], v{VHO1}, s[12:15], s{32 if tt == 0 else 38} offen offset:{(n%4)*1024}")
    A.st("gend")
    A("s_mov_b32 s37, 0")
    A("s_branch L_gemm2")

def PERM(g): return g
def c_reads_slot(g):
    if g < 28: return c_reads(g)
    i = [0, 2, 1, 3][g - 28]
    r = c_reads(28 + i)
    kc = 7; st = kc % NS; b = HI; off = (st % 2) * STAGE; sl = g % NR
    tr = lambda ft, sec: f"ds_read_b64_tr_b16 v[{W1+8*sl+4*ft+2*sec}:{W1+8*sl+4*ft+2*sec+1}], v{b+4+2*i+ft} offset:{off + sec*1024}"
    xr = lambda tt: f"ds_read_b128 v[{X1+8*sl+4*tt}:{X1+8*sl+4*tt+3}], v{b+i} offset:{off + tt*4096}"
    return [xr(0), tr(0, 0), tr(0, 1), tr(1, 0), tr(1, 1), xr(1)]

def yflag_off():
    return ["s_lshr_b32 s28, s39, 1", "s_lshl_b32 s29, s2, 1", "s_add_u32 s28, s28, s29", "s_and_b32 s29, s39, 1", "s_lshl_b32 s29, s29, 9",
            "s_add_u32 s28, s28, s29", "s_lshl_b32 s28, s28, 7", f"s_add_u32 s28, s28, {WS_FLY}"]
def ring_ready(vt):
    return ["s_lshl_b32 s28, s39, 2", f"s_add_u32 s28, s28, {L_FLAG+16}", f"v_mov_b32 v{vt}, s28", f"v_mov_b32 v{vt+1}, 1", f"ds_write_b32 v{vt}, v{vt+1}"]

def lds_wait(A, name, vaddr, off, vt):
    A(f"""
    {name}:
    ds_read_b32 v{vt}, v{vaddr} offset:{off}
    s_waitcnt lgkmcnt(0)
    v_readfirstlane_b32 s28, v{vt}
    s_cmp_eq_u32 s28, 1
    s_cbranch_scc0 {name}
    """)

def gen_h1(A):
    VT = VT1
    vm = VMQ()
    param_loads(A, VT); vm.note("prm", 8)
    A(f"s_add_u32 s42, s42, {WSOFF}\ns_addc_u32 s43, s43, 0\ns_load_dword s76, s[42:43], {WS_EPOCH}")
    srd(A, 4, "s40", "s41", 2 << 20)
    srd(A, 8, "s44", "s45", 512 * 3584)
    srd(A, 12, "s42", "s43", WS_USED)
    if env("CPF", 1):
        A(f"""
        s_getpc_b64 s[28:29]
        L_pc0:
        s_sub_u32 s28, s28, L_pc0-{KNAME}
        s_subb_u32 s29, s29, 0
        s_lshl_b32 s30, s39, 13
        v_lshl_add_u32 v{VT+2}, v0, 7, s30
        v_min_u32 v{VT+2}, L_exit-{KNAME}, v{VT+2}
        s_cmp_lt_u32 s24, {env("CPFN", 4)}
        s_cselect_b64 exec, -1, 1
        global_load_dword v{VDUM}, v{VT+2}, s[28:29]
        s_mov_b64 exec, -1
        """)
    dma_setup(A)
    w2_setup(A, VT)
    if env("MPF", 0):
        A(f"""
        s_lshl_b32 s28, s2, 2
        s_add_u32 s28, s28, s39
        s_lshl_b32 s28, s28, 11
        v_lshlrev_b32 v{VT+2}, 7, v0
        s_mov_b64 exec, 0xffff
        buffer_load_dword v{VDUM}, v{VT+2}, s[16:19], s28 offen
        s_mov_b64 exec, -1
        """)
    if env("TLBW", 0):
        A(f"""
        v_lshlrev_b32 v{VT+2}, {env("TLBS", 20)}, v0
        s_mov_b64 exec, {hex((1 << (WS_USED >> env("TLBS", 20))) - 1)}
        buffer_load_dword v{VDUM}, v{VT+2}, s[12:15], 0 offen
        s_mov_b64 exec, 3
        buffer_load_dword v{VDUM}, v{VT+2}, s[16:19], 0 offen
        global_load_dword v{VDUM}, v{VT+2}, s[52:53]
        s_mov_b64 exec, 1
        global_load_dword v{VDUM}, v{VT+2}, s[50:51]
        s_mov_b64 exec, -1
        """)
        vm.note("tlb", 4)
    kg_waddr(A, L_VS, KWA); A.extend(kg_raddr(L_VS, KRA, VT))
    for a_ in flag_zero(): A.extend(a_)
    A.st("pre")
    A.extend(vm.wait("prm"))
    A.st("prm")
    A.label("L_kgen_v")
    gen_kgen_v(A)
    A("s_cmp_eq_u32 s79, 7")
    A("s_cbranch_scc1 L_ln_H2")
    A.st("kg")
    A("s_waitcnt lgkmcnt(0)"); A("s_barrier")
    A.st("b0")
    mktag(A)
    UV, UW = kgen_u_lists(0)
    wts = [2, 3, 3, 3, 3, 3]; cum = 0
    for k in range(8):
        if k <= 5:
            sl_ = UV[len(UV) * cum // sum(wts):len(UV) * (cum + wts[k]) // sum(wts)]; cum += wts[k]
            if k >= 1:
                pcs = []
                for part in range(4):
                    dd = g1_dma(k + 2, part); pcs += [dd[:3], dd[3:]]
                vm.note(k + 2, 8)
                for q, dd in enumerate(pcs):
                    A.extend(dd); A.extend(sl_[len(sl_) * q // 8:len(sl_) * (q + 1) // 8])
            else: A.extend(sl_)
        else:
            for sl in range(4 * (k - 6), 4 * (k - 6) + 4): A.extend(wdma(sl, sl))
            vm.note("f", 8)
        A.st(f"pi{k+1}")
        A.extend(vm.wait(k + 1))
        A("s_barrier")
        A.st(f"ab{k+1}")
    A.st("loop")
    FE = env("FE", 1)
    if FE:
        for sl in range(8, 12): A.extend(wdma(sl, sl))
    A.label("L_h_tail")
    A(f"s_setprio {env('PRIOX', 1)}")
    lq = LQ(A)
    ar_, mm_ = kg_atoms_m()
    lq.emit(UW)
    for a_ in ar_ + mm_ + kg_atoms_x1(): lq.emit(a_)
    A(f"""
    s_lshl_b32 s28, s39, 2
    s_add_u32 s28, s28, {L_FLAG}
    v_mov_b32 v{VT}, s28
    v_mov_b32 v{VT+1}, 1
    ds_write_b32 v{VT}, v{VT+1} offset:80
    v_xor_b32 v{VT+2}, 4, v{VT}
    """)
    lds_wait(A, "L_h_x1", VT + 2, 80, 32)
    lq.q = []
    for a_ in kg_atoms_x2("g"): lq.emit(a_)
    A("s_setprio 0")
    A.extend(lnflag_load(VT))
    A("s_waitcnt lgkmcnt(0)")
    A.st("ku")
    A(f"v_lshlrev_b32 v18, 4, v0")
    A("s_waitcnt vmcnt(0)")
    u_try(A, 18)
    if not FE:
        A("s_cmp_eq_u32 s79, 7")
        A("s_cbranch_scc1 L_h_nof")
        for sl in range(8, 12): A.extend(wdma(sl, sl))
        A("s_waitcnt vmcnt(0)")
        A.label("L_h_nof")
    A.extend(ring_ready(VT))
    A.st("gend")
    A("s_branch L_conv")
    A.label("L_ln_H2")
    A("s_nop 0 ; RESETSB")
    A.extend(UV)
    A("s_branch L_h_tail")

def gen_gemm1(A):
    A(f"""
    s_load_dwordx8 s[56:63], s[0:1], {KA['A_re']}
    s_load_dwordx8 s[64:71], s[0:1], {KA['C_re']}
    """)
    A("s_cmp_ge_u32 s20, 4")
    A("s_cbranch_scc1 L_g1_H")
    gen_c1(A)
    A.label("L_g1_H")
    A("s_nop 0 ; RESETSB")
    gen_h1(A)


def gen_ln(A):
    Q, R, O, T = 16, 48, 80, 112
    A(f"""
    v_lshrrev_b32 v1, 3, v0
    v_and_b32 v2, 7, v0
    v_lshlrev_b32 v3, 10, v1
    v_lshl_add_u32 v3, v2, 4, v3
    v_lshlrev_b32 v4, 4, v0
    s_lshl_b32 s25, s21, 6
    s_lshl_b32 s28, s20, 3
    s_add_u32 s25, s25, s28
    s_lshl_b32 s36, s25, 3
    s_add_u32 s36, s36, {WS_STAT}
    s_lshl_b32 s25, s25, 10
    s_add_u32 s26, s25, 4096
    s_waitcnt lgkmcnt(0)
    s_add_u32 s42, s42, {WSOFF}
    s_addc_u32 s43, s43, 0
    s_load_dword s76, s[42:43], {WS_EPOCH}
    """)
    srd(A, 4, "s40", "s41", 2 << 20)
    for i in range(8): A(f"buffer_load_dwordx4 v[{Q+4*i}:{Q+4*i+3}], v3, s[4:7], s25 offen offset:{128*i}")
    srd(A, 12, "s42", "s43", WS_USED)
    A("s_waitcnt lgkmcnt(0)")
    mktag(A)
    for t in range(8): A(f"buffer_load_dwordx4 v[{R+4*t}:{R+4*t+3}], v4, s[4:7], s{25 + t//4} offen offset:{(t%4)*1024}")
    A(f"""
    v_mov_b32 v5, 0x3f803f80
    v_mov_b32 v6, 0
    v_mov_b32 v7, 0
    v_mov_b32 v12, 0
    v_mov_b32 v13, 0
    v_mov_b32 v14, 0x00003f80
    v_mov_b32 v15, 0x3f800000
    v_lshlrev_b32 v8, 3, v1
    v_mov_b32 v11, s76
    """)
    for i in range(8):
        A(f"s_waitcnt vmcnt({8 + 7 - i})")
        for k in range(4):
            r = Q + 4 * i + k
            A(f"v_dot2_f32_bf16 v{6 if k%2==0 else 12}, v{r}, v5, v{6 if k%2==0 else 12}")
            A(f"v_dot2_f32_bf16 v{7 if k%2==0 else 13}, v{r}, v{r}, v{7 if k%2==0 else 13}")
    A(f"""
    v_add_f32 v6, v6, v12
    v_add_f32 v7, v7, v13
    v_add_f32_dpp v6, v6, v6 quad_perm:[1,0,3,2] row_mask:0xf bank_mask:0xf
    v_add_f32_dpp v7, v7, v7 quad_perm:[1,0,3,2] row_mask:0xf bank_mask:0xf
    v_add_f32_dpp v6, v6, v6 quad_perm:[2,3,0,1] row_mask:0xf bank_mask:0xf
    v_add_f32_dpp v7, v7, v7 quad_perm:[2,3,0,1] row_mask:0xf bank_mask:0xf
    v_add_f32_dpp v6, v6, v6 row_half_mirror row_mask:0xf bank_mask:0xf
    v_add_f32_dpp v7, v7, v7 row_half_mirror row_mask:0xf bank_mask:0xf
    v_mul_f32 v12, {hex(f2u(1/512))}, v6
    v_mul_f32 v13, {hex(f2u(1/512))}, v7
    v_fma_f32 v13, -v12, v12, v13
    v_max_f32 v13, 0, v13
    """)
    round_bf16(A, 13)
    A(f"v_add_f32 v13, {hex(f2u(1e-5))}, v13")
    round_bf16(A, 13)
    A(f"""
    v_sqrt_f32 v13, v13
    v_cvt_pk_bf16_f32 v10, -v12, v13
    s_mov_b32 exec_lo, 0x01010101
    s_mov_b32 exec_hi, 0x01010101
    buffer_store_dwordx2 v[10:11], v8, s[12:15], s36 offen {SC}
    s_mov_b64 exec, -1
    """)
    A.st("b0")
    LPF = env("LPF", 0)
    if LPF:
        srd(A, 16, "s48", "s49", 1792 * 1024)
        A(f"""
        s_lshl_b32 s28, s21, 3
        s_add_u32 s28, s28, s20
        s_mul_i32 s28, s28, {56*128}
        v_min_u32 v{T+2}, 55, v0
        v_lshlrev_b32 v{T+2}, 7, v{T+2}
        buffer_load_dword v{VDUM}, v{T+2}, s[16:19], s28 offen
        """)
    A(f"""
    v_and_b32 v13, 0xffff0000, v10
    v_lshlrev_b32 v12, 16, v10
    v_rcp_f32 v5, v13
    s_nop 0
    v_fma_f32 v13, -v13, v5, 1.0
    v_fma_f32 v13, v13, v5, v5
    """)
    for t in range(8):
        A(f"v_readlane_b32 s{56+t}, v12, {8*t}")
        A(f"v_readlane_b32 s{64+t}, v13, {8*t}")
    A(f"""
    v_xor_b32 v5, s20, v2
    v_lshlrev_b32 v6, 10, v0
    v_lshl_add_u32 v6, v5, 4, v6
    v_add_u32 v6, 98304, v6
    s_waitcnt vmcnt({1 + LPF})
    """)

    for tp in range(4):
        t0, t1 = 2 * tp, 2 * tp + 1
        for k in range(4):
            for h in range(2):
                e = 2 * k + h
                A(f"v_dot2_f32_bf16 v{T+2*e}, v{R+4*t0+k}, v{14+h}, s{56+t0}")
                A(f"v_dot2_f32_bf16 v{T+2*e+1}, v{R+4*t1+k}, v{14+h}, s{56+t1}")
        for e in range(8): A(f"v_cvt_pk_bf16_f32 v{T+2*e+1}, v{T+2*e}, v{T+2*e+1}")
        for e in range(8):
            A(f"v_lshlrev_b32 v{T+2*e}, 16, v{T+2*e+1}")
            A(f"v_and_b32 v{T+2*e+1}, 0xffff0000, v{T+2*e+1}")
        for e in range(8): A(f"v_pk_mul_f32 v[{T+2*e}:{T+2*e+1}], v[{T+2*e}:{T+2*e+1}], s[{64+t0}:{64+t1}]")
        for e in range(8): A(f"v_cvt_pk_bf16_f32 v{O+4*e+tp}, v{T+2*e}, v{T+2*e+1}")
        if tp == env("LFP", 3):
            w2_setup(A, 28)
            LF = env("LF", 0)
            A("s_cmp_ge_u32 s20, 4")
            A("s_cbranch_scc1 L_ln_nofill")
            for sl in range(LF): A.extend(wdma(sl, sl))
            A.label("L_ln_nofill")
    for e in range(8): A(f"ds_write_b128 v6, v[{O+4*e}:{O+4*e+3}] offset:{e*128}")
    A(f"""
    s_lshl_b32 s28, s20, 13
    v_lshlrev_b32 v6, 7, v1
    v_lshl_add_u32 v6, v2, 4, v6
    v_add_u32 v6, s28, v6
    v_add_u32 v6, 98304, v6
    v_lshlrev_b32 v7, 12, v1
    v_lshl_add_u32 v7, v2, 4, v7
    s_load_dwordx8 s[56:63], s[0:1], {KA['A_re']}
    s_load_dwordx8 s[64:71], s[0:1], {KA['C_re']}
    s_lshl_b32 s26, s20, 18
    s_lshl_b32 s28, s21, 7
    s_add_u32 s26, s26, s28
    s_add_u32 s26, s26, {WS_XNT}
    s_lshl_b32 s33, s21, 7
    s_add_u32 s33, s33, {WS_FLL}
    """)
    for i in range(8): A(f"v_xor_b32 v{8+i}, {16*i}, v6")
    A.st("g8")
    param_loads(A, T)
    A.extend(ya_prefill(T + 2, T + 3, T + 4))
    A("s_barrier")
    for i in range(8): A(f"ds_read_b128 v[{R+4*i}:{R+4*i+3}], v{8+i} offset:{i*1024}")
    for i in range(8):
        A(f"s_waitcnt lgkmcnt({7-i})")
        A(f"s_add_u32 s25, s26, {i*32768}")
        A(f"buffer_store_dwordx4 v[{R+4*i}:{R+4*i+3}], v7, s[12:15], s25 offen {SC}")
    A.st("loop")
    A("s_waitcnt vmcnt(0)")
    A("s_barrier")
    publish_flag(A, "s33", 28, "l", 7)
    A.st("gstart")
    A(f"s_mov_b32 s33, {WS_DUMMY}")
    srd(A, 16, "s48", "s49", 1792 * 1024)
    for a_ in flag_zero(): A.extend(a_)
    A("s_waitcnt lgkmcnt(0)")
    A("s_barrier")
    A("s_cmp_lt_u32 s20, 4")
    A("s_cbranch_scc1 L_ln_C")
    A.extend(yflag_off()); A.extend(wave_flag("s28", 28))
    kg_waddr(A, L_VS, KWA); A.extend(kg_raddr(L_VS, KRA, 28))
    A("s_branch L_kgen_v")
    A.label("L_ln_C")
    for sl in range(LF, 12): A.extend(wdma(sl, sl))
    A("s_waitcnt vmcnt(0)")
    for sl in range(12): A.extend(w2tr(sl, sl))
    A("s_waitcnt lgkmcnt(0)")
    for sl in range(12): A.extend(wdma(sl, 12 + sl))
    A(f"""
    v_mov_b32 v28, {L_FLAG+16}
    L_ln_cw:
    ds_read_b128 v[32:35], v28
    s_waitcnt lgkmcnt(0)
    v_and_b32 v32, v32, v33
    v_and_b32 v34, v34, v35
    v_and_b32 v32, v32, v34
    s_nop 0
    v_readfirstlane_b32 s28, v32
    s_cmp_eq_u32 s28, 1
    s_cbranch_scc0 L_ln_cw
    """)
    A(f"""
    s_lshl_b32 s28, s20, 8
    s_add_u32 s28, s28, s2
    s_cmp_lg_u32 s28, 255
    s_cbranch_scc1 L_nobump
    v_lshlrev_b32 v28, 8, v0
    s_mov_b32 s30, 0
    L_bump_poll:
    """)
    for k in range(4):
        A(f"s_mov_b32 s28, {WS_FLY + k*16384}")
        A(f"buffer_load_dword v{32+k}, v28, s[12:15], s28 offen {SC}")
    A(f"""
    s_add_u32 s30, s30, 1
    s_waitcnt vmcnt(0)
    v_xor_b32 v32, s76, v32
    v_xor_b32 v33, s76, v33
    v_xor_b32 v34, s76, v34
    v_xor_b32 v35, s76, v35
    v_or3_b32 v32, v32, v33, v34
    v_or_b32 v32, v32, v35
    v_cmp_ne_u32 vcc, 0, v32
    s_cmp_gt_u32 s30, {SPIN}
    s_cbranch_scc1 L_bump_go
    s_cbranch_vccnz L_bump_poll
    L_bump_go:
    s_mov_b32 s28, {WS_EPOCH}
    """)
    A.extend(wave_flag("s28", 28))
    A.label("L_nobump")
    A("s_mov_b32 s37, 1")
    A("s_branch L_gemm2")


def final_addr(A):
    A(f"""
    v_lshrrev_b32 v1, 3, v0
    v_and_b32 v2, 7, v0
    v_lshlrev_b32 v{VOO}, 10, v1
    v_lshl_add_u32 v{VOO}, v2, 4, v{VOO}
    v_lshlrev_b32 v3, 4, v2
    s_lshl_b32 s33, s78, 6
    s_lshl_b32 s28, s20, 3
    s_add_u32 s33, s33, s28
    s_lshl_b32 s33, s33, 10
    s_lshl_b32 s34, s79, 7
    s_add_u32 s33, s33, s34
    """)
def ep_loads():
    o = Asm()
    srd(o, 8, "s50", "s51", 1024)
    o(f"buffer_load_dwordx4 v[{VX}:{VX+3}], v{VOO}, s[4:7], s33 offen")
    o(f"buffer_load_dwordx4 v[{VB2}:{VB2+3}], v3, s[8:11], s34 offen")
    return o.lines


def gen_gemm2(A):
    VHO, VTR2, VP, VT = 13, 14, 18, 22
    ACC, W, H = ACC2, W2R, HR
    if PRIO_G: A(f"s_setprio {PRIO_G}")
    A("s_mov_b32 s22, s33")
    final_addr(A)
    for k in range(4): A(f"v_mov_b32 v{VTR2+k}, v{VTL+k}")
    A(f"""
    v_lshlrev_b32 v{VHO}, 4, v0
    v_lshrrev_b32 v{VT}, 5, v0
    v_xor_b32 v{VT}, v{VT}, v2
    v_and_b32 v{VP}, 31, v0
    v_lshlrev_b32 v{VP}, 8, v{VP}
    v_lshl_add_u32 v{VP}, v{VT}, 4, v{VP}
    v_add_u32 v{VP}, s73, v{VP}
    v_xor_b32 v{VP+1}, 32, v{VP}
    v_xor_b32 v{VP+2}, 64, v{VP}
    v_xor_b32 v{VP+3}, 96, v{VP}
    s_mul_i32 s24, s78, {2*112*1024}
    s_mul_i32 s28, s20, {28*1024}
    s_add_u32 s24, s24, s28
    s_add_u32 s24, s24, {WS_HF}
    s_add_u32 s25, s24, {112*1024}
    s_mul_i32 s26, s20, 7
    s_lshl_b32 s28, s78, 5
    s_add_u32 s26, s26, s28
    s_lshl_b32 s26, s26, 7
    s_add_u32 s26, s26, {WS_FLH}
    v_min_u32 v{VT}, 6, v2
    v_lshlrev_b32 v{VT}, 7, v{VT}
    s_lshl_b32 s28, s20, 2
    s_add_u32 s28, s28, {L_FLAG+16}
    v_mov_b32 v{ACC+4}, s28
    v_mov_b32 v{ACC+5}, 1
    ds_write_b32 v{ACC+4}, v{ACC+5} offset:16
    s_mov_b32 s30, 0
    s_cmp_eq_u32 s37, 1
    s_cbranch_scc1 L_g2_poll
    """)
    A.st("prew")
    A("s_waitcnt vmcnt(0)")
    A.extend(wave_flag("s22", ACC))
    A.st("p2bar")
    A(f"""
    L_g2_rr:
    ds_read_b32 v{ACC+5}, v{ACC+4}
    s_waitcnt lgkmcnt(0)
    v_readfirstlane_b32 s28, v{ACC+5}
    s_cmp_eq_u32 s28, 1
    s_cbranch_scc0 L_g2_rr
    """)
    for sl in range(3): A.extend(w2tr(sl, sl, VTR2))
    for sl in range(12):
        left = min(12, sl + 3) - sl - 1
        A(f"s_waitcnt lgkmcnt({4*left})")
        if sl + 3 < 12: A.extend(w2tr(sl + 3, sl + 3, VTR2))
        A.extend(wdma(sl, 12 + sl))
    A.st("s5")
    A.label("L_g2_poll")
    A(f"""
    buffer_load_dword v{ACC+2}, v{VT}, s[12:15], s26 offen {SC}
    s_add_u32 s30, s30, 1
    s_waitcnt vmcnt(0)
    v_cmp_ne_u32 vcc, s76, v{ACC+2}
    s_cmp_gt_u32 s30, {SPIN}
    s_cbranch_scc1 L_g2_go
    s_cbranch_vccnz L_g2_poll
    """)
    A.label("L_g2_go")
    vm = VMQ()
    A.st("s6")
    def hload(kp):
        sl = kp % HD
        vm.note(("h", kp), 2)
        return koff("s31", ORDER[kp]) + ["s_add_u32 s27, s31, s24", "s_add_u32 s31, s31, s25",
                                  f"buffer_load_dwordx4 v[{H+8*sl}:{H+8*sl+3}], v{VHO}, s[12:15], s27 offen {SCL}",
                                  f"buffer_load_dwordx4 v[{H+8*sl+4}:{H+8*sl+7}], v{VHO}, s[12:15], s31 offen {SCL}"]
    for kp in range(HD): A.extend(hload(kp))
    inring = lambda k: ORDER[k] >= 12
    wset = lambda k: (k % 2) if inring(k) else ORDER[k]
    slot_of = lambda k: (ORDER[k] - 12) % 12
    for kp in range(28):
        nx = kp + 1
        if nx < 28 and inring(nx):
            A.extend(vm.wait(("w", ORDER[nx])))
            A.extend(w2tr(slot_of(nx), wset(nx), VTR2))
        if inring(kp): A(f"s_waitcnt lgkmcnt({4 if (nx < 28 and inring(nx)) else 0})")
        A.extend(vm.wait(("h", kp)))
        if kp in (4, 9, 14, 19): A.st(f"k{kp}")
        b = W + 8 * wset(kp); sl = kp % HD
        for tb in range(2):
            for db in range(2):
                c = ACC + 32 * tb + 16 * db
                cin = "0" if kp == 0 else f"v[{c}:{c+15}]"
                A(f"v_mfma_f32_32x32x16_bf16 v[{c}:{c+15}], v[{b+4*db}:{b+4*db+3}], v[{H+8*sl+4*tb}:{H+8*sl+4*tb+3}], {cin}")
        if kp == 0: A.st("k0")
        if kp + HD < 28: A.extend(hload(kp + HD))
        if 12 <= ORDER[kp] < 16:
            A.extend(wdma(ORDER[kp] - 12, ORDER[kp] + 12)); vm.note(("w", ORDER[kp] + 12), 2)
        if kp == 19:
            A.extend(ep_loads()); vm.note("ep", 2)
        if kp == env("SIGK", 18):
            A(f"""
            s_lshl_b32 s28, s20, 2
            s_add_u32 s28, s28, {L_FLAG+48}
            v_mov_b32 v{VT}, s28
            v_mov_b32 v{W}, 1
            ds_write_b32 v{VT}, v{W}
            """)
    A.st("s7")
    for tb in range(2):
        for db in range(2):
            for q in range(4):
                c = ACC + 32 * tb + 16 * db + 4 * q
                A(f"ds_write_b128 v{VP+q}, v[{c}:{c+3}] offset:{tb*32768+db*128}")
    A("s_waitcnt vmcnt(0) lgkmcnt(0)")
    A("s_branch L_final")


def gen_conv(A):
    if PRIO_C: A(f"s_setprio {PRIO_C}")
    VTA, VF = 32, 36
    VXN, VBW, VOWN, VPAR = 37, 38, 39, 40
    T0 = 42
    dsk = P0 + 7
    ACC = 48; FB = [80, 112]; TB = [144, 208]
    XN = 196
    final_addr(A)
    A(f"""
    s_mov_b32 s21, s39
    s_lshr_b32 s35, s21, 1
    s_and_b32 s36, s21, 1
    s_mul_i32 s38, s35, {CH_SIZE}
    s_add_u32 s38, s38, {L_CH}
    s_lshl_b32 s27, s21, 13
    s_add_u32 s27, s27, {L_ST2}
    s_xor_b32 s32, s27, {ST2}
    v_and_b32 v{T0}, 15, v0
    v_lshrrev_b32 v{T0+1}, 4, v0
    v_and_b32 v{T0+2}, 1, v0
    v_mul_u32_u24 v{T0+2}, {OFF_O + 2 - OFF_E}, v{T0+2}
    s_lshl_b32 s31, s36, 8
    s_sub_u32 s31, s38, s31
    s_add_u32 s29, s31, {OFF_O + 2*2032 - 512 - 192}
    v_lshlrev_b32 v{T0+3}, 1, v{T0}
    v_sub_u32 v{VTA}, s29, v{T0+3}
    v_lshl_add_u32 v{VTA}, v{T0+1}, 4, v{VTA}
    v_sub_u32 v{VTA}, v{VTA}, v{T0+2}
    v_subrev_u32 v{VTA+1}, 1024, v{VTA}
    v_subrev_u32 v{VTA+2}, 2048, v{VTA}
    v_subrev_u32 v{VTA+3}, 3072, v{VTA}
    """)
    def freads(rr, fb): return [f"ds_read_b128 v[{fb+4*m}:{fb+4*m+3}], v{VF} offset:{512*m + 64*(3-rr)}" for m in range(8)]
    def treads(rr, tb):
        o = []
        for i in range(8):
            off = 128 * (1 - (i & 1)) + 16 * (3 - rr)
            o.append(f"ds_read2_b32 v[{tb+4*i}:{tb+4*i+1}], v{VTA+i//2} offset0:{off} offset1:{off+1}")
            o.append(f"ds_read2_b32 v[{tb+4*i+2}:{tb+4*i+3}], v{VTA+i//2} offset0:{off+2} offset1:{off+3}")
        return o
    A(f"""
    v_lshl_add_u32 v19, v0, 4, s38
    s_add_u32 s29, s31, {480 - 192}
    v_lshlrev_b32 v{VF}, 5, v{T0}
    v_lshl_add_u32 v{VF}, v{T0+1}, 4, v{VF}
    v_add_u32 v{VF}, s29, v{VF}
    v_lshlrev_b32 v{VXN}, 5, v{T0}
    v_lshl_add_u32 v{VXN}, v{T0+1}, 3, v{VXN}
    v_add_u32 v{VBW}, s27, v{VXN}
    s_lshl_b32 s28, s36, 11
    s_add_u32 s28, s28, s38
    v_add_u32 v{VXN}, s28, v{VXN}
    v_lshl_add_u32 v{VOWN}, v0, 4, s27
    v_lshl_add_u32 v{VPAR}, v0, 4, s32
    v_mov_b32 v13, 1
    s_lshl_b32 s29, s21, 2
    s_add_u32 s29, s29, {L_FLAG}
    v_mov_b32 v14, s29
    s_xor_b32 s29, s29, 4
    v_mov_b32 v15, s29
    v_lshlrev_b32 v18, 4, v0
    """)
    A(f"""
    L_cv_ex:
    ds_read_b32 v16, v15 offset:64
    s_waitcnt lgkmcnt(0)
    v_readfirstlane_b32 s28, v16
    s_cmp_eq_u32 s28, 1
    s_cbranch_scc0 L_cv_ex
    """)
    A.extend(treads(0, TB[0]))
    A("s_cmp_eq_u32 s37, 1")
    A("s_cbranch_scc1 L_cv_uok")
    u_spin(A, 20, 18)
    A.label("L_cv_uok")
    A("s_waitcnt vmcnt(0)")
    for k in range(4): A(f"ds_write_b128 v19, v[{XL+4*k}:{XL+4*k+3}] offset:{512 + k*1024}")
    A.extend(freads(0, FB[0]))
    A.st("s4")
    if GPK:
        A(f"""
        v_mov_b32 v17, {L_FLAG+32}
        L_cv_gd:
        ds_read_b128 v[20:23], v17
        s_waitcnt lgkmcnt(0)
        v_and_b32 v20, v20, v21
        v_and_b32 v22, v22, v23
        v_and_b32 v20, v20, v22
        s_nop 0
        v_readfirstlane_b32 s28, v20
        s_cmp_eq_u32 s28, 1
        s_cbranch_scc0 L_cv_gd
        """)
    A.st("s5")
    for rp in range(4):
        fb, tb = FB[rp % 2], TB[rp % 2]
        mm = []
        for i in range(8):
            for j in range(i, 8):
                cin = "0" if (rp == 0 and i == 0) else f"v[{ACC+4*j}:{ACC+4*j+3}]"
                mm.append(f"v_mfma_f32_16x16x32_bf16 v[{ACC+4*j}:{ACC+4*j+3}], v[{tb+4*i}:{tb+4*i+3}], v[{fb+4*(j-i)}:{fb+4*(j-i)+3}], {cin}")
        if rp == 1: A.extend(ep_loads())
        if HT and rp == env("HTP", 3):
            A(f"""
            s_lshl_b32 s28, s24, 2
            s_add_u32 s28, s28, s21
            s_mul_i32 s28, s28, {56*128}
            s_mul_i32 s29, s23, {8*112*1024}
            s_add_u32 s28, s28, s29
            s_add_u32 s28, s28, {WS_HF}
            v_min_u32 v{T0}, 55, v0
            v_lshlrev_b32 v{T0}, 7, v{T0}
            buffer_load_dword v20, v{T0}, s[12:15], s28 offen {SC}
            """)
        if rp == 0:
            o = []
            for j in range(8): o += [f"s_waitcnt lgkmcnt({7-j})", mm[j]]
            mm = o + interleave(mm[8:], freads(1, FB[1]) + treads(1, TB[1]), 0, 22)
        else:
            A("s_waitcnt lgkmcnt(0)")
            if rp < 3: mm = interleave(mm, freads(rp + 1, FB[(rp + 1) % 2]) + treads(rp + 1, TB[(rp + 1) % 2]), 0, 26)
            else: mm = interleave(mm, [f"ds_read_b64 v[{XN+2*a_}:{XN+2*a_+1}], v{VXN} offset:{512 + a_*512}" for a_ in range(4)], 0, 8)
        A.extend(mm)
    A.st("s6")
    A("s_cmp_eq_u32 s36, 1")
    A("s_cbranch_scc1 L_cv_x1")
    for a_ in range(4): A(f"ds_write_b128 v{VOWN}, v[{ACC+16+4*a_}:{ACC+16+4*a_+3}] offset:{4096 + a_*1024}")
    A("ds_write_b32 v14, v13")
    A("s_branch L_cv_out")
    A.label("L_cv_x1")
    A("s_nop 7")
    for a_ in range(4): A(f"ds_write_b128 v{VOWN}, v[{ACC+4*a_}:{ACC+4*a_+3}] offset:{4096 + a_*1024}")
    A("ds_write_b32 v14, v13")
    for k in range(16): A(f"v_mov_b32 v{ACC+k}, v{ACC+16+k}")
    A.label("L_cv_out")
    A(f"""
    """)
    A.extend(ya_addr(41, T0))
    A(f"""
    v_mov_b32 v{T0+2}, 0xfffffffe
    s_waitcnt lgkmcnt(5)
    """)
    t = 80; z = 96; YP = 112
    for k in range(8):
        A(f"v_lshlrev_b32 v{t+2*k}, 16, v{XN+k}")
        A(f"v_and_b32 v{t+2*k+1}, 0xffff0000, v{XN+k}")
    for k in range(16): A(f"v_fma_f32 v{ACC+k}, v{t+k}, v{dsk}, v{ACC+k}")
    A.label("L_cv_ps1")
    A(f"""
    ds_read_b32 v16, v15
    s_waitcnt lgkmcnt(0)
    v_readfirstlane_b32 s28, v16
    s_cmp_eq_u32 s28, 1
    s_cbranch_scc0 L_cv_ps1
    """)
    for a_ in range(4): A(f"ds_read_b128 v[{YP+4*a_}:{YP+4*a_+3}], v{VPAR} offset:{4096 + a_*1024}")
    for a_ in range(4):
        A("s_waitcnt lgkmcnt(3)")
        for k in range(4): A(f"v_add_f32 v{ACC+4*a_+k}, v{ACC+4*a_+k}, v{YP+4*a_+k}")
        for k in range(2): A(f"v_cvt_pk_bf16_f32 v{z+2*a_+k}, v{ACC+4*a_+2*k}, v{ACC+4*a_+2*k+1}")
        for k in range(2): A(f"v_min_u32 v{z+2*a_+k}, v{z+2*a_+k}, v{T0+2}")
        A(f"ds_write_b64 v{VBW}, v[{z+2*a_}:{z+2*a_+1}] offset:{a_*512}")
    for h in range(2): A(f"ds_read_b128 v[{t+4*h}:{t+4*h+3}], v{VOWN} offset:{h*1024}")
    for h in range(2):
        A(f"s_waitcnt lgkmcnt({1-h})")
        A(f"buffer_store_dwordx4 v[{t+4*h}:{t+4*h+3}], v41, s[12:15], s{30+h} offen {SC}")
    Y = 160
    A(f"""
    v_lshlrev_b32 v{T0}, 8, v1
    v_lshl_add_u32 v{T0}, v2, 4, v{T0}
    s_lshl_b32 s28, s79, 5
    s_add_u32 s28, s28, s78
    s_lshl_b32 s28, s28, 13
    s_lshl_b32 s29, s21, 11
    s_add_u32 s28, s28, s29
    s_add_u32 s28, s28, {WS_YA}
    v_lshlrev_b32 v{T0+1}, 8, v2
    v_lshl_add_u32 v{T0+1}, v2, 4, v{T0+1}
    v_lshl_add_u32 v{T0+1}, v1, 2, v{T0+1}
    v_add_u32 v{T0+1}, s27, v{T0+1}
    v_mov_b32 v{T0+3}, 0x05040100
    v_mov_b32 v{T0+4}, 0x07060302
    s_mov_b32 s30, 0
    """)
    A.st("s7")
    A(f"""
    v_mov_b32 v17, {L_FLAG+48}
    L_cv_w19:
    s_sleep 2
    ds_read_b128 v[20:23], v17
    s_waitcnt lgkmcnt(0)
    v_and_b32 v20, v20, v21
    v_and_b32 v22, v22, v23
    v_and_b32 v20, v20, v22
    s_nop 0
    v_readfirstlane_b32 s29, v20
    s_cmp_eq_u32 s29, 1
    s_cbranch_scc0 L_cv_w19
    L_cv_poll2:
    buffer_load_dwordx4 v[{Y}:{Y+3}], v{T0}, s[12:15], s28 offen {SC}
    buffer_load_dwordx4 v[{Y+4}:{Y+7}], v{T0}, s[12:15], s28 offen offset:128 {SC}
    s_waitcnt vmcnt(0)
    v_max_u32 v{Y+8}, v{Y}, v{Y+1}
    v_max3_u32 v{Y+8}, v{Y+8}, v{Y+2}, v{Y+3}
    v_max3_u32 v{Y+8}, v{Y+8}, v{Y+4}, v{Y+5}
    v_max3_u32 v{Y+8}, v{Y+8}, v{Y+6}, v{Y+7}
    v_cmp_eq_u32 vcc, -1, v{Y+8}
    s_cbranch_vccz L_cv_got
    s_sleep 4
    s_add_u32 s30, s30, 1
    s_cmp_lt_u32 s30, {SPIN}
    s_cbranch_scc1 L_cv_poll2
    """)
    A.label("L_cv_got")
    A.st("got")
    for k in range(4):
        A(f"v_perm_b32 v{Y+8+2*k}, v{Y+4+k}, v{Y+k}, v{T0+3}")
        A(f"v_perm_b32 v{Y+9+2*k}, v{Y+4+k}, v{Y+k}, v{T0+4}")
    for i in range(8): A(f"ds_write_b32 v{T0+1}, v{Y+8+i} offset:{i*32}")
    A("s_waitcnt lgkmcnt(0)")


def gen_final(A):
    P = 32
    A(f"""
    v_lshlrev_b32 v13, 1, v2
    v_xor_b32 v13, v13, v1
    v_lshlrev_b32 v13, 4, v13
    v_lshl_add_u32 v13, v1, 8, v13
    s_and_b32 s28, s20, 3
    s_lshl_b32 s28, s28, 11
    s_lshr_b32 s29, s20, 2
    s_lshl_b32 s29, s29, 15
    s_add_u32 s28, s28, s29
    v_add_u32 v13, s28, v13
    v_xor_b32 v14, 16, v13
    v_lshrrev_b32 v15, 1, v2
    v_lshlrev_b32 v15, 13, v15
    v_lshl_add_u32 v15, v1, 5, v15
    v_and_b32 v16, 1, v2
    v_lshl_add_u32 v15, v16, 4, v15
    s_mul_i32 s28, s20, 272
    s_add_u32 s28, s28, {L_ST2}
    v_add_u32 v15, s28, v15
    """)
    srd(A, 8, "s52", "s53", 2 << 20)
    X, Yv, B = 64, 72, 80
    def unpack(d, s_):
        for k in range(4):
            A(f"v_lshlrev_b32 v{d+2*k}, 16, v{s_+k}")
            A(f"v_and_b32 v{d+2*k+1}, 0xffff0000, v{s_+k}")
    def pack(d, s_):
        for k in range(4): A(f"v_cvt_pk_bf16_f32 v{d+k}, v{s_+2*k}, v{s_+2*k+1}")
    unpack(X, VX); unpack(B, VB2)
    A("s_barrier")
    A.st("fin")
    A(f"ds_read_b128 v[16:19], v15")
    for w in range(4):
        A(f"ds_read_b128 v[{P+8*w}:{P+8*w+3}], v13 offset:{w*8192}")
        A(f"ds_read_b128 v[{P+8*w+4}:{P+8*w+7}], v14 offset:{w*8192}")
    A("s_waitcnt lgkmcnt(8)")
    unpack(Yv, 16)
    for k in range(8): A(f"v_add_f32 v{X+k}, v{X+k}, v{Yv+k}")
    pack(20, X); unpack(X, 20)
    A("s_waitcnt lgkmcnt(4)")
    for k in range(8): A(f"v_add_f32 v{P+k}, v{P+k}, v{P+8+k}")
    A("s_waitcnt lgkmcnt(0)")
    for k in range(8): A(f"v_add_f32 v{P+16+k}, v{P+16+k}, v{P+24+k}")
    for k in range(8): A(f"v_add_f32 v{P+k}, v{P+k}, v{P+16+k}")
    pack(24, P); unpack(P, 24)
    for k in range(8): A(f"v_add_f32 v{P+k}, v{P+k}, v{B+k}")
    pack(24, P); unpack(P, 24)
    for k in range(8): A(f"v_add_f32 v{P+k}, v{P+k}, v{X+k}")
    pack(28, P)
    A(f"buffer_store_dwordx4 v[28:31], v{VOO}, s[8:11], s33 offen {os.environ.get('SCO', '')}")
    if STAMPS: A("s_waitcnt vmcnt(0)")
    A.stamp_flush(0)
    A("s_endpgm")


def gen():
    A = Asm()
    A.stamp(0, True); A.stamp(1)
    for k in range(2, 9): A.stamp(k)
    A(f"""
    s_cmp_ge_u32 s2, 256
    s_cbranch_scc1 L_exit
    s_load_dwordx2 s[40:41], s[0:1], {KA['u']}
    s_load_dwordx8 s[44:51], s[0:1], {KA['w1']}
    s_load_dwordx4 s[52:55], s[0:1], {KA['out']}
    s_load_dwordx2 s[42:43], s[0:1], {KA['ws']}
    v_lshrrev_b32 v1, 6, v0
    v_and_b32 v0, 63, v0
    s_and_b32 s23, s2, 7
    s_lshr_b32 s24, s2, 3
    v_readfirstlane_b32 s20, v1
    s_and_b32 s25, s24, 3
    s_lshr_b32 s79, s24, 2
    s_lshl_b32 s78, s23, 2
    s_add_u32 s78, s78, s25
    s_mul_i32 s74, s79, {3584 if ROT & 1 else 0}
    s_and_b32 s74, s74, 0xfffffc00
    s_mul_i32 s75, s25, {7168 if ROT & 2 else 0}
    s_add_u32 s74, s74, s75
    s_sub_u32 s75, s74, {28*1024}
    s_min_u32 s74, s74, s75
    s_mov_b32 s77, 1
    s_and_b32 s39, s20, 3
    s_cmp_eq_u32 s79, 7
    s_cbranch_scc1 L_ln
    """)
    if LOC:
        A("""
        s_and_b32 s21, s24, 1
        s_lshl_b32 s22, s23, 1
        s_add_u32 s21, s21, s22
        s_lshr_b32 s22, s24, 1
        """)
    else:
        A("""
        s_lshr_b32 s21, s23, 1
        s_lshl_b32 s21, s21, 2
        s_add_u32 s21, s21, s25
        s_and_b32 s22, s23, 1
        s_mul_i32 s22, s22, 7
        s_add_u32 s22, s22, s79
        """)
    gen_gemm1(A)
    A.label("L_ln")
    A("s_nop 0 ; RESETSB")
    A("s_mov_b32 s21, s78")
    gen_ln(A)
    A.label("L_gemm2")
    A("s_nop 1 ; RESETSB")
    gen_gemm2(A)
    A.label("L_conv")
    A("s_nop 1 ; RESETSB")
    gen_conv(A)
    A.label("L_final")
    A("s_nop 7")
    gen_final(A)
    A.label("L_exit")
    A("s_endpgm")
    lines = fix_hazards(A.lines, verbose=True)
    check_waits(lines, "s")
    head = open("parallel_sum__ssm_conv_s4__dense_activation_gelu__prompt.s.ref").read().split("; Override launch")[0]
    head += f"; @launch grid=(256,1,1) block=(512,1,1) lds={LDS_TOTAL}\n.amdgcn_target \"amdgcn-amd-amdhsa--gfx950\"\n"
    return head + kernel_section(KNAME, lines, 256, 102, 256)

if __name__ == "__main__":
    out = sys.argv[1] if len(sys.argv) > 1 else "cur8.s"
    open(out, "w").write(gen())
    print("wrote", out)
```

```python
from asmlib import *
import struct, math, os, sys

def f2u(x): return struct.unpack("<I", struct.pack("<f", x))[0]
def env(n, d): return int(os.environ.get(n, str(d)))

KNAME = "parallel_sum__ssm_conv_s4__dense_activation_gelu__prompt_kernel"
KA = dict(u=0, A_re=8, A_im=16, B_re=24, B_im=32, C_re=40, C_im=48, log_dt=56, Dskip=64, Bx=72, w1=80, b1=88, w2=96, b2=104,
          out=112, dbg=120, ws=128)
WS_FLL = 32768
WS_EPOCH = 49152
WS_DUMMY = 53248
WS_STAT = 65536
WS_FLH = 131072
WS_FLY = 262144
WS_HF = 1 << 20
WS_XNT = 8 << 20
WS_YA = 12 << 20
WS_USED = 14 << 20

LOG2E = 1.4426950408889634
GC1 = -2.0 * LOG2E * 0.7978845608028654
GC2 = GC1 * 0.044715

NS, STAGE = 4, 32768
RSL = 12
RING = RSL * 2048
L_KST = 98304; KST = 8704
L_ST2 = 98304; ST2 = 8192
L_CH = 131072; CH_SIZE = 13056
OFF_E, OFF_O = 4608, 8768
L_FLAG = L_CH + 2 * CH_SIZE
L_CS = L_FLAG + 512
LDS_TOTAL = 163840
L_VS = 98304; L_US = 98304

OPT_PF = env("PF", 1)
PRE = env("PRE", 3)
PRIO_C = env("PRIOC", 1)
PRIO_G = env("PRIOG", 2)
PRIO_E = env("PRIOE", 0)
ROT = env("ROT", 3)
BARP = env("BARP", 2)
STATG = env("STATG", 21)
SC = os.environ.get("SC", "sc1")
PFG = [int(x) for x in os.environ.get("PFG", "").split(",") if x]
HD = 9
WSOFF = env('WSOFF', 0) << 20
SCH = os.environ.get('SCH', SC)
LOC = env('LOC', 0)
GPK = env('GPK', 0)
ULN = env('ULN', 3)
HT = env('HT', 0)
SCL = os.environ.get('SCL', SC)
SPIN = 0x40000

DK, DP, EX, P0 = 224, 128, 160, 244
BF, AF, KG_G, KG_E1, KG_L, KG_V, KG_PK, KG_VW, KG_VRD = 160, 192, 108, 122, 224, 124, 132, 136, 137
L_KS2 = 131072; KS2 = 4352
XL = 180
VDUM, LNF = 252, 253
VX, VB2, VOO = 4, 8, 12
VW2 = 23
W2R, HR, ACC2 = 160, 88, 24
VTL = 24

def srd(A, d, lo, hi, size):
    A(f"s_mov_b32 s{d}, {lo}\ns_mov_b32 s{d+1}, {hi}\ns_mov_b32 s{d+2}, {size}\ns_mov_b32 s{d+3}, 0x00020000")
def round_bf16(A, r):
    A(f"v_cvt_pk_bf16_f32 v{r}, v{r}, v{r}")
    A(f"v_and_b32 v{r}, 0xffff0000, v{r}")
def zipm(*lists):
    o = []
    for k in range(max(len(l) for l in lists)):
        for l in lists:
            if k < len(l): o.append(l[k])
    return o
def mask(lo, hi=None):
    hi = lo if hi is None else hi
    return [f"s_mov_b32 s28, {lo}", f"s_mov_b32 s29, {hi}"]

class VMQ:
    def __init__(self): self.q = []
    def note(self, tag, n=1): self.q.extend([tag] * n)
    def wait(self, *tags):
        idx = max((k for k, t in enumerate(self.q) if t in tags), default=-1)
        if idx < 0: return []
        n = len(self.q) - 1 - idx
        del self.q[:idx + 1]
        return [f"s_waitcnt vmcnt({n})"]
    def younger(self): return len(self.q)

ORDER = [0, 1] + list(range(12, 24)) + list(range(2, 12)) + list(range(24, 28))

def koff(dst, lab, base="s74"):
    return [f"s_add_u32 {dst}, {base}, {lab*1024}", f"s_sub_u32 s75, {dst}, {28*1024}", f"s_min_u32 {dst}, {dst}, s75"]

def slot_addr(sl): return (sl >> 2) * 32768 + (sl & 3) * 2048

def w2_setup(A, vt):
    srd(A, 16, "s48", "s49", 1792 * 1024)
    A(f"""
    v_lshrrev_b32 v{vt}, 2, v0
    v_and_b32 v{vt}, 4, v{vt}
    v_and_b32 v{vt+1}, 7, v0
    v_xor_b32 v{vt}, v{vt}, v{vt+1}
    v_lshrrev_b32 v{vt+1}, 3, v0
    v_lshlrev_b32 v{VW2}, 10, v{vt+1}
    v_lshl_add_u32 v{VW2}, v{vt}, 4, v{VW2}
    s_mul_i32 s72, s39, {448*1024}
    s_lshl_b32 s75, s79, 7
    s_add_u32 s72, s72, s75
    s_lshl_b32 s73, s39, 13
    v_lshrrev_b32 v{vt+1}, 5, v0
    v_bfe_u32 v{vt}, v0, 2, 2
    v_lshl_add_u32 v{VTL}, v{vt+1}, 2, v{vt}
    v_lshlrev_b32 v{VTL}, 7, v{VTL}
    v_bfe_u32 v{vt}, v0, 4, 1
    v_lshl_add_u32 v{VTL}, v{vt}, 5, v{VTL}
    v_and_b32 v{vt}, 3, v0
    v_lshl_add_u32 v{VTL}, v{vt}, 3, v{VTL}
    v_bfe_u32 v{vt}, v0, 3, 1
    v_lshl_add_u32 v{VTL}, v{vt}, 6, v{VTL}
    v_add_u32 v{VTL}, s73, v{VTL}
    v_xor_b32 v{VTL+1}, 64, v{VTL}
    v_add_u32 v{VTL+2}, 0x10000, v{VTL}
    v_add_u32 v{VTL+3}, 0x10000, v{VTL+1}
    """)
def wdma(slot, lab):
    a_ = slot_addr(slot)
    return koff("s31", lab) + [f"s_add_u32 m0, s73, {a_}", "s_lshl4_add_u32 s31, s31, s72",
                               f"buffer_load_dwordx4 v{VW2}, s[16:19], s31 offen lds",
                               f"s_add_u32 m0, s73, {a_+1024}", "s_add_u32 s31, s31, 8192",
                               f"buffer_load_dwordx4 v{VW2}, s[16:19], s31 offen lds"]
def w2tr(slot, ws_, vtl=VTL):
    b = W2R + 8 * ws_; a_ = slot_addr(slot); hi = a_ >> 16; a_ &= 0xffff
    return [f"ds_read_b64_tr_b16 v[{b+4*db+2*sec}:{b+4*db+2*sec+1}], v{vtl+2*hi+db} offset:{a_+sec*1024}" for db in range(2) for sec in range(2)]

def param_loads(A, vt):
    A(f"""
    s_lshr_b32 s28, s39, 1
    s_lshl_b32 s30, s2, 1
    s_add_u32 s30, s30, s28
    v_lshlrev_b32 v{vt}, 1, v0
    v_mov_b32 v{vt+1}, 0
    s_lshl_b32 s29, s30, 8
    s_and_b32 s28, s20, 1
    s_lshl_b32 s28, s28, 7
    s_add_u32 s29, s29, s28
    s_lshl_b32 s30, s30, 1
    s_mov_b32 s18, 1024
    s_mov_b32 s19, 0x00020000
    """)
    for k in range(8): A(f"v_mov_b32 v{P0+k}, 0")
    A("s_waitcnt lgkmcnt(0)")
    for k in (6, 7, 0, 1, 2, 3, 4, 5):
        if k == 0: A("s_mov_b32 s18, 131072")
        A(f"s_mov_b32 s16, s{56+2*k}\ns_mov_b32 s17, s{57+2*k}")
        if k < 6: A(f"buffer_load_short_d16_hi v{P0+k}, v{vt}, s[16:19], s29 offen")
        else: A(f"buffer_load_short_d16_hi v{P0+k}, v{vt+1}, s[16:19], s30 offen")

def lnflag_load(vt):
    return ["s_lshl_b32 s29, s79, 6", "s_lshl_b32 s28, s39, 4", "s_add_u32 s29, s29, s28", "s_lshr_b32 s28, s78, 4", "s_lshl_b32 s28, s28, 9",
            "s_add_u32 s29, s29, s28", "s_lshl_b32 s29, s29, 7", f"s_add_u32 s29, s29, {WS_FLY}",
            f"v_lshlrev_b32 v{vt}, 7, v0", f"v_add_u32 v{vt}, {WS_FLL}, v{vt}",
            f"v_and_b32 v{vt+1}, 15, v0", f"v_lshl_add_u32 v{vt+1}, v{vt+1}, 7, s29", "s_mov_b32 s28, 0", "s_mov_b32 s29, -1",
            f"v_cndmask_b32 v{vt}, v{vt}, v{vt+1}, s[28:29]",
            f"buffer_load_dword v{LNF}, v{vt}, s[12:15], 0 offen {SC}"]

def u_issue(A, vl16):
    A(f"""
    s_lshr_b32 s28, s39, 1
    s_lshl_b32 s29, s2, 1
    s_add_u32 s29, s29, s28
    s_lshl_b32 s29, s29, 12
    s_add_u32 s29, s29, {WS_XNT}
    """)
    for k in range(4): A(f"buffer_load_dwordx4 v[{XL+4*k}:{XL+4*k+3}], v{vl16}, s[12:15], s29 offen offset:{k*1024} {SC}")

def u_try(A, vl16):
    A(f"""
    v_cmp_ne_u32 vcc, s76, v{LNF}
    s_mov_b32 s37, 0
    s_cbranch_vccnz L_ut_no
    s_mov_b32 s37, 1
    """)
    u_issue(A, vl16)
    A.label("L_ut_no")

def u_spin(A, vt, vl16, tag=''):
    A("s_mov_b32 s30, 0")
    A.label(f"L_us_poll{tag}")
    A.extend(lnflag_load(vt))
    A(f"""
    s_add_u32 s30, s30, 1
    s_waitcnt vmcnt(0)
    v_cmp_ne_u32 vcc, s76, v{LNF}
    s_cmp_gt_u32 s30, {SPIN}
    s_cbranch_scc1 L_us_ok{tag}
    s_cbranch_vccnz L_us_poll{tag}
    """)
    A.label(f"L_us_ok{tag}")
    u_issue(A, vl16)
    A("s_waitcnt vmcnt(0)")

def ya_addr(vd, vt):
    return [f"v_lshrrev_b32 v{vd}, 3, v0", f"v_and_b32 v{vt}, 7, v0", f"v_lshlrev_b32 v{vd}, 13, v{vd}", f"v_lshl_add_u32 v{vd}, v{vt}, 4, v{vd}",
            "s_lshr_b32 s28, s39, 1", "s_lshl_b32 s31, s2, 1", "s_add_u32 s31, s31, s28",
            "s_lshr_b32 s29, s31, 6", "s_lshl_b32 s29, s29, 18", "s_and_b32 s28, s31, 63", "s_lshl_b32 s28, s28, 7", "s_add_u32 s29, s29, s28",
            f"s_add_u32 s29, s29, {WS_YA}", "s_and_b32 s30, s39, 1", "s_lshl_b32 s30, s30, 17", "s_add_u32 s30, s30, s29", "s_add_u32 s31, s30, 65536"]
def ya_prefill(vd, vt, vm4):
    return ya_addr(vd, vt) + [f"v_mov_b32 v{vm4+k}, -1" for k in range(4)] + \
           [f"buffer_store_dwordx4 v[{vm4}:{vm4+3}], v{vd}, s[12:15], s{30+h} offen {SC}" for h in range(2)]

def publish_flag(A, soff, vt, tag, wave, both=False):
    A(f"""
    s_cmp_lg_u32 s20, {wave}
    s_cbranch_scc1 L_pub_skip{tag}
    v_mov_b32 v{vt}, 0
    v_mov_b32 v{vt+1}, s76
    s_mov_b64 exec, 1
    buffer_store_dword v{vt+1}, v{vt}, s[12:15], {soff} offen {SC}
    """)
    if both:
        A(f"""
        s_lshl_b32 s28, s2, 7
        s_add_u32 s28, s28, {WS_FLW}
        buffer_store_dword v{vt+1}, v{vt}, s[12:15], s28 offen {SC}
        """)
    A(f"""
    s_mov_b64 exec, -1
    L_pub_skip{tag}:
    """)
def mktag(A):
    A("s_mul_i32 s76, s76, 0x9E3779B1")
    A("s_add_u32 s76, s76, 0x7F4A7C15")
def arrive(A, tag):
    A(f"""
    s_cmp_lg_u32 s20, 3
    s_cbranch_scc1 L_arr{tag}
    s_atomic_add s77, s[54:55], 0 glc
    L_arr{tag}:
    """)

def coop_prefetch(A, vt):
    A(f"""
    s_lshl_b32 s28, s24, 2
    s_add_u32 s28, s28, s39
    s_lshl_b32 s30, s28, 6
    v_add_u32 v{vt}, s30, v0
    v_mul_u32_u24 v{vt+1}, 0x4925, v{vt}
    v_lshrrev_b32 v{vt+1}, 18, v{vt+1}
    v_mul_u32_u24 v{vt+2}, 14, v{vt+1}
    v_sub_u32 v{vt}, v{vt}, v{vt+2}
    v_lshlrev_b32 v{vt}, 7, v{vt}
    v_mul_u32_u24 v{vt+1}, 3584, v{vt+1}
    v_add_u32 v{vt}, v{vt}, v{vt+1}
    s_and_b32 s29, s23, 1
    s_mul_i32 s29, s29, 1792
    buffer_load_dword v{VDUM}, v{vt}, s[8:11], s29 offen
    s_lshr_b32 s29, s23, 1
    s_lshl_b32 s29, s29, 19
    s_lshl_b32 s30, s28, 13
    s_add_u32 s29, s29, s30
    s_cmp_lt_u32 s28, 64
    s_cselect_b32 s29, s29, 0x400000
    v_lshlrev_b32 v{vt+2}, 7, v0
    buffer_load_dword v{VDUM}, v{vt+2}, s[4:7], s29 offen
    """)
def w2_prefetch(vt, piece):
    return ["s_lshl_b32 s28, s24, 2", "s_add_u32 s28, s28, s39", "s_lshl_b32 s28, s28, 14", f"s_add_u32 s28, s28, {piece*8192}",
            f"v_lshlrev_b32 v{vt}, 7, v0", f"buffer_load_dword v{VDUM}, v{vt}, s[16:19], s28 offen"]

def cmul(d, x, y, pk=True):
    P = lambda r: f"v[{r}:{r+1}]"
    assert d != x and d != y
    if pk:
        return [f"v_pk_mul_f32 {P(d)}, {P(x)}, {P(y)} op_sel:[0,0] op_sel_hi:[0,1]",
                f"v_pk_fma_f32 {P(d)}, {P(x)}, {P(y)}, {P(d)} op_sel:[1,1,0] op_sel_hi:[1,0,1] neg_lo:[0,1,0]"]
    return [f"v_mul_f32 v{d}, v{x}, v{y}", f"v_mul_f32 v{d+1}, v{x}, v{y+1}",
            f"v_fma_f32 v{d}, -v{x+1}, v{y+1}, v{d}", f"v_fma_f32 v{d+1}, v{x+1}, v{y}, v{d+1}"]

def kg_common(A, base, T0, Z, WA):
    ar, ai, br, bi, cr, ci, ld, dsk = range(P0, P0 + 8)
    u_ = f2u(LOG2E) & 0xFFFFFF00
    lh = struct.unpack("<f", struct.pack("<I", u_))[0]; ll = LOG2E - lh
    A(f"""
    v_mul_f32 v{T0}, {hex(f2u(lh))}, v{ld}
    v_mul_f32 v{T0+1}, {hex(f2u(ll * math.log(2)))}, v{ld}
    v_exp_f32 v{T0}, v{T0}
    s_nop 0
    v_fma_f32 v{T0}, v{T0}, v{T0+1}, v{T0}
    """)
    round_bf16(A, T0)
    A(f"""
    v_mul_f32 v{Z}, v{T0}, v{ar}
    v_mul_f32 v{Z+1}, v{T0}, v{ai}
    v_mul_f32 v{br}, v{T0}, v{br}
    v_mul_f32 v{bi}, v{T0}, v{bi}
    v_mul_f32 v{Z}, {hex(f2u(LOG2E))}, v{Z}
    v_mul_f32 v{Z+1}, 0.15915494, v{Z+1}
    """)
def kg_waddr(A, base, WA):
    A(f"s_lshl_b32 s28, s39, 13\ns_add_u32 s28, s28, {base}\nv_lshl_add_u32 v{WA}, v0, 2, s28")
    for k in range(1, 16): A(f"v_xor_b32 v{WA+k}, {16*k}, v{WA}")
def kg_raddr(base, d, t):
    o = ["s_lshl_b32 s28, s39, 13", f"s_add_u32 s28, s28, {base}", f"v_and_b32 v{t}, 15, v0", f"v_lshrrev_b32 v{t+1}, 5, v0", f"v_xor_b32 v{t}, v{t}, v{t+1}",
         f"v_and_b32 v{t+1}, 31, v0", f"v_lshlrev_b32 v{t+1}, 8, v{t+1}", f"v_lshl_add_u32 v{d}, v{t}, 4, v{t+1}", f"v_add_u32 v{d}, s28, v{d}"]
    return o + [f"v_xor_b32 v{d+k}, {32*k}, v{d}" for k in range(1, 8)]
def cexp(d, x, t, Z):
    xs = {1: None, 8: hex(f2u(8.0)), 256: hex(f2u(256.0))}[x]
    o = []
    if xs is None: o += [f"v_exp_f32 v{t}, v{Z}", f"v_fract_f32 v{t+1}, v{Z+1}"]
    else: o += [f"v_mul_f32 v{t}, {xs}, v{Z}", f"v_mul_f32 v{t+1}, {xs}, v{Z+1}", f"v_exp_f32 v{t}, v{t}", f"v_fract_f32 v{t+1}, v{t+1}"]
    o += [f"v_cos_f32 v{d}, v{t+1}", f"v_sin_f32 v{d+1}, v{t+1}", f"v_mul_f32 v{d}, v{d}, v{t}", f"v_mul_f32 v{d+1}, v{d+1}, v{t}"]
    return o
KWA = 100
KRA = 116

def gen_kgen_v(A):
    T0, Z, E8, E16, Va, Vb, PKT = 34, 144, 44, 46, 80, 84, 88
    kg_common(A, L_VS, T0, Z, KWA)
    A.extend(cexp(E8, 8, T0, Z))
    A.extend(cmul(E16, E8, E8))
    npk = [0]
    def emit(src, row):
        t = PKT + (npk[0] % 8); npk[0] += 1
        return [f"v_cvt_pk_bf16_f32 v{t}, v{src}, v{src+1}", f"ds_write_b32 v{KWA + (row & 15)}, v{t} offset:{row*256}"]
    A(f"v_mov_b32 v{PKT+7}, 0x00003f80")
    A(f"ds_write_b32 v{KWA}, v{PKT+7}")
    A.extend(emit(E8, 1)); A.extend(emit(E16, 2))
    ev, od = E16, E8
    for j in range(3, 32, 2):
        d1 = Va + 2 * (((j - 3) // 2) % 2)
        d2 = Vb + 2 * (((j - 3) // 2) % 2)
        l1 = cmul(d1, od, E16) + emit(d1, j)
        l2 = (cmul(d2, ev, E16) + emit(d2, j + 1)) if j + 1 < 32 else []
        A.extend(zipm(l1, l2))
        od, ev = d1, d2
    for st in range(8): A(f"ds_read_b128 v[{BF+4*st}:{BF+4*st+3}], v{KRA+st}")

UPK = 192
def kgen_u_lists(rebase):
    T0, Z, E1, G, Lr, Va = 34, 144, 42, 44, 58, 76
    ar, ai, br, bi, cr, ci, ld, dsk = range(P0, P0 + 8)
    cm = lambda d, x, y: cmul(d, x, y, False)
    V = []; Wr = []
    if rebase: V += [f"v_subrev_u32 v{KWA+k}, {rebase}, v{KWA+k}" for k in range(24)]
    V += zipm(cexp(E1, 1, T0 + 2, Z), cexp(G, 256, T0 + 4, Z), cm(Lr, cr, br))
    npk = [0]
    def emit(src, rows):
        t = UPK + npk[0]; npk[0] += 1
        Wr.extend(f"ds_write_b32 v{KWA + (row & 15)}, v{t} offset:{row*256}" for row in rows)
        return [f"v_cvt_pk_bf16_f32 v{t}, v{src}, -v{src+1}"]
    urow = lambda hh, r: 8 * (r >> 2) + 4 * hh + (r & 3)
    lch = emit(Lr, [urow(0, 0)])
    for a_ in range(1, 9): lch += cm(Lr + 2 * a_, Lr + 2 * (a_ - 1), E1) + emit(Lr + 2 * a_, [urow(0, a_)])
    gch = []
    for k in range(2, 8): gch += cm(G + 2 * (k - 1), G + 2 * (k - 2), G)
    V += zipm(lch, gch)
    jobs = [(0, 1, [urow(1, 0), urow(1, 1)]), (2, 1, [urow(1, 2)]), (4, 1, [urow(1, 3), urow(1, 4), urow(1, 5)]), (6, 1, [urow(1, 6)]),
            (8, 1, [urow(1, 7), urow(1, 8)]),
            (0, 2, [urow(0, 9)]), (4, 2, [urow(0, 10)]), (8, 2, [urow(0, 11)]),
            (0, 3, [urow(1, 9)]), (4, 3, [urow(1, 10)]), (8, 3, [urow(1, 11)]),
            (0, 4, [urow(0, 12)]), (8, 4, [urow(0, 13)]), (0, 5, [urow(0, 14)]), (8, 5, [urow(0, 15)]),
            (0, 6, [urow(1, 12)]), (8, 6, [urow(1, 13)]), (0, 7, [urow(1, 14)]), (8, 7, [urow(1, 15)])]
    for k in range(0, len(jobs), 2):
        ls = []
        for q_, (a_, gk, rows) in enumerate(jobs[k:k + 2]):
            d = Va + 4 * q_ + 2 * ((k // 2) % 2)
            ls.append(cm(d, Lr + 2 * a_, G + 2 * (gk - 1)) + emit(d, rows))
        V += zipm(*ls)
    assert npk[0] <= 32
    return V, Wr

def kg_atoms_m():
    at = [[f"ds_read_b128 v[{AF+4*k}:{AF+4*k+3}], v{KRA+k} offset:{L_US - L_VS}", ("tag", ("af", k))] for k in range(8)]
    mm = []
    for st in range(8):
        cin = "0" if st == 0 else f"v[{DK}:{DK+15}]"
        mm.append([("wait", ("af", st)), f"v_mfma_f32_32x32x16_bf16 v[{DK}:{DK+15}], v[{AF+4*st}:{AF+4*st+3}], v[{BF+4*st}:{BF+4*st+3}], {cin}"])
    return at, mm

def kg_atoms_x1():
    T0 = P0
    at = [[f"s_lshr_b32 s30, s39, 1", f"s_mul_i32 s30, s30, {CH_SIZE}", f"s_add_u32 s38, s30, {L_CH}", f"v_lshl_add_u32 v{T0}, v0, 4, s38"]]
    at.append(["s_bitcmp1_b32 s39, 0", "s_cselect_b64 exec, -1, 0"] + [f"ds_write_b128 v{T0}, v[{DK+4*q}:{DK+4*q+3}] offset:{512+q*1024}" for q in range(3)] +
              ["s_not_b64 exec, exec", f"ds_write_b128 v{T0}, v[{DK+12}:{DK+15}] offset:{512+3072}", "s_mov_b64 exec, -1"])
    return at

def kg_atoms_x2(tag):
    T0 = P0; VEA, VEB = 254, 255
    at = []
    at.append([f"ds_read_b128 v[{DP+4*q}:{DP+4*q+3}], v{T0} offset:{512+q*1024}" for q in range(4)] + [("tag", "dp")])
    for i in [f"v_and_b32 v{T0+4}, 31, v0", f"v_lshrrev_b32 v{T0+1}, 5, v0", f"v_lshlrev_b32 v{T0+2}, 4, v{T0+4}"]: at.append([i])
    at.append([f"s_add_u32 s28, s38, {OFF_E + 4080 - 1024}", f"v_sub_u32 v{VEA}, s28, v{T0+2}"])
    at.append([f"v_lshlrev_b32 v{T0+3}, 9, v{T0+1}"]); at.append([f"v_sub_u32 v{VEA}, v{VEA}, v{T0+3}"])
    at.append([f"s_add_u32 s28, s38, {OFF_E + 4080 - 2560}", f"v_sub_u32 v{VEB}, s28, v{T0+2}"])
    at.append([f"v_lshlrev_b32 v{T0+3}, 10, v{T0+1}"]); at.append([f"v_sub_u32 v{VEB}, v{VEB}, v{T0+3}"])
    at.append([f"v_lshl_add_u32 v{T0}, v0, 3, s38"]); at.append([f"v_mov_b32 v{T0+2}, 0"]); at.append([f"v_mov_b32 v{T0+3}, 0"])
    at.append(["s_lshl_b32 s28, s39, 2", f"s_add_u32 s28, s28, {L_FLAG}", f"v_mov_b32 v{T0+1}, s28"])
    for k in range(16): at.append(([("wait", "dp")] if k == 0 else []) + [f"v_add_f32 v{DK+k}, v{DK+k}, v{DP+k}"])
    at.append(mask("0xaaaaaaaa") + [f"v_cndmask_b32 v{DP}, v{DK+12}, v{DK+13}, s[28:29]", f"v_cndmask_b32 v{DP+1}, v{DK+14}, v{DK+15}, s[28:29]"])
    k_ = lambda r: DK + r
    def half(base, kk, va, off, odd):
        prs = [(8, 7), (6, 5), (4, 3), (2, 1)] if odd else [(7, 6), (5, 4), (3, 2), (1, 0)]
        return [f"v_cvt_pk_bf16_f32 v{base+i}, v{kk[lo]}, v{kk[hi]}" for i, (lo, hi) in enumerate(prs)] + \
               [f"ds_write_b128 v{va}, v[{base}:{base+3}] offset:{off + (OFF_O - OFF_E if odd else 0)}"]
    ev = [([k_(i) for i in range(9)], VEA, 1024), ([k_(9)] * 3 + [k_(10)] * 3 + [k_(11)] * 3, VEA, 0)]
    od = [([k_(12)] * 4 + [DP] + [k_(13)] * 4, VEB, 512), ([k_(14)] * 4 + [DP + 1] + [k_(15)] * 4, VEB, 0)]
    n = 0
    for gi in range(2):
        for o_ in range(2):
            b_ = EX + 4 * n
            at.append(["s_bitcmp1_b32 s39, 0", f"s_cbranch_scc1 L_xo{tag}{n}"] + half(b_, *ev[gi], o_)[:-1] + [("nods", half(b_, *ev[gi], o_)[-1]), f"s_branch L_xd{tag}{n}",
                       f"L_xo{tag}{n}:"] + half(b_, *od[gi], o_) + [f"L_xd{tag}{n}:"])
            n += 1
    at.append(["s_bitcmp0_b32 s39, 0", "s_cselect_b64 s[28:29], -1, 0", "s_mov_b64 exec, s[28:29]",
               f"ds_write_b64 v{T0}, v[{T0+2}:{T0+3}]", "s_and_b64 exec, s[28:29], 15",
               f"ds_write_b64 v{T0}, v[{T0+2}:{T0+3}] offset:{OFF_E+4096}", f"ds_write_b64 v{T0}, v[{T0+2}:{T0+3}] offset:{OFF_O+4096}",
               "s_and_b64 exec, s[28:29], 1", f"ds_write_b16_d16_hi v{T0}, v{EX+3} offset:{OFF_O+4096}",
               "s_mov_b64 exec, -1"])
    at.append([f"v_mov_b32 v{T0+2}, 1", f"ds_write_b32 v{T0+1}, v{T0+2} offset:64"])
    return at

def flag_zero():
    return [[f"v_lshlrev_b32 v{VT1}, 2, v0", f"v_mov_b32 v{VT1+1}, 0", f"v_add_u32 v{VT1}, {L_FLAG}, v{VT1}", f"ds_write_b32 v{VT1}, v{VT1+1}"]]

class LQ:
    def __init__(self, A): self.A = A; self.q = []
    def emit(self, items, tag=None):
        maybe0 = any(isinstance(it, str) and "s_cselect_b64" in it for it in items)
        for it in items:
            if maybe0 and isinstance(it, str):
                self.A(it); continue
            if isinstance(it, tuple):
                if it[0] == "tag": self.q[-1] = it[1]
                elif it[0] == "wait": self.wait(it[1])
                elif it[0] == "nods": self.A(it[1])
                continue
            self.A(it)
            if it.strip().startswith("ds_"): self.q.append(tag)
            if "lgkmcnt(0)" in it: self.q = []
    def wait(self, tag):
        idx = max((k for k, t in enumerate(self.q) if t == tag), default=-1)
        if idx < 0: return
        n = min(len(self.q) - 1 - idx, 15)
        self.A(f"s_waitcnt lgkmcnt({n})")
        self.q = self.q[len(self.q) - n:] if n else []

def spread(atoms, g0, g1):
    pts = [(g, p) for g in range(g0, g1) for p in range(2)]
    tot = sum(len(a_) for a_ in atoms); out = {p: [] for p in pts}; acc = 0
    for a_ in atoms:
        out[pts[min(len(pts) - 1, acc * len(pts) // tot)]].append(a_); acc += len(a_)
    return out

VXO, VWO, VXO2 = 1, 2, 3
VXR, VTR = 4, 8
VONE, VHO1, VB1 = 16, 18, 19
VCW, VCR, VSO = 20, 21, 22
VT1 = 28
NR = 3
W1, X1, ACC1, CS = 32, 56, 80, 144
HI = 152
GT, PK, SG = 164, 180, 188
EA, EB = 192, 196
VS, K1r, K3r = 212, 214, 216

def wave_flag(soff, vt):
    return [f"v_mov_b32 v{vt}, 0", f"v_mov_b32 v{vt+1}, s76", "s_mov_b64 exec, 1",
            f"buffer_store_dword v{vt+1}, v{vt}, s[12:15], {soff} offen {SC}", "s_mov_b64 exec, -1"]

def dma_setup(A):
    VT = VT1
    A(f"""
    v_lshrrev_b32 v{VT}, 3, v0
    v_and_b32 v{VT+1}, 7, v0
    v_lshrrev_b32 v{VT+2}, 4, v0
    v_xor_b32 v{VT+3}, v{VT+2}, v{VT+1}
    v_lshlrev_b32 v{VXO}, 10, v{VT}
    v_lshl_add_u32 v{VXO}, v{VT+3}, 4, v{VXO}
    v_xor_b32 v{VXO2}, 64, v{VXO}
    v_add_u32 v{VXO2}, 8192, v{VXO2}
    v_and_b32 v{VT+3}, 15, v0
    v_lshlrev_b32 v{VT}, 2, v{VT+2}
    v_xor_b32 v{VT+3}, v{VT+3}, v{VT}
    v_mul_u32_u24 v{VWO}, 3584, v{VT+2}
    v_lshl_add_u32 v{VWO}, v{VT+3}, 4, v{VWO}
    s_lshl_b32 s25, s21, 17
    s_lshl_b32 s28, s39, 15
    s_add_u32 s25, s25, s28
    s_mul_i32 s26, s39, {16*3584}
    s_lshl_b32 s28, s22, 8
    s_add_u32 s26, s26, s28
    s_lshl_b32 s27, s39, 12
    """)

def g1_dma(kc, part):
    st = (kc % NS) * STAGE
    return [f"s_add_u32 m0, s27, {st + part*1024}", f"s_add_u32 s31, s25, {128*kc + (part//2)*16384}",
            f"buffer_load_dwordx4 v{VXO if part % 2 == 0 else VXO2}, s[4:7], s31 offen lds",
            f"s_add_u32 m0, s27, {st + 16384 + part*1024}", f"s_add_u32 s37, s26, {(64*kc + 4*part)*3584}",
            f"buffer_load_dwordx4 v{VWO}, s[8:11], s37 offen lds"]

def c_setup(A):
    VT = VT1
    A(f"""
    v_and_b32 v{VT}, 31, v0
    v_lshrrev_b32 v{VT+1}, 5, v0
    v_bfe_u32 v{VT+2}, v0, 1, 3
    v_xor_b32 v{VT+2}, v{VT+2}, v{VT+1}
    s_lshl_b32 s31, s34, 1
    v_xor_b32 v{VT+2}, s31, v{VT+2}
    v_lshlrev_b32 v{VXR}, 7, v{VT}
    v_lshl_add_u32 v{VXR}, v{VT+2}, 4, v{VXR}
    s_lshl_b32 s28, s34, 13
    v_add_u32 v{VXR}, s28, v{VXR}
    v_xor_b32 v{VXR+1}, 32, v{VXR}
    v_xor_b32 v{VXR+2}, 64, v{VXR}
    v_xor_b32 v{VXR+3}, 96, v{VXR}
    v_lshlrev_b32 v{VSO}, 3, v0
    v_bfe_u32 v{VT+2}, v0, 2, 2
    v_lshl_add_u32 v{VTR}, v{VT+1}, 3, v{VT+2}
    v_lshlrev_b32 v{VTR}, 8, v{VTR}
    v_bfe_u32 v{VT+3}, v0, 4, 1
    v_lshl_add_u32 v{VTR}, v{VT+3}, 5, v{VTR}
    v_and_b32 v{VT+3}, 3, v0
    v_lshl_add_u32 v{VTR}, v{VT+3}, 3, v{VTR}
    s_lshl_b32 s31, s35, 1
    v_xor_b32 v{VT+2}, s31, v{VT+2}
    v_lshl_add_u32 v{VTR}, v{VT+2}, 6, v{VTR}
    s_lshl_b32 s31, s34, 12
    s_add_u32 s31, s31, 16384
    v_add_u32 v{VTR}, s31, v{VTR}
    """)
    for i in range(4):
        for ft in range(2):
            if i == 0 and ft == 0: continue
            A(f"v_xor_b32 v{VTR+2*i+ft}, {i*4096 + ft*64}, v{VTR}")
    A(f"""
    v_mov_b32 v{VONE}, 0x3f803f80
    v_mov_b32 v{VONE+1}, 0x3f803f80
    v_lshlrev_b32 v{VHO1}, 4, v0
    s_lshl_b32 s33, s21, 1
    s_add_u32 s33, s33, s34
    s_lshl_b32 s36, s33, 9
    s_add_u32 s36, s36, {WS_STAT}
    s_mul_i32 s32, s33, {2*112*1024}
    s_lshl_b32 s28, s22, 1
    s_add_u32 s28, s28, s35
    s_lshl_b32 s29, s28, 12
    s_add_u32 s32, s32, s29
    s_add_u32 s32, s32, {WS_HF}
    s_add_u32 s38, s32, {112*1024}
    s_lshl_b32 s33, s33, 5
    s_add_u32 s33, s33, s28
    s_lshl_b32 s33, s33, 7
    s_add_u32 s33, s33, {WS_FLH}
    s_lshl_b32 s29, s20, 8
    v_lshl_add_u32 v{VCW}, v0, 2, s29
    v_add_u32 v{VCW}, {L_CS}, v{VCW}
    v_xor_b32 v{VCR}, 256, v{VCW}
    """)
    srd(A, 16, "s46", "s47", 3584)
    A(f"""
    v_mov_b32 v{VB1}, 0
    v_lshlrev_b32 v{VT1}, 1, v0
    s_lshl_b32 s28, s28, 7
    buffer_load_short_d16_hi v{VB1}, v{VT1}, s[16:19], s28 offen
    """)
    for k in range(20): A(f"v_mov_b32 v{EA+k}, 0")
    for k in range(12): A(f"v_add_u32 v{HI+k}, 0x10000, v{VXR+k}")

def c_reads(g):
    kc, i = divmod(g, 4)
    st = kc % NS
    b = (VXR if st < 2 else HI); off = (st % 2) * STAGE
    sl = g % NR
    tr = lambda ft, sec: f"ds_read_b64_tr_b16 v[{W1+8*sl+4*ft+2*sec}:{W1+8*sl+4*ft+2*sec+1}], v{b+4+2*i+ft} offset:{off + sec*1024}"
    xr = lambda tt: f"ds_read_b128 v[{X1+8*sl+4*tt}:{X1+8*sl+4*tt+3}], v{b+i} offset:{off + tt*4096}"
    return [xr(0), tr(0, 0), tr(0, 1), tr(1, 0), tr(1, 1), xr(1)]

def gen_c1(A):
    VT = VT1
    dma_setup(A)
    A(f"""
    s_and_b32 s34, s20, 1
    s_lshr_b32 s35, s20, 1
    s_waitcnt lgkmcnt(0)
    s_add_u32 s42, s42, {WSOFF}
    s_addc_u32 s43, s43, 0
    s_load_dword s76, s[42:43], {WS_EPOCH}
    """)
    vm = VMQ()
    srd(A, 4, "s40", "s41", 2 << 20)
    srd(A, 8, "s44", "s45", 512 * 3584)
    srd(A, 12, "s42", "s43", WS_USED)
    for kc in range(3):
        for part in range(4): A.extend(g1_dma(kc, part))
        vm.note(kc, 8)
        if kc == 0:
            c_setup(A); vm.note("b1")
        if kc == env("PFAT", 1) and OPT_PF: coop_prefetch(A, VT); vm.note("pf", 2)
    A.extend(ya_prefill(VT, VT + 1, PK)); vm.note(2, 2)
    hpre = [f"buffer_store_dwordx4 v[{PK}:{PK+3}], v{VHO1}, s[12:15], s{32 if n < 4 else 38} offen offset:{(n%4)*1024} {SC}" for n in range(8)]
    HPRE = env("HPRE", 0)
    if HPRE == 1: A.extend(hpre); vm.note(2, 8)
    w2_setup(A, VT)
    mpf = ["s_lshl_b32 s28, s2, 2", "s_add_u32 s28, s28, s39", "s_lshl_b32 s28, s28, 11", f"v_lshlrev_b32 v{VT+2}, 7, v0", "s_mov_b64 exec, 0xffff",
           f"buffer_load_dword v{VDUM}, v{VT+2}, s[16:19], s28 offen", "s_mov_b64 exec, -1"]
    MPG = env("MPG", 9)
    if MPG == -1: A.extend(mpf); vm.note(2)
    A.st("pre")
    A(vm.wait(0)[0] + " lgkmcnt(0)"); A("s_barrier")
    A.st("b0")
    T = GT
    lq = LQ(A)
    lq.emit(c_reads(0), 0); lq.emit(c_reads(1), 1)
    mktag(A)
    def big(g, tt, ft):
        sl = g % NR; c = ACC1 + 32 * tt + 16 * ft
        cin = "0" if g == 0 else f"v[{c}:{c+15}]"
        return f"v_mfma_f32_32x32x16_bf16 v[{c}:{c+15}], v[{W1+8*sl+4*ft}:{W1+8*sl+4*ft+3}], v[{X1+8*sl+4*tt}:{X1+8*sl+4*tt+3}], {cin}"
    for g in range(32):
        kc, i = divmod(g, 4); w = W1 + 8 * (g % NR)
        m = lambda d, b_, z: f"v_mfma_f32_4x4x4_16b_bf16 v[{d}:{d+3}], v[{VONE}:{VONE+1}], v[{b_}:{b_+1}], " + ("0" if z else f"v[{d}:{d+3}]")
        o1, o2 = [], []
        if i < 2 and False: pass
        if i in (0, 2) and g < 28 or g in (28, 29):
            o1 = [m(CS, w, g == 0), m(CS + 4, w + 4, g == 0)]; o2 = [m(CS, w + 2, False), m(CS + 4, w + 6, False)]
        A.st(f"g{g}")
        gn = g + 2
        rd = c_reads(PERM(gn))[:] if gn < 32 else []
        rd = c_reads_slot(gn) if gn < 32 else []
        x1, x2 = [], []
        if i == 2 and kc + 1 < 8: x1 += vm.wait(kc + 1) + ["s_barrier"]
        if g == 30:
            x1 += [f"v_permlane32_swap_b32 v{CS}, v{CS+4}", f"v_add_f32 v{CS}, v{CS}, v{CS+4}", f"ds_write_b32 v{VCW}, v{CS}",
                   "s_waitcnt lgkmcnt(0)", "s_barrier", f"ds_read_b32 v{T+2}, v{VCR}"]
        if g == STATG: x2 += [f"buffer_load_dwordx2 v[{SG}:{SG+1}], v{VSO}, s[12:15], s36 offen {SC}"]; vm.note("sg")
        if g == MPG: x2 += mpf; vm.note("mpf")
        if HPRE >= 10 and HPRE <= g < HPRE + 8: x2 += [hpre[g - HPRE]]; vm.note("hp")
        if HPRE == 2 and g == 11:
            x2 += [f"v_and_b32 v{VT+2}, 31, v0", f"v_lshlrev_b32 v{VT+2}, 7, v{VT+2}", "s_mov_b64 exec, 0xffffffff", "s_mov_b32 exec_hi, 0",
                   f"buffer_load_dword v{VDUM}, v{VT+2}, s[12:15], s32 offen", f"buffer_load_dword v{VDUM}, v{VT+2}, s[12:15], s38 offen", "s_mov_b64 exec, -1"]; vm.note("hp", 2)
        if g in PFG:
            n_ = 128 // len(PFG); k_ = PFG.index(g)
            x2 += ["s_lshl_b32 s28, s24, 2", "s_add_u32 s28, s28, s39", "s_lshl_b32 s28, s28, 14", f"s_add_u32 s28, s28, {k_*n_*128}", f"v_lshlrev_b32 v{VT+2}, 7, v0"]
            if n_ < 64: x2 += [f"s_mov_b32 exec_lo, {hex((1 << n_) - 1)}", "s_mov_b32 exec_hi, 0"]
            x2 += [f"buffer_load_dword v{VDUM}, v{VT+2}, s[16:19], s28 offen", "s_mov_b64 exec, -1"]; vm.note("l2")
        if g == env("YFG", 8) - 1: x2 += yflag_off()
        if g == env("YFG", 8): x2 += wave_flag("s28", VT); vm.note("yf")
        lq.wait(g)
        A(big(g, 0, 0))
        if i == 2: A.st(f"pb{kc+1}")
        lq.emit(x1)
        if i == 2: A.st(f"ab{kc+1}")
        lq.emit(rd[:2], gn)
        A(big(g, 0, 1)); lq.emit(rd[2:4], gn); A.extend(o1)
        A(big(g, 1, 0)); lq.emit(rd[4:], gn)
        A(big(g, 1, 1)); lq.emit(x2); A.extend(o2)
    A.st("loop")
    A.extend(vm.wait("sg", "b1"))
    A(f"""
    v_cmp_ne_u32 vcc, s76, v{SG+1}
    s_cbranch_vccz L_g1_sok
    s_mov_b32 s30, 0
    L_g1_spoll:
    buffer_load_dwordx2 v[{SG}:{SG+1}], v{VSO}, s[12:15], s36 offen {SC}
    s_add_u32 s30, s30, 1
    s_waitcnt vmcnt(0)
    v_cmp_ne_u32 vcc, s76, v{SG+1}
    s_cmp_gt_u32 s30, {SPIN}
    s_cbranch_scc1 L_g1_sok
    s_cbranch_vccnz L_g1_spoll
    L_g1_sok:
    v_mov_b32 v{SG+1}, v{SG}
    s_mov_b32 s28, -1
    s_mov_b32 s29, 0
    v_permlane32_swap_b32 v{SG}, v{SG+1}
    s_waitcnt lgkmcnt(0)
    v_add_f32 v{T+2}, v{T+2}, v{CS}
    """)
    l1 = []
    for tt in range(2):
        l1 += [f"v_and_b32 v{VS+tt}, 0xffff0000, v{SG+tt}", f"v_and_b32 v{T+8+tt}, 0xffff, v{SG+tt}", f"v_rcp_f32 v{T+6+tt}, v{VS+tt}",
               f"v_lshl_or_b32 v{T+8+tt}, v{T+8+tt}, 16, v{T+8+tt}",
               f"v_cndmask_b32 v{EB+8*tt}, 0, v{T+8+tt}, s[28:29]", f"v_cndmask_b32 v{EB+8*tt+1}, 0, v{SG+tt}, s[28:29]",
               f"v_cndmask_b32 v{EB+8*tt+4}, v{T+8+tt}, 0, s[28:29]", f"v_cndmask_b32 v{EB+8*tt+5}, v{SG+tt}, 0, s[28:29]"]
    l2 = [f"v_and_b32 v{T+3}, 0xffff0000, v{T+2}", f"v_sub_f32 v{T+3}, v{T+2}, v{T+3}", f"v_lshrrev_b32 v{T+2}, 16, v{T+2}",
          f"v_and_b32 v{T+4}, 0xffff0000, v{T+3}", f"v_sub_f32 v{T+5}, v{T+3}, v{T+4}", f"v_or_b32 v{EA}, v{T+2}, v{T+4}",
          f"v_lshrrev_b32 v{T+5}, 16, v{T+5}", f"v_or_b32 v{EA+1}, v{T+5}, v{VB1}"]
    A.extend(zipm(l1, l2))
    l3 = []
    for tt in range(2):
        l3.append([f"v_fma_f32 v{T+10+tt}, -v{VS+tt}, v{T+6+tt}, 1.0", f"v_fma_f32 v{T+6+tt}, v{T+10+tt}, v{T+6+tt}, v{T+6+tt}",
                   f"v_mul_f32 v{K1r+tt}, {hex(f2u(GC1))}, v{T+6+tt}", f"v_mul_f32 v{T+10+tt}, v{T+6+tt}, v{T+6+tt}",
                   f"v_mul_f32 v{K3r+tt}, {hex(f2u(GC2))}, v{T+6+tt}", f"v_mul_f32 v{K3r+tt}, v{K3r+tt}, v{T+10+tt}"])
    l3 = zipm(*l3)
    for tt in range(2):
        for ft in range(2):
            c = ACC1 + 32 * tt + 16 * ft
            A(f"v_mfma_f32_32x32x16_bf16 v[{c}:{c+15}], v[{EA}:{EA+3}], v[{EB+8*tt+4*ft}:{EB+8*tt+4*ft+3}], v[{c}:{c+15}]")
            A.extend(l3[3 * (2 * tt + ft):3 * (2 * tt + ft) + 3])
    A.st("gstart")
    for n in range(8):
        tt = n // 4
        c0 = ACC1 + 8 * n
        t0 = GT + 8 * (n % 2)
        if GPK:
            P = lambda x: f"v[{x}:{x+1}]"
            sel = f"op_sel:[0,{tt},{tt}] op_sel_hi:[1,{tt},{tt}]"
            for k in range(0, 8, 2): A(f"v_pk_mul_f32 {P(t0+k)}, {P(c0+k)}, {P(c0+k)}")
            for k in range(0, 8, 2): A(f"v_pk_fma_f32 {P(t0+k)}, {P(t0+k)}, {P(K3r)}, {P(K1r)} {sel}")
            for k in range(0, 8, 2): A(f"v_pk_mul_f32 {P(t0+k)}, {P(t0+k)}, {P(c0+k)}")
            for k in range(8): A(f"v_exp_f32 v{t0+k}, v{t0+k}")
            for k in range(0, 8, 2): A(f"v_pk_fma_f32 {P(t0+k)}, {P(t0+k)}, {P(VS)}, {P(VS)} {sel}")
            for k in range(8): A(f"v_rcp_f32 v{t0+k}, v{t0+k}")
            for k in range(0, 8, 2): A(f"v_pk_mul_f32 {P(c0+k)}, {P(c0+k)}, {P(t0+k)}")
        else:
            for k in range(8): A(f"v_mul_f32 v{t0+k}, v{c0+k}, v{c0+k}")
            for k in range(8): A(f"v_fma_f32 v{t0+k}, v{t0+k}, v{K3r+tt}, v{K1r+tt}")
            for k in range(8): A(f"v_mul_f32 v{t0+k}, v{t0+k}, v{c0+k}")
            for k in range(8): A(f"v_exp_f32 v{t0+k}, v{t0+k}")
            for k in range(8): A(f"v_fma_f32 v{t0+k}, v{t0+k}, v{VS+tt}, v{VS+tt}")
            for k in range(8): A(f"v_rcp_f32 v{t0+k}, v{t0+k}")
            for k in range(8): A(f"v_mul_f32 v{c0+k}, v{c0+k}, v{t0+k}")
        pk = PK + 4 * (n % 2)
        for k in range(4): A(f"v_cvt_pk_bf16_f32 v{pk+k}, v{c0+2*k}, v{c0+2*k+1}")
        A(f"buffer_store_dwordx4 v[{pk}:{pk+3}], v{VHO1}, s[12:15], s{32 if tt == 0 else 38} offen offset:{(n%4)*1024} {SCH}")
        if env("DBL", 0): A(f"buffer_store_dwordx4 v[{pk}:{pk+3}], v{VHO1}, s[12:15], s{32 if tt == 0 else 38} offen offset:{(n%4)*1024}")
    A.st("gend")
    A("s_mov_b32 s37, 0")
    A("s_branch L_gemm2")

def PERM(g): return g
def c_reads_slot(g):
    if g < 28: return c_reads(g)
    i = [0, 2, 1, 3][g - 28]
    r = c_reads(28 + i)
    kc = 7; st = kc % NS; b = HI; off = (st % 2) * STAGE; sl = g % NR
    tr = lambda ft, sec: f"ds_read_b64_tr_b16 v[{W1+8*sl+4*ft+2*sec}:{W1+8*sl+4*ft+2*sec+1}], v{b+4+2*i+ft} offset:{off + sec*1024}"
    xr = lambda tt: f"ds_read_b128 v[{X1+8*sl+4*tt}:{X1+8*sl+4*tt+3}], v{b+i} offset:{off + tt*4096}"
    return [xr(0), tr(0, 0), tr(0, 1), tr(1, 0), tr(1, 1), xr(1)]

def yflag_off():
    return ["s_lshr_b32 s28, s39, 1", "s_lshl_b32 s29, s2, 1", "s_add_u32 s28, s28, s29", "s_and_b32 s29, s39, 1", "s_lshl_b32 s29, s29, 9",
            "s_add_u32 s28, s28, s29", "s_lshl_b32 s28, s28, 7", f"s_add_u32 s28, s28, {WS_FLY}"]
def ring_ready(vt):
    return ["s_lshl_b32 s28, s39, 2", f"s_add_u32 s28, s28, {L_FLAG+16}", f"v_mov_b32 v{vt}, s28", f"v_mov_b32 v{vt+1}, 1", f"ds_write_b32 v{vt}, v{vt+1}"]

def lds_wait(A, name, vaddr, off, vt):
    A(f"""
    {name}:
    ds_read_b32 v{vt}, v{vaddr} offset:{off}
    s_waitcnt lgkmcnt(0)
    v_readfirstlane_b32 s28, v{vt}
    s_cmp_eq_u32 s28, 1
    s_cbranch_scc0 {name}
    """)

def gen_h1(A):
    VT = VT1
    vm = VMQ()
    param_loads(A, VT); vm.note("prm", 8)
    A(f"s_add_u32 s42, s42, {WSOFF}\ns_addc_u32 s43, s43, 0\ns_load_dword s76, s[42:43], {WS_EPOCH}")
    srd(A, 4, "s40", "s41", 2 << 20)
    srd(A, 8, "s44", "s45", 512 * 3584)
    srd(A, 12, "s42", "s43", WS_USED)
    if env("CPF", 1):
        A(f"""
        s_getpc_b64 s[28:29]
        L_pc0:
        s_sub_u32 s28, s28, L_pc0-{KNAME}
        s_subb_u32 s29, s29, 0
        s_lshl_b32 s30, s39, 13
        v_lshl_add_u32 v{VT+2}, v0, 7, s30
        v_min_u32 v{VT+2}, L_exit-{KNAME}, v{VT+2}
        s_cmp_lt_u32 s24, {env("CPFN", 4)}
        s_cselect_b64 exec, -1, 1
        global_load_dword v{VDUM}, v{VT+2}, s[28:29]
        s_mov_b64 exec, -1
        """)
    dma_setup(A)
    w2_setup(A, VT)
    if env("MPF", 0):
        A(f"""
        s_lshl_b32 s28, s2, 2
        s_add_u32 s28, s28, s39
        s_lshl_b32 s28, s28, 11
        v_lshlrev_b32 v{VT+2}, 7, v0
        s_mov_b64 exec, 0xffff
        buffer_load_dword v{VDUM}, v{VT+2}, s[16:19], s28 offen
        s_mov_b64 exec, -1
        """)
    if env("TLBW", 0):
        A(f"""
        v_lshlrev_b32 v{VT+2}, {env("TLBS", 20)}, v0
        s_mov_b64 exec, {hex((1 << (WS_USED >> env("TLBS", 20))) - 1)}
        buffer_load_dword v{VDUM}, v{VT+2}, s[12:15], 0 offen
        s_mov_b64 exec, 3
        buffer_load_dword v{VDUM}, v{VT+2}, s[16:19], 0 offen
        global_load_dword v{VDUM}, v{VT+2}, s[52:53]
        s_mov_b64 exec, 1
        global_load_dword v{VDUM}, v{VT+2}, s[50:51]
        s_mov_b64 exec, -1
        """)
        vm.note("tlb", 4)
    kg_waddr(A, L_VS, KWA); A.extend(kg_raddr(L_VS, KRA, VT))
    for a_ in flag_zero(): A.extend(a_)
    A.st("pre")
    A.extend(vm.wait("prm"))
    A.st("prm")
    A.label("L_kgen_v")
    gen_kgen_v(A)
    A("s_cmp_eq_u32 s79, 7")
    A("s_cbranch_scc1 L_ln_H2")
    A.st("kg")
    A("s_waitcnt lgkmcnt(0)"); A("s_barrier")
    A.st("b0")
    mktag(A)
    UV, UW = kgen_u_lists(0)
    wts = [2, 3, 3, 3, 3, 3]; cum = 0
    for k in range(8):
        if k <= 5:
            sl_ = UV[len(UV) * cum // sum(wts):len(UV) * (cum + wts[k]) // sum(wts)]; cum += wts[k]
            if k >= 1:
                pcs = []
                for part in range(4):
                    dd = g1_dma(k + 2, part); pcs += [dd[:3], dd[3:]]
                vm.note(k + 2, 8)
                for q, dd in enumerate(pcs):
                    A.extend(dd); A.extend(sl_[len(sl_) * q // 8:len(sl_) * (q + 1) // 8])
            else: A.extend(sl_)
        else:
            for sl in range(4 * (k - 6), 4 * (k - 6) + 4): A.extend(wdma(sl, sl))
            vm.note("f", 8)
        A.st(f"pi{k+1}")
        A.extend(vm.wait(k + 1))
        A("s_barrier")
        A.st(f"ab{k+1}")
    A.st("loop")
    FE = env("FE", 1)
    if FE:
        for sl in range(8, 12): A.extend(wdma(sl, sl))
    A.label("L_h_tail")
    A(f"s_setprio {env('PRIOX', 1)}")
    lq = LQ(A)
    ar_, mm_ = kg_atoms_m()
    lq.emit(UW)
    for a_ in ar_ + mm_ + kg_atoms_x1(): lq.emit(a_)
    A(f"""
    s_lshl_b32 s28, s39, 2
    s_add_u32 s28, s28, {L_FLAG}
    v_mov_b32 v{VT}, s28
    v_mov_b32 v{VT+1}, 1
    ds_write_b32 v{VT}, v{VT+1} offset:80
    v_xor_b32 v{VT+2}, 4, v{VT}
    """)
    lds_wait(A, "L_h_x1", VT + 2, 80, 32)
    lq.q = []
    for a_ in kg_atoms_x2("g"): lq.emit(a_)
    A("s_setprio 0")
    A.extend(lnflag_load(VT))
    A("s_waitcnt lgkmcnt(0)")
    A.st("ku")
    A(f"v_lshlrev_b32 v18, 4, v0")
    A("s_waitcnt vmcnt(0)")
    u_try(A, 18)
    if not FE:
        A("s_cmp_eq_u32 s79, 7")
        A("s_cbranch_scc1 L_h_nof")
        for sl in range(8, 12): A.extend(wdma(sl, sl))
        A("s_waitcnt vmcnt(0)")
        A.label("L_h_nof")
    A.extend(ring_ready(VT))
    A.st("gend")
    A("s_branch L_conv")
    A.label("L_ln_H2")
    A("s_nop 0 ; RESETSB")
    A.extend(UV)
    A("s_branch L_h_tail")

def gen_gemm1(A):
    A(f"""
    s_load_dwordx8 s[56:63], s[0:1], {KA['A_re']}
    s_load_dwordx8 s[64:71], s[0:1], {KA['C_re']}
    """)
    A("s_cmp_ge_u32 s20, 4")
    A("s_cbranch_scc1 L_g1_H")
    gen_c1(A)
    A.label("L_g1_H")
    A("s_nop 0 ; RESETSB")
    gen_h1(A)


def gen_ln(A):
    Q, R, O, T = 16, 48, 80, 112
    A(f"""
    v_lshrrev_b32 v1, 3, v0
    v_and_b32 v2, 7, v0
    v_lshlrev_b32 v3, 10, v1
    v_lshl_add_u32 v3, v2, 4, v3
    v_lshlrev_b32 v4, 4, v0
    s_lshl_b32 s25, s21, 6
    s_lshl_b32 s28, s20, 3
    s_add_u32 s25, s25, s28
    s_lshl_b32 s36, s25, 3
    s_add_u32 s36, s36, {WS_STAT}
    s_lshl_b32 s25, s25, 10
    s_add_u32 s26, s25, 4096
    s_waitcnt lgkmcnt(0)
    s_add_u32 s42, s42, {WSOFF}
    s_addc_u32 s43, s43, 0
    s_load_dword s76, s[42:43], {WS_EPOCH}
    """)
    srd(A, 4, "s40", "s41", 2 << 20)
    for i in range(8): A(f"buffer_load_dwordx4 v[{Q+4*i}:{Q+4*i+3}], v3, s[4:7], s25 offen offset:{128*i}")
    srd(A, 12, "s42", "s43", WS_USED)
    A("s_waitcnt lgkmcnt(0)")
    mktag(A)
    for t in range(8): A(f"buffer_load_dwordx4 v[{R+4*t}:{R+4*t+3}], v4, s[4:7], s{25 + t//4} offen offset:{(t%4)*1024}")
    A(f"""
    v_mov_b32 v5, 0x3f803f80
    v_mov_b32 v6, 0
    v_mov_b32 v7, 0
    v_mov_b32 v12, 0
    v_mov_b32 v13, 0
    v_mov_b32 v14, 0x00003f80
    v_mov_b32 v15, 0x3f800000
    v_lshlrev_b32 v8, 3, v1
    v_mov_b32 v11, s76
    """)
    for i in range(8):
        A(f"s_waitcnt vmcnt({8 + 7 - i})")
        for k in range(4):
            r = Q + 4 * i + k
            A(f"v_dot2_f32_bf16 v{6 if k%2==0 else 12}, v{r}, v5, v{6 if k%2==0 else 12}")
            A(f"v_dot2_f32_bf16 v{7 if k%2==0 else 13}, v{r}, v{r}, v{7 if k%2==0 else 13}")
    A(f"""
    v_add_f32 v6, v6, v12
    v_add_f32 v7, v7, v13
    v_add_f32_dpp v6, v6, v6 quad_perm:[1,0,3,2] row_mask:0xf bank_mask:0xf
    v_add_f32_dpp v7, v7, v7 quad_perm:[1,0,3,2] row_mask:0xf bank_mask:0xf
    v_add_f32_dpp v6, v6, v6 quad_perm:[2,3,0,1] row_mask:0xf bank_mask:0xf
    v_add_f32_dpp v7, v7, v7 quad_perm:[2,3,0,1] row_mask:0xf bank_mask:0xf
    v_add_f32_dpp v6, v6, v6 row_half_mirror row_mask:0xf bank_mask:0xf
    v_add_f32_dpp v7, v7, v7 row_half_mirror row_mask:0xf bank_mask:0xf
    v_mul_f32 v12, {hex(f2u(1/512))}, v6
    v_mul_f32 v13, {hex(f2u(1/512))}, v7
    v_fma_f32 v13, -v12, v12, v13
    v_max_f32 v13, 0, v13
    """)
    round_bf16(A, 13)
    A(f"v_add_f32 v13, {hex(f2u(1e-5))}, v13")
    round_bf16(A, 13)
    A(f"""
    v_sqrt_f32 v13, v13
    v_cvt_pk_bf16_f32 v10, -v12, v13
    s_mov_b32 exec_lo, 0x01010101
    s_mov_b32 exec_hi, 0x01010101
    buffer_store_dwordx2 v[10:11], v8, s[12:15], s36 offen {SC}
    s_mov_b64 exec, -1
    """)
    A.st("b0")
    LPF = env("LPF", 0)
    if LPF:
        srd(A, 16, "s48", "s49", 1792 * 1024)
        A(f"""
        s_lshl_b32 s28, s21, 3
        s_add_u32 s28, s28, s20
        s_mul_i32 s28, s28, {56*128}
        v_min_u32 v{T+2}, 55, v0
        v_lshlrev_b32 v{T+2}, 7, v{T+2}
        buffer_load_dword v{VDUM}, v{T+2}, s[16:19], s28 offen
        """)
    A(f"""
    v_and_b32 v13, 0xffff0000, v10
    v_lshlrev_b32 v12, 16, v10
    v_rcp_f32 v5, v13
    s_nop 0
    v_fma_f32 v13, -v13, v5, 1.0
    v_fma_f32 v13, v13, v5, v5
    """)
    for t in range(8):
        A(f"v_readlane_b32 s{56+t}, v12, {8*t}")
        A(f"v_readlane_b32 s{64+t}, v13, {8*t}")
    A(f"""
    v_xor_b32 v5, s20, v2
    v_lshlrev_b32 v6, 10, v0
    v_lshl_add_u32 v6, v5, 4, v6
    v_add_u32 v6, 98304, v6
    s_waitcnt vmcnt({1 + LPF})
    """)

    for tp in range(4):
        t0, t1 = 2 * tp, 2 * tp + 1
        for k in range(4):
            for h in range(2):
                e = 2 * k + h
                A(f"v_dot2_f32_bf16 v{T+2*e}, v{R+4*t0+k}, v{14+h}, s{56+t0}")
                A(f"v_dot2_f32_bf16 v{T+2*e+1}, v{R+4*t1+k}, v{14+h}, s{56+t1}")
        for e in range(8): A(f"v_cvt_pk_bf16_f32 v{T+2*e+1}, v{T+2*e}, v{T+2*e+1}")
        for e in range(8):
            A(f"v_lshlrev_b32 v{T+2*e}, 16, v{T+2*e+1}")
            A(f"v_and_b32 v{T+2*e+1}, 0xffff0000, v{T+2*e+1}")
        for e in range(8): A(f"v_pk_mul_f32 v[{T+2*e}:{T+2*e+1}], v[{T+2*e}:{T+2*e+1}], s[{64+t0}:{64+t1}]")
        for e in range(8): A(f"v_cvt_pk_bf16_f32 v{O+4*e+tp}, v{T+2*e}, v{T+2*e+1}")
        if tp == env("LFP", 3):
            w2_setup(A, 28)
            LF = env("LF", 0)
            A("s_cmp_ge_u32 s20, 4")
            A("s_cbranch_scc1 L_ln_nofill")
            for sl in range(LF): A.extend(wdma(sl, sl))
            A.label("L_ln_nofill")
    for e in range(8): A(f"ds_write_b128 v6, v[{O+4*e}:{O+4*e+3}] offset:{e*128}")
    A(f"""
    s_lshl_b32 s28, s20, 13
    v_lshlrev_b32 v6, 7, v1
    v_lshl_add_u32 v6, v2, 4, v6
    v_add_u32 v6, s28, v6
    v_add_u32 v6, 98304, v6
    v_lshlrev_b32 v7, 12, v1
    v_lshl_add_u32 v7, v2, 4, v7
    s_load_dwordx8 s[56:63], s[0:1], {KA['A_re']}
    s_load_dwordx8 s[64:71], s[0:1], {KA['C_re']}
    s_lshl_b32 s26, s20, 18
    s_lshl_b32 s28, s21, 7
    s_add_u32 s26, s26, s28
    s_add_u32 s26, s26, {WS_XNT}
    s_lshl_b32 s33, s21, 7
    s_add_u32 s33, s33, {WS_FLL}
    """)
    for i in range(8): A(f"v_xor_b32 v{8+i}, {16*i}, v6")
    A.st("g8")
    param_loads(A, T)
    A.extend(ya_prefill(T + 2, T + 3, T + 4))
    A("s_barrier")
    for i in range(8): A(f"ds_read_b128 v[{R+4*i}:{R+4*i+3}], v{8+i} offset:{i*1024}")
    for i in range(8):
        A(f"s_waitcnt lgkmcnt({7-i})")
        A(f"s_add_u32 s25, s26, {i*32768}")
        A(f"buffer_store_dwordx4 v[{R+4*i}:{R+4*i+3}], v7, s[12:15], s25 offen {SC}")
    A.st("loop")
    A("s_waitcnt vmcnt(0)")
    A("s_barrier")
    publish_flag(A, "s33", 28, "l", 7)
    A.st("gstart")
    A(f"s_mov_b32 s33, {WS_DUMMY}")
    srd(A, 16, "s48", "s49", 1792 * 1024)
    for a_ in flag_zero(): A.extend(a_)
    A("s_waitcnt lgkmcnt(0)")
    A("s_barrier")
    A("s_cmp_lt_u32 s20, 4")
    A("s_cbranch_scc1 L_ln_C")
    A.extend(yflag_off()); A.extend(wave_flag("s28", 28))
    kg_waddr(A, L_VS, KWA); A.extend(kg_raddr(L_VS, KRA, 28))
    A("s_branch L_kgen_v")
    A.label("L_ln_C")
    for sl in range(LF, 12): A.extend(wdma(sl, sl))
    A("s_waitcnt vmcnt(0)")
    for sl in range(12): A.extend(w2tr(sl, sl))
    A("s_waitcnt lgkmcnt(0)")
    for sl in range(12): A.extend(wdma(sl, 12 + sl))
    A(f"""
    v_mov_b32 v28, {L_FLAG+16}
    L_ln_cw:
    ds_read_b128 v[32:35], v28
    s_waitcnt lgkmcnt(0)
    v_and_b32 v32, v32, v33
    v_and_b32 v34, v34, v35
    v_and_b32 v32, v32, v34
    s_nop 0
    v_readfirstlane_b32 s28, v32
    s_cmp_eq_u32 s28, 1
    s_cbranch_scc0 L_ln_cw
    """)
    A(f"""
    s_lshl_b32 s28, s20, 8
    s_add_u32 s28, s28, s2
    s_cmp_lg_u32 s28, 255
    s_cbranch_scc1 L_nobump
    v_lshlrev_b32 v28, 8, v0
    s_mov_b32 s30, 0
    L_bump_poll:
    """)
    for k in range(4):
        A(f"s_mov_b32 s28, {WS_FLY + k*16384}")
        A(f"buffer_load_dword v{32+k}, v28, s[12:15], s28 offen {SC}")
    A(f"""
    s_add_u32 s30, s30, 1
    s_waitcnt vmcnt(0)
    v_xor_b32 v32, s76, v32
    v_xor_b32 v33, s76, v33
    v_xor_b32 v34, s76, v34
    v_xor_b32 v35, s76, v35
    v_or3_b32 v32, v32, v33, v34
    v_or_b32 v32, v32, v35
    v_cmp_ne_u32 vcc, 0, v32
    s_cmp_gt_u32 s30, {SPIN}
    s_cbranch_scc1 L_bump_go
    s_cbranch_vccnz L_bump_poll
    L_bump_go:
    s_mov_b32 s28, {WS_EPOCH}
    """)
    A.extend(wave_flag("s28", 28))
    A.label("L_nobump")
    A("s_mov_b32 s37, 1")
    A("s_branch L_gemm2")


def final_addr(A):
    A(f"""
    v_lshrrev_b32 v1, 3, v0
    v_and_b32 v2, 7, v0
    v_lshlrev_b32 v{VOO}, 10, v1
    v_lshl_add_u32 v{VOO}, v2, 4, v{VOO}
    v_lshlrev_b32 v3, 4, v2
    s_lshl_b32 s33, s78, 6
    s_lshl_b32 s28, s20, 3
    s_add_u32 s33, s33, s28
    s_lshl_b32 s33, s33, 10
    s_lshl_b32 s34, s79, 7
    s_add_u32 s33, s33, s34
    """)
def ep_loads():
    o = Asm()
    srd(o, 8, "s50", "s51", 1024)
    o(f"buffer_load_dwordx4 v[{VX}:{VX+3}], v{VOO}, s[4:7], s33 offen")
    o(f"buffer_load_dwordx4 v[{VB2}:{VB2+3}], v3, s[8:11], s34 offen")
    return o.lines


def gen_gemm2(A):
    VHO, VTR2, VP, VT = 13, 14, 18, 22
    ACC, W, H = ACC2, W2R, HR
    if PRIO_G: A(f"s_setprio {PRIO_G}")
    A("s_mov_b32 s22, s33")
    final_addr(A)
    for k in range(4): A(f"v_mov_b32 v{VTR2+k}, v{VTL+k}")
    A(f"""
    v_lshlrev_b32 v{VHO}, 4, v0
    v_lshrrev_b32 v{VT}, 5, v0
    v_xor_b32 v{VT}, v{VT}, v2
    v_and_b32 v{VP}, 31, v0
    v_lshlrev_b32 v{VP}, 8, v{VP}
    v_lshl_add_u32 v{VP}, v{VT}, 4, v{VP}
    v_add_u32 v{VP}, s73, v{VP}
    v_xor_b32 v{VP+1}, 32, v{VP}
    v_xor_b32 v{VP+2}, 64, v{VP}
    v_xor_b32 v{VP+3}, 96, v{VP}
    s_mul_i32 s24, s78, {2*112*1024}
    s_mul_i32 s28, s20, {28*1024}
    s_add_u32 s24, s24, s28
    s_add_u32 s24, s24, {WS_HF}
    s_add_u32 s25, s24, {112*1024}
    s_mul_i32 s26, s20, 7
    s_lshl_b32 s28, s78, 5
    s_add_u32 s26, s26, s28
    s_lshl_b32 s26, s26, 7
    s_add_u32 s26, s26, {WS_FLH}
    v_min_u32 v{VT}, 6, v2
    v_lshlrev_b32 v{VT}, 7, v{VT}
    s_lshl_b32 s28, s20, 2
    s_add_u32 s28, s28, {L_FLAG+16}
    v_mov_b32 v{ACC+4}, s28
    v_mov_b32 v{ACC+5}, 1
    ds_write_b32 v{ACC+4}, v{ACC+5} offset:16
    s_mov_b32 s30, 0
    s_cmp_eq_u32 s37, 1
    s_cbranch_scc1 L_g2_poll
    """)
    A.st("prew")
    A("s_waitcnt vmcnt(0)")
    A.extend(wave_flag("s22", ACC))
    A.st("p2bar")
    A(f"""
    L_g2_rr:
    ds_read_b32 v{ACC+5}, v{ACC+4}
    s_waitcnt lgkmcnt(0)
    v_readfirstlane_b32 s28, v{ACC+5}
    s_cmp_eq_u32 s28, 1
    s_cbranch_scc0 L_g2_rr
    """)
    for sl in range(3): A.extend(w2tr(sl, sl, VTR2))
    for sl in range(12):
        left = min(12, sl + 3) - sl - 1
        A(f"s_waitcnt lgkmcnt({4*left})")
        if sl + 3 < 12: A.extend(w2tr(sl + 3, sl + 3, VTR2))
        A.extend(wdma(sl, 12 + sl))
    A.st("s5")
    A.label("L_g2_poll")
    A(f"""
    buffer_load_dword v{ACC+2}, v{VT}, s[12:15], s26 offen {SC}
    s_add_u32 s30, s30, 1
    s_waitcnt vmcnt(0)
    v_cmp_ne_u32 vcc, s76, v{ACC+2}
    s_cmp_gt_u32 s30, {SPIN}
    s_cbranch_scc1 L_g2_go
    s_cbranch_vccnz L_g2_poll
    """)
    A.label("L_g2_go")
    vm = VMQ()
    A.st("s6")
    def hload(kp):
        sl = kp % HD
        vm.note(("h", kp), 2)
        return koff("s31", ORDER[kp]) + ["s_add_u32 s27, s31, s24", "s_add_u32 s31, s31, s25",
                                  f"buffer_load_dwordx4 v[{H+8*sl}:{H+8*sl+3}], v{VHO}, s[12:15], s27 offen {SCL}",
                                  f"buffer_load_dwordx4 v[{H+8*sl+4}:{H+8*sl+7}], v{VHO}, s[12:15], s31 offen {SCL}"]
    for kp in range(HD): A.extend(hload(kp))
    if PRIO_G: A(f"s_setprio {env('PRIOG2', 0)}")
    inring = lambda k: ORDER[k] >= 12
    wset = lambda k: (k % 2) if inring(k) else ORDER[k]
    slot_of = lambda k: (ORDER[k] - 12) % 12
    for kp in range(28):
        nx = kp + 1
        if inring(kp): A("s_waitcnt lgkmcnt(0)")
        A.extend(vm.wait(("h", kp)))
        if kp in (4, 9, 14, 19): A.st(f"k{kp}")
        b = W + 8 * wset(kp); sl = kp % HD
        mf = []
        for tb in range(2):
            for db in range(2):
                c = ACC + 32 * tb + 16 * db
                cin = "0" if kp == 0 else f"v[{c}:{c+15}]"
                mf.append(f"v_mfma_f32_32x32x16_bf16 v[{c}:{c+15}], v[{b+4*db}:{b+4*db+3}], v[{H+8*sl+4*tb}:{H+8*sl+4*tb+3}], {cin}")
        A(mf[0])
        if nx < 28 and inring(nx):
            A.extend(vm.wait(("w", ORDER[nx])))
            A.extend(w2tr(slot_of(nx), wset(nx), VTR2))
        A(mf[1])
        if kp >= 1 and kp - 1 + HD < 28: A.extend(hload(kp - 1 + HD))
        A(mf[2])
        if 12 <= ORDER[kp] < 16:
            A.extend(wdma(ORDER[kp] - 12, ORDER[kp] + 12)); vm.note(("w", ORDER[kp] + 12), 2)
        if kp == 20:
            A.extend(ep_loads()); vm.note("ep", 2)
        if kp == env("SIGK", 19):
            A(f"""
            s_lshl_b32 s28, s20, 2
            s_add_u32 s28, s28, {L_FLAG+48}
            v_mov_b32 v{VT}, s28
            v_mov_b32 v{W}, 1
            ds_write_b32 v{VT}, v{W}
            """)
        A(mf[3])
        if kp == 0: A.st("k0")
    A.st("s7")
    for tb in range(2):
        for db in range(2):
            for q in range(4):
                c = ACC + 32 * tb + 16 * db + 4 * q
                A(f"ds_write_b128 v{VP+q}, v[{c}:{c+3}] offset:{tb*32768+db*128}")
    A("s_waitcnt vmcnt(0) lgkmcnt(0)")
    A("s_branch L_final")


def gen_conv(A):
    if PRIO_C: A(f"s_setprio {PRIO_C}")
    VTA, VF = 32, 36
    VXN, VBW, VOWN, VPAR = 37, 38, 39, 40
    T0 = 42
    dsk = P0 + 7
    ACC = 48; FB = [80, 112]; TB = [144, 208]
    XN = 196
    final_addr(A)
    A(f"""
    s_mov_b32 s21, s39
    s_lshr_b32 s35, s21, 1
    s_and_b32 s36, s21, 1
    s_mul_i32 s38, s35, {CH_SIZE}
    s_add_u32 s38, s38, {L_CH}
    s_lshl_b32 s27, s21, 13
    s_add_u32 s27, s27, {L_ST2}
    s_xor_b32 s32, s27, {ST2}
    v_and_b32 v{T0}, 15, v0
    v_lshrrev_b32 v{T0+1}, 4, v0
    v_and_b32 v{T0+2}, 1, v0
    v_mul_u32_u24 v{T0+2}, {OFF_O + 2 - OFF_E}, v{T0+2}
    s_lshl_b32 s31, s36, 8
    s_sub_u32 s31, s38, s31
    s_add_u32 s29, s31, {OFF_O + 2*2032 - 512 - 192}
    v_lshlrev_b32 v{T0+3}, 1, v{T0}
    v_sub_u32 v{VTA}, s29, v{T0+3}
    v_lshl_add_u32 v{VTA}, v{T0+1}, 4, v{VTA}
    v_sub_u32 v{VTA}, v{VTA}, v{T0+2}
    v_subrev_u32 v{VTA+1}, 1024, v{VTA}
    v_subrev_u32 v{VTA+2}, 2048, v{VTA}
    v_subrev_u32 v{VTA+3}, 3072, v{VTA}
    """)
    def freads(rr, fb): return [f"ds_read_b128 v[{fb+4*m}:{fb+4*m+3}], v{VF} offset:{512*m + 64*(3-rr)}" for m in range(8)]
    def treads(rr, tb):
        o = []
        for i in range(8):
            off = 128 * (1 - (i & 1)) + 16 * (3 - rr)
            o.append(f"ds_read2_b32 v[{tb+4*i}:{tb+4*i+1}], v{VTA+i//2} offset0:{off} offset1:{off+1}")
            o.append(f"ds_read2_b32 v[{tb+4*i+2}:{tb+4*i+3}], v{VTA+i//2} offset0:{off+2} offset1:{off+3}")
        return o
    A(f"""
    v_lshl_add_u32 v19, v0, 4, s38
    s_add_u32 s29, s31, {480 - 192}
    v_lshlrev_b32 v{VF}, 5, v{T0}
    v_lshl_add_u32 v{VF}, v{T0+1}, 4, v{VF}
    v_add_u32 v{VF}, s29, v{VF}
    v_lshlrev_b32 v{VXN}, 5, v{T0}
    v_lshl_add_u32 v{VXN}, v{T0+1}, 3, v{VXN}
    v_add_u32 v{VBW}, s27, v{VXN}
    s_lshl_b32 s28, s36, 11
    s_add_u32 s28, s28, s38
    v_add_u32 v{VXN}, s28, v{VXN}
    v_lshl_add_u32 v{VOWN}, v0, 4, s27
    v_lshl_add_u32 v{VPAR}, v0, 4, s32
    v_mov_b32 v13, 1
    s_lshl_b32 s29, s21, 2
    s_add_u32 s29, s29, {L_FLAG}
    v_mov_b32 v14, s29
    s_xor_b32 s29, s29, 4
    v_mov_b32 v15, s29
    v_lshlrev_b32 v18, 4, v0
    """)
    A(f"""
    L_cv_ex:
    ds_read_b32 v16, v15 offset:64
    s_waitcnt lgkmcnt(0)
    v_readfirstlane_b32 s28, v16
    s_cmp_eq_u32 s28, 1
    s_cbranch_scc0 L_cv_ex
    """)
    A.extend(treads(0, TB[0]))
    A("s_cmp_eq_u32 s37, 1")
    A("s_cbranch_scc1 L_cv_uok")
    u_spin(A, 20, 18)
    A.label("L_cv_uok")
    A("s_waitcnt vmcnt(0)")
    for k in range(4): A(f"ds_write_b128 v19, v[{XL+4*k}:{XL+4*k+3}] offset:{512 + k*1024}")
    A.extend(freads(0, FB[0]))
    A.st("s4")
    if GPK:
        A(f"""
        v_mov_b32 v17, {L_FLAG+32}
        L_cv_gd:
        ds_read_b128 v[20:23], v17
        s_waitcnt lgkmcnt(0)
        v_and_b32 v20, v20, v21
        v_and_b32 v22, v22, v23
        v_and_b32 v20, v20, v22
        s_nop 0
        v_readfirstlane_b32 s28, v20
        s_cmp_eq_u32 s28, 1
        s_cbranch_scc0 L_cv_gd
        """)
    A.st("s5")
    for rp in range(4):
        fb, tb = FB[rp % 2], TB[rp % 2]
        mm = []
        for i in range(8):
            for j in range(i, 8):
                cin = "0" if (rp == 0 and i == 0) else f"v[{ACC+4*j}:{ACC+4*j+3}]"
                mm.append(f"v_mfma_f32_16x16x32_bf16 v[{ACC+4*j}:{ACC+4*j+3}], v[{tb+4*i}:{tb+4*i+3}], v[{fb+4*(j-i)}:{fb+4*(j-i)+3}], {cin}")
        if rp == 1: A.extend(ep_loads())
        if HT and rp == env("HTP", 3):
            A(f"""
            s_lshl_b32 s28, s24, 2
            s_add_u32 s28, s28, s21
            s_mul_i32 s28, s28, {56*128}
            s_mul_i32 s29, s23, {8*112*1024}
            s_add_u32 s28, s28, s29
            s_add_u32 s28, s28, {WS_HF}
            v_min_u32 v{T0}, 55, v0
            v_lshlrev_b32 v{T0}, 7, v{T0}
            buffer_load_dword v20, v{T0}, s[12:15], s28 offen {SC}
            """)
        if rp == 0:
            o = []
            for j in range(8): o += [f"s_waitcnt lgkmcnt({7-j})", mm[j]]
            mm = o + interleave(mm[8:], freads(1, FB[1]) + treads(1, TB[1]), 0, 22)
        else:
            A("s_waitcnt lgkmcnt(0)")
            if rp < 3: mm = interleave(mm, freads(rp + 1, FB[(rp + 1) % 2]) + treads(rp + 1, TB[(rp + 1) % 2]), 0, 26)
            else: mm = interleave(mm, [f"ds_read_b64 v[{XN+2*a_}:{XN+2*a_+1}], v{VXN} offset:{512 + a_*512}" for a_ in range(4)], 0, 8)
        A.extend(mm)
    A.st("s6")
    A("s_cmp_eq_u32 s36, 1")
    A("s_cbranch_scc1 L_cv_x1")
    for a_ in range(4): A(f"ds_write_b128 v{VOWN}, v[{ACC+16+4*a_}:{ACC+16+4*a_+3}] offset:{4096 + a_*1024}")
    A("ds_write_b32 v14, v13")
    A("s_branch L_cv_out")
    A.label("L_cv_x1")
    A("s_nop 7")
    for a_ in range(4): A(f"ds_write_b128 v{VOWN}, v[{ACC+4*a_}:{ACC+4*a_+3}] offset:{4096 + a_*1024}")
    A("ds_write_b32 v14, v13")
    for k in range(16): A(f"v_mov_b32 v{ACC+k}, v{ACC+16+k}")
    A.label("L_cv_out")
    A(f"""
    """)
    A.extend(ya_addr(41, T0))
    A(f"""
    v_mov_b32 v{T0+2}, 0xfffffffe
    s_waitcnt lgkmcnt(5)
    """)
    t = 80; z = 96; YP = 112
    for k in range(8):
        A(f"v_lshlrev_b32 v{t+2*k}, 16, v{XN+k}")
        A(f"v_and_b32 v{t+2*k+1}, 0xffff0000, v{XN+k}")
    for k in range(16): A(f"v_fma_f32 v{ACC+k}, v{t+k}, v{dsk}, v{ACC+k}")
    A.label("L_cv_ps1")
    A(f"""
    ds_read_b32 v16, v15
    s_waitcnt lgkmcnt(0)
    v_readfirstlane_b32 s28, v16
    s_cmp_eq_u32 s28, 1
    s_cbranch_scc0 L_cv_ps1
    """)
    for a_ in range(4): A(f"ds_read_b128 v[{YP+4*a_}:{YP+4*a_+3}], v{VPAR} offset:{4096 + a_*1024}")
    for a_ in range(4):
        A("s_waitcnt lgkmcnt(3)")
        for k in range(4): A(f"v_add_f32 v{ACC+4*a_+k}, v{ACC+4*a_+k}, v{YP+4*a_+k}")
        for k in range(2): A(f"v_cvt_pk_bf16_f32 v{z+2*a_+k}, v{ACC+4*a_+2*k}, v{ACC+4*a_+2*k+1}")
        for k in range(2): A(f"v_min_u32 v{z+2*a_+k}, v{z+2*a_+k}, v{T0+2}")
        A(f"ds_write_b64 v{VBW}, v[{z+2*a_}:{z+2*a_+1}] offset:{a_*512}")
    for h in range(2): A(f"ds_read_b128 v[{t+4*h}:{t+4*h+3}], v{VOWN} offset:{h*1024}")
    for h in range(2):
        A(f"s_waitcnt lgkmcnt({1-h})")
        A(f"buffer_store_dwordx4 v[{t+4*h}:{t+4*h+3}], v41, s[12:15], s{30+h} offen {SC}")
    Y = 160
    A(f"""
    v_lshlrev_b32 v{T0}, 8, v1
    v_lshl_add_u32 v{T0}, v2, 4, v{T0}
    s_lshl_b32 s28, s79, 5
    s_add_u32 s28, s28, s78
    s_lshl_b32 s28, s28, 13
    s_lshl_b32 s29, s21, 11
    s_add_u32 s28, s28, s29
    s_add_u32 s28, s28, {WS_YA}
    v_lshlrev_b32 v{T0+1}, 8, v2
    v_lshl_add_u32 v{T0+1}, v2, 4, v{T0+1}
    v_lshl_add_u32 v{T0+1}, v1, 2, v{T0+1}
    v_add_u32 v{T0+1}, s27, v{T0+1}
    v_mov_b32 v{T0+3}, 0x05040100
    v_mov_b32 v{T0+4}, 0x07060302
    s_mov_b32 s30, 0
    """)
    A.st("s7")
    A(f"""
    v_mov_b32 v17, {L_FLAG+48}
    L_cv_w19:
    s_sleep 2
    ds_read_b128 v[20:23], v17
    s_waitcnt lgkmcnt(0)
    v_and_b32 v20, v20, v21
    v_and_b32 v22, v22, v23
    v_and_b32 v20, v20, v22
    s_nop 0
    v_readfirstlane_b32 s29, v20
    s_cmp_eq_u32 s29, 1
    s_cbranch_scc0 L_cv_w19
    L_cv_poll2:
    buffer_load_dwordx4 v[{Y}:{Y+3}], v{T0}, s[12:15], s28 offen {SC}
    buffer_load_dwordx4 v[{Y+4}:{Y+7}], v{T0}, s[12:15], s28 offen offset:128 {SC}
    s_waitcnt vmcnt(0)
    v_max_u32 v{Y+8}, v{Y}, v{Y+1}
    v_max3_u32 v{Y+8}, v{Y+8}, v{Y+2}, v{Y+3}
    v_max3_u32 v{Y+8}, v{Y+8}, v{Y+4}, v{Y+5}
    v_max3_u32 v{Y+8}, v{Y+8}, v{Y+6}, v{Y+7}
    v_cmp_eq_u32 vcc, -1, v{Y+8}
    s_cbranch_vccz L_cv_got
    s_sleep 4
    s_add_u32 s30, s30, 1
    s_cmp_lt_u32 s30, {SPIN}
    s_cbranch_scc1 L_cv_poll2
    """)
    A.label("L_cv_got")
    A.st("got")
    for k in range(4):
        A(f"v_perm_b32 v{Y+8+2*k}, v{Y+4+k}, v{Y+k}, v{T0+3}")
        A(f"v_perm_b32 v{Y+9+2*k}, v{Y+4+k}, v{Y+k}, v{T0+4}")
    for i in range(8): A(f"ds_write_b32 v{T0+1}, v{Y+8+i} offset:{i*32}")
    A("s_waitcnt lgkmcnt(0)")


def gen_final(A):
    P = 32
    A(f"""
    v_lshlrev_b32 v13, 1, v2
    v_xor_b32 v13, v13, v1
    v_lshlrev_b32 v13, 4, v13
    v_lshl_add_u32 v13, v1, 8, v13
    s_and_b32 s28, s20, 3
    s_lshl_b32 s28, s28, 11
    s_lshr_b32 s29, s20, 2
    s_lshl_b32 s29, s29, 15
    s_add_u32 s28, s28, s29
    v_add_u32 v13, s28, v13
    v_xor_b32 v14, 16, v13
    v_lshrrev_b32 v15, 1, v2
    v_lshlrev_b32 v15, 13, v15
    v_lshl_add_u32 v15, v1, 5, v15
    v_and_b32 v16, 1, v2
    v_lshl_add_u32 v15, v16, 4, v15
    s_mul_i32 s28, s20, 272
    s_add_u32 s28, s28, {L_ST2}
    v_add_u32 v15, s28, v15
    """)
    srd(A, 8, "s52", "s53", 2 << 20)
    X, Yv, B = 64, 72, 80
    def unpack(d, s_):
        for k in range(4):
            A(f"v_lshlrev_b32 v{d+2*k}, 16, v{s_+k}")
            A(f"v_and_b32 v{d+2*k+1}, 0xffff0000, v{s_+k}")
    def pack(d, s_):
        for k in range(4): A(f"v_cvt_pk_bf16_f32 v{d+k}, v{s_+2*k}, v{s_+2*k+1}")
    unpack(X, VX); unpack(B, VB2)
    A("s_barrier")
    A.st("fin")
    A(f"ds_read_b128 v[16:19], v15")
    for w in range(4):
        A(f"ds_read_b128 v[{P+8*w}:{P+8*w+3}], v13 offset:{w*8192}")
        A(f"ds_read_b128 v[{P+8*w+4}:{P+8*w+7}], v14 offset:{w*8192}")
    A("s_waitcnt lgkmcnt(8)")
    unpack(Yv, 16)
    for k in range(8): A(f"v_add_f32 v{X+k}, v{X+k}, v{Yv+k}")
    pack(20, X); unpack(X, 20)
    A("s_waitcnt lgkmcnt(4)")
    for k in range(8): A(f"v_add_f32 v{P+k}, v{P+k}, v{P+8+k}")
    A("s_waitcnt lgkmcnt(0)")
    for k in range(8): A(f"v_add_f32 v{P+16+k}, v{P+16+k}, v{P+24+k}")
    for k in range(8): A(f"v_add_f32 v{P+k}, v{P+k}, v{P+16+k}")
    pack(24, P); unpack(P, 24)
    for k in range(8): A(f"v_add_f32 v{P+k}, v{P+k}, v{B+k}")
    pack(24, P); unpack(P, 24)
    for k in range(8): A(f"v_add_f32 v{P+k}, v{P+k}, v{X+k}")
    pack(28, P)
    A(f"buffer_store_dwordx4 v[28:31], v{VOO}, s[8:11], s33 offen {os.environ.get('SCO', '')}")
    if STAMPS: A("s_waitcnt vmcnt(0)")
    A.stamp_flush(0)
    A("s_endpgm")


def gen():
    A = Asm()
    A.stamp(0, True); A.stamp(1)
    for k in range(2, 9): A.stamp(k)
    A(f"""
    s_cmp_ge_u32 s2, 256
    s_cbranch_scc1 L_exit
    s_load_dwordx2 s[40:41], s[0:1], {KA['u']}
    s_load_dwordx8 s[44:51], s[0:1], {KA['w1']}
    s_load_dwordx4 s[52:55], s[0:1], {KA['out']}
    s_load_dwordx2 s[42:43], s[0:1], {KA['ws']}
    v_lshrrev_b32 v1, 6, v0
    v_and_b32 v0, 63, v0
    s_and_b32 s23, s2, 7
    s_lshr_b32 s24, s2, 3
    v_readfirstlane_b32 s20, v1
    s_and_b32 s25, s24, 3
    s_lshr_b32 s79, s24, 2
    s_lshl_b32 s78, s23, 2
    s_add_u32 s78, s78, s25
    s_mul_i32 s74, s79, {3584 if ROT & 1 else 0}
    s_and_b32 s74, s74, 0xfffffc00
    s_mul_i32 s75, s25, {7168 if ROT & 2 else 0}
    s_add_u32 s74, s74, s75
    s_sub_u32 s75, s74, {28*1024}
    s_min_u32 s74, s74, s75
    s_mov_b32 s77, 1
    s_and_b32 s39, s20, 3
    s_cmp_eq_u32 s79, 7
    s_cbranch_scc1 L_ln
    """)
    if LOC:
        A("""
        s_and_b32 s21, s24, 1
        s_lshl_b32 s22, s23, 1
        s_add_u32 s21, s21, s22
        s_lshr_b32 s22, s24, 1
        """)
    else:
        A("""
        s_lshr_b32 s21, s23, 1
        s_lshl_b32 s21, s21, 2
        s_add_u32 s21, s21, s25
        s_and_b32 s22, s23, 1
        s_mul_i32 s22, s22, 7
        s_add_u32 s22, s22, s79
        """)
    gen_gemm1(A)
    A.label("L_ln")
    A("s_nop 0 ; RESETSB")
    A("s_mov_b32 s21, s78")
    gen_ln(A)
    A.label("L_gemm2")
    A("s_nop 1 ; RESETSB")
    gen_gemm2(A)
    A.label("L_conv")
    A("s_nop 1 ; RESETSB")
    gen_conv(A)
    A.label("L_final")
    A("s_nop 7")
    gen_final(A)
    A.label("L_exit")
    A("s_endpgm")
    lines = fix_hazards(A.lines, verbose=True)
    check_waits(lines, "s")
    head = open("parallel_sum__ssm_conv_s4__dense_activation_gelu__prompt.s.ref").read().split("; Override launch")[0]
    head += f"; @launch grid=(256,1,1) block=(512,1,1) lds={LDS_TOTAL}\n.amdgcn_target \"amdgcn-amd-amdhsa--gfx950\"\n"
    return head + kernel_section(KNAME, lines, 256, 102, 256)

if __name__ == "__main__":
    out = sys.argv[1] if len(sys.argv) > 1 else "cur8.s"
    open(out, "w").write(gen())
    print("wrote", out)
```

```python
from asmlib import *
import struct, math, os, sys

def f2u(x): return struct.unpack("<I", struct.pack("<f", x))[0]
def env(n, d): return int(os.environ.get(n, str(d)))

KNAME = "parallel_sum__ssm_conv_s4__dense_activation_gelu__prompt_kernel"
KA = dict(u=0, A_re=8, A_im=16, B_re=24, B_im=32, C_re=40, C_im=48, log_dt=56, Dskip=64, Bx=72, w1=80, b1=88, w2=96, b2=104,
          out=112, dbg=120, ws=128)
WS_FLL = 32768
WS_EPOCH = 49152
WS_DUMMY = 53248
WS_STAT = 65536
WS_FLH = 131072
WS_FLY = 262144
WS_HF = 1 << 20
WS_XNT = 8 << 20
WS_YA = 12 << 20
WS_USED = 14 << 20

LOG2E = 1.4426950408889634
GC1 = -2.0 * LOG2E * 0.7978845608028654
GC2 = GC1 * 0.044715

NS, STAGE = 4, 32768
RSL = 12
RING = RSL * 2048
L_KST = 98304; KST = 8704
L_ST2 = 98304; ST2 = 8192
L_CH = 131072; CH_SIZE = 13056
OFF_E, OFF_O = 4608, 8768
L_FLAG = L_CH + 2 * CH_SIZE
L_CS = L_FLAG + 512
LDS_TOTAL = 163840
L_VS = 98304; L_US = 98304

OPT_PF = env("PF", 1)
PRE = env("PRE", 3)
PRIO_C = env("PRIOC", 1)
PRIO_G = env("PRIOG", 2)
PRIO_E = env("PRIOE", 0)
ROT = env("ROT", 3)
BARP = env("BARP", 2)
STATG = env("STATG", 21)
SC = os.environ.get("SC", "sc1")
PFG = [int(x) for x in os.environ.get("PFG", "").split(",") if x]
HD = 9
WSOFF = env('WSOFF', 0) << 20
SCH = os.environ.get('SCH', SC)
LOC = env('LOC', 0)
GPK = env('GPK', 0)
ULN = env('ULN', 3)
HT = env('HT', 0)
SCL = os.environ.get('SCL', SC)
SPIN = 0x40000

DK, DP, EX, P0 = 224, 128, 160, 244
BF, AF, KG_G, KG_E1, KG_L, KG_V, KG_PK, KG_VW, KG_VRD = 160, 192, 108, 122, 224, 124, 132, 136, 137
L_KS2 = 131072; KS2 = 4352
XL = 180
VDUM, LNF = 252, 253
VX, VB2, VOO = 4, 8, 12
VW2 = 23
W2R, HR, ACC2 = 160, 88, 24
VTL = 24

def srd(A, d, lo, hi, size):
    A(f"s_mov_b32 s{d}, {lo}\ns_mov_b32 s{d+1}, {hi}\ns_mov_b32 s{d+2}, {size}\ns_mov_b32 s{d+3}, 0x00020000")
def round_bf16(A, r):
    A(f"v_cvt_pk_bf16_f32 v{r}, v{r}, v{r}")
    A(f"v_and_b32 v{r}, 0xffff0000, v{r}")
def zipm(*lists):
    o = []
    for k in range(max(len(l) for l in lists)):
        for l in lists:
            if k < len(l): o.append(l[k])
    return o
def mask(lo, hi=None):
    hi = lo if hi is None else hi
    return [f"s_mov_b32 s28, {lo}", f"s_mov_b32 s29, {hi}"]

class VMQ:
    def __init__(self): self.q = []
    def note(self, tag, n=1): self.q.extend([tag] * n)
    def wait(self, *tags):
        idx = max((k for k, t in enumerate(self.q) if t in tags), default=-1)
        if idx < 0: return []
        n = len(self.q) - 1 - idx
        del self.q[:idx + 1]
        return [f"s_waitcnt vmcnt({n})"]
    def younger(self): return len(self.q)

ORDER = [0, 1] + list(range(12, 24)) + list(range(2, 12)) + list(range(24, 28))

def koff(dst, lab, base="s74"):
    return [f"s_add_u32 {dst}, {base}, {lab*1024}", f"s_sub_u32 s75, {dst}, {28*1024}", f"s_min_u32 {dst}, {dst}, s75"]

def slot_addr(sl): return (sl >> 2) * 32768 + (sl & 3) * 2048

def w2_setup(A, vt):
    srd(A, 16, "s48", "s49", 1792 * 1024)
    A(f"""
    v_lshrrev_b32 v{vt}, 2, v0
    v_and_b32 v{vt}, 4, v{vt}
    v_and_b32 v{vt+1}, 7, v0
    v_xor_b32 v{vt}, v{vt}, v{vt+1}
    v_lshrrev_b32 v{vt+1}, 3, v0
    v_lshlrev_b32 v{VW2}, 10, v{vt+1}
    v_lshl_add_u32 v{VW2}, v{vt}, 4, v{VW2}
    s_mul_i32 s72, s39, {448*1024}
    s_lshl_b32 s75, s79, 7
    s_add_u32 s72, s72, s75
    s_lshl_b32 s73, s39, 13
    v_lshrrev_b32 v{vt+1}, 5, v0
    v_bfe_u32 v{vt}, v0, 2, 2
    v_lshl_add_u32 v{VTL}, v{vt+1}, 2, v{vt}
    v_lshlrev_b32 v{VTL}, 7, v{VTL}
    v_bfe_u32 v{vt}, v0, 4, 1
    v_lshl_add_u32 v{VTL}, v{vt}, 5, v{VTL}
    v_and_b32 v{vt}, 3, v0
    v_lshl_add_u32 v{VTL}, v{vt}, 3, v{VTL}
    v_bfe_u32 v{vt}, v0, 3, 1
    v_lshl_add_u32 v{VTL}, v{vt}, 6, v{VTL}
    v_add_u32 v{VTL}, s73, v{VTL}
    v_xor_b32 v{VTL+1}, 64, v{VTL}
    v_add_u32 v{VTL+2}, 0x10000, v{VTL}
    v_add_u32 v{VTL+3}, 0x10000, v{VTL+1}
    """)
def wdma(slot, lab):
    a_ = slot_addr(slot)
    return koff("s31", lab) + [f"s_add_u32 m0, s73, {a_}", "s_lshl4_add_u32 s31, s31, s72",
                               f"buffer_load_dwordx4 v{VW2}, s[16:19], s31 offen lds",
                               f"s_add_u32 m0, s73, {a_+1024}", "s_add_u32 s31, s31, 8192",
                               f"buffer_load_dwordx4 v{VW2}, s[16:19], s31 offen lds"]
def w2tr(slot, ws_, vtl=VTL):
    b = W2R + 8 * ws_; a_ = slot_addr(slot); hi = a_ >> 16; a_ &= 0xffff
    return [f"ds_read_b64_tr_b16 v[{b+4*db+2*sec}:{b+4*db+2*sec+1}], v{vtl+2*hi+db} offset:{a_+sec*1024}" for db in range(2) for sec in range(2)]

def param_loads(A, vt):
    A(f"""
    s_lshr_b32 s28, s39, 1
    s_lshl_b32 s30, s2, 1
    s_add_u32 s30, s30, s28
    v_lshlrev_b32 v{vt}, 1, v0
    v_mov_b32 v{vt+1}, 0
    s_lshl_b32 s29, s30, 8
    s_and_b32 s28, s20, 1
    s_lshl_b32 s28, s28, 7
    s_add_u32 s29, s29, s28
    s_lshl_b32 s30, s30, 1
    s_mov_b32 s18, 1024
    s_mov_b32 s19, 0x00020000
    """)
    for k in range(8): A(f"v_mov_b32 v{P0+k}, 0")
    A("s_waitcnt lgkmcnt(0)")
    for k in (6, 7, 0, 1, 2, 3, 4, 5):
        if k == 0: A("s_mov_b32 s18, 131072")
        A(f"s_mov_b32 s16, s{56+2*k}\ns_mov_b32 s17, s{57+2*k}")
        if k < 6: A(f"buffer_load_short_d16_hi v{P0+k}, v{vt}, s[16:19], s29 offen")
        else: A(f"buffer_load_short_d16_hi v{P0+k}, v{vt+1}, s[16:19], s30 offen")

def lnflag_load(vt):
    return ["s_lshl_b32 s29, s79, 6", "s_lshl_b32 s28, s39, 4", "s_add_u32 s29, s29, s28", "s_lshr_b32 s28, s78, 4", "s_lshl_b32 s28, s28, 9",
            "s_add_u32 s29, s29, s28", "s_lshl_b32 s29, s29, 7", f"s_add_u32 s29, s29, {WS_FLY}",
            f"v_lshlrev_b32 v{vt}, 7, v0", f"v_add_u32 v{vt}, {WS_FLL}, v{vt}",
            f"v_and_b32 v{vt+1}, 15, v0", f"v_lshl_add_u32 v{vt+1}, v{vt+1}, 7, s29", "s_mov_b32 s28, 0", "s_mov_b32 s29, -1",
            f"v_cndmask_b32 v{vt}, v{vt}, v{vt+1}, s[28:29]",
            f"buffer_load_dword v{LNF}, v{vt}, s[12:15], 0 offen {SC}"]

def u_issue(A, vl16):
    A(f"""
    s_lshr_b32 s28, s39, 1
    s_lshl_b32 s29, s2, 1
    s_add_u32 s29, s29, s28
    s_lshl_b32 s29, s29, 12
    s_add_u32 s29, s29, {WS_XNT}
    """)
    for k in range(4): A(f"buffer_load_dwordx4 v[{XL+4*k}:{XL+4*k+3}], v{vl16}, s[12:15], s29 offen offset:{k*1024} {SC}")

def u_try(A, vl16):
    A(f"""
    v_cmp_ne_u32 vcc, s76, v{LNF}
    s_mov_b32 s37, 0
    s_cbranch_vccnz L_ut_no
    s_mov_b32 s37, 1
    """)
    u_issue(A, vl16)
    A.label("L_ut_no")

def u_spin(A, vt, vl16, tag=''):
    A("s_mov_b32 s30, 0")
    A.label(f"L_us_poll{tag}")
    A.extend(lnflag_load(vt))
    A(f"""
    s_add_u32 s30, s30, 1
    s_waitcnt vmcnt(0)
    v_cmp_ne_u32 vcc, s76, v{LNF}
    s_cmp_gt_u32 s30, {SPIN}
    s_cbranch_scc1 L_us_ok{tag}
    s_cbranch_vccnz L_us_poll{tag}
    """)
    A.label(f"L_us_ok{tag}")
    u_issue(A, vl16)
    A("s_waitcnt vmcnt(0)")

def ya_addr(vd, vt):
    return [f"v_lshrrev_b32 v{vd}, 3, v0", f"v_and_b32 v{vt}, 7, v0", f"v_lshlrev_b32 v{vd}, 13, v{vd}", f"v_lshl_add_u32 v{vd}, v{vt}, 4, v{vd}",
            "s_lshr_b32 s28, s39, 1", "s_lshl_b32 s31, s2, 1", "s_add_u32 s31, s31, s28",
            "s_lshr_b32 s29, s31, 6", "s_lshl_b32 s29, s29, 18", "s_and_b32 s28, s31, 63", "s_lshl_b32 s28, s28, 7", "s_add_u32 s29, s29, s28",
            f"s_add_u32 s29, s29, {WS_YA}", "s_and_b32 s30, s39, 1", "s_lshl_b32 s30, s30, 17", "s_add_u32 s30, s30, s29", "s_add_u32 s31, s30, 65536"]
def ya_prefill(vd, vt, vm4):
    return ya_addr(vd, vt) + [f"v_mov_b32 v{vm4+k}, -1" for k in range(4)] + \
           [f"buffer_store_dwordx4 v[{vm4}:{vm4+3}], v{vd}, s[12:15], s{30+h} offen {SC}" for h in range(2)]

def publish_flag(A, soff, vt, tag, wave, both=False):
    A(f"""
    s_cmp_lg_u32 s20, {wave}
    s_cbranch_scc1 L_pub_skip{tag}
    v_mov_b32 v{vt}, 0
    v_mov_b32 v{vt+1}, s76
    s_mov_b64 exec, 1
    buffer_store_dword v{vt+1}, v{vt}, s[12:15], {soff} offen {SC}
    """)
    if both:
        A(f"""
        s_lshl_b32 s28, s2, 7
        s_add_u32 s28, s28, {WS_FLW}
        buffer_store_dword v{vt+1}, v{vt}, s[12:15], s28 offen {SC}
        """)
    A(f"""
    s_mov_b64 exec, -1
    L_pub_skip{tag}:
    """)
def mktag(A):
    A("s_mul_i32 s76, s76, 0x9E3779B1")
    A("s_add_u32 s76, s76, 0x7F4A7C15")
def arrive(A, tag):
    A(f"""
    s_cmp_lg_u32 s20, 3
    s_cbranch_scc1 L_arr{tag}
    s_atomic_add s77, s[54:55], 0 glc
    L_arr{tag}:
    """)

def coop_prefetch(A, vt):
    A(f"""
    s_lshl_b32 s28, s24, 2
    s_add_u32 s28, s28, s39
    s_lshl_b32 s30, s28, 6
    v_add_u32 v{vt}, s30, v0
    v_mul_u32_u24 v{vt+1}, 0x4925, v{vt}
    v_lshrrev_b32 v{vt+1}, 18, v{vt+1}
    v_mul_u32_u24 v{vt+2}, 14, v{vt+1}
    v_sub_u32 v{vt}, v{vt}, v{vt+2}
    v_lshlrev_b32 v{vt}, 7, v{vt}
    v_mul_u32_u24 v{vt+1}, 3584, v{vt+1}
    v_add_u32 v{vt}, v{vt}, v{vt+1}
    s_and_b32 s29, s23, 1
    s_mul_i32 s29, s29, 1792
    buffer_load_dword v{VDUM}, v{vt}, s[8:11], s29 offen
    s_lshr_b32 s29, s23, 1
    s_lshl_b32 s29, s29, 19
    s_lshl_b32 s30, s28, 13
    s_add_u32 s29, s29, s30
    s_cmp_lt_u32 s28, 64
    s_cselect_b32 s29, s29, 0x400000
    v_lshlrev_b32 v{vt+2}, 7, v0
    buffer_load_dword v{VDUM}, v{vt+2}, s[4:7], s29 offen
    """)
def w2_prefetch(vt, piece):
    return ["s_lshl_b32 s28, s24, 2", "s_add_u32 s28, s28, s39", "s_lshl_b32 s28, s28, 14", f"s_add_u32 s28, s28, {piece*8192}",
            f"v_lshlrev_b32 v{vt}, 7, v0", f"buffer_load_dword v{VDUM}, v{vt}, s[16:19], s28 offen"]

def cmul(d, x, y, pk=True):
    P = lambda r: f"v[{r}:{r+1}]"
    assert d != x and d != y
    if pk:
        return [f"v_pk_mul_f32 {P(d)}, {P(x)}, {P(y)} op_sel:[0,0] op_sel_hi:[0,1]",
                f"v_pk_fma_f32 {P(d)}, {P(x)}, {P(y)}, {P(d)} op_sel:[1,1,0] op_sel_hi:[1,0,1] neg_lo:[0,1,0]"]
    return [f"v_mul_f32 v{d}, v{x}, v{y}", f"v_mul_f32 v{d+1}, v{x}, v{y+1}",
            f"v_fma_f32 v{d}, -v{x+1}, v{y+1}, v{d}", f"v_fma_f32 v{d+1}, v{x+1}, v{y}, v{d+1}"]

def kg_common(A, base, T0, Z, WA):
    ar, ai, br, bi, cr, ci, ld, dsk = range(P0, P0 + 8)
    u_ = f2u(LOG2E) & 0xFFFFFF00
    lh = struct.unpack("<f", struct.pack("<I", u_))[0]; ll = LOG2E - lh
    A(f"""
    v_mul_f32 v{T0}, {hex(f2u(lh))}, v{ld}
    v_mul_f32 v{T0+1}, {hex(f2u(ll * math.log(2)))}, v{ld}
    v_exp_f32 v{T0}, v{T0}
    s_nop 0
    v_fma_f32 v{T0}, v{T0}, v{T0+1}, v{T0}
    """)
    round_bf16(A, T0)
    A(f"""
    v_mul_f32 v{Z}, v{T0}, v{ar}
    v_mul_f32 v{Z+1}, v{T0}, v{ai}
    v_mul_f32 v{br}, v{T0}, v{br}
    v_mul_f32 v{bi}, v{T0}, v{bi}
    v_mul_f32 v{Z}, {hex(f2u(LOG2E))}, v{Z}
    v_mul_f32 v{Z+1}, 0.15915494, v{Z+1}
    """)
def kg_waddr(A, base, WA):
    A(f"s_lshl_b32 s28, s39, 13\ns_add_u32 s28, s28, {base}\nv_lshl_add_u32 v{WA}, v0, 2, s28")
    for k in range(1, 16): A(f"v_xor_b32 v{WA+k}, {16*k}, v{WA}")
def kg_raddr(base, d, t):
    o = ["s_lshl_b32 s28, s39, 13", f"s_add_u32 s28, s28, {base}", f"v_and_b32 v{t}, 15, v0", f"v_lshrrev_b32 v{t+1}, 5, v0", f"v_xor_b32 v{t}, v{t}, v{t+1}",
         f"v_and_b32 v{t+1}, 31, v0", f"v_lshlrev_b32 v{t+1}, 8, v{t+1}", f"v_lshl_add_u32 v{d}, v{t}, 4, v{t+1}", f"v_add_u32 v{d}, s28, v{d}"]
    return o + [f"v_xor_b32 v{d+k}, {32*k}, v{d}" for k in range(1, 8)]
def cexp(d, x, t, Z):
    xs = {1: None, 8: hex(f2u(8.0)), 256: hex(f2u(256.0))}[x]
    o = []
    if xs is None: o += [f"v_exp_f32 v{t}, v{Z}", f"v_fract_f32 v{t+1}, v{Z+1}"]
    else: o += [f"v_mul_f32 v{t}, {xs}, v{Z}", f"v_mul_f32 v{t+1}, {xs}, v{Z+1}", f"v_exp_f32 v{t}, v{t}", f"v_fract_f32 v{t+1}, v{t+1}"]
    o += [f"v_cos_f32 v{d}, v{t+1}", f"v_sin_f32 v{d+1}, v{t+1}", f"v_mul_f32 v{d}, v{d}, v{t}", f"v_mul_f32 v{d+1}, v{d+1}, v{t}"]
    return o
KWA = 100
KRA = 116

def gen_kgen_v(A):
    T0, Z, E8, E16, Va, Vb, PKT = 34, 144, 44, 46, 80, 84, 88
    kg_common(A, L_VS, T0, Z, KWA)
    A.extend(cexp(E8, 8, T0, Z))
    A.extend(cmul(E16, E8, E8))
    npk = [0]
    def emit(src, row):
        t = PKT + (npk[0] % 8); npk[0] += 1
        return [f"v_cvt_pk_bf16_f32 v{t}, v{src}, v{src+1}", f"ds_write_b32 v{KWA + (row & 15)}, v{t} offset:{row*256}"]
    A(f"v_mov_b32 v{PKT+7}, 0x00003f80")
    A(f"ds_write_b32 v{KWA}, v{PKT+7}")
    A.extend(emit(E8, 1)); A.extend(emit(E16, 2))
    ev, od = E16, E8
    for j in range(3, 32, 2):
        d1 = Va + 2 * (((j - 3) // 2) % 2)
        d2 = Vb + 2 * (((j - 3) // 2) % 2)
        l1 = cmul(d1, od, E16) + emit(d1, j)
        l2 = (cmul(d2, ev, E16) + emit(d2, j + 1)) if j + 1 < 32 else []
        A.extend(zipm(l1, l2))
        od, ev = d1, d2
    for st in range(8): A(f"ds_read_b128 v[{BF+4*st}:{BF+4*st+3}], v{KRA+st}")

UPK = 192
def kgen_u_lists(rebase):
    T0, Z, E1, G, Lr, Va = 34, 144, 42, 44, 58, 76
    ar, ai, br, bi, cr, ci, ld, dsk = range(P0, P0 + 8)
    cm = lambda d, x, y: cmul(d, x, y, False)
    V = []; Wr = []
    if rebase: V += [f"v_subrev_u32 v{KWA+k}, {rebase}, v{KWA+k}" for k in range(24)]
    V += zipm(cexp(E1, 1, T0 + 2, Z), cexp(G, 256, T0 + 4, Z), cm(Lr, cr, br))
    npk = [0]
    def emit(src, rows):
        t = UPK + npk[0]; npk[0] += 1
        Wr.extend(f"ds_write_b32 v{KWA + (row & 15)}, v{t} offset:{row*256}" for row in rows)
        return [f"v_cvt_pk_bf16_f32 v{t}, v{src}, -v{src+1}"]
    urow = lambda hh, r: 8 * (r >> 2) + 4 * hh + (r & 3)
    lch = emit(Lr, [urow(0, 0)])
    for a_ in range(1, 9): lch += cm(Lr + 2 * a_, Lr + 2 * (a_ - 1), E1) + emit(Lr + 2 * a_, [urow(0, a_)])
    gch = []
    for k in range(2, 8): gch += cm(G + 2 * (k - 1), G + 2 * (k - 2), G)
    V += zipm(lch, gch)
    jobs = [(0, 1, [urow(1, 0), urow(1, 1)]), (2, 1, [urow(1, 2)]), (4, 1, [urow(1, 3), urow(1, 4), urow(1, 5)]), (6, 1, [urow(1, 6)]),
            (8, 1, [urow(1, 7), urow(1, 8)]),
            (0, 2, [urow(0, 9)]), (4, 2, [urow(0, 10)]), (8, 2, [urow(0, 11)]),
            (0, 3, [urow(1, 9)]), (4, 3, [urow(1, 10)]), (8, 3, [urow(1, 11)]),
            (0, 4, [urow(0, 12)]), (8, 4, [urow(0, 13)]), (0, 5, [urow(0, 14)]), (8, 5, [urow(0, 15)]),
            (0, 6, [urow(1, 12)]), (8, 6, [urow(1, 13)]), (0, 7, [urow(1, 14)]), (8, 7, [urow(1, 15)])]
    for k in range(0, len(jobs), 2):
        ls = []
        for q_, (a_, gk, rows) in enumerate(jobs[k:k + 2]):
            d = Va + 4 * q_ + 2 * ((k // 2) % 2)
            ls.append(cm(d, Lr + 2 * a_, G + 2 * (gk - 1)) + emit(d, rows))
        V += zipm(*ls)
    assert npk[0] <= 32
    return V, Wr

def kg_atoms_m():
    at = [[f"ds_read_b128 v[{AF+4*k}:{AF+4*k+3}], v{KRA+k} offset:{L_US - L_VS}", ("tag", ("af", k))] for k in range(8)]
    mm = []
    for st in range(8):
        cin = "0" if st == 0 else f"v[{DK}:{DK+15}]"
        mm.append([("wait", ("af", st)), f"v_mfma_f32_32x32x16_bf16 v[{DK}:{DK+15}], v[{AF+4*st}:{AF+4*st+3}], v[{BF+4*st}:{BF+4*st+3}], {cin}"])
    return at, mm

def kg_atoms_x1():
    T0 = P0
    at = [[f"s_lshr_b32 s30, s39, 1", f"s_mul_i32 s30, s30, {CH_SIZE}", f"s_add_u32 s38, s30, {L_CH}", f"v_lshl_add_u32 v{T0}, v0, 4, s38"]]
    at.append(["s_bitcmp1_b32 s39, 0", "s_cselect_b64 exec, -1, 0"] + [f"ds_write_b128 v{T0}, v[{DK+4*q}:{DK+4*q+3}] offset:{512+q*1024}" for q in range(3)] +
              ["s_not_b64 exec, exec", f"ds_write_b128 v{T0}, v[{DK+12}:{DK+15}] offset:{512+3072}", "s_mov_b64 exec, -1"])
    return at

def kg_atoms_x2(tag):
    T0 = P0; VEA, VEB = 254, 255
    at = []
    at.append([f"ds_read_b128 v[{DP+4*q}:{DP+4*q+3}], v{T0} offset:{512+q*1024}" for q in range(4)] + [("tag", "dp")])
    for i in [f"v_and_b32 v{T0+4}, 31, v0", f"v_lshrrev_b32 v{T0+1}, 5, v0", f"v_lshlrev_b32 v{T0+2}, 4, v{T0+4}"]: at.append([i])
    at.append([f"s_add_u32 s28, s38, {OFF_E + 4080 - 1024}", f"v_sub_u32 v{VEA}, s28, v{T0+2}"])
    at.append([f"v_lshlrev_b32 v{T0+3}, 9, v{T0+1}"]); at.append([f"v_sub_u32 v{VEA}, v{VEA}, v{T0+3}"])
    at.append([f"s_add_u32 s28, s38, {OFF_E + 4080 - 2560}", f"v_sub_u32 v{VEB}, s28, v{T0+2}"])
    at.append([f"v_lshlrev_b32 v{T0+3}, 10, v{T0+1}"]); at.append([f"v_sub_u32 v{VEB}, v{VEB}, v{T0+3}"])
    at.append([f"v_lshl_add_u32 v{T0}, v0, 3, s38"]); at.append([f"v_mov_b32 v{T0+2}, 0"]); at.append([f"v_mov_b32 v{T0+3}, 0"])
    at.append(["s_lshl_b32 s28, s39, 2", f"s_add_u32 s28, s28, {L_FLAG}", f"v_mov_b32 v{T0+1}, s28"])
    for k in range(16): at.append(([("wait", "dp")] if k == 0 else []) + [f"v_add_f32 v{DK+k}, v{DK+k}, v{DP+k}"])
    at.append(mask("0xaaaaaaaa") + [f"v_cndmask_b32 v{DP}, v{DK+12}, v{DK+13}, s[28:29]", f"v_cndmask_b32 v{DP+1}, v{DK+14}, v{DK+15}, s[28:29]"])
    k_ = lambda r: DK + r
    def half(base, kk, va, off, odd):
        prs = [(8, 7), (6, 5), (4, 3), (2, 1)] if odd else [(7, 6), (5, 4), (3, 2), (1, 0)]
        return [f"v_cvt_pk_bf16_f32 v{base+i}, v{kk[lo]}, v{kk[hi]}" for i, (lo, hi) in enumerate(prs)] + \
               [f"ds_write_b128 v{va}, v[{base}:{base+3}] offset:{off + (OFF_O - OFF_E if odd else 0)}"]
    ev = [([k_(i) for i in range(9)], VEA, 1024), ([k_(9)] * 3 + [k_(10)] * 3 + [k_(11)] * 3, VEA, 0)]
    od = [([k_(12)] * 4 + [DP] + [k_(13)] * 4, VEB, 512), ([k_(14)] * 4 + [DP + 1] + [k_(15)] * 4, VEB, 0)]
    n = 0
    for gi in range(2):
        for o_ in range(2):
            b_ = EX + 4 * n
            at.append(["s_bitcmp1_b32 s39, 0", f"s_cbranch_scc1 L_xo{tag}{n}"] + half(b_, *ev[gi], o_)[:-1] + [("nods", half(b_, *ev[gi], o_)[-1]), f"s_branch L_xd{tag}{n}",
                       f"L_xo{tag}{n}:"] + half(b_, *od[gi], o_) + [f"L_xd{tag}{n}:"])
            n += 1
    at.append(["s_bitcmp0_b32 s39, 0", "s_cselect_b64 s[28:29], -1, 0", "s_mov_b64 exec, s[28:29]",
               f"ds_write_b64 v{T0}, v[{T0+2}:{T0+3}]", "s_and_b64 exec, s[28:29], 15",
               f"ds_write_b64 v{T0}, v[{T0+2}:{T0+3}] offset:{OFF_E+4096}", f"ds_write_b64 v{T0}, v[{T0+2}:{T0+3}] offset:{OFF_O+4096}",
               "s_and_b64 exec, s[28:29], 1", f"ds_write_b16_d16_hi v{T0}, v{EX+3} offset:{OFF_O+4096}",
               "s_mov_b64 exec, -1"])
    at.append([f"v_mov_b32 v{T0+2}, 1", f"ds_write_b32 v{T0+1}, v{T0+2} offset:64"])
    return at

def flag_zero():
    return [[f"v_lshlrev_b32 v{VT1}, 2, v0", f"v_mov_b32 v{VT1+1}, 0", f"v_add_u32 v{VT1}, {L_FLAG}, v{VT1}", f"ds_write_b32 v{VT1}, v{VT1+1}"]]

class LQ:
    def __init__(self, A): self.A = A; self.q = []
    def emit(self, items, tag=None):
        maybe0 = any(isinstance(it, str) and "s_cselect_b64" in it for it in items)
        for it in items:
            if maybe0 and isinstance(it, str):
                self.A(it); continue
            if isinstance(it, tuple):
                if it[0] == "tag": self.q[-1] = it[1]
                elif it[0] == "wait": self.wait(it[1])
                elif it[0] == "nods": self.A(it[1])
                continue
            self.A(it)
            if it.strip().startswith("ds_"): self.q.append(tag)
            if "lgkmcnt(0)" in it: self.q = []
    def wait(self, tag):
        idx = max((k for k, t in enumerate(self.q) if t == tag), default=-1)
        if idx < 0: return
        n = min(len(self.q) - 1 - idx, 15)
        self.A(f"s_waitcnt lgkmcnt({n})")
        self.q = self.q[len(self.q) - n:] if n else []

def spread(atoms, g0, g1):
    pts = [(g, p) for g in range(g0, g1) for p in range(2)]
    tot = sum(len(a_) for a_ in atoms); out = {p: [] for p in pts}; acc = 0
    for a_ in atoms:
        out[pts[min(len(pts) - 1, acc * len(pts) // tot)]].append(a_); acc += len(a_)
    return out

VXO, VWO, VXO2 = 1, 2, 3
VXR, VTR = 4, 8
VONE, VHO1, VB1 = 16, 18, 19
VCW, VCR, VSO = 20, 21, 22
VT1 = 28
NR = 3
W1, X1, ACC1, CS = 32, 56, 80, 144
HI = 152
GT, PK, SG = 164, 180, 188
EA, EB = 192, 196
VS, K1r, K3r = 212, 214, 216

def wave_flag(soff, vt):
    return [f"v_mov_b32 v{vt}, 0", f"v_mov_b32 v{vt+1}, s76", "s_mov_b64 exec, 1",
            f"buffer_store_dword v{vt+1}, v{vt}, s[12:15], {soff} offen {SC}", "s_mov_b64 exec, -1"]

def dma_setup(A):
    VT = VT1
    A(f"""
    v_lshrrev_b32 v{VT}, 3, v0
    v_and_b32 v{VT+1}, 7, v0
    v_lshrrev_b32 v{VT+2}, 4, v0
    v_xor_b32 v{VT+3}, v{VT+2}, v{VT+1}
    v_lshlrev_b32 v{VXO}, 10, v{VT}
    v_lshl_add_u32 v{VXO}, v{VT+3}, 4, v{VXO}
    v_xor_b32 v{VXO2}, 64, v{VXO}
    v_add_u32 v{VXO2}, 8192, v{VXO2}
    v_and_b32 v{VT+3}, 15, v0
    v_lshlrev_b32 v{VT}, 2, v{VT+2}
    v_xor_b32 v{VT+3}, v{VT+3}, v{VT}
    v_mul_u32_u24 v{VWO}, 3584, v{VT+2}
    v_lshl_add_u32 v{VWO}, v{VT+3}, 4, v{VWO}
    s_lshl_b32 s25, s21, 17
    s_lshl_b32 s28, s39, 15
    s_add_u32 s25, s25, s28
    s_mul_i32 s26, s39, {16*3584}
    s_lshl_b32 s28, s22, 8
    s_add_u32 s26, s26, s28
    s_lshl_b32 s27, s39, 12
    """)

def g1_dma(kc, part):
    st = (kc % NS) * STAGE
    return [f"s_add_u32 m0, s27, {st + part*1024}", f"s_add_u32 s31, s25, {128*kc + (part//2)*16384}",
            f"buffer_load_dwordx4 v{VXO if part % 2 == 0 else VXO2}, s[4:7], s31 offen lds",
            f"s_add_u32 m0, s27, {st + 16384 + part*1024}", f"s_add_u32 s37, s26, {(64*kc + 4*part)*3584}",
            f"buffer_load_dwordx4 v{VWO}, s[8:11], s37 offen lds"]

def c_setup(A):
    VT = VT1
    A(f"""
    v_and_b32 v{VT}, 31, v0
    v_lshrrev_b32 v{VT+1}, 5, v0
    v_bfe_u32 v{VT+2}, v0, 1, 3
    v_xor_b32 v{VT+2}, v{VT+2}, v{VT+1}
    s_lshl_b32 s31, s34, 1
    v_xor_b32 v{VT+2}, s31, v{VT+2}
    v_lshlrev_b32 v{VXR}, 7, v{VT}
    v_lshl_add_u32 v{VXR}, v{VT+2}, 4, v{VXR}
    s_lshl_b32 s28, s34, 13
    v_add_u32 v{VXR}, s28, v{VXR}
    v_xor_b32 v{VXR+1}, 32, v{VXR}
    v_xor_b32 v{VXR+2}, 64, v{VXR}
    v_xor_b32 v{VXR+3}, 96, v{VXR}
    v_lshlrev_b32 v{VSO}, 3, v0
    v_bfe_u32 v{VT+2}, v0, 2, 2
    v_lshl_add_u32 v{VTR}, v{VT+1}, 3, v{VT+2}
    v_lshlrev_b32 v{VTR}, 8, v{VTR}
    v_bfe_u32 v{VT+3}, v0, 4, 1
    v_lshl_add_u32 v{VTR}, v{VT+3}, 5, v{VTR}
    v_and_b32 v{VT+3}, 3, v0
    v_lshl_add_u32 v{VTR}, v{VT+3}, 3, v{VTR}
    s_lshl_b32 s31, s35, 1
    v_xor_b32 v{VT+2}, s31, v{VT+2}
    v_lshl_add_u32 v{VTR}, v{VT+2}, 6, v{VTR}
    s_lshl_b32 s31, s34, 12
    s_add_u32 s31, s31, 16384
    v_add_u32 v{VTR}, s31, v{VTR}
    """)
    for i in range(4):
        for ft in range(2):
            if i == 0 and ft == 0: continue
            A(f"v_xor_b32 v{VTR+2*i+ft}, {i*4096 + ft*64}, v{VTR}")
    A(f"""
    v_mov_b32 v{VONE}, 0x3f803f80
    v_mov_b32 v{VONE+1}, 0x3f803f80
    v_lshlrev_b32 v{VHO1}, 4, v0
    s_lshl_b32 s33, s21, 1
    s_add_u32 s33, s33, s34
    s_lshl_b32 s36, s33, 9
    s_add_u32 s36, s36, {WS_STAT}
    s_mul_i32 s32, s33, {2*112*1024}
    s_lshl_b32 s28, s22, 1
    s_add_u32 s28, s28, s35
    s_lshl_b32 s29, s28, 12
    s_add_u32 s32, s32, s29
    s_add_u32 s32, s32, {WS_HF}
    s_add_u32 s38, s32, {112*1024}
    s_lshl_b32 s33, s33, 5
    s_add_u32 s33, s33, s28
    s_lshl_b32 s33, s33, 7
    s_add_u32 s33, s33, {WS_FLH}
    s_lshl_b32 s29, s20, 8
    v_lshl_add_u32 v{VCW}, v0, 2, s29
    v_add_u32 v{VCW}, {L_CS}, v{VCW}
    v_xor_b32 v{VCR}, 256, v{VCW}
    """)
    srd(A, 16, "s46", "s47", 3584)
    A(f"""
    v_mov_b32 v{VB1}, 0
    v_lshlrev_b32 v{VT1}, 1, v0
    s_lshl_b32 s28, s28, 7
    buffer_load_short_d16_hi v{VB1}, v{VT1}, s[16:19], s28 offen
    """)
    for k in range(20): A(f"v_mov_b32 v{EA+k}, 0")
    for k in range(12): A(f"v_add_u32 v{HI+k}, 0x10000, v{VXR+k}")

def c_reads(g):
    kc, i = divmod(g, 4)
    st = kc % NS
    b = (VXR if st < 2 else HI); off = (st % 2) * STAGE
    sl = g % NR
    tr = lambda ft, sec: f"ds_read_b64_tr_b16 v[{W1+8*sl+4*ft+2*sec}:{W1+8*sl+4*ft+2*sec+1}], v{b+4+2*i+ft} offset:{off + sec*1024}"
    xr = lambda tt: f"ds_read_b128 v[{X1+8*sl+4*tt}:{X1+8*sl+4*tt+3}], v{b+i} offset:{off + tt*4096}"
    return [xr(0), tr(0, 0), tr(0, 1), tr(1, 0), tr(1, 1), xr(1)]

def gen_c1(A):
    VT = VT1
    dma_setup(A)
    A(f"""
    s_and_b32 s34, s20, 1
    s_lshr_b32 s35, s20, 1
    s_waitcnt lgkmcnt(0)
    s_add_u32 s42, s42, {WSOFF}
    s_addc_u32 s43, s43, 0
    s_load_dword s76, s[42:43], {WS_EPOCH}
    """)
    vm = VMQ()
    srd(A, 4, "s40", "s41", 2 << 20)
    srd(A, 8, "s44", "s45", 512 * 3584)
    srd(A, 12, "s42", "s43", WS_USED)
    for kc in range(3):
        for part in range(4): A.extend(g1_dma(kc, part))
        vm.note(kc, 8)
        if kc == 0:
            c_setup(A); vm.note("b1")
        if kc == env("PFAT", 1) and OPT_PF: coop_prefetch(A, VT); vm.note("pf", 2)
    A.extend(ya_prefill(VT, VT + 1, PK)); vm.note(2, 2)
    hpre = [f"buffer_store_dwordx4 v[{PK}:{PK+3}], v{VHO1}, s[12:15], s{32 if n < 4 else 38} offen offset:{(n%4)*1024} {SC}" for n in range(8)]
    HPRE = env("HPRE", 0)
    if HPRE == 1: A.extend(hpre); vm.note(2, 8)
    w2_setup(A, VT)
    mpf = ["s_lshl_b32 s28, s2, 2", "s_add_u32 s28, s28, s39", "s_lshl_b32 s28, s28, 11", f"v_lshlrev_b32 v{VT+2}, 7, v0", "s_mov_b64 exec, 0xffff",
           f"buffer_load_dword v{VDUM}, v{VT+2}, s[16:19], s28 offen", "s_mov_b64 exec, -1"]
    MPG = env("MPG", 9)
    if MPG == -1: A.extend(mpf); vm.note(2)
    A.st("pre")
    A(vm.wait(0)[0] + " lgkmcnt(0)"); A("s_barrier")
    A.st("b0")
    T = GT
    lq = LQ(A)
    lq.emit(c_reads(0), 0); lq.emit(c_reads(1), 1)
    mktag(A)
    def big(g, tt, ft):
        sl = g % NR; c = ACC1 + 32 * tt + 16 * ft
        cin = "0" if g == 0 else f"v[{c}:{c+15}]"
        return f"v_mfma_f32_32x32x16_bf16 v[{c}:{c+15}], v[{W1+8*sl+4*ft}:{W1+8*sl+4*ft+3}], v[{X1+8*sl+4*tt}:{X1+8*sl+4*tt+3}], {cin}"
    for g in range(32):
        kc, i = divmod(g, 4); w = W1 + 8 * (g % NR)
        m = lambda d, b_, z: f"v_mfma_f32_4x4x4_16b_bf16 v[{d}:{d+3}], v[{VONE}:{VONE+1}], v[{b_}:{b_+1}], " + ("0" if z else f"v[{d}:{d+3}]")
        o1, o2 = [], []
        if i < 2 and False: pass
        if i in (0, 2) and g < 28 or g in (28, 29):
            o1 = [m(CS, w, g == 0), m(CS + 4, w + 4, g == 0)]; o2 = [m(CS, w + 2, False), m(CS + 4, w + 6, False)]
        A.st(f"g{g}")
        gn = g + 2
        rd = c_reads(PERM(gn))[:] if gn < 32 else []
        rd = c_reads_slot(gn) if gn < 32 else []
        x1, x2 = [], []
        if i == 2 and kc + 1 < 8: x1 += vm.wait(kc + 1) + ["s_barrier"]
        if g == 30:
            x1 += [f"v_permlane32_swap_b32 v{CS}, v{CS+4}", f"v_add_f32 v{CS}, v{CS}, v{CS+4}", f"ds_write_b32 v{VCW}, v{CS}",
                   "s_waitcnt lgkmcnt(0)", "s_barrier", f"ds_read_b32 v{T+2}, v{VCR}"]
        if g == STATG: x2 += [f"buffer_load_dwordx2 v[{SG}:{SG+1}], v{VSO}, s[12:15], s36 offen {SC}"]; vm.note("sg")
        if g == MPG: x2 += mpf; vm.note("mpf")
        WM = env("WARM", 0)
        if WM and g == env("WARMG", 10):
            x2 += [f"v_lshlrev_b32 v{VT+2}, 20, v0", f"v_lshlrev_b32 v{VT+3}, 7, v0"]
            if WM & 1: x2 += ["s_mov_b64 exec, 0x3fff", f"buffer_load_dword v{VDUM}, v{VT+2}, s[12:15], 0 offen"]; vm.note("wm")
            if WM & 2: x2 += ["s_mov_b64 exec, 3", f"global_load_dword v{VDUM}, v{VT+2}, s[52:53]"]; vm.note("wm")
            if WM & 4: x2 += ["s_mov_b64 exec, 0xff", f"global_load_dword v{VDUM}, v{VT+3}, s[50:51]"]; vm.note("wm")
            x2 += ["s_mov_b64 exec, -1"]
        if HPRE >= 10 and HPRE <= g < HPRE + 8: x2 += [hpre[g - HPRE]]; vm.note("hp")
        if HPRE == 2 and g == 11:
            x2 += [f"v_and_b32 v{VT+2}, 31, v0", f"v_lshlrev_b32 v{VT+2}, 7, v{VT+2}", "s_mov_b64 exec, 0xffffffff", "s_mov_b32 exec_hi, 0",
                   f"buffer_load_dword v{VDUM}, v{VT+2}, s[12:15], s32 offen", f"buffer_load_dword v{VDUM}, v{VT+2}, s[12:15], s38 offen", "s_mov_b64 exec, -1"]; vm.note("hp", 2)
        if g in PFG:
            n_ = 128 // len(PFG); k_ = PFG.index(g)
            x2 += ["s_lshl_b32 s28, s24, 2", "s_add_u32 s28, s28, s39", "s_lshl_b32 s28, s28, 14", f"s_add_u32 s28, s28, {k_*n_*128}", f"v_lshlrev_b32 v{VT+2}, 7, v0"]
            if n_ < 64: x2 += [f"s_mov_b32 exec_lo, {hex((1 << n_) - 1)}", "s_mov_b32 exec_hi, 0"]
            x2 += [f"buffer_load_dword v{VDUM}, v{VT+2}, s[16:19], s28 offen", "s_mov_b64 exec, -1"]; vm.note("l2")
        if g == env("YFG", 8) - 1: x2 += yflag_off()
        if g == env("YFG", 8): x2 += wave_flag("s28", VT); vm.note("yf")
        lq.wait(g)
        A(big(g, 0, 0))
        if i == 2: A.st(f"pb{kc+1}")
        lq.emit(x1)
        if i == 2: A.st(f"ab{kc+1}")
        lq.emit(rd[:2], gn)
        A(big(g, 0, 1)); lq.emit(rd[2:4], gn); A.extend(o1)
        A(big(g, 1, 0)); lq.emit(rd[4:], gn)
        A(big(g, 1, 1)); lq.emit(x2); A.extend(o2)
    A.st("loop")
    A.extend(vm.wait("sg", "b1"))
    A(f"""
    v_cmp_ne_u32 vcc, s76, v{SG+1}
    s_cbranch_vccz L_g1_sok
    s_mov_b32 s30, 0
    L_g1_spoll:
    buffer_load_dwordx2 v[{SG}:{SG+1}], v{VSO}, s[12:15], s36 offen {SC}
    s_add_u32 s30, s30, 1
    s_waitcnt vmcnt(0)
    v_cmp_ne_u32 vcc, s76, v{SG+1}
    s_cmp_gt_u32 s30, {SPIN}
    s_cbranch_scc1 L_g1_sok
    s_cbranch_vccnz L_g1_spoll
    L_g1_sok:
    v_mov_b32 v{SG+1}, v{SG}
    s_mov_b32 s28, -1
    s_mov_b32 s29, 0
    v_permlane32_swap_b32 v{SG}, v{SG+1}
    s_waitcnt lgkmcnt(0)
    v_add_f32 v{T+2}, v{T+2}, v{CS}
    """)
    l1 = []
    for tt in range(2):
        l1 += [f"v_and_b32 v{VS+tt}, 0xffff0000, v{SG+tt}", f"v_and_b32 v{T+8+tt}, 0xffff, v{SG+tt}", f"v_rcp_f32 v{T+6+tt}, v{VS+tt}",
               f"v_lshl_or_b32 v{T+8+tt}, v{T+8+tt}, 16, v{T+8+tt}",
               f"v_cndmask_b32 v{EB+8*tt}, 0, v{T+8+tt}, s[28:29]", f"v_cndmask_b32 v{EB+8*tt+1}, 0, v{SG+tt}, s[28:29]",
               f"v_cndmask_b32 v{EB+8*tt+4}, v{T+8+tt}, 0, s[28:29]", f"v_cndmask_b32 v{EB+8*tt+5}, v{SG+tt}, 0, s[28:29]"]
    l2 = [f"v_and_b32 v{T+3}, 0xffff0000, v{T+2}", f"v_sub_f32 v{T+3}, v{T+2}, v{T+3}", f"v_lshrrev_b32 v{T+2}, 16, v{T+2}",
          f"v_and_b32 v{T+4}, 0xffff0000, v{T+3}", f"v_sub_f32 v{T+5}, v{T+3}, v{T+4}", f"v_or_b32 v{EA}, v{T+2}, v{T+4}",
          f"v_lshrrev_b32 v{T+5}, 16, v{T+5}", f"v_or_b32 v{EA+1}, v{T+5}, v{VB1}"]
    A.extend(zipm(l1, l2))
    l3 = []
    for tt in range(2):
        l3.append([f"v_fma_f32 v{T+10+tt}, -v{VS+tt}, v{T+6+tt}, 1.0", f"v_fma_f32 v{T+6+tt}, v{T+10+tt}, v{T+6+tt}, v{T+6+tt}",
                   f"v_mul_f32 v{K1r+tt}, {hex(f2u(GC1))}, v{T+6+tt}", f"v_mul_f32 v{T+10+tt}, v{T+6+tt}, v{T+6+tt}",
                   f"v_mul_f32 v{K3r+tt}, {hex(f2u(GC2))}, v{T+6+tt}", f"v_mul_f32 v{K3r+tt}, v{K3r+tt}, v{T+10+tt}"])
    l3 = zipm(*l3)
    for tt in range(2):
        for ft in range(2):
            c = ACC1 + 32 * tt + 16 * ft
            A(f"v_mfma_f32_32x32x16_bf16 v[{c}:{c+15}], v[{EA}:{EA+3}], v[{EB+8*tt+4*ft}:{EB+8*tt+4*ft+3}], v[{c}:{c+15}]")
            A.extend(l3[3 * (2 * tt + ft):3 * (2 * tt + ft) + 3])
    A.st("gstart")
    for n in range(8):
        tt = n // 4
        c0 = ACC1 + 8 * n
        t0 = GT + 8 * (n % 2)
        if GPK:
            P = lambda x: f"v[{x}:{x+1}]"
            sel = f"op_sel:[0,{tt},{tt}] op_sel_hi:[1,{tt},{tt}]"
            for k in range(0, 8, 2): A(f"v_pk_mul_f32 {P(t0+k)}, {P(c0+k)}, {P(c0+k)}")
            for k in range(0, 8, 2): A(f"v_pk_fma_f32 {P(t0+k)}, {P(t0+k)}, {P(K3r)}, {P(K1r)} {sel}")
            for k in range(0, 8, 2): A(f"v_pk_mul_f32 {P(t0+k)}, {P(t0+k)}, {P(c0+k)}")
            for k in range(8): A(f"v_exp_f32 v{t0+k}, v{t0+k}")
            for k in range(0, 8, 2): A(f"v_pk_fma_f32 {P(t0+k)}, {P(t0+k)}, {P(VS)}, {P(VS)} {sel}")
            for k in range(8): A(f"v_rcp_f32 v{t0+k}, v{t0+k}")
            for k in range(0, 8, 2): A(f"v_pk_mul_f32 {P(c0+k)}, {P(c0+k)}, {P(t0+k)}")
        else:
            for k in range(8): A(f"v_mul_f32 v{t0+k}, v{c0+k}, v{c0+k}")
            for k in range(8): A(f"v_fma_f32 v{t0+k}, v{t0+k}, v{K3r+tt}, v{K1r+tt}")
            for k in range(8): A(f"v_mul_f32 v{t0+k}, v{t0+k}, v{c0+k}")
            for k in range(8): A(f"v_exp_f32 v{t0+k}, v{t0+k}")
            for k in range(8): A(f"v_fma_f32 v{t0+k}, v{t0+k}, v{VS+tt}, v{VS+tt}")
            for k in range(8): A(f"v_rcp_f32 v{t0+k}, v{t0+k}")
            for k in range(8): A(f"v_mul_f32 v{c0+k}, v{c0+k}, v{t0+k}")
        pk = PK + 4 * (n % 2)
        for k in range(4): A(f"v_cvt_pk_bf16_f32 v{pk+k}, v{c0+2*k}, v{c0+2*k+1}")
        A(f"buffer_store_dwordx4 v[{pk}:{pk+3}], v{VHO1}, s[12:15], s{32 if tt == 0 else 38} offen offset:{(n%4)*1024} {SCH}")
        if env("DBL", 0): A(f"buffer_store_dwordx4 v[{pk}:{pk+3}], v{VHO1}, s[12:15], s{32 if tt == 0 else 38} offen offset:{(n%4)*1024}")
    A.st("gend")
    A("s_mov_b32 s37, 0")
    A("s_branch L_gemm2")

def PERM(g): return g
def c_reads_slot(g):
    if g < 28: return c_reads(g)
    i = [0, 2, 1, 3][g - 28]
    r = c_reads(28 + i)
    kc = 7; st = kc % NS; b = HI; off = (st % 2) * STAGE; sl = g % NR
    tr = lambda ft, sec: f"ds_read_b64_tr_b16 v[{W1+8*sl+4*ft+2*sec}:{W1+8*sl+4*ft+2*sec+1}], v{b+4+2*i+ft} offset:{off + sec*1024}"
    xr = lambda tt: f"ds_read_b128 v[{X1+8*sl+4*tt}:{X1+8*sl+4*tt+3}], v{b+i} offset:{off + tt*4096}"
    return [xr(0), tr(0, 0), tr(0, 1), tr(1, 0), tr(1, 1), xr(1)]

def yflag_off():
    return ["s_lshr_b32 s28, s39, 1", "s_lshl_b32 s29, s2, 1", "s_add_u32 s28, s28, s29", "s_and_b32 s29, s39, 1", "s_lshl_b32 s29, s29, 9",
            "s_add_u32 s28, s28, s29", "s_lshl_b32 s28, s28, 7", f"s_add_u32 s28, s28, {WS_FLY}"]
def ring_ready(vt):
    return ["s_lshl_b32 s28, s39, 2", f"s_add_u32 s28, s28, {L_FLAG+16}", f"v_mov_b32 v{vt}, s28", f"v_mov_b32 v{vt+1}, 1", f"ds_write_b32 v{vt}, v{vt+1}"]

def lds_wait(A, name, vaddr, off, vt):
    A(f"""
    {name}:
    ds_read_b32 v{vt}, v{vaddr} offset:{off}
    s_waitcnt lgkmcnt(0)
    v_readfirstlane_b32 s28, v{vt}
    s_cmp_eq_u32 s28, 1
    s_cbranch_scc0 {name}
    """)

def gen_h1(A):
    VT = VT1
    vm = VMQ()
    param_loads(A, VT); vm.note("prm", 8)
    A(f"s_add_u32 s42, s42, {WSOFF}\ns_addc_u32 s43, s43, 0\ns_load_dword s76, s[42:43], {WS_EPOCH}")
    srd(A, 4, "s40", "s41", 2 << 20)
    srd(A, 8, "s44", "s45", 512 * 3584)
    srd(A, 12, "s42", "s43", WS_USED)
    if env("CPF", 1):
        A(f"""
        s_getpc_b64 s[28:29]
        L_pc0:
        s_sub_u32 s28, s28, L_pc0-{KNAME}
        s_subb_u32 s29, s29, 0
        s_lshl_b32 s30, s39, 13
        v_lshl_add_u32 v{VT+2}, v0, 7, s30
        v_min_u32 v{VT+2}, L_exit-{KNAME}, v{VT+2}
        s_cmp_lt_u32 s24, {env("CPFN", 4)}
        s_cselect_b64 exec, -1, 1
        global_load_dword v{VDUM}, v{VT+2}, s[28:29]
        s_mov_b64 exec, -1
        """)
    dma_setup(A)
    w2_setup(A, VT)
    if env("MPF", 0):
        A(f"""
        s_lshl_b32 s28, s2, 2
        s_add_u32 s28, s28, s39
        s_lshl_b32 s28, s28, 11
        v_lshlrev_b32 v{VT+2}, 7, v0
        s_mov_b64 exec, 0xffff
        buffer_load_dword v{VDUM}, v{VT+2}, s[16:19], s28 offen
        s_mov_b64 exec, -1
        """)
    if env("TLBW", 0):
        A(f"""
        v_lshlrev_b32 v{VT+2}, {env("TLBS", 20)}, v0
        s_mov_b64 exec, {hex((1 << (WS_USED >> env("TLBS", 20))) - 1)}
        buffer_load_dword v{VDUM}, v{VT+2}, s[12:15], 0 offen
        s_mov_b64 exec, 3
        buffer_load_dword v{VDUM}, v{VT+2}, s[16:19], 0 offen
        global_load_dword v{VDUM}, v{VT+2}, s[52:53]
        s_mov_b64 exec, 1
        global_load_dword v{VDUM}, v{VT+2}, s[50:51]
        s_mov_b64 exec, -1
        """)
        vm.note("tlb", 4)
    kg_waddr(A, L_VS, KWA); A.extend(kg_raddr(L_VS, KRA, VT))
    for a_ in flag_zero(): A.extend(a_)
    A.st("pre")
    A.extend(vm.wait("prm"))
    A.st("prm")
    A.label("L_kgen_v")
    gen_kgen_v(A)
    A("s_cmp_eq_u32 s79, 7")
    A("s_cbranch_scc1 L_ln_H2")
    A.st("kg")
    A("s_waitcnt lgkmcnt(0)"); A("s_barrier")
    A.st("b0")
    mktag(A)
    UV, UW = kgen_u_lists(0)
    wts = [2, 3, 3, 3, 3, 3]; cum = 0
    for k in range(8):
        if k <= 5:
            sl_ = UV[len(UV) * cum // sum(wts):len(UV) * (cum + wts[k]) // sum(wts)]; cum += wts[k]
            if k >= 1:
                pcs = []
                for part in range(4):
                    dd = g1_dma(k + 2, part); pcs += [dd[:3], dd[3:]]
                vm.note(k + 2, 8)
                for q, dd in enumerate(pcs):
                    A.extend(dd); A.extend(sl_[len(sl_) * q // 8:len(sl_) * (q + 1) // 8])
            else: A.extend(sl_)
        else:
            for sl in range(4 * (k - 6), 4 * (k - 6) + 4): A.extend(wdma(sl, sl))
            vm.note("f", 8)
        A.st(f"pi{k+1}")
        A.extend(vm.wait(k + 1))
        A("s_barrier")
        A.st(f"ab{k+1}")
    A.st("loop")
    FE = env("FE", 1)
    if FE:
        for sl in range(8, 12): A.extend(wdma(sl, sl))
    A.label("L_h_tail")
    A(f"s_setprio {env('PRIOX', 1)}")
    lq = LQ(A)
    ar_, mm_ = kg_atoms_m()
    lq.emit(UW)
    for a_ in ar_ + mm_ + kg_atoms_x1(): lq.emit(a_)
    A(f"""
    s_lshl_b32 s28, s39, 2
    s_add_u32 s28, s28, {L_FLAG}
    v_mov_b32 v{VT}, s28
    v_mov_b32 v{VT+1}, 1
    ds_write_b32 v{VT}, v{VT+1} offset:80
    v_xor_b32 v{VT+2}, 4, v{VT}
    """)
    lds_wait(A, "L_h_x1", VT + 2, 80, 32)
    lq.q = []
    for a_ in kg_atoms_x2("g"): lq.emit(a_)
    A("s_setprio 0")
    A.extend(lnflag_load(VT))
    A("s_waitcnt lgkmcnt(0)")
    A.st("ku")
    A(f"v_lshlrev_b32 v18, 4, v0")
    A("s_waitcnt vmcnt(0)")
    u_try(A, 18)
    if not FE:
        A("s_cmp_eq_u32 s79, 7")
        A("s_cbranch_scc1 L_h_nof")
        for sl in range(8, 12): A.extend(wdma(sl, sl))
        A("s_waitcnt vmcnt(0)")
        A.label("L_h_nof")
    A.extend(ring_ready(VT))
    A.st("gend")
    A("s_branch L_conv")
    A.label("L_ln_H2")
    A("s_nop 0 ; RESETSB")
    A.extend(UV)
    A("s_branch L_h_tail")

def gen_gemm1(A):
    A(f"""
    s_load_dwordx8 s[56:63], s[0:1], {KA['A_re']}
    s_load_dwordx8 s[64:71], s[0:1], {KA['C_re']}
    """)
    A("s_cmp_ge_u32 s20, 4")
    A("s_cbranch_scc1 L_g1_H")
    gen_c1(A)
    A.label("L_g1_H")
    A("s_nop 0 ; RESETSB")
    gen_h1(A)


def gen_ln(A):
    Q, R, O, T = 16, 48, 80, 112
    A(f"""
    v_lshrrev_b32 v1, 3, v0
    v_and_b32 v2, 7, v0
    v_lshlrev_b32 v3, 10, v1
    v_lshl_add_u32 v3, v2, 4, v3
    v_lshlrev_b32 v4, 4, v0
    s_lshl_b32 s25, s21, 6
    s_lshl_b32 s28, s20, 3
    s_add_u32 s25, s25, s28
    s_lshl_b32 s36, s25, 3
    s_add_u32 s36, s36, {WS_STAT}
    s_lshl_b32 s25, s25, 10
    s_add_u32 s26, s25, 4096
    s_waitcnt lgkmcnt(0)
    s_add_u32 s42, s42, {WSOFF}
    s_addc_u32 s43, s43, 0
    s_load_dword s76, s[42:43], {WS_EPOCH}
    """)
    srd(A, 4, "s40", "s41", 2 << 20)
    for i in range(8): A(f"buffer_load_dwordx4 v[{Q+4*i}:{Q+4*i+3}], v3, s[4:7], s25 offen offset:{128*i}")
    srd(A, 12, "s42", "s43", WS_USED)
    A("s_waitcnt lgkmcnt(0)")
    mktag(A)
    for t in range(8): A(f"buffer_load_dwordx4 v[{R+4*t}:{R+4*t+3}], v4, s[4:7], s{25 + t//4} offen offset:{(t%4)*1024}")
    A(f"""
    v_mov_b32 v5, 0x3f803f80
    v_mov_b32 v6, 0
    v_mov_b32 v7, 0
    v_mov_b32 v12, 0
    v_mov_b32 v13, 0
    v_mov_b32 v14, 0x00003f80
    v_mov_b32 v15, 0x3f800000
    v_lshlrev_b32 v8, 3, v1
    v_mov_b32 v11, s76
    """)
    for i in range(8):
        A(f"s_waitcnt vmcnt({8 + 7 - i})")
        for k in range(4):
            r = Q + 4 * i + k
            A(f"v_dot2_f32_bf16 v{6 if k%2==0 else 12}, v{r}, v5, v{6 if k%2==0 else 12}")
            A(f"v_dot2_f32_bf16 v{7 if k%2==0 else 13}, v{r}, v{r}, v{7 if k%2==0 else 13}")
    A(f"""
    v_add_f32 v6, v6, v12
    v_add_f32 v7, v7, v13
    v_add_f32_dpp v6, v6, v6 quad_perm:[1,0,3,2] row_mask:0xf bank_mask:0xf
    v_add_f32_dpp v7, v7, v7 quad_perm:[1,0,3,2] row_mask:0xf bank_mask:0xf
    v_add_f32_dpp v6, v6, v6 quad_perm:[2,3,0,1] row_mask:0xf bank_mask:0xf
    v_add_f32_dpp v7, v7, v7 quad_perm:[2,3,0,1] row_mask:0xf bank_mask:0xf
    v_add_f32_dpp v6, v6, v6 row_half_mirror row_mask:0xf bank_mask:0xf
    v_add_f32_dpp v7, v7, v7 row_half_mirror row_mask:0xf bank_mask:0xf
    v_mul_f32 v12, {hex(f2u(1/512))}, v6
    v_mul_f32 v13, {hex(f2u(1/512))}, v7
    v_fma_f32 v13, -v12, v12, v13
    v_max_f32 v13, 0, v13
    """)
    round_bf16(A, 13)
    A(f"v_add_f32 v13, {hex(f2u(1e-5))}, v13")
    round_bf16(A, 13)
    A(f"""
    v_sqrt_f32 v13, v13
    v_cvt_pk_bf16_f32 v10, -v12, v13
    s_mov_b32 exec_lo, 0x01010101
    s_mov_b32 exec_hi, 0x01010101
    buffer_store_dwordx2 v[10:11], v8, s[12:15], s36 offen {SC}
    s_mov_b64 exec, -1
    """)
    A.st("b0")
    LPF = env("LPF", 0)
    if LPF:
        srd(A, 16, "s48", "s49", 1792 * 1024)
        A(f"""
        s_lshl_b32 s28, s21, 3
        s_add_u32 s28, s28, s20
        s_mul_i32 s28, s28, {56*128}
        v_min_u32 v{T+2}, 55, v0
        v_lshlrev_b32 v{T+2}, 7, v{T+2}
        buffer_load_dword v{VDUM}, v{T+2}, s[16:19], s28 offen
        """)
    A(f"""
    v_and_b32 v13, 0xffff0000, v10
    v_lshlrev_b32 v12, 16, v10
    v_rcp_f32 v5, v13
    s_nop 0
    v_fma_f32 v13, -v13, v5, 1.0
    v_fma_f32 v13, v13, v5, v5
    """)
    for t in range(8):
        A(f"v_readlane_b32 s{56+t}, v12, {8*t}")
        A(f"v_readlane_b32 s{64+t}, v13, {8*t}")
    A(f"""
    v_xor_b32 v5, s20, v2
    v_lshlrev_b32 v6, 10, v0
    v_lshl_add_u32 v6, v5, 4, v6
    v_add_u32 v6, 98304, v6
    s_waitcnt vmcnt({1 + LPF})
    """)

    for tp in range(4):
        t0, t1 = 2 * tp, 2 * tp + 1
        for k in range(4):
            for h in range(2):
                e = 2 * k + h
                A(f"v_dot2_f32_bf16 v{T+2*e}, v{R+4*t0+k}, v{14+h}, s{56+t0}")
                A(f"v_dot2_f32_bf16 v{T+2*e+1}, v{R+4*t1+k}, v{14+h}, s{56+t1}")
        for e in range(8): A(f"v_cvt_pk_bf16_f32 v{T+2*e+1}, v{T+2*e}, v{T+2*e+1}")
        for e in range(8):
            A(f"v_lshlrev_b32 v{T+2*e}, 16, v{T+2*e+1}")
            A(f"v_and_b32 v{T+2*e+1}, 0xffff0000, v{T+2*e+1}")
        for e in range(8): A(f"v_pk_mul_f32 v[{T+2*e}:{T+2*e+1}], v[{T+2*e}:{T+2*e+1}], s[{64+t0}:{64+t1}]")
        for e in range(8): A(f"v_cvt_pk_bf16_f32 v{O+4*e+tp}, v{T+2*e}, v{T+2*e+1}")
        if tp == env("LFP", 3):
            w2_setup(A, 28)
            LF = env("LF", 0)
            A("s_cmp_ge_u32 s20, 4")
            A("s_cbranch_scc1 L_ln_nofill")
            for sl in range(LF): A.extend(wdma(sl, sl))
            A.label("L_ln_nofill")
    for e in range(8): A(f"ds_write_b128 v6, v[{O+4*e}:{O+4*e+3}] offset:{e*128}")
    A(f"""
    s_lshl_b32 s28, s20, 13
    v_lshlrev_b32 v6, 7, v1
    v_lshl_add_u32 v6, v2, 4, v6
    v_add_u32 v6, s28, v6
    v_add_u32 v6, 98304, v6
    v_lshlrev_b32 v7, 12, v1
    v_lshl_add_u32 v7, v2, 4, v7
    s_load_dwordx8 s[56:63], s[0:1], {KA['A_re']}
    s_load_dwordx8 s[64:71], s[0:1], {KA['C_re']}
    s_lshl_b32 s26, s20, 18
    s_lshl_b32 s28, s21, 7
    s_add_u32 s26, s26, s28
    s_add_u32 s26, s26, {WS_XNT}
    s_lshl_b32 s33, s21, 7
    s_add_u32 s33, s33, {WS_FLL}
    """)
    for i in range(8): A(f"v_xor_b32 v{8+i}, {16*i}, v6")
    A.st("g8")
    param_loads(A, T)
    A.extend(ya_prefill(T + 2, T + 3, T + 4))
    A("s_barrier")
    for i in range(8): A(f"ds_read_b128 v[{R+4*i}:{R+4*i+3}], v{8+i} offset:{i*1024}")
    for i in range(8):
        A(f"s_waitcnt lgkmcnt({7-i})")
        A(f"s_add_u32 s25, s26, {i*32768}")
        A(f"buffer_store_dwordx4 v[{R+4*i}:{R+4*i+3}], v7, s[12:15], s25 offen {SC}")
    A.st("loop")
    A("s_waitcnt vmcnt(0)")
    A("s_barrier")
    publish_flag(A, "s33", 28, "l", 7)
    A.st("gstart")
    A(f"s_mov_b32 s33, {WS_DUMMY}")
    srd(A, 16, "s48", "s49", 1792 * 1024)
    for a_ in flag_zero(): A.extend(a_)
    A("s_waitcnt lgkmcnt(0)")
    A("s_barrier")
    A("s_cmp_lt_u32 s20, 4")
    A("s_cbranch_scc1 L_ln_C")
    A.extend(yflag_off()); A.extend(wave_flag("s28", 28))
    kg_waddr(A, L_VS, KWA); A.extend(kg_raddr(L_VS, KRA, 28))
    A("s_branch L_kgen_v")
    A.label("L_ln_C")
    for sl in range(LF, 12): A.extend(wdma(sl, sl))
    A("s_waitcnt vmcnt(0)")
    for sl in range(12): A.extend(w2tr(sl, sl))
    A("s_waitcnt lgkmcnt(0)")
    for sl in range(12): A.extend(wdma(sl, 12 + sl))
    A(f"""
    v_mov_b32 v28, {L_FLAG+16}
    L_ln_cw:
    ds_read_b128 v[32:35], v28
    s_waitcnt lgkmcnt(0)
    v_and_b32 v32, v32, v33
    v_and_b32 v34, v34, v35
    v_and_b32 v32, v32, v34
    s_nop 0
    v_readfirstlane_b32 s28, v32
    s_cmp_eq_u32 s28, 1
    s_cbranch_scc0 L_ln_cw
    """)
    A(f"""
    s_lshl_b32 s28, s20, 8
    s_add_u32 s28, s28, s2
    s_cmp_lg_u32 s28, 255
    s_cbranch_scc1 L_nobump
    v_lshlrev_b32 v28, 8, v0
    s_mov_b32 s30, 0
    L_bump_poll:
    """)
    for k in range(4):
        A(f"s_mov_b32 s28, {WS_FLY + k*16384}")
        A(f"buffer_load_dword v{32+k}, v28, s[12:15], s28 offen {SC}")
    A(f"""
    s_add_u32 s30, s30, 1
    s_waitcnt vmcnt(0)
    v_xor_b32 v32, s76, v32
    v_xor_b32 v33, s76, v33
    v_xor_b32 v34, s76, v34
    v_xor_b32 v35, s76, v35
    v_or3_b32 v32, v32, v33, v34
    v_or_b32 v32, v32, v35
    v_cmp_ne_u32 vcc, 0, v32
    s_cmp_gt_u32 s30, {SPIN}
    s_cbranch_scc1 L_bump_go
    s_cbranch_vccnz L_bump_poll
    L_bump_go:
    s_mov_b32 s28, {WS_EPOCH}
    """)
    A.extend(wave_flag("s28", 28))
    A.label("L_nobump")
    A("s_mov_b32 s37, 1")
    A("s_branch L_gemm2")


def final_addr(A):
    A(f"""
    v_lshrrev_b32 v1, 3, v0
    v_and_b32 v2, 7, v0
    v_lshlrev_b32 v{VOO}, 10, v1
    v_lshl_add_u32 v{VOO}, v2, 4, v{VOO}
    v_lshlrev_b32 v3, 4, v2
    s_lshl_b32 s33, s78, 6
    s_lshl_b32 s28, s20, 3
    s_add_u32 s33, s33, s28
    s_lshl_b32 s33, s33, 10
    s_lshl_b32 s34, s79, 7
    s_add_u32 s33, s33, s34
    """)
def ep_loads():
    o = Asm()
    srd(o, 8, "s50", "s51", 1024)
    o(f"buffer_load_dwordx4 v[{VX}:{VX+3}], v{VOO}, s[4:7], s33 offen")
    o(f"buffer_load_dwordx4 v[{VB2}:{VB2+3}], v3, s[8:11], s34 offen")
    return o.lines


def gen_gemm2(A):
    VHO, VTR2, VP, VT = 13, 14, 18, 22
    ACC, W, H = ACC2, W2R, HR
    if PRIO_G: A(f"s_setprio {PRIO_G}")
    A("s_mov_b32 s22, s33")
    final_addr(A)
    for k in range(4): A(f"v_mov_b32 v{VTR2+k}, v{VTL+k}")
    A(f"""
    v_lshlrev_b32 v{VHO}, 4, v0
    v_lshrrev_b32 v{VT}, 5, v0
    v_xor_b32 v{VT}, v{VT}, v2
    v_and_b32 v{VP}, 31, v0
    v_lshlrev_b32 v{VP}, 8, v{VP}
    v_lshl_add_u32 v{VP}, v{VT}, 4, v{VP}
    v_add_u32 v{VP}, s73, v{VP}
    v_xor_b32 v{VP+1}, 32, v{VP}
    v_xor_b32 v{VP+2}, 64, v{VP}
    v_xor_b32 v{VP+3}, 96, v{VP}
    s_mul_i32 s24, s78, {2*112*1024}
    s_mul_i32 s28, s20, {28*1024}
    s_add_u32 s24, s24, s28
    s_add_u32 s24, s24, {WS_HF}
    s_add_u32 s25, s24, {112*1024}
    s_mul_i32 s26, s20, 7
    s_lshl_b32 s28, s78, 5
    s_add_u32 s26, s26, s28
    s_lshl_b32 s26, s26, 7
    s_add_u32 s26, s26, {WS_FLH}
    v_min_u32 v{VT}, 6, v2
    v_lshlrev_b32 v{VT}, 7, v{VT}
    s_lshl_b32 s28, s20, 2
    s_add_u32 s28, s28, {L_FLAG+16}
    v_mov_b32 v{ACC+4}, s28
    v_mov_b32 v{ACC+5}, 1
    ds_write_b32 v{ACC+4}, v{ACC+5} offset:16
    s_mov_b32 s30, 0
    s_cmp_eq_u32 s37, 1
    s_cbranch_scc1 L_g2_poll
    """)
    A.st("prew")
    A("s_waitcnt vmcnt(0)")
    A.extend(wave_flag("s22", ACC))
    A.st("p2bar")
    A(f"""
    L_g2_rr:
    ds_read_b32 v{ACC+5}, v{ACC+4}
    s_waitcnt lgkmcnt(0)
    v_readfirstlane_b32 s28, v{ACC+5}
    s_cmp_eq_u32 s28, 1
    s_cbranch_scc0 L_g2_rr
    """)
    for sl in range(3): A.extend(w2tr(sl, sl, VTR2))
    for sl in range(12):
        left = min(12, sl + 3) - sl - 1
        A(f"s_waitcnt lgkmcnt({4*left})")
        if sl + 3 < 12: A.extend(w2tr(sl + 3, sl + 3, VTR2))
        A.extend(wdma(sl, 12 + sl))
    A.st("s5")
    A.label("L_g2_poll")
    A(f"""
    buffer_load_dword v{ACC+2}, v{VT}, s[12:15], s26 offen {SC}
    s_add_u32 s30, s30, 1
    s_waitcnt vmcnt(0)
    v_cmp_ne_u32 vcc, s76, v{ACC+2}
    s_cmp_gt_u32 s30, {SPIN}
    s_cbranch_scc1 L_g2_go
    s_cbranch_vccnz L_g2_poll
    """)
    A.label("L_g2_go")
    vm = VMQ()
    A.st("s6")
    def hload(kp):
        sl = kp % HD
        vm.note(("h", kp), 2)
        return koff("s31", ORDER[kp]) + ["s_add_u32 s27, s31, s24", "s_add_u32 s31, s31, s25",
                                  f"buffer_load_dwordx4 v[{H+8*sl}:{H+8*sl+3}], v{VHO}, s[12:15], s27 offen {SCL}",
                                  f"buffer_load_dwordx4 v[{H+8*sl+4}:{H+8*sl+7}], v{VHO}, s[12:15], s31 offen {SCL}"]
    for kp in range(HD): A.extend(hload(kp))
    if PRIO_G: A(f"s_setprio {env('PRIOG2', 0)}")
    inring = lambda k: ORDER[k] >= 12
    wset = lambda k: (k % 2) if inring(k) else ORDER[k]
    slot_of = lambda k: (ORDER[k] - 12) % 12
    for kp in range(28):
        nx = kp + 1
        if inring(kp): A("s_waitcnt lgkmcnt(0)")
        A.extend(vm.wait(("h", kp)))
        if kp in (4, 9, 14, 19): A.st(f"k{kp}")
        b = W + 8 * wset(kp); sl = kp % HD
        mf = []
        for tb in range(2):
            for db in range(2):
                c = ACC + 32 * tb + 16 * db
                cin = "0" if kp == 0 else f"v[{c}:{c+15}]"
                mf.append(f"v_mfma_f32_32x32x16_bf16 v[{c}:{c+15}], v[{b+4*db}:{b+4*db+3}], v[{H+8*sl+4*tb}:{H+8*sl+4*tb+3}], {cin}")
        A(mf[0])
        if nx < 28 and inring(nx):
            A.extend(vm.wait(("w", ORDER[nx])))
            A.extend(w2tr(slot_of(nx), wset(nx), VTR2))
        A(mf[1])
        if kp >= 1 and kp - 1 + HD < 28: A.extend(hload(kp - 1 + HD))
        A(mf[2])
        if 12 <= ORDER[kp] < 16:
            A.extend(wdma(ORDER[kp] - 12, ORDER[kp] + 12)); vm.note(("w", ORDER[kp] + 12), 2)
        if kp == 20:
            A.extend(ep_loads()); vm.note("ep", 2)
        if kp == env("SIGK", 19):
            A(f"""
            s_lshl_b32 s28, s20, 2
            s_add_u32 s28, s28, {L_FLAG+48}
            v_mov_b32 v{VT}, s28
            v_mov_b32 v{W}, 1
            ds_write_b32 v{VT}, v{W}
            """)
        A(mf[3])
        if kp == 0: A.st("k0")
    A.st("s7")
    for tb in range(2):
        for db in range(2):
            for q in range(4):
                c = ACC + 32 * tb + 16 * db + 4 * q
                A(f"ds_write_b128 v{VP+q}, v[{c}:{c+3}] offset:{tb*32768+db*128}")
    A("s_waitcnt vmcnt(0) lgkmcnt(0)")
    A("s_branch L_final")


def gen_conv(A):
    if PRIO_C: A(f"s_setprio {PRIO_C}")
    VTA, VF = 32, 36
    VXN, VBW, VOWN, VPAR = 37, 38, 39, 40
    T0 = 42
    dsk = P0 + 7
    ACC = 48; FB = [80, 112]; TB = [144, 208]
    XN = 196
    final_addr(A)
    A(f"""
    s_mov_b32 s21, s39
    s_lshr_b32 s35, s21, 1
    s_and_b32 s36, s21, 1
    s_mul_i32 s38, s35, {CH_SIZE}
    s_add_u32 s38, s38, {L_CH}
    s_lshl_b32 s27, s21, 13
    s_add_u32 s27, s27, {L_ST2}
    s_xor_b32 s32, s27, {ST2}
    v_and_b32 v{T0}, 15, v0
    v_lshrrev_b32 v{T0+1}, 4, v0
    v_and_b32 v{T0+2}, 1, v0
    v_mul_u32_u24 v{T0+2}, {OFF_O + 2 - OFF_E}, v{T0+2}
    s_lshl_b32 s31, s36, 8
    s_sub_u32 s31, s38, s31
    s_add_u32 s29, s31, {OFF_O + 2*2032 - 512 - 192}
    v_lshlrev_b32 v{T0+3}, 1, v{T0}
    v_sub_u32 v{VTA}, s29, v{T0+3}
    v_lshl_add_u32 v{VTA}, v{T0+1}, 4, v{VTA}
    v_sub_u32 v{VTA}, v{VTA}, v{T0+2}
    v_subrev_u32 v{VTA+1}, 1024, v{VTA}
    v_subrev_u32 v{VTA+2}, 2048, v{VTA}
    v_subrev_u32 v{VTA+3}, 3072, v{VTA}
    """)
    def freads(rr, fb): return [f"ds_read_b128 v[{fb+4*m}:{fb+4*m+3}], v{VF} offset:{512*m + 64*(3-rr)}" for m in range(8)]
    def treads(rr, tb):
        o = []
        for i in range(8):
            off = 128 * (1 - (i & 1)) + 16 * (3 - rr)
            o.append(f"ds_read2_b32 v[{tb+4*i}:{tb+4*i+1}], v{VTA+i//2} offset0:{off} offset1:{off+1}")
            o.append(f"ds_read2_b32 v[{tb+4*i+2}:{tb+4*i+3}], v{VTA+i//2} offset0:{off+2} offset1:{off+3}")
        return o
    A(f"""
    v_lshl_add_u32 v19, v0, 4, s38
    s_add_u32 s29, s31, {480 - 192}
    v_lshlrev_b32 v{VF}, 5, v{T0}
    v_lshl_add_u32 v{VF}, v{T0+1}, 4, v{VF}
    v_add_u32 v{VF}, s29, v{VF}
    v_lshlrev_b32 v{VXN}, 5, v{T0}
    v_lshl_add_u32 v{VXN}, v{T0+1}, 3, v{VXN}
    v_add_u32 v{VBW}, s27, v{VXN}
    s_lshl_b32 s28, s36, 11
    s_add_u32 s28, s28, s38
    v_add_u32 v{VXN}, s28, v{VXN}
    v_lshl_add_u32 v{VOWN}, v0, 4, s27
    v_lshl_add_u32 v{VPAR}, v0, 4, s32
    v_mov_b32 v13, 1
    s_lshl_b32 s29, s21, 2
    s_add_u32 s29, s29, {L_FLAG}
    v_mov_b32 v14, s29
    s_xor_b32 s29, s29, 4
    v_mov_b32 v15, s29
    v_lshlrev_b32 v18, 4, v0
    """)
    A(f"""
    L_cv_ex:
    ds_read_b32 v16, v15 offset:64
    s_waitcnt lgkmcnt(0)
    v_readfirstlane_b32 s28, v16
    s_cmp_eq_u32 s28, 1
    s_cbranch_scc0 L_cv_ex
    """)
    A.extend(treads(0, TB[0]))
    A("s_cmp_eq_u32 s37, 1")
    A("s_cbranch_scc1 L_cv_uok")
    u_spin(A, 20, 18)
    A.label("L_cv_uok")
    A("s_waitcnt vmcnt(0)")
    for k in range(4): A(f"ds_write_b128 v19, v[{XL+4*k}:{XL+4*k+3}] offset:{512 + k*1024}")
    A.extend(freads(0, FB[0]))
    A.st("s4")
    if GPK:
        A(f"""
        v_mov_b32 v17, {L_FLAG+32}
        L_cv_gd:
        ds_read_b128 v[20:23], v17
        s_waitcnt lgkmcnt(0)
        v_and_b32 v20, v20, v21
        v_and_b32 v22, v22, v23
        v_and_b32 v20, v20, v22
        s_nop 0
        v_readfirstlane_b32 s28, v20
        s_cmp_eq_u32 s28, 1
        s_cbranch_scc0 L_cv_gd
        """)
    A.st("s5")
    for rp in range(4):
        fb, tb = FB[rp % 2], TB[rp % 2]
        mm = []
        for i in range(8):
            for j in range(i, 8):
                cin = "0" if (rp == 0 and i == 0) else f"v[{ACC+4*j}:{ACC+4*j+3}]"
                mm.append(f"v_mfma_f32_16x16x32_bf16 v[{ACC+4*j}:{ACC+4*j+3}], v[{tb+4*i}:{tb+4*i+3}], v[{fb+4*(j-i)}:{fb+4*(j-i)+3}], {cin}")
        if rp == 1: A.extend(ep_loads())
        if HT and rp == env("HTP", 3):
            A(f"""
            s_lshl_b32 s28, s24, 2
            s_add_u32 s28, s28, s21
            s_mul_i32 s28, s28, {56*128}
            s_mul_i32 s29, s23, {8*112*1024}
            s_add_u32 s28, s28, s29
            s_add_u32 s28, s28, {WS_HF}
            v_min_u32 v{T0}, 55, v0
            v_lshlrev_b32 v{T0}, 7, v{T0}
            buffer_load_dword v20, v{T0}, s[12:15], s28 offen {SC}
            """)
        if rp == 0:
            o = []
            for j in range(8): o += [f"s_waitcnt lgkmcnt({7-j})", mm[j]]
            mm = o + interleave(mm[8:], freads(1, FB[1]) + treads(1, TB[1]), 0, 22)
        else:
            A("s_waitcnt lgkmcnt(0)")
            if rp < 3: mm = interleave(mm, freads(rp + 1, FB[(rp + 1) % 2]) + treads(rp + 1, TB[(rp + 1) % 2]), 0, 26)
            else: mm = interleave(mm, [f"ds_read_b64 v[{XN+2*a_}:{XN+2*a_+1}], v{VXN} offset:{512 + a_*512}" for a_ in range(4)], 0, 8)
        A.extend(mm)
    A.st("s6")
    A("s_cmp_eq_u32 s36, 1")
    A("s_cbranch_scc1 L_cv_x1")
    for a_ in range(4): A(f"ds_write_b128 v{VOWN}, v[{ACC+16+4*a_}:{ACC+16+4*a_+3}] offset:{4096 + a_*1024}")
    A("ds_write_b32 v14, v13")
    A("s_branch L_cv_out")
    A.label("L_cv_x1")
    A("s_nop 7")
    for a_ in range(4): A(f"ds_write_b128 v{VOWN}, v[{ACC+4*a_}:{ACC+4*a_+3}] offset:{4096 + a_*1024}")
    A("ds_write_b32 v14, v13")
    for k in range(16): A(f"v_mov_b32 v{ACC+k}, v{ACC+16+k}")
    A.label("L_cv_out")
    A(f"""
    """)
    A.extend(ya_addr(41, T0))
    A(f"""
    v_mov_b32 v{T0+2}, 0xfffffffe
    s_waitcnt lgkmcnt(5)
    """)
    t = 80; z = 96; YP = 112
    for k in range(8):
        A(f"v_lshlrev_b32 v{t+2*k}, 16, v{XN+k}")
        A(f"v_and_b32 v{t+2*k+1}, 0xffff0000, v{XN+k}")
    for k in range(16): A(f"v_fma_f32 v{ACC+k}, v{t+k}, v{dsk}, v{ACC+k}")
    A.label("L_cv_ps1")
    A(f"""
    ds_read_b32 v16, v15
    s_waitcnt lgkmcnt(0)
    v_readfirstlane_b32 s28, v16
    s_cmp_eq_u32 s28, 1
    s_cbranch_scc0 L_cv_ps1
    """)
    for a_ in range(4): A(f"ds_read_b128 v[{YP+4*a_}:{YP+4*a_+3}], v{VPAR} offset:{4096 + a_*1024}")
    for a_ in range(4):
        A("s_waitcnt lgkmcnt(3)")
        for k in range(4): A(f"v_add_f32 v{ACC+4*a_+k}, v{ACC+4*a_+k}, v{YP+4*a_+k}")
        for k in range(2): A(f"v_cvt_pk_bf16_f32 v{z+2*a_+k}, v{ACC+4*a_+2*k}, v{ACC+4*a_+2*k+1}")
        for k in range(2): A(f"v_min_u32 v{z+2*a_+k}, v{z+2*a_+k}, v{T0+2}")
        A(f"ds_write_b64 v{VBW}, v[{z+2*a_}:{z+2*a_+1}] offset:{a_*512}")
    for h in range(2): A(f"ds_read_b128 v[{t+4*h}:{t+4*h+3}], v{VOWN} offset:{h*1024}")
    for h in range(2):
        A(f"s_waitcnt lgkmcnt({1-h})")
        A(f"buffer_store_dwordx4 v[{t+4*h}:{t+4*h+3}], v41, s[12:15], s{30+h} offen {SC}")
    Y = 160
    A(f"""
    v_lshlrev_b32 v{T0}, 8, v1
    v_lshl_add_u32 v{T0}, v2, 4, v{T0}
    s_lshl_b32 s28, s79, 5
    s_add_u32 s28, s28, s78
    s_lshl_b32 s28, s28, 13
    s_lshl_b32 s29, s21, 11
    s_add_u32 s28, s28, s29
    s_add_u32 s28, s28, {WS_YA}
    v_lshlrev_b32 v{T0+1}, 8, v2
    v_lshl_add_u32 v{T0+1}, v2, 4, v{T0+1}
    v_lshl_add_u32 v{T0+1}, v1, 2, v{T0+1}
    v_add_u32 v{T0+1}, s27, v{T0+1}
    v_mov_b32 v{T0+3}, 0x05040100
    v_mov_b32 v{T0+4}, 0x07060302
    s_mov_b32 s30, 0
    """)
    A.st("s7")
    A(f"""
    v_mov_b32 v17, {L_FLAG+48}
    L_cv_w19:
    s_sleep 2
    ds_read_b128 v[20:23], v17
    s_waitcnt lgkmcnt(0)
    v_and_b32 v20, v20, v21
    v_and_b32 v22, v22, v23
    v_and_b32 v20, v20, v22
    s_nop 0
    v_readfirstlane_b32 s29, v20
    s_cmp_eq_u32 s29, 1
    s_cbranch_scc0 L_cv_w19
    L_cv_poll2:
    buffer_load_dwordx4 v[{Y}:{Y+3}], v{T0}, s[12:15], s28 offen {SC}
    buffer_load_dwordx4 v[{Y+4}:{Y+7}], v{T0}, s[12:15], s28 offen offset:128 {SC}
    s_waitcnt vmcnt(0)
    v_max_u32 v{Y+8}, v{Y}, v{Y+1}
    v_max3_u32 v{Y+8}, v{Y+8}, v{Y+2}, v{Y+3}
    v_max3_u32 v{Y+8}, v{Y+8}, v{Y+4}, v{Y+5}
    v_max3_u32 v{Y+8}, v{Y+8}, v{Y+6}, v{Y+7}
    v_cmp_eq_u32 vcc, -1, v{Y+8}
    s_cbranch_vccz L_cv_got
    s_sleep 4
    s_add_u32 s30, s30, 1
    s_cmp_lt_u32 s30, {SPIN}
    s_cbranch_scc1 L_cv_poll2
    """)
    A.label("L_cv_got")
    A.st("got")
    for k in range(4):
        A(f"v_perm_b32 v{Y+8+2*k}, v{Y+4+k}, v{Y+k}, v{T0+3}")
        A(f"v_perm_b32 v{Y+9+2*k}, v{Y+4+k}, v{Y+k}, v{T0+4}")
    for i in range(8): A(f"ds_write_b32 v{T0+1}, v{Y+8+i} offset:{i*32}")
    A("s_waitcnt lgkmcnt(0)")


def gen_final(A):
    P = 32
    A(f"""
    v_lshlrev_b32 v13, 1, v2
    v_xor_b32 v13, v13, v1
    v_lshlrev_b32 v13, 4, v13
    v_lshl_add_u32 v13, v1, 8, v13
    s_and_b32 s28, s20, 3
    s_lshl_b32 s28, s28, 11
    s_lshr_b32 s29, s20, 2
    s_lshl_b32 s29, s29, 15
    s_add_u32 s28, s28, s29
    v_add_u32 v13, s28, v13
    v_xor_b32 v14, 16, v13
    v_lshrrev_b32 v15, 1, v2
    v_lshlrev_b32 v15, 13, v15
    v_lshl_add_u32 v15, v1, 5, v15
    v_and_b32 v16, 1, v2
    v_lshl_add_u32 v15, v16, 4, v15
    s_mul_i32 s28, s20, 272
    s_add_u32 s28, s28, {L_ST2}
    v_add_u32 v15, s28, v15
    """)
    srd(A, 8, "s52", "s53", 2 << 20)
    X, Yv, B = 64, 72, 80
    def unpack(d, s_):
        for k in range(4):
            A(f"v_lshlrev_b32 v{d+2*k}, 16, v{s_+k}")
            A(f"v_and_b32 v{d+2*k+1}, 0xffff0000, v{s_+k}")
    def pack(d, s_):
        for k in range(4): A(f"v_cvt_pk_bf16_f32 v{d+k}, v{s_+2*k}, v{s_+2*k+1}")
    unpack(X, VX); unpack(B, VB2)
    A("s_barrier")
    A.st("fin")
    A(f"ds_read_b128 v[16:19], v15")
    for w in range(4):
        A(f"ds_read_b128 v[{P+8*w}:{P+8*w+3}], v13 offset:{w*8192}")
        A(f"ds_read_b128 v[{P+8*w+4}:{P+8*w+7}], v14 offset:{w*8192}")
    A("s_waitcnt lgkmcnt(8)")
    unpack(Yv, 16)
    for k in range(8): A(f"v_add_f32 v{X+k}, v{X+k}, v{Yv+k}")
    pack(20, X); unpack(X, 20)
    A("s_waitcnt lgkmcnt(4)")
    for k in range(8): A(f"v_add_f32 v{P+k}, v{P+k}, v{P+8+k}")
    A("s_waitcnt lgkmcnt(0)")
    for k in range(8): A(f"v_add_f32 v{P+16+k}, v{P+16+k}, v{P+24+k}")
    for k in range(8): A(f"v_add_f32 v{P+k}, v{P+k}, v{P+16+k}")
    pack(24, P); unpack(P, 24)
    for k in range(8): A(f"v_add_f32 v{P+k}, v{P+k}, v{B+k}")
    pack(24, P); unpack(P, 24)
    for k in range(8): A(f"v_add_f32 v{P+k}, v{P+k}, v{X+k}")
    pack(28, P)
    A(f"buffer_store_dwordx4 v[28:31], v{VOO}, s[8:11], s33 offen {os.environ.get('SCO', '')}")
    if STAMPS: A("s_waitcnt vmcnt(0)")
    A.stamp_flush(0)
    A("s_endpgm")


def gen():
    A = Asm()
    A.stamp(0, True); A.stamp(1)
    for k in range(2, 9): A.stamp(k)
    A(f"""
    s_cmp_ge_u32 s2, 256
    s_cbranch_scc1 L_exit
    s_load_dwordx2 s[40:41], s[0:1], {KA['u']}
    s_load_dwordx8 s[44:51], s[0:1], {KA['w1']}
    s_load_dwordx4 s[52:55], s[0:1], {KA['out']}
    s_load_dwordx2 s[42:43], s[0:1], {KA['ws']}
    v_lshrrev_b32 v1, 6, v0
    v_and_b32 v0, 63, v0
    s_and_b32 s23, s2, 7
    s_lshr_b32 s24, s2, 3
    v_readfirstlane_b32 s20, v1
    s_and_b32 s25, s24, 3
    s_lshr_b32 s79, s24, 2
    s_lshl_b32 s78, s23, 2
    s_add_u32 s78, s78, s25
    s_mul_i32 s74, s79, {3584 if ROT & 1 else 0}
    s_and_b32 s74, s74, 0xfffffc00
    s_mul_i32 s75, s25, {7168 if ROT & 2 else 0}
    s_add_u32 s74, s74, s75
    s_sub_u32 s75, s74, {28*1024}
    s_min_u32 s74, s74, s75
    s_mov_b32 s77, 1
    s_and_b32 s39, s20, 3
    s_cmp_eq_u32 s79, 7
    s_cbranch_scc1 L_ln
    """)
    if LOC:
        A("""
        s_and_b32 s21, s24, 1
        s_lshl_b32 s22, s23, 1
        s_add_u32 s21, s21, s22
        s_lshr_b32 s22, s24, 1
        """)
    else:
        A("""
        s_lshr_b32 s21, s23, 1
        s_lshl_b32 s21, s21, 2
        s_add_u32 s21, s21, s25
        s_and_b32 s22, s23, 1
        s_mul_i32 s22, s22, 7
        s_add_u32 s22, s22, s79
        """)
    gen_gemm1(A)
    A.label("L_ln")
    A("s_nop 0 ; RESETSB")
    A("s_mov_b32 s21, s78")
    gen_ln(A)
    A.label("L_gemm2")
    A("s_nop 1 ; RESETSB")
    gen_gemm2(A)
    A.label("L_conv")
    A("s_nop 1 ; RESETSB")
    gen_conv(A)
    A.label("L_final")
    A("s_nop 7")
    gen_final(A)
    A.label("L_exit")
    A("s_endpgm")
    lines = fix_hazards(A.lines, verbose=True)
    check_waits(lines, "s")
    head = open("parallel_sum__ssm_conv_s4__dense_activation_gelu__prompt.s.ref").read().split("; Override launch")[0]
    head += f"; @launch grid=(256,1,1) block=(512,1,1) lds={LDS_TOTAL}\n.amdgcn_target \"amdgcn-amd-amdhsa--gfx950\"\n"
    return head + kernel_section(KNAME, lines, 256, 102, 256)

if __name__ == "__main__":
    out = sys.argv[1] if len(sys.argv) > 1 else "cur8.s"
    open(out, "w").write(gen())
    print("wrote", out)
```

```python
from asmlib import *
import struct, math, os, sys

def f2u(x): return struct.unpack("<I", struct.pack("<f", x))[0]
def env(n, d): return int(os.environ.get(n, str(d)))

KNAME = "parallel_sum__ssm_conv_s4__dense_activation_gelu__prompt_kernel"
KA = dict(u=0, A_re=8, A_im=16, B_re=24, B_im=32, C_re=40, C_im=48, log_dt=56, Dskip=64, Bx=72, w1=80, b1=88, w2=96, b2=104,
          out=112, dbg=120, ws=128)
WS_FLL = 32768
WS_EPOCH = 49152
WS_DUMMY = 53248
WS_STAT = 65536
WS_FLH = 131072
WS_FLY = 262144
WS_HF = 1 << 20
WS_XNT = 8 << 20
WS_YA = 12 << 20
WS_USED = 14 << 20

LOG2E = 1.4426950408889634
GC1 = -2.0 * LOG2E * 0.7978845608028654
GC2 = GC1 * 0.044715

NS, STAGE = 4, 32768
RSL = 12
RING = RSL * 2048
L_KST = 98304; KST = 8704
L_ST2 = 98304; ST2 = 8192
L_CH = 131072; CH_SIZE = 13056
OFF_E, OFF_O = 4608, 8768
L_FLAG = L_CH + 2 * CH_SIZE
L_CS = L_FLAG + 512
LDS_TOTAL = 163840
L_VS = 98304; L_US = 98304

OPT_PF = env("PF", 1)
PRE = env("PRE", 3)
PRIO_C = env("PRIOC", 1)
PRIO_G = env("PRIOG", 2)
PRIO_E = env("PRIOE", 0)
ROT = env("ROT", 3)
BARP = env("BARP", 2)
STATG = env("STATG", 21)
SC = os.environ.get("SC", "sc1")
PFG = [int(x) for x in os.environ.get("PFG", "").split(",") if x]
HD = 9
WSOFF = env('WSOFF', 0) << 20
SCH = os.environ.get('SCH', SC)
LOC = env('LOC', 0)
GPK = env('GPK', 0)
ULN = env('ULN', 3)
HT = env('HT', 0)
SCL = os.environ.get('SCL', SC)
SPIN = 0x40000

DK, DP, EX, P0 = 224, 128, 160, 244
BF, AF, KG_G, KG_E1, KG_L, KG_V, KG_PK, KG_VW, KG_VRD = 160, 192, 108, 122, 224, 124, 132, 136, 137
L_KS2 = 131072; KS2 = 4352
XL = 180
VDUM, LNF = 252, 253
VX, VB2, VOO = 4, 8, 12
VW2 = 23
W2R, HR, ACC2 = 160, 88, 24
VTL = 24

def srd(A, d, lo, hi, size):
    A(f"s_mov_b32 s{d}, {lo}\ns_mov_b32 s{d+1}, {hi}\ns_mov_b32 s{d+2}, {size}\ns_mov_b32 s{d+3}, 0x00020000")
def round_bf16(A, r):
    A(f"v_cvt_pk_bf16_f32 v{r}, v{r}, v{r}")
    A(f"v_and_b32 v{r}, 0xffff0000, v{r}")
def zipm(*lists):
    o = []
    for k in range(max(len(l) for l in lists)):
        for l in lists:
            if k < len(l): o.append(l[k])
    return o
def mask(lo, hi=None):
    hi = lo if hi is None else hi
    return [f"s_mov_b32 s28, {lo}", f"s_mov_b32 s29, {hi}"]

class VMQ:
    def __init__(self): self.q = []
    def note(self, tag, n=1): self.q.extend([tag] * n)
    def wait(self, *tags):
        idx = max((k for k, t in enumerate(self.q) if t in tags), default=-1)
        if idx < 0: return []
        n = len(self.q) - 1 - idx
        del self.q[:idx + 1]
        return [f"s_waitcnt vmcnt({n})"]
    def younger(self): return len(self.q)

ORDER = [0, 1] + list(range(12, 24)) + list(range(2, 12)) + list(range(24, 28))

def koff(dst, lab, base="s74"):
    return [f"s_add_u32 {dst}, {base}, {lab*1024}", f"s_sub_u32 s75, {dst}, {28*1024}", f"s_min_u32 {dst}, {dst}, s75"]

def slot_addr(sl): return (sl >> 2) * 32768 + (sl & 3) * 2048

def w2_setup(A, vt):
    srd(A, 16, "s48", "s49", 1792 * 1024)
    A(f"""
    v_lshrrev_b32 v{vt}, 2, v0
    v_and_b32 v{vt}, 4, v{vt}
    v_and_b32 v{vt+1}, 7, v0
    v_xor_b32 v{vt}, v{vt}, v{vt+1}
    v_lshrrev_b32 v{vt+1}, 3, v0
    v_lshlrev_b32 v{VW2}, 10, v{vt+1}
    v_lshl_add_u32 v{VW2}, v{vt}, 4, v{VW2}
    s_mul_i32 s72, s39, {448*1024}
    s_lshl_b32 s75, s79, 7
    s_add_u32 s72, s72, s75
    s_lshl_b32 s73, s39, 13
    v_lshrrev_b32 v{vt+1}, 5, v0
    v_bfe_u32 v{vt}, v0, 2, 2
    v_lshl_add_u32 v{VTL}, v{vt+1}, 2, v{vt}
    v_lshlrev_b32 v{VTL}, 7, v{VTL}
    v_bfe_u32 v{vt}, v0, 4, 1
    v_lshl_add_u32 v{VTL}, v{vt}, 5, v{VTL}
    v_and_b32 v{vt}, 3, v0
    v_lshl_add_u32 v{VTL}, v{vt}, 3, v{VTL}
    v_bfe_u32 v{vt}, v0, 3, 1
    v_lshl_add_u32 v{VTL}, v{vt}, 6, v{VTL}
    v_add_u32 v{VTL}, s73, v{VTL}
    v_xor_b32 v{VTL+1}, 64, v{VTL}
    v_add_u32 v{VTL+2}, 0x10000, v{VTL}
    v_add_u32 v{VTL+3}, 0x10000, v{VTL+1}
    """)
def wdma(slot, lab):
    a_ = slot_addr(slot)
    return koff("s31", lab) + [f"s_add_u32 m0, s73, {a_}", "s_lshl4_add_u32 s31, s31, s72",
                               f"buffer_load_dwordx4 v{VW2}, s[16:19], s31 offen lds",
                               f"s_add_u32 m0, s73, {a_+1024}", "s_add_u32 s31, s31, 8192",
                               f"buffer_load_dwordx4 v{VW2}, s[16:19], s31 offen lds"]
def w2tr(slot, ws_, vtl=VTL):
    b = W2R + 8 * ws_; a_ = slot_addr(slot); hi = a_ >> 16; a_ &= 0xffff
    return [f"ds_read_b64_tr_b16 v[{b+4*db+2*sec}:{b+4*db+2*sec+1}], v{vtl+2*hi+db} offset:{a_+sec*1024}" for db in range(2) for sec in range(2)]

def param_loads(A, vt):
    A(f"""
    s_lshr_b32 s28, s39, 1
    s_lshl_b32 s30, s2, 1
    s_add_u32 s30, s30, s28
    v_lshlrev_b32 v{vt}, 1, v0
    v_mov_b32 v{vt+1}, 0
    s_lshl_b32 s29, s30, 8
    s_and_b32 s28, s20, 1
    s_lshl_b32 s28, s28, 7
    s_add_u32 s29, s29, s28
    s_lshl_b32 s30, s30, 1
    s_mov_b32 s18, 1024
    s_mov_b32 s19, 0x00020000
    """)
    for k in range(8): A(f"v_mov_b32 v{P0+k}, 0")
    A("s_waitcnt lgkmcnt(0)")
    for k in (6, 7, 0, 1, 2, 3, 4, 5):
        if k == 0: A("s_mov_b32 s18, 131072")
        A(f"s_mov_b32 s16, s{56+2*k}\ns_mov_b32 s17, s{57+2*k}")
        if k < 6: A(f"buffer_load_short_d16_hi v{P0+k}, v{vt}, s[16:19], s29 offen")
        else: A(f"buffer_load_short_d16_hi v{P0+k}, v{vt+1}, s[16:19], s30 offen")

def lnflag_load(vt):
    return ["s_lshl_b32 s29, s79, 6", "s_lshl_b32 s28, s39, 4", "s_add_u32 s29, s29, s28", "s_lshr_b32 s28, s78, 4", "s_lshl_b32 s28, s28, 9",
            "s_add_u32 s29, s29, s28", "s_lshl_b32 s29, s29, 7", f"s_add_u32 s29, s29, {WS_FLY}",
            f"v_lshlrev_b32 v{vt}, 7, v0", f"v_add_u32 v{vt}, {WS_FLL}, v{vt}",
            f"v_and_b32 v{vt+1}, 15, v0", f"v_lshl_add_u32 v{vt+1}, v{vt+1}, 7, s29", "s_mov_b32 s28, 0", "s_mov_b32 s29, -1",
            f"v_cndmask_b32 v{vt}, v{vt}, v{vt+1}, s[28:29]",
            f"buffer_load_dword v{LNF}, v{vt}, s[12:15], 0 offen {SC}"]

def u_issue(A, vl16):
    A(f"""
    s_lshr_b32 s28, s39, 1
    s_lshl_b32 s29, s2, 1
    s_add_u32 s29, s29, s28
    s_lshl_b32 s29, s29, 12
    s_add_u32 s29, s29, {WS_XNT}
    """)
    for k in range(4): A(f"buffer_load_dwordx4 v[{XL+4*k}:{XL+4*k+3}], v{vl16}, s[12:15], s29 offen offset:{k*1024} {SC}")

def u_try(A, vl16):
    A(f"""
    v_cmp_ne_u32 vcc, s76, v{LNF}
    s_mov_b32 s37, 0
    s_cbranch_vccnz L_ut_no
    s_mov_b32 s37, 1
    """)
    u_issue(A, vl16)
    A.label("L_ut_no")

def u_spin(A, vt, vl16, tag=''):
    A("s_mov_b32 s30, 0")
    A.label(f"L_us_poll{tag}")
    A.extend(lnflag_load(vt))
    A(f"""
    s_add_u32 s30, s30, 1
    s_waitcnt vmcnt(0)
    v_cmp_ne_u32 vcc, s76, v{LNF}
    s_cmp_gt_u32 s30, {SPIN}
    s_cbranch_scc1 L_us_ok{tag}
    s_cbranch_vccnz L_us_poll{tag}
    """)
    A.label(f"L_us_ok{tag}")
    u_issue(A, vl16)
    A("s_waitcnt vmcnt(0)")

def ya_addr(vd, vt):
    return [f"v_lshrrev_b32 v{vd}, 3, v0", f"v_and_b32 v{vt}, 7, v0", f"v_lshlrev_b32 v{vd}, 13, v{vd}", f"v_lshl_add_u32 v{vd}, v{vt}, 4, v{vd}",
            "s_lshr_b32 s28, s39, 1", "s_lshl_b32 s31, s2, 1", "s_add_u32 s31, s31, s28",
            "s_lshr_b32 s29, s31, 6", "s_lshl_b32 s29, s29, 18", "s_and_b32 s28, s31, 63", "s_lshl_b32 s28, s28, 7", "s_add_u32 s29, s29, s28",
            f"s_add_u32 s29, s29, {WS_YA}", "s_and_b32 s30, s39, 1", "s_lshl_b32 s30, s30, 17", "s_add_u32 s30, s30, s29", "s_add_u32 s31, s30, 65536"]
def ya_prefill(vd, vt, vm4):
    return ya_addr(vd, vt) + [f"v_mov_b32 v{vm4+k}, -1" for k in range(4)] + \
           [f"buffer_store_dwordx4 v[{vm4}:{vm4+3}], v{vd}, s[12:15], s{30+h} offen {SC}" for h in range(2)]

def publish_flag(A, soff, vt, tag, wave, both=False):
    A(f"""
    s_cmp_lg_u32 s20, {wave}
    s_cbranch_scc1 L_pub_skip{tag}
    v_mov_b32 v{vt}, 0
    v_mov_b32 v{vt+1}, s76
    s_mov_b64 exec, 1
    buffer_store_dword v{vt+1}, v{vt}, s[12:15], {soff} offen {SC}
    """)
    if both:
        A(f"""
        s_lshl_b32 s28, s2, 7
        s_add_u32 s28, s28, {WS_FLW}
        buffer_store_dword v{vt+1}, v{vt}, s[12:15], s28 offen {SC}
        """)
    A(f"""
    s_mov_b64 exec, -1
    L_pub_skip{tag}:
    """)
def mktag(A):
    A("s_mul_i32 s76, s76, 0x9E3779B1")
    A("s_add_u32 s76, s76, 0x7F4A7C15")
def arrive(A, tag):
    A(f"""
    s_cmp_lg_u32 s20, 3
    s_cbranch_scc1 L_arr{tag}
    s_atomic_add s77, s[54:55], 0 glc
    L_arr{tag}:
    """)

def coop_prefetch(A, vt):
    A(f"""
    s_lshl_b32 s28, s24, 2
    s_add_u32 s28, s28, s39
    s_lshl_b32 s30, s28, 6
    v_add_u32 v{vt}, s30, v0
    v_mul_u32_u24 v{vt+1}, 0x4925, v{vt}
    v_lshrrev_b32 v{vt+1}, 18, v{vt+1}
    v_mul_u32_u24 v{vt+2}, 14, v{vt+1}
    v_sub_u32 v{vt}, v{vt}, v{vt+2}
    v_lshlrev_b32 v{vt}, 7, v{vt}
    v_mul_u32_u24 v{vt+1}, 3584, v{vt+1}
    v_add_u32 v{vt}, v{vt}, v{vt+1}
    s_and_b32 s29, s23, 1
    s_mul_i32 s29, s29, 1792
    buffer_load_dword v{VDUM}, v{vt}, s[8:11], s29 offen
    s_lshr_b32 s29, s23, 1
    s_lshl_b32 s29, s29, 19
    s_lshl_b32 s30, s28, 13
    s_add_u32 s29, s29, s30
    s_cmp_lt_u32 s28, 64
    s_cselect_b32 s29, s29, 0x400000
    v_lshlrev_b32 v{vt+2}, 7, v0
    buffer_load_dword v{VDUM}, v{vt+2}, s[4:7], s29 offen
    """)
def w2_prefetch(vt, piece):
    return ["s_lshl_b32 s28, s24, 2", "s_add_u32 s28, s28, s39", "s_lshl_b32 s28, s28, 14", f"s_add_u32 s28, s28, {piece*8192}",
            f"v_lshlrev_b32 v{vt}, 7, v0", f"buffer_load_dword v{VDUM}, v{vt}, s[16:19], s28 offen"]

def cmul(d, x, y, pk=True):
    P = lambda r: f"v[{r}:{r+1}]"
    assert d != x and d != y
    if pk:
        return [f"v_pk_mul_f32 {P(d)}, {P(x)}, {P(y)} op_sel:[0,0] op_sel_hi:[0,1]",
                f"v_pk_fma_f32 {P(d)}, {P(x)}, {P(y)}, {P(d)} op_sel:[1,1,0] op_sel_hi:[1,0,1] neg_lo:[0,1,0]"]
    return [f"v_mul_f32 v{d}, v{x}, v{y}", f"v_mul_f32 v{d+1}, v{x}, v{y+1}",
            f"v_fma_f32 v{d}, -v{x+1}, v{y+1}, v{d}", f"v_fma_f32 v{d+1}, v{x+1}, v{y}, v{d+1}"]

def kg_common(A, base, T0, Z, WA):
    ar, ai, br, bi, cr, ci, ld, dsk = range(P0, P0 + 8)
    u_ = f2u(LOG2E) & 0xFFFFFF00
    lh = struct.unpack("<f", struct.pack("<I", u_))[0]; ll = LOG2E - lh
    A(f"""
    v_mul_f32 v{T0}, {hex(f2u(lh))}, v{ld}
    v_mul_f32 v{T0+1}, {hex(f2u(ll * math.log(2)))}, v{ld}
    v_exp_f32 v{T0}, v{T0}
    s_nop 0
    v_fma_f32 v{T0}, v{T0}, v{T0+1}, v{T0}
    """)
    round_bf16(A, T0)
    A(f"""
    v_mul_f32 v{Z}, v{T0}, v{ar}
    v_mul_f32 v{Z+1}, v{T0}, v{ai}
    v_mul_f32 v{br}, v{T0}, v{br}
    v_mul_f32 v{bi}, v{T0}, v{bi}
    v_mul_f32 v{Z}, {hex(f2u(LOG2E))}, v{Z}
    v_mul_f32 v{Z+1}, 0.15915494, v{Z+1}
    """)
def kg_waddr(A, base, WA):
    A(f"s_lshl_b32 s28, s39, 13\ns_add_u32 s28, s28, {base}\nv_lshl_add_u32 v{WA}, v0, 2, s28")
    for k in range(1, 16): A(f"v_xor_b32 v{WA+k}, {16*k}, v{WA}")
def kg_raddr(base, d, t):
    o = ["s_lshl_b32 s28, s39, 13", f"s_add_u32 s28, s28, {base}", f"v_and_b32 v{t}, 15, v0", f"v_lshrrev_b32 v{t+1}, 5, v0", f"v_xor_b32 v{t}, v{t}, v{t+1}",
         f"v_and_b32 v{t+1}, 31, v0", f"v_lshlrev_b32 v{t+1}, 8, v{t+1}", f"v_lshl_add_u32 v{d}, v{t}, 4, v{t+1}", f"v_add_u32 v{d}, s28, v{d}"]
    return o + [f"v_xor_b32 v{d+k}, {32*k}, v{d}" for k in range(1, 8)]
def cexp(d, x, t, Z):
    xs = {1: None, 8: hex(f2u(8.0)), 256: hex(f2u(256.0))}[x]
    o = []
    if xs is None: o += [f"v_exp_f32 v{t}, v{Z}", f"v_fract_f32 v{t+1}, v{Z+1}"]
    else: o += [f"v_mul_f32 v{t}, {xs}, v{Z}", f"v_mul_f32 v{t+1}, {xs}, v{Z+1}", f"v_exp_f32 v{t}, v{t}", f"v_fract_f32 v{t+1}, v{t+1}"]
    o += [f"v_cos_f32 v{d}, v{t+1}", f"v_sin_f32 v{d+1}, v{t+1}", f"v_mul_f32 v{d}, v{d}, v{t}", f"v_mul_f32 v{d+1}, v{d+1}, v{t}"]
    return o
KWA = 100
KRA = 116

def gen_kgen_v(A):
    T0, Z, E8, E16, Va, Vb, PKT = 34, 144, 44, 46, 80, 84, 88
    kg_common(A, L_VS, T0, Z, KWA)
    A.extend(cexp(E8, 8, T0, Z))
    A.extend(cmul(E16, E8, E8))
    npk = [0]
    def emit(src, row):
        t = PKT + (npk[0] % 8); npk[0] += 1
        return [f"v_cvt_pk_bf16_f32 v{t}, v{src}, v{src+1}", f"ds_write_b32 v{KWA + (row & 15)}, v{t} offset:{row*256}"]
    A(f"v_mov_b32 v{PKT+7}, 0x00003f80")
    A(f"ds_write_b32 v{KWA}, v{PKT+7}")
    A.extend(emit(E8, 1)); A.extend(emit(E16, 2))
    ev, od = E16, E8
    for j in range(3, 32, 2):
        d1 = Va + 2 * (((j - 3) // 2) % 2)
        d2 = Vb + 2 * (((j - 3) // 2) % 2)
        l1 = cmul(d1, od, E16) + emit(d1, j)
        l2 = (cmul(d2, ev, E16) + emit(d2, j + 1)) if j + 1 < 32 else []
        A.extend(zipm(l1, l2))
        od, ev = d1, d2
    for st in range(8): A(f"ds_read_b128 v[{BF+4*st}:{BF+4*st+3}], v{KRA+st}")

UPK = 192
def kgen_u_lists(rebase):
    T0, Z, E1, G, Lr, Va = 34, 144, 42, 44, 58, 76
    ar, ai, br, bi, cr, ci, ld, dsk = range(P0, P0 + 8)
    cm = lambda d, x, y: cmul(d, x, y, False)
    V = []; Wr = []
    if rebase: V += [f"v_subrev_u32 v{KWA+k}, {rebase}, v{KWA+k}" for k in range(24)]
    V += zipm(cexp(E1, 1, T0 + 2, Z), cexp(G, 256, T0 + 4, Z), cm(Lr, cr, br))
    npk = [0]
    def emit(src, rows):
        t = UPK + npk[0]; npk[0] += 1
        Wr.extend(f"ds_write_b32 v{KWA + (row & 15)}, v{t} offset:{row*256}" for row in rows)
        return [f"v_cvt_pk_bf16_f32 v{t}, v{src}, -v{src+1}"]
    urow = lambda hh, r: 8 * (r >> 2) + 4 * hh + (r & 3)
    lch = emit(Lr, [urow(0, 0)])
    for a_ in range(1, 9): lch += cm(Lr + 2 * a_, Lr + 2 * (a_ - 1), E1) + emit(Lr + 2 * a_, [urow(0, a_)])
    gch = []
    for k in range(2, 8): gch += cm(G + 2 * (k - 1), G + 2 * (k - 2), G)
    V += zipm(lch, gch)
    jobs = [(0, 1, [urow(1, 0), urow(1, 1)]), (2, 1, [urow(1, 2)]), (4, 1, [urow(1, 3), urow(1, 4), urow(1, 5)]), (6, 1, [urow(1, 6)]),
            (8, 1, [urow(1, 7), urow(1, 8)]),
            (0, 2, [urow(0, 9)]), (4, 2, [urow(0, 10)]), (8, 2, [urow(0, 11)]),
            (0, 3, [urow(1, 9)]), (4, 3, [urow(1, 10)]), (8, 3, [urow(1, 11)]),
            (0, 4, [urow(0, 12)]), (8, 4, [urow(0, 13)]), (0, 5, [urow(0, 14)]), (8, 5, [urow(0, 15)]),
            (0, 6, [urow(1, 12)]), (8, 6, [urow(1, 13)]), (0, 7, [urow(1, 14)]), (8, 7, [urow(1, 15)])]
    for k in range(0, len(jobs), 2):
        ls = []
        for q_, (a_, gk, rows) in enumerate(jobs[k:k + 2]):
            d = Va + 4 * q_ + 2 * ((k // 2) % 2)
            ls.append(cm(d, Lr + 2 * a_, G + 2 * (gk - 1)) + emit(d, rows))
        V += zipm(*ls)
    assert npk[0] <= 32
    return V, Wr

def kg_atoms_m():
    at = [[f"ds_read_b128 v[{AF+4*k}:{AF+4*k+3}], v{KRA+k} offset:{L_US - L_VS}", ("tag", ("af", k))] for k in range(8)]
    mm = []
    for st in range(8):
        cin = "0" if st == 0 else f"v[{DK}:{DK+15}]"
        mm.append([("wait", ("af", st)), f"v_mfma_f32_32x32x16_bf16 v[{DK}:{DK+15}], v[{AF+4*st}:{AF+4*st+3}], v[{BF+4*st}:{BF+4*st+3}], {cin}"])
    return at, mm

def kg_atoms_x1():
    T0 = P0
    at = [[f"s_lshr_b32 s30, s39, 1", f"s_mul_i32 s30, s30, {CH_SIZE}", f"s_add_u32 s38, s30, {L_CH}", f"v_lshl_add_u32 v{T0}, v0, 4, s38"]]
    at.append(["s_bitcmp1_b32 s39, 0", "s_cselect_b64 exec, -1, 0"] + [f"ds_write_b128 v{T0}, v[{DK+4*q}:{DK+4*q+3}] offset:{512+q*1024}" for q in range(3)] +
              ["s_not_b64 exec, exec", f"ds_write_b128 v{T0}, v[{DK+12}:{DK+15}] offset:{512+3072}", "s_mov_b64 exec, -1"])
    return at

def kg_atoms_x2(tag):
    T0 = P0; VEA, VEB = 254, 255
    at = []
    at.append([f"ds_read_b128 v[{DP+4*q}:{DP+4*q+3}], v{T0} offset:{512+q*1024}" for q in range(4)] + [("tag", "dp")])
    for i in [f"v_and_b32 v{T0+4}, 31, v0", f"v_lshrrev_b32 v{T0+1}, 5, v0", f"v_lshlrev_b32 v{T0+2}, 4, v{T0+4}"]: at.append([i])
    at.append([f"s_add_u32 s28, s38, {OFF_E + 4080 - 1024}", f"v_sub_u32 v{VEA}, s28, v{T0+2}"])
    at.append([f"v_lshlrev_b32 v{T0+3}, 9, v{T0+1}"]); at.append([f"v_sub_u32 v{VEA}, v{VEA}, v{T0+3}"])
    at.append([f"s_add_u32 s28, s38, {OFF_E + 4080 - 2560}", f"v_sub_u32 v{VEB}, s28, v{T0+2}"])
    at.append([f"v_lshlrev_b32 v{T0+3}, 10, v{T0+1}"]); at.append([f"v_sub_u32 v{VEB}, v{VEB}, v{T0+3}"])
    at.append([f"v_lshl_add_u32 v{T0}, v0, 3, s38"]); at.append([f"v_mov_b32 v{T0+2}, 0"]); at.append([f"v_mov_b32 v{T0+3}, 0"])
    at.append(["s_lshl_b32 s28, s39, 2", f"s_add_u32 s28, s28, {L_FLAG}", f"v_mov_b32 v{T0+1}, s28"])
    for k in range(16): at.append(([("wait", "dp")] if k == 0 else []) + [f"v_add_f32 v{DK+k}, v{DK+k}, v{DP+k}"])
    at.append(mask("0xaaaaaaaa") + [f"v_cndmask_b32 v{DP}, v{DK+12}, v{DK+13}, s[28:29]", f"v_cndmask_b32 v{DP+1}, v{DK+14}, v{DK+15}, s[28:29]"])
    k_ = lambda r: DK + r
    def half(base, kk, va, off, odd):
        prs = [(8, 7), (6, 5), (4, 3), (2, 1)] if odd else [(7, 6), (5, 4), (3, 2), (1, 0)]
        return [f"v_cvt_pk_bf16_f32 v{base+i}, v{kk[lo]}, v{kk[hi]}" for i, (lo, hi) in enumerate(prs)] + \
               [f"ds_write_b128 v{va}, v[{base}:{base+3}] offset:{off + (OFF_O - OFF_E if odd else 0)}"]
    ev = [([k_(i) for i in range(9)], VEA, 1024), ([k_(9)] * 3 + [k_(10)] * 3 + [k_(11)] * 3, VEA, 0)]
    od = [([k_(12)] * 4 + [DP] + [k_(13)] * 4, VEB, 512), ([k_(14)] * 4 + [DP + 1] + [k_(15)] * 4, VEB, 0)]
    n = 0
    for gi in range(2):
        for o_ in range(2):
            b_ = EX + 4 * n
            at.append(["s_bitcmp1_b32 s39, 0", f"s_cbranch_scc1 L_xo{tag}{n}"] + half(b_, *ev[gi], o_)[:-1] + [("nods", half(b_, *ev[gi], o_)[-1]), f"s_branch L_xd{tag}{n}",
                       f"L_xo{tag}{n}:"] + half(b_, *od[gi], o_) + [f"L_xd{tag}{n}:"])
            n += 1
    at.append(["s_bitcmp0_b32 s39, 0", "s_cselect_b64 s[28:29], -1, 0", "s_mov_b64 exec, s[28:29]",
               f"ds_write_b64 v{T0}, v[{T0+2}:{T0+3}]", "s_and_b64 exec, s[28:29], 15",
               f"ds_write_b64 v{T0}, v[{T0+2}:{T0+3}] offset:{OFF_E+4096}", f"ds_write_b64 v{T0}, v[{T0+2}:{T0+3}] offset:{OFF_O+4096}",
               "s_and_b64 exec, s[28:29], 1", f"ds_write_b16_d16_hi v{T0}, v{EX+3} offset:{OFF_O+4096}",
               "s_mov_b64 exec, -1"])
    at.append([f"v_mov_b32 v{T0+2}, 1", f"ds_write_b32 v{T0+1}, v{T0+2} offset:64"])
    return at

def flag_zero():
    return [[f"v_lshlrev_b32 v{VT1}, 2, v0", f"v_mov_b32 v{VT1+1}, 0", f"v_add_u32 v{VT1}, {L_FLAG}, v{VT1}", f"ds_write_b32 v{VT1}, v{VT1+1}"]]

class LQ:
    def __init__(self, A): self.A = A; self.q = []
    def emit(self, items, tag=None):
        maybe0 = any(isinstance(it, str) and "s_cselect_b64" in it for it in items)
        for it in items:
            if maybe0 and isinstance(it, str):
                self.A(it); continue
            if isinstance(it, tuple):
                if it[0] == "tag": self.q[-1] = it[1]
                elif it[0] == "wait": self.wait(it[1])
                elif it[0] == "nods": self.A(it[1])
                continue
            self.A(it)
            if it.strip().startswith("ds_"): self.q.append(tag)
            if "lgkmcnt(0)" in it: self.q = []
    def wait(self, tag):
        idx = max((k for k, t in enumerate(self.q) if t == tag), default=-1)
        if idx < 0: return
        n = min(len(self.q) - 1 - idx, 15)
        self.A(f"s_waitcnt lgkmcnt({n})")
        self.q = self.q[len(self.q) - n:] if n else []

def spread(atoms, g0, g1):
    pts = [(g, p) for g in range(g0, g1) for p in range(2)]
    tot = sum(len(a_) for a_ in atoms); out = {p: [] for p in pts}; acc = 0
    for a_ in atoms:
        out[pts[min(len(pts) - 1, acc * len(pts) // tot)]].append(a_); acc += len(a_)
    return out

VXO, VWO, VXO2 = 1, 2, 3
VXR, VTR = 4, 8
VONE, VHO1, VB1 = 16, 18, 19
VCW, VCR, VSO = 20, 21, 22
VT1 = 28
NR = 3
W1, X1, ACC1, CS = 32, 56, 80, 144
HI = 152
GT, PK, SG = 164, 180, 188
EA, EB = 192, 196
VS, K1r, K3r = 212, 214, 216

def wave_flag(soff, vt):
    return [f"v_mov_b32 v{vt}, 0", f"v_mov_b32 v{vt+1}, s76", "s_mov_b64 exec, 1",
            f"buffer_store_dword v{vt+1}, v{vt}, s[12:15], {soff} offen {SC}", "s_mov_b64 exec, -1"]

def dma_setup(A):
    VT = VT1
    A(f"""
    v_lshrrev_b32 v{VT}, 3, v0
    v_and_b32 v{VT+1}, 7, v0
    v_lshrrev_b32 v{VT+2}, 4, v0
    v_xor_b32 v{VT+3}, v{VT+2}, v{VT+1}
    v_lshlrev_b32 v{VXO}, 10, v{VT}
    v_lshl_add_u32 v{VXO}, v{VT+3}, 4, v{VXO}
    v_xor_b32 v{VXO2}, 64, v{VXO}
    v_add_u32 v{VXO2}, 8192, v{VXO2}
    v_and_b32 v{VT+3}, 15, v0
    v_lshlrev_b32 v{VT}, 2, v{VT+2}
    v_xor_b32 v{VT+3}, v{VT+3}, v{VT}
    v_mul_u32_u24 v{VWO}, 3584, v{VT+2}
    v_lshl_add_u32 v{VWO}, v{VT+3}, 4, v{VWO}
    s_lshl_b32 s25, s21, 17
    s_lshl_b32 s28, s39, 15
    s_add_u32 s25, s25, s28
    s_mul_i32 s26, s39, {16*3584}
    s_lshl_b32 s28, s22, 8
    s_add_u32 s26, s26, s28
    s_lshl_b32 s27, s39, 12
    """)

def g1_dma(kc, part):
    st = (kc % NS) * STAGE
    return [f"s_add_u32 m0, s27, {st + part*1024}", f"s_add_u32 s31, s25, {128*kc + (part//2)*16384}",
            f"buffer_load_dwordx4 v{VXO if part % 2 == 0 else VXO2}, s[4:7], s31 offen lds",
            f"s_add_u32 m0, s27, {st + 16384 + part*1024}", f"s_add_u32 s37, s26, {(64*kc + 4*part)*3584}",
            f"buffer_load_dwordx4 v{VWO}, s[8:11], s37 offen lds"]

def c_setup(A):
    VT = VT1
    A(f"""
    v_and_b32 v{VT}, 31, v0
    v_lshrrev_b32 v{VT+1}, 5, v0
    v_bfe_u32 v{VT+2}, v0, 1, 3
    v_xor_b32 v{VT+2}, v{VT+2}, v{VT+1}
    s_lshl_b32 s31, s34, 1
    v_xor_b32 v{VT+2}, s31, v{VT+2}
    v_lshlrev_b32 v{VXR}, 7, v{VT}
    v_lshl_add_u32 v{VXR}, v{VT+2}, 4, v{VXR}
    s_lshl_b32 s28, s34, 13
    v_add_u32 v{VXR}, s28, v{VXR}
    v_xor_b32 v{VXR+1}, 32, v{VXR}
    v_xor_b32 v{VXR+2}, 64, v{VXR}
    v_xor_b32 v{VXR+3}, 96, v{VXR}
    v_lshlrev_b32 v{VSO}, 3, v0
    v_bfe_u32 v{VT+2}, v0, 2, 2
    v_lshl_add_u32 v{VTR}, v{VT+1}, 3, v{VT+2}
    v_lshlrev_b32 v{VTR}, 8, v{VTR}
    v_bfe_u32 v{VT+3}, v0, 4, 1
    v_lshl_add_u32 v{VTR}, v{VT+3}, 5, v{VTR}
    v_and_b32 v{VT+3}, 3, v0
    v_lshl_add_u32 v{VTR}, v{VT+3}, 3, v{VTR}
    s_lshl_b32 s31, s35, 1
    v_xor_b32 v{VT+2}, s31, v{VT+2}
    v_lshl_add_u32 v{VTR}, v{VT+2}, 6, v{VTR}
    s_lshl_b32 s31, s34, 12
    s_add_u32 s31, s31, 16384
    v_add_u32 v{VTR}, s31, v{VTR}
    """)
    for i in range(4):
        for ft in range(2):
            if i == 0 and ft == 0: continue
            A(f"v_xor_b32 v{VTR+2*i+ft}, {i*4096 + ft*64}, v{VTR}")
    A(f"""
    v_mov_b32 v{VONE}, 0x3f803f80
    v_mov_b32 v{VONE+1}, 0x3f803f80
    v_lshlrev_b32 v{VHO1}, 4, v0
    s_lshl_b32 s33, s21, 1
    s_add_u32 s33, s33, s34
    s_lshl_b32 s36, s33, 9
    s_add_u32 s36, s36, {WS_STAT}
    s_mul_i32 s32, s33, {2*112*1024}
    s_lshl_b32 s28, s22, 1
    s_add_u32 s28, s28, s35
    s_lshl_b32 s29, s28, 12
    s_add_u32 s32, s32, s29
    s_add_u32 s32, s32, {WS_HF}
    s_add_u32 s38, s32, {112*1024}
    s_lshl_b32 s33, s33, 5
    s_add_u32 s33, s33, s28
    s_lshl_b32 s33, s33, 7
    s_add_u32 s33, s33, {WS_FLH}
    s_lshl_b32 s29, s20, 8
    v_lshl_add_u32 v{VCW}, v0, 2, s29
    v_add_u32 v{VCW}, {L_CS}, v{VCW}
    v_xor_b32 v{VCR}, 256, v{VCW}
    """)
    srd(A, 16, "s46", "s47", 3584)
    A(f"""
    v_mov_b32 v{VB1}, 0
    v_lshlrev_b32 v{VT1}, 1, v0
    s_lshl_b32 s28, s28, 7
    buffer_load_short_d16_hi v{VB1}, v{VT1}, s[16:19], s28 offen
    """)
    for k in range(20): A(f"v_mov_b32 v{EA+k}, 0")
    for k in range(12): A(f"v_add_u32 v{HI+k}, 0x10000, v{VXR+k}")

def c_reads(g):
    kc, i = divmod(g, 4)
    st = kc % NS
    b = (VXR if st < 2 else HI); off = (st % 2) * STAGE
    sl = g % NR
    tr = lambda ft, sec: f"ds_read_b64_tr_b16 v[{W1+8*sl+4*ft+2*sec}:{W1+8*sl+4*ft+2*sec+1}], v{b+4+2*i+ft} offset:{off + sec*1024}"
    xr = lambda tt: f"ds_read_b128 v[{X1+8*sl+4*tt}:{X1+8*sl+4*tt+3}], v{b+i} offset:{off + tt*4096}"
    return [xr(0), tr(0, 0), tr(0, 1), tr(1, 0), tr(1, 1), xr(1)]

def gen_c1(A):
    VT = VT1
    dma_setup(A)
    A(f"""
    s_and_b32 s34, s20, 1
    s_lshr_b32 s35, s20, 1
    s_waitcnt lgkmcnt(0)
    s_add_u32 s42, s42, {WSOFF}
    s_addc_u32 s43, s43, 0
    s_load_dword s76, s[42:43], {WS_EPOCH}
    """)
    vm = VMQ()
    srd(A, 4, "s40", "s41", 2 << 20)
    srd(A, 8, "s44", "s45", 512 * 3584)
    srd(A, 12, "s42", "s43", WS_USED)
    for kc in range(3):
        for part in range(4): A.extend(g1_dma(kc, part))
        vm.note(kc, 8)
        if kc == 0:
            c_setup(A); vm.note("b1")
        if kc == env("PFAT", 1) and OPT_PF: coop_prefetch(A, VT); vm.note("pf", 2)
    A.extend(ya_prefill(VT, VT + 1, PK)); vm.note(2, 2)
    hpre = [f"buffer_store_dwordx4 v[{PK}:{PK+3}], v{VHO1}, s[12:15], s{32 if n < 4 else 38} offen offset:{(n%4)*1024} {SC}" for n in range(8)]
    HPRE = env("HPRE", 0)
    if HPRE == 1: A.extend(hpre); vm.note(2, 8)
    w2_setup(A, VT)
    mpf = ["s_lshl_b32 s28, s2, 2", "s_add_u32 s28, s28, s39", "s_lshl_b32 s28, s28, 11", f"v_lshlrev_b32 v{VT+2}, 7, v0", "s_mov_b64 exec, 0xffff",
           f"buffer_load_dword v{VDUM}, v{VT+2}, s[16:19], s28 offen", "s_mov_b64 exec, -1"]
    MPG = env("MPG", 9)
    if MPG == -1: A.extend(mpf); vm.note(2)
    A.st("pre")
    A(vm.wait(0)[0] + " lgkmcnt(0)"); A("s_barrier")
    A.st("b0")
    T = GT
    lq = LQ(A)
    lq.emit(c_reads(0), 0); lq.emit(c_reads(1), 1)
    mktag(A)
    def big(g, tt, ft):
        sl = g % NR; c = ACC1 + 32 * tt + 16 * ft
        cin = "0" if g == 0 else f"v[{c}:{c+15}]"
        return f"v_mfma_f32_32x32x16_bf16 v[{c}:{c+15}], v[{W1+8*sl+4*ft}:{W1+8*sl+4*ft+3}], v[{X1+8*sl+4*tt}:{X1+8*sl+4*tt+3}], {cin}"
    for g in range(32):
        kc, i = divmod(g, 4); w = W1 + 8 * (g % NR)
        m = lambda d, b_, z: f"v_mfma_f32_4x4x4_16b_bf16 v[{d}:{d+3}], v[{VONE}:{VONE+1}], v[{b_}:{b_+1}], " + ("0" if z else f"v[{d}:{d+3}]")
        o1, o2 = [], []
        if i < 2 and False: pass
        if i in (0, 2) and g < 28 or g in (28, 29):
            o1 = [m(CS, w, g == 0), m(CS + 4, w + 4, g == 0)]; o2 = [m(CS, w + 2, False), m(CS + 4, w + 6, False)]
        A.st(f"g{g}")
        gn = g + 2
        rd = c_reads(PERM(gn))[:] if gn < 32 else []
        rd = c_reads_slot(gn) if gn < 32 else []
        x1, x2 = [], []
        if i == 2 and kc + 1 < 8: x1 += vm.wait(kc + 1) + ["s_barrier"]
        if g == 30:
            x1 += [f"v_permlane32_swap_b32 v{CS}, v{CS+4}", f"v_add_f32 v{CS}, v{CS}, v{CS+4}", f"ds_write_b32 v{VCW}, v{CS}",
                   "s_waitcnt lgkmcnt(0)", "s_barrier", f"ds_read_b32 v{T+2}, v{VCR}"]
        if g == STATG: x2 += [f"buffer_load_dwordx2 v[{SG}:{SG+1}], v{VSO}, s[12:15], s36 offen {SC}"]; vm.note("sg")
        if g == MPG: x2 += mpf; vm.note("mpf")
        WM = env("WARM", 0)
        if WM and g == env("WARMG", 10):
            x2 += [f"v_lshlrev_b32 v{VT+2}, 20, v0", f"v_lshlrev_b32 v{VT+3}, 7, v0"]
            if WM & 1: x2 += ["s_mov_b64 exec, 0x3fff", f"buffer_load_dword v{VDUM}, v{VT+2}, s[12:15], 0 offen"]; vm.note("wm")
            if WM & 2: x2 += ["s_mov_b64 exec, 3", f"global_load_dword v{VDUM}, v{VT+2}, s[52:53]"]; vm.note("wm")
            if WM & 4: x2 += ["s_mov_b64 exec, 0xff", f"global_load_dword v{VDUM}, v{VT+3}, s[50:51]"]; vm.note("wm")
            x2 += ["s_mov_b64 exec, -1"]
        if HPRE >= 10 and HPRE <= g < HPRE + 8: x2 += [hpre[g - HPRE]]; vm.note("hp")
        if HPRE == 2 and g == 11:
            x2 += [f"v_and_b32 v{VT+2}, 31, v0", f"v_lshlrev_b32 v{VT+2}, 7, v{VT+2}", "s_mov_b64 exec, 0xffffffff", "s_mov_b32 exec_hi, 0",
                   f"buffer_load_dword v{VDUM}, v{VT+2}, s[12:15], s32 offen", f"buffer_load_dword v{VDUM}, v{VT+2}, s[12:15], s38 offen", "s_mov_b64 exec, -1"]; vm.note("hp", 2)
        if g in PFG:
            n_ = 128 // len(PFG); k_ = PFG.index(g)
            x2 += ["s_lshl_b32 s28, s24, 2", "s_add_u32 s28, s28, s39", "s_lshl_b32 s28, s28, 14", f"s_add_u32 s28, s28, {k_*n_*128}", f"v_lshlrev_b32 v{VT+2}, 7, v0"]
            if n_ < 64: x2 += [f"s_mov_b32 exec_lo, {hex((1 << n_) - 1)}", "s_mov_b32 exec_hi, 0"]
            x2 += [f"buffer_load_dword v{VDUM}, v{VT+2}, s[16:19], s28 offen", "s_mov_b64 exec, -1"]; vm.note("l2")
        if g == env("YFG", 8) - 1: x2 += yflag_off()
        if g == env("YFG", 8): x2 += wave_flag("s28", VT); vm.note("yf")
        lq.wait(g)
        A(big(g, 0, 0))
        if i == 2: A.st(f"pb{kc+1}")
        lq.emit(x1)
        if i == 2: A.st(f"ab{kc+1}")
        lq.emit(rd[:2], gn)
        A(big(g, 0, 1)); lq.emit(rd[2:4], gn); A.extend(o1)
        A(big(g, 1, 0)); lq.emit(rd[4:], gn)
        A(big(g, 1, 1)); lq.emit(x2); A.extend(o2)
    A.st("loop")
    A.extend(vm.wait("sg", "b1"))
    A(f"""
    v_cmp_ne_u32 vcc, s76, v{SG+1}
    s_cbranch_vccz L_g1_sok
    s_mov_b32 s30, 0
    L_g1_spoll:
    buffer_load_dwordx2 v[{SG}:{SG+1}], v{VSO}, s[12:15], s36 offen {SC}
    s_add_u32 s30, s30, 1
    s_waitcnt vmcnt(0)
    v_cmp_ne_u32 vcc, s76, v{SG+1}
    s_cmp_gt_u32 s30, {SPIN}
    s_cbranch_scc1 L_g1_sok
    s_cbranch_vccnz L_g1_spoll
    L_g1_sok:
    v_mov_b32 v{SG+1}, v{SG}
    s_mov_b32 s28, -1
    s_mov_b32 s29, 0
    v_permlane32_swap_b32 v{SG}, v{SG+1}
    s_waitcnt lgkmcnt(0)
    v_add_f32 v{T+2}, v{T+2}, v{CS}
    """)
    l1 = []
    for tt in range(2):
        l1 += [f"v_and_b32 v{VS+tt}, 0xffff0000, v{SG+tt}", f"v_and_b32 v{T+8+tt}, 0xffff, v{SG+tt}", f"v_rcp_f32 v{T+6+tt}, v{VS+tt}",
               f"v_lshl_or_b32 v{T+8+tt}, v{T+8+tt}, 16, v{T+8+tt}",
               f"v_cndmask_b32 v{EB+8*tt}, 0, v{T+8+tt}, s[28:29]", f"v_cndmask_b32 v{EB+8*tt+1}, 0, v{SG+tt}, s[28:29]",
               f"v_cndmask_b32 v{EB+8*tt+4}, v{T+8+tt}, 0, s[28:29]", f"v_cndmask_b32 v{EB+8*tt+5}, v{SG+tt}, 0, s[28:29]"]
    l2 = [f"v_and_b32 v{T+3}, 0xffff0000, v{T+2}", f"v_sub_f32 v{T+3}, v{T+2}, v{T+3}", f"v_lshrrev_b32 v{T+2}, 16, v{T+2}",
          f"v_and_b32 v{T+4}, 0xffff0000, v{T+3}", f"v_sub_f32 v{T+5}, v{T+3}, v{T+4}", f"v_or_b32 v{EA}, v{T+2}, v{T+4}",
          f"v_lshrrev_b32 v{T+5}, 16, v{T+5}", f"v_or_b32 v{EA+1}, v{T+5}, v{VB1}"]
    A.extend(zipm(l1, l2))
    l3 = []
    for tt in range(2):
        l3.append([f"v_fma_f32 v{T+10+tt}, -v{VS+tt}, v{T+6+tt}, 1.0", f"v_fma_f32 v{T+6+tt}, v{T+10+tt}, v{T+6+tt}, v{T+6+tt}",
                   f"v_mul_f32 v{K1r+tt}, {hex(f2u(GC1))}, v{T+6+tt}", f"v_mul_f32 v{T+10+tt}, v{T+6+tt}, v{T+6+tt}",
                   f"v_mul_f32 v{K3r+tt}, {hex(f2u(GC2))}, v{T+6+tt}", f"v_mul_f32 v{K3r+tt}, v{K3r+tt}, v{T+10+tt}"])
    l3 = zipm(*l3)
    for tt in range(2):
        for ft in range(2):
            c = ACC1 + 32 * tt + 16 * ft
            A(f"v_mfma_f32_32x32x16_bf16 v[{c}:{c+15}], v[{EA}:{EA+3}], v[{EB+8*tt+4*ft}:{EB+8*tt+4*ft+3}], v[{c}:{c+15}]")
            A.extend(l3[3 * (2 * tt + ft):3 * (2 * tt + ft) + 3])
    A.st("gstart")
    for n in range(8):
        tt = n // 4
        c0 = ACC1 + 8 * n
        t0 = GT + 8 * (n % 2)
        if GPK:
            P = lambda x: f"v[{x}:{x+1}]"
            sel = f"op_sel:[0,{tt},{tt}] op_sel_hi:[1,{tt},{tt}]"
            for k in range(0, 8, 2): A(f"v_pk_mul_f32 {P(t0+k)}, {P(c0+k)}, {P(c0+k)}")
            for k in range(0, 8, 2): A(f"v_pk_fma_f32 {P(t0+k)}, {P(t0+k)}, {P(K3r)}, {P(K1r)} {sel}")
            for k in range(0, 8, 2): A(f"v_pk_mul_f32 {P(t0+k)}, {P(t0+k)}, {P(c0+k)}")
            for k in range(8): A(f"v_exp_f32 v{t0+k}, v{t0+k}")
            for k in range(0, 8, 2): A(f"v_pk_fma_f32 {P(t0+k)}, {P(t0+k)}, {P(VS)}, {P(VS)} {sel}")
            for k in range(8): A(f"v_rcp_f32 v{t0+k}, v{t0+k}")
            for k in range(0, 8, 2): A(f"v_pk_mul_f32 {P(c0+k)}, {P(c0+k)}, {P(t0+k)}")
        else:
            for k in range(8): A(f"v_mul_f32 v{t0+k}, v{c0+k}, v{c0+k}")
            for k in range(8): A(f"v_fma_f32 v{t0+k}, v{t0+k}, v{K3r+tt}, v{K1r+tt}")
            for k in range(8): A(f"v_mul_f32 v{t0+k}, v{t0+k}, v{c0+k}")
            for k in range(8): A(f"v_exp_f32 v{t0+k}, v{t0+k}")
            for k in range(8): A(f"v_fma_f32 v{t0+k}, v{t0+k}, v{VS+tt}, v{VS+tt}")
            for k in range(8): A(f"v_rcp_f32 v{t0+k}, v{t0+k}")
            for k in range(8): A(f"v_mul_f32 v{c0+k}, v{c0+k}, v{t0+k}")
        pk = PK + 4 * (n % 2)
        for k in range(4): A(f"v_cvt_pk_bf16_f32 v{pk+k}, v{c0+2*k}, v{c0+2*k+1}")
        A(f"buffer_store_dwordx4 v[{pk}:{pk+3}], v{VHO1}, s[12:15], s{32 if tt == 0 else 38} offen offset:{(n%4)*1024} {SCH}")
        if env("DBL", 0): A(f"buffer_store_dwordx4 v[{pk}:{pk+3}], v{VHO1}, s[12:15], s{32 if tt == 0 else 38} offen offset:{(n%4)*1024}")
    A.st("gend")
    A("s_mov_b32 s37, 0")
    A("s_branch L_gemm2")

def PERM(g): return g
def c_reads_slot(g):
    if g < 28: return c_reads(g)
    i = [0, 2, 1, 3][g - 28]
    r = c_reads(28 + i)
    kc = 7; st = kc % NS; b = HI; off = (st % 2) * STAGE; sl = g % NR
    tr = lambda ft, sec: f"ds_read_b64_tr_b16 v[{W1+8*sl+4*ft+2*sec}:{W1+8*sl+4*ft+2*sec+1}], v{b+4+2*i+ft} offset:{off + sec*1024}"
    xr = lambda tt: f"ds_read_b128 v[{X1+8*sl+4*tt}:{X1+8*sl+4*tt+3}], v{b+i} offset:{off + tt*4096}"
    return [xr(0), tr(0, 0), tr(0, 1), tr(1, 0), tr(1, 1), xr(1)]

def yflag_off():
    return ["s_lshr_b32 s28, s39, 1", "s_lshl_b32 s29, s2, 1", "s_add_u32 s28, s28, s29", "s_and_b32 s29, s39, 1", "s_lshl_b32 s29, s29, 9",
            "s_add_u32 s28, s28, s29", "s_lshl_b32 s28, s28, 7", f"s_add_u32 s28, s28, {WS_FLY}"]
def ring_ready(vt):
    return ["s_lshl_b32 s28, s39, 2", f"s_add_u32 s28, s28, {L_FLAG+16}", f"v_mov_b32 v{vt}, s28", f"v_mov_b32 v{vt+1}, 1", f"ds_write_b32 v{vt}, v{vt+1}"]

def lds_wait(A, name, vaddr, off, vt):
    A(f"""
    {name}:
    ds_read_b32 v{vt}, v{vaddr} offset:{off}
    s_waitcnt lgkmcnt(0)
    v_readfirstlane_b32 s28, v{vt}
    s_cmp_eq_u32 s28, 1
    s_cbranch_scc0 {name}
    """)

def gen_h1(A):
    VT = VT1
    vm = VMQ()
    param_loads(A, VT); vm.note("prm", 8)
    A(f"s_add_u32 s42, s42, {WSOFF}\ns_addc_u32 s43, s43, 0\ns_load_dword s76, s[42:43], {WS_EPOCH}")
    srd(A, 4, "s40", "s41", 2 << 20)
    srd(A, 8, "s44", "s45", 512 * 3584)
    srd(A, 12, "s42", "s43", WS_USED)
    if env("CPF", 1):
        A(f"""
        s_getpc_b64 s[28:29]
        L_pc0:
        s_sub_u32 s28, s28, L_pc0-{KNAME}
        s_subb_u32 s29, s29, 0
        s_lshl_b32 s30, s39, 13
        v_lshl_add_u32 v{VT+2}, v0, 7, s30
        v_min_u32 v{VT+2}, L_exit-{KNAME}, v{VT+2}
        s_cmp_lt_u32 s24, {env("CPFN", 4)}
        s_cselect_b64 exec, -1, 1
        global_load_dword v{VDUM}, v{VT+2}, s[28:29]
        s_mov_b64 exec, -1
        """)
    dma_setup(A)
    w2_setup(A, VT)
    if env("MPF", 0):
        A(f"""
        s_lshl_b32 s28, s2, 2
        s_add_u32 s28, s28, s39
        s_lshl_b32 s28, s28, 11
        v_lshlrev_b32 v{VT+2}, 7, v0
        s_mov_b64 exec, 0xffff
        buffer_load_dword v{VDUM}, v{VT+2}, s[16:19], s28 offen
        s_mov_b64 exec, -1
        """)
    if env("TLBW", 0):
        A(f"""
        v_lshlrev_b32 v{VT+2}, {env("TLBS", 20)}, v0
        s_mov_b64 exec, {hex((1 << (WS_USED >> env("TLBS", 20))) - 1)}
        buffer_load_dword v{VDUM}, v{VT+2}, s[12:15], 0 offen
        s_mov_b64 exec, 3
        buffer_load_dword v{VDUM}, v{VT+2}, s[16:19], 0 offen
        global_load_dword v{VDUM}, v{VT+2}, s[52:53]
        s_mov_b64 exec, 1
        global_load_dword v{VDUM}, v{VT+2}, s[50:51]
        s_mov_b64 exec, -1
        """)
        vm.note("tlb", 4)
    kg_waddr(A, L_VS, KWA); A.extend(kg_raddr(L_VS, KRA, VT))
    for a_ in flag_zero(): A.extend(a_)
    A.st("pre")
    A.extend(vm.wait("prm"))
    A.st("prm")
    A.label("L_kgen_v")
    gen_kgen_v(A)
    A("s_cmp_eq_u32 s79, 7")
    A("s_cbranch_scc1 L_ln_H2")
    A.st("kg")
    A("s_waitcnt lgkmcnt(0)"); A("s_barrier")
    A.st("b0")
    mktag(A)
    UV, UW = kgen_u_lists(0)
    wts = [2, 3, 3, 3, 3, 3]; cum = 0
    for k in range(8):
        if k <= 5:
            sl_ = UV[len(UV) * cum // sum(wts):len(UV) * (cum + wts[k]) // sum(wts)]; cum += wts[k]
            if k >= 1:
                pcs = []
                for part in range(4):
                    dd = g1_dma(k + 2, part); pcs += [dd[:3], dd[3:]]
                vm.note(k + 2, 8)
                for q, dd in enumerate(pcs):
                    A.extend(dd); A.extend(sl_[len(sl_) * q // 8:len(sl_) * (q + 1) // 8])
            else: A.extend(sl_)
        else:
            for sl in range(4 * (k - 6), 4 * (k - 6) + 4): A.extend(wdma(sl, sl))
            vm.note("f", 8)
        A.st(f"pi{k+1}")
        A.extend(vm.wait(k + 1))
        A("s_barrier")
        A.st(f"ab{k+1}")
    A.st("loop")
    FE = env("FE", 1)
    if FE:
        for sl in range(8, 12): A.extend(wdma(sl, sl))
    A.label("L_h_tail")
    A(f"s_setprio {env('PRIOX', 1)}")
    lq = LQ(A)
    ar_, mm_ = kg_atoms_m()
    lq.emit(UW)
    for a_ in ar_ + mm_ + kg_atoms_x1(): lq.emit(a_)
    A(f"""
    s_lshl_b32 s28, s39, 2
    s_add_u32 s28, s28, {L_FLAG}
    v_mov_b32 v{VT}, s28
    v_mov_b32 v{VT+1}, 1
    ds_write_b32 v{VT}, v{VT+1} offset:80
    v_xor_b32 v{VT+2}, 4, v{VT}
    """)
    lds_wait(A, "L_h_x1", VT + 2, 80, 32)
    lq.q = []
    for a_ in kg_atoms_x2("g"): lq.emit(a_)
    A("s_setprio 0")
    A.extend(lnflag_load(VT))
    A("s_waitcnt lgkmcnt(0)")
    A.st("ku")
    A(f"v_lshlrev_b32 v18, 4, v0")
    A("s_waitcnt vmcnt(0)")
    u_try(A, 18)
    if not FE:
        A("s_cmp_eq_u32 s79, 7")
        A("s_cbranch_scc1 L_h_nof")
        for sl in range(8, 12): A.extend(wdma(sl, sl))
        A("s_waitcnt vmcnt(0)")
        A.label("L_h_nof")
    A.extend(ring_ready(VT))
    A.st("gend")
    A("s_branch L_conv")
    A.label("L_ln_H2")
    A("s_nop 0 ; RESETSB")
    A.extend(UV)
    A("s_branch L_h_tail")

def gen_gemm1(A):
    A(f"""
    s_load_dwordx8 s[56:63], s[0:1], {KA['A_re']}
    s_load_dwordx8 s[64:71], s[0:1], {KA['C_re']}
    """)
    A("s_cmp_ge_u32 s20, 4")
    A("s_cbranch_scc1 L_g1_H")
    gen_c1(A)
    A.label("L_g1_H")
    A("s_nop 0 ; RESETSB")
    gen_h1(A)


def gen_ln(A):
    Q, R, O, T = 16, 48, 80, 112
    A(f"""
    v_lshrrev_b32 v1, 3, v0
    v_and_b32 v2, 7, v0
    v_lshlrev_b32 v3, 10, v1
    v_lshl_add_u32 v3, v2, 4, v3
    v_lshlrev_b32 v4, 4, v0
    s_lshl_b32 s25, s21, 6
    s_lshl_b32 s28, s20, 3
    s_add_u32 s25, s25, s28
    s_lshl_b32 s36, s25, 3
    s_add_u32 s36, s36, {WS_STAT}
    s_lshl_b32 s25, s25, 10
    s_add_u32 s26, s25, 4096
    s_waitcnt lgkmcnt(0)
    s_add_u32 s42, s42, {WSOFF}
    s_addc_u32 s43, s43, 0
    s_load_dword s76, s[42:43], {WS_EPOCH}
    """)
    srd(A, 4, "s40", "s41", 2 << 20)
    for i in range(8): A(f"buffer_load_dwordx4 v[{Q+4*i}:{Q+4*i+3}], v3, s[4:7], s25 offen offset:{128*i}")
    srd(A, 12, "s42", "s43", WS_USED)
    A("s_waitcnt lgkmcnt(0)")
    mktag(A)
    for t in range(8): A(f"buffer_load_dwordx4 v[{R+4*t}:{R+4*t+3}], v4, s[4:7], s{25 + t//4} offen offset:{(t%4)*1024}")
    LTW = 4 if env("LTW", 1) else 0
    if LTW:
        A(f"""
        v_lshlrev_b32 v{T}, 20, v0
        s_mov_b64 exec, 0x3fff
        buffer_load_dword v{VDUM}, v{T}, s[12:15], 0 offen
        s_mov_b64 exec, 3
        global_load_dword v{VDUM}, v{T}, s[52:53]
        global_load_dword v{VDUM}, v{T}, s[48:49]
        s_mov_b64 exec, 1
        global_load_dword v{VDUM}, v{T}, s[50:51]
        s_mov_b64 exec, -1
        """)
    A(f"""
    v_mov_b32 v5, 0x3f803f80
    v_mov_b32 v6, 0
    v_mov_b32 v7, 0
    v_mov_b32 v12, 0
    v_mov_b32 v13, 0
    v_mov_b32 v14, 0x00003f80
    v_mov_b32 v15, 0x3f800000
    v_lshlrev_b32 v8, 3, v1
    v_mov_b32 v11, s76
    """)
    for i in range(8):
        A(f"s_waitcnt vmcnt({8 + LTW + 7 - i})")
        for k in range(4):
            r = Q + 4 * i + k
            A(f"v_dot2_f32_bf16 v{6 if k%2==0 else 12}, v{r}, v5, v{6 if k%2==0 else 12}")
            A(f"v_dot2_f32_bf16 v{7 if k%2==0 else 13}, v{r}, v{r}, v{7 if k%2==0 else 13}")
    A(f"""
    v_add_f32 v6, v6, v12
    v_add_f32 v7, v7, v13
    v_add_f32_dpp v6, v6, v6 quad_perm:[1,0,3,2] row_mask:0xf bank_mask:0xf
    v_add_f32_dpp v7, v7, v7 quad_perm:[1,0,3,2] row_mask:0xf bank_mask:0xf
    v_add_f32_dpp v6, v6, v6 quad_perm:[2,3,0,1] row_mask:0xf bank_mask:0xf
    v_add_f32_dpp v7, v7, v7 quad_perm:[2,3,0,1] row_mask:0xf bank_mask:0xf
    v_add_f32_dpp v6, v6, v6 row_half_mirror row_mask:0xf bank_mask:0xf
    v_add_f32_dpp v7, v7, v7 row_half_mirror row_mask:0xf bank_mask:0xf
    v_mul_f32 v12, {hex(f2u(1/512))}, v6
    v_mul_f32 v13, {hex(f2u(1/512))}, v7
    v_fma_f32 v13, -v12, v12, v13
    v_max_f32 v13, 0, v13
    """)
    round_bf16(A, 13)
    A(f"v_add_f32 v13, {hex(f2u(1e-5))}, v13")
    round_bf16(A, 13)
    A(f"""
    v_sqrt_f32 v13, v13
    v_cvt_pk_bf16_f32 v10, -v12, v13
    s_mov_b32 exec_lo, 0x01010101
    s_mov_b32 exec_hi, 0x01010101
    buffer_store_dwordx2 v[10:11], v8, s[12:15], s36 offen {SC}
    s_mov_b64 exec, -1
    """)
    A.st("b0")
    LPF = env("LPF", 0)
    if LPF:
        srd(A, 16, "s48", "s49", 1792 * 1024)
        A(f"""
        s_lshl_b32 s28, s21, 3
        s_add_u32 s28, s28, s20
        s_mul_i32 s28, s28, {56*128}
        v_min_u32 v{T+2}, 55, v0
        v_lshlrev_b32 v{T+2}, 7, v{T+2}
        buffer_load_dword v{VDUM}, v{T+2}, s[16:19], s28 offen
        """)
    A(f"""
    v_and_b32 v13, 0xffff0000, v10
    v_lshlrev_b32 v12, 16, v10
    v_rcp_f32 v5, v13
    s_nop 0
    v_fma_f32 v13, -v13, v5, 1.0
    v_fma_f32 v13, v13, v5, v5
    """)
    for t in range(8):
        A(f"v_readlane_b32 s{56+t}, v12, {8*t}")
        A(f"v_readlane_b32 s{64+t}, v13, {8*t}")
    A(f"""
    v_xor_b32 v5, s20, v2
    v_lshlrev_b32 v6, 10, v0
    v_lshl_add_u32 v6, v5, 4, v6
    v_add_u32 v6, 98304, v6
    s_waitcnt vmcnt({1 + LPF + LTW})
    """)

    for tp in range(4):
        t0, t1 = 2 * tp, 2 * tp + 1
        for k in range(4):
            for h in range(2):
                e = 2 * k + h
                A(f"v_dot2_f32_bf16 v{T+2*e}, v{R+4*t0+k}, v{14+h}, s{56+t0}")
                A(f"v_dot2_f32_bf16 v{T+2*e+1}, v{R+4*t1+k}, v{14+h}, s{56+t1}")
        for e in range(8): A(f"v_cvt_pk_bf16_f32 v{T+2*e+1}, v{T+2*e}, v{T+2*e+1}")
        for e in range(8):
            A(f"v_lshlrev_b32 v{T+2*e}, 16, v{T+2*e+1}")
            A(f"v_and_b32 v{T+2*e+1}, 0xffff0000, v{T+2*e+1}")
        for e in range(8): A(f"v_pk_mul_f32 v[{T+2*e}:{T+2*e+1}], v[{T+2*e}:{T+2*e+1}], s[{64+t0}:{64+t1}]")
        for e in range(8): A(f"v_cvt_pk_bf16_f32 v{O+4*e+tp}, v{T+2*e}, v{T+2*e+1}")
        if tp == env("LFP", 3):
            w2_setup(A, 28)
            LF = env("LF", 0)
            A("s_cmp_ge_u32 s20, 4")
            A("s_cbranch_scc1 L_ln_nofill")
            for sl in range(LF): A.extend(wdma(sl, sl))
            A.label("L_ln_nofill")
    for e in range(8): A(f"ds_write_b128 v6, v[{O+4*e}:{O+4*e+3}] offset:{e*128}")
    A(f"""
    s_lshl_b32 s28, s20, 13
    v_lshlrev_b32 v6, 7, v1
    v_lshl_add_u32 v6, v2, 4, v6
    v_add_u32 v6, s28, v6
    v_add_u32 v6, 98304, v6
    v_lshlrev_b32 v7, 12, v1
    v_lshl_add_u32 v7, v2, 4, v7
    s_load_dwordx8 s[56:63], s[0:1], {KA['A_re']}
    s_load_dwordx8 s[64:71], s[0:1], {KA['C_re']}
    s_lshl_b32 s26, s20, 18
    s_lshl_b32 s28, s21, 7
    s_add_u32 s26, s26, s28
    s_add_u32 s26, s26, {WS_XNT}
    s_lshl_b32 s33, s21, 7
    s_add_u32 s33, s33, {WS_FLL}
    """)
    for i in range(8): A(f"v_xor_b32 v{8+i}, {16*i}, v6")
    A.st("g8")
    param_loads(A, T)
    A.extend(ya_prefill(T + 2, T + 3, T + 4))
    A("s_barrier")
    for i in range(8): A(f"ds_read_b128 v[{R+4*i}:{R+4*i+3}], v{8+i} offset:{i*1024}")
    for i in range(8):
        A(f"s_waitcnt lgkmcnt({7-i})")
        A(f"s_add_u32 s25, s26, {i*32768}")
        A(f"buffer_store_dwordx4 v[{R+4*i}:{R+4*i+3}], v7, s[12:15], s25 offen {SC}")
    A.st("loop")
    A("s_waitcnt vmcnt(0)")
    A("s_barrier")
    publish_flag(A, "s33", 28, "l", 7)
    A.st("gstart")
    A(f"s_mov_b32 s33, {WS_DUMMY}")
    srd(A, 16, "s48", "s49", 1792 * 1024)
    for a_ in flag_zero(): A.extend(a_)
    A("s_waitcnt lgkmcnt(0)")
    A("s_barrier")
    A("s_cmp_lt_u32 s20, 4")
    A("s_cbranch_scc1 L_ln_C")
    A.extend(yflag_off()); A.extend(wave_flag("s28", 28))
    kg_waddr(A, L_VS, KWA); A.extend(kg_raddr(L_VS, KRA, 28))
    A("s_branch L_kgen_v")
    A.label("L_ln_C")
    for sl in range(LF, 12): A.extend(wdma(sl, sl))
    A("s_waitcnt vmcnt(0)")
    for sl in range(12): A.extend(w2tr(sl, sl))
    A("s_waitcnt lgkmcnt(0)")
    for sl in range(12): A.extend(wdma(sl, 12 + sl))
    A(f"""
    v_mov_b32 v28, {L_FLAG+16}
    L_ln_cw:
    ds_read_b128 v[32:35], v28
    s_waitcnt lgkmcnt(0)
    v_and_b32 v32, v32, v33
    v_and_b32 v34, v34, v35
    v_and_b32 v32, v32, v34
    s_nop 0
    v_readfirstlane_b32 s28, v32
    s_cmp_eq_u32 s28, 1
    s_cbranch_scc0 L_ln_cw
    """)
    A(f"""
    s_lshl_b32 s28, s20, 8
    s_add_u32 s28, s28, s2
    s_cmp_lg_u32 s28, 255
    s_cbranch_scc1 L_nobump
    v_lshlrev_b32 v28, 8, v0
    s_mov_b32 s30, 0
    L_bump_poll:
    """)
    for k in range(4):
        A(f"s_mov_b32 s28, {WS_FLY + k*16384}")
        A(f"buffer_load_dword v{32+k}, v28, s[12:15], s28 offen {SC}")
    A(f"""
    s_add_u32 s30, s30, 1
    s_waitcnt vmcnt(0)
    v_xor_b32 v32, s76, v32
    v_xor_b32 v33, s76, v33
    v_xor_b32 v34, s76, v34
    v_xor_b32 v35, s76, v35
    v_or3_b32 v32, v32, v33, v34
    v_or_b32 v32, v32, v35
    v_cmp_ne_u32 vcc, 0, v32
    s_cmp_gt_u32 s30, {SPIN}
    s_cbranch_scc1 L_bump_go
    s_cbranch_vccnz L_bump_poll
    L_bump_go:
    s_mov_b32 s28, {WS_EPOCH}
    """)
    A.extend(wave_flag("s28", 28))
    A.label("L_nobump")
    A("s_mov_b32 s37, 1")
    A("s_branch L_gemm2")


def final_addr(A):
    A(f"""
    v_lshrrev_b32 v1, 3, v0
    v_and_b32 v2, 7, v0
    v_lshlrev_b32 v{VOO}, 10, v1
    v_lshl_add_u32 v{VOO}, v2, 4, v{VOO}
    v_lshlrev_b32 v3, 4, v2
    s_lshl_b32 s33, s78, 6
    s_lshl_b32 s28, s20, 3
    s_add_u32 s33, s33, s28
    s_lshl_b32 s33, s33, 10
    s_lshl_b32 s34, s79, 7
    s_add_u32 s33, s33, s34
    """)
def ep_loads():
    o = Asm()
    srd(o, 8, "s50", "s51", 1024)
    o(f"buffer_load_dwordx4 v[{VX}:{VX+3}], v{VOO}, s[4:7], s33 offen")
    o(f"buffer_load_dwordx4 v[{VB2}:{VB2+3}], v3, s[8:11], s34 offen")
    return o.lines


def gen_gemm2(A):
    VHO, VTR2, VP, VT = 13, 14, 18, 22
    ACC, W, H = ACC2, W2R, HR
    if PRIO_G: A(f"s_setprio {PRIO_G}")
    A("s_mov_b32 s22, s33")
    final_addr(A)
    for k in range(4): A(f"v_mov_b32 v{VTR2+k}, v{VTL+k}")
    A(f"""
    v_lshlrev_b32 v{VHO}, 4, v0
    v_lshrrev_b32 v{VT}, 5, v0
    v_xor_b32 v{VT}, v{VT}, v2
    v_and_b32 v{VP}, 31, v0
    v_lshlrev_b32 v{VP}, 8, v{VP}
    v_lshl_add_u32 v{VP}, v{VT}, 4, v{VP}
    v_add_u32 v{VP}, s73, v{VP}
    v_xor_b32 v{VP+1}, 32, v{VP}
    v_xor_b32 v{VP+2}, 64, v{VP}
    v_xor_b32 v{VP+3}, 96, v{VP}
    s_mul_i32 s24, s78, {2*112*1024}
    s_mul_i32 s28, s20, {28*1024}
    s_add_u32 s24, s24, s28
    s_add_u32 s24, s24, {WS_HF}
    s_add_u32 s25, s24, {112*1024}
    s_mul_i32 s26, s20, 7
    s_lshl_b32 s28, s78, 5
    s_add_u32 s26, s26, s28
    s_lshl_b32 s26, s26, 7
    s_add_u32 s26, s26, {WS_FLH}
    v_min_u32 v{VT}, 6, v2
    v_lshlrev_b32 v{VT}, 7, v{VT}
    s_lshl_b32 s28, s20, 2
    s_add_u32 s28, s28, {L_FLAG+16}
    v_mov_b32 v{ACC+4}, s28
    v_mov_b32 v{ACC+5}, 1
    ds_write_b32 v{ACC+4}, v{ACC+5} offset:16
    s_mov_b32 s30, 0
    s_cmp_eq_u32 s37, 1
    s_cbranch_scc1 L_g2_poll
    """)
    A.st("prew")
    A("s_waitcnt vmcnt(0)")
    A.extend(wave_flag("s22", ACC))
    A.st("p2bar")
    A(f"""
    L_g2_rr:
    ds_read_b32 v{ACC+5}, v{ACC+4}
    s_waitcnt lgkmcnt(0)
    v_readfirstlane_b32 s28, v{ACC+5}
    s_cmp_eq_u32 s28, 1
    s_cbranch_scc0 L_g2_rr
    """)
    for sl in range(3): A.extend(w2tr(sl, sl, VTR2))
    for sl in range(12):
        left = min(12, sl + 3) - sl - 1
        A(f"s_waitcnt lgkmcnt({4*left})")
        if sl + 3 < 12: A.extend(w2tr(sl + 3, sl + 3, VTR2))
        A.extend(wdma(sl, 12 + sl))
    A.st("s5")
    A.label("L_g2_poll")
    A(f"""
    buffer_load_dword v{ACC+2}, v{VT}, s[12:15], s26 offen {SC}
    s_add_u32 s30, s30, 1
    s_waitcnt vmcnt(0)
    v_cmp_ne_u32 vcc, s76, v{ACC+2}
    s_cmp_gt_u32 s30, {SPIN}
    s_cbranch_scc1 L_g2_go
    s_cbranch_vccnz L_g2_poll
    """)
    A.label("L_g2_go")
    vm = VMQ()
    A.st("s6")
    def hload(kp):
        sl = kp % HD
        vm.note(("h", kp), 2)
        return koff("s31", ORDER[kp]) + ["s_add_u32 s27, s31, s24", "s_add_u32 s31, s31, s25",
                                  f"buffer_load_dwordx4 v[{H+8*sl}:{H+8*sl+3}], v{VHO}, s[12:15], s27 offen {SCL}",
                                  f"buffer_load_dwordx4 v[{H+8*sl+4}:{H+8*sl+7}], v{VHO}, s[12:15], s31 offen {SCL}"]
    for kp in range(HD): A.extend(hload(kp))
    if PRIO_G: A(f"s_setprio {env('PRIOG2', 0)}")
    inring = lambda k: ORDER[k] >= 12
    wset = lambda k: (k % 2) if inring(k) else ORDER[k]
    slot_of = lambda k: (ORDER[k] - 12) % 12
    for kp in range(28):
        nx = kp + 1
        if inring(kp): A("s_waitcnt lgkmcnt(0)")
        A.extend(vm.wait(("h", kp)))
        if kp in (4, 9, 14, 19): A.st(f"k{kp}")
        b = W + 8 * wset(kp); sl = kp % HD
        mf = []
        for tb in range(2):
            for db in range(2):
                c = ACC + 32 * tb + 16 * db
                cin = "0" if kp == 0 else f"v[{c}:{c+15}]"
                mf.append(f"v_mfma_f32_32x32x16_bf16 v[{c}:{c+15}], v[{b+4*db}:{b+4*db+3}], v[{H+8*sl+4*tb}:{H+8*sl+4*tb+3}], {cin}")
        A(mf[0])
        if nx < 28 and inring(nx):
            A.extend(vm.wait(("w", ORDER[nx])))
            A.extend(w2tr(slot_of(nx), wset(nx), VTR2))
        A(mf[1])
        if kp >= 1 and kp - 1 + HD < 28: A.extend(hload(kp - 1 + HD))
        A(mf[2])
        if 12 <= ORDER[kp] < 16:
            A.extend(wdma(ORDER[kp] - 12, ORDER[kp] + 12)); vm.note(("w", ORDER[kp] + 12), 2)
        if kp == 20:
            A.extend(ep_loads()); vm.note("ep", 2)
        if kp == env("SIGK", 19):
            A(f"""
            s_lshl_b32 s28, s20, 2
            s_add_u32 s28, s28, {L_FLAG+48}
            v_mov_b32 v{VT}, s28
            v_mov_b32 v{W}, 1
            ds_write_b32 v{VT}, v{W}
            """)
        A(mf[3])
        if kp == 0: A.st("k0")
    A.st("s7")
    for tb in range(2):
        for db in range(2):
            for q in range(4):
                c = ACC + 32 * tb + 16 * db + 4 * q
                A(f"ds_write_b128 v{VP+q}, v[{c}:{c+3}] offset:{tb*32768+db*128}")
    A("s_waitcnt vmcnt(0) lgkmcnt(0)")
    A("s_branch L_final")


def gen_conv(A):
    if PRIO_C: A(f"s_setprio {PRIO_C}")
    VTA, VF = 32, 36
    VXN, VBW, VOWN, VPAR = 37, 38, 39, 40
    T0 = 42
    dsk = P0 + 7
    ACC = 48; FB = [80, 112]; TB = [144, 208]
    XN = 196
    final_addr(A)
    A(f"""
    s_mov_b32 s21, s39
    s_lshr_b32 s35, s21, 1
    s_and_b32 s36, s21, 1
    s_mul_i32 s38, s35, {CH_SIZE}
    s_add_u32 s38, s38, {L_CH}
    s_lshl_b32 s27, s21, 13
    s_add_u32 s27, s27, {L_ST2}
    s_xor_b32 s32, s27, {ST2}
    v_and_b32 v{T0}, 15, v0
    v_lshrrev_b32 v{T0+1}, 4, v0
    v_and_b32 v{T0+2}, 1, v0
    v_mul_u32_u24 v{T0+2}, {OFF_O + 2 - OFF_E}, v{T0+2}
    s_lshl_b32 s31, s36, 8
    s_sub_u32 s31, s38, s31
    s_add_u32 s29, s31, {OFF_O + 2*2032 - 512 - 192}
    v_lshlrev_b32 v{T0+3}, 1, v{T0}
    v_sub_u32 v{VTA}, s29, v{T0+3}
    v_lshl_add_u32 v{VTA}, v{T0+1}, 4, v{VTA}
    v_sub_u32 v{VTA}, v{VTA}, v{T0+2}
    v_subrev_u32 v{VTA+1}, 1024, v{VTA}
    v_subrev_u32 v{VTA+2}, 2048, v{VTA}
    v_subrev_u32 v{VTA+3}, 3072, v{VTA}
    """)
    def freads(rr, fb): return [f"ds_read_b128 v[{fb+4*m}:{fb+4*m+3}], v{VF} offset:{512*m + 64*(3-rr)}" for m in range(8)]
    def treads(rr, tb):
        o = []
        for i in range(8):
            off = 128 * (1 - (i & 1)) + 16 * (3 - rr)
            o.append(f"ds_read2_b32 v[{tb+4*i}:{tb+4*i+1}], v{VTA+i//2} offset0:{off} offset1:{off+1}")
            o.append(f"ds_read2_b32 v[{tb+4*i+2}:{tb+4*i+3}], v{VTA+i//2} offset0:{off+2} offset1:{off+3}")
        return o
    A(f"""
    v_lshl_add_u32 v19, v0, 4, s38
    s_add_u32 s29, s31, {480 - 192}
    v_lshlrev_b32 v{VF}, 5, v{T0}
    v_lshl_add_u32 v{VF}, v{T0+1}, 4, v{VF}
    v_add_u32 v{VF}, s29, v{VF}
    v_lshlrev_b32 v{VXN}, 5, v{T0}
    v_lshl_add_u32 v{VXN}, v{T0+1}, 3, v{VXN}
    v_add_u32 v{VBW}, s27, v{VXN}
    s_lshl_b32 s28, s36, 11
    s_add_u32 s28, s28, s38
    v_add_u32 v{VXN}, s28, v{VXN}
    v_lshl_add_u32 v{VOWN}, v0, 4, s27
    v_lshl_add_u32 v{VPAR}, v0, 4, s32
    v_mov_b32 v13, 1
    s_lshl_b32 s29, s21, 2
    s_add_u32 s29, s29, {L_FLAG}
    v_mov_b32 v14, s29
    s_xor_b32 s29, s29, 4
    v_mov_b32 v15, s29
    v_lshlrev_b32 v18, 4, v0
    """)
    A(f"""
    L_cv_ex:
    ds_read_b32 v16, v15 offset:64
    s_waitcnt lgkmcnt(0)
    v_readfirstlane_b32 s28, v16
    s_cmp_eq_u32 s28, 1
    s_cbranch_scc0 L_cv_ex
    """)
    A.extend(treads(0, TB[0]))
    A("s_cmp_eq_u32 s37, 1")
    A("s_cbranch_scc1 L_cv_uok")
    u_spin(A, 20, 18)
    A.label("L_cv_uok")
    A("s_waitcnt vmcnt(0)")
    for k in range(4): A(f"ds_write_b128 v19, v[{XL+4*k}:{XL+4*k+3}] offset:{512 + k*1024}")
    A.extend(freads(0, FB[0]))
    A.st("s4")
    if GPK:
        A(f"""
        v_mov_b32 v17, {L_FLAG+32}
        L_cv_gd:
        ds_read_b128 v[20:23], v17
        s_waitcnt lgkmcnt(0)
        v_and_b32 v20, v20, v21
        v_and_b32 v22, v22, v23
        v_and_b32 v20, v20, v22
        s_nop 0
        v_readfirstlane_b32 s28, v20
        s_cmp_eq_u32 s28, 1
        s_cbranch_scc0 L_cv_gd
        """)
    A.st("s5")
    for rp in range(4):
        fb, tb = FB[rp % 2], TB[rp % 2]
        mm = []
        for i in range(8):
            for j in range(i, 8):
                cin = "0" if (rp == 0 and i == 0) else f"v[{ACC+4*j}:{ACC+4*j+3}]"
                mm.append(f"v_mfma_f32_16x16x32_bf16 v[{ACC+4*j}:{ACC+4*j+3}], v[{tb+4*i}:{tb+4*i+3}], v[{fb+4*(j-i)}:{fb+4*(j-i)+3}], {cin}")
        if rp == 1: A.extend(ep_loads())
        if HT and rp == env("HTP", 3):
            A(f"""
            s_lshl_b32 s28, s24, 2
            s_add_u32 s28, s28, s21
            s_mul_i32 s28, s28, {56*128}
            s_mul_i32 s29, s23, {8*112*1024}
            s_add_u32 s28, s28, s29
            s_add_u32 s28, s28, {WS_HF}
            v_min_u32 v{T0}, 55, v0
            v_lshlrev_b32 v{T0}, 7, v{T0}
            buffer_load_dword v20, v{T0}, s[12:15], s28 offen {SC}
            """)
        if rp == 0:
            o = []
            for j in range(8): o += [f"s_waitcnt lgkmcnt({7-j})", mm[j]]
            mm = o + interleave(mm[8:], freads(1, FB[1]) + treads(1, TB[1]), 0, 22)
        else:
            A("s_waitcnt lgkmcnt(0)")
            if rp < 3: mm = interleave(mm, freads(rp + 1, FB[(rp + 1) % 2]) + treads(rp + 1, TB[(rp + 1) % 2]), 0, 26)
            else: mm = interleave(mm, [f"ds_read_b64 v[{XN+2*a_}:{XN+2*a_+1}], v{VXN} offset:{512 + a_*512}" for a_ in range(4)], 0, 8)
        A.extend(mm)
    A.st("s6")
    A("s_cmp_eq_u32 s36, 1")
    A("s_cbranch_scc1 L_cv_x1")
    for a_ in range(4): A(f"ds_write_b128 v{VOWN}, v[{ACC+16+4*a_}:{ACC+16+4*a_+3}] offset:{4096 + a_*1024}")
    A("ds_write_b32 v14, v13")
    A("s_branch L_cv_out")
    A.label("L_cv_x1")
    A("s_nop 7")
    for a_ in range(4): A(f"ds_write_b128 v{VOWN}, v[{ACC+4*a_}:{ACC+4*a_+3}] offset:{4096 + a_*1024}")
    A("ds_write_b32 v14, v13")
    for k in range(16): A(f"v_mov_b32 v{ACC+k}, v{ACC+16+k}")
    A.label("L_cv_out")
    A(f"""
    """)
    A.extend(ya_addr(41, T0))
    A(f"""
    v_mov_b32 v{T0+2}, 0xfffffffe
    s_waitcnt lgkmcnt(5)
    """)
    t = 80; z = 96; YP = 112
    for k in range(8):
        A(f"v_lshlrev_b32 v{t+2*k}, 16, v{XN+k}")
        A(f"v_and_b32 v{t+2*k+1}, 0xffff0000, v{XN+k}")
    for k in range(16): A(f"v_fma_f32 v{ACC+k}, v{t+k}, v{dsk}, v{ACC+k}")
    A.label("L_cv_ps1")
    A(f"""
    ds_read_b32 v16, v15
    s_waitcnt lgkmcnt(0)
    v_readfirstlane_b32 s28, v16
    s_cmp_eq_u32 s28, 1
    s_cbranch_scc0 L_cv_ps1
    """)
    for a_ in range(4): A(f"ds_read_b128 v[{YP+4*a_}:{YP+4*a_+3}], v{VPAR} offset:{4096 + a_*1024}")
    for a_ in range(4):
        A("s_waitcnt lgkmcnt(3)")
        for k in range(4): A(f"v_add_f32 v{ACC+4*a_+k}, v{ACC+4*a_+k}, v{YP+4*a_+k}")
        for k in range(2): A(f"v_cvt_pk_bf16_f32 v{z+2*a_+k}, v{ACC+4*a_+2*k}, v{ACC+4*a_+2*k+1}")
        for k in range(2): A(f"v_min_u32 v{z+2*a_+k}, v{z+2*a_+k}, v{T0+2}")
        A(f"ds_write_b64 v{VBW}, v[{z+2*a_}:{z+2*a_+1}] offset:{a_*512}")
    for h in range(2): A(f"ds_read_b128 v[{t+4*h}:{t+4*h+3}], v{VOWN} offset:{h*1024}")
    for h in range(2):
        A(f"s_waitcnt lgkmcnt({1-h})")
        A(f"buffer_store_dwordx4 v[{t+4*h}:{t+4*h+3}], v41, s[12:15], s{30+h} offen {SC}")
    Y = 160
    A(f"""
    v_lshlrev_b32 v{T0}, 8, v1
    v_lshl_add_u32 v{T0}, v2, 4, v{T0}
    s_lshl_b32 s28, s79, 5
    s_add_u32 s28, s28, s78
    s_lshl_b32 s28, s28, 13
    s_lshl_b32 s29, s21, 11
    s_add_u32 s28, s28, s29
    s_add_u32 s28, s28, {WS_YA}
    v_lshlrev_b32 v{T0+1}, 8, v2
    v_lshl_add_u32 v{T0+1}, v2, 4, v{T0+1}
    v_lshl_add_u32 v{T0+1}, v1, 2, v{T0+1}
    v_add_u32 v{T0+1}, s27, v{T0+1}
    v_mov_b32 v{T0+3}, 0x05040100
    v_mov_b32 v{T0+4}, 0x07060302
    s_mov_b32 s30, 0
    """)
    A.st("s7")
    A(f"""
    v_mov_b32 v17, {L_FLAG+48}
    L_cv_w19:
    s_sleep 2
    ds_read_b128 v[20:23], v17
    s_waitcnt lgkmcnt(0)
    v_and_b32 v20, v20, v21
    v_and_b32 v22, v22, v23
    v_and_b32 v20, v20, v22
    s_nop 0
    v_readfirstlane_b32 s29, v20
    s_cmp_eq_u32 s29, 1
    s_cbranch_scc0 L_cv_w19
    L_cv_poll2:
    buffer_load_dwordx4 v[{Y}:{Y+3}], v{T0}, s[12:15], s28 offen {SC}
    buffer_load_dwordx4 v[{Y+4}:{Y+7}], v{T0}, s[12:15], s28 offen offset:128 {SC}
    s_waitcnt vmcnt(0)
    v_max_u32 v{Y+8}, v{Y}, v{Y+1}
    v_max3_u32 v{Y+8}, v{Y+8}, v{Y+2}, v{Y+3}
    v_max3_u32 v{Y+8}, v{Y+8}, v{Y+4}, v{Y+5}
    v_max3_u32 v{Y+8}, v{Y+8}, v{Y+6}, v{Y+7}
    v_cmp_eq_u32 vcc, -1, v{Y+8}
    s_cbranch_vccz L_cv_got
    s_sleep 4
    s_add_u32 s30, s30, 1
    s_cmp_lt_u32 s30, {SPIN}
    s_cbranch_scc1 L_cv_poll2
    """)
    A.label("L_cv_got")
    A.st("got")
    for k in range(4):
        A(f"v_perm_b32 v{Y+8+2*k}, v{Y+4+k}, v{Y+k}, v{T0+3}")
        A(f"v_perm_b32 v{Y+9+2*k}, v{Y+4+k}, v{Y+k}, v{T0+4}")
    for i in range(8): A(f"ds_write_b32 v{T0+1}, v{Y+8+i} offset:{i*32}")
    A("s_waitcnt lgkmcnt(0)")


def gen_final(A):
    P = 32
    A(f"""
    v_lshlrev_b32 v13, 1, v2
    v_xor_b32 v13, v13, v1
    v_lshlrev_b32 v13, 4, v13
    v_lshl_add_u32 v13, v1, 8, v13
    s_and_b32 s28, s20, 3
    s_lshl_b32 s28, s28, 11
    s_lshr_b32 s29, s20, 2
    s_lshl_b32 s29, s29, 15
    s_add_u32 s28, s28, s29
    v_add_u32 v13, s28, v13
    v_xor_b32 v14, 16, v13
    v_lshrrev_b32 v15, 1, v2
    v_lshlrev_b32 v15, 13, v15
    v_lshl_add_u32 v15, v1, 5, v15
    v_and_b32 v16, 1, v2
    v_lshl_add_u32 v15, v16, 4, v15
    s_mul_i32 s28, s20, 272
    s_add_u32 s28, s28, {L_ST2}
    v_add_u32 v15, s28, v15
    """)
    srd(A, 8, "s52", "s53", 2 << 20)
    X, Yv, B = 64, 72, 80
    def unpack(d, s_):
        for k in range(4):
            A(f"v_lshlrev_b32 v{d+2*k}, 16, v{s_+k}")
            A(f"v_and_b32 v{d+2*k+1}, 0xffff0000, v{s_+k}")
    def pack(d, s_):
        for k in range(4): A(f"v_cvt_pk_bf16_f32 v{d+k}, v{s_+2*k}, v{s_+2*k+1}")
    unpack(X, VX); unpack(B, VB2)
    A("s_barrier")
    A.st("fin")
    A(f"ds_read_b128 v[16:19], v15")
    for w in range(4):
        A(f"ds_read_b128 v[{P+8*w}:{P+8*w+3}], v13 offset:{w*8192}")
        A(f"ds_read_b128 v[{P+8*w+4}:{P+8*w+7}], v14 offset:{w*8192}")
    A("s_waitcnt lgkmcnt(8)")
    unpack(Yv, 16)
    for k in range(8): A(f"v_add_f32 v{X+k}, v{X+k}, v{Yv+k}")
    pack(20, X); unpack(X, 20)
    A("s_waitcnt lgkmcnt(4)")
    for k in range(8): A(f"v_add_f32 v{P+k}, v{P+k}, v{P+8+k}")
    A("s_waitcnt lgkmcnt(0)")
    for k in range(8): A(f"v_add_f32 v{P+16+k}, v{P+16+k}, v{P+24+k}")
    for k in range(8): A(f"v_add_f32 v{P+k}, v{P+k}, v{P+16+k}")
    pack(24, P); unpack(P, 24)
    for k in range(8): A(f"v_add_f32 v{P+k}, v{P+k}, v{B+k}")
    pack(24, P); unpack(P, 24)
    for k in range(8): A(f"v_add_f32 v{P+k}, v{P+k}, v{X+k}")
    pack(28, P)
    A(f"buffer_store_dwordx4 v[28:31], v{VOO}, s[8:11], s33 offen {os.environ.get('SCO', '')}")
    if STAMPS: A("s_waitcnt vmcnt(0)")
    A.stamp_flush(0)
    A("s_endpgm")


def gen():
    A = Asm()
    A.stamp(0, True); A.stamp(1)
    for k in range(2, 9): A.stamp(k)
    A(f"""
    s_cmp_ge_u32 s2, 256
    s_cbranch_scc1 L_exit
    s_load_dwordx2 s[40:41], s[0:1], {KA['u']}
    s_load_dwordx8 s[44:51], s[0:1], {KA['w1']}
    s_load_dwordx4 s[52:55], s[0:1], {KA['out']}
    s_load_dwordx2 s[42:43], s[0:1], {KA['ws']}
    v_lshrrev_b32 v1, 6, v0
    v_and_b32 v0, 63, v0
    s_and_b32 s23, s2, 7
    s_lshr_b32 s24, s2, 3
    v_readfirstlane_b32 s20, v1
    s_and_b32 s25, s24, 3
    s_lshr_b32 s79, s24, 2
    s_lshl_b32 s78, s23, 2
    s_add_u32 s78, s78, s25
    s_mul_i32 s74, s79, {3584 if ROT & 1 else 0}
    s_and_b32 s74, s74, 0xfffffc00
    s_mul_i32 s75, s25, {7168 if ROT & 2 else 0}
    s_add_u32 s74, s74, s75
    s_sub_u32 s75, s74, {28*1024}
    s_min_u32 s74, s74, s75
    s_mov_b32 s77, 1
    s_and_b32 s39, s20, 3
    s_cmp_eq_u32 s79, 7
    s_cbranch_scc1 L_ln
    """)
    if LOC:
        A("""
        s_and_b32 s21, s24, 1
        s_lshl_b32 s22, s23, 1
        s_add_u32 s21, s21, s22
        s_lshr_b32 s22, s24, 1
        """)
    else:
        A("""
        s_lshr_b32 s21, s23, 1
        s_lshl_b32 s21, s21, 2
        s_add_u32 s21, s21, s25
        s_and_b32 s22, s23, 1
        s_mul_i32 s22, s22, 7
        s_add_u32 s22, s22, s79
        """)
    gen_gemm1(A)
    A.label("L_ln")
    A("s_nop 0 ; RESETSB")
    A("s_mov_b32 s21, s78")
    gen_ln(A)
    A.label("L_gemm2")
    A("s_nop 1 ; RESETSB")
    gen_gemm2(A)
    A.label("L_conv")
    A("s_nop 1 ; RESETSB")
    gen_conv(A)
    A.label("L_final")
    A("s_nop 7")
    gen_final(A)
    A.label("L_exit")
    A("s_endpgm")
    lines = fix_hazards(A.lines, verbose=True)
    check_waits(lines, "s")
    head = open("parallel_sum__ssm_conv_s4__dense_activation_gelu__prompt.s.ref").read().split("; Override launch")[0]
    head += f"; @launch grid=(256,1,1) block=(512,1,1) lds={LDS_TOTAL}\n.amdgcn_target \"amdgcn-amd-amdhsa--gfx950\"\n"
    return head + kernel_section(KNAME, lines, 256, 102, 256)

if __name__ == "__main__":
    out = sys.argv[1] if len(sys.argv) > 1 else "cur8.s"
    open(out, "w").write(gen())
    print("wrote", out)
```

```python
from asmlib import *
import struct, math, os, sys

def f2u(x): return struct.unpack("<I", struct.pack("<f", x))[0]
def env(n, d): return int(os.environ.get(n, str(d)))

KNAME = "parallel_sum__ssm_conv_s4__dense_activation_gelu__prompt_kernel"
KA = dict(u=0, A_re=8, A_im=16, B_re=24, B_im=32, C_re=40, C_im=48, log_dt=56, Dskip=64, Bx=72, w1=80, b1=88, w2=96, b2=104,
          out=112, dbg=120, ws=128)
WS_FLL = 32768
WS_EPOCH = 49152
WS_DUMMY = 53248
WS_STAT = 65536
WS_FLH = 131072
WS_FLY = 262144
WS_HF = 1 << 20
WS_XNT = 8 << 20
WS_YA = 12 << 20
WS_USED = 14 << 20

LOG2E = 1.4426950408889634
GC1 = -2.0 * LOG2E * 0.7978845608028654
GC2 = GC1 * 0.044715

NS, STAGE = 4, 32768
RSL = 12
RING = RSL * 2048
L_KST = 98304; KST = 8704
L_ST2 = 98304; ST2 = 8192
L_CH = 131072; CH_SIZE = 13056
OFF_E, OFF_O = 4608, 8768
L_FLAG = L_CH + 2 * CH_SIZE
L_CS = L_FLAG + 512
LDS_TOTAL = 163840
L_VS = 98304; L_US = 98304

OPT_PF = env("PF", 1)
PRE = env("PRE", 3)
PRIO_C = env("PRIOC", 1)
PRIO_G = env("PRIOG", 2)
PRIO_E = env("PRIOE", 0)
ROT = env("ROT", 3)
BARP = env("BARP", 2)
STATG = env("STATG", 21)
SC = os.environ.get("SC", "sc1")
PFG = [int(x) for x in os.environ.get("PFG", "").split(",") if x]
HD = 9
NB8 = env('NB8', 1)
EP = env('EP', 4)
TS = env('TS', 4)
FR = env('FR', 0)
NPK0 = env('NPK0', 3)
NC0 = env('NC0', 3)
WSOFF = env('WSOFF', 0) << 20
SCH = os.environ.get('SCH', SC)
LOC = env('LOC', 0)
GPK = env('GPK', 0)
ULN = env('ULN', 3)
HT = env('HT', 0)
SCL = os.environ.get('SCL', SC)
SPIN = 0x40000

DK, DP, EX, P0 = 224, 128, 160, 244
BF, AF, KG_G, KG_E1, KG_L, KG_V, KG_PK, KG_VW, KG_VRD = 160, 192, 108, 122, 224, 124, 132, 136, 137
L_KS2 = 131072; KS2 = 4352
XL = 180
VDUM, LNF = 252, 253
VX, VB2, VOO = 4, 8, 12
VW2 = 23
W2R, HR, ACC2 = 160, 88, 24
VTL = 24

def srd(A, d, lo, hi, size):
    A(f"s_mov_b32 s{d}, {lo}\ns_mov_b32 s{d+1}, {hi}\ns_mov_b32 s{d+2}, {size}\ns_mov_b32 s{d+3}, 0x00020000")
def round_bf16(A, r):
    A(f"v_cvt_pk_bf16_f32 v{r}, v{r}, v{r}")
    A(f"v_and_b32 v{r}, 0xffff0000, v{r}")
def zipm(*lists):
    o = []
    for k in range(max(len(l) for l in lists)):
        for l in lists:
            if k < len(l): o.append(l[k])
    return o
def mask(lo, hi=None):
    hi = lo if hi is None else hi
    return [f"s_mov_b32 s28, {lo}", f"s_mov_b32 s29, {hi}"]

class VMQ:
    def __init__(self): self.q = []
    def note(self, tag, n=1): self.q.extend([tag] * n)
    def wait(self, *tags):
        idx = max((k for k, t in enumerate(self.q) if t in tags), default=-1)
        if idx < 0: return []
        n = len(self.q) - 1 - idx
        del self.q[:idx + 1]
        return [f"s_waitcnt vmcnt({n})"]
    def younger(self): return len(self.q)

ORDER = [0, 1] + list(range(12, 24)) + list(range(2, 12)) + list(range(24, 28))

def koff(dst, lab, base="s74"):
    return [f"s_add_u32 {dst}, {base}, {lab*1024}", f"s_sub_u32 s75, {dst}, {28*1024}", f"s_min_u32 {dst}, {dst}, s75"]

def slot_addr(sl): return (sl >> 2) * 32768 + (sl & 3) * 2048

def w2_setup(A, vt):
    srd(A, 16, "s48", "s49", 1792 * 1024)
    A(f"""
    v_lshrrev_b32 v{vt}, 2, v0
    v_and_b32 v{vt}, 4, v{vt}
    v_and_b32 v{vt+1}, 7, v0
    v_xor_b32 v{vt}, v{vt}, v{vt+1}
    v_lshrrev_b32 v{vt+1}, 3, v0
    v_lshlrev_b32 v{VW2}, 10, v{vt+1}
    v_lshl_add_u32 v{VW2}, v{vt}, 4, v{VW2}
    s_mul_i32 s72, s39, {448*1024}
    s_lshl_b32 s75, s79, 7
    s_add_u32 s72, s72, s75
    s_lshl_b32 s73, s39, 13
    v_lshrrev_b32 v{vt+1}, 5, v0
    v_bfe_u32 v{vt}, v0, 2, 2
    v_lshl_add_u32 v{VTL}, v{vt+1}, 2, v{vt}
    v_lshlrev_b32 v{VTL}, 7, v{VTL}
    v_bfe_u32 v{vt}, v0, 4, 1
    v_lshl_add_u32 v{VTL}, v{vt}, 5, v{VTL}
    v_and_b32 v{vt}, 3, v0
    v_lshl_add_u32 v{VTL}, v{vt}, 3, v{VTL}
    v_bfe_u32 v{vt}, v0, 3, 1
    v_lshl_add_u32 v{VTL}, v{vt}, 6, v{VTL}
    v_add_u32 v{VTL}, s73, v{VTL}
    v_xor_b32 v{VTL+1}, 64, v{VTL}
    v_add_u32 v{VTL+2}, 0x10000, v{VTL}
    v_add_u32 v{VTL+3}, 0x10000, v{VTL+1}
    """)
def wdma(slot, lab):
    a_ = slot_addr(slot)
    return koff("s31", lab) + [f"s_add_u32 m0, s73, {a_}", "s_lshl4_add_u32 s31, s31, s72",
                               f"buffer_load_dwordx4 v{VW2}, s[16:19], s31 offen lds",
                               f"s_add_u32 m0, s73, {a_+1024}", "s_add_u32 s31, s31, 8192",
                               f"buffer_load_dwordx4 v{VW2}, s[16:19], s31 offen lds"]
def w2tr(slot, ws_, vtl=VTL):
    b = W2R + 8 * ws_; a_ = slot_addr(slot); hi = a_ >> 16; a_ &= 0xffff
    return [f"ds_read_b64_tr_b16 v[{b+4*db+2*sec}:{b+4*db+2*sec+1}], v{vtl+2*hi+db} offset:{a_+sec*1024}" for db in range(2) for sec in range(2)]

def param_loads(A, vt):
    A(f"""
    s_lshr_b32 s28, s39, 1
    s_lshl_b32 s30, s2, 1
    s_add_u32 s30, s30, s28
    v_lshlrev_b32 v{vt}, 1, v0
    v_mov_b32 v{vt+1}, 0
    s_lshl_b32 s29, s30, 8
    s_and_b32 s28, s20, 1
    s_lshl_b32 s28, s28, 7
    s_add_u32 s29, s29, s28
    s_lshl_b32 s30, s30, 1
    s_mov_b32 s18, 1024
    s_mov_b32 s19, 0x00020000
    """)
    for k in range(8): A(f"v_mov_b32 v{P0+k}, 0")
    A("s_waitcnt lgkmcnt(0)")
    for k in (6, 7, 0, 1, 2, 3, 4, 5):
        if k == 0: A("s_mov_b32 s18, 131072")
        A(f"s_mov_b32 s16, s{56+2*k}\ns_mov_b32 s17, s{57+2*k}")
        if k < 6: A(f"buffer_load_short_d16_hi v{P0+k}, v{vt}, s[16:19], s29 offen")
        else: A(f"buffer_load_short_d16_hi v{P0+k}, v{vt+1}, s[16:19], s30 offen")

def lnflag_load(vt):
    return ["s_lshl_b32 s29, s79, 6", "s_lshl_b32 s28, s39, 4", "s_add_u32 s29, s29, s28", "s_lshr_b32 s28, s78, 4", "s_lshl_b32 s28, s28, 9",
            "s_add_u32 s29, s29, s28", "s_lshl_b32 s29, s29, 7", f"s_add_u32 s29, s29, {WS_FLY}",
            f"v_lshlrev_b32 v{vt}, 7, v0", f"v_add_u32 v{vt}, {WS_FLL}, v{vt}",
            f"v_and_b32 v{vt+1}, 15, v0", f"v_lshl_add_u32 v{vt+1}, v{vt+1}, 7, s29", "s_mov_b32 s28, 0", "s_mov_b32 s29, -1",
            f"v_cndmask_b32 v{vt}, v{vt}, v{vt+1}, s[28:29]",
            f"buffer_load_dword v{LNF}, v{vt}, s[12:15], 0 offen {SC}"]

def u_issue(A, vl16):
    A(f"""
    s_lshr_b32 s28, s39, 1
    s_lshl_b32 s29, s2, 1
    s_add_u32 s29, s29, s28
    s_lshl_b32 s29, s29, 12
    s_add_u32 s29, s29, {WS_XNT}
    """)
    for k in range(4): A(f"buffer_load_dwordx4 v[{XL+4*k}:{XL+4*k+3}], v{vl16}, s[12:15], s29 offen offset:{k*1024} {SC}")

def u_try(A, vl16):
    A(f"""
    v_cmp_ne_u32 vcc, s76, v{LNF}
    s_mov_b32 s37, 0
    s_cbranch_vccnz L_ut_no
    s_mov_b32 s37, 1
    """)
    u_issue(A, vl16)
    A.label("L_ut_no")

def u_spin(A, vt, vl16, tag=''):
    A("s_mov_b32 s30, 0")
    A.label(f"L_us_poll{tag}")
    A.extend(lnflag_load(vt))
    A(f"""
    s_add_u32 s30, s30, 1
    s_waitcnt vmcnt(0)
    v_cmp_ne_u32 vcc, s76, v{LNF}
    s_cmp_gt_u32 s30, {SPIN}
    s_cbranch_scc1 L_us_ok{tag}
    s_cbranch_vccnz L_us_poll{tag}
    """)
    A.label(f"L_us_ok{tag}")
    u_issue(A, vl16)
    A("s_waitcnt vmcnt(0)")

def ya_addr(vd, vt):
    return [f"v_lshrrev_b32 v{vd}, 3, v0", f"v_and_b32 v{vt}, 7, v0", f"v_lshlrev_b32 v{vd}, 13, v{vd}", f"v_lshl_add_u32 v{vd}, v{vt}, 4, v{vd}",
            "s_lshr_b32 s28, s39, 1", "s_lshl_b32 s31, s2, 1", "s_add_u32 s31, s31, s28",
            "s_lshr_b32 s29, s31, 6", "s_lshl_b32 s29, s29, 18", "s_and_b32 s28, s31, 63", "s_lshl_b32 s28, s28, 7", "s_add_u32 s29, s29, s28",
            f"s_add_u32 s29, s29, {WS_YA}", "s_and_b32 s30, s39, 1", "s_lshl_b32 s30, s30, 17", "s_add_u32 s30, s30, s29", "s_add_u32 s31, s30, 65536"]
def ya_prefill(vd, vt, vm4):
    return ya_addr(vd, vt) + [f"v_mov_b32 v{vm4+k}, -1" for k in range(4)] + \
           [f"buffer_store_dwordx4 v[{vm4}:{vm4+3}], v{vd}, s[12:15], s{30+h} offen {SC}" for h in range(2)]

def publish_flag(A, soff, vt, tag, wave, both=False):
    A(f"""
    s_cmp_lg_u32 s20, {wave}
    s_cbranch_scc1 L_pub_skip{tag}
    v_mov_b32 v{vt}, 0
    v_mov_b32 v{vt+1}, s76
    s_mov_b64 exec, 1
    buffer_store_dword v{vt+1}, v{vt}, s[12:15], {soff} offen {SC}
    """)
    if both:
        A(f"""
        s_lshl_b32 s28, s2, 7
        s_add_u32 s28, s28, {WS_FLW}
        buffer_store_dword v{vt+1}, v{vt}, s[12:15], s28 offen {SC}
        """)
    A(f"""
    s_mov_b64 exec, -1
    L_pub_skip{tag}:
    """)
def mktag(A):
    A("s_mul_i32 s76, s76, 0x9E3779B1")
    A("s_add_u32 s76, s76, 0x7F4A7C15")
def arrive(A, tag):
    A(f"""
    s_cmp_lg_u32 s20, 3
    s_cbranch_scc1 L_arr{tag}
    s_atomic_add s77, s[54:55], 0 glc
    L_arr{tag}:
    """)

def coop_prefetch(A, vt):
    A(f"""
    s_lshl_b32 s28, s24, 2
    s_add_u32 s28, s28, s39
    s_lshl_b32 s30, s28, 6
    v_add_u32 v{vt}, s30, v0
    v_mul_u32_u24 v{vt+1}, 0x4925, v{vt}
    v_lshrrev_b32 v{vt+1}, 18, v{vt+1}
    v_mul_u32_u24 v{vt+2}, 14, v{vt+1}
    v_sub_u32 v{vt}, v{vt}, v{vt+2}
    v_lshlrev_b32 v{vt}, 7, v{vt}
    v_mul_u32_u24 v{vt+1}, 3584, v{vt+1}
    v_add_u32 v{vt}, v{vt}, v{vt+1}
    s_and_b32 s29, s23, 1
    s_mul_i32 s29, s29, 1792
    buffer_load_dword v{VDUM}, v{vt}, s[8:11], s29 offen
    s_lshr_b32 s29, s23, 1
    s_lshl_b32 s29, s29, 19
    s_lshl_b32 s30, s28, 13
    s_add_u32 s29, s29, s30
    s_cmp_lt_u32 s28, 64
    s_cselect_b32 s29, s29, 0x400000
    v_lshlrev_b32 v{vt+2}, 7, v0
    buffer_load_dword v{VDUM}, v{vt+2}, s[4:7], s29 offen
    """)
def w2_prefetch(vt, piece):
    return ["s_lshl_b32 s28, s24, 2", "s_add_u32 s28, s28, s39", "s_lshl_b32 s28, s28, 14", f"s_add_u32 s28, s28, {piece*8192}",
            f"v_lshlrev_b32 v{vt}, 7, v0", f"buffer_load_dword v{VDUM}, v{vt}, s[16:19], s28 offen"]

def cmul(d, x, y, pk=True):
    P = lambda r: f"v[{r}:{r+1}]"
    assert d != x and d != y
    if pk:
        return [f"v_pk_mul_f32 {P(d)}, {P(x)}, {P(y)} op_sel:[0,0] op_sel_hi:[0,1]",
                f"v_pk_fma_f32 {P(d)}, {P(x)}, {P(y)}, {P(d)} op_sel:[1,1,0] op_sel_hi:[1,0,1] neg_lo:[0,1,0]"]
    return [f"v_mul_f32 v{d}, v{x}, v{y}", f"v_mul_f32 v{d+1}, v{x}, v{y+1}",
            f"v_fma_f32 v{d}, -v{x+1}, v{y+1}, v{d}", f"v_fma_f32 v{d+1}, v{x+1}, v{y}, v{d+1}"]

def kg_common(A, base, T0, Z, WA):
    ar, ai, br, bi, cr, ci, ld, dsk = range(P0, P0 + 8)
    u_ = f2u(LOG2E) & 0xFFFFFF00
    lh = struct.unpack("<f", struct.pack("<I", u_))[0]; ll = LOG2E - lh
    A(f"""
    v_mul_f32 v{T0}, {hex(f2u(lh))}, v{ld}
    v_mul_f32 v{T0+1}, {hex(f2u(ll * math.log(2)))}, v{ld}
    v_exp_f32 v{T0}, v{T0}
    s_nop 0
    v_fma_f32 v{T0}, v{T0}, v{T0+1}, v{T0}
    """)
    round_bf16(A, T0)
    A(f"""
    v_mul_f32 v{Z}, v{T0}, v{ar}
    v_mul_f32 v{Z+1}, v{T0}, v{ai}
    v_mul_f32 v{br}, v{T0}, v{br}
    v_mul_f32 v{bi}, v{T0}, v{bi}
    v_mul_f32 v{Z}, {hex(f2u(LOG2E))}, v{Z}
    v_mul_f32 v{Z+1}, 0.15915494, v{Z+1}
    """)
def kg_waddr(A, base, WA):
    A(f"s_lshl_b32 s28, s39, 13\ns_add_u32 s28, s28, {base}\nv_lshl_add_u32 v{WA}, v0, 2, s28")
    for k in range(1, 16): A(f"v_xor_b32 v{WA+k}, {16*k}, v{WA}")
def kg_raddr(base, d, t):
    o = ["s_lshl_b32 s28, s39, 13", f"s_add_u32 s28, s28, {base}", f"v_and_b32 v{t}, 15, v0", f"v_lshrrev_b32 v{t+1}, 5, v0", f"v_xor_b32 v{t}, v{t}, v{t+1}",
         f"v_and_b32 v{t+1}, 31, v0", f"v_lshlrev_b32 v{t+1}, 8, v{t+1}", f"v_lshl_add_u32 v{d}, v{t}, 4, v{t+1}", f"v_add_u32 v{d}, s28, v{d}"]
    return o + [f"v_xor_b32 v{d+k}, {32*k}, v{d}" for k in range(1, 8)]
def cexp(d, x, t, Z):
    xs = {1: None, 8: hex(f2u(8.0)), 256: hex(f2u(256.0))}[x]
    o = []
    if xs is None: o += [f"v_exp_f32 v{t}, v{Z}", f"v_fract_f32 v{t+1}, v{Z+1}"]
    else: o += [f"v_mul_f32 v{t}, {xs}, v{Z}", f"v_mul_f32 v{t+1}, {xs}, v{Z+1}", f"v_exp_f32 v{t}, v{t}", f"v_fract_f32 v{t+1}, v{t+1}"]
    o += [f"v_cos_f32 v{d}, v{t+1}", f"v_sin_f32 v{d+1}, v{t+1}", f"v_mul_f32 v{d}, v{d}, v{t}", f"v_mul_f32 v{d+1}, v{d+1}, v{t}"]
    return o
KWA = 100
KRA = 116

def gen_kgen_v(A):
    T0, Z, E8, E16, Va, Vb, PKT = 34, 144, 44, 46, 80, 84, 88
    kg_common(A, L_VS, T0, Z, KWA)
    A.extend(cexp(E8, 8, T0, Z))
    A.extend(cmul(E16, E8, E8))
    npk = [0]
    def emit(src, row):
        t = PKT + (npk[0] % 8); npk[0] += 1
        return [f"v_cvt_pk_bf16_f32 v{t}, v{src}, v{src+1}", f"ds_write_b32 v{KWA + (row & 15)}, v{t} offset:{row*256}"]
    A(f"v_mov_b32 v{PKT+7}, 0x00003f80")
    A(f"ds_write_b32 v{KWA}, v{PKT+7}")
    A.extend(emit(E8, 1)); A.extend(emit(E16, 2))
    ev, od = E16, E8
    for j in range(3, 32, 2):
        d1 = Va + 2 * (((j - 3) // 2) % 2)
        d2 = Vb + 2 * (((j - 3) // 2) % 2)
        l1 = cmul(d1, od, E16) + emit(d1, j)
        l2 = (cmul(d2, ev, E16) + emit(d2, j + 1)) if j + 1 < 32 else []
        A.extend(zipm(l1, l2))
        od, ev = d1, d2
    for st in range(8): A(f"ds_read_b128 v[{BF+4*st}:{BF+4*st+3}], v{KRA+st}")

UPK = 192
def kgen_u_lists(rebase):
    T0, Z, E1, G, Lr, Va = 34, 144, 42, 44, 58, 76
    ar, ai, br, bi, cr, ci, ld, dsk = range(P0, P0 + 8)
    cm = lambda d, x, y: cmul(d, x, y, False)
    V = []; Wr = []
    if rebase: V += [f"v_subrev_u32 v{KWA+k}, {rebase}, v{KWA+k}" for k in range(24)]
    V += zipm(cexp(E1, 1, T0 + 2, Z), cexp(G, 256, T0 + 4, Z), cm(Lr, cr, br))
    npk = [0]
    def emit(src, rows):
        t = UPK + npk[0]; npk[0] += 1
        Wr.extend(f"ds_write_b32 v{KWA + (row & 15)}, v{t} offset:{row*256}" for row in rows)
        return [f"v_cvt_pk_bf16_f32 v{t}, v{src}, -v{src+1}"]
    urow = lambda hh, r: 8 * (r >> 2) + 4 * hh + (r & 3)
    lch = emit(Lr, [urow(0, 0)])
    for a_ in range(1, 9): lch += cm(Lr + 2 * a_, Lr + 2 * (a_ - 1), E1) + emit(Lr + 2 * a_, [urow(0, a_)])
    gch = []
    for k in range(2, 8): gch += cm(G + 2 * (k - 1), G + 2 * (k - 2), G)
    V += zipm(lch, gch)
    jobs = [(0, 1, [urow(1, 0), urow(1, 1)]), (2, 1, [urow(1, 2)]), (4, 1, [urow(1, 3), urow(1, 4), urow(1, 5)]), (6, 1, [urow(1, 6)]),
            (8, 1, [urow(1, 7), urow(1, 8)]),
            (0, 2, [urow(0, 9)]), (4, 2, [urow(0, 10)]), (8, 2, [urow(0, 11)]),
            (0, 3, [urow(1, 9)]), (4, 3, [urow(1, 10)]), (8, 3, [urow(1, 11)]),
            (0, 4, [urow(0, 12)]), (8, 4, [urow(0, 13)]), (0, 5, [urow(0, 14)]), (8, 5, [urow(0, 15)]),
            (0, 6, [urow(1, 12)]), (8, 6, [urow(1, 13)]), (0, 7, [urow(1, 14)]), (8, 7, [urow(1, 15)])]
    for k in range(0, len(jobs), 2):
        ls = []
        for q_, (a_, gk, rows) in enumerate(jobs[k:k + 2]):
            d = Va + 4 * q_ + 2 * ((k // 2) % 2)
            ls.append(cm(d, Lr + 2 * a_, G + 2 * (gk - 1)) + emit(d, rows))
        V += zipm(*ls)
    assert npk[0] <= 32
    return V, Wr

def kg_atoms_m():
    at = [[f"ds_read_b128 v[{AF+4*k}:{AF+4*k+3}], v{KRA+k} offset:{L_US - L_VS}", ("tag", ("af", k))] for k in range(8)]
    mm = []
    for st in range(8):
        cin = "0" if st == 0 else f"v[{DK}:{DK+15}]"
        mm.append([("wait", ("af", st)), f"v_mfma_f32_32x32x16_bf16 v[{DK}:{DK+15}], v[{AF+4*st}:{AF+4*st+3}], v[{BF+4*st}:{BF+4*st+3}], {cin}"])
    return at, mm

def kg_atoms_x1():
    T0 = P0
    at = [[f"s_lshr_b32 s30, s39, 1", f"s_mul_i32 s30, s30, {CH_SIZE}", f"s_add_u32 s38, s30, {L_CH}", f"v_lshl_add_u32 v{T0}, v0, 4, s38"]]
    at.append(["s_bitcmp1_b32 s39, 0", "s_cselect_b64 exec, -1, 0"] + [f"ds_write_b128 v{T0}, v[{DK+4*q}:{DK+4*q+3}] offset:{512+q*1024}" for q in range(3)] +
              ["s_not_b64 exec, exec", f"ds_write_b128 v{T0}, v[{DK+12}:{DK+15}] offset:{512+3072}", "s_mov_b64 exec, -1"])
    return at

def kg_atoms_x2(tag):
    T0 = P0; VEA, VEB = 254, 255
    at = []
    at.append([f"ds_read_b128 v[{DP+4*q}:{DP+4*q+3}], v{T0} offset:{512+q*1024}" for q in range(4)] + [("tag", "dp")])
    for i in [f"v_and_b32 v{T0+4}, 31, v0", f"v_lshrrev_b32 v{T0+1}, 5, v0", f"v_lshlrev_b32 v{T0+2}, 4, v{T0+4}"]: at.append([i])
    at.append([f"s_add_u32 s28, s38, {OFF_E + 4080 - 1024}", f"v_sub_u32 v{VEA}, s28, v{T0+2}"])
    at.append([f"v_lshlrev_b32 v{T0+3}, 9, v{T0+1}"]); at.append([f"v_sub_u32 v{VEA}, v{VEA}, v{T0+3}"])
    at.append([f"s_add_u32 s28, s38, {OFF_E + 4080 - 2560}", f"v_sub_u32 v{VEB}, s28, v{T0+2}"])
    at.append([f"v_lshlrev_b32 v{T0+3}, 10, v{T0+1}"]); at.append([f"v_sub_u32 v{VEB}, v{VEB}, v{T0+3}"])
    at.append([f"v_lshl_add_u32 v{T0}, v0, 3, s38"]); at.append([f"v_mov_b32 v{T0+2}, 0"]); at.append([f"v_mov_b32 v{T0+3}, 0"])
    at.append(["s_lshl_b32 s28, s39, 2", f"s_add_u32 s28, s28, {L_FLAG}", f"v_mov_b32 v{T0+1}, s28"])
    for k in range(16): at.append(([("wait", "dp")] if k == 0 else []) + [f"v_add_f32 v{DK+k}, v{DK+k}, v{DP+k}"])
    at.append(mask("0xaaaaaaaa") + [f"v_cndmask_b32 v{DP}, v{DK+12}, v{DK+13}, s[28:29]", f"v_cndmask_b32 v{DP+1}, v{DK+14}, v{DK+15}, s[28:29]"])
    k_ = lambda r: DK + r
    def half(base, kk, va, off, odd):
        prs = [(8, 7), (6, 5), (4, 3), (2, 1)] if odd else [(7, 6), (5, 4), (3, 2), (1, 0)]
        return [f"v_cvt_pk_bf16_f32 v{base+i}, v{kk[lo]}, v{kk[hi]}" for i, (lo, hi) in enumerate(prs)] + \
               [f"ds_write_b128 v{va}, v[{base}:{base+3}] offset:{off + (OFF_O - OFF_E if odd else 0)}"]
    ev = [([k_(i) for i in range(9)], VEA, 1024), ([k_(9)] * 3 + [k_(10)] * 3 + [k_(11)] * 3, VEA, 0)]
    od = [([k_(12)] * 4 + [DP] + [k_(13)] * 4, VEB, 512), ([k_(14)] * 4 + [DP + 1] + [k_(15)] * 4, VEB, 0)]
    n = 0
    for gi in range(2):
        for o_ in range(2):
            b_ = EX + 4 * n
            at.append(["s_bitcmp1_b32 s39, 0", f"s_cbranch_scc1 L_xo{tag}{n}"] + half(b_, *ev[gi], o_)[:-1] + [("nods", half(b_, *ev[gi], o_)[-1]), f"s_branch L_xd{tag}{n}",
                       f"L_xo{tag}{n}:"] + half(b_, *od[gi], o_) + [f"L_xd{tag}{n}:"])
            n += 1
    at.append(["s_bitcmp0_b32 s39, 0", "s_cselect_b64 s[28:29], -1, 0", "s_mov_b64 exec, s[28:29]",
               f"ds_write_b64 v{T0}, v[{T0+2}:{T0+3}]", "s_and_b64 exec, s[28:29], 15",
               f"ds_write_b64 v{T0}, v[{T0+2}:{T0+3}] offset:{OFF_E+4096}", f"ds_write_b64 v{T0}, v[{T0+2}:{T0+3}] offset:{OFF_O+4096}",
               "s_and_b64 exec, s[28:29], 1", f"ds_write_b16_d16_hi v{T0}, v{EX+3} offset:{OFF_O+4096}",
               "s_mov_b64 exec, -1"])
    at.append([f"v_mov_b32 v{T0+2}, 1", f"ds_write_b32 v{T0+1}, v{T0+2} offset:64"])
    return at

def flag_zero():
    return [[f"v_lshlrev_b32 v{VT1}, 2, v0", f"v_mov_b32 v{VT1+1}, 0", f"v_add_u32 v{VT1}, {L_FLAG}, v{VT1}", f"ds_write_b32 v{VT1}, v{VT1+1}"]]

class LQ:
    def __init__(self, A): self.A = A; self.q = []
    def emit(self, items, tag=None):
        maybe0 = any(isinstance(it, str) and "s_cselect_b64" in it for it in items)
        for it in items:
            if maybe0 and isinstance(it, str):
                self.A(it); continue
            if isinstance(it, tuple):
                if it[0] == "tag": self.q[-1] = it[1]
                elif it[0] == "wait": self.wait(it[1])
                elif it[0] == "nods": self.A(it[1])
                continue
            self.A(it)
            if it.strip().startswith("ds_"): self.q.append(tag)
            if "lgkmcnt(0)" in it: self.q = []
    def wait(self, tag):
        idx = max((k for k, t in enumerate(self.q) if t == tag), default=-1)
        if idx < 0: return
        n = min(len(self.q) - 1 - idx, 15)
        self.A(f"s_waitcnt lgkmcnt({n})")
        self.q = self.q[len(self.q) - n:] if n else []

def spread(atoms, g0, g1):
    pts = [(g, p) for g in range(g0, g1) for p in range(2)]
    tot = sum(len(a_) for a_ in atoms); out = {p: [] for p in pts}; acc = 0
    for a_ in atoms:
        out[pts[min(len(pts) - 1, acc * len(pts) // tot)]].append(a_); acc += len(a_)
    return out

VXO, VWO, VXO2 = 1, 2, 3
VXR, VTR = 4, 8
VONE, VHO1, VB1 = 16, 18, 19
VCW, VCR, VSO = 20, 21, 22
VT1 = 28
NR = 3
W1, X1, ACC1, CS = 32, 56, 80, 144
HI = 152
GT, PK, SG = 164, 180, 188
EA, EB = 192, 196
VS, K1r, K3r = 212, 214, 216

def wave_flag(soff, vt):
    return [f"v_mov_b32 v{vt}, 0", f"v_mov_b32 v{vt+1}, s76", "s_mov_b64 exec, 1",
            f"buffer_store_dword v{vt+1}, v{vt}, s[12:15], {soff} offen {SC}", "s_mov_b64 exec, -1"]

def lds_wait(A, name, vaddr, off, vt):
    A(f"""
    {name}:
    ds_read_b32 v{vt}, v{vaddr} offset:{off}
    s_waitcnt lgkmcnt(0)
    v_readfirstlane_b32 s28, v{vt}
    s_cmp_eq_u32 s28, 1
    s_cbranch_scc0 {name}
    """)

def dma_setup(A):
    VT = VT1
    A(f"""
    v_lshrrev_b32 v{VT}, 3, v0
    v_and_b32 v{VT+1}, 7, v0
    v_lshrrev_b32 v{VT+2}, 4, v0
    v_xor_b32 v{VT+3}, v{VT+2}, v{VT+1}
    v_lshlrev_b32 v{VXO}, 10, v{VT}
    v_lshl_add_u32 v{VXO}, v{VT+3}, 4, v{VXO}
    v_xor_b32 v{VXO2}, 64, v{VXO}
    v_add_u32 v{VXO2}, 8192, v{VXO2}
    v_and_b32 v{VT+3}, 15, v0
    v_lshlrev_b32 v{VT}, 2, v{VT+2}
    v_xor_b32 v{VT+3}, v{VT+3}, v{VT}
    v_mul_u32_u24 v{VWO}, 3584, v{VT+2}
    v_lshl_add_u32 v{VWO}, v{VT+3}, 4, v{VWO}
    s_lshl_b32 s25, s21, 17
    s_lshl_b32 s28, s39, 15
    s_add_u32 s25, s25, s28
    s_mul_i32 s26, s39, {16*3584}
    s_lshl_b32 s28, s22, 8
    s_add_u32 s26, s26, s28
    s_lshl_b32 s27, s39, 12
    """)

def g1_dma(kc, part):
    st = (kc % NS) * STAGE
    return [f"s_add_u32 m0, s27, {st + part*1024}", f"s_add_u32 s31, s25, {128*kc + (part//2)*16384}",
            f"buffer_load_dwordx4 v{VXO if part % 2 == 0 else VXO2}, s[4:7], s31 offen lds",
            f"s_add_u32 m0, s27, {st + 16384 + part*1024}", f"s_add_u32 s37, s26, {(64*kc + 4*part)*3584}",
            f"buffer_load_dwordx4 v{VWO}, s[8:11], s37 offen lds"]

def c_setup(A):
    VT = VT1
    A(f"""
    v_and_b32 v{VT}, 31, v0
    v_lshrrev_b32 v{VT+1}, 5, v0
    v_bfe_u32 v{VT+2}, v0, 1, 3
    v_xor_b32 v{VT+2}, v{VT+2}, v{VT+1}
    s_lshl_b32 s31, s34, 1
    v_xor_b32 v{VT+2}, s31, v{VT+2}
    v_lshlrev_b32 v{VXR}, 7, v{VT}
    v_lshl_add_u32 v{VXR}, v{VT+2}, 4, v{VXR}
    s_lshl_b32 s28, s34, 13
    v_add_u32 v{VXR}, s28, v{VXR}
    v_xor_b32 v{VXR+1}, 32, v{VXR}
    v_xor_b32 v{VXR+2}, 64, v{VXR}
    v_xor_b32 v{VXR+3}, 96, v{VXR}
    v_lshlrev_b32 v{VSO}, 3, v0
    v_bfe_u32 v{VT+2}, v0, 2, 2
    v_lshl_add_u32 v{VTR}, v{VT+1}, 3, v{VT+2}
    v_lshlrev_b32 v{VTR}, 8, v{VTR}
    v_bfe_u32 v{VT+3}, v0, 4, 1
    v_lshl_add_u32 v{VTR}, v{VT+3}, 5, v{VTR}
    v_and_b32 v{VT+3}, 3, v0
    v_lshl_add_u32 v{VTR}, v{VT+3}, 3, v{VTR}
    s_lshl_b32 s31, s35, 1
    v_xor_b32 v{VT+2}, s31, v{VT+2}
    v_lshl_add_u32 v{VTR}, v{VT+2}, 6, v{VTR}
    s_lshl_b32 s31, s34, 12
    s_add_u32 s31, s31, 16384
    v_add_u32 v{VTR}, s31, v{VTR}
    """)
    for i in range(4):
        for ft in range(2):
            if i == 0 and ft == 0: continue
            A(f"v_xor_b32 v{VTR+2*i+ft}, {i*4096 + ft*64}, v{VTR}")
    A(f"""
    v_mov_b32 v{VONE}, 0x3f803f80
    v_mov_b32 v{VONE+1}, 0x3f803f80
    v_lshlrev_b32 v{VHO1}, 4, v0
    s_lshl_b32 s33, s21, 1
    s_add_u32 s33, s33, s34
    s_lshl_b32 s36, s33, 9
    s_add_u32 s36, s36, {WS_STAT}
    s_mul_i32 s32, s33, {2*112*1024}
    s_lshl_b32 s28, s22, 1
    s_add_u32 s28, s28, s35
    s_lshl_b32 s29, s28, 12
    s_add_u32 s32, s32, s29
    s_add_u32 s32, s32, {WS_HF}
    s_add_u32 s38, s32, {112*1024}
    s_lshl_b32 s33, s33, 5
    s_add_u32 s33, s33, s28
    s_lshl_b32 s33, s33, 7
    s_add_u32 s33, s33, {WS_FLH}
    s_lshl_b32 s29, s20, 8
    v_lshl_add_u32 v{VCW}, v0, 2, s29
    v_add_u32 v{VCW}, {L_CS}, v{VCW}
    v_xor_b32 v{VCR}, 256, v{VCW}
    """)
    srd(A, 16, "s46", "s47", 3584)
    A(f"""
    v_mov_b32 v{VB1}, 0
    v_lshlrev_b32 v{VT1}, 1, v0
    s_lshl_b32 s28, s28, 7
    buffer_load_short_d16_hi v{VB1}, v{VT1}, s[16:19], s28 offen
    """)
    for k in range(20): A(f"v_mov_b32 v{EA+k}, 0")
    for k in range(12): A(f"v_add_u32 v{HI+k}, 0x10000, v{VXR+k}")

def c_reads(g):
    kc, i = divmod(g, 4)
    st = kc % NS
    b = (VXR if st < 2 else HI); off = (st % 2) * STAGE
    sl = g % NR
    tr = lambda ft, sec: f"ds_read_b64_tr_b16 v[{W1+8*sl+4*ft+2*sec}:{W1+8*sl+4*ft+2*sec+1}], v{b+4+2*i+ft} offset:{off + sec*1024}"
    xr = lambda tt: f"ds_read_b128 v[{X1+8*sl+4*tt}:{X1+8*sl+4*tt+3}], v{b+i} offset:{off + tt*4096}"
    return [xr(0), tr(0, 0), tr(0, 1), tr(1, 0), tr(1, 1), xr(1)]

def gen_c1(A):
    VT = VT1
    dma_setup(A)
    A(f"""
    s_and_b32 s34, s20, 1
    s_lshr_b32 s35, s20, 1
    s_waitcnt lgkmcnt(0)
    s_add_u32 s42, s42, {WSOFF}
    s_addc_u32 s43, s43, 0
    s_load_dword s76, s[42:43], {WS_EPOCH}
    """)
    vm = VMQ()
    A.st("ka")
    srd(A, 4, "s40", "s41", 2 << 20)
    srd(A, 8, "s44", "s45", 512 * 3584)
    srd(A, 12, "s42", "s43", WS_USED)
    CSF = env("CSF", 0)
    if CSF: c_setup(A); vm.note("b1")
    if env("PFAT", 1) == -1 and OPT_PF: coop_prefetch(A, VT); vm.note("pf", 2)
    for kc in range(NC0):
        for part in range(4): A.extend(g1_dma(kc, part))
        vm.note(kc, 8)
        A.st(f"i{kc}")
        if kc == 0 and not CSF:
            c_setup(A); vm.note("b1")
        if kc == env("PFAT", 1) and OPT_PF: coop_prefetch(A, VT); vm.note("pf", 2)
    A.extend(ya_prefill(VT, VT + 1, PK)); vm.note(2, 2)
    hpre = [f"buffer_store_dwordx4 v[{PK}:{PK+3}], v{VHO1}, s[12:15], s{32 if n < 4 else 38} offen offset:{(n%4)*1024} {SC}" for n in range(8)]
    HPRE = env("HPRE", 0)
    if HPRE == 1: A.extend(hpre); vm.note(2, 8)
    w2_setup(A, VT)
    mpf = ["s_lshl_b32 s28, s2, 2", "s_add_u32 s28, s28, s39", "s_lshl_b32 s28, s28, 11", f"v_lshlrev_b32 v{VT+2}, 7, v0", "s_mov_b64 exec, 0xffff",
           f"buffer_load_dword v{VDUM}, v{VT+2}, s[16:19], s28 offen", "s_mov_b64 exec, -1"]
    MPG = env("MPG", 9)
    if MPG == -1: A.extend(mpf); vm.note(2)
    A.st("pre")
    A(vm.wait(0)[0] + " lgkmcnt(0)"); A.st("kg"); A("s_barrier")
    A.st("b0")
    T = GT
    lq = LQ(A)
    lq.emit(c_reads(0), 0); lq.emit(c_reads(1), 1)
    mktag(A)
    def big(g, tt, ft):
        sl = g % NR; c = ACC1 + 32 * tt + 16 * ft
        cin = "0" if g == 0 else f"v[{c}:{c+15}]"
        return f"v_mfma_f32_32x32x16_bf16 v[{c}:{c+15}], v[{W1+8*sl+4*ft}:{W1+8*sl+4*ft+3}], v[{X1+8*sl+4*tt}:{X1+8*sl+4*tt+3}], {cin}"
    for g in range(32):
        kc, i = divmod(g, 4); w = W1 + 8 * (g % NR)
        m = lambda d, b_, z: f"v_mfma_f32_4x4x4_16b_bf16 v[{d}:{d+3}], v[{VONE}:{VONE+1}], v[{b_}:{b_+1}], " + ("0" if z else f"v[{d}:{d+3}]")
        o1, o2 = [], []
        if i < 2 and False: pass
        if i in (0, 2) and g < 28 or g in (28, 29):
            o1 = [m(CS, w, g == 0), m(CS + 4, w + 4, g == 0)]; o2 = [m(CS, w + 2, False), m(CS + 4, w + 6, False)]
        A.st(f"g{g}")
        gn = g + 2
        rd = c_reads(PERM(gn))[:] if gn < 32 else []
        rd = c_reads_slot(gn) if gn < 32 else []
        x1, x2 = [], []
        if i == 2 and kc + 1 < 8: x1 += vm.wait(kc + 1) + ["s_barrier"]
        if g == 30:
            x1 += [f"v_permlane32_swap_b32 v{CS}, v{CS+4}", f"v_add_f32 v{CS}, v{CS}, v{CS+4}", f"ds_write_b32 v{VCW}, v{CS}",
                   "s_waitcnt lgkmcnt(0)", "s_barrier", f"ds_read_b32 v{T+2}, v{VCR}"][:None if not NB8 else 3]
            if NB8:
                x1 += ["s_lshl_b32 s28, s20, 2", f"s_add_u32 s28, s28, {L_FLAG+128}", f"v_mov_b32 v{T}, s28", f"v_mov_b32 v{T+1}, 1",
                       f"ds_write_b32 v{T}, v{T+1}", f"v_xor_b32 v{T}, 4, v{T}"]
        if g == STATG: x2 += [f"buffer_load_dwordx2 v[{SG}:{SG+1}], v{VSO}, s[12:15], s36 offen {SC}"]; vm.note("sg")
        if g == MPG: x2 += mpf; vm.note("mpf")
        WM = env("WARM", 0)
        if WM and g == env("WARMG", 10):
            x2 += [f"v_lshlrev_b32 v{VT+2}, 20, v0", f"v_lshlrev_b32 v{VT+3}, 7, v0"]
            if WM & 1: x2 += ["s_mov_b64 exec, 0x3fff", f"buffer_load_dword v{VDUM}, v{VT+2}, s[12:15], 0 offen"]; vm.note("wm")
            if WM & 2: x2 += ["s_mov_b64 exec, 3", f"global_load_dword v{VDUM}, v{VT+2}, s[52:53]"]; vm.note("wm")
            if WM & 4: x2 += ["s_mov_b64 exec, 0xff", f"global_load_dword v{VDUM}, v{VT+3}, s[50:51]"]; vm.note("wm")
            x2 += ["s_mov_b64 exec, -1"]
        if HPRE >= 10 and HPRE <= g < HPRE + 8: x2 += [hpre[g - HPRE]]; vm.note("hp")
        if HPRE == 2 and g == 11:
            x2 += [f"v_and_b32 v{VT+2}, 31, v0", f"v_lshlrev_b32 v{VT+2}, 7, v{VT+2}", "s_mov_b64 exec, 0xffffffff", "s_mov_b32 exec_hi, 0",
                   f"buffer_load_dword v{VDUM}, v{VT+2}, s[12:15], s32 offen", f"buffer_load_dword v{VDUM}, v{VT+2}, s[12:15], s38 offen", "s_mov_b64 exec, -1"]; vm.note("hp", 2)
        if g in PFG:
            n_ = 128 // len(PFG); k_ = PFG.index(g)
            x2 += ["s_lshl_b32 s28, s24, 2", "s_add_u32 s28, s28, s39", "s_lshl_b32 s28, s28, 14", f"s_add_u32 s28, s28, {k_*n_*128}", f"v_lshlrev_b32 v{VT+2}, 7, v0"]
            if n_ < 64: x2 += [f"s_mov_b32 exec_lo, {hex((1 << n_) - 1)}", "s_mov_b32 exec_hi, 0"]
            x2 += [f"buffer_load_dword v{VDUM}, v{VT+2}, s[16:19], s28 offen", "s_mov_b64 exec, -1"]; vm.note("l2")
        if g == env("YFG", 8) - 1: x2 += yflag_off()
        if g == env("YFG", 8): x2 += wave_flag("s28", VT); vm.note("yf")
        lq.wait(g)
        A(big(g, 0, 0))
        if i == 2: A.st(f"pb{kc+1}")
        lq.emit(x1)
        if i == 2: A.st(f"ab{kc+1}")
        lq.emit(rd[:2], gn)
        A(big(g, 0, 1)); lq.emit(rd[2:4], gn); A.extend(o1)
        A(big(g, 1, 0)); lq.emit(rd[4:], gn)
        A(big(g, 1, 1)); lq.emit(x2); A.extend(o2)
    A.st("loop")
    if NB8:
        lds_wait(A, "L_c_cs", T, 0, T + 1)
        A(f"ds_read_b32 v{T+2}, v{VCR}")
    A.extend(vm.wait("sg", "b1"))
    A(f"""
    v_cmp_ne_u32 vcc, s76, v{SG+1}
    s_cbranch_vccz L_g1_sok
    s_mov_b32 s30, 0
    L_g1_spoll:
    buffer_load_dwordx2 v[{SG}:{SG+1}], v{VSO}, s[12:15], s36 offen {SC}
    s_add_u32 s30, s30, 1
    s_waitcnt vmcnt(0)
    v_cmp_ne_u32 vcc, s76, v{SG+1}
    s_cmp_gt_u32 s30, {SPIN}
    s_cbranch_scc1 L_g1_sok
    s_cbranch_vccnz L_g1_spoll
    L_g1_sok:
    v_mov_b32 v{SG+1}, v{SG}
    s_mov_b32 s28, -1
    s_mov_b32 s29, 0
    v_permlane32_swap_b32 v{SG}, v{SG+1}
    s_waitcnt lgkmcnt(0)
    v_add_f32 v{T+2}, v{T+2}, v{CS}
    """)
    l1 = []
    for tt in range(2):
        l1 += [f"v_and_b32 v{VS+tt}, 0xffff0000, v{SG+tt}", f"v_and_b32 v{T+8+tt}, 0xffff, v{SG+tt}", f"v_rcp_f32 v{T+6+tt}, v{VS+tt}",
               f"v_lshl_or_b32 v{T+8+tt}, v{T+8+tt}, 16, v{T+8+tt}",
               f"v_cndmask_b32 v{EB+8*tt}, 0, v{T+8+tt}, s[28:29]", f"v_cndmask_b32 v{EB+8*tt+1}, 0, v{SG+tt}, s[28:29]",
               f"v_cndmask_b32 v{EB+8*tt+4}, v{T+8+tt}, 0, s[28:29]", f"v_cndmask_b32 v{EB+8*tt+5}, v{SG+tt}, 0, s[28:29]"]
    l2 = [f"v_and_b32 v{T+3}, 0xffff0000, v{T+2}", f"v_sub_f32 v{T+3}, v{T+2}, v{T+3}", f"v_lshrrev_b32 v{T+2}, 16, v{T+2}",
          f"v_and_b32 v{T+4}, 0xffff0000, v{T+3}", f"v_sub_f32 v{T+5}, v{T+3}, v{T+4}", f"v_or_b32 v{EA}, v{T+2}, v{T+4}",
          f"v_lshrrev_b32 v{T+5}, 16, v{T+5}", f"v_or_b32 v{EA+1}, v{T+5}, v{VB1}"]
    A.extend(zipm(l1, l2))
    l3 = []
    for tt in range(2):
        l3.append([f"v_fma_f32 v{T+10+tt}, -v{VS+tt}, v{T+6+tt}, 1.0", f"v_fma_f32 v{T+6+tt}, v{T+10+tt}, v{T+6+tt}, v{T+6+tt}",
                   f"v_mul_f32 v{K1r+tt}, {hex(f2u(GC1))}, v{T+6+tt}", f"v_mul_f32 v{T+10+tt}, v{T+6+tt}, v{T+6+tt}",
                   f"v_mul_f32 v{K3r+tt}, {hex(f2u(GC2))}, v{T+6+tt}", f"v_mul_f32 v{K3r+tt}, v{K3r+tt}, v{T+10+tt}"])
    l3 = zipm(*l3)
    for tt in range(2):
        for ft in range(2):
            c = ACC1 + 32 * tt + 16 * ft
            A(f"v_mfma_f32_32x32x16_bf16 v[{c}:{c+15}], v[{EA}:{EA+3}], v[{EB+8*tt+4*ft}:{EB+8*tt+4*ft+3}], v[{c}:{c+15}]")
            A.extend(l3[3 * (2 * tt + ft):3 * (2 * tt + ft) + 3])
    A.st("gstart")
    for n in range(8):
        tt = n // 4
        c0 = ACC1 + 8 * n
        t0 = GT + 8 * (n % 2)
        if GPK and n == NPK0:
            A(f"""
            v_mov_b32 v{VT}, {L_FLAG+80}
            L_c_km:
            ds_read_b128 v[{EA}:{EA+3}], v{VT}
            s_waitcnt lgkmcnt(0)
            v_and_b32 v{EA}, v{EA}, v{EA+1}
            v_and_b32 v{EA+2}, v{EA+2}, v{EA+3}
            v_and_b32 v{EA}, v{EA}, v{EA+2}
            s_nop 0
            v_readfirstlane_b32 s28, v{EA}
            s_cmp_eq_u32 s28, 1
            s_cbranch_scc0 L_c_km
            """)
        if GPK and n >= NPK0:
            P = lambda x: f"v[{x}:{x+1}]"
            sel = f"op_sel:[0,{tt},{tt}] op_sel_hi:[1,{tt},{tt}]"
            for k in range(0, 8, 2): A(f"v_pk_mul_f32 {P(t0+k)}, {P(c0+k)}, {P(c0+k)}")
            for k in range(0, 8, 2): A(f"v_pk_fma_f32 {P(t0+k)}, {P(t0+k)}, {P(K3r)}, {P(K1r)} {sel}")
            for k in range(0, 8, 2): A(f"v_pk_mul_f32 {P(t0+k)}, {P(t0+k)}, {P(c0+k)}")
            for k in range(8): A(f"v_exp_f32 v{t0+k}, v{t0+k}")
            for k in range(0, 8, 2): A(f"v_pk_fma_f32 {P(t0+k)}, {P(t0+k)}, {P(VS)}, {P(VS)} {sel}")
            for k in range(8): A(f"v_rcp_f32 v{t0+k}, v{t0+k}")
            for k in range(0, 8, 2): A(f"v_pk_mul_f32 {P(c0+k)}, {P(c0+k)}, {P(t0+k)}")
        else:
            for k in range(8): A(f"v_mul_f32 v{t0+k}, v{c0+k}, v{c0+k}")
            for k in range(8): A(f"v_fma_f32 v{t0+k}, v{t0+k}, v{K3r+tt}, v{K1r+tt}")
            for k in range(8): A(f"v_mul_f32 v{t0+k}, v{t0+k}, v{c0+k}")
            for k in range(8): A(f"v_exp_f32 v{t0+k}, v{t0+k}")
            for k in range(8): A(f"v_fma_f32 v{t0+k}, v{t0+k}, v{VS+tt}, v{VS+tt}")
            for k in range(8): A(f"v_rcp_f32 v{t0+k}, v{t0+k}")
            for k in range(8): A(f"v_mul_f32 v{c0+k}, v{c0+k}, v{t0+k}")
        pk = PK + 4 * (n % 2)
        for k in range(4): A(f"v_cvt_pk_bf16_f32 v{pk+k}, v{c0+2*k}, v{c0+2*k+1}")
        A(f"buffer_store_dwordx4 v[{pk}:{pk+3}], v{VHO1}, s[12:15], s{32 if tt == 0 else 38} offen offset:{(n%4)*1024} {SCH}")
        if env("DBL", 0): A(f"buffer_store_dwordx4 v[{pk}:{pk+3}], v{VHO1}, s[12:15], s{32 if tt == 0 else 38} offen offset:{(n%4)*1024}")
    A.st("gend")
    A("s_mov_b32 s37, 0")
    A("s_branch L_gemm2")

def PERM(g): return g
def c_reads_slot(g):
    if g < 28: return c_reads(g)
    i = [0, 2, 1, 3][g - 28]
    r = c_reads(28 + i)
    kc = 7; st = kc % NS; b = HI; off = (st % 2) * STAGE; sl = g % NR
    tr = lambda ft, sec: f"ds_read_b64_tr_b16 v[{W1+8*sl+4*ft+2*sec}:{W1+8*sl+4*ft+2*sec+1}], v{b+4+2*i+ft} offset:{off + sec*1024}"
    xr = lambda tt: f"ds_read_b128 v[{X1+8*sl+4*tt}:{X1+8*sl+4*tt+3}], v{b+i} offset:{off + tt*4096}"
    return [xr(0), tr(0, 0), tr(0, 1), tr(1, 0), tr(1, 1), xr(1)]

def yflag_off():
    return ["s_lshr_b32 s28, s39, 1", "s_lshl_b32 s29, s2, 1", "s_add_u32 s28, s28, s29", "s_and_b32 s29, s39, 1", "s_lshl_b32 s29, s29, 9",
            "s_add_u32 s28, s28, s29", "s_lshl_b32 s28, s28, 7", f"s_add_u32 s28, s28, {WS_FLY}"]
def ring_ready(vt):
    return ["s_lshl_b32 s28, s39, 2", f"s_add_u32 s28, s28, {L_FLAG+16}", f"v_mov_b32 v{vt}, s28", f"v_mov_b32 v{vt+1}, 1", f"ds_write_b32 v{vt}, v{vt+1}"]

def gen_h1(A):
    VT = VT1
    vm = VMQ()
    vm.note("prm", 8)
    A(f"s_add_u32 s42, s42, {WSOFF}\ns_addc_u32 s43, s43, 0\ns_load_dword s76, s[42:43], {WS_EPOCH}")
    srd(A, 4, "s40", "s41", 2 << 20)
    srd(A, 8, "s44", "s45", 512 * 3584)
    srd(A, 12, "s42", "s43", WS_USED)
    if env("CPF", 1): vm.note("cpf")
    dma_setup(A)
    w2_setup(A, VT)
    if env("MPF", 0):
        A(f"""
        s_lshl_b32 s28, s2, 2
        s_add_u32 s28, s28, s39
        s_lshl_b32 s28, s28, 11
        v_lshlrev_b32 v{VT+2}, 7, v0
        s_mov_b64 exec, 0xffff
        buffer_load_dword v{VDUM}, v{VT+2}, s[16:19], s28 offen
        s_mov_b64 exec, -1
        """)
    if env("TLBW", 0):
        A(f"""
        v_lshlrev_b32 v{VT+2}, {env("TLBS", 20)}, v0
        s_mov_b64 exec, {hex((1 << (WS_USED >> env("TLBS", 20))) - 1)}
        buffer_load_dword v{VDUM}, v{VT+2}, s[12:15], 0 offen
        s_mov_b64 exec, 3
        buffer_load_dword v{VDUM}, v{VT+2}, s[16:19], 0 offen
        global_load_dword v{VDUM}, v{VT+2}, s[52:53]
        s_mov_b64 exec, 1
        global_load_dword v{VDUM}, v{VT+2}, s[50:51]
        s_mov_b64 exec, -1
        """)
        vm.note("tlb", 4)
    kg_waddr(A, L_VS, KWA); A.extend(kg_raddr(L_VS, KRA, VT))
    for a_ in flag_zero(): A.extend(a_)
    A.st("pre")
    A.extend(vm.wait("prm"))
    A.st("prm")
    A.label("L_kgen_v")
    gen_kgen_v(A)
    A("s_cmp_eq_u32 s79, 7")
    A("s_cbranch_scc1 L_ln_H2")
    A.st("kg")
    A("s_waitcnt lgkmcnt(0)"); A("s_barrier")
    A.st("b0")
    mktag(A)
    UV, UW = kgen_u_lists(0)
    wts = [2, 3, 3, 3, 3, 3]; cum = 0
    for k in range(7 if NB8 else 8):
        if NB8 and k == 6:
            for sl in range(env("F6N", 2)): A.extend(wdma(sl, sl))
            vm.note("f", 2 * env("F6N", 2))
        elif k <= 5:
            sl_ = UV[len(UV) * cum // sum(wts):len(UV) * (cum + wts[k]) // sum(wts)]; cum += wts[k]
            if k >= 1 or NC0 == 2:
                pcs = []
                for part in range(4):
                    dd = g1_dma(k + 2, part); pcs += [dd[:3], dd[3:]]
                vm.note(k + 2, 8)
                for q, dd in enumerate(pcs):
                    A.extend(dd); A.extend(sl_[len(sl_) * q // 8:len(sl_) * (q + 1) // 8])
            else: A.extend(sl_)
        else:
            for sl in range(4 * (k - 6), 4 * (k - 6) + 4): A.extend(wdma(sl, sl))
            vm.note("f", 8)
        A.st(f"pi{k+1}")
        A.extend(vm.wait(k + 1))
        A("s_barrier")
        A.st(f"ab{k+1}")
    if NB8:
        for sl in range(env("F6N", 2), 8): A.extend(wdma(sl, sl))
        A(f"""
        v_mov_b32 v{VT+2}, {L_FLAG+128}
        L_h_rd:
        ds_read_b128 v[32:35], v{VT+2}
        s_waitcnt lgkmcnt(0)
        v_and_b32 v32, v32, v33
        v_and_b32 v34, v34, v35
        v_and_b32 v32, v32, v34
        s_nop 0
        v_readfirstlane_b32 s28, v32
        s_cmp_eq_u32 s28, 1
        s_cbranch_scc0 L_h_rd
        """)
    A.st("loop")
    FE = env("FE", 1)
    if FE:
        for sl in range(8, 12): A.extend(wdma(sl, sl))
    A.label("L_h_tail")
    A(f"s_setprio {env('PRIOX', 1)}")
    lq = LQ(A)
    ar_, mm_ = kg_atoms_m()
    lq.emit(UW)
    for a_ in ar_ + mm_ + kg_atoms_x1(): lq.emit(a_)
    A(f"""
    s_lshl_b32 s28, s39, 2
    s_add_u32 s28, s28, {L_FLAG}
    v_mov_b32 v{VT}, s28
    v_mov_b32 v{VT+1}, 1
    ds_write_b32 v{VT}, v{VT+1} offset:80
    v_xor_b32 v{VT+2}, 4, v{VT}
    """)
    lds_wait(A, "L_h_x1", VT + 2, 80, 32)
    lq.q = []
    for a_ in kg_atoms_x2("g"): lq.emit(a_)
    A("s_setprio 0")
    A.extend(lnflag_load(VT))
    A("s_waitcnt lgkmcnt(0)")
    A.st("ku")
    A(f"v_lshlrev_b32 v18, 4, v0")
    A("s_waitcnt vmcnt(0)")
    u_try(A, 18)
    if not FE:
        A("s_cmp_eq_u32 s79, 7")
        A("s_cbranch_scc1 L_h_nof")
        for sl in range(8, 12): A.extend(wdma(sl, sl))
        A("s_waitcnt vmcnt(0)")
        A.label("L_h_nof")
    A.extend(ring_ready(VT))
    A.st("gend")
    A("s_branch L_conv")
    A.label("L_ln_H2")
    A("s_waitcnt vmcnt(0) ; RESETSB")
    A("ds_write_b32 v5, v6")
    A.extend(UV)
    A("s_branch L_h_tail")

def gen_gemm1(A):
    A(f"""
    s_load_dwordx8 s[56:63], s[0:1], {KA['A_re']}
    s_load_dwordx8 s[64:71], s[0:1], {KA['C_re']}
    """)
    A("s_cmp_lt_u32 s20, 4")
    A("s_cbranch_scc1 L_g1_C")
    param_loads(A, VT1)
    if env("CPF", 1):
        A(f"""
        s_getpc_b64 s[28:29]
        L_pc0:
        s_sub_u32 s28, s28, L_pc0-{KNAME}
        s_subb_u32 s29, s29, 0
        s_lshl_b32 s30, s39, 13
        v_lshl_add_u32 v{VT1+2}, v0, 7, s30
        v_min_u32 v{VT1+2}, L_exit-{KNAME}, v{VT1+2}
        s_cmp_lt_u32 s24, {env("CPFN", 4)}
        s_cselect_b64 exec, -1, 1
        global_load_dword v{VDUM}, v{VT1+2}, s[28:29]
        s_mov_b64 exec, -1
        """)
    A("s_branch L_g1_H")
    A.label("L_g1_C")
    A("s_nop 0 ; RESETSB")
    gen_c1(A)
    A.label("L_g1_H")
    A("s_nop 0 ; RESETSB")
    gen_h1(A)


def gen_ln(A):
    Q, R, O, T = 16, 48, 80, 112
    A(f"""
    s_load_dwordx8 s[56:63], s[0:1], {KA['A_re']}
    s_load_dwordx8 s[64:71], s[0:1], {KA['C_re']}
    v_lshrrev_b32 v1, 3, v0
    v_and_b32 v2, 7, v0
    v_lshlrev_b32 v3, 10, v1
    v_lshl_add_u32 v3, v2, 4, v3
    v_lshlrev_b32 v4, 4, v0
    s_lshl_b32 s25, s21, 6
    s_lshl_b32 s28, s20, 3
    s_add_u32 s25, s25, s28
    s_lshl_b32 s36, s25, 3
    s_add_u32 s36, s36, {WS_STAT}
    s_lshl_b32 s25, s25, 10
    s_add_u32 s26, s25, 4096
    s_waitcnt lgkmcnt(0)
    s_add_u32 s42, s42, {WSOFF}
    s_addc_u32 s43, s43, 0
    s_load_dword s76, s[42:43], {WS_EPOCH}
    """)
    srd(A, 4, "s40", "s41", 2 << 20)
    for t in range(8): A(f"buffer_load_dwordx4 v[{R+4*t}:{R+4*t+3}], v4, s[4:7], s{25 + t//4} offen offset:{(t%4)*1024}")
    srd(A, 12, "s42", "s43", WS_USED)
    A(f"""
    v_mov_b32 v5, 0x3f803f80
    v_mov_b32 v14, 0x00003f80
    v_mov_b32 v15, 0x3f800000
    v_lshlrev_b32 v8, 3, v1
    """)
    S1, S2 = Q, Q + 8
    A("s_setprio 2")
    for t in range(8):
        A(f"s_waitcnt vmcnt({7 - t})")
        for k in range(4):
            r = R + 4 * t + k
            A(f"v_dot2_f32_bf16 v{S1+t}, v{r}, v5, {'0' if k == 0 else f'v{S1+t}'}")
            A(f"v_dot2_f32_bf16 v{S2+t}, v{r}, v{r}, {'0' if k == 0 else f'v{S2+t}'}")
    for r in range(4):
        for S in (S1, S2): A(f"v_permlane32_swap_b32 v{S+r}, v{S+r+4}")
    for r in range(4):
        for S in (S1, S2): A(f"v_add_f32 v{S+r}, v{S+r}, v{S+r+4}")
    for r in range(2):
        for S in (S1, S2): A(f"v_permlane16_swap_b32 v{S+r}, v{S+r+2}")
    for r in range(2):
        for S in (S1, S2): A(f"v_add_f32 v{S+r}, v{S+r}, v{S+r+2}")
    for r in range(2):
        for S in (S1, S2): A(f"v_add_f32_dpp v{S+r}, v{S+r}, v{S+r} row_ror:8 row_mask:0xf bank_mask:0xf")
    A.extend(mask("0xff00ff00"))
    A(f"""
    v_cndmask_b32 v6, v{S1}, v{S1+1}, s[28:29]
    v_cndmask_b32 v7, v{S2}, v{S2+1}, s[28:29]
    s_waitcnt lgkmcnt(0)
    """)
    mktag(A)
    A(f"""
    v_mov_b32 v11, s76
    v_add_f32_dpp v6, v6, v6 quad_perm:[1,0,3,2] row_mask:0xf bank_mask:0xf
    v_add_f32_dpp v7, v7, v7 quad_perm:[1,0,3,2] row_mask:0xf bank_mask:0xf
    v_add_f32_dpp v6, v6, v6 quad_perm:[2,3,0,1] row_mask:0xf bank_mask:0xf
    v_add_f32_dpp v7, v7, v7 quad_perm:[2,3,0,1] row_mask:0xf bank_mask:0xf
    v_add_f32_dpp v6, v6, v6 row_half_mirror row_mask:0xf bank_mask:0xf
    v_add_f32_dpp v7, v7, v7 row_half_mirror row_mask:0xf bank_mask:0xf
    v_mul_f32 v12, {hex(f2u(1/512))}, v6
    v_mul_f32 v13, {hex(f2u(1/512))}, v7
    v_fma_f32 v13, -v12, v12, v13
    v_max_f32 v13, 0, v13
    """)
    round_bf16(A, 13)
    A(f"v_add_f32 v13, {hex(f2u(1e-5))}, v13")
    round_bf16(A, 13)
    A(f"""
    v_sqrt_f32 v13, v13
    v_cvt_pk_bf16_f32 v10, -v12, v13
    s_mov_b32 exec_lo, 0x01010101
    s_mov_b32 exec_hi, 0x01010101
    buffer_store_dwordx2 v[10:11], v8, s[12:15], s36 offen {SC}
    s_mov_b64 exec, -1
    """)
    A.st("b0")
    A("s_setprio 0")
    param_loads(A, T)
    LPF = env("LPF", 0)
    if LPF:
        srd(A, 16, "s48", "s49", 1792 * 1024)
        A(f"""
        s_lshl_b32 s28, s21, 3
        s_add_u32 s28, s28, s20
        s_mul_i32 s28, s28, {56*128}
        v_min_u32 v{T+2}, 55, v0
        v_lshlrev_b32 v{T+2}, 7, v{T+2}
        buffer_load_dword v{VDUM}, v{T+2}, s[16:19], s28 offen
        """)
    A(f"""
    v_and_b32 v13, 0xffff0000, v10
    v_lshlrev_b32 v12, 16, v10
    v_rcp_f32 v5, v13
    s_nop 0
    v_fma_f32 v13, -v13, v5, 1.0
    v_fma_f32 v13, v13, v5, v5
    """)
    for t in range(8):
        A(f"v_readlane_b32 s{56+t}, v12, {8*t}")
        A(f"v_readlane_b32 s{64+t}, v13, {8*t}")
    A(f"""
    v_xor_b32 v5, s20, v2
    v_lshlrev_b32 v6, 10, v0
    v_lshl_add_u32 v6, v5, 4, v6
    """)

    for tp in range(4):
        t0, t1 = 2 * tp, 2 * tp + 1
        for k in range(4):
            for h in range(2):
                e = 2 * k + h
                A(f"v_dot2_f32_bf16 v{T+2*e}, v{R+4*t0+k}, v{14+h}, s{56+t0}")
                A(f"v_dot2_f32_bf16 v{T+2*e+1}, v{R+4*t1+k}, v{14+h}, s{56+t1}")
        for e in range(8): A(f"v_cvt_pk_bf16_f32 v{T+2*e+1}, v{T+2*e}, v{T+2*e+1}")
        for e in range(8):
            A(f"v_lshlrev_b32 v{T+2*e}, 16, v{T+2*e+1}")
            A(f"v_and_b32 v{T+2*e+1}, 0xffff0000, v{T+2*e+1}")
        for e in range(8): A(f"v_pk_mul_f32 v[{T+2*e}:{T+2*e+1}], v[{T+2*e}:{T+2*e+1}], s[{64+t0}:{64+t1}]")
        for e in range(8): A(f"v_cvt_pk_bf16_f32 v{O+4*e+tp}, v{T+2*e}, v{T+2*e+1}")
        if tp == env("LFP", 3):
            w2_setup(A, 28)
            LF = env("LF", 0)
            A("s_cmp_ge_u32 s20, 4")
            A("s_cbranch_scc1 L_ln_nofill")
            for sl in range(LF): A.extend(wdma(sl, sl))
            A.label("L_ln_nofill")
    for e in range(8): A(f"ds_write_b128 v6, v[{O+4*e}:{O+4*e+3}] offset:{e*128}")
    for a_ in flag_zero(): A.extend(a_)
    A.st("g8")
    A(f"""
    s_lshl_b32 s28, s20, 13
    v_lshlrev_b32 v6, 7, v1
    v_lshl_add_u32 v6, v2, 4, v6
    v_add_u32 v6, s28, v6
    v_lshlrev_b32 v7, 12, v1
    v_lshl_add_u32 v7, v2, 4, v7
    s_lshl_b32 s26, s20, 18
    s_lshl_b32 s28, s21, 7
    s_add_u32 s26, s26, s28
    s_add_u32 s26, s26, {WS_XNT}
    s_lshl_b32 s33, s21, 7
    s_add_u32 s33, s33, {WS_FLL}
    """)
    for i in range(8): A(f"v_xor_b32 v{8+i}, {16*i}, v6")
    A("s_waitcnt lgkmcnt(0)")
    A("s_barrier")
    for i in range(8): A(f"ds_read_b128 v[{192+4*i}:{192+4*i+3}], v{8+i} offset:{i*1024}")
    for i in range(8):
        A(f"s_waitcnt lgkmcnt({7-i})")
        A(f"s_add_u32 s25, s26, {i*32768}")
        A(f"buffer_store_dwordx4 v[{192+4*i}:{192+4*i+3}], v7, s[12:15], s25 offen {SC}")
    A.st("loop")
    A(f"""
    s_lshl_b32 s28, s20, 2
    s_add_u32 s28, s28, {L_FLAG+96}
    v_mov_b32 v5, s28
    v_mov_b32 v6, 1
    s_cmp_lt_u32 s20, 4
    s_cbranch_scc1 L_ln_C
    """)
    kg_waddr(A, L_VS, KWA); A.extend(kg_raddr(L_VS, KRA, 28))
    A(f"s_mov_b32 s33, {WS_DUMMY}")
    A("s_waitcnt vmcnt(8)")
    A("s_branch L_kgen_v")
    A.label("L_ln_C")
    A.extend(ya_prefill(T + 2, T + 3, T + 4))
    A(f"""
    v_mov_b32 v30, {L_FLAG+96}
    s_waitcnt vmcnt(0)
    ds_write_b32 v5, v6
    """)
    A.extend(yflag_off()); A.extend(wave_flag("s28", 34))
    A(f"""
    L_ln_cs:
    ds_read_b128 v[36:39], v30
    ds_read_b128 v[40:43], v30 offset:16
    s_waitcnt lgkmcnt(0)
    v_and_b32 v36, v36, v37
    v_and_b32 v38, v38, v39
    v_and_b32 v40, v40, v41
    v_and_b32 v42, v42, v43
    v_and_b32 v36, v36, v38
    v_and_b32 v40, v40, v42
    v_and_b32 v36, v36, v40
    s_nop 0
    v_readfirstlane_b32 s28, v36
    s_cmp_eq_u32 s28, 1
    s_cbranch_scc0 L_ln_cs
    """)
    publish_flag(A, "s33", 32, "l", 0)
    A.st("gstart")
    A(f"s_mov_b32 s33, {WS_DUMMY}")
    for sl in range(12): A.extend(wdma(sl, sl))
    A("s_waitcnt vmcnt(0)")
    for sl in range(12): A.extend(w2tr(sl, sl))
    A(f"""
    v_mov_b32 v28, {L_FLAG+16}
    L_ln_cw:
    ds_read_b128 v[32:35], v28
    s_waitcnt lgkmcnt(0)
    v_and_b32 v32, v32, v33
    v_and_b32 v34, v34, v35
    v_and_b32 v32, v32, v34
    s_nop 0
    v_readfirstlane_b32 s28, v32
    s_cmp_eq_u32 s28, 1
    s_cbranch_scc0 L_ln_cw
    """)
    for sl in range(12): A.extend(wdma(sl, 12 + sl))
    A(f"""
    s_lshl_b32 s28, s20, 8
    s_add_u32 s28, s28, s2
    s_cmp_lg_u32 s28, 255
    s_cbranch_scc1 L_nobump
    v_lshlrev_b32 v28, 8, v0
    s_mov_b32 s30, 0
    L_bump_poll:
    """)
    for k in range(4):
        A(f"s_mov_b32 s28, {WS_FLY + k*16384}")
        A(f"buffer_load_dword v{32+k}, v28, s[12:15], s28 offen {SC}")
    A(f"""
    s_add_u32 s30, s30, 1
    s_waitcnt vmcnt(0)
    v_xor_b32 v32, s76, v32
    v_xor_b32 v33, s76, v33
    v_xor_b32 v34, s76, v34
    v_xor_b32 v35, s76, v35
    v_or3_b32 v32, v32, v33, v34
    v_or_b32 v32, v32, v35
    v_cmp_ne_u32 vcc, 0, v32
    s_cmp_gt_u32 s30, {SPIN}
    s_cbranch_scc1 L_bump_go
    s_cbranch_vccnz L_bump_poll
    L_bump_go:
    s_mov_b32 s28, {WS_EPOCH}
    """)
    A.extend(wave_flag("s28", 28))
    A.label("L_nobump")
    A("s_mov_b32 s37, 1")
    A("s_branch L_gemm2")


def final_addr(A):
    A(f"""
    v_lshrrev_b32 v1, 3, v0
    v_and_b32 v2, 7, v0
    v_lshlrev_b32 v{VOO}, 10, v1
    v_lshl_add_u32 v{VOO}, v2, 4, v{VOO}
    v_lshlrev_b32 v3, 4, v2
    s_lshl_b32 s33, s78, 6
    s_lshl_b32 s28, s20, 3
    s_add_u32 s33, s33, s28
    s_lshl_b32 s33, s33, 10
    s_lshl_b32 s34, s79, 7
    s_add_u32 s33, s33, s34
    """)
def ep_loads():
    o = Asm()
    srd(o, 8, "s50", "s51", 1024)
    o(f"buffer_load_dwordx4 v[{VX}:{VX+3}], v{VOO}, s[4:7], s33 offen")
    o(f"buffer_load_dwordx4 v[{VB2}:{VB2+3}], v3, s[8:11], s34 offen")
    return o.lines


def gen_gemm2(A):
    VHO, VTR2, VP, VT = 13, 14, 18, 22
    ACC, W, H = ACC2, W2R, HR
    if PRIO_G: A(f"s_setprio {PRIO_G}")
    A("s_mov_b32 s22, s33")
    final_addr(A)
    for k in range(4): A(f"v_mov_b32 v{VTR2+k}, v{VTL+k}")
    A(f"""
    v_lshlrev_b32 v{VHO}, 4, v0
    v_lshrrev_b32 v{VT}, 5, v0
    v_xor_b32 v{VT}, v{VT}, v2
    v_and_b32 v{VP}, 31, v0
    v_lshlrev_b32 v{VP}, 8, v{VP}
    v_lshl_add_u32 v{VP}, v{VT}, 4, v{VP}
    v_add_u32 v{VP}, s73, v{VP}
    v_xor_b32 v{VP+1}, 32, v{VP}
    v_xor_b32 v{VP+2}, 64, v{VP}
    v_xor_b32 v{VP+3}, 96, v{VP}
    s_mul_i32 s24, s78, {2*112*1024}
    s_mul_i32 s28, s20, {28*1024}
    s_add_u32 s24, s24, s28
    s_add_u32 s24, s24, {WS_HF}
    s_add_u32 s25, s24, {112*1024}
    s_mul_i32 s26, s20, 7
    s_lshl_b32 s28, s78, 5
    s_add_u32 s26, s26, s28
    s_lshl_b32 s26, s26, 7
    s_add_u32 s26, s26, {WS_FLH}
    v_min_u32 v{VT}, 6, v2
    v_lshlrev_b32 v{VT}, 7, v{VT}
    s_lshl_b32 s28, s20, 2
    s_add_u32 s28, s28, {L_FLAG+16}
    v_mov_b32 v{ACC+4}, s28
    v_mov_b32 v{ACC+5}, 1
    ds_write_b32 v{ACC+4}, v{ACC+5} offset:16
    s_mov_b32 s30, 0
    s_cmp_eq_u32 s37, 1
    s_cbranch_scc1 L_g2_poll
    """)
    A.st("prew")
    A("s_waitcnt vmcnt(0)")
    A.extend(wave_flag("s22", ACC))
    A.st("p2bar")
    A(f"""
    L_g2_rr:
    ds_read_b32 v{ACC+5}, v{ACC+4}
    s_waitcnt lgkmcnt(0)
    v_readfirstlane_b32 s28, v{ACC+5}
    s_cmp_eq_u32 s28, 1
    s_cbranch_scc0 L_g2_rr
    """)
    for sl in range(3): A.extend(w2tr(sl, sl, VTR2))
    for sl in range(12):
        left = min(12, sl + 3) - sl - 1
        A(f"s_waitcnt lgkmcnt({4*left})")
        if sl + 3 < 12: A.extend(w2tr(sl + 3, sl + 3, VTR2))
        if EP and sl == 12 - EP: A(f"buffer_load_dword v{ACC+2}, v{VT}, s[12:15], s26 offen {SC}")
        A.extend(wdma(sl, 12 + sl))
    if EP:
        A(f"""
        s_waitcnt vmcnt({2*EP})
        v_cmp_ne_u32 vcc, s76, v{ACC+2}
        s_cbranch_vccz L_g2_go
        """)
    A.st("s5")
    A.label("L_g2_poll")
    A(f"""
    buffer_load_dword v{ACC+2}, v{VT}, s[12:15], s26 offen {SC}
    s_add_u32 s30, s30, 1
    s_waitcnt vmcnt(0)
    v_cmp_ne_u32 vcc, s76, v{ACC+2}
    s_cmp_gt_u32 s30, {SPIN}
    s_cbranch_scc1 L_g2_go
    s_cbranch_vccnz L_g2_poll
    """)
    A.label("L_g2_go")
    vm = VMQ()
    for sl in range(12 - EP, 12): vm.note(("w", 12 + sl), 2)
    A.st("s6")
    def hload(kp):
        sl = kp % HD
        vm.note(("h", kp), 2)
        return koff("s31", ORDER[kp]) + ["s_add_u32 s27, s31, s24", "s_add_u32 s31, s31, s25",
                                  f"buffer_load_dwordx4 v[{H+8*sl}:{H+8*sl+3}], v{VHO}, s[12:15], s27 offen {SCL}",
                                  f"buffer_load_dwordx4 v[{H+8*sl+4}:{H+8*sl+7}], v{VHO}, s[12:15], s31 offen {SCL}"]
    for kp in range(HD): A.extend(hload(kp))
    if PRIO_G: A(f"s_setprio {env('PRIOG2', 0)}")
    inring = lambda k: ORDER[k] >= 12
    wset = lambda k: ((k % 2) if k < 24 else k - 24) if inring(k) else ORDER[k]
    slot_of = lambda k: (ORDER[k] - 12) % 12
    for kp in range(28 - TS):
        nx = kp + 1
        if TS and kp >= 20 and kp < 24: nx = kp + 4
        if TS and kp >= 24: nx = 99
        if inring(kp): A("s_waitcnt lgkmcnt(0)")
        A.extend(vm.wait(("h", kp)))
        if kp in (4, 9, 14, 19): A.st(f"k{kp}")
        b = W + 8 * wset(kp); sl = kp % HD
        mf = []
        for tb in range(2):
            for db in range(2):
                c = ACC + 32 * tb + 16 * db
                cin = "0" if kp == 0 else f"v[{c}:{c+15}]"
                mf.append(f"v_mfma_f32_32x32x16_bf16 v[{c}:{c+15}], v[{b+4*db}:{b+4*db+3}], v[{H+8*sl+4*tb}:{H+8*sl+4*tb+3}], {cin}")
        A(mf[0])
        if nx < 28 and inring(nx):
            A.extend(vm.wait(("w", ORDER[nx])))
            A.extend(w2tr(slot_of(nx), wset(nx), VTR2))
        A(mf[1])
        if kp >= 1 and kp - 1 + HD < 28: A.extend(hload(kp - 1 + HD))
        A(mf[2])
        if 12 <= ORDER[kp] < 16:
            A.extend(wdma(ORDER[kp] - 12, ORDER[kp] + 12)); vm.note(("w", ORDER[kp] + 12), 2)
        if kp == 20:
            A.extend(ep_loads()); vm.note("ep", 2)
        if kp == env("SIGK", 19):
            A(f"""
            s_lshl_b32 s28, s20, 2
            s_add_u32 s28, s28, {L_FLAG+48}
            v_mov_b32 v{VT}, s28
            v_mov_b32 v{W}, 1
            ds_write_b32 v{VT}, v{W}
            """)
        A(mf[3])
        if kp == 0: A.st("k0")
    pw = lambda tb, db: [f"ds_write_b128 v{VP+q}, v[{ACC+32*tb+16*db+4*q}:{ACC+32*tb+16*db+4*q+3}] offset:{tb*32768+db*128}" for q in range(4)]
    if TS:
        A("s_waitcnt lgkmcnt(0)")
        A.extend(vm.wait(("h", 27)))
        prev = []
        for tb in range(2):
            for db in range(2):
                c = ACC + 32 * tb + 16 * db
                for j, kp in enumerate(range(28 - TS, 28)):
                    b_ = W + 8 * wset(kp); sl = kp % HD
                    A(f"v_mfma_f32_32x32x16_bf16 v[{c}:{c+15}], v[{b_+4*db}:{b_+4*db+3}], v[{H+8*sl+4*tb}:{H+8*sl+4*tb+3}], v[{c}:{c+15}]")
                    if j >= 1 and prev: A.extend(prev[:2]); prev = prev[2:]
                A.extend(prev); prev = pw(tb, db)
        A.st("s7")
        A.extend(prev)
    else:
        A.st("s7")
        for tb in range(2):
            for db in range(2): A.extend(pw(tb, db))
    A("s_waitcnt vmcnt(0) lgkmcnt(0)")
    A("s_branch L_final")


def gen_conv(A):
    if PRIO_C: A(f"s_setprio {PRIO_C}")
    VTA, VF = 32, 36
    VXN, VBW, VOWN, VPAR = 37, 38, 39, 40
    T0 = 42
    dsk = P0 + 7
    ACC = 48; FB = [80, 112]; TB = [144, 208]
    XN = 196
    final_addr(A)
    A(f"""
    s_mov_b32 s21, s39
    s_lshr_b32 s35, s21, 1
    s_and_b32 s36, s21, 1
    s_mul_i32 s38, s35, {CH_SIZE}
    s_add_u32 s38, s38, {L_CH}
    s_lshl_b32 s27, s21, 13
    s_add_u32 s27, s27, {L_ST2}
    s_xor_b32 s32, s27, {ST2}
    v_and_b32 v{T0}, 15, v0
    v_lshrrev_b32 v{T0+1}, 4, v0
    v_and_b32 v{T0+2}, 1, v0
    v_mul_u32_u24 v{T0+2}, {OFF_O + 2 - OFF_E}, v{T0+2}
    s_lshl_b32 s31, s36, 8
    s_sub_u32 s31, s38, s31
    s_add_u32 s29, s31, {OFF_O + 2*2032 - 512 - 192}
    v_lshlrev_b32 v{T0+3}, 1, v{T0}
    v_sub_u32 v{VTA}, s29, v{T0+3}
    v_lshl_add_u32 v{VTA}, v{T0+1}, 4, v{VTA}
    v_sub_u32 v{VTA}, v{VTA}, v{T0+2}
    v_subrev_u32 v{VTA+1}, 1024, v{VTA}
    v_subrev_u32 v{VTA+2}, 2048, v{VTA}
    v_subrev_u32 v{VTA+3}, 3072, v{VTA}
    """)
    def freads(rr, fb): return [f"ds_read_b128 v[{fb+4*m}:{fb+4*m+3}], v{VF} offset:{512*m + 64*(3-rr)}" for m in range(8)]
    def treads(rr, tb):
        o = []
        for i in range(8):
            off = 128 * (1 - (i & 1)) + 16 * (3 - rr)
            o.append(f"ds_read2_b32 v[{tb+4*i}:{tb+4*i+1}], v{VTA+i//2} offset0:{off} offset1:{off+1}")
            o.append(f"ds_read2_b32 v[{tb+4*i+2}:{tb+4*i+3}], v{VTA+i//2} offset0:{off+2} offset1:{off+3}")
        return o
    A(f"""
    v_lshl_add_u32 v19, v0, 4, s38
    s_add_u32 s29, s31, {480 - 192}
    v_lshlrev_b32 v{VF}, 5, v{T0}
    v_lshl_add_u32 v{VF}, v{T0+1}, 4, v{VF}
    v_add_u32 v{VF}, s29, v{VF}
    v_lshlrev_b32 v{VXN}, 5, v{T0}
    v_lshl_add_u32 v{VXN}, v{T0+1}, 3, v{VXN}
    v_add_u32 v{VBW}, s27, v{VXN}
    s_lshl_b32 s28, s36, 11
    s_add_u32 s28, s28, s38
    v_add_u32 v{VXN}, s28, v{VXN}
    v_lshl_add_u32 v{VOWN}, v0, 4, s27
    v_lshl_add_u32 v{VPAR}, v0, 4, s32
    v_mov_b32 v13, 1
    s_lshl_b32 s29, s21, 2
    s_add_u32 s29, s29, {L_FLAG}
    v_mov_b32 v14, s29
    s_xor_b32 s29, s29, 4
    v_mov_b32 v15, s29
    v_lshlrev_b32 v18, 4, v0
    """)
    A(f"""
    L_cv_ex:
    ds_read_b32 v16, v15 offset:64
    s_waitcnt lgkmcnt(0)
    v_readfirstlane_b32 s28, v16
    s_cmp_eq_u32 s28, 1
    s_cbranch_scc0 L_cv_ex
    """)
    A.extend(treads(0, TB[0]))
    A("s_cmp_eq_u32 s37, 1")
    A("s_cbranch_scc1 L_cv_uok")
    u_spin(A, 20, 18)
    A.label("L_cv_uok")
    A("s_waitcnt vmcnt(0)")
    for k in range(4): A(f"ds_write_b128 v19, v[{XL+4*k}:{XL+4*k+3}] offset:{512 + k*1024}")
    A.extend(freads(0, FB[0]))
    A.st("s4")
    if GPK:
        A(f"""
        v_mov_b32 v17, {L_FLAG+32}
        L_cv_gd:
        ds_read_b128 v[20:23], v17
        s_waitcnt lgkmcnt(0)
        v_and_b32 v20, v20, v21
        v_and_b32 v22, v22, v23
        v_and_b32 v20, v20, v22
        s_nop 0
        v_readfirstlane_b32 s28, v20
        s_cmp_eq_u32 s28, 1
        s_cbranch_scc0 L_cv_gd
        """)
    A.st("s5")
    for rp in range(4):
        fb, tb = FB[rp % 2], TB[rp % 2]
        mm = []
        for i in range(8):
            for j in range(i, 8):
                cin = "0" if (rp == 0 and i == 0) else f"v[{ACC+4*j}:{ACC+4*j+3}]"
                mm.append(f"v_mfma_f32_16x16x32_bf16 v[{ACC+4*j}:{ACC+4*j+3}], v[{tb+4*i}:{tb+4*i+3}], v[{fb+4*(j-i)}:{fb+4*(j-i)+3}], {cin}")
        if rp == 1: A.extend(ep_loads())
        if HT and rp == env("HTP", 3):
            A(f"""
            s_lshl_b32 s28, s24, 2
            s_add_u32 s28, s28, s21
            s_mul_i32 s28, s28, {56*128}
            s_mul_i32 s29, s23, {8*112*1024}
            s_add_u32 s28, s28, s29
            s_add_u32 s28, s28, {WS_HF}
            v_min_u32 v{T0}, 55, v0
            v_lshlrev_b32 v{T0}, 7, v{T0}
            buffer_load_dword v20, v{T0}, s[12:15], s28 offen {SC}
            """)
        if rp == 0:
            o = []
            for j in range(8): o += [f"s_waitcnt lgkmcnt({7-j})", mm[j]]
            mm = o + interleave(mm[8:], freads(1, FB[1]) + treads(1, TB[1]), 0, 22)
        else:
            A("s_waitcnt lgkmcnt(0)")
            if rp < 3: mm = interleave(mm, freads(rp + 1, FB[(rp + 1) % 2]) + treads(rp + 1, TB[(rp + 1) % 2]), 0, 26)
            else: mm = interleave(mm, [f"ds_read_b64 v[{XN+2*a_}:{XN+2*a_+1}], v{VXN} offset:{512 + a_*512}" for a_ in range(4)], 0, 8)
        A.extend(mm)
    A.st("s6")
    A("s_cmp_eq_u32 s36, 1")
    A("s_cbranch_scc1 L_cv_x1")
    for a_ in range(4): A(f"ds_write_b128 v{VOWN}, v[{ACC+16+4*a_}:{ACC+16+4*a_+3}] offset:{4096 + a_*1024}")
    A("ds_write_b32 v14, v13")
    A("s_branch L_cv_out")
    A.label("L_cv_x1")
    A("s_nop 7")
    for a_ in range(4): A(f"ds_write_b128 v{VOWN}, v[{ACC+4*a_}:{ACC+4*a_+3}] offset:{4096 + a_*1024}")
    A("ds_write_b32 v14, v13")
    for k in range(16): A(f"v_mov_b32 v{ACC+k}, v{ACC+16+k}")
    A.label("L_cv_out")
    A(f"""
    """)
    A.extend(ya_addr(41, T0))
    A(f"""
    v_mov_b32 v{T0+2}, 0xfffffffe
    s_waitcnt lgkmcnt(5)
    """)
    t = 80; z = 96; YP = 112
    for k in range(8):
        A(f"v_lshlrev_b32 v{t+2*k}, 16, v{XN+k}")
        A(f"v_and_b32 v{t+2*k+1}, 0xffff0000, v{XN+k}")
    for k in range(16): A(f"v_fma_f32 v{ACC+k}, v{t+k}, v{dsk}, v{ACC+k}")
    A.label("L_cv_ps1")
    A(f"""
    ds_read_b32 v16, v15
    s_waitcnt lgkmcnt(0)
    v_readfirstlane_b32 s28, v16
    s_cmp_eq_u32 s28, 1
    s_cbranch_scc0 L_cv_ps1
    """)
    for a_ in range(4): A(f"ds_read_b128 v[{YP+4*a_}:{YP+4*a_+3}], v{VPAR} offset:{4096 + a_*1024}")
    for a_ in range(4):
        A("s_waitcnt lgkmcnt(3)")
        for k in range(4): A(f"v_add_f32 v{ACC+4*a_+k}, v{ACC+4*a_+k}, v{YP+4*a_+k}")
        for k in range(2): A(f"v_cvt_pk_bf16_f32 v{z+2*a_+k}, v{ACC+4*a_+2*k}, v{ACC+4*a_+2*k+1}")
        for k in range(2): A(f"v_min_u32 v{z+2*a_+k}, v{z+2*a_+k}, v{T0+2}")
        A(f"ds_write_b64 v{VBW}, v[{z+2*a_}:{z+2*a_+1}] offset:{a_*512}")
    for h in range(2): A(f"ds_read_b128 v[{t+4*h}:{t+4*h+3}], v{VOWN} offset:{h*1024}")
    for h in range(2):
        A(f"s_waitcnt lgkmcnt({1-h})")
        A(f"buffer_store_dwordx4 v[{t+4*h}:{t+4*h+3}], v41, s[12:15], s{30+h} offen {SC}")
    Y = 160
    A(f"""
    v_lshlrev_b32 v{T0}, 8, v1
    v_lshl_add_u32 v{T0}, v2, 4, v{T0}
    s_lshl_b32 s28, s79, 5
    s_add_u32 s28, s28, s78
    s_lshl_b32 s28, s28, 13
    s_lshl_b32 s29, s21, 11
    s_add_u32 s28, s28, s29
    s_add_u32 s28, s28, {WS_YA}
    v_lshlrev_b32 v{T0+1}, 8, v2
    v_lshl_add_u32 v{T0+1}, v2, 4, v{T0+1}
    v_lshl_add_u32 v{T0+1}, v1, 2, v{T0+1}
    v_add_u32 v{T0+1}, s27, v{T0+1}
    v_mov_b32 v{T0+3}, 0x05040100
    v_mov_b32 v{T0+4}, 0x07060302
    s_mov_b32 s30, 0
    """)
    A.st("s7")
    A(f"""
    v_mov_b32 v17, {L_FLAG+48}
    L_cv_w19:
    s_sleep 2
    ds_read_b128 v[20:23], v17
    s_waitcnt lgkmcnt(0)
    v_and_b32 v20, v20, v21
    v_and_b32 v22, v22, v23
    v_and_b32 v20, v20, v22
    s_nop 0
    v_readfirstlane_b32 s29, v20
    s_cmp_eq_u32 s29, 1
    s_cbranch_scc0 L_cv_w19
    L_cv_poll2:
    buffer_load_dwordx4 v[{Y}:{Y+3}], v{T0}, s[12:15], s28 offen {SC}
    buffer_load_dwordx4 v[{Y+4}:{Y+7}], v{T0}, s[12:15], s28 offen offset:128 {SC}
    s_waitcnt vmcnt(0)
    v_max_u32 v{Y+8}, v{Y}, v{Y+1}
    v_max3_u32 v{Y+8}, v{Y+8}, v{Y+2}, v{Y+3}
    v_max3_u32 v{Y+8}, v{Y+8}, v{Y+4}, v{Y+5}
    v_max3_u32 v{Y+8}, v{Y+8}, v{Y+6}, v{Y+7}
    v_cmp_eq_u32 vcc, -1, v{Y+8}
    s_cbranch_vccz L_cv_got
    s_sleep 4
    s_add_u32 s30, s30, 1
    s_cmp_lt_u32 s30, {SPIN}
    s_cbranch_scc1 L_cv_poll2
    """)
    A.label("L_cv_got")
    A.st("got")
    for k in range(4):
        A(f"v_perm_b32 v{Y+8+2*k}, v{Y+4+k}, v{Y+k}, v{T0+3}")
        A(f"v_perm_b32 v{Y+9+2*k}, v{Y+4+k}, v{Y+k}, v{T0+4}")
    for i in range(8): A(f"ds_write_b32 v{T0+1}, v{Y+8+i} offset:{i*32}")
    A("s_waitcnt lgkmcnt(0)")


def gen_final(A):
    P = 32
    A(f"""
    v_lshlrev_b32 v13, 1, v2
    v_xor_b32 v13, v13, v1
    v_lshlrev_b32 v13, 4, v13
    v_lshl_add_u32 v13, v1, 8, v13
    s_and_b32 s28, s20, 3
    s_lshl_b32 s28, s28, 11
    s_lshr_b32 s29, s20, 2
    s_lshl_b32 s29, s29, 15
    s_add_u32 s28, s28, s29
    v_add_u32 v13, s28, v13
    v_xor_b32 v14, 16, v13
    v_lshrrev_b32 v15, 1, v2
    v_lshlrev_b32 v15, 13, v15
    v_lshl_add_u32 v15, v1, 5, v15
    v_and_b32 v16, 1, v2
    v_lshl_add_u32 v15, v16, 4, v15
    s_mul_i32 s28, s20, 272
    s_add_u32 s28, s28, {L_ST2}
    v_add_u32 v15, s28, v15
    """)
    srd(A, 8, "s52", "s53", 2 << 20)
    X, Yv, B = 64, 72, 80
    def unpack(d, s_):
        for k in range(4):
            A(f"v_lshlrev_b32 v{d+2*k}, 16, v{s_+k}")
            A(f"v_and_b32 v{d+2*k+1}, 0xffff0000, v{s_+k}")
    def pack(d, s_):
        for k in range(4): A(f"v_cvt_pk_bf16_f32 v{d+k}, v{s_+2*k}, v{s_+2*k+1}")
    unpack(X, VX); unpack(B, VB2)
    if not FR:
        for k in range(8): A(f"v_add_f32 v{X+k}, v{X+k}, v{B+k}")
    A("s_barrier")
    A.st("fin")
    A(f"ds_read_b128 v[16:19], v15")
    for w in range(4):
        A(f"ds_read_b128 v[{P+8*w}:{P+8*w+3}], v13 offset:{w*8192}")
        A(f"ds_read_b128 v[{P+8*w+4}:{P+8*w+7}], v14 offset:{w*8192}")
    A("s_waitcnt lgkmcnt(8)")
    unpack(Yv, 16)
    for k in range(8): A(f"v_add_f32 v{X+k}, v{X+k}, v{Yv+k}")
    if FR: pack(20, X); unpack(X, 20)
    A("s_waitcnt lgkmcnt(4)")
    for k in range(8): A(f"v_add_f32 v{P+k}, v{P+k}, v{P+8+k}")
    A("s_waitcnt lgkmcnt(0)")
    for k in range(8): A(f"v_add_f32 v{P+16+k}, v{P+16+k}, v{P+24+k}")
    for k in range(8): A(f"v_add_f32 v{P+k}, v{P+k}, v{P+16+k}")
    if FR:
        pack(24, P); unpack(P, 24)
        for k in range(8): A(f"v_add_f32 v{P+k}, v{P+k}, v{B+k}")
        pack(24, P); unpack(P, 24)
    for k in range(8): A(f"v_add_f32 v{P+k}, v{P+k}, v{X+k}")
    pack(28, P)
    A(f"buffer_store_dwordx4 v[28:31], v{VOO}, s[8:11], s33 offen {os.environ.get('SCO', '')}")
    if STAMPS: A("s_waitcnt vmcnt(0)")
    A.stamp_flush(0)
    A("s_endpgm")


def gen():
    A = Asm()
    A.stamp(0, True); A.stamp(1)
    for k in range(2, 9): A.stamp(k)
    A(f"""
    s_cmp_ge_u32 s2, 256
    s_cbranch_scc1 L_exit
    s_load_dwordx2 s[40:41], s[0:1], {KA['u']}
    s_load_dwordx8 s[44:51], s[0:1], {KA['w1']}
    s_load_dwordx4 s[52:55], s[0:1], {KA['out']}
    s_load_dwordx2 s[42:43], s[0:1], {KA['ws']}
    v_lshrrev_b32 v1, 6, v0
    v_and_b32 v0, 63, v0
    s_and_b32 s23, s2, 7
    s_lshr_b32 s24, s2, 3
    v_readfirstlane_b32 s20, v1
    s_and_b32 s25, s24, 3
    s_lshr_b32 s79, s24, 2
    s_lshl_b32 s78, s23, 2
    s_add_u32 s78, s78, s25
    s_mul_i32 s74, s79, {3584 if ROT & 1 else 0}
    s_and_b32 s74, s74, 0xfffffc00
    s_mul_i32 s75, s25, {7168 if ROT & 2 else 0}
    s_add_u32 s74, s74, s75
    s_sub_u32 s75, s74, {28*1024}
    s_min_u32 s74, s74, s75
    s_mov_b32 s77, 1
    s_and_b32 s39, s20, 3
    s_cmp_eq_u32 s79, 7
    s_cbranch_scc1 L_ln
    """)
    if LOC:
        A("""
        s_and_b32 s21, s24, 1
        s_lshl_b32 s22, s23, 1
        s_add_u32 s21, s21, s22
        s_lshr_b32 s22, s24, 1
        """)
    else:
        A("""
        s_lshr_b32 s21, s23, 1
        s_lshl_b32 s21, s21, 2
        s_add_u32 s21, s21, s25
        s_and_b32 s22, s23, 1
        s_mul_i32 s22, s22, 7
        s_add_u32 s22, s22, s79
        """)
    gen_gemm1(A)
    A.label("L_ln")
    A("s_nop 0 ; RESETSB")
    A("s_mov_b32 s21, s78")
    gen_ln(A)
    A.label("L_gemm2")
    A("s_nop 1 ; RESETSB")
    gen_gemm2(A)
    A.label("L_conv")
    A("s_nop 1 ; RESETSB")
    gen_conv(A)
    A.label("L_final")
    A("s_nop 7")
    gen_final(A)
    A.label("L_exit")
    A("s_endpgm")
    lines = fix_hazards(A.lines, verbose=True)
    check_waits(lines, "s")
    head = open("parallel_sum__ssm_conv_s4__dense_activation_gelu__prompt.s.ref").read().split("; Override launch")[0]
    head += f"; @launch grid=(256,1,1) block=(512,1,1) lds={LDS_TOTAL}\n.amdgcn_target \"amdgcn-amd-amdhsa--gfx950\"\n"
    return head + kernel_section(KNAME, lines, 256, 102, 256)

if __name__ == "__main__":
    out = sys.argv[1] if len(sys.argv) > 1 else "cur8.s"
    open(out, "w").write(gen())
    print("wrote", out)
```

```python
from asmlib import *
import struct, math, os, sys

def f2u(x): return struct.unpack("<I", struct.pack("<f", x))[0]
def env(n, d): return int(os.environ.get(n, str(d)))

KNAME = "parallel_sum__ssm_conv_s4__dense_activation_gelu__prompt_kernel"
KA = dict(u=0, A_re=8, A_im=16, B_re=24, B_im=32, C_re=40, C_im=48, log_dt=56, Dskip=64, Bx=72, w1=80, b1=88, w2=96, b2=104,
          out=112, dbg=120, ws=128)
WS_FLL = 32768
WS_EPOCH = 49152
WS_DUMMY = 53248
WS_STAT = 65536
WS_FLH = 131072
WS_FLY = 262144
WS_HF = 1 << 20
WS_XNT = 8 << 20
WS_YA = 12 << 20
WS_USED = 14 << 20

LOG2E = 1.4426950408889634
GC1 = -2.0 * LOG2E * 0.7978845608028654
GC2 = GC1 * 0.044715

NS, STAGE = 4, 32768
RSL = 12
RING = RSL * 2048
L_KST = 98304; KST = 8704
L_ST2 = 98304; ST2 = 8192
L_CH = 131072; CH_SIZE = 13056
OFF_E, OFF_O = 4608, 8768
L_FLAG = L_CH + 2 * CH_SIZE
L_CS = L_FLAG + 512
LDS_TOTAL = 163840
L_VS = 98304; L_US = 98304

OPT_PF = env("PF", 2)
PRE = env("PRE", 3)
PRIO_C = env("PRIOC", 1)
PRIO_G = env("PRIOG", 2)
PRIO_E = env("PRIOE", 0)
ROT = env("ROT", 3)
BARP = env("BARP", 2)
STATG = env("STATG", 21)
SC = os.environ.get("SC", "sc1")
PFG = [int(x) for x in os.environ.get("PFG", "").split(",") if x]
HD = 9
EPE = env('EPE', 1)
FS = env('FS', 2)
HP = env('HP', 1)
NB8 = env('NB8', 1)
EP = env('EP', 4)
TS = env('TS', 4)
FR = env('FR', 0)
NPK0 = env('NPK0', 3)
NC0 = env('NC0', 3)
WSOFF = env('WSOFF', 0) << 20
SCH = os.environ.get('SCH', SC)
LOC = env('LOC', 0)
GPK = env('GPK', 0)
ULN = env('ULN', 3)
HT = env('HT', 0)
SCL = os.environ.get('SCL', SC)
SPIN = 0x40000

DK, DP, EX, P0 = 224, 128, 160, 244
BF, AF, KG_G, KG_E1, KG_L, KG_V, KG_PK, KG_VW, KG_VRD = 160, 192, 108, 122, 224, 124, 132, 136, 137
L_KS2 = 131072; KS2 = 4352
XL = 180
VDUM, LNF = 252, 253
VX, VB2, VOO = 4, 8, 12
VW2 = 23
W2R, HR, ACC2 = 160, 88, 24
VTL = 24

def srd(A, d, lo, hi, size):
    A(f"s_mov_b32 s{d}, {lo}\ns_mov_b32 s{d+1}, {hi}\ns_mov_b32 s{d+2}, {size}\ns_mov_b32 s{d+3}, 0x00020000")
def round_bf16(A, r):
    A(f"v_cvt_pk_bf16_f32 v{r}, v{r}, v{r}")
    A(f"v_and_b32 v{r}, 0xffff0000, v{r}")
def zipm(*lists):
    o = []
    for k in range(max(len(l) for l in lists)):
        for l in lists:
            if k < len(l): o.append(l[k])
    return o
def mask(lo, hi=None):
    hi = lo if hi is None else hi
    return [f"s_mov_b32 s28, {lo}", f"s_mov_b32 s29, {hi}"]

class VMQ:
    def __init__(self): self.q = []
    def note(self, tag, n=1): self.q.extend([tag] * n)
    def wait(self, *tags):
        idx = max((k for k, t in enumerate(self.q) if t in tags), default=-1)
        if idx < 0: return []
        n = len(self.q) - 1 - idx
        del self.q[:idx + 1]
        return [f"s_waitcnt vmcnt({n})"]
    def younger(self): return len(self.q)

ORDER = [0, 1] + list(range(12, 24)) + list(range(2, 12)) + list(range(24, 28))

def koff(dst, lab, base="s74"):
    return [f"s_add_u32 {dst}, {base}, {lab*1024}", f"s_sub_u32 s75, {dst}, {28*1024}", f"s_min_u32 {dst}, {dst}, s75"]

def slot_addr(sl): return (sl >> 2) * 32768 + (sl & 3) * 2048

def w2_setup(A, vt):
    srd(A, 16, "s48", "s49", 1792 * 1024)
    A(f"""
    v_lshrrev_b32 v{vt}, 2, v0
    v_and_b32 v{vt}, 4, v{vt}
    v_and_b32 v{vt+1}, 7, v0
    v_xor_b32 v{vt}, v{vt}, v{vt+1}
    v_lshrrev_b32 v{vt+1}, 3, v0
    v_lshlrev_b32 v{VW2}, 10, v{vt+1}
    v_lshl_add_u32 v{VW2}, v{vt}, 4, v{VW2}
    s_mul_i32 s72, s39, {448*1024}
    s_lshl_b32 s75, s79, 7
    s_add_u32 s72, s72, s75
    s_lshl_b32 s73, s39, 13
    v_lshrrev_b32 v{vt+1}, 5, v0
    v_bfe_u32 v{vt}, v0, 2, 2
    v_lshl_add_u32 v{VTL}, v{vt+1}, 2, v{vt}
    v_lshlrev_b32 v{VTL}, 7, v{VTL}
    v_bfe_u32 v{vt}, v0, 4, 1
    v_lshl_add_u32 v{VTL}, v{vt}, 5, v{VTL}
    v_and_b32 v{vt}, 3, v0
    v_lshl_add_u32 v{VTL}, v{vt}, 3, v{VTL}
    v_bfe_u32 v{vt}, v0, 3, 1
    v_lshl_add_u32 v{VTL}, v{vt}, 6, v{VTL}
    v_add_u32 v{VTL}, s73, v{VTL}
    v_xor_b32 v{VTL+1}, 64, v{VTL}
    v_add_u32 v{VTL+2}, 0x10000, v{VTL}
    v_add_u32 v{VTL+3}, 0x10000, v{VTL+1}
    """)
def wdma(slot, lab):
    a_ = slot_addr(slot)
    return koff("s31", lab) + [f"s_add_u32 m0, s73, {a_}", "s_lshl4_add_u32 s31, s31, s72",
                               f"buffer_load_dwordx4 v{VW2}, s[16:19], s31 offen lds",
                               f"s_add_u32 m0, s73, {a_+1024}", "s_add_u32 s31, s31, 8192",
                               f"buffer_load_dwordx4 v{VW2}, s[16:19], s31 offen lds"]
def w2tr(slot, ws_, vtl=VTL):
    b = W2R + 8 * ws_; a_ = slot_addr(slot); hi = a_ >> 16; a_ &= 0xffff
    return [f"ds_read_b64_tr_b16 v[{b+4*db+2*sec}:{b+4*db+2*sec+1}], v{vtl+2*hi+db} offset:{a_+sec*1024}" for db in range(2) for sec in range(2)]

def param_loads(A, vt):
    A(f"""
    s_lshr_b32 s28, s39, 1
    s_lshl_b32 s30, s2, 1
    s_add_u32 s30, s30, s28
    v_lshlrev_b32 v{vt}, 1, v0
    v_mov_b32 v{vt+1}, 0
    s_lshl_b32 s29, s30, 8
    s_and_b32 s28, s20, 1
    s_lshl_b32 s28, s28, 7
    s_add_u32 s29, s29, s28
    s_lshl_b32 s30, s30, 1
    s_mov_b32 s18, 1024
    s_mov_b32 s19, 0x00020000
    """)
    for k in range(8): A(f"v_mov_b32 v{P0+k}, 0")
    A("s_waitcnt lgkmcnt(0)")
    for k in (6, 7, 0, 1, 2, 3, 4, 5):
        if k == 0: A("s_mov_b32 s18, 131072")
        A(f"s_mov_b32 s16, s{56+2*k}\ns_mov_b32 s17, s{57+2*k}")
        if k < 6: A(f"buffer_load_short_d16_hi v{P0+k}, v{vt}, s[16:19], s29 offen")
        else: A(f"buffer_load_short_d16_hi v{P0+k}, v{vt+1}, s[16:19], s30 offen")

def lnflag_load(vt):
    return ["s_lshl_b32 s29, s79, 6", "s_lshl_b32 s28, s39, 4", "s_add_u32 s29, s29, s28", "s_lshr_b32 s28, s78, 4", "s_lshl_b32 s28, s28, 9",
            "s_add_u32 s29, s29, s28", f"s_lshl_b32 s29, s29, {FS}", f"s_add_u32 s29, s29, {WS_FLY}",
            f"v_lshlrev_b32 v{vt}, {FS}, v0", f"v_add_u32 v{vt}, {WS_FLL}, v{vt}",
            f"v_and_b32 v{vt+1}, 15, v0", f"v_lshl_add_u32 v{vt+1}, v{vt+1}, {FS}, s29", "s_mov_b32 s28, 0", "s_mov_b32 s29, -1",
            f"v_cndmask_b32 v{vt}, v{vt}, v{vt+1}, s[28:29]",
            f"buffer_load_dword v{LNF}, v{vt}, s[12:15], 0 offen {SC}"]

def u_issue(A, vl16):
    A(f"""
    s_lshr_b32 s28, s39, 1
    s_lshl_b32 s29, s2, 1
    s_add_u32 s29, s29, s28
    s_lshl_b32 s29, s29, 12
    s_add_u32 s29, s29, {WS_XNT}
    """)
    for k in range(4): A(f"buffer_load_dwordx4 v[{XL+4*k}:{XL+4*k+3}], v{vl16}, s[12:15], s29 offen offset:{k*1024} {SC}")

def u_try(A, vl16):
    A(f"""
    v_cmp_ne_u32 vcc, s76, v{LNF}
    s_mov_b32 s37, 0
    s_cbranch_vccnz L_ut_no
    s_mov_b32 s37, 1
    """)
    u_issue(A, vl16)
    A.label("L_ut_no")

def u_spin(A, vt, vl16, tag=''):
    A("s_mov_b32 s30, 0")
    A.label(f"L_us_poll{tag}")
    A.extend(lnflag_load(vt))
    A(f"""
    s_add_u32 s30, s30, 1
    s_waitcnt vmcnt(0)
    v_cmp_ne_u32 vcc, s76, v{LNF}
    s_cmp_gt_u32 s30, {SPIN}
    s_cbranch_scc1 L_us_ok{tag}
    s_cbranch_vccnz L_us_poll{tag}
    """)
    A.label(f"L_us_ok{tag}")
    u_issue(A, vl16)
    A("s_waitcnt vmcnt(0)")

def ya_addr(vd, vt):
    return [f"v_lshrrev_b32 v{vd}, 3, v0", f"v_and_b32 v{vt}, 7, v0", f"v_lshlrev_b32 v{vd}, 13, v{vd}", f"v_lshl_add_u32 v{vd}, v{vt}, 4, v{vd}",
            "s_lshr_b32 s28, s39, 1", "s_lshl_b32 s31, s2, 1", "s_add_u32 s31, s31, s28",
            "s_lshr_b32 s29, s31, 6", "s_lshl_b32 s29, s29, 18", "s_and_b32 s28, s31, 63", "s_lshl_b32 s28, s28, 7", "s_add_u32 s29, s29, s28",
            f"s_add_u32 s29, s29, {WS_YA}", "s_and_b32 s30, s39, 1", "s_lshl_b32 s30, s30, 17", "s_add_u32 s30, s30, s29", "s_add_u32 s31, s30, 65536"]
def ya_prefill(vd, vt, vm4):
    return ya_addr(vd, vt) + [f"v_mov_b32 v{vm4+k}, -1" for k in range(4)] + \
           [f"buffer_store_dwordx4 v[{vm4}:{vm4+3}], v{vd}, s[12:15], s{30+h} offen {SC}" for h in range(2)]

def publish_flag(A, soff, vt, tag, wave, both=False):
    A(f"""
    s_cmp_lg_u32 s20, {wave}
    s_cbranch_scc1 L_pub_skip{tag}
    v_mov_b32 v{vt}, 0
    v_mov_b32 v{vt+1}, s76
    s_mov_b64 exec, 1
    buffer_store_dword v{vt+1}, v{vt}, s[12:15], {soff} offen {SC}
    """)
    if both:
        A(f"""
        s_lshl_b32 s28, s2, 7
        s_add_u32 s28, s28, {WS_FLW}
        buffer_store_dword v{vt+1}, v{vt}, s[12:15], s28 offen {SC}
        """)
    A(f"""
    s_mov_b64 exec, -1
    L_pub_skip{tag}:
    """)
def mktag(A):
    A("s_mul_i32 s76, s76, 0x9E3779B1")
    A("s_add_u32 s76, s76, 0x7F4A7C15")
def arrive(A, tag):
    A(f"""
    s_cmp_lg_u32 s20, 3
    s_cbranch_scc1 L_arr{tag}
    s_atomic_add s77, s[54:55], 0 glc
    L_arr{tag}:
    """)

def coop_prefetch(A, vt):
    A(f"""
    s_lshl_b32 s28, s24, 2
    s_add_u32 s28, s28, s39
    s_lshl_b32 s30, s28, 6
    v_add_u32 v{vt}, s30, v0
    v_mul_u32_u24 v{vt+1}, 0x4925, v{vt}
    v_lshrrev_b32 v{vt+1}, 18, v{vt+1}
    v_mul_u32_u24 v{vt+2}, 14, v{vt+1}
    v_sub_u32 v{vt}, v{vt}, v{vt+2}
    v_lshlrev_b32 v{vt}, 7, v{vt}
    v_mul_u32_u24 v{vt+1}, 3584, v{vt+1}
    v_add_u32 v{vt}, v{vt}, v{vt+1}
    s_and_b32 s29, s23, 1
    s_mul_i32 s29, s29, 1792
    buffer_load_dword v{VDUM}, v{vt}, s[8:11], s29 offen
    s_lshr_b32 s29, s23, 1
    s_lshl_b32 s29, s29, 19
    s_lshl_b32 s30, s28, 13
    s_add_u32 s29, s29, s30
    v_lshlrev_b32 v{vt+2}, 7, v0
    """)
    if env("MP0", 1):
        A(f"""
        s_mul_i32 s31, s23, {28*8192}
        s_add_u32 s31, s31, s30
        s_sub_u32 s31, s31, {64*8192}
        s_cmp_lt_u32 s28, 92
        s_cselect_b32 s31, s31, 0x400000
        s_cmp_lt_u32 s28, 64
        s_cselect_b32 s29, s29, s31
        s_cselect_b32 s16, s40, s48
        s_cselect_b32 s17, s41, s49
        s_cselect_b32 s18, 0x200000, {1792*1024}
        s_mov_b32 s19, 0x00020000
        buffer_load_dword v{VDUM}, v{vt+2}, s[16:19], s29 offen
        """.replace("s_cselect_b32 s18, 0x200000, 1835008", "s_mov_b32 s18, 1835008\n        s_cselect_b32 s18, 0x200000, s18"))
    else:
        A(f"""
        s_cmp_lt_u32 s28, 64
        s_cselect_b32 s29, s29, 0x400000
        buffer_load_dword v{VDUM}, v{vt+2}, s[4:7], s29 offen
        """)
def coop_prefetch2(A, vt):
    srd(A, 16, "s48", "s49", 1792 * 1024)
    A(f"""
    s_lshl_b32 s28, s24, 2
    s_add_u32 s28, s28, s39
    s_mul_i32 s30, s28, 40
    v_add_u32 v{vt}, s30, v0
    v_mul_u32_u24 v{vt+1}, 0x4925, v{vt}
    v_lshrrev_b32 v{vt+1}, 18, v{vt+1}
    v_mul_u32_u24 v{vt+2}, 14, v{vt+1}
    v_sub_u32 v{vt}, v{vt}, v{vt+2}
    v_lshlrev_b32 v{vt}, 7, v{vt}
    v_mul_u32_u24 v{vt+1}, 3584, v{vt+1}
    v_add_u32 v{vt}, v{vt}, v{vt+1}
    s_mul_i32 s30, s28, 23
    v_add_u32 v{vt+1}, s30, v0
    v_min_u32 v{vt+1}, 2559, v{vt+1}
    v_mul_u32_u24 v{vt+2}, 13108, v{vt+1}
    v_lshrrev_b32 v{vt+2}, 16, v{vt+2}
    v_mul_u32_u24 v{vt+3}, 3, v{vt+2}
    v_add_u32 v{vt+1}, v{vt+1}, v{vt+3}
    v_lshlrev_b32 v{vt+1}, 7, v{vt+1}
    v_lshlrev_b32 v{vt+2}, 7, v0
    s_and_b32 s29, s23, 1
    s_mul_i32 s29, s29, 1792
    s_add_u32 s29, s29, {192*3584}
    s_mov_b32 exec_hi, 0xff
    buffer_load_dword v{VDUM}, v{vt}, s[8:11], s29 offen
    s_lshr_b32 s29, s23, 1
    s_lshl_b32 s29, s29, 19
    s_add_u32 s29, s29, 384
    s_mov_b64 exec, 0x7fffff
    buffer_load_dword v{VDUM}, v{vt+1}, s[4:7], s29 offen
    s_lshl_b32 s28, s2, 2
    s_add_u32 s28, s28, s39
    s_lshl_b32 s28, s28, 11
    s_mov_b64 exec, 0xffff
    buffer_load_dword v{VDUM}, v{vt+2}, s[16:19], s28 offen
    s_mov_b64 exec, -1
    """)
def w2_prefetch(vt, piece):
    return ["s_lshl_b32 s28, s24, 2", "s_add_u32 s28, s28, s39", "s_lshl_b32 s28, s28, 14", f"s_add_u32 s28, s28, {piece*8192}",
            f"v_lshlrev_b32 v{vt}, 7, v0", f"buffer_load_dword v{VDUM}, v{vt}, s[16:19], s28 offen"]

def cmul(d, x, y, pk=True):
    P = lambda r: f"v[{r}:{r+1}]"
    assert d != x and d != y
    if pk:
        return [f"v_pk_mul_f32 {P(d)}, {P(x)}, {P(y)} op_sel:[0,0] op_sel_hi:[0,1]",
                f"v_pk_fma_f32 {P(d)}, {P(x)}, {P(y)}, {P(d)} op_sel:[1,1,0] op_sel_hi:[1,0,1] neg_lo:[0,1,0]"]
    return [f"v_mul_f32 v{d}, v{x}, v{y}", f"v_mul_f32 v{d+1}, v{x}, v{y+1}",
            f"v_fma_f32 v{d}, -v{x+1}, v{y+1}, v{d}", f"v_fma_f32 v{d+1}, v{x+1}, v{y}, v{d+1}"]

def kg_common(A, base, T0, Z, WA):
    ar, ai, br, bi, cr, ci, ld, dsk = range(P0, P0 + 8)
    u_ = f2u(LOG2E) & 0xFFFFFF00
    lh = struct.unpack("<f", struct.pack("<I", u_))[0]; ll = LOG2E - lh
    A(f"""
    v_mul_f32 v{T0}, {hex(f2u(lh))}, v{ld}
    v_mul_f32 v{T0+1}, {hex(f2u(ll * math.log(2)))}, v{ld}
    v_exp_f32 v{T0}, v{T0}
    s_nop 0
    v_fma_f32 v{T0}, v{T0}, v{T0+1}, v{T0}
    """)
    round_bf16(A, T0)
    A(f"""
    v_mul_f32 v{Z}, v{T0}, v{ar}
    v_mul_f32 v{Z+1}, v{T0}, v{ai}
    v_mul_f32 v{br}, v{T0}, v{br}
    v_mul_f32 v{bi}, v{T0}, v{bi}
    v_mul_f32 v{Z}, {hex(f2u(LOG2E))}, v{Z}
    v_mul_f32 v{Z+1}, 0.15915494, v{Z+1}
    """)
def kg_waddr(A, base, WA):
    A(f"s_lshl_b32 s28, s39, 13\ns_add_u32 s28, s28, {base}\nv_lshl_add_u32 v{WA}, v0, 2, s28")
    for k in range(1, 16): A(f"v_xor_b32 v{WA+k}, {16*k}, v{WA}")
def kg_raddr(base, d, t):
    o = ["s_lshl_b32 s28, s39, 13", f"s_add_u32 s28, s28, {base}", f"v_and_b32 v{t}, 15, v0", f"v_lshrrev_b32 v{t+1}, 5, v0", f"v_xor_b32 v{t}, v{t}, v{t+1}",
         f"v_and_b32 v{t+1}, 31, v0", f"v_lshlrev_b32 v{t+1}, 8, v{t+1}", f"v_lshl_add_u32 v{d}, v{t}, 4, v{t+1}", f"v_add_u32 v{d}, s28, v{d}"]
    return o + [f"v_xor_b32 v{d+k}, {32*k}, v{d}" for k in range(1, 8)]
def cexp(d, x, t, Z):
    xs = {1: None, 8: hex(f2u(8.0)), 256: hex(f2u(256.0))}[x]
    o = []
    if xs is None: o += [f"v_exp_f32 v{t}, v{Z}", f"v_fract_f32 v{t+1}, v{Z+1}"]
    else: o += [f"v_mul_f32 v{t}, {xs}, v{Z}", f"v_mul_f32 v{t+1}, {xs}, v{Z+1}", f"v_exp_f32 v{t}, v{t}", f"v_fract_f32 v{t+1}, v{t+1}"]
    o += [f"v_cos_f32 v{d}, v{t+1}", f"v_sin_f32 v{d+1}, v{t+1}", f"v_mul_f32 v{d}, v{d}, v{t}", f"v_mul_f32 v{d+1}, v{d+1}, v{t}"]
    return o
KWA = 100
KRA = 116

def gen_kgen_v(A):
    T0, Z, E8, E16, Va, Vb, PKT = 34, 144, 44, 46, 80, 84, 88
    kg_common(A, L_VS, T0, Z, KWA)
    A.extend(cexp(E8, 8, T0, Z))
    A.extend(cmul(E16, E8, E8))
    npk = [0]
    def emit(src, row):
        t = PKT + (npk[0] % 8); npk[0] += 1
        return [f"v_cvt_pk_bf16_f32 v{t}, v{src}, v{src+1}", f"ds_write_b32 v{KWA + (row & 15)}, v{t} offset:{row*256}"]
    A(f"v_mov_b32 v{PKT+7}, 0x00003f80")
    A(f"ds_write_b32 v{KWA}, v{PKT+7}")
    A.extend(emit(E8, 1)); A.extend(emit(E16, 2))
    ev, od = E16, E8
    for j in range(3, 32, 2):
        d1 = Va + 2 * (((j - 3) // 2) % 2)
        d2 = Vb + 2 * (((j - 3) // 2) % 2)
        l1 = cmul(d1, od, E16) + emit(d1, j)
        l2 = (cmul(d2, ev, E16) + emit(d2, j + 1)) if j + 1 < 32 else []
        A.extend(zipm(l1, l2))
        od, ev = d1, d2
    for st in range(8): A(f"ds_read_b128 v[{BF+4*st}:{BF+4*st+3}], v{KRA+st}")

UPK = 192
def kgen_u_lists(rebase):
    T0, Z, E1, G, Lr, Va = 34, 144, 42, 44, 58, 76
    ar, ai, br, bi, cr, ci, ld, dsk = range(P0, P0 + 8)
    cm = lambda d, x, y: cmul(d, x, y, False)
    V = []; Wr = []
    if rebase: V += [f"v_subrev_u32 v{KWA+k}, {rebase}, v{KWA+k}" for k in range(24)]
    V += zipm(cexp(E1, 1, T0 + 2, Z), cexp(G, 256, T0 + 4, Z), cm(Lr, cr, br))
    npk = [0]
    def emit(src, rows):
        t = UPK + npk[0]; npk[0] += 1
        Wr.extend(f"ds_write_b32 v{KWA + (row & 15)}, v{t} offset:{row*256}" for row in rows)
        return [f"v_cvt_pk_bf16_f32 v{t}, v{src}, -v{src+1}"]
    urow = lambda hh, r: 8 * (r >> 2) + 4 * hh + (r & 3)
    lch = emit(Lr, [urow(0, 0)])
    for a_ in range(1, 9): lch += cm(Lr + 2 * a_, Lr + 2 * (a_ - 1), E1) + emit(Lr + 2 * a_, [urow(0, a_)])
    gch = []
    for k in range(2, 8): gch += cm(G + 2 * (k - 1), G + 2 * (k - 2), G)
    V += zipm(lch, gch)
    jobs = [(0, 1, [urow(1, 0), urow(1, 1)]), (2, 1, [urow(1, 2)]), (4, 1, [urow(1, 3), urow(1, 4), urow(1, 5)]), (6, 1, [urow(1, 6)]),
            (8, 1, [urow(1, 7), urow(1, 8)]),
            (0, 2, [urow(0, 9)]), (4, 2, [urow(0, 10)]), (8, 2, [urow(0, 11)]),
            (0, 3, [urow(1, 9)]), (4, 3, [urow(1, 10)]), (8, 3, [urow(1, 11)]),
            (0, 4, [urow(0, 12)]), (8, 4, [urow(0, 13)]), (0, 5, [urow(0, 14)]), (8, 5, [urow(0, 15)]),
            (0, 6, [urow(1, 12)]), (8, 6, [urow(1, 13)]), (0, 7, [urow(1, 14)]), (8, 7, [urow(1, 15)])]
    for k in range(0, len(jobs), 2):
        ls = []
        for q_, (a_, gk, rows) in enumerate(jobs[k:k + 2]):
            d = Va + 4 * q_ + 2 * ((k // 2) % 2)
            ls.append(cm(d, Lr + 2 * a_, G + 2 * (gk - 1)) + emit(d, rows))
        V += zipm(*ls)
    assert npk[0] <= 32
    return V, Wr

def kg_atoms_m():
    at = [[f"ds_read_b128 v[{AF+4*k}:{AF+4*k+3}], v{KRA+k} offset:{L_US - L_VS}", ("tag", ("af", k))] for k in range(8)]
    mm = []
    for st in range(8):
        cin = "0" if st == 0 else f"v[{DK}:{DK+15}]"
        mm.append([("wait", ("af", st)), f"v_mfma_f32_32x32x16_bf16 v[{DK}:{DK+15}], v[{AF+4*st}:{AF+4*st+3}], v[{BF+4*st}:{BF+4*st+3}], {cin}"])
    return at, mm

def kg_atoms_x1():
    T0 = P0
    at = [[f"s_lshr_b32 s30, s39, 1", f"s_mul_i32 s30, s30, {CH_SIZE}", f"s_add_u32 s38, s30, {L_CH}", f"v_lshl_add_u32 v{T0}, v0, 4, s38"]]
    at.append(["s_bitcmp1_b32 s39, 0", "s_cselect_b64 exec, -1, 0"] + [f"ds_write_b128 v{T0}, v[{DK+4*q}:{DK+4*q+3}] offset:{512+q*1024}" for q in range(3)] +
              ["s_not_b64 exec, exec", f"ds_write_b128 v{T0}, v[{DK+12}:{DK+15}] offset:{512+3072}", "s_mov_b64 exec, -1"])
    return at

def kg_atoms_x2(tag):
    T0 = P0; VEA, VEB = 254, 255
    at = []
    at.append([f"ds_read_b128 v[{DP+4*q}:{DP+4*q+3}], v{T0} offset:{512+q*1024}" for q in range(4)] + [("tag", "dp")])
    for i in [f"v_and_b32 v{T0+4}, 31, v0", f"v_lshrrev_b32 v{T0+1}, 5, v0", f"v_lshlrev_b32 v{T0+2}, 4, v{T0+4}"]: at.append([i])
    at.append([f"s_add_u32 s28, s38, {OFF_E + 4080 - 1024}", f"v_sub_u32 v{VEA}, s28, v{T0+2}"])
    at.append([f"v_lshlrev_b32 v{T0+3}, 9, v{T0+1}"]); at.append([f"v_sub_u32 v{VEA}, v{VEA}, v{T0+3}"])
    at.append([f"s_add_u32 s28, s38, {OFF_E + 4080 - 2560}", f"v_sub_u32 v{VEB}, s28, v{T0+2}"])
    at.append([f"v_lshlrev_b32 v{T0+3}, 10, v{T0+1}"]); at.append([f"v_sub_u32 v{VEB}, v{VEB}, v{T0+3}"])
    at.append([f"v_lshl_add_u32 v{T0}, v0, 3, s38"]); at.append([f"v_mov_b32 v{T0+2}, 0"]); at.append([f"v_mov_b32 v{T0+3}, 0"])
    at.append(["s_lshl_b32 s28, s39, 2", f"s_add_u32 s28, s28, {L_FLAG}", f"v_mov_b32 v{T0+1}, s28"])
    for k in range(16): at.append(([("wait", "dp")] if k == 0 else []) + [f"v_add_f32 v{DK+k}, v{DK+k}, v{DP+k}"])
    at.append(mask("0xaaaaaaaa") + [f"v_cndmask_b32 v{DP}, v{DK+12}, v{DK+13}, s[28:29]", f"v_cndmask_b32 v{DP+1}, v{DK+14}, v{DK+15}, s[28:29]"])
    k_ = lambda r: DK + r
    def half(base, kk, va, off, odd):
        prs = [(8, 7), (6, 5), (4, 3), (2, 1)] if odd else [(7, 6), (5, 4), (3, 2), (1, 0)]
        return [f"v_cvt_pk_bf16_f32 v{base+i}, v{kk[lo]}, v{kk[hi]}" for i, (lo, hi) in enumerate(prs)] + \
               [f"ds_write_b128 v{va}, v[{base}:{base+3}] offset:{off + (OFF_O - OFF_E if odd else 0)}"]
    ev = [([k_(i) for i in range(9)], VEA, 1024), ([k_(9)] * 3 + [k_(10)] * 3 + [k_(11)] * 3, VEA, 0)]
    od = [([k_(12)] * 4 + [DP] + [k_(13)] * 4, VEB, 512), ([k_(14)] * 4 + [DP + 1] + [k_(15)] * 4, VEB, 0)]
    n = 0
    for gi in range(2):
        for o_ in range(2):
            b_ = EX + 4 * n
            at.append(["s_bitcmp1_b32 s39, 0", f"s_cbranch_scc1 L_xo{tag}{n}"] + half(b_, *ev[gi], o_)[:-1] + [("nods", half(b_, *ev[gi], o_)[-1]), f"s_branch L_xd{tag}{n}",
                       f"L_xo{tag}{n}:"] + half(b_, *od[gi], o_) + [f"L_xd{tag}{n}:"])
            n += 1
    at.append(["s_bitcmp0_b32 s39, 0", "s_cselect_b64 s[28:29], -1, 0", "s_mov_b64 exec, s[28:29]",
               f"ds_write_b64 v{T0}, v[{T0+2}:{T0+3}]", "s_and_b64 exec, s[28:29], 15",
               f"ds_write_b64 v{T0}, v[{T0+2}:{T0+3}] offset:{OFF_E+4096}", f"ds_write_b64 v{T0}, v[{T0+2}:{T0+3}] offset:{OFF_O+4096}",
               "s_and_b64 exec, s[28:29], 1", f"ds_write_b16_d16_hi v{T0}, v{EX+3} offset:{OFF_O+4096}",
               "s_mov_b64 exec, -1"])
    at.append([f"v_mov_b32 v{T0+2}, 1", f"ds_write_b32 v{T0+1}, v{T0+2} offset:64"])
    return at

def flag_zero():
    return [[f"v_lshlrev_b32 v{VT1}, 2, v0", f"v_mov_b32 v{VT1+1}, 0", f"v_add_u32 v{VT1}, {L_FLAG}, v{VT1}", f"ds_write_b32 v{VT1}, v{VT1+1}"]]

class LQ:
    def __init__(self, A): self.A = A; self.q = []
    def emit(self, items, tag=None):
        maybe0 = any(isinstance(it, str) and "s_cselect_b64" in it for it in items)
        for it in items:
            if maybe0 and isinstance(it, str):
                self.A(it); continue
            if isinstance(it, tuple):
                if it[0] == "tag": self.q[-1] = it[1]
                elif it[0] == "wait": self.wait(it[1])
                elif it[0] == "nods": self.A(it[1])
                continue
            self.A(it)
            if it.strip().startswith("ds_"): self.q.append(tag)
            if "lgkmcnt(0)" in it: self.q = []
    def wait(self, tag):
        idx = max((k for k, t in enumerate(self.q) if t == tag), default=-1)
        if idx < 0: return
        n = min(len(self.q) - 1 - idx, 15)
        self.A(f"s_waitcnt lgkmcnt({n})")
        self.q = self.q[len(self.q) - n:] if n else []

def spread(atoms, g0, g1):
    pts = [(g, p) for g in range(g0, g1) for p in range(2)]
    tot = sum(len(a_) for a_ in atoms); out = {p: [] for p in pts}; acc = 0
    for a_ in atoms:
        out[pts[min(len(pts) - 1, acc * len(pts) // tot)]].append(a_); acc += len(a_)
    return out

VXO, VWO, VXO2 = 1, 2, 3
VXR, VTR = 4, 8
VONE, VHO1, VB1 = 16, 18, 19
VCW, VCR, VSO = 20, 21, 22
VT1 = 28
NR = 3
W1, X1, ACC1, CS = 32, 56, 80, 144
HI = 152
GT, PK, SG = 164, 180, 188
EA, EB = 192, 196
VS, K1r, K3r = 212, 214, 216

def wave_flag(soff, vt):
    return [f"v_mov_b32 v{vt}, 0", f"v_mov_b32 v{vt+1}, s76", "s_mov_b64 exec, 1",
            f"buffer_store_dword v{vt+1}, v{vt}, s[12:15], {soff} offen {SC}", "s_mov_b64 exec, -1"]

def lds_wait(A, name, vaddr, off, vt):
    A(f"""
    {name}:
    ds_read_b32 v{vt}, v{vaddr} offset:{off}
    s_waitcnt lgkmcnt(0)
    v_readfirstlane_b32 s28, v{vt}
    s_cmp_eq_u32 s28, 1
    s_cbranch_scc0 {name}
    """)

def dma_setup(A):
    VT = VT1
    A(f"""
    v_lshrrev_b32 v{VT}, 3, v0
    v_and_b32 v{VT+1}, 7, v0
    v_lshrrev_b32 v{VT+2}, 4, v0
    v_xor_b32 v{VT+3}, v{VT+2}, v{VT+1}
    v_lshlrev_b32 v{VXO}, 10, v{VT}
    v_lshl_add_u32 v{VXO}, v{VT+3}, 4, v{VXO}
    v_xor_b32 v{VXO2}, 64, v{VXO}
    v_add_u32 v{VXO2}, 8192, v{VXO2}
    v_and_b32 v{VT+3}, 15, v0
    v_lshlrev_b32 v{VT}, 2, v{VT+2}
    v_xor_b32 v{VT+3}, v{VT+3}, v{VT}
    v_mul_u32_u24 v{VWO}, 3584, v{VT+2}
    v_lshl_add_u32 v{VWO}, v{VT+3}, 4, v{VWO}
    s_lshl_b32 s25, s21, 17
    s_lshl_b32 s28, s39, 15
    s_add_u32 s25, s25, s28
    s_mul_i32 s26, s39, {16*3584}
    s_lshl_b32 s28, s22, 8
    s_add_u32 s26, s26, s28
    s_lshl_b32 s27, s39, 12
    """)

def g1_dma(kc, part):
    st = (kc % NS) * STAGE
    return [f"s_add_u32 m0, s27, {st + part*1024}", f"s_add_u32 s31, s25, {128*kc + (part//2)*16384}",
            f"buffer_load_dwordx4 v{VXO if part % 2 == 0 else VXO2}, s[4:7], s31 offen lds",
            f"s_add_u32 m0, s27, {st + 16384 + part*1024}", f"s_add_u32 s37, s26, {(64*kc + 4*part)*3584}",
            f"buffer_load_dwordx4 v{VWO}, s[8:11], s37 offen lds"]

def c_setup(A):
    VT = VT1
    A(f"""
    v_and_b32 v{VT}, 31, v0
    v_lshrrev_b32 v{VT+1}, 5, v0
    v_bfe_u32 v{VT+2}, v0, 1, 3
    v_xor_b32 v{VT+2}, v{VT+2}, v{VT+1}
    s_lshl_b32 s31, s34, 1
    v_xor_b32 v{VT+2}, s31, v{VT+2}
    v_lshlrev_b32 v{VXR}, 7, v{VT}
    v_lshl_add_u32 v{VXR}, v{VT+2}, 4, v{VXR}
    s_lshl_b32 s28, s34, 13
    v_add_u32 v{VXR}, s28, v{VXR}
    v_xor_b32 v{VXR+1}, 32, v{VXR}
    v_xor_b32 v{VXR+2}, 64, v{VXR}
    v_xor_b32 v{VXR+3}, 96, v{VXR}
    v_lshlrev_b32 v{VSO}, 3, v0
    v_bfe_u32 v{VT+2}, v0, 2, 2
    v_lshl_add_u32 v{VTR}, v{VT+1}, 3, v{VT+2}
    v_lshlrev_b32 v{VTR}, 8, v{VTR}
    v_bfe_u32 v{VT+3}, v0, 4, 1
    v_lshl_add_u32 v{VTR}, v{VT+3}, 5, v{VTR}
    v_and_b32 v{VT+3}, 3, v0
    v_lshl_add_u32 v{VTR}, v{VT+3}, 3, v{VTR}
    s_lshl_b32 s31, s35, 1
    v_xor_b32 v{VT+2}, s31, v{VT+2}
    v_lshl_add_u32 v{VTR}, v{VT+2}, 6, v{VTR}
    s_lshl_b32 s31, s34, 12
    s_add_u32 s31, s31, 16384
    v_add_u32 v{VTR}, s31, v{VTR}
    """)
    for i in range(4):
        for ft in range(2):
            if i == 0 and ft == 0: continue
            A(f"v_xor_b32 v{VTR+2*i+ft}, {i*4096 + ft*64}, v{VTR}")
    A(f"""
    v_mov_b32 v{VONE}, 0x3f803f80
    v_mov_b32 v{VONE+1}, 0x3f803f80
    v_lshlrev_b32 v{VHO1}, 4, v0
    s_lshl_b32 s33, s21, 1
    s_add_u32 s33, s33, s34
    s_lshl_b32 s36, s33, 9
    s_add_u32 s36, s36, {WS_STAT}
    s_mul_i32 s32, s33, {2*112*1024}
    s_lshl_b32 s28, s22, 1
    s_add_u32 s28, s28, s35
    s_lshl_b32 s29, s28, 12
    s_add_u32 s32, s32, s29
    s_add_u32 s32, s32, {WS_HF}
    s_add_u32 s38, s32, {112*1024}
    """)
    if HP:
        A(f"""
        s_mul_i32 s29, s28, 37
        s_lshr_b32 s29, s29, 8
        s_lshl_b32 s33, s33, 2
        s_add_u32 s33, s33, s29
        s_lshl_b32 s33, s33, 7
        s_mul_i32 s29, s29, 7
        s_sub_u32 s29, s28, s29
        s_lshl_b32 s29, s29, 2
        s_add_u32 s33, s33, s29
        s_add_u32 s33, s33, {WS_FLH}
        """)
    else:
        A(f"""
        s_lshl_b32 s33, s33, 5
        s_add_u32 s33, s33, s28
        s_lshl_b32 s33, s33, 7
        s_add_u32 s33, s33, {WS_FLH}
        """)
    A(f"""
    s_lshl_b32 s29, s20, 8
    v_lshl_add_u32 v{VCW}, v0, 2, s29
    v_add_u32 v{VCW}, {L_CS}, v{VCW}
    v_xor_b32 v{VCR}, 256, v{VCW}
    """)
    srd(A, 16, "s46", "s47", 3584)
    A(f"""
    v_mov_b32 v{VB1}, 0
    v_lshlrev_b32 v{VT1}, 1, v0
    s_lshl_b32 s28, s28, 7
    buffer_load_short_d16_hi v{VB1}, v{VT1}, s[16:19], s28 offen
    """)
    for k in range(20): A(f"v_mov_b32 v{EA+k}, 0")
    for k in range(12): A(f"v_add_u32 v{HI+k}, 0x10000, v{VXR+k}")

def c_reads(g):
    kc, i = divmod(g, 4)
    st = kc % NS
    b = (VXR if st < 2 else HI); off = (st % 2) * STAGE
    sl = g % NR
    tr = lambda ft, sec: f"ds_read_b64_tr_b16 v[{W1+8*sl+4*ft+2*sec}:{W1+8*sl+4*ft+2*sec+1}], v{b+4+2*i+ft} offset:{off + sec*1024}"
    xr = lambda tt: f"ds_read_b128 v[{X1+8*sl+4*tt}:{X1+8*sl+4*tt+3}], v{b+i} offset:{off + tt*4096}"
    return [xr(0), tr(0, 0), tr(0, 1), tr(1, 0), tr(1, 1), xr(1)]

def gen_c1(A):
    VT = VT1
    dma_setup(A)
    A(f"""
    s_and_b32 s34, s20, 1
    s_lshr_b32 s35, s20, 1
    s_waitcnt lgkmcnt(0)
    s_add_u32 s42, s42, {WSOFF}
    s_addc_u32 s43, s43, 0
    s_load_dword s76, s[42:43], {WS_EPOCH}
    """)
    vm = VMQ()
    A.st("ka")
    srd(A, 4, "s40", "s41", 2 << 20)
    srd(A, 8, "s44", "s45", 512 * 3584)
    srd(A, 12, "s42", "s43", WS_USED)
    CSF = env("CSF", 0)
    if CSF: c_setup(A); vm.note("b1")
    if env("PFAT", 1) == -1 and OPT_PF: coop_prefetch(A, VT); vm.note("pf", 2)
    for kc in range(NC0):
        for part in range(4): A.extend(g1_dma(kc, part))
        vm.note(kc, 8)
        A.st(f"i{kc}")
        if kc == 0 and not CSF:
            c_setup(A); vm.note("b1")
        if kc == env("PFAT", 2) and OPT_PF == 1: coop_prefetch(A, VT); vm.note("pf", 2)
        if kc == env("PFAT", 2) and OPT_PF == 2: coop_prefetch2(A, VT); vm.note("pf", 3)
    A.extend(ya_prefill(VT, VT + 1, PK)); vm.note("pre", 2)
    hpre = [f"buffer_store_dwordx4 v[{PK}:{PK+3}], v{VHO1}, s[12:15], s{32 if n < 4 else 38} offen offset:{(n%4)*1024} {SC}" for n in range(8)]
    HPRE = env("HPRE", 0)
    if HPRE == 1: A.extend(hpre); vm.note(2, 8)
    w2_setup(A, VT)
    mpf = ["s_lshl_b32 s28, s2, 2", "s_add_u32 s28, s28, s39", "s_lshl_b32 s28, s28, 11", f"v_lshlrev_b32 v{VT+2}, 7, v0", "s_mov_b64 exec, 0xffff",
           f"buffer_load_dword v{VDUM}, v{VT+2}, s[16:19], s28 offen", "s_mov_b64 exec, -1"]
    MPG = env("MPG", -2 if env("MP0", 1) else 9)
    if MPG == -1: A.extend(mpf); vm.note(2)
    A.st("pre")
    A(vm.wait(0)[0] + " lgkmcnt(0)"); A.st("kg"); A("s_barrier")
    A.st("b0")
    T = GT
    lq = LQ(A)
    lq.emit(c_reads(0), 0); lq.emit(c_reads(1), 1)
    mktag(A)
    def big(g, tt, ft):
        sl = g % NR; c = ACC1 + 32 * tt + 16 * ft
        cin = "0" if g == 0 else f"v[{c}:{c+15}]"
        return f"v_mfma_f32_32x32x16_bf16 v[{c}:{c+15}], v[{W1+8*sl+4*ft}:{W1+8*sl+4*ft+3}], v[{X1+8*sl+4*tt}:{X1+8*sl+4*tt+3}], {cin}"
    for g in range(32):
        kc, i = divmod(g, 4); w = W1 + 8 * (g % NR)
        m = lambda d, b_, z: f"v_mfma_f32_4x4x4_16b_bf16 v[{d}:{d+3}], v[{VONE}:{VONE+1}], v[{b_}:{b_+1}], " + ("0" if z else f"v[{d}:{d+3}]")
        o1, o2 = [], []
        if i < 2 and False: pass
        if i in (0, 2) and g < 28 or g in (28, 29):
            o1 = [m(CS, w, g == 0), m(CS + 4, w + 4, g == 0)]; o2 = [m(CS, w + 2, False), m(CS + 4, w + 6, False)]
        A.st(f"g{g}")
        gn = g + 2
        rd = c_reads(PERM(gn))[:] if gn < 32 else []
        rd = c_reads_slot(gn) if gn < 32 else []
        x1, x2 = [], []
        if i == 2 and kc + 1 < 8: x1 += vm.wait(kc + 1) + ["s_barrier"]
        if g == 30:
            x1 += [f"v_permlane32_swap_b32 v{CS}, v{CS+4}", f"v_add_f32 v{CS}, v{CS}, v{CS+4}", f"ds_write_b32 v{VCW}, v{CS}",
                   "s_waitcnt lgkmcnt(0)", "s_barrier", f"ds_read_b32 v{T+2}, v{VCR}"][:None if not NB8 else 3]
            if NB8:
                x1 += ["s_lshl_b32 s28, s20, 2", f"s_add_u32 s28, s28, {L_FLAG+128}", f"v_mov_b32 v{T}, s28", f"v_mov_b32 v{T+1}, 1",
                       f"ds_write_b32 v{T}, v{T+1}", f"v_xor_b32 v{T}, 4, v{T}"]
        if g == STATG: x2 += [f"buffer_load_dwordx2 v[{SG}:{SG+1}], v{VSO}, s[12:15], s36 offen {SC}"]; vm.note("sg")
        if EPE and g == 23: x2 += ep_early(VT)[:9]
        if EPE and g == 24: x2 += ep_early(VT)[9:]; vm.note("ep", 2)
        if g == MPG: x2 += mpf; vm.note("mpf")
        WM = env("WARM", 0)
        if WM and g == env("WARMG", 10):
            x2 += [f"v_lshlrev_b32 v{VT+2}, 20, v0", f"v_lshlrev_b32 v{VT+3}, 7, v0"]
            if WM & 1: x2 += ["s_mov_b64 exec, 0x3fff", f"buffer_load_dword v{VDUM}, v{VT+2}, s[12:15], 0 offen"]; vm.note("wm")
            if WM & 2: x2 += ["s_mov_b64 exec, 3", f"global_load_dword v{VDUM}, v{VT+2}, s[52:53]"]; vm.note("wm")
            if WM & 4: x2 += ["s_mov_b64 exec, 0xff", f"global_load_dword v{VDUM}, v{VT+3}, s[50:51]"]; vm.note("wm")
            x2 += ["s_mov_b64 exec, -1"]
        if HPRE >= 10 and HPRE <= g < HPRE + 8: x2 += [hpre[g - HPRE]]; vm.note("hp")
        if HPRE == 2 and g == 11:
            x2 += [f"v_and_b32 v{VT+2}, 31, v0", f"v_lshlrev_b32 v{VT+2}, 7, v{VT+2}", "s_mov_b64 exec, 0xffffffff", "s_mov_b32 exec_hi, 0",
                   f"buffer_load_dword v{VDUM}, v{VT+2}, s[12:15], s32 offen", f"buffer_load_dword v{VDUM}, v{VT+2}, s[12:15], s38 offen", "s_mov_b64 exec, -1"]; vm.note("hp", 2)
        if g in PFG:
            n_ = 128 // len(PFG); k_ = PFG.index(g)
            x2 += ["s_lshl_b32 s28, s24, 2", "s_add_u32 s28, s28, s39", "s_lshl_b32 s28, s28, 14", f"s_add_u32 s28, s28, {k_*n_*128}", f"v_lshlrev_b32 v{VT+2}, 7, v0"]
            if n_ < 64: x2 += [f"s_mov_b32 exec_lo, {hex((1 << n_) - 1)}", "s_mov_b32 exec_hi, 0"]
            x2 += [f"buffer_load_dword v{VDUM}, v{VT+2}, s[16:19], s28 offen", "s_mov_b64 exec, -1"]; vm.note("l2")
        if g == env("YFG", 16) - 1: x2 += yflag_off()
        if g == env("YFG", 16): x2 += ["s_waitcnt vmcnt(0)"] + wave_flag("s28", VT); vm.q.clear(); vm.note("yf")
        lq.wait(g)
        A(big(g, 0, 0))
        if i == 2: A.st(f"pb{kc+1}")
        lq.emit(x1)
        if i == 2: A.st(f"ab{kc+1}")
        lq.emit(rd[:2], gn)
        A(big(g, 0, 1)); lq.emit(rd[2:4], gn); A.extend(o1)
        A(big(g, 1, 0)); lq.emit(rd[4:], gn)
        A(big(g, 1, 1)); lq.emit(x2); A.extend(o2)
    A.st("loop")
    if NB8:
        lds_wait(A, "L_c_cs", T, 0, T + 1)
        A(f"ds_read_b32 v{T+2}, v{VCR}")
    A.extend(vm.wait("sg", "b1"))
    A(f"""
    v_cmp_ne_u32 vcc, s76, v{SG+1}
    s_cbranch_vccz L_g1_sok
    s_mov_b32 s30, 0
    L_g1_spoll:
    buffer_load_dwordx2 v[{SG}:{SG+1}], v{VSO}, s[12:15], s36 offen {SC}
    s_add_u32 s30, s30, 1
    s_waitcnt vmcnt(0)
    v_cmp_ne_u32 vcc, s76, v{SG+1}
    s_cmp_gt_u32 s30, {SPIN}
    s_cbranch_scc1 L_g1_sok
    s_cbranch_vccnz L_g1_spoll
    L_g1_sok:
    v_mov_b32 v{SG+1}, v{SG}
    s_mov_b32 s28, -1
    s_mov_b32 s29, 0
    v_permlane32_swap_b32 v{SG}, v{SG+1}
    s_waitcnt lgkmcnt(0)
    v_add_f32 v{T+2}, v{T+2}, v{CS}
    """)
    l1 = []
    for tt in range(2):
        l1 += [f"v_and_b32 v{VS+tt}, 0xffff0000, v{SG+tt}", f"v_and_b32 v{T+8+tt}, 0xffff, v{SG+tt}", f"v_rcp_f32 v{T+6+tt}, v{VS+tt}",
               f"v_lshl_or_b32 v{T+8+tt}, v{T+8+tt}, 16, v{T+8+tt}",
               f"v_cndmask_b32 v{EB+8*tt}, 0, v{T+8+tt}, s[28:29]", f"v_cndmask_b32 v{EB+8*tt+1}, 0, v{SG+tt}, s[28:29]",
               f"v_cndmask_b32 v{EB+8*tt+4}, v{T+8+tt}, 0, s[28:29]", f"v_cndmask_b32 v{EB+8*tt+5}, v{SG+tt}, 0, s[28:29]"]
    l2 = [f"v_and_b32 v{T+3}, 0xffff0000, v{T+2}", f"v_sub_f32 v{T+3}, v{T+2}, v{T+3}", f"v_lshrrev_b32 v{T+2}, 16, v{T+2}",
          f"v_and_b32 v{T+4}, 0xffff0000, v{T+3}", f"v_sub_f32 v{T+5}, v{T+3}, v{T+4}", f"v_or_b32 v{EA}, v{T+2}, v{T+4}",
          f"v_lshrrev_b32 v{T+5}, 16, v{T+5}", f"v_or_b32 v{EA+1}, v{T+5}, v{VB1}"]
    A.extend(zipm(l1, l2))
    l3 = []
    for tt in range(2):
        l3.append([f"v_fma_f32 v{T+10+tt}, -v{VS+tt}, v{T+6+tt}, 1.0", f"v_fma_f32 v{T+6+tt}, v{T+10+tt}, v{T+6+tt}, v{T+6+tt}",
                   f"v_mul_f32 v{K1r+tt}, {hex(f2u(GC1))}, v{T+6+tt}", f"v_mul_f32 v{T+10+tt}, v{T+6+tt}, v{T+6+tt}",
                   f"v_mul_f32 v{K3r+tt}, {hex(f2u(GC2))}, v{T+6+tt}", f"v_mul_f32 v{K3r+tt}, v{K3r+tt}, v{T+10+tt}"])
    l3 = zipm(*l3)
    for tt in range(2):
        for ft in range(2):
            c = ACC1 + 32 * tt + 16 * ft
            A(f"v_mfma_f32_32x32x16_bf16 v[{c}:{c+15}], v[{EA}:{EA+3}], v[{EB+8*tt+4*ft}:{EB+8*tt+4*ft+3}], v[{c}:{c+15}]")
            A.extend(l3[3 * (2 * tt + ft):3 * (2 * tt + ft) + 3])
    A.st("gstart")
    for n in range(8):
        tt = n // 4
        if n == env("PGN", 99): A("s_setprio 2")
        c0 = ACC1 + 8 * n
        t0 = GT + 8 * (n % 2)
        if GPK == 1 and n == NPK0:
            A(f"""
            v_mov_b32 v{VT}, {L_FLAG+80}
            L_c_km:
            ds_read_b128 v[{EA}:{EA+3}], v{VT}
            s_waitcnt lgkmcnt(0)
            v_and_b32 v{EA}, v{EA}, v{EA+1}
            v_and_b32 v{EA+2}, v{EA+2}, v{EA+3}
            v_and_b32 v{EA}, v{EA}, v{EA+2}
            s_nop 0
            v_readfirstlane_b32 s28, v{EA}
            s_cmp_eq_u32 s28, 1
            s_cbranch_scc0 L_c_km
            """)
        if GPK == 2 or (GPK and n >= NPK0):
            P = lambda x: f"v[{x}:{x+1}]"
            sel = f"op_sel:[0,{tt},{tt}] op_sel_hi:[1,{tt},{tt}]"
            for k in range(0, 8, 2): A(f"v_pk_mul_f32 {P(t0+k)}, {P(c0+k)}, {P(c0+k)}")
            for k in range(0, 8, 2): A(f"v_pk_fma_f32 {P(t0+k)}, {P(t0+k)}, {P(K3r)}, {P(K1r)} {sel}")
            for k in range(0, 8, 2): A(f"v_pk_mul_f32 {P(t0+k)}, {P(t0+k)}, {P(c0+k)}")
            for k in range(8): A(f"v_exp_f32 v{t0+k}, v{t0+k}")
            for k in range(0, 8, 2): A(f"v_pk_fma_f32 {P(t0+k)}, {P(t0+k)}, {P(VS)}, {P(VS)} {sel}")
            for k in range(8): A(f"v_rcp_f32 v{t0+k}, v{t0+k}")
            for k in range(0, 8, 2): A(f"v_pk_mul_f32 {P(c0+k)}, {P(c0+k)}, {P(t0+k)}")
        else:
            for k in range(8): A(f"v_mul_f32 v{t0+k}, v{c0+k}, v{c0+k}")
            for k in range(8): A(f"v_fma_f32 v{t0+k}, v{t0+k}, v{K3r+tt}, v{K1r+tt}")
            for k in range(8): A(f"v_mul_f32 v{t0+k}, v{t0+k}, v{c0+k}")
            for k in range(8): A(f"v_exp_f32 v{t0+k}, v{t0+k}")
            for k in range(8): A(f"v_fma_f32 v{t0+k}, v{t0+k}, v{VS+tt}, v{VS+tt}")
            for k in range(8): A(f"v_rcp_f32 v{t0+k}, v{t0+k}")
            for k in range(8): A(f"v_mul_f32 v{c0+k}, v{c0+k}, v{t0+k}")
        pk = PK + 4 * (n % 2)
        for k in range(4): A(f"v_cvt_pk_bf16_f32 v{pk+k}, v{c0+2*k}, v{c0+2*k+1}")
        A(f"buffer_store_dwordx4 v[{pk}:{pk+3}], v{VHO1}, s[12:15], s{32 if tt == 0 else 38} offen offset:{(n%4)*1024} {SCH}")
        if env("DBL", 0): A(f"buffer_store_dwordx4 v[{pk}:{pk+3}], v{VHO1}, s[12:15], s{32 if tt == 0 else 38} offen offset:{(n%4)*1024}")
    A.st("gend")
    A("s_mov_b32 s37, 0")
    A("s_branch L_gemm2")

def PERM(g): return g
def c_reads_slot(g):
    if g < 28: return c_reads(g)
    i = [0, 2, 1, 3][g - 28]
    r = c_reads(28 + i)
    kc = 7; st = kc % NS; b = HI; off = (st % 2) * STAGE; sl = g % NR
    tr = lambda ft, sec: f"ds_read_b64_tr_b16 v[{W1+8*sl+4*ft+2*sec}:{W1+8*sl+4*ft+2*sec+1}], v{b+4+2*i+ft} offset:{off + sec*1024}"
    xr = lambda tt: f"ds_read_b128 v[{X1+8*sl+4*tt}:{X1+8*sl+4*tt+3}], v{b+i} offset:{off + tt*4096}"
    return [xr(0), tr(0, 0), tr(0, 1), tr(1, 0), tr(1, 1), xr(1)]

def yflag_off():
    return ["s_lshr_b32 s28, s39, 1", "s_lshl_b32 s29, s2, 1", "s_add_u32 s28, s28, s29", "s_and_b32 s29, s39, 1", "s_lshl_b32 s29, s29, 9",
            "s_add_u32 s28, s28, s29", f"s_lshl_b32 s28, s28, {FS}", f"s_add_u32 s28, s28, {WS_FLY}"]
def ring_ready(vt):
    return ["s_lshl_b32 s28, s39, 2", f"s_add_u32 s28, s28, {L_FLAG+16}", f"v_mov_b32 v{vt}, s28", f"v_mov_b32 v{vt+1}, 1", f"ds_write_b32 v{vt}, v{vt+1}"]

def gen_h1(A):
    VT = VT1
    vm = VMQ()
    vm.note("prm", 8)
    A(f"s_add_u32 s42, s42, {WSOFF}\ns_addc_u32 s43, s43, 0\ns_load_dword s76, s[42:43], {WS_EPOCH}")
    srd(A, 4, "s40", "s41", 2 << 20)
    srd(A, 8, "s44", "s45", 512 * 3584)
    srd(A, 12, "s42", "s43", WS_USED)
    if env("CPF", 1): vm.note("cpf")
    dma_setup(A)
    w2_setup(A, VT)
    if env("MPF", 0):
        A(f"""
        s_lshl_b32 s28, s2, 2
        s_add_u32 s28, s28, s39
        s_lshl_b32 s28, s28, 11
        v_lshlrev_b32 v{VT+2}, 7, v0
        s_mov_b64 exec, 0xffff
        buffer_load_dword v{VDUM}, v{VT+2}, s[16:19], s28 offen
        s_mov_b64 exec, -1
        """)
    if env("TLBW", 0):
        A(f"""
        v_lshlrev_b32 v{VT+2}, {env("TLBS", 20)}, v0
        s_mov_b64 exec, {hex((1 << (WS_USED >> env("TLBS", 20))) - 1)}
        buffer_load_dword v{VDUM}, v{VT+2}, s[12:15], 0 offen
        s_mov_b64 exec, 3
        buffer_load_dword v{VDUM}, v{VT+2}, s[16:19], 0 offen
        global_load_dword v{VDUM}, v{VT+2}, s[52:53]
        s_mov_b64 exec, 1
        global_load_dword v{VDUM}, v{VT+2}, s[50:51]
        s_mov_b64 exec, -1
        """)
        vm.note("tlb", 4)
    kg_waddr(A, L_VS, KWA); A.extend(kg_raddr(L_VS, KRA, VT))
    for a_ in flag_zero(): A.extend(a_)
    A.st("pre")
    A.extend(vm.wait("prm"))
    A.st("prm")
    A.label("L_kgen_v")
    gen_kgen_v(A)
    A("s_cmp_eq_u32 s79, 7")
    A("s_cbranch_scc1 L_ln_H2")
    A.st("kg")
    A("s_waitcnt lgkmcnt(0)"); A("s_barrier")
    A.st("b0")
    mktag(A)
    UV, UW = kgen_u_lists(0)
    wts = [2, 3, 3, 3, 3, 3]; cum = 0
    for k in range(7 if NB8 else 8):
        if NB8 and k == 6:
            if EPE: A.extend(ep_early(VT)); vm.note("ep", 2)
            for sl in range(env("F6N", 2)): A.extend(wdma(sl, sl))
            vm.note("f", 2 * env("F6N", 2))
        elif k <= 5:
            sl_ = UV[len(UV) * cum // sum(wts):len(UV) * (cum + wts[k]) // sum(wts)]; cum += wts[k]
            if k >= 1 or NC0 == 2:
                pcs = []
                for part in range(4):
                    dd = g1_dma(k + 2, part); pcs += [dd[:3], dd[3:]]
                vm.note(k + 2, 8)
                for q, dd in enumerate(pcs):
                    A.extend(dd); A.extend(sl_[len(sl_) * q // 8:len(sl_) * (q + 1) // 8])
            else: A.extend(sl_)
        else:
            for sl in range(4 * (k - 6), 4 * (k - 6) + 4): A.extend(wdma(sl, sl))
            vm.note("f", 8)
        A.st(f"pi{k+1}")
        A.extend(vm.wait(k + 1))
        A("s_barrier")
        A.st(f"ab{k+1}")
    if NB8:
        for sl in range(env("F6N", 2), 8): A.extend(wdma(sl, sl))
        A(f"""
        v_mov_b32 v{VT+2}, {L_FLAG+128}
        L_h_rd:
        ds_read_b128 v[32:35], v{VT+2}
        s_waitcnt lgkmcnt(0)
        v_and_b32 v32, v32, v33
        v_and_b32 v34, v34, v35
        v_and_b32 v32, v32, v34
        s_nop 0
        v_readfirstlane_b32 s28, v32
        s_cmp_eq_u32 s28, 1
        s_cbranch_scc0 L_h_rd
        """)
    A.st("loop")
    HT2 = env("HT2", 0)
    if not HT2:
        for sl in range(8, 12): A.extend(wdma(sl, sl))
    A.label("L_h_tail")
    A(f"s_setprio {env('PRIOX', 1)}")
    lq = LQ(A)
    ar_, mm_ = kg_atoms_m()
    lq.emit(UW)
    for a_ in ar_: lq.emit(a_)
    if GPK == 2:
        A("s_setprio 0")
        A("s_cmp_eq_u32 s79, 7")
        A("s_cbranch_scc1 L_h_gd2")
        A(f"""
        v_mov_b32 v{VT+2}, {L_FLAG+32}
        L_h_gd:
        s_sleep 1
        ds_read_b128 v[32:35], v{VT+2}
        s_waitcnt lgkmcnt(0)
        v_and_b32 v32, v32, v33
        v_and_b32 v34, v34, v35
        v_and_b32 v32, v32, v34
        s_nop 0
        v_readfirstlane_b32 s28, v32
        s_cmp_eq_u32 s28, 1
        s_cbranch_scc0 L_h_gd
        L_h_gd2:
        """)
        A.extend(lnflag_load(36))
    for a_ in mm_ + kg_atoms_x1(): lq.emit(a_)
    A(f"""
    s_lshl_b32 s28, s39, 2
    s_add_u32 s28, s28, {L_FLAG}
    v_mov_b32 v{VT}, s28
    v_mov_b32 v{VT+1}, 1
    ds_write_b32 v{VT}, v{VT+1} offset:80
    v_xor_b32 v{VT+2}, 4, v{VT}
    """)
    HT3 = env('HT3', 0)
    if HT2 or HT3: A.extend(lnflag_load(36))
    lds_wait(A, "L_h_x1", VT + 2, 80, 32)
    lq.q = []
    for a_ in kg_atoms_x2("g"): lq.emit(a_)
    A("s_setprio 0")
    DF = env("DF", 0)
    if DF:
        A("s_waitcnt vmcnt(0)")
        if DF == 1: A.extend(ring_ready(VT))
        A("s_cmp_eq_u32 s79, 7")
        A("s_cbranch_scc1 L_h_dr2")
        A(f"""
        v_mov_b32 v{VT+2}, {L_FLAG+32}
        L_h_dr:
        s_sleep 1
        ds_read_b128 v[32:35], v{VT+2}
        s_waitcnt lgkmcnt(0)
        v_and_b32 v32, v32, v33
        v_and_b32 v34, v34, v35
        v_and_b32 v32, v32, v34
        s_nop 0
        v_readfirstlane_b32 s28, v32
        s_cmp_eq_u32 s28, 1
        s_cbranch_scc0 L_h_dr
        L_h_dr2:
        """)
    if not HT2 and not HT3 and GPK != 2: A.extend(lnflag_load(VT))
    A.st("ku")
    A(f"v_lshlrev_b32 v18, 4, v0")
    A("s_waitcnt vmcnt(0)")
    u_try(A, 18)
    if HT2:
        A("s_cmp_eq_u32 s79, 7")
        A("s_cbranch_scc1 L_h_nof")
        for sl in range(8, 12): A.extend(wdma(sl, sl))
        A("s_branch L_h_f")
        A.label("L_h_nof")
        A.extend(ring_ready(VT))
        A("s_waitcnt vmcnt(0)")
        A.label("L_h_f")
    else:
        A.extend(ring_ready(VT))
    A.st("gend")
    A("s_branch L_conv")
    A.label("L_ln_H2")
    A("s_waitcnt vmcnt(0) ; RESETSB")
    A("ds_write_b32 v5, v6")
    if EPE: A("s_waitcnt lgkmcnt(0)"); A.extend(ep_early(28))
    A.extend(UV)
    A("s_branch L_h_tail")

def gen_gemm1(A):
    A(f"""
    s_load_dwordx8 s[56:63], s[0:1], {KA['A_re']}
    s_load_dwordx8 s[64:71], s[0:1], {KA['C_re']}
    """)
    A("s_cmp_lt_u32 s20, 4")
    A("s_cbranch_scc1 L_g1_C")
    param_loads(A, VT1)
    if env("CPF", 1):
        A(f"""
        s_getpc_b64 s[28:29]
        L_pc0:
        s_sub_u32 s28, s28, L_pc0-{KNAME}
        s_subb_u32 s29, s29, 0
        s_lshl_b32 s30, s24, 2
        s_add_u32 s30, s30, s39
        s_mul_i32 s30, s30, 384
        v_lshl_add_u32 v{VT1+2}, v0, 7, s30
        v_min_u32 v{VT1+2}, L_exit-{KNAME}, v{VT1+2}
        s_mov_b64 exec, 7
        global_load_dword v{VDUM}, v{VT1+2}, s[28:29]
        s_mov_b64 exec, -1
        """)
    A("s_branch L_g1_H")
    A.label("L_g1_C")
    A("s_nop 0 ; RESETSB")
    gen_c1(A)
    A.label("L_g1_H")
    A("s_nop 0 ; RESETSB")
    gen_h1(A)


def gen_ln(A):
    Q, R, O, T = 16, 48, 80, 112
    A(f"""
    s_load_dwordx8 s[56:63], s[0:1], {KA['A_re']}
    s_load_dwordx8 s[64:71], s[0:1], {KA['C_re']}
    v_lshrrev_b32 v1, 3, v0
    v_and_b32 v2, 7, v0
    v_lshlrev_b32 v3, 10, v1
    v_lshl_add_u32 v3, v2, 4, v3
    v_lshlrev_b32 v4, 4, v0
    s_lshl_b32 s25, s21, 6
    s_lshl_b32 s28, s20, 3
    s_add_u32 s25, s25, s28
    s_lshl_b32 s36, s25, 3
    s_add_u32 s36, s36, {WS_STAT}
    s_lshl_b32 s25, s25, 10
    s_add_u32 s26, s25, 4096
    s_waitcnt lgkmcnt(0)
    s_add_u32 s42, s42, {WSOFF}
    s_addc_u32 s43, s43, 0
    s_load_dword s76, s[42:43], {WS_EPOCH}
    """)
    srd(A, 4, "s40", "s41", 2 << 20)
    for t in range(8): A(f"buffer_load_dwordx4 v[{R+4*t}:{R+4*t+3}], v4, s[4:7], s{25 + t//4} offen offset:{(t%4)*1024}")
    srd(A, 12, "s42", "s43", WS_USED)
    A(f"""
    v_mov_b32 v5, 0x3f803f80
    v_mov_b32 v14, 0x00003f80
    v_mov_b32 v15, 0x3f800000
    v_lshlrev_b32 v8, 3, v1
    """)
    S1, S2 = Q, Q + 8
    A("s_setprio 2")
    for t in range(8):
        A(f"s_waitcnt vmcnt({7 - t})")
        for k in range(4):
            r = R + 4 * t + k
            A(f"v_dot2_f32_bf16 v{S1+t}, v{r}, v5, {'0' if k == 0 else f'v{S1+t}'}")
            A(f"v_dot2_f32_bf16 v{S2+t}, v{r}, v{r}, {'0' if k == 0 else f'v{S2+t}'}")
    for r in range(4):
        for S in (S1, S2): A(f"v_permlane32_swap_b32 v{S+r}, v{S+r+4}")
    for r in range(4):
        for S in (S1, S2): A(f"v_add_f32 v{S+r}, v{S+r}, v{S+r+4}")
    for r in range(2):
        for S in (S1, S2): A(f"v_permlane16_swap_b32 v{S+r}, v{S+r+2}")
    for r in range(2):
        for S in (S1, S2): A(f"v_add_f32 v{S+r}, v{S+r}, v{S+r+2}")
    for r in range(2):
        for S in (S1, S2): A(f"v_add_f32_dpp v{S+r}, v{S+r}, v{S+r} row_ror:8 row_mask:0xf bank_mask:0xf")
    A.extend(mask("0xff00ff00"))
    A(f"""
    v_cndmask_b32 v6, v{S1}, v{S1+1}, s[28:29]
    v_cndmask_b32 v7, v{S2}, v{S2+1}, s[28:29]
    s_waitcnt lgkmcnt(0)
    """)
    mktag(A)
    A(f"""
    v_mov_b32 v11, s76
    v_add_f32_dpp v6, v6, v6 quad_perm:[1,0,3,2] row_mask:0xf bank_mask:0xf
    v_add_f32_dpp v7, v7, v7 quad_perm:[1,0,3,2] row_mask:0xf bank_mask:0xf
    v_add_f32_dpp v6, v6, v6 quad_perm:[2,3,0,1] row_mask:0xf bank_mask:0xf
    v_add_f32_dpp v7, v7, v7 quad_perm:[2,3,0,1] row_mask:0xf bank_mask:0xf
    v_add_f32_dpp v6, v6, v6 row_half_mirror row_mask:0xf bank_mask:0xf
    v_add_f32_dpp v7, v7, v7 row_half_mirror row_mask:0xf bank_mask:0xf
    v_mul_f32 v12, {hex(f2u(1/512))}, v6
    v_mul_f32 v13, {hex(f2u(1/512))}, v7
    v_fma_f32 v13, -v12, v12, v13
    v_max_f32 v13, 0, v13
    """)
    round_bf16(A, 13)
    A(f"v_add_f32 v13, {hex(f2u(1e-5))}, v13")
    round_bf16(A, 13)
    A(f"""
    v_sqrt_f32 v13, v13
    v_cvt_pk_bf16_f32 v10, -v12, v13
    s_mov_b32 exec_lo, 0x01010101
    s_mov_b32 exec_hi, 0x01010101
    buffer_store_dwordx2 v[10:11], v8, s[12:15], s36 offen {SC}
    s_mov_b64 exec, -1
    """)
    A.st("b0")
    A("s_setprio 0")
    param_loads(A, T)
    LPF = env("LPF", 0)
    if LPF:
        srd(A, 16, "s48", "s49", 1792 * 1024)
        A(f"""
        s_lshl_b32 s28, s21, 3
        s_add_u32 s28, s28, s20
        s_mul_i32 s28, s28, {56*128}
        v_min_u32 v{T+2}, 55, v0
        v_lshlrev_b32 v{T+2}, 7, v{T+2}
        buffer_load_dword v{VDUM}, v{T+2}, s[16:19], s28 offen
        """)
    A(f"""
    v_and_b32 v13, 0xffff0000, v10
    v_lshlrev_b32 v12, 16, v10
    v_rcp_f32 v5, v13
    s_nop 0
    v_fma_f32 v13, -v13, v5, 1.0
    v_fma_f32 v13, v13, v5, v5
    """)
    for t in range(8):
        A(f"v_readlane_b32 s{56+t}, v12, {8*t}")
        A(f"v_readlane_b32 s{64+t}, v13, {8*t}")
    A(f"""
    v_xor_b32 v5, s20, v2
    v_lshlrev_b32 v6, 10, v0
    v_lshl_add_u32 v6, v5, 4, v6
    """)

    for tp in range(4):
        t0, t1 = 2 * tp, 2 * tp + 1
        for k in range(4):
            for h in range(2):
                e = 2 * k + h
                A(f"v_dot2_f32_bf16 v{T+2*e}, v{R+4*t0+k}, v{14+h}, s{56+t0}")
                A(f"v_dot2_f32_bf16 v{T+2*e+1}, v{R+4*t1+k}, v{14+h}, s{56+t1}")
        if env("LNX", 1):
            for e in range(8): A(f"v_cvt_pk_bf16_f32 v{T+2*e+1}, v{T+2*e}, v{T+2*e+1}")
            for e in range(8):
                A(f"v_lshlrev_b32 v{T+2*e}, 16, v{T+2*e+1}")
                A(f"v_and_b32 v{T+2*e+1}, 0xffff0000, v{T+2*e+1}")
        for e in range(8): A(f"v_pk_mul_f32 v[{T+2*e}:{T+2*e+1}], v[{T+2*e}:{T+2*e+1}], s[{64+t0}:{64+t1}]")
        for e in range(8): A(f"v_cvt_pk_bf16_f32 v{O+4*e+tp}, v{T+2*e}, v{T+2*e+1}")
        if tp == env("LFP", 3):
            w2_setup(A, 28)
            LF = env("LF", 0)
            A("s_cmp_ge_u32 s20, 4")
            A("s_cbranch_scc1 L_ln_nofill")
            for sl in range(LF): A.extend(wdma(sl, sl))
            A.label("L_ln_nofill")
    for e in range(8): A(f"ds_write_b128 v6, v[{O+4*e}:{O+4*e+3}] offset:{e*128}")
    for a_ in flag_zero(): A.extend(a_)
    A.st("g8")
    A(f"""
    s_lshl_b32 s28, s20, 13
    v_lshlrev_b32 v6, 7, v1
    v_lshl_add_u32 v6, v2, 4, v6
    v_add_u32 v6, s28, v6
    v_lshlrev_b32 v7, 12, v1
    v_lshl_add_u32 v7, v2, 4, v7
    s_lshl_b32 s26, s20, 18
    s_lshl_b32 s28, s21, 7
    s_add_u32 s26, s26, s28
    s_add_u32 s26, s26, {WS_XNT}
    s_lshl_b32 s33, s21, {FS}
    s_add_u32 s33, s33, {WS_FLL}
    """)
    for i in range(8): A(f"v_xor_b32 v{8+i}, {16*i}, v6")
    A("s_waitcnt lgkmcnt(0)")
    A("s_barrier")
    for i in range(8): A(f"ds_read_b128 v[{192+4*i}:{192+4*i+3}], v{8+i} offset:{i*1024}")
    for i in range(8):
        A(f"s_waitcnt lgkmcnt({7-i})")
        A(f"s_add_u32 s25, s26, {i*32768}")
        A(f"buffer_store_dwordx4 v[{192+4*i}:{192+4*i+3}], v7, s[12:15], s25 offen {SC}")
    A.st("loop")
    A(f"""
    s_lshl_b32 s28, s20, 2
    s_add_u32 s28, s28, {L_FLAG+96}
    v_mov_b32 v5, s28
    v_mov_b32 v6, 1
    s_cmp_lt_u32 s20, 4
    s_cbranch_scc1 L_ln_C
    """)
    kg_waddr(A, L_VS, KWA); A.extend(kg_raddr(L_VS, KRA, 28))
    A(f"s_mov_b32 s33, {WS_DUMMY}")
    A("s_waitcnt vmcnt(8)")
    A("s_branch L_kgen_v")
    A.label("L_ln_C")
    A.extend(ya_prefill(T + 2, T + 3, T + 4))
    A(f"""
    v_mov_b32 v30, {L_FLAG+96}
    s_waitcnt vmcnt(0)
    ds_write_b32 v5, v6
    """)
    A.extend(yflag_off()); A.extend(wave_flag("s28", 34))
    A(f"""
    L_ln_cs:
    ds_read_b128 v[36:39], v30
    ds_read_b128 v[40:43], v30 offset:16
    s_waitcnt lgkmcnt(0)
    v_and_b32 v36, v36, v37
    v_and_b32 v38, v38, v39
    v_and_b32 v40, v40, v41
    v_and_b32 v42, v42, v43
    v_and_b32 v36, v36, v38
    v_and_b32 v40, v40, v42
    v_and_b32 v36, v36, v40
    s_nop 0
    v_readfirstlane_b32 s28, v36
    s_cmp_eq_u32 s28, 1
    s_cbranch_scc0 L_ln_cs
    """)
    publish_flag(A, "s33", 32, "l", 0)
    A.st("gstart")
    A(f"s_mov_b32 s33, {WS_DUMMY}")
    if EPE: A.extend(ep_early(28))
    for sl in range(12): A.extend(wdma(sl, sl))
    A("s_waitcnt vmcnt(0)")
    for sl in range(12): A.extend(w2tr(sl, sl))
    A(f"""
    v_mov_b32 v28, {L_FLAG+16}
    L_ln_cw:
    ds_read_b128 v[32:35], v28
    s_waitcnt lgkmcnt(0)
    v_and_b32 v32, v32, v33
    v_and_b32 v34, v34, v35
    v_and_b32 v32, v32, v34
    s_nop 0
    v_readfirstlane_b32 s28, v32
    s_cmp_eq_u32 s28, 1
    s_cbranch_scc0 L_ln_cw
    """)
    for sl in range(12): A.extend(wdma(sl, 12 + sl))
    A(f"""
    s_lshl_b32 s28, s20, 8
    s_add_u32 s28, s28, s2
    s_cmp_lg_u32 s28, 255
    s_cbranch_scc1 L_nobump
    v_lshlrev_b32 v28, {FS+1}, v0
    s_mov_b32 s30, 0
    L_bump_poll:
    """)
    for k in range(4):
        A(f"s_mov_b32 s28, {WS_FLY + k*(128 << FS)}")
        A(f"buffer_load_dword v{32+k}, v28, s[12:15], s28 offen {SC}")
    A(f"""
    s_add_u32 s30, s30, 1
    s_waitcnt vmcnt(0)
    v_xor_b32 v32, s76, v32
    v_xor_b32 v33, s76, v33
    v_xor_b32 v34, s76, v34
    v_xor_b32 v35, s76, v35
    v_or3_b32 v32, v32, v33, v34
    v_or_b32 v32, v32, v35
    v_cmp_ne_u32 vcc, 0, v32
    s_cmp_gt_u32 s30, {SPIN}
    s_cbranch_scc1 L_bump_go
    s_cbranch_vccnz L_bump_poll
    L_bump_go:
    s_mov_b32 s28, {WS_EPOCH}
    """)
    A.extend(wave_flag("s28", 28))
    A.label("L_nobump")
    A("s_mov_b32 s37, 1")
    A("s_branch L_gemm2")


def final_addr(A):
    A(f"""
    v_lshrrev_b32 v1, 3, v0
    v_and_b32 v2, 7, v0
    v_lshlrev_b32 v{VOO}, 10, v1
    v_lshl_add_u32 v{VOO}, v2, 4, v{VOO}
    v_lshlrev_b32 v3, 4, v2
    s_lshl_b32 s33, s78, 6
    s_lshl_b32 s28, s20, 3
    s_add_u32 s33, s33, s28
    s_lshl_b32 s33, s33, 10
    s_lshl_b32 s34, s79, 7
    s_add_u32 s33, s33, s34
    """)
def ep_loads():
    o = Asm()
    srd(o, 8, "s50", "s51", 1024)
    o(f"buffer_load_dwordx4 v[{VX}:{VX+3}], v{VOO}, s[4:7], s33 offen")
    o(f"buffer_load_dwordx4 v[{VB2}:{VB2+3}], v3, s[8:11], s34 offen")
    return o.lines


def ep_early(vt):
    return [f"v_lshrrev_b32 v{vt}, 3, v0", f"v_and_b32 v{vt+1}, 7, v0", f"v_lshlrev_b32 v{vt}, 10, v{vt}", f"v_lshlrev_b32 v{vt+1}, 4, v{vt+1}",
            f"v_add_u32 v{vt}, v{vt}, v{vt+1}", "s_lshl_b32 s29, s78, 6", "s_lshl_b32 s28, s20, 3", "s_add_u32 s29, s29, s28", "s_lshl_b32 s29, s29, 10",
            "s_lshl_b32 s30, s79, 7", "s_add_u32 s29, s29, s30", "s_mov_b32 s8, s50", "s_mov_b32 s9, s51", "s_mov_b32 s10, 1024", "s_mov_b32 s11, 0x00020000",
            f"buffer_load_dwordx4 v[{VX}:{VX+3}], v{vt}, s[4:7], s29 offen", f"buffer_load_dwordx4 v[{VB2}:{VB2+3}], v{vt+1}, s[8:11], s30 offen"]

def gen_gemm2(A):
    VHO, VTR2, VP, VT = 13, 14, 18, 22
    ACC, W, H = ACC2, W2R, HR
    if PRIO_G: A(f"s_setprio {PRIO_G}")
    A("s_mov_b32 s22, s33")
    final_addr(A)
    for k in range(4): A(f"v_mov_b32 v{VTR2+k}, v{VTL+k}")
    A(f"""
    v_lshlrev_b32 v{VHO}, 4, v0
    v_lshrrev_b32 v{VT}, 5, v0
    v_xor_b32 v{VT}, v{VT}, v2
    v_and_b32 v{VP}, 31, v0
    v_lshlrev_b32 v{VP}, 8, v{VP}
    v_lshl_add_u32 v{VP}, v{VT}, 4, v{VP}
    v_add_u32 v{VP}, s73, v{VP}
    v_xor_b32 v{VP+1}, 32, v{VP}
    v_xor_b32 v{VP+2}, 64, v{VP}
    v_xor_b32 v{VP+3}, 96, v{VP}
    s_mul_i32 s24, s78, {2*112*1024}
    s_mul_i32 s28, s20, {28*1024}
    s_add_u32 s24, s24, s28
    s_add_u32 s24, s24, {WS_HF}
    s_add_u32 s25, s24, {112*1024}
    s_mul_i32 s26, s20, {1 if HP else 7}
    s_lshl_b32 s28, s78, {2 if HP else 5}
    s_add_u32 s26, s26, s28
    s_lshl_b32 s26, s26, 7
    s_add_u32 s26, s26, {WS_FLH}
    v_min_u32 v{VT}, 6, v2
    v_lshlrev_b32 v{VT}, {2 if HP else 7}, v{VT}
    s_lshl_b32 s28, s20, 2
    s_add_u32 s28, s28, {L_FLAG+16}
    v_mov_b32 v{ACC+4}, s28
    v_mov_b32 v{ACC+5}, 1
    ds_write_b32 v{ACC+4}, v{ACC+5} offset:16
    s_mov_b32 s30, 0
    s_cmp_eq_u32 s37, 1
    s_cbranch_scc1 L_g2_poll
    """)
    A.st("prew")
    A("s_waitcnt vmcnt(0)")
    A.extend(wave_flag("s22", ACC))
    A.st("p2bar")
    A(f"""
    L_g2_rr:
    ds_read_b32 v{ACC+5}, v{ACC+4}
    s_waitcnt lgkmcnt(0)
    v_readfirstlane_b32 s28, v{ACC+5}
    s_cmp_eq_u32 s28, 1
    s_cbranch_scc0 L_g2_rr
    """)
    for sl in range(3): A.extend(w2tr(sl, sl, VTR2))
    for sl in range(12):
        left = min(12, sl + 3) - sl - 1
        A(f"s_waitcnt lgkmcnt({4*left})")
        if sl + 3 < 12: A.extend(w2tr(sl + 3, sl + 3, VTR2))
        if EP and sl == 12 - EP: A(f"buffer_load_dword v{ACC+2}, v{VT}, s[12:15], s26 offen {SC}")
        A.extend(wdma(sl, 12 + sl))
    if EP:
        A(f"""
        s_waitcnt vmcnt({2*EP})
        v_cmp_ne_u32 vcc, s76, v{ACC+2}
        s_cbranch_vccz L_g2_go
        """)
    A.st("s5")
    A.label("L_g2_poll")
    A(f"""
    buffer_load_dword v{ACC+2}, v{VT}, s[12:15], s26 offen {SC}
    s_add_u32 s30, s30, 1
    s_waitcnt vmcnt(0)
    v_cmp_ne_u32 vcc, s76, v{ACC+2}
    s_cmp_gt_u32 s30, {SPIN}
    s_cbranch_scc1 L_g2_go
    s_cbranch_vccnz L_g2_poll
    """)
    A.label("L_g2_go")
    vm = VMQ()
    for sl in range(12 - EP, 12): vm.note(("w", 12 + sl), 2)
    A.st("s6")
    def hload(kp):
        sl = kp % HD
        vm.note(("h", kp), 2)
        return koff("s31", ORDER[kp]) + ["s_add_u32 s27, s31, s24", "s_add_u32 s31, s31, s25",
                                  f"buffer_load_dwordx4 v[{H+8*sl}:{H+8*sl+3}], v{VHO}, s[12:15], s27 offen {SCL}",
                                  f"buffer_load_dwordx4 v[{H+8*sl+4}:{H+8*sl+7}], v{VHO}, s[12:15], s31 offen {SCL}"]
    H0 = env("H0", 9)
    for kp in range(H0): A.extend(hload(kp))
    nh = [H0]
    def more(kp, n):
        for _ in range(n):
            if nh[0] < 28 and nh[0] <= kp - 1 + HD:
                A.extend(hload(nh[0])); nh[0] += 1
    if PRIO_G: A(f"s_setprio {env('PRIOG2', 0)}")
    inring = lambda k: ORDER[k] >= 12
    wset = lambda k: ((k % 2) if k < 24 else k - 24) if inring(k) else ORDER[k]
    slot_of = lambda k: (ORDER[k] - 12) % 12
    for kp in range(28 - TS):
        nx = kp + 1
        if TS and kp >= 20 and kp < 24: nx = kp + 4
        if TS and kp >= 24: nx = 99
        if inring(kp): A("s_waitcnt lgkmcnt(0)")
        A.extend(vm.wait(("h", kp)))
        if kp in (4, 9, 14, 19): A.st(f"k{kp}")
        b = W + 8 * wset(kp); sl = kp % HD
        mf = []
        for tb in range(2):
            for db in range(2):
                c = ACC + 32 * tb + 16 * db
                cin = "0" if kp == 0 else f"v[{c}:{c+15}]"
                mf.append(f"v_mfma_f32_32x32x16_bf16 v[{c}:{c+15}], v[{b+4*db}:{b+4*db+3}], v[{H+8*sl+4*tb}:{H+8*sl+4*tb+3}], {cin}")
        A(mf[0])
        if nx < 28 and inring(nx):
            A.extend(vm.wait(("w", ORDER[nx])))
            A.extend(w2tr(slot_of(nx), wset(nx), VTR2))
        A(mf[1])
        more(kp, 1)
        A(mf[2])
        more(kp, 1)
        if 12 <= ORDER[kp] < 16:
            A.extend(wdma(ORDER[kp] - 12, ORDER[kp] + 12)); vm.note(("w", ORDER[kp] + 12), 2)
        if kp == 20 and not EPE:
            A.extend(ep_loads()); vm.note("ep", 2)
        if kp == env("SIGK", 19):
            A(f"""
            s_lshl_b32 s28, s20, 2
            s_add_u32 s28, s28, {L_FLAG+48}
            v_mov_b32 v{VT}, s28
            v_mov_b32 v{W}, 1
            ds_write_b32 v{VT}, v{W}
            """)
        A(mf[3])
        if kp == 0: A.st("k0")
    pw = lambda tb, db: [f"ds_write_b128 v{VP+q}, v[{ACC+32*tb+16*db+4*q}:{ACC+32*tb+16*db+4*q+3}] offset:{tb*32768+db*128}" for q in range(4)]
    if TS:
        A("s_waitcnt lgkmcnt(0)")
        A.extend(vm.wait(("h", 27)))
        prev = []
        for tb in range(2):
            for db in range(2):
                c = ACC + 32 * tb + 16 * db
                for j, kp in enumerate(range(28 - TS, 28)):
                    b_ = W + 8 * wset(kp); sl = kp % HD
                    A(f"v_mfma_f32_32x32x16_bf16 v[{c}:{c+15}], v[{b_+4*db}:{b_+4*db+3}], v[{H+8*sl+4*tb}:{H+8*sl+4*tb+3}], v[{c}:{c+15}]")
                    if j >= 1 and prev: A.extend(prev[:2]); prev = prev[2:]
                A.extend(prev); prev = pw(tb, db)
        A.st("s7")
        A.extend(prev)
    else:
        A.st("s7")
        for tb in range(2):
            for db in range(2): A.extend(pw(tb, db))
    A("s_waitcnt vmcnt(0) lgkmcnt(0)")
    A("s_branch L_final")


def gen_conv(A):
    if PRIO_C: A(f"s_setprio {PRIO_C}")
    VTA, VF = 32, 36
    VXN, VBW, VOWN, VPAR = 37, 38, 39, 40
    T0 = 42
    dsk = P0 + 7
    ACC = 48; FB = [80, 112]; TB = [144, 208]
    XN = 196
    final_addr(A)
    A(f"""
    s_mov_b32 s21, s39
    s_lshr_b32 s35, s21, 1
    s_and_b32 s36, s21, 1
    s_mul_i32 s38, s35, {CH_SIZE}
    s_add_u32 s38, s38, {L_CH}
    s_lshl_b32 s27, s21, 13
    s_add_u32 s27, s27, {L_ST2}
    s_xor_b32 s32, s27, {ST2}
    v_and_b32 v{T0}, 15, v0
    v_lshrrev_b32 v{T0+1}, 4, v0
    v_and_b32 v{T0+2}, 1, v0
    v_mul_u32_u24 v{T0+2}, {OFF_O + 2 - OFF_E}, v{T0+2}
    s_lshl_b32 s31, s36, 8
    s_sub_u32 s31, s38, s31
    s_add_u32 s29, s31, {OFF_O + 2*2032 - 512 - 192}
    v_lshlrev_b32 v{T0+3}, 1, v{T0}
    v_sub_u32 v{VTA}, s29, v{T0+3}
    v_lshl_add_u32 v{VTA}, v{T0+1}, 4, v{VTA}
    v_sub_u32 v{VTA}, v{VTA}, v{T0+2}
    v_subrev_u32 v{VTA+1}, 1024, v{VTA}
    v_subrev_u32 v{VTA+2}, 2048, v{VTA}
    v_subrev_u32 v{VTA+3}, 3072, v{VTA}
    """)
    def freads(rr, fb): return [f"ds_read_b128 v[{fb+4*m}:{fb+4*m+3}], v{VF} offset:{512*m + 64*(3-rr)}" for m in range(8)]
    def treads(rr, tb):
        o = []
        for i in range(8):
            off = 128 * (1 - (i & 1)) + 16 * (3 - rr)
            o.append(f"ds_read2_b32 v[{tb+4*i}:{tb+4*i+1}], v{VTA+i//2} offset0:{off} offset1:{off+1}")
            o.append(f"ds_read2_b32 v[{tb+4*i+2}:{tb+4*i+3}], v{VTA+i//2} offset0:{off+2} offset1:{off+3}")
        return o
    A(f"""
    v_lshl_add_u32 v19, v0, 4, s38
    s_add_u32 s29, s31, {480 - 192}
    v_lshlrev_b32 v{VF}, 5, v{T0}
    v_lshl_add_u32 v{VF}, v{T0+1}, 4, v{VF}
    v_add_u32 v{VF}, s29, v{VF}
    v_lshlrev_b32 v{VXN}, 5, v{T0}
    v_lshl_add_u32 v{VXN}, v{T0+1}, 3, v{VXN}
    v_add_u32 v{VBW}, s27, v{VXN}
    s_lshl_b32 s28, s36, 11
    s_add_u32 s28, s28, s38
    v_add_u32 v{VXN}, s28, v{VXN}
    v_lshl_add_u32 v{VOWN}, v0, 4, s27
    v_lshl_add_u32 v{VPAR}, v0, 4, s32
    v_mov_b32 v13, 1
    s_lshl_b32 s29, s21, 2
    s_add_u32 s29, s29, {L_FLAG}
    v_mov_b32 v14, s29
    s_xor_b32 s29, s29, 4
    v_mov_b32 v15, s29
    v_lshlrev_b32 v18, 4, v0
    """)
    A(f"""
    L_cv_ex:
    ds_read_b32 v16, v15 offset:64
    s_waitcnt lgkmcnt(0)
    v_readfirstlane_b32 s28, v16
    s_cmp_eq_u32 s28, 1
    s_cbranch_scc0 L_cv_ex
    """)
    A.extend(treads(0, TB[0]))
    A("s_cmp_eq_u32 s37, 1")
    A("s_cbranch_scc1 L_cv_uok")
    if env("HT2", 0): A("s_waitcnt vmcnt(0)"); A.extend(ring_ready(20))
    u_spin(A, 20, 18)
    A.label("L_cv_uok")
    A(f"s_waitcnt vmcnt({8 if env('HT2', 0) else 0})")
    for k in range(4): A(f"ds_write_b128 v19, v[{XL+4*k}:{XL+4*k+3}] offset:{512 + k*1024}")
    A.extend(freads(0, FB[0]))
    A.st("s4")
    if GPK == 1:
        A(f"""
        v_mov_b32 v17, {L_FLAG+32}
        L_cv_gd:
        ds_read_b128 v[20:23], v17
        s_waitcnt lgkmcnt(0)
        v_and_b32 v20, v20, v21
        v_and_b32 v22, v22, v23
        v_and_b32 v20, v20, v22
        s_nop 0
        v_readfirstlane_b32 s28, v20
        s_cmp_eq_u32 s28, 1
        s_cbranch_scc0 L_cv_gd
        """)
    A.st("s5")
    for rp in range(4):
        fb, tb = FB[rp % 2], TB[rp % 2]
        mm = []
        for i in range(8):
            for j in range(i, 8):
                cin = "0" if (rp == 0 and i == 0) else f"v[{ACC+4*j}:{ACC+4*j+3}]"
                mm.append(f"v_mfma_f32_16x16x32_bf16 v[{ACC+4*j}:{ACC+4*j+3}], v[{tb+4*i}:{tb+4*i+3}], v[{fb+4*(j-i)}:{fb+4*(j-i)+3}], {cin}")
        if rp == 1:
            if env("HT2", 0): A("s_waitcnt vmcnt(0)"); A.extend(ring_ready(20))
            if not EPE: A.extend(ep_loads())
        if HT and rp == env("HTP", 3):
            A(f"""
            s_lshl_b32 s28, s24, 2
            s_add_u32 s28, s28, s21
            s_mul_i32 s28, s28, {56*128}
            s_mul_i32 s29, s23, {8*112*1024}
            s_add_u32 s28, s28, s29
            s_add_u32 s28, s28, {WS_HF}
            v_min_u32 v{T0}, 55, v0
            v_lshlrev_b32 v{T0}, 7, v{T0}
            buffer_load_dword v20, v{T0}, s[12:15], s28 offen {SC}
            """)
        if rp == 0:
            o = []
            for j in range(8): o += [f"s_waitcnt lgkmcnt({7-j})", mm[j]]
            mm = o + interleave(mm[8:], freads(1, FB[1]) + treads(1, TB[1]), 0, 22)
        else:
            A("s_waitcnt lgkmcnt(0)")
            if rp < 3: mm = interleave(mm, freads(rp + 1, FB[(rp + 1) % 2]) + treads(rp + 1, TB[(rp + 1) % 2]), 0, 26)
            else: mm = interleave(mm, [f"ds_read_b64 v[{XN+2*a_}:{XN+2*a_+1}], v{VXN} offset:{512 + a_*512}" for a_ in range(4)], 0, 8)
        A.extend(mm)
    A.st("s6")
    A("s_cmp_eq_u32 s36, 1")
    A("s_cbranch_scc1 L_cv_x1")
    for a_ in range(4): A(f"ds_write_b128 v{VOWN}, v[{ACC+16+4*a_}:{ACC+16+4*a_+3}] offset:{4096 + a_*1024}")
    A("ds_write_b32 v14, v13")
    A("s_branch L_cv_out")
    A.label("L_cv_x1")
    A("s_nop 7")
    for a_ in range(4): A(f"ds_write_b128 v{VOWN}, v[{ACC+4*a_}:{ACC+4*a_+3}] offset:{4096 + a_*1024}")
    A("ds_write_b32 v14, v13")
    for k in range(16): A(f"v_mov_b32 v{ACC+k}, v{ACC+16+k}")
    A.label("L_cv_out")
    A(f"""
    """)
    A.extend(ya_addr(41, T0))
    A(f"""
    v_mov_b32 v{T0+2}, 0xfffffffe
    s_waitcnt lgkmcnt(5)
    """)
    t = 80; z = 96; YP = 112
    for k in range(8):
        A(f"v_lshlrev_b32 v{t+2*k}, 16, v{XN+k}")
        A(f"v_and_b32 v{t+2*k+1}, 0xffff0000, v{XN+k}")
    for k in range(16): A(f"v_fma_f32 v{ACC+k}, v{t+k}, v{dsk}, v{ACC+k}")
    A.label("L_cv_ps1")
    A(f"""
    ds_read_b32 v16, v15
    s_waitcnt lgkmcnt(0)
    v_readfirstlane_b32 s28, v16
    s_cmp_eq_u32 s28, 1
    s_cbranch_scc0 L_cv_ps1
    """)
    for a_ in range(4): A(f"ds_read_b128 v[{YP+4*a_}:{YP+4*a_+3}], v{VPAR} offset:{4096 + a_*1024}")
    for a_ in range(4):
        A("s_waitcnt lgkmcnt(3)")
        for k in range(4): A(f"v_add_f32 v{ACC+4*a_+k}, v{ACC+4*a_+k}, v{YP+4*a_+k}")
        for k in range(2): A(f"v_cvt_pk_bf16_f32 v{z+2*a_+k}, v{ACC+4*a_+2*k}, v{ACC+4*a_+2*k+1}")
        for k in range(2): A(f"v_min_u32 v{z+2*a_+k}, v{z+2*a_+k}, v{T0+2}")
        A(f"ds_write_b64 v{VBW}, v[{z+2*a_}:{z+2*a_+1}] offset:{a_*512}")
    for h in range(2): A(f"ds_read_b128 v[{t+4*h}:{t+4*h+3}], v{VOWN} offset:{h*1024}")
    for h in range(2):
        A(f"s_waitcnt lgkmcnt({1-h})")
        A(f"buffer_store_dwordx4 v[{t+4*h}:{t+4*h+3}], v41, s[12:15], s{30+h} offen {SC}")
    Y = 160
    A(f"""
    v_lshlrev_b32 v{T0}, 8, v1
    v_lshl_add_u32 v{T0}, v2, 4, v{T0}
    s_lshl_b32 s28, s79, 5
    s_add_u32 s28, s28, s78
    s_lshl_b32 s28, s28, 13
    s_lshl_b32 s29, s21, 11
    s_add_u32 s28, s28, s29
    s_add_u32 s28, s28, {WS_YA}
    v_lshlrev_b32 v{T0+1}, 8, v2
    v_lshl_add_u32 v{T0+1}, v2, 4, v{T0+1}
    v_lshl_add_u32 v{T0+1}, v1, 2, v{T0+1}
    v_add_u32 v{T0+1}, s27, v{T0+1}
    v_mov_b32 v{T0+3}, 0x05040100
    v_mov_b32 v{T0+4}, 0x07060302
    s_mov_b32 s30, 0
    """)
    A.st("s7")
    A(f"""
    v_mov_b32 v17, {L_FLAG+48}
    L_cv_w19:
    s_sleep 2
    ds_read_b128 v[20:23], v17
    s_waitcnt lgkmcnt(0)
    v_and_b32 v20, v20, v21
    v_and_b32 v22, v22, v23
    v_and_b32 v20, v20, v22
    s_nop 0
    v_readfirstlane_b32 s29, v20
    s_cmp_eq_u32 s29, 1
    s_cbranch_scc0 L_cv_w19
    L_cv_poll2:
    buffer_load_dwordx4 v[{Y}:{Y+3}], v{T0}, s[12:15], s28 offen {SC}
    buffer_load_dwordx4 v[{Y+4}:{Y+7}], v{T0}, s[12:15], s28 offen offset:128 {SC}
    s_waitcnt vmcnt(0)
    v_max_u32 v{Y+8}, v{Y}, v{Y+1}
    v_max3_u32 v{Y+8}, v{Y+8}, v{Y+2}, v{Y+3}
    v_max3_u32 v{Y+8}, v{Y+8}, v{Y+4}, v{Y+5}
    v_max3_u32 v{Y+8}, v{Y+8}, v{Y+6}, v{Y+7}
    v_cmp_eq_u32 vcc, -1, v{Y+8}
    s_cbranch_vccz L_cv_got
    s_sleep 4
    s_add_u32 s30, s30, 1
    s_cmp_lt_u32 s30, {SPIN}
    s_cbranch_scc1 L_cv_poll2
    """)
    A.label("L_cv_got")
    A.st("got")
    for k in range(4):
        A(f"v_perm_b32 v{Y+8+2*k}, v{Y+4+k}, v{Y+k}, v{T0+3}")
        A(f"v_perm_b32 v{Y+9+2*k}, v{Y+4+k}, v{Y+k}, v{T0+4}")
    for i in range(8): A(f"ds_write_b32 v{T0+1}, v{Y+8+i} offset:{i*32}")
    A("s_waitcnt lgkmcnt(0)")


def gen_final(A):
    P = 32
    A(f"""
    v_lshlrev_b32 v13, 1, v2
    v_xor_b32 v13, v13, v1
    v_lshlrev_b32 v13, 4, v13
    v_lshl_add_u32 v13, v1, 8, v13
    s_and_b32 s28, s20, 3
    s_lshl_b32 s28, s28, 11
    s_lshr_b32 s29, s20, 2
    s_lshl_b32 s29, s29, 15
    s_add_u32 s28, s28, s29
    v_add_u32 v13, s28, v13
    v_xor_b32 v14, 16, v13
    v_lshrrev_b32 v15, 1, v2
    v_lshlrev_b32 v15, 13, v15
    v_lshl_add_u32 v15, v1, 5, v15
    v_and_b32 v16, 1, v2
    v_lshl_add_u32 v15, v16, 4, v15
    s_mul_i32 s28, s20, 272
    s_add_u32 s28, s28, {L_ST2}
    v_add_u32 v15, s28, v15
    """)
    srd(A, 8, "s52", "s53", 2 << 20)
    X, Yv, B = 64, 72, 80
    def unpack(d, s_):
        for k in range(4):
            A(f"v_lshlrev_b32 v{d+2*k}, 16, v{s_+k}")
            A(f"v_and_b32 v{d+2*k+1}, 0xffff0000, v{s_+k}")
    def pack(d, s_):
        for k in range(4): A(f"v_cvt_pk_bf16_f32 v{d+k}, v{s_+2*k}, v{s_+2*k+1}")
    unpack(X, VX); unpack(B, VB2)
    if not FR:
        for k in range(8): A(f"v_add_f32 v{X+k}, v{X+k}, v{B+k}")
    A("s_barrier")
    A.st("fin")
    A(f"ds_read_b128 v[16:19], v15")
    for w in range(4):
        A(f"ds_read_b128 v[{P+8*w}:{P+8*w+3}], v13 offset:{w*8192}")
        A(f"ds_read_b128 v[{P+8*w+4}:{P+8*w+7}], v14 offset:{w*8192}")
    A("s_waitcnt lgkmcnt(8)")
    unpack(Yv, 16)
    for k in range(8): A(f"v_add_f32 v{X+k}, v{X+k}, v{Yv+k}")
    if FR: pack(20, X); unpack(X, 20)
    A("s_waitcnt lgkmcnt(4)")
    for k in range(8): A(f"v_add_f32 v{P+k}, v{P+k}, v{P+8+k}")
    A("s_waitcnt lgkmcnt(0)")
    for k in range(8): A(f"v_add_f32 v{P+16+k}, v{P+16+k}, v{P+24+k}")
    for k in range(8): A(f"v_add_f32 v{P+k}, v{P+k}, v{P+16+k}")
    if FR:
        pack(24, P); unpack(P, 24)
        for k in range(8): A(f"v_add_f32 v{P+k}, v{P+k}, v{B+k}")
        pack(24, P); unpack(P, 24)
    for k in range(8): A(f"v_add_f32 v{P+k}, v{P+k}, v{X+k}")
    pack(28, P)
    A(f"buffer_store_dwordx4 v[28:31], v{VOO}, s[8:11], s33 offen {os.environ.get('SCO', '')}")
    if STAMPS: A("s_waitcnt vmcnt(0)")
    A.stamp_flush(0)
    A("s_endpgm")


def gen():
    A = Asm()
    A.stamp(0, True); A.stamp(1)
    for k in range(2, 9): A.stamp(k)
    A(f"""
    s_cmp_ge_u32 s2, 256
    s_cbranch_scc1 L_exit
    s_load_dwordx2 s[40:41], s[0:1], {KA['u']}
    s_load_dwordx8 s[44:51], s[0:1], {KA['w1']}
    s_load_dwordx4 s[52:55], s[0:1], {KA['out']}
    s_load_dwordx2 s[42:43], s[0:1], {KA['ws']}
    v_lshrrev_b32 v1, 6, v0
    v_and_b32 v0, 63, v0
    s_and_b32 s23, s2, 7
    s_lshr_b32 s24, s2, 3
    v_readfirstlane_b32 s20, v1
    s_and_b32 s25, s24, 3
    s_lshr_b32 s79, s24, 2
    s_lshl_b32 s78, s23, 2
    s_add_u32 s78, s78, s25
    s_mul_i32 s74, s79, {3584 if ROT & 1 else 0}
    s_and_b32 s74, s74, 0xfffffc00
    s_mul_i32 s75, s25, {7168 if ROT & 2 else 0}
    s_add_u32 s74, s74, s75
    s_sub_u32 s75, s74, {28*1024}
    s_min_u32 s74, s74, s75
    s_mov_b32 s77, 1
    s_and_b32 s39, s20, 3
    s_cmp_eq_u32 s79, 7
    s_cbranch_scc1 L_ln
    """)
    if LOC:
        A("""
        s_and_b32 s21, s24, 1
        s_lshl_b32 s22, s23, 1
        s_add_u32 s21, s21, s22
        s_lshr_b32 s22, s24, 1
        """)
    else:
        A("""
        s_lshr_b32 s21, s23, 1
        s_lshl_b32 s21, s21, 2
        s_add_u32 s21, s21, s25
        s_and_b32 s22, s23, 1
        s_mul_i32 s22, s22, 7
        s_add_u32 s22, s22, s79
        """)
    gen_gemm1(A)
    A.label("L_ln")
    A("s_nop 0 ; RESETSB")
    A("s_mov_b32 s21, s78")
    gen_ln(A)
    A.label("L_gemm2")
    A("s_nop 1 ; RESETSB")
    gen_gemm2(A)
    A.label("L_conv")
    A("s_nop 1 ; RESETSB")
    gen_conv(A)
    A.label("L_final")
    A("s_nop 7")
    gen_final(A)
    A.label("L_exit")
    A("s_endpgm")
    lines = fix_hazards(A.lines, verbose=True)
    check_waits(lines, "s")
    head = open("parallel_sum__ssm_conv_s4__dense_activation_gelu__prompt.s.ref").read().split("; Override launch")[0]
    head += f"; @launch grid=(256,1,1) block=(512,1,1) lds={LDS_TOTAL}\n.amdgcn_target \"amdgcn-amd-amdhsa--gfx950\"\n"
    return head + kernel_section(KNAME, lines, 256, 102, 256)

if __name__ == "__main__":
    out = sys.argv[1] if len(sys.argv) > 1 else "cur8.s"
    open(out, "w").write(gen())
    print("wrote", out)
```

```python
from asmlib import *
import struct, math, os, sys

def f2u(x): return struct.unpack("<I", struct.pack("<f", x))[0]
def env(n, d): return int(os.environ.get(n, str(d)))

KNAME = "parallel_sum__ssm_conv_s4__dense_activation_gelu__prompt_kernel"
KA = dict(u=0, A_re=8, A_im=16, B_re=24, B_im=32, C_re=40, C_im=48, log_dt=56, Dskip=64, Bx=72, w1=80, b1=88, w2=96, b2=104,
          out=112, dbg=120, ws=128)
WS_FLL = 32768
WS_EPOCH = 49152
WS_DUMMY = 53248
WS_STAT = 65536
WS_FLH = 131072
WS_FLY = 262144
WS_HF = 1 << 20
WS_XNT = 8 << 20
WS_YA = 12 << 20
WS_USED = 14 << 20

LOG2E = 1.4426950408889634
GC1 = -2.0 * LOG2E * 0.7978845608028654
GC2 = GC1 * 0.044715

NS, STAGE = 4, 32768
RSL = 12
RING = RSL * 2048
L_KST = 98304; KST = 8704
L_ST2 = 98304; ST2 = 8192
L_CH = 131072; CH_SIZE = 13056
OFF_E, OFF_O = 4608, 8768
L_FLAG = L_CH + 2 * CH_SIZE
L_CS = L_FLAG + 512
LDS_TOTAL = 163840
L_VS = 98304; L_US = 98304

OPT_PF = env("PF", 2)
PRE = env("PRE", 3)
PRIO_C = env("PRIOC", 1)
PRIO_G = env("PRIOG", 2)
PRIO_E = env("PRIOE", 0)
ROT = env("ROT", 3)
BARP = env("BARP", 2)
STATG = env("STATG", 21)
SC = os.environ.get("SC", "sc1")
PFG = [int(x) for x in os.environ.get("PFG", "").split(",") if x]
HD = 9
EPE = env('EPE', 1)
FS = env('FS', 2)
HP = env('HP', 1)
NB8 = env('NB8', 1)
EP = env('EP', 4)
TS = env('TS', 4)
FR = env('FR', 0)
NPK0 = env('NPK0', 3)
NC0 = env('NC0', 3)
WSOFF = env('WSOFF', 0) << 20
SCH = os.environ.get('SCH', SC)
LOC = env('LOC', 0)
GPK = env('GPK', 0)
ULN = env('ULN', 3)
HT = env('HT', 0)
SCL = os.environ.get('SCL', SC)
SPIN = 0x40000

DK, DP, EX, P0 = 224, 128, 160, 244
BF, AF, KG_G, KG_E1, KG_L, KG_V, KG_PK, KG_VW, KG_VRD = 160, 192, 108, 122, 224, 124, 132, 136, 137
L_KS2 = 131072; KS2 = 4352
XL = 180
VDUM, LNF = 252, 253
VX, VB2, VOO = 4, 8, 12
VW2 = 23
W2R, HR, ACC2 = 160, 88, 24
VTL = 24

def srd(A, d, lo, hi, size):
    A(f"s_mov_b32 s{d}, {lo}\ns_mov_b32 s{d+1}, {hi}\ns_mov_b32 s{d+2}, {size}\ns_mov_b32 s{d+3}, 0x00020000")
def round_bf16(A, r):
    A(f"v_cvt_pk_bf16_f32 v{r}, v{r}, v{r}")
    A(f"v_and_b32 v{r}, 0xffff0000, v{r}")
def zipm(*lists):
    o = []
    for k in range(max(len(l) for l in lists)):
        for l in lists:
            if k < len(l): o.append(l[k])
    return o
def mask(lo, hi=None):
    hi = lo if hi is None else hi
    return [f"s_mov_b32 s28, {lo}", f"s_mov_b32 s29, {hi}"]

class VMQ:
    def __init__(self): self.q = []
    def note(self, tag, n=1): self.q.extend([tag] * n)
    def wait(self, *tags):
        idx = max((k for k, t in enumerate(self.q) if t in tags), default=-1)
        if idx < 0: return []
        n = len(self.q) - 1 - idx
        del self.q[:idx + 1]
        return [f"s_waitcnt vmcnt({n})"]
    def younger(self): return len(self.q)

ORDER = [0, 1] + list(range(12, 24)) + list(range(2, 12)) + list(range(24, 28))

def koff(dst, lab, base="s74"):
    return [f"s_add_u32 {dst}, {base}, {lab*1024}", f"s_sub_u32 s75, {dst}, {28*1024}", f"s_min_u32 {dst}, {dst}, s75"]

def slot_addr(sl): return (sl >> 2) * 32768 + (sl & 3) * 2048

def w2_setup(A, vt):
    srd(A, 16, "s48", "s49", 1792 * 1024)
    A(f"""
    v_lshrrev_b32 v{vt}, 2, v0
    v_and_b32 v{vt}, 4, v{vt}
    v_and_b32 v{vt+1}, 7, v0
    v_xor_b32 v{vt}, v{vt}, v{vt+1}
    v_lshrrev_b32 v{vt+1}, 3, v0
    v_lshlrev_b32 v{VW2}, 10, v{vt+1}
    v_lshl_add_u32 v{VW2}, v{vt}, 4, v{VW2}
    s_mul_i32 s72, s39, {448*1024}
    s_lshl_b32 s75, s79, 7
    s_add_u32 s72, s72, s75
    s_lshl_b32 s73, s39, 13
    v_lshrrev_b32 v{vt+1}, 5, v0
    v_bfe_u32 v{vt}, v0, 2, 2
    v_lshl_add_u32 v{VTL}, v{vt+1}, 2, v{vt}
    v_lshlrev_b32 v{VTL}, 7, v{VTL}
    v_bfe_u32 v{vt}, v0, 4, 1
    v_lshl_add_u32 v{VTL}, v{vt}, 5, v{VTL}
    v_and_b32 v{vt}, 3, v0
    v_lshl_add_u32 v{VTL}, v{vt}, 3, v{VTL}
    v_bfe_u32 v{vt}, v0, 3, 1
    v_lshl_add_u32 v{VTL}, v{vt}, 6, v{VTL}
    v_add_u32 v{VTL}, s73, v{VTL}
    v_xor_b32 v{VTL+1}, 64, v{VTL}
    v_add_u32 v{VTL+2}, 0x10000, v{VTL}
    v_add_u32 v{VTL+3}, 0x10000, v{VTL+1}
    """)
def wdma(slot, lab):
    a_ = slot_addr(slot)
    return koff("s31", lab) + [f"s_add_u32 m0, s73, {a_}", "s_lshl4_add_u32 s31, s31, s72",
                               f"buffer_load_dwordx4 v{VW2}, s[16:19], s31 offen lds",
                               f"s_add_u32 m0, s73, {a_+1024}", "s_add_u32 s31, s31, 8192",
                               f"buffer_load_dwordx4 v{VW2}, s[16:19], s31 offen lds"]
def w2tr(slot, ws_, vtl=VTL):
    b = W2R + 8 * ws_; a_ = slot_addr(slot); hi = a_ >> 16; a_ &= 0xffff
    return [f"ds_read_b64_tr_b16 v[{b+4*db+2*sec}:{b+4*db+2*sec+1}], v{vtl+2*hi+db} offset:{a_+sec*1024}" for db in range(2) for sec in range(2)]

def param_loads(A, vt):
    A(f"""
    s_lshr_b32 s28, s39, 1
    s_lshl_b32 s30, s2, 1
    s_add_u32 s30, s30, s28
    v_lshlrev_b32 v{vt}, 1, v0
    v_mov_b32 v{vt+1}, 0
    s_lshl_b32 s29, s30, 8
    s_and_b32 s28, s20, 1
    s_lshl_b32 s28, s28, 7
    s_add_u32 s29, s29, s28
    s_lshl_b32 s30, s30, 1
    s_mov_b32 s18, 1024
    s_mov_b32 s19, 0x00020000
    """)
    for k in range(8): A(f"v_mov_b32 v{P0+k}, 0")
    A("s_waitcnt lgkmcnt(0)")
    for k in (6, 7, 0, 1, 2, 3, 4, 5):
        if k == 0: A("s_mov_b32 s18, 131072")
        A(f"s_mov_b32 s16, s{56+2*k}\ns_mov_b32 s17, s{57+2*k}")
        if k < 6: A(f"buffer_load_short_d16_hi v{P0+k}, v{vt}, s[16:19], s29 offen")
        else: A(f"buffer_load_short_d16_hi v{P0+k}, v{vt+1}, s[16:19], s30 offen")

def lnflag_load(vt):
    return ["s_lshl_b32 s29, s79, 6", "s_lshl_b32 s28, s39, 4", "s_add_u32 s29, s29, s28", "s_lshr_b32 s28, s78, 4", "s_lshl_b32 s28, s28, 9",
            "s_add_u32 s29, s29, s28", f"s_lshl_b32 s29, s29, {FS}", f"s_add_u32 s29, s29, {WS_FLY}",
            f"v_lshlrev_b32 v{vt}, {FS}, v0", f"v_add_u32 v{vt}, {WS_FLL}, v{vt}",
            f"v_and_b32 v{vt+1}, 15, v0", f"v_lshl_add_u32 v{vt+1}, v{vt+1}, {FS}, s29", "s_mov_b32 s28, 0", "s_mov_b32 s29, -1",
            f"v_cndmask_b32 v{vt}, v{vt}, v{vt+1}, s[28:29]",
            f"buffer_load_dword v{LNF}, v{vt}, s[12:15], 0 offen {SC}"]

def u_issue(A, vl16):
    A(f"""
    s_lshr_b32 s28, s39, 1
    s_lshl_b32 s29, s2, 1
    s_add_u32 s29, s29, s28
    s_lshl_b32 s29, s29, 12
    s_add_u32 s29, s29, {WS_XNT}
    """)
    for k in range(4): A(f"buffer_load_dwordx4 v[{XL+4*k}:{XL+4*k+3}], v{vl16}, s[12:15], s29 offen offset:{k*1024} {SC}")

def u_try(A, vl16):
    A(f"""
    v_cmp_ne_u32 vcc, s76, v{LNF}
    s_mov_b32 s37, 0
    s_cbranch_vccnz L_ut_no
    s_mov_b32 s37, 1
    """)
    u_issue(A, vl16)
    A.label("L_ut_no")

def u_spin(A, vt, vl16, tag=''):
    A("s_mov_b32 s30, 0")
    A.label(f"L_us_poll{tag}")
    A.extend(lnflag_load(vt))
    A(f"""
    s_add_u32 s30, s30, 1
    s_waitcnt vmcnt(0)
    v_cmp_ne_u32 vcc, s76, v{LNF}
    s_cmp_gt_u32 s30, {SPIN}
    s_cbranch_scc1 L_us_ok{tag}
    s_cbranch_vccnz L_us_poll{tag}
    """)
    A.label(f"L_us_ok{tag}")
    u_issue(A, vl16)
    A("s_waitcnt vmcnt(0)")

def ya_addr(vd, vt):
    return [f"v_lshrrev_b32 v{vd}, 3, v0", f"v_and_b32 v{vt}, 7, v0", f"v_lshlrev_b32 v{vd}, 13, v{vd}", f"v_lshl_add_u32 v{vd}, v{vt}, 4, v{vd}",
            "s_lshr_b32 s28, s39, 1", "s_lshl_b32 s31, s2, 1", "s_add_u32 s31, s31, s28",
            "s_lshr_b32 s29, s31, 6", "s_lshl_b32 s29, s29, 18", "s_and_b32 s28, s31, 63", "s_lshl_b32 s28, s28, 7", "s_add_u32 s29, s29, s28",
            f"s_add_u32 s29, s29, {WS_YA}", "s_and_b32 s30, s39, 1", "s_lshl_b32 s30, s30, 17", "s_add_u32 s30, s30, s29", "s_add_u32 s31, s30, 65536"]
def ya_prefill(vd, vt, vm4):
    return ya_addr(vd, vt) + [f"v_mov_b32 v{vm4+k}, -1" for k in range(4)] + \
           [f"buffer_store_dwordx4 v[{vm4}:{vm4+3}], v{vd}, s[12:15], s{30+h} offen {SC}" for h in range(2)]

def publish_flag(A, soff, vt, tag, wave, both=False):
    A(f"""
    s_cmp_lg_u32 s20, {wave}
    s_cbranch_scc1 L_pub_skip{tag}
    v_mov_b32 v{vt}, 0
    v_mov_b32 v{vt+1}, s76
    s_mov_b64 exec, 1
    buffer_store_dword v{vt+1}, v{vt}, s[12:15], {soff} offen {SC}
    """)
    if both:
        A(f"""
        s_lshl_b32 s28, s2, 7
        s_add_u32 s28, s28, {WS_FLW}
        buffer_store_dword v{vt+1}, v{vt}, s[12:15], s28 offen {SC}
        """)
    A(f"""
    s_mov_b64 exec, -1
    L_pub_skip{tag}:
    """)
def mktag(A):
    A("s_mul_i32 s76, s76, 0x9E3779B1")
    A("s_add_u32 s76, s76, 0x7F4A7C15")
def arrive(A, tag):
    A(f"""
    s_cmp_lg_u32 s20, 3
    s_cbranch_scc1 L_arr{tag}
    s_atomic_add s77, s[54:55], 0 glc
    L_arr{tag}:
    """)

def coop_prefetch(A, vt):
    A(f"""
    s_lshl_b32 s28, s24, 2
    s_add_u32 s28, s28, s39
    s_lshl_b32 s30, s28, 6
    v_add_u32 v{vt}, s30, v0
    v_mul_u32_u24 v{vt+1}, 0x4925, v{vt}
    v_lshrrev_b32 v{vt+1}, 18, v{vt+1}
    v_mul_u32_u24 v{vt+2}, 14, v{vt+1}
    v_sub_u32 v{vt}, v{vt}, v{vt+2}
    v_lshlrev_b32 v{vt}, 7, v{vt}
    v_mul_u32_u24 v{vt+1}, 3584, v{vt+1}
    v_add_u32 v{vt}, v{vt}, v{vt+1}
    s_and_b32 s29, s23, 1
    s_mul_i32 s29, s29, 1792
    buffer_load_dword v{VDUM}, v{vt}, s[8:11], s29 offen
    s_lshr_b32 s29, s23, 1
    s_lshl_b32 s29, s29, 19
    s_lshl_b32 s30, s28, 13
    s_add_u32 s29, s29, s30
    v_lshlrev_b32 v{vt+2}, 7, v0
    """)
    if env("MP0", 1):
        A(f"""
        s_mul_i32 s31, s23, {28*8192}
        s_add_u32 s31, s31, s30
        s_sub_u32 s31, s31, {64*8192}
        s_cmp_lt_u32 s28, 92
        s_cselect_b32 s31, s31, 0x400000
        s_cmp_lt_u32 s28, 64
        s_cselect_b32 s29, s29, s31
        s_cselect_b32 s16, s40, s48
        s_cselect_b32 s17, s41, s49
        s_cselect_b32 s18, 0x200000, {1792*1024}
        s_mov_b32 s19, 0x00020000
        buffer_load_dword v{VDUM}, v{vt+2}, s[16:19], s29 offen
        """.replace("s_cselect_b32 s18, 0x200000, 1835008", "s_mov_b32 s18, 1835008\n        s_cselect_b32 s18, 0x200000, s18"))
    else:
        A(f"""
        s_cmp_lt_u32 s28, 64
        s_cselect_b32 s29, s29, 0x400000
        buffer_load_dword v{VDUM}, v{vt+2}, s[4:7], s29 offen
        """)
def coop_prefetch2(A, vt):
    srd(A, 16, "s48", "s49", 1792 * 1024)
    A(f"""
    s_lshl_b32 s28, s24, 2
    s_add_u32 s28, s28, s39
    s_mul_i32 s30, s28, 40
    v_add_u32 v{vt}, s30, v0
    v_mul_u32_u24 v{vt+1}, 0x4925, v{vt}
    v_lshrrev_b32 v{vt+1}, 18, v{vt+1}
    v_mul_u32_u24 v{vt+2}, 14, v{vt+1}
    v_sub_u32 v{vt}, v{vt}, v{vt+2}
    v_lshlrev_b32 v{vt}, 7, v{vt}
    v_mul_u32_u24 v{vt+1}, 3584, v{vt+1}
    v_add_u32 v{vt}, v{vt}, v{vt+1}
    s_mul_i32 s30, s28, 23
    v_add_u32 v{vt+1}, s30, v0
    v_min_u32 v{vt+1}, 2559, v{vt+1}
    v_mul_u32_u24 v{vt+2}, 13108, v{vt+1}
    v_lshrrev_b32 v{vt+2}, 16, v{vt+2}
    v_mul_u32_u24 v{vt+3}, 3, v{vt+2}
    v_add_u32 v{vt+1}, v{vt+1}, v{vt+3}
    v_lshlrev_b32 v{vt+1}, 7, v{vt+1}
    v_lshlrev_b32 v{vt+2}, 7, v0
    s_and_b32 s29, s23, 1
    s_mul_i32 s29, s29, 1792
    s_add_u32 s29, s29, {192*3584}
    s_mov_b32 exec_hi, 0xff
    buffer_load_dword v{VDUM}, v{vt}, s[8:11], s29 offen
    s_lshr_b32 s29, s23, 1
    s_lshl_b32 s29, s29, 19
    s_add_u32 s29, s29, 384
    s_mov_b64 exec, 0x7fffff
    buffer_load_dword v{VDUM}, v{vt+1}, s[4:7], s29 offen
    s_lshl_b32 s28, s2, 2
    s_add_u32 s28, s28, s39
    s_lshl_b32 s28, s28, 11
    s_mov_b64 exec, 0xffff
    buffer_load_dword v{VDUM}, v{vt+2}, s[16:19], s28 offen
    s_mov_b64 exec, -1
    """)
def w2_prefetch(vt, piece):
    return ["s_lshl_b32 s28, s24, 2", "s_add_u32 s28, s28, s39", "s_lshl_b32 s28, s28, 14", f"s_add_u32 s28, s28, {piece*8192}",
            f"v_lshlrev_b32 v{vt}, 7, v0", f"buffer_load_dword v{VDUM}, v{vt}, s[16:19], s28 offen"]

def cmul(d, x, y, pk=True):
    P = lambda r: f"v[{r}:{r+1}]"
    assert d != x and d != y
    if pk:
        return [f"v_pk_mul_f32 {P(d)}, {P(x)}, {P(y)} op_sel:[0,0] op_sel_hi:[0,1]",
                f"v_pk_fma_f32 {P(d)}, {P(x)}, {P(y)}, {P(d)} op_sel:[1,1,0] op_sel_hi:[1,0,1] neg_lo:[0,1,0]"]
    return [f"v_mul_f32 v{d}, v{x}, v{y}", f"v_mul_f32 v{d+1}, v{x}, v{y+1}",
            f"v_fma_f32 v{d}, -v{x+1}, v{y+1}, v{d}", f"v_fma_f32 v{d+1}, v{x+1}, v{y}, v{d+1}"]

def kg_common(A, base, T0, Z, WA):
    ar, ai, br, bi, cr, ci, ld, dsk = range(P0, P0 + 8)
    u_ = f2u(LOG2E) & 0xFFFFFF00
    lh = struct.unpack("<f", struct.pack("<I", u_))[0]; ll = LOG2E - lh
    A(f"""
    v_mul_f32 v{T0}, {hex(f2u(lh))}, v{ld}
    v_mul_f32 v{T0+1}, {hex(f2u(ll * math.log(2)))}, v{ld}
    v_exp_f32 v{T0}, v{T0}
    s_nop 0
    v_fma_f32 v{T0}, v{T0}, v{T0+1}, v{T0}
    """)
    round_bf16(A, T0)
    A(f"""
    v_mul_f32 v{Z}, v{T0}, v{ar}
    v_mul_f32 v{Z+1}, v{T0}, v{ai}
    v_mul_f32 v{br}, v{T0}, v{br}
    v_mul_f32 v{bi}, v{T0}, v{bi}
    v_mul_f32 v{Z}, {hex(f2u(LOG2E))}, v{Z}
    v_mul_f32 v{Z+1}, 0.15915494, v{Z+1}
    """)
def kg_waddr(A, base, WA):
    A(f"s_lshl_b32 s28, s39, 13\ns_add_u32 s28, s28, {base}\nv_lshl_add_u32 v{WA}, v0, 2, s28")
    for k in range(1, 16): A(f"v_xor_b32 v{WA+k}, {16*k}, v{WA}")
def kg_raddr(base, d, t):
    o = ["s_lshl_b32 s28, s39, 13", f"s_add_u32 s28, s28, {base}", f"v_and_b32 v{t}, 15, v0", f"v_lshrrev_b32 v{t+1}, 5, v0", f"v_xor_b32 v{t}, v{t}, v{t+1}",
         f"v_and_b32 v{t+1}, 31, v0", f"v_lshlrev_b32 v{t+1}, 8, v{t+1}", f"v_lshl_add_u32 v{d}, v{t}, 4, v{t+1}", f"v_add_u32 v{d}, s28, v{d}"]
    return o + [f"v_xor_b32 v{d+k}, {32*k}, v{d}" for k in range(1, 8)]
def cexp(d, x, t, Z):
    xs = {1: None, 8: hex(f2u(8.0)), 256: hex(f2u(256.0))}[x]
    o = []
    if xs is None: o += [f"v_exp_f32 v{t}, v{Z}", f"v_fract_f32 v{t+1}, v{Z+1}"]
    else: o += [f"v_mul_f32 v{t}, {xs}, v{Z}", f"v_mul_f32 v{t+1}, {xs}, v{Z+1}", f"v_exp_f32 v{t}, v{t}", f"v_fract_f32 v{t+1}, v{t+1}"]
    o += [f"v_cos_f32 v{d}, v{t+1}", f"v_sin_f32 v{d+1}, v{t+1}", f"v_mul_f32 v{d}, v{d}, v{t}", f"v_mul_f32 v{d+1}, v{d+1}, v{t}"]
    return o
KWA = 100
KRA = 116

def gen_kgen_v(A):
    T0, Z, E8, E16, Va, Vb, PKT = 34, 144, 44, 46, 80, 84, 88
    kg_common(A, L_VS, T0, Z, KWA)
    A.extend(cexp(E8, 8, T0, Z))
    A.extend(cmul(E16, E8, E8))
    npk = [0]
    def emit(src, row):
        t = PKT + (npk[0] % 8); npk[0] += 1
        return [f"v_cvt_pk_bf16_f32 v{t}, v{src}, v{src+1}", f"ds_write_b32 v{KWA + (row & 15)}, v{t} offset:{row*256}"]
    A(f"v_mov_b32 v{PKT+7}, 0x00003f80")
    A(f"ds_write_b32 v{KWA}, v{PKT+7}")
    A.extend(emit(E8, 1)); A.extend(emit(E16, 2))
    ev, od = E16, E8
    for j in range(3, 32, 2):
        d1 = Va + 2 * (((j - 3) // 2) % 2)
        d2 = Vb + 2 * (((j - 3) // 2) % 2)
        l1 = cmul(d1, od, E16) + emit(d1, j)
        l2 = (cmul(d2, ev, E16) + emit(d2, j + 1)) if j + 1 < 32 else []
        A.extend(zipm(l1, l2))
        od, ev = d1, d2
    for st in range(8): A(f"ds_read_b128 v[{BF+4*st}:{BF+4*st+3}], v{KRA+st}")

UPK = 192
def kgen_u_lists(rebase):
    T0, Z, E1, G, Lr, Va = 34, 144, 42, 44, 58, 76
    ar, ai, br, bi, cr, ci, ld, dsk = range(P0, P0 + 8)
    cm = lambda d, x, y: cmul(d, x, y, False)
    V = []; Wr = []
    if rebase: V += [f"v_subrev_u32 v{KWA+k}, {rebase}, v{KWA+k}" for k in range(24)]
    V += zipm(cexp(E1, 1, T0 + 2, Z), cexp(G, 256, T0 + 4, Z), cm(Lr, cr, br))
    npk = [0]
    def emit(src, rows):
        t = UPK + npk[0]; npk[0] += 1
        Wr.extend(f"ds_write_b32 v{KWA + (row & 15)}, v{t} offset:{row*256}" for row in rows)
        return [f"v_cvt_pk_bf16_f32 v{t}, v{src}, -v{src+1}"]
    urow = lambda hh, r: 8 * (r >> 2) + 4 * hh + (r & 3)
    lch = emit(Lr, [urow(0, 0)])
    for a_ in range(1, 9): lch += cm(Lr + 2 * a_, Lr + 2 * (a_ - 1), E1) + emit(Lr + 2 * a_, [urow(0, a_)])
    gch = []
    for k in range(2, 8): gch += cm(G + 2 * (k - 1), G + 2 * (k - 2), G)
    V += zipm(lch, gch)
    jobs = [(0, 1, [urow(1, 0), urow(1, 1)]), (2, 1, [urow(1, 2)]), (4, 1, [urow(1, 3), urow(1, 4), urow(1, 5)]), (6, 1, [urow(1, 6)]),
            (8, 1, [urow(1, 7), urow(1, 8)]),
            (0, 2, [urow(0, 9)]), (4, 2, [urow(0, 10)]), (8, 2, [urow(0, 11)]),
            (0, 3, [urow(1, 9)]), (4, 3, [urow(1, 10)]), (8, 3, [urow(1, 11)]),
            (0, 4, [urow(0, 12)]), (8, 4, [urow(0, 13)]), (0, 5, [urow(0, 14)]), (8, 5, [urow(0, 15)]),
            (0, 6, [urow(1, 12)]), (8, 6, [urow(1, 13)]), (0, 7, [urow(1, 14)]), (8, 7, [urow(1, 15)])]
    for k in range(0, len(jobs), 2):
        ls = []
        for q_, (a_, gk, rows) in enumerate(jobs[k:k + 2]):
            d = Va + 4 * q_ + 2 * ((k // 2) % 2)
            ls.append(cm(d, Lr + 2 * a_, G + 2 * (gk - 1)) + emit(d, rows))
        V += zipm(*ls)
    assert npk[0] <= 32
    return V, Wr

def kg_atoms_m():
    at = [[f"ds_read_b128 v[{AF+4*k}:{AF+4*k+3}], v{KRA+k} offset:{L_US - L_VS}", ("tag", ("af", k))] for k in range(8)]
    mm = []
    for st in range(8):
        cin = "0" if st == 0 else f"v[{DK}:{DK+15}]"
        mm.append([("wait", ("af", st)), f"v_mfma_f32_32x32x16_bf16 v[{DK}:{DK+15}], v[{AF+4*st}:{AF+4*st+3}], v[{BF+4*st}:{BF+4*st+3}], {cin}"])
    return at, mm

def kg_atoms_x1():
    T0 = P0
    at = [[f"s_lshr_b32 s30, s39, 1", f"s_mul_i32 s30, s30, {CH_SIZE}", f"s_add_u32 s38, s30, {L_CH}", f"v_lshl_add_u32 v{T0}, v0, 4, s38"]]
    at.append(["s_bitcmp1_b32 s39, 0", "s_cselect_b64 exec, -1, 0"] + [f"ds_write_b128 v{T0}, v[{DK+4*q}:{DK+4*q+3}] offset:{512+q*1024}" for q in range(3)] +
              ["s_not_b64 exec, exec", f"ds_write_b128 v{T0}, v[{DK+12}:{DK+15}] offset:{512+3072}", "s_mov_b64 exec, -1"])
    return at

def kg_atoms_x2(tag):
    T0 = P0; VEA, VEB = 254, 255
    at = []
    at.append([f"ds_read_b128 v[{DP+4*q}:{DP+4*q+3}], v{T0} offset:{512+q*1024}" for q in range(4)] + [("tag", "dp")])
    for i in [f"v_and_b32 v{T0+4}, 31, v0", f"v_lshrrev_b32 v{T0+1}, 5, v0", f"v_lshlrev_b32 v{T0+2}, 4, v{T0+4}"]: at.append([i])
    at.append([f"s_add_u32 s28, s38, {OFF_E + 4080 - 1024}", f"v_sub_u32 v{VEA}, s28, v{T0+2}"])
    at.append([f"v_lshlrev_b32 v{T0+3}, 9, v{T0+1}"]); at.append([f"v_sub_u32 v{VEA}, v{VEA}, v{T0+3}"])
    at.append([f"s_add_u32 s28, s38, {OFF_E + 4080 - 2560}", f"v_sub_u32 v{VEB}, s28, v{T0+2}"])
    at.append([f"v_lshlrev_b32 v{T0+3}, 10, v{T0+1}"]); at.append([f"v_sub_u32 v{VEB}, v{VEB}, v{T0+3}"])
    at.append([f"v_lshl_add_u32 v{T0}, v0, 3, s38"]); at.append([f"v_mov_b32 v{T0+2}, 0"]); at.append([f"v_mov_b32 v{T0+3}, 0"])
    at.append(["s_lshl_b32 s28, s39, 2", f"s_add_u32 s28, s28, {L_FLAG}", f"v_mov_b32 v{T0+1}, s28"])
    for k in range(16): at.append(([("wait", "dp")] if k == 0 else []) + [f"v_add_f32 v{DK+k}, v{DK+k}, v{DP+k}"])
    at.append(mask("0xaaaaaaaa") + [f"v_cndmask_b32 v{DP}, v{DK+12}, v{DK+13}, s[28:29]", f"v_cndmask_b32 v{DP+1}, v{DK+14}, v{DK+15}, s[28:29]"])
    k_ = lambda r: DK + r
    def half(base, kk, va, off, odd):
        prs = [(8, 7), (6, 5), (4, 3), (2, 1)] if odd else [(7, 6), (5, 4), (3, 2), (1, 0)]
        return [f"v_cvt_pk_bf16_f32 v{base+i}, v{kk[lo]}, v{kk[hi]}" for i, (lo, hi) in enumerate(prs)] + \
               [f"ds_write_b128 v{va}, v[{base}:{base+3}] offset:{off + (OFF_O - OFF_E if odd else 0)}"]
    ev = [([k_(i) for i in range(9)], VEA, 1024), ([k_(9)] * 3 + [k_(10)] * 3 + [k_(11)] * 3, VEA, 0)]
    od = [([k_(12)] * 4 + [DP] + [k_(13)] * 4, VEB, 512), ([k_(14)] * 4 + [DP + 1] + [k_(15)] * 4, VEB, 0)]
    n = 0
    for gi in range(2):
        for o_ in range(2):
            b_ = EX + 4 * n
            at.append(["s_bitcmp1_b32 s39, 0", f"s_cbranch_scc1 L_xo{tag}{n}"] + half(b_, *ev[gi], o_)[:-1] + [("nods", half(b_, *ev[gi], o_)[-1]), f"s_branch L_xd{tag}{n}",
                       f"L_xo{tag}{n}:"] + half(b_, *od[gi], o_) + [f"L_xd{tag}{n}:"])
            n += 1
    at.append(["s_bitcmp0_b32 s39, 0", "s_cselect_b64 s[28:29], -1, 0", "s_mov_b64 exec, s[28:29]",
               f"ds_write_b64 v{T0}, v[{T0+2}:{T0+3}]", "s_and_b64 exec, s[28:29], 15",
               f"ds_write_b64 v{T0}, v[{T0+2}:{T0+3}] offset:{OFF_E+4096}", f"ds_write_b64 v{T0}, v[{T0+2}:{T0+3}] offset:{OFF_O+4096}",
               "s_and_b64 exec, s[28:29], 1", f"ds_write_b16_d16_hi v{T0}, v{EX+3} offset:{OFF_O+4096}",
               "s_mov_b64 exec, -1"])
    at.append([f"v_mov_b32 v{T0+2}, 1", f"ds_write_b32 v{T0+1}, v{T0+2} offset:64"])
    return at

def flag_zero():
    return [[f"v_lshlrev_b32 v{VT1}, 2, v0", f"v_mov_b32 v{VT1+1}, 0", f"v_add_u32 v{VT1}, {L_FLAG}, v{VT1}", f"ds_write_b32 v{VT1}, v{VT1+1}"]]

class LQ:
    def __init__(self, A): self.A = A; self.q = []
    def emit(self, items, tag=None):
        maybe0 = any(isinstance(it, str) and "s_cselect_b64" in it for it in items)
        for it in items:
            if maybe0 and isinstance(it, str):
                self.A(it); continue
            if isinstance(it, tuple):
                if it[0] == "tag": self.q[-1] = it[1]
                elif it[0] == "wait": self.wait(it[1])
                elif it[0] == "nods": self.A(it[1])
                continue
            self.A(it)
            if it.strip().startswith("ds_"): self.q.append(tag)
            if "lgkmcnt(0)" in it: self.q = []
    def wait(self, tag):
        idx = max((k for k, t in enumerate(self.q) if t == tag), default=-1)
        if idx < 0: return
        n = min(len(self.q) - 1 - idx, 15)
        self.A(f"s_waitcnt lgkmcnt({n})")
        self.q = self.q[len(self.q) - n:] if n else []

def spread(atoms, g0, g1):
    pts = [(g, p) for g in range(g0, g1) for p in range(2)]
    tot = sum(len(a_) for a_ in atoms); out = {p: [] for p in pts}; acc = 0
    for a_ in atoms:
        out[pts[min(len(pts) - 1, acc * len(pts) // tot)]].append(a_); acc += len(a_)
    return out

VXO, VWO, VXO2 = 1, 2, 3
VXR, VTR = 4, 8
VONE, VHO1, VB1 = 16, 18, 19
VCW, VCR, VSO = 20, 21, 22
VT1 = 28
NR = 3
W1, X1, ACC1, CS = 32, 56, 80, 144
HI = 152
GT, PK, SG = 164, 180, 188
EA, EB = 192, 196
VS, K1r, K3r = 212, 214, 216

def wave_flag(soff, vt):
    return [f"v_mov_b32 v{vt}, 0", f"v_mov_b32 v{vt+1}, s76", "s_mov_b64 exec, 1",
            f"buffer_store_dword v{vt+1}, v{vt}, s[12:15], {soff} offen {SC}", "s_mov_b64 exec, -1"]

def lds_wait(A, name, vaddr, off, vt):
    A(f"""
    {name}:
    ds_read_b32 v{vt}, v{vaddr} offset:{off}
    s_waitcnt lgkmcnt(0)
    v_readfirstlane_b32 s28, v{vt}
    s_cmp_eq_u32 s28, 1
    s_cbranch_scc0 {name}
    """)

def dma_setup(A):
    VT = VT1
    A(f"""
    v_lshrrev_b32 v{VT}, 3, v0
    v_and_b32 v{VT+1}, 7, v0
    v_lshrrev_b32 v{VT+2}, 4, v0
    v_xor_b32 v{VT+3}, v{VT+2}, v{VT+1}
    v_lshlrev_b32 v{VXO}, 10, v{VT}
    v_lshl_add_u32 v{VXO}, v{VT+3}, 4, v{VXO}
    v_xor_b32 v{VXO2}, 64, v{VXO}
    v_add_u32 v{VXO2}, 8192, v{VXO2}
    v_and_b32 v{VT+3}, 15, v0
    v_lshlrev_b32 v{VT}, 2, v{VT+2}
    v_xor_b32 v{VT+3}, v{VT+3}, v{VT}
    v_mul_u32_u24 v{VWO}, 3584, v{VT+2}
    v_lshl_add_u32 v{VWO}, v{VT+3}, 4, v{VWO}
    s_lshl_b32 s25, s21, 17
    s_lshl_b32 s28, s39, 15
    s_add_u32 s25, s25, s28
    s_mul_i32 s26, s39, {16*3584}
    s_lshl_b32 s28, s22, 8
    s_add_u32 s26, s26, s28
    s_lshl_b32 s27, s39, 12
    """)

def g1_dma(kc, part):
    st = (kc % NS) * STAGE
    return [f"s_add_u32 m0, s27, {st + part*1024}", f"s_add_u32 s31, s25, {128*kc + (part//2)*16384}",
            f"buffer_load_dwordx4 v{VXO if part % 2 == 0 else VXO2}, s[4:7], s31 offen lds",
            f"s_add_u32 m0, s27, {st + 16384 + part*1024}", f"s_add_u32 s37, s26, {(64*kc + 4*part)*3584}",
            f"buffer_load_dwordx4 v{VWO}, s[8:11], s37 offen lds"]

def c_setup(A):
    VT = VT1
    A(f"""
    v_and_b32 v{VT}, 31, v0
    v_lshrrev_b32 v{VT+1}, 5, v0
    v_bfe_u32 v{VT+2}, v0, 1, 3
    v_xor_b32 v{VT+2}, v{VT+2}, v{VT+1}
    s_lshl_b32 s31, s34, 1
    v_xor_b32 v{VT+2}, s31, v{VT+2}
    v_lshlrev_b32 v{VXR}, 7, v{VT}
    v_lshl_add_u32 v{VXR}, v{VT+2}, 4, v{VXR}
    s_lshl_b32 s28, s34, 13
    v_add_u32 v{VXR}, s28, v{VXR}
    v_xor_b32 v{VXR+1}, 32, v{VXR}
    v_xor_b32 v{VXR+2}, 64, v{VXR}
    v_xor_b32 v{VXR+3}, 96, v{VXR}
    v_lshlrev_b32 v{VSO}, 3, v0
    v_bfe_u32 v{VT+2}, v0, 2, 2
    v_lshl_add_u32 v{VTR}, v{VT+1}, 3, v{VT+2}
    v_lshlrev_b32 v{VTR}, 8, v{VTR}
    v_bfe_u32 v{VT+3}, v0, 4, 1
    v_lshl_add_u32 v{VTR}, v{VT+3}, 5, v{VTR}
    v_and_b32 v{VT+3}, 3, v0
    v_lshl_add_u32 v{VTR}, v{VT+3}, 3, v{VTR}
    s_lshl_b32 s31, s35, 1
    v_xor_b32 v{VT+2}, s31, v{VT+2}
    v_lshl_add_u32 v{VTR}, v{VT+2}, 6, v{VTR}
    s_lshl_b32 s31, s34, 12
    s_add_u32 s31, s31, 16384
    v_add_u32 v{VTR}, s31, v{VTR}
    """)
    for i in range(4):
        for ft in range(2):
            if i == 0 and ft == 0: continue
            A(f"v_xor_b32 v{VTR+2*i+ft}, {i*4096 + ft*64}, v{VTR}")
    A(f"""
    v_mov_b32 v{VONE}, 0x3f803f80
    v_mov_b32 v{VONE+1}, 0x3f803f80
    v_lshlrev_b32 v{VHO1}, 4, v0
    s_lshl_b32 s33, s21, 1
    s_add_u32 s33, s33, s34
    s_lshl_b32 s36, s33, 9
    s_add_u32 s36, s36, {WS_STAT}
    s_mul_i32 s32, s33, {2*112*1024}
    s_lshl_b32 s28, s22, 1
    s_add_u32 s28, s28, s35
    s_lshl_b32 s29, s28, 12
    s_add_u32 s32, s32, s29
    s_add_u32 s32, s32, {WS_HF}
    s_add_u32 s38, s32, {112*1024}
    """)
    if HP:
        A(f"""
        s_mul_i32 s29, s28, 37
        s_lshr_b32 s29, s29, 8
        s_lshl_b32 s33, s33, 2
        s_add_u32 s33, s33, s29
        s_lshl_b32 s33, s33, 7
        s_mul_i32 s29, s29, 7
        s_sub_u32 s29, s28, s29
        s_lshl_b32 s29, s29, 2
        s_add_u32 s33, s33, s29
        s_add_u32 s33, s33, {WS_FLH}
        """)
    else:
        A(f"""
        s_lshl_b32 s33, s33, 5
        s_add_u32 s33, s33, s28
        s_lshl_b32 s33, s33, 7
        s_add_u32 s33, s33, {WS_FLH}
        """)
    A(f"""
    s_lshl_b32 s29, s20, 8
    v_lshl_add_u32 v{VCW}, v0, 2, s29
    v_add_u32 v{VCW}, {L_CS}, v{VCW}
    v_xor_b32 v{VCR}, 256, v{VCW}
    """)
    srd(A, 16, "s46", "s47", 3584)
    A(f"""
    v_mov_b32 v{VB1}, 0
    v_lshlrev_b32 v{VT1}, 1, v0
    s_lshl_b32 s28, s28, 7
    buffer_load_short_d16_hi v{VB1}, v{VT1}, s[16:19], s28 offen
    """)
    for k in range(20): A(f"v_mov_b32 v{EA+k}, 0")
    for k in range(12): A(f"v_add_u32 v{HI+k}, 0x10000, v{VXR+k}")

def c_reads(g):
    kc, i = divmod(g, 4)
    st = kc % NS
    b = (VXR if st < 2 else HI); off = (st % 2) * STAGE
    sl = g % NR
    tr = lambda ft, sec: f"ds_read_b64_tr_b16 v[{W1+8*sl+4*ft+2*sec}:{W1+8*sl+4*ft+2*sec+1}], v{b+4+2*i+ft} offset:{off + sec*1024}"
    xr = lambda tt: f"ds_read_b128 v[{X1+8*sl+4*tt}:{X1+8*sl+4*tt+3}], v{b+i} offset:{off + tt*4096}"
    return [xr(0), tr(0, 0), tr(0, 1), tr(1, 0), tr(1, 1), xr(1)]

def gen_c1(A):
    VT = VT1
    dma_setup(A)
    A(f"""
    s_and_b32 s34, s20, 1
    s_lshr_b32 s35, s20, 1
    s_waitcnt lgkmcnt(0)
    s_add_u32 s42, s42, {WSOFF}
    s_addc_u32 s43, s43, 0
    s_load_dword s76, s[42:43], {WS_EPOCH}
    """)
    vm = VMQ()
    A.st("ka")
    srd(A, 4, "s40", "s41", 2 << 20)
    srd(A, 8, "s44", "s45", 512 * 3584)
    srd(A, 12, "s42", "s43", WS_USED)
    CSF = env("CSF", 0)
    if CSF: c_setup(A); vm.note("b1")
    if env("PFAT", 1) == -1 and OPT_PF: coop_prefetch(A, VT); vm.note("pf", 2)
    for kc in range(NC0):
        for part in range(4): A.extend(g1_dma(kc, part))
        vm.note(kc, 8)
        A.st(f"i{kc}")
        if kc == env("BP", 1): A("s_barrier")
        if kc == 0 and not CSF:
            c_setup(A); vm.note("b1")
        if kc == env("PFAT", 2) and OPT_PF == 1: coop_prefetch(A, VT); vm.note("pf", 2)
        if kc == env("PFAT", 2) and OPT_PF == 2: coop_prefetch2(A, VT); vm.note("pf", 3)
    TW = env("TW", 7)
    if TW:
        A(f"v_lshlrev_b32 v{VT+2}, 20, v0")
        if TW & 1: A("s_mov_b64 exec, 3"); A(f"global_load_dword v{VDUM}, v{VT+2}, s[52:53]"); vm.note("tw")
        if TW & 2: A("s_mov_b64 exec, 1"); A(f"buffer_load_dword v{VDUM}, v{VT+2}, s[12:15], s38 offen"); vm.note("tw")
        if TW & 4: A("s_mov_b64 exec, 1"); A(f"global_load_dword v{VDUM}, v{VT+2}, s[50:51]"); vm.note("tw")
        A("s_mov_b64 exec, -1")
    A.extend(ya_prefill(VT, VT + 1, PK)); vm.note("pre", 2)
    hpre = [f"buffer_store_dwordx4 v[{PK}:{PK+3}], v{VHO1}, s[12:15], s{32 if n < 4 else 38} offen offset:{(n%4)*1024} {SC}" for n in range(8)]
    HPRE = env("HPRE", 0)
    if HPRE == 1: A.extend(hpre); vm.note(2, 8)
    w2_setup(A, VT)
    mpf = ["s_lshl_b32 s28, s2, 2", "s_add_u32 s28, s28, s39", "s_lshl_b32 s28, s28, 11", f"v_lshlrev_b32 v{VT+2}, 7, v0", "s_mov_b64 exec, 0xffff",
           f"buffer_load_dword v{VDUM}, v{VT+2}, s[16:19], s28 offen", "s_mov_b64 exec, -1"]
    MPG = env("MPG", -2 if env("MP0", 1) else 9)
    if MPG == -1: A.extend(mpf); vm.note(2)
    A.st("pre")
    A(vm.wait(0)[0] + " lgkmcnt(0)"); A.st("kg"); A("s_barrier")
    A.st("b0")
    T = GT
    lq = LQ(A)
    lq.emit(c_reads(0), 0); lq.emit(c_reads(1), 1)
    mktag(A)
    def big(g, tt, ft):
        sl = g % NR; c = ACC1 + 32 * tt + 16 * ft
        cin = "0" if g == 0 else f"v[{c}:{c+15}]"
        return f"v_mfma_f32_32x32x16_bf16 v[{c}:{c+15}], v[{W1+8*sl+4*ft}:{W1+8*sl+4*ft+3}], v[{X1+8*sl+4*tt}:{X1+8*sl+4*tt+3}], {cin}"
    for g in range(32):
        kc, i = divmod(g, 4); w = W1 + 8 * (g % NR)
        m = lambda d, b_, z: f"v_mfma_f32_4x4x4_16b_bf16 v[{d}:{d+3}], v[{VONE}:{VONE+1}], v[{b_}:{b_+1}], " + ("0" if z else f"v[{d}:{d+3}]")
        o1, o2 = [], []
        if i < 2 and False: pass
        if i in (0, 2) and g < 28 or g in (28, 29):
            o1 = [m(CS, w, g == 0), m(CS + 4, w + 4, g == 0)]; o2 = [m(CS, w + 2, False), m(CS + 4, w + 6, False)]
        A.st(f"g{g}")
        gn = g + 2
        rd = c_reads(PERM(gn))[:] if gn < 32 else []
        rd = c_reads_slot(gn) if gn < 32 else []
        x1, x2 = [], []
        if i == 2 and kc + 1 < 8: x1 += vm.wait(kc + 1) + ["s_barrier"]
        if g == 30:
            x1 += [f"v_permlane32_swap_b32 v{CS}, v{CS+4}", f"v_add_f32 v{CS}, v{CS}, v{CS+4}", f"ds_write_b32 v{VCW}, v{CS}",
                   "s_waitcnt lgkmcnt(0)", "s_barrier", f"ds_read_b32 v{T+2}, v{VCR}"][:None if not NB8 else 3]
            if NB8:
                x1 += ["s_lshl_b32 s28, s20, 2", f"s_add_u32 s28, s28, {L_FLAG+128}", f"v_mov_b32 v{T}, s28", f"v_mov_b32 v{T+1}, 1",
                       f"ds_write_b32 v{T}, v{T+1}", f"v_xor_b32 v{T}, 4, v{T}"]
        if g == STATG: x2 += [f"buffer_load_dwordx2 v[{SG}:{SG+1}], v{VSO}, s[12:15], s36 offen {SC}"]; vm.note("sg")
        if EPE and g == 23: x2 += ep_early(VT)[:9]
        if EPE and g == 24: x2 += ep_early(VT)[9:]; vm.note("ep", 2)
        if g == MPG: x2 += mpf; vm.note("mpf")
        WM = env("WARM", 0)
        if WM and g == env("WARMG", 10):
            x2 += [f"v_lshlrev_b32 v{VT+2}, 20, v0", f"v_lshlrev_b32 v{VT+3}, 7, v0"]
            if WM & 1: x2 += ["s_mov_b64 exec, 0x3fff", f"buffer_load_dword v{VDUM}, v{VT+2}, s[12:15], 0 offen"]; vm.note("wm")
            if WM & 2: x2 += ["s_mov_b64 exec, 3", f"global_load_dword v{VDUM}, v{VT+2}, s[52:53]"]; vm.note("wm")
            if WM & 4: x2 += ["s_mov_b64 exec, 0xff", f"global_load_dword v{VDUM}, v{VT+3}, s[50:51]"]; vm.note("wm")
            x2 += ["s_mov_b64 exec, -1"]
        if HPRE >= 10 and HPRE <= g < HPRE + 8: x2 += [hpre[g - HPRE]]; vm.note("hp")
        if HPRE == 2 and g == 11:
            x2 += [f"v_and_b32 v{VT+2}, 31, v0", f"v_lshlrev_b32 v{VT+2}, 7, v{VT+2}", "s_mov_b64 exec, 0xffffffff", "s_mov_b32 exec_hi, 0",
                   f"buffer_load_dword v{VDUM}, v{VT+2}, s[12:15], s32 offen", f"buffer_load_dword v{VDUM}, v{VT+2}, s[12:15], s38 offen", "s_mov_b64 exec, -1"]; vm.note("hp", 2)
        if g in PFG:
            n_ = 128 // len(PFG); k_ = PFG.index(g)
            x2 += ["s_lshl_b32 s28, s24, 2", "s_add_u32 s28, s28, s39", "s_lshl_b32 s28, s28, 14", f"s_add_u32 s28, s28, {k_*n_*128}", f"v_lshlrev_b32 v{VT+2}, 7, v0"]
            if n_ < 64: x2 += [f"s_mov_b32 exec_lo, {hex((1 << n_) - 1)}", "s_mov_b32 exec_hi, 0"]
            x2 += [f"buffer_load_dword v{VDUM}, v{VT+2}, s[16:19], s28 offen", "s_mov_b64 exec, -1"]; vm.note("l2")
        if g == env("YFG", 16) - 1: x2 += yflag_off()
        if g == env("YFG", 16): x2 += ["s_waitcnt vmcnt(0)"] + wave_flag("s28", VT); vm.q.clear(); vm.note("yf")
        lq.wait(g)
        A(big(g, 0, 0))
        if i == 2: A.st(f"pb{kc+1}")
        lq.emit(x1)
        if i == 2: A.st(f"ab{kc+1}")
        lq.emit(rd[:2], gn)
        A(big(g, 0, 1)); lq.emit(rd[2:4], gn); A.extend(o1)
        A(big(g, 1, 0)); lq.emit(rd[4:], gn)
        A(big(g, 1, 1)); lq.emit(x2); A.extend(o2)
    A.st("loop")
    if NB8:
        lds_wait(A, "L_c_cs", T, 0, T + 1)
        A(f"ds_read_b32 v{T+2}, v{VCR}")
    A.extend(vm.wait("sg", "b1"))
    A(f"""
    v_cmp_ne_u32 vcc, s76, v{SG+1}
    s_cbranch_vccz L_g1_sok
    s_mov_b32 s30, 0
    L_g1_spoll:
    buffer_load_dwordx2 v[{SG}:{SG+1}], v{VSO}, s[12:15], s36 offen {SC}
    s_add_u32 s30, s30, 1
    s_waitcnt vmcnt(0)
    v_cmp_ne_u32 vcc, s76, v{SG+1}
    s_cmp_gt_u32 s30, {SPIN}
    s_cbranch_scc1 L_g1_sok
    s_cbranch_vccnz L_g1_spoll
    L_g1_sok:
    v_mov_b32 v{SG+1}, v{SG}
    s_mov_b32 s28, -1
    s_mov_b32 s29, 0
    v_permlane32_swap_b32 v{SG}, v{SG+1}
    s_waitcnt lgkmcnt(0)
    v_add_f32 v{T+2}, v{T+2}, v{CS}
    """)
    l1 = []
    for tt in range(2):
        l1 += [f"v_and_b32 v{VS+tt}, 0xffff0000, v{SG+tt}", f"v_and_b32 v{T+8+tt}, 0xffff, v{SG+tt}", f"v_rcp_f32 v{T+6+tt}, v{VS+tt}",
               f"v_lshl_or_b32 v{T+8+tt}, v{T+8+tt}, 16, v{T+8+tt}",
               f"v_cndmask_b32 v{EB+8*tt}, 0, v{T+8+tt}, s[28:29]", f"v_cndmask_b32 v{EB+8*tt+1}, 0, v{SG+tt}, s[28:29]",
               f"v_cndmask_b32 v{EB+8*tt+4}, v{T+8+tt}, 0, s[28:29]", f"v_cndmask_b32 v{EB+8*tt+5}, v{SG+tt}, 0, s[28:29]"]
    l2 = [f"v_and_b32 v{T+3}, 0xffff0000, v{T+2}", f"v_sub_f32 v{T+3}, v{T+2}, v{T+3}", f"v_lshrrev_b32 v{T+2}, 16, v{T+2}",
          f"v_and_b32 v{T+4}, 0xffff0000, v{T+3}", f"v_sub_f32 v{T+5}, v{T+3}, v{T+4}", f"v_or_b32 v{EA}, v{T+2}, v{T+4}",
          f"v_lshrrev_b32 v{T+5}, 16, v{T+5}", f"v_or_b32 v{EA+1}, v{T+5}, v{VB1}"]
    A.extend(zipm(l1, l2))
    l3 = []
    for tt in range(2):
        l3.append([f"v_fma_f32 v{T+10+tt}, -v{VS+tt}, v{T+6+tt}, 1.0", f"v_fma_f32 v{T+6+tt}, v{T+10+tt}, v{T+6+tt}, v{T+6+tt}",
                   f"v_mul_f32 v{K1r+tt}, {hex(f2u(GC1))}, v{T+6+tt}", f"v_mul_f32 v{T+10+tt}, v{T+6+tt}, v{T+6+tt}",
                   f"v_mul_f32 v{K3r+tt}, {hex(f2u(GC2))}, v{T+6+tt}", f"v_mul_f32 v{K3r+tt}, v{K3r+tt}, v{T+10+tt}"])
    l3 = zipm(*l3)
    for tt in range(2):
        for ft in range(2):
            c = ACC1 + 32 * tt + 16 * ft
            A(f"v_mfma_f32_32x32x16_bf16 v[{c}:{c+15}], v[{EA}:{EA+3}], v[{EB+8*tt+4*ft}:{EB+8*tt+4*ft+3}], v[{c}:{c+15}]")
            A.extend(l3[3 * (2 * tt + ft):3 * (2 * tt + ft) + 3])
    A.st("gstart")
    for n in range(8):
        tt = n // 4
        if n == env("PGN", 99): A("s_setprio 2")
        c0 = ACC1 + 8 * n
        t0 = GT + 8 * (n % 2)
        if GPK == 1 and n == NPK0:
            A(f"""
            v_mov_b32 v{VT}, {L_FLAG+80}
            L_c_km:
            ds_read_b128 v[{EA}:{EA+3}], v{VT}
            s_waitcnt lgkmcnt(0)
            v_and_b32 v{EA}, v{EA}, v{EA+1}
            v_and_b32 v{EA+2}, v{EA+2}, v{EA+3}
            v_and_b32 v{EA}, v{EA}, v{EA+2}
            s_nop 0
            v_readfirstlane_b32 s28, v{EA}
            s_cmp_eq_u32 s28, 1
            s_cbranch_scc0 L_c_km
            """)
        if GPK == 2 or (GPK and n >= NPK0):
            P = lambda x: f"v[{x}:{x+1}]"
            sel = f"op_sel:[0,{tt},{tt}] op_sel_hi:[1,{tt},{tt}]"
            for k in range(0, 8, 2): A(f"v_pk_mul_f32 {P(t0+k)}, {P(c0+k)}, {P(c0+k)}")
            for k in range(0, 8, 2): A(f"v_pk_fma_f32 {P(t0+k)}, {P(t0+k)}, {P(K3r)}, {P(K1r)} {sel}")
            for k in range(0, 8, 2): A(f"v_pk_mul_f32 {P(t0+k)}, {P(t0+k)}, {P(c0+k)}")
            for k in range(8): A(f"v_exp_f32 v{t0+k}, v{t0+k}")
            for k in range(0, 8, 2): A(f"v_pk_fma_f32 {P(t0+k)}, {P(t0+k)}, {P(VS)}, {P(VS)} {sel}")
            for k in range(8): A(f"v_rcp_f32 v{t0+k}, v{t0+k}")
            for k in range(0, 8, 2): A(f"v_pk_mul_f32 {P(c0+k)}, {P(c0+k)}, {P(t0+k)}")
        else:
            for k in range(8): A(f"v_mul_f32 v{t0+k}, v{c0+k}, v{c0+k}")
            for k in range(8): A(f"v_fma_f32 v{t0+k}, v{t0+k}, v{K3r+tt}, v{K1r+tt}")
            for k in range(8): A(f"v_mul_f32 v{t0+k}, v{t0+k}, v{c0+k}")
            for k in range(8): A(f"v_exp_f32 v{t0+k}, v{t0+k}")
            for k in range(8): A(f"v_fma_f32 v{t0+k}, v{t0+k}, v{VS+tt}, v{VS+tt}")
            for k in range(8): A(f"v_rcp_f32 v{t0+k}, v{t0+k}")
            for k in range(8): A(f"v_mul_f32 v{c0+k}, v{c0+k}, v{t0+k}")
        pk = PK + 4 * (n % 2)
        for k in range(4): A(f"v_cvt_pk_bf16_f32 v{pk+k}, v{c0+2*k}, v{c0+2*k+1}")
        A(f"buffer_store_dwordx4 v[{pk}:{pk+3}], v{VHO1}, s[12:15], s{32 if tt == 0 else 38} offen offset:{(n%4)*1024} {SCH}")
        if env("DBL", 0): A(f"buffer_store_dwordx4 v[{pk}:{pk+3}], v{VHO1}, s[12:15], s{32 if tt == 0 else 38} offen offset:{(n%4)*1024}")
    A.st("gend")
    A("s_mov_b32 s37, 0")
    A("s_branch L_gemm2")

def PERM(g): return g
def c_reads_slot(g):
    if g < 28: return c_reads(g)
    i = [0, 2, 1, 3][g - 28]
    r = c_reads(28 + i)
    kc = 7; st = kc % NS; b = HI; off = (st % 2) * STAGE; sl = g % NR
    tr = lambda ft, sec: f"ds_read_b64_tr_b16 v[{W1+8*sl+4*ft+2*sec}:{W1+8*sl+4*ft+2*sec+1}], v{b+4+2*i+ft} offset:{off + sec*1024}"
    xr = lambda tt: f"ds_read_b128 v[{X1+8*sl+4*tt}:{X1+8*sl+4*tt+3}], v{b+i} offset:{off + tt*4096}"
    return [xr(0), tr(0, 0), tr(0, 1), tr(1, 0), tr(1, 1), xr(1)]

def yflag_off():
    return ["s_lshr_b32 s28, s39, 1", "s_lshl_b32 s29, s2, 1", "s_add_u32 s28, s28, s29", "s_and_b32 s29, s39, 1", "s_lshl_b32 s29, s29, 9",
            "s_add_u32 s28, s28, s29", f"s_lshl_b32 s28, s28, {FS}", f"s_add_u32 s28, s28, {WS_FLY}"]
def ring_ready(vt):
    return ["s_lshl_b32 s28, s39, 2", f"s_add_u32 s28, s28, {L_FLAG+16}", f"v_mov_b32 v{vt}, s28", f"v_mov_b32 v{vt+1}, 1", f"ds_write_b32 v{vt}, v{vt+1}"]

def gen_h1(A):
    VT = VT1
    vm = VMQ()
    vm.note("prm", 8)
    A(f"s_add_u32 s42, s42, {WSOFF}\ns_addc_u32 s43, s43, 0\ns_load_dword s76, s[42:43], {WS_EPOCH}")
    srd(A, 4, "s40", "s41", 2 << 20)
    srd(A, 8, "s44", "s45", 512 * 3584)
    srd(A, 12, "s42", "s43", WS_USED)
    if env("CPF", 1): vm.note("cpf")
    dma_setup(A)
    w2_setup(A, VT)
    if env("MPF", 0):
        A(f"""
        s_lshl_b32 s28, s2, 2
        s_add_u32 s28, s28, s39
        s_lshl_b32 s28, s28, 11
        v_lshlrev_b32 v{VT+2}, 7, v0
        s_mov_b64 exec, 0xffff
        buffer_load_dword v{VDUM}, v{VT+2}, s[16:19], s28 offen
        s_mov_b64 exec, -1
        """)
    if env("TLBW", 0):
        A(f"""
        v_lshlrev_b32 v{VT+2}, {env("TLBS", 20)}, v0
        s_mov_b64 exec, {hex((1 << (WS_USED >> env("TLBS", 20))) - 1)}
        buffer_load_dword v{VDUM}, v{VT+2}, s[12:15], 0 offen
        s_mov_b64 exec, 3
        buffer_load_dword v{VDUM}, v{VT+2}, s[16:19], 0 offen
        global_load_dword v{VDUM}, v{VT+2}, s[52:53]
        s_mov_b64 exec, 1
        global_load_dword v{VDUM}, v{VT+2}, s[50:51]
        s_mov_b64 exec, -1
        """)
        vm.note("tlb", 4)
    kg_waddr(A, L_VS, KWA); A.extend(kg_raddr(L_VS, KRA, VT))
    for a_ in flag_zero(): A.extend(a_)
    if env("BP", 1) >= 0: A("s_barrier")
    A.st("pre")
    A.extend(vm.wait("prm"))
    A.st("prm")
    A.label("L_kgen_v")
    gen_kgen_v(A)
    A("s_cmp_eq_u32 s79, 7")
    A("s_cbranch_scc1 L_ln_H2")
    A.st("kg")
    A("s_waitcnt lgkmcnt(0)"); A("s_barrier")
    A.st("b0")
    mktag(A)
    UV, UW = kgen_u_lists(0)
    wts = [2, 3, 3, 3, 3, 3]; cum = 0
    for k in range(7 if NB8 else 8):
        if NB8 and k == 6:
            if EPE: A.extend(ep_early(VT)); vm.note("ep", 2)
            for sl in range(env("F6N", 2)): A.extend(wdma(sl, sl))
            vm.note("f", 2 * env("F6N", 2))
        elif k <= 5:
            sl_ = UV[len(UV) * cum // sum(wts):len(UV) * (cum + wts[k]) // sum(wts)]; cum += wts[k]
            if k >= 1 or NC0 == 2:
                pcs = []
                for part in range(4):
                    dd = g1_dma(k + 2, part); pcs += [dd[:3], dd[3:]]
                vm.note(k + 2, 8)
                for q, dd in enumerate(pcs):
                    A.extend(dd); A.extend(sl_[len(sl_) * q // 8:len(sl_) * (q + 1) // 8])
            else: A.extend(sl_)
        else:
            for sl in range(4 * (k - 6), 4 * (k - 6) + 4): A.extend(wdma(sl, sl))
            vm.note("f", 8)
        A.st(f"pi{k+1}")
        A.extend(vm.wait(k + 1))
        A("s_barrier")
        A.st(f"ab{k+1}")
    if NB8:
        for sl in range(env("F6N", 2), 8): A.extend(wdma(sl, sl))
        A(f"""
        v_mov_b32 v{VT+2}, {L_FLAG+128}
        L_h_rd:
        ds_read_b128 v[32:35], v{VT+2}
        s_waitcnt lgkmcnt(0)
        v_and_b32 v32, v32, v33
        v_and_b32 v34, v34, v35
        v_and_b32 v32, v32, v34
        s_nop 0
        v_readfirstlane_b32 s28, v32
        s_cmp_eq_u32 s28, 1
        s_cbranch_scc0 L_h_rd
        """)
    A.st("loop")
    HT2 = env("HT2", 0)
    if not HT2:
        for sl in range(8, 12): A.extend(wdma(sl, sl))
    A.label("L_h_tail")
    A(f"s_setprio {env('PRIOX', 1)}")
    lq = LQ(A)
    ar_, mm_ = kg_atoms_m()
    lq.emit(UW)
    for a_ in ar_: lq.emit(a_)
    if GPK == 2:
        A("s_setprio 0")
        A("s_cmp_eq_u32 s79, 7")
        A("s_cbranch_scc1 L_h_gd2")
        A(f"""
        v_mov_b32 v{VT+2}, {L_FLAG+32}
        L_h_gd:
        s_sleep 1
        ds_read_b128 v[32:35], v{VT+2}
        s_waitcnt lgkmcnt(0)
        v_and_b32 v32, v32, v33
        v_and_b32 v34, v34, v35
        v_and_b32 v32, v32, v34
        s_nop 0
        v_readfirstlane_b32 s28, v32
        s_cmp_eq_u32 s28, 1
        s_cbranch_scc0 L_h_gd
        L_h_gd2:
        """)
        A.extend(lnflag_load(36))
    for a_ in mm_ + kg_atoms_x1(): lq.emit(a_)
    A(f"""
    s_lshl_b32 s28, s39, 2
    s_add_u32 s28, s28, {L_FLAG}
    v_mov_b32 v{VT}, s28
    v_mov_b32 v{VT+1}, 1
    ds_write_b32 v{VT}, v{VT+1} offset:80
    v_xor_b32 v{VT+2}, 4, v{VT}
    """)
    HT3 = env('HT3', 1)
    if HT2 or HT3: A.extend(lnflag_load(36))
    lds_wait(A, "L_h_x1", VT + 2, 80, 32)
    lq.q = []
    for a_ in kg_atoms_x2("g"): lq.emit(a_)
    A("s_setprio 0")
    DF = env("DF", 0)
    if DF:
        A("s_waitcnt vmcnt(0)")
        if DF == 1: A.extend(ring_ready(VT))
        A("s_cmp_eq_u32 s79, 7")
        A("s_cbranch_scc1 L_h_dr2")
        A(f"""
        v_mov_b32 v{VT+2}, {L_FLAG+32}
        L_h_dr:
        s_sleep 1
        ds_read_b128 v[32:35], v{VT+2}
        s_waitcnt lgkmcnt(0)
        v_and_b32 v32, v32, v33
        v_and_b32 v34, v34, v35
        v_and_b32 v32, v32, v34
        s_nop 0
        v_readfirstlane_b32 s28, v32
        s_cmp_eq_u32 s28, 1
        s_cbranch_scc0 L_h_dr
        L_h_dr2:
        """)
    if not HT2 and not HT3 and GPK != 2: A.extend(lnflag_load(VT))
    A.st("ku")
    A(f"v_lshlrev_b32 v18, 4, v0")
    A("s_waitcnt vmcnt(0)")
    u_try(A, 18)
    if HT2:
        A("s_cmp_eq_u32 s79, 7")
        A("s_cbranch_scc1 L_h_nof")
        for sl in range(8, 12): A.extend(wdma(sl, sl))
        A("s_branch L_h_f")
        A.label("L_h_nof")
        A.extend(ring_ready(VT))
        A("s_waitcnt vmcnt(0)")
        A.label("L_h_f")
    else:
        A.extend(ring_ready(VT))
    A.st("gend")
    A("s_branch L_conv")
    A.label("L_ln_H2")
    A("s_waitcnt vmcnt(0) ; RESETSB")
    A("ds_write_b32 v5, v6")
    if EPE: A("s_waitcnt lgkmcnt(0)"); A.extend(ep_early(28))
    A.extend(UV)
    A(f"""
    v_mov_b32 v30, {L_FLAG+112}
    L_ln_hv:
    ds_read_b128 v[32:35], v30
    s_waitcnt lgkmcnt(0)
    v_and_b32 v32, v32, v33
    v_and_b32 v34, v34, v35
    v_and_b32 v32, v32, v34
    s_nop 0
    v_readfirstlane_b32 s28, v32
    s_cmp_eq_u32 s28, 1
    s_cbranch_scc0 L_ln_hv
    """)
    A("s_branch L_h_tail")

def gen_gemm1(A):
    A(f"""
    s_load_dwordx8 s[56:63], s[0:1], {KA['A_re']}
    s_load_dwordx8 s[64:71], s[0:1], {KA['C_re']}
    """)
    A("s_cmp_lt_u32 s20, 4")
    A("s_cbranch_scc1 L_g1_C")
    param_loads(A, VT1)
    if env("CPF", 1):
        A(f"""
        s_getpc_b64 s[28:29]
        L_pc0:
        s_sub_u32 s28, s28, L_pc0-{KNAME}
        s_subb_u32 s29, s29, 0
        s_lshl_b32 s30, s24, 2
        s_add_u32 s30, s30, s39
        s_mul_i32 s30, s30, 384
        v_lshl_add_u32 v{VT1+2}, v0, 7, s30
        v_min_u32 v{VT1+2}, L_exit-{KNAME}, v{VT1+2}
        s_mov_b64 exec, 7
        global_load_dword v{VDUM}, v{VT1+2}, s[28:29]
        s_mov_b64 exec, -1
        """)
    A("s_branch L_g1_H")
    A.label("L_g1_C")
    A("s_nop 0 ; RESETSB")
    gen_c1(A)
    A.label("L_g1_H")
    A("s_nop 0 ; RESETSB")
    gen_h1(A)


def gen_ln(A):
    Q, R, O, T = 16, 48, 80, 112
    A(f"""
    s_load_dwordx8 s[56:63], s[0:1], {KA['A_re']}
    s_load_dwordx8 s[64:71], s[0:1], {KA['C_re']}
    v_lshrrev_b32 v1, 3, v0
    v_and_b32 v2, 7, v0
    v_lshlrev_b32 v3, 10, v1
    v_lshl_add_u32 v3, v2, 4, v3
    v_lshlrev_b32 v4, 4, v0
    s_lshl_b32 s25, s21, 6
    s_lshl_b32 s28, s20, 3
    s_add_u32 s25, s25, s28
    s_lshl_b32 s36, s25, 3
    s_add_u32 s36, s36, {WS_STAT}
    s_lshl_b32 s25, s25, 10
    s_add_u32 s26, s25, 4096
    s_waitcnt lgkmcnt(0)
    s_add_u32 s42, s42, {WSOFF}
    s_addc_u32 s43, s43, 0
    s_load_dword s76, s[42:43], {WS_EPOCH}
    """)
    srd(A, 4, "s40", "s41", 2 << 20)
    for t in range(8): A(f"buffer_load_dwordx4 v[{R+4*t}:{R+4*t+3}], v4, s[4:7], s{25 + t//4} offen offset:{(t%4)*1024}")
    srd(A, 12, "s42", "s43", WS_USED)
    A(f"""
    v_mov_b32 v5, 0x3f803f80
    v_mov_b32 v14, 0x00003f80
    v_mov_b32 v15, 0x3f800000
    v_lshlrev_b32 v8, 3, v1
    """)
    S1, S2 = Q, Q + 8
    A("s_setprio 2")
    for t in range(8):
        A(f"s_waitcnt vmcnt({7 - t})")
        for k in range(4):
            r = R + 4 * t + k
            A(f"v_dot2_f32_bf16 v{S1+t}, v{r}, v5, {'0' if k == 0 else f'v{S1+t}'}")
            A(f"v_dot2_f32_bf16 v{S2+t}, v{r}, v{r}, {'0' if k == 0 else f'v{S2+t}'}")
    for r in range(4):
        for S in (S1, S2): A(f"v_permlane32_swap_b32 v{S+r}, v{S+r+4}")
    for r in range(4):
        for S in (S1, S2): A(f"v_add_f32 v{S+r}, v{S+r}, v{S+r+4}")
    for r in range(2):
        for S in (S1, S2): A(f"v_permlane16_swap_b32 v{S+r}, v{S+r+2}")
    for r in range(2):
        for S in (S1, S2): A(f"v_add_f32 v{S+r}, v{S+r}, v{S+r+2}")
    for r in range(2):
        for S in (S1, S2): A(f"v_add_f32_dpp v{S+r}, v{S+r}, v{S+r} row_ror:8 row_mask:0xf bank_mask:0xf")
    A.extend(mask("0xff00ff00"))
    A(f"""
    v_cndmask_b32 v6, v{S1}, v{S1+1}, s[28:29]
    v_cndmask_b32 v7, v{S2}, v{S2+1}, s[28:29]
    s_waitcnt lgkmcnt(0)
    """)
    mktag(A)
    A(f"""
    v_mov_b32 v11, s76
    v_add_f32_dpp v6, v6, v6 quad_perm:[1,0,3,2] row_mask:0xf bank_mask:0xf
    v_add_f32_dpp v7, v7, v7 quad_perm:[1,0,3,2] row_mask:0xf bank_mask:0xf
    v_add_f32_dpp v6, v6, v6 quad_perm:[2,3,0,1] row_mask:0xf bank_mask:0xf
    v_add_f32_dpp v7, v7, v7 quad_perm:[2,3,0,1] row_mask:0xf bank_mask:0xf
    v_add_f32_dpp v6, v6, v6 row_half_mirror row_mask:0xf bank_mask:0xf
    v_add_f32_dpp v7, v7, v7 row_half_mirror row_mask:0xf bank_mask:0xf
    v_mul_f32 v12, {hex(f2u(1/512))}, v6
    v_mul_f32 v13, {hex(f2u(1/512))}, v7
    v_fma_f32 v13, -v12, v12, v13
    v_max_f32 v13, 0, v13
    """)
    round_bf16(A, 13)
    A(f"v_add_f32 v13, {hex(f2u(1e-5))}, v13")
    round_bf16(A, 13)
    A(f"""
    v_sqrt_f32 v13, v13
    v_cvt_pk_bf16_f32 v10, -v12, v13
    s_mov_b32 exec_lo, 0x01010101
    s_mov_b32 exec_hi, 0x01010101
    buffer_store_dwordx2 v[10:11], v8, s[12:15], s36 offen {SC}
    s_mov_b64 exec, -1
    """)
    A.st("b0")
    A("s_setprio 0")
    param_loads(A, T)
    LPF = env("LPF", 0)
    if LPF:
        srd(A, 16, "s48", "s49", 1792 * 1024)
        A(f"""
        s_lshl_b32 s28, s21, 3
        s_add_u32 s28, s28, s20
        s_mul_i32 s28, s28, {56*128}
        v_min_u32 v{T+2}, 55, v0
        v_lshlrev_b32 v{T+2}, 7, v{T+2}
        buffer_load_dword v{VDUM}, v{T+2}, s[16:19], s28 offen
        """)
    A(f"""
    v_and_b32 v13, 0xffff0000, v10
    v_lshlrev_b32 v12, 16, v10
    v_rcp_f32 v5, v13
    s_nop 0
    v_fma_f32 v13, -v13, v5, 1.0
    v_fma_f32 v13, v13, v5, v5
    """)
    for t in range(8):
        A(f"v_readlane_b32 s{56+t}, v12, {8*t}")
        A(f"v_readlane_b32 s{64+t}, v13, {8*t}")
    A(f"""
    v_xor_b32 v5, s20, v2
    v_lshlrev_b32 v6, 10, v0
    v_lshl_add_u32 v6, v5, 4, v6
    """)

    for tp in range(4):
        t0, t1 = 2 * tp, 2 * tp + 1
        for k in range(4):
            for h in range(2):
                e = 2 * k + h
                A(f"v_dot2_f32_bf16 v{T+2*e}, v{R+4*t0+k}, v{14+h}, s{56+t0}")
                A(f"v_dot2_f32_bf16 v{T+2*e+1}, v{R+4*t1+k}, v{14+h}, s{56+t1}")
        if env("LNX", 1):
            for e in range(8): A(f"v_cvt_pk_bf16_f32 v{T+2*e+1}, v{T+2*e}, v{T+2*e+1}")
            for e in range(8):
                A(f"v_lshlrev_b32 v{T+2*e}, 16, v{T+2*e+1}")
                A(f"v_and_b32 v{T+2*e+1}, 0xffff0000, v{T+2*e+1}")
        for e in range(8): A(f"v_pk_mul_f32 v[{T+2*e}:{T+2*e+1}], v[{T+2*e}:{T+2*e+1}], s[{64+t0}:{64+t1}]")
        for e in range(8): A(f"v_cvt_pk_bf16_f32 v{O+4*e+tp}, v{T+2*e}, v{T+2*e+1}")
        if tp == env("LFP", 3):
            w2_setup(A, 28)
            LF = env("LF", 0)
            A("s_cmp_ge_u32 s20, 4")
            A("s_cbranch_scc1 L_ln_nofill")
            for sl in range(LF): A.extend(wdma(sl, sl))
            A.label("L_ln_nofill")
    for e in range(8): A(f"ds_write_b128 v6, v[{O+4*e}:{O+4*e+3}] offset:{e*128}")
    for a_ in flag_zero(): A.extend(a_)
    A.st("g8")
    A(f"""
    s_lshl_b32 s28, s20, 13
    v_lshlrev_b32 v6, 7, v1
    v_lshl_add_u32 v6, v2, 4, v6
    v_add_u32 v6, s28, v6
    v_lshlrev_b32 v7, 12, v1
    v_lshl_add_u32 v7, v2, 4, v7
    s_lshl_b32 s26, s20, 18
    s_lshl_b32 s28, s21, 7
    s_add_u32 s26, s26, s28
    s_add_u32 s26, s26, {WS_XNT}
    s_lshl_b32 s33, s21, {FS}
    s_add_u32 s33, s33, {WS_FLL}
    """)
    for i in range(8): A(f"v_xor_b32 v{8+i}, {16*i}, v6")
    A("s_waitcnt lgkmcnt(0)")
    A("s_barrier")
    for i in range(8): A(f"ds_read_b128 v[{192+4*i}:{192+4*i+3}], v{8+i} offset:{i*1024}")
    for i in range(8):
        A(f"s_waitcnt lgkmcnt({7-i})")
        A(f"s_add_u32 s25, s26, {i*32768}")
        A(f"buffer_store_dwordx4 v[{192+4*i}:{192+4*i+3}], v7, s[12:15], s25 offen {SC}")
    A.st("loop")
    A(f"""
    s_lshl_b32 s28, s20, 2
    s_add_u32 s28, s28, {L_FLAG+96}
    v_mov_b32 v5, s28
    v_mov_b32 v6, 1
    s_cmp_lt_u32 s20, 4
    s_cbranch_scc1 L_ln_C
    """)
    kg_waddr(A, L_VS, KWA); A.extend(kg_raddr(L_VS, KRA, 28))
    A(f"s_mov_b32 s33, {WS_DUMMY}")
    A("s_waitcnt vmcnt(8)")
    A("s_branch L_kgen_v")
    A.label("L_ln_C")
    A.extend(ya_prefill(T + 2, T + 3, T + 4))
    A(f"""
    v_mov_b32 v30, {L_FLAG+96}
    s_waitcnt vmcnt(0)
    ds_write_b32 v5, v6
    """)
    A.extend(yflag_off()); A.extend(wave_flag("s28", 34))
    A(f"""
    L_ln_cs:
    ds_read_b128 v[36:39], v30
    ds_read_b128 v[40:43], v30 offset:16
    s_waitcnt lgkmcnt(0)
    v_and_b32 v36, v36, v37
    v_and_b32 v38, v38, v39
    v_and_b32 v40, v40, v41
    v_and_b32 v42, v42, v43
    v_and_b32 v36, v36, v38
    v_and_b32 v40, v40, v42
    v_and_b32 v36, v36, v40
    s_nop 0
    v_readfirstlane_b32 s28, v36
    s_cmp_eq_u32 s28, 1
    s_cbranch_scc0 L_ln_cs
    """)
    publish_flag(A, "s33", 32, "l", 0)
    A.st("gstart")
    A(f"s_mov_b32 s33, {WS_DUMMY}")
    if EPE: A.extend(ep_early(28))
    for sl in range(12): A.extend(wdma(sl, sl))
    A("s_waitcnt vmcnt(0)")
    for sl in range(12): A.extend(w2tr(sl, sl))
    A(f"""
    v_mov_b32 v28, {L_FLAG+16}
    L_ln_cw:
    ds_read_b128 v[32:35], v28
    s_waitcnt lgkmcnt(0)
    v_and_b32 v32, v32, v33
    v_and_b32 v34, v34, v35
    v_and_b32 v32, v32, v34
    s_nop 0
    v_readfirstlane_b32 s28, v32
    s_cmp_eq_u32 s28, 1
    s_cbranch_scc0 L_ln_cw
    """)
    for sl in range(12): A.extend(wdma(sl, 12 + sl))
    A(f"""
    s_lshl_b32 s28, s20, 8
    s_add_u32 s28, s28, s2
    s_cmp_lg_u32 s28, 255
    s_cbranch_scc1 L_nobump
    v_lshlrev_b32 v28, {FS+1}, v0
    s_mov_b32 s30, 0
    L_bump_poll:
    """)
    for k in range(4):
        A(f"s_mov_b32 s28, {WS_FLY + k*(128 << FS)}")
        A(f"buffer_load_dword v{32+k}, v28, s[12:15], s28 offen {SC}")
    A(f"""
    s_add_u32 s30, s30, 1
    s_waitcnt vmcnt(0)
    v_xor_b32 v32, s76, v32
    v_xor_b32 v33, s76, v33
    v_xor_b32 v34, s76, v34
    v_xor_b32 v35, s76, v35
    v_or3_b32 v32, v32, v33, v34
    v_or_b32 v32, v32, v35
    v_cmp_ne_u32 vcc, 0, v32
    s_cmp_gt_u32 s30, {SPIN}
    s_cbranch_scc1 L_bump_go
    s_cbranch_vccnz L_bump_poll
    L_bump_go:
    s_mov_b32 s28, {WS_EPOCH}
    """)
    A.extend(wave_flag("s28", 28))
    A.label("L_nobump")
    A("s_mov_b32 s37, 1")
    A("s_branch L_gemm2")


def final_addr(A):
    A(f"""
    v_lshrrev_b32 v1, 3, v0
    v_and_b32 v2, 7, v0
    v_lshlrev_b32 v{VOO}, 10, v1
    v_lshl_add_u32 v{VOO}, v2, 4, v{VOO}
    v_lshlrev_b32 v3, 4, v2
    s_lshl_b32 s33, s78, 6
    s_lshl_b32 s28, s20, 3
    s_add_u32 s33, s33, s28
    s_lshl_b32 s33, s33, 10
    s_lshl_b32 s34, s79, 7
    s_add_u32 s33, s33, s34
    """)
def ep_loads():
    o = Asm()
    srd(o, 8, "s50", "s51", 1024)
    o(f"buffer_load_dwordx4 v[{VX}:{VX+3}], v{VOO}, s[4:7], s33 offen")
    o(f"buffer_load_dwordx4 v[{VB2}:{VB2+3}], v3, s[8:11], s34 offen")
    return o.lines


def ep_early(vt):
    return [f"v_lshrrev_b32 v{vt}, 3, v0", f"v_and_b32 v{vt+1}, 7, v0", f"v_lshlrev_b32 v{vt}, 10, v{vt}", f"v_lshlrev_b32 v{vt+1}, 4, v{vt+1}",
            f"v_add_u32 v{vt}, v{vt}, v{vt+1}", "s_lshl_b32 s29, s78, 6", "s_lshl_b32 s28, s20, 3", "s_add_u32 s29, s29, s28", "s_lshl_b32 s29, s29, 10",
            "s_lshl_b32 s30, s79, 7", "s_add_u32 s29, s29, s30", "s_mov_b32 s8, s50", "s_mov_b32 s9, s51", "s_mov_b32 s10, 1024", "s_mov_b32 s11, 0x00020000",
            f"buffer_load_dwordx4 v[{VX}:{VX+3}], v{vt}, s[4:7], s29 offen", f"buffer_load_dwordx4 v[{VB2}:{VB2+3}], v{vt+1}, s[8:11], s30 offen"]

def gen_gemm2(A):
    VHO, VTR2, VP, VT = 13, 14, 18, 22
    ACC, W, H = ACC2, W2R, HR
    if PRIO_G: A(f"s_setprio {PRIO_G}")
    A("s_mov_b32 s22, s33")
    final_addr(A)
    for k in range(4): A(f"v_mov_b32 v{VTR2+k}, v{VTL+k}")
    A(f"""
    v_lshlrev_b32 v{VHO}, 4, v0
    v_lshrrev_b32 v{VT}, 5, v0
    v_xor_b32 v{VT}, v{VT}, v2
    v_and_b32 v{VP}, 31, v0
    v_lshlrev_b32 v{VP}, 8, v{VP}
    v_lshl_add_u32 v{VP}, v{VT}, 4, v{VP}
    v_add_u32 v{VP}, s73, v{VP}
    v_xor_b32 v{VP+1}, 32, v{VP}
    v_xor_b32 v{VP+2}, 64, v{VP}
    v_xor_b32 v{VP+3}, 96, v{VP}
    s_mul_i32 s24, s78, {2*112*1024}
    s_mul_i32 s28, s20, {28*1024}
    s_add_u32 s24, s24, s28
    s_add_u32 s24, s24, {WS_HF}
    s_add_u32 s25, s24, {112*1024}
    s_mul_i32 s26, s20, {1 if HP else 7}
    s_lshl_b32 s28, s78, {2 if HP else 5}
    s_add_u32 s26, s26, s28
    s_lshl_b32 s26, s26, 7
    s_add_u32 s26, s26, {WS_FLH}
    v_min_u32 v{VT}, 6, v2
    v_lshlrev_b32 v{VT}, {2 if HP else 7}, v{VT}
    s_lshl_b32 s28, s20, 2
    s_add_u32 s28, s28, {L_FLAG+16}
    v_mov_b32 v{ACC+4}, s28
    v_mov_b32 v{ACC+5}, 1
    ds_write_b32 v{ACC+4}, v{ACC+5} offset:16
    s_mov_b32 s30, 0
    s_cmp_eq_u32 s37, 1
    s_cbranch_scc1 L_g2_poll
    """)
    A.st("prew")
    A("s_waitcnt vmcnt(0)")
    A.extend(wave_flag("s22", ACC))
    A.st("p2bar")
    A(f"""
    L_g2_rr:
    ds_read_b32 v{ACC+5}, v{ACC+4}
    s_waitcnt lgkmcnt(0)
    v_readfirstlane_b32 s28, v{ACC+5}
    s_cmp_eq_u32 s28, 1
    s_cbranch_scc0 L_g2_rr
    """)
    for sl in range(3): A.extend(w2tr(sl, sl, VTR2))
    for sl in range(12):
        left = min(12, sl + 3) - sl - 1
        A(f"s_waitcnt lgkmcnt({4*left})")
        if sl + 3 < 12: A.extend(w2tr(sl + 3, sl + 3, VTR2))
        if EP and sl == 12 - EP: A(f"buffer_load_dword v{ACC+2}, v{VT}, s[12:15], s26 offen {SC}")
        A.extend(wdma(sl, 12 + sl))
    if EP:
        A(f"""
        s_waitcnt vmcnt({2*EP})
        v_cmp_ne_u32 vcc, s76, v{ACC+2}
        s_cbranch_vccz L_g2_go
        """)
    A.st("s5")
    A.label("L_g2_poll")
    A(f"""
    buffer_load_dword v{ACC+2}, v{VT}, s[12:15], s26 offen {SC}
    s_add_u32 s30, s30, 1
    s_waitcnt vmcnt(0)
    v_cmp_ne_u32 vcc, s76, v{ACC+2}
    s_cmp_gt_u32 s30, {SPIN}
    s_cbranch_scc1 L_g2_go
    s_cbranch_vccnz L_g2_poll
    """)
    A.label("L_g2_go")
    vm = VMQ()
    for sl in range(12 - EP, 12): vm.note(("w", 12 + sl), 2)
    A.st("s6")
    def hload(kp):
        sl = kp % HD
        vm.note(("h", kp), 2)
        return koff("s31", ORDER[kp]) + ["s_add_u32 s27, s31, s24", "s_add_u32 s31, s31, s25",
                                  f"buffer_load_dwordx4 v[{H+8*sl}:{H+8*sl+3}], v{VHO}, s[12:15], s27 offen {SCL}",
                                  f"buffer_load_dwordx4 v[{H+8*sl+4}:{H+8*sl+7}], v{VHO}, s[12:15], s31 offen {SCL}"]
    H0 = env("H0", 9)
    for kp in range(H0): A.extend(hload(kp))
    nh = [H0]
    def more(kp, n):
        for _ in range(n):
            if nh[0] < 28 and nh[0] <= kp - 1 + HD:
                A.extend(hload(nh[0])); nh[0] += 1
    if PRIO_G: A(f"s_setprio {env('PRIOG2', 0)}")
    inring = lambda k: ORDER[k] >= 12
    wset = lambda k: ((k % 2) if k < 24 else k - 24) if inring(k) else ORDER[k]
    slot_of = lambda k: (ORDER[k] - 12) % 12
    for kp in range(28 - TS):
        nx = kp + 1
        if TS and kp >= 20 and kp < 24: nx = kp + 4
        if TS and kp >= 24: nx = 99
        if inring(kp): A("s_waitcnt lgkmcnt(0)")
        A.extend(vm.wait(("h", kp)))
        if kp in (4, 9, 14, 19): A.st(f"k{kp}")
        b = W + 8 * wset(kp); sl = kp % HD
        mf = []
        for tb in range(2):
            for db in range(2):
                c = ACC + 32 * tb + 16 * db
                cin = "0" if kp == 0 else f"v[{c}:{c+15}]"
                mf.append(f"v_mfma_f32_32x32x16_bf16 v[{c}:{c+15}], v[{b+4*db}:{b+4*db+3}], v[{H+8*sl+4*tb}:{H+8*sl+4*tb+3}], {cin}")
        A(mf[0])
        if nx < 28 and inring(nx):
            A.extend(vm.wait(("w", ORDER[nx])))
            A.extend(w2tr(slot_of(nx), wset(nx), VTR2))
        A(mf[1])
        more(kp, 1)
        A(mf[2])
        more(kp, 1)
        if 12 <= ORDER[kp] < 16:
            A.extend(wdma(ORDER[kp] - 12, ORDER[kp] + 12)); vm.note(("w", ORDER[kp] + 12), 2)
        if kp == 20 and not EPE:
            A.extend(ep_loads()); vm.note("ep", 2)
        if kp == env("SIGK", 19):
            A(f"""
            s_lshl_b32 s28, s20, 2
            s_add_u32 s28, s28, {L_FLAG+48}
            v_mov_b32 v{VT}, s28
            v_mov_b32 v{W}, 1
            ds_write_b32 v{VT}, v{W}
            """)
        A(mf[3])
        if kp == 0: A.st("k0")
    pw = lambda tb, db: [f"ds_write_b128 v{VP+q}, v[{ACC+32*tb+16*db+4*q}:{ACC+32*tb+16*db+4*q+3}] offset:{tb*32768+db*128}" for q in range(4)]
    if TS:
        A("s_waitcnt lgkmcnt(0)")
        A.extend(vm.wait(("h", 27)))
        prev = []
        for tb in range(2):
            for db in range(2):
                c = ACC + 32 * tb + 16 * db
                for j, kp in enumerate(range(28 - TS, 28)):
                    b_ = W + 8 * wset(kp); sl = kp % HD
                    A(f"v_mfma_f32_32x32x16_bf16 v[{c}:{c+15}], v[{b_+4*db}:{b_+4*db+3}], v[{H+8*sl+4*tb}:{H+8*sl+4*tb+3}], v[{c}:{c+15}]")
                    if j >= 1 and prev: A.extend(prev[:2]); prev = prev[2:]
                A.extend(prev); prev = pw(tb, db)
        A.st("s7")
        A.extend(prev)
    else:
        A.st("s7")
        for tb in range(2):
            for db in range(2): A.extend(pw(tb, db))
    A("s_waitcnt vmcnt(0) lgkmcnt(0)")
    A("s_branch L_final")


def gen_conv(A):
    if PRIO_C: A(f"s_setprio {PRIO_C}")
    VTA, VF = 32, 36
    VXN, VBW, VOWN, VPAR = 37, 38, 39, 40
    T0 = 42
    dsk = P0 + 7
    ACC = 48; FB = [80, 112]; TB = [144, 208]
    XN = 196
    final_addr(A)
    A(f"""
    s_mov_b32 s21, s39
    s_lshr_b32 s35, s21, 1
    s_and_b32 s36, s21, 1
    s_mul_i32 s38, s35, {CH_SIZE}
    s_add_u32 s38, s38, {L_CH}
    s_lshl_b32 s27, s21, 13
    s_add_u32 s27, s27, {L_ST2}
    s_xor_b32 s32, s27, {ST2}
    v_and_b32 v{T0}, 15, v0
    v_lshrrev_b32 v{T0+1}, 4, v0
    v_and_b32 v{T0+2}, 1, v0
    v_mul_u32_u24 v{T0+2}, {OFF_O + 2 - OFF_E}, v{T0+2}
    s_lshl_b32 s31, s36, 8
    s_sub_u32 s31, s38, s31
    s_add_u32 s29, s31, {OFF_O + 2*2032 - 512 - 192}
    v_lshlrev_b32 v{T0+3}, 1, v{T0}
    v_sub_u32 v{VTA}, s29, v{T0+3}
    v_lshl_add_u32 v{VTA}, v{T0+1}, 4, v{VTA}
    v_sub_u32 v{VTA}, v{VTA}, v{T0+2}
    v_subrev_u32 v{VTA+1}, 1024, v{VTA}
    v_subrev_u32 v{VTA+2}, 2048, v{VTA}
    v_subrev_u32 v{VTA+3}, 3072, v{VTA}
    """)
    def freads(rr, fb): return [f"ds_read_b128 v[{fb+4*m}:{fb+4*m+3}], v{VF} offset:{512*m + 64*(3-rr)}" for m in range(8)]
    def treads(rr, tb):
        o = []
        for i in range(8):
            off = 128 * (1 - (i & 1)) + 16 * (3 - rr)
            o.append(f"ds_read2_b32 v[{tb+4*i}:{tb+4*i+1}], v{VTA+i//2} offset0:{off} offset1:{off+1}")
            o.append(f"ds_read2_b32 v[{tb+4*i+2}:{tb+4*i+3}], v{VTA+i//2} offset0:{off+2} offset1:{off+3}")
        return o
    A(f"""
    v_lshl_add_u32 v19, v0, 4, s38
    s_add_u32 s29, s31, {480 - 192}
    v_lshlrev_b32 v{VF}, 5, v{T0}
    v_lshl_add_u32 v{VF}, v{T0+1}, 4, v{VF}
    v_add_u32 v{VF}, s29, v{VF}
    v_lshlrev_b32 v{VXN}, 5, v{T0}
    v_lshl_add_u32 v{VXN}, v{T0+1}, 3, v{VXN}
    v_add_u32 v{VBW}, s27, v{VXN}
    s_lshl_b32 s28, s36, 11
    s_add_u32 s28, s28, s38
    v_add_u32 v{VXN}, s28, v{VXN}
    v_lshl_add_u32 v{VOWN}, v0, 4, s27
    v_lshl_add_u32 v{VPAR}, v0, 4, s32
    v_mov_b32 v13, 1
    s_lshl_b32 s29, s21, 2
    s_add_u32 s29, s29, {L_FLAG}
    v_mov_b32 v14, s29
    s_xor_b32 s29, s29, 4
    v_mov_b32 v15, s29
    v_lshlrev_b32 v18, 4, v0
    """)
    A(f"""
    L_cv_ex:
    ds_read_b32 v16, v15 offset:64
    s_waitcnt lgkmcnt(0)
    v_readfirstlane_b32 s28, v16
    s_cmp_eq_u32 s28, 1
    s_cbranch_scc0 L_cv_ex
    """)
    A.extend(treads(0, TB[0]))
    A("s_cmp_eq_u32 s37, 1")
    A("s_cbranch_scc1 L_cv_uok")
    if env("HT2", 0): A("s_waitcnt vmcnt(0)"); A.extend(ring_ready(20))
    u_spin(A, 20, 18)
    A.label("L_cv_uok")
    A(f"s_waitcnt vmcnt({8 if env('HT2', 0) else 0})")
    for k in range(4): A(f"ds_write_b128 v19, v[{XL+4*k}:{XL+4*k+3}] offset:{512 + k*1024}")
    A.extend(freads(0, FB[0]))
    A.st("s4")
    if GPK == 1:
        A(f"""
        v_mov_b32 v17, {L_FLAG+32}
        L_cv_gd:
        ds_read_b128 v[20:23], v17
        s_waitcnt lgkmcnt(0)
        v_and_b32 v20, v20, v21
        v_and_b32 v22, v22, v23
        v_and_b32 v20, v20, v22
        s_nop 0
        v_readfirstlane_b32 s28, v20
        s_cmp_eq_u32 s28, 1
        s_cbranch_scc0 L_cv_gd
        """)
    A.st("s5")
    for rp in range(4):
        fb, tb = FB[rp % 2], TB[rp % 2]
        mm = []
        for i in range(8):
            for j in range(i, 8):
                cin = "0" if (rp == 0 and i == 0) else f"v[{ACC+4*j}:{ACC+4*j+3}]"
                mm.append(f"v_mfma_f32_16x16x32_bf16 v[{ACC+4*j}:{ACC+4*j+3}], v[{tb+4*i}:{tb+4*i+3}], v[{fb+4*(j-i)}:{fb+4*(j-i)+3}], {cin}")
        if rp == 1:
            if env("HT2", 0): A("s_waitcnt vmcnt(0)"); A.extend(ring_ready(20))
            if not EPE: A.extend(ep_loads())
        if HT and rp == env("HTP", 3):
            A(f"""
            s_lshl_b32 s28, s24, 2
            s_add_u32 s28, s28, s21
            s_mul_i32 s28, s28, {56*128}
            s_mul_i32 s29, s23, {8*112*1024}
            s_add_u32 s28, s28, s29
            s_add_u32 s28, s28, {WS_HF}
            v_min_u32 v{T0}, 55, v0
            v_lshlrev_b32 v{T0}, 7, v{T0}
            buffer_load_dword v20, v{T0}, s[12:15], s28 offen {SC}
            """)
        if rp == 0:
            o = []
            for j in range(8): o += [f"s_waitcnt lgkmcnt({7-j})", mm[j]]
            mm = o + interleave(mm[8:], freads(1, FB[1]) + treads(1, TB[1]), 0, 22)
        else:
            A("s_waitcnt lgkmcnt(0)")
            if rp < 3: mm = interleave(mm, freads(rp + 1, FB[(rp + 1) % 2]) + treads(rp + 1, TB[(rp + 1) % 2]), 0, 26)
            else: mm = interleave(mm, [f"ds_read_b64 v[{XN+2*a_}:{XN+2*a_+1}], v{VXN} offset:{512 + a_*512}" for a_ in range(4)], 0, 8)
        A.extend(mm)
    A.st("s6")
    A("s_cmp_eq_u32 s36, 1")
    A("s_cbranch_scc1 L_cv_x1")
    for a_ in range(4): A(f"ds_write_b128 v{VOWN}, v[{ACC+16+4*a_}:{ACC+16+4*a_+3}] offset:{4096 + a_*1024}")
    A("ds_write_b32 v14, v13")
    A("s_branch L_cv_out")
    A.label("L_cv_x1")
    A("s_nop 7")
    for a_ in range(4): A(f"ds_write_b128 v{VOWN}, v[{ACC+4*a_}:{ACC+4*a_+3}] offset:{4096 + a_*1024}")
    A("ds_write_b32 v14, v13")
    for k in range(16): A(f"v_mov_b32 v{ACC+k}, v{ACC+16+k}")
    A.label("L_cv_out")
    A(f"""
    """)
    A.extend(ya_addr(41, T0))
    A(f"""
    v_mov_b32 v{T0+2}, 0xfffffffe
    s_waitcnt lgkmcnt(5)
    """)
    t = 80; z = 96; YP = 112
    for k in range(8):
        A(f"v_lshlrev_b32 v{t+2*k}, 16, v{XN+k}")
        A(f"v_and_b32 v{t+2*k+1}, 0xffff0000, v{XN+k}")
    for k in range(16): A(f"v_fma_f32 v{ACC+k}, v{t+k}, v{dsk}, v{ACC+k}")
    A.label("L_cv_ps1")
    A(f"""
    ds_read_b32 v16, v15
    s_waitcnt lgkmcnt(0)
    v_readfirstlane_b32 s28, v16
    s_cmp_eq_u32 s28, 1
    s_cbranch_scc0 L_cv_ps1
    """)
    for a_ in range(4): A(f"ds_read_b128 v[{YP+4*a_}:{YP+4*a_+3}], v{VPAR} offset:{4096 + a_*1024}")
    for a_ in range(4):
        A("s_waitcnt lgkmcnt(3)")
        for k in range(4): A(f"v_add_f32 v{ACC+4*a_+k}, v{ACC+4*a_+k}, v{YP+4*a_+k}")
        for k in range(2): A(f"v_cvt_pk_bf16_f32 v{z+2*a_+k}, v{ACC+4*a_+2*k}, v{ACC+4*a_+2*k+1}")
        for k in range(2): A(f"v_min_u32 v{z+2*a_+k}, v{z+2*a_+k}, v{T0+2}")
        A(f"ds_write_b64 v{VBW}, v[{z+2*a_}:{z+2*a_+1}] offset:{a_*512}")
    for h in range(2): A(f"ds_read_b128 v[{t+4*h}:{t+4*h+3}], v{VOWN} offset:{h*1024}")
    for h in range(2):
        A(f"s_waitcnt lgkmcnt({1-h})")
        A(f"buffer_store_dwordx4 v[{t+4*h}:{t+4*h+3}], v41, s[12:15], s{30+h} offen {SC}")
    Y = 160
    A(f"""
    v_lshlrev_b32 v{T0}, 8, v1
    v_lshl_add_u32 v{T0}, v2, 4, v{T0}
    s_lshl_b32 s28, s79, 5
    s_add_u32 s28, s28, s78
    s_lshl_b32 s28, s28, 13
    s_lshl_b32 s29, s21, 11
    s_add_u32 s28, s28, s29
    s_add_u32 s28, s28, {WS_YA}
    v_lshlrev_b32 v{T0+1}, 8, v2
    v_lshl_add_u32 v{T0+1}, v2, 4, v{T0+1}
    v_lshl_add_u32 v{T0+1}, v1, 2, v{T0+1}
    v_add_u32 v{T0+1}, s27, v{T0+1}
    v_mov_b32 v{T0+3}, 0x05040100
    v_mov_b32 v{T0+4}, 0x07060302
    s_mov_b32 s30, 0
    """)
    A.st("s7")
    A(f"""
    v_mov_b32 v17, {L_FLAG+48}
    L_cv_w19:
    s_sleep 2
    ds_read_b128 v[20:23], v17
    s_waitcnt lgkmcnt(0)
    v_and_b32 v20, v20, v21
    v_and_b32 v22, v22, v23
    v_and_b32 v20, v20, v22
    s_nop 0
    v_readfirstlane_b32 s29, v20
    s_cmp_eq_u32 s29, 1
    s_cbranch_scc0 L_cv_w19
    L_cv_poll2:
    buffer_load_dwordx4 v[{Y}:{Y+3}], v{T0}, s[12:15], s28 offen {SC}
    buffer_load_dwordx4 v[{Y+4}:{Y+7}], v{T0}, s[12:15], s28 offen offset:128 {SC}
    s_waitcnt vmcnt(0)
    v_max_u32 v{Y+8}, v{Y}, v{Y+1}
    v_max3_u32 v{Y+8}, v{Y+8}, v{Y+2}, v{Y+3}
    v_max3_u32 v{Y+8}, v{Y+8}, v{Y+4}, v{Y+5}
    v_max3_u32 v{Y+8}, v{Y+8}, v{Y+6}, v{Y+7}
    v_cmp_eq_u32 vcc, -1, v{Y+8}
    s_cbranch_vccz L_cv_got
    s_sleep 4
    s_add_u32 s30, s30, 1
    s_cmp_lt_u32 s30, {SPIN}
    s_cbranch_scc1 L_cv_poll2
    """)
    A.label("L_cv_got")
    A.st("got")
    for k in range(4):
        A(f"v_perm_b32 v{Y+8+2*k}, v{Y+4+k}, v{Y+k}, v{T0+3}")
        A(f"v_perm_b32 v{Y+9+2*k}, v{Y+4+k}, v{Y+k}, v{T0+4}")
    for i in range(8): A(f"ds_write_b32 v{T0+1}, v{Y+8+i} offset:{i*32}")
    A("s_waitcnt lgkmcnt(0)")


def gen_final(A):
    P = 32
    A(f"""
    v_lshlrev_b32 v13, 1, v2
    v_xor_b32 v13, v13, v1
    v_lshlrev_b32 v13, 4, v13
    v_lshl_add_u32 v13, v1, 8, v13
    s_and_b32 s28, s20, 3
    s_lshl_b32 s28, s28, 11
    s_lshr_b32 s29, s20, 2
    s_lshl_b32 s29, s29, 15
    s_add_u32 s28, s28, s29
    v_add_u32 v13, s28, v13
    v_xor_b32 v14, 16, v13
    v_lshrrev_b32 v15, 1, v2
    v_lshlrev_b32 v15, 13, v15
    v_lshl_add_u32 v15, v1, 5, v15
    v_and_b32 v16, 1, v2
    v_lshl_add_u32 v15, v16, 4, v15
    s_mul_i32 s28, s20, 272
    s_add_u32 s28, s28, {L_ST2}
    v_add_u32 v15, s28, v15
    """)
    srd(A, 8, "s52", "s53", 2 << 20)
    X, Yv, B = 64, 72, 80
    def unpack(d, s_):
        for k in range(4):
            A(f"v_lshlrev_b32 v{d+2*k}, 16, v{s_+k}")
            A(f"v_and_b32 v{d+2*k+1}, 0xffff0000, v{s_+k}")
    def pack(d, s_):
        for k in range(4): A(f"v_cvt_pk_bf16_f32 v{d+k}, v{s_+2*k}, v{s_+2*k+1}")
    unpack(X, VX); unpack(B, VB2)
    if not FR:
        for k in range(8): A(f"v_add_f32 v{X+k}, v{X+k}, v{B+k}")
    A("s_barrier")
    A.st("fin")
    A(f"ds_read_b128 v[16:19], v15")
    for w in range(4):
        A(f"ds_read_b128 v[{P+8*w}:{P+8*w+3}], v13 offset:{w*8192}")
        A(f"ds_read_b128 v[{P+8*w+4}:{P+8*w+7}], v14 offset:{w*8192}")
    A("s_waitcnt lgkmcnt(8)")
    unpack(Yv, 16)
    for k in range(8): A(f"v_add_f32 v{X+k}, v{X+k}, v{Yv+k}")
    if FR: pack(20, X); unpack(X, 20)
    A("s_waitcnt lgkmcnt(4)")
    for k in range(8): A(f"v_add_f32 v{P+k}, v{P+k}, v{P+8+k}")
    A("s_waitcnt lgkmcnt(0)")
    for k in range(8): A(f"v_add_f32 v{P+16+k}, v{P+16+k}, v{P+24+k}")
    for k in range(8): A(f"v_add_f32 v{P+k}, v{P+k}, v{P+16+k}")
    if FR:
        pack(24, P); unpack(P, 24)
        for k in range(8): A(f"v_add_f32 v{P+k}, v{P+k}, v{B+k}")
        pack(24, P); unpack(P, 24)
    for k in range(8): A(f"v_add_f32 v{P+k}, v{P+k}, v{X+k}")
    pack(28, P)
    A(f"buffer_store_dwordx4 v[28:31], v{VOO}, s[8:11], s33 offen {os.environ.get('SCO', '')}")
    if STAMPS: A("s_waitcnt vmcnt(0)")
    A.stamp_flush(0)
    A("s_endpgm")


def gen():
    A = Asm()
    A.stamp(0, True); A.stamp(1)
    for k in range(2, 9): A.stamp(k)
    A(f"""
    s_cmp_ge_u32 s2, 256
    s_cbranch_scc1 L_exit
    s_load_dwordx2 s[40:41], s[0:1], {KA['u']}
    s_load_dwordx8 s[44:51], s[0:1], {KA['w1']}
    s_load_dwordx4 s[52:55], s[0:1], {KA['out']}
    s_load_dwordx2 s[42:43], s[0:1], {KA['ws']}
    v_lshrrev_b32 v1, 6, v0
    v_and_b32 v0, 63, v0
    s_and_b32 s23, s2, 7
    s_lshr_b32 s24, s2, 3
    v_readfirstlane_b32 s20, v1
    s_and_b32 s25, s24, 3
    s_lshr_b32 s79, s24, 2
    s_lshl_b32 s78, s23, 2
    s_add_u32 s78, s78, s25
    s_mul_i32 s74, s79, {3584 if ROT & 1 else 0}
    s_and_b32 s74, s74, 0xfffffc00
    s_mul_i32 s75, s25, {7168 if ROT & 2 else 0}
    s_add_u32 s74, s74, s75
    s_sub_u32 s75, s74, {28*1024}
    s_min_u32 s74, s74, s75
    s_mov_b32 s77, 1
    s_and_b32 s39, s20, 3
    s_cmp_eq_u32 s79, 7
    s_cbranch_scc1 L_ln
    """)
    if LOC:
        A("""
        s_and_b32 s21, s24, 1
        s_lshl_b32 s22, s23, 1
        s_add_u32 s21, s21, s22
        s_lshr_b32 s22, s24, 1
        """)
    else:
        A("""
        s_lshr_b32 s21, s23, 1
        s_lshl_b32 s21, s21, 2
        s_add_u32 s21, s21, s25
        s_and_b32 s22, s23, 1
        s_mul_i32 s22, s22, 7
        s_add_u32 s22, s22, s79
        """)
    gen_gemm1(A)
    A.label("L_ln")
    A("s_nop 0 ; RESETSB")
    A("s_mov_b32 s21, s78")
    gen_ln(A)
    A.label("L_gemm2")
    A("s_nop 1 ; RESETSB")
    gen_gemm2(A)
    A.label("L_conv")
    A("s_nop 1 ; RESETSB")
    gen_conv(A)
    A.label("L_final")
    A("s_nop 7")
    gen_final(A)
    A.label("L_exit")
    A("s_endpgm")
    lines = fix_hazards(A.lines, verbose=True)
    check_waits(lines, "s")
    head = open("parallel_sum__ssm_conv_s4__dense_activation_gelu__prompt.s.ref").read().split("; Override launch")[0]
    head += f"; @launch grid=(256,1,1) block=(512,1,1) lds={LDS_TOTAL}\n.amdgcn_target \"amdgcn-amd-amdhsa--gfx950\"\n"
    return head + kernel_section(KNAME, lines, 256, 102, 256)

if __name__ == "__main__":
    out = sys.argv[1] if len(sys.argv) > 1 else "cur8.s"
    open(out, "w").write(gen())
    print("wrote", out)
```

```python
from asmlib import *
import struct, math, os, sys

def f2u(x): return struct.unpack("<I", struct.pack("<f", x))[0]
def env(n, d): return int(os.environ.get(n, str(d)))

KNAME = "parallel_sum__ssm_conv_s4__dense_activation_gelu__prompt_kernel"
KA = dict(u=0, A_re=8, A_im=16, B_re=24, B_im=32, C_re=40, C_im=48, log_dt=56, Dskip=64, Bx=72, w1=80, b1=88, w2=96, b2=104,
          out=112, dbg=120, ws=128)
WS_FLL = 32768
WS_EPOCH = 49152
WS_DUMMY = 53248
WS_STAT = 65536
WS_FLH = 131072
WS_FLY = 262144
WS_HF = 1 << 20
WS_XNT = 8 << 20
WS_YA = 12 << 20
WS_USED = 14 << 20

LOG2E = 1.4426950408889634
GC1 = -2.0 * LOG2E * 0.7978845608028654
GC2 = GC1 * 0.044715

NS, STAGE = 4, 32768
RSL = 12
RING = RSL * 2048
L_KST = 98304; KST = 8704
L_ST2 = 98304; ST2 = 8192
L_CH = 131072; CH_SIZE = 13056
OFF_E, OFF_O = 4608, 8768
L_FLAG = L_CH + 2 * CH_SIZE
L_CS = L_FLAG + 512
LDS_TOTAL = 163840
L_VS = 98304; L_US = 98304

OPT_PF = env("PF", 2)
PRE = env("PRE", 3)
PRIO_C = env("PRIOC", 1)
PRIO_G = env("PRIOG", 2)
PRIO_E = env("PRIOE", 0)
ROT = env("ROT", 2)
BARP = env("BARP", 2)
STATG = env("STATG", 21)
SC = os.environ.get("SC", "sc1")
PFG = [int(x) for x in os.environ.get("PFG", "").split(",") if x]
HD = 9
XS = env('XS', 65536 + 2176)
PS = env('PS', 8)
PG = env('PG', 0)
LW1 = env('LW1', 0)
UDMA = env('UDMA', 1)
EPE = env('EPE', 1)
FS = env('FS', 2)
HP = env('HP', 1)
NB8 = env('NB8', 1)
EP = env('EP', 2)
TS = env('TS', 4)
FR = env('FR', 0)
NPK0 = env('NPK0', 3)
NC0 = env('NC0', 3)
WSOFF = env('WSOFF', 0) << 20
SCH = os.environ.get('SCH', SC)
LOC = env('LOC', 0)
GPK = env('GPK', 0)
ULN = env('ULN', 3)
HT = env('HT', 0)
SCL = os.environ.get('SCL', SC)
SPIN = 0x40000

DK, DP, EX, P0 = 224, 128, 160, 244
BF, AF, KG_G, KG_E1, KG_L, KG_V, KG_PK, KG_VW, KG_VRD = 160, 192, 108, 122, 224, 124, 132, 136, 137
L_KS2 = 131072; KS2 = 4352
XL = 180
VDUM, LNF = 252, 253
VX, VB2, VOO = 4, 8, 12
VW2 = 23
W2R, HR, ACC2 = 160, 88, 24
VTL = 24

def srd(A, d, lo, hi, size):
    A(f"s_mov_b32 s{d}, {lo}\ns_mov_b32 s{d+1}, {hi}\ns_mov_b32 s{d+2}, {size}\ns_mov_b32 s{d+3}, 0x00020000")
def round_bf16(A, r):
    A(f"v_cvt_pk_bf16_f32 v{r}, v{r}, v{r}")
    A(f"v_and_b32 v{r}, 0xffff0000, v{r}")
def zipm(*lists):
    o = []
    for k in range(max(len(l) for l in lists)):
        for l in lists:
            if k < len(l): o.append(l[k])
    return o
def mask(lo, hi=None):
    hi = lo if hi is None else hi
    return [f"s_mov_b32 s28, {lo}", f"s_mov_b32 s29, {hi}"]

class VMQ:
    def __init__(self): self.q = []
    def note(self, tag, n=1): self.q.extend([tag] * n)
    def wait(self, *tags):
        idx = max((k for k, t in enumerate(self.q) if t in tags), default=-1)
        if idx < 0: return []
        n = len(self.q) - 1 - idx
        del self.q[:idx + 1]
        return [f"s_waitcnt vmcnt({n})"]
    def younger(self): return len(self.q)

ORDER = [0, 1] + list(range(12, 24)) + list(range(2, 12)) + list(range(24, 28))

def koff(dst, lab, base="s74"):
    return [f"s_add_u32 {dst}, {base}, {lab*1024}", f"s_sub_u32 s75, {dst}, {28*1024}", f"s_min_u32 {dst}, {dst}, s75"]

def slot_addr(sl): return (sl >> 2) * 32768 + (sl & 3) * 2048

def w2_setup(A, vt):
    srd(A, 16, "s48", "s49", 1792 * 1024)
    A(f"""
    v_lshrrev_b32 v{vt}, 2, v0
    v_and_b32 v{vt}, 4, v{vt}
    v_and_b32 v{vt+1}, 7, v0
    v_xor_b32 v{vt}, v{vt}, v{vt+1}
    v_lshrrev_b32 v{vt+1}, 3, v0
    v_lshlrev_b32 v{VW2}, 10, v{vt+1}
    v_lshl_add_u32 v{VW2}, v{vt}, 4, v{VW2}
    s_mul_i32 s72, s39, {448*1024}
    s_lshl_b32 s75, s79, 7
    s_add_u32 s72, s72, s75
    s_lshl_b32 s73, s39, 13
    v_lshrrev_b32 v{vt+1}, 5, v0
    v_bfe_u32 v{vt}, v0, 2, 2
    v_lshl_add_u32 v{VTL}, v{vt+1}, 2, v{vt}
    v_lshlrev_b32 v{VTL}, 7, v{VTL}
    v_bfe_u32 v{vt}, v0, 4, 1
    v_lshl_add_u32 v{VTL}, v{vt}, 5, v{VTL}
    v_and_b32 v{vt}, 3, v0
    v_lshl_add_u32 v{VTL}, v{vt}, 3, v{VTL}
    v_bfe_u32 v{vt}, v0, 3, 1
    v_lshl_add_u32 v{VTL}, v{vt}, 6, v{VTL}
    v_add_u32 v{VTL}, s73, v{VTL}
    v_xor_b32 v{VTL+1}, 64, v{VTL}
    v_add_u32 v{VTL+2}, 0x10000, v{VTL}
    v_add_u32 v{VTL+3}, 0x10000, v{VTL+1}
    """)
def wdma(slot, lab):
    a_ = slot_addr(slot)
    return koff("s31", lab) + [f"s_add_u32 m0, s73, {a_}", "s_lshl4_add_u32 s31, s31, s72",
                               f"buffer_load_dwordx4 v{VW2}, s[16:19], s31 offen lds",
                               f"s_add_u32 m0, s73, {a_+1024}", "s_add_u32 s31, s31, 8192",
                               f"buffer_load_dwordx4 v{VW2}, s[16:19], s31 offen lds"]
def w2tr(slot, ws_, vtl=VTL):
    b = W2R + 8 * ws_; a_ = slot_addr(slot); hi = a_ >> 16; a_ &= 0xffff
    return [f"ds_read_b64_tr_b16 v[{b+4*db+2*sec}:{b+4*db+2*sec+1}], v{vtl+2*hi+db} offset:{a_+sec*1024}" for db in range(2) for sec in range(2)]

def param_loads(A, vt):
    A(f"""
    s_lshr_b32 s28, s39, 1
    s_lshl_b32 s30, s2, 1
    s_add_u32 s30, s30, s28
    v_lshlrev_b32 v{vt}, 1, v0
    v_mov_b32 v{vt+1}, 0
    s_lshl_b32 s29, s30, 8
    s_and_b32 s28, s20, 1
    s_lshl_b32 s28, s28, 7
    s_add_u32 s29, s29, s28
    s_lshl_b32 s30, s30, 1
    s_mov_b32 s18, 1024
    s_mov_b32 s19, 0x00020000
    """)
    for k in range(8): A(f"v_mov_b32 v{P0+k}, 0")
    A("s_waitcnt lgkmcnt(0)")
    for k in (6, 7, 0, 1, 2, 3, 4, 5):
        if k == 0: A("s_mov_b32 s18, 131072")
        A(f"s_mov_b32 s16, s{56+2*k}\ns_mov_b32 s17, s{57+2*k}")
        if k < 6: A(f"buffer_load_short_d16_hi v{P0+k}, v{vt}, s[16:19], s29 offen")
        else: A(f"buffer_load_short_d16_hi v{P0+k}, v{vt+1}, s[16:19], s30 offen")

def lnflag_load(vt):
    return ["s_lshl_b32 s29, s79, 6", "s_lshl_b32 s28, s39, 4", "s_add_u32 s29, s29, s28", "s_lshr_b32 s28, s78, 4", "s_lshl_b32 s28, s28, 9",
            "s_add_u32 s29, s29, s28", f"s_lshl_b32 s29, s29, {FS}", f"s_add_u32 s29, s29, {WS_FLY}",
            f"v_lshlrev_b32 v{vt}, {FS}, v0", f"v_add_u32 v{vt}, {WS_FLL}, v{vt}",
            f"v_and_b32 v{vt+1}, 15, v0", f"v_lshl_add_u32 v{vt+1}, v{vt+1}, {FS}, s29", "s_mov_b32 s28, 0", "s_mov_b32 s29, -1",
            f"v_cndmask_b32 v{vt}, v{vt}, v{vt+1}, s[28:29]",
            f"buffer_load_dword v{LNF}, v{vt}, s[12:15], 0 offen {SC}"]

def u_issue(A, vl16):
    A(f"""
    s_lshr_b32 s28, s39, 1
    s_lshl_b32 s29, s2, 1
    s_add_u32 s29, s29, s28
    s_lshl_b32 s29, s29, {7 if XS else 12}
    s_add_u32 s29, s29, {WS_XNT}
    """)
    if UDMA:
        A(f"s_mul_i32 s28, s28, {CH_SIZE}")
        A(f"s_add_u32 m0, s28, {L_CH + 512}")
        if XS:
            A(f"""
            v_lshrrev_b32 v{XL}, 3, v0
            v_and_b32 v{XL+1}, 7, v0
            v_mul_u32_u24 v{XL}, {XS}, v{XL}
            v_lshl_add_u32 v{XL}, v{XL+1}, 4, v{XL}
            """)
            vl16 = XL
        for k in range(4):
            if XS and k: A(f"s_add_u32 s29, s29, {8*XS - 1024}")
            A(f"buffer_load_dwordx4 v{vl16}, s[12:15], s29 offen offset:{k*1024} {SC} lds")
    else:
        for k in range(4): A(f"buffer_load_dwordx4 v[{XL+4*k}:{XL+4*k+3}], v{vl16}, s[12:15], s29 offen offset:{k*1024} {SC}")

def u_try(A, vl16):
    A(f"""
    v_cmp_ne_u32 vcc, s76, v{LNF}
    s_mov_b32 s37, 0
    s_cbranch_vccnz L_ut_no
    s_mov_b32 s37, 1
    """)
    u_issue(A, vl16)
    A.label("L_ut_no")

def u_spin(A, vt, vl16, tag=''):
    A("s_mov_b32 s30, 0")
    A.label(f"L_us_poll{tag}")
    A(f"s_sleep {PS}")
    A.extend(lnflag_load(vt))
    A(f"""
    s_add_u32 s30, s30, 1
    s_waitcnt vmcnt(0)
    v_cmp_ne_u32 vcc, s76, v{LNF}
    s_cmp_gt_u32 s30, {SPIN}
    s_cbranch_scc1 L_us_ok{tag}
    s_cbranch_vccnz L_us_poll{tag}
    """)
    A.label(f"L_us_ok{tag}")
    u_issue(A, vl16)
    A("s_waitcnt vmcnt(0)")

def ya_addr(vd, vt):
    return [f"v_lshrrev_b32 v{vd}, 3, v0", f"v_and_b32 v{vt}, 7, v0", f"v_lshlrev_b32 v{vd}, 13, v{vd}", f"v_lshl_add_u32 v{vd}, v{vt}, 4, v{vd}",
            "s_lshr_b32 s28, s39, 1", "s_lshl_b32 s31, s2, 1", "s_add_u32 s31, s31, s28",
            "s_lshr_b32 s29, s31, 6", "s_lshl_b32 s29, s29, 18", "s_and_b32 s28, s31, 63", "s_lshl_b32 s28, s28, 7", "s_add_u32 s29, s29, s28",
            f"s_add_u32 s29, s29, {WS_YA}", "s_and_b32 s30, s39, 1", "s_lshl_b32 s30, s30, 17", "s_add_u32 s30, s30, s29", "s_add_u32 s31, s30, 65536"]
def ya_prefill(vd, vt, vm4):
    return ya_addr(vd, vt) + [f"v_mov_b32 v{vm4+k}, -1" for k in range(4)] + \
           [f"buffer_store_dwordx4 v[{vm4}:{vm4+3}], v{vd}, s[12:15], s{30+h} offen {SC}" for h in range(2)]

def publish_flag(A, soff, vt, tag, wave, both=False):
    A(f"""
    s_cmp_lg_u32 s20, {wave}
    s_cbranch_scc1 L_pub_skip{tag}
    v_mov_b32 v{vt}, 0
    v_mov_b32 v{vt+1}, s76
    s_mov_b64 exec, 1
    buffer_store_dword v{vt+1}, v{vt}, s[12:15], {soff} offen {SC}
    """)
    if both:
        A(f"""
        s_lshl_b32 s28, s2, 7
        s_add_u32 s28, s28, {WS_FLW}
        buffer_store_dword v{vt+1}, v{vt}, s[12:15], s28 offen {SC}
        """)
    A(f"""
    s_mov_b64 exec, -1
    L_pub_skip{tag}:
    """)
def mktag(A):
    A("s_mul_i32 s76, s76, 0x9E3779B1")
    A("s_add_u32 s76, s76, 0x7F4A7C15")
def arrive(A, tag):
    A(f"""
    s_cmp_lg_u32 s20, 3
    s_cbranch_scc1 L_arr{tag}
    s_atomic_add s77, s[54:55], 0 glc
    L_arr{tag}:
    """)

def coop_prefetch(A, vt):
    A(f"""
    s_lshl_b32 s28, s24, 2
    s_add_u32 s28, s28, s39
    s_lshl_b32 s30, s28, 6
    v_add_u32 v{vt}, s30, v0
    v_mul_u32_u24 v{vt+1}, 0x4925, v{vt}
    v_lshrrev_b32 v{vt+1}, 18, v{vt+1}
    v_mul_u32_u24 v{vt+2}, 14, v{vt+1}
    v_sub_u32 v{vt}, v{vt}, v{vt+2}
    v_lshlrev_b32 v{vt}, 7, v{vt}
    v_mul_u32_u24 v{vt+1}, 3584, v{vt+1}
    v_add_u32 v{vt}, v{vt}, v{vt+1}
    s_and_b32 s29, s23, 1
    s_mul_i32 s29, s29, 1792
    buffer_load_dword v{VDUM}, v{vt}, s[8:11], s29 offen
    s_lshr_b32 s29, s23, 1
    s_lshl_b32 s29, s29, 19
    s_lshl_b32 s30, s28, 13
    s_add_u32 s29, s29, s30
    v_lshlrev_b32 v{vt+2}, 7, v0
    """)
    if env("MP0", 1):
        A(f"""
        s_mul_i32 s31, s23, {28*8192}
        s_add_u32 s31, s31, s30
        s_sub_u32 s31, s31, {64*8192}
        s_cmp_lt_u32 s28, 92
        s_cselect_b32 s31, s31, 0x400000
        s_cmp_lt_u32 s28, 64
        s_cselect_b32 s29, s29, s31
        s_cselect_b32 s16, s40, s48
        s_cselect_b32 s17, s41, s49
        s_cselect_b32 s18, 0x200000, {1792*1024}
        s_mov_b32 s19, 0x00020000
        buffer_load_dword v{VDUM}, v{vt+2}, s[16:19], s29 offen
        """.replace("s_cselect_b32 s18, 0x200000, 1835008", "s_mov_b32 s18, 1835008\n        s_cselect_b32 s18, 0x200000, s18"))
    else:
        A(f"""
        s_cmp_lt_u32 s28, 64
        s_cselect_b32 s29, s29, 0x400000
        buffer_load_dword v{VDUM}, v{vt+2}, s[4:7], s29 offen
        """)
def coop_prefetch2(A, vt):
    srd(A, 16, "s48", "s49", 1792 * 1024)
    A(f"""
    s_lshl_b32 s28, s24, 2
    s_add_u32 s28, s28, s39
    s_mul_i32 s30, s28, 40
    v_add_u32 v{vt}, s30, v0
    v_mul_u32_u24 v{vt+1}, 0x4925, v{vt}
    v_lshrrev_b32 v{vt+1}, 18, v{vt+1}
    v_mul_u32_u24 v{vt+2}, 14, v{vt+1}
    v_sub_u32 v{vt}, v{vt}, v{vt+2}
    v_lshlrev_b32 v{vt}, 7, v{vt}
    v_mul_u32_u24 v{vt+1}, 3584, v{vt+1}
    v_add_u32 v{vt}, v{vt}, v{vt+1}
    s_mul_i32 s30, s28, 23
    v_add_u32 v{vt+1}, s30, v0
    v_min_u32 v{vt+1}, 2559, v{vt+1}
    v_mul_u32_u24 v{vt+2}, 13108, v{vt+1}
    v_lshrrev_b32 v{vt+2}, 16, v{vt+2}
    v_mul_u32_u24 v{vt+3}, 3, v{vt+2}
    v_add_u32 v{vt+1}, v{vt+1}, v{vt+3}
    v_lshlrev_b32 v{vt+1}, 7, v{vt+1}
    v_lshlrev_b32 v{vt+2}, 7, v0
    s_and_b32 s29, s23, 1
    s_mul_i32 s29, s29, 1792
    s_add_u32 s29, s29, {192*3584}
    s_mov_b32 exec_hi, {0 if LW1 else 255}
    s_mov_b32 exec_lo, {1 if LW1 else -1}
    buffer_load_dword v{VDUM}, v{vt}, s[8:11], s29 offen
    s_lshr_b32 s29, s23, 1
    s_lshl_b32 s29, s29, 19
    s_add_u32 s29, s29, 384
    s_mov_b64 exec, 0x7fffff
    buffer_load_dword v{VDUM}, v{vt+1}, s[4:7], s29 offen
    s_lshl_b32 s28, s2, 2
    s_add_u32 s28, s28, s39
    s_lshl_b32 s28, s28, 11
    s_mov_b64 exec, 0xffff
    buffer_load_dword v{VDUM}, v{vt+2}, s[16:19], s28 offen
    s_mov_b64 exec, -1
    """)
def w2_prefetch(vt, piece):
    return ["s_lshl_b32 s28, s24, 2", "s_add_u32 s28, s28, s39", "s_lshl_b32 s28, s28, 14", f"s_add_u32 s28, s28, {piece*8192}",
            f"v_lshlrev_b32 v{vt}, 7, v0", f"buffer_load_dword v{VDUM}, v{vt}, s[16:19], s28 offen"]

def cmul(d, x, y, pk=True):
    P = lambda r: f"v[{r}:{r+1}]"
    assert d != x and d != y
    if pk:
        return [f"v_pk_mul_f32 {P(d)}, {P(x)}, {P(y)} op_sel:[0,0] op_sel_hi:[0,1]",
                f"v_pk_fma_f32 {P(d)}, {P(x)}, {P(y)}, {P(d)} op_sel:[1,1,0] op_sel_hi:[1,0,1] neg_lo:[0,1,0]"]
    return [f"v_mul_f32 v{d}, v{x}, v{y}", f"v_mul_f32 v{d+1}, v{x}, v{y+1}",
            f"v_fma_f32 v{d}, -v{x+1}, v{y+1}, v{d}", f"v_fma_f32 v{d+1}, v{x+1}, v{y}, v{d+1}"]

def kg_common(A, base, T0, Z, WA):
    ar, ai, br, bi, cr, ci, ld, dsk = range(P0, P0 + 8)
    u_ = f2u(LOG2E) & 0xFFFFFF00
    lh = struct.unpack("<f", struct.pack("<I", u_))[0]; ll = LOG2E - lh
    A(f"""
    v_mul_f32 v{T0}, {hex(f2u(lh))}, v{ld}
    v_mul_f32 v{T0+1}, {hex(f2u(ll * math.log(2)))}, v{ld}
    v_exp_f32 v{T0}, v{T0}
    s_nop 0
    v_fma_f32 v{T0}, v{T0}, v{T0+1}, v{T0}
    """)
    round_bf16(A, T0)
    A(f"""
    v_mul_f32 v{Z}, v{T0}, v{ar}
    v_mul_f32 v{Z+1}, v{T0}, v{ai}
    v_mul_f32 v{br}, v{T0}, v{br}
    v_mul_f32 v{bi}, v{T0}, v{bi}
    v_mul_f32 v{Z}, {hex(f2u(LOG2E))}, v{Z}
    v_mul_f32 v{Z+1}, 0.15915494, v{Z+1}
    """)
def kg_waddr(A, base, WA):
    A(f"s_lshl_b32 s28, s39, 13\ns_add_u32 s28, s28, {base}\nv_lshl_add_u32 v{WA}, v0, 2, s28")
    for k in range(1, 16): A(f"v_xor_b32 v{WA+k}, {16*k}, v{WA}")
def kg_raddr(base, d, t):
    o = ["s_lshl_b32 s28, s39, 13", f"s_add_u32 s28, s28, {base}", f"v_and_b32 v{t}, 15, v0", f"v_lshrrev_b32 v{t+1}, 5, v0", f"v_xor_b32 v{t}, v{t}, v{t+1}",
         f"v_and_b32 v{t+1}, 31, v0", f"v_lshlrev_b32 v{t+1}, 8, v{t+1}", f"v_lshl_add_u32 v{d}, v{t}, 4, v{t+1}", f"v_add_u32 v{d}, s28, v{d}"]
    return o + [f"v_xor_b32 v{d+k}, {32*k}, v{d}" for k in range(1, 8)]
def cexp(d, x, t, Z):
    xs = {1: None, 8: hex(f2u(8.0)), 256: hex(f2u(256.0))}[x]
    o = []
    if xs is None: o += [f"v_exp_f32 v{t}, v{Z}", f"v_fract_f32 v{t+1}, v{Z+1}"]
    else: o += [f"v_mul_f32 v{t}, {xs}, v{Z}", f"v_mul_f32 v{t+1}, {xs}, v{Z+1}", f"v_exp_f32 v{t}, v{t}", f"v_fract_f32 v{t+1}, v{t+1}"]
    o += [f"v_cos_f32 v{d}, v{t+1}", f"v_sin_f32 v{d+1}, v{t+1}", f"v_mul_f32 v{d}, v{d}, v{t}", f"v_mul_f32 v{d+1}, v{d+1}, v{t}"]
    return o
KWA = 100
KRA = 116

def gen_kgen_v(A):
    T0, Z, E8, E16, Va, Vb, PKT = 34, 144, 44, 46, 80, 84, 88
    kg_common(A, L_VS, T0, Z, KWA)
    A.extend(cexp(E8, 8, T0, Z))
    A.extend(cmul(E16, E8, E8))
    npk = [0]
    def emit(src, row):
        t = PKT + (npk[0] % 8); npk[0] += 1
        return [f"v_cvt_pk_bf16_f32 v{t}, v{src}, v{src+1}", f"ds_write_b32 v{KWA + (row & 15)}, v{t} offset:{row*256}"]
    A(f"v_mov_b32 v{PKT+7}, 0x00003f80")
    A(f"ds_write_b32 v{KWA}, v{PKT+7}")
    A.extend(emit(E8, 1)); A.extend(emit(E16, 2))
    ev, od = E16, E8
    for j in range(3, 32, 2):
        d1 = Va + 2 * (((j - 3) // 2) % 2)
        d2 = Vb + 2 * (((j - 3) // 2) % 2)
        l1 = cmul(d1, od, E16) + emit(d1, j)
        l2 = (cmul(d2, ev, E16) + emit(d2, j + 1)) if j + 1 < 32 else []
        A.extend(zipm(l1, l2))
        od, ev = d1, d2
    for st in range(8): A(f"ds_read_b128 v[{BF+4*st}:{BF+4*st+3}], v{KRA+st}")

UPK = 192
def kgen_u_lists(rebase):
    T0, Z, E1, G, Lr, Va = 34, 144, 42, 44, 58, 76
    ar, ai, br, bi, cr, ci, ld, dsk = range(P0, P0 + 8)
    cm = lambda d, x, y: cmul(d, x, y, False)
    V = []; Wr = []
    if rebase: V += [f"v_subrev_u32 v{KWA+k}, {rebase}, v{KWA+k}" for k in range(24)]
    V += zipm(cexp(E1, 1, T0 + 2, Z), cexp(G, 256, T0 + 4, Z), cm(Lr, cr, br))
    npk = [0]
    def emit(src, rows):
        t = UPK + npk[0]; npk[0] += 1
        Wr.extend(f"ds_write_b32 v{KWA + (row & 15)}, v{t} offset:{row*256}" for row in rows)
        return [f"v_cvt_pk_bf16_f32 v{t}, v{src}, -v{src+1}"]
    urow = lambda hh, r: 8 * (r >> 2) + 4 * hh + (r & 3)
    lch = emit(Lr, [urow(0, 0)])
    for a_ in range(1, 9): lch += cm(Lr + 2 * a_, Lr + 2 * (a_ - 1), E1) + emit(Lr + 2 * a_, [urow(0, a_)])
    gch = []
    for k in range(2, 8): gch += cm(G + 2 * (k - 1), G + 2 * (k - 2), G)
    V += zipm(lch, gch)
    jobs = [(0, 1, [urow(1, 0), urow(1, 1)]), (2, 1, [urow(1, 2)]), (4, 1, [urow(1, 3), urow(1, 4), urow(1, 5)]), (6, 1, [urow(1, 6)]),
            (8, 1, [urow(1, 7), urow(1, 8)]),
            (0, 2, [urow(0, 9)]), (4, 2, [urow(0, 10)]), (8, 2, [urow(0, 11)]),
            (0, 3, [urow(1, 9)]), (4, 3, [urow(1, 10)]), (8, 3, [urow(1, 11)]),
            (0, 4, [urow(0, 12)]), (8, 4, [urow(0, 13)]), (0, 5, [urow(0, 14)]), (8, 5, [urow(0, 15)]),
            (0, 6, [urow(1, 12)]), (8, 6, [urow(1, 13)]), (0, 7, [urow(1, 14)]), (8, 7, [urow(1, 15)])]
    for k in range(0, len(jobs), 2):
        ls = []
        for q_, (a_, gk, rows) in enumerate(jobs[k:k + 2]):
            d = Va + 4 * q_ + 2 * ((k // 2) % 2)
            ls.append(cm(d, Lr + 2 * a_, G + 2 * (gk - 1)) + emit(d, rows))
        V += zipm(*ls)
    assert npk[0] <= 32
    return V, Wr

def kg_atoms_m():
    at = [[f"ds_read_b128 v[{AF+4*k}:{AF+4*k+3}], v{KRA+k} offset:{L_US - L_VS}", ("tag", ("af", k))] for k in range(8)]
    mm = []
    for st in range(8):
        cin = "0" if st == 0 else f"v[{DK}:{DK+15}]"
        mm.append([("wait", ("af", st)), f"v_mfma_f32_32x32x16_bf16 v[{DK}:{DK+15}], v[{AF+4*st}:{AF+4*st+3}], v[{BF+4*st}:{BF+4*st+3}], {cin}"])
    return at, mm

def kg_atoms_x1():
    T0 = P0
    at = [[f"s_lshr_b32 s30, s39, 1", f"s_mul_i32 s30, s30, {CH_SIZE}", f"s_add_u32 s38, s30, {L_CH}", "s_lshl_b32 s30, s39, 13", f"s_add_u32 s30, s30, {L_VS}", f"v_lshl_add_u32 v{T0}, v0, 4, s30"]]
    at.append(["s_bitcmp1_b32 s39, 0", "s_cselect_b64 exec, -1, 0"] + [f"ds_write_b128 v{T0}, v[{DK+4*q}:{DK+4*q+3}] offset:{512+q*1024}" for q in range(3)] +
              ["s_not_b64 exec, exec", f"ds_write_b128 v{T0}, v[{DK+12}:{DK+15}] offset:{512+3072}", "s_mov_b64 exec, -1", f"v_xor_b32 v{T0}, 8192, v{T0}"])
    return at

def kg_atoms_x2(tag):
    T0 = P0; VEA, VEB = 254, 255
    at = []
    at.append([f"ds_read_b128 v[{DP+4*q}:{DP+4*q+3}], v{T0} offset:{512+q*1024}" for q in range(4)] + [("tag", "dp")])
    for i in [f"v_and_b32 v{T0+4}, 31, v0", f"v_lshrrev_b32 v{T0+1}, 5, v0", f"v_lshlrev_b32 v{T0+2}, 4, v{T0+4}"]: at.append([i])
    at.append([f"s_add_u32 s28, s38, {OFF_E + 4080 - 1024}", f"v_sub_u32 v{VEA}, s28, v{T0+2}"])
    at.append([f"v_lshlrev_b32 v{T0+3}, 9, v{T0+1}"]); at.append([f"v_sub_u32 v{VEA}, v{VEA}, v{T0+3}"])
    at.append([f"s_add_u32 s28, s38, {OFF_E + 4080 - 2560}", f"v_sub_u32 v{VEB}, s28, v{T0+2}"])
    at.append([f"v_lshlrev_b32 v{T0+3}, 10, v{T0+1}"]); at.append([f"v_sub_u32 v{VEB}, v{VEB}, v{T0+3}"])
    at.append([f"v_lshl_add_u32 v{T0}, v0, 3, s38"]); at.append([f"v_mov_b32 v{T0+2}, 0"]); at.append([f"v_mov_b32 v{T0+3}, 0"])
    at.append(["s_lshl_b32 s28, s39, 2", f"s_add_u32 s28, s28, {L_FLAG}", f"v_mov_b32 v{T0+1}, s28"])
    for k in range(16): at.append(([("wait", "dp")] if k == 0 else []) + [f"v_add_f32 v{DK+k}, v{DK+k}, v{DP+k}"])
    at.append(mask("0xaaaaaaaa") + [f"v_cndmask_b32 v{DP}, v{DK+12}, v{DK+13}, s[28:29]", f"v_cndmask_b32 v{DP+1}, v{DK+14}, v{DK+15}, s[28:29]"])
    k_ = lambda r: DK + r
    def half(base, kk, va, off, odd):
        prs = [(8, 7), (6, 5), (4, 3), (2, 1)] if odd else [(7, 6), (5, 4), (3, 2), (1, 0)]
        return [f"v_cvt_pk_bf16_f32 v{base+i}, v{kk[lo]}, v{kk[hi]}" for i, (lo, hi) in enumerate(prs)] + \
               [f"ds_write_b128 v{va}, v[{base}:{base+3}] offset:{off + (OFF_O - OFF_E if odd else 0)}"]
    ev = [([k_(i) for i in range(9)], VEA, 1024), ([k_(9)] * 3 + [k_(10)] * 3 + [k_(11)] * 3, VEA, 0)]
    od = [([k_(12)] * 4 + [DP] + [k_(13)] * 4, VEB, 512), ([k_(14)] * 4 + [DP + 1] + [k_(15)] * 4, VEB, 0)]
    n = 0
    for gi in range(2):
        for o_ in range(2):
            b_ = EX + 4 * n
            at.append(["s_bitcmp1_b32 s39, 0", f"s_cbranch_scc1 L_xo{tag}{n}"] + half(b_, *ev[gi], o_)[:-1] + [("nods", half(b_, *ev[gi], o_)[-1]), f"s_branch L_xd{tag}{n}",
                       f"L_xo{tag}{n}:"] + half(b_, *od[gi], o_) + [f"L_xd{tag}{n}:"])
            n += 1
    at.append(["s_bitcmp0_b32 s39, 0", "s_cselect_b64 s[28:29], -1, 0", "s_mov_b64 exec, s[28:29]",
               f"ds_write_b64 v{T0}, v[{T0+2}:{T0+3}]", "s_and_b64 exec, s[28:29], 15",
               f"ds_write_b64 v{T0}, v[{T0+2}:{T0+3}] offset:{OFF_E+4096}", f"ds_write_b64 v{T0}, v[{T0+2}:{T0+3}] offset:{OFF_O+4096}",
               "s_and_b64 exec, s[28:29], 1", f"ds_write_b16_d16_hi v{T0}, v{EX+3} offset:{OFF_O+4096}",
               "s_mov_b64 exec, -1"])
    at.append([f"v_mov_b32 v{T0+2}, 1", f"ds_write_b32 v{T0+1}, v{T0+2} offset:64"])
    return at

def flag_zero():
    return [[f"v_lshlrev_b32 v{VT1}, 2, v0", f"v_mov_b32 v{VT1+1}, 0", f"v_add_u32 v{VT1}, {L_FLAG}, v{VT1}", f"ds_write_b32 v{VT1}, v{VT1+1}"]]

class LQ:
    def __init__(self, A): self.A = A; self.q = []
    def emit(self, items, tag=None):
        maybe0 = any(isinstance(it, str) and "s_cselect_b64" in it for it in items)
        for it in items:
            if maybe0 and isinstance(it, str):
                self.A(it); continue
            if isinstance(it, tuple):
                if it[0] == "tag": self.q[-1] = it[1]
                elif it[0] == "wait": self.wait(it[1])
                elif it[0] == "nods": self.A(it[1])
                continue
            self.A(it)
            if it.strip().startswith("ds_"): self.q.append(tag)
            if "lgkmcnt(0)" in it: self.q = []
    def wait(self, tag):
        idx = max((k for k, t in enumerate(self.q) if t == tag), default=-1)
        if idx < 0: return
        n = min(len(self.q) - 1 - idx, 15)
        self.A(f"s_waitcnt lgkmcnt({n})")
        self.q = self.q[len(self.q) - n:] if n else []

def spread(atoms, g0, g1):
    pts = [(g, p) for g in range(g0, g1) for p in range(2)]
    tot = sum(len(a_) for a_ in atoms); out = {p: [] for p in pts}; acc = 0
    for a_ in atoms:
        out[pts[min(len(pts) - 1, acc * len(pts) // tot)]].append(a_); acc += len(a_)
    return out

VXO, VWO, VXO2 = 1, 2, 3
VXR, VTR = 4, 8
VONE, VHO1, VB1 = 16, 18, 19
VCW, VCR, VSO = 20, 21, 22
VT1 = 28
NR = 3
W1, X1, ACC1, CS = 32, 56, 80, 144
HI = 152
GT, PK, SG = 164, 180, 188
EA, EB = 192, 196
VS, K1r, K3r = 212, 214, 216

def wave_flag(soff, vt):
    return [f"v_mov_b32 v{vt}, 0", f"v_mov_b32 v{vt+1}, s76", "s_mov_b64 exec, 1",
            f"buffer_store_dword v{vt+1}, v{vt}, s[12:15], {soff} offen {SC}", "s_mov_b64 exec, -1"]

def lds_wait(A, name, vaddr, off, vt):
    A(f"""
    {name}:
    ds_read_b32 v{vt}, v{vaddr} offset:{off}
    s_waitcnt lgkmcnt(0)
    v_readfirstlane_b32 s28, v{vt}
    s_cmp_eq_u32 s28, 1
    s_cbranch_scc0 {name}
    """)

def dma_setup(A):
    VT = VT1
    A(f"""
    v_lshrrev_b32 v{VT}, 3, v0
    v_and_b32 v{VT+1}, 7, v0
    v_lshrrev_b32 v{VT+2}, 4, v0
    v_xor_b32 v{VT+3}, v{VT+2}, v{VT+1}
    v_lshlrev_b32 v{VXO}, 10, v{VT}
    v_lshl_add_u32 v{VXO}, v{VT+3}, 4, v{VXO}
    v_xor_b32 v{VXO2}, 64, v{VXO}
    v_add_u32 v{VXO2}, 8192, v{VXO2}
    v_and_b32 v{VT+3}, 15, v0
    v_lshlrev_b32 v{VT}, 2, v{VT+2}
    v_xor_b32 v{VT+3}, v{VT+3}, v{VT}
    v_mul_u32_u24 v{VWO}, 3584, v{VT+2}
    v_lshl_add_u32 v{VWO}, v{VT+3}, 4, v{VWO}
    s_lshl_b32 s25, s21, 17
    s_lshl_b32 s28, s39, 15
    s_add_u32 s25, s25, s28
    s_mul_i32 s26, s39, {16*3584}
    s_lshl_b32 s28, s22, 8
    s_add_u32 s26, s26, s28
    s_lshl_b32 s27, s39, 12
    """)

def g1_dma(kc, part):
    st = (kc % NS) * STAGE
    return [f"s_add_u32 m0, s27, {st + part*1024}", f"s_add_u32 s31, s25, {128*kc + (part//2)*16384}",
            f"buffer_load_dwordx4 v{VXO if part % 2 == 0 else VXO2}, s[4:7], s31 offen lds",
            f"s_add_u32 m0, s27, {st + 16384 + part*1024}", f"s_add_u32 s37, s26, {(64*kc + 4*part)*3584}",
            f"buffer_load_dwordx4 v{VWO}, s[8:11], s37 offen lds"]

def c_setup(A):
    VT = VT1
    A(f"""
    v_and_b32 v{VT}, 31, v0
    v_lshrrev_b32 v{VT+1}, 5, v0
    v_bfe_u32 v{VT+2}, v0, 1, 3
    v_xor_b32 v{VT+2}, v{VT+2}, v{VT+1}
    s_lshl_b32 s31, s34, 1
    v_xor_b32 v{VT+2}, s31, v{VT+2}
    v_lshlrev_b32 v{VXR}, 7, v{VT}
    v_lshl_add_u32 v{VXR}, v{VT+2}, 4, v{VXR}
    s_lshl_b32 s28, s34, 13
    v_add_u32 v{VXR}, s28, v{VXR}
    v_xor_b32 v{VXR+1}, 32, v{VXR}
    v_xor_b32 v{VXR+2}, 64, v{VXR}
    v_xor_b32 v{VXR+3}, 96, v{VXR}
    v_lshlrev_b32 v{VSO}, 3, v0
    v_bfe_u32 v{VT+2}, v0, 2, 2
    v_lshl_add_u32 v{VTR}, v{VT+1}, 3, v{VT+2}
    v_lshlrev_b32 v{VTR}, 8, v{VTR}
    v_bfe_u32 v{VT+3}, v0, 4, 1
    v_lshl_add_u32 v{VTR}, v{VT+3}, 5, v{VTR}
    v_and_b32 v{VT+3}, 3, v0
    v_lshl_add_u32 v{VTR}, v{VT+3}, 3, v{VTR}
    s_lshl_b32 s31, s35, 1
    v_xor_b32 v{VT+2}, s31, v{VT+2}
    v_lshl_add_u32 v{VTR}, v{VT+2}, 6, v{VTR}
    s_lshl_b32 s31, s34, 12
    s_add_u32 s31, s31, 16384
    v_add_u32 v{VTR}, s31, v{VTR}
    """)
    for i in range(4):
        for ft in range(2):
            if i == 0 and ft == 0: continue
            A(f"v_xor_b32 v{VTR+2*i+ft}, {i*4096 + ft*64}, v{VTR}")
    A(f"""
    v_mov_b32 v{VONE}, 0x3f803f80
    v_mov_b32 v{VONE+1}, 0x3f803f80
    v_lshlrev_b32 v{VHO1}, 4, v0
    s_lshl_b32 s33, s21, 1
    s_add_u32 s33, s33, s34
    s_lshl_b32 s36, s33, 9
    s_add_u32 s36, s36, {WS_STAT}
    s_mul_i32 s32, s33, {2*112*1024}
    s_lshl_b32 s28, s22, 1
    s_add_u32 s28, s28, s35
    s_lshl_b32 s29, s28, 12
    s_add_u32 s32, s32, s29
    s_add_u32 s32, s32, {WS_HF}
    s_add_u32 s38, s32, {112*1024}
    """)
    if HP:
        A(f"""
        s_mul_i32 s29, s28, 37
        s_lshr_b32 s29, s29, 8
        s_lshl_b32 s33, s33, 2
        s_add_u32 s33, s33, s29
        s_lshl_b32 s33, s33, 7
        s_mul_i32 s29, s29, 7
        s_sub_u32 s29, s28, s29
        s_lshl_b32 s29, s29, 2
        s_add_u32 s33, s33, s29
        s_add_u32 s33, s33, {WS_FLH}
        """)
    else:
        A(f"""
        s_lshl_b32 s33, s33, 5
        s_add_u32 s33, s33, s28
        s_lshl_b32 s33, s33, 7
        s_add_u32 s33, s33, {WS_FLH}
        """)
    A(f"""
    s_lshl_b32 s29, s20, 8
    v_lshl_add_u32 v{VCW}, v0, 2, s29
    v_add_u32 v{VCW}, {L_CS}, v{VCW}
    v_xor_b32 v{VCR}, 256, v{VCW}
    """)
    srd(A, 16, "s46", "s47", 3584)
    A(f"""
    v_mov_b32 v{VB1}, 0
    v_lshlrev_b32 v{VT1}, 1, v0
    s_lshl_b32 s28, s28, 7
    buffer_load_short_d16_hi v{VB1}, v{VT1}, s[16:19], s28 offen
    """)
    for k in range(20): A(f"v_mov_b32 v{EA+k}, 0")
    for k in range(12): A(f"v_add_u32 v{HI+k}, 0x10000, v{VXR+k}")

def c_reads(g):
    kc, i = divmod(g, 4)
    st = kc % NS
    b = (VXR if st < 2 else HI); off = (st % 2) * STAGE
    sl = g % NR
    tr = lambda ft, sec: f"ds_read_b64_tr_b16 v[{W1+8*sl+4*ft+2*sec}:{W1+8*sl+4*ft+2*sec+1}], v{b+4+2*i+ft} offset:{off + sec*1024}"
    xr = lambda tt: f"ds_read_b128 v[{X1+8*sl+4*tt}:{X1+8*sl+4*tt+3}], v{b+i} offset:{off + tt*4096}"
    return [xr(0), tr(0, 0), tr(0, 1), tr(1, 0), tr(1, 1), xr(1)]

def gen_c1(A):
    VT = VT1
    dma_setup(A)
    A(f"""
    s_and_b32 s34, s20, 1
    s_lshr_b32 s35, s20, 1
    s_waitcnt lgkmcnt(0)
    s_add_u32 s42, s42, {WSOFF}
    s_addc_u32 s43, s43, 0
    s_load_dword s76, s[42:43], {WS_EPOCH}
    """)
    vm = VMQ()
    A.st("ka")
    srd(A, 4, "s40", "s41", 2 << 20)
    srd(A, 8, "s44", "s45", 512 * 3584)
    srd(A, 12, "s42", "s43", WS_USED)
    CSF = env("CSF", 0)
    if CSF: c_setup(A); vm.note("b1")
    if env("PFAT", 1) == -1 and OPT_PF: coop_prefetch(A, VT); vm.note("pf", 2)
    for kc in range(NC0):
        for part in range(4): A.extend(g1_dma(kc, part))
        vm.note(kc, 8)
        A.st(f"i{kc}")
        if kc == env("BP", 1): A("s_barrier")
        if kc == 0 and not CSF:
            c_setup(A); vm.note("b1")
        if kc == env("PFAT", 2) and OPT_PF == 1: coop_prefetch(A, VT); vm.note("pf", 2)
        if kc == env("PFAT", 2) and OPT_PF == 2: coop_prefetch2(A, VT); vm.note("pf", 3)
    TW = env("TW", 7)
    if TW:
        A(f"v_lshlrev_b32 v{VT+2}, 20, v0")
        if TW & 1: A("s_mov_b64 exec, 3"); A(f"global_load_dword v{VDUM}, v{VT+2}, s[52:53]"); vm.note("tw")
        if TW & 2: A("s_mov_b64 exec, 1"); A(f"buffer_load_dword v{VDUM}, v{VT+2}, s[12:15], s38 offen"); vm.note("tw")
        if TW & 4: A("s_mov_b64 exec, 1"); A(f"global_load_dword v{VDUM}, v{VT+2}, s[50:51]"); vm.note("tw")
        A("s_mov_b64 exec, -1")
    A.extend(ya_prefill(VT, VT + 1, PK)); vm.note("pre", 2)
    hpre = [f"buffer_store_dwordx4 v[{PK}:{PK+3}], v{VHO1}, s[12:15], s{32 if n < 4 else 38} offen offset:{(n%4)*1024} {SC}" for n in range(8)]
    HPRE = env("HPRE", 0)
    if HPRE == 1: A.extend(hpre); vm.note(2, 8)
    w2_setup(A, VT)
    mpf = ["s_lshl_b32 s28, s2, 2", "s_add_u32 s28, s28, s39", "s_lshl_b32 s28, s28, 11", f"v_lshlrev_b32 v{VT+2}, 7, v0", "s_mov_b64 exec, 0xffff",
           f"buffer_load_dword v{VDUM}, v{VT+2}, s[16:19], s28 offen", "s_mov_b64 exec, -1"]
    MPG = env("MPG", -2 if env("MP0", 1) else 9)
    if MPG == -1: A.extend(mpf); vm.note(2)
    A.st("pre")
    A(vm.wait(0)[0] + " lgkmcnt(0)"); A.st("kg"); A("s_barrier")
    A.st("b0")
    T = GT
    lq = LQ(A)
    lq.emit(c_reads(0), 0); lq.emit(c_reads(1), 1)
    mktag(A)
    def big(g, tt, ft):
        sl = g % NR; c = ACC1 + 32 * tt + 16 * ft
        cin = "0" if g == 0 else f"v[{c}:{c+15}]"
        return f"v_mfma_f32_32x32x16_bf16 v[{c}:{c+15}], v[{W1+8*sl+4*ft}:{W1+8*sl+4*ft+3}], v[{X1+8*sl+4*tt}:{X1+8*sl+4*tt+3}], {cin}"
    for g in range(32):
        kc, i = divmod(g, 4); w = W1 + 8 * (g % NR)
        m = lambda d, b_, z: f"v_mfma_f32_4x4x4_16b_bf16 v[{d}:{d+3}], v[{VONE}:{VONE+1}], v[{b_}:{b_+1}], " + ("0" if z else f"v[{d}:{d+3}]")
        o1, o2 = [], []
        if i < 2 and False: pass
        if i in (0, 2) and g < 28 or g in (28, 29):
            o1 = [m(CS, w, g == 0), m(CS + 4, w + 4, g == 0)]; o2 = [m(CS, w + 2, False), m(CS + 4, w + 6, False)]
        A.st(f"g{g}")
        gn = g + 2
        rd = c_reads(PERM(gn))[:] if gn < 32 else []
        rd = c_reads_slot(gn) if gn < 32 else []
        x1, x2 = [], []
        if i == 2 and kc + 1 < 8: x1 += vm.wait(kc + 1) + ["s_barrier"]
        if g == 30:
            x1 += [f"v_permlane32_swap_b32 v{CS}, v{CS+4}", f"v_add_f32 v{CS}, v{CS}, v{CS+4}", f"ds_write_b32 v{VCW}, v{CS}",
                   "s_waitcnt lgkmcnt(0)", "s_barrier", f"ds_read_b32 v{T+2}, v{VCR}"][:None if not NB8 else 3]
            if NB8:
                x1 += ["s_lshl_b32 s28, s20, 2", f"s_add_u32 s28, s28, {L_FLAG+128}", f"v_mov_b32 v{T}, s28", f"v_mov_b32 v{T+1}, 1",
                       f"ds_write_b32 v{T}, v{T+1}", f"v_xor_b32 v{T}, 4, v{T}"]
        if g == STATG: x2 += [f"buffer_load_dwordx2 v[{SG}:{SG+1}], v{VSO}, s[12:15], s36 offen {SC}"]; vm.note("sg")
        if EPE and g == 23: x2 += ep_early(VT)[:9]
        if EPE and g == 24: x2 += ep_early(VT)[9:]; vm.note("ep", 2)
        if g == MPG: x2 += mpf; vm.note("mpf")
        WM = env("WARM", 0)
        if WM and g == env("WARMG", 10):
            x2 += [f"v_lshlrev_b32 v{VT+2}, 20, v0", f"v_lshlrev_b32 v{VT+3}, 7, v0"]
            if WM & 1: x2 += ["s_mov_b64 exec, 0x3fff", f"buffer_load_dword v{VDUM}, v{VT+2}, s[12:15], 0 offen"]; vm.note("wm")
            if WM & 2: x2 += ["s_mov_b64 exec, 3", f"global_load_dword v{VDUM}, v{VT+2}, s[52:53]"]; vm.note("wm")
            if WM & 4: x2 += ["s_mov_b64 exec, 0xff", f"global_load_dword v{VDUM}, v{VT+3}, s[50:51]"]; vm.note("wm")
            x2 += ["s_mov_b64 exec, -1"]
        if HPRE >= 10 and HPRE <= g < HPRE + 8: x2 += [hpre[g - HPRE]]; vm.note("hp")
        if HPRE == 2 and g == 11:
            x2 += [f"v_and_b32 v{VT+2}, 31, v0", f"v_lshlrev_b32 v{VT+2}, 7, v{VT+2}", "s_mov_b64 exec, 0xffffffff", "s_mov_b32 exec_hi, 0",
                   f"buffer_load_dword v{VDUM}, v{VT+2}, s[12:15], s32 offen", f"buffer_load_dword v{VDUM}, v{VT+2}, s[12:15], s38 offen", "s_mov_b64 exec, -1"]; vm.note("hp", 2)
        if g in PFG:
            n_ = 128 // len(PFG); k_ = PFG.index(g)
            x2 += ["s_lshl_b32 s28, s24, 2", "s_add_u32 s28, s28, s39", "s_lshl_b32 s28, s28, 14", f"s_add_u32 s28, s28, {k_*n_*128}", f"v_lshlrev_b32 v{VT+2}, 7, v0"]
            if n_ < 64: x2 += [f"s_mov_b32 exec_lo, {hex((1 << n_) - 1)}", "s_mov_b32 exec_hi, 0"]
            x2 += [f"buffer_load_dword v{VDUM}, v{VT+2}, s[16:19], s28 offen", "s_mov_b64 exec, -1"]; vm.note("l2")
        if g == env("YFG", 16) - 1: x2 += yflag_off()
        if g == env("YFG", 16): x2 += ["s_waitcnt vmcnt(0)"] + wave_flag("s28", VT); vm.q.clear(); vm.note("yf")
        lq.wait(g)
        A(big(g, 0, 0))
        if i == 2: A.st(f"pb{kc+1}")
        lq.emit(x1)
        if i == 2: A.st(f"ab{kc+1}")
        lq.emit(rd[:2], gn)
        A(big(g, 0, 1)); lq.emit(rd[2:4], gn); A.extend(o1)
        A(big(g, 1, 0)); lq.emit(rd[4:], gn)
        A(big(g, 1, 1)); lq.emit(x2); A.extend(o2)
    A.st("loop")
    if NB8:
        lds_wait(A, "L_c_cs", T, 0, T + 1)
        A(f"ds_read_b32 v{T+2}, v{VCR}")
    A.extend(vm.wait("sg", "b1"))
    A(f"""
    v_cmp_ne_u32 vcc, s76, v{SG+1}
    s_cbranch_vccz L_g1_sok
    s_mov_b32 s30, 0
    L_g1_spoll:
    buffer_load_dwordx2 v[{SG}:{SG+1}], v{VSO}, s[12:15], s36 offen {SC}
    s_add_u32 s30, s30, 1
    s_waitcnt vmcnt(0)
    v_cmp_ne_u32 vcc, s76, v{SG+1}
    s_cmp_gt_u32 s30, {SPIN}
    s_cbranch_scc1 L_g1_sok
    s_cbranch_vccnz L_g1_spoll
    L_g1_sok:
    v_mov_b32 v{SG+1}, v{SG}
    s_mov_b32 s28, -1
    s_mov_b32 s29, 0
    v_permlane32_swap_b32 v{SG}, v{SG+1}
    s_waitcnt lgkmcnt(0)
    v_add_f32 v{T+2}, v{T+2}, v{CS}
    """)
    l1 = []
    for tt in range(2):
        l1 += [f"v_and_b32 v{VS+tt}, 0xffff0000, v{SG+tt}", f"v_and_b32 v{T+8+tt}, 0xffff, v{SG+tt}", f"v_rcp_f32 v{T+6+tt}, v{VS+tt}",
               f"v_lshl_or_b32 v{T+8+tt}, v{T+8+tt}, 16, v{T+8+tt}",
               f"v_cndmask_b32 v{EB+8*tt}, 0, v{T+8+tt}, s[28:29]", f"v_cndmask_b32 v{EB+8*tt+1}, 0, v{SG+tt}, s[28:29]",
               f"v_cndmask_b32 v{EB+8*tt+4}, v{T+8+tt}, 0, s[28:29]", f"v_cndmask_b32 v{EB+8*tt+5}, v{SG+tt}, 0, s[28:29]"]
    l2 = [f"v_and_b32 v{T+3}, 0xffff0000, v{T+2}", f"v_sub_f32 v{T+3}, v{T+2}, v{T+3}", f"v_lshrrev_b32 v{T+2}, 16, v{T+2}",
          f"v_and_b32 v{T+4}, 0xffff0000, v{T+3}", f"v_sub_f32 v{T+5}, v{T+3}, v{T+4}", f"v_or_b32 v{EA}, v{T+2}, v{T+4}",
          f"v_lshrrev_b32 v{T+5}, 16, v{T+5}", f"v_or_b32 v{EA+1}, v{T+5}, v{VB1}"]
    A.extend(zipm(l1, l2))
    l3 = []
    for tt in range(2):
        l3.append([f"v_fma_f32 v{T+10+tt}, -v{VS+tt}, v{T+6+tt}, 1.0", f"v_fma_f32 v{T+6+tt}, v{T+10+tt}, v{T+6+tt}, v{T+6+tt}",
                   f"v_mul_f32 v{K1r+tt}, {hex(f2u(GC1))}, v{T+6+tt}", f"v_mul_f32 v{T+10+tt}, v{T+6+tt}, v{T+6+tt}",
                   f"v_mul_f32 v{K3r+tt}, {hex(f2u(GC2))}, v{T+6+tt}", f"v_mul_f32 v{K3r+tt}, v{K3r+tt}, v{T+10+tt}"])
    l3 = zipm(*l3)
    for tt in range(2):
        for ft in range(2):
            c = ACC1 + 32 * tt + 16 * ft
            A(f"v_mfma_f32_32x32x16_bf16 v[{c}:{c+15}], v[{EA}:{EA+3}], v[{EB+8*tt+4*ft}:{EB+8*tt+4*ft+3}], v[{c}:{c+15}]")
            A.extend(l3[3 * (2 * tt + ft):3 * (2 * tt + ft) + 3])
    A.st("gstart")
    for n in range(8):
        tt = n // 4
        if n == env("PGN", 99): A("s_setprio 2")
        c0 = ACC1 + 8 * n
        t0 = GT + 8 * (n % 2)
        if GPK == 1 and n == NPK0:
            A(f"""
            v_mov_b32 v{VT}, {L_FLAG+80}
            L_c_km:
            ds_read_b128 v[{EA}:{EA+3}], v{VT}
            s_waitcnt lgkmcnt(0)
            v_and_b32 v{EA}, v{EA}, v{EA+1}
            v_and_b32 v{EA+2}, v{EA+2}, v{EA+3}
            v_and_b32 v{EA}, v{EA}, v{EA+2}
            s_nop 0
            v_readfirstlane_b32 s28, v{EA}
            s_cmp_eq_u32 s28, 1
            s_cbranch_scc0 L_c_km
            """)
        if GPK == 2 or (GPK and n >= NPK0):
            P = lambda x: f"v[{x}:{x+1}]"
            sel = f"op_sel:[0,{tt},{tt}] op_sel_hi:[1,{tt},{tt}]"
            for k in range(0, 8, 2): A(f"v_pk_mul_f32 {P(t0+k)}, {P(c0+k)}, {P(c0+k)}")
            for k in range(0, 8, 2): A(f"v_pk_fma_f32 {P(t0+k)}, {P(t0+k)}, {P(K3r)}, {P(K1r)} {sel}")
            for k in range(0, 8, 2): A(f"v_pk_mul_f32 {P(t0+k)}, {P(t0+k)}, {P(c0+k)}")
            for k in range(8): A(f"v_exp_f32 v{t0+k}, v{t0+k}")
            for k in range(0, 8, 2): A(f"v_pk_fma_f32 {P(t0+k)}, {P(t0+k)}, {P(VS)}, {P(VS)} {sel}")
            for k in range(8): A(f"v_rcp_f32 v{t0+k}, v{t0+k}")
            for k in range(0, 8, 2): A(f"v_pk_mul_f32 {P(c0+k)}, {P(c0+k)}, {P(t0+k)}")
        else:
            for k in range(8): A(f"v_mul_f32 v{t0+k}, v{c0+k}, v{c0+k}")
            for k in range(8): A(f"v_fma_f32 v{t0+k}, v{t0+k}, v{K3r+tt}, v{K1r+tt}")
            for k in range(8): A(f"v_mul_f32 v{t0+k}, v{t0+k}, v{c0+k}")
            for k in range(8): A(f"v_exp_f32 v{t0+k}, v{t0+k}")
            for k in range(8): A(f"v_fma_f32 v{t0+k}, v{t0+k}, v{VS+tt}, v{VS+tt}")
            for k in range(8): A(f"v_rcp_f32 v{t0+k}, v{t0+k}")
            for k in range(8): A(f"v_mul_f32 v{c0+k}, v{c0+k}, v{t0+k}")
        pk = PK + 4 * (n % 2)
        for k in range(4): A(f"v_cvt_pk_bf16_f32 v{pk+k}, v{c0+2*k}, v{c0+2*k+1}")
        A(f"buffer_store_dwordx4 v[{pk}:{pk+3}], v{VHO1}, s[12:15], s{32 if tt == 0 else 38} offen offset:{(n%4)*1024} {SCH}")
        if env("DBL", 0): A(f"buffer_store_dwordx4 v[{pk}:{pk+3}], v{VHO1}, s[12:15], s{32 if tt == 0 else 38} offen offset:{(n%4)*1024}")
    A.st("gend")
    A("s_mov_b32 s37, 0")
    A("s_branch L_gemm2")

def PERM(g): return g
def c_reads_slot(g):
    if g < 28: return c_reads(g)
    i = [0, 2, 1, 3][g - 28]
    r = c_reads(28 + i)
    kc = 7; st = kc % NS; b = HI; off = (st % 2) * STAGE; sl = g % NR
    tr = lambda ft, sec: f"ds_read_b64_tr_b16 v[{W1+8*sl+4*ft+2*sec}:{W1+8*sl+4*ft+2*sec+1}], v{b+4+2*i+ft} offset:{off + sec*1024}"
    xr = lambda tt: f"ds_read_b128 v[{X1+8*sl+4*tt}:{X1+8*sl+4*tt+3}], v{b+i} offset:{off + tt*4096}"
    return [xr(0), tr(0, 0), tr(0, 1), tr(1, 0), tr(1, 1), xr(1)]

def yflag_off():
    return ["s_lshr_b32 s28, s39, 1", "s_lshl_b32 s29, s2, 1", "s_add_u32 s28, s28, s29", "s_and_b32 s29, s39, 1", "s_lshl_b32 s29, s29, 9",
            "s_add_u32 s28, s28, s29", f"s_lshl_b32 s28, s28, {FS}", f"s_add_u32 s28, s28, {WS_FLY}"]
def ring_ready(vt):
    return ["s_lshl_b32 s28, s39, 2", f"s_add_u32 s28, s28, {L_FLAG+16}", f"v_mov_b32 v{vt}, s28", f"v_mov_b32 v{vt+1}, 1", f"ds_write_b32 v{vt}, v{vt+1}"]

def gen_h1(A):
    VT = VT1
    vm = VMQ()
    vm.note("prm", 8)
    A(f"s_add_u32 s42, s42, {WSOFF}\ns_addc_u32 s43, s43, 0\ns_load_dword s76, s[42:43], {WS_EPOCH}")
    srd(A, 4, "s40", "s41", 2 << 20)
    srd(A, 8, "s44", "s45", 512 * 3584)
    srd(A, 12, "s42", "s43", WS_USED)
    if env("CPF", 1): vm.note("cpf")
    dma_setup(A)
    w2_setup(A, VT)
    if env("MPF", 0):
        A(f"""
        s_lshl_b32 s28, s2, 2
        s_add_u32 s28, s28, s39
        s_lshl_b32 s28, s28, 11
        v_lshlrev_b32 v{VT+2}, 7, v0
        s_mov_b64 exec, 0xffff
        buffer_load_dword v{VDUM}, v{VT+2}, s[16:19], s28 offen
        s_mov_b64 exec, -1
        """)
    if env("TLBW", 0):
        A(f"""
        v_lshlrev_b32 v{VT+2}, {env("TLBS", 20)}, v0
        s_mov_b64 exec, {hex((1 << (WS_USED >> env("TLBS", 20))) - 1)}
        buffer_load_dword v{VDUM}, v{VT+2}, s[12:15], 0 offen
        s_mov_b64 exec, 3
        buffer_load_dword v{VDUM}, v{VT+2}, s[16:19], 0 offen
        global_load_dword v{VDUM}, v{VT+2}, s[52:53]
        s_mov_b64 exec, 1
        global_load_dword v{VDUM}, v{VT+2}, s[50:51]
        s_mov_b64 exec, -1
        """)
        vm.note("tlb", 4)
    kg_waddr(A, L_VS, KWA); A.extend(kg_raddr(L_VS, KRA, VT))
    for a_ in flag_zero(): A.extend(a_)
    if env("BP", 1) >= 0: A("s_barrier")
    A.st("pre")
    A.extend(vm.wait("prm"))
    A.st("prm")
    A.label("L_kgen_v")
    gen_kgen_v(A)
    A("s_cmp_eq_u32 s77, 7")
    A("s_cbranch_scc1 L_ln_H2")
    A.st("kg")
    A("s_waitcnt lgkmcnt(0)"); A("s_barrier")
    A.st("b0")
    mktag(A)
    UV, UW = kgen_u_lists(0)
    wts = [2, 3, 3, 3, 3, 3]; cum = 0
    for k in range(7 if NB8 else 8):
        if NB8 and k == 6:
            if EPE: A.extend(ep_early(VT)); vm.note("ep", 2)
            for sl in range(env("F6N", 2)): A.extend(wdma(sl, sl))
            vm.note("f", 2 * env("F6N", 2))
        elif k <= 5:
            sl_ = UV[len(UV) * cum // sum(wts):len(UV) * (cum + wts[k]) // sum(wts)]; cum += wts[k]
            if k >= 1 or NC0 == 2:
                pcs = []
                for part in range(4):
                    dd = g1_dma(k + 2, part); pcs += [dd[:3], dd[3:]]
                vm.note(k + 2, 8)
                for q, dd in enumerate(pcs):
                    A.extend(dd); A.extend(sl_[len(sl_) * q // 8:len(sl_) * (q + 1) // 8])
            else: A.extend(sl_)
        else:
            for sl in range(4 * (k - 6), 4 * (k - 6) + 4): A.extend(wdma(sl, sl))
            vm.note("f", 8)
        A.st(f"pi{k+1}")
        A.extend(vm.wait(k + 1))
        A("s_barrier")
        A.st(f"ab{k+1}")
    if NB8:
        for sl in range(env("F6N", 2), 8): A.extend(wdma(sl, sl))
        A(f"""
        v_mov_b32 v{VT+2}, {L_FLAG+128}
        L_h_rd:
        ds_read_b128 v[32:35], v{VT+2}
        s_waitcnt lgkmcnt(0)
        v_and_b32 v32, v32, v33
        v_and_b32 v34, v34, v35
        v_and_b32 v32, v32, v34
        s_nop 0
        v_readfirstlane_b32 s28, v32
        s_cmp_eq_u32 s28, 1
        s_cbranch_scc0 L_h_rd
        """)
    A.st("loop")
    HT2 = env("HT2", 0)
    if not HT2:
        for sl in range(8, 12): A.extend(wdma(sl, sl))
    A.label("L_h_tail")
    A(f"s_setprio {env('PRIOX', 0)}")
    lq = LQ(A)
    ar_, mm_ = kg_atoms_m()
    UE = env("UE", 0)
    if UE: A.extend(lnflag_load(36))
    lq.emit(UW)
    for a_ in ar_: lq.emit(a_)
    if GPK == 2:
        A("s_setprio 0")
        A("s_cmp_eq_u32 s77, 7")
        A("s_cbranch_scc1 L_h_gd2")
        A(f"""
        v_mov_b32 v{VT+2}, {L_FLAG+32}
        L_h_gd:
        s_sleep 1
        ds_read_b128 v[32:35], v{VT+2}
        s_waitcnt lgkmcnt(0)
        v_and_b32 v32, v32, v33
        v_and_b32 v34, v34, v35
        v_and_b32 v32, v32, v34
        s_nop 0
        v_readfirstlane_b32 s28, v32
        s_cmp_eq_u32 s28, 1
        s_cbranch_scc0 L_h_gd
        L_h_gd2:
        """)
        A.extend(lnflag_load(36))
    for a_ in mm_ + kg_atoms_x1(): lq.emit(a_)
    A(f"""
    s_lshl_b32 s28, s39, 2
    s_add_u32 s28, s28, {L_FLAG}
    v_mov_b32 v{VT}, s28
    v_mov_b32 v{VT+1}, 1
    ds_write_b32 v{VT}, v{VT+1} offset:80
    v_xor_b32 v{VT+2}, 4, v{VT}
    """)
    HT3 = env('HT3', 1)
    if UE:
        A(f"v_lshlrev_b32 v18, 4, v0")
        A("s_waitcnt vmcnt(0)")
        A(f"""
        v_cmp_ne_u32 vcc, s76, v{LNF}
        s_mov_b32 s37, 0
        s_cbranch_vccnz L_ue_no
        s_mov_b32 s37, 1
        """)
        u_issue(A, 18)
        A.label("L_ue_no")
    if HT2 or HT3: A.extend(lnflag_load(36))
    lds_wait(A, "L_h_x1", VT + 2, 80, 32)
    lq.q = []
    for a_ in kg_atoms_x2("g"): lq.emit(a_)
    A("s_setprio 0")
    DF = env("DF", 0)
    if DF:
        A("s_waitcnt vmcnt(0)")
        if DF == 1: A.extend(ring_ready(VT))
        A("s_cmp_eq_u32 s77, 7")
        A("s_cbranch_scc1 L_h_dr2")
        A(f"""
        v_mov_b32 v{VT+2}, {L_FLAG+32}
        L_h_dr:
        s_sleep 1
        ds_read_b128 v[32:35], v{VT+2}
        s_waitcnt lgkmcnt(0)
        v_and_b32 v32, v32, v33
        v_and_b32 v34, v34, v35
        v_and_b32 v32, v32, v34
        s_nop 0
        v_readfirstlane_b32 s28, v32
        s_cmp_eq_u32 s28, 1
        s_cbranch_scc0 L_h_dr
        L_h_dr2:
        """)
    if not HT2 and not HT3 and GPK != 2: A.extend(lnflag_load(VT))
    A.st("ku")
    A(f"v_lshlrev_b32 v18, 4, v0")
    A("s_waitcnt vmcnt(0)")
    if UE: A("s_cmp_eq_u32 s37, 1"); A("s_cbranch_scc1 L_ut_no")
    RT = env("RT", 6)
    if RT:
        A(f"""
        s_mov_b32 s30, 0
        v_cmp_ne_u32 vcc, s76, v{LNF}
        s_cbranch_vccz L_rt_ok
        L_rt:
        s_sleep {PS}
        buffer_load_dword v{LNF}, v36, s[12:15], 0 offen {SC}
        s_add_u32 s30, s30, 1
        s_waitcnt vmcnt(0)
        v_cmp_ne_u32 vcc, s76, v{LNF}
        s_cmp_ge_u32 s30, {RT}
        s_cbranch_scc1 L_rt_ok
        s_cbranch_vccnz L_rt
        L_rt_ok:
        """)
    u_try(A, 18)
    if HT2:
        A("s_cmp_eq_u32 s77, 7")
        A("s_cbranch_scc1 L_h_nof")
        for sl in range(8, 12): A.extend(wdma(sl, sl))
        A("s_branch L_h_f")
        A.label("L_h_nof")
        A.extend(ring_ready(VT))
        A("s_waitcnt vmcnt(0)")
        A.label("L_h_f")
    else:
        A.extend(ring_ready(VT))
    A.st("gend")
    A("s_branch L_conv")
    A.label("L_ln_H2")
    A("s_waitcnt vmcnt(0) ; RESETSB")
    A("ds_write_b32 v5, v6")
    if EPE: A("s_waitcnt lgkmcnt(0)"); A.extend(ep_early(28))
    A.extend(UV)
    A(f"""
    v_mov_b32 v30, {L_FLAG+112+(64 if env('LNW', 0) else 0)}
    L_ln_hv:
    ds_read_b128 v[32:35], v30
    s_waitcnt lgkmcnt(0)
    v_and_b32 v32, v32, v33
    v_and_b32 v34, v34, v35
    v_and_b32 v32, v32, v34
    s_nop 0
    v_readfirstlane_b32 s28, v32
    s_cmp_eq_u32 s28, 1
    s_cbranch_scc0 L_ln_hv
    """)
    A("s_branch L_h_tail")

def gen_gemm1(A):
    A(f"""
    s_load_dwordx8 s[56:63], s[0:1], {KA['A_re']}
    s_load_dwordx8 s[64:71], s[0:1], {KA['C_re']}
    """)
    A("s_cmp_lt_u32 s20, 4")
    A("s_cbranch_scc1 L_g1_C")
    param_loads(A, VT1)
    if env("CPF", 1):
        A(f"""
        s_getpc_b64 s[28:29]
        L_pc0:
        s_sub_u32 s28, s28, L_pc0-{KNAME}
        s_subb_u32 s29, s29, 0
        s_lshl_b32 s30, s24, 2
        s_add_u32 s30, s30, s39
        s_mul_i32 s30, s30, 384
        v_lshl_add_u32 v{VT1+2}, v0, 7, s30
        v_min_u32 v{VT1+2}, L_exit-{KNAME}, v{VT1+2}
        s_mov_b64 exec, 7
        global_load_dword v{VDUM}, v{VT1+2}, s[28:29]
        s_mov_b64 exec, -1
        """)
    A("s_branch L_g1_H")
    A.label("L_g1_C")
    A("s_nop 0 ; RESETSB")
    gen_c1(A)
    A.label("L_g1_H")
    A("s_nop 0 ; RESETSB")
    gen_h1(A)


def gen_ln(A):
    Q, R, O, T = 16, 48, 80, 112
    A(f"""
    s_load_dwordx8 s[56:63], s[0:1], {KA['A_re']}
    s_load_dwordx8 s[64:71], s[0:1], {KA['C_re']}
    v_lshrrev_b32 v1, 3, v0
    v_and_b32 v2, 7, v0
    v_lshlrev_b32 v3, 10, v1
    v_lshl_add_u32 v3, v2, 4, v3
    v_lshlrev_b32 v4, 4, v0
    s_lshl_b32 s25, s21, 6
    s_lshl_b32 s28, s20, 3
    s_add_u32 s25, s25, s28
    s_lshl_b32 s36, s25, 3
    s_add_u32 s36, s36, {WS_STAT}
    s_lshl_b32 s25, s25, 10
    s_add_u32 s26, s25, 4096
    s_waitcnt lgkmcnt(0)
    s_add_u32 s42, s42, {WSOFF}
    s_addc_u32 s43, s43, 0
    s_load_dword s76, s[42:43], {WS_EPOCH}
    """)
    srd(A, 4, "s40", "s41", 2 << 20)
    for t in range(8): A(f"buffer_load_dwordx4 v[{R+4*t}:{R+4*t+3}], v4, s[4:7], s{25 + t//4} offen offset:{(t%4)*1024}")
    srd(A, 12, "s42", "s43", WS_USED)
    NLW = 0
    if LW1:
        srd(A, 8, "s44", "s45", 512 * 3584)
        A(f"""
        s_and_b32 s28, s24, 3
        s_lshl_b32 s28, s28, 3
        s_add_u32 s28, s28, s20
        s_mul_i32 s28, s28, 47
        s_and_b32 s29, s23, 1
        s_mul_i32 s29, s29, 1792
        s_add_u32 s29, s29, {192*3584}
        """)
        for j in range(3):
            A(f"""
            s_add_u32 s30, s28, {j*1504}
            v_add_u32 v{T}, s30, v0
            v_mul_u32_u24 v{T+1}, 0x4925, v{T}
            v_lshrrev_b32 v{T+1}, 18, v{T+1}
            v_mul_u32_u24 v{T+2}, 14, v{T+1}
            v_sub_u32 v{T}, v{T}, v{T+2}
            v_lshlrev_b32 v{T}, 7, v{T}
            v_mul_u32_u24 v{T+1}, 3584, v{T+1}
            v_add_u32 v{T}, v{T}, v{T+1}
            s_mov_b32 exec_hi, 0x7fff
            buffer_load_dword v{VDUM}, v{T}, s[8:11], s29 offen
            s_mov_b32 exec_hi, -1
            """)
        NLW = 3
    A(f"""
    v_mov_b32 v5, 0x3f803f80
    v_mov_b32 v14, 0x00003f80
    v_mov_b32 v15, 0x3f800000
    v_lshlrev_b32 v8, 3, v1
    """)
    S1, S2 = Q, Q + 8
    A("s_setprio 2")
    for t in range(8):
        A(f"s_waitcnt vmcnt({7 - t + NLW})")
        for k in range(4):
            r = R + 4 * t + k
            A(f"v_dot2_f32_bf16 v{S1+t}, v{r}, v5, {'0' if k == 0 else f'v{S1+t}'}")
            A(f"v_dot2_f32_bf16 v{S2+t}, v{r}, v{r}, {'0' if k == 0 else f'v{S2+t}'}")
    for r in range(4):
        for S in (S1, S2): A(f"v_permlane32_swap_b32 v{S+r}, v{S+r+4}")
    for r in range(4):
        for S in (S1, S2): A(f"v_add_f32 v{S+r}, v{S+r}, v{S+r+4}")
    for r in range(2):
        for S in (S1, S2): A(f"v_permlane16_swap_b32 v{S+r}, v{S+r+2}")
    for r in range(2):
        for S in (S1, S2): A(f"v_add_f32 v{S+r}, v{S+r}, v{S+r+2}")
    for r in range(2):
        for S in (S1, S2): A(f"v_add_f32_dpp v{S+r}, v{S+r}, v{S+r} row_ror:8 row_mask:0xf bank_mask:0xf")
    A.extend(mask("0xff00ff00"))
    A(f"""
    v_cndmask_b32 v6, v{S1}, v{S1+1}, s[28:29]
    v_cndmask_b32 v7, v{S2}, v{S2+1}, s[28:29]
    s_waitcnt lgkmcnt(0)
    """)
    mktag(A)
    A(f"""
    v_mov_b32 v11, s76
    v_add_f32_dpp v6, v6, v6 quad_perm:[1,0,3,2] row_mask:0xf bank_mask:0xf
    v_add_f32_dpp v7, v7, v7 quad_perm:[1,0,3,2] row_mask:0xf bank_mask:0xf
    v_add_f32_dpp v6, v6, v6 quad_perm:[2,3,0,1] row_mask:0xf bank_mask:0xf
    v_add_f32_dpp v7, v7, v7 quad_perm:[2,3,0,1] row_mask:0xf bank_mask:0xf
    v_add_f32_dpp v6, v6, v6 row_half_mirror row_mask:0xf bank_mask:0xf
    v_add_f32_dpp v7, v7, v7 row_half_mirror row_mask:0xf bank_mask:0xf
    v_mul_f32 v12, {hex(f2u(1/512))}, v6
    v_mul_f32 v13, {hex(f2u(1/512))}, v7
    v_fma_f32 v13, -v12, v12, v13
    v_max_f32 v13, 0, v13
    """)
    round_bf16(A, 13)
    A(f"v_add_f32 v13, {hex(f2u(1e-5))}, v13")
    round_bf16(A, 13)
    A(f"""
    v_sqrt_f32 v13, v13
    v_cvt_pk_bf16_f32 v10, -v12, v13
    s_mov_b32 exec_lo, 0x01010101
    s_mov_b32 exec_hi, 0x01010101
    buffer_store_dwordx2 v[10:11], v8, s[12:15], s36 offen {SC}
    s_mov_b64 exec, -1
    """)
    A.st("b0")
    A("s_setprio 0")
    param_loads(A, T)
    LPF = env("LPF", 0)
    if LPF:
        srd(A, 16, "s48", "s49", 1792 * 1024)
        A(f"""
        s_lshl_b32 s28, s21, 3
        s_add_u32 s28, s28, s20
        s_mul_i32 s28, s28, {56*128}
        v_min_u32 v{T+2}, 55, v0
        v_lshlrev_b32 v{T+2}, 7, v{T+2}
        buffer_load_dword v{VDUM}, v{T+2}, s[16:19], s28 offen
        """)
    A(f"""
    v_and_b32 v13, 0xffff0000, v10
    v_lshlrev_b32 v12, 16, v10
    v_rcp_f32 v5, v13
    s_nop 0
    v_fma_f32 v13, -v13, v5, 1.0
    v_fma_f32 v13, v13, v5, v5
    """)
    for t in range(8):
        A(f"v_readlane_b32 s{56+t}, v12, {8*t}")
        A(f"v_readlane_b32 s{64+t}, v13, {8*t}")
    A(f"""
    v_xor_b32 v5, s20, v2
    v_lshlrev_b32 v6, 10, v0
    v_lshl_add_u32 v6, v5, 4, v6
    """)

    for tp in range(4):
        t0, t1 = 2 * tp, 2 * tp + 1
        for k in range(4):
            for h in range(2):
                e = 2 * k + h
                A(f"v_dot2_f32_bf16 v{T+2*e}, v{R+4*t0+k}, v{14+h}, s{56+t0}")
                A(f"v_dot2_f32_bf16 v{T+2*e+1}, v{R+4*t1+k}, v{14+h}, s{56+t1}")
        if env("LNX", 1):
            for e in range(8): A(f"v_cvt_pk_bf16_f32 v{T+2*e+1}, v{T+2*e}, v{T+2*e+1}")
            for e in range(8):
                A(f"v_lshlrev_b32 v{T+2*e}, 16, v{T+2*e+1}")
                A(f"v_and_b32 v{T+2*e+1}, 0xffff0000, v{T+2*e+1}")
        for e in range(8): A(f"v_pk_mul_f32 v[{T+2*e}:{T+2*e+1}], v[{T+2*e}:{T+2*e+1}], s[{64+t0}:{64+t1}]")
        for e in range(8): A(f"v_cvt_pk_bf16_f32 v{O+4*e+tp}, v{T+2*e}, v{T+2*e+1}")
        if tp == env("LFP", 3):
            w2_setup(A, 28)
            LF = env("LF", 0)
            A("s_cmp_ge_u32 s20, 4")
            A("s_cbranch_scc1 L_ln_nofill")
            for sl in range(LF): A.extend(wdma(sl, sl))
            A.label("L_ln_nofill")
    for e in range(8): A(f"ds_write_b128 v6, v[{O+4*e}:{O+4*e+3}] offset:{e*128}")
    for a_ in flag_zero(): A.extend(a_)
    A.st("g8")
    A(f"""
    s_lshl_b32 s28, s20, 13
    v_lshlrev_b32 v6, 7, v1
    v_lshl_add_u32 v6, v2, 4, v6
    v_add_u32 v6, s28, v6
    v_lshlrev_b32 v7, {7 if XS else 12}, v1
    v_lshl_add_u32 v7, v2, 4, v7
    s_lshl_b32 s26, s20, {13 if XS else 18}
    s_mul_i32 s28, s21, {XS if XS else 128}
    s_add_u32 s26, s26, s28
    s_add_u32 s26, s26, {WS_XNT}
    s_lshl_b32 s33, s21, {FS}
    s_add_u32 s33, s33, {WS_FLL}
    """)
    for i in range(8): A(f"v_xor_b32 v{8+i}, {16*i}, v6")
    A("s_waitcnt lgkmcnt(0)")
    A("s_barrier")
    for i in range(8): A(f"ds_read_b128 v[{192+4*i}:{192+4*i+3}], v{8+i} offset:{i*1024}")
    for i in range(8):
        A(f"s_waitcnt lgkmcnt({7-i})")
        A(f"s_add_u32 s25, s26, {i*(1024 if XS else 32768)}")
        A(f"buffer_store_dwordx4 v[{192+4*i}:{192+4*i+3}], v7, s[12:15], s25 offen {SC}")
    A.st("loop")
    A(f"""
    s_lshl_b32 s28, s20, 2
    s_add_u32 s28, s28, {L_FLAG+96}
    v_mov_b32 v5, s28
    v_mov_b32 v6, 1
    s_cmp_lt_u32 s20, 4
    s_cbranch_scc1 L_ln_C
    """)
    kg_waddr(A, L_VS, KWA); A.extend(kg_raddr(L_VS, KRA, 28))
    A(f"s_mov_b32 s33, {WS_DUMMY}")
    if env("LNW", 0):
        A("s_waitcnt vmcnt(0)")
        A("ds_write_b32 v5, v6")
        A("v_add_u32 v5, 64, v5")
    else:
        A("s_waitcnt vmcnt(8)")
    A("s_branch L_kgen_v")
    A.label("L_ln_C")
    A.extend(ya_prefill(T + 2, T + 3, T + 4))
    A(f"""
    v_mov_b32 v30, {L_FLAG+96}
    s_waitcnt vmcnt(0)
    ds_write_b32 v5, v6
    """)
    A.extend(yflag_off()); A.extend(wave_flag("s28", 34))
    A(f"""
    L_ln_cs:
    ds_read_b128 v[36:39], v30
    ds_read_b128 v[40:43], v30 offset:16
    s_waitcnt lgkmcnt(0)
    v_and_b32 v36, v36, v37
    v_and_b32 v38, v38, v39
    v_and_b32 v40, v40, v41
    v_and_b32 v42, v42, v43
    v_and_b32 v36, v36, v38
    v_and_b32 v40, v40, v42
    v_and_b32 v36, v36, v40
    s_nop 0
    v_readfirstlane_b32 s28, v36
    s_cmp_eq_u32 s28, 1
    s_cbranch_scc0 L_ln_cs
    """)
    publish_flag(A, "s33", 32, "l", 0)
    A.st("gstart")
    A(f"s_mov_b32 s33, {WS_DUMMY}")
    if EPE: A.extend(ep_early(28))
    for sl in range(12): A.extend(wdma(sl, sl))
    A("s_waitcnt vmcnt(0)")
    for sl in range(12): A.extend(w2tr(sl, sl))
    A(f"""
    v_mov_b32 v28, {L_FLAG+16}
    L_ln_cw:
    ds_read_b128 v[32:35], v28
    s_waitcnt lgkmcnt(0)
    v_and_b32 v32, v32, v33
    v_and_b32 v34, v34, v35
    v_and_b32 v32, v32, v34
    s_nop 0
    v_readfirstlane_b32 s28, v32
    s_cmp_eq_u32 s28, 1
    s_cbranch_scc0 L_ln_cw
    """)
    for sl in range(12): A.extend(wdma(sl, 12 + sl))
    A(f"""
    s_lshl_b32 s28, s20, 8
    s_add_u32 s28, s28, s2
    s_cmp_lg_u32 s28, 255
    s_cbranch_scc1 L_nobump
    v_lshlrev_b32 v28, {FS+1}, v0
    s_mov_b32 s30, 0
    L_bump_poll:
    """)
    for k in range(4):
        A(f"s_mov_b32 s28, {WS_FLY + k*(128 << FS)}")
        A(f"buffer_load_dword v{32+k}, v28, s[12:15], s28 offen {SC}")
    A(f"""
    s_add_u32 s30, s30, 1
    s_waitcnt vmcnt(0)
    v_xor_b32 v32, s76, v32
    v_xor_b32 v33, s76, v33
    v_xor_b32 v34, s76, v34
    v_xor_b32 v35, s76, v35
    v_or3_b32 v32, v32, v33, v34
    v_or_b32 v32, v32, v35
    v_cmp_ne_u32 vcc, 0, v32
    s_cmp_gt_u32 s30, {SPIN}
    s_cbranch_scc1 L_bump_go
    s_cbranch_vccnz L_bump_poll
    L_bump_go:
    s_mov_b32 s28, {WS_EPOCH}
    """)
    A.extend(wave_flag("s28", 28))
    A.label("L_nobump")
    A("s_mov_b32 s37, 1")
    A("s_branch L_gemm2")


def final_addr(A):
    A(f"""
    v_lshrrev_b32 v1, 3, v0
    v_and_b32 v2, 7, v0
    v_lshlrev_b32 v{VOO}, 10, v1
    v_lshl_add_u32 v{VOO}, v2, 4, v{VOO}
    v_lshlrev_b32 v3, 4, v2
    s_lshl_b32 s33, s78, 6
    s_lshl_b32 s28, s20, 3
    s_add_u32 s33, s33, s28
    s_lshl_b32 s33, s33, 10
    s_lshl_b32 s34, s79, 7
    s_add_u32 s33, s33, s34
    """)
def ep_loads():
    o = Asm()
    srd(o, 8, "s50", "s51", 1024)
    o(f"buffer_load_dwordx4 v[{VX}:{VX+3}], v{VOO}, s[4:7], s33 offen")
    o(f"buffer_load_dwordx4 v[{VB2}:{VB2+3}], v3, s[8:11], s34 offen")
    return o.lines


def ep_early(vt):
    return [f"v_lshrrev_b32 v{vt}, 3, v0", f"v_and_b32 v{vt+1}, 7, v0", f"v_lshlrev_b32 v{vt}, 10, v{vt}", f"v_lshlrev_b32 v{vt+1}, 4, v{vt+1}",
            f"v_add_u32 v{vt}, v{vt}, v{vt+1}", "s_lshl_b32 s29, s78, 6", "s_lshl_b32 s28, s20, 3", "s_add_u32 s29, s29, s28", "s_lshl_b32 s29, s29, 10",
            "s_lshl_b32 s30, s79, 7", "s_add_u32 s29, s29, s30", "s_mov_b32 s8, s50", "s_mov_b32 s9, s51", "s_mov_b32 s10, 1024", "s_mov_b32 s11, 0x00020000",
            f"buffer_load_dwordx4 v[{VX}:{VX+3}], v{vt}, s[4:7], s29 offen", f"buffer_load_dwordx4 v[{VB2}:{VB2+3}], v{vt+1}, s[8:11], s30 offen"]

def gen_gemm2(A):
    VHO, VTR2, VP, VT = 13, 14, 18, 22
    ACC, W, H = ACC2, W2R, HR
    if PRIO_G: A(f"s_setprio {PRIO_G}")
    A("s_mov_b32 s22, s33")
    final_addr(A)
    for k in range(4): A(f"v_mov_b32 v{VTR2+k}, v{VTL+k}")
    A(f"""
    v_lshlrev_b32 v{VHO}, 4, v0
    v_lshrrev_b32 v{VT}, 5, v0
    v_xor_b32 v{VT}, v{VT}, v2
    v_and_b32 v{VP}, 31, v0
    v_lshlrev_b32 v{VP}, 8, v{VP}
    v_lshl_add_u32 v{VP}, v{VT}, 4, v{VP}
    v_add_u32 v{VP}, s73, v{VP}
    v_xor_b32 v{VP+1}, 32, v{VP}
    v_xor_b32 v{VP+2}, 64, v{VP}
    v_xor_b32 v{VP+3}, 96, v{VP}
    s_mul_i32 s24, s78, {2*112*1024}
    s_mul_i32 s28, s20, {28*1024}
    s_add_u32 s24, s24, s28
    s_add_u32 s24, s24, {WS_HF}
    s_add_u32 s25, s24, {112*1024}
    s_mul_i32 s26, s20, {1 if HP else 7}
    s_lshl_b32 s28, s78, {2 if HP else 5}
    s_add_u32 s26, s26, s28
    s_lshl_b32 s26, s26, 7
    s_add_u32 s26, s26, {WS_FLH}
    v_min_u32 v{VT}, 6, v2
    v_lshlrev_b32 v{VT}, {2 if HP else 7}, v{VT}
    s_lshl_b32 s28, s20, 2
    s_add_u32 s28, s28, {L_FLAG+16}
    v_mov_b32 v{ACC+4}, s28
    v_mov_b32 v{ACC+5}, 1
    ds_write_b32 v{ACC+4}, v{ACC+5} offset:16
    s_mov_b32 s30, 0
    s_cmp_eq_u32 s37, 1
    s_cbranch_scc1 L_g2_poll
    """)
    A.st("prew")
    A("s_waitcnt vmcnt(0)")
    A.extend(wave_flag("s22", ACC))
    A.st("p2bar")
    A(f"""
    L_g2_rr:
    ds_read_b32 v{ACC+5}, v{ACC+4}
    s_waitcnt lgkmcnt(0)
    v_readfirstlane_b32 s28, v{ACC+5}
    s_cmp_eq_u32 s28, 1
    s_cbranch_scc0 L_g2_rr
    """)
    for sl in range(3): A.extend(w2tr(sl, sl, VTR2))
    for sl in range(12):
        left = min(12, sl + 3) - sl - 1
        A(f"s_waitcnt lgkmcnt({4*left})")
        if sl + 3 < 12: A.extend(w2tr(sl + 3, sl + 3, VTR2))
        if EP and sl == 12 - EP: A(f"buffer_load_dword v{ACC+2}, v{VT}, s[12:15], s26 offen {SC}")
        A.extend(wdma(sl, 12 + sl))
    if EP:
        A(f"""
        s_waitcnt vmcnt({2*EP})
        v_cmp_ne_u32 vcc, s76, v{ACC+2}
        s_cbranch_vccz L_g2_go
        """)
    A.st("s5")
    A.label("L_g2_poll")
    if PG: A(f"s_sleep {PG}")
    A(f"""
    buffer_load_dword v{ACC+2}, v{VT}, s[12:15], s26 offen {SC}
    s_add_u32 s30, s30, 1
    s_waitcnt vmcnt(0)
    v_cmp_ne_u32 vcc, s76, v{ACC+2}
    s_cmp_gt_u32 s30, {SPIN}
    s_cbranch_scc1 L_g2_go
    s_cbranch_vccnz L_g2_poll
    """)
    A.label("L_g2_go")
    vm = VMQ()
    for sl in range(12 - EP, 12): vm.note(("w", 12 + sl), 2)
    A.st("s6")
    def hload(kp):
        sl = kp % HD
        vm.note(("h", kp), 2)
        return koff("s31", ORDER[kp]) + ["s_add_u32 s27, s31, s24", "s_add_u32 s31, s31, s25",
                                  f"buffer_load_dwordx4 v[{H+8*sl}:{H+8*sl+3}], v{VHO}, s[12:15], s27 offen {SCL}",
                                  f"buffer_load_dwordx4 v[{H+8*sl+4}:{H+8*sl+7}], v{VHO}, s[12:15], s31 offen {SCL}"]
    H0 = env("H0", 9)
    for kp in range(H0): A.extend(hload(kp))
    nh = [H0]
    def more(kp, n):
        for _ in range(n):
            if nh[0] < 28 and nh[0] <= kp - 1 + HD:
                A.extend(hload(nh[0])); nh[0] += 1
    if PRIO_G: A(f"s_setprio {env('PRIOG2', 0)}")
    inring = lambda k: ORDER[k] >= 12
    wset = lambda k: ((k % 2) if k < 24 else k - 24) if inring(k) else ORDER[k]
    slot_of = lambda k: (ORDER[k] - 12) % 12
    for kp in range(28 - TS):
        nx = kp + 1
        if TS and kp >= 20 and kp < 24: nx = kp + 4
        if TS and kp >= 24: nx = 99
        if inring(kp): A("s_waitcnt lgkmcnt(0)")
        A.extend(vm.wait(("h", kp)))
        if kp in (4, 9, 14, 19): A.st(f"k{kp}")
        b = W + 8 * wset(kp); sl = kp % HD
        mf = []
        for tb in range(2):
            for db in range(2):
                c = ACC + 32 * tb + 16 * db
                cin = "0" if kp == 0 else f"v[{c}:{c+15}]"
                mf.append(f"v_mfma_f32_32x32x16_bf16 v[{c}:{c+15}], v[{b+4*db}:{b+4*db+3}], v[{H+8*sl+4*tb}:{H+8*sl+4*tb+3}], {cin}")
        A(mf[0])
        if nx < 28 and inring(nx):
            A.extend(vm.wait(("w", ORDER[nx])))
            A.extend(w2tr(slot_of(nx), wset(nx), VTR2))
        A(mf[1])
        more(kp, 1)
        A(mf[2])
        more(kp, 1)
        if 12 <= ORDER[kp] < 16:
            A.extend(wdma(ORDER[kp] - 12, ORDER[kp] + 12)); vm.note(("w", ORDER[kp] + 12), 2)
        if kp == 20 and not EPE:
            A.extend(ep_loads()); vm.note("ep", 2)
        if kp == env("SIGK", 19):
            A(f"""
            s_lshl_b32 s28, s20, 2
            s_add_u32 s28, s28, {L_FLAG+48}
            v_mov_b32 v{VT}, s28
            v_mov_b32 v{W}, 1
            ds_write_b32 v{VT}, v{W}
            """)
        A(mf[3])
        if kp == 0: A.st("k0")
    pw = lambda tb, db: [f"ds_write_b128 v{VP+q}, v[{ACC+32*tb+16*db+4*q}:{ACC+32*tb+16*db+4*q+3}] offset:{tb*32768+db*128}" for q in range(4)]
    if TS:
        A("s_waitcnt lgkmcnt(0)")
        A.extend(vm.wait(("h", 27)))
        prev = []
        for tb in range(2):
            for db in range(2):
                c = ACC + 32 * tb + 16 * db
                for j, kp in enumerate(range(28 - TS, 28)):
                    b_ = W + 8 * wset(kp); sl = kp % HD
                    A(f"v_mfma_f32_32x32x16_bf16 v[{c}:{c+15}], v[{b_+4*db}:{b_+4*db+3}], v[{H+8*sl+4*tb}:{H+8*sl+4*tb+3}], v[{c}:{c+15}]")
                    if j >= 1 and prev: A.extend(prev[:2]); prev = prev[2:]
                A.extend(prev); prev = pw(tb, db)
        A.st("s7")
        A.extend(prev)
    else:
        A.st("s7")
        for tb in range(2):
            for db in range(2): A.extend(pw(tb, db))
    A("s_waitcnt vmcnt(0) lgkmcnt(0)")
    A("s_branch L_final")


def gen_conv(A):
    if PRIO_C: A(f"s_setprio {PRIO_C}")
    VTA, VF = 32, 36
    VXN, VBW, VOWN, VPAR = 37, 38, 39, 40
    T0 = 42
    dsk = P0 + 7
    ACC = 48; FB = [80, 112]; TB = [144, 208]
    XN = 196
    final_addr(A)
    A(f"""
    s_mov_b32 s21, s39
    s_lshr_b32 s35, s21, 1
    s_and_b32 s36, s21, 1
    s_mul_i32 s38, s35, {CH_SIZE}
    s_add_u32 s38, s38, {L_CH}
    s_lshl_b32 s27, s21, 13
    s_add_u32 s27, s27, {L_ST2}
    s_xor_b32 s32, s27, {ST2}
    v_and_b32 v{T0}, 15, v0
    v_lshrrev_b32 v{T0+1}, 4, v0
    v_and_b32 v{T0+2}, 1, v0
    v_mul_u32_u24 v{T0+2}, {OFF_O + 2 - OFF_E}, v{T0+2}
    s_lshl_b32 s31, s36, 8
    s_sub_u32 s31, s38, s31
    s_add_u32 s29, s31, {OFF_O + 2*2032 - 512 - 192}
    v_lshlrev_b32 v{T0+3}, 1, v{T0}
    v_sub_u32 v{VTA}, s29, v{T0+3}
    v_lshl_add_u32 v{VTA}, v{T0+1}, 4, v{VTA}
    v_sub_u32 v{VTA}, v{VTA}, v{T0+2}
    v_subrev_u32 v{VTA+1}, 1024, v{VTA}
    v_subrev_u32 v{VTA+2}, 2048, v{VTA}
    v_subrev_u32 v{VTA+3}, 3072, v{VTA}
    """)
    def freads(rr, fb): return [f"ds_read_b128 v[{fb+4*m}:{fb+4*m+3}], v{VF} offset:{512*m + 64*(3-rr)}" for m in range(8)]
    def treads(rr, tb):
        o = []
        for i in range(8):
            off = 128 * (1 - (i & 1)) + 16 * (3 - rr)
            o.append(f"ds_read2_b32 v[{tb+4*i}:{tb+4*i+1}], v{VTA+i//2} offset0:{off} offset1:{off+1}")
            o.append(f"ds_read2_b32 v[{tb+4*i+2}:{tb+4*i+3}], v{VTA+i//2} offset0:{off+2} offset1:{off+3}")
        return o
    A(f"""
    v_lshl_add_u32 v19, v0, 4, s38
    s_add_u32 s29, s31, {480 - 192}
    v_lshlrev_b32 v{VF}, 5, v{T0}
    v_lshl_add_u32 v{VF}, v{T0+1}, 4, v{VF}
    v_add_u32 v{VF}, s29, v{VF}
    v_lshlrev_b32 v{VXN}, 5, v{T0}
    v_lshl_add_u32 v{VXN}, v{T0+1}, 3, v{VXN}
    v_add_u32 v{VBW}, s27, v{VXN}
    s_lshl_b32 s28, s36, 11
    s_add_u32 s28, s28, s38
    v_add_u32 v{VXN}, s28, v{VXN}
    v_lshl_add_u32 v{VOWN}, v0, 4, s27
    v_lshl_add_u32 v{VPAR}, v0, 4, s32
    v_mov_b32 v13, 1
    s_lshl_b32 s29, s21, 2
    s_add_u32 s29, s29, {L_FLAG}
    v_mov_b32 v14, s29
    s_xor_b32 s29, s29, 4
    v_mov_b32 v15, s29
    v_lshlrev_b32 v18, 4, v0
    """)
    A(f"""
    L_cv_ex:
    ds_read_b32 v16, v15 offset:64
    s_waitcnt lgkmcnt(0)
    v_readfirstlane_b32 s28, v16
    s_cmp_eq_u32 s28, 1
    s_cbranch_scc0 L_cv_ex
    """)
    A.extend(treads(0, TB[0]))
    A("s_cmp_eq_u32 s37, 1")
    A("s_cbranch_scc1 L_cv_uok")
    if env("HT2", 0): A("s_waitcnt vmcnt(0)"); A.extend(ring_ready(20))
    u_spin(A, 20, 18)
    A.label("L_cv_uok")
    A(f"s_waitcnt vmcnt({8 if env('HT2', 0) else 0})")
    if not UDMA:
        for k in range(4): A(f"ds_write_b128 v19, v[{XL+4*k}:{XL+4*k+3}] offset:{512 + k*1024}")
    A.extend(freads(0, FB[0]))
    A.st("s4")
    if GPK == 1:
        A(f"""
        v_mov_b32 v17, {L_FLAG+32}
        L_cv_gd:
        ds_read_b128 v[20:23], v17
        s_waitcnt lgkmcnt(0)
        v_and_b32 v20, v20, v21
        v_and_b32 v22, v22, v23
        v_and_b32 v20, v20, v22
        s_nop 0
        v_readfirstlane_b32 s28, v20
        s_cmp_eq_u32 s28, 1
        s_cbranch_scc0 L_cv_gd
        """)
    A.st("s5")
    for rp in range(4):
        fb, tb = FB[rp % 2], TB[rp % 2]
        mm = []
        for i in range(8):
            for j in range(i, 8):
                cin = "0" if (rp == 0 and i == 0) else f"v[{ACC+4*j}:{ACC+4*j+3}]"
                mm.append(f"v_mfma_f32_16x16x32_bf16 v[{ACC+4*j}:{ACC+4*j+3}], v[{tb+4*i}:{tb+4*i+3}], v[{fb+4*(j-i)}:{fb+4*(j-i)+3}], {cin}")
        if rp == 1:
            if env("HT2", 0): A("s_waitcnt vmcnt(0)"); A.extend(ring_ready(20))
            if not EPE: A.extend(ep_loads())
        if HT and rp == env("HTP", 3):
            A(f"""
            s_lshl_b32 s28, s24, 2
            s_add_u32 s28, s28, s21
            s_mul_i32 s28, s28, {56*128}
            s_mul_i32 s29, s23, {8*112*1024}
            s_add_u32 s28, s28, s29
            s_add_u32 s28, s28, {WS_HF}
            v_min_u32 v{T0}, 55, v0
            v_lshlrev_b32 v{T0}, 7, v{T0}
            buffer_load_dword v20, v{T0}, s[12:15], s28 offen {SC}
            """)
        if rp == 0:
            o = []
            for j in range(8): o += [f"s_waitcnt lgkmcnt({7-j})", mm[j]]
            mm = o + interleave(mm[8:], freads(1, FB[1]) + treads(1, TB[1]), 0, 22)
        else:
            A("s_waitcnt lgkmcnt(0)")
            if rp < 3: mm = interleave(mm, freads(rp + 1, FB[(rp + 1) % 2]) + treads(rp + 1, TB[(rp + 1) % 2]), 0, 26)
            else: mm = interleave(mm, [f"ds_read_b64 v[{XN+2*a_}:{XN+2*a_+1}], v{VXN} offset:{512 + a_*512}" for a_ in range(4)], 0, 8)
        A.extend(mm)
    A.st("s6")
    A("s_cmp_eq_u32 s36, 1")
    A("s_cbranch_scc1 L_cv_x1")
    for a_ in range(4): A(f"ds_write_b128 v{VOWN}, v[{ACC+16+4*a_}:{ACC+16+4*a_+3}] offset:{4096 + a_*1024}")
    A("ds_write_b32 v14, v13")
    A("s_branch L_cv_out")
    A.label("L_cv_x1")
    A("s_nop 7")
    for a_ in range(4): A(f"ds_write_b128 v{VOWN}, v[{ACC+4*a_}:{ACC+4*a_+3}] offset:{4096 + a_*1024}")
    A("ds_write_b32 v14, v13")
    for k in range(16): A(f"v_mov_b32 v{ACC+k}, v{ACC+16+k}")
    A.label("L_cv_out")
    A(f"""
    """)
    A.extend(ya_addr(41, T0))
    A(f"""
    v_mov_b32 v{T0+2}, 0xfffffffe
    s_waitcnt lgkmcnt(5)
    """)
    t = 80; z = 96; YP = 112
    for k in range(8):
        A(f"v_lshlrev_b32 v{t+2*k}, 16, v{XN+k}")
        A(f"v_and_b32 v{t+2*k+1}, 0xffff0000, v{XN+k}")
    for k in range(16): A(f"v_fma_f32 v{ACC+k}, v{t+k}, v{dsk}, v{ACC+k}")
    A.label("L_cv_ps1")
    A(f"""
    ds_read_b32 v16, v15
    s_waitcnt lgkmcnt(0)
    v_readfirstlane_b32 s28, v16
    s_cmp_eq_u32 s28, 1
    s_cbranch_scc0 L_cv_ps1
    """)
    for a_ in range(4): A(f"ds_read_b128 v[{YP+4*a_}:{YP+4*a_+3}], v{VPAR} offset:{4096 + a_*1024}")
    for a_ in range(4):
        A("s_waitcnt lgkmcnt(3)")
        for k in range(4): A(f"v_add_f32 v{ACC+4*a_+k}, v{ACC+4*a_+k}, v{YP+4*a_+k}")
        for k in range(2): A(f"v_cvt_pk_bf16_f32 v{z+2*a_+k}, v{ACC+4*a_+2*k}, v{ACC+4*a_+2*k+1}")
        for k in range(2): A(f"v_min_u32 v{z+2*a_+k}, v{z+2*a_+k}, v{T0+2}")
        A(f"ds_write_b64 v{VBW}, v[{z+2*a_}:{z+2*a_+1}] offset:{a_*512}")
    for h in range(2): A(f"ds_read_b128 v[{t+4*h}:{t+4*h+3}], v{VOWN} offset:{h*1024}")
    for h in range(2):
        A(f"s_waitcnt lgkmcnt({1-h})")
        A(f"buffer_store_dwordx4 v[{t+4*h}:{t+4*h+3}], v41, s[12:15], s{30+h} offen {SC}")
    Y = 160
    A(f"""
    v_lshlrev_b32 v{T0}, 8, v1
    v_lshl_add_u32 v{T0}, v2, 4, v{T0}
    s_lshl_b32 s28, s79, 5
    s_add_u32 s28, s28, s78
    s_lshl_b32 s28, s28, 13
    s_lshl_b32 s29, s21, 11
    s_add_u32 s28, s28, s29
    s_add_u32 s28, s28, {WS_YA}
    v_lshlrev_b32 v{T0+1}, 8, v2
    v_lshl_add_u32 v{T0+1}, v2, 4, v{T0+1}
    v_lshl_add_u32 v{T0+1}, v1, 2, v{T0+1}
    v_add_u32 v{T0+1}, s27, v{T0+1}
    v_mov_b32 v{T0+3}, 0x05040100
    v_mov_b32 v{T0+4}, 0x07060302
    s_mov_b32 s30, 0
    """)
    A.st("s7")
    A(f"""
    v_mov_b32 v17, {L_FLAG+48}
    L_cv_w19:
    s_sleep 2
    ds_read_b128 v[20:23], v17
    s_waitcnt lgkmcnt(0)
    v_and_b32 v20, v20, v21
    v_and_b32 v22, v22, v23
    v_and_b32 v20, v20, v22
    s_nop 0
    v_readfirstlane_b32 s29, v20
    s_cmp_eq_u32 s29, 1
    s_cbranch_scc0 L_cv_w19
    L_cv_poll2:
    buffer_load_dwordx4 v[{Y}:{Y+3}], v{T0}, s[12:15], s28 offen {SC}
    buffer_load_dwordx4 v[{Y+4}:{Y+7}], v{T0}, s[12:15], s28 offen offset:128 {SC}
    s_waitcnt vmcnt(0)
    v_max_u32 v{Y+8}, v{Y}, v{Y+1}
    v_max3_u32 v{Y+8}, v{Y+8}, v{Y+2}, v{Y+3}
    v_max3_u32 v{Y+8}, v{Y+8}, v{Y+4}, v{Y+5}
    v_max3_u32 v{Y+8}, v{Y+8}, v{Y+6}, v{Y+7}
    v_cmp_eq_u32 vcc, -1, v{Y+8}
    s_cbranch_vccz L_cv_got
    s_sleep 4
    s_add_u32 s30, s30, 1
    s_cmp_lt_u32 s30, {SPIN}
    s_cbranch_scc1 L_cv_poll2
    """)
    A.label("L_cv_got")
    A.st("got")
    for k in range(4):
        A(f"v_perm_b32 v{Y+8+2*k}, v{Y+4+k}, v{Y+k}, v{T0+3}")
        A(f"v_perm_b32 v{Y+9+2*k}, v{Y+4+k}, v{Y+k}, v{T0+4}")
    for i in range(8): A(f"ds_write_b32 v{T0+1}, v{Y+8+i} offset:{i*32}")
    A("s_waitcnt lgkmcnt(0)")


def gen_final(A):
    P = 32
    A(f"""
    v_lshlrev_b32 v13, 1, v2
    v_xor_b32 v13, v13, v1
    v_lshlrev_b32 v13, 4, v13
    v_lshl_add_u32 v13, v1, 8, v13
    s_and_b32 s28, s20, 3
    s_lshl_b32 s28, s28, 11
    s_lshr_b32 s29, s20, 2
    s_lshl_b32 s29, s29, 15
    s_add_u32 s28, s28, s29
    v_add_u32 v13, s28, v13
    v_xor_b32 v14, 16, v13
    v_lshrrev_b32 v15, 1, v2
    v_lshlrev_b32 v15, 13, v15
    v_lshl_add_u32 v15, v1, 5, v15
    v_and_b32 v16, 1, v2
    v_lshl_add_u32 v15, v16, 4, v15
    s_mul_i32 s28, s20, 272
    s_add_u32 s28, s28, {L_ST2}
    v_add_u32 v15, s28, v15
    """)
    srd(A, 8, "s52", "s53", 2 << 20)
    X, Yv, B = 64, 72, 80
    def unpack(d, s_):
        for k in range(4):
            A(f"v_lshlrev_b32 v{d+2*k}, 16, v{s_+k}")
            A(f"v_and_b32 v{d+2*k+1}, 0xffff0000, v{s_+k}")
    def pack(d, s_):
        for k in range(4): A(f"v_cvt_pk_bf16_f32 v{d+k}, v{s_+2*k}, v{s_+2*k+1}")
    unpack(X, VX); unpack(B, VB2)
    if not FR:
        for k in range(8): A(f"v_add_f32 v{X+k}, v{X+k}, v{B+k}")
    A("s_barrier")
    A.st("fin")
    A(f"ds_read_b128 v[16:19], v15")
    for w in range(4):
        A(f"ds_read_b128 v[{P+8*w}:{P+8*w+3}], v13 offset:{w*8192}")
        A(f"ds_read_b128 v[{P+8*w+4}:{P+8*w+7}], v14 offset:{w*8192}")
    A("s_waitcnt lgkmcnt(8)")
    unpack(Yv, 16)
    for k in range(8): A(f"v_add_f32 v{X+k}, v{X+k}, v{Yv+k}")
    if FR: pack(20, X); unpack(X, 20)
    A("s_waitcnt lgkmcnt(4)")
    for k in range(8): A(f"v_add_f32 v{P+k}, v{P+k}, v{P+8+k}")
    A("s_waitcnt lgkmcnt(0)")
    for k in range(8): A(f"v_add_f32 v{P+16+k}, v{P+16+k}, v{P+24+k}")
    for k in range(8): A(f"v_add_f32 v{P+k}, v{P+k}, v{P+16+k}")
    if FR:
        pack(24, P); unpack(P, 24)
        for k in range(8): A(f"v_add_f32 v{P+k}, v{P+k}, v{B+k}")
        pack(24, P); unpack(P, 24)
    for k in range(8): A(f"v_add_f32 v{P+k}, v{P+k}, v{X+k}")
    pack(28, P)
    A(f"buffer_store_dwordx4 v[28:31], v{VOO}, s[8:11], s33 offen {os.environ.get('SCO', '')}")
    if STAMPS: A("s_waitcnt vmcnt(0)")
    A.stamp_flush(0)
    A("s_endpgm")


def gen():
    A = Asm()
    A.stamp(0, True); A.stamp(1)
    for k in range(2, 9): A.stamp(k)
    A(f"""
    s_cmp_ge_u32 s2, 256
    s_cbranch_scc1 L_exit
    s_load_dwordx2 s[40:41], s[0:1], {KA['u']}
    s_load_dwordx8 s[44:51], s[0:1], {KA['w1']}
    s_load_dwordx4 s[52:55], s[0:1], {KA['out']}
    s_load_dwordx2 s[42:43], s[0:1], {KA['ws']}
    v_lshrrev_b32 v1, 6, v0
    v_and_b32 v0, 63, v0
    s_and_b32 s23, s2, 7
    s_lshr_b32 s24, s2, 3
    v_readfirstlane_b32 s20, v1
    s_and_b32 s25, s24, 3
    s_lshr_b32 s77, s24, 2
    s_and_b32 s79, s77, 3
    s_cmp_eq_u32 s79, 3
    s_cselect_b32 s79, {4 if env("SW", 1) else 0}, 0
    s_xor_b32 s79, s79, s77
    s_lshl_b32 s78, s23, 2
    s_add_u32 s78, s78, s25
    s_mul_i32 s74, s79, {3584 if ROT & 1 else 0}
    s_and_b32 s74, s74, 0xfffffc00
    s_mul_i32 s75, s25, {7168 if ROT & 2 else 0}
    s_add_u32 s74, s74, s75
    s_sub_u32 s75, s74, {28*1024}
    s_min_u32 s74, s74, s75
    s_and_b32 s39, s20, 3
    s_cmp_eq_u32 s77, 7
    s_cbranch_scc1 L_ln
    """)
    if LOC:
        A("""
        s_and_b32 s21, s24, 1
        s_lshl_b32 s22, s23, 1
        s_add_u32 s21, s21, s22
        s_lshr_b32 s22, s24, 1
        """)
    else:
        A("""
        s_lshr_b32 s21, s23, 1
        s_lshl_b32 s21, s21, 2
        s_add_u32 s21, s21, s25
        s_and_b32 s22, s23, 1
        s_mul_i32 s22, s22, 7
        s_add_u32 s22, s22, s77
        """)
    gen_gemm1(A)
    A.label("L_ln")
    A("s_nop 0 ; RESETSB")
    A("s_mov_b32 s21, s78")
    gen_ln(A)
    A.label("L_gemm2")
    A("s_nop 1 ; RESETSB")
    gen_gemm2(A)
    A.label("L_conv")
    A("s_nop 1 ; RESETSB")
    gen_conv(A)
    A.label("L_final")
    A("s_nop 7")
    gen_final(A)
    A.label("L_exit")
    A("s_endpgm")
    lines = fix_hazards(A.lines, verbose=True)
    check_waits(lines, "s")
    head = open("parallel_sum__ssm_conv_s4__dense_activation_gelu__prompt.s.ref").read().split("; Override launch")[0]
    head += f"; @launch grid=(256,1,1) block=(512,1,1) lds={LDS_TOTAL}\n.amdgcn_target \"amdgcn-amd-amdhsa--gfx950\"\n"
    return head + kernel_section(KNAME, lines, 256, 102, 256)

if __name__ == "__main__":
    out = sys.argv[1] if len(sys.argv) > 1 else "cur8.s"
    open(out, "w").write(gen())
    print("wrote", out)
```

```python
from asmlib import *
import struct, math, os, sys

def f2u(x): return struct.unpack("<I", struct.pack("<f", x))[0]
def env(n, d): return int(os.environ.get(n, str(d)))

KNAME = "parallel_sum__ssm_conv_s4__dense_activation_gelu__prompt_kernel"
KA = dict(u=0, A_re=8, A_im=16, B_re=24, B_im=32, C_re=40, C_im=48, log_dt=56, Dskip=64, Bx=72, w1=80, b1=88, w2=96, b2=104,
          out=112, dbg=120, ws=128)
WS_FLL = 32768
WS_EPOCH = 49152
WS_DUMMY = 53248
WS_STAT = 65536
WS_FLH = 131072
WS_FLY = 262144
WS_HF = 1 << 20
WS_XNT = 8 << 20
WS_YA = 12 << 20
WS_USED = 14 << 20

LOG2E = 1.4426950408889634
GC1 = -2.0 * LOG2E * 0.7978845608028654
GC2 = GC1 * 0.044715

NS, STAGE = 4, 32768
RSL = 12
RING = RSL * 2048
L_KST = 98304; KST = 8704
L_ST2 = 98304; ST2 = 8192
L_CH = 131072; CH_SIZE = 13056
OFF_E, OFF_O = 4608, 8768
L_FLAG = L_CH + 2 * CH_SIZE
L_CS = L_FLAG + 512
LDS_TOTAL = 163840
L_VS = 98304; L_US = 98304

OPT_PF = env("PF", 0)
PRE = env("PRE", 3)
PRIO_C = env("PRIOC", 1)
PRIO_G = env("PRIOG", 2)
PRIO_E = env("PRIOE", 0)
ROT = env("ROT", 4)
BARP = env("BARP", 2)
STATG = env("STATG", 21)
SC = os.environ.get("SC", "sc1")
PFG = [int(x) for x in os.environ.get("PFG", "").split(",") if x]
HD = 9
FSL = env('FSL', 2)
KR = env('KR', 1)
MIX = env('MIX', 0)
XS = env('XS', 65536 + 2176)
PS = env('PS', 8)
PG = env('PG', 0)
LW1 = env('LW1', 0)
UDMA = env('UDMA', 1)
EPE = env('EPE', 1)
FS = env('FS', 2)
HP = env('HP', 1)
NB8 = env('NB8', 1)
EP = env('EP', 2)
TS = env('TS', 4)
FR = env('FR', 0)
NPK0 = env('NPK0', 3)
NC0 = env('NC0', 3)
WSOFF = env('WSOFF', 0) << 20
SCH = os.environ.get('SCH', SC)
LOC = env('LOC', 0)
GPK = env('GPK', 0)
ULN = env('ULN', 3)
HT = env('HT', 0)
SCL = os.environ.get('SCL', SC)
SPIN = 0x40000

DK, DP, EX, P0 = 224, 128, 160, 244
BF, AF, KG_G, KG_E1, KG_L, KG_V, KG_PK, KG_VW, KG_VRD = 160, 192, 108, 122, 224, 124, 132, 136, 137
L_KS2 = 131072; KS2 = 4352
XL = 180
VDUM, LNF = 252, 253
VX, VB2, VOO = 4, 8, 12
VW2 = 23
W2R, HR, ACC2 = 160, 88, 24
VTL = 24

def srd(A, d, lo, hi, size):
    A(f"s_mov_b32 s{d}, {lo}\ns_mov_b32 s{d+1}, {hi}\ns_mov_b32 s{d+2}, {size}\ns_mov_b32 s{d+3}, 0x00020000")
def round_bf16(A, r):
    A(f"v_cvt_pk_bf16_f32 v{r}, v{r}, v{r}")
    A(f"v_and_b32 v{r}, 0xffff0000, v{r}")
def zipm(*lists):
    o = []
    for k in range(max(len(l) for l in lists)):
        for l in lists:
            if k < len(l): o.append(l[k])
    return o
def mask(lo, hi=None):
    hi = lo if hi is None else hi
    return [f"s_mov_b32 s28, {lo}", f"s_mov_b32 s29, {hi}"]

class VMQ:
    def __init__(self): self.q = []
    def note(self, tag, n=1): self.q.extend([tag] * n)
    def wait(self, *tags):
        idx = max((k for k, t in enumerate(self.q) if t in tags), default=-1)
        if idx < 0: return []
        n = len(self.q) - 1 - idx
        del self.q[:idx + 1]
        return [f"s_waitcnt vmcnt({n})"]
    def younger(self): return len(self.q)

ORDER = [0, 1] + list(range(12, 24)) + list(range(2, 12)) + list(range(24, 28))

def koff(dst, lab, base="s74"):
    return [f"s_add_u32 {dst}, {base}, {lab*1024}", f"s_sub_u32 s75, {dst}, {28*1024}", f"s_min_u32 {dst}, {dst}, s75"]

def slot_addr(sl): return (sl >> 2) * 32768 + (sl & 3) * 2048

def w2_setup(A, vt):
    srd(A, 16, "s48", "s49", 1792 * 1024)
    A(f"""
    v_lshrrev_b32 v{vt}, 2, v0
    v_and_b32 v{vt}, 4, v{vt}
    v_and_b32 v{vt+1}, 7, v0
    v_xor_b32 v{vt}, v{vt}, v{vt+1}
    v_lshrrev_b32 v{vt+1}, 3, v0
    v_lshlrev_b32 v{VW2}, 10, v{vt+1}
    v_lshl_add_u32 v{VW2}, v{vt}, 4, v{VW2}
    s_mul_i32 s72, s39, {448*1024}
    s_lshl_b32 s75, s79, 7
    s_add_u32 s72, s72, s75
    s_lshl_b32 s73, s39, 13
    v_lshrrev_b32 v{vt+1}, 5, v0
    v_bfe_u32 v{vt}, v0, 2, 2
    v_lshl_add_u32 v{VTL}, v{vt+1}, 2, v{vt}
    v_lshlrev_b32 v{VTL}, 7, v{VTL}
    v_bfe_u32 v{vt}, v0, 4, 1
    v_lshl_add_u32 v{VTL}, v{vt}, 5, v{VTL}
    v_and_b32 v{vt}, 3, v0
    v_lshl_add_u32 v{VTL}, v{vt}, 3, v{VTL}
    v_bfe_u32 v{vt}, v0, 3, 1
    v_lshl_add_u32 v{VTL}, v{vt}, 6, v{VTL}
    v_add_u32 v{VTL}, s73, v{VTL}
    v_xor_b32 v{VTL+1}, 64, v{VTL}
    v_add_u32 v{VTL+2}, 0x10000, v{VTL}
    v_add_u32 v{VTL+3}, 0x10000, v{VTL+1}
    """)
def wdma(slot, lab):
    a_ = slot_addr(slot)
    return koff("s31", lab) + [f"s_add_u32 m0, s73, {a_}", "s_lshl4_add_u32 s31, s31, s72",
                               f"buffer_load_dwordx4 v{VW2}, s[16:19], s31 offen lds",
                               f"s_add_u32 m0, s73, {a_+1024}", "s_add_u32 s31, s31, 8192",
                               f"buffer_load_dwordx4 v{VW2}, s[16:19], s31 offen lds"]
def w2tr(slot, ws_, vtl=VTL):
    b = W2R + 8 * ws_; a_ = slot_addr(slot); hi = a_ >> 16; a_ &= 0xffff
    return [f"ds_read_b64_tr_b16 v[{b+4*db+2*sec}:{b+4*db+2*sec+1}], v{vtl+2*hi+db} offset:{a_+sec*1024}" for db in range(2) for sec in range(2)]

def param_loads(A, vt):
    A(f"""
    s_lshr_b32 s28, s39, 1
    s_lshl_b32 s30, s2, 1
    s_add_u32 s30, s30, s28
    v_lshlrev_b32 v{vt}, 1, v0
    v_mov_b32 v{vt+1}, 0
    s_lshl_b32 s29, s30, 8
    s_and_b32 s28, s20, 1
    s_lshl_b32 s28, s28, 7
    s_add_u32 s29, s29, s28
    s_lshl_b32 s30, s30, 1
    s_mov_b32 s18, 1024
    s_mov_b32 s19, 0x00020000
    """)
    for k in range(8): A(f"v_mov_b32 v{P0+k}, 0")
    A("s_waitcnt lgkmcnt(0)")
    for k in (6, 7, 0, 1, 2, 3, 4, 5):
        if k == 0: A("s_mov_b32 s18, 131072")
        A(f"s_mov_b32 s16, s{56+2*k}\ns_mov_b32 s17, s{57+2*k}")
        if k < 6: A(f"buffer_load_short_d16_hi v{P0+k}, v{vt}, s[16:19], s29 offen")
        else: A(f"buffer_load_short_d16_hi v{P0+k}, v{vt+1}, s[16:19], s30 offen")

def lnflag_load(vt):
    return ["s_lshl_b32 s29, s79, 6", "s_lshl_b32 s28, s39, 4", "s_add_u32 s29, s29, s28", "s_lshr_b32 s28, s78, 4", "s_lshl_b32 s28, s28, 9",
            "s_add_u32 s29, s29, s28", f"s_lshl_b32 s29, s29, {FS}", f"s_add_u32 s29, s29, {WS_FLY}",
            f"v_lshlrev_b32 v{vt}, {FSL}, v0", f"v_add_u32 v{vt}, {WS_FLL}, v{vt}",
            f"v_and_b32 v{vt+1}, 15, v0", f"v_lshl_add_u32 v{vt+1}, v{vt+1}, {FS}, s29", "s_mov_b32 s28, 0", "s_mov_b32 s29, -1",
            f"v_cndmask_b32 v{vt}, v{vt}, v{vt+1}, s[28:29]",
            f"buffer_load_dword v{LNF}, v{vt}, s[12:15], 0 offen {SC}"]

def u_issue(A, vl16):
    A(f"""
    s_lshr_b32 s28, s39, 1
    s_lshl_b32 s29, s2, 1
    s_add_u32 s29, s29, s28
    s_lshl_b32 s29, s29, {7 if XS else 12}
    s_add_u32 s29, s29, {WS_XNT}
    """)
    if UDMA:
        A(f"s_mul_i32 s28, s28, {CH_SIZE}")
        A(f"s_add_u32 m0, s28, {L_CH + 512}")
        if XS:
            A(f"""
            v_lshrrev_b32 v{XL}, 3, v0
            v_and_b32 v{XL+1}, 7, v0
            v_mul_u32_u24 v{XL}, {XS}, v{XL}
            v_lshl_add_u32 v{XL}, v{XL+1}, 4, v{XL}
            """)
            vl16 = XL
        for k in range(4):
            if XS and k: A(f"s_add_u32 s29, s29, {8*XS - 1024}")
            A(f"buffer_load_dwordx4 v{vl16}, s[12:15], s29 offen offset:{k*1024} {SC} lds")
    else:
        for k in range(4): A(f"buffer_load_dwordx4 v[{XL+4*k}:{XL+4*k+3}], v{vl16}, s[12:15], s29 offen offset:{k*1024} {SC}")

def u_try(A, vl16):
    A(f"""
    v_cmp_ne_u32 vcc, s76, v{LNF}
    s_mov_b32 s37, 0
    s_cbranch_vccnz L_ut_no
    s_mov_b32 s37, 1
    """)
    u_issue(A, vl16)
    A.label("L_ut_no")

def u_spin(A, vt, vl16, tag=''):
    A("s_mov_b32 s30, 0")
    A.label(f"L_us_poll{tag}")
    A(f"s_sleep {PS}")
    A.extend(lnflag_load(vt))
    A(f"""
    s_add_u32 s30, s30, 1
    s_waitcnt vmcnt(0)
    v_cmp_ne_u32 vcc, s76, v{LNF}
    s_cmp_gt_u32 s30, {SPIN}
    s_cbranch_scc1 L_us_ok{tag}
    s_cbranch_vccnz L_us_poll{tag}
    """)
    A.label(f"L_us_ok{tag}")
    u_issue(A, vl16)
    A("s_waitcnt vmcnt(0)")

def ya_addr(vd, vt):
    return [f"v_lshrrev_b32 v{vd}, 3, v0", f"v_and_b32 v{vt}, 7, v0", f"v_lshlrev_b32 v{vd}, 13, v{vd}", f"v_lshl_add_u32 v{vd}, v{vt}, 4, v{vd}",
            "s_lshr_b32 s28, s39, 1", "s_lshl_b32 s31, s2, 1", "s_add_u32 s31, s31, s28",
            "s_lshr_b32 s29, s31, 6", "s_lshl_b32 s29, s29, 18", "s_and_b32 s28, s31, 63", "s_lshl_b32 s28, s28, 7", "s_add_u32 s29, s29, s28",
            f"s_add_u32 s29, s29, {WS_YA}", "s_and_b32 s30, s39, 1", "s_lshl_b32 s30, s30, 17", "s_add_u32 s30, s30, s29", "s_add_u32 s31, s30, 65536"]
def ya_prefill(vd, vt, vm4):
    return ya_addr(vd, vt) + [f"v_mov_b32 v{vm4+k}, -1" for k in range(4)] + \
           [f"buffer_store_dwordx4 v[{vm4}:{vm4+3}], v{vd}, s[12:15], s{30+h} offen {SC}" for h in range(2)]

def publish_flag(A, soff, vt, tag, wave, both=False):
    A(f"""
    s_cmp_lg_u32 s20, {wave}
    s_cbranch_scc1 L_pub_skip{tag}
    v_mov_b32 v{vt}, 0
    v_mov_b32 v{vt+1}, s76
    s_mov_b64 exec, 1
    buffer_store_dword v{vt+1}, v{vt}, s[12:15], {soff} offen {SC}
    """)
    if both:
        A(f"""
        s_lshl_b32 s28, s2, 7
        s_add_u32 s28, s28, {WS_FLW}
        buffer_store_dword v{vt+1}, v{vt}, s[12:15], s28 offen {SC}
        """)
    A(f"""
    s_mov_b64 exec, -1
    L_pub_skip{tag}:
    """)
def mktag(A):
    A("s_mul_i32 s76, s76, 0x9E3779B1")
    A("s_add_u32 s76, s76, 0x7F4A7C15")
def arrive(A, tag):
    A(f"""
    s_cmp_lg_u32 s20, 3
    s_cbranch_scc1 L_arr{tag}
    s_atomic_add s77, s[54:55], 0 glc
    L_arr{tag}:
    """)

def coop_prefetch(A, vt):
    A(f"""
    s_lshl_b32 s28, s24, 2
    s_add_u32 s28, s28, s39
    s_lshl_b32 s30, s28, 6
    v_add_u32 v{vt}, s30, v0
    v_mul_u32_u24 v{vt+1}, 0x4925, v{vt}
    v_lshrrev_b32 v{vt+1}, 18, v{vt+1}
    v_mul_u32_u24 v{vt+2}, 14, v{vt+1}
    v_sub_u32 v{vt}, v{vt}, v{vt+2}
    v_lshlrev_b32 v{vt}, 7, v{vt}
    v_mul_u32_u24 v{vt+1}, 3584, v{vt+1}
    v_add_u32 v{vt}, v{vt}, v{vt+1}
    s_and_b32 s29, s23, 1
    s_mul_i32 s29, s29, 1792
    buffer_load_dword v{VDUM}, v{vt}, s[8:11], s29 offen
    s_lshr_b32 s29, s23, 1
    s_lshl_b32 s29, s29, 19
    s_lshl_b32 s30, s28, 13
    s_add_u32 s29, s29, s30
    v_lshlrev_b32 v{vt+2}, 7, v0
    """)
    if env("MP0", 1):
        A(f"""
        s_mul_i32 s31, s23, {28*8192}
        s_add_u32 s31, s31, s30
        s_sub_u32 s31, s31, {64*8192}
        s_cmp_lt_u32 s28, 92
        s_cselect_b32 s31, s31, 0x400000
        s_cmp_lt_u32 s28, 64
        s_cselect_b32 s29, s29, s31
        s_cselect_b32 s16, s40, s48
        s_cselect_b32 s17, s41, s49
        s_cselect_b32 s18, 0x200000, {1792*1024}
        s_mov_b32 s19, 0x00020000
        buffer_load_dword v{VDUM}, v{vt+2}, s[16:19], s29 offen
        """.replace("s_cselect_b32 s18, 0x200000, 1835008", "s_mov_b32 s18, 1835008\n        s_cselect_b32 s18, 0x200000, s18"))
    else:
        A(f"""
        s_cmp_lt_u32 s28, 64
        s_cselect_b32 s29, s29, 0x400000
        buffer_load_dword v{VDUM}, v{vt+2}, s[4:7], s29 offen
        """)
def coop_prefetch2(A, vt):
    srd(A, 16, "s48", "s49", 1792 * 1024)
    A(f"""
    s_lshl_b32 s28, s24, 2
    s_add_u32 s28, s28, s39
    s_mul_i32 s30, s28, 40
    v_add_u32 v{vt}, s30, v0
    v_mul_u32_u24 v{vt+1}, 0x4925, v{vt}
    v_lshrrev_b32 v{vt+1}, 18, v{vt+1}
    v_mul_u32_u24 v{vt+2}, 14, v{vt+1}
    v_sub_u32 v{vt}, v{vt}, v{vt+2}
    v_lshlrev_b32 v{vt}, 7, v{vt}
    v_mul_u32_u24 v{vt+1}, 3584, v{vt+1}
    v_add_u32 v{vt}, v{vt}, v{vt+1}
    s_mul_i32 s30, s28, 23
    v_add_u32 v{vt+1}, s30, v0
    v_min_u32 v{vt+1}, 2559, v{vt+1}
    v_mul_u32_u24 v{vt+2}, 13108, v{vt+1}
    v_lshrrev_b32 v{vt+2}, 16, v{vt+2}
    v_mul_u32_u24 v{vt+3}, 3, v{vt+2}
    v_add_u32 v{vt+1}, v{vt+1}, v{vt+3}
    v_lshlrev_b32 v{vt+1}, 7, v{vt+1}
    v_lshlrev_b32 v{vt+2}, 7, v0
    s_and_b32 s29, s23, 1
    s_mul_i32 s29, s29, 1792
    s_add_u32 s29, s29, {192*3584}
    s_mov_b32 exec_hi, {0 if (LW1 or not env("WT", 1)) else 255}
    s_mov_b32 exec_lo, {1 if (LW1 or not env("WT", 1)) else -1}
    buffer_load_dword v{VDUM}, v{vt}, s[8:11], s29 offen
    s_lshr_b32 s29, s23, 1
    s_lshl_b32 s29, s29, 19
    s_add_u32 s29, s29, 384
    s_mov_b64 exec, {"0x7fffff" if env("XT", 1) else "1"}
    buffer_load_dword v{VDUM}, v{vt+1}, s[4:7], s29 offen
    s_lshl_b32 s28, s2, 2
    s_add_u32 s28, s28, s39
    s_lshl_b32 s28, s28, 11
    s_mov_b64 exec, {os.environ.get("W2M", "0xffff")}
    buffer_load_dword v{VDUM}, v{vt+2}, s[16:19], s28 offen
    s_mov_b64 exec, -1
    """)
def w2_prefetch(vt, piece):
    return ["s_lshl_b32 s28, s24, 2", "s_add_u32 s28, s28, s39", "s_lshl_b32 s28, s28, 14", f"s_add_u32 s28, s28, {piece*8192}",
            f"v_lshlrev_b32 v{vt}, 7, v0", f"buffer_load_dword v{VDUM}, v{vt}, s[16:19], s28 offen"]

def cmul(d, x, y, pk=True):
    P = lambda r: f"v[{r}:{r+1}]"
    assert d != x and d != y
    if pk:
        return [f"v_pk_mul_f32 {P(d)}, {P(x)}, {P(y)} op_sel:[0,0] op_sel_hi:[0,1]",
                f"v_pk_fma_f32 {P(d)}, {P(x)}, {P(y)}, {P(d)} op_sel:[1,1,0] op_sel_hi:[1,0,1] neg_lo:[0,1,0]"]
    return [f"v_mul_f32 v{d}, v{x}, v{y}", f"v_mul_f32 v{d+1}, v{x}, v{y+1}",
            f"v_fma_f32 v{d}, -v{x+1}, v{y+1}, v{d}", f"v_fma_f32 v{d+1}, v{x+1}, v{y}, v{d+1}"]

def kg_common(A, base, T0, Z, WA):
    ar, ai, br, bi, cr, ci, ld, dsk = range(P0, P0 + 8)
    u_ = f2u(LOG2E) & 0xFFFFFF00
    lh = struct.unpack("<f", struct.pack("<I", u_))[0]; ll = LOG2E - lh
    A(f"""
    v_mul_f32 v{T0}, {hex(f2u(lh))}, v{ld}
    v_mul_f32 v{T0+1}, {hex(f2u(ll * math.log(2)))}, v{ld}
    v_exp_f32 v{T0}, v{T0}
    s_nop 0
    v_fma_f32 v{T0}, v{T0}, v{T0+1}, v{T0}
    """)
    round_bf16(A, T0)
    A(f"""
    v_mul_f32 v{Z}, v{T0}, v{ar}
    v_mul_f32 v{Z+1}, v{T0}, v{ai}
    v_mul_f32 v{br}, v{T0}, v{br}
    v_mul_f32 v{bi}, v{T0}, v{bi}
    v_mul_f32 v{Z}, {hex(f2u(LOG2E))}, v{Z}
    v_mul_f32 v{Z+1}, 0.15915494, v{Z+1}
    """)
def kg_waddr(A, base, WA):
    A(f"s_lshl_b32 s28, s39, 13\ns_add_u32 s28, s28, {base}\nv_lshl_add_u32 v{WA}, v0, 2, s28")
    for k in range(1, 16): A(f"v_xor_b32 v{WA+k}, {16*k}, v{WA}")
def kg_raddr(base, d, t):
    o = ["s_lshl_b32 s28, s39, 13", f"s_add_u32 s28, s28, {base}", f"v_and_b32 v{t}, 15, v0", f"v_lshrrev_b32 v{t+1}, 5, v0", f"v_xor_b32 v{t}, v{t}, v{t+1}",
         f"v_and_b32 v{t+1}, 31, v0", f"v_lshlrev_b32 v{t+1}, 8, v{t+1}", f"v_lshl_add_u32 v{d}, v{t}, 4, v{t+1}", f"v_add_u32 v{d}, s28, v{d}"]
    return o + [f"v_xor_b32 v{d+k}, {32*k}, v{d}" for k in range(1, 8)]
def cexp(d, x, t, Z):
    xs = {1: None, 8: hex(f2u(8.0)), 256: hex(f2u(256.0))}[x]
    o = []
    if xs is None: o += [f"v_exp_f32 v{t}, v{Z}", f"v_fract_f32 v{t+1}, v{Z+1}"]
    else: o += [f"v_mul_f32 v{t}, {xs}, v{Z}", f"v_mul_f32 v{t+1}, {xs}, v{Z+1}", f"v_exp_f32 v{t}, v{t}", f"v_fract_f32 v{t+1}, v{t+1}"]
    o += [f"v_cos_f32 v{d}, v{t+1}", f"v_sin_f32 v{d+1}, v{t+1}", f"v_mul_f32 v{d}, v{d}, v{t}", f"v_mul_f32 v{d+1}, v{d+1}, v{t}"]
    return o
KWA = 100
KRA = 116

def gen_kgen_v(A):
    T0, Z, E8, E16, Va, Vb, PKT = 34, 144, 44, 46, 80, 84, 88
    kg_common(A, L_VS, T0, Z, KWA)
    A.extend(cexp(E8, 8, T0, Z))
    A.extend(cmul(E16, E8, E8))
    npk = [0]
    def emit(src, row):
        t = PKT + (npk[0] % 8); npk[0] += 1
        return [f"v_cvt_pk_bf16_f32 v{t}, v{src}, v{src+1}", f"ds_write_b32 v{KWA + (row & 15)}, v{t} offset:{row*256}"]
    A(f"v_mov_b32 v{PKT+7}, 0x00003f80")
    A(f"ds_write_b32 v{KWA}, v{PKT+7}")
    A.extend(emit(E8, 1)); A.extend(emit(E16, 2))
    ev, od = E16, E8
    for j in range(3, 32, 2):
        d1 = Va + 2 * (((j - 3) // 2) % 2)
        d2 = Vb + 2 * (((j - 3) // 2) % 2)
        l1 = cmul(d1, od, E16) + emit(d1, j)
        l2 = (cmul(d2, ev, E16) + emit(d2, j + 1)) if j + 1 < 32 else []
        A.extend(zipm(l1, l2))
        od, ev = d1, d2
    for st in range(8): A(f"ds_read_b128 v[{BF+4*st}:{BF+4*st+3}], v{KRA+st}")

UPK = 192
def kgen_u_lists(rebase):
    T0, Z, E1, G, Lr, Va = 34, 144, 42, 44, 58, 76
    ar, ai, br, bi, cr, ci, ld, dsk = range(P0, P0 + 8)
    cm = lambda d, x, y: cmul(d, x, y, False)
    V = []; Wr = []
    if rebase: V += [f"v_subrev_u32 v{KWA+k}, {rebase}, v{KWA+k}" for k in range(24)]
    V += zipm(cexp(E1, 1, T0 + 2, Z), cexp(G, 256, T0 + 4, Z), cm(Lr, cr, br))
    npk = [0]
    def emit(src, rows):
        t = UPK + npk[0]; npk[0] += 1
        Wr.extend(f"ds_write_b32 v{KWA + (row & 15)}, v{t} offset:{row*256}" for row in rows)
        return [f"v_cvt_pk_bf16_f32 v{t}, v{src}, -v{src+1}"]
    urow = lambda hh, r: 8 * (r >> 2) + 4 * hh + (r & 3)
    lch = emit(Lr, [urow(0, 0)])
    for a_ in range(1, 9): lch += cm(Lr + 2 * a_, Lr + 2 * (a_ - 1), E1) + emit(Lr + 2 * a_, [urow(0, a_)])
    gch = []
    for k in range(2, 8): gch += cm(G + 2 * (k - 1), G + 2 * (k - 2), G)
    V += zipm(lch, gch)
    jobs = [(0, 1, [urow(1, 0), urow(1, 1)]), (2, 1, [urow(1, 2)]), (4, 1, [urow(1, 3), urow(1, 4), urow(1, 5)]), (6, 1, [urow(1, 6)]),
            (8, 1, [urow(1, 7), urow(1, 8)]),
            (0, 2, [urow(0, 9)]), (4, 2, [urow(0, 10)]), (8, 2, [urow(0, 11)]),
            (0, 3, [urow(1, 9)]), (4, 3, [urow(1, 10)]), (8, 3, [urow(1, 11)]),
            (0, 4, [urow(0, 12)]), (8, 4, [urow(0, 13)]), (0, 5, [urow(0, 14)]), (8, 5, [urow(0, 15)]),
            (0, 6, [urow(1, 12)]), (8, 6, [urow(1, 13)]), (0, 7, [urow(1, 14)]), (8, 7, [urow(1, 15)])]
    for k in range(0, len(jobs), 2):
        ls = []
        for q_, (a_, gk, rows) in enumerate(jobs[k:k + 2]):
            d = Va + 4 * q_ + 2 * ((k // 2) % 2)
            ls.append(cm(d, Lr + 2 * a_, G + 2 * (gk - 1)) + emit(d, rows))
        V += zipm(*ls)
    assert npk[0] <= 32
    return V, Wr

def kg_atoms_m():
    at = [[f"ds_read_b128 v[{AF+4*k}:{AF+4*k+3}], v{KRA+k} offset:{L_US - L_VS}", ("tag", ("af", k))] for k in range(8)]
    mm = []
    for st in range(8):
        cin = "0" if st == 0 else f"v[{DK}:{DK+15}]"
        mm.append([("wait", ("af", st)), f"v_mfma_f32_32x32x16_bf16 v[{DK}:{DK+15}], v[{AF+4*st}:{AF+4*st+3}], v[{BF+4*st}:{BF+4*st+3}], {cin}"])
    return at, mm

def kg_atoms_x1():
    T0 = P0
    at = [[f"s_lshr_b32 s30, s39, 1", f"s_mul_i32 s30, s30, {CH_SIZE}", f"s_add_u32 s38, s30, {L_CH}", "s_lshl_b32 s30, s39, 13", f"s_add_u32 s30, s30, {L_VS}", f"v_lshl_add_u32 v{T0}, v0, 4, s30"]]
    at.append(["s_bitcmp1_b32 s39, 0", "s_cselect_b64 exec, -1, 0"] + [f"ds_write_b128 v{T0}, v[{DK+4*q}:{DK+4*q+3}] offset:{512+q*1024}" for q in range(3)] +
              ["s_not_b64 exec, exec", f"ds_write_b128 v{T0}, v[{DK+12}:{DK+15}] offset:{512+3072}", "s_mov_b64 exec, -1", f"v_xor_b32 v{T0}, 8192, v{T0}"])
    return at

def kg_atoms_x2(tag):
    T0 = P0; VEA, VEB = 254, 255
    at = []
    at.append([f"ds_read_b128 v[{DP+4*q}:{DP+4*q+3}], v{T0} offset:{512+q*1024}" for q in range(4)] + [("tag", "dp")])
    for i in [f"v_and_b32 v{T0+4}, 31, v0", f"v_lshrrev_b32 v{T0+1}, 5, v0", f"v_lshlrev_b32 v{T0+2}, 4, v{T0+4}"]: at.append([i])
    at.append([f"s_add_u32 s28, s38, {OFF_E + 4080 - 1024}", f"v_sub_u32 v{VEA}, s28, v{T0+2}"])
    at.append([f"v_lshlrev_b32 v{T0+3}, 9, v{T0+1}"]); at.append([f"v_sub_u32 v{VEA}, v{VEA}, v{T0+3}"])
    at.append([f"s_add_u32 s28, s38, {OFF_E + 4080 - 2560}", f"v_sub_u32 v{VEB}, s28, v{T0+2}"])
    at.append([f"v_lshlrev_b32 v{T0+3}, 10, v{T0+1}"]); at.append([f"v_sub_u32 v{VEB}, v{VEB}, v{T0+3}"])
    at.append([f"v_lshl_add_u32 v{T0}, v0, 3, s38"]); at.append([f"v_mov_b32 v{T0+2}, 0"]); at.append([f"v_mov_b32 v{T0+3}, 0"])
    at.append(["s_lshl_b32 s28, s39, 2", f"s_add_u32 s28, s28, {L_FLAG}", f"v_mov_b32 v{T0+1}, s28"])
    for k in range(16): at.append(([("wait", "dp")] if k == 0 else []) + [f"v_add_f32 v{DK+k}, v{DK+k}, v{DP+k}"])
    at.append(mask("0xaaaaaaaa") + [f"v_cndmask_b32 v{DP}, v{DK+12}, v{DK+13}, s[28:29]", f"v_cndmask_b32 v{DP+1}, v{DK+14}, v{DK+15}, s[28:29]"])
    k_ = lambda r: DK + r
    def half(base, kk, va, off, odd):
        prs = [(8, 7), (6, 5), (4, 3), (2, 1)] if odd else [(7, 6), (5, 4), (3, 2), (1, 0)]
        return [f"v_cvt_pk_bf16_f32 v{base+i}, v{kk[lo]}, v{kk[hi]}" for i, (lo, hi) in enumerate(prs)] + \
               [f"ds_write_b128 v{va}, v[{base}:{base+3}] offset:{off + (OFF_O - OFF_E if odd else 0)}"]
    ev = [([k_(i) for i in range(9)], VEA, 1024), ([k_(9)] * 3 + [k_(10)] * 3 + [k_(11)] * 3, VEA, 0)]
    od = [([k_(12)] * 4 + [DP] + [k_(13)] * 4, VEB, 512), ([k_(14)] * 4 + [DP + 1] + [k_(15)] * 4, VEB, 0)]
    n = 0
    for gi in range(2):
        for o_ in range(2):
            b_ = EX + 4 * n
            at.append(["s_bitcmp1_b32 s39, 0", f"s_cbranch_scc1 L_xo{tag}{n}"] + half(b_, *ev[gi], o_)[:-1] + [("nods", half(b_, *ev[gi], o_)[-1]), f"s_branch L_xd{tag}{n}",
                       f"L_xo{tag}{n}:"] + half(b_, *od[gi], o_) + [f"L_xd{tag}{n}:"])
            n += 1
    at.append(["s_bitcmp0_b32 s39, 0", "s_cselect_b64 s[28:29], -1, 0", "s_mov_b64 exec, s[28:29]",
               f"ds_write_b64 v{T0}, v[{T0+2}:{T0+3}]", "s_and_b64 exec, s[28:29], 15",
               f"ds_write_b64 v{T0}, v[{T0+2}:{T0+3}] offset:{OFF_E+4096}", f"ds_write_b64 v{T0}, v[{T0+2}:{T0+3}] offset:{OFF_O+4096}",
               "s_and_b64 exec, s[28:29], 1", f"ds_write_b16_d16_hi v{T0}, v{EX+3} offset:{OFF_O+4096}",
               "s_mov_b64 exec, -1"])
    at.append([f"v_mov_b32 v{T0+2}, 1", f"ds_write_b32 v{T0+1}, v{T0+2} offset:64"])
    return at

def flag_zero():
    return [[f"v_lshlrev_b32 v{VT1}, 2, v0", f"v_mov_b32 v{VT1+1}, 0", f"v_add_u32 v{VT1}, {L_FLAG}, v{VT1}", f"ds_write_b32 v{VT1}, v{VT1+1}"]]

class LQ:
    def __init__(self, A): self.A = A; self.q = []
    def emit(self, items, tag=None):
        maybe0 = any(isinstance(it, str) and "s_cselect_b64" in it for it in items)
        for it in items:
            if maybe0 and isinstance(it, str):
                self.A(it); continue
            if isinstance(it, tuple):
                if it[0] == "tag": self.q[-1] = it[1]
                elif it[0] == "wait": self.wait(it[1])
                elif it[0] == "nods": self.A(it[1])
                continue
            self.A(it)
            if it.strip().startswith("ds_"): self.q.append(tag)
            if "lgkmcnt(0)" in it: self.q = []
    def wait(self, tag):
        idx = max((k for k, t in enumerate(self.q) if t == tag), default=-1)
        if idx < 0: return
        n = min(len(self.q) - 1 - idx, 15)
        self.A(f"s_waitcnt lgkmcnt({n})")
        self.q = self.q[len(self.q) - n:] if n else []

def spread(atoms, g0, g1):
    pts = [(g, p) for g in range(g0, g1) for p in range(2)]
    tot = sum(len(a_) for a_ in atoms); out = {p: [] for p in pts}; acc = 0
    for a_ in atoms:
        out[pts[min(len(pts) - 1, acc * len(pts) // tot)]].append(a_); acc += len(a_)
    return out

VXO, VWO, VXO2 = 1, 2, 3
VXO3, VXO4 = 242, 243
VXR, VTR = 4, 8
VONE, VHO1, VB1 = 16, 18, 19
VCW, VCR, VSO = 20, 21, 22
VT1 = 28
NR = 3
W1, X1, ACC1, CS = 32, 56, 80, 144
HI = 152
GT, PK, SG = 164, 180, 188
EA, EB = 192, 196
VS, K1r, K3r = 212, 214, 216

def wave_flag(soff, vt):
    return [f"v_mov_b32 v{vt}, 0", f"v_mov_b32 v{vt+1}, s76", "s_mov_b64 exec, 1",
            f"buffer_store_dword v{vt+1}, v{vt}, s[12:15], {soff} offen {SC}", "s_mov_b64 exec, -1"]

def lds_wait(A, name, vaddr, off, vt):
    A(f"""
    {name}:
    ds_read_b32 v{vt}, v{vaddr} offset:{off}
    s_waitcnt lgkmcnt(0)
    v_readfirstlane_b32 s28, v{vt}
    s_cmp_eq_u32 s28, 1
    s_cbranch_scc0 {name}
    """)

def dma_setup(A):
    VT = VT1
    A(f"""
    v_lshrrev_b32 v{VT}, 3, v0
    v_and_b32 v{VT+1}, 7, v0
    v_lshrrev_b32 v{VT+2}, 4, v0
    v_xor_b32 v{VT+3}, v{VT+2}, v{VT+1}
    v_lshlrev_b32 v{VXO}, 10, v{VT}
    v_lshl_add_u32 v{VXO}, v{VT+3}, 4, v{VXO}
    v_xor_b32 v{VXO2}, 64, v{VXO}
    v_add_u32 v{VXO2}, 8192, v{VXO2}
    v_and_b32 v{VT+3}, 15, v0
    v_lshlrev_b32 v{VT}, 2, v{VT+2}
    v_xor_b32 v{VT+3}, v{VT+3}, v{VT}
    v_mul_u32_u24 v{VWO}, 3584, v{VT+2}
    v_lshl_add_u32 v{VWO}, v{VT+3}, 4, v{VWO}
    s_lshl_b32 s25, s21, 17
    s_lshl_b32 s28, s39, 15
    s_add_u32 s25, s25, s28
    s_mul_i32 s26, s39, {16*3584}
    s_lshl_b32 s28, s22, 8
    s_add_u32 s26, s26, s28
    s_lshl_b32 s27, s39, 12
    """)
    if KR:
        A(f"""
        v_add_u32 v{VXO3}, 16384, v{VXO}
        v_add_u32 v{VXO4}, 16384, v{VXO2}
        s_and_b32 s3, s24, 3
        s_mul_i32 s3, s3, {env("KRB", 3)}
        s_mul_i32 s28, s77, {env("KRN", 1)}
        s_add_u32 s3, s3, s28
        s_lshl_b32 s3, s3, 7
        """)
    if MIX:
        A(f"""
        v_and_b32 v{VT+3}, 8, v{VT+3}
        v_lshl_add_u32 v{VWO}, v{VT+3}, 4, v{VWO}
        s_and_b32 s28, s22, 1
        s_lshl_b32 s28, s28, 7
        s_sub_u32 s26, s26, s28
        """)

KORD = [int(x) for x in os.environ.get("KORD", "0,1,2,3,4,5,6,7").split(",")]
def g1_dma(kc, part):
    st = (kc % NS) * STAGE
    kc = KORD[kc]
    if KR:
        return [f"s_add_u32 s37, s3, {128*kc}", "s_and_b32 s37, s37, 0x380", f"s_add_u32 m0, s27, {st + part*1024}",
                "s_add_u32 s31, s25, s37",
                f"buffer_load_dwordx4 v{[VXO, VXO2, 13, 14][part] if False else (VXO if part % 2 == 0 else VXO2)}, s[4:7], s31 offen lds" if part < 2 else
                f"buffer_load_dwordx4 v{VXO3 if part % 2 == 0 else VXO4}, s[4:7], s31 offen lds",
                f"s_mul_i32 s37, s37, 1792", f"s_add_u32 m0, s27, {st + 16384 + part*1024}", "s_add_u32 s37, s37, s26", f"s_add_u32 s37, s37, {4*part*3584}",
                f"buffer_load_dwordx4 v{VWO}, s[8:11], s37 offen lds"]
    return [f"s_add_u32 m0, s27, {st + part*1024}", f"s_add_u32 s31, s25, {128*kc + (part//2)*16384}",
            f"buffer_load_dwordx4 v{VXO if part % 2 == 0 else VXO2}, s[4:7], s31 offen lds",
            f"s_add_u32 m0, s27, {st + 16384 + part*1024}", f"s_add_u32 s37, s26, {(64*kc + 4*part)*3584}",
            f"buffer_load_dwordx4 v{VWO}, s[8:11], s37 offen lds"]

def c_setup(A):
    VT = VT1
    A(f"""
    v_and_b32 v{VT}, 31, v0
    v_lshrrev_b32 v{VT+1}, 5, v0
    v_bfe_u32 v{VT+2}, v0, 1, 3
    v_xor_b32 v{VT+2}, v{VT+2}, v{VT+1}
    s_lshl_b32 s31, s34, 1
    v_xor_b32 v{VT+2}, s31, v{VT+2}
    v_lshlrev_b32 v{VXR}, 7, v{VT}
    v_lshl_add_u32 v{VXR}, v{VT+2}, 4, v{VXR}
    s_lshl_b32 s28, s34, 13
    v_add_u32 v{VXR}, s28, v{VXR}
    v_xor_b32 v{VXR+1}, 32, v{VXR}
    v_xor_b32 v{VXR+2}, 64, v{VXR}
    v_xor_b32 v{VXR+3}, 96, v{VXR}
    v_lshlrev_b32 v{VSO}, 3, v0
    v_bfe_u32 v{VT+2}, v0, 2, 2
    v_lshl_add_u32 v{VTR}, v{VT+1}, 3, v{VT+2}
    v_lshlrev_b32 v{VTR}, 8, v{VTR}
    v_bfe_u32 v{VT+3}, v0, 4, 1
    v_lshl_add_u32 v{VTR}, v{VT+3}, 5, v{VTR}
    v_and_b32 v{VT+3}, 3, v0
    v_lshl_add_u32 v{VTR}, v{VT+3}, 3, v{VTR}
    s_lshl_b32 s31, s35, 1
    v_xor_b32 v{VT+2}, s31, v{VT+2}
    v_lshl_add_u32 v{VTR}, v{VT+2}, 6, v{VTR}
    s_lshl_b32 s31, s34, 12
    s_add_u32 s31, s31, 16384
    v_add_u32 v{VTR}, s31, v{VTR}
    """)
    for i in range(4):
        for ft in range(2):
            if i == 0 and ft == 0: continue
            A(f"v_xor_b32 v{VTR+2*i+ft}, {i*4096 + ft*64}, v{VTR}")
    A(f"""
    v_mov_b32 v{VONE}, 0x3f803f80
    v_mov_b32 v{VONE+1}, 0x3f803f80
    v_lshlrev_b32 v{VHO1}, 4, v0
    s_lshl_b32 s33, s21, 1
    s_add_u32 s33, s33, s34
    s_lshl_b32 s36, s33, 9
    s_add_u32 s36, s36, {WS_STAT}
    s_mul_i32 s32, s33, {2*112*1024}
    s_lshl_b32 s28, s22, 1
    s_add_u32 s28, s28, s35
    """)
    if MIX:
        A("""
        s_add_u32 s28, s28, s35
        s_and_b32 s29, s22, 1
        s_sub_u32 s28, s28, s29
        """)
    A(f"""
    s_lshl_b32 s29, s28, 12
    s_add_u32 s32, s32, s29
    s_add_u32 s32, s32, {WS_HF}
    s_add_u32 s38, s32, {112*1024}
    """)
    if HP:
        A(f"""
        s_mul_i32 s29, s28, 37
        s_lshr_b32 s29, s29, 8
        s_lshl_b32 s33, s33, 2
        s_add_u32 s33, s33, s29
        s_lshl_b32 s33, s33, 7
        s_mul_i32 s29, s29, 7
        s_sub_u32 s29, s28, s29
        s_lshl_b32 s29, s29, 2
        s_add_u32 s33, s33, s29
        s_add_u32 s33, s33, {WS_FLH}
        """)
    else:
        A(f"""
        s_lshl_b32 s33, s33, 5
        s_add_u32 s33, s33, s28
        s_lshl_b32 s33, s33, 7
        s_add_u32 s33, s33, {WS_FLH}
        """)
    A(f"""
    s_lshl_b32 s29, s20, 8
    v_lshl_add_u32 v{VCW}, v0, 2, s29
    v_add_u32 v{VCW}, {L_CS}, v{VCW}
    v_xor_b32 v{VCR}, 256, v{VCW}
    """)
    srd(A, 16, "s46", "s47", 3584)
    A(f"""
    v_mov_b32 v{VB1}, 0
    v_lshlrev_b32 v{VT1}, 1, v0
    s_lshl_b32 s28, s28, 7
    buffer_load_short_d16_hi v{VB1}, v{VT1}, s[16:19], s28 offen
    """)
    for k in range(20): A(f"v_mov_b32 v{EA+k}, 0")
    for k in range(12): A(f"v_add_u32 v{HI+k}, 0x10000, v{VXR+k}")

def c_reads(g):
    kc, i = divmod(g, 4)
    st = kc % NS
    b = (VXR if st < 2 else HI); off = (st % 2) * STAGE
    sl = g % NR
    tr = lambda ft, sec: f"ds_read_b64_tr_b16 v[{W1+8*sl+4*ft+2*sec}:{W1+8*sl+4*ft+2*sec+1}], v{b+4+2*i+ft} offset:{off + sec*1024}"
    xr = lambda tt: f"ds_read_b128 v[{X1+8*sl+4*tt}:{X1+8*sl+4*tt+3}], v{b+i} offset:{off + tt*4096}"
    return [xr(0), tr(0, 0), tr(0, 1), tr(1, 0), tr(1, 1), xr(1)]

def gen_c1(A):
    VT = VT1
    dma_setup(A)
    A(f"""
    s_and_b32 s34, s20, 1
    s_lshr_b32 s35, s20, 1
    s_waitcnt lgkmcnt(0)
    s_add_u32 s42, s42, {WSOFF}
    s_addc_u32 s43, s43, 0
    s_load_dword s76, s[42:43], {WS_EPOCH}
    """)
    vm = VMQ()
    A.st("ka")
    srd(A, 4, "s40", "s41", 2 << 20)
    srd(A, 8, "s44", "s45", 512 * 3584)
    srd(A, 12, "s42", "s43", WS_USED)
    CSF = env("CSF", 0)
    if CSF: c_setup(A); vm.note("b1")
    if env("PFAT", 1) == -1 and OPT_PF: coop_prefetch(A, VT); vm.note("pf", 2)
    for kc in range(NC0):
        for part in range(4): A.extend(g1_dma(kc, part))
        vm.note(kc, 8)
        A.st(f"i{kc}")
        if kc == env("BP", 1): A("s_barrier")
        if kc == 0 and not CSF:
            c_setup(A); vm.note("b1")
        if kc == env("PFAT", 2) and OPT_PF == 1: coop_prefetch(A, VT); vm.note("pf", 2)
        if kc == env("PFAT", 2) and OPT_PF == 2: coop_prefetch2(A, VT); vm.note("pf", 3)
    TW = env("TW", 7)
    if TW:
        A(f"v_lshlrev_b32 v{VT+2}, 20, v0")
        if TW & 1: A("s_mov_b64 exec, 3"); A(f"global_load_dword v{VDUM}, v{VT+2}, s[52:53]"); vm.note("tw")
        if TW & 2: A("s_mov_b64 exec, 1"); A(f"buffer_load_dword v{VDUM}, v{VT+2}, s[12:15], s38 offen"); vm.note("tw")
        if TW & 4: A("s_mov_b64 exec, 1"); A(f"global_load_dword v{VDUM}, v{VT+2}, s[50:51]"); vm.note("tw")
        A("s_mov_b64 exec, -1")
    A.extend(ya_prefill(VT, VT + 1, PK)); vm.note("pre", 2)
    hpre = [f"buffer_store_dwordx4 v[{PK}:{PK+3}], v{VHO1}, s[12:15], s{32 if n < 4 else 38} offen offset:{(n%4)*1024} {SC}" for n in range(8)]
    HPRE = env("HPRE", 0)
    if HPRE == 1: A.extend(hpre); vm.note(2, 8)
    w2_setup(A, VT)
    mpf = [f"s_xor_b32 s28, s2, {env('MPX', 0)}", "s_lshl_b32 s28, s28, 2", "s_add_u32 s28, s28, s39", "s_lshl_b32 s28, s28, 11", f"v_lshlrev_b32 v{VT+2}, 7, v0", f"s_mov_b64 exec, {os.environ.get('MPM', '0xffff')}",
           f"buffer_load_dword v{VDUM}, v{VT+2}, s[16:19], s28 offen {os.environ.get('MPFL', '')}", "s_mov_b64 exec, -1"]
    MPG = env("MPG", 4)
    if MPG == -1: A.extend(mpf); vm.note("mpf")
    A.st("pre")
    A(vm.wait(0)[0] + " lgkmcnt(0)"); A.st("kg"); A("s_barrier")
    A.st("b0")
    T = GT
    lq = LQ(A)
    lq.emit(c_reads(0), 0); lq.emit(c_reads(1), 1)
    mktag(A)
    def big(g, tt, ft):
        sl = g % NR; c = ACC1 + 32 * tt + 16 * ft
        cin = "0" if g == 0 else f"v[{c}:{c+15}]"
        return f"v_mfma_f32_32x32x16_bf16 v[{c}:{c+15}], v[{W1+8*sl+4*ft}:{W1+8*sl+4*ft+3}], v[{X1+8*sl+4*tt}:{X1+8*sl+4*tt+3}], {cin}"
    for g in range(32):
        kc, i = divmod(g, 4); w = W1 + 8 * (g % NR)
        m = lambda d, b_, z: f"v_mfma_f32_4x4x4_16b_bf16 v[{d}:{d+3}], v[{VONE}:{VONE+1}], v[{b_}:{b_+1}], " + ("0" if z else f"v[{d}:{d+3}]")
        o1, o2 = [], []
        if i < 2 and False: pass
        if i in (0, 2) and g < 28 or g in (28, 29):
            o1 = [m(CS, w, g == 0), m(CS + 4, w + 4, g == 0)]; o2 = [m(CS, w + 2, False), m(CS + 4, w + 6, False)]
        A.st(f"g{g}")
        gn = g + 2
        rd = c_reads(PERM(gn))[:] if gn < 32 else []
        rd = c_reads_slot(gn) if gn < 32 else []
        x1, x2 = [], []
        if i == 2 and kc + 1 < 8: x1 += vm.wait(kc + 1) + ["s_barrier"]
        if g == 30:
            x1 += [f"v_permlane32_swap_b32 v{CS}, v{CS+4}", f"v_add_f32 v{CS}, v{CS}, v{CS+4}", f"ds_write_b32 v{VCW}, v{CS}",
                   "s_waitcnt lgkmcnt(0)", "s_barrier", f"ds_read_b32 v{T+2}, v{VCR}"][:None if not NB8 else 3]
            if NB8:
                x1 += ["s_lshl_b32 s28, s20, 2", f"s_add_u32 s28, s28, {L_FLAG+128}", f"v_mov_b32 v{T}, s28", f"v_mov_b32 v{T+1}, 1",
                       f"ds_write_b32 v{T}, v{T+1}", f"v_xor_b32 v{T}, 4, v{T}"]
        if g == STATG: x2 += [f"buffer_load_dwordx2 v[{SG}:{SG+1}], v{VSO}, s[12:15], s36 offen {SC}"]; vm.note("sg")
        if EPE and g == 23: x2 += ep_early(VT)[:9]
        if EPE and g == 24: x2 += ep_early(VT)[9:]; vm.note("ep", 2)
        if g == MPG: x2 += mpf; vm.note("mpf")
        if g == env("MPG2", -5): x2 += ["s_xor_b32 s28, s2, 3"] + mpf[1:]; vm.note("mpf")
        WM = env("WARM", 0)
        if WM and g == env("WARMG", 10):
            x2 += [f"v_lshlrev_b32 v{VT+2}, 20, v0", f"v_lshlrev_b32 v{VT+3}, 7, v0"]
            if WM & 1: x2 += ["s_mov_b64 exec, 0x3fff", f"buffer_load_dword v{VDUM}, v{VT+2}, s[12:15], 0 offen"]; vm.note("wm")
            if WM & 2: x2 += ["s_mov_b64 exec, 3", f"global_load_dword v{VDUM}, v{VT+2}, s[52:53]"]; vm.note("wm")
            if WM & 4: x2 += ["s_mov_b64 exec, 0xff", f"global_load_dword v{VDUM}, v{VT+3}, s[50:51]"]; vm.note("wm")
            x2 += ["s_mov_b64 exec, -1"]
        if HPRE >= 10 and HPRE <= g < HPRE + 8: x2 += [hpre[g - HPRE]]; vm.note("hp")
        if HPRE == 2 and g == 11:
            x2 += [f"v_and_b32 v{VT+2}, 31, v0", f"v_lshlrev_b32 v{VT+2}, 7, v{VT+2}", "s_mov_b64 exec, 0xffffffff", "s_mov_b32 exec_hi, 0",
                   f"buffer_load_dword v{VDUM}, v{VT+2}, s[12:15], s32 offen", f"buffer_load_dword v{VDUM}, v{VT+2}, s[12:15], s38 offen", "s_mov_b64 exec, -1"]; vm.note("hp", 2)
        if g in PFG:
            n_ = 128 // len(PFG); k_ = PFG.index(g)
            x2 += ["s_lshl_b32 s28, s24, 2", "s_add_u32 s28, s28, s39", "s_lshl_b32 s28, s28, 14", f"s_add_u32 s28, s28, {k_*n_*128}", f"v_lshlrev_b32 v{VT+2}, 7, v0"]
            if n_ < 64: x2 += [f"s_mov_b32 exec_lo, {hex((1 << n_) - 1)}", "s_mov_b32 exec_hi, 0"]
            x2 += [f"buffer_load_dword v{VDUM}, v{VT+2}, s[16:19], s28 offen", "s_mov_b64 exec, -1"]; vm.note("l2")
        if g == env("YFG", 16) - 1: x2 += yflag_off()
        if g == env("YFG", 16): x2 += ["s_waitcnt vmcnt(0)"] + wave_flag("s28", VT); vm.q.clear(); vm.note("yf")
        lq.wait(g)
        A(big(g, 0, 0))
        if i == 2: A.st(f"pb{kc+1}")
        lq.emit(x1)
        if i == 2: A.st(f"ab{kc+1}")
        lq.emit(rd[:2], gn)
        A(big(g, 0, 1)); lq.emit(rd[2:4], gn); A.extend(o1)
        A(big(g, 1, 0)); lq.emit(rd[4:], gn)
        A(big(g, 1, 1)); lq.emit(x2); A.extend(o2)
    A.st("loop")
    if NB8:
        lds_wait(A, "L_c_cs", T, 0, T + 1)
        A(f"ds_read_b32 v{T+2}, v{VCR}")
    A.extend(vm.wait("sg", "b1"))
    A(f"""
    v_cmp_ne_u32 vcc, s76, v{SG+1}
    s_cbranch_vccz L_g1_sok
    s_mov_b32 s30, 0
    L_g1_spoll:
    buffer_load_dwordx2 v[{SG}:{SG+1}], v{VSO}, s[12:15], s36 offen {SC}
    s_add_u32 s30, s30, 1
    s_waitcnt vmcnt(0)
    v_cmp_ne_u32 vcc, s76, v{SG+1}
    s_cmp_gt_u32 s30, {SPIN}
    s_cbranch_scc1 L_g1_sok
    s_cbranch_vccnz L_g1_spoll
    L_g1_sok:
    v_mov_b32 v{SG+1}, v{SG}
    s_mov_b32 s28, -1
    s_mov_b32 s29, 0
    v_permlane32_swap_b32 v{SG}, v{SG+1}
    s_waitcnt lgkmcnt(0)
    v_add_f32 v{T+2}, v{T+2}, v{CS}
    """)
    l1 = []
    for tt in range(2):
        l1 += [f"v_and_b32 v{VS+tt}, 0xffff0000, v{SG+tt}", f"v_and_b32 v{T+8+tt}, 0xffff, v{SG+tt}", f"v_rcp_f32 v{T+6+tt}, v{VS+tt}",
               f"v_lshl_or_b32 v{T+8+tt}, v{T+8+tt}, 16, v{T+8+tt}",
               f"v_cndmask_b32 v{EB+8*tt}, 0, v{T+8+tt}, s[28:29]", f"v_cndmask_b32 v{EB+8*tt+1}, 0, v{SG+tt}, s[28:29]",
               f"v_cndmask_b32 v{EB+8*tt+4}, v{T+8+tt}, 0, s[28:29]", f"v_cndmask_b32 v{EB+8*tt+5}, v{SG+tt}, 0, s[28:29]"]
    l2 = [f"v_and_b32 v{T+3}, 0xffff0000, v{T+2}", f"v_sub_f32 v{T+3}, v{T+2}, v{T+3}", f"v_lshrrev_b32 v{T+2}, 16, v{T+2}",
          f"v_and_b32 v{T+4}, 0xffff0000, v{T+3}", f"v_sub_f32 v{T+5}, v{T+3}, v{T+4}", f"v_or_b32 v{EA}, v{T+2}, v{T+4}",
          f"v_lshrrev_b32 v{T+5}, 16, v{T+5}", f"v_or_b32 v{EA+1}, v{T+5}, v{VB1}"]
    A.extend(zipm(l1, l2))
    l3 = []
    for tt in range(2):
        l3.append([f"v_fma_f32 v{T+10+tt}, -v{VS+tt}, v{T+6+tt}, 1.0", f"v_fma_f32 v{T+6+tt}, v{T+10+tt}, v{T+6+tt}, v{T+6+tt}",
                   f"v_mul_f32 v{K1r+tt}, {hex(f2u(GC1))}, v{T+6+tt}", f"v_mul_f32 v{T+10+tt}, v{T+6+tt}, v{T+6+tt}",
                   f"v_mul_f32 v{K3r+tt}, {hex(f2u(GC2))}, v{T+6+tt}", f"v_mul_f32 v{K3r+tt}, v{K3r+tt}, v{T+10+tt}"])
    l3 = zipm(*l3)
    for tt in range(2):
        for ft in range(2):
            c = ACC1 + 32 * tt + 16 * ft
            A(f"v_mfma_f32_32x32x16_bf16 v[{c}:{c+15}], v[{EA}:{EA+3}], v[{EB+8*tt+4*ft}:{EB+8*tt+4*ft+3}], v[{c}:{c+15}]")
            A.extend(l3[3 * (2 * tt + ft):3 * (2 * tt + ft) + 3])
    A.st("gstart")
    for n in range(8):
        tt = n // 4
        if n == env("PGN", 99): A("s_setprio 2")
        c0 = ACC1 + 8 * n
        t0 = GT + 8 * (n % 2)
        if GPK == 1 and n == NPK0:
            A(f"""
            v_mov_b32 v{VT}, {L_FLAG+80}
            L_c_km:
            ds_read_b128 v[{EA}:{EA+3}], v{VT}
            s_waitcnt lgkmcnt(0)
            v_and_b32 v{EA}, v{EA}, v{EA+1}
            v_and_b32 v{EA+2}, v{EA+2}, v{EA+3}
            v_and_b32 v{EA}, v{EA}, v{EA+2}
            s_nop 0
            v_readfirstlane_b32 s28, v{EA}
            s_cmp_eq_u32 s28, 1
            s_cbranch_scc0 L_c_km
            """)
        if GPK == 2 or (GPK and n >= NPK0):
            P = lambda x: f"v[{x}:{x+1}]"
            sel = f"op_sel:[0,{tt},{tt}] op_sel_hi:[1,{tt},{tt}]"
            for k in range(0, 8, 2): A(f"v_pk_mul_f32 {P(t0+k)}, {P(c0+k)}, {P(c0+k)}")
            for k in range(0, 8, 2): A(f"v_pk_fma_f32 {P(t0+k)}, {P(t0+k)}, {P(K3r)}, {P(K1r)} {sel}")
            for k in range(0, 8, 2): A(f"v_pk_mul_f32 {P(t0+k)}, {P(t0+k)}, {P(c0+k)}")
            for k in range(8): A(f"v_exp_f32 v{t0+k}, v{t0+k}")
            for k in range(0, 8, 2): A(f"v_pk_fma_f32 {P(t0+k)}, {P(t0+k)}, {P(VS)}, {P(VS)} {sel}")
            for k in range(8): A(f"v_rcp_f32 v{t0+k}, v{t0+k}")
            for k in range(0, 8, 2): A(f"v_pk_mul_f32 {P(c0+k)}, {P(c0+k)}, {P(t0+k)}")
        else:
            for k in range(8): A(f"v_mul_f32 v{t0+k}, v{c0+k}, v{c0+k}")
            for k in range(8): A(f"v_fma_f32 v{t0+k}, v{t0+k}, v{K3r+tt}, v{K1r+tt}")
            for k in range(8): A(f"v_mul_f32 v{t0+k}, v{t0+k}, v{c0+k}")
            for k in range(8): A(f"v_exp_f32 v{t0+k}, v{t0+k}")
            for k in range(8): A(f"v_fma_f32 v{t0+k}, v{t0+k}, v{VS+tt}, v{VS+tt}")
            for k in range(8): A(f"v_rcp_f32 v{t0+k}, v{t0+k}")
            for k in range(8): A(f"v_mul_f32 v{c0+k}, v{c0+k}, v{t0+k}")
        pk = PK + 4 * (n % 2)
        for k in range(4): A(f"v_cvt_pk_bf16_f32 v{pk+k}, v{c0+2*k}, v{c0+2*k+1}")
        A(f"buffer_store_dwordx4 v[{pk}:{pk+3}], v{VHO1}, s[12:15], s{32 if tt == 0 else 38} offen offset:{(n%4)*1024} {SCH}")
        if env("DBL", 0): A(f"buffer_store_dwordx4 v[{pk}:{pk+3}], v{VHO1}, s[12:15], s{32 if tt == 0 else 38} offen offset:{(n%4)*1024}")
    A.st("gend")
    A("s_mov_b32 s37, 0")
    A("s_branch L_gemm2")

def PERM(g): return g
def c_reads_slot(g):
    if g < 28: return c_reads(g)
    i = [0, 2, 1, 3][g - 28]
    r = c_reads(28 + i)
    kc = 7; st = kc % NS; b = HI; off = (st % 2) * STAGE; sl = g % NR
    tr = lambda ft, sec: f"ds_read_b64_tr_b16 v[{W1+8*sl+4*ft+2*sec}:{W1+8*sl+4*ft+2*sec+1}], v{b+4+2*i+ft} offset:{off + sec*1024}"
    xr = lambda tt: f"ds_read_b128 v[{X1+8*sl+4*tt}:{X1+8*sl+4*tt+3}], v{b+i} offset:{off + tt*4096}"
    return [xr(0), tr(0, 0), tr(0, 1), tr(1, 0), tr(1, 1), xr(1)]

def yflag_off():
    return ["s_lshr_b32 s28, s39, 1", "s_lshl_b32 s29, s2, 1", "s_add_u32 s28, s28, s29", "s_and_b32 s29, s39, 1", "s_lshl_b32 s29, s29, 9",
            "s_add_u32 s28, s28, s29", f"s_lshl_b32 s28, s28, {FS}", f"s_add_u32 s28, s28, {WS_FLY}"]
def ring_ready(vt):
    return ["s_lshl_b32 s28, s39, 2", f"s_add_u32 s28, s28, {L_FLAG+16}", f"v_mov_b32 v{vt}, s28", f"v_mov_b32 v{vt+1}, 1", f"ds_write_b32 v{vt}, v{vt+1}"]

def gen_h1(A):
    VT = VT1
    vm = VMQ()
    vm.note("prm", 8)
    A(f"s_add_u32 s42, s42, {WSOFF}\ns_addc_u32 s43, s43, 0\ns_load_dword s76, s[42:43], {WS_EPOCH}")
    srd(A, 4, "s40", "s41", 2 << 20)
    srd(A, 8, "s44", "s45", 512 * 3584)
    srd(A, 12, "s42", "s43", WS_USED)
    if env("CPF", 1): vm.note("cpf")
    dma_setup(A)
    w2_setup(A, VT)
    if env("MPF", 0):
        A(f"""
        s_lshl_b32 s28, s2, 2
        s_add_u32 s28, s28, s39
        s_lshl_b32 s28, s28, 11
        v_lshlrev_b32 v{VT+2}, 7, v0
        s_mov_b64 exec, 0xffff
        buffer_load_dword v{VDUM}, v{VT+2}, s[16:19], s28 offen
        s_mov_b64 exec, -1
        """)
    if env("TLBW", 0):
        A(f"""
        v_lshlrev_b32 v{VT+2}, {env("TLBS", 20)}, v0
        s_mov_b64 exec, {hex((1 << (WS_USED >> env("TLBS", 20))) - 1)}
        buffer_load_dword v{VDUM}, v{VT+2}, s[12:15], 0 offen
        s_mov_b64 exec, 3
        buffer_load_dword v{VDUM}, v{VT+2}, s[16:19], 0 offen
        global_load_dword v{VDUM}, v{VT+2}, s[52:53]
        s_mov_b64 exec, 1
        global_load_dword v{VDUM}, v{VT+2}, s[50:51]
        s_mov_b64 exec, -1
        """)
        vm.note("tlb", 4)
    kg_waddr(A, L_VS, KWA); A.extend(kg_raddr(L_VS, KRA, VT))
    for a_ in flag_zero(): A.extend(a_)
    if env("BP", 1) >= 0: A("s_barrier")
    A.st("pre")
    A.extend(vm.wait("prm"))
    A.st("prm")
    A.label("L_kgen_v")
    gen_kgen_v(A)
    A("s_cmp_eq_u32 s77, 7")
    A("s_cbranch_scc1 L_ln_H2")
    A.st("kg")
    A("s_waitcnt lgkmcnt(0)"); A("s_barrier")
    A.st("b0")
    mktag(A)
    UV, UW = kgen_u_lists(0)
    wts = [2, 3, 3, 3, 3, 3]; cum = 0
    for k in range(7 if NB8 else 8):
        if NB8 and k == 6:
            if EPE: A.extend(ep_early(VT)); vm.note("ep", 2)
            for sl in range(env("F6N", 2)): A.extend(wdma(sl, sl))
            vm.note("f", 2 * env("F6N", 2))
        elif k <= 5:
            sl_ = UV[len(UV) * cum // sum(wts):len(UV) * (cum + wts[k]) // sum(wts)]; cum += wts[k]
            if k >= 1 or NC0 == 2:
                pcs = []
                for part in range(4):
                    dd = g1_dma(k + 2, part); pcs += [dd[:len(dd)//2], dd[len(dd)//2:]]
                vm.note(k + 2, 8)
                for q, dd in enumerate(pcs):
                    A.extend(dd); A.extend(sl_[len(sl_) * q // 8:len(sl_) * (q + 1) // 8])
            else: A.extend(sl_)
        else:
            for sl in range(4 * (k - 6), 4 * (k - 6) + 4): A.extend(wdma(sl, sl))
            vm.note("f", 8)
        A.st(f"pi{k+1}")
        A.extend(vm.wait(k + 1))
        A("s_barrier")
        A.st(f"ab{k+1}")
    if NB8:
        for sl in range(env("F6N", 2), 8): A.extend(wdma(sl, sl))
        A(f"""
        v_mov_b32 v{VT+2}, {L_FLAG+128}
        L_h_rd:
        ds_read_b128 v[32:35], v{VT+2}
        s_waitcnt lgkmcnt(0)
        v_and_b32 v32, v32, v33
        v_and_b32 v34, v34, v35
        v_and_b32 v32, v32, v34
        s_nop 0
        v_readfirstlane_b32 s28, v32
        s_cmp_eq_u32 s28, 1
        s_cbranch_scc0 L_h_rd
        """)
    A.st("loop")
    HT2 = env("HT2", 0)
    if not HT2:
        for sl in range(8, 12): A.extend(wdma(sl, sl))
    A.label("L_h_tail")
    A(f"s_setprio {env('PRIOX', 0)}")
    lq = LQ(A)
    ar_, mm_ = kg_atoms_m()
    UE = env("UE", 0)
    if UE: A.extend(lnflag_load(36))
    lq.emit(UW)
    for a_ in ar_: lq.emit(a_)
    if GPK == 2:
        A("s_setprio 0")
        A("s_cmp_eq_u32 s77, 7")
        A("s_cbranch_scc1 L_h_gd2")
        A(f"""
        v_mov_b32 v{VT+2}, {L_FLAG+32}
        L_h_gd:
        s_sleep 1
        ds_read_b128 v[32:35], v{VT+2}
        s_waitcnt lgkmcnt(0)
        v_and_b32 v32, v32, v33
        v_and_b32 v34, v34, v35
        v_and_b32 v32, v32, v34
        s_nop 0
        v_readfirstlane_b32 s28, v32
        s_cmp_eq_u32 s28, 1
        s_cbranch_scc0 L_h_gd
        L_h_gd2:
        """)
        A.extend(lnflag_load(36))
    for a_ in mm_ + kg_atoms_x1(): lq.emit(a_)
    A(f"""
    s_lshl_b32 s28, s39, 2
    s_add_u32 s28, s28, {L_FLAG}
    v_mov_b32 v{VT}, s28
    v_mov_b32 v{VT+1}, 1
    ds_write_b32 v{VT}, v{VT+1} offset:80
    v_xor_b32 v{VT+2}, 4, v{VT}
    """)
    HT3 = env('HT3', 1)
    if UE:
        A(f"v_lshlrev_b32 v18, 4, v0")
        A("s_waitcnt vmcnt(0)")
        A(f"""
        v_cmp_ne_u32 vcc, s76, v{LNF}
        s_mov_b32 s37, 0
        s_cbranch_vccnz L_ue_no
        s_mov_b32 s37, 1
        """)
        u_issue(A, 18)
        A.label("L_ue_no")
    if HT2 or HT3: A.extend(lnflag_load(36))
    lds_wait(A, "L_h_x1", VT + 2, 80, 32)
    lq.q = []
    for a_ in kg_atoms_x2("g"): lq.emit(a_)
    A("s_setprio 0")
    DF = env("DF", 0)
    if DF:
        A("s_waitcnt vmcnt(0)")
        if DF == 1: A.extend(ring_ready(VT))
        A("s_cmp_eq_u32 s77, 7")
        A("s_cbranch_scc1 L_h_dr2")
        A(f"""
        v_mov_b32 v{VT+2}, {L_FLAG+32}
        L_h_dr:
        s_sleep 1
        ds_read_b128 v[32:35], v{VT+2}
        s_waitcnt lgkmcnt(0)
        v_and_b32 v32, v32, v33
        v_and_b32 v34, v34, v35
        v_and_b32 v32, v32, v34
        s_nop 0
        v_readfirstlane_b32 s28, v32
        s_cmp_eq_u32 s28, 1
        s_cbranch_scc0 L_h_dr
        L_h_dr2:
        """)
    if not HT2 and not HT3 and GPK != 2: A.extend(lnflag_load(VT))
    A.st("ku")
    A(f"v_lshlrev_b32 v18, 4, v0")
    A("s_waitcnt vmcnt(0)")
    if UE: A("s_cmp_eq_u32 s37, 1"); A("s_cbranch_scc1 L_ut_no")
    RT = env("RT", 6)
    if RT:
        A(f"""
        s_mov_b32 s30, 0
        v_cmp_ne_u32 vcc, s76, v{LNF}
        s_cbranch_vccz L_rt_ok
        L_rt:
        s_sleep {PS}
        buffer_load_dword v{LNF}, v36, s[12:15], 0 offen {SC}
        s_add_u32 s30, s30, 1
        s_waitcnt vmcnt(0)
        v_cmp_ne_u32 vcc, s76, v{LNF}
        s_cmp_ge_u32 s30, {RT}
        s_cbranch_scc1 L_rt_ok
        s_cbranch_vccnz L_rt
        L_rt_ok:
        """)
    u_try(A, 18)
    if HT2:
        A("s_cmp_eq_u32 s77, 7")
        A("s_cbranch_scc1 L_h_nof")
        for sl in range(8, 12): A.extend(wdma(sl, sl))
        A("s_branch L_h_f")
        A.label("L_h_nof")
        A.extend(ring_ready(VT))
        A("s_waitcnt vmcnt(0)")
        A.label("L_h_f")
    else:
        A.extend(ring_ready(VT))
    A.st("gend")
    A("s_branch L_conv")
    A.label("L_ln_H2")
    A("s_waitcnt vmcnt(0) ; RESETSB")
    A("ds_write_b32 v5, v6")
    if EPE: A("s_waitcnt lgkmcnt(0)"); A.extend(ep_early(28))
    A.extend(UV)
    A(f"""
    v_mov_b32 v30, {L_FLAG+112+(64 if env('LNW', 0) else 0)}
    L_ln_hv:
    ds_read_b128 v[32:35], v30
    s_waitcnt lgkmcnt(0)
    v_and_b32 v32, v32, v33
    v_and_b32 v34, v34, v35
    v_and_b32 v32, v32, v34
    s_nop 0
    v_readfirstlane_b32 s28, v32
    s_cmp_eq_u32 s28, 1
    s_cbranch_scc0 L_ln_hv
    """)
    A("s_branch L_h_tail")

def gen_gemm1(A):
    A(f"""
    s_load_dwordx8 s[56:63], s[0:1], {KA['A_re']}
    s_load_dwordx8 s[64:71], s[0:1], {KA['C_re']}
    """)
    A("s_cmp_lt_u32 s20, 4")
    A("s_cbranch_scc1 L_g1_C")
    param_loads(A, VT1)
    if env("CPF", 1):
        A(f"""
        s_getpc_b64 s[28:29]
        L_pc0:
        s_sub_u32 s28, s28, L_pc0-{KNAME}
        s_subb_u32 s29, s29, 0
        s_lshl_b32 s30, s24, 2
        s_add_u32 s30, s30, s39
        s_mul_i32 s30, s30, 384
        v_lshl_add_u32 v{VT1+2}, v0, 7, s30
        v_min_u32 v{VT1+2}, L_exit-{KNAME}, v{VT1+2}
        s_mov_b64 exec, 7
        global_load_dword v{VDUM}, v{VT1+2}, s[28:29]
        s_mov_b64 exec, -1
        """)
    A("s_branch L_g1_H")
    A.label("L_g1_C")
    A("s_nop 0 ; RESETSB")
    gen_c1(A)
    A.label("L_g1_H")
    A("s_nop 0 ; RESETSB")
    gen_h1(A)


def gen_ln(A):
    Q, R, O, T = 16, 48, 80, 112
    A(f"""
    s_load_dwordx8 s[56:63], s[0:1], {KA['A_re']}
    s_load_dwordx8 s[64:71], s[0:1], {KA['C_re']}
    v_lshrrev_b32 v1, 3, v0
    v_and_b32 v2, 7, v0
    v_lshlrev_b32 v3, 10, v1
    v_lshl_add_u32 v3, v2, 4, v3
    v_lshlrev_b32 v4, 4, v0
    s_lshl_b32 s25, s21, 6
    s_lshl_b32 s28, s20, 3
    s_add_u32 s25, s25, s28
    s_lshl_b32 s36, s25, 3
    s_add_u32 s36, s36, {WS_STAT}
    s_lshl_b32 s25, s25, 10
    s_add_u32 s26, s25, 4096
    s_waitcnt lgkmcnt(0)
    s_add_u32 s42, s42, {WSOFF}
    s_addc_u32 s43, s43, 0
    s_load_dword s76, s[42:43], {WS_EPOCH}
    """)
    srd(A, 4, "s40", "s41", 2 << 20)
    for t in range(8): A(f"buffer_load_dwordx4 v[{R+4*t}:{R+4*t+3}], v4, s[4:7], s{25 + t//4} offen offset:{(t%4)*1024}")
    srd(A, 12, "s42", "s43", WS_USED)
    NLW = 0
    if LW1:
        srd(A, 8, "s44", "s45", 512 * 3584)
        A(f"""
        s_and_b32 s28, s24, 3
        s_lshl_b32 s28, s28, 3
        s_add_u32 s28, s28, s20
        s_mul_i32 s28, s28, 47
        s_and_b32 s29, s23, 1
        s_mul_i32 s29, s29, 1792
        s_add_u32 s29, s29, {192*3584}
        """)
        for j in range(3):
            A(f"""
            s_add_u32 s30, s28, {j*1504}
            v_add_u32 v{T}, s30, v0
            v_mul_u32_u24 v{T+1}, 0x4925, v{T}
            v_lshrrev_b32 v{T+1}, 18, v{T+1}
            v_mul_u32_u24 v{T+2}, 14, v{T+1}
            v_sub_u32 v{T}, v{T}, v{T+2}
            v_lshlrev_b32 v{T}, 7, v{T}
            v_mul_u32_u24 v{T+1}, 3584, v{T+1}
            v_add_u32 v{T}, v{T}, v{T+1}
            s_mov_b32 exec_hi, 0x7fff
            buffer_load_dword v{VDUM}, v{T}, s[8:11], s29 offen
            s_mov_b32 exec_hi, -1
            """)
        NLW = 3
    A(f"""
    v_mov_b32 v5, 0x3f803f80
    v_mov_b32 v14, 0x00003f80
    v_mov_b32 v15, 0x3f800000
    v_lshlrev_b32 v8, 3, v1
    """)
    S1, S2 = Q, Q + 8
    A("s_setprio 2")
    for t in range(8):
        A(f"s_waitcnt vmcnt({7 - t + NLW})")
        for k in range(4):
            r = R + 4 * t + k
            A(f"v_dot2_f32_bf16 v{S1+t}, v{r}, v5, {'0' if k == 0 else f'v{S1+t}'}")
            A(f"v_dot2_f32_bf16 v{S2+t}, v{r}, v{r}, {'0' if k == 0 else f'v{S2+t}'}")
    for r in range(4):
        for S in (S1, S2): A(f"v_permlane32_swap_b32 v{S+r}, v{S+r+4}")
    for r in range(4):
        for S in (S1, S2): A(f"v_add_f32 v{S+r}, v{S+r}, v{S+r+4}")
    for r in range(2):
        for S in (S1, S2): A(f"v_permlane16_swap_b32 v{S+r}, v{S+r+2}")
    for r in range(2):
        for S in (S1, S2): A(f"v_add_f32 v{S+r}, v{S+r}, v{S+r+2}")
    for r in range(2):
        for S in (S1, S2): A(f"v_add_f32_dpp v{S+r}, v{S+r}, v{S+r} row_ror:8 row_mask:0xf bank_mask:0xf")
    A.extend(mask("0xff00ff00"))
    A(f"""
    v_cndmask_b32 v6, v{S1}, v{S1+1}, s[28:29]
    v_cndmask_b32 v7, v{S2}, v{S2+1}, s[28:29]
    s_waitcnt lgkmcnt(0)
    """)
    mktag(A)
    A(f"""
    v_mov_b32 v11, s76
    v_add_f32_dpp v6, v6, v6 quad_perm:[1,0,3,2] row_mask:0xf bank_mask:0xf
    v_add_f32_dpp v7, v7, v7 quad_perm:[1,0,3,2] row_mask:0xf bank_mask:0xf
    v_add_f32_dpp v6, v6, v6 quad_perm:[2,3,0,1] row_mask:0xf bank_mask:0xf
    v_add_f32_dpp v7, v7, v7 quad_perm:[2,3,0,1] row_mask:0xf bank_mask:0xf
    v_add_f32_dpp v6, v6, v6 row_half_mirror row_mask:0xf bank_mask:0xf
    v_add_f32_dpp v7, v7, v7 row_half_mirror row_mask:0xf bank_mask:0xf
    v_mul_f32 v12, {hex(f2u(1/512))}, v6
    v_mul_f32 v13, {hex(f2u(1/512))}, v7
    v_fma_f32 v13, -v12, v12, v13
    v_max_f32 v13, 0, v13
    """)
    round_bf16(A, 13)
    A(f"v_add_f32 v13, {hex(f2u(1e-5))}, v13")
    round_bf16(A, 13)
    A(f"""
    v_sqrt_f32 v13, v13
    v_cvt_pk_bf16_f32 v10, -v12, v13
    s_mov_b32 exec_lo, 0x01010101
    s_mov_b32 exec_hi, 0x01010101
    buffer_store_dwordx2 v[10:11], v8, s[12:15], s36 offen {SC}
    s_mov_b64 exec, -1
    """)
    A.st("b0")
    A("s_setprio 0")
    param_loads(A, T)
    LPF = env("LPF", 0)
    if LPF:
        srd(A, 16, "s48", "s49", 1792 * 1024)
        A(f"""
        s_lshl_b32 s28, s21, 3
        s_add_u32 s28, s28, s20
        s_mul_i32 s28, s28, {56*128}
        v_min_u32 v{T+2}, 55, v0
        v_lshlrev_b32 v{T+2}, 7, v{T+2}
        buffer_load_dword v{VDUM}, v{T+2}, s[16:19], s28 offen
        """)
    A(f"""
    v_and_b32 v13, 0xffff0000, v10
    v_lshlrev_b32 v12, 16, v10
    v_rcp_f32 v5, v13
    s_nop 0
    v_fma_f32 v13, -v13, v5, 1.0
    v_fma_f32 v13, v13, v5, v5
    """)
    for t in range(8):
        A(f"v_readlane_b32 s{56+t}, v12, {8*t}")
        A(f"v_readlane_b32 s{64+t}, v13, {8*t}")
    A(f"""
    v_xor_b32 v5, s20, v2
    v_lshlrev_b32 v6, 10, v0
    v_lshl_add_u32 v6, v5, 4, v6
    """)

    for tp in range(4):
        t0, t1 = 2 * tp, 2 * tp + 1
        for k in range(4):
            for h in range(2):
                e = 2 * k + h
                A(f"v_dot2_f32_bf16 v{T+2*e}, v{R+4*t0+k}, v{14+h}, s{56+t0}")
                A(f"v_dot2_f32_bf16 v{T+2*e+1}, v{R+4*t1+k}, v{14+h}, s{56+t1}")
        if env("LNX", 0):
            for e in range(8): A(f"v_cvt_pk_bf16_f32 v{T+2*e+1}, v{T+2*e}, v{T+2*e+1}")
            for e in range(8):
                A(f"v_lshlrev_b32 v{T+2*e}, 16, v{T+2*e+1}")
                A(f"v_and_b32 v{T+2*e+1}, 0xffff0000, v{T+2*e+1}")
        for e in range(8): A(f"v_pk_mul_f32 v[{T+2*e}:{T+2*e+1}], v[{T+2*e}:{T+2*e+1}], s[{64+t0}:{64+t1}]")
        for e in range(8): A(f"v_cvt_pk_bf16_f32 v{O+4*e+tp}, v{T+2*e}, v{T+2*e+1}")
        if tp == env("LFP", 3):
            w2_setup(A, 28)
            LF = env("LF", 0)
            A("s_cmp_ge_u32 s20, 4")
            A("s_cbranch_scc1 L_ln_nofill")
            for sl in range(LF): A.extend(wdma(sl, sl))
            A.label("L_ln_nofill")
    for e in range(8): A(f"ds_write_b128 v6, v[{O+4*e}:{O+4*e+3}] offset:{e*128}")
    for a_ in flag_zero(): A.extend(a_)
    A.st("g8")
    A(f"""
    s_lshl_b32 s28, s20, 13
    v_lshlrev_b32 v6, 7, v1
    v_lshl_add_u32 v6, v2, 4, v6
    v_add_u32 v6, s28, v6
    v_lshlrev_b32 v7, {7 if XS else 12}, v1
    v_lshl_add_u32 v7, v2, 4, v7
    s_lshl_b32 s26, s20, {13 if XS else 18}
    s_mul_i32 s28, s21, {XS if XS else 128}
    s_add_u32 s26, s26, s28
    s_add_u32 s26, s26, {WS_XNT}
    s_lshl_b32 s33, s21, {FSL}
    s_add_u32 s33, s33, {WS_FLL}
    """)
    for i in range(8): A(f"v_xor_b32 v{8+i}, {16*i}, v6")
    A("s_waitcnt lgkmcnt(0)")
    A("s_barrier")
    for i in range(8): A(f"ds_read_b128 v[{192+4*i}:{192+4*i+3}], v{8+i} offset:{i*1024}")
    for i in range(8):
        A(f"s_waitcnt lgkmcnt({7-i})")
        A(f"s_add_u32 s25, s26, {i*(1024 if XS else 32768)}")
        A(f"buffer_store_dwordx4 v[{192+4*i}:{192+4*i+3}], v7, s[12:15], s25 offen {SC}")
    A.st("loop")
    A(f"""
    s_lshl_b32 s28, s20, 2
    s_add_u32 s28, s28, {L_FLAG+96}
    v_mov_b32 v5, s28
    v_mov_b32 v6, 1
    s_cmp_lt_u32 s20, 4
    s_cbranch_scc1 L_ln_C
    """)
    kg_waddr(A, L_VS, KWA); A.extend(kg_raddr(L_VS, KRA, 28))
    A(f"s_mov_b32 s33, {WS_DUMMY}")
    if env("LNW", 0):
        A("s_waitcnt vmcnt(0)")
        A("ds_write_b32 v5, v6")
        A("v_add_u32 v5, 64, v5")
    else:
        A("s_waitcnt vmcnt(8)")
    A("s_branch L_kgen_v")
    A.label("L_ln_C")
    A.extend(ya_prefill(T + 2, T + 3, T + 4))
    A(f"""
    v_mov_b32 v30, {L_FLAG+96}
    s_waitcnt vmcnt(0)
    ds_write_b32 v5, v6
    """)
    A.extend(yflag_off()); A.extend(wave_flag("s28", 34))
    A(f"""
    L_ln_cs:
    ds_read_b128 v[36:39], v30
    ds_read_b128 v[40:43], v30 offset:16
    s_waitcnt lgkmcnt(0)
    v_and_b32 v36, v36, v37
    v_and_b32 v38, v38, v39
    v_and_b32 v40, v40, v41
    v_and_b32 v42, v42, v43
    v_and_b32 v36, v36, v38
    v_and_b32 v40, v40, v42
    v_and_b32 v36, v36, v40
    s_nop 0
    v_readfirstlane_b32 s28, v36
    s_cmp_eq_u32 s28, 1
    s_cbranch_scc0 L_ln_cs
    """)
    publish_flag(A, "s33", 32, "l", 0)
    A.st("gstart")
    A(f"s_mov_b32 s33, {WS_DUMMY}")
    if EPE: A.extend(ep_early(28))
    TH = env("TH", 0)
    for sl in range(12):
        A.extend(wdma(sl, sl))
        if TH: A(f"s_waitcnt vmcnt({TH})")
    A("s_waitcnt vmcnt(0)")
    for sl in range(12): A.extend(w2tr(sl, sl))
    A(f"""
    v_mov_b32 v28, {L_FLAG+16}
    L_ln_cw:
    ds_read_b128 v[32:35], v28
    s_waitcnt lgkmcnt(0)
    v_and_b32 v32, v32, v33
    v_and_b32 v34, v34, v35
    v_and_b32 v32, v32, v34
    s_nop 0
    v_readfirstlane_b32 s28, v32
    s_cmp_eq_u32 s28, 1
    s_cbranch_scc0 L_ln_cw
    """)
    for sl in range(12): A.extend(wdma(sl, 12 + sl))
    A(f"""
    s_lshl_b32 s28, s20, 8
    s_add_u32 s28, s28, s2
    s_cmp_lg_u32 s28, 255
    s_cbranch_scc1 L_nobump
    v_lshlrev_b32 v28, {FS+1}, v0
    s_mov_b32 s30, 0
    L_bump_poll:
    """)
    for k in range(4):
        A(f"s_mov_b32 s28, {WS_FLY + k*(128 << FS)}")
        A(f"buffer_load_dword v{32+k}, v28, s[12:15], s28 offen {SC}")
    A(f"""
    s_add_u32 s30, s30, 1
    s_waitcnt vmcnt(0)
    v_xor_b32 v32, s76, v32
    v_xor_b32 v33, s76, v33
    v_xor_b32 v34, s76, v34
    v_xor_b32 v35, s76, v35
    v_or3_b32 v32, v32, v33, v34
    v_or_b32 v32, v32, v35
    v_cmp_ne_u32 vcc, 0, v32
    s_cmp_gt_u32 s30, {SPIN}
    s_cbranch_scc1 L_bump_go
    s_cbranch_vccnz L_bump_poll
    L_bump_go:
    s_mov_b32 s28, {WS_EPOCH}
    """)
    A.extend(wave_flag("s28", 28))
    A.label("L_nobump")
    A("s_mov_b32 s37, 1")
    A("s_branch L_gemm2")


def final_addr(A):
    A(f"""
    v_lshrrev_b32 v1, 3, v0
    v_and_b32 v2, 7, v0
    v_lshlrev_b32 v{VOO}, 10, v1
    v_lshl_add_u32 v{VOO}, v2, 4, v{VOO}
    v_lshlrev_b32 v3, 4, v2
    s_lshl_b32 s33, s78, 6
    s_lshl_b32 s28, s20, 3
    s_add_u32 s33, s33, s28
    s_lshl_b32 s33, s33, 10
    s_lshl_b32 s34, s79, 7
    s_add_u32 s33, s33, s34
    """)
def ep_loads():
    o = Asm()
    srd(o, 8, "s50", "s51", 1024)
    o(f"buffer_load_dwordx4 v[{VX}:{VX+3}], v{VOO}, s[4:7], s33 offen")
    o(f"buffer_load_dwordx4 v[{VB2}:{VB2+3}], v3, s[8:11], s34 offen")
    return o.lines


def ep_early(vt):
    return [f"v_lshrrev_b32 v{vt}, 3, v0", f"v_and_b32 v{vt+1}, 7, v0", f"v_lshlrev_b32 v{vt}, 10, v{vt}", f"v_lshlrev_b32 v{vt+1}, 4, v{vt+1}",
            f"v_add_u32 v{vt}, v{vt}, v{vt+1}", "s_lshl_b32 s29, s78, 6", "s_lshl_b32 s28, s20, 3", "s_add_u32 s29, s29, s28", "s_lshl_b32 s29, s29, 10",
            "s_lshl_b32 s30, s79, 7", "s_add_u32 s29, s29, s30", "s_mov_b32 s8, s50", "s_mov_b32 s9, s51", "s_mov_b32 s10, 1024", "s_mov_b32 s11, 0x00020000",
            f"buffer_load_dwordx4 v[{VX}:{VX+3}], v{vt}, s[4:7], s29 offen", f"buffer_load_dwordx4 v[{VB2}:{VB2+3}], v{vt+1}, s[8:11], s30 offen"]

def gen_gemm2(A):
    VHO, VTR2, VP, VT = 13, 14, 18, 22
    ACC, W, H = ACC2, W2R, HR
    if PRIO_G: A(f"s_setprio {PRIO_G}")
    A("s_mov_b32 s22, s33")
    final_addr(A)
    for k in range(4): A(f"v_mov_b32 v{VTR2+k}, v{VTL+k}")
    A(f"""
    v_lshlrev_b32 v{VHO}, 4, v0
    v_lshrrev_b32 v{VT}, 5, v0
    v_xor_b32 v{VT}, v{VT}, v2
    v_and_b32 v{VP}, 31, v0
    v_lshlrev_b32 v{VP}, 8, v{VP}
    v_lshl_add_u32 v{VP}, v{VT}, 4, v{VP}
    v_add_u32 v{VP}, s73, v{VP}
    v_xor_b32 v{VP+1}, 32, v{VP}
    v_xor_b32 v{VP+2}, 64, v{VP}
    v_xor_b32 v{VP+3}, 96, v{VP}
    s_mul_i32 s24, s78, {2*112*1024}
    s_mul_i32 s28, s20, {28*1024}
    s_add_u32 s24, s24, s28
    s_add_u32 s24, s24, {WS_HF}
    s_add_u32 s25, s24, {112*1024}
    s_mul_i32 s26, s20, {1 if HP else 7}
    s_lshl_b32 s28, s78, {2 if HP else 5}
    s_add_u32 s26, s26, s28
    s_lshl_b32 s26, s26, 7
    s_add_u32 s26, s26, {WS_FLH}
    v_min_u32 v{VT}, 6, v2
    v_lshlrev_b32 v{VT}, {2 if HP else 7}, v{VT}
    s_lshl_b32 s28, s20, 2
    s_add_u32 s28, s28, {L_FLAG+16}
    v_mov_b32 v{ACC+4}, s28
    v_mov_b32 v{ACC+5}, 1
    ds_write_b32 v{ACC+4}, v{ACC+5} offset:16
    s_mov_b32 s30, 0
    s_cmp_eq_u32 s37, 1
    s_cbranch_scc1 L_g2_poll
    """)
    A.st("prew")
    A("s_waitcnt vmcnt(0)")
    A.extend(wave_flag("s22", ACC))
    A.st("p2bar")
    A(f"""
    L_g2_rr:
    ds_read_b32 v{ACC+5}, v{ACC+4}
    s_waitcnt lgkmcnt(0)
    v_readfirstlane_b32 s28, v{ACC+5}
    s_cmp_eq_u32 s28, 1
    s_cbranch_scc0 L_g2_rr
    """)
    for sl in range(3): A.extend(w2tr(sl, sl, VTR2))
    for sl in range(12):
        left = min(12, sl + 3) - sl - 1
        A(f"s_waitcnt lgkmcnt({4*left})")
        if sl + 3 < 12: A.extend(w2tr(sl + 3, sl + 3, VTR2))
        if EP and sl == 12 - EP: A(f"buffer_load_dword v{ACC+2}, v{VT}, s[12:15], s26 offen {SC}")
        A.extend(wdma(sl, 12 + sl))
    if EP:
        A(f"""
        s_waitcnt vmcnt({2*EP})
        v_cmp_ne_u32 vcc, s76, v{ACC+2}
        s_cbranch_vccz L_g2_go
        """)
    A.st("s5")
    A.label("L_g2_poll")
    if PG: A(f"s_sleep {PG}")
    A(f"""
    buffer_load_dword v{ACC+2}, v{VT}, s[12:15], s26 offen {SC}
    s_add_u32 s30, s30, 1
    s_waitcnt vmcnt(0)
    v_cmp_ne_u32 vcc, s76, v{ACC+2}
    s_cmp_gt_u32 s30, {SPIN}
    s_cbranch_scc1 L_g2_go
    s_cbranch_vccnz L_g2_poll
    """)
    A.label("L_g2_go")
    vm = VMQ()
    for sl in range(12 - EP, 12): vm.note(("w", 12 + sl), 2)
    A.st("s6")
    def hload(kp):
        sl = kp % HD
        vm.note(("h", kp), 2)
        return koff("s31", ORDER[kp]) + ["s_add_u32 s27, s31, s24", "s_add_u32 s31, s31, s25",
                                  f"buffer_load_dwordx4 v[{H+8*sl}:{H+8*sl+3}], v{VHO}, s[12:15], s27 offen {SCL}",
                                  f"buffer_load_dwordx4 v[{H+8*sl+4}:{H+8*sl+7}], v{VHO}, s[12:15], s31 offen {SCL}"]
    H0 = env("H0", 9)
    for kp in range(H0): A.extend(hload(kp))
    nh = [H0]
    def more(kp, n):
        for _ in range(n):
            if nh[0] < 28 and nh[0] <= kp - 1 + HD:
                A.extend(hload(nh[0])); nh[0] += 1
    if PRIO_G: A(f"s_setprio {env('PRIOG2', 0)}")
    inring = lambda k: ORDER[k] >= 12
    wset = lambda k: ((k % 2) if k < 24 else k - 24) if inring(k) else ORDER[k]
    slot_of = lambda k: (ORDER[k] - 12) % 12
    for kp in range(28 - TS):
        nx = kp + 1
        if TS and kp >= 20 and kp < 24: nx = kp + 4
        if TS and kp >= 24: nx = 99
        if inring(kp): A("s_waitcnt lgkmcnt(0)")
        A.extend(vm.wait(("h", kp)))
        if kp in (4, 9, 14, 19): A.st(f"k{kp}")
        b = W + 8 * wset(kp); sl = kp % HD
        mf = []
        for tb in range(2):
            for db in range(2):
                c = ACC + 32 * tb + 16 * db
                cin = "0" if kp == 0 else f"v[{c}:{c+15}]"
                mf.append(f"v_mfma_f32_32x32x16_bf16 v[{c}:{c+15}], v[{b+4*db}:{b+4*db+3}], v[{H+8*sl+4*tb}:{H+8*sl+4*tb+3}], {cin}")
        A(mf[0])
        if nx < 28 and inring(nx):
            A.extend(vm.wait(("w", ORDER[nx])))
            A.extend(w2tr(slot_of(nx), wset(nx), VTR2))
        A(mf[1])
        more(kp, 1)
        A(mf[2])
        more(kp, 1)
        if 12 <= ORDER[kp] < 16:
            A.extend(wdma(ORDER[kp] - 12, ORDER[kp] + 12)); vm.note(("w", ORDER[kp] + 12), 2)
        if kp == 20 and not EPE:
            A.extend(ep_loads()); vm.note("ep", 2)
        if kp == env("SIGK", 19):
            A(f"""
            s_lshl_b32 s28, s20, 2
            s_add_u32 s28, s28, {L_FLAG+48}
            v_mov_b32 v{VT}, s28
            v_mov_b32 v{W}, 1
            ds_write_b32 v{VT}, v{W}
            """)
        A(mf[3])
        if kp == 0: A.st("k0")
    pw = lambda tb, db: [f"ds_write_b128 v{VP+q}, v[{ACC+32*tb+16*db+4*q}:{ACC+32*tb+16*db+4*q+3}] offset:{tb*32768+db*128}" for q in range(4)]
    if TS:
        A("s_waitcnt lgkmcnt(0)")
        A.extend(vm.wait(("h", 27)))
        prev = []
        for tb in range(2):
            for db in range(2):
                c = ACC + 32 * tb + 16 * db
                for j, kp in enumerate(range(28 - TS, 28)):
                    b_ = W + 8 * wset(kp); sl = kp % HD
                    A(f"v_mfma_f32_32x32x16_bf16 v[{c}:{c+15}], v[{b_+4*db}:{b_+4*db+3}], v[{H+8*sl+4*tb}:{H+8*sl+4*tb+3}], v[{c}:{c+15}]")
                    if j >= 1 and prev: A.extend(prev[:2]); prev = prev[2:]
                A.extend(prev); prev = pw(tb, db)
        A.st("s7")
        A.extend(prev)
    else:
        A.st("s7")
        for tb in range(2):
            for db in range(2): A.extend(pw(tb, db))
    A("s_waitcnt vmcnt(0) lgkmcnt(0)")
    A("s_branch L_final")


def gen_conv(A):
    if PRIO_C: A(f"s_setprio {PRIO_C}")
    VTA, VF = 32, 36
    VXN, VBW, VOWN, VPAR = 37, 38, 39, 40
    T0 = 42
    dsk = P0 + 7
    ACC = 48; FB = [80, 112]; TB = [144, 208]
    XN = 196
    final_addr(A)
    A(f"""
    s_mov_b32 s21, s39
    s_lshr_b32 s35, s21, 1
    s_and_b32 s36, s21, 1
    s_mul_i32 s38, s35, {CH_SIZE}
    s_add_u32 s38, s38, {L_CH}
    s_lshl_b32 s27, s21, 13
    s_add_u32 s27, s27, {L_ST2}
    s_xor_b32 s32, s27, {ST2}
    v_and_b32 v{T0}, 15, v0
    v_lshrrev_b32 v{T0+1}, 4, v0
    v_and_b32 v{T0+2}, 1, v0
    v_mul_u32_u24 v{T0+2}, {OFF_O + 2 - OFF_E}, v{T0+2}
    s_lshl_b32 s31, s36, 8
    s_sub_u32 s31, s38, s31
    s_add_u32 s29, s31, {OFF_O + 2*2032 - 512 - 192}
    v_lshlrev_b32 v{T0+3}, 1, v{T0}
    v_sub_u32 v{VTA}, s29, v{T0+3}
    v_lshl_add_u32 v{VTA}, v{T0+1}, 4, v{VTA}
    v_sub_u32 v{VTA}, v{VTA}, v{T0+2}
    v_subrev_u32 v{VTA+1}, 1024, v{VTA}
    v_subrev_u32 v{VTA+2}, 2048, v{VTA}
    v_subrev_u32 v{VTA+3}, 3072, v{VTA}
    """)
    def freads(rr, fb): return [f"ds_read_b128 v[{fb+4*m}:{fb+4*m+3}], v{VF} offset:{512*m + 64*(3-rr)}" for m in range(8)]
    def treads(rr, tb):
        o = []
        for i in range(8):
            off = 128 * (1 - (i & 1)) + 16 * (3 - rr)
            o.append(f"ds_read2_b32 v[{tb+4*i}:{tb+4*i+1}], v{VTA+i//2} offset0:{off} offset1:{off+1}")
            o.append(f"ds_read2_b32 v[{tb+4*i+2}:{tb+4*i+3}], v{VTA+i//2} offset0:{off+2} offset1:{off+3}")
        return o
    A(f"""
    v_lshl_add_u32 v19, v0, 4, s38
    s_add_u32 s29, s31, {480 - 192}
    v_lshlrev_b32 v{VF}, 5, v{T0}
    v_lshl_add_u32 v{VF}, v{T0+1}, 4, v{VF}
    v_add_u32 v{VF}, s29, v{VF}
    v_lshlrev_b32 v{VXN}, 5, v{T0}
    v_lshl_add_u32 v{VXN}, v{T0+1}, 3, v{VXN}
    v_add_u32 v{VBW}, s27, v{VXN}
    s_lshl_b32 s28, s36, 11
    s_add_u32 s28, s28, s38
    v_add_u32 v{VXN}, s28, v{VXN}
    v_lshl_add_u32 v{VOWN}, v0, 4, s27
    v_lshl_add_u32 v{VPAR}, v0, 4, s32
    v_mov_b32 v13, 1
    s_lshl_b32 s29, s21, 2
    s_add_u32 s29, s29, {L_FLAG}
    v_mov_b32 v14, s29
    s_xor_b32 s29, s29, 4
    v_mov_b32 v15, s29
    v_lshlrev_b32 v18, 4, v0
    """)
    A(f"""
    L_cv_ex:
    ds_read_b32 v16, v15 offset:64
    s_waitcnt lgkmcnt(0)
    v_readfirstlane_b32 s28, v16
    s_cmp_eq_u32 s28, 1
    s_cbranch_scc0 L_cv_ex
    """)
    A.extend(treads(0, TB[0]))
    A("s_cmp_eq_u32 s37, 1")
    A("s_cbranch_scc1 L_cv_uok")
    if env("HT2", 0): A("s_waitcnt vmcnt(0)"); A.extend(ring_ready(20))
    u_spin(A, 20, 18)
    A.label("L_cv_uok")
    A(f"s_waitcnt vmcnt({8 if env('HT2', 0) else 0})")
    if not UDMA:
        for k in range(4): A(f"ds_write_b128 v19, v[{XL+4*k}:{XL+4*k+3}] offset:{512 + k*1024}")
    A.extend(freads(0, FB[0]))
    A.st("s4")
    if GPK == 1:
        A(f"""
        v_mov_b32 v17, {L_FLAG+32}
        L_cv_gd:
        ds_read_b128 v[20:23], v17
        s_waitcnt lgkmcnt(0)
        v_and_b32 v20, v20, v21
        v_and_b32 v22, v22, v23
        v_and_b32 v20, v20, v22
        s_nop 0
        v_readfirstlane_b32 s28, v20
        s_cmp_eq_u32 s28, 1
        s_cbranch_scc0 L_cv_gd
        """)
    A.st("s5")
    for rp in range(4):
        fb, tb = FB[rp % 2], TB[rp % 2]
        mm = []
        for i in range(8):
            for j in range(i, 8):
                cin = "0" if (rp == 0 and i == 0) else f"v[{ACC+4*j}:{ACC+4*j+3}]"
                mm.append(f"v_mfma_f32_16x16x32_bf16 v[{ACC+4*j}:{ACC+4*j+3}], v[{tb+4*i}:{tb+4*i+3}], v[{fb+4*(j-i)}:{fb+4*(j-i)+3}], {cin}")
        if rp == 1:
            if env("HT2", 0): A("s_waitcnt vmcnt(0)"); A.extend(ring_ready(20))
            if not EPE: A.extend(ep_loads())
        if HT and rp == env("HTP", 3):
            A(f"""
            s_lshl_b32 s28, s24, 2
            s_add_u32 s28, s28, s21
            s_mul_i32 s28, s28, {56*128}
            s_mul_i32 s29, s23, {8*112*1024}
            s_add_u32 s28, s28, s29
            s_add_u32 s28, s28, {WS_HF}
            v_min_u32 v{T0}, 55, v0
            v_lshlrev_b32 v{T0}, 7, v{T0}
            buffer_load_dword v20, v{T0}, s[12:15], s28 offen {SC}
            """)
        if rp == 0:
            o = []
            for j in range(8): o += [f"s_waitcnt lgkmcnt({7-j})", mm[j]]
            mm = o + interleave(mm[8:], freads(1, FB[1]) + treads(1, TB[1]), 0, 22)
        else:
            A("s_waitcnt lgkmcnt(0)")
            if rp < 3: mm = interleave(mm, freads(rp + 1, FB[(rp + 1) % 2]) + treads(rp + 1, TB[(rp + 1) % 2]), 0, 26)
            else: mm = interleave(mm, [f"ds_read_b64 v[{XN+2*a_}:{XN+2*a_+1}], v{VXN} offset:{512 + a_*512}" for a_ in range(4)], 0, 8)
        A.extend(mm)
    A.st("s6")
    A("s_cmp_eq_u32 s36, 1")
    A("s_cbranch_scc1 L_cv_x1")
    for a_ in range(4): A(f"ds_write_b128 v{VOWN}, v[{ACC+16+4*a_}:{ACC+16+4*a_+3}] offset:{4096 + a_*1024}")
    A("ds_write_b32 v14, v13")
    A("s_branch L_cv_out")
    A.label("L_cv_x1")
    A("s_nop 7")
    for a_ in range(4): A(f"ds_write_b128 v{VOWN}, v[{ACC+4*a_}:{ACC+4*a_+3}] offset:{4096 + a_*1024}")
    A("ds_write_b32 v14, v13")
    for k in range(16): A(f"v_mov_b32 v{ACC+k}, v{ACC+16+k}")
    A.label("L_cv_out")
    A(f"""
    """)
    A.extend(ya_addr(41, T0))
    A(f"""
    v_mov_b32 v{T0+2}, 0xfffffffe
    s_waitcnt lgkmcnt(5)
    """)
    t = 80; z = 96; YP = 112
    for k in range(8):
        A(f"v_lshlrev_b32 v{t+2*k}, 16, v{XN+k}")
        A(f"v_and_b32 v{t+2*k+1}, 0xffff0000, v{XN+k}")
    for k in range(16): A(f"v_fma_f32 v{ACC+k}, v{t+k}, v{dsk}, v{ACC+k}")
    A.label("L_cv_ps1")
    A(f"""
    ds_read_b32 v16, v15
    s_waitcnt lgkmcnt(0)
    v_readfirstlane_b32 s28, v16
    s_cmp_eq_u32 s28, 1
    s_cbranch_scc0 L_cv_ps1
    """)
    for a_ in range(4): A(f"ds_read_b128 v[{YP+4*a_}:{YP+4*a_+3}], v{VPAR} offset:{4096 + a_*1024}")
    for a_ in range(4):
        A("s_waitcnt lgkmcnt(3)")
        for k in range(4): A(f"v_add_f32 v{ACC+4*a_+k}, v{ACC+4*a_+k}, v{YP+4*a_+k}")
        for k in range(2): A(f"v_cvt_pk_bf16_f32 v{z+2*a_+k}, v{ACC+4*a_+2*k}, v{ACC+4*a_+2*k+1}")
        for k in range(2): A(f"v_min_u32 v{z+2*a_+k}, v{z+2*a_+k}, v{T0+2}")
        A(f"ds_write_b64 v{VBW}, v[{z+2*a_}:{z+2*a_+1}] offset:{a_*512}")
    for h in range(2): A(f"ds_read_b128 v[{t+4*h}:{t+4*h+3}], v{VOWN} offset:{h*1024}")
    for h in range(2):
        A(f"s_waitcnt lgkmcnt({1-h})")
        A(f"buffer_store_dwordx4 v[{t+4*h}:{t+4*h+3}], v41, s[12:15], s{30+h} offen {SC}")
    Y = 160
    A(f"""
    v_lshlrev_b32 v{T0}, 8, v1
    v_lshl_add_u32 v{T0}, v2, 4, v{T0}
    s_lshl_b32 s28, s79, 5
    s_add_u32 s28, s28, s78
    s_lshl_b32 s28, s28, 13
    s_lshl_b32 s29, s21, 11
    s_add_u32 s28, s28, s29
    s_add_u32 s28, s28, {WS_YA}
    v_lshlrev_b32 v{T0+1}, 8, v2
    v_lshl_add_u32 v{T0+1}, v2, 4, v{T0+1}
    v_lshl_add_u32 v{T0+1}, v1, 2, v{T0+1}
    v_add_u32 v{T0+1}, s27, v{T0+1}
    v_mov_b32 v{T0+3}, 0x05040100
    v_mov_b32 v{T0+4}, 0x07060302
    s_mov_b32 s30, 0
    """)
    A.st("s7")
    A(f"""
    v_mov_b32 v17, {L_FLAG+48}
    L_cv_w19:
    s_sleep 2
    ds_read_b128 v[20:23], v17
    s_waitcnt lgkmcnt(0)
    v_and_b32 v20, v20, v21
    v_and_b32 v22, v22, v23
    v_and_b32 v20, v20, v22
    s_nop 0
    v_readfirstlane_b32 s29, v20
    s_cmp_eq_u32 s29, 1
    s_cbranch_scc0 L_cv_w19
    L_cv_poll2:
    buffer_load_dwordx4 v[{Y}:{Y+3}], v{T0}, s[12:15], s28 offen {SC}
    buffer_load_dwordx4 v[{Y+4}:{Y+7}], v{T0}, s[12:15], s28 offen offset:128 {SC}
    s_waitcnt vmcnt(0)
    v_max_u32 v{Y+8}, v{Y}, v{Y+1}
    v_max3_u32 v{Y+8}, v{Y+8}, v{Y+2}, v{Y+3}
    v_max3_u32 v{Y+8}, v{Y+8}, v{Y+4}, v{Y+5}
    v_max3_u32 v{Y+8}, v{Y+8}, v{Y+6}, v{Y+7}
    v_cmp_eq_u32 vcc, -1, v{Y+8}
    s_cbranch_vccz L_cv_got
    s_sleep 4
    s_add_u32 s30, s30, 1
    s_cmp_lt_u32 s30, {SPIN}
    s_cbranch_scc1 L_cv_poll2
    """)
    A.label("L_cv_got")
    A.st("got")
    for k in range(4):
        A(f"v_perm_b32 v{Y+8+2*k}, v{Y+4+k}, v{Y+k}, v{T0+3}")
        A(f"v_perm_b32 v{Y+9+2*k}, v{Y+4+k}, v{Y+k}, v{T0+4}")
    for i in range(8): A(f"ds_write_b32 v{T0+1}, v{Y+8+i} offset:{i*32}")
    A("s_waitcnt lgkmcnt(0)")


def gen_final(A):
    P = 32
    A(f"""
    v_lshlrev_b32 v13, 1, v2
    v_xor_b32 v13, v13, v1
    v_lshlrev_b32 v13, 4, v13
    v_lshl_add_u32 v13, v1, 8, v13
    s_and_b32 s28, s20, 3
    s_lshl_b32 s28, s28, 11
    s_lshr_b32 s29, s20, 2
    s_lshl_b32 s29, s29, 15
    s_add_u32 s28, s28, s29
    v_add_u32 v13, s28, v13
    v_xor_b32 v14, 16, v13
    v_lshrrev_b32 v15, 1, v2
    v_lshlrev_b32 v15, 13, v15
    v_lshl_add_u32 v15, v1, 5, v15
    v_and_b32 v16, 1, v2
    v_lshl_add_u32 v15, v16, 4, v15
    s_mul_i32 s28, s20, 272
    s_add_u32 s28, s28, {L_ST2}
    v_add_u32 v15, s28, v15
    """)
    srd(A, 8, "s52", "s53", 2 << 20)
    X, Yv, B = 64, 72, 80
    def unpack(d, s_):
        for k in range(4):
            A(f"v_lshlrev_b32 v{d+2*k}, 16, v{s_+k}")
            A(f"v_and_b32 v{d+2*k+1}, 0xffff0000, v{s_+k}")
    def pack(d, s_):
        for k in range(4): A(f"v_cvt_pk_bf16_f32 v{d+k}, v{s_+2*k}, v{s_+2*k+1}")
    unpack(X, VX); unpack(B, VB2)
    if not FR:
        for k in range(8): A(f"v_add_f32 v{X+k}, v{X+k}, v{B+k}")
    A("s_barrier")
    A.st("fin")
    A(f"ds_read_b128 v[16:19], v15")
    for w in range(4):
        A(f"ds_read_b128 v[{P+8*w}:{P+8*w+3}], v13 offset:{w*8192}")
        A(f"ds_read_b128 v[{P+8*w+4}:{P+8*w+7}], v14 offset:{w*8192}")
    A("s_waitcnt lgkmcnt(8)")
    unpack(Yv, 16)
    for k in range(8): A(f"v_add_f32 v{X+k}, v{X+k}, v{Yv+k}")
    if FR: pack(20, X); unpack(X, 20)
    A("s_waitcnt lgkmcnt(4)")
    for k in range(8): A(f"v_add_f32 v{P+k}, v{P+k}, v{P+8+k}")
    A("s_waitcnt lgkmcnt(0)")
    for k in range(8): A(f"v_add_f32 v{P+16+k}, v{P+16+k}, v{P+24+k}")
    for k in range(8): A(f"v_add_f32 v{P+k}, v{P+k}, v{P+16+k}")
    if FR:
        pack(24, P); unpack(P, 24)
        for k in range(8): A(f"v_add_f32 v{P+k}, v{P+k}, v{B+k}")
        pack(24, P); unpack(P, 24)
    for k in range(8): A(f"v_add_f32 v{P+k}, v{P+k}, v{X+k}")
    pack(28, P)
    A(f"buffer_store_dwordx4 v[28:31], v{VOO}, s[8:11], s33 offen {os.environ.get('SCO', '')}")
    if STAMPS: A("s_waitcnt vmcnt(0)")
    A.stamp_flush(0)
    A("s_endpgm")


def gen():
    A = Asm()
    A.stamp(0, True); A.stamp(1)
    for k in range(2, 9): A.stamp(k)
    A(f"""
    s_cmp_ge_u32 s2, 256
    s_cbranch_scc1 L_exit
    s_load_dwordx2 s[40:41], s[0:1], {KA['u']}
    s_load_dwordx8 s[44:51], s[0:1], {KA['w1']}
    s_load_dwordx4 s[52:55], s[0:1], {KA['out']}
    s_load_dwordx2 s[42:43], s[0:1], {KA['ws']}
    v_lshrrev_b32 v1, 6, v0
    v_and_b32 v0, 63, v0
    s_and_b32 s23, s2, 7
    s_lshr_b32 s24, s2, 3
    v_readfirstlane_b32 s20, v1
    s_and_b32 s25, s24, 3
    s_lshr_b32 s77, s24, 2
    s_and_b32 s79, s77, 3
    s_cmp_eq_u32 s79, 3
    s_cselect_b32 s79, {4 if env("SW", 1) else 0}, 0
    s_xor_b32 s79, s79, s77
    s_lshl_b32 s78, s23, 2
    s_add_u32 s78, s78, s25
    s_mul_i32 s74, {'s23' if ROT & 4 else 's79'}, {3584 if ROT & 5 else 0}
    s_and_b32 s74, s74, 0xfffffc00
    s_mul_i32 s75, s25, {7168 if ROT & 2 else 0}
    s_add_u32 s74, s74, s75
    s_sub_u32 s75, s74, {28*1024}
    s_min_u32 s74, s74, s75
    s_and_b32 s39, s20, 3
    s_cmp_eq_u32 s77, 7
    s_cbranch_scc1 L_ln
    """)
    if LOC:
        A("""
        s_and_b32 s21, s24, 1
        s_lshl_b32 s22, s23, 1
        s_add_u32 s21, s21, s22
        s_lshr_b32 s22, s24, 1
        """)
    else:
        A("""
        s_lshr_b32 s21, s23, 1
        s_lshl_b32 s21, s21, 2
        s_add_u32 s21, s21, s25
        s_and_b32 s22, s23, 1
        s_mul_i32 s22, s22, 7
        s_add_u32 s22, s22, s77
        """)
    gen_gemm1(A)
    A.label("L_ln")
    A("s_nop 0 ; RESETSB")
    A("s_mov_b32 s21, s78")
    gen_ln(A)
    A.label("L_gemm2")
    A("s_nop 1 ; RESETSB")
    gen_gemm2(A)
    A.label("L_conv")
    A("s_nop 1 ; RESETSB")
    gen_conv(A)
    A.label("L_final")
    A("s_nop 7")
    gen_final(A)
    A.label("L_exit")
    A("s_endpgm")
    lines = fix_hazards(A.lines, verbose=True)
    check_waits(lines, "s")
    head = open("parallel_sum__ssm_conv_s4__dense_activation_gelu__prompt.s.ref").read().split("; Override launch")[0]
    head += f"; @launch grid=(256,1,1) block=(512,1,1) lds={LDS_TOTAL}\n.amdgcn_target \"amdgcn-amd-amdhsa--gfx950\"\n"
    return head + kernel_section(KNAME, lines, 256, 102, 256)

if __name__ == "__main__":
    out = sys.argv[1] if len(sys.argv) > 1 else "cur8.s"
    open(out, "w").write(gen())
    print("wrote", out)
```

```python
from asmlib import *
import struct, math, os, sys

def f2u(x): return struct.unpack("<I", struct.pack("<f", x))[0]
def env(n, d): return int(os.environ.get(n, str(d)))

KNAME = "parallel_sum__ssm_conv_s4__dense_activation_gelu__prompt_kernel"
KA = dict(u=0, A_re=8, A_im=16, B_re=24, B_im=32, C_re=40, C_im=48, log_dt=56, Dskip=64, Bx=72, w1=80, b1=88, w2=96, b2=104,
          out=112, dbg=120, ws=128)
WS_FLL = 32768
WS_EPOCH = 49152
WS_DUMMY = 53248
WS_STAT = 65536
WS_FLH = 131072
WS_FLY = 262144
WS_HF = 1 << 20
WS_XNT = 8 << 20
WS_YA = 12 << 20
WS_USED = 14 << 20

LOG2E = 1.4426950408889634
GC1 = -2.0 * LOG2E * 0.7978845608028654
GC2 = GC1 * 0.044715

NS, STAGE = 4, 32768
RSL = 12
RING = RSL * 2048
L_KST = 98304; KST = 8704
L_ST2 = 98304; ST2 = 8192
L_CH = 131072; CH_SIZE = 13056
OFF_E, OFF_O = 4608, 8768
L_FLAG = L_CH + 2 * CH_SIZE
L_CS = L_FLAG + 512
LDS_TOTAL = 163840
L_VS = 98304; L_US = 98304

OPT_PF = env("PF", 2)
PRE = env("PRE", 3)
PRIO_C = env("PRIOC", 1)
PRIO_G = env("PRIOG", 2)
PRIO_E = env("PRIOE", 0)
ROT = env("ROT", 4)
BARP = env("BARP", 2)
STATG = env("STATG", 21)
SC = os.environ.get("SC", "sc1")
PFG = [int(x) for x in os.environ.get("PFG", "").split(",") if x]
HD = 9
FSL = env('FSL', 2)
KR = env('KR', 0)
MIX = env('MIX', 0)
XS = env('XS', 65536 + 2176)
PS = env('PS', 8)
PG = env('PG', 0)
LW1 = env('LW1', 0)
UDMA = env('UDMA', 1)
EPE = env('EPE', 1)
FS = env('FS', 2)
HP = env('HP', 1)
NB8 = env('NB8', 1)
EP = env('EP', 2)
TS = env('TS', 4)
FR = env('FR', 0)
NPK0 = env('NPK0', 3)
NC0 = env('NC0', 3)
WSOFF = env('WSOFF', 0) << 20
SCH = os.environ.get('SCH', SC)
LOC = env('LOC', 0)
GPK = env('GPK', 0)
ULN = env('ULN', 3)
HT = env('HT', 0)
SCL = os.environ.get('SCL', SC)
SPIN = 0x40000

DK, DP, EX, P0 = 224, 128, 160, 244
BF, AF, KG_G, KG_E1, KG_L, KG_V, KG_PK, KG_VW, KG_VRD = 160, 192, 108, 122, 224, 124, 132, 136, 137
L_KS2 = 131072; KS2 = 4352
XL = 180
VDUM, LNF = 252, 253
VX, VB2, VOO = 4, 8, 12
VW2 = 23
W2R, HR, ACC2 = 160, 88, 24
VTL = 24

def srd(A, d, lo, hi, size):
    A(f"s_mov_b32 s{d}, {lo}\ns_mov_b32 s{d+1}, {hi}\ns_mov_b32 s{d+2}, {size}\ns_mov_b32 s{d+3}, 0x00020000")
def round_bf16(A, r):
    A(f"v_cvt_pk_bf16_f32 v{r}, v{r}, v{r}")
    A(f"v_and_b32 v{r}, 0xffff0000, v{r}")
def zipm(*lists):
    o = []
    for k in range(max(len(l) for l in lists)):
        for l in lists:
            if k < len(l): o.append(l[k])
    return o
def mask(lo, hi=None):
    hi = lo if hi is None else hi
    return [f"s_mov_b32 s28, {lo}", f"s_mov_b32 s29, {hi}"]

class VMQ:
    def __init__(self): self.q = []
    def note(self, tag, n=1): self.q.extend([tag] * n)
    def wait(self, *tags):
        idx = max((k for k, t in enumerate(self.q) if t in tags), default=-1)
        if idx < 0: return []
        n = len(self.q) - 1 - idx
        del self.q[:idx + 1]
        return [f"s_waitcnt vmcnt({n})"]
    def younger(self): return len(self.q)

ORDER = [0, 1] + list(range(12, 24)) + list(range(2, 12)) + list(range(24, 28))

def koff(dst, lab, base="s74"):
    return [f"s_add_u32 {dst}, {base}, {lab*1024}", f"s_sub_u32 s75, {dst}, {28*1024}", f"s_min_u32 {dst}, {dst}, s75"]

def slot_addr(sl): return (sl >> 2) * 32768 + (sl & 3) * 2048

def w2_setup(A, vt):
    srd(A, 16, "s48", "s49", 1792 * 1024)
    A(f"""
    v_lshrrev_b32 v{vt}, 2, v0
    v_and_b32 v{vt}, 4, v{vt}
    v_and_b32 v{vt+1}, 7, v0
    v_xor_b32 v{vt}, v{vt}, v{vt+1}
    v_lshrrev_b32 v{vt+1}, 3, v0
    v_lshlrev_b32 v{VW2}, 10, v{vt+1}
    v_lshl_add_u32 v{VW2}, v{vt}, 4, v{VW2}
    s_mul_i32 s72, s39, {448*1024}
    s_lshl_b32 s75, s79, 7
    s_add_u32 s72, s72, s75
    s_lshl_b32 s73, s39, 13
    v_lshrrev_b32 v{vt+1}, 5, v0
    v_bfe_u32 v{vt}, v0, 2, 2
    v_lshl_add_u32 v{VTL}, v{vt+1}, 2, v{vt}
    v_lshlrev_b32 v{VTL}, 7, v{VTL}
    v_bfe_u32 v{vt}, v0, 4, 1
    v_lshl_add_u32 v{VTL}, v{vt}, 5, v{VTL}
    v_and_b32 v{vt}, 3, v0
    v_lshl_add_u32 v{VTL}, v{vt}, 3, v{VTL}
    v_bfe_u32 v{vt}, v0, 3, 1
    v_lshl_add_u32 v{VTL}, v{vt}, 6, v{VTL}
    v_add_u32 v{VTL}, s73, v{VTL}
    v_xor_b32 v{VTL+1}, 64, v{VTL}
    v_add_u32 v{VTL+2}, 0x10000, v{VTL}
    v_add_u32 v{VTL+3}, 0x10000, v{VTL+1}
    """)
def wdma(slot, lab):
    a_ = slot_addr(slot)
    return koff("s31", lab) + [f"s_add_u32 m0, s73, {a_}", "s_lshl4_add_u32 s31, s31, s72",
                               f"buffer_load_dwordx4 v{VW2}, s[16:19], s31 offen lds",
                               f"s_add_u32 m0, s73, {a_+1024}", "s_add_u32 s31, s31, 8192",
                               f"buffer_load_dwordx4 v{VW2}, s[16:19], s31 offen lds"]
def w2tr(slot, ws_, vtl=VTL):
    b = W2R + 8 * ws_; a_ = slot_addr(slot); hi = a_ >> 16; a_ &= 0xffff
    return [f"ds_read_b64_tr_b16 v[{b+4*db+2*sec}:{b+4*db+2*sec+1}], v{vtl+2*hi+db} offset:{a_+sec*1024}" for db in range(2) for sec in range(2)]

def param_loads(A, vt):
    A(f"""
    s_lshr_b32 s28, s39, 1
    s_lshl_b32 s30, s2, 1
    s_add_u32 s30, s30, s28
    v_lshlrev_b32 v{vt}, 1, v0
    v_mov_b32 v{vt+1}, 0
    s_lshl_b32 s29, s30, 8
    s_and_b32 s28, s20, 1
    s_lshl_b32 s28, s28, 7
    s_add_u32 s29, s29, s28
    s_lshl_b32 s30, s30, 1
    s_mov_b32 s18, 1024
    s_mov_b32 s19, 0x00020000
    """)
    for k in range(8): A(f"v_mov_b32 v{P0+k}, 0")
    A("s_waitcnt lgkmcnt(0)")
    for k in (6, 7, 0, 1, 2, 3, 4, 5):
        if k == 0: A("s_mov_b32 s18, 131072")
        A(f"s_mov_b32 s16, s{56+2*k}\ns_mov_b32 s17, s{57+2*k}")
        if k < 6: A(f"buffer_load_short_d16_hi v{P0+k}, v{vt}, s[16:19], s29 offen")
        else: A(f"buffer_load_short_d16_hi v{P0+k}, v{vt+1}, s[16:19], s30 offen")

def lnflag_load(vt):
    return ["s_lshl_b32 s29, s79, 6", "s_lshl_b32 s28, s39, 4", "s_add_u32 s29, s29, s28", "s_lshr_b32 s28, s78, 4", "s_lshl_b32 s28, s28, 9",
            "s_add_u32 s29, s29, s28", f"s_lshl_b32 s29, s29, {FS}", f"s_add_u32 s29, s29, {WS_FLY}",
            f"v_lshlrev_b32 v{vt}, {FSL}, v0", f"v_add_u32 v{vt}, {WS_FLL}, v{vt}",
            f"v_and_b32 v{vt+1}, 15, v0", f"v_lshl_add_u32 v{vt+1}, v{vt+1}, {FS}, s29", "s_mov_b32 s28, 0", "s_mov_b32 s29, -1",
            f"v_cndmask_b32 v{vt}, v{vt}, v{vt+1}, s[28:29]",
            f"buffer_load_dword v{LNF}, v{vt}, s[12:15], 0 offen {SC}"]

def u_issue(A, vl16):
    A(f"""
    s_lshr_b32 s28, s39, 1
    s_lshl_b32 s29, s2, 1
    s_add_u32 s29, s29, s28
    s_lshl_b32 s29, s29, {7 if XS else 12}
    s_add_u32 s29, s29, {WS_XNT}
    """)
    if UDMA:
        A(f"s_mul_i32 s28, s28, {CH_SIZE}")
        A(f"s_add_u32 m0, s28, {L_CH + 512}")
        if XS:
            A(f"""
            v_lshrrev_b32 v{XL}, 3, v0
            v_and_b32 v{XL+1}, 7, v0
            v_mul_u32_u24 v{XL}, {XS}, v{XL}
            v_lshl_add_u32 v{XL}, v{XL+1}, 4, v{XL}
            """)
            vl16 = XL
        for k in range(4):
            if XS and k: A(f"s_add_u32 s29, s29, {8*XS - 1024}")
            A(f"buffer_load_dwordx4 v{vl16}, s[12:15], s29 offen offset:{k*1024} {SC} lds")
    else:
        for k in range(4): A(f"buffer_load_dwordx4 v[{XL+4*k}:{XL+4*k+3}], v{vl16}, s[12:15], s29 offen offset:{k*1024} {SC}")

def u_try(A, vl16):
    A(f"""
    v_cmp_ne_u32 vcc, s76, v{LNF}
    s_mov_b32 s37, 0
    s_cbranch_vccnz L_ut_no
    s_mov_b32 s37, 1
    """)
    u_issue(A, vl16)
    A.label("L_ut_no")

def u_spin(A, vt, vl16, tag=''):
    A("s_mov_b32 s30, 0")
    A.label(f"L_us_poll{tag}")
    A(f"s_sleep {PS}")
    A.extend(lnflag_load(vt))
    A(f"""
    s_add_u32 s30, s30, 1
    s_waitcnt vmcnt(0)
    v_cmp_ne_u32 vcc, s76, v{LNF}
    s_cmp_gt_u32 s30, {SPIN}
    s_cbranch_scc1 L_us_ok{tag}
    s_cbranch_vccnz L_us_poll{tag}
    """)
    A.label(f"L_us_ok{tag}")
    u_issue(A, vl16)
    A("s_waitcnt vmcnt(0)")

def ya_addr(vd, vt):
    return [f"v_lshrrev_b32 v{vd}, 3, v0", f"v_and_b32 v{vt}, 7, v0", f"v_lshlrev_b32 v{vd}, 13, v{vd}", f"v_lshl_add_u32 v{vd}, v{vt}, 4, v{vd}",
            "s_lshr_b32 s28, s39, 1", "s_lshl_b32 s31, s2, 1", "s_add_u32 s31, s31, s28",
            "s_lshr_b32 s29, s31, 6", "s_lshl_b32 s29, s29, 18", "s_and_b32 s28, s31, 63", "s_lshl_b32 s28, s28, 7", "s_add_u32 s29, s29, s28",
            f"s_add_u32 s29, s29, {WS_YA}", "s_and_b32 s30, s39, 1", "s_lshl_b32 s30, s30, 17", "s_add_u32 s30, s30, s29", "s_add_u32 s31, s30, 65536"]
def ya_prefill(vd, vt, vm4):
    return ya_addr(vd, vt) + [f"v_mov_b32 v{vm4+k}, -1" for k in range(4)] + \
           [f"buffer_store_dwordx4 v[{vm4}:{vm4+3}], v{vd}, s[12:15], s{30+h} offen {SC}" for h in range(2)]

def publish_flag(A, soff, vt, tag, wave, both=False):
    A(f"""
    s_cmp_lg_u32 s20, {wave}
    s_cbranch_scc1 L_pub_skip{tag}
    v_mov_b32 v{vt}, 0
    v_mov_b32 v{vt+1}, s76
    s_mov_b64 exec, 1
    buffer_store_dword v{vt+1}, v{vt}, s[12:15], {soff} offen {SC}
    """)
    if both:
        A(f"""
        s_lshl_b32 s28, s2, 7
        s_add_u32 s28, s28, {WS_FLW}
        buffer_store_dword v{vt+1}, v{vt}, s[12:15], s28 offen {SC}
        """)
    A(f"""
    s_mov_b64 exec, -1
    L_pub_skip{tag}:
    """)
def mktag(A):
    A("s_mul_i32 s76, s76, 0x9E3779B1")
    A("s_add_u32 s76, s76, 0x7F4A7C15")
def arrive(A, tag):
    A(f"""
    s_cmp_lg_u32 s20, 3
    s_cbranch_scc1 L_arr{tag}
    s_atomic_add s77, s[54:55], 0 glc
    L_arr{tag}:
    """)

def coop_prefetch(A, vt):
    A(f"""
    s_lshl_b32 s28, s24, 2
    s_add_u32 s28, s28, s39
    s_lshl_b32 s30, s28, 6
    v_add_u32 v{vt}, s30, v0
    v_mul_u32_u24 v{vt+1}, 0x4925, v{vt}
    v_lshrrev_b32 v{vt+1}, 18, v{vt+1}
    v_mul_u32_u24 v{vt+2}, 14, v{vt+1}
    v_sub_u32 v{vt}, v{vt}, v{vt+2}
    v_lshlrev_b32 v{vt}, 7, v{vt}
    v_mul_u32_u24 v{vt+1}, 3584, v{vt+1}
    v_add_u32 v{vt}, v{vt}, v{vt+1}
    s_and_b32 s29, s23, 1
    s_mul_i32 s29, s29, 1792
    buffer_load_dword v{VDUM}, v{vt}, s[8:11], s29 offen
    s_lshr_b32 s29, s23, 1
    s_lshl_b32 s29, s29, 19
    s_lshl_b32 s30, s28, 13
    s_add_u32 s29, s29, s30
    v_lshlrev_b32 v{vt+2}, 7, v0
    """)
    if env("MP0", 1):
        A(f"""
        s_mul_i32 s31, s23, {28*8192}
        s_add_u32 s31, s31, s30
        s_sub_u32 s31, s31, {64*8192}
        s_cmp_lt_u32 s28, 92
        s_cselect_b32 s31, s31, 0x400000
        s_cmp_lt_u32 s28, 64
        s_cselect_b32 s29, s29, s31
        s_cselect_b32 s16, s40, s48
        s_cselect_b32 s17, s41, s49
        s_cselect_b32 s18, 0x200000, {1792*1024}
        s_mov_b32 s19, 0x00020000
        buffer_load_dword v{VDUM}, v{vt+2}, s[16:19], s29 offen
        """.replace("s_cselect_b32 s18, 0x200000, 1835008", "s_mov_b32 s18, 1835008\n        s_cselect_b32 s18, 0x200000, s18"))
    else:
        A(f"""
        s_cmp_lt_u32 s28, 64
        s_cselect_b32 s29, s29, 0x400000
        buffer_load_dword v{VDUM}, v{vt+2}, s[4:7], s29 offen
        """)
def coop_prefetch2(A, vt):
    srd(A, 16, "s48", "s49", 1792 * 1024)
    A(f"""
    s_lshl_b32 s28, s24, 2
    s_add_u32 s28, s28, s39
    s_mul_i32 s30, s28, 40
    v_add_u32 v{vt}, s30, v0
    v_mul_u32_u24 v{vt+1}, 0x4925, v{vt}
    v_lshrrev_b32 v{vt+1}, 18, v{vt+1}
    v_mul_u32_u24 v{vt+2}, 14, v{vt+1}
    v_sub_u32 v{vt}, v{vt}, v{vt+2}
    v_lshlrev_b32 v{vt}, 7, v{vt}
    v_mul_u32_u24 v{vt+1}, 3584, v{vt+1}
    v_add_u32 v{vt}, v{vt}, v{vt+1}
    s_mul_i32 s30, s28, 23
    v_add_u32 v{vt+1}, s30, v0
    v_min_u32 v{vt+1}, 2559, v{vt+1}
    v_mul_u32_u24 v{vt+2}, 13108, v{vt+1}
    v_lshrrev_b32 v{vt+2}, 16, v{vt+2}
    v_mul_u32_u24 v{vt+3}, 3, v{vt+2}
    v_add_u32 v{vt+1}, v{vt+1}, v{vt+3}
    v_lshlrev_b32 v{vt+1}, 7, v{vt+1}
    v_lshlrev_b32 v{vt+2}, 7, v0
    s_and_b32 s29, s23, 1
    s_mul_i32 s29, s29, 1792
    s_add_u32 s29, s29, {192*3584}
    s_mov_b32 exec_hi, {0 if (LW1 or not env("WT", 1)) else 255}
    s_mov_b32 exec_lo, {1 if (LW1 or not env("WT", 1)) else -1}
    buffer_load_dword v{VDUM}, v{vt}, s[8:11], s29 offen
    s_lshr_b32 s29, s23, 1
    s_lshl_b32 s29, s29, 19
    s_add_u32 s29, s29, 384
    s_mov_b64 exec, {"0x7fffff" if env("XT", 1) else "1"}
    buffer_load_dword v{VDUM}, v{vt+1}, s[4:7], s29 offen
    s_lshl_b32 s28, s2, 2
    s_add_u32 s28, s28, s39
    s_lshl_b32 s28, s28, 11
    s_mov_b64 exec, {os.environ.get("W2M", "1")}
    buffer_load_dword v{VDUM}, v{vt+2}, s[16:19], s28 offen
    s_mov_b64 exec, -1
    """)
def w2_prefetch(vt, piece):
    return ["s_lshl_b32 s28, s24, 2", "s_add_u32 s28, s28, s39", "s_lshl_b32 s28, s28, 14", f"s_add_u32 s28, s28, {piece*8192}",
            f"v_lshlrev_b32 v{vt}, 7, v0", f"buffer_load_dword v{VDUM}, v{vt}, s[16:19], s28 offen"]

def cmul(d, x, y, pk=True):
    P = lambda r: f"v[{r}:{r+1}]"
    assert d != x and d != y
    if pk:
        return [f"v_pk_mul_f32 {P(d)}, {P(x)}, {P(y)} op_sel:[0,0] op_sel_hi:[0,1]",
                f"v_pk_fma_f32 {P(d)}, {P(x)}, {P(y)}, {P(d)} op_sel:[1,1,0] op_sel_hi:[1,0,1] neg_lo:[0,1,0]"]
    return [f"v_mul_f32 v{d}, v{x}, v{y}", f"v_mul_f32 v{d+1}, v{x}, v{y+1}",
            f"v_fma_f32 v{d}, -v{x+1}, v{y+1}, v{d}", f"v_fma_f32 v{d+1}, v{x+1}, v{y}, v{d+1}"]

def kg_common(A, base, T0, Z, WA):
    ar, ai, br, bi, cr, ci, ld, dsk = range(P0, P0 + 8)
    u_ = f2u(LOG2E) & 0xFFFFFF00
    lh = struct.unpack("<f", struct.pack("<I", u_))[0]; ll = LOG2E - lh
    A(f"""
    v_mul_f32 v{T0}, {hex(f2u(lh))}, v{ld}
    v_mul_f32 v{T0+1}, {hex(f2u(ll * math.log(2)))}, v{ld}
    v_exp_f32 v{T0}, v{T0}
    s_nop 0
    v_fma_f32 v{T0}, v{T0}, v{T0+1}, v{T0}
    """)
    round_bf16(A, T0)
    A(f"""
    v_mul_f32 v{Z}, v{T0}, v{ar}
    v_mul_f32 v{Z+1}, v{T0}, v{ai}
    v_mul_f32 v{br}, v{T0}, v{br}
    v_mul_f32 v{bi}, v{T0}, v{bi}
    v_mul_f32 v{Z}, {hex(f2u(LOG2E))}, v{Z}
    v_mul_f32 v{Z+1}, 0.15915494, v{Z+1}
    """)
def kg_waddr(A, base, WA):
    A(f"s_lshl_b32 s28, s39, 13\ns_add_u32 s28, s28, {base}\nv_lshl_add_u32 v{WA}, v0, 2, s28")
    for k in range(1, 16): A(f"v_xor_b32 v{WA+k}, {16*k}, v{WA}")
def kg_raddr(base, d, t):
    o = ["s_lshl_b32 s28, s39, 13", f"s_add_u32 s28, s28, {base}", f"v_and_b32 v{t}, 15, v0", f"v_lshrrev_b32 v{t+1}, 5, v0", f"v_xor_b32 v{t}, v{t}, v{t+1}",
         f"v_and_b32 v{t+1}, 31, v0", f"v_lshlrev_b32 v{t+1}, 8, v{t+1}", f"v_lshl_add_u32 v{d}, v{t}, 4, v{t+1}", f"v_add_u32 v{d}, s28, v{d}"]
    return o + [f"v_xor_b32 v{d+k}, {32*k}, v{d}" for k in range(1, 8)]
def cexp(d, x, t, Z):
    xs = {1: None, 8: hex(f2u(8.0)), 256: hex(f2u(256.0))}[x]
    o = []
    if xs is None: o += [f"v_exp_f32 v{t}, v{Z}", f"v_fract_f32 v{t+1}, v{Z+1}"]
    else: o += [f"v_mul_f32 v{t}, {xs}, v{Z}", f"v_mul_f32 v{t+1}, {xs}, v{Z+1}", f"v_exp_f32 v{t}, v{t}", f"v_fract_f32 v{t+1}, v{t+1}"]
    o += [f"v_cos_f32 v{d}, v{t+1}", f"v_sin_f32 v{d+1}, v{t+1}", f"v_mul_f32 v{d}, v{d}, v{t}", f"v_mul_f32 v{d+1}, v{d+1}, v{t}"]
    return o
KWA = 100
KRA = 116

def gen_kgen_v(A):
    T0, Z, E8, E16, Va, Vb, PKT = 34, 144, 44, 46, 80, 84, 88
    kg_common(A, L_VS, T0, Z, KWA)
    A.extend(cexp(E8, 8, T0, Z))
    A.extend(cmul(E16, E8, E8))
    npk = [0]
    def emit(src, row):
        t = PKT + (npk[0] % 8); npk[0] += 1
        return [f"v_cvt_pk_bf16_f32 v{t}, v{src}, v{src+1}", f"ds_write_b32 v{KWA + (row & 15)}, v{t} offset:{row*256}"]
    A(f"v_mov_b32 v{PKT+7}, 0x00003f80")
    A(f"ds_write_b32 v{KWA}, v{PKT+7}")
    A.extend(emit(E8, 1)); A.extend(emit(E16, 2))
    ev, od = E16, E8
    for j in range(3, 32, 2):
        d1 = Va + 2 * (((j - 3) // 2) % 2)
        d2 = Vb + 2 * (((j - 3) // 2) % 2)
        l1 = cmul(d1, od, E16) + emit(d1, j)
        l2 = (cmul(d2, ev, E16) + emit(d2, j + 1)) if j + 1 < 32 else []
        A.extend(zipm(l1, l2))
        od, ev = d1, d2
    for st in range(8): A(f"ds_read_b128 v[{BF+4*st}:{BF+4*st+3}], v{KRA+st}")

UPK = 192
def kgen_u_lists(rebase):
    T0, Z, E1, G, Lr, Va = 34, 144, 42, 44, 58, 76
    ar, ai, br, bi, cr, ci, ld, dsk = range(P0, P0 + 8)
    cm = lambda d, x, y: cmul(d, x, y, False)
    V = []; Wr = []
    if rebase: V += [f"v_subrev_u32 v{KWA+k}, {rebase}, v{KWA+k}" for k in range(24)]
    V += zipm(cexp(E1, 1, T0 + 2, Z), cexp(G, 256, T0 + 4, Z), cm(Lr, cr, br))
    npk = [0]
    def emit(src, rows):
        t = UPK + npk[0]; npk[0] += 1
        Wr.extend(f"ds_write_b32 v{KWA + (row & 15)}, v{t} offset:{row*256}" for row in rows)
        return [f"v_cvt_pk_bf16_f32 v{t}, v{src}, -v{src+1}"]
    urow = lambda hh, r: 8 * (r >> 2) + 4 * hh + (r & 3)
    lch = emit(Lr, [urow(0, 0)])
    for a_ in range(1, 9): lch += cm(Lr + 2 * a_, Lr + 2 * (a_ - 1), E1) + emit(Lr + 2 * a_, [urow(0, a_)])
    gch = []
    for k in range(2, 8): gch += cm(G + 2 * (k - 1), G + 2 * (k - 2), G)
    V += zipm(lch, gch)
    jobs = [(0, 1, [urow(1, 0), urow(1, 1)]), (2, 1, [urow(1, 2)]), (4, 1, [urow(1, 3), urow(1, 4), urow(1, 5)]), (6, 1, [urow(1, 6)]),
            (8, 1, [urow(1, 7), urow(1, 8)]),
            (0, 2, [urow(0, 9)]), (4, 2, [urow(0, 10)]), (8, 2, [urow(0, 11)]),
            (0, 3, [urow(1, 9)]), (4, 3, [urow(1, 10)]), (8, 3, [urow(1, 11)]),
            (0, 4, [urow(0, 12)]), (8, 4, [urow(0, 13)]), (0, 5, [urow(0, 14)]), (8, 5, [urow(0, 15)]),
            (0, 6, [urow(1, 12)]), (8, 6, [urow(1, 13)]), (0, 7, [urow(1, 14)]), (8, 7, [urow(1, 15)])]
    for k in range(0, len(jobs), 2):
        ls = []
        for q_, (a_, gk, rows) in enumerate(jobs[k:k + 2]):
            d = Va + 4 * q_ + 2 * ((k // 2) % 2)
            ls.append(cm(d, Lr + 2 * a_, G + 2 * (gk - 1)) + emit(d, rows))
        V += zipm(*ls)
    assert npk[0] <= 32
    return V, Wr

def kg_atoms_m():
    at = [[f"ds_read_b128 v[{AF+4*k}:{AF+4*k+3}], v{KRA+k} offset:{L_US - L_VS}", ("tag", ("af", k))] for k in range(8)]
    mm = []
    for st in range(8):
        cin = "0" if st == 0 else f"v[{DK}:{DK+15}]"
        mm.append([("wait", ("af", st)), f"v_mfma_f32_32x32x16_bf16 v[{DK}:{DK+15}], v[{AF+4*st}:{AF+4*st+3}], v[{BF+4*st}:{BF+4*st+3}], {cin}"])
    return at, mm

def kg_atoms_x1():
    T0 = P0
    at = [[f"s_lshr_b32 s30, s39, 1", f"s_mul_i32 s30, s30, {CH_SIZE}", f"s_add_u32 s38, s30, {L_CH}", "s_lshl_b32 s30, s39, 13", f"s_add_u32 s30, s30, {L_VS}", f"v_lshl_add_u32 v{T0}, v0, 4, s30"]]
    at.append(["s_bitcmp1_b32 s39, 0", "s_cselect_b64 exec, -1, 0"] + [f"ds_write_b128 v{T0}, v[{DK+4*q}:{DK+4*q+3}] offset:{512+q*1024}" for q in range(3)] +
              ["s_not_b64 exec, exec", f"ds_write_b128 v{T0}, v[{DK+12}:{DK+15}] offset:{512+3072}", "s_mov_b64 exec, -1", f"v_xor_b32 v{T0}, 8192, v{T0}"])
    return at

def kg_atoms_x2(tag):
    T0 = P0; VEA, VEB = 254, 255
    at = []
    at.append([f"ds_read_b128 v[{DP+4*q}:{DP+4*q+3}], v{T0} offset:{512+q*1024}" for q in range(4)] + [("tag", "dp")])
    for i in [f"v_and_b32 v{T0+4}, 31, v0", f"v_lshrrev_b32 v{T0+1}, 5, v0", f"v_lshlrev_b32 v{T0+2}, 4, v{T0+4}"]: at.append([i])
    at.append([f"s_add_u32 s28, s38, {OFF_E + 4080 - 1024}", f"v_sub_u32 v{VEA}, s28, v{T0+2}"])
    at.append([f"v_lshlrev_b32 v{T0+3}, 9, v{T0+1}"]); at.append([f"v_sub_u32 v{VEA}, v{VEA}, v{T0+3}"])
    at.append([f"s_add_u32 s28, s38, {OFF_E + 4080 - 2560}", f"v_sub_u32 v{VEB}, s28, v{T0+2}"])
    at.append([f"v_lshlrev_b32 v{T0+3}, 10, v{T0+1}"]); at.append([f"v_sub_u32 v{VEB}, v{VEB}, v{T0+3}"])
    at.append([f"v_lshl_add_u32 v{T0}, v0, 3, s38"]); at.append([f"v_mov_b32 v{T0+2}, 0"]); at.append([f"v_mov_b32 v{T0+3}, 0"])
    at.append(["s_lshl_b32 s28, s39, 2", f"s_add_u32 s28, s28, {L_FLAG}", f"v_mov_b32 v{T0+1}, s28"])
    for k in range(16): at.append(([("wait", "dp")] if k == 0 else []) + [f"v_add_f32 v{DK+k}, v{DK+k}, v{DP+k}"])
    at.append(mask("0xaaaaaaaa") + [f"v_cndmask_b32 v{DP}, v{DK+12}, v{DK+13}, s[28:29]", f"v_cndmask_b32 v{DP+1}, v{DK+14}, v{DK+15}, s[28:29]"])
    k_ = lambda r: DK + r
    def half(base, kk, va, off, odd):
        prs = [(8, 7), (6, 5), (4, 3), (2, 1)] if odd else [(7, 6), (5, 4), (3, 2), (1, 0)]
        return [f"v_cvt_pk_bf16_f32 v{base+i}, v{kk[lo]}, v{kk[hi]}" for i, (lo, hi) in enumerate(prs)] + \
               [f"ds_write_b128 v{va}, v[{base}:{base+3}] offset:{off + (OFF_O - OFF_E if odd else 0)}"]
    ev = [([k_(i) for i in range(9)], VEA, 1024), ([k_(9)] * 3 + [k_(10)] * 3 + [k_(11)] * 3, VEA, 0)]
    od = [([k_(12)] * 4 + [DP] + [k_(13)] * 4, VEB, 512), ([k_(14)] * 4 + [DP + 1] + [k_(15)] * 4, VEB, 0)]
    n = 0
    for gi in range(2):
        for o_ in range(2):
            b_ = EX + 4 * n
            at.append(["s_bitcmp1_b32 s39, 0", f"s_cbranch_scc1 L_xo{tag}{n}"] + half(b_, *ev[gi], o_)[:-1] + [("nods", half(b_, *ev[gi], o_)[-1]), f"s_branch L_xd{tag}{n}",
                       f"L_xo{tag}{n}:"] + half(b_, *od[gi], o_) + [f"L_xd{tag}{n}:"])
            n += 1
    at.append(["s_bitcmp0_b32 s39, 0", "s_cselect_b64 s[28:29], -1, 0", "s_mov_b64 exec, s[28:29]",
               f"ds_write_b64 v{T0}, v[{T0+2}:{T0+3}]", "s_and_b64 exec, s[28:29], 15",
               f"ds_write_b64 v{T0}, v[{T0+2}:{T0+3}] offset:{OFF_E+4096}", f"ds_write_b64 v{T0}, v[{T0+2}:{T0+3}] offset:{OFF_O+4096}",
               "s_and_b64 exec, s[28:29], 1", f"ds_write_b16_d16_hi v{T0}, v{EX+3} offset:{OFF_O+4096}",
               "s_mov_b64 exec, -1"])
    at.append([f"v_mov_b32 v{T0+2}, 1", f"ds_write_b32 v{T0+1}, v{T0+2} offset:64"])
    return at

def flag_zero():
    return [[f"v_lshlrev_b32 v{VT1}, 2, v0", f"v_mov_b32 v{VT1+1}, 0", f"v_add_u32 v{VT1}, {L_FLAG}, v{VT1}", f"ds_write_b32 v{VT1}, v{VT1+1}"]]

class LQ:
    def __init__(self, A): self.A = A; self.q = []
    def emit(self, items, tag=None):
        maybe0 = any(isinstance(it, str) and "s_cselect_b64" in it for it in items)
        for it in items:
            if maybe0 and isinstance(it, str):
                self.A(it); continue
            if isinstance(it, tuple):
                if it[0] == "tag": self.q[-1] = it[1]
                elif it[0] == "wait": self.wait(it[1])
                elif it[0] == "nods": self.A(it[1])
                continue
            self.A(it)
            if it.strip().startswith("ds_"): self.q.append(tag)
            if "lgkmcnt(0)" in it: self.q = []
    def wait(self, tag):
        idx = max((k for k, t in enumerate(self.q) if t == tag), default=-1)
        if idx < 0: return
        n = min(len(self.q) - 1 - idx, 15)
        self.A(f"s_waitcnt lgkmcnt({n})")
        self.q = self.q[len(self.q) - n:] if n else []

def spread(atoms, g0, g1):
    pts = [(g, p) for g in range(g0, g1) for p in range(2)]
    tot = sum(len(a_) for a_ in atoms); out = {p: [] for p in pts}; acc = 0
    for a_ in atoms:
        out[pts[min(len(pts) - 1, acc * len(pts) // tot)]].append(a_); acc += len(a_)
    return out

VXO, VWO, VXO2 = 1, 2, 3
VXO3, VXO4 = 242, 243
VXR, VTR = 4, 8
VONE, VHO1, VB1 = 16, 18, 19
VCW, VCR, VSO = 20, 21, 22
VT1 = 28
NR = 3
W1, X1, ACC1, CS = 32, 56, 80, 144
HI = 152
GT, PK, SG = 164, 180, 188
EA, EB = 192, 196
VS, K1r, K3r = 212, 214, 216

def wave_flag(soff, vt):
    return [f"v_mov_b32 v{vt}, 0", f"v_mov_b32 v{vt+1}, s76", "s_mov_b64 exec, 1",
            f"buffer_store_dword v{vt+1}, v{vt}, s[12:15], {soff} offen {SC}", "s_mov_b64 exec, -1"]

def lds_wait(A, name, vaddr, off, vt):
    A(f"""
    {name}:
    ds_read_b32 v{vt}, v{vaddr} offset:{off}
    s_waitcnt lgkmcnt(0)
    v_readfirstlane_b32 s28, v{vt}
    s_cmp_eq_u32 s28, 1
    s_cbranch_scc0 {name}
    """)

def dma_setup(A):
    VT = VT1
    A(f"""
    v_lshrrev_b32 v{VT}, 3, v0
    v_and_b32 v{VT+1}, 7, v0
    v_lshrrev_b32 v{VT+2}, 4, v0
    v_xor_b32 v{VT+3}, v{VT+2}, v{VT+1}
    v_lshlrev_b32 v{VXO}, 10, v{VT}
    v_lshl_add_u32 v{VXO}, v{VT+3}, 4, v{VXO}
    v_xor_b32 v{VXO2}, 64, v{VXO}
    v_add_u32 v{VXO2}, 8192, v{VXO2}
    v_and_b32 v{VT+3}, 15, v0
    v_lshlrev_b32 v{VT}, 2, v{VT+2}
    v_xor_b32 v{VT+3}, v{VT+3}, v{VT}
    v_mul_u32_u24 v{VWO}, 3584, v{VT+2}
    v_lshl_add_u32 v{VWO}, v{VT+3}, 4, v{VWO}
    s_lshl_b32 s25, s21, 17
    s_lshl_b32 s28, s39, 15
    s_add_u32 s25, s25, s28
    s_mul_i32 s26, s39, {16*3584}
    s_lshl_b32 s28, s22, 8
    s_add_u32 s26, s26, s28
    s_lshl_b32 s27, s39, 12
    """)
    if KR:
        A(f"""
        v_add_u32 v{VXO3}, 16384, v{VXO}
        v_add_u32 v{VXO4}, 16384, v{VXO2}
        s_and_b32 s3, s24, 3
        s_mul_i32 s3, s3, {env("KRB", 3)}
        s_mul_i32 s28, s77, {env("KRN", 1)}
        s_add_u32 s3, s3, s28
        s_lshl_b32 s3, s3, 7
        """)
    if MIX:
        A(f"""
        v_and_b32 v{VT+3}, 8, v{VT+3}
        v_lshl_add_u32 v{VWO}, v{VT+3}, 4, v{VWO}
        s_and_b32 s28, s22, 1
        s_lshl_b32 s28, s28, 7
        s_sub_u32 s26, s26, s28
        """)

KORD = [int(x) for x in os.environ.get("KORD", "0,1,2,3,4,5,6,7").split(",")]
def g1_dma(kc, part):
    st = (kc % NS) * STAGE
    kc = KORD[kc]
    if KR:
        return [f"s_add_u32 s37, s3, {128*kc}", "s_and_b32 s37, s37, 0x380", f"s_add_u32 m0, s27, {st + part*1024}",
                "s_add_u32 s31, s25, s37",
                f"buffer_load_dwordx4 v{[VXO, VXO2, 13, 14][part] if False else (VXO if part % 2 == 0 else VXO2)}, s[4:7], s31 offen lds" if part < 2 else
                f"buffer_load_dwordx4 v{VXO3 if part % 2 == 0 else VXO4}, s[4:7], s31 offen lds",
                f"s_mul_i32 s37, s37, 1792", f"s_add_u32 m0, s27, {st + 16384 + part*1024}", "s_add_u32 s37, s37, s26", f"s_add_u32 s37, s37, {4*part*3584}",
                f"buffer_load_dwordx4 v{VWO}, s[8:11], s37 offen lds"]
    return [f"s_add_u32 m0, s27, {st + part*1024}", f"s_add_u32 s31, s25, {128*kc + (part//2)*16384}",
            f"buffer_load_dwordx4 v{VXO if part % 2 == 0 else VXO2}, s[4:7], s31 offen lds",
            f"s_add_u32 m0, s27, {st + 16384 + part*1024}", f"s_add_u32 s37, s26, {(64*kc + 4*part)*3584}",
            f"buffer_load_dwordx4 v{VWO}, s[8:11], s37 offen lds"]

def c_setup(A):
    VT = VT1
    A(f"""
    v_and_b32 v{VT}, 31, v0
    v_lshrrev_b32 v{VT+1}, 5, v0
    v_bfe_u32 v{VT+2}, v0, 1, 3
    v_xor_b32 v{VT+2}, v{VT+2}, v{VT+1}
    s_lshl_b32 s31, s34, 1
    v_xor_b32 v{VT+2}, s31, v{VT+2}
    v_lshlrev_b32 v{VXR}, 7, v{VT}
    v_lshl_add_u32 v{VXR}, v{VT+2}, 4, v{VXR}
    s_lshl_b32 s28, s34, 13
    v_add_u32 v{VXR}, s28, v{VXR}
    v_xor_b32 v{VXR+1}, 32, v{VXR}
    v_xor_b32 v{VXR+2}, 64, v{VXR}
    v_xor_b32 v{VXR+3}, 96, v{VXR}
    v_lshlrev_b32 v{VSO}, 3, v0
    v_bfe_u32 v{VT+2}, v0, 2, 2
    v_lshl_add_u32 v{VTR}, v{VT+1}, 3, v{VT+2}
    v_lshlrev_b32 v{VTR}, 8, v{VTR}
    v_bfe_u32 v{VT+3}, v0, 4, 1
    v_lshl_add_u32 v{VTR}, v{VT+3}, 5, v{VTR}
    v_and_b32 v{VT+3}, 3, v0
    v_lshl_add_u32 v{VTR}, v{VT+3}, 3, v{VTR}
    s_lshl_b32 s31, s35, 1
    v_xor_b32 v{VT+2}, s31, v{VT+2}
    v_lshl_add_u32 v{VTR}, v{VT+2}, 6, v{VTR}
    s_lshl_b32 s31, s34, 12
    s_add_u32 s31, s31, 16384
    v_add_u32 v{VTR}, s31, v{VTR}
    """)
    for i in range(4):
        for ft in range(2):
            if i == 0 and ft == 0: continue
            A(f"v_xor_b32 v{VTR+2*i+ft}, {i*4096 + ft*64}, v{VTR}")
    A(f"""
    v_mov_b32 v{VONE}, 0x3f803f80
    v_mov_b32 v{VONE+1}, 0x3f803f80
    v_lshlrev_b32 v{VHO1}, 4, v0
    s_lshl_b32 s33, s21, 1
    s_add_u32 s33, s33, s34
    s_lshl_b32 s36, s33, 9
    s_add_u32 s36, s36, {WS_STAT}
    s_mul_i32 s32, s33, {2*112*1024}
    s_lshl_b32 s28, s22, 1
    s_add_u32 s28, s28, s35
    """)
    if MIX:
        A("""
        s_add_u32 s28, s28, s35
        s_and_b32 s29, s22, 1
        s_sub_u32 s28, s28, s29
        """)
    A(f"""
    s_lshl_b32 s29, s28, 12
    s_add_u32 s32, s32, s29
    s_add_u32 s32, s32, {WS_HF}
    s_add_u32 s38, s32, {112*1024}
    """)
    if HP:
        A(f"""
        s_mul_i32 s29, s28, 37
        s_lshr_b32 s29, s29, 8
        s_lshl_b32 s33, s33, 2
        s_add_u32 s33, s33, s29
        s_lshl_b32 s33, s33, 7
        s_mul_i32 s29, s29, 7
        s_sub_u32 s29, s28, s29
        s_lshl_b32 s29, s29, 2
        s_add_u32 s33, s33, s29
        s_add_u32 s33, s33, {WS_FLH}
        """)
    else:
        A(f"""
        s_lshl_b32 s33, s33, 5
        s_add_u32 s33, s33, s28
        s_lshl_b32 s33, s33, 7
        s_add_u32 s33, s33, {WS_FLH}
        """)
    A(f"""
    s_lshl_b32 s29, s20, 8
    v_lshl_add_u32 v{VCW}, v0, 2, s29
    v_add_u32 v{VCW}, {L_CS}, v{VCW}
    v_xor_b32 v{VCR}, 256, v{VCW}
    """)
    srd(A, 16, "s46", "s47", 3584)
    A(f"""
    v_mov_b32 v{VB1}, 0
    v_lshlrev_b32 v{VT1}, 1, v0
    s_lshl_b32 s28, s28, 7
    buffer_load_short_d16_hi v{VB1}, v{VT1}, s[16:19], s28 offen
    """)
    for k in range(20): A(f"v_mov_b32 v{EA+k}, 0")
    for k in range(12): A(f"v_add_u32 v{HI+k}, 0x10000, v{VXR+k}")

def c_reads(g):
    kc, i = divmod(g, 4)
    st = kc % NS
    b = (VXR if st < 2 else HI); off = (st % 2) * STAGE
    sl = g % NR
    tr = lambda ft, sec: f"ds_read_b64_tr_b16 v[{W1+8*sl+4*ft+2*sec}:{W1+8*sl+4*ft+2*sec+1}], v{b+4+2*i+ft} offset:{off + sec*1024}"
    xr = lambda tt: f"ds_read_b128 v[{X1+8*sl+4*tt}:{X1+8*sl+4*tt+3}], v{b+i} offset:{off + tt*4096}"
    return [xr(0), tr(0, 0), tr(0, 1), tr(1, 0), tr(1, 1), xr(1)]

def gen_c1(A):
    VT = VT1
    dma_setup(A)
    A(f"""
    s_and_b32 s34, s20, 1
    s_lshr_b32 s35, s20, 1
    s_waitcnt lgkmcnt(0)
    s_add_u32 s42, s42, {WSOFF}
    s_addc_u32 s43, s43, 0
    s_load_dword s76, s[42:43], {WS_EPOCH}
    """)
    vm = VMQ()
    A.st("ka")
    srd(A, 4, "s40", "s41", 2 << 20)
    srd(A, 8, "s44", "s45", 512 * 3584)
    srd(A, 12, "s42", "s43", WS_USED)
    CSF = env("CSF", 0)
    if CSF: c_setup(A); vm.note("b1")
    if env("PFAT", 1) == -1 and OPT_PF: coop_prefetch(A, VT); vm.note("pf", 2)
    for kc in range(NC0):
        for part in range(4): A.extend(g1_dma(kc, part))
        vm.note(kc, 8)
        A.st(f"i{kc}")
        if kc == env("BP", 1): A("s_barrier")
        if kc == 0 and not CSF:
            c_setup(A); vm.note("b1")
        if kc == env("PFAT", 2) and OPT_PF == 1: coop_prefetch(A, VT); vm.note("pf", 2)
        if kc == env("PFAT", 2) and OPT_PF == 2: coop_prefetch2(A, VT); vm.note("pf", 3)
    TW = env("TW", 7)
    if TW:
        A(f"v_lshlrev_b32 v{VT+2}, 20, v0")
        if TW & 1: A("s_mov_b64 exec, 3"); A(f"global_load_dword v{VDUM}, v{VT+2}, s[52:53]"); vm.note("tw")
        if TW & 2: A("s_mov_b64 exec, 1"); A(f"buffer_load_dword v{VDUM}, v{VT+2}, s[12:15], s38 offen"); vm.note("tw")
        if TW & 4: A("s_mov_b64 exec, 1"); A(f"global_load_dword v{VDUM}, v{VT+2}, s[50:51]"); vm.note("tw")
        A("s_mov_b64 exec, -1")
    A.extend(ya_prefill(VT, VT + 1, PK)); vm.note("pre", 2)
    hpre = [f"buffer_store_dwordx4 v[{PK}:{PK+3}], v{VHO1}, s[12:15], s{32 if n < 4 else 38} offen offset:{(n%4)*1024} {SC}" for n in range(8)]
    HPRE = env("HPRE", 0)
    if HPRE == 1: A.extend(hpre); vm.note(2, 8)
    w2_setup(A, VT)
    mpf = [f"s_xor_b32 s28, s2, {env('MPX', 0)}", "s_lshl_b32 s28, s28, 2", "s_add_u32 s28, s28, s39", "s_lshl_b32 s28, s28, 11", f"v_lshlrev_b32 v{VT+2}, 7, v0", f"s_mov_b64 exec, {os.environ.get('MPM', '0xffff')}",
           f"buffer_load_dword v{VDUM}, v{VT+2}, s[16:19], s28 offen {os.environ.get('MPFL', '')}", "s_mov_b64 exec, -1"]
    MPG = env("MPG", 5)
    if MPG == -1: A.extend(mpf); vm.note("mpf")
    A.st("pre")
    A(vm.wait(0)[0] + " lgkmcnt(0)"); A.st("kg"); A("s_barrier")
    A.st("b0")
    T = GT
    lq = LQ(A)
    lq.emit(c_reads(0), 0); lq.emit(c_reads(1), 1)
    mktag(A)
    def big(g, tt, ft):
        sl = g % NR; c = ACC1 + 32 * tt + 16 * ft
        cin = "0" if g == 0 else f"v[{c}:{c+15}]"
        return f"v_mfma_f32_32x32x16_bf16 v[{c}:{c+15}], v[{W1+8*sl+4*ft}:{W1+8*sl+4*ft+3}], v[{X1+8*sl+4*tt}:{X1+8*sl+4*tt+3}], {cin}"
    for g in range(32):
        kc, i = divmod(g, 4); w = W1 + 8 * (g % NR)
        m = lambda d, b_, z: f"v_mfma_f32_4x4x4_16b_bf16 v[{d}:{d+3}], v[{VONE}:{VONE+1}], v[{b_}:{b_+1}], " + ("0" if z else f"v[{d}:{d+3}]")
        o1, o2 = [], []
        if i < 2 and False: pass
        if i in (0, 2) and g < 28 or g in (28, 29):
            o1 = [m(CS, w, g == 0), m(CS + 4, w + 4, g == 0)]; o2 = [m(CS, w + 2, False), m(CS + 4, w + 6, False)]
        A.st(f"g{g}")
        gn = g + 2
        rd = c_reads(PERM(gn))[:] if gn < 32 else []
        rd = c_reads_slot(gn) if gn < 32 else []
        x1, x2 = [], []
        if i == 2 and kc + 1 < 8: x1 += vm.wait(kc + 1) + ["s_barrier"]
        if g == 30:
            x1 += [f"v_permlane32_swap_b32 v{CS}, v{CS+4}", f"v_add_f32 v{CS}, v{CS}, v{CS+4}", f"ds_write_b32 v{VCW}, v{CS}",
                   "s_waitcnt lgkmcnt(0)", "s_barrier", f"ds_read_b32 v{T+2}, v{VCR}"][:None if not NB8 else 3]
            if NB8:
                x1 += ["s_lshl_b32 s28, s20, 2", f"s_add_u32 s28, s28, {L_FLAG+128}", f"v_mov_b32 v{T}, s28", f"v_mov_b32 v{T+1}, 1",
                       f"ds_write_b32 v{T}, v{T+1}", f"v_xor_b32 v{T}, 4, v{T}"]
        if g == STATG: x2 += [f"buffer_load_dwordx2 v[{SG}:{SG+1}], v{VSO}, s[12:15], s36 offen {SC}"]; vm.note("sg")
        if EPE and g == 23: x2 += ep_early(VT)[:9]
        if EPE and g == 24: x2 += ep_early(VT)[9:]; vm.note("ep", 2)
        if g == MPG: x2 += mpf; vm.note("mpf")
        if g == env("MPG2", -5): x2 += ["s_xor_b32 s28, s2, 3"] + mpf[1:]; vm.note("mpf")
        WM = env("WARM", 0)
        if WM and g == env("WARMG", 10):
            x2 += [f"v_lshlrev_b32 v{VT+2}, 20, v0", f"v_lshlrev_b32 v{VT+3}, 7, v0"]
            if WM & 1: x2 += ["s_mov_b64 exec, 0x3fff", f"buffer_load_dword v{VDUM}, v{VT+2}, s[12:15], 0 offen"]; vm.note("wm")
            if WM & 2: x2 += ["s_mov_b64 exec, 3", f"global_load_dword v{VDUM}, v{VT+2}, s[52:53]"]; vm.note("wm")
            if WM & 4: x2 += ["s_mov_b64 exec, 0xff", f"global_load_dword v{VDUM}, v{VT+3}, s[50:51]"]; vm.note("wm")
            x2 += ["s_mov_b64 exec, -1"]
        if HPRE >= 10 and HPRE <= g < HPRE + 8: x2 += [hpre[g - HPRE]]; vm.note("hp")
        if HPRE == 2 and g == 11:
            x2 += [f"v_and_b32 v{VT+2}, 31, v0", f"v_lshlrev_b32 v{VT+2}, 7, v{VT+2}", "s_mov_b64 exec, 0xffffffff", "s_mov_b32 exec_hi, 0",
                   f"buffer_load_dword v{VDUM}, v{VT+2}, s[12:15], s32 offen", f"buffer_load_dword v{VDUM}, v{VT+2}, s[12:15], s38 offen", "s_mov_b64 exec, -1"]; vm.note("hp", 2)
        if g in PFG:
            n_ = 128 // len(PFG); k_ = PFG.index(g)
            x2 += ["s_lshl_b32 s28, s24, 2", "s_add_u32 s28, s28, s39", "s_lshl_b32 s28, s28, 14", f"s_add_u32 s28, s28, {k_*n_*128}", f"v_lshlrev_b32 v{VT+2}, 7, v0"]
            if n_ < 64: x2 += [f"s_mov_b32 exec_lo, {hex((1 << n_) - 1)}", "s_mov_b32 exec_hi, 0"]
            x2 += [f"buffer_load_dword v{VDUM}, v{VT+2}, s[16:19], s28 offen", "s_mov_b64 exec, -1"]; vm.note("l2")
        if g == env("YFG", 16) - 1: x2 += yflag_off()
        if g == env("YFG", 16): x2 += ["s_waitcnt vmcnt(0)"] + wave_flag("s28", VT); vm.q.clear(); vm.note("yf")
        lq.wait(g)
        A(big(g, 0, 0))
        if i == 2: A.st(f"pb{kc+1}")
        lq.emit(x1)
        if i == 2: A.st(f"ab{kc+1}")
        lq.emit(rd[:2], gn)
        A(big(g, 0, 1)); lq.emit(rd[2:4], gn); A.extend(o1)
        A(big(g, 1, 0)); lq.emit(rd[4:], gn)
        A(big(g, 1, 1)); lq.emit(x2); A.extend(o2)
    A.st("loop")
    if NB8:
        lds_wait(A, "L_c_cs", T, 0, T + 1)
        A(f"ds_read_b32 v{T+2}, v{VCR}")
    A.extend(vm.wait("sg", "b1"))
    A(f"""
    v_cmp_ne_u32 vcc, s76, v{SG+1}
    s_cbranch_vccz L_g1_sok
    s_mov_b32 s30, 0
    L_g1_spoll:
    buffer_load_dwordx2 v[{SG}:{SG+1}], v{VSO}, s[12:15], s36 offen {SC}
    s_add_u32 s30, s30, 1
    s_waitcnt vmcnt(0)
    v_cmp_ne_u32 vcc, s76, v{SG+1}
    s_cmp_gt_u32 s30, {SPIN}
    s_cbranch_scc1 L_g1_sok
    s_cbranch_vccnz L_g1_spoll
    L_g1_sok:
    v_mov_b32 v{SG+1}, v{SG}
    s_mov_b32 s28, -1
    s_mov_b32 s29, 0
    v_permlane32_swap_b32 v{SG}, v{SG+1}
    s_waitcnt lgkmcnt(0)
    v_add_f32 v{T+2}, v{T+2}, v{CS}
    """)
    l1 = []
    for tt in range(2):
        l1 += [f"v_and_b32 v{VS+tt}, 0xffff0000, v{SG+tt}", f"v_and_b32 v{T+8+tt}, 0xffff, v{SG+tt}", f"v_rcp_f32 v{T+6+tt}, v{VS+tt}",
               f"v_lshl_or_b32 v{T+8+tt}, v{T+8+tt}, 16, v{T+8+tt}",
               f"v_cndmask_b32 v{EB+8*tt}, 0, v{T+8+tt}, s[28:29]", f"v_cndmask_b32 v{EB+8*tt+1}, 0, v{SG+tt}, s[28:29]",
               f"v_cndmask_b32 v{EB+8*tt+4}, v{T+8+tt}, 0, s[28:29]", f"v_cndmask_b32 v{EB+8*tt+5}, v{SG+tt}, 0, s[28:29]"]
    l2 = [f"v_and_b32 v{T+3}, 0xffff0000, v{T+2}", f"v_sub_f32 v{T+3}, v{T+2}, v{T+3}", f"v_lshrrev_b32 v{T+2}, 16, v{T+2}",
          f"v_and_b32 v{T+4}, 0xffff0000, v{T+3}", f"v_sub_f32 v{T+5}, v{T+3}, v{T+4}", f"v_or_b32 v{EA}, v{T+2}, v{T+4}",
          f"v_lshrrev_b32 v{T+5}, 16, v{T+5}", f"v_or_b32 v{EA+1}, v{T+5}, v{VB1}"]
    A.extend(zipm(l1, l2))
    l3 = []
    for tt in range(2):
        l3.append([f"v_fma_f32 v{T+10+tt}, -v{VS+tt}, v{T+6+tt}, 1.0", f"v_fma_f32 v{T+6+tt}, v{T+10+tt}, v{T+6+tt}, v{T+6+tt}",
                   f"v_mul_f32 v{K1r+tt}, {hex(f2u(GC1))}, v{T+6+tt}", f"v_mul_f32 v{T+10+tt}, v{T+6+tt}, v{T+6+tt}",
                   f"v_mul_f32 v{K3r+tt}, {hex(f2u(GC2))}, v{T+6+tt}", f"v_mul_f32 v{K3r+tt}, v{K3r+tt}, v{T+10+tt}"])
    l3 = zipm(*l3)
    for tt in range(2):
        for ft in range(2):
            c = ACC1 + 32 * tt + 16 * ft
            A(f"v_mfma_f32_32x32x16_bf16 v[{c}:{c+15}], v[{EA}:{EA+3}], v[{EB+8*tt+4*ft}:{EB+8*tt+4*ft+3}], v[{c}:{c+15}]")
            A.extend(l3[3 * (2 * tt + ft):3 * (2 * tt + ft) + 3])
    A.st("gstart")
    for n in range(8):
        tt = n // 4
        if n == env("PGN", 99): A("s_setprio 2")
        c0 = ACC1 + 8 * n
        t0 = GT + 8 * (n % 2)
        if GPK == 1 and n == NPK0:
            A(f"""
            v_mov_b32 v{VT}, {L_FLAG+80}
            L_c_km:
            ds_read_b128 v[{EA}:{EA+3}], v{VT}
            s_waitcnt lgkmcnt(0)
            v_and_b32 v{EA}, v{EA}, v{EA+1}
            v_and_b32 v{EA+2}, v{EA+2}, v{EA+3}
            v_and_b32 v{EA}, v{EA}, v{EA+2}
            s_nop 0
            v_readfirstlane_b32 s28, v{EA}
            s_cmp_eq_u32 s28, 1
            s_cbranch_scc0 L_c_km
            """)
        if GPK == 2 or (GPK and n >= NPK0):
            P = lambda x: f"v[{x}:{x+1}]"
            sel = f"op_sel:[0,{tt},{tt}] op_sel_hi:[1,{tt},{tt}]"
            for k in range(0, 8, 2): A(f"v_pk_mul_f32 {P(t0+k)}, {P(c0+k)}, {P(c0+k)}")
            for k in range(0, 8, 2): A(f"v_pk_fma_f32 {P(t0+k)}, {P(t0+k)}, {P(K3r)}, {P(K1r)} {sel}")
            for k in range(0, 8, 2): A(f"v_pk_mul_f32 {P(t0+k)}, {P(t0+k)}, {P(c0+k)}")
            for k in range(8): A(f"v_exp_f32 v{t0+k}, v{t0+k}")
            for k in range(0, 8, 2): A(f"v_pk_fma_f32 {P(t0+k)}, {P(t0+k)}, {P(VS)}, {P(VS)} {sel}")
            for k in range(8): A(f"v_rcp_f32 v{t0+k}, v{t0+k}")
            for k in range(0, 8, 2): A(f"v_pk_mul_f32 {P(c0+k)}, {P(c0+k)}, {P(t0+k)}")
        else:
            for k in range(8): A(f"v_mul_f32 v{t0+k}, v{c0+k}, v{c0+k}")
            for k in range(8): A(f"v_fma_f32 v{t0+k}, v{t0+k}, v{K3r+tt}, v{K1r+tt}")
            for k in range(8): A(f"v_mul_f32 v{t0+k}, v{t0+k}, v{c0+k}")
            for k in range(8): A(f"v_exp_f32 v{t0+k}, v{t0+k}")
            for k in range(8): A(f"v_fma_f32 v{t0+k}, v{t0+k}, v{VS+tt}, v{VS+tt}")
            for k in range(8): A(f"v_rcp_f32 v{t0+k}, v{t0+k}")
            for k in range(8): A(f"v_mul_f32 v{c0+k}, v{c0+k}, v{t0+k}")
        pk = PK + 4 * (n % 2)
        for k in range(4): A(f"v_cvt_pk_bf16_f32 v{pk+k}, v{c0+2*k}, v{c0+2*k+1}")
        A(f"buffer_store_dwordx4 v[{pk}:{pk+3}], v{VHO1}, s[12:15], s{32 if tt == 0 else 38} offen offset:{(n%4)*1024} {SCH}")
        if env("DBL", 0): A(f"buffer_store_dwordx4 v[{pk}:{pk+3}], v{VHO1}, s[12:15], s{32 if tt == 0 else 38} offen offset:{(n%4)*1024}")
    A.st("gend")
    A("s_mov_b32 s37, 0")
    A("s_branch L_gemm2")

def PERM(g): return g
def c_reads_slot(g):
    if g < 28: return c_reads(g)
    i = [0, 2, 1, 3][g - 28]
    r = c_reads(28 + i)
    kc = 7; st = kc % NS; b = HI; off = (st % 2) * STAGE; sl = g % NR
    tr = lambda ft, sec: f"ds_read_b64_tr_b16 v[{W1+8*sl+4*ft+2*sec}:{W1+8*sl+4*ft+2*sec+1}], v{b+4+2*i+ft} offset:{off + sec*1024}"
    xr = lambda tt: f"ds_read_b128 v[{X1+8*sl+4*tt}:{X1+8*sl+4*tt+3}], v{b+i} offset:{off + tt*4096}"
    return [xr(0), tr(0, 0), tr(0, 1), tr(1, 0), tr(1, 1), xr(1)]

def yflag_off():
    return ["s_lshr_b32 s28, s39, 1", "s_lshl_b32 s29, s2, 1", "s_add_u32 s28, s28, s29", "s_and_b32 s29, s39, 1", "s_lshl_b32 s29, s29, 9",
            "s_add_u32 s28, s28, s29", f"s_lshl_b32 s28, s28, {FS}", f"s_add_u32 s28, s28, {WS_FLY}"]
def ring_ready(vt):
    return ["s_lshl_b32 s28, s39, 2", f"s_add_u32 s28, s28, {L_FLAG+16}", f"v_mov_b32 v{vt}, s28", f"v_mov_b32 v{vt+1}, 1", f"ds_write_b32 v{vt}, v{vt+1}"]

def gen_h1(A):
    VT = VT1
    vm = VMQ()
    vm.note("prm", 8)
    A(f"s_add_u32 s42, s42, {WSOFF}\ns_addc_u32 s43, s43, 0\ns_load_dword s76, s[42:43], {WS_EPOCH}")
    srd(A, 4, "s40", "s41", 2 << 20)
    srd(A, 8, "s44", "s45", 512 * 3584)
    srd(A, 12, "s42", "s43", WS_USED)
    if env("CPF", 1): vm.note("cpf")
    dma_setup(A)
    w2_setup(A, VT)
    if env("MPF", 0):
        A(f"""
        s_lshl_b32 s28, s2, 2
        s_add_u32 s28, s28, s39
        s_lshl_b32 s28, s28, 11
        v_lshlrev_b32 v{VT+2}, 7, v0
        s_mov_b64 exec, 0xffff
        buffer_load_dword v{VDUM}, v{VT+2}, s[16:19], s28 offen
        s_mov_b64 exec, -1
        """)
    if env("TLBW", 0):
        A(f"""
        v_lshlrev_b32 v{VT+2}, {env("TLBS", 20)}, v0
        s_mov_b64 exec, {hex((1 << (WS_USED >> env("TLBS", 20))) - 1)}
        buffer_load_dword v{VDUM}, v{VT+2}, s[12:15], 0 offen
        s_mov_b64 exec, 3
        buffer_load_dword v{VDUM}, v{VT+2}, s[16:19], 0 offen
        global_load_dword v{VDUM}, v{VT+2}, s[52:53]
        s_mov_b64 exec, 1
        global_load_dword v{VDUM}, v{VT+2}, s[50:51]
        s_mov_b64 exec, -1
        """)
        vm.note("tlb", 4)
    kg_waddr(A, L_VS, KWA); A.extend(kg_raddr(L_VS, KRA, VT))
    for a_ in flag_zero(): A.extend(a_)
    if env("BP", 1) >= 0: A("s_barrier")
    A.st("pre")
    A.extend(vm.wait("prm"))
    A.st("prm")
    A.label("L_kgen_v")
    gen_kgen_v(A)
    A("s_cmp_eq_u32 s77, 7")
    A("s_cbranch_scc1 L_ln_H2")
    A.st("kg")
    A("s_waitcnt lgkmcnt(0)"); A("s_barrier")
    A.st("b0")
    mktag(A)
    UV, UW = kgen_u_lists(0)
    wts = [2, 3, 3, 3, 3, 3]; cum = 0
    for k in range(7 if NB8 else 8):
        if NB8 and k == 6:
            if EPE: A.extend(ep_early(VT)); vm.note("ep", 2)
            for sl in range(env("F6N", 2)): A.extend(wdma(sl, sl))
            vm.note("f", 2 * env("F6N", 2))
        elif k <= 5:
            sl_ = UV[len(UV) * cum // sum(wts):len(UV) * (cum + wts[k]) // sum(wts)]; cum += wts[k]
            if k >= 1 or NC0 == 2:
                pcs = []
                for part in range(4):
                    dd = g1_dma(k + 2, part); pcs += [dd[:len(dd)//2], dd[len(dd)//2:]]
                vm.note(k + 2, 8)
                for q, dd in enumerate(pcs):
                    A.extend(dd); A.extend(sl_[len(sl_) * q // 8:len(sl_) * (q + 1) // 8])
            else: A.extend(sl_)
        else:
            for sl in range(4 * (k - 6), 4 * (k - 6) + 4): A.extend(wdma(sl, sl))
            vm.note("f", 8)
        A.st(f"pi{k+1}")
        A.extend(vm.wait(k + 1))
        A("s_barrier")
        A.st(f"ab{k+1}")
    if NB8:
        for sl in range(env("F6N", 2), 8): A.extend(wdma(sl, sl))
        A(f"""
        v_mov_b32 v{VT+2}, {L_FLAG+128}
        L_h_rd:
        ds_read_b128 v[32:35], v{VT+2}
        s_waitcnt lgkmcnt(0)
        v_and_b32 v32, v32, v33
        v_and_b32 v34, v34, v35
        v_and_b32 v32, v32, v34
        s_nop 0
        v_readfirstlane_b32 s28, v32
        s_cmp_eq_u32 s28, 1
        s_cbranch_scc0 L_h_rd
        """)
    A.st("loop")
    HT2 = env("HT2", 0)
    if not HT2:
        for sl in range(8, 12): A.extend(wdma(sl, sl))
    A.label("L_h_tail")
    A(f"s_setprio {env('PRIOX', 0)}")
    lq = LQ(A)
    ar_, mm_ = kg_atoms_m()
    UE = env("UE", 0)
    if UE: A.extend(lnflag_load(36))
    lq.emit(UW)
    for a_ in ar_: lq.emit(a_)
    if GPK == 2:
        A("s_setprio 0")
        A("s_cmp_eq_u32 s77, 7")
        A("s_cbranch_scc1 L_h_gd2")
        A(f"""
        v_mov_b32 v{VT+2}, {L_FLAG+32}
        L_h_gd:
        s_sleep 1
        ds_read_b128 v[32:35], v{VT+2}
        s_waitcnt lgkmcnt(0)
        v_and_b32 v32, v32, v33
        v_and_b32 v34, v34, v35
        v_and_b32 v32, v32, v34
        s_nop 0
        v_readfirstlane_b32 s28, v32
        s_cmp_eq_u32 s28, 1
        s_cbranch_scc0 L_h_gd
        L_h_gd2:
        """)
        A.extend(lnflag_load(36))
    for a_ in mm_ + kg_atoms_x1(): lq.emit(a_)
    A(f"""
    s_lshl_b32 s28, s39, 2
    s_add_u32 s28, s28, {L_FLAG}
    v_mov_b32 v{VT}, s28
    v_mov_b32 v{VT+1}, 1
    ds_write_b32 v{VT}, v{VT+1} offset:80
    v_xor_b32 v{VT+2}, 4, v{VT}
    """)
    HT3 = env('HT3', 1)
    if UE:
        A(f"v_lshlrev_b32 v18, 4, v0")
        A("s_waitcnt vmcnt(0)")
        A(f"""
        v_cmp_ne_u32 vcc, s76, v{LNF}
        s_mov_b32 s37, 0
        s_cbranch_vccnz L_ue_no
        s_mov_b32 s37, 1
        """)
        u_issue(A, 18)
        A.label("L_ue_no")
    if HT2 or HT3: A.extend(lnflag_load(36))
    lds_wait(A, "L_h_x1", VT + 2, 80, 32)
    lq.q = []
    for a_ in kg_atoms_x2("g"): lq.emit(a_)
    A("s_setprio 0")
    DF = env("DF", 0)
    if DF:
        A("s_waitcnt vmcnt(0)")
        if DF == 1: A.extend(ring_ready(VT))
        A("s_cmp_eq_u32 s77, 7")
        A("s_cbranch_scc1 L_h_dr2")
        A(f"""
        v_mov_b32 v{VT+2}, {L_FLAG+32}
        L_h_dr:
        s_sleep 1
        ds_read_b128 v[32:35], v{VT+2}
        s_waitcnt lgkmcnt(0)
        v_and_b32 v32, v32, v33
        v_and_b32 v34, v34, v35
        v_and_b32 v32, v32, v34
        s_nop 0
        v_readfirstlane_b32 s28, v32
        s_cmp_eq_u32 s28, 1
        s_cbranch_scc0 L_h_dr
        L_h_dr2:
        """)
    if not HT2 and not HT3 and GPK != 2: A.extend(lnflag_load(VT))
    A.st("ku")
    A(f"v_lshlrev_b32 v18, 4, v0")
    A("s_waitcnt vmcnt(0)")
    if UE: A("s_cmp_eq_u32 s37, 1"); A("s_cbranch_scc1 L_ut_no")
    RT = env("RT", 6)
    if RT:
        A(f"""
        s_mov_b32 s30, 0
        v_cmp_ne_u32 vcc, s76, v{LNF}
        s_cbranch_vccz L_rt_ok
        L_rt:
        s_sleep {PS}
        buffer_load_dword v{LNF}, v36, s[12:15], 0 offen {SC}
        s_add_u32 s30, s30, 1
        s_waitcnt vmcnt(0)
        v_cmp_ne_u32 vcc, s76, v{LNF}
        s_cmp_ge_u32 s30, {RT}
        s_cbranch_scc1 L_rt_ok
        s_cbranch_vccnz L_rt
        L_rt_ok:
        """)
    u_try(A, 18)
    if HT2:
        A("s_cmp_eq_u32 s77, 7")
        A("s_cbranch_scc1 L_h_nof")
        for sl in range(8, 12): A.extend(wdma(sl, sl))
        A("s_branch L_h_f")
        A.label("L_h_nof")
        A.extend(ring_ready(VT))
        A("s_waitcnt vmcnt(0)")
        A.label("L_h_f")
    else:
        A.extend(ring_ready(VT))
    A.st("gend")
    A("s_branch L_conv")
    A.label("L_ln_H2")
    A("s_waitcnt vmcnt(0) ; RESETSB")
    A("ds_write_b32 v5, v6")
    if EPE: A("s_waitcnt lgkmcnt(0)"); A.extend(ep_early(28))
    A.extend(UV)
    A(f"""
    v_mov_b32 v30, {L_FLAG+112+(64 if env('LNW', 0) else 0)}
    L_ln_hv:
    ds_read_b128 v[32:35], v30
    s_waitcnt lgkmcnt(0)
    v_and_b32 v32, v32, v33
    v_and_b32 v34, v34, v35
    v_and_b32 v32, v32, v34
    s_nop 0
    v_readfirstlane_b32 s28, v32
    s_cmp_eq_u32 s28, 1
    s_cbranch_scc0 L_ln_hv
    """)
    A("s_branch L_h_tail")

def gen_gemm1(A):
    A(f"""
    s_load_dwordx8 s[56:63], s[0:1], {KA['A_re']}
    s_load_dwordx8 s[64:71], s[0:1], {KA['C_re']}
    """)
    A("s_cmp_lt_u32 s20, 4")
    A("s_cbranch_scc1 L_g1_C")
    param_loads(A, VT1)
    if env("CPF", 1):
        A(f"""
        s_getpc_b64 s[28:29]
        L_pc0:
        s_sub_u32 s28, s28, L_pc0-{KNAME}
        s_subb_u32 s29, s29, 0
        s_lshl_b32 s30, s24, 2
        s_add_u32 s30, s30, s39
        s_mul_i32 s30, s30, 384
        v_lshl_add_u32 v{VT1+2}, v0, 7, s30
        v_min_u32 v{VT1+2}, L_exit-{KNAME}, v{VT1+2}
        s_mov_b64 exec, 7
        global_load_dword v{VDUM}, v{VT1+2}, s[28:29]
        s_mov_b64 exec, -1
        """)
    A("s_branch L_g1_H")
    A.label("L_g1_C")
    A("s_nop 0 ; RESETSB")
    gen_c1(A)
    A.label("L_g1_H")
    A("s_nop 0 ; RESETSB")
    gen_h1(A)


def gen_ln(A):
    Q, R, O, T = 16, 48, 80, 112
    A(f"""
    s_load_dwordx8 s[56:63], s[0:1], {KA['A_re']}
    s_load_dwordx8 s[64:71], s[0:1], {KA['C_re']}
    v_lshrrev_b32 v1, 3, v0
    v_and_b32 v2, 7, v0
    v_lshlrev_b32 v3, 10, v1
    v_lshl_add_u32 v3, v2, 4, v3
    v_lshlrev_b32 v4, 4, v0
    s_lshl_b32 s25, s21, 6
    s_lshl_b32 s28, s20, 3
    s_add_u32 s25, s25, s28
    s_lshl_b32 s36, s25, 3
    s_add_u32 s36, s36, {WS_STAT}
    s_lshl_b32 s25, s25, 10
    s_add_u32 s26, s25, 4096
    s_waitcnt lgkmcnt(0)
    s_add_u32 s42, s42, {WSOFF}
    s_addc_u32 s43, s43, 0
    s_load_dword s76, s[42:43], {WS_EPOCH}
    """)
    srd(A, 4, "s40", "s41", 2 << 20)
    for t in range(8): A(f"buffer_load_dwordx4 v[{R+4*t}:{R+4*t+3}], v4, s[4:7], s{25 + t//4} offen offset:{(t%4)*1024}")
    srd(A, 12, "s42", "s43", WS_USED)
    NLW = 0
    if LW1:
        srd(A, 8, "s44", "s45", 512 * 3584)
        A(f"""
        s_and_b32 s28, s24, 3
        s_lshl_b32 s28, s28, 3
        s_add_u32 s28, s28, s20
        s_mul_i32 s28, s28, 47
        s_and_b32 s29, s23, 1
        s_mul_i32 s29, s29, 1792
        s_add_u32 s29, s29, {192*3584}
        """)
        for j in range(3):
            A(f"""
            s_add_u32 s30, s28, {j*1504}
            v_add_u32 v{T}, s30, v0
            v_mul_u32_u24 v{T+1}, 0x4925, v{T}
            v_lshrrev_b32 v{T+1}, 18, v{T+1}
            v_mul_u32_u24 v{T+2}, 14, v{T+1}
            v_sub_u32 v{T}, v{T}, v{T+2}
            v_lshlrev_b32 v{T}, 7, v{T}
            v_mul_u32_u24 v{T+1}, 3584, v{T+1}
            v_add_u32 v{T}, v{T}, v{T+1}
            s_mov_b32 exec_hi, 0x7fff
            buffer_load_dword v{VDUM}, v{T}, s[8:11], s29 offen
            s_mov_b32 exec_hi, -1
            """)
        NLW = 3
    A(f"""
    v_mov_b32 v5, 0x3f803f80
    v_mov_b32 v14, 0x00003f80
    v_mov_b32 v15, 0x3f800000
    v_lshlrev_b32 v8, 3, v1
    """)
    S1, S2 = Q, Q + 8
    A("s_setprio 2")
    for t in range(8):
        A(f"s_waitcnt vmcnt({7 - t + NLW})")
        for k in range(4):
            r = R + 4 * t + k
            A(f"v_dot2_f32_bf16 v{S1+t}, v{r}, v5, {'0' if k == 0 else f'v{S1+t}'}")
            A(f"v_dot2_f32_bf16 v{S2+t}, v{r}, v{r}, {'0' if k == 0 else f'v{S2+t}'}")
    for r in range(4):
        for S in (S1, S2): A(f"v_permlane32_swap_b32 v{S+r}, v{S+r+4}")
    for r in range(4):
        for S in (S1, S2): A(f"v_add_f32 v{S+r}, v{S+r}, v{S+r+4}")
    for r in range(2):
        for S in (S1, S2): A(f"v_permlane16_swap_b32 v{S+r}, v{S+r+2}")
    for r in range(2):
        for S in (S1, S2): A(f"v_add_f32 v{S+r}, v{S+r}, v{S+r+2}")
    for r in range(2):
        for S in (S1, S2): A(f"v_add_f32_dpp v{S+r}, v{S+r}, v{S+r} row_ror:8 row_mask:0xf bank_mask:0xf")
    A.extend(mask("0xff00ff00"))
    A(f"""
    v_cndmask_b32 v6, v{S1}, v{S1+1}, s[28:29]
    v_cndmask_b32 v7, v{S2}, v{S2+1}, s[28:29]
    s_waitcnt lgkmcnt(0)
    """)
    mktag(A)
    A(f"""
    v_mov_b32 v11, s76
    v_add_f32_dpp v6, v6, v6 quad_perm:[1,0,3,2] row_mask:0xf bank_mask:0xf
    v_add_f32_dpp v7, v7, v7 quad_perm:[1,0,3,2] row_mask:0xf bank_mask:0xf
    v_add_f32_dpp v6, v6, v6 quad_perm:[2,3,0,1] row_mask:0xf bank_mask:0xf
    v_add_f32_dpp v7, v7, v7 quad_perm:[2,3,0,1] row_mask:0xf bank_mask:0xf
    v_add_f32_dpp v6, v6, v6 row_half_mirror row_mask:0xf bank_mask:0xf
    v_add_f32_dpp v7, v7, v7 row_half_mirror row_mask:0xf bank_mask:0xf
    v_mul_f32 v12, {hex(f2u(1/512))}, v6
    v_mul_f32 v13, {hex(f2u(1/512))}, v7
    v_fma_f32 v13, -v12, v12, v13
    v_max_f32 v13, 0, v13
    """)
    round_bf16(A, 13)
    A(f"v_add_f32 v13, {hex(f2u(1e-5))}, v13")
    round_bf16(A, 13)
    A(f"""
    v_sqrt_f32 v13, v13
    v_cvt_pk_bf16_f32 v10, -v12, v13
    s_mov_b32 exec_lo, 0x01010101
    s_mov_b32 exec_hi, 0x01010101
    buffer_store_dwordx2 v[10:11], v8, s[12:15], s36 offen {SC}
    s_mov_b64 exec, -1
    """)
    A.st("b0")
    A("s_setprio 0")
    param_loads(A, T)
    LPF = env("LPF", 0)
    if LPF:
        srd(A, 16, "s48", "s49", 1792 * 1024)
        A(f"""
        s_lshl_b32 s28, s21, 3
        s_add_u32 s28, s28, s20
        s_mul_i32 s28, s28, {56*128}
        v_min_u32 v{T+2}, 55, v0
        v_lshlrev_b32 v{T+2}, 7, v{T+2}
        buffer_load_dword v{VDUM}, v{T+2}, s[16:19], s28 offen
        """)
    A(f"""
    v_and_b32 v13, 0xffff0000, v10
    v_lshlrev_b32 v12, 16, v10
    v_rcp_f32 v5, v13
    s_nop 0
    v_fma_f32 v13, -v13, v5, 1.0
    v_fma_f32 v13, v13, v5, v5
    """)
    for t in range(8):
        A(f"v_readlane_b32 s{56+t}, v12, {8*t}")
        A(f"v_readlane_b32 s{64+t}, v13, {8*t}")
    A(f"""
    v_xor_b32 v5, s20, v2
    v_lshlrev_b32 v6, 10, v0
    v_lshl_add_u32 v6, v5, 4, v6
    """)

    for tp in range(4):
        t0, t1 = 2 * tp, 2 * tp + 1
        for k in range(4):
            for h in range(2):
                e = 2 * k + h
                A(f"v_dot2_f32_bf16 v{T+2*e}, v{R+4*t0+k}, v{14+h}, s{56+t0}")
                A(f"v_dot2_f32_bf16 v{T+2*e+1}, v{R+4*t1+k}, v{14+h}, s{56+t1}")
        if env("LNX", 0):
            for e in range(8): A(f"v_cvt_pk_bf16_f32 v{T+2*e+1}, v{T+2*e}, v{T+2*e+1}")
            for e in range(8):
                A(f"v_lshlrev_b32 v{T+2*e}, 16, v{T+2*e+1}")
                A(f"v_and_b32 v{T+2*e+1}, 0xffff0000, v{T+2*e+1}")
        for e in range(8): A(f"v_pk_mul_f32 v[{T+2*e}:{T+2*e+1}], v[{T+2*e}:{T+2*e+1}], s[{64+t0}:{64+t1}]")
        for e in range(8): A(f"v_cvt_pk_bf16_f32 v{O+4*e+tp}, v{T+2*e}, v{T+2*e+1}")
        if tp == env("LFP", 3):
            w2_setup(A, 28)
            LF = env("LF", 0)
            A("s_cmp_ge_u32 s20, 4")
            A("s_cbranch_scc1 L_ln_nofill")
            for sl in range(LF): A.extend(wdma(sl, sl))
            A.label("L_ln_nofill")
    for e in range(8): A(f"ds_write_b128 v6, v[{O+4*e}:{O+4*e+3}] offset:{e*128}")
    for a_ in flag_zero(): A.extend(a_)
    A.st("g8")
    A(f"""
    s_lshl_b32 s28, s20, 13
    v_lshlrev_b32 v6, 7, v1
    v_lshl_add_u32 v6, v2, 4, v6
    v_add_u32 v6, s28, v6
    v_lshlrev_b32 v7, {7 if XS else 12}, v1
    v_lshl_add_u32 v7, v2, 4, v7
    s_lshl_b32 s26, s20, {13 if XS else 18}
    s_mul_i32 s28, s21, {XS if XS else 128}
    s_add_u32 s26, s26, s28
    s_add_u32 s26, s26, {WS_XNT}
    s_lshl_b32 s33, s21, {FSL}
    s_add_u32 s33, s33, {WS_FLL}
    """)
    for i in range(8): A(f"v_xor_b32 v{8+i}, {16*i}, v6")
    A("s_waitcnt lgkmcnt(0)")
    A("s_barrier")
    for i in range(8): A(f"ds_read_b128 v[{192+4*i}:{192+4*i+3}], v{8+i} offset:{i*1024}")
    for i in range(8):
        A(f"s_waitcnt lgkmcnt({7-i})")
        A(f"s_add_u32 s25, s26, {i*(1024 if XS else 32768)}")
        A(f"buffer_store_dwordx4 v[{192+4*i}:{192+4*i+3}], v7, s[12:15], s25 offen {SC}")
    A.st("loop")
    A(f"""
    s_lshl_b32 s28, s20, 2
    s_add_u32 s28, s28, {L_FLAG+96}
    v_mov_b32 v5, s28
    v_mov_b32 v6, 1
    s_cmp_lt_u32 s20, 4
    s_cbranch_scc1 L_ln_C
    """)
    kg_waddr(A, L_VS, KWA); A.extend(kg_raddr(L_VS, KRA, 28))
    A(f"s_mov_b32 s33, {WS_DUMMY}")
    if env("LNW", 0):
        A("s_waitcnt vmcnt(0)")
        A("ds_write_b32 v5, v6")
        A("v_add_u32 v5, 64, v5")
    else:
        A("s_waitcnt vmcnt(8)")
    A("s_branch L_kgen_v")
    A.label("L_ln_C")
    A.extend(ya_prefill(T + 2, T + 3, T + 4))
    A(f"""
    v_mov_b32 v30, {L_FLAG+96}
    s_waitcnt vmcnt(0)
    ds_write_b32 v5, v6
    """)
    A.extend(yflag_off()); A.extend(wave_flag("s28", 34))
    A(f"""
    L_ln_cs:
    ds_read_b128 v[36:39], v30
    ds_read_b128 v[40:43], v30 offset:16
    s_waitcnt lgkmcnt(0)
    v_and_b32 v36, v36, v37
    v_and_b32 v38, v38, v39
    v_and_b32 v40, v40, v41
    v_and_b32 v42, v42, v43
    v_and_b32 v36, v36, v38
    v_and_b32 v40, v40, v42
    v_and_b32 v36, v36, v40
    s_nop 0
    v_readfirstlane_b32 s28, v36
    s_cmp_eq_u32 s28, 1
    s_cbranch_scc0 L_ln_cs
    """)
    publish_flag(A, "s33", 32, "l", 0)
    A.st("gstart")
    A(f"s_mov_b32 s33, {WS_DUMMY}")
    if EPE: A.extend(ep_early(28))
    TH = env("TH", 0)
    for sl in range(12):
        A.extend(wdma(sl, sl))
        if TH: A(f"s_waitcnt vmcnt({TH})")
    A("s_waitcnt vmcnt(0)")
    for sl in range(12): A.extend(w2tr(sl, sl))
    A(f"""
    v_mov_b32 v28, {L_FLAG+16}
    L_ln_cw:
    ds_read_b128 v[32:35], v28
    s_waitcnt lgkmcnt(0)
    v_and_b32 v32, v32, v33
    v_and_b32 v34, v34, v35
    v_and_b32 v32, v32, v34
    s_nop 0
    v_readfirstlane_b32 s28, v32
    s_cmp_eq_u32 s28, 1
    s_cbranch_scc0 L_ln_cw
    """)
    for sl in range(12): A.extend(wdma(sl, 12 + sl))
    A(f"""
    s_lshl_b32 s28, s20, 8
    s_add_u32 s28, s28, s2
    s_cmp_lg_u32 s28, 255
    s_cbranch_scc1 L_nobump
    v_lshlrev_b32 v28, {FS+1}, v0
    s_mov_b32 s30, 0
    L_bump_poll:
    """)
    for k in range(4):
        A(f"s_mov_b32 s28, {WS_FLY + k*(128 << FS)}")
        A(f"buffer_load_dword v{32+k}, v28, s[12:15], s28 offen {SC}")
    A(f"""
    s_add_u32 s30, s30, 1
    s_waitcnt vmcnt(0)
    v_xor_b32 v32, s76, v32
    v_xor_b32 v33, s76, v33
    v_xor_b32 v34, s76, v34
    v_xor_b32 v35, s76, v35
    v_or3_b32 v32, v32, v33, v34
    v_or_b32 v32, v32, v35
    v_cmp_ne_u32 vcc, 0, v32
    s_cmp_gt_u32 s30, {SPIN}
    s_cbranch_scc1 L_bump_go
    s_cbranch_vccnz L_bump_poll
    L_bump_go:
    s_mov_b32 s28, {WS_EPOCH}
    """)
    A.extend(wave_flag("s28", 28))
    A.label("L_nobump")
    A("s_mov_b32 s37, 1")
    A("s_branch L_gemm2")


def final_addr(A):
    A(f"""
    v_lshrrev_b32 v1, 3, v0
    v_and_b32 v2, 7, v0
    v_lshlrev_b32 v{VOO}, 10, v1
    v_lshl_add_u32 v{VOO}, v2, 4, v{VOO}
    v_lshlrev_b32 v3, 4, v2
    s_lshl_b32 s33, s78, 6
    s_lshl_b32 s28, s20, 3
    s_add_u32 s33, s33, s28
    s_lshl_b32 s33, s33, 10
    s_lshl_b32 s34, s79, 7
    s_add_u32 s33, s33, s34
    """)
def ep_loads():
    o = Asm()
    srd(o, 8, "s50", "s51", 1024)
    o(f"buffer_load_dwordx4 v[{VX}:{VX+3}], v{VOO}, s[4:7], s33 offen")
    o(f"buffer_load_dwordx4 v[{VB2}:{VB2+3}], v3, s[8:11], s34 offen")
    return o.lines


def ep_early(vt):
    return [f"v_lshrrev_b32 v{vt}, 3, v0", f"v_and_b32 v{vt+1}, 7, v0", f"v_lshlrev_b32 v{vt}, 10, v{vt}", f"v_lshlrev_b32 v{vt+1}, 4, v{vt+1}",
            f"v_add_u32 v{vt}, v{vt}, v{vt+1}", "s_lshl_b32 s29, s78, 6", "s_lshl_b32 s28, s20, 3", "s_add_u32 s29, s29, s28", "s_lshl_b32 s29, s29, 10",
            "s_lshl_b32 s30, s79, 7", "s_add_u32 s29, s29, s30", "s_mov_b32 s8, s50", "s_mov_b32 s9, s51", "s_mov_b32 s10, 1024", "s_mov_b32 s11, 0x00020000",
            f"buffer_load_dwordx4 v[{VX}:{VX+3}], v{vt}, s[4:7], s29 offen", f"buffer_load_dwordx4 v[{VB2}:{VB2+3}], v{vt+1}, s[8:11], s30 offen"]

def gen_gemm2(A):
    VHO, VTR2, VP, VT = 13, 14, 18, 22
    ACC, W, H = ACC2, W2R, HR
    if PRIO_G: A(f"s_setprio {PRIO_G}")
    A("s_mov_b32 s22, s33")
    final_addr(A)
    for k in range(4): A(f"v_mov_b32 v{VTR2+k}, v{VTL+k}")
    A(f"""
    v_lshlrev_b32 v{VHO}, 4, v0
    v_lshrrev_b32 v{VT}, 5, v0
    v_xor_b32 v{VT}, v{VT}, v2
    v_and_b32 v{VP}, 31, v0
    v_lshlrev_b32 v{VP}, 8, v{VP}
    v_lshl_add_u32 v{VP}, v{VT}, 4, v{VP}
    v_add_u32 v{VP}, s73, v{VP}
    v_xor_b32 v{VP+1}, 32, v{VP}
    v_xor_b32 v{VP+2}, 64, v{VP}
    v_xor_b32 v{VP+3}, 96, v{VP}
    s_mul_i32 s24, s78, {2*112*1024}
    s_mul_i32 s28, s20, {28*1024}
    s_add_u32 s24, s24, s28
    s_add_u32 s24, s24, {WS_HF}
    s_add_u32 s25, s24, {112*1024}
    s_mul_i32 s26, s20, {1 if HP else 7}
    s_lshl_b32 s28, s78, {2 if HP else 5}
    s_add_u32 s26, s26, s28
    s_lshl_b32 s26, s26, 7
    s_add_u32 s26, s26, {WS_FLH}
    v_min_u32 v{VT}, 6, v2
    v_lshlrev_b32 v{VT}, {2 if HP else 7}, v{VT}
    s_lshl_b32 s28, s20, 2
    s_add_u32 s28, s28, {L_FLAG+16}
    v_mov_b32 v{ACC+4}, s28
    v_mov_b32 v{ACC+5}, 1
    ds_write_b32 v{ACC+4}, v{ACC+5} offset:16
    s_mov_b32 s30, 0
    s_cmp_eq_u32 s37, 1
    s_cbranch_scc1 L_g2_poll
    """)
    A.st("prew")
    A("s_waitcnt vmcnt(0)")
    A.extend(wave_flag("s22", ACC))
    A.st("p2bar")
    A(f"""
    L_g2_rr:
    ds_read_b32 v{ACC+5}, v{ACC+4}
    s_waitcnt lgkmcnt(0)
    v_readfirstlane_b32 s28, v{ACC+5}
    s_cmp_eq_u32 s28, 1
    s_cbranch_scc0 L_g2_rr
    """)
    for sl in range(3): A.extend(w2tr(sl, sl, VTR2))
    for sl in range(12):
        left = min(12, sl + 3) - sl - 1
        A(f"s_waitcnt lgkmcnt({4*left})")
        if sl + 3 < 12: A.extend(w2tr(sl + 3, sl + 3, VTR2))
        if EP and sl == 12 - EP: A(f"buffer_load_dword v{ACC+2}, v{VT}, s[12:15], s26 offen {SC}")
        A.extend(wdma(sl, 12 + sl))
    if EP:
        A(f"""
        s_waitcnt vmcnt({2*EP})
        v_cmp_ne_u32 vcc, s76, v{ACC+2}
        s_cbranch_vccz L_g2_go
        """)
    A.st("s5")
    A.label("L_g2_poll")
    if PG: A(f"s_sleep {PG}")
    A(f"""
    buffer_load_dword v{ACC+2}, v{VT}, s[12:15], s26 offen {SC}
    s_add_u32 s30, s30, 1
    s_waitcnt vmcnt(0)
    v_cmp_ne_u32 vcc, s76, v{ACC+2}
    s_cmp_gt_u32 s30, {SPIN}
    s_cbranch_scc1 L_g2_go
    s_cbranch_vccnz L_g2_poll
    """)
    A.label("L_g2_go")
    vm = VMQ()
    for sl in range(12 - EP, 12): vm.note(("w", 12 + sl), 2)
    A.st("s6")
    def hload(kp):
        sl = kp % HD
        vm.note(("h", kp), 2)
        return koff("s31", ORDER[kp]) + ["s_add_u32 s27, s31, s24", "s_add_u32 s31, s31, s25",
                                  f"buffer_load_dwordx4 v[{H+8*sl}:{H+8*sl+3}], v{VHO}, s[12:15], s27 offen {SCL}",
                                  f"buffer_load_dwordx4 v[{H+8*sl+4}:{H+8*sl+7}], v{VHO}, s[12:15], s31 offen {SCL}"]
    H0 = env("H0", 9)
    for kp in range(H0): A.extend(hload(kp))
    nh = [H0]
    def more(kp, n):
        for _ in range(n):
            if nh[0] < 28 and nh[0] <= kp - 1 + HD:
                A.extend(hload(nh[0])); nh[0] += 1
    if PRIO_G: A(f"s_setprio {env('PRIOG2', 0)}")
    inring = lambda k: ORDER[k] >= 12
    wset = lambda k: ((k % 2) if k < 24 else k - 24) if inring(k) else ORDER[k]
    slot_of = lambda k: (ORDER[k] - 12) % 12
    for kp in range(28 - TS):
        nx = kp + 1
        if TS and kp >= 20 and kp < 24: nx = kp + 4
        if TS and kp >= 24: nx = 99
        if inring(kp): A("s_waitcnt lgkmcnt(0)")
        A.extend(vm.wait(("h", kp)))
        if kp in (4, 9, 14, 19): A.st(f"k{kp}")
        b = W + 8 * wset(kp); sl = kp % HD
        mf = []
        for tb in range(2):
            for db in range(2):
                c = ACC + 32 * tb + 16 * db
                cin = "0" if kp == 0 else f"v[{c}:{c+15}]"
                mf.append(f"v_mfma_f32_32x32x16_bf16 v[{c}:{c+15}], v[{b+4*db}:{b+4*db+3}], v[{H+8*sl+4*tb}:{H+8*sl+4*tb+3}], {cin}")
        A(mf[0])
        if nx < 28 and inring(nx):
            A.extend(vm.wait(("w", ORDER[nx])))
            A.extend(w2tr(slot_of(nx), wset(nx), VTR2))
        A(mf[1])
        more(kp, 1)
        A(mf[2])
        more(kp, 1)
        if 12 <= ORDER[kp] < 16:
            A.extend(wdma(ORDER[kp] - 12, ORDER[kp] + 12)); vm.note(("w", ORDER[kp] + 12), 2)
        if kp == 20 and not EPE:
            A.extend(ep_loads()); vm.note("ep", 2)
        if kp == env("SIGK", 19):
            A(f"""
            s_lshl_b32 s28, s20, 2
            s_add_u32 s28, s28, {L_FLAG+48}
            v_mov_b32 v{VT}, s28
            v_mov_b32 v{W}, 1
            ds_write_b32 v{VT}, v{W}
            """)
        A(mf[3])
        if kp == 0: A.st("k0")
    pw = lambda tb, db: [f"ds_write_b128 v{VP+q}, v[{ACC+32*tb+16*db+4*q}:{ACC+32*tb+16*db+4*q+3}] offset:{tb*32768+db*128}" for q in range(4)]
    if TS:
        A("s_waitcnt lgkmcnt(0)")
        A.extend(vm.wait(("h", 27)))
        prev = []
        for tb in range(2):
            for db in range(2):
                c = ACC + 32 * tb + 16 * db
                for j, kp in enumerate(range(28 - TS, 28)):
                    b_ = W + 8 * wset(kp); sl = kp % HD
                    A(f"v_mfma_f32_32x32x16_bf16 v[{c}:{c+15}], v[{b_+4*db}:{b_+4*db+3}], v[{H+8*sl+4*tb}:{H+8*sl+4*tb+3}], v[{c}:{c+15}]")
                    if j >= 1 and prev: A.extend(prev[:2]); prev = prev[2:]
                A.extend(prev); prev = pw(tb, db)
        A.st("s7")
        A.extend(prev)
    else:
        A.st("s7")
        for tb in range(2):
            for db in range(2): A.extend(pw(tb, db))
    A("s_waitcnt vmcnt(0) lgkmcnt(0)")
    A("s_branch L_final")


def gen_conv(A):
    if PRIO_C: A(f"s_setprio {PRIO_C}")
    VTA, VF = 32, 36
    VXN, VBW, VOWN, VPAR = 37, 38, 39, 40
    T0 = 42
    dsk = P0 + 7
    ACC = 48; FB = [80, 112]; TB = [144, 208]
    XN = 196
    final_addr(A)
    A(f"""
    s_mov_b32 s21, s39
    s_lshr_b32 s35, s21, 1
    s_and_b32 s36, s21, 1
    s_mul_i32 s38, s35, {CH_SIZE}
    s_add_u32 s38, s38, {L_CH}
    s_lshl_b32 s27, s21, 13
    s_add_u32 s27, s27, {L_ST2}
    s_xor_b32 s32, s27, {ST2}
    v_and_b32 v{T0}, 15, v0
    v_lshrrev_b32 v{T0+1}, 4, v0
    v_and_b32 v{T0+2}, 1, v0
    v_mul_u32_u24 v{T0+2}, {OFF_O + 2 - OFF_E}, v{T0+2}
    s_lshl_b32 s31, s36, 8
    s_sub_u32 s31, s38, s31
    s_add_u32 s29, s31, {OFF_O + 2*2032 - 512 - 192}
    v_lshlrev_b32 v{T0+3}, 1, v{T0}
    v_sub_u32 v{VTA}, s29, v{T0+3}
    v_lshl_add_u32 v{VTA}, v{T0+1}, 4, v{VTA}
    v_sub_u32 v{VTA}, v{VTA}, v{T0+2}
    v_subrev_u32 v{VTA+1}, 1024, v{VTA}
    v_subrev_u32 v{VTA+2}, 2048, v{VTA}
    v_subrev_u32 v{VTA+3}, 3072, v{VTA}
    """)
    def freads(rr, fb): return [f"ds_read_b128 v[{fb+4*m}:{fb+4*m+3}], v{VF} offset:{512*m + 64*(3-rr)}" for m in range(8)]
    def treads(rr, tb):
        o = []
        for i in range(8):
            off = 128 * (1 - (i & 1)) + 16 * (3 - rr)
            o.append(f"ds_read2_b32 v[{tb+4*i}:{tb+4*i+1}], v{VTA+i//2} offset0:{off} offset1:{off+1}")
            o.append(f"ds_read2_b32 v[{tb+4*i+2}:{tb+4*i+3}], v{VTA+i//2} offset0:{off+2} offset1:{off+3}")
        return o
    A(f"""
    v_lshl_add_u32 v19, v0, 4, s38
    s_add_u32 s29, s31, {480 - 192}
    v_lshlrev_b32 v{VF}, 5, v{T0}
    v_lshl_add_u32 v{VF}, v{T0+1}, 4, v{VF}
    v_add_u32 v{VF}, s29, v{VF}
    v_lshlrev_b32 v{VXN}, 5, v{T0}
    v_lshl_add_u32 v{VXN}, v{T0+1}, 3, v{VXN}
    v_add_u32 v{VBW}, s27, v{VXN}
    s_lshl_b32 s28, s36, 11
    s_add_u32 s28, s28, s38
    v_add_u32 v{VXN}, s28, v{VXN}
    v_lshl_add_u32 v{VOWN}, v0, 4, s27
    v_lshl_add_u32 v{VPAR}, v0, 4, s32
    v_mov_b32 v13, 1
    s_lshl_b32 s29, s21, 2
    s_add_u32 s29, s29, {L_FLAG}
    v_mov_b32 v14, s29
    s_xor_b32 s29, s29, 4
    v_mov_b32 v15, s29
    v_lshlrev_b32 v18, 4, v0
    """)
    A(f"""
    L_cv_ex:
    ds_read_b32 v16, v15 offset:64
    s_waitcnt lgkmcnt(0)
    v_readfirstlane_b32 s28, v16
    s_cmp_eq_u32 s28, 1
    s_cbranch_scc0 L_cv_ex
    """)
    A.extend(treads(0, TB[0]))
    A("s_cmp_eq_u32 s37, 1")
    A("s_cbranch_scc1 L_cv_uok")
    if env("HT2", 0): A("s_waitcnt vmcnt(0)"); A.extend(ring_ready(20))
    u_spin(A, 20, 18)
    A.label("L_cv_uok")
    A(f"s_waitcnt vmcnt({8 if env('HT2', 0) else 0})")
    if not UDMA:
        for k in range(4): A(f"ds_write_b128 v19, v[{XL+4*k}:{XL+4*k+3}] offset:{512 + k*1024}")
    A.extend(freads(0, FB[0]))
    A.st("s4")
    if GPK == 1:
        A(f"""
        v_mov_b32 v17, {L_FLAG+32}
        L_cv_gd:
        ds_read_b128 v[20:23], v17
        s_waitcnt lgkmcnt(0)
        v_and_b32 v20, v20, v21
        v_and_b32 v22, v22, v23
        v_and_b32 v20, v20, v22
        s_nop 0
        v_readfirstlane_b32 s28, v20
        s_cmp_eq_u32 s28, 1
        s_cbranch_scc0 L_cv_gd
        """)
    A.st("s5")
    for rp in range(4):
        fb, tb = FB[rp % 2], TB[rp % 2]
        mm = []
        for i in range(8):
            for j in range(i, 8):
                cin = "0" if (rp == 0 and i == 0) else f"v[{ACC+4*j}:{ACC+4*j+3}]"
                mm.append(f"v_mfma_f32_16x16x32_bf16 v[{ACC+4*j}:{ACC+4*j+3}], v[{tb+4*i}:{tb+4*i+3}], v[{fb+4*(j-i)}:{fb+4*(j-i)+3}], {cin}")
        if rp == 1:
            if env("HT2", 0): A("s_waitcnt vmcnt(0)"); A.extend(ring_ready(20))
            if not EPE: A.extend(ep_loads())
        if HT and rp == env("HTP", 3):
            A(f"""
            s_lshl_b32 s28, s24, 2
            s_add_u32 s28, s28, s21
            s_mul_i32 s28, s28, {56*128}
            s_mul_i32 s29, s23, {8*112*1024}
            s_add_u32 s28, s28, s29
            s_add_u32 s28, s28, {WS_HF}
            v_min_u32 v{T0}, 55, v0
            v_lshlrev_b32 v{T0}, 7, v{T0}
            buffer_load_dword v20, v{T0}, s[12:15], s28 offen {SC}
            """)
        if rp == 0:
            o = []
            for j in range(8): o += [f"s_waitcnt lgkmcnt({7-j})", mm[j]]
            mm = o + interleave(mm[8:], freads(1, FB[1]) + treads(1, TB[1]), 0, 22)
        else:
            A("s_waitcnt lgkmcnt(0)")
            if rp < 3: mm = interleave(mm, freads(rp + 1, FB[(rp + 1) % 2]) + treads(rp + 1, TB[(rp + 1) % 2]), 0, 26)
            else: mm = interleave(mm, [f"ds_read_b64 v[{XN+2*a_}:{XN+2*a_+1}], v{VXN} offset:{512 + a_*512}" for a_ in range(4)], 0, 8)
        A.extend(mm)
    A.st("s6")
    A("s_cmp_eq_u32 s36, 1")
    A("s_cbranch_scc1 L_cv_x1")
    for a_ in range(4): A(f"ds_write_b128 v{VOWN}, v[{ACC+16+4*a_}:{ACC+16+4*a_+3}] offset:{4096 + a_*1024}")
    A("ds_write_b32 v14, v13")
    A("s_branch L_cv_out")
    A.label("L_cv_x1")
    A("s_nop 7")
    for a_ in range(4): A(f"ds_write_b128 v{VOWN}, v[{ACC+4*a_}:{ACC+4*a_+3}] offset:{4096 + a_*1024}")
    A("ds_write_b32 v14, v13")
    for k in range(16): A(f"v_mov_b32 v{ACC+k}, v{ACC+16+k}")
    A.label("L_cv_out")
    A(f"""
    """)
    A.extend(ya_addr(41, T0))
    A(f"""
    v_mov_b32 v{T0+2}, 0xfffffffe
    s_waitcnt lgkmcnt(5)
    """)
    t = 80; z = 96; YP = 112
    for k in range(8):
        A(f"v_lshlrev_b32 v{t+2*k}, 16, v{XN+k}")
        A(f"v_and_b32 v{t+2*k+1}, 0xffff0000, v{XN+k}")
    for k in range(16): A(f"v_fma_f32 v{ACC+k}, v{t+k}, v{dsk}, v{ACC+k}")
    A.label("L_cv_ps1")
    A(f"""
    ds_read_b32 v16, v15
    s_waitcnt lgkmcnt(0)
    v_readfirstlane_b32 s28, v16
    s_cmp_eq_u32 s28, 1
    s_cbranch_scc0 L_cv_ps1
    """)
    for a_ in range(4): A(f"ds_read_b128 v[{YP+4*a_}:{YP+4*a_+3}], v{VPAR} offset:{4096 + a_*1024}")
    for a_ in range(4):
        A("s_waitcnt lgkmcnt(3)")
        for k in range(4): A(f"v_add_f32 v{ACC+4*a_+k}, v{ACC+4*a_+k}, v{YP+4*a_+k}")
        for k in range(2): A(f"v_cvt_pk_bf16_f32 v{z+2*a_+k}, v{ACC+4*a_+2*k}, v{ACC+4*a_+2*k+1}")
        for k in range(2): A(f"v_min_u32 v{z+2*a_+k}, v{z+2*a_+k}, v{T0+2}")
        A(f"ds_write_b64 v{VBW}, v[{z+2*a_}:{z+2*a_+1}] offset:{a_*512}")
    for h in range(2): A(f"ds_read_b128 v[{t+4*h}:{t+4*h+3}], v{VOWN} offset:{h*1024}")
    for h in range(2):
        A(f"s_waitcnt lgkmcnt({1-h})")
        A(f"buffer_store_dwordx4 v[{t+4*h}:{t+4*h+3}], v41, s[12:15], s{30+h} offen {SC}")
    Y = 160
    A(f"""
    v_lshlrev_b32 v{T0}, 8, v1
    v_lshl_add_u32 v{T0}, v2, 4, v{T0}
    s_lshl_b32 s28, s79, 5
    s_add_u32 s28, s28, s78
    s_lshl_b32 s28, s28, 13
    s_lshl_b32 s29, s21, 11
    s_add_u32 s28, s28, s29
    s_add_u32 s28, s28, {WS_YA}
    v_lshlrev_b32 v{T0+1}, 8, v2
    v_lshl_add_u32 v{T0+1}, v2, 4, v{T0+1}
    v_lshl_add_u32 v{T0+1}, v1, 2, v{T0+1}
    v_add_u32 v{T0+1}, s27, v{T0+1}
    v_mov_b32 v{T0+3}, 0x05040100
    v_mov_b32 v{T0+4}, 0x07060302
    s_mov_b32 s30, 0
    """)
    A.st("s7")
    A(f"""
    v_mov_b32 v17, {L_FLAG+48}
    L_cv_w19:
    s_sleep 2
    ds_read_b128 v[20:23], v17
    s_waitcnt lgkmcnt(0)
    v_and_b32 v20, v20, v21
    v_and_b32 v22, v22, v23
    v_and_b32 v20, v20, v22
    s_nop 0
    v_readfirstlane_b32 s29, v20
    s_cmp_eq_u32 s29, 1
    s_cbranch_scc0 L_cv_w19
    L_cv_poll2:
    buffer_load_dwordx4 v[{Y}:{Y+3}], v{T0}, s[12:15], s28 offen {SC}
    buffer_load_dwordx4 v[{Y+4}:{Y+7}], v{T0}, s[12:15], s28 offen offset:128 {SC}
    s_waitcnt vmcnt(0)
    v_max_u32 v{Y+8}, v{Y}, v{Y+1}
    v_max3_u32 v{Y+8}, v{Y+8}, v{Y+2}, v{Y+3}
    v_max3_u32 v{Y+8}, v{Y+8}, v{Y+4}, v{Y+5}
    v_max3_u32 v{Y+8}, v{Y+8}, v{Y+6}, v{Y+7}
    v_cmp_eq_u32 vcc, -1, v{Y+8}
    s_cbranch_vccz L_cv_got
    s_sleep 4
    s_add_u32 s30, s30, 1
    s_cmp_lt_u32 s30, {SPIN}
    s_cbranch_scc1 L_cv_poll2
    """)
    A.label("L_cv_got")
    A.st("got")
    for k in range(4):
        A(f"v_perm_b32 v{Y+8+2*k}, v{Y+4+k}, v{Y+k}, v{T0+3}")
        A(f"v_perm_b32 v{Y+9+2*k}, v{Y+4+k}, v{Y+k}, v{T0+4}")
    for i in range(8): A(f"ds_write_b32 v{T0+1}, v{Y+8+i} offset:{i*32}")
    A("s_waitcnt lgkmcnt(0)")


def gen_final(A):
    P = 32
    A(f"""
    v_lshlrev_b32 v13, 1, v2
    v_xor_b32 v13, v13, v1
    v_lshlrev_b32 v13, 4, v13
    v_lshl_add_u32 v13, v1, 8, v13
    s_and_b32 s28, s20, 3
    s_lshl_b32 s28, s28, 11
    s_lshr_b32 s29, s20, 2
    s_lshl_b32 s29, s29, 15
    s_add_u32 s28, s28, s29
    v_add_u32 v13, s28, v13
    v_xor_b32 v14, 16, v13
    v_lshrrev_b32 v15, 1, v2
    v_lshlrev_b32 v15, 13, v15
    v_lshl_add_u32 v15, v1, 5, v15
    v_and_b32 v16, 1, v2
    v_lshl_add_u32 v15, v16, 4, v15
    s_mul_i32 s28, s20, 272
    s_add_u32 s28, s28, {L_ST2}
    v_add_u32 v15, s28, v15
    """)
    srd(A, 8, "s52", "s53", 2 << 20)
    X, Yv, B = 64, 72, 80
    def unpack(d, s_):
        for k in range(4):
            A(f"v_lshlrev_b32 v{d+2*k}, 16, v{s_+k}")
            A(f"v_and_b32 v{d+2*k+1}, 0xffff0000, v{s_+k}")
    def pack(d, s_):
        for k in range(4): A(f"v_cvt_pk_bf16_f32 v{d+k}, v{s_+2*k}, v{s_+2*k+1}")
    unpack(X, VX); unpack(B, VB2)
    if not FR:
        for k in range(8): A(f"v_add_f32 v{X+k}, v{X+k}, v{B+k}")
    A("s_barrier")
    A.st("fin")
    A(f"ds_read_b128 v[16:19], v15")
    for w in range(4):
        A(f"ds_read_b128 v[{P+8*w}:{P+8*w+3}], v13 offset:{w*8192}")
        A(f"ds_read_b128 v[{P+8*w+4}:{P+8*w+7}], v14 offset:{w*8192}")
    A("s_waitcnt lgkmcnt(8)")
    unpack(Yv, 16)
    for k in range(8): A(f"v_add_f32 v{X+k}, v{X+k}, v{Yv+k}")
    if FR: pack(20, X); unpack(X, 20)
    A("s_waitcnt lgkmcnt(4)")
    for k in range(8): A(f"v_add_f32 v{P+k}, v{P+k}, v{P+8+k}")
    A("s_waitcnt lgkmcnt(0)")
    for k in range(8): A(f"v_add_f32 v{P+16+k}, v{P+16+k}, v{P+24+k}")
    for k in range(8): A(f"v_add_f32 v{P+k}, v{P+k}, v{P+16+k}")
    if FR:
        pack(24, P); unpack(P, 24)
        for k in range(8): A(f"v_add_f32 v{P+k}, v{P+k}, v{B+k}")
        pack(24, P); unpack(P, 24)
    for k in range(8): A(f"v_add_f32 v{P+k}, v{P+k}, v{X+k}")
    pack(28, P)
    A(f"buffer_store_dwordx4 v[28:31], v{VOO}, s[8:11], s33 offen {os.environ.get('SCO', '')}")
    if STAMPS: A("s_waitcnt vmcnt(0)")
    A.stamp_flush(0)
    A("s_endpgm")


def gen():
    A = Asm()
    A.stamp(0, True); A.stamp(1)
    for k in range(2, 9): A.stamp(k)
    A(f"""
    s_cmp_ge_u32 s2, 256
    s_cbranch_scc1 L_exit
    s_load_dwordx2 s[40:41], s[0:1], {KA['u']}
    s_load_dwordx8 s[44:51], s[0:1], {KA['w1']}
    s_load_dwordx4 s[52:55], s[0:1], {KA['out']}
    s_load_dwordx2 s[42:43], s[0:1], {KA['ws']}
    v_lshrrev_b32 v1, 6, v0
    v_and_b32 v0, 63, v0
    s_and_b32 s23, s2, 7
    s_lshr_b32 s24, s2, 3
    v_readfirstlane_b32 s20, v1
    s_and_b32 s25, s24, 3
    s_lshr_b32 s77, s24, 2
    s_and_b32 s79, s77, 3
    s_cmp_eq_u32 s79, 3
    s_cselect_b32 s79, {4 if env("SW", 1) else 0}, 0
    s_xor_b32 s79, s79, s77
    s_lshl_b32 s78, s23, 2
    s_add_u32 s78, s78, s25
    s_mul_i32 s74, {'s23' if ROT & 4 else 's79'}, {3584 if ROT & 5 else 0}
    s_and_b32 s74, s74, 0xfffffc00
    s_mul_i32 s75, s25, {7168 if ROT & 2 else 0}
    s_add_u32 s74, s74, s75
    s_sub_u32 s75, s74, {28*1024}
    s_min_u32 s74, s74, s75
    s_and_b32 s39, s20, 3
    s_cmp_eq_u32 s77, 7
    s_cbranch_scc1 L_ln
    """)
    if LOC:
        A("""
        s_and_b32 s21, s24, 1
        s_lshl_b32 s22, s23, 1
        s_add_u32 s21, s21, s22
        s_lshr_b32 s22, s24, 1
        """)
    else:
        A("""
        s_lshr_b32 s21, s23, 1
        s_lshl_b32 s21, s21, 2
        s_add_u32 s21, s21, s25
        s_and_b32 s22, s23, 1
        s_mul_i32 s22, s22, 7
        s_add_u32 s22, s22, s77
        """)
    gen_gemm1(A)
    A.label("L_ln")
    A("s_nop 0 ; RESETSB")
    A("s_mov_b32 s21, s78")
    gen_ln(A)
    A.label("L_gemm2")
    A("s_nop 1 ; RESETSB")
    gen_gemm2(A)
    A.label("L_conv")
    A("s_nop 1 ; RESETSB")
    gen_conv(A)
    A.label("L_final")
    A("s_nop 7")
    gen_final(A)
    A.label("L_exit")
    A("s_endpgm")
    lines = fix_hazards(A.lines, verbose=True)
    check_waits(lines, "s")
    head = open("parallel_sum__ssm_conv_s4__dense_activation_gelu__prompt.s.ref").read().split("; Override launch")[0]
    head += f"; @launch grid=(256,1,1) block=(512,1,1) lds={LDS_TOTAL}\n.amdgcn_target \"amdgcn-amd-amdhsa--gfx950\"\n"
    return head + kernel_section(KNAME, lines, 256, 102, 256)

if __name__ == "__main__":
    out = sys.argv[1] if len(sys.argv) > 1 else "cur8.s"
    open(out, "w").write(gen())
    print("wrote", out)
```

```python
from asmlib import *
import struct, math, os, sys

def f2u(x): return struct.unpack("<I", struct.pack("<f", x))[0]
def env(n, d): return int(os.environ.get(n, str(d)))

KNAME = "parallel_sum__ssm_conv_s4__dense_activation_gelu__prompt_kernel"
KA = dict(u=0, A_re=8, A_im=16, B_re=24, B_im=32, C_re=40, C_im=48, log_dt=56, Dskip=64, Bx=72, w1=80, b1=88, w2=96, b2=104,
          out=112, dbg=120, ws=128)
WS_FLL = 32768
WS_EPOCH = 49152
WS_DUMMY = 53248
WS_STAT = 65536
WS_FLH = 131072
WS_FLY = 262144
WS_HF = 1 << 20
WS_XNT = 8 << 20
WS_YA = 12 << 20
WS_USED = 14 << 20

LOG2E = 1.4426950408889634
GC1 = -2.0 * LOG2E * 0.7978845608028654
GC2 = GC1 * 0.044715

NS, STAGE = 4, 32768
RSL = 12
RING = RSL * 2048
L_KST = 98304; KST = 8704
L_ST2 = 98304; ST2 = 8192
L_CH = 131072; CH_SIZE = 13056
OFF_E, OFF_O = 4608, 8768
L_FLAG = L_CH + 2 * CH_SIZE
L_CS = L_FLAG + 512
LDS_TOTAL = 163840
L_VS = 98304; L_US = 98304

OPT_PF = env("PF", 2)
PRE = env("PRE", 3)
PRIO_C = env("PRIOC", 1)
PRIO_G = env("PRIOG", 2)
PRIO_E = env("PRIOE", 0)
ROT = env("ROT", 4)
BARP = env("BARP", 2)
STATG = env("STATG", 21)
SC = os.environ.get("SC", "sc1")
PFG = [int(x) for x in os.environ.get("PFG", "").split(",") if x]
HD = 9
FSL = env('FSL', 2)
KR = env('KR', 0)
MIX = env('MIX', 0)
XS = env('XS', 65536 + 2176)
PS = env('PS', 8)
PG = env('PG', 0)
LW1 = env('LW1', 0)
UDMA = env('UDMA', 1)
EPE = env('EPE', 1)
FS = env('FS', 2)
HP = env('HP', 1)
NB8 = env('NB8', 1)
EP = env('EP', 2)
TS = env('TS', 4)
FR = env('FR', 0)
NPK0 = env('NPK0', 3)
NC0 = env('NC0', 3)
WSOFF = env('WSOFF', 0) << 20
SCH = os.environ.get('SCH', SC)
LOC = env('LOC', 0)
GPK = env('GPK', 0)
ULN = env('ULN', 3)
HT = env('HT', 0)
SCL = os.environ.get('SCL', SC)
SPIN = 0x40000

DK, DP, EX, P0 = 224, 128, 160, 244
BF, AF, KG_G, KG_E1, KG_L, KG_V, KG_PK, KG_VW, KG_VRD = 160, 192, 108, 122, 224, 124, 132, 136, 137
L_KS2 = 131072; KS2 = 4352
XL = 180
VDUM, LNF = 252, 253
VX, VB2, VOO = 4, 8, 12
VW2 = 23
W2R, HR, ACC2 = 160, 88, 24
VTL = 24

def srd(A, d, lo, hi, size):
    A(f"s_mov_b32 s{d}, {lo}\ns_mov_b32 s{d+1}, {hi}\ns_mov_b32 s{d+2}, {size}\ns_mov_b32 s{d+3}, 0x00020000")
def round_bf16(A, r):
    A(f"v_cvt_pk_bf16_f32 v{r}, v{r}, v{r}")
    A(f"v_and_b32 v{r}, 0xffff0000, v{r}")
def zipm(*lists):
    o = []
    for k in range(max(len(l) for l in lists)):
        for l in lists:
            if k < len(l): o.append(l[k])
    return o
def mask(lo, hi=None):
    hi = lo if hi is None else hi
    return [f"s_mov_b32 s28, {lo}", f"s_mov_b32 s29, {hi}"]

class VMQ:
    def __init__(self): self.q = []
    def note(self, tag, n=1): self.q.extend([tag] * n)
    def wait(self, *tags):
        idx = max((k for k, t in enumerate(self.q) if t in tags), default=-1)
        if idx < 0: return []
        n = len(self.q) - 1 - idx
        del self.q[:idx + 1]
        return [f"s_waitcnt vmcnt({n})"]
    def younger(self): return len(self.q)

ORDER = [0, 1] + list(range(12, 24)) + list(range(2, 12)) + list(range(24, 28))

def koff(dst, lab, base="s74"):
    return [f"s_add_u32 {dst}, {base}, {lab*1024}", f"s_sub_u32 s75, {dst}, {28*1024}", f"s_min_u32 {dst}, {dst}, s75"]

def slot_addr(sl): return (sl >> 2) * 32768 + (sl & 3) * 2048

def w2_setup(A, vt):
    srd(A, 16, "s48", "s49", 1792 * 1024)
    A(f"""
    v_lshrrev_b32 v{vt}, 2, v0
    v_and_b32 v{vt}, 4, v{vt}
    v_and_b32 v{vt+1}, 7, v0
    v_xor_b32 v{vt}, v{vt}, v{vt+1}
    v_lshrrev_b32 v{vt+1}, 3, v0
    v_lshlrev_b32 v{VW2}, 10, v{vt+1}
    v_lshl_add_u32 v{VW2}, v{vt}, 4, v{VW2}
    s_mul_i32 s72, s39, {448*1024}
    s_lshl_b32 s75, s79, 7
    s_add_u32 s72, s72, s75
    s_lshl_b32 s73, s39, 13
    v_lshrrev_b32 v{vt+1}, 5, v0
    v_bfe_u32 v{vt}, v0, 2, 2
    v_lshl_add_u32 v{VTL}, v{vt+1}, 2, v{vt}
    v_lshlrev_b32 v{VTL}, 7, v{VTL}
    v_bfe_u32 v{vt}, v0, 4, 1
    v_lshl_add_u32 v{VTL}, v{vt}, 5, v{VTL}
    v_and_b32 v{vt}, 3, v0
    v_lshl_add_u32 v{VTL}, v{vt}, 3, v{VTL}
    v_bfe_u32 v{vt}, v0, 3, 1
    v_lshl_add_u32 v{VTL}, v{vt}, 6, v{VTL}
    v_add_u32 v{VTL}, s73, v{VTL}
    v_xor_b32 v{VTL+1}, 64, v{VTL}
    v_add_u32 v{VTL+2}, 0x10000, v{VTL}
    v_add_u32 v{VTL+3}, 0x10000, v{VTL+1}
    """)
def wdma(slot, lab):
    a_ = slot_addr(slot)
    return koff("s31", lab) + [f"s_add_u32 m0, s73, {a_}", "s_lshl4_add_u32 s31, s31, s72",
                               f"buffer_load_dwordx4 v{VW2}, s[16:19], s31 offen lds",
                               f"s_add_u32 m0, s73, {a_+1024}", "s_add_u32 s31, s31, 8192",
                               f"buffer_load_dwordx4 v{VW2}, s[16:19], s31 offen lds"]
def w2tr(slot, ws_, vtl=VTL):
    b = W2R + 8 * ws_; a_ = slot_addr(slot); hi = a_ >> 16; a_ &= 0xffff
    return [f"ds_read_b64_tr_b16 v[{b+4*db+2*sec}:{b+4*db+2*sec+1}], v{vtl+2*hi+db} offset:{a_+sec*1024}" for db in range(2) for sec in range(2)]

def param_loads(A, vt):
    A(f"""
    s_lshr_b32 s28, s39, 1
    s_lshl_b32 s30, s2, 1
    s_add_u32 s30, s30, s28
    v_lshlrev_b32 v{vt}, 1, v0
    v_mov_b32 v{vt+1}, 0
    s_lshl_b32 s29, s30, 8
    s_and_b32 s28, s20, 1
    s_lshl_b32 s28, s28, 7
    s_add_u32 s29, s29, s28
    s_lshl_b32 s30, s30, 1
    s_mov_b32 s18, 1024
    s_mov_b32 s19, 0x00020000
    """)
    for k in range(8): A(f"v_mov_b32 v{P0+k}, 0")
    A("s_waitcnt lgkmcnt(0)")
    for k in (6, 7, 0, 1, 2, 3, 4, 5):
        if k == 0: A("s_mov_b32 s18, 131072")
        A(f"s_mov_b32 s16, s{56+2*k}\ns_mov_b32 s17, s{57+2*k}")
        if k < 6: A(f"buffer_load_short_d16_hi v{P0+k}, v{vt}, s[16:19], s29 offen")
        else: A(f"buffer_load_short_d16_hi v{P0+k}, v{vt+1}, s[16:19], s30 offen")

def lnflag_load(vt):
    return ["s_lshl_b32 s29, s79, 6", "s_lshl_b32 s28, s39, 4", "s_add_u32 s29, s29, s28", "s_lshr_b32 s28, s78, 4", "s_lshl_b32 s28, s28, 9",
            "s_add_u32 s29, s29, s28", f"s_lshl_b32 s29, s29, {FS}", f"s_add_u32 s29, s29, {WS_FLY}",
            f"v_lshlrev_b32 v{vt}, {FSL}, v0", f"v_add_u32 v{vt}, {WS_FLL}, v{vt}",
            f"v_and_b32 v{vt+1}, 15, v0", f"v_lshl_add_u32 v{vt+1}, v{vt+1}, {FS}, s29", "s_mov_b32 s28, 0", "s_mov_b32 s29, -1",
            f"v_cndmask_b32 v{vt}, v{vt}, v{vt+1}, s[28:29]",
            f"buffer_load_dword v{LNF}, v{vt}, s[12:15], 0 offen {SC}"]

def u_issue(A, vl16):
    A(f"""
    s_lshr_b32 s28, s39, 1
    s_lshl_b32 s29, s2, 1
    s_add_u32 s29, s29, s28
    s_lshl_b32 s29, s29, {7 if XS else 12}
    s_add_u32 s29, s29, {WS_XNT}
    """)
    if UDMA:
        A(f"s_mul_i32 s28, s28, {CH_SIZE}")
        A(f"s_add_u32 m0, s28, {L_CH + 512}")
        if XS:
            A(f"""
            v_lshrrev_b32 v{XL}, 3, v0
            v_and_b32 v{XL+1}, 7, v0
            v_mul_u32_u24 v{XL}, {XS}, v{XL}
            v_lshl_add_u32 v{XL}, v{XL+1}, 4, v{XL}
            """)
            vl16 = XL
        for k in range(4):
            if XS and k: A(f"s_add_u32 s29, s29, {8*XS - 1024}")
            A(f"buffer_load_dwordx4 v{vl16}, s[12:15], s29 offen offset:{k*1024} {SC} lds")
    else:
        for k in range(4): A(f"buffer_load_dwordx4 v[{XL+4*k}:{XL+4*k+3}], v{vl16}, s[12:15], s29 offen offset:{k*1024} {SC}")

def u_try(A, vl16):
    A(f"""
    v_cmp_ne_u32 vcc, s76, v{LNF}
    s_mov_b32 s37, 0
    s_cbranch_vccnz L_ut_no
    s_mov_b32 s37, 1
    """)
    u_issue(A, vl16)
    A.label("L_ut_no")

def u_spin(A, vt, vl16, tag=''):
    A("s_mov_b32 s30, 0")
    A.label(f"L_us_poll{tag}")
    A(f"s_sleep {PS}")
    A.extend(lnflag_load(vt))
    A(f"""
    s_add_u32 s30, s30, 1
    s_waitcnt vmcnt(0)
    v_cmp_ne_u32 vcc, s76, v{LNF}
    s_cmp_gt_u32 s30, {SPIN}
    s_cbranch_scc1 L_us_ok{tag}
    s_cbranch_vccnz L_us_poll{tag}
    """)
    A.label(f"L_us_ok{tag}")
    u_issue(A, vl16)
    A("s_waitcnt vmcnt(0)")

def ya_addr(vd, vt):
    return [f"v_lshrrev_b32 v{vd}, 3, v0", f"v_and_b32 v{vt}, 7, v0", f"v_lshlrev_b32 v{vd}, 13, v{vd}", f"v_lshl_add_u32 v{vd}, v{vt}, 4, v{vd}",
            "s_lshr_b32 s28, s39, 1", "s_lshl_b32 s31, s2, 1", "s_add_u32 s31, s31, s28",
            "s_lshr_b32 s29, s31, 6", "s_lshl_b32 s29, s29, 18", "s_and_b32 s28, s31, 63", "s_lshl_b32 s28, s28, 7", "s_add_u32 s29, s29, s28",
            f"s_add_u32 s29, s29, {WS_YA}", "s_and_b32 s30, s39, 1", "s_lshl_b32 s30, s30, 17", "s_add_u32 s30, s30, s29", "s_add_u32 s31, s30, 65536"]
def ya_prefill(vd, vt, vm4):
    return ya_addr(vd, vt) + [f"v_mov_b32 v{vm4+k}, -1" for k in range(4)] + \
           [f"buffer_store_dwordx4 v[{vm4}:{vm4+3}], v{vd}, s[12:15], s{30+h} offen {SC}" for h in range(2)]

def publish_flag(A, soff, vt, tag, wave, both=False):
    A(f"""
    s_cmp_lg_u32 s20, {wave}
    s_cbranch_scc1 L_pub_skip{tag}
    v_mov_b32 v{vt}, 0
    v_mov_b32 v{vt+1}, s76
    s_mov_b64 exec, 1
    buffer_store_dword v{vt+1}, v{vt}, s[12:15], {soff} offen {SC}
    """)
    if both:
        A(f"""
        s_lshl_b32 s28, s2, 7
        s_add_u32 s28, s28, {WS_FLW}
        buffer_store_dword v{vt+1}, v{vt}, s[12:15], s28 offen {SC}
        """)
    A(f"""
    s_mov_b64 exec, -1
    L_pub_skip{tag}:
    """)
def mktag(A):
    A("s_mul_i32 s76, s76, 0x9E3779B1")
    A("s_add_u32 s76, s76, 0x7F4A7C15")
def arrive(A, tag):
    A(f"""
    s_cmp_lg_u32 s20, 3
    s_cbranch_scc1 L_arr{tag}
    s_atomic_add s77, s[54:55], 0 glc
    L_arr{tag}:
    """)

def coop_prefetch(A, vt):
    A(f"""
    s_lshl_b32 s28, s24, 2
    s_add_u32 s28, s28, s39
    s_lshl_b32 s30, s28, 6
    v_add_u32 v{vt}, s30, v0
    v_mul_u32_u24 v{vt+1}, 0x4925, v{vt}
    v_lshrrev_b32 v{vt+1}, 18, v{vt+1}
    v_mul_u32_u24 v{vt+2}, 14, v{vt+1}
    v_sub_u32 v{vt}, v{vt}, v{vt+2}
    v_lshlrev_b32 v{vt}, 7, v{vt}
    v_mul_u32_u24 v{vt+1}, 3584, v{vt+1}
    v_add_u32 v{vt}, v{vt}, v{vt+1}
    s_and_b32 s29, s23, 1
    s_mul_i32 s29, s29, 1792
    buffer_load_dword v{VDUM}, v{vt}, s[8:11], s29 offen
    s_lshr_b32 s29, s23, 1
    s_lshl_b32 s29, s29, 19
    s_lshl_b32 s30, s28, 13
    s_add_u32 s29, s29, s30
    v_lshlrev_b32 v{vt+2}, 7, v0
    """)
    if env("MP0", 1):
        A(f"""
        s_mul_i32 s31, s23, {28*8192}
        s_add_u32 s31, s31, s30
        s_sub_u32 s31, s31, {64*8192}
        s_cmp_lt_u32 s28, 92
        s_cselect_b32 s31, s31, 0x400000
        s_cmp_lt_u32 s28, 64
        s_cselect_b32 s29, s29, s31
        s_cselect_b32 s16, s40, s48
        s_cselect_b32 s17, s41, s49
        s_cselect_b32 s18, 0x200000, {1792*1024}
        s_mov_b32 s19, 0x00020000
        buffer_load_dword v{VDUM}, v{vt+2}, s[16:19], s29 offen
        """.replace("s_cselect_b32 s18, 0x200000, 1835008", "s_mov_b32 s18, 1835008\n        s_cselect_b32 s18, 0x200000, s18"))
    else:
        A(f"""
        s_cmp_lt_u32 s28, 64
        s_cselect_b32 s29, s29, 0x400000
        buffer_load_dword v{VDUM}, v{vt+2}, s[4:7], s29 offen
        """)
def coop_prefetch2(A, vt):
    srd(A, 16, "s48", "s49", 1792 * 1024)
    A(f"""
    s_lshl_b32 s28, s24, 2
    s_add_u32 s28, s28, s39
    s_mul_i32 s30, s28, 40
    v_add_u32 v{vt}, s30, v0
    v_mul_u32_u24 v{vt+1}, 0x4925, v{vt}
    v_lshrrev_b32 v{vt+1}, 18, v{vt+1}
    v_mul_u32_u24 v{vt+2}, 14, v{vt+1}
    v_sub_u32 v{vt}, v{vt}, v{vt+2}
    v_lshlrev_b32 v{vt}, 7, v{vt}
    v_mul_u32_u24 v{vt+1}, 3584, v{vt+1}
    v_add_u32 v{vt}, v{vt}, v{vt+1}
    s_mul_i32 s30, s28, 23
    v_add_u32 v{vt+1}, s30, v0
    v_min_u32 v{vt+1}, 2559, v{vt+1}
    v_mul_u32_u24 v{vt+2}, 13108, v{vt+1}
    v_lshrrev_b32 v{vt+2}, 16, v{vt+2}
    v_mul_u32_u24 v{vt+3}, 3, v{vt+2}
    v_add_u32 v{vt+1}, v{vt+1}, v{vt+3}
    v_lshlrev_b32 v{vt+1}, 7, v{vt+1}
    v_lshlrev_b32 v{vt+2}, 7, v0
    s_and_b32 s29, s23, 1
    s_mul_i32 s29, s29, 1792
    s_add_u32 s29, s29, {192*3584}
    s_mov_b32 exec_hi, {0 if (LW1 or not env("WT", 1)) else 255}
    s_mov_b32 exec_lo, {1 if (LW1 or not env("WT", 1)) else -1}
    buffer_load_dword v{VDUM}, v{vt}, s[8:11], s29 offen
    s_lshr_b32 s29, s23, 1
    s_lshl_b32 s29, s29, 19
    s_add_u32 s29, s29, 384
    s_mov_b64 exec, {"0x7fffff" if env("XT", 1) else "1"}
    buffer_load_dword v{VDUM}, v{vt+1}, s[4:7], s29 offen
    s_lshl_b32 s28, s2, 2
    s_add_u32 s28, s28, s39
    s_lshl_b32 s28, s28, 11
    s_mov_b64 exec, {os.environ.get("W2M", "1")}
    buffer_load_dword v{VDUM}, v{vt+2}, s[16:19], s28 offen
    s_mov_b64 exec, -1
    """)
def w2_prefetch(vt, piece):
    return ["s_lshl_b32 s28, s24, 2", "s_add_u32 s28, s28, s39", "s_lshl_b32 s28, s28, 14", f"s_add_u32 s28, s28, {piece*8192}",
            f"v_lshlrev_b32 v{vt}, 7, v0", f"buffer_load_dword v{VDUM}, v{vt}, s[16:19], s28 offen"]

def cmul(d, x, y, pk=True):
    P = lambda r: f"v[{r}:{r+1}]"
    assert d != x and d != y
    if pk:
        return [f"v_pk_mul_f32 {P(d)}, {P(x)}, {P(y)} op_sel:[0,0] op_sel_hi:[0,1]",
                f"v_pk_fma_f32 {P(d)}, {P(x)}, {P(y)}, {P(d)} op_sel:[1,1,0] op_sel_hi:[1,0,1] neg_lo:[0,1,0]"]
    return [f"v_mul_f32 v{d}, v{x}, v{y}", f"v_mul_f32 v{d+1}, v{x}, v{y+1}",
            f"v_fma_f32 v{d}, -v{x+1}, v{y+1}, v{d}", f"v_fma_f32 v{d+1}, v{x+1}, v{y}, v{d+1}"]

def kg_common(A, base, T0, Z, WA):
    ar, ai, br, bi, cr, ci, ld, dsk = range(P0, P0 + 8)
    u_ = f2u(LOG2E) & 0xFFFFFF00
    lh = struct.unpack("<f", struct.pack("<I", u_))[0]; ll = LOG2E - lh
    A(f"""
    v_mul_f32 v{T0}, {hex(f2u(lh))}, v{ld}
    v_mul_f32 v{T0+1}, {hex(f2u(ll * math.log(2)))}, v{ld}
    v_exp_f32 v{T0}, v{T0}
    s_nop 0
    v_fma_f32 v{T0}, v{T0}, v{T0+1}, v{T0}
    """)
    round_bf16(A, T0)
    A(f"""
    v_mul_f32 v{Z}, v{T0}, v{ar}
    v_mul_f32 v{Z+1}, v{T0}, v{ai}
    v_mul_f32 v{br}, v{T0}, v{br}
    v_mul_f32 v{bi}, v{T0}, v{bi}
    v_mul_f32 v{Z}, {hex(f2u(LOG2E))}, v{Z}
    v_mul_f32 v{Z+1}, 0.15915494, v{Z+1}
    """)
def kg_waddr(A, base, WA):
    A(f"s_lshl_b32 s28, s39, 13\ns_add_u32 s28, s28, {base}\nv_lshl_add_u32 v{WA}, v0, 2, s28")
    for k in range(1, 16): A(f"v_xor_b32 v{WA+k}, {16*k}, v{WA}")
def kg_raddr(base, d, t):
    o = ["s_lshl_b32 s28, s39, 13", f"s_add_u32 s28, s28, {base}", f"v_and_b32 v{t}, 15, v0", f"v_lshrrev_b32 v{t+1}, 5, v0", f"v_xor_b32 v{t}, v{t}, v{t+1}",
         f"v_and_b32 v{t+1}, 31, v0", f"v_lshlrev_b32 v{t+1}, 8, v{t+1}", f"v_lshl_add_u32 v{d}, v{t}, 4, v{t+1}", f"v_add_u32 v{d}, s28, v{d}"]
    return o + [f"v_xor_b32 v{d+k}, {32*k}, v{d}" for k in range(1, 8)]
def cexp(d, x, t, Z):
    xs = {1: None, 8: hex(f2u(8.0)), 256: hex(f2u(256.0))}[x]
    o = []
    if xs is None: o += [f"v_exp_f32 v{t}, v{Z}", f"v_fract_f32 v{t+1}, v{Z+1}"]
    else: o += [f"v_mul_f32 v{t}, {xs}, v{Z}", f"v_mul_f32 v{t+1}, {xs}, v{Z+1}", f"v_exp_f32 v{t}, v{t}", f"v_fract_f32 v{t+1}, v{t+1}"]
    o += [f"v_cos_f32 v{d}, v{t+1}", f"v_sin_f32 v{d+1}, v{t+1}", f"v_mul_f32 v{d}, v{d}, v{t}", f"v_mul_f32 v{d+1}, v{d+1}, v{t}"]
    return o
KWA = 100
KRA = 116

def gen_kgen_v(A):
    T0, Z, E8, E16, Va, Vb, PKT = 34, 144, 44, 46, 80, 84, 88
    kg_common(A, L_VS, T0, Z, KWA)
    A.extend(cexp(E8, 8, T0, Z))
    A.extend(cmul(E16, E8, E8))
    npk = [0]
    def emit(src, row):
        t = PKT + (npk[0] % 8); npk[0] += 1
        return [f"v_cvt_pk_bf16_f32 v{t}, v{src}, v{src+1}", f"ds_write_b32 v{KWA + (row & 15)}, v{t} offset:{row*256}"]
    A(f"v_mov_b32 v{PKT+7}, 0x00003f80")
    A(f"ds_write_b32 v{KWA}, v{PKT+7}")
    A.extend(emit(E8, 1)); A.extend(emit(E16, 2))
    ev, od = E16, E8
    for j in range(3, 32, 2):
        d1 = Va + 2 * (((j - 3) // 2) % 2)
        d2 = Vb + 2 * (((j - 3) // 2) % 2)
        l1 = cmul(d1, od, E16) + emit(d1, j)
        l2 = (cmul(d2, ev, E16) + emit(d2, j + 1)) if j + 1 < 32 else []
        A.extend(zipm(l1, l2))
        od, ev = d1, d2
    for st in range(8): A(f"ds_read_b128 v[{BF+4*st}:{BF+4*st+3}], v{KRA+st}")

UPK = 192
def kgen_u_lists(rebase):
    T0, Z, E1, G, Lr, Va = 34, 144, 42, 44, 58, 76
    ar, ai, br, bi, cr, ci, ld, dsk = range(P0, P0 + 8)
    cm = lambda d, x, y: cmul(d, x, y, False)
    V = []; Wr = []
    if rebase: V += [f"v_subrev_u32 v{KWA+k}, {rebase}, v{KWA+k}" for k in range(24)]
    V += zipm(cexp(E1, 1, T0 + 2, Z), cexp(G, 256, T0 + 4, Z), cm(Lr, cr, br))
    npk = [0]
    def emit(src, rows):
        t = UPK + npk[0]; npk[0] += 1
        Wr.extend(f"ds_write_b32 v{KWA + (row & 15)}, v{t} offset:{row*256}" for row in rows)
        return [f"v_cvt_pk_bf16_f32 v{t}, v{src}, -v{src+1}"]
    urow = lambda hh, r: 8 * (r >> 2) + 4 * hh + (r & 3)
    lch = emit(Lr, [urow(0, 0)])
    for a_ in range(1, 9): lch += cm(Lr + 2 * a_, Lr + 2 * (a_ - 1), E1) + emit(Lr + 2 * a_, [urow(0, a_)])
    gch = []
    for k in range(2, 8): gch += cm(G + 2 * (k - 1), G + 2 * (k - 2), G)
    V += zipm(lch, gch)
    jobs = [(0, 1, [urow(1, 0), urow(1, 1)]), (2, 1, [urow(1, 2)]), (4, 1, [urow(1, 3), urow(1, 4), urow(1, 5)]), (6, 1, [urow(1, 6)]),
            (8, 1, [urow(1, 7), urow(1, 8)]),
            (0, 2, [urow(0, 9)]), (4, 2, [urow(0, 10)]), (8, 2, [urow(0, 11)]),
            (0, 3, [urow(1, 9)]), (4, 3, [urow(1, 10)]), (8, 3, [urow(1, 11)]),
            (0, 4, [urow(0, 12)]), (8, 4, [urow(0, 13)]), (0, 5, [urow(0, 14)]), (8, 5, [urow(0, 15)]),
            (0, 6, [urow(1, 12)]), (8, 6, [urow(1, 13)]), (0, 7, [urow(1, 14)]), (8, 7, [urow(1, 15)])]
    for k in range(0, len(jobs), 2):
        ls = []
        for q_, (a_, gk, rows) in enumerate(jobs[k:k + 2]):
            d = Va + 4 * q_ + 2 * ((k // 2) % 2)
            ls.append(cm(d, Lr + 2 * a_, G + 2 * (gk - 1)) + emit(d, rows))
        V += zipm(*ls)
    assert npk[0] <= 32
    return V, Wr

def kg_atoms_m():
    at = [[f"ds_read_b128 v[{AF+4*k}:{AF+4*k+3}], v{KRA+k} offset:{L_US - L_VS}", ("tag", ("af", k))] for k in range(8)]
    mm = []
    for st in range(8):
        cin = "0" if st == 0 else f"v[{DK}:{DK+15}]"
        mm.append([("wait", ("af", st)), f"v_mfma_f32_32x32x16_bf16 v[{DK}:{DK+15}], v[{AF+4*st}:{AF+4*st+3}], v[{BF+4*st}:{BF+4*st+3}], {cin}"])
    return at, mm

def kg_atoms_x1():
    T0 = P0
    at = [[f"s_lshr_b32 s30, s39, 1", f"s_mul_i32 s30, s30, {CH_SIZE}", f"s_add_u32 s38, s30, {L_CH}", "s_lshl_b32 s30, s39, 13", f"s_add_u32 s30, s30, {L_VS}", f"v_lshl_add_u32 v{T0}, v0, 4, s30"]]
    at.append(["s_bitcmp1_b32 s39, 0", "s_cselect_b64 exec, -1, 0"] + [f"ds_write_b128 v{T0}, v[{DK+4*q}:{DK+4*q+3}] offset:{512+q*1024}" for q in range(3)] +
              ["s_not_b64 exec, exec", f"ds_write_b128 v{T0}, v[{DK+12}:{DK+15}] offset:{512+3072}", "s_mov_b64 exec, -1", f"v_xor_b32 v{T0}, 8192, v{T0}"])
    return at

def kg_atoms_x2(tag):
    T0 = P0; VEA, VEB = 254, 255
    at = []
    at.append([f"ds_read_b128 v[{DP+4*q}:{DP+4*q+3}], v{T0} offset:{512+q*1024}" for q in range(4)] + [("tag", "dp")])
    for i in [f"v_and_b32 v{T0+4}, 31, v0", f"v_lshrrev_b32 v{T0+1}, 5, v0", f"v_lshlrev_b32 v{T0+2}, 4, v{T0+4}"]: at.append([i])
    at.append([f"s_add_u32 s28, s38, {OFF_E + 4080 - 1024}", f"v_sub_u32 v{VEA}, s28, v{T0+2}"])
    at.append([f"v_lshlrev_b32 v{T0+3}, 9, v{T0+1}"]); at.append([f"v_sub_u32 v{VEA}, v{VEA}, v{T0+3}"])
    at.append([f"s_add_u32 s28, s38, {OFF_E + 4080 - 2560}", f"v_sub_u32 v{VEB}, s28, v{T0+2}"])
    at.append([f"v_lshlrev_b32 v{T0+3}, 10, v{T0+1}"]); at.append([f"v_sub_u32 v{VEB}, v{VEB}, v{T0+3}"])
    at.append([f"v_lshl_add_u32 v{T0}, v0, 3, s38"]); at.append([f"v_mov_b32 v{T0+2}, 0"]); at.append([f"v_mov_b32 v{T0+3}, 0"])
    at.append(["s_lshl_b32 s28, s39, 2", f"s_add_u32 s28, s28, {L_FLAG}", f"v_mov_b32 v{T0+1}, s28"])
    for k in range(16): at.append(([("wait", "dp")] if k == 0 else []) + [f"v_add_f32 v{DK+k}, v{DK+k}, v{DP+k}"])
    at.append(mask("0xaaaaaaaa") + [f"v_cndmask_b32 v{DP}, v{DK+12}, v{DK+13}, s[28:29]", f"v_cndmask_b32 v{DP+1}, v{DK+14}, v{DK+15}, s[28:29]"])
    k_ = lambda r: DK + r
    def half(base, kk, va, off, odd):
        prs = [(8, 7), (6, 5), (4, 3), (2, 1)] if odd else [(7, 6), (5, 4), (3, 2), (1, 0)]
        return [f"v_cvt_pk_bf16_f32 v{base+i}, v{kk[lo]}, v{kk[hi]}" for i, (lo, hi) in enumerate(prs)] + \
               [f"ds_write_b128 v{va}, v[{base}:{base+3}] offset:{off + (OFF_O - OFF_E if odd else 0)}"]
    ev = [([k_(i) for i in range(9)], VEA, 1024), ([k_(9)] * 3 + [k_(10)] * 3 + [k_(11)] * 3, VEA, 0)]
    od = [([k_(12)] * 4 + [DP] + [k_(13)] * 4, VEB, 512), ([k_(14)] * 4 + [DP + 1] + [k_(15)] * 4, VEB, 0)]
    n = 0
    for gi in range(2):
        for o_ in range(2):
            b_ = EX + 4 * n
            at.append(["s_bitcmp1_b32 s39, 0", f"s_cbranch_scc1 L_xo{tag}{n}"] + half(b_, *ev[gi], o_)[:-1] + [("nods", half(b_, *ev[gi], o_)[-1]), f"s_branch L_xd{tag}{n}",
                       f"L_xo{tag}{n}:"] + half(b_, *od[gi], o_) + [f"L_xd{tag}{n}:"])
            n += 1
    at.append(["s_bitcmp0_b32 s39, 0", "s_cselect_b64 s[28:29], -1, 0", "s_mov_b64 exec, s[28:29]",
               f"ds_write_b64 v{T0}, v[{T0+2}:{T0+3}]", "s_and_b64 exec, s[28:29], 15",
               f"ds_write_b64 v{T0}, v[{T0+2}:{T0+3}] offset:{OFF_E+4096}", f"ds_write_b64 v{T0}, v[{T0+2}:{T0+3}] offset:{OFF_O+4096}",
               "s_and_b64 exec, s[28:29], 1", f"ds_write_b16_d16_hi v{T0}, v{EX+3} offset:{OFF_O+4096}",
               "s_mov_b64 exec, -1"])
    at.append([f"v_mov_b32 v{T0+2}, 1", f"ds_write_b32 v{T0+1}, v{T0+2} offset:64"])
    return at

def flag_zero():
    return [[f"v_lshlrev_b32 v{VT1}, 2, v0", f"v_mov_b32 v{VT1+1}, 0", f"v_add_u32 v{VT1}, {L_FLAG}, v{VT1}", f"ds_write_b32 v{VT1}, v{VT1+1}"]]

class LQ:
    def __init__(self, A): self.A = A; self.q = []
    def emit(self, items, tag=None):
        maybe0 = any(isinstance(it, str) and "s_cselect_b64" in it for it in items)
        for it in items:
            if maybe0 and isinstance(it, str):
                self.A(it); continue
            if isinstance(it, tuple):
                if it[0] == "tag": self.q[-1] = it[1]
                elif it[0] == "wait": self.wait(it[1])
                elif it[0] == "nods": self.A(it[1])
                continue
            self.A(it)
            if it.strip().startswith("ds_"): self.q.append(tag)
            if "lgkmcnt(0)" in it: self.q = []
    def wait(self, tag):
        idx = max((k for k, t in enumerate(self.q) if t == tag), default=-1)
        if idx < 0: return
        n = min(len(self.q) - 1 - idx, 15)
        self.A(f"s_waitcnt lgkmcnt({n})")
        self.q = self.q[len(self.q) - n:] if n else []

def spread(atoms, g0, g1):
    pts = [(g, p) for g in range(g0, g1) for p in range(2)]
    tot = sum(len(a_) for a_ in atoms); out = {p: [] for p in pts}; acc = 0
    for a_ in atoms:
        out[pts[min(len(pts) - 1, acc * len(pts) // tot)]].append(a_); acc += len(a_)
    return out

VXO, VWO, VXO2 = 1, 2, 3
VXO3, VXO4 = 242, 243
VXR, VTR = 4, 8
VONE, VHO1, VB1 = 16, 18, 19
VCW, VCR, VSO = 20, 21, 22
VT1 = 28
NR = 3
W1, X1, ACC1, CS = 32, 56, 80, 144
HI = 152
GT, PK, SG = 164, 180, 188
EA, EB = 192, 196
VS, K1r, K3r = 212, 214, 216

def wave_flag(soff, vt):
    return [f"v_mov_b32 v{vt}, 0", f"v_mov_b32 v{vt+1}, s76", "s_mov_b64 exec, 1",
            f"buffer_store_dword v{vt+1}, v{vt}, s[12:15], {soff} offen {SC}", "s_mov_b64 exec, -1"]

def lds_wait(A, name, vaddr, off, vt):
    A(f"""
    {name}:
    ds_read_b32 v{vt}, v{vaddr} offset:{off}
    s_waitcnt lgkmcnt(0)
    v_readfirstlane_b32 s28, v{vt}
    s_cmp_eq_u32 s28, 1
    s_cbranch_scc0 {name}
    """)

def dma_setup(A):
    VT = VT1
    A(f"""
    v_lshrrev_b32 v{VT}, 3, v0
    v_and_b32 v{VT+1}, 7, v0
    v_lshrrev_b32 v{VT+2}, 4, v0
    v_xor_b32 v{VT+3}, v{VT+2}, v{VT+1}
    v_lshlrev_b32 v{VXO}, 10, v{VT}
    v_lshl_add_u32 v{VXO}, v{VT+3}, 4, v{VXO}
    v_xor_b32 v{VXO2}, 64, v{VXO}
    v_add_u32 v{VXO2}, 8192, v{VXO2}
    v_and_b32 v{VT+3}, 15, v0
    v_lshlrev_b32 v{VT}, 2, v{VT+2}
    v_xor_b32 v{VT+3}, v{VT+3}, v{VT}
    v_mul_u32_u24 v{VWO}, 3584, v{VT+2}
    v_lshl_add_u32 v{VWO}, v{VT+3}, 4, v{VWO}
    s_lshl_b32 s25, s21, 17
    s_lshl_b32 s28, s39, 15
    s_add_u32 s25, s25, s28
    s_mul_i32 s26, s39, {16*3584}
    s_lshl_b32 s28, s22, 8
    s_add_u32 s26, s26, s28
    s_lshl_b32 s27, s39, 12
    """)
    if KR:
        A(f"""
        v_add_u32 v{VXO3}, 16384, v{VXO}
        v_add_u32 v{VXO4}, 16384, v{VXO2}
        s_and_b32 s3, s24, 3
        s_mul_i32 s3, s3, {env("KRB", 3)}
        s_mul_i32 s28, s77, {env("KRN", 1)}
        s_add_u32 s3, s3, s28
        s_lshl_b32 s3, s3, 7
        """)
    if MIX:
        A(f"""
        v_and_b32 v{VT+3}, 8, v{VT+3}
        v_lshl_add_u32 v{VWO}, v{VT+3}, 4, v{VWO}
        s_and_b32 s28, s22, 1
        s_lshl_b32 s28, s28, 7
        s_sub_u32 s26, s26, s28
        """)

KORD = [int(x) for x in os.environ.get("KORD", "0,1,2,3,4,5,6,7").split(",")]
def g1_dma(kc, part):
    st = (kc % NS) * STAGE
    kc = KORD[kc]
    if KR:
        return [f"s_add_u32 s37, s3, {128*kc}", "s_and_b32 s37, s37, 0x380", f"s_add_u32 m0, s27, {st + part*1024}",
                "s_add_u32 s31, s25, s37",
                f"buffer_load_dwordx4 v{[VXO, VXO2, 13, 14][part] if False else (VXO if part % 2 == 0 else VXO2)}, s[4:7], s31 offen lds" if part < 2 else
                f"buffer_load_dwordx4 v{VXO3 if part % 2 == 0 else VXO4}, s[4:7], s31 offen lds",
                f"s_mul_i32 s37, s37, 1792", f"s_add_u32 m0, s27, {st + 16384 + part*1024}", "s_add_u32 s37, s37, s26", f"s_add_u32 s37, s37, {4*part*3584}",
                f"buffer_load_dwordx4 v{VWO}, s[8:11], s37 offen lds"]
    return [f"s_add_u32 m0, s27, {st + part*1024}", f"s_add_u32 s31, s25, {128*kc + (part//2)*16384}",
            f"buffer_load_dwordx4 v{VXO if part % 2 == 0 else VXO2}, s[4:7], s31 offen lds",
            f"s_add_u32 m0, s27, {st + 16384 + part*1024}", f"s_add_u32 s37, s26, {(64*kc + 4*part)*3584}",
            f"buffer_load_dwordx4 v{VWO}, s[8:11], s37 offen lds"]

def c_setup(A):
    VT = VT1
    A(f"""
    v_and_b32 v{VT}, 31, v0
    v_lshrrev_b32 v{VT+1}, 5, v0
    v_bfe_u32 v{VT+2}, v0, 1, 3
    v_xor_b32 v{VT+2}, v{VT+2}, v{VT+1}
    s_lshl_b32 s31, s34, 1
    v_xor_b32 v{VT+2}, s31, v{VT+2}
    v_lshlrev_b32 v{VXR}, 7, v{VT}
    v_lshl_add_u32 v{VXR}, v{VT+2}, 4, v{VXR}
    s_lshl_b32 s28, s34, 13
    v_add_u32 v{VXR}, s28, v{VXR}
    v_xor_b32 v{VXR+1}, 32, v{VXR}
    v_xor_b32 v{VXR+2}, 64, v{VXR}
    v_xor_b32 v{VXR+3}, 96, v{VXR}
    v_lshlrev_b32 v{VSO}, 3, v0
    v_bfe_u32 v{VT+2}, v0, 2, 2
    v_lshl_add_u32 v{VTR}, v{VT+1}, 3, v{VT+2}
    v_lshlrev_b32 v{VTR}, 8, v{VTR}
    v_bfe_u32 v{VT+3}, v0, 4, 1
    v_lshl_add_u32 v{VTR}, v{VT+3}, 5, v{VTR}
    v_and_b32 v{VT+3}, 3, v0
    v_lshl_add_u32 v{VTR}, v{VT+3}, 3, v{VTR}
    s_lshl_b32 s31, s35, 1
    v_xor_b32 v{VT+2}, s31, v{VT+2}
    v_lshl_add_u32 v{VTR}, v{VT+2}, 6, v{VTR}
    s_lshl_b32 s31, s34, 12
    s_add_u32 s31, s31, 16384
    v_add_u32 v{VTR}, s31, v{VTR}
    """)
    for i in range(4):
        for ft in range(2):
            if i == 0 and ft == 0: continue
            A(f"v_xor_b32 v{VTR+2*i+ft}, {i*4096 + ft*64}, v{VTR}")
    A(f"""
    v_mov_b32 v{VONE}, 0x3f803f80
    v_mov_b32 v{VONE+1}, 0x3f803f80
    v_lshlrev_b32 v{VHO1}, 4, v0
    s_lshl_b32 s33, s21, 1
    s_add_u32 s33, s33, s34
    s_lshl_b32 s36, s33, 9
    s_add_u32 s36, s36, {WS_STAT}
    s_mul_i32 s32, s33, {2*112*1024}
    s_lshl_b32 s28, s22, 1
    s_add_u32 s28, s28, s35
    """)
    if MIX:
        A("""
        s_add_u32 s28, s28, s35
        s_and_b32 s29, s22, 1
        s_sub_u32 s28, s28, s29
        """)
    A(f"""
    s_lshl_b32 s29, s28, 12
    s_add_u32 s32, s32, s29
    s_add_u32 s32, s32, {WS_HF}
    s_add_u32 s38, s32, {112*1024}
    """)
    if HP:
        A(f"""
        s_mul_i32 s29, s28, 37
        s_lshr_b32 s29, s29, 8
        s_lshl_b32 s33, s33, 2
        s_add_u32 s33, s33, s29
        s_lshl_b32 s33, s33, 7
        s_mul_i32 s29, s29, 7
        s_sub_u32 s29, s28, s29
        s_lshl_b32 s29, s29, 2
        s_add_u32 s33, s33, s29
        s_add_u32 s33, s33, {WS_FLH}
        """)
    else:
        A(f"""
        s_lshl_b32 s33, s33, 5
        s_add_u32 s33, s33, s28
        s_lshl_b32 s33, s33, 7
        s_add_u32 s33, s33, {WS_FLH}
        """)
    A(f"""
    s_lshl_b32 s29, s20, 8
    v_lshl_add_u32 v{VCW}, v0, 2, s29
    v_add_u32 v{VCW}, {L_CS}, v{VCW}
    v_xor_b32 v{VCR}, 256, v{VCW}
    """)
    srd(A, 16, "s46", "s47", 3584)
    A(f"""
    v_mov_b32 v{VB1}, 0
    v_lshlrev_b32 v{VT1}, 1, v0
    s_lshl_b32 s28, s28, 7
    buffer_load_short_d16_hi v{VB1}, v{VT1}, s[16:19], s28 offen
    """)
    for k in range(20): A(f"v_mov_b32 v{EA+k}, 0")
    for k in range(12): A(f"v_add_u32 v{HI+k}, 0x10000, v{VXR+k}")

def c_reads(g):
    kc, i = divmod(g, 4)
    st = kc % NS
    b = (VXR if st < 2 else HI); off = (st % 2) * STAGE
    sl = g % NR
    tr = lambda ft, sec: f"ds_read_b64_tr_b16 v[{W1+8*sl+4*ft+2*sec}:{W1+8*sl+4*ft+2*sec+1}], v{b+4+2*i+ft} offset:{off + sec*1024}"
    xr = lambda tt: f"ds_read_b128 v[{X1+8*sl+4*tt}:{X1+8*sl+4*tt+3}], v{b+i} offset:{off + tt*4096}"
    return [xr(0), tr(0, 0), tr(0, 1), tr(1, 0), tr(1, 1), xr(1)]

def gen_c1(A):
    VT = VT1
    dma_setup(A)
    A(f"""
    s_and_b32 s34, s20, 1
    s_lshr_b32 s35, s20, 1
    s_waitcnt lgkmcnt(0)
    s_add_u32 s42, s42, {WSOFF}
    s_addc_u32 s43, s43, 0
    s_load_dword s76, s[42:43], {WS_EPOCH}
    """)
    vm = VMQ()
    A.st("ka")
    srd(A, 4, "s40", "s41", 2 << 20)
    srd(A, 8, "s44", "s45", 512 * 3584)
    srd(A, 12, "s42", "s43", WS_USED)
    CSF = env("CSF", 0)
    if CSF: c_setup(A); vm.note("b1")
    if env("PFAT", 1) == -1 and OPT_PF: coop_prefetch(A, VT); vm.note("pf", 2)
    for kc in range(NC0):
        for part in range(4): A.extend(g1_dma(kc, part))
        vm.note(kc, 8)
        A.st(f"i{kc}")
        if kc == env("BP", 1): A("s_barrier")
        if kc == 0 and not CSF:
            c_setup(A); vm.note("b1")
        if kc == env("PFAT", 2) and OPT_PF == 1: coop_prefetch(A, VT); vm.note("pf", 2)
        if kc == env("PFAT", 2) and OPT_PF == 2: coop_prefetch2(A, VT); vm.note("pf", 3)
    TW = env("TW", 4)
    if TW:
        A(f"v_lshlrev_b32 v{VT+2}, 20, v0")
        if TW & 1: A("s_mov_b64 exec, 3"); A(f"global_load_dword v{VDUM}, v{VT+2}, s[52:53]"); vm.note("tw")
        if TW & 2: A("s_mov_b64 exec, 1"); A(f"buffer_load_dword v{VDUM}, v{VT+2}, s[12:15], s38 offen"); vm.note("tw")
        if TW & 4: A("s_mov_b64 exec, 1"); A(f"global_load_dword v{VDUM}, v{VT+2}, s[50:51]"); vm.note("tw")
        A("s_mov_b64 exec, -1")
    A.extend(ya_prefill(VT, VT + 1, PK)); vm.note("pre", 2)
    hpre = [f"buffer_store_dwordx4 v[{PK}:{PK+3}], v{VHO1}, s[12:15], s{32 if n < 4 else 38} offen offset:{(n%4)*1024} {SC}" for n in range(8)]
    HPRE = env("HPRE", 0)
    if HPRE == 1: A.extend(hpre); vm.note(2, 8)
    w2_setup(A, VT)
    mpf = [f"s_xor_b32 s28, s2, {env('MPX', 0)}", "s_lshl_b32 s28, s28, 2", "s_add_u32 s28, s28, s39", "s_lshl_b32 s28, s28, 11", f"v_lshlrev_b32 v{VT+2}, 7, v0", f"s_mov_b64 exec, {os.environ.get('MPM', '0xffff')}",
           f"buffer_load_dword v{VDUM}, v{VT+2}, s[16:19], s28 offen {os.environ.get('MPFL', '')}", "s_mov_b64 exec, -1"]
    MPG = env("MPG", 5)
    if MPG == -1: A.extend(mpf); vm.note("mpf")
    A.st("pre")
    A(vm.wait(0)[0] + " lgkmcnt(0)"); A.st("kg"); A("s_barrier")
    A.st("b0")
    T = GT
    lq = LQ(A)
    lq.emit(c_reads(0), 0); lq.emit(c_reads(1), 1)
    mktag(A)
    def big(g, tt, ft):
        sl = g % NR; c = ACC1 + 32 * tt + 16 * ft
        cin = "0" if g == 0 else f"v[{c}:{c+15}]"
        return f"v_mfma_f32_32x32x16_bf16 v[{c}:{c+15}], v[{W1+8*sl+4*ft}:{W1+8*sl+4*ft+3}], v[{X1+8*sl+4*tt}:{X1+8*sl+4*tt+3}], {cin}"
    for g in range(32):
        kc, i = divmod(g, 4); w = W1 + 8 * (g % NR)
        m = lambda d, b_, z: f"v_mfma_f32_4x4x4_16b_bf16 v[{d}:{d+3}], v[{VONE}:{VONE+1}], v[{b_}:{b_+1}], " + ("0" if z else f"v[{d}:{d+3}]")
        o1, o2 = [], []
        if i < 2 and False: pass
        if i in (0, 2) and g < 28 or g in (28, 29):
            o1 = [m(CS, w, g == 0), m(CS + 4, w + 4, g == 0)]; o2 = [m(CS, w + 2, False), m(CS + 4, w + 6, False)]
        A.st(f"g{g}")
        gn = g + 2
        rd = c_reads(PERM(gn))[:] if gn < 32 else []
        rd = c_reads_slot(gn) if gn < 32 else []
        x1, x2 = [], []
        if i == 2 and kc + 1 < 8: x1 += vm.wait(kc + 1) + ["s_barrier"]
        if g == 30:
            x1 += [f"v_permlane32_swap_b32 v{CS}, v{CS+4}", f"v_add_f32 v{CS}, v{CS}, v{CS+4}", f"ds_write_b32 v{VCW}, v{CS}",
                   "s_waitcnt lgkmcnt(0)", "s_barrier", f"ds_read_b32 v{T+2}, v{VCR}"][:None if not NB8 else 3]
            if NB8:
                x1 += ["s_lshl_b32 s28, s20, 2", f"s_add_u32 s28, s28, {L_FLAG+128}", f"v_mov_b32 v{T}, s28", f"v_mov_b32 v{T+1}, 1",
                       f"ds_write_b32 v{T}, v{T+1}", f"v_xor_b32 v{T}, 4, v{T}"]
        if g == STATG: x2 += [f"buffer_load_dwordx2 v[{SG}:{SG+1}], v{VSO}, s[12:15], s36 offen {SC}"]; vm.note("sg")
        if EPE and g == 23: x2 += ep_early(VT)[:9]
        if EPE and g == 24: x2 += ep_early(VT)[9:]; vm.note("ep", 2)
        if g == MPG: x2 += mpf; vm.note("mpf")
        if g == env("MPG2", -5): x2 += ["s_xor_b32 s28, s2, 3"] + mpf[1:]; vm.note("mpf")
        WM = env("WARM", 0)
        if WM and g == env("WARMG", 10):
            x2 += [f"v_lshlrev_b32 v{VT+2}, 20, v0", f"v_lshlrev_b32 v{VT+3}, 7, v0"]
            if WM & 1: x2 += ["s_mov_b64 exec, 0x3fff", f"buffer_load_dword v{VDUM}, v{VT+2}, s[12:15], 0 offen"]; vm.note("wm")
            if WM & 2: x2 += ["s_mov_b64 exec, 3", f"global_load_dword v{VDUM}, v{VT+2}, s[52:53]"]; vm.note("wm")
            if WM & 4: x2 += ["s_mov_b64 exec, 0xff", f"global_load_dword v{VDUM}, v{VT+3}, s[50:51]"]; vm.note("wm")
            x2 += ["s_mov_b64 exec, -1"]
        if HPRE >= 10 and HPRE <= g < HPRE + 8: x2 += [hpre[g - HPRE]]; vm.note("hp")
        if HPRE == 2 and g == 11:
            x2 += [f"v_and_b32 v{VT+2}, 31, v0", f"v_lshlrev_b32 v{VT+2}, 7, v{VT+2}", "s_mov_b64 exec, 0xffffffff", "s_mov_b32 exec_hi, 0",
                   f"buffer_load_dword v{VDUM}, v{VT+2}, s[12:15], s32 offen", f"buffer_load_dword v{VDUM}, v{VT+2}, s[12:15], s38 offen", "s_mov_b64 exec, -1"]; vm.note("hp", 2)
        if g in PFG:
            n_ = 128 // len(PFG); k_ = PFG.index(g)
            x2 += ["s_lshl_b32 s28, s24, 2", "s_add_u32 s28, s28, s39", "s_lshl_b32 s28, s28, 14", f"s_add_u32 s28, s28, {k_*n_*128}", f"v_lshlrev_b32 v{VT+2}, 7, v0"]
            if n_ < 64: x2 += [f"s_mov_b32 exec_lo, {hex((1 << n_) - 1)}", "s_mov_b32 exec_hi, 0"]
            x2 += [f"buffer_load_dword v{VDUM}, v{VT+2}, s[16:19], s28 offen", "s_mov_b64 exec, -1"]; vm.note("l2")
        if g == env("YFG", 16) - 1: x2 += yflag_off()
        if g == env("YFG", 16): x2 += ["s_waitcnt vmcnt(0)"] + wave_flag("s28", VT); vm.q.clear(); vm.note("yf")
        lq.wait(g)
        A(big(g, 0, 0))
        if i == 2: A.st(f"pb{kc+1}")
        lq.emit(x1)
        if i == 2: A.st(f"ab{kc+1}")
        lq.emit(rd[:2], gn)
        A(big(g, 0, 1)); lq.emit(rd[2:4], gn); A.extend(o1)
        A(big(g, 1, 0)); lq.emit(rd[4:], gn)
        A(big(g, 1, 1)); lq.emit(x2); A.extend(o2)
    A.st("loop")
    if NB8:
        lds_wait(A, "L_c_cs", T, 0, T + 1)
        A(f"ds_read_b32 v{T+2}, v{VCR}")
    A.extend(vm.wait("sg", "b1"))
    A(f"""
    v_cmp_ne_u32 vcc, s76, v{SG+1}
    s_cbranch_vccz L_g1_sok
    s_mov_b32 s30, 0
    L_g1_spoll:
    buffer_load_dwordx2 v[{SG}:{SG+1}], v{VSO}, s[12:15], s36 offen {SC}
    s_add_u32 s30, s30, 1
    s_waitcnt vmcnt(0)
    v_cmp_ne_u32 vcc, s76, v{SG+1}
    s_cmp_gt_u32 s30, {SPIN}
    s_cbranch_scc1 L_g1_sok
    s_cbranch_vccnz L_g1_spoll
    L_g1_sok:
    v_mov_b32 v{SG+1}, v{SG}
    s_mov_b32 s28, -1
    s_mov_b32 s29, 0
    v_permlane32_swap_b32 v{SG}, v{SG+1}
    s_waitcnt lgkmcnt(0)
    v_add_f32 v{T+2}, v{T+2}, v{CS}
    """)
    l1 = []
    for tt in range(2):
        l1 += [f"v_and_b32 v{VS+tt}, 0xffff0000, v{SG+tt}", f"v_and_b32 v{T+8+tt}, 0xffff, v{SG+tt}", f"v_rcp_f32 v{T+6+tt}, v{VS+tt}",
               f"v_lshl_or_b32 v{T+8+tt}, v{T+8+tt}, 16, v{T+8+tt}",
               f"v_cndmask_b32 v{EB+8*tt}, 0, v{T+8+tt}, s[28:29]", f"v_cndmask_b32 v{EB+8*tt+1}, 0, v{SG+tt}, s[28:29]",
               f"v_cndmask_b32 v{EB+8*tt+4}, v{T+8+tt}, 0, s[28:29]", f"v_cndmask_b32 v{EB+8*tt+5}, v{SG+tt}, 0, s[28:29]"]
    l2 = [f"v_and_b32 v{T+3}, 0xffff0000, v{T+2}", f"v_sub_f32 v{T+3}, v{T+2}, v{T+3}", f"v_lshrrev_b32 v{T+2}, 16, v{T+2}",
          f"v_and_b32 v{T+4}, 0xffff0000, v{T+3}", f"v_sub_f32 v{T+5}, v{T+3}, v{T+4}", f"v_or_b32 v{EA}, v{T+2}, v{T+4}",
          f"v_lshrrev_b32 v{T+5}, 16, v{T+5}", f"v_or_b32 v{EA+1}, v{T+5}, v{VB1}"]
    A.extend(zipm(l1, l2))
    l3 = []
    for tt in range(2):
        l3.append([f"v_fma_f32 v{T+10+tt}, -v{VS+tt}, v{T+6+tt}, 1.0", f"v_fma_f32 v{T+6+tt}, v{T+10+tt}, v{T+6+tt}, v{T+6+tt}",
                   f"v_mul_f32 v{K1r+tt}, {hex(f2u(GC1))}, v{T+6+tt}", f"v_mul_f32 v{T+10+tt}, v{T+6+tt}, v{T+6+tt}",
                   f"v_mul_f32 v{K3r+tt}, {hex(f2u(GC2))}, v{T+6+tt}", f"v_mul_f32 v{K3r+tt}, v{K3r+tt}, v{T+10+tt}"])
    l3 = zipm(*l3)
    for tt in range(2):
        for ft in range(2):
            c = ACC1 + 32 * tt + 16 * ft
            A(f"v_mfma_f32_32x32x16_bf16 v[{c}:{c+15}], v[{EA}:{EA+3}], v[{EB+8*tt+4*ft}:{EB+8*tt+4*ft+3}], v[{c}:{c+15}]")
            A.extend(l3[3 * (2 * tt + ft):3 * (2 * tt + ft) + 3])
    A.st("gstart")
    for n in range(8):
        tt = n // 4
        if n == env("PGN", 99): A("s_setprio 2")
        c0 = ACC1 + 8 * n
        t0 = GT + 8 * (n % 2)
        if GPK == 1 and n == NPK0:
            A(f"""
            v_mov_b32 v{VT}, {L_FLAG+80}
            L_c_km:
            ds_read_b128 v[{EA}:{EA+3}], v{VT}
            s_waitcnt lgkmcnt(0)
            v_and_b32 v{EA}, v{EA}, v{EA+1}
            v_and_b32 v{EA+2}, v{EA+2}, v{EA+3}
            v_and_b32 v{EA}, v{EA}, v{EA+2}
            s_nop 0
            v_readfirstlane_b32 s28, v{EA}
            s_cmp_eq_u32 s28, 1
            s_cbranch_scc0 L_c_km
            """)
        if GPK == 2 or (GPK and n >= NPK0):
            P = lambda x: f"v[{x}:{x+1}]"
            sel = f"op_sel:[0,{tt},{tt}] op_sel_hi:[1,{tt},{tt}]"
            for k in range(0, 8, 2): A(f"v_pk_mul_f32 {P(t0+k)}, {P(c0+k)}, {P(c0+k)}")
            for k in range(0, 8, 2): A(f"v_pk_fma_f32 {P(t0+k)}, {P(t0+k)}, {P(K3r)}, {P(K1r)} {sel}")
            for k in range(0, 8, 2): A(f"v_pk_mul_f32 {P(t0+k)}, {P(t0+k)}, {P(c0+k)}")
            for k in range(8): A(f"v_exp_f32 v{t0+k}, v{t0+k}")
            for k in range(0, 8, 2): A(f"v_pk_fma_f32 {P(t0+k)}, {P(t0+k)}, {P(VS)}, {P(VS)} {sel}")
            for k in range(8): A(f"v_rcp_f32 v{t0+k}, v{t0+k}")
            for k in range(0, 8, 2): A(f"v_pk_mul_f32 {P(c0+k)}, {P(c0+k)}, {P(t0+k)}")
        else:
            for k in range(8): A(f"v_mul_f32 v{t0+k}, v{c0+k}, v{c0+k}")
            for k in range(8): A(f"v_fma_f32 v{t0+k}, v{t0+k}, v{K3r+tt}, v{K1r+tt}")
            for k in range(8): A(f"v_mul_f32 v{t0+k}, v{t0+k}, v{c0+k}")
            for k in range(8): A(f"v_exp_f32 v{t0+k}, v{t0+k}")
            for k in range(8): A(f"v_fma_f32 v{t0+k}, v{t0+k}, v{VS+tt}, v{VS+tt}")
            for k in range(8): A(f"v_rcp_f32 v{t0+k}, v{t0+k}")
            for k in range(8): A(f"v_mul_f32 v{c0+k}, v{c0+k}, v{t0+k}")
        pk = PK + 4 * (n % 2)
        for k in range(4): A(f"v_cvt_pk_bf16_f32 v{pk+k}, v{c0+2*k}, v{c0+2*k+1}")
        A(f"buffer_store_dwordx4 v[{pk}:{pk+3}], v{VHO1}, s[12:15], s{32 if tt == 0 else 38} offen offset:{(n%4)*1024} {SCH}")
        if env("DBL", 0): A(f"buffer_store_dwordx4 v[{pk}:{pk+3}], v{VHO1}, s[12:15], s{32 if tt == 0 else 38} offen offset:{(n%4)*1024}")
    A.st("gend")
    A("s_mov_b32 s37, 0")
    A("s_branch L_gemm2")

def PERM(g): return g
def c_reads_slot(g):
    if g < 28: return c_reads(g)
    i = [0, 2, 1, 3][g - 28]
    r = c_reads(28 + i)
    kc = 7; st = kc % NS; b = HI; off = (st % 2) * STAGE; sl = g % NR
    tr = lambda ft, sec: f"ds_read_b64_tr_b16 v[{W1+8*sl+4*ft+2*sec}:{W1+8*sl+4*ft+2*sec+1}], v{b+4+2*i+ft} offset:{off + sec*1024}"
    xr = lambda tt: f"ds_read_b128 v[{X1+8*sl+4*tt}:{X1+8*sl+4*tt+3}], v{b+i} offset:{off + tt*4096}"
    return [xr(0), tr(0, 0), tr(0, 1), tr(1, 0), tr(1, 1), xr(1)]

def yflag_off():
    return ["s_lshr_b32 s28, s39, 1", "s_lshl_b32 s29, s2, 1", "s_add_u32 s28, s28, s29", "s_and_b32 s29, s39, 1", "s_lshl_b32 s29, s29, 9",
            "s_add_u32 s28, s28, s29", f"s_lshl_b32 s28, s28, {FS}", f"s_add_u32 s28, s28, {WS_FLY}"]
def ring_ready(vt):
    return ["s_lshl_b32 s28, s39, 2", f"s_add_u32 s28, s28, {L_FLAG+16}", f"v_mov_b32 v{vt}, s28", f"v_mov_b32 v{vt+1}, 1", f"ds_write_b32 v{vt}, v{vt+1}"]

def gen_h1(A):
    VT = VT1
    vm = VMQ()
    vm.note("prm", 8)
    A(f"s_add_u32 s42, s42, {WSOFF}\ns_addc_u32 s43, s43, 0\ns_load_dword s76, s[42:43], {WS_EPOCH}")
    srd(A, 4, "s40", "s41", 2 << 20)
    srd(A, 8, "s44", "s45", 512 * 3584)
    srd(A, 12, "s42", "s43", WS_USED)
    if env("CPF", 1): vm.note("cpf")
    dma_setup(A)
    w2_setup(A, VT)
    if env("MPF", 0):
        A(f"""
        s_lshl_b32 s28, s2, 2
        s_add_u32 s28, s28, s39
        s_lshl_b32 s28, s28, 11
        v_lshlrev_b32 v{VT+2}, 7, v0
        s_mov_b64 exec, 0xffff
        buffer_load_dword v{VDUM}, v{VT+2}, s[16:19], s28 offen
        s_mov_b64 exec, -1
        """)
    if env("TLBW", 0):
        A(f"""
        v_lshlrev_b32 v{VT+2}, {env("TLBS", 20)}, v0
        s_mov_b64 exec, {hex((1 << (WS_USED >> env("TLBS", 20))) - 1)}
        buffer_load_dword v{VDUM}, v{VT+2}, s[12:15], 0 offen
        s_mov_b64 exec, 3
        buffer_load_dword v{VDUM}, v{VT+2}, s[16:19], 0 offen
        global_load_dword v{VDUM}, v{VT+2}, s[52:53]
        s_mov_b64 exec, 1
        global_load_dword v{VDUM}, v{VT+2}, s[50:51]
        s_mov_b64 exec, -1
        """)
        vm.note("tlb", 4)
    kg_waddr(A, L_VS, KWA); A.extend(kg_raddr(L_VS, KRA, VT))
    for a_ in flag_zero(): A.extend(a_)
    if env("BP", 1) >= 0: A("s_barrier")
    A.st("pre")
    A.extend(vm.wait("prm"))
    A.st("prm")
    A.label("L_kgen_v")
    gen_kgen_v(A)
    A("s_cmp_eq_u32 s77, 7")
    A("s_cbranch_scc1 L_ln_H2")
    A.st("kg")
    A("s_waitcnt lgkmcnt(0)"); A("s_barrier")
    A.st("b0")
    mktag(A)
    UV, UW = kgen_u_lists(0)
    wts = [2, 3, 3, 3, 3, 3]; cum = 0
    for k in range(7 if NB8 else 8):
        if NB8 and k == 6:
            if EPE: A.extend(ep_early(VT)); vm.note("ep", 2)
            for sl in range(env("F6N", 2)): A.extend(wdma(sl, sl))
            vm.note("f", 2 * env("F6N", 2))
        elif k <= 5:
            sl_ = UV[len(UV) * cum // sum(wts):len(UV) * (cum + wts[k]) // sum(wts)]; cum += wts[k]
            if k >= 1 or NC0 == 2:
                pcs = []
                for part in range(4):
                    dd = g1_dma(k + 2, part); pcs += [dd[:len(dd)//2], dd[len(dd)//2:]]
                vm.note(k + 2, 8)
                for q, dd in enumerate(pcs):
                    A.extend(dd); A.extend(sl_[len(sl_) * q // 8:len(sl_) * (q + 1) // 8])
            else: A.extend(sl_)
        else:
            for sl in range(4 * (k - 6), 4 * (k - 6) + 4): A.extend(wdma(sl, sl))
            vm.note("f", 8)
        A.st(f"pi{k+1}")
        A.extend(vm.wait(k + 1))
        A("s_barrier")
        A.st(f"ab{k+1}")
    if NB8:
        for sl in range(env("F6N", 2), 8): A.extend(wdma(sl, sl))
        A(f"""
        v_mov_b32 v{VT+2}, {L_FLAG+128}
        L_h_rd:
        ds_read_b128 v[32:35], v{VT+2}
        s_waitcnt lgkmcnt(0)
        v_and_b32 v32, v32, v33
        v_and_b32 v34, v34, v35
        v_and_b32 v32, v32, v34
        s_nop 0
        v_readfirstlane_b32 s28, v32
        s_cmp_eq_u32 s28, 1
        s_cbranch_scc0 L_h_rd
        """)
    A.st("loop")
    HT2 = env("HT2", 0)
    if not HT2:
        for sl in range(8, 12): A.extend(wdma(sl, sl))
    A.label("L_h_tail")
    A(f"s_setprio {env('PRIOX', 0)}")
    lq = LQ(A)
    ar_, mm_ = kg_atoms_m()
    UE = env("UE", 0)
    if UE: A.extend(lnflag_load(36))
    lq.emit(UW)
    for a_ in ar_: lq.emit(a_)
    if GPK == 2:
        A("s_setprio 0")
        A("s_cmp_eq_u32 s77, 7")
        A("s_cbranch_scc1 L_h_gd2")
        A(f"""
        v_mov_b32 v{VT+2}, {L_FLAG+32}
        L_h_gd:
        s_sleep 1
        ds_read_b128 v[32:35], v{VT+2}
        s_waitcnt lgkmcnt(0)
        v_and_b32 v32, v32, v33
        v_and_b32 v34, v34, v35
        v_and_b32 v32, v32, v34
        s_nop 0
        v_readfirstlane_b32 s28, v32
        s_cmp_eq_u32 s28, 1
        s_cbranch_scc0 L_h_gd
        L_h_gd2:
        """)
        A.extend(lnflag_load(36))
    for a_ in mm_ + kg_atoms_x1(): lq.emit(a_)
    A(f"""
    s_lshl_b32 s28, s39, 2
    s_add_u32 s28, s28, {L_FLAG}
    v_mov_b32 v{VT}, s28
    v_mov_b32 v{VT+1}, 1
    ds_write_b32 v{VT}, v{VT+1} offset:80
    v_xor_b32 v{VT+2}, 4, v{VT}
    """)
    HT3 = env('HT3', 1)
    if UE:
        A(f"v_lshlrev_b32 v18, 4, v0")
        A("s_waitcnt vmcnt(0)")
        A(f"""
        v_cmp_ne_u32 vcc, s76, v{LNF}
        s_mov_b32 s37, 0
        s_cbranch_vccnz L_ue_no
        s_mov_b32 s37, 1
        """)
        u_issue(A, 18)
        A.label("L_ue_no")
    if HT2 or HT3: A.extend(lnflag_load(36))
    lds_wait(A, "L_h_x1", VT + 2, 80, 32)
    lq.q = []
    for a_ in kg_atoms_x2("g"): lq.emit(a_)
    A("s_setprio 0")
    DF = env("DF", 0)
    if DF:
        A("s_waitcnt vmcnt(0)")
        if DF == 1: A.extend(ring_ready(VT))
        A("s_cmp_eq_u32 s77, 7")
        A("s_cbranch_scc1 L_h_dr2")
        A(f"""
        v_mov_b32 v{VT+2}, {L_FLAG+32}
        L_h_dr:
        s_sleep 1
        ds_read_b128 v[32:35], v{VT+2}
        s_waitcnt lgkmcnt(0)
        v_and_b32 v32, v32, v33
        v_and_b32 v34, v34, v35
        v_and_b32 v32, v32, v34
        s_nop 0
        v_readfirstlane_b32 s28, v32
        s_cmp_eq_u32 s28, 1
        s_cbranch_scc0 L_h_dr
        L_h_dr2:
        """)
    if not HT2 and not HT3 and GPK != 2: A.extend(lnflag_load(VT))
    A.st("ku")
    A(f"v_lshlrev_b32 v18, 4, v0")
    A("s_waitcnt vmcnt(0)")
    if UE: A("s_cmp_eq_u32 s37, 1"); A("s_cbranch_scc1 L_ut_no")
    RT = env("RT", 6)
    if RT:
        A(f"""
        s_mov_b32 s30, 0
        v_cmp_ne_u32 vcc, s76, v{LNF}
        s_cbranch_vccz L_rt_ok
        L_rt:
        s_sleep {PS}
        buffer_load_dword v{LNF}, v36, s[12:15], 0 offen {SC}
        s_add_u32 s30, s30, 1
        s_waitcnt vmcnt(0)
        v_cmp_ne_u32 vcc, s76, v{LNF}
        s_cmp_ge_u32 s30, {RT}
        s_cbranch_scc1 L_rt_ok
        s_cbranch_vccnz L_rt
        L_rt_ok:
        """)
    u_try(A, 18)
    if HT2:
        A("s_cmp_eq_u32 s77, 7")
        A("s_cbranch_scc1 L_h_nof")
        for sl in range(8, 12): A.extend(wdma(sl, sl))
        A("s_branch L_h_f")
        A.label("L_h_nof")
        A.extend(ring_ready(VT))
        A("s_waitcnt vmcnt(0)")
        A.label("L_h_f")
    else:
        A.extend(ring_ready(VT))
    A.st("gend")
    A("s_branch L_conv")
    A.label("L_ln_H2")
    A("s_waitcnt vmcnt(0) ; RESETSB")
    A("ds_write_b32 v5, v6")
    if EPE: A("s_waitcnt lgkmcnt(0)"); A.extend(ep_early(28))
    A.extend(UV)
    A(f"""
    v_mov_b32 v30, {L_FLAG+112+(64 if env('LNW', 0) else 0)}
    L_ln_hv:
    ds_read_b128 v[32:35], v30
    s_waitcnt lgkmcnt(0)
    v_and_b32 v32, v32, v33
    v_and_b32 v34, v34, v35
    v_and_b32 v32, v32, v34
    s_nop 0
    v_readfirstlane_b32 s28, v32
    s_cmp_eq_u32 s28, 1
    s_cbranch_scc0 L_ln_hv
    """)
    A("s_branch L_h_tail")

def gen_gemm1(A):
    A(f"""
    s_load_dwordx8 s[56:63], s[0:1], {KA['A_re']}
    s_load_dwordx8 s[64:71], s[0:1], {KA['C_re']}
    """)
    A("s_cmp_lt_u32 s20, 4")
    A("s_cbranch_scc1 L_g1_C")
    param_loads(A, VT1)
    if env("CPF", 1):
        A(f"""
        s_getpc_b64 s[28:29]
        L_pc0:
        s_sub_u32 s28, s28, L_pc0-{KNAME}
        s_subb_u32 s29, s29, 0
        s_lshl_b32 s30, s24, 2
        s_add_u32 s30, s30, s39
        s_mul_i32 s30, s30, 384
        v_lshl_add_u32 v{VT1+2}, v0, 7, s30
        v_min_u32 v{VT1+2}, L_exit-{KNAME}, v{VT1+2}
        s_mov_b64 exec, 7
        global_load_dword v{VDUM}, v{VT1+2}, s[28:29]
        s_mov_b64 exec, -1
        """)
    A("s_branch L_g1_H")
    A.label("L_g1_C")
    A("s_nop 0 ; RESETSB")
    gen_c1(A)
    A.label("L_g1_H")
    A("s_nop 0 ; RESETSB")
    gen_h1(A)


def gen_ln(A):
    Q, R, O, T = 16, 48, 80, 112
    A(f"""
    s_load_dwordx8 s[56:63], s[0:1], {KA['A_re']}
    s_load_dwordx8 s[64:71], s[0:1], {KA['C_re']}
    v_lshrrev_b32 v1, 3, v0
    v_and_b32 v2, 7, v0
    v_lshlrev_b32 v3, 10, v1
    v_lshl_add_u32 v3, v2, 4, v3
    v_lshlrev_b32 v4, 4, v0
    s_lshl_b32 s25, s21, 6
    s_lshl_b32 s28, s20, 3
    s_add_u32 s25, s25, s28
    s_lshl_b32 s36, s25, 3
    s_add_u32 s36, s36, {WS_STAT}
    s_lshl_b32 s25, s25, 10
    s_add_u32 s26, s25, 4096
    s_waitcnt lgkmcnt(0)
    s_add_u32 s42, s42, {WSOFF}
    s_addc_u32 s43, s43, 0
    s_load_dword s76, s[42:43], {WS_EPOCH}
    """)
    srd(A, 4, "s40", "s41", 2 << 20)
    for t in range(8): A(f"buffer_load_dwordx4 v[{R+4*t}:{R+4*t+3}], v4, s[4:7], s{25 + t//4} offen offset:{(t%4)*1024}")
    srd(A, 12, "s42", "s43", WS_USED)
    NLW = 0
    if LW1:
        srd(A, 8, "s44", "s45", 512 * 3584)
        A(f"""
        s_and_b32 s28, s24, 3
        s_lshl_b32 s28, s28, 3
        s_add_u32 s28, s28, s20
        s_mul_i32 s28, s28, 47
        s_and_b32 s29, s23, 1
        s_mul_i32 s29, s29, 1792
        s_add_u32 s29, s29, {192*3584}
        """)
        for j in range(3):
            A(f"""
            s_add_u32 s30, s28, {j*1504}
            v_add_u32 v{T}, s30, v0
            v_mul_u32_u24 v{T+1}, 0x4925, v{T}
            v_lshrrev_b32 v{T+1}, 18, v{T+1}
            v_mul_u32_u24 v{T+2}, 14, v{T+1}
            v_sub_u32 v{T}, v{T}, v{T+2}
            v_lshlrev_b32 v{T}, 7, v{T}
            v_mul_u32_u24 v{T+1}, 3584, v{T+1}
            v_add_u32 v{T}, v{T}, v{T+1}
            s_mov_b32 exec_hi, 0x7fff
            buffer_load_dword v{VDUM}, v{T}, s[8:11], s29 offen
            s_mov_b32 exec_hi, -1
            """)
        NLW = 3
    A(f"""
    v_mov_b32 v5, 0x3f803f80
    v_mov_b32 v14, 0x00003f80
    v_mov_b32 v15, 0x3f800000
    v_lshlrev_b32 v8, 3, v1
    """)
    S1, S2 = Q, Q + 8
    A("s_setprio 2")
    for t in range(8):
        A(f"s_waitcnt vmcnt({7 - t + NLW})")
        for k in range(4):
            r = R + 4 * t + k
            A(f"v_dot2_f32_bf16 v{S1+t}, v{r}, v5, {'0' if k == 0 else f'v{S1+t}'}")
            A(f"v_dot2_f32_bf16 v{S2+t}, v{r}, v{r}, {'0' if k == 0 else f'v{S2+t}'}")
    for r in range(4):
        for S in (S1, S2): A(f"v_permlane32_swap_b32 v{S+r}, v{S+r+4}")
    for r in range(4):
        for S in (S1, S2): A(f"v_add_f32 v{S+r}, v{S+r}, v{S+r+4}")
    for r in range(2):
        for S in (S1, S2): A(f"v_permlane16_swap_b32 v{S+r}, v{S+r+2}")
    for r in range(2):
        for S in (S1, S2): A(f"v_add_f32 v{S+r}, v{S+r}, v{S+r+2}")
    for r in range(2):
        for S in (S1, S2): A(f"v_add_f32_dpp v{S+r}, v{S+r}, v{S+r} row_ror:8 row_mask:0xf bank_mask:0xf")
    A.extend(mask("0xff00ff00"))
    A(f"""
    v_cndmask_b32 v6, v{S1}, v{S1+1}, s[28:29]
    v_cndmask_b32 v7, v{S2}, v{S2+1}, s[28:29]
    s_waitcnt lgkmcnt(0)
    """)
    mktag(A)
    A(f"""
    v_mov_b32 v11, s76
    v_add_f32_dpp v6, v6, v6 quad_perm:[1,0,3,2] row_mask:0xf bank_mask:0xf
    v_add_f32_dpp v7, v7, v7 quad_perm:[1,0,3,2] row_mask:0xf bank_mask:0xf
    v_add_f32_dpp v6, v6, v6 quad_perm:[2,3,0,1] row_mask:0xf bank_mask:0xf
    v_add_f32_dpp v7, v7, v7 quad_perm:[2,3,0,1] row_mask:0xf bank_mask:0xf
    v_add_f32_dpp v6, v6, v6 row_half_mirror row_mask:0xf bank_mask:0xf
    v_add_f32_dpp v7, v7, v7 row_half_mirror row_mask:0xf bank_mask:0xf
    v_mul_f32 v12, {hex(f2u(1/512))}, v6
    v_mul_f32 v13, {hex(f2u(1/512))}, v7
    v_fma_f32 v13, -v12, v12, v13
    v_max_f32 v13, 0, v13
    """)
    round_bf16(A, 13)
    A(f"v_add_f32 v13, {hex(f2u(1e-5))}, v13")
    round_bf16(A, 13)
    A(f"""
    v_sqrt_f32 v13, v13
    v_cvt_pk_bf16_f32 v10, -v12, v13
    s_mov_b32 exec_lo, 0x01010101
    s_mov_b32 exec_hi, 0x01010101
    buffer_store_dwordx2 v[10:11], v8, s[12:15], s36 offen {SC}
    s_mov_b64 exec, -1
    """)
    A.st("b0")
    A("s_setprio 0")
    param_loads(A, T)
    LPF = env("LPF", 0)
    if LPF:
        srd(A, 16, "s48", "s49", 1792 * 1024)
        A(f"""
        s_lshl_b32 s28, s21, 3
        s_add_u32 s28, s28, s20
        s_mul_i32 s28, s28, {56*128}
        v_min_u32 v{T+2}, 55, v0
        v_lshlrev_b32 v{T+2}, 7, v{T+2}
        buffer_load_dword v{VDUM}, v{T+2}, s[16:19], s28 offen
        """)
    A(f"""
    v_and_b32 v13, 0xffff0000, v10
    v_lshlrev_b32 v12, 16, v10
    v_rcp_f32 v5, v13
    s_nop 0
    v_fma_f32 v13, -v13, v5, 1.0
    v_fma_f32 v13, v13, v5, v5
    """)
    for t in range(8):
        A(f"v_readlane_b32 s{56+t}, v12, {8*t}")
        A(f"v_readlane_b32 s{64+t}, v13, {8*t}")
    A(f"""
    v_xor_b32 v5, s20, v2
    v_lshlrev_b32 v6, 10, v0
    v_lshl_add_u32 v6, v5, 4, v6
    """)

    for tp in range(4):
        t0, t1 = 2 * tp, 2 * tp + 1
        for k in range(4):
            for h in range(2):
                e = 2 * k + h
                A(f"v_dot2_f32_bf16 v{T+2*e}, v{R+4*t0+k}, v{14+h}, s{56+t0}")
                A(f"v_dot2_f32_bf16 v{T+2*e+1}, v{R+4*t1+k}, v{14+h}, s{56+t1}")
        if env("LNX", 0):
            for e in range(8): A(f"v_cvt_pk_bf16_f32 v{T+2*e+1}, v{T+2*e}, v{T+2*e+1}")
            for e in range(8):
                A(f"v_lshlrev_b32 v{T+2*e}, 16, v{T+2*e+1}")
                A(f"v_and_b32 v{T+2*e+1}, 0xffff0000, v{T+2*e+1}")
        for e in range(8): A(f"v_pk_mul_f32 v[{T+2*e}:{T+2*e+1}], v[{T+2*e}:{T+2*e+1}], s[{64+t0}:{64+t1}]")
        for e in range(8): A(f"v_cvt_pk_bf16_f32 v{O+4*e+tp}, v{T+2*e}, v{T+2*e+1}")
        if tp == env("LFP", 3):
            w2_setup(A, 28)
            LF = env("LF", 0)
            A("s_cmp_ge_u32 s20, 4")
            A("s_cbranch_scc1 L_ln_nofill")
            for sl in range(LF): A.extend(wdma(sl, sl))
            A.label("L_ln_nofill")
    for e in range(8): A(f"ds_write_b128 v6, v[{O+4*e}:{O+4*e+3}] offset:{e*128}")
    for a_ in flag_zero(): A.extend(a_)
    A.st("g8")
    A(f"""
    s_lshl_b32 s28, s20, 13
    v_lshlrev_b32 v6, 7, v1
    v_lshl_add_u32 v6, v2, 4, v6
    v_add_u32 v6, s28, v6
    v_lshlrev_b32 v7, {7 if XS else 12}, v1
    v_lshl_add_u32 v7, v2, 4, v7
    s_lshl_b32 s26, s20, {13 if XS else 18}
    s_mul_i32 s28, s21, {XS if XS else 128}
    s_add_u32 s26, s26, s28
    s_add_u32 s26, s26, {WS_XNT}
    s_lshl_b32 s33, s21, {FSL}
    s_add_u32 s33, s33, {WS_FLL}
    """)
    for i in range(8): A(f"v_xor_b32 v{8+i}, {16*i}, v6")
    A("s_waitcnt lgkmcnt(0)")
    A("s_barrier")
    for i in range(8): A(f"ds_read_b128 v[{192+4*i}:{192+4*i+3}], v{8+i} offset:{i*1024}")
    for i in range(8):
        A(f"s_waitcnt lgkmcnt({7-i})")
        A(f"s_add_u32 s25, s26, {i*(1024 if XS else 32768)}")
        A(f"buffer_store_dwordx4 v[{192+4*i}:{192+4*i+3}], v7, s[12:15], s25 offen {SC}")
    A.st("loop")
    A(f"""
    s_lshl_b32 s28, s20, 2
    s_add_u32 s28, s28, {L_FLAG+96}
    v_mov_b32 v5, s28
    v_mov_b32 v6, 1
    s_cmp_lt_u32 s20, 4
    s_cbranch_scc1 L_ln_C
    """)
    kg_waddr(A, L_VS, KWA); A.extend(kg_raddr(L_VS, KRA, 28))
    A(f"s_mov_b32 s33, {WS_DUMMY}")
    if env("LNW", 0):
        A("s_waitcnt vmcnt(0)")
        A("ds_write_b32 v5, v6")
        A("v_add_u32 v5, 64, v5")
    else:
        A("s_waitcnt vmcnt(8)")
    A("s_branch L_kgen_v")
    A.label("L_ln_C")
    A.extend(ya_prefill(T + 2, T + 3, T + 4))
    A(f"""
    v_mov_b32 v30, {L_FLAG+96}
    s_waitcnt vmcnt(0)
    ds_write_b32 v5, v6
    """)
    A.extend(yflag_off()); A.extend(wave_flag("s28", 34))
    A(f"""
    L_ln_cs:
    ds_read_b128 v[36:39], v30
    ds_read_b128 v[40:43], v30 offset:16
    s_waitcnt lgkmcnt(0)
    v_and_b32 v36, v36, v37
    v_and_b32 v38, v38, v39
    v_and_b32 v40, v40, v41
    v_and_b32 v42, v42, v43
    v_and_b32 v36, v36, v38
    v_and_b32 v40, v40, v42
    v_and_b32 v36, v36, v40
    s_nop 0
    v_readfirstlane_b32 s28, v36
    s_cmp_eq_u32 s28, 1
    s_cbranch_scc0 L_ln_cs
    """)
    publish_flag(A, "s33", 32, "l", 0)
    A.st("gstart")
    A(f"s_mov_b32 s33, {WS_DUMMY}")
    if EPE: A.extend(ep_early(28))
    TH = env("TH", 0)
    for sl in range(12):
        A.extend(wdma(sl, sl))
        if TH: A(f"s_waitcnt vmcnt({TH})")
    A("s_waitcnt vmcnt(0)")
    for sl in range(12): A.extend(w2tr(sl, sl))
    A(f"""
    v_mov_b32 v28, {L_FLAG+16}
    L_ln_cw:
    ds_read_b128 v[32:35], v28
    s_waitcnt lgkmcnt(0)
    v_and_b32 v32, v32, v33
    v_and_b32 v34, v34, v35
    v_and_b32 v32, v32, v34
    s_nop 0
    v_readfirstlane_b32 s28, v32
    s_cmp_eq_u32 s28, 1
    s_cbranch_scc0 L_ln_cw
    """)
    for sl in range(12): A.extend(wdma(sl, 12 + sl))
    A(f"""
    s_lshl_b32 s28, s20, 8
    s_add_u32 s28, s28, s2
    s_cmp_lg_u32 s28, 255
    s_cbranch_scc1 L_nobump
    v_lshlrev_b32 v28, {FS+1}, v0
    s_mov_b32 s30, 0
    L_bump_poll:
    """)
    for k in range(4):
        A(f"s_mov_b32 s28, {WS_FLY + k*(128 << FS)}")
        A(f"buffer_load_dword v{32+k}, v28, s[12:15], s28 offen {SC}")
    A(f"""
    s_add_u32 s30, s30, 1
    s_waitcnt vmcnt(0)
    v_xor_b32 v32, s76, v32
    v_xor_b32 v33, s76, v33
    v_xor_b32 v34, s76, v34
    v_xor_b32 v35, s76, v35
    v_or3_b32 v32, v32, v33, v34
    v_or_b32 v32, v32, v35
    v_cmp_ne_u32 vcc, 0, v32
    s_cmp_gt_u32 s30, {SPIN}
    s_cbranch_scc1 L_bump_go
    s_cbranch_vccnz L_bump_poll
    L_bump_go:
    s_mov_b32 s28, {WS_EPOCH}
    """)
    A.extend(wave_flag("s28", 28))
    A.label("L_nobump")
    A("s_mov_b32 s37, 1")
    A("s_branch L_gemm2")


def final_addr(A):
    A(f"""
    v_lshrrev_b32 v1, 3, v0
    v_and_b32 v2, 7, v0
    v_lshlrev_b32 v{VOO}, 10, v1
    v_lshl_add_u32 v{VOO}, v2, 4, v{VOO}
    v_lshlrev_b32 v3, 4, v2
    s_lshl_b32 s33, s78, 6
    s_lshl_b32 s28, s20, 3
    s_add_u32 s33, s33, s28
    s_lshl_b32 s33, s33, 10
    s_lshl_b32 s34, s79, 7
    s_add_u32 s33, s33, s34
    """)
def ep_loads():
    o = Asm()
    srd(o, 8, "s50", "s51", 1024)
    o(f"buffer_load_dwordx4 v[{VX}:{VX+3}], v{VOO}, s[4:7], s33 offen")
    o(f"buffer_load_dwordx4 v[{VB2}:{VB2+3}], v3, s[8:11], s34 offen")
    return o.lines


def ep_early(vt):
    return [f"v_lshrrev_b32 v{vt}, 3, v0", f"v_and_b32 v{vt+1}, 7, v0", f"v_lshlrev_b32 v{vt}, 10, v{vt}", f"v_lshlrev_b32 v{vt+1}, 4, v{vt+1}",
            f"v_add_u32 v{vt}, v{vt}, v{vt+1}", "s_lshl_b32 s29, s78, 6", "s_lshl_b32 s28, s20, 3", "s_add_u32 s29, s29, s28", "s_lshl_b32 s29, s29, 10",
            "s_lshl_b32 s30, s79, 7", "s_add_u32 s29, s29, s30", "s_mov_b32 s8, s50", "s_mov_b32 s9, s51", "s_mov_b32 s10, 1024", "s_mov_b32 s11, 0x00020000",
            f"buffer_load_dwordx4 v[{VX}:{VX+3}], v{vt}, s[4:7], s29 offen", f"buffer_load_dwordx4 v[{VB2}:{VB2+3}], v{vt+1}, s[8:11], s30 offen"]

def gen_gemm2(A):
    VHO, VTR2, VP, VT = 13, 14, 18, 22
    ACC, W, H = ACC2, W2R, HR
    if PRIO_G: A(f"s_setprio {PRIO_G}")
    A("s_mov_b32 s22, s33")
    final_addr(A)
    for k in range(4): A(f"v_mov_b32 v{VTR2+k}, v{VTL+k}")
    A(f"""
    v_lshlrev_b32 v{VHO}, 4, v0
    v_lshrrev_b32 v{VT}, 5, v0
    v_xor_b32 v{VT}, v{VT}, v2
    v_and_b32 v{VP}, 31, v0
    v_lshlrev_b32 v{VP}, 8, v{VP}
    v_lshl_add_u32 v{VP}, v{VT}, 4, v{VP}
    v_add_u32 v{VP}, s73, v{VP}
    v_xor_b32 v{VP+1}, 32, v{VP}
    v_xor_b32 v{VP+2}, 64, v{VP}
    v_xor_b32 v{VP+3}, 96, v{VP}
    s_mul_i32 s24, s78, {2*112*1024}
    s_mul_i32 s28, s20, {28*1024}
    s_add_u32 s24, s24, s28
    s_add_u32 s24, s24, {WS_HF}
    s_add_u32 s25, s24, {112*1024}
    s_mul_i32 s26, s20, {1 if HP else 7}
    s_lshl_b32 s28, s78, {2 if HP else 5}
    s_add_u32 s26, s26, s28
    s_lshl_b32 s26, s26, 7
    s_add_u32 s26, s26, {WS_FLH}
    v_min_u32 v{VT}, 6, v2
    v_lshlrev_b32 v{VT}, {2 if HP else 7}, v{VT}
    s_lshl_b32 s28, s20, 2
    s_add_u32 s28, s28, {L_FLAG+16}
    v_mov_b32 v{ACC+4}, s28
    v_mov_b32 v{ACC+5}, 1
    ds_write_b32 v{ACC+4}, v{ACC+5} offset:16
    s_mov_b32 s30, 0
    s_cmp_eq_u32 s37, 1
    s_cbranch_scc1 L_g2_poll
    """)
    A.st("prew")
    A("s_waitcnt vmcnt(0)")
    A.extend(wave_flag("s22", ACC))
    A.st("p2bar")
    A(f"""
    L_g2_rr:
    ds_read_b32 v{ACC+5}, v{ACC+4}
    s_waitcnt lgkmcnt(0)
    v_readfirstlane_b32 s28, v{ACC+5}
    s_cmp_eq_u32 s28, 1
    s_cbranch_scc0 L_g2_rr
    """)
    for sl in range(3): A.extend(w2tr(sl, sl, VTR2))
    for sl in range(12):
        left = min(12, sl + 3) - sl - 1
        A(f"s_waitcnt lgkmcnt({4*left})")
        if sl + 3 < 12: A.extend(w2tr(sl + 3, sl + 3, VTR2))
        if EP and sl == 12 - EP: A(f"buffer_load_dword v{ACC+2}, v{VT}, s[12:15], s26 offen {SC}")
        A.extend(wdma(sl, 12 + sl))
    if EP:
        A(f"""
        s_waitcnt vmcnt({2*EP})
        v_cmp_ne_u32 vcc, s76, v{ACC+2}
        s_cbranch_vccz L_g2_go
        """)
    A.st("s5")
    A.label("L_g2_poll")
    if PG: A(f"s_sleep {PG}")
    A(f"""
    buffer_load_dword v{ACC+2}, v{VT}, s[12:15], s26 offen {SC}
    s_add_u32 s30, s30, 1
    s_waitcnt vmcnt(0)
    v_cmp_ne_u32 vcc, s76, v{ACC+2}
    s_cmp_gt_u32 s30, {SPIN}
    s_cbranch_scc1 L_g2_go
    s_cbranch_vccnz L_g2_poll
    """)
    A.label("L_g2_go")
    vm = VMQ()
    for sl in range(12 - EP, 12): vm.note(("w", 12 + sl), 2)
    A.st("s6")
    def hload(kp):
        sl = kp % HD
        vm.note(("h", kp), 2)
        return koff("s31", ORDER[kp]) + ["s_add_u32 s27, s31, s24", "s_add_u32 s31, s31, s25",
                                  f"buffer_load_dwordx4 v[{H+8*sl}:{H+8*sl+3}], v{VHO}, s[12:15], s27 offen {SCL}",
                                  f"buffer_load_dwordx4 v[{H+8*sl+4}:{H+8*sl+7}], v{VHO}, s[12:15], s31 offen {SCL}"]
    if env("DYN", 0):
        free = [H + 8 * i for i in range(HD)]
        hb, wb = {}, {k: W + 8 * k for k in range(12)}
        lq = LQ(A)
        nh = [0]; nt = [12]
        MAXH = env("MAXH", 16)
        def hl(kp):
            r = free.pop(0); hb[kp] = r; vm.note(("h", kp), 2)
            A.extend(koff("s31", kp) + ["s_add_u32 s27, s31, s24", "s_add_u32 s31, s31, s25",
                     f"buffer_load_dwordx4 v[{r}:{r+3}], v{VHO}, s[12:15], s27 offen {SCL}",
                     f"buffer_load_dwordx4 v[{r+4}:{r+7}], v{VHO}, s[12:15], s31 offen {SCL}"])
        def tl(k):
            r = free.pop(0); wb[k] = r
            A.extend(vm.wait(("w", k)))
            a_ = slot_addr((k - 12) % 12); hi = a_ >> 16; a_ &= 0xffff
            lq.emit([f"ds_read_b64_tr_b16 v[{r+4*db+2*sec}:{r+4*db+2*sec+1}], v{VTR2+2*hi+db} offset:{a_+sec*1024}" for db in range(2) for sec in range(2)], ("t", k))
        for kp in range(HD): hl(kp); nh[0] += 1
        if PRIO_G: A(f"s_setprio {env('PRIOG2', 0)}")
        def mfm(kp, tb, db):
            c = ACC + 32 * tb + 16 * db
            cin = "0" if kp == 0 else f"v[{c}:{c+15}]"
            return f"v_mfma_f32_32x32x16_bf16 v[{c}:{c+15}], v[{wb[kp]+4*db}:{wb[kp]+4*db+3}], v[{hb[kp]+4*tb}:{hb[kp]+4*tb+3}], {cin}"
        f3 = [24]
        for kp in range(24):
            lq.wait(("t", kp))
            A.extend(vm.wait(("h", kp)))
            if kp in (4, 9, 14, 19): A.st(f"k{kp}")
            A(mfm(kp, 0, 0))
            if kp >= 1: free.extend([hb[kp - 1], wb[kp - 1]])
            ahead = env("TAH", 3) if kp < 20 else 4
            while nt[0] < 28 and nt[0] <= kp + ahead and free and (nt[0] < 24 or nt[0] < f3[0]): tl(nt[0]); nt[0] += 1
            A(mfm(kp, 0, 1))
            if nh[0] < 28 and len(free) > 1 and nh[0] - kp < MAXH: hl(nh[0]); nh[0] += 1
            A(mfm(kp, 1, 0))
            if nh[0] < 28 and len(free) > 1 and nh[0] - kp < MAXH: hl(nh[0]); nh[0] += 1
            if f3[0] < 28 and f3[0] - 12 <= kp + 1 and f3[0] - 12 < nt[0] - 1:
                lq.wait(("t", f3[0] - 12))
                A.extend(wdma(f3[0] - 24, f3[0])); vm.note(("w", f3[0]), 2); f3[0] += 1
            if kp == env("SIGK", 19):
                lq.emit(["s_lshl_b32 s28, s20, 2", f"s_add_u32 s28, s28, {L_FLAG+48}", f"v_mov_b32 v{VT}, s28", f"v_mov_b32 v{VHO}, 1", f"ds_write_b32 v{VT}, v{VHO}"])
                assert nh[0] == 28
            A(mfm(kp, 1, 1))
            if kp == 0: A.st("k0")
        assert nh[0] == 28 and nt[0] == 28, (nh, nt)
        pw = lambda tb, db: [f"ds_write_b128 v{VP+q}, v[{ACC+32*tb+16*db+4*q}:{ACC+32*tb+16*db+4*q+3}] offset:{tb*32768+db*128}" for q in range(4)]
        A("s_waitcnt lgkmcnt(0)")
        A.extend(vm.wait(("h", 27)))
        prev = []
        for tb in range(2):
            for db in range(2):
                for j, kp in enumerate(range(24, 28)):
                    A(mfm(kp, tb, db))
                    if j >= 1 and prev: A.extend(prev[:2]); prev = prev[2:]
                A.extend(prev); prev = pw(tb, db)
        A.st("s7")
        A.extend(prev)
        A("s_waitcnt vmcnt(0) lgkmcnt(0)")
        A("s_branch L_final")
        return
    H0 = env("H0", 9)
    for kp in range(H0): A.extend(hload(kp))
    nh = [H0]
    def more(kp, n):
        for _ in range(n):
            if nh[0] < 28 and nh[0] <= kp - 1 + HD:
                A.extend(hload(nh[0])); nh[0] += 1
    if PRIO_G: A(f"s_setprio {env('PRIOG2', 0)}")
    inring = lambda k: ORDER[k] >= 12
    wset = lambda k: ((k % 2) if k < 24 else k - 24) if inring(k) else ORDER[k]
    slot_of = lambda k: (ORDER[k] - 12) % 12
    for kp in range(28 - TS):
        nx = kp + 1
        if TS and kp >= 20 and kp < 24: nx = kp + 4
        if TS and kp >= 24: nx = 99
        if inring(kp): A("s_waitcnt lgkmcnt(0)")
        A.extend(vm.wait(("h", kp)))
        if kp in (4, 9, 14, 19): A.st(f"k{kp}")
        b = W + 8 * wset(kp); sl = kp % HD
        mf = []
        for tb in range(2):
            for db in range(2):
                c = ACC + 32 * tb + 16 * db
                cin = "0" if kp == 0 else f"v[{c}:{c+15}]"
                mf.append(f"v_mfma_f32_32x32x16_bf16 v[{c}:{c+15}], v[{b+4*db}:{b+4*db+3}], v[{H+8*sl+4*tb}:{H+8*sl+4*tb+3}], {cin}")
        A(mf[0])
        if nx < 28 and inring(nx):
            A.extend(vm.wait(("w", ORDER[nx])))
            A.extend(w2tr(slot_of(nx), wset(nx), VTR2))
        A(mf[1])
        more(kp, 1)
        A(mf[2])
        more(kp, 1)
        if 12 <= ORDER[kp] < 16:
            A.extend(wdma(ORDER[kp] - 12, ORDER[kp] + 12)); vm.note(("w", ORDER[kp] + 12), 2)
        if kp == 20 and not EPE:
            A.extend(ep_loads()); vm.note("ep", 2)
        if kp == env("SIGK", 19):
            A(f"""
            s_lshl_b32 s28, s20, 2
            s_add_u32 s28, s28, {L_FLAG+48}
            v_mov_b32 v{VT}, s28
            v_mov_b32 v{W}, 1
            ds_write_b32 v{VT}, v{W}
            """)
        A(mf[3])
        if kp == 0: A.st("k0")
    pw = lambda tb, db: [f"ds_write_b128 v{VP+q}, v[{ACC+32*tb+16*db+4*q}:{ACC+32*tb+16*db+4*q+3}] offset:{tb*32768+db*128}" for q in range(4)]
    if TS:
        A("s_waitcnt lgkmcnt(0)")
        A.extend(vm.wait(("h", 27)))
        prev = []
        for tb in range(2):
            for db in range(2):
                c = ACC + 32 * tb + 16 * db
                for j, kp in enumerate(range(28 - TS, 28)):
                    b_ = W + 8 * wset(kp); sl = kp % HD
                    A(f"v_mfma_f32_32x32x16_bf16 v[{c}:{c+15}], v[{b_+4*db}:{b_+4*db+3}], v[{H+8*sl+4*tb}:{H+8*sl+4*tb+3}], v[{c}:{c+15}]")
                    if j >= 1 and prev: A.extend(prev[:2]); prev = prev[2:]
                A.extend(prev); prev = pw(tb, db)
        A.st("s7")
        A.extend(prev)
    else:
        A.st("s7")
        for tb in range(2):
            for db in range(2): A.extend(pw(tb, db))
    A("s_waitcnt vmcnt(0) lgkmcnt(0)")
    A("s_branch L_final")


def gen_conv(A):
    if PRIO_C: A(f"s_setprio {PRIO_C}")
    VTA, VF = 32, 36
    VXN, VBW, VOWN, VPAR = 37, 38, 39, 40
    T0 = 42
    dsk = P0 + 7
    ACC = 48; FB = [80, 112]; TB = [144, 208]
    XN = 196
    final_addr(A)
    A(f"""
    s_mov_b32 s21, s39
    s_lshr_b32 s35, s21, 1
    s_and_b32 s36, s21, 1
    s_mul_i32 s38, s35, {CH_SIZE}
    s_add_u32 s38, s38, {L_CH}
    s_lshl_b32 s27, s21, 13
    s_add_u32 s27, s27, {L_ST2}
    s_xor_b32 s32, s27, {ST2}
    v_and_b32 v{T0}, 15, v0
    v_lshrrev_b32 v{T0+1}, 4, v0
    v_and_b32 v{T0+2}, 1, v0
    v_mul_u32_u24 v{T0+2}, {OFF_O + 2 - OFF_E}, v{T0+2}
    s_lshl_b32 s31, s36, 8
    s_sub_u32 s31, s38, s31
    s_add_u32 s29, s31, {OFF_O + 2*2032 - 512 - 192}
    v_lshlrev_b32 v{T0+3}, 1, v{T0}
    v_sub_u32 v{VTA}, s29, v{T0+3}
    v_lshl_add_u32 v{VTA}, v{T0+1}, 4, v{VTA}
    v_sub_u32 v{VTA}, v{VTA}, v{T0+2}
    v_subrev_u32 v{VTA+1}, 1024, v{VTA}
    v_subrev_u32 v{VTA+2}, 2048, v{VTA}
    v_subrev_u32 v{VTA+3}, 3072, v{VTA}
    """)
    def freads(rr, fb): return [f"ds_read_b128 v[{fb+4*m}:{fb+4*m+3}], v{VF} offset:{512*m + 64*(3-rr)}" for m in range(8)]
    def treads(rr, tb):
        o = []
        for i in range(8):
            off = 128 * (1 - (i & 1)) + 16 * (3 - rr)
            o.append(f"ds_read2_b32 v[{tb+4*i}:{tb+4*i+1}], v{VTA+i//2} offset0:{off} offset1:{off+1}")
            o.append(f"ds_read2_b32 v[{tb+4*i+2}:{tb+4*i+3}], v{VTA+i//2} offset0:{off+2} offset1:{off+3}")
        return o
    A(f"""
    v_lshl_add_u32 v19, v0, 4, s38
    s_add_u32 s29, s31, {480 - 192}
    v_lshlrev_b32 v{VF}, 5, v{T0}
    v_lshl_add_u32 v{VF}, v{T0+1}, 4, v{VF}
    v_add_u32 v{VF}, s29, v{VF}
    v_lshlrev_b32 v{VXN}, 5, v{T0}
    v_lshl_add_u32 v{VXN}, v{T0+1}, 3, v{VXN}
    v_add_u32 v{VBW}, s27, v{VXN}
    s_lshl_b32 s28, s36, 11
    s_add_u32 s28, s28, s38
    v_add_u32 v{VXN}, s28, v{VXN}
    v_lshl_add_u32 v{VOWN}, v0, 4, s27
    v_lshl_add_u32 v{VPAR}, v0, 4, s32
    v_mov_b32 v13, 1
    s_lshl_b32 s29, s21, 2
    s_add_u32 s29, s29, {L_FLAG}
    v_mov_b32 v14, s29
    s_xor_b32 s29, s29, 4
    v_mov_b32 v15, s29
    v_lshlrev_b32 v18, 4, v0
    """)
    A(f"""
    L_cv_ex:
    ds_read_b32 v16, v15 offset:64
    s_waitcnt lgkmcnt(0)
    v_readfirstlane_b32 s28, v16
    s_cmp_eq_u32 s28, 1
    s_cbranch_scc0 L_cv_ex
    """)
    A.extend(treads(0, TB[0]))
    A("s_cmp_eq_u32 s37, 1")
    A("s_cbranch_scc1 L_cv_uok")
    if env("HT2", 0): A("s_waitcnt vmcnt(0)"); A.extend(ring_ready(20))
    u_spin(A, 20, 18)
    A.label("L_cv_uok")
    A(f"s_waitcnt vmcnt({8 if env('HT2', 0) else 0})")
    if not UDMA:
        for k in range(4): A(f"ds_write_b128 v19, v[{XL+4*k}:{XL+4*k+3}] offset:{512 + k*1024}")
    A.extend(freads(0, FB[0]))
    A.st("s4")
    if GPK == 1:
        A(f"""
        v_mov_b32 v17, {L_FLAG+32}
        L_cv_gd:
        ds_read_b128 v[20:23], v17
        s_waitcnt lgkmcnt(0)
        v_and_b32 v20, v20, v21
        v_and_b32 v22, v22, v23
        v_and_b32 v20, v20, v22
        s_nop 0
        v_readfirstlane_b32 s28, v20
        s_cmp_eq_u32 s28, 1
        s_cbranch_scc0 L_cv_gd
        """)
    A.st("s5")
    for rp in range(4):
        fb, tb = FB[rp % 2], TB[rp % 2]
        mm = []
        for i in range(8):
            for j in range(i, 8):
                cin = "0" if (rp == 0 and i == 0) else f"v[{ACC+4*j}:{ACC+4*j+3}]"
                mm.append(f"v_mfma_f32_16x16x32_bf16 v[{ACC+4*j}:{ACC+4*j+3}], v[{tb+4*i}:{tb+4*i+3}], v[{fb+4*(j-i)}:{fb+4*(j-i)+3}], {cin}")
        if rp == 1:
            if env("HT2", 0): A("s_waitcnt vmcnt(0)"); A.extend(ring_ready(20))
            if not EPE: A.extend(ep_loads())
        if HT and rp == env("HTP", 3):
            A(f"""
            s_lshl_b32 s28, s24, 2
            s_add_u32 s28, s28, s21
            s_mul_i32 s28, s28, {56*128}
            s_mul_i32 s29, s23, {8*112*1024}
            s_add_u32 s28, s28, s29
            s_add_u32 s28, s28, {WS_HF}
            v_min_u32 v{T0}, 55, v0
            v_lshlrev_b32 v{T0}, 7, v{T0}
            buffer_load_dword v20, v{T0}, s[12:15], s28 offen {SC}
            """)
        if rp == 0:
            o = []
            for j in range(8): o += [f"s_waitcnt lgkmcnt({7-j})", mm[j]]
            mm = o + interleave(mm[8:], freads(1, FB[1]) + treads(1, TB[1]), 0, 22)
        else:
            A("s_waitcnt lgkmcnt(0)")
            if rp < 3: mm = interleave(mm, freads(rp + 1, FB[(rp + 1) % 2]) + treads(rp + 1, TB[(rp + 1) % 2]), 0, 26)
            else: mm = interleave(mm, [f"ds_read_b64 v[{XN+2*a_}:{XN+2*a_+1}], v{VXN} offset:{512 + a_*512}" for a_ in range(4)], 0, 8)
        A.extend(mm)
    A.st("s6")
    A("s_cmp_eq_u32 s36, 1")
    A("s_cbranch_scc1 L_cv_x1")
    for a_ in range(4): A(f"ds_write_b128 v{VOWN}, v[{ACC+16+4*a_}:{ACC+16+4*a_+3}] offset:{4096 + a_*1024}")
    A("ds_write_b32 v14, v13")
    A("s_branch L_cv_out")
    A.label("L_cv_x1")
    A("s_nop 7")
    for a_ in range(4): A(f"ds_write_b128 v{VOWN}, v[{ACC+4*a_}:{ACC+4*a_+3}] offset:{4096 + a_*1024}")
    A("ds_write_b32 v14, v13")
    for k in range(16): A(f"v_mov_b32 v{ACC+k}, v{ACC+16+k}")
    A.label("L_cv_out")
    A(f"""
    """)
    A.extend(ya_addr(41, T0))
    A(f"""
    v_mov_b32 v{T0+2}, 0xfffffffe
    s_waitcnt lgkmcnt(5)
    """)
    t = 80; z = 96; YP = 112
    for k in range(8):
        A(f"v_lshlrev_b32 v{t+2*k}, 16, v{XN+k}")
        A(f"v_and_b32 v{t+2*k+1}, 0xffff0000, v{XN+k}")
    for k in range(16): A(f"v_fma_f32 v{ACC+k}, v{t+k}, v{dsk}, v{ACC+k}")
    A.label("L_cv_ps1")
    A(f"""
    ds_read_b32 v16, v15
    s_waitcnt lgkmcnt(0)
    v_readfirstlane_b32 s28, v16
    s_cmp_eq_u32 s28, 1
    s_cbranch_scc0 L_cv_ps1
    """)
    for a_ in range(4): A(f"ds_read_b128 v[{YP+4*a_}:{YP+4*a_+3}], v{VPAR} offset:{4096 + a_*1024}")
    for a_ in range(4):
        A("s_waitcnt lgkmcnt(3)")
        for k in range(4): A(f"v_add_f32 v{ACC+4*a_+k}, v{ACC+4*a_+k}, v{YP+4*a_+k}")
        for k in range(2): A(f"v_cvt_pk_bf16_f32 v{z+2*a_+k}, v{ACC+4*a_+2*k}, v{ACC+4*a_+2*k+1}")
        for k in range(2): A(f"v_min_u32 v{z+2*a_+k}, v{z+2*a_+k}, v{T0+2}")
        A(f"ds_write_b64 v{VBW}, v[{z+2*a_}:{z+2*a_+1}] offset:{a_*512}")
    for h in range(2): A(f"ds_read_b128 v[{t+4*h}:{t+4*h+3}], v{VOWN} offset:{h*1024}")
    for h in range(2):
        A(f"s_waitcnt lgkmcnt({1-h})")
        A(f"buffer_store_dwordx4 v[{t+4*h}:{t+4*h+3}], v41, s[12:15], s{30+h} offen {SC}")
    Y = 160
    A(f"""
    v_lshlrev_b32 v{T0}, 8, v1
    v_lshl_add_u32 v{T0}, v2, 4, v{T0}
    s_lshl_b32 s28, s79, 5
    s_add_u32 s28, s28, s78
    s_lshl_b32 s28, s28, 13
    s_lshl_b32 s29, s21, 11
    s_add_u32 s28, s28, s29
    s_add_u32 s28, s28, {WS_YA}
    v_lshlrev_b32 v{T0+1}, 8, v2
    v_lshl_add_u32 v{T0+1}, v2, 4, v{T0+1}
    v_lshl_add_u32 v{T0+1}, v1, 2, v{T0+1}
    v_add_u32 v{T0+1}, s27, v{T0+1}
    v_mov_b32 v{T0+3}, 0x05040100
    v_mov_b32 v{T0+4}, 0x07060302
    s_mov_b32 s30, 0
    """)
    A.st("s7")
    A(f"""
    v_mov_b32 v17, {L_FLAG+48}
    s_setprio {env("PW", 1)}
    L_cv_w19:
    s_sleep {env("SW19", 2)}
    ds_read_b128 v[20:23], v17
    s_waitcnt lgkmcnt(0)
    v_and_b32 v20, v20, v21
    v_and_b32 v22, v22, v23
    v_and_b32 v20, v20, v22
    s_nop 0
    v_readfirstlane_b32 s29, v20
    s_cmp_eq_u32 s29, 1
    s_cbranch_scc0 L_cv_w19
    L_cv_poll2:
    buffer_load_dwordx4 v[{Y}:{Y+3}], v{T0}, s[12:15], s28 offen {SC}
    buffer_load_dwordx4 v[{Y+4}:{Y+7}], v{T0}, s[12:15], s28 offen offset:128 {SC}
    s_waitcnt vmcnt(0)
    v_max_u32 v{Y+8}, v{Y}, v{Y+1}
    v_max3_u32 v{Y+8}, v{Y+8}, v{Y+2}, v{Y+3}
    v_max3_u32 v{Y+8}, v{Y+8}, v{Y+4}, v{Y+5}
    v_max3_u32 v{Y+8}, v{Y+8}, v{Y+6}, v{Y+7}
    v_cmp_eq_u32 vcc, -1, v{Y+8}
    s_cbranch_vccz L_cv_got
    s_sleep 4
    s_add_u32 s30, s30, 1
    s_cmp_lt_u32 s30, {SPIN}
    s_cbranch_scc1 L_cv_poll2
    """)
    A.label("L_cv_got")
    A.st("got")
    for k in range(4):
        A(f"v_perm_b32 v{Y+8+2*k}, v{Y+4+k}, v{Y+k}, v{T0+3}")
        A(f"v_perm_b32 v{Y+9+2*k}, v{Y+4+k}, v{Y+k}, v{T0+4}")
    for i in range(8): A(f"ds_write_b32 v{T0+1}, v{Y+8+i} offset:{i*32}")
    A("s_waitcnt lgkmcnt(0)")


def gen_final(A):
    P = 32
    A(f"""
    v_lshlrev_b32 v13, 1, v2
    v_xor_b32 v13, v13, v1
    v_lshlrev_b32 v13, 4, v13
    v_lshl_add_u32 v13, v1, 8, v13
    s_and_b32 s28, s20, 3
    s_lshl_b32 s28, s28, 11
    s_lshr_b32 s29, s20, 2
    s_lshl_b32 s29, s29, 15
    s_add_u32 s28, s28, s29
    v_add_u32 v13, s28, v13
    v_xor_b32 v14, 16, v13
    v_lshrrev_b32 v15, 1, v2
    v_lshlrev_b32 v15, 13, v15
    v_lshl_add_u32 v15, v1, 5, v15
    v_and_b32 v16, 1, v2
    v_lshl_add_u32 v15, v16, 4, v15
    s_mul_i32 s28, s20, 272
    s_add_u32 s28, s28, {L_ST2}
    v_add_u32 v15, s28, v15
    """)
    srd(A, 8, "s52", "s53", 2 << 20)
    X, Yv, B = 64, 72, 80
    def unpack(d, s_):
        for k in range(4):
            A(f"v_lshlrev_b32 v{d+2*k}, 16, v{s_+k}")
            A(f"v_and_b32 v{d+2*k+1}, 0xffff0000, v{s_+k}")
    def pack(d, s_):
        for k in range(4): A(f"v_cvt_pk_bf16_f32 v{d+k}, v{s_+2*k}, v{s_+2*k+1}")
    unpack(X, VX); unpack(B, VB2)
    if not FR:
        for k in range(8): A(f"v_add_f32 v{X+k}, v{X+k}, v{B+k}")
    A("s_barrier")
    A.st("fin")
    A(f"ds_read_b128 v[16:19], v15")
    for w in range(4):
        A(f"ds_read_b128 v[{P+8*w}:{P+8*w+3}], v13 offset:{w*8192}")
        A(f"ds_read_b128 v[{P+8*w+4}:{P+8*w+7}], v14 offset:{w*8192}")
    A("s_waitcnt lgkmcnt(8)")
    unpack(Yv, 16)
    for k in range(8): A(f"v_add_f32 v{X+k}, v{X+k}, v{Yv+k}")
    if FR: pack(20, X); unpack(X, 20)
    A("s_waitcnt lgkmcnt(4)")
    for k in range(8): A(f"v_add_f32 v{P+k}, v{P+k}, v{P+8+k}")
    A("s_waitcnt lgkmcnt(0)")
    for k in range(8): A(f"v_add_f32 v{P+16+k}, v{P+16+k}, v{P+24+k}")
    for k in range(8): A(f"v_add_f32 v{P+k}, v{P+k}, v{P+16+k}")
    if FR:
        pack(24, P); unpack(P, 24)
        for k in range(8): A(f"v_add_f32 v{P+k}, v{P+k}, v{B+k}")
        pack(24, P); unpack(P, 24)
    for k in range(8): A(f"v_add_f32 v{P+k}, v{P+k}, v{X+k}")
    pack(28, P)
    A(f"buffer_store_dwordx4 v[28:31], v{VOO}, s[8:11], s33 offen {os.environ.get('SCO', '')}")
    if STAMPS: A("s_waitcnt vmcnt(0)")
    A.stamp_flush(0)
    A("s_endpgm")


DOC = '''; ---------------------------------------------------------------------------------------------
;  hand-offs: sc1 stores + per-wave tag flags (tag = LCG(epoch word in d_ws), epoch advanced inside the launch),
;             y via sentinel prefill; placement (wg%8) is used for cache locality only.
; ---------------------------------------------------------------------------------------------
'''

def gen():
    A = Asm()
    A.stamp(0, True); A.stamp(1)
    for k in range(2, 9): A.stamp(k)
    A(f"""
    s_cmp_ge_u32 s2, 256
    s_cbranch_scc1 L_exit
    s_load_dwordx2 s[40:41], s[0:1], {KA['u']}
    s_load_dwordx8 s[44:51], s[0:1], {KA['w1']}
    s_load_dwordx4 s[52:55], s[0:1], {KA['out']}
    s_load_dwordx2 s[42:43], s[0:1], {KA['ws']}
    v_lshrrev_b32 v1, 6, v0
    v_and_b32 v0, 63, v0
    s_and_b32 s23, s2, 7
    s_lshr_b32 s24, s2, 3
    v_readfirstlane_b32 s20, v1
    s_and_b32 s25, s24, 3
    s_lshr_b32 s77, s24, 2
    s_and_b32 s79, s77, 3
    s_cmp_eq_u32 s79, 3
    s_cselect_b32 s79, {4 if env("SW", 1) else 0}, 0
    s_xor_b32 s79, s79, s77
    s_lshl_b32 s78, s23, 2
    s_add_u32 s78, s78, s25
    s_mul_i32 s74, {'s23' if ROT & 4 else 's79'}, {3584 if ROT & 5 else 0}
    s_and_b32 s74, s74, 0xfffffc00
    s_mul_i32 s75, s25, {7168 if ROT & 2 else 0}
    s_add_u32 s74, s74, s75
    s_sub_u32 s75, s74, {28*1024}
    s_min_u32 s74, s74, s75
    s_and_b32 s39, s20, 3
    s_cmp_eq_u32 s77, 7
    s_cbranch_scc1 L_ln
    """)
    if LOC:
        A("""
        s_and_b32 s21, s24, 1
        s_lshl_b32 s22, s23, 1
        s_add_u32 s21, s21, s22
        s_lshr_b32 s22, s24, 1
        """)
    else:
        A("""
        s_lshr_b32 s21, s23, 1
        s_lshl_b32 s21, s21, 2
        s_add_u32 s21, s21, s25
        s_and_b32 s22, s23, 1
        s_mul_i32 s22, s22, 7
        s_add_u32 s22, s22, s77
        """)
    gen_gemm1(A)
    A.label("L_ln")
    A("s_nop 0 ; RESETSB")
    A("s_mov_b32 s21, s78")
    gen_ln(A)
    A.label("L_gemm2")
    A("s_nop 1 ; RESETSB")
    gen_gemm2(A)
    A.label("L_conv")
    A("s_nop 1 ; RESETSB")
    gen_conv(A)
    A.label("L_final")
    A("s_nop 7")
    gen_final(A)
    A.label("L_exit")
    A("s_endpgm")
    lines = fix_hazards(A.lines, verbose=True)
    check_waits(lines, "s")
    head = open("parallel_sum__ssm_conv_s4__dense_activation_gelu__prompt.s.ref").read().split("; Override launch")[0]
    head += DOC
    head += f"; @launch grid=(256,1,1) block=(512,1,1) lds={LDS_TOTAL}\n.amdgcn_target \"amdgcn-amd-amdhsa--gfx950\"\n"
    return head + kernel_section(KNAME, lines, 256, 102, 256)

if __name__ == "__main__":
    out = sys.argv[1] if len(sys.argv) > 1 else "cur8.s"
    open(out, "w").write(gen())
    print("wrote", out)
```

```python
from asmlib import *
import struct, math, os, sys

def f2u(x): return struct.unpack("<I", struct.pack("<f", x))[0]
def env(n, d): return int(os.environ.get(n, str(d)))

KNAME = "parallel_sum__ssm_conv_s4__dense_activation_gelu__prompt_kernel"
KA = dict(u=0, A_re=8, A_im=16, B_re=24, B_im=32, C_re=40, C_im=48, log_dt=56, Dskip=64, Bx=72, w1=80, b1=88, w2=96, b2=104,
          out=112, dbg=120, ws=128)
WS_FLL = 32768
WS_EPOCH = 49152
WS_DUMMY = 53248
WS_STAT = 65536
WS_FLH = 131072
WS_FLY = 262144
WS_HF = 1 << 20
WS_XNT = 8 << 20
WS_YA = 12 << 20
WS_USED = 14 << 20

LOG2E = 1.4426950408889634
GC1 = -2.0 * LOG2E * 0.7978845608028654
GC2 = GC1 * 0.044715

NS, STAGE = 4, 32768
RSL = 12
RING = RSL * 2048
L_KST = 98304; KST = 8704
L_ST2 = 98304; ST2 = 8192
L_CH = 131072; CH_SIZE = 13056
OFF_E, OFF_O = 4608, 8768
L_FLAG = L_CH + 2 * CH_SIZE
L_CS = L_FLAG + 512
LDS_TOTAL = 163840
L_VS = 98304; L_US = 98304

OPT_PF = env("PF", 2)
PRE = env("PRE", 3)
PRIO_C = env("PRIOC", 1)
PRIO_G = env("PRIOG", 2)
PRIO_E = env("PRIOE", 0)
ROT = env("ROT", 4)
BARP = env("BARP", 2)
STATG = env("STATG", 21)
SC = os.environ.get("SC", "sc1")
PFG = [int(x) for x in os.environ.get("PFG", "").split(",") if x]
HD = 9
U6 = env('U6', 0)
FSL = env('FSL', 2)
KR = env('KR', 0)
MIX = env('MIX', 0)
XS = env('XS', 65536 + 2176)
PS = env('PS', 8)
PG = env('PG', 0)
LW1 = env('LW1', 0)
UDMA = env('UDMA', 1)
EPE = env('EPE', 1)
FS = env('FS', 2)
HP = env('HP', 1)
NB8 = env('NB8', 1)
EP = env('EP', 2)
TS = env('TS', 4)
FR = env('FR', 0)
NPK0 = env('NPK0', 3)
NC0 = env('NC0', 3)
WSOFF = env('WSOFF', 0) << 20
SCH = os.environ.get('SCH', SC)
LOC = env('LOC', 0)
GPK = env('GPK', 3)
ULN = env('ULN', 3)
HT = env('HT', 0)
SCL = os.environ.get('SCL', SC)
SPIN = 0x40000

DK, DP, EX, P0 = 224, 128, 160, 244
BF, AF, KG_G, KG_E1, KG_L, KG_V, KG_PK, KG_VW, KG_VRD = 160, 192, 108, 122, 224, 124, 132, 136, 137
L_KS2 = 131072; KS2 = 4352
XL = 180
VDUM, LNF = 252, 253
VX, VB2, VOO = 4, 8, 12
VW2 = 23
W2R, HR, ACC2 = 160, 88, 24
VTL = 24

def srd(A, d, lo, hi, size):
    A(f"s_mov_b32 s{d}, {lo}\ns_mov_b32 s{d+1}, {hi}\ns_mov_b32 s{d+2}, {size}\ns_mov_b32 s{d+3}, 0x00020000")
def round_bf16(A, r):
    A(f"v_cvt_pk_bf16_f32 v{r}, v{r}, v{r}")
    A(f"v_and_b32 v{r}, 0xffff0000, v{r}")
def zipm(*lists):
    o = []
    for k in range(max(len(l) for l in lists)):
        for l in lists:
            if k < len(l): o.append(l[k])
    return o
def mask(lo, hi=None):
    hi = lo if hi is None else hi
    return [f"s_mov_b32 s28, {lo}", f"s_mov_b32 s29, {hi}"]

class VMQ:
    def __init__(self): self.q = []
    def note(self, tag, n=1): self.q.extend([tag] * n)
    def wait(self, *tags):
        idx = max((k for k, t in enumerate(self.q) if t in tags), default=-1)
        if idx < 0: return []
        n = len(self.q) - 1 - idx
        del self.q[:idx + 1]
        return [f"s_waitcnt vmcnt({n})"]
    def younger(self): return len(self.q)

ORDER = [0, 1] + list(range(12, 24)) + list(range(2, 12)) + list(range(24, 28))

def koff(dst, lab, base="s74"):
    return [f"s_add_u32 {dst}, {base}, {lab*1024}", f"s_sub_u32 s75, {dst}, {28*1024}", f"s_min_u32 {dst}, {dst}, s75"]

def slot_addr(sl): return (sl >> 2) * 32768 + (sl & 3) * 2048

def w2_setup(A, vt):
    srd(A, 16, "s48", "s49", 1792 * 1024)
    A(f"""
    v_lshrrev_b32 v{vt}, 2, v0
    v_and_b32 v{vt}, 4, v{vt}
    v_and_b32 v{vt+1}, 7, v0
    v_xor_b32 v{vt}, v{vt}, v{vt+1}
    v_lshrrev_b32 v{vt+1}, 3, v0
    v_lshlrev_b32 v{VW2}, 10, v{vt+1}
    v_lshl_add_u32 v{VW2}, v{vt}, 4, v{VW2}
    s_mul_i32 s72, s39, {448*1024}
    s_lshl_b32 s75, s79, 7
    s_add_u32 s72, s72, s75
    s_lshl_b32 s73, s39, 13
    v_lshrrev_b32 v{vt+1}, 5, v0
    v_bfe_u32 v{vt}, v0, 2, 2
    v_lshl_add_u32 v{VTL}, v{vt+1}, 2, v{vt}
    v_lshlrev_b32 v{VTL}, 7, v{VTL}
    v_bfe_u32 v{vt}, v0, 4, 1
    v_lshl_add_u32 v{VTL}, v{vt}, 5, v{VTL}
    v_and_b32 v{vt}, 3, v0
    v_lshl_add_u32 v{VTL}, v{vt}, 3, v{VTL}
    v_bfe_u32 v{vt}, v0, 3, 1
    v_lshl_add_u32 v{VTL}, v{vt}, 6, v{VTL}
    v_add_u32 v{VTL}, s73, v{VTL}
    v_xor_b32 v{VTL+1}, 64, v{VTL}
    v_add_u32 v{VTL+2}, 0x10000, v{VTL}
    v_add_u32 v{VTL+3}, 0x10000, v{VTL+1}
    """)
def wdma(slot, lab):
    a_ = slot_addr(slot)
    return koff("s31", lab) + [f"s_add_u32 m0, s73, {a_}", "s_lshl4_add_u32 s31, s31, s72",
                               f"buffer_load_dwordx4 v{VW2}, s[16:19], s31 offen lds",
                               f"s_add_u32 m0, s73, {a_+1024}", "s_add_u32 s31, s31, 8192",
                               f"buffer_load_dwordx4 v{VW2}, s[16:19], s31 offen lds"]
def w2tr(slot, ws_, vtl=VTL):
    b = W2R + 8 * ws_; a_ = slot_addr(slot); hi = a_ >> 16; a_ &= 0xffff
    return [f"ds_read_b64_tr_b16 v[{b+4*db+2*sec}:{b+4*db+2*sec+1}], v{vtl+2*hi+db} offset:{a_+sec*1024}" for db in range(2) for sec in range(2)]

def param_loads(A, vt):
    A(f"""
    s_lshr_b32 s28, s39, 1
    s_lshl_b32 s30, s2, 1
    s_add_u32 s30, s30, s28
    v_lshlrev_b32 v{vt}, 1, v0
    v_mov_b32 v{vt+1}, 0
    s_lshl_b32 s29, s30, 8
    s_and_b32 s28, s20, 1
    s_lshl_b32 s28, s28, 7
    s_add_u32 s29, s29, s28
    s_lshl_b32 s30, s30, 1
    s_mov_b32 s18, 1024
    s_mov_b32 s19, 0x00020000
    """)
    for k in range(8): A(f"v_mov_b32 v{P0+k}, 0")
    A("s_waitcnt lgkmcnt(0)")
    for k in (6, 7, 0, 1, 2, 3, 4, 5):
        if k == 0: A("s_mov_b32 s18, 131072")
        A(f"s_mov_b32 s16, s{56+2*k}\ns_mov_b32 s17, s{57+2*k}")
        if k < 6: A(f"buffer_load_short_d16_hi v{P0+k}, v{vt}, s[16:19], s29 offen")
        else: A(f"buffer_load_short_d16_hi v{P0+k}, v{vt+1}, s[16:19], s30 offen")

def lnflag_load(vt):
    return ["s_lshl_b32 s29, s79, 6", "s_lshl_b32 s28, s39, 4", "s_add_u32 s29, s29, s28", "s_lshr_b32 s28, s78, 4", "s_lshl_b32 s28, s28, 9",
            "s_add_u32 s29, s29, s28", f"s_lshl_b32 s29, s29, {FS}", f"s_add_u32 s29, s29, {WS_FLY}",
            f"v_lshlrev_b32 v{vt}, {FSL}, v0", f"v_add_u32 v{vt}, {WS_FLL}, v{vt}",
            f"v_and_b32 v{vt+1}, 15, v0", f"v_lshl_add_u32 v{vt+1}, v{vt+1}, {FS}, s29", "s_mov_b32 s28, 0", "s_mov_b32 s29, -1",
            f"v_cndmask_b32 v{vt}, v{vt}, v{vt+1}, s[28:29]",
            f"buffer_load_dword v{LNF}, v{vt}, s[12:15], 0 offen {SC}"]

def u_issue(A, vl16):
    A(f"""
    s_lshr_b32 s28, s39, 1
    s_lshl_b32 s29, s2, 1
    s_add_u32 s29, s29, s28
    s_lshl_b32 s29, s29, {7 if XS else 12}
    s_add_u32 s29, s29, {WS_XNT}
    """)
    if UDMA:
        A(f"s_mul_i32 s28, s28, {CH_SIZE}")
        A(f"s_add_u32 m0, s28, {L_CH + 512}")
        if XS:
            A(f"""
            v_lshrrev_b32 v{XL}, 3, v0
            v_and_b32 v{XL+1}, 7, v0
            v_mul_u32_u24 v{XL}, {XS}, v{XL}
            v_lshl_add_u32 v{XL}, v{XL+1}, 4, v{XL}
            """)
            vl16 = XL
        for k in range(4):
            if XS and k: A(f"s_add_u32 s29, s29, {8*XS - 1024}")
            A(f"buffer_load_dwordx4 v{vl16}, s[12:15], s29 offen offset:{k*1024} {SC} lds")
    else:
        for k in range(4): A(f"buffer_load_dwordx4 v[{XL+4*k}:{XL+4*k+3}], v{vl16}, s[12:15], s29 offen offset:{k*1024} {SC}")

def u_try(A, vl16):
    A(f"""
    v_cmp_ne_u32 vcc, s76, v{LNF}
    s_mov_b32 s37, 0
    s_cbranch_vccnz L_ut_no
    s_mov_b32 s37, 1
    """)
    u_issue(A, vl16)
    A.label("L_ut_no")

def u_spin(A, vt, vl16, tag=''):
    A("s_mov_b32 s30, 0")
    A.label(f"L_us_poll{tag}")
    A(f"s_sleep {PS}")
    A.extend(lnflag_load(vt))
    A(f"""
    s_add_u32 s30, s30, 1
    s_waitcnt vmcnt(0)
    v_cmp_ne_u32 vcc, s76, v{LNF}
    s_cmp_gt_u32 s30, {SPIN}
    s_cbranch_scc1 L_us_ok{tag}
    s_cbranch_vccnz L_us_poll{tag}
    """)
    A.label(f"L_us_ok{tag}")
    u_issue(A, vl16)
    A("s_waitcnt vmcnt(0)")

def ya_addr(vd, vt):
    return [f"v_lshrrev_b32 v{vd}, 3, v0", f"v_and_b32 v{vt}, 7, v0", f"v_lshlrev_b32 v{vd}, 13, v{vd}", f"v_lshl_add_u32 v{vd}, v{vt}, 4, v{vd}",
            "s_lshr_b32 s28, s39, 1", "s_lshl_b32 s31, s2, 1", "s_add_u32 s31, s31, s28",
            "s_lshr_b32 s29, s31, 6", "s_lshl_b32 s29, s29, 18", "s_and_b32 s28, s31, 63", "s_lshl_b32 s28, s28, 7", "s_add_u32 s29, s29, s28",
            f"s_add_u32 s29, s29, {WS_YA}", "s_and_b32 s30, s39, 1", "s_lshl_b32 s30, s30, 17", "s_add_u32 s30, s30, s29", "s_add_u32 s31, s30, 65536"]
def ya_prefill(vd, vt, vm4):
    return ya_addr(vd, vt) + [f"v_mov_b32 v{vm4+k}, -1" for k in range(4)] + \
           [f"buffer_store_dwordx4 v[{vm4}:{vm4+3}], v{vd}, s[12:15], s{30+h} offen {SC}" for h in range(2)]

def publish_flag(A, soff, vt, tag, wave, both=False):
    A(f"""
    s_cmp_lg_u32 s20, {wave}
    s_cbranch_scc1 L_pub_skip{tag}
    v_mov_b32 v{vt}, 0
    v_mov_b32 v{vt+1}, s76
    s_mov_b64 exec, 1
    buffer_store_dword v{vt+1}, v{vt}, s[12:15], {soff} offen {SC}
    """)
    if both:
        A(f"""
        s_lshl_b32 s28, s2, 7
        s_add_u32 s28, s28, {WS_FLW}
        buffer_store_dword v{vt+1}, v{vt}, s[12:15], s28 offen {SC}
        """)
    A(f"""
    s_mov_b64 exec, -1
    L_pub_skip{tag}:
    """)
def mktag(A):
    A("s_mul_i32 s76, s76, 0x9E3779B1")
    A("s_add_u32 s76, s76, 0x7F4A7C15")
def arrive(A, tag):
    A(f"""
    s_cmp_lg_u32 s20, 3
    s_cbranch_scc1 L_arr{tag}
    s_atomic_add s77, s[54:55], 0 glc
    L_arr{tag}:
    """)

def coop_prefetch(A, vt):
    A(f"""
    s_lshl_b32 s28, s24, 2
    s_add_u32 s28, s28, s39
    s_lshl_b32 s30, s28, 6
    v_add_u32 v{vt}, s30, v0
    v_mul_u32_u24 v{vt+1}, 0x4925, v{vt}
    v_lshrrev_b32 v{vt+1}, 18, v{vt+1}
    v_mul_u32_u24 v{vt+2}, 14, v{vt+1}
    v_sub_u32 v{vt}, v{vt}, v{vt+2}
    v_lshlrev_b32 v{vt}, 7, v{vt}
    v_mul_u32_u24 v{vt+1}, 3584, v{vt+1}
    v_add_u32 v{vt}, v{vt}, v{vt+1}
    s_and_b32 s29, s23, 1
    s_mul_i32 s29, s29, 1792
    buffer_load_dword v{VDUM}, v{vt}, s[8:11], s29 offen
    s_lshr_b32 s29, s23, 1
    s_lshl_b32 s29, s29, 19
    s_lshl_b32 s30, s28, 13
    s_add_u32 s29, s29, s30
    v_lshlrev_b32 v{vt+2}, 7, v0
    """)
    if env("MP0", 1):
        A(f"""
        s_mul_i32 s31, s23, {28*8192}
        s_add_u32 s31, s31, s30
        s_sub_u32 s31, s31, {64*8192}
        s_cmp_lt_u32 s28, 92
        s_cselect_b32 s31, s31, 0x400000
        s_cmp_lt_u32 s28, 64
        s_cselect_b32 s29, s29, s31
        s_cselect_b32 s16, s40, s48
        s_cselect_b32 s17, s41, s49
        s_cselect_b32 s18, 0x200000, {1792*1024}
        s_mov_b32 s19, 0x00020000
        buffer_load_dword v{VDUM}, v{vt+2}, s[16:19], s29 offen
        """.replace("s_cselect_b32 s18, 0x200000, 1835008", "s_mov_b32 s18, 1835008\n        s_cselect_b32 s18, 0x200000, s18"))
    else:
        A(f"""
        s_cmp_lt_u32 s28, 64
        s_cselect_b32 s29, s29, 0x400000
        buffer_load_dword v{VDUM}, v{vt+2}, s[4:7], s29 offen
        """)
def coop_prefetch2(A, vt):
    srd(A, 16, "s48", "s49", 1792 * 1024)
    A(f"""
    s_lshl_b32 s28, s24, 2
    s_add_u32 s28, s28, s39
    s_mul_i32 s30, s28, 40
    v_add_u32 v{vt}, s30, v0
    v_mul_u32_u24 v{vt+1}, 0x4925, v{vt}
    v_lshrrev_b32 v{vt+1}, 18, v{vt+1}
    v_mul_u32_u24 v{vt+2}, 14, v{vt+1}
    v_sub_u32 v{vt}, v{vt}, v{vt+2}
    v_lshlrev_b32 v{vt}, 7, v{vt}
    v_mul_u32_u24 v{vt+1}, 3584, v{vt+1}
    v_add_u32 v{vt}, v{vt}, v{vt+1}
    s_mul_i32 s30, s28, 23
    v_add_u32 v{vt+1}, s30, v0
    v_min_u32 v{vt+1}, 2559, v{vt+1}
    v_mul_u32_u24 v{vt+2}, 13108, v{vt+1}
    v_lshrrev_b32 v{vt+2}, 16, v{vt+2}
    v_mul_u32_u24 v{vt+3}, 3, v{vt+2}
    v_add_u32 v{vt+1}, v{vt+1}, v{vt+3}
    v_lshlrev_b32 v{vt+1}, 7, v{vt+1}
    v_lshlrev_b32 v{vt+2}, 7, v0
    s_and_b32 s29, s23, 1
    s_mul_i32 s29, s29, 1792
    s_add_u32 s29, s29, {192*3584}
    s_mov_b32 exec_hi, {0 if (LW1 or not env("WT", 1)) else 255}
    s_mov_b32 exec_lo, {1 if (LW1 or not env("WT", 1)) else -1}
    buffer_load_dword v{VDUM}, v{vt}, s[8:11], s29 offen
    s_lshr_b32 s29, s23, 1
    s_lshl_b32 s29, s29, 19
    s_add_u32 s29, s29, 384
    s_mov_b64 exec, {"0x7fffff" if env("XT", 1) else "1"}
    buffer_load_dword v{VDUM}, v{vt+1}, s[4:7], s29 offen
    s_lshl_b32 s28, s2, 2
    s_add_u32 s28, s28, s39
    s_lshl_b32 s28, s28, 11
    s_mov_b64 exec, {os.environ.get("W2M", "1")}
    buffer_load_dword v{VDUM}, v{vt+2}, s[16:19], s28 offen
    s_mov_b64 exec, -1
    """)
def w2_prefetch(vt, piece):
    return ["s_lshl_b32 s28, s24, 2", "s_add_u32 s28, s28, s39", "s_lshl_b32 s28, s28, 14", f"s_add_u32 s28, s28, {piece*8192}",
            f"v_lshlrev_b32 v{vt}, 7, v0", f"buffer_load_dword v{VDUM}, v{vt}, s[16:19], s28 offen"]

def cmul(d, x, y, pk=True):
    P = lambda r: f"v[{r}:{r+1}]"
    assert d != x and d != y
    if pk:
        return [f"v_pk_mul_f32 {P(d)}, {P(x)}, {P(y)} op_sel:[0,0] op_sel_hi:[0,1]",
                f"v_pk_fma_f32 {P(d)}, {P(x)}, {P(y)}, {P(d)} op_sel:[1,1,0] op_sel_hi:[1,0,1] neg_lo:[0,1,0]"]
    return [f"v_mul_f32 v{d}, v{x}, v{y}", f"v_mul_f32 v{d+1}, v{x}, v{y+1}",
            f"v_fma_f32 v{d}, -v{x+1}, v{y+1}, v{d}", f"v_fma_f32 v{d+1}, v{x+1}, v{y}, v{d+1}"]

def kg_common(A, base, T0, Z, WA):
    ar, ai, br, bi, cr, ci, ld, dsk = range(P0, P0 + 8)
    u_ = f2u(LOG2E) & 0xFFFFFF00
    lh = struct.unpack("<f", struct.pack("<I", u_))[0]; ll = LOG2E - lh
    A(f"""
    v_mul_f32 v{T0}, {hex(f2u(lh))}, v{ld}
    v_mul_f32 v{T0+1}, {hex(f2u(ll * math.log(2)))}, v{ld}
    v_exp_f32 v{T0}, v{T0}
    s_nop 0
    v_fma_f32 v{T0}, v{T0}, v{T0+1}, v{T0}
    """)
    round_bf16(A, T0)
    A(f"""
    v_mul_f32 v{Z}, v{T0}, v{ar}
    v_mul_f32 v{Z+1}, v{T0}, v{ai}
    v_mul_f32 v{br}, v{T0}, v{br}
    v_mul_f32 v{bi}, v{T0}, v{bi}
    v_mul_f32 v{Z}, {hex(f2u(LOG2E))}, v{Z}
    v_mul_f32 v{Z+1}, 0.15915494, v{Z+1}
    """)
def kg_waddr(A, base, WA):
    A(f"s_lshl_b32 s28, s39, 13\ns_add_u32 s28, s28, {base}\nv_lshl_add_u32 v{WA}, v0, 2, s28")
    for k in range(1, 16): A(f"v_xor_b32 v{WA+k}, {16*k}, v{WA}")
def kg_raddr(base, d, t):
    o = ["s_lshl_b32 s28, s39, 13", f"s_add_u32 s28, s28, {base}", f"v_and_b32 v{t}, 15, v0", f"v_lshrrev_b32 v{t+1}, 5, v0", f"v_xor_b32 v{t}, v{t}, v{t+1}",
         f"v_and_b32 v{t+1}, 31, v0", f"v_lshlrev_b32 v{t+1}, 8, v{t+1}", f"v_lshl_add_u32 v{d}, v{t}, 4, v{t+1}", f"v_add_u32 v{d}, s28, v{d}"]
    return o + [f"v_xor_b32 v{d+k}, {32*k}, v{d}" for k in range(1, 8)]
def cexp(d, x, t, Z):
    xs = {1: None, 8: hex(f2u(8.0)), 256: hex(f2u(256.0))}[x]
    o = []
    if xs is None: o += [f"v_exp_f32 v{t}, v{Z}", f"v_fract_f32 v{t+1}, v{Z+1}"]
    else: o += [f"v_mul_f32 v{t}, {xs}, v{Z}", f"v_mul_f32 v{t+1}, {xs}, v{Z+1}", f"v_exp_f32 v{t}, v{t}", f"v_fract_f32 v{t+1}, v{t+1}"]
    o += [f"v_cos_f32 v{d}, v{t+1}", f"v_sin_f32 v{d+1}, v{t+1}", f"v_mul_f32 v{d}, v{d}, v{t}", f"v_mul_f32 v{d+1}, v{d+1}, v{t}"]
    return o
KWA = 100
KRA = 116

def gen_kgen_v(A):
    T0, Z, E8, E16, Va, Vb, PKT = 34, 144, 44, 46, 80, 84, 88
    kg_common(A, L_VS, T0, Z, KWA)
    A.extend(cexp(E8, 8, T0, Z))
    A.extend(cmul(E16, E8, E8))
    npk = [0]
    def emit(src, row):
        t = PKT + (npk[0] % 8); npk[0] += 1
        return [f"v_cvt_pk_bf16_f32 v{t}, v{src}, v{src+1}", f"ds_write_b32 v{KWA + (row & 15)}, v{t} offset:{row*256}"]
    A(f"v_mov_b32 v{PKT+7}, 0x00003f80")
    A(f"ds_write_b32 v{KWA}, v{PKT+7}")
    A.extend(emit(E8, 1)); A.extend(emit(E16, 2))
    ev, od = E16, E8
    for j in range(3, 32, 2):
        d1 = Va + 2 * (((j - 3) // 2) % 2)
        d2 = Vb + 2 * (((j - 3) // 2) % 2)
        l1 = cmul(d1, od, E16) + emit(d1, j)
        l2 = (cmul(d2, ev, E16) + emit(d2, j + 1)) if j + 1 < 32 else []
        A.extend(zipm(l1, l2))
        od, ev = d1, d2
    for st in range(8): A(f"ds_read_b128 v[{BF+4*st}:{BF+4*st+3}], v{KRA+st}")

UPK = 192
def kgen_u_lists(rebase):
    T0, Z, E1, G, Lr, Va = 34, 144, 42, 44, 58, 76
    ar, ai, br, bi, cr, ci, ld, dsk = range(P0, P0 + 8)
    cm = lambda d, x, y: cmul(d, x, y, False)
    V = []; Wr = []
    if rebase: V += [f"v_subrev_u32 v{KWA+k}, {rebase}, v{KWA+k}" for k in range(24)]
    V += zipm(cexp(E1, 1, T0 + 2, Z), cexp(G, 256, T0 + 4, Z), cm(Lr, cr, br))
    npk = [0]
    def emit(src, rows):
        t = UPK + npk[0]; npk[0] += 1
        Wr.extend(f"ds_write_b32 v{KWA + (row & 15)}, v{t} offset:{row*256}" for row in rows)
        return [f"v_cvt_pk_bf16_f32 v{t}, v{src}, -v{src+1}"]
    urow = lambda hh, r: 8 * (r >> 2) + 4 * hh + (r & 3)
    lch = emit(Lr, [urow(0, 0)])
    for a_ in range(1, 9): lch += cm(Lr + 2 * a_, Lr + 2 * (a_ - 1), E1) + emit(Lr + 2 * a_, [urow(0, a_)])
    gch = []
    for k in range(2, 8): gch += cm(G + 2 * (k - 1), G + 2 * (k - 2), G)
    V += zipm(lch, gch)
    jobs = [(0, 1, [urow(1, 0), urow(1, 1)]), (2, 1, [urow(1, 2)]), (4, 1, [urow(1, 3), urow(1, 4), urow(1, 5)]), (6, 1, [urow(1, 6)]),
            (8, 1, [urow(1, 7), urow(1, 8)]),
            (0, 2, [urow(0, 9)]), (4, 2, [urow(0, 10)]), (8, 2, [urow(0, 11)]),
            (0, 3, [urow(1, 9)]), (4, 3, [urow(1, 10)]), (8, 3, [urow(1, 11)]),
            (0, 4, [urow(0, 12)]), (8, 4, [urow(0, 13)]), (0, 5, [urow(0, 14)]), (8, 5, [urow(0, 15)]),
            (0, 6, [urow(1, 12)]), (8, 6, [urow(1, 13)]), (0, 7, [urow(1, 14)]), (8, 7, [urow(1, 15)])]
    for k in range(0, len(jobs), 2):
        ls = []
        for q_, (a_, gk, rows) in enumerate(jobs[k:k + 2]):
            d = Va + 4 * q_ + 2 * ((k // 2) % 2)
            ls.append(cm(d, Lr + 2 * a_, G + 2 * (gk - 1)) + emit(d, rows))
        V += zipm(*ls)
    assert npk[0] <= 32
    return V, Wr

def kg_atoms_m():
    at = [[f"ds_read_b128 v[{AF+4*k}:{AF+4*k+3}], v{KRA+k} offset:{L_US - L_VS}", ("tag", ("af", k))] for k in range(8)]
    mm = []
    for st in range(8):
        cin = "0" if st == 0 else f"v[{DK}:{DK+15}]"
        mm.append([("wait", ("af", st)), f"v_mfma_f32_32x32x16_bf16 v[{DK}:{DK+15}], v[{AF+4*st}:{AF+4*st+3}], v[{BF+4*st}:{BF+4*st+3}], {cin}"])
    return at, mm

def kg_atoms_x1():
    T0 = P0
    at = [[f"s_lshr_b32 s30, s39, 1", f"s_mul_i32 s30, s30, {CH_SIZE}", f"s_add_u32 s38, s30, {L_CH}", "s_lshl_b32 s30, s39, 13", f"s_add_u32 s30, s30, {L_VS}", f"v_lshl_add_u32 v{T0}, v0, 4, s30"]]
    at.append(["s_bitcmp1_b32 s39, 0", "s_cselect_b64 exec, -1, 0"] + [f"ds_write_b128 v{T0}, v[{DK+4*q}:{DK+4*q+3}] offset:{512+q*1024}" for q in range(3)] +
              ["s_not_b64 exec, exec", f"ds_write_b128 v{T0}, v[{DK+12}:{DK+15}] offset:{512+3072}", "s_mov_b64 exec, -1", f"v_xor_b32 v{T0}, 8192, v{T0}"])
    return at

def kg_atoms_x2(tag):
    T0 = P0; VEA, VEB = 254, 255
    at = []
    at.append([f"ds_read_b128 v[{DP+4*q}:{DP+4*q+3}], v{T0} offset:{512+q*1024}" for q in range(4)] + [("tag", "dp")])
    for i in [f"v_and_b32 v{T0+4}, 31, v0", f"v_lshrrev_b32 v{T0+1}, 5, v0", f"v_lshlrev_b32 v{T0+2}, 4, v{T0+4}"]: at.append([i])
    at.append([f"s_add_u32 s28, s38, {OFF_E + 4080 - 1024}", f"v_sub_u32 v{VEA}, s28, v{T0+2}"])
    at.append([f"v_lshlrev_b32 v{T0+3}, 9, v{T0+1}"]); at.append([f"v_sub_u32 v{VEA}, v{VEA}, v{T0+3}"])
    at.append([f"s_add_u32 s28, s38, {OFF_E + 4080 - 2560}", f"v_sub_u32 v{VEB}, s28, v{T0+2}"])
    at.append([f"v_lshlrev_b32 v{T0+3}, 10, v{T0+1}"]); at.append([f"v_sub_u32 v{VEB}, v{VEB}, v{T0+3}"])
    at.append([f"v_lshl_add_u32 v{T0}, v0, 3, s38"]); at.append([f"v_mov_b32 v{T0+2}, 0"]); at.append([f"v_mov_b32 v{T0+3}, 0"])
    at.append(["s_lshl_b32 s28, s39, 2", f"s_add_u32 s28, s28, {L_FLAG}", f"v_mov_b32 v{T0+1}, s28"])
    for k in range(16): at.append(([("wait", "dp")] if k == 0 else []) + [f"v_add_f32 v{DK+k}, v{DK+k}, v{DP+k}"])
    at.append(mask("0xaaaaaaaa") + [f"v_cndmask_b32 v{DP}, v{DK+12}, v{DK+13}, s[28:29]", f"v_cndmask_b32 v{DP+1}, v{DK+14}, v{DK+15}, s[28:29]"])
    k_ = lambda r: DK + r
    def half(base, kk, va, off, odd):
        prs = [(8, 7), (6, 5), (4, 3), (2, 1)] if odd else [(7, 6), (5, 4), (3, 2), (1, 0)]
        return [f"v_cvt_pk_bf16_f32 v{base+i}, v{kk[lo]}, v{kk[hi]}" for i, (lo, hi) in enumerate(prs)] + \
               [f"ds_write_b128 v{va}, v[{base}:{base+3}] offset:{off + (OFF_O - OFF_E if odd else 0)}"]
    ev = [([k_(i) for i in range(9)], VEA, 1024), ([k_(9)] * 3 + [k_(10)] * 3 + [k_(11)] * 3, VEA, 0)]
    od = [([k_(12)] * 4 + [DP] + [k_(13)] * 4, VEB, 512), ([k_(14)] * 4 + [DP + 1] + [k_(15)] * 4, VEB, 0)]
    n = 0
    for gi in range(2):
        for o_ in range(2):
            b_ = EX + 4 * n
            at.append(["s_bitcmp1_b32 s39, 0", f"s_cbranch_scc1 L_xo{tag}{n}"] + half(b_, *ev[gi], o_)[:-1] + [("nods", half(b_, *ev[gi], o_)[-1]), f"s_branch L_xd{tag}{n}",
                       f"L_xo{tag}{n}:"] + half(b_, *od[gi], o_) + [f"L_xd{tag}{n}:"])
            n += 1
    at.append(["s_bitcmp0_b32 s39, 0", "s_cselect_b64 s[28:29], -1, 0", "s_mov_b64 exec, s[28:29]",
               f"ds_write_b64 v{T0}, v[{T0+2}:{T0+3}]", "s_and_b64 exec, s[28:29], 15",
               f"ds_write_b64 v{T0}, v[{T0+2}:{T0+3}] offset:{OFF_E+4096}", f"ds_write_b64 v{T0}, v[{T0+2}:{T0+3}] offset:{OFF_O+4096}",
               "s_and_b64 exec, s[28:29], 1", f"ds_write_b16_d16_hi v{T0}, v{EX+3} offset:{OFF_O+4096}",
               "s_mov_b64 exec, -1"])
    at.append([f"v_mov_b32 v{T0+2}, 1", f"ds_write_b32 v{T0+1}, v{T0+2} offset:64"])
    return at

def flag_zero():
    return [[f"v_lshlrev_b32 v{VT1}, 2, v0", f"v_mov_b32 v{VT1+1}, 0", f"v_add_u32 v{VT1}, {L_FLAG}, v{VT1}", f"ds_write_b32 v{VT1}, v{VT1+1}"]]

class LQ:
    def __init__(self, A): self.A = A; self.q = []
    def emit(self, items, tag=None):
        maybe0 = any(isinstance(it, str) and "s_cselect_b64" in it for it in items)
        for it in items:
            if maybe0 and isinstance(it, str):
                self.A(it); continue
            if isinstance(it, tuple):
                if it[0] == "tag": self.q[-1] = it[1]
                elif it[0] == "wait": self.wait(it[1])
                elif it[0] == "nods": self.A(it[1])
                continue
            self.A(it)
            if it.strip().startswith("ds_"): self.q.append(tag)
            if "lgkmcnt(0)" in it: self.q = []
    def wait(self, tag):
        idx = max((k for k, t in enumerate(self.q) if t == tag), default=-1)
        if idx < 0: return
        n = min(len(self.q) - 1 - idx, 15)
        self.A(f"s_waitcnt lgkmcnt({n})")
        self.q = self.q[len(self.q) - n:] if n else []

def spread(atoms, g0, g1):
    pts = [(g, p) for g in range(g0, g1) for p in range(2)]
    tot = sum(len(a_) for a_ in atoms); out = {p: [] for p in pts}; acc = 0
    for a_ in atoms:
        out[pts[min(len(pts) - 1, acc * len(pts) // tot)]].append(a_); acc += len(a_)
    return out

VXO, VWO, VXO2 = 1, 2, 3
VXO3, VXO4 = 242, 243
VXR, VTR = 4, 8
VONE, VHO1, VB1 = 16, 18, 19
VCW, VCR, VSO = 20, 21, 22
VT1 = 28
NR = 3
W1, X1, ACC1, CS = 32, 56, 80, 144
HI = 152
GT, PK, SG = 164, 180, 188
EA, EB = 192, 196
VS, K1r, K3r = 212, 214, 216

def wave_flag(soff, vt):
    return [f"v_mov_b32 v{vt}, 0", f"v_mov_b32 v{vt+1}, s76", "s_mov_b64 exec, 1",
            f"buffer_store_dword v{vt+1}, v{vt}, s[12:15], {soff} offen {SC}", "s_mov_b64 exec, -1"]

def lds_wait(A, name, vaddr, off, vt):
    A(f"""
    {name}:
    ds_read_b32 v{vt}, v{vaddr} offset:{off}
    s_waitcnt lgkmcnt(0)
    v_readfirstlane_b32 s28, v{vt}
    s_cmp_eq_u32 s28, 1
    s_cbranch_scc0 {name}
    """)

def dma_setup(A):
    VT = VT1
    A(f"""
    v_lshrrev_b32 v{VT}, 3, v0
    v_and_b32 v{VT+1}, 7, v0
    v_lshrrev_b32 v{VT+2}, 4, v0
    v_xor_b32 v{VT+3}, v{VT+2}, v{VT+1}
    v_lshlrev_b32 v{VXO}, 10, v{VT}
    v_lshl_add_u32 v{VXO}, v{VT+3}, 4, v{VXO}
    v_xor_b32 v{VXO2}, 64, v{VXO}
    v_add_u32 v{VXO2}, 8192, v{VXO2}
    v_and_b32 v{VT+3}, 15, v0
    v_lshlrev_b32 v{VT}, 2, v{VT+2}
    v_xor_b32 v{VT+3}, v{VT+3}, v{VT}
    v_mul_u32_u24 v{VWO}, 3584, v{VT+2}
    v_lshl_add_u32 v{VWO}, v{VT+3}, 4, v{VWO}
    s_lshl_b32 s25, s21, 17
    s_lshl_b32 s28, s39, 15
    s_add_u32 s25, s25, s28
    s_mul_i32 s26, s39, {16*3584}
    s_lshl_b32 s28, s22, 8
    s_add_u32 s26, s26, s28
    s_lshl_b32 s27, s39, 12
    """)
    if KR:
        A(f"""
        v_add_u32 v{VXO3}, 16384, v{VXO}
        v_add_u32 v{VXO4}, 16384, v{VXO2}
        s_and_b32 s3, s24, 3
        s_mul_i32 s3, s3, {env("KRB", 3)}
        s_mul_i32 s28, s77, {env("KRN", 1)}
        s_add_u32 s3, s3, s28
        s_lshl_b32 s3, s3, 7
        """)
    if MIX:
        A(f"""
        v_and_b32 v{VT+3}, 8, v{VT+3}
        v_lshl_add_u32 v{VWO}, v{VT+3}, 4, v{VWO}
        s_and_b32 s28, s22, 1
        s_lshl_b32 s28, s28, 7
        s_sub_u32 s26, s26, s28
        """)

KORD = [int(x) for x in os.environ.get("KORD", "0,1,2,3,4,5,6,7").split(",")]
def g1_dma(kc, part):
    st = (kc % NS) * STAGE
    kc = KORD[kc]
    if KR:
        return [f"s_add_u32 s37, s3, {128*kc}", "s_and_b32 s37, s37, 0x380", f"s_add_u32 m0, s27, {st + part*1024}",
                "s_add_u32 s31, s25, s37",
                f"buffer_load_dwordx4 v{[VXO, VXO2, 13, 14][part] if False else (VXO if part % 2 == 0 else VXO2)}, s[4:7], s31 offen lds" if part < 2 else
                f"buffer_load_dwordx4 v{VXO3 if part % 2 == 0 else VXO4}, s[4:7], s31 offen lds",
                f"s_mul_i32 s37, s37, 1792", f"s_add_u32 m0, s27, {st + 16384 + part*1024}", "s_add_u32 s37, s37, s26", f"s_add_u32 s37, s37, {4*part*3584}",
                f"buffer_load_dwordx4 v{VWO}, s[8:11], s37 offen lds"]
    return [f"s_add_u32 m0, s27, {st + part*1024}", f"s_add_u32 s31, s25, {128*kc + (part//2)*16384}",
            f"buffer_load_dwordx4 v{VXO if part % 2 == 0 else VXO2}, s[4:7], s31 offen lds",
            f"s_add_u32 m0, s27, {st + 16384 + part*1024}", f"s_add_u32 s37, s26, {(64*kc + 4*part)*3584}",
            f"buffer_load_dwordx4 v{VWO}, s[8:11], s37 offen lds"]

def c_setup(A):
    VT = VT1
    A(f"""
    v_and_b32 v{VT}, 31, v0
    v_lshrrev_b32 v{VT+1}, 5, v0
    v_bfe_u32 v{VT+2}, v0, 1, 3
    v_xor_b32 v{VT+2}, v{VT+2}, v{VT+1}
    s_lshl_b32 s31, s34, 1
    v_xor_b32 v{VT+2}, s31, v{VT+2}
    v_lshlrev_b32 v{VXR}, 7, v{VT}
    v_lshl_add_u32 v{VXR}, v{VT+2}, 4, v{VXR}
    s_lshl_b32 s28, s34, 13
    v_add_u32 v{VXR}, s28, v{VXR}
    v_xor_b32 v{VXR+1}, 32, v{VXR}
    v_xor_b32 v{VXR+2}, 64, v{VXR}
    v_xor_b32 v{VXR+3}, 96, v{VXR}
    v_lshlrev_b32 v{VSO}, 3, v0
    v_bfe_u32 v{VT+2}, v0, 2, 2
    v_lshl_add_u32 v{VTR}, v{VT+1}, 3, v{VT+2}
    v_lshlrev_b32 v{VTR}, 8, v{VTR}
    v_bfe_u32 v{VT+3}, v0, 4, 1
    v_lshl_add_u32 v{VTR}, v{VT+3}, 5, v{VTR}
    v_and_b32 v{VT+3}, 3, v0
    v_lshl_add_u32 v{VTR}, v{VT+3}, 3, v{VTR}
    s_lshl_b32 s31, s35, 1
    v_xor_b32 v{VT+2}, s31, v{VT+2}
    v_lshl_add_u32 v{VTR}, v{VT+2}, 6, v{VTR}
    s_lshl_b32 s31, s34, 12
    s_add_u32 s31, s31, 16384
    v_add_u32 v{VTR}, s31, v{VTR}
    """)
    for i in range(4):
        for ft in range(2):
            if i == 0 and ft == 0: continue
            A(f"v_xor_b32 v{VTR+2*i+ft}, {i*4096 + ft*64}, v{VTR}")
    A(f"""
    v_mov_b32 v{VONE}, 0x3f803f80
    v_mov_b32 v{VONE+1}, 0x3f803f80
    v_lshlrev_b32 v{VHO1}, 4, v0
    s_lshl_b32 s33, s21, 1
    s_add_u32 s33, s33, s34
    s_lshl_b32 s36, s33, 9
    s_add_u32 s36, s36, {WS_STAT}
    s_mul_i32 s32, s33, {2*112*1024}
    s_lshl_b32 s28, s22, 1
    s_add_u32 s28, s28, s35
    """)
    if MIX:
        A("""
        s_add_u32 s28, s28, s35
        s_and_b32 s29, s22, 1
        s_sub_u32 s28, s28, s29
        """)
    A(f"""
    s_lshl_b32 s29, s28, 12
    s_add_u32 s32, s32, s29
    s_add_u32 s32, s32, {WS_HF}
    s_add_u32 s38, s32, {112*1024}
    """)
    if HP:
        A(f"""
        s_mul_i32 s29, s28, 37
        s_lshr_b32 s29, s29, 8
        s_lshl_b32 s33, s33, 2
        s_add_u32 s33, s33, s29
        s_lshl_b32 s33, s33, 7
        s_mul_i32 s29, s29, 7
        s_sub_u32 s29, s28, s29
        s_lshl_b32 s29, s29, 2
        s_add_u32 s33, s33, s29
        s_add_u32 s33, s33, {WS_FLH}
        """)
    else:
        A(f"""
        s_lshl_b32 s33, s33, 5
        s_add_u32 s33, s33, s28
        s_lshl_b32 s33, s33, 7
        s_add_u32 s33, s33, {WS_FLH}
        """)
    A(f"""
    s_lshl_b32 s29, s20, 8
    v_lshl_add_u32 v{VCW}, v0, 2, s29
    v_add_u32 v{VCW}, {L_CS}, v{VCW}
    v_xor_b32 v{VCR}, 256, v{VCW}
    """)
    srd(A, 16, "s46", "s47", 3584)
    A(f"""
    v_mov_b32 v{VB1}, 0
    v_lshlrev_b32 v{VT1}, 1, v0
    s_lshl_b32 s28, s28, 7
    buffer_load_short_d16_hi v{VB1}, v{VT1}, s[16:19], s28 offen
    """)
    for k in range(20): A(f"v_mov_b32 v{EA+k}, 0")
    for k in range(12): A(f"v_add_u32 v{HI+k}, 0x10000, v{VXR+k}")

def c_reads(g):
    kc, i = divmod(g, 4)
    st = kc % NS
    b = (VXR if st < 2 else HI); off = (st % 2) * STAGE
    sl = g % NR
    tr = lambda ft, sec: f"ds_read_b64_tr_b16 v[{W1+8*sl+4*ft+2*sec}:{W1+8*sl+4*ft+2*sec+1}], v{b+4+2*i+ft} offset:{off + sec*1024}"
    xr = lambda tt: f"ds_read_b128 v[{X1+8*sl+4*tt}:{X1+8*sl+4*tt+3}], v{b+i} offset:{off + tt*4096}"
    return [xr(0), tr(0, 0), tr(0, 1), tr(1, 0), tr(1, 1), xr(1)]

def gen_c1(A):
    VT = VT1
    dma_setup(A)
    A(f"""
    s_and_b32 s34, s20, 1
    s_lshr_b32 s35, s20, 1
    s_waitcnt lgkmcnt(0)
    s_add_u32 s42, s42, {WSOFF}
    s_addc_u32 s43, s43, 0
    s_load_dword s76, s[42:43], {WS_EPOCH}
    """)
    vm = VMQ()
    A.st("ka")
    srd(A, 4, "s40", "s41", 2 << 20)
    srd(A, 8, "s44", "s45", 512 * 3584)
    srd(A, 12, "s42", "s43", WS_USED)
    CSF = env("CSF", 0)
    if CSF: c_setup(A); vm.note("b1")
    if env("PFAT", 1) == -1 and OPT_PF: coop_prefetch(A, VT); vm.note("pf", 2)
    for kc in range(NC0):
        for part in range(4): A.extend(g1_dma(kc, part))
        vm.note(kc, 8)
        A.st(f"i{kc}")
        if kc == env("BP", 1): A("s_barrier")
        if kc == 0 and not CSF:
            c_setup(A); vm.note("b1")
        if kc == env("PFAT", 2) and OPT_PF == 1: coop_prefetch(A, VT); vm.note("pf", 2)
        if kc == env("PFAT", 2) and OPT_PF == 2: coop_prefetch2(A, VT); vm.note("pf", 3)
    TW = env("TW", 4)
    if TW:
        A(f"v_lshlrev_b32 v{VT+2}, 20, v0")
        if TW & 1: A("s_mov_b64 exec, 3"); A(f"global_load_dword v{VDUM}, v{VT+2}, s[52:53]"); vm.note("tw")
        if TW & 2: A("s_mov_b64 exec, 1"); A(f"buffer_load_dword v{VDUM}, v{VT+2}, s[12:15], s38 offen"); vm.note("tw")
        if TW & 4: A("s_mov_b64 exec, 1"); A(f"global_load_dword v{VDUM}, v{VT+2}, s[50:51]"); vm.note("tw")
        A("s_mov_b64 exec, -1")
    A.extend(ya_prefill(VT, VT + 1, PK)); vm.note("pre", 2)
    hpre = [f"buffer_store_dwordx4 v[{PK}:{PK+3}], v{VHO1}, s[12:15], s{32 if n < 4 else 38} offen offset:{(n%4)*1024} {SC}" for n in range(8)]
    HPRE = env("HPRE", 0)
    if HPRE == 1: A.extend(hpre); vm.note(2, 8)
    w2_setup(A, VT)
    mpf = [f"s_xor_b32 s28, s2, {env('MPX', 0)}", "s_lshl_b32 s28, s28, 2", "s_add_u32 s28, s28, s39", "s_lshl_b32 s28, s28, 11", f"v_lshlrev_b32 v{VT+2}, 7, v0", f"s_mov_b64 exec, {os.environ.get('MPM', '0xffff')}",
           f"buffer_load_dword v{VDUM}, v{VT+2}, s[16:19], s28 offen {os.environ.get('MPFL', '')}", "s_mov_b64 exec, -1"]
    MPG = env("MPG", 5)
    if MPG == -1: A.extend(mpf); vm.note("mpf")
    A.st("pre")
    A(vm.wait(0)[0] + " lgkmcnt(0)"); A.st("kg"); A("s_barrier")
    A.st("b0")
    T = GT
    lq = LQ(A)
    lq.emit(c_reads(0), 0); lq.emit(c_reads(1), 1)
    mktag(A)
    def big(g, tt, ft):
        sl = g % NR; c = ACC1 + 32 * tt + 16 * ft
        cin = "0" if g == 0 else f"v[{c}:{c+15}]"
        return f"v_mfma_f32_32x32x16_bf16 v[{c}:{c+15}], v[{W1+8*sl+4*ft}:{W1+8*sl+4*ft+3}], v[{X1+8*sl+4*tt}:{X1+8*sl+4*tt+3}], {cin}"
    for g in range(32):
        kc, i = divmod(g, 4); w = W1 + 8 * (g % NR)
        m = lambda d, b_, z: f"v_mfma_f32_4x4x4_16b_bf16 v[{d}:{d+3}], v[{VONE}:{VONE+1}], v[{b_}:{b_+1}], " + ("0" if z else f"v[{d}:{d+3}]")
        o1, o2 = [], []
        if i < 2 and False: pass
        if i in (0, 2) and g < 28 or g in (28, 29):
            o1 = [m(CS, w, g == 0), m(CS + 4, w + 4, g == 0)]; o2 = [m(CS, w + 2, False), m(CS + 4, w + 6, False)]
        A.st(f"g{g}")
        gn = g + 2
        rd = c_reads(PERM(gn))[:] if gn < 32 else []
        rd = c_reads_slot(gn) if gn < 32 else []
        x1, x2 = [], []
        if i == 2 and kc + 1 < 8: x1 += vm.wait(kc + 1) + ["s_barrier"]
        if g == 30:
            x1 += [f"v_permlane32_swap_b32 v{CS}, v{CS+4}", f"v_add_f32 v{CS}, v{CS}, v{CS+4}", f"ds_write_b32 v{VCW}, v{CS}",
                   "s_waitcnt lgkmcnt(0)", "s_barrier", f"ds_read_b32 v{T+2}, v{VCR}"][:None if not NB8 else 3]
            if NB8:
                x1 += ["s_lshl_b32 s28, s20, 2", f"s_add_u32 s28, s28, {L_FLAG+128}", f"v_mov_b32 v{T}, s28", f"v_mov_b32 v{T+1}, 1",
                       f"ds_write_b32 v{T}, v{T+1}", f"v_xor_b32 v{T}, 4, v{T}"]
        if g == STATG: x2 += [f"buffer_load_dwordx2 v[{SG}:{SG+1}], v{VSO}, s[12:15], s36 offen {SC}"]; vm.note("sg")
        if EPE and g == 23: x2 += ep_early(VT)[:9]
        if EPE and g == 24: x2 += ep_early(VT)[9:]; vm.note("ep", 2)
        if g == MPG: x2 += mpf; vm.note("mpf")
        if g == env("MPG2", -5): x2 += ["s_xor_b32 s28, s2, 3"] + mpf[1:]; vm.note("mpf")
        WM = env("WARM", 0)
        if WM and g == env("WARMG", 10):
            x2 += [f"v_lshlrev_b32 v{VT+2}, 20, v0", f"v_lshlrev_b32 v{VT+3}, 7, v0"]
            if WM & 1: x2 += ["s_mov_b64 exec, 0x3fff", f"buffer_load_dword v{VDUM}, v{VT+2}, s[12:15], 0 offen"]; vm.note("wm")
            if WM & 2: x2 += ["s_mov_b64 exec, 3", f"global_load_dword v{VDUM}, v{VT+2}, s[52:53]"]; vm.note("wm")
            if WM & 4: x2 += ["s_mov_b64 exec, 0xff", f"global_load_dword v{VDUM}, v{VT+3}, s[50:51]"]; vm.note("wm")
            x2 += ["s_mov_b64 exec, -1"]
        if HPRE >= 10 and HPRE <= g < HPRE + 8: x2 += [hpre[g - HPRE]]; vm.note("hp")
        if HPRE == 2 and g == 11:
            x2 += [f"v_and_b32 v{VT+2}, 31, v0", f"v_lshlrev_b32 v{VT+2}, 7, v{VT+2}", "s_mov_b64 exec, 0xffffffff", "s_mov_b32 exec_hi, 0",
                   f"buffer_load_dword v{VDUM}, v{VT+2}, s[12:15], s32 offen", f"buffer_load_dword v{VDUM}, v{VT+2}, s[12:15], s38 offen", "s_mov_b64 exec, -1"]; vm.note("hp", 2)
        if g in PFG:
            n_ = 128 // len(PFG); k_ = PFG.index(g)
            x2 += ["s_lshl_b32 s28, s24, 2", "s_add_u32 s28, s28, s39", "s_lshl_b32 s28, s28, 14", f"s_add_u32 s28, s28, {k_*n_*128}", f"v_lshlrev_b32 v{VT+2}, 7, v0"]
            if n_ < 64: x2 += [f"s_mov_b32 exec_lo, {hex((1 << n_) - 1)}", "s_mov_b32 exec_hi, 0"]
            x2 += [f"buffer_load_dword v{VDUM}, v{VT+2}, s[16:19], s28 offen", "s_mov_b64 exec, -1"]; vm.note("l2")
        if g == env("YFG", 16) - 1: x2 += yflag_off()
        if g == env("YFG", 16): x2 += ["s_waitcnt vmcnt(0)"] + wave_flag("s28", VT); vm.q.clear(); vm.note("yf")
        lq.wait(g)
        A(big(g, 0, 0))
        if i == 2: A.st(f"pb{kc+1}")
        lq.emit(x1)
        if i == 2: A.st(f"ab{kc+1}")
        lq.emit(rd[:2], gn)
        A(big(g, 0, 1)); lq.emit(rd[2:4], gn); A.extend(o1)
        A(big(g, 1, 0)); lq.emit(rd[4:], gn)
        A(big(g, 1, 1)); lq.emit(x2); A.extend(o2)
    A.st("loop")
    if NB8:
        lds_wait(A, "L_c_cs", T, 0, T + 1)
        A(f"ds_read_b32 v{T+2}, v{VCR}")
    A.extend(vm.wait("sg", "b1"))
    A(f"""
    v_cmp_ne_u32 vcc, s76, v{SG+1}
    s_cbranch_vccz L_g1_sok
    s_mov_b32 s30, 0
    L_g1_spoll:
    buffer_load_dwordx2 v[{SG}:{SG+1}], v{VSO}, s[12:15], s36 offen {SC}
    s_add_u32 s30, s30, 1
    s_waitcnt vmcnt(0)
    v_cmp_ne_u32 vcc, s76, v{SG+1}
    s_cmp_gt_u32 s30, {SPIN}
    s_cbranch_scc1 L_g1_sok
    s_cbranch_vccnz L_g1_spoll
    L_g1_sok:
    v_mov_b32 v{SG+1}, v{SG}
    s_mov_b32 s28, -1
    s_mov_b32 s29, 0
    v_permlane32_swap_b32 v{SG}, v{SG+1}
    s_waitcnt lgkmcnt(0)
    v_add_f32 v{T+2}, v{T+2}, v{CS}
    """)
    l1 = []
    for tt in range(2):
        l1 += [f"v_and_b32 v{VS+tt}, 0xffff0000, v{SG+tt}", f"v_and_b32 v{T+8+tt}, 0xffff, v{SG+tt}", f"v_rcp_f32 v{T+6+tt}, v{VS+tt}",
               f"v_lshl_or_b32 v{T+8+tt}, v{T+8+tt}, 16, v{T+8+tt}",
               f"v_cndmask_b32 v{EB+8*tt}, 0, v{T+8+tt}, s[28:29]", f"v_cndmask_b32 v{EB+8*tt+1}, 0, v{SG+tt}, s[28:29]",
               f"v_cndmask_b32 v{EB+8*tt+4}, v{T+8+tt}, 0, s[28:29]", f"v_cndmask_b32 v{EB+8*tt+5}, v{SG+tt}, 0, s[28:29]"]
    l2 = [f"v_and_b32 v{T+3}, 0xffff0000, v{T+2}", f"v_sub_f32 v{T+3}, v{T+2}, v{T+3}", f"v_lshrrev_b32 v{T+2}, 16, v{T+2}",
          f"v_and_b32 v{T+4}, 0xffff0000, v{T+3}", f"v_sub_f32 v{T+5}, v{T+3}, v{T+4}", f"v_or_b32 v{EA}, v{T+2}, v{T+4}",
          f"v_lshrrev_b32 v{T+5}, 16, v{T+5}", f"v_or_b32 v{EA+1}, v{T+5}, v{VB1}"]
    A.extend(zipm(l1, l2))
    l3 = []
    for tt in range(2):
        l3.append([f"v_fma_f32 v{T+10+tt}, -v{VS+tt}, v{T+6+tt}, 1.0", f"v_fma_f32 v{T+6+tt}, v{T+10+tt}, v{T+6+tt}, v{T+6+tt}",
                   f"v_mul_f32 v{K1r+tt}, {hex(f2u(GC1))}, v{T+6+tt}", f"v_mul_f32 v{T+10+tt}, v{T+6+tt}, v{T+6+tt}",
                   f"v_mul_f32 v{K3r+tt}, {hex(f2u(GC2))}, v{T+6+tt}", f"v_mul_f32 v{K3r+tt}, v{K3r+tt}, v{T+10+tt}"])
    l3 = zipm(*l3)
    for tt in range(2):
        for ft in range(2):
            c = ACC1 + 32 * tt + 16 * ft
            A(f"v_mfma_f32_32x32x16_bf16 v[{c}:{c+15}], v[{EA}:{EA+3}], v[{EB+8*tt+4*ft}:{EB+8*tt+4*ft+3}], v[{c}:{c+15}]")
            A.extend(l3[3 * (2 * tt + ft):3 * (2 * tt + ft) + 3])
    A.st("gstart")
    for n in range(8):
        tt = n // 4
        if n == env("PGN", 99): A("s_setprio 2")
        c0 = ACC1 + 8 * n
        t0 = GT + 8 * (n % 2)
        if GPK == 1 and n == NPK0:
            A(f"""
            v_mov_b32 v{VT}, {L_FLAG+80}
            L_c_km:
            ds_read_b128 v[{EA}:{EA+3}], v{VT}
            s_waitcnt lgkmcnt(0)
            v_and_b32 v{EA}, v{EA}, v{EA+1}
            v_and_b32 v{EA+2}, v{EA+2}, v{EA+3}
            v_and_b32 v{EA}, v{EA}, v{EA+2}
            s_nop 0
            v_readfirstlane_b32 s28, v{EA}
            s_cmp_eq_u32 s28, 1
            s_cbranch_scc0 L_c_km
            """)
        if GPK == 3:
            P = lambda x: f"v[{x}:{x+1}]"
            DC = 220 + 6 * tt
            if n % 4 == 0:
                for j, src in enumerate((K1r + tt, K1r + tt, K3r + tt, K3r + tt, VS + tt, VS + tt)): A(f"v_mov_b32 v{DC+j}, v{src}")
            for k in range(0, 8, 2): A(f"v_pk_mul_f32 {P(t0+k)}, {P(c0+k)}, {P(c0+k)}")
            for k in range(0, 8, 2): A(f"v_pk_fma_f32 {P(t0+k)}, {P(t0+k)}, {P(DC+2)}, {P(DC)}")
            for k in range(0, 8, 2): A(f"v_pk_mul_f32 {P(t0+k)}, {P(t0+k)}, {P(c0+k)}")
            for k in range(8): A(f"v_exp_f32 v{t0+k}, v{t0+k}")
            for k in range(0, 8, 2): A(f"v_pk_fma_f32 {P(t0+k)}, {P(t0+k)}, {P(DC+4)}, {P(DC+4)}")
            for k in range(8): A(f"v_rcp_f32 v{t0+k}, v{t0+k}")
            for k in range(0, 8, 2): A(f"v_pk_mul_f32 {P(c0+k)}, {P(c0+k)}, {P(t0+k)}")
        elif GPK == 2 or (GPK and n >= NPK0):
            P = lambda x: f"v[{x}:{x+1}]"
            sel = f"op_sel:[0,{tt},{tt}] op_sel_hi:[1,{tt},{tt}]"
            for k in range(0, 8, 2): A(f"v_pk_mul_f32 {P(t0+k)}, {P(c0+k)}, {P(c0+k)}")
            for k in range(0, 8, 2): A(f"v_pk_fma_f32 {P(t0+k)}, {P(t0+k)}, {P(K3r)}, {P(K1r)} {sel}")
            for k in range(0, 8, 2): A(f"v_pk_mul_f32 {P(t0+k)}, {P(t0+k)}, {P(c0+k)}")
            for k in range(8): A(f"v_exp_f32 v{t0+k}, v{t0+k}")
            for k in range(0, 8, 2): A(f"v_pk_fma_f32 {P(t0+k)}, {P(t0+k)}, {P(VS)}, {P(VS)} {sel}")
            for k in range(8): A(f"v_rcp_f32 v{t0+k}, v{t0+k}")
            for k in range(0, 8, 2): A(f"v_pk_mul_f32 {P(c0+k)}, {P(c0+k)}, {P(t0+k)}")
        else:
            for k in range(8): A(f"v_mul_f32 v{t0+k}, v{c0+k}, v{c0+k}")
            for k in range(8): A(f"v_fma_f32 v{t0+k}, v{t0+k}, v{K3r+tt}, v{K1r+tt}")
            for k in range(8): A(f"v_mul_f32 v{t0+k}, v{t0+k}, v{c0+k}")
            for k in range(8): A(f"v_exp_f32 v{t0+k}, v{t0+k}")
            for k in range(8): A(f"v_fma_f32 v{t0+k}, v{t0+k}, v{VS+tt}, v{VS+tt}")
            for k in range(8): A(f"v_rcp_f32 v{t0+k}, v{t0+k}")
            for k in range(8): A(f"v_mul_f32 v{c0+k}, v{c0+k}, v{t0+k}")
        pk = PK + 4 * (n % 2)
        for k in range(4): A(f"v_cvt_pk_bf16_f32 v{pk+k}, v{c0+2*k}, v{c0+2*k+1}")
        A(f"buffer_store_dwordx4 v[{pk}:{pk+3}], v{VHO1}, s[12:15], s{32 if tt == 0 else 38} offen offset:{(n%4)*1024} {SCH}")
        if env("DBL", 0): A(f"buffer_store_dwordx4 v[{pk}:{pk+3}], v{VHO1}, s[12:15], s{32 if tt == 0 else 38} offen offset:{(n%4)*1024}")
    A.st("gend")
    A("s_mov_b32 s37, 0")
    A("s_branch L_gemm2")

def PERM(g): return g
def c_reads_slot(g):
    if g < 28: return c_reads(g)
    i = [0, 2, 1, 3][g - 28]
    r = c_reads(28 + i)
    kc = 7; st = kc % NS; b = HI; off = (st % 2) * STAGE; sl = g % NR
    tr = lambda ft, sec: f"ds_read_b64_tr_b16 v[{W1+8*sl+4*ft+2*sec}:{W1+8*sl+4*ft+2*sec+1}], v{b+4+2*i+ft} offset:{off + sec*1024}"
    xr = lambda tt: f"ds_read_b128 v[{X1+8*sl+4*tt}:{X1+8*sl+4*tt+3}], v{b+i} offset:{off + tt*4096}"
    return [xr(0), tr(0, 0), tr(0, 1), tr(1, 0), tr(1, 1), xr(1)]

def yflag_off():
    return ["s_lshr_b32 s28, s39, 1", "s_lshl_b32 s29, s2, 1", "s_add_u32 s28, s28, s29", "s_and_b32 s29, s39, 1", "s_lshl_b32 s29, s29, 9",
            "s_add_u32 s28, s28, s29", f"s_lshl_b32 s28, s28, {FS}", f"s_add_u32 s28, s28, {WS_FLY}"]
def ring_ready(vt):
    return ["s_lshl_b32 s28, s39, 2", f"s_add_u32 s28, s28, {L_FLAG+16}", f"v_mov_b32 v{vt}, s28", f"v_mov_b32 v{vt+1}, 1", f"ds_write_b32 v{vt}, v{vt+1}"]

def gen_h1(A):
    VT = VT1
    vm = VMQ()
    vm.note("prm", 8)
    A(f"s_add_u32 s42, s42, {WSOFF}\ns_addc_u32 s43, s43, 0\ns_load_dword s76, s[42:43], {WS_EPOCH}")
    srd(A, 4, "s40", "s41", 2 << 20)
    srd(A, 8, "s44", "s45", 512 * 3584)
    srd(A, 12, "s42", "s43", WS_USED)
    if env("CPF", 1): vm.note("cpf")
    dma_setup(A)
    w2_setup(A, VT)
    if env("MPF", 0):
        A(f"""
        s_lshl_b32 s28, s2, 2
        s_add_u32 s28, s28, s39
        s_lshl_b32 s28, s28, 11
        v_lshlrev_b32 v{VT+2}, 7, v0
        s_mov_b64 exec, 0xffff
        buffer_load_dword v{VDUM}, v{VT+2}, s[16:19], s28 offen
        s_mov_b64 exec, -1
        """)
    if env("TLBW", 0):
        A(f"""
        v_lshlrev_b32 v{VT+2}, {env("TLBS", 20)}, v0
        s_mov_b64 exec, {hex((1 << (WS_USED >> env("TLBS", 20))) - 1)}
        buffer_load_dword v{VDUM}, v{VT+2}, s[12:15], 0 offen
        s_mov_b64 exec, 3
        buffer_load_dword v{VDUM}, v{VT+2}, s[16:19], 0 offen
        global_load_dword v{VDUM}, v{VT+2}, s[52:53]
        s_mov_b64 exec, 1
        global_load_dword v{VDUM}, v{VT+2}, s[50:51]
        s_mov_b64 exec, -1
        """)
        vm.note("tlb", 4)
    kg_waddr(A, L_VS, KWA); A.extend(kg_raddr(L_VS, KRA, VT))
    for a_ in flag_zero(): A.extend(a_)
    if env("BP", 1) >= 0: A("s_barrier")
    A.st("pre")
    A.extend(vm.wait("prm"))
    A.st("prm")
    A.label("L_kgen_v")
    gen_kgen_v(A)
    A("s_cmp_eq_u32 s77, 7")
    A("s_cbranch_scc1 L_ln_H2")
    A.st("kg")
    A("s_waitcnt lgkmcnt(0)"); A("s_barrier")
    A.st("b0")
    mktag(A)
    UV0, UW = kgen_u_lists(0)
    UV = kgen_u_lists(L_VS)[0] if U6 else UV0
    ar_, mm_ = kg_atoms_m()
    wts = [2, 3, 3, 3, 3, 3]; cum = 0
    for k in range(7 if NB8 else 8):
        if U6 and k == 6:
            A.extend(UW)
            for a_ in ar_: A(a_[0])
            A.extend(ep_early(VT)); vm.note("ep", 2)
        elif NB8 and k == 6:
            if EPE: A.extend(ep_early(VT)); vm.note("ep", 2)
            for sl in range(env("F6N", 2)): A.extend(wdma(sl, sl))
            vm.note("f", 2 * env("F6N", 2))
        elif k <= 5:
            sl_ = UV[len(UV) * cum // sum(wts):len(UV) * (cum + wts[k]) // sum(wts)]; cum += wts[k]
            if k >= 1 or NC0 == 2:
                pcs = []
                for part in range(4):
                    dd = g1_dma(k + 2, part); pcs += [dd[:len(dd)//2], dd[len(dd)//2:]]
                vm.note(k + 2, 8)
                for q, dd in enumerate(pcs):
                    A.extend(dd); A.extend(sl_[len(sl_) * q // 8:len(sl_) * (q + 1) // 8])
            else: A.extend(sl_)
        else:
            for sl in range(4 * (k - 6), 4 * (k - 6) + 4): A.extend(wdma(sl, sl))
            vm.note("f", 8)
        A.st(f"pi{k+1}")
        A.extend(vm.wait(k + 1))
        A("s_barrier")
        A.st(f"ab{k+1}")
    if U6:
        A("s_waitcnt lgkmcnt(0)")
        for sl in range(8):
            A(mm_[sl][1]); A.extend(wdma(sl, sl))
    if NB8:
        if not U6:
            for sl in range(env("F6N", 2), 8): A.extend(wdma(sl, sl))
        A(f"""
        v_mov_b32 v{VT+2}, {L_FLAG+128}
        L_h_rd:
        ds_read_b128 v[32:35], v{VT+2}
        s_waitcnt lgkmcnt(0)
        v_and_b32 v32, v32, v33
        v_and_b32 v34, v34, v35
        v_and_b32 v32, v32, v34
        s_nop 0
        v_readfirstlane_b32 s28, v32
        s_cmp_eq_u32 s28, 1
        s_cbranch_scc0 L_h_rd
        """)
    A.st("loop")
    HT2 = env("HT2", 0)
    if not HT2 and not (U6 and env("FL8", 0)):
        for sl in range(8, 12): A.extend(wdma(sl, sl))
    if U6: A("s_branch L_h_tail2")
    A.label("L_h_tail")
    A(f"s_setprio {env('PRIOX', 0)}")
    lq = LQ(A)
    ar_, mm_ = kg_atoms_m()
    UE = env("UE", 0)
    if UE: A.extend(lnflag_load(36))
    A.st("t0")
    lq.emit(UW)
    A.st("t1")
    for a_ in ar_: lq.emit(a_)
    if GPK == 2:
        A("s_setprio 0")
        A("s_cmp_eq_u32 s77, 7")
        A("s_cbranch_scc1 L_h_gd2")
        A(f"""
        v_mov_b32 v{VT+2}, {L_FLAG+32}
        L_h_gd:
        s_sleep 1
        ds_read_b128 v[32:35], v{VT+2}
        s_waitcnt lgkmcnt(0)
        v_and_b32 v32, v32, v33
        v_and_b32 v34, v34, v35
        v_and_b32 v32, v32, v34
        s_nop 0
        v_readfirstlane_b32 s28, v32
        s_cmp_eq_u32 s28, 1
        s_cbranch_scc0 L_h_gd
        L_h_gd2:
        """)
        A.extend(lnflag_load(36))
    for a_ in mm_: lq.emit(a_)
    A.st("t2")
    if U6:
        A("s_nop 7"); A("s_nop 3")
        A.label("L_h_tail2")
    for a_ in kg_atoms_x1(): lq.emit(a_)
    A(f"""
    s_lshl_b32 s28, s39, 2
    s_add_u32 s28, s28, {L_FLAG}
    v_mov_b32 v{VT}, s28
    v_mov_b32 v{VT+1}, 1
    ds_write_b32 v{VT}, v{VT+1} offset:80
    v_xor_b32 v{VT+2}, 4, v{VT}
    """)
    HT3 = env('HT3', 1)
    if UE:
        A(f"v_lshlrev_b32 v18, 4, v0")
        A("s_waitcnt vmcnt(0)")
        A(f"""
        v_cmp_ne_u32 vcc, s76, v{LNF}
        s_mov_b32 s37, 0
        s_cbranch_vccnz L_ue_no
        s_mov_b32 s37, 1
        """)
        u_issue(A, 18)
        A.label("L_ue_no")
    if HT2 or HT3: A.extend(lnflag_load(36))
    A.st("t3")
    lds_wait(A, "L_h_x1", VT + 2, 80, 32)
    A.st("t4")
    lq.q = []
    for a_ in kg_atoms_x2("g"): lq.emit(a_)
    A("s_setprio 0")
    if U6 and env("FL8", 0):
        A("s_cmp_eq_u32 s77, 7")
        A("s_cbranch_scc1 L_h_f8")
        A("s_waitcnt lgkmcnt(0)")
        for sl in range(8, 12): A.extend(wdma(sl, sl))
        A.label("L_h_f8")
    DF = env("DF", 0)
    if DF:
        A("s_waitcnt vmcnt(0)")
        if DF == 1: A.extend(ring_ready(VT))
        A("s_cmp_eq_u32 s77, 7")
        A("s_cbranch_scc1 L_h_dr2")
        A(f"""
        v_mov_b32 v{VT+2}, {L_FLAG+32}
        L_h_dr:
        s_sleep 1
        ds_read_b128 v[32:35], v{VT+2}
        s_waitcnt lgkmcnt(0)
        v_and_b32 v32, v32, v33
        v_and_b32 v34, v34, v35
        v_and_b32 v32, v32, v34
        s_nop 0
        v_readfirstlane_b32 s28, v32
        s_cmp_eq_u32 s28, 1
        s_cbranch_scc0 L_h_dr
        L_h_dr2:
        """)
    if not HT2 and not HT3 and GPK != 2: A.extend(lnflag_load(VT))
    A.st("ku")
    A(f"v_lshlrev_b32 v18, 4, v0")
    A("s_waitcnt vmcnt(0)")
    if UE: A("s_cmp_eq_u32 s37, 1"); A("s_cbranch_scc1 L_ut_no")
    RT = env("RT", 6)
    if RT:
        A(f"""
        s_mov_b32 s30, 0
        v_cmp_ne_u32 vcc, s76, v{LNF}
        s_cbranch_vccz L_rt_ok
        L_rt:
        s_sleep {PS}
        buffer_load_dword v{LNF}, v36, s[12:15], 0 offen {SC}
        s_add_u32 s30, s30, 1
        s_waitcnt vmcnt(0)
        v_cmp_ne_u32 vcc, s76, v{LNF}
        s_cmp_ge_u32 s30, {RT}
        s_cbranch_scc1 L_rt_ok
        s_cbranch_vccnz L_rt
        L_rt_ok:
        """)
    u_try(A, 18)
    if HT2:
        A("s_cmp_eq_u32 s77, 7")
        A("s_cbranch_scc1 L_h_nof")
        for sl in range(8, 12): A.extend(wdma(sl, sl))
        A("s_branch L_h_f")
        A.label("L_h_nof")
        A.extend(ring_ready(VT))
        A("s_waitcnt vmcnt(0)")
        A.label("L_h_f")
    else:
        A.extend(ring_ready(VT))
    A.st("gend")
    A("s_branch L_conv")
    A.label("L_ln_H2")
    A("s_waitcnt vmcnt(0) ; RESETSB")
    A("ds_write_b32 v5, v6")
    if EPE: A("s_waitcnt lgkmcnt(0)"); A.extend(ep_early(28))
    A.extend(UV0)
    A(f"""
    v_mov_b32 v30, {L_FLAG+112+(64 if env('LNW', 0) else 0)}
    L_ln_hv:
    ds_read_b128 v[32:35], v30
    s_waitcnt lgkmcnt(0)
    v_and_b32 v32, v32, v33
    v_and_b32 v34, v34, v35
    v_and_b32 v32, v32, v34
    s_nop 0
    v_readfirstlane_b32 s28, v32
    s_cmp_eq_u32 s28, 1
    s_cbranch_scc0 L_ln_hv
    """)
    A("s_branch L_h_tail")

def gen_gemm1(A):
    A(f"""
    s_load_dwordx8 s[56:63], s[0:1], {KA['A_re']}
    s_load_dwordx8 s[64:71], s[0:1], {KA['C_re']}
    """)
    A("s_cmp_lt_u32 s20, 4")
    A("s_cbranch_scc1 L_g1_C")
    param_loads(A, VT1)
    if env("CPF", 1):
        A(f"""
        s_getpc_b64 s[28:29]
        L_pc0:
        s_sub_u32 s28, s28, L_pc0-{KNAME}
        s_subb_u32 s29, s29, 0
        s_lshl_b32 s30, s24, 2
        s_add_u32 s30, s30, s39
        s_mul_i32 s30, s30, 384
        v_lshl_add_u32 v{VT1+2}, v0, 7, s30
        v_min_u32 v{VT1+2}, L_exit-{KNAME}, v{VT1+2}
        s_mov_b64 exec, 7
        global_load_dword v{VDUM}, v{VT1+2}, s[28:29]
        s_mov_b64 exec, -1
        """)
    A("s_branch L_g1_H")
    A.label("L_g1_C")
    A("s_nop 0 ; RESETSB")
    gen_c1(A)
    A.label("L_g1_H")
    A("s_nop 0 ; RESETSB")
    gen_h1(A)


def gen_ln(A):
    Q, R, O, T = 16, 48, 80, 112
    A(f"""
    s_load_dwordx8 s[56:63], s[0:1], {KA['A_re']}
    s_load_dwordx8 s[64:71], s[0:1], {KA['C_re']}
    v_lshrrev_b32 v1, 3, v0
    v_and_b32 v2, 7, v0
    v_lshlrev_b32 v3, 10, v1
    v_lshl_add_u32 v3, v2, 4, v3
    v_lshlrev_b32 v4, 4, v0
    s_lshl_b32 s25, s21, 6
    s_lshl_b32 s28, s20, 3
    s_add_u32 s25, s25, s28
    s_lshl_b32 s36, s25, 3
    s_add_u32 s36, s36, {WS_STAT}
    s_lshl_b32 s25, s25, 10
    s_add_u32 s26, s25, 4096
    s_waitcnt lgkmcnt(0)
    s_add_u32 s42, s42, {WSOFF}
    s_addc_u32 s43, s43, 0
    s_load_dword s76, s[42:43], {WS_EPOCH}
    """)
    srd(A, 4, "s40", "s41", 2 << 20)
    for t in range(8): A(f"buffer_load_dwordx4 v[{R+4*t}:{R+4*t+3}], v4, s[4:7], s{25 + t//4} offen offset:{(t%4)*1024}")
    srd(A, 12, "s42", "s43", WS_USED)
    NLW = 0
    if LW1:
        srd(A, 8, "s44", "s45", 512 * 3584)
        A(f"""
        s_and_b32 s28, s24, 3
        s_lshl_b32 s28, s28, 3
        s_add_u32 s28, s28, s20
        s_mul_i32 s28, s28, 47
        s_and_b32 s29, s23, 1
        s_mul_i32 s29, s29, 1792
        s_add_u32 s29, s29, {192*3584}
        """)
        for j in range(3):
            A(f"""
            s_add_u32 s30, s28, {j*1504}
            v_add_u32 v{T}, s30, v0
            v_mul_u32_u24 v{T+1}, 0x4925, v{T}
            v_lshrrev_b32 v{T+1}, 18, v{T+1}
            v_mul_u32_u24 v{T+2}, 14, v{T+1}
            v_sub_u32 v{T}, v{T}, v{T+2}
            v_lshlrev_b32 v{T}, 7, v{T}
            v_mul_u32_u24 v{T+1}, 3584, v{T+1}
            v_add_u32 v{T}, v{T}, v{T+1}
            s_mov_b32 exec_hi, 0x7fff
            buffer_load_dword v{VDUM}, v{T}, s[8:11], s29 offen
            s_mov_b32 exec_hi, -1
            """)
        NLW = 3
    A(f"""
    v_mov_b32 v5, 0x3f803f80
    v_mov_b32 v14, 0x00003f80
    v_mov_b32 v15, 0x3f800000
    v_lshlrev_b32 v8, 3, v1
    """)
    S1, S2 = Q, Q + 8
    A("s_setprio 2")
    for t in range(8):
        A(f"s_waitcnt vmcnt({7 - t + NLW})")
        for k in range(4):
            r = R + 4 * t + k
            A(f"v_dot2_f32_bf16 v{S1+t}, v{r}, v5, {'0' if k == 0 else f'v{S1+t}'}")
            A(f"v_dot2_f32_bf16 v{S2+t}, v{r}, v{r}, {'0' if k == 0 else f'v{S2+t}'}")
    for r in range(4):
        for S in (S1, S2): A(f"v_permlane32_swap_b32 v{S+r}, v{S+r+4}")
    for r in range(4):
        for S in (S1, S2): A(f"v_add_f32 v{S+r}, v{S+r}, v{S+r+4}")
    for r in range(2):
        for S in (S1, S2): A(f"v_permlane16_swap_b32 v{S+r}, v{S+r+2}")
    for r in range(2):
        for S in (S1, S2): A(f"v_add_f32 v{S+r}, v{S+r}, v{S+r+2}")
    for r in range(2):
        for S in (S1, S2): A(f"v_add_f32_dpp v{S+r}, v{S+r}, v{S+r} row_ror:8 row_mask:0xf bank_mask:0xf")
    A.extend(mask("0xff00ff00"))
    A(f"""
    v_cndmask_b32 v6, v{S1}, v{S1+1}, s[28:29]
    v_cndmask_b32 v7, v{S2}, v{S2+1}, s[28:29]
    s_waitcnt lgkmcnt(0)
    """)
    mktag(A)
    A(f"""
    v_mov_b32 v11, s76
    v_add_f32_dpp v6, v6, v6 quad_perm:[1,0,3,2] row_mask:0xf bank_mask:0xf
    v_add_f32_dpp v7, v7, v7 quad_perm:[1,0,3,2] row_mask:0xf bank_mask:0xf
    v_add_f32_dpp v6, v6, v6 quad_perm:[2,3,0,1] row_mask:0xf bank_mask:0xf
    v_add_f32_dpp v7, v7, v7 quad_perm:[2,3,0,1] row_mask:0xf bank_mask:0xf
    v_add_f32_dpp v6, v6, v6 row_half_mirror row_mask:0xf bank_mask:0xf
    v_add_f32_dpp v7, v7, v7 row_half_mirror row_mask:0xf bank_mask:0xf
    v_mul_f32 v12, {hex(f2u(1/512))}, v6
    v_mul_f32 v13, {hex(f2u(1/512))}, v7
    v_fma_f32 v13, -v12, v12, v13
    v_max_f32 v13, 0, v13
    """)
    round_bf16(A, 13)
    A(f"v_add_f32 v13, {hex(f2u(1e-5))}, v13")
    round_bf16(A, 13)
    A(f"""
    v_sqrt_f32 v13, v13
    v_cvt_pk_bf16_f32 v10, -v12, v13
    s_mov_b32 exec_lo, 0x01010101
    s_mov_b32 exec_hi, 0x01010101
    buffer_store_dwordx2 v[10:11], v8, s[12:15], s36 offen {SC}
    s_mov_b64 exec, -1
    """)
    A.st("b0")
    A("s_setprio 0")
    param_loads(A, T)
    LPF = env("LPF", 0)
    if LPF:
        srd(A, 16, "s48", "s49", 1792 * 1024)
        A(f"""
        s_lshl_b32 s28, s21, 3
        s_add_u32 s28, s28, s20
        s_mul_i32 s28, s28, {56*128}
        v_min_u32 v{T+2}, 55, v0
        v_lshlrev_b32 v{T+2}, 7, v{T+2}
        buffer_load_dword v{VDUM}, v{T+2}, s[16:19], s28 offen
        """)
    A(f"""
    v_and_b32 v13, 0xffff0000, v10
    v_lshlrev_b32 v12, 16, v10
    v_rcp_f32 v5, v13
    s_nop 0
    v_fma_f32 v13, -v13, v5, 1.0
    v_fma_f32 v13, v13, v5, v5
    """)
    for t in range(8):
        A(f"v_readlane_b32 s{56+t}, v12, {8*t}")
        A(f"v_readlane_b32 s{64+t}, v13, {8*t}")
    A(f"""
    v_xor_b32 v5, s20, v2
    v_lshlrev_b32 v6, 10, v0
    v_lshl_add_u32 v6, v5, 4, v6
    """)

    for tp in range(4):
        t0, t1 = 2 * tp, 2 * tp + 1
        for k in range(4):
            for h in range(2):
                e = 2 * k + h
                A(f"v_dot2_f32_bf16 v{T+2*e}, v{R+4*t0+k}, v{14+h}, s{56+t0}")
                A(f"v_dot2_f32_bf16 v{T+2*e+1}, v{R+4*t1+k}, v{14+h}, s{56+t1}")
        if env("LNX", 1):
            for e in range(8): A(f"v_cvt_pk_bf16_f32 v{T+2*e+1}, v{T+2*e}, v{T+2*e+1}")
            for e in range(8):
                A(f"v_lshlrev_b32 v{T+2*e}, 16, v{T+2*e+1}")
                A(f"v_and_b32 v{T+2*e+1}, 0xffff0000, v{T+2*e+1}")
        for e in range(8): A(f"v_pk_mul_f32 v[{T+2*e}:{T+2*e+1}], v[{T+2*e}:{T+2*e+1}], s[{64+t0}:{64+t1}]")
        for e in range(8): A(f"v_cvt_pk_bf16_f32 v{O+4*e+tp}, v{T+2*e}, v{T+2*e+1}")
        if tp == env("LFP", 3):
            w2_setup(A, 28)
            LF = env("LF", 0)
            A("s_cmp_ge_u32 s20, 4")
            A("s_cbranch_scc1 L_ln_nofill")
            for sl in range(LF): A.extend(wdma(sl, sl))
            A.label("L_ln_nofill")
    for e in range(8): A(f"ds_write_b128 v6, v[{O+4*e}:{O+4*e+3}] offset:{e*128}")
    for a_ in flag_zero(): A.extend(a_)
    A.st("g8")
    A(f"""
    s_lshl_b32 s28, s20, 13
    v_lshlrev_b32 v6, 7, v1
    v_lshl_add_u32 v6, v2, 4, v6
    v_add_u32 v6, s28, v6
    v_lshlrev_b32 v7, {7 if XS else 12}, v1
    v_lshl_add_u32 v7, v2, 4, v7
    s_lshl_b32 s26, s20, {13 if XS else 18}
    s_mul_i32 s28, s21, {XS if XS else 128}
    s_add_u32 s26, s26, s28
    s_add_u32 s26, s26, {WS_XNT}
    s_lshl_b32 s33, s21, {FSL}
    s_add_u32 s33, s33, {WS_FLL}
    """)
    for i in range(8): A(f"v_xor_b32 v{8+i}, {16*i}, v6")
    A("s_waitcnt lgkmcnt(0)")
    A("s_barrier")
    for i in range(8): A(f"ds_read_b128 v[{192+4*i}:{192+4*i+3}], v{8+i} offset:{i*1024}")
    for i in range(8):
        A(f"s_waitcnt lgkmcnt({7-i})")
        A(f"s_add_u32 s25, s26, {i*(1024 if XS else 32768)}")
        A(f"buffer_store_dwordx4 v[{192+4*i}:{192+4*i+3}], v7, s[12:15], s25 offen {SC}")
    A.st("loop")
    A(f"""
    s_lshl_b32 s28, s20, 2
    s_add_u32 s28, s28, {L_FLAG+96}
    v_mov_b32 v5, s28
    v_mov_b32 v6, 1
    s_cmp_lt_u32 s20, 4
    s_cbranch_scc1 L_ln_C
    """)
    kg_waddr(A, L_VS, KWA); A.extend(kg_raddr(L_VS, KRA, 28))
    A(f"s_mov_b32 s33, {WS_DUMMY}")
    if env("LNW", 0):
        A("s_waitcnt vmcnt(0)")
        A("ds_write_b32 v5, v6")
        A("v_add_u32 v5, 64, v5")
    else:
        A("s_waitcnt vmcnt(8)")
    A("s_branch L_kgen_v")
    A.label("L_ln_C")
    A.extend(ya_prefill(T + 2, T + 3, T + 4))
    A(f"""
    v_mov_b32 v30, {L_FLAG+96}
    s_waitcnt vmcnt(0)
    ds_write_b32 v5, v6
    """)
    A.extend(yflag_off()); A.extend(wave_flag("s28", 34))
    A(f"""
    L_ln_cs:
    ds_read_b128 v[36:39], v30
    ds_read_b128 v[40:43], v30 offset:16
    s_waitcnt lgkmcnt(0)
    v_and_b32 v36, v36, v37
    v_and_b32 v38, v38, v39
    v_and_b32 v40, v40, v41
    v_and_b32 v42, v42, v43
    v_and_b32 v36, v36, v38
    v_and_b32 v40, v40, v42
    v_and_b32 v36, v36, v40
    s_nop 0
    v_readfirstlane_b32 s28, v36
    s_cmp_eq_u32 s28, 1
    s_cbranch_scc0 L_ln_cs
    """)
    publish_flag(A, "s33", 32, "l", 0)
    A.st("gstart")
    A(f"s_mov_b32 s33, {WS_DUMMY}")
    if EPE: A.extend(ep_early(28))
    TH = env("TH", 0)
    for sl in range(12):
        A.extend(wdma(sl, sl))
        if TH: A(f"s_waitcnt vmcnt({TH})")
    A("s_waitcnt vmcnt(0)")
    for sl in range(12): A.extend(w2tr(sl, sl))
    A(f"""
    v_mov_b32 v28, {L_FLAG+16}
    L_ln_cw:
    ds_read_b128 v[32:35], v28
    s_waitcnt lgkmcnt(0)
    v_and_b32 v32, v32, v33
    v_and_b32 v34, v34, v35
    v_and_b32 v32, v32, v34
    s_nop 0
    v_readfirstlane_b32 s28, v32
    s_cmp_eq_u32 s28, 1
    s_cbranch_scc0 L_ln_cw
    """)
    for sl in range(12): A.extend(wdma(sl, 12 + sl))
    A(f"""
    s_lshl_b32 s28, s20, 8
    s_add_u32 s28, s28, s2
    s_cmp_lg_u32 s28, 255
    s_cbranch_scc1 L_nobump
    v_lshlrev_b32 v28, {FS+1}, v0
    s_mov_b32 s30, 0
    L_bump_poll:
    """)
    for k in range(4):
        A(f"s_mov_b32 s28, {WS_FLY + k*(128 << FS)}")
        A(f"buffer_load_dword v{32+k}, v28, s[12:15], s28 offen {SC}")
    A(f"""
    s_add_u32 s30, s30, 1
    s_waitcnt vmcnt(0)
    v_xor_b32 v32, s76, v32
    v_xor_b32 v33, s76, v33
    v_xor_b32 v34, s76, v34
    v_xor_b32 v35, s76, v35
    v_or3_b32 v32, v32, v33, v34
    v_or_b32 v32, v32, v35
    v_cmp_ne_u32 vcc, 0, v32
    s_cmp_gt_u32 s30, {SPIN}
    s_cbranch_scc1 L_bump_go
    s_cbranch_vccnz L_bump_poll
    L_bump_go:
    s_mov_b32 s28, {WS_EPOCH}
    """)
    A.extend(wave_flag("s28", 28))
    A.label("L_nobump")
    A("s_mov_b32 s37, 1")
    A("s_branch L_gemm2")


def final_addr(A):
    A(f"""
    v_lshrrev_b32 v1, 3, v0
    v_and_b32 v2, 7, v0
    v_lshlrev_b32 v{VOO}, 10, v1
    v_lshl_add_u32 v{VOO}, v2, 4, v{VOO}
    v_lshlrev_b32 v3, 4, v2
    s_lshl_b32 s33, s78, 6
    s_lshl_b32 s28, s20, 3
    s_add_u32 s33, s33, s28
    s_lshl_b32 s33, s33, 10
    s_lshl_b32 s34, s79, 7
    s_add_u32 s33, s33, s34
    """)
def ep_loads():
    o = Asm()
    srd(o, 8, "s50", "s51", 1024)
    o(f"buffer_load_dwordx4 v[{VX}:{VX+3}], v{VOO}, s[4:7], s33 offen")
    o(f"buffer_load_dwordx4 v[{VB2}:{VB2+3}], v3, s[8:11], s34 offen")
    return o.lines


def ep_early(vt):
    return [f"v_lshrrev_b32 v{vt}, 3, v0", f"v_and_b32 v{vt+1}, 7, v0", f"v_lshlrev_b32 v{vt}, 10, v{vt}", f"v_lshlrev_b32 v{vt+1}, 4, v{vt+1}",
            f"v_add_u32 v{vt}, v{vt}, v{vt+1}", "s_lshl_b32 s29, s78, 6", "s_lshl_b32 s28, s20, 3", "s_add_u32 s29, s29, s28", "s_lshl_b32 s29, s29, 10",
            "s_lshl_b32 s30, s79, 7", "s_add_u32 s29, s29, s30", "s_mov_b32 s8, s50", "s_mov_b32 s9, s51", "s_mov_b32 s10, 1024", "s_mov_b32 s11, 0x00020000",
            f"buffer_load_dwordx4 v[{VX}:{VX+3}], v{vt}, s[4:7], s29 offen", f"buffer_load_dwordx4 v[{VB2}:{VB2+3}], v{vt+1}, s[8:11], s30 offen"]

def gen_gemm2(A):
    VHO, VTR2, VP, VT = 13, 14, 18, 22
    ACC, W, H = ACC2, W2R, HR
    if PRIO_G: A(f"s_setprio {PRIO_G}")
    A("s_mov_b32 s22, s33")
    final_addr(A)
    for k in range(4): A(f"v_mov_b32 v{VTR2+k}, v{VTL+k}")
    A(f"""
    v_lshlrev_b32 v{VHO}, 4, v0
    v_lshrrev_b32 v{VT}, 5, v0
    v_xor_b32 v{VT}, v{VT}, v2
    v_and_b32 v{VP}, 31, v0
    v_lshlrev_b32 v{VP}, 8, v{VP}
    v_lshl_add_u32 v{VP}, v{VT}, 4, v{VP}
    v_add_u32 v{VP}, s73, v{VP}
    v_xor_b32 v{VP+1}, 32, v{VP}
    v_xor_b32 v{VP+2}, 64, v{VP}
    v_xor_b32 v{VP+3}, 96, v{VP}
    s_mul_i32 s24, s78, {2*112*1024}
    s_mul_i32 s28, s20, {28*1024}
    s_add_u32 s24, s24, s28
    s_add_u32 s24, s24, {WS_HF}
    s_add_u32 s25, s24, {112*1024}
    s_mul_i32 s26, s20, {1 if HP else 7}
    s_lshl_b32 s28, s78, {2 if HP else 5}
    s_add_u32 s26, s26, s28
    s_lshl_b32 s26, s26, 7
    s_add_u32 s26, s26, {WS_FLH}
    v_min_u32 v{VT}, 6, v2
    v_lshlrev_b32 v{VT}, {2 if HP else 7}, v{VT}
    s_lshl_b32 s28, s20, 2
    s_add_u32 s28, s28, {L_FLAG+16}
    v_mov_b32 v{ACC+4}, s28
    v_mov_b32 v{ACC+5}, 1
    ds_write_b32 v{ACC+4}, v{ACC+5} offset:16
    s_mov_b32 s30, 0
    s_cmp_eq_u32 s37, 1
    s_cbranch_scc1 L_g2_poll
    """)
    A.st("prew")
    A("s_waitcnt vmcnt(0)")
    A.extend(wave_flag("s22", ACC))
    A.st("p2bar")
    A(f"""
    L_g2_rr:
    ds_read_b32 v{ACC+5}, v{ACC+4}
    s_waitcnt lgkmcnt(0)
    v_readfirstlane_b32 s28, v{ACC+5}
    s_cmp_eq_u32 s28, 1
    s_cbranch_scc0 L_g2_rr
    """)
    for sl in range(3): A.extend(w2tr(sl, sl, VTR2))
    for sl in range(12):
        left = min(12, sl + 3) - sl - 1
        A(f"s_waitcnt lgkmcnt({4*left})")
        if sl + 3 < 12: A.extend(w2tr(sl + 3, sl + 3, VTR2))
        if EP and sl == 12 - EP: A(f"buffer_load_dword v{ACC+2}, v{VT}, s[12:15], s26 offen {SC}")
        A.extend(wdma(sl, 12 + sl))
    if EP:
        A(f"""
        s_waitcnt vmcnt({2*EP})
        v_cmp_ne_u32 vcc, s76, v{ACC+2}
        s_cbranch_vccz L_g2_go
        """)
    A.st("s5")
    A.label("L_g2_poll")
    if PG: A(f"s_sleep {PG}")
    A(f"""
    buffer_load_dword v{ACC+2}, v{VT}, s[12:15], s26 offen {SC}
    s_add_u32 s30, s30, 1
    s_waitcnt vmcnt(0)
    v_cmp_ne_u32 vcc, s76, v{ACC+2}
    s_cmp_gt_u32 s30, {SPIN}
    s_cbranch_scc1 L_g2_go
    s_cbranch_vccnz L_g2_poll
    """)
    A.label("L_g2_go")
    vm = VMQ()
    for sl in range(12 - EP, 12): vm.note(("w", 12 + sl), 2)
    A.st("s6")
    def hload(kp):
        sl = kp % HD
        vm.note(("h", kp), 2)
        return koff("s31", ORDER[kp]) + ["s_add_u32 s27, s31, s24", "s_add_u32 s31, s31, s25",
                                  f"buffer_load_dwordx4 v[{H+8*sl}:{H+8*sl+3}], v{VHO}, s[12:15], s27 offen {SCL}",
                                  f"buffer_load_dwordx4 v[{H+8*sl+4}:{H+8*sl+7}], v{VHO}, s[12:15], s31 offen {SCL}"]
    if env("DYN", 0):
        free = [H + 8 * i for i in range(HD)]
        hb, wb = {}, {k: W + 8 * k for k in range(12)}
        lq = LQ(A)
        nh = [0]; nt = [12]
        MAXH = env("MAXH", 16)
        def hl(kp):
            r = free.pop(0); hb[kp] = r; vm.note(("h", kp), 2)
            A.extend(koff("s31", kp) + ["s_add_u32 s27, s31, s24", "s_add_u32 s31, s31, s25",
                     f"buffer_load_dwordx4 v[{r}:{r+3}], v{VHO}, s[12:15], s27 offen {SCL}",
                     f"buffer_load_dwordx4 v[{r+4}:{r+7}], v{VHO}, s[12:15], s31 offen {SCL}"])
        def tl(k):
            r = free.pop(0); wb[k] = r
            A.extend(vm.wait(("w", k)))
            a_ = slot_addr((k - 12) % 12); hi = a_ >> 16; a_ &= 0xffff
            lq.emit([f"ds_read_b64_tr_b16 v[{r+4*db+2*sec}:{r+4*db+2*sec+1}], v{VTR2+2*hi+db} offset:{a_+sec*1024}" for db in range(2) for sec in range(2)], ("t", k))
        for kp in range(HD): hl(kp); nh[0] += 1
        if PRIO_G: A(f"s_setprio {env('PRIOG2', 0)}")
        def mfm(kp, tb, db):
            c = ACC + 32 * tb + 16 * db
            cin = "0" if kp == 0 else f"v[{c}:{c+15}]"
            return f"v_mfma_f32_32x32x16_bf16 v[{c}:{c+15}], v[{wb[kp]+4*db}:{wb[kp]+4*db+3}], v[{hb[kp]+4*tb}:{hb[kp]+4*tb+3}], {cin}"
        f3 = [24]
        for kp in range(24):
            lq.wait(("t", kp))
            A.extend(vm.wait(("h", kp)))
            if kp in (4, 9, 14, 19): A.st(f"k{kp}")
            A(mfm(kp, 0, 0))
            if kp >= 1: free.extend([hb[kp - 1], wb[kp - 1]])
            ahead = env("TAH", 3) if kp < 20 else 4
            while nt[0] < 28 and nt[0] <= kp + ahead and free and (nt[0] < 24 or nt[0] < f3[0]): tl(nt[0]); nt[0] += 1
            A(mfm(kp, 0, 1))
            if nh[0] < 28 and len(free) > 1 and nh[0] - kp < MAXH: hl(nh[0]); nh[0] += 1
            A(mfm(kp, 1, 0))
            if nh[0] < 28 and len(free) > 1 and nh[0] - kp < MAXH: hl(nh[0]); nh[0] += 1
            if f3[0] < 28 and f3[0] - 12 <= kp + 1 and f3[0] - 12 < nt[0] - 1:
                lq.wait(("t", f3[0] - 12))
                A.extend(wdma(f3[0] - 24, f3[0])); vm.note(("w", f3[0]), 2); f3[0] += 1
            if kp == env("SIGK", 19):
                lq.emit(["s_lshl_b32 s28, s20, 2", f"s_add_u32 s28, s28, {L_FLAG+48}", f"v_mov_b32 v{VT}, s28", f"v_mov_b32 v{VHO}, 1", f"ds_write_b32 v{VT}, v{VHO}"])
                assert nh[0] == 28
            A(mfm(kp, 1, 1))
            if kp == 0: A.st("k0")
        assert nh[0] == 28 and nt[0] == 28, (nh, nt)
        pw = lambda tb, db: [f"ds_write_b128 v{VP+q}, v[{ACC+32*tb+16*db+4*q}:{ACC+32*tb+16*db+4*q+3}] offset:{tb*32768+db*128}" for q in range(4)]
        A("s_waitcnt lgkmcnt(0)")
        A.extend(vm.wait(("h", 27)))
        prev = []
        for tb in range(2):
            for db in range(2):
                for j, kp in enumerate(range(24, 28)):
                    A(mfm(kp, tb, db))
                    if j >= 1 and prev: A.extend(prev[:2]); prev = prev[2:]
                A.extend(prev); prev = pw(tb, db)
        A.st("s7")
        A.extend(prev)
        A("s_waitcnt vmcnt(0) lgkmcnt(0)")
        A("s_branch L_final")
        return
    H0 = env("H0", 9)
    for kp in range(H0): A.extend(hload(kp))
    nh = [H0]
    def more(kp, n):
        for _ in range(n):
            if nh[0] < 28 and nh[0] <= kp - 1 + HD:
                A.extend(hload(nh[0])); nh[0] += 1
    if PRIO_G: A(f"s_setprio {env('PRIOG2', 0)}")
    inring = lambda k: ORDER[k] >= 12
    wset = lambda k: ((k % 2) if k < 24 else k - 24) if inring(k) else ORDER[k]
    slot_of = lambda k: (ORDER[k] - 12) % 12
    for kp in range(28 - TS):
        nx = kp + 1
        if TS and kp >= 20 and kp < 24: nx = kp + 4
        if TS and kp >= 24: nx = 99
        if inring(kp): A("s_waitcnt lgkmcnt(0)")
        A.extend(vm.wait(("h", kp)))
        if kp in (4, 9, 14, 19): A.st(f"k{kp}")
        b = W + 8 * wset(kp); sl = kp % HD
        mf = []
        for tb in range(2):
            for db in range(2):
                c = ACC + 32 * tb + 16 * db
                cin = "0" if kp == 0 else f"v[{c}:{c+15}]"
                mf.append(f"v_mfma_f32_32x32x16_bf16 v[{c}:{c+15}], v[{b+4*db}:{b+4*db+3}], v[{H+8*sl+4*tb}:{H+8*sl+4*tb+3}], {cin}")
        A(mf[0])
        if nx < 28 and inring(nx):
            A.extend(vm.wait(("w", ORDER[nx])))
            A.extend(w2tr(slot_of(nx), wset(nx), VTR2))
        A(mf[1])
        more(kp, 1)
        A(mf[2])
        more(kp, 1)
        if 12 <= ORDER[kp] < 16:
            A.extend(wdma(ORDER[kp] - 12, ORDER[kp] + 12)); vm.note(("w", ORDER[kp] + 12), 2)
        if kp == 20 and not EPE:
            A.extend(ep_loads()); vm.note("ep", 2)
        if kp == env("SIGK", 19):
            A(f"""
            s_lshl_b32 s28, s20, 2
            s_add_u32 s28, s28, {L_FLAG+48}
            v_mov_b32 v{VT}, s28
            v_mov_b32 v{W}, 1
            ds_write_b32 v{VT}, v{W}
            """)
        A(mf[3])
        if kp == 0: A.st("k0")
    pw = lambda tb, db: [f"ds_write_b128 v{VP+q}, v[{ACC+32*tb+16*db+4*q}:{ACC+32*tb+16*db+4*q+3}] offset:{tb*32768+db*128}" for q in range(4)]
    if TS:
        A("s_waitcnt lgkmcnt(0)")
        A.extend(vm.wait(("h", 27)))
        prev = []
        for tb in range(2):
            for db in range(2):
                c = ACC + 32 * tb + 16 * db
                for j, kp in enumerate(range(28 - TS, 28)):
                    b_ = W + 8 * wset(kp); sl = kp % HD
                    A(f"v_mfma_f32_32x32x16_bf16 v[{c}:{c+15}], v[{b_+4*db}:{b_+4*db+3}], v[{H+8*sl+4*tb}:{H+8*sl+4*tb+3}], v[{c}:{c+15}]")
                    if j >= 1 and prev: A.extend(prev[:2]); prev = prev[2:]
                A.extend(prev); prev = pw(tb, db)
        A.st("s7")
        A.extend(prev)
    else:
        A.st("s7")
        for tb in range(2):
            for db in range(2): A.extend(pw(tb, db))
    A("s_waitcnt vmcnt(0) lgkmcnt(0)")
    A("s_branch L_final")


def gen_conv(A):
    if PRIO_C: A(f"s_setprio {PRIO_C}")
    VTA, VF = 32, 36
    VXN, VBW, VOWN, VPAR = 37, 38, 39, 40
    T0 = 42
    dsk = P0 + 7
    ACC = 48; FB = [80, 112]; TB = [144, 208]
    XN = 196
    final_addr(A)
    A(f"""
    s_mov_b32 s21, s39
    s_lshr_b32 s35, s21, 1
    s_and_b32 s36, s21, 1
    s_mul_i32 s38, s35, {CH_SIZE}
    s_add_u32 s38, s38, {L_CH}
    s_lshl_b32 s27, s21, 13
    s_add_u32 s27, s27, {L_ST2}
    s_xor_b32 s32, s27, {ST2}
    v_and_b32 v{T0}, 15, v0
    v_lshrrev_b32 v{T0+1}, 4, v0
    v_and_b32 v{T0+2}, 1, v0
    v_mul_u32_u24 v{T0+2}, {OFF_O + 2 - OFF_E}, v{T0+2}
    s_lshl_b32 s31, s36, 8
    s_sub_u32 s31, s38, s31
    s_add_u32 s29, s31, {OFF_O + 2*2032 - 512 - 192}
    v_lshlrev_b32 v{T0+3}, 1, v{T0}
    v_sub_u32 v{VTA}, s29, v{T0+3}
    v_lshl_add_u32 v{VTA}, v{T0+1}, 4, v{VTA}
    v_sub_u32 v{VTA}, v{VTA}, v{T0+2}
    v_subrev_u32 v{VTA+1}, 1024, v{VTA}
    v_subrev_u32 v{VTA+2}, 2048, v{VTA}
    v_subrev_u32 v{VTA+3}, 3072, v{VTA}
    """)
    def freads(rr, fb): return [f"ds_read_b128 v[{fb+4*m}:{fb+4*m+3}], v{VF} offset:{512*m + 64*(3-rr)}" for m in range(8)]
    def treads(rr, tb):
        o = []
        for i in range(8):
            off = 128 * (1 - (i & 1)) + 16 * (3 - rr)
            o.append(f"ds_read2_b32 v[{tb+4*i}:{tb+4*i+1}], v{VTA+i//2} offset0:{off} offset1:{off+1}")
            o.append(f"ds_read2_b32 v[{tb+4*i+2}:{tb+4*i+3}], v{VTA+i//2} offset0:{off+2} offset1:{off+3}")
        return o
    A(f"""
    v_lshl_add_u32 v19, v0, 4, s38
    s_add_u32 s29, s31, {480 - 192}
    v_lshlrev_b32 v{VF}, 5, v{T0}
    v_lshl_add_u32 v{VF}, v{T0+1}, 4, v{VF}
    v_add_u32 v{VF}, s29, v{VF}
    v_lshlrev_b32 v{VXN}, 5, v{T0}
    v_lshl_add_u32 v{VXN}, v{T0+1}, 3, v{VXN}
    v_add_u32 v{VBW}, s27, v{VXN}
    s_lshl_b32 s28, s36, 11
    s_add_u32 s28, s28, s38
    v_add_u32 v{VXN}, s28, v{VXN}
    v_lshl_add_u32 v{VOWN}, v0, 4, s27
    v_lshl_add_u32 v{VPAR}, v0, 4, s32
    v_mov_b32 v13, 1
    s_lshl_b32 s29, s21, 2
    s_add_u32 s29, s29, {L_FLAG}
    v_mov_b32 v14, s29
    s_xor_b32 s29, s29, 4
    v_mov_b32 v15, s29
    v_lshlrev_b32 v18, 4, v0
    """)
    A(f"""
    L_cv_ex:
    ds_read_b32 v16, v15 offset:64
    s_waitcnt lgkmcnt(0)
    v_readfirstlane_b32 s28, v16
    s_cmp_eq_u32 s28, 1
    s_cbranch_scc0 L_cv_ex
    """)
    A.extend(treads(0, TB[0]))
    A("s_cmp_eq_u32 s37, 1")
    A("s_cbranch_scc1 L_cv_uok")
    if env("HT2", 0): A("s_waitcnt vmcnt(0)"); A.extend(ring_ready(20))
    u_spin(A, 20, 18)
    A.label("L_cv_uok")
    A(f"s_waitcnt vmcnt({8 if env('HT2', 0) else 0})")
    if not UDMA:
        for k in range(4): A(f"ds_write_b128 v19, v[{XL+4*k}:{XL+4*k+3}] offset:{512 + k*1024}")
    A.extend(freads(0, FB[0]))
    A.st("s4")
    if GPK == 1:
        A(f"""
        v_mov_b32 v17, {L_FLAG+32}
        L_cv_gd:
        ds_read_b128 v[20:23], v17
        s_waitcnt lgkmcnt(0)
        v_and_b32 v20, v20, v21
        v_and_b32 v22, v22, v23
        v_and_b32 v20, v20, v22
        s_nop 0
        v_readfirstlane_b32 s28, v20
        s_cmp_eq_u32 s28, 1
        s_cbranch_scc0 L_cv_gd
        """)
    A.st("s5")
    for rp in range(4):
        fb, tb = FB[rp % 2], TB[rp % 2]
        mm = []
        for i in range(8):
            for j in range(i, 8):
                cin = "0" if (rp == 0 and i == 0) else f"v[{ACC+4*j}:{ACC+4*j+3}]"
                mm.append(f"v_mfma_f32_16x16x32_bf16 v[{ACC+4*j}:{ACC+4*j+3}], v[{tb+4*i}:{tb+4*i+3}], v[{fb+4*(j-i)}:{fb+4*(j-i)+3}], {cin}")
        if rp == 1:
            if env("HT2", 0): A("s_waitcnt vmcnt(0)"); A.extend(ring_ready(20))
            if not EPE: A.extend(ep_loads())
        if HT and rp == env("HTP", 3):
            A(f"""
            s_lshl_b32 s28, s24, 2
            s_add_u32 s28, s28, s21
            s_mul_i32 s28, s28, {56*128}
            s_mul_i32 s29, s23, {8*112*1024}
            s_add_u32 s28, s28, s29
            s_add_u32 s28, s28, {WS_HF}
            v_min_u32 v{T0}, 55, v0
            v_lshlrev_b32 v{T0}, 7, v{T0}
            buffer_load_dword v20, v{T0}, s[12:15], s28 offen {SC}
            """)
        if rp == 0:
            o = []
            for j in range(8): o += [f"s_waitcnt lgkmcnt({7-j})", mm[j]]
            mm = o + interleave(mm[8:], freads(1, FB[1]) + treads(1, TB[1]), 0, 22)
        else:
            A("s_waitcnt lgkmcnt(0)")
            if rp < 3: mm = interleave(mm, freads(rp + 1, FB[(rp + 1) % 2]) + treads(rp + 1, TB[(rp + 1) % 2]), 0, 26)
            else: mm = interleave(mm, [f"ds_read_b64 v[{XN+2*a_}:{XN+2*a_+1}], v{VXN} offset:{512 + a_*512}" for a_ in range(4)], 0, 8)
        A.extend(mm)
    A.st("s6")
    A("s_cmp_eq_u32 s36, 1")
    A("s_cbranch_scc1 L_cv_x1")
    for a_ in range(4): A(f"ds_write_b128 v{VOWN}, v[{ACC+16+4*a_}:{ACC+16+4*a_+3}] offset:{4096 + a_*1024}")
    A("ds_write_b32 v14, v13")
    A("s_branch L_cv_out")
    A.label("L_cv_x1")
    A("s_nop 7")
    for a_ in range(4): A(f"ds_write_b128 v{VOWN}, v[{ACC+4*a_}:{ACC+4*a_+3}] offset:{4096 + a_*1024}")
    A("ds_write_b32 v14, v13")
    for k in range(16): A(f"v_mov_b32 v{ACC+k}, v{ACC+16+k}")
    A.label("L_cv_out")
    A(f"""
    """)
    A.extend(ya_addr(41, T0))
    A(f"""
    v_mov_b32 v{T0+2}, 0xfffffffe
    s_waitcnt lgkmcnt(5)
    """)
    t = 80; z = 96; YP = 112
    for k in range(8):
        A(f"v_lshlrev_b32 v{t+2*k}, 16, v{XN+k}")
        A(f"v_and_b32 v{t+2*k+1}, 0xffff0000, v{XN+k}")
    for k in range(16): A(f"v_fma_f32 v{ACC+k}, v{t+k}, v{dsk}, v{ACC+k}")
    A.label("L_cv_ps1")
    A(f"""
    ds_read_b32 v16, v15
    s_waitcnt lgkmcnt(0)
    v_readfirstlane_b32 s28, v16
    s_cmp_eq_u32 s28, 1
    s_cbranch_scc0 L_cv_ps1
    """)
    for a_ in range(4): A(f"ds_read_b128 v[{YP+4*a_}:{YP+4*a_+3}], v{VPAR} offset:{4096 + a_*1024}")
    for a_ in range(4):
        A("s_waitcnt lgkmcnt(3)")
        for k in range(4): A(f"v_add_f32 v{ACC+4*a_+k}, v{ACC+4*a_+k}, v{YP+4*a_+k}")
        for k in range(2): A(f"v_cvt_pk_bf16_f32 v{z+2*a_+k}, v{ACC+4*a_+2*k}, v{ACC+4*a_+2*k+1}")
        for k in range(2): A(f"v_min_u32 v{z+2*a_+k}, v{z+2*a_+k}, v{T0+2}")
        A(f"ds_write_b64 v{VBW}, v[{z+2*a_}:{z+2*a_+1}] offset:{a_*512}")
    for h in range(2): A(f"ds_read_b128 v[{t+4*h}:{t+4*h+3}], v{VOWN} offset:{h*1024}")
    for h in range(2):
        A(f"s_waitcnt lgkmcnt({1-h})")
        A(f"buffer_store_dwordx4 v[{t+4*h}:{t+4*h+3}], v41, s[12:15], s{30+h} offen {SC}")
    Y = 160
    A(f"""
    v_lshlrev_b32 v{T0}, 8, v1
    v_lshl_add_u32 v{T0}, v2, 4, v{T0}
    s_lshl_b32 s28, s79, 5
    s_add_u32 s28, s28, s78
    s_lshl_b32 s28, s28, 13
    s_lshl_b32 s29, s21, 11
    s_add_u32 s28, s28, s29
    s_add_u32 s28, s28, {WS_YA}
    v_lshlrev_b32 v{T0+1}, 8, v2
    v_lshl_add_u32 v{T0+1}, v2, 4, v{T0+1}
    v_lshl_add_u32 v{T0+1}, v1, 2, v{T0+1}
    v_add_u32 v{T0+1}, s27, v{T0+1}
    v_mov_b32 v{T0+3}, 0x05040100
    v_mov_b32 v{T0+4}, 0x07060302
    s_mov_b32 s30, 0
    """)
    A.st("s7")
    A(f"""
    v_mov_b32 v17, {L_FLAG+48}
    s_setprio {env("PW", 1)}
    L_cv_w19:
    s_sleep {env("SW19", 2)}
    ds_read_b128 v[20:23], v17
    s_waitcnt lgkmcnt(0)
    v_and_b32 v20, v20, v21
    v_and_b32 v22, v22, v23
    v_and_b32 v20, v20, v22
    s_nop 0
    v_readfirstlane_b32 s29, v20
    s_cmp_eq_u32 s29, 1
    s_cbranch_scc0 L_cv_w19
    L_cv_poll2:
    buffer_load_dwordx4 v[{Y}:{Y+3}], v{T0}, s[12:15], s28 offen {SC}
    buffer_load_dwordx4 v[{Y+4}:{Y+7}], v{T0}, s[12:15], s28 offen offset:128 {SC}
    s_waitcnt vmcnt(0)
    v_max_u32 v{Y+8}, v{Y}, v{Y+1}
    v_max3_u32 v{Y+8}, v{Y+8}, v{Y+2}, v{Y+3}
    v_max3_u32 v{Y+8}, v{Y+8}, v{Y+4}, v{Y+5}
    v_max3_u32 v{Y+8}, v{Y+8}, v{Y+6}, v{Y+7}
    v_cmp_eq_u32 vcc, -1, v{Y+8}
    s_cbranch_vccz L_cv_got
    s_sleep 4
    s_add_u32 s30, s30, 1
    s_cmp_lt_u32 s30, {SPIN}
    s_cbranch_scc1 L_cv_poll2
    """)
    A.label("L_cv_got")
    A.st("got")
    for k in range(4):
        A(f"v_perm_b32 v{Y+8+2*k}, v{Y+4+k}, v{Y+k}, v{T0+3}")
        A(f"v_perm_b32 v{Y+9+2*k}, v{Y+4+k}, v{Y+k}, v{T0+4}")
    for i in range(8): A(f"ds_write_b32 v{T0+1}, v{Y+8+i} offset:{i*32}")
    A("s_waitcnt lgkmcnt(0)")


def gen_final(A):
    P = 32
    A(f"""
    v_lshlrev_b32 v13, 1, v2
    v_xor_b32 v13, v13, v1
    v_lshlrev_b32 v13, 4, v13
    v_lshl_add_u32 v13, v1, 8, v13
    s_and_b32 s28, s20, 3
    s_lshl_b32 s28, s28, 11
    s_lshr_b32 s29, s20, 2
    s_lshl_b32 s29, s29, 15
    s_add_u32 s28, s28, s29
    v_add_u32 v13, s28, v13
    v_xor_b32 v14, 16, v13
    v_lshrrev_b32 v15, 1, v2
    v_lshlrev_b32 v15, 13, v15
    v_lshl_add_u32 v15, v1, 5, v15
    v_and_b32 v16, 1, v2
    v_lshl_add_u32 v15, v16, 4, v15
    s_mul_i32 s28, s20, 272
    s_add_u32 s28, s28, {L_ST2}
    v_add_u32 v15, s28, v15
    """)
    srd(A, 8, "s52", "s53", 2 << 20)
    X, Yv, B = 64, 72, 80
    def unpack(d, s_):
        for k in range(4):
            A(f"v_lshlrev_b32 v{d+2*k}, 16, v{s_+k}")
            A(f"v_and_b32 v{d+2*k+1}, 0xffff0000, v{s_+k}")
    def pack(d, s_):
        for k in range(4): A(f"v_cvt_pk_bf16_f32 v{d+k}, v{s_+2*k}, v{s_+2*k+1}")
    unpack(X, VX); unpack(B, VB2)
    if not FR:
        for k in range(8): A(f"v_add_f32 v{X+k}, v{X+k}, v{B+k}")
    A("s_barrier")
    A.st("fin")
    A(f"ds_read_b128 v[16:19], v15")
    for w in range(4):
        A(f"ds_read_b128 v[{P+8*w}:{P+8*w+3}], v13 offset:{w*8192}")
        A(f"ds_read_b128 v[{P+8*w+4}:{P+8*w+7}], v14 offset:{w*8192}")
    A("s_waitcnt lgkmcnt(8)")
    unpack(Yv, 16)
    for k in range(8): A(f"v_add_f32 v{X+k}, v{X+k}, v{Yv+k}")
    if FR: pack(20, X); unpack(X, 20)
    A("s_waitcnt lgkmcnt(4)")
    for k in range(8): A(f"v_add_f32 v{P+k}, v{P+k}, v{P+8+k}")
    A("s_waitcnt lgkmcnt(0)")
    for k in range(8): A(f"v_add_f32 v{P+16+k}, v{P+16+k}, v{P+24+k}")
    for k in range(8): A(f"v_add_f32 v{P+k}, v{P+k}, v{P+16+k}")
    if FR:
        pack(24, P); unpack(P, 24)
        for k in range(8): A(f"v_add_f32 v{P+k}, v{P+k}, v{B+k}")
        pack(24, P); unpack(P, 24)
    for k in range(8): A(f"v_add_f32 v{P+k}, v{P+k}, v{X+k}")
    pack(28, P)
    A(f"buffer_store_dwordx4 v[28:31], v{VOO}, s[8:11], s33 offen {os.environ.get('SCO', '')}")
    if STAMPS: A("s_waitcnt vmcnt(0)")
    A.stamp_flush(0)
    A("s_endpgm")


DOC = '''; ---------------------------------------------------------------------------------------------
;  hand-offs: sc1 stores + per-wave tag flags (tag = LCG(epoch word in d_ws), epoch advanced inside the launch),
;             y via sentinel prefill; placement (wg%8) is used for cache locality only.
; ---------------------------------------------------------------------------------------------
'''

def gen():
    A = Asm()
    A.stamp(0, True); A.stamp(1)
    for k in range(2, 9): A.stamp(k)
    A(f"""
    s_cmp_ge_u32 s2, 256
    s_cbranch_scc1 L_exit
    s_add_u32 s2, s2, {env("IDR", 224)}
    s_and_b32 s2, s2, 255
    s_load_dwordx2 s[40:41], s[0:1], {KA['u']}
    s_load_dwordx8 s[44:51], s[0:1], {KA['w1']}
    s_load_dwordx4 s[52:55], s[0:1], {KA['out']}
    s_load_dwordx2 s[42:43], s[0:1], {KA['ws']}
    v_lshrrev_b32 v1, 6, v0
    v_and_b32 v0, 63, v0
    s_and_b32 s23, s2, 7
    s_lshr_b32 s24, s2, 3
    v_readfirstlane_b32 s20, v1
    s_and_b32 s25, s24, 3
    s_lshr_b32 s77, s24, 2
    s_and_b32 s79, s77, 3
    s_cmp_eq_u32 s79, 3
    s_cselect_b32 s79, {4 if env("SW", 1) else 0}, 0
    s_xor_b32 s79, s79, s77
    s_lshl_b32 s78, s23, 2
    s_add_u32 s78, s78, s25
    s_mul_i32 s74, {'s23' if ROT & 4 else 's79'}, {3584 if ROT & 5 else 0}
    s_and_b32 s74, s74, 0xfffffc00
    s_mul_i32 s75, s25, {7168 if ROT & 2 else 0}
    s_add_u32 s74, s74, s75
    s_sub_u32 s75, s74, {28*1024}
    s_min_u32 s74, s74, s75
    s_and_b32 s39, s20, 3
    s_cmp_eq_u32 s77, 7
    s_cbranch_scc1 L_ln
    """)
    if LOC:
        A("""
        s_and_b32 s21, s24, 1
        s_lshl_b32 s22, s23, 1
        s_add_u32 s21, s21, s22
        s_lshr_b32 s22, s24, 1
        """)
    else:
        A("""
        s_lshr_b32 s21, s23, 1
        s_lshl_b32 s21, s21, 2
        s_add_u32 s21, s21, s25
        s_and_b32 s22, s23, 1
        s_mul_i32 s22, s22, 7
        s_add_u32 s22, s22, s77
        """)
    gen_gemm1(A)
    A.label("L_ln")
    A("s_nop 0 ; RESETSB")
    A("s_mov_b32 s21, s78")
    gen_ln(A)
    A.label("L_gemm2")
    A("s_nop 1 ; RESETSB")
    gen_gemm2(A)
    A.label("L_conv")
    A("s_nop 1 ; RESETSB")
    gen_conv(A)
    A.label("L_final")
    A("s_nop 7")
    gen_final(A)
    A.label("L_exit")
    A("s_endpgm")
    lines = fix_hazards(A.lines, verbose=True)
    check_waits(lines, "s")
    head = open("parallel_sum__ssm_conv_s4__dense_activation_gelu__prompt.s.ref").read().split("; Override launch")[0]
    head += DOC
    head += f"; @launch grid=(256,1,1) block=(512,1,1) lds={LDS_TOTAL}\n.amdgcn_target \"amdgcn-amd-amdhsa--gfx950\"\n"
    return head + kernel_section(KNAME, lines, 256, 102, 256)

if __name__ == "__main__":
    out = sys.argv[1] if len(sys.argv) > 1 else "cur8.s"
    open(out, "w").write(gen())
    print("wrote", out)
```

```python
import re

TRANS = ("v_exp_f32", "v_log_f32", "v_rcp_f32", "v_rsq_f32", "v_sqrt_f32", "v_sin_f32", "v_cos_f32", "v_rcp_iflag_f32")
REG_RE = re.compile(r"(?<![\w.])([vas])(?:(\d+)|\[(\d+):(\d+)\])(?![\w])")


def regs_of(tok):
    out = set()
    for m in REG_RE.finditer(tok):
        k = m.group(1)
        if m.group(2) is not None:
            out.add((k, int(m.group(2))))
        else:
            for i in range(int(m.group(3)), int(m.group(4)) + 1):
                out.add((k, i))
    t = tok.strip().lstrip("-").strip("|")
    if t in ("vcc", "vcc_lo", "vcc_hi"):
        out.add(("s", "vcc"))
    if t in ("exec", "exec_lo", "exec_hi"):
        out.add(("s", "exec"))
    if t == "m0":
        out.add(("s", "m0"))
    return out


def mfma_passes(op):
    if "4x4x4" in op:
        return 2
    if "32x32x16" in op or "32x32x8" in op:
        return 8
    if "16x16x32" in op or "16x16x16" in op:
        return 4
    raise ValueError(op)


class Ins:
    def __init__(self, text):
        self.text = text
        t = text.split(";")[0].strip()
        self.label = t.endswith(":")
        self.directive = t.startswith(".")
        self.empty = t == ""
        self.op = ""
        self.vw = set(); self.vr = set(); self.sw = set(); self.sr = set()
        self.valu = self.mfma = self.trans = self.dot = self.dpp = self.permlane = self.readlane = False
        self.salu = self.smem = self.ds = self.vmem = self.branch = self.sdwa = False
        self.store_wide = False; self.data = set(); self.uses_m0 = False
        self.isload = False
        self.A = self.B = self.C = set()
        self.ws = 1
        if self.label or self.directive or self.empty:
            self.ws = 0
            return
        parts = t.split(None, 1)
        op = self.op = parts[0]
        rest = parts[1] if len(parts) > 1 else ""
        ops = []
        depth = 0; cur = ""
        for ch in rest:
            if ch == "[": depth += 1
            if ch == "]": depth -= 1
            if ch == "," and depth == 0:
                ops.append(cur.strip()); cur = ""
            else:
                cur += ch
        if cur.strip(): ops.append(cur.strip())
        mods = ""
        if ops:
            sp = ops[-1].split(None, 1)
            ops[-1] = sp[0]
            mods = sp[1] if len(sp) > 1 else ""
        self.ops = ops; self.mods = mods
        R = [regs_of(o) for o in ops]
        def split(rs):
            v = set(r for r in rs if r[0] in "va"); s = set(r for r in rs if r[0] == "s"); return v, s
        def rd(*idx):
            for i in idx:
                if i < len(R):
                    v, s = split(R[i]); self.vr |= v; self.sr |= s
        def wr(*idx):
            for i in idx:
                v, s = split(R[i]); self.vw |= v; self.sw |= s
        n = len(ops)
        if op == "s_nop":
            self.ws = int(ops[0], 0) + 1
        elif op in ("s_waitcnt", "s_barrier", "s_endpgm", "s_setprio", "s_sleep"):
            pass
        elif op.startswith("s_cbranch") or op == "s_branch":
            self.branch = True
        elif op.startswith("s_load") or op.startswith("s_buffer_load") or op in ("s_memtime", "s_memrealtime"):
            self.smem = True; wr(0); rd(*range(1, n))
        elif op.startswith("s_atomic"):
            self.smem = True; wr(0); rd(*range(n))
        elif op == "s_getpc_b64":
            self.salu = True; wr(0)
        elif op.startswith("s_cmp") or op.startswith("s_bitcmp"):
            self.salu = True; rd(*range(n))
        elif op.startswith("s_"):
            self.salu = True; wr(0); rd(*range(1, n))
            if "saveexec" in op:
                self.sw.add(("s", "exec")); self.sr.add(("s", "exec"))
            if op in ("s_addk_i32", "s_mulk_i32"): rd(0)
        elif op.startswith("v_mfma"):
            self.valu = self.mfma = True
            self.passes = mfma_passes(op)
            wr(0); rd(1, 2, 3)
            self.A, self.B, self.C = R[1], R[2], R[3]
        elif op.startswith("v_"):
            self.valu = True
            base = op.replace("_e32", "").replace("_e64", "").replace("_dpp", "").replace("_sdwa", "")
            self.trans = base in TRANS
            self.dot = base.startswith("v_dot")
            self.dpp = "_dpp" in op or "quad_perm" in mods or "row_" in mods or "wave_" in mods
            self.sdwa = "_sdwa" in op
            self.permlane = base.startswith("v_permlane")
            self.readlane = base in ("v_readlane_b32", "v_readfirstlane_b32", "v_writelane_b32")
            if self.permlane:
                wr(0, 1); rd(0, 1)
            elif base.startswith("v_cmpx"):
                raise ValueError("avoid v_cmpx")
            elif base in ("v_add_co_u32", "v_sub_co_u32", "v_addc_co_u32", "v_subb_co_u32", "v_mad_u64_u32", "v_div_scale_f32"):
                wr(0, 1); rd(*range(2, n))
            else:
                wr(0); rd(*range(1, n))
                if base in ("v_fmac_f32", "v_dot2c_f32_bf16", "v_writelane_b32", "v_pk_fmac_f16") or self.dpp or self.sdwa:
                    rd(0)
        elif op.startswith("ds_"):
            self.ds = True
            if op.startswith("ds_read") or "_rtn" in op or op.startswith("ds_bpermute") or op.startswith("ds_permute") or op.startswith("ds_swizzle"):
                wr(0); rd(*range(1, n)); self.isload = True
                if "d16" in op: rd(0)
            else:
                rd(*range(n))
        elif op.startswith("buffer_") or op.startswith("global_"):
            self.vmem = True
            toks = mods.split()
            if op in ("buffer_inv", "buffer_wbl2"):
                pass
            elif "_load" in op:
                if "lds" in toks or "load_lds" in op:
                    rd(*range(n)); self.uses_m0 = True
                else:
                    wr(0); rd(*range(1, n)); self.isload = True
                    if "d16" in op: rd(0)
            elif "atomic" in op:
                rd(*range(n))
                if "sc0" in toks:
                    wr(0); self.isload = True
            else:
                rd(*range(n))
                if "x3" in op or "x4" in op:
                    self.store_wide = True
                    self.data = R[0] if op.startswith("buffer_") else R[1]
        else:
            raise ValueError("unknown op: " + text)


TB_V = {2: 5, 4: 8, 8: 12, 16: 20}
TB_C = {2: 4, 4: 6, 8: 10, 16: 18}
TB_W = {2: 1, 4: 3, 8: 7, 16: 15}


def req(p, c):
    r = 0
    if p.valu and not p.mfma:
        ov = p.vw & c.vr
        if ov:
            if c.mfma or c.dpp or c.permlane: r = max(r, 2)
            if c.readlane: r = max(r, 1)
            if p.trans and not c.trans: r = max(r, 1)
            if p.sdwa or ("op_sel" in p.mods and not p.op.startswith("v_pk_")): r = max(r, 1)
            if p.dot:
                if c.op == p.op and len(c.ops) >= 3 and not (ov & (regs_of(c.ops[1]) | regs_of(c.ops[2]))):
                    pass
                else:
                    r = max(r, 3)
        if p.dot and (p.vw & c.vw) and c.op != p.op: r = max(r, 3)
        if p.sdwa and (p.vw & c.vw): r = max(r, 1)
        ovs = p.sw & c.sr
        if ovs:
            if c.valu: r = max(r, 4 if c.readlane else 2)
            if c.vmem: r = max(r, 5)
            if c.salu or c.smem: r = max(r, 1)
        if ("s", "vcc") in p.sw and c.branch and "vcc" in c.op: r = max(r, 1)
    if p.mfma:
        n = p.passes
        if c.mfma:
            if p.vw & (c.A | c.B): r = max(r, TB_V[n])
            if p.vw & c.C:
                if p.vw == c.C and c.passes == n: r = max(r, 2 if n == 2 else 0)
                else: r = max(r, TB_C[n])
            elif p.vw & c.vw: r = max(r, TB_C[n])
        else:
            if p.vw & (c.vr | c.vw): r = max(r, TB_V[n])
            if (p.C & c.vw) and c.valu: r = max(r, TB_W[n])
    if p.salu and ("s", "m0") in p.sw and c.uses_m0: r = max(r, 1)
    if p.store_wide and (p.data & c.vw): r = max(r, 2 if c.valu else 1)
    return r


def fix_hazards(lines, verbose=False):
    out = []
    hist = []
    pos = 0
    added = 0
    for text in lines:
        c = Ins(text)
        if c.ws == 0:
            out.append(text); continue
        need = 0
        for p, pp in hist:
            d = pos - pp - 1
            rq = req(p, c)
            if rq > d: need = max(need, rq - d)
        if c.op == "s_nop": need = 0
        while need > 0:
            k = min(need, 16)
            out.append(f"    s_nop {k-1}    ; hz")
            pos += k; need -= k; added += k
        out.append(text)
        pos += c.ws
        hist.append((c, pos - 1))
        hist = [(p, pp) for p, pp in hist if pos - pp <= 24]
    if verbose: print("hazard nops added:", added)
    return out


WAIT_RE = re.compile(r"(vmcnt|lgkmcnt)\((\d+)\)")


def check_waits(lines, name=""):
    vm = []
    lg = []
    errs = 0
    for ln, text in enumerate(lines):
        c = Ins(text)
        if c.ws == 0: continue
        if c.op == "s_endpgm" or "RESETSB" in text:
            vm = []; lg = []
            continue
        if c.op == "s_waitcnt":
            for k, n in WAIT_RE.findall(text.split(";")[0]):
                n = int(n)
                if k == "vmcnt":
                    if len(vm) > n: vm = vm[len(vm) - n:] if n else []
                else:
                    if n == 0: lg = []
                    else:
                        sm = [e for e in lg if e[1]]; dsl = [e for e in lg if not e[1]]
                        if len(dsl) > n: dsl = dsl[len(dsl) - n:]
                        lg = sm + dsl
            continue
        touched = c.vr | c.vw | c.sr | c.sw
        if errs > 10: break
        if c.op in ("s_memtime", "s_memrealtime"): touched = set()
        for d in vm:
            if d & touched:
                if c.vmem and c.isload and not (d & (c.vr | c.sr)): continue
                print(f"[{name}] line {ln}: '{text.strip()}' touches pending vmem dst {sorted(d & touched)[:4]}"); errs += 1; break
        for d, s in lg:
            if d & touched:
                if c.ds and c.isload and not s and not (d & (c.vr | c.sr)): continue
                print(f"[{name}] line {ln}: '{text.strip()}' touches pending lgkm dst {sorted(d & touched, key=str)[:4]}"); errs += 1; break
        if c.vmem:
            vm.append(set(c.vw))
            if len(vm) > 63: print(f"[{name}] line {ln}: vmcnt overflow ({len(vm)})")
        if c.ds: lg.append((set(c.vw), False))
        if c.smem: lg.append((set(c.sw), True))
    return errs


import os
STAMPS = bool(os.environ.get("STAMPS"))
ST_BASE = 80

class Asm:
    def __init__(self):
        self.lines = []
    def stamp(self, k, real=False):
        if STAMPS: self(f"{'s_memrealtime' if real else 's_memtime'} s[{ST_BASE+2*k}:{ST_BASE+2*k+1}]")
    def st(self, name):
        names = os.environ.get("STN", "b0,loop,p2bar,s5,s6,s7,fin").split(",")
        if name in names: self.stamp(2 + names.index(name))
    def stamp_flush(self, kidx, wave="s20", n=11):
        if not STAMPS: return
        self.stamp(9); self.stamp(10, True)
        self("s_waitcnt vmcnt(0) lgkmcnt(0)")
        self("s_mov_b64 exec, -1")
        self("v_mov_b32 v1, 0")
        for k in range(n): self(f"v_writelane_b32 v1, s{ST_BASE+2*k}, {k}")
        self(f"""
        s_add_u32 s4, s42, {(32<<20) + kidx*(1<<20)}
        s_addc_u32 s5, s43, 0
        s_mov_b32 s6, 0x100000
        s_mov_b32 s7, 0x00020000
        s_lshl_b32 s8, s2, 3
        s_add_u32 s8, s8, {wave}
        s_lshl_b32 s8, s8, 8
        v_lshlrev_b32 v2, 2, v0
        buffer_store_dword v1, v2, s[4:7], s8 offen
        """)
        if os.environ.get("DBG2"):
            a_, b_ = [int(x) for x in os.environ["DBG2"].split(",")]
            self(f"""
            s_and_b32 s8, s2, 31
            s_cmp_lg_u32 s8, 31
            s_cbranch_scc1 L_dbg_skip
            s_cmp_lg_u32 {wave}, 0
            s_cbranch_scc1 L_dbg_skip
            s_lshr_b32 s8, s2, 5
            s_lshl_b32 s8, s8, 3
            s_mov_b32 s4, s54
            s_mov_b32 s5, s55
            s_mov_b32 s6, 64
            v_mov_b32 v4, s{ST_BASE+2*a_}
            v_mov_b32 v5, s{ST_BASE+2*b_}
            v_mov_b32 v6, 0
            s_mov_b64 exec, 1
            buffer_store_dwordx2 v[4:5], v6, s[4:7], s8 offen
            L_dbg_skip:
            """)
        if os.environ.get("DBGST"):
            self(f"""
            s_not_b32 s8, s{ST_BASE}
            s_atomic_umax s8, s[54:55], 4
            s_mov_b32 s9, s{ST_BASE+20}
            s_atomic_umax s9, s[54:55], 8
            s_cmp_lg_u32 s2, 9
            s_cbranch_scc1 L_dbg_skip
            s_cmp_lg_u32 {wave}, {os.environ.get("DBGST")}
            s_cbranch_scc1 L_dbg_skip
            v_readlane_b32 s8, v1, 1
            s_mov_b32 s4, s54
            s_mov_b32 s5, s55
            s_mov_b32 s6, 64
            s_nop 3
            v_subrev_u32 v1, s8, v1
            buffer_store_dword v1, v2, s[4:7], 0 offen offset:16
            L_dbg_skip:
            s_waitcnt lgkmcnt(0)
            """)
    def __call__(self, s):
        for l in s.split("\n"):
            if l.strip(): self.lines.append("    " + l.strip() if not l.strip().endswith(":") else l.strip())
    def label(self, n): self.lines.append(n + ":")
    def extend(self, ls):
        for l in ls: self(l)


def v(i, n=1): return f"v{i}" if n == 1 else f"v[{i}:{i+n-1}]"
def a(i, n=1): return f"a{i}" if n == 1 else f"a[{i}:{i+n-1}]"
def s(i, n=1): return f"s{i}" if n == 1 else f"s[{i}:{i+n-1}]"


def interleave(main, fill, start=0, end=None, weights=None):
    if end is None: end = len(main)
    out = []
    n = end - start
    k = 0
    for i, m in enumerate(main):
        out.append(m)
        if start <= i < end:
            tgt = (len(fill) * (i - start + 1) + n - 1) // n
            while k < min(tgt, len(fill)):
                out.append(fill[k]); k += 1
    out.extend(fill[k:])
    return out


def kernel_section(name, lines, vgpr, sgpr, accum):
    body = "\n".join(lines)
    return f""".text
.globl {name}
.p2align 8
.type {name},@function
{name}:
{body}
.section .rodata,"a"
.p2align 6
.amdhsa_kernel {name}
  .amdhsa_next_free_vgpr {vgpr}
  .amdhsa_next_free_sgpr {sgpr}
  .amdhsa_accum_offset {accum}
  .amdhsa_group_segment_fixed_size 0
  .amdhsa_kernarg_size 136
  .amdhsa_user_sgpr_count 2
  .amdhsa_user_sgpr_kernarg_segment_ptr 1
  .amdhsa_system_sgpr_workgroup_id_x 1
.end_amdhsa_kernel
"""
```

```python
from asmlib import *
import struct, math, os, sys

def f2u(x): return struct.unpack("<I", struct.pack("<f", x))[0]
def env(n, d): return int(os.environ.get(n, str(d)))

KNAME = "parallel_sum__ssm_conv_s4__dense_activation_gelu__prompt_kernel"
KA = dict(u=0, A_re=8, A_im=16, B_re=24, B_im=32, C_re=40, C_im=48, log_dt=56, Dskip=64, Bx=72, w1=80, b1=88, w2=96, b2=104,
          out=112, dbg=120, ws=128)
WS_FLL = 32768
WS_EPOCH = 49152
WS_DUMMY = 53248
WS_STAT = 65536
WS_FLH = 131072
WS_FLY = 262144
WS_HF = 1 << 20
WS_XNT = 8 << 20
WS_YA = 12 << 20
WS_USED = 14 << 20

LOG2E = 1.4426950408889634
GC1 = -2.0 * LOG2E * 0.7978845608028654
GC2 = GC1 * 0.044715

NS, STAGE = 4, 32768
RSL = 12
RING = RSL * 2048
L_KST = 98304; KST = 8704
L_ST2 = 98304; ST2 = 8192
L_CH = 131072; CH_SIZE = 13056
OFF_E, OFF_O = 4608, 8768
L_FLAG = L_CH + 2 * CH_SIZE
L_CS = L_FLAG + 512
LDS_TOTAL = 163840
L_VS = 98304; L_US = 98304

OPT_PF = env("PF", 2)
PRE = env("PRE", 3)
PRIO_C = env("PRIOC", 1)
PRIO_G = env("PRIOG", 2)
PRIO_E = env("PRIOE", 0)
ROT = env("ROT", 4)
BARP = env("BARP", 2)
STATG = env("STATG", 21)
SC = os.environ.get("SC", "sc1")
PFG = [int(x) for x in os.environ.get("PFG", "").split(",") if x]
HD = 9
U6 = env('U6', 0)
FSL = env('FSL', 2)
KR = env('KR', 0)
MIX = env('MIX', 0)
XS = env('XS', 65536 + 2176)
PS = env('PS', 8)
PG = env('PG', 0)
LW1 = env('LW1', 0)
UDMA = env('UDMA', 1)
EPE = env('EPE', 1)
FS = env('FS', 2)
HP = env('HP', 1)
NB8 = env('NB8', 1)
EP = env('EP', 2)
TS = env('TS', 4)
FR = env('FR', 0)
NPK0 = env('NPK0', 3)
NC0 = env('NC0', 3)
WSOFF = env('WSOFF', 0) << 20
SCH = os.environ.get('SCH', SC)
LOC = env('LOC', 0)
GPK = env('GPK', 3)
ULN = env('ULN', 3)
HT = env('HT', 0)
SCL = os.environ.get('SCL', SC)
SPIN = 0x40000

DK, DP, EX, P0 = 224, 128, 160, 244
BF, AF, KG_G, KG_E1, KG_L, KG_V, KG_PK, KG_VW, KG_VRD = 160, 192, 108, 122, 224, 124, 132, 136, 137
L_KS2 = 131072; KS2 = 4352
XL = 180
VDUM, LNF = 252, 253
VX, VB2, VOO = 4, 8, 12
VW2 = 23
W2R, HR, ACC2 = 160, 88, 24
VTL = 24

def srd(A, d, lo, hi, size):
    A(f"s_mov_b32 s{d}, {lo}\ns_mov_b32 s{d+1}, {hi}\ns_mov_b32 s{d+2}, {size}\ns_mov_b32 s{d+3}, 0x00020000")
def round_bf16(A, r):
    A(f"v_cvt_pk_bf16_f32 v{r}, v{r}, v{r}")
    A(f"v_and_b32 v{r}, 0xffff0000, v{r}")
def zipm(*lists):
    o = []
    for k in range(max(len(l) for l in lists)):
        for l in lists:
            if k < len(l): o.append(l[k])
    return o
def mask(lo, hi=None):
    hi = lo if hi is None else hi
    return [f"s_mov_b32 s28, {lo}", f"s_mov_b32 s29, {hi}"]

class VMQ:
    def __init__(self): self.q = []
    def note(self, tag, n=1): self.q.extend([tag] * n)
    def wait(self, *tags):
        idx = max((k for k, t in enumerate(self.q) if t in tags), default=-1)
        if idx < 0: return []
        n = len(self.q) - 1 - idx
        del self.q[:idx + 1]
        return [f"s_waitcnt vmcnt({n})"]
    def younger(self): return len(self.q)

ORDER = [0, 1] + list(range(12, 24)) + list(range(2, 12)) + list(range(24, 28))

def koff(dst, lab, base="s74"):
    return [f"s_add_u32 {dst}, {base}, {lab*1024}", f"s_sub_u32 s75, {dst}, {28*1024}", f"s_min_u32 {dst}, {dst}, s75"]

def slot_addr(sl): return (sl >> 2) * 32768 + (sl & 3) * 2048

def w2_setup(A, vt):
    srd(A, 16, "s48", "s49", 1792 * 1024)
    A(f"""
    v_lshrrev_b32 v{vt}, 2, v0
    v_and_b32 v{vt}, 4, v{vt}
    v_and_b32 v{vt+1}, 7, v0
    v_xor_b32 v{vt}, v{vt}, v{vt+1}
    v_lshrrev_b32 v{vt+1}, 3, v0
    v_lshlrev_b32 v{VW2}, 10, v{vt+1}
    v_lshl_add_u32 v{VW2}, v{vt}, 4, v{VW2}
    s_mul_i32 s72, s39, {448*1024}
    s_lshl_b32 s75, s79, 7
    s_add_u32 s72, s72, s75
    s_lshl_b32 s73, s39, 13
    v_lshrrev_b32 v{vt+1}, 5, v0
    v_bfe_u32 v{vt}, v0, 2, 2
    v_lshl_add_u32 v{VTL}, v{vt+1}, 2, v{vt}
    v_lshlrev_b32 v{VTL}, 7, v{VTL}
    v_bfe_u32 v{vt}, v0, 4, 1
    v_lshl_add_u32 v{VTL}, v{vt}, 5, v{VTL}
    v_and_b32 v{vt}, 3, v0
    v_lshl_add_u32 v{VTL}, v{vt}, 3, v{VTL}
    v_bfe_u32 v{vt}, v0, 3, 1
    v_lshl_add_u32 v{VTL}, v{vt}, 6, v{VTL}
    v_add_u32 v{VTL}, s73, v{VTL}
    v_xor_b32 v{VTL+1}, 64, v{VTL}
    v_add_u32 v{VTL+2}, 0x10000, v{VTL}
    v_add_u32 v{VTL+3}, 0x10000, v{VTL+1}
    """)
def wdma(slot, lab):
    a_ = slot_addr(slot)
    return koff("s31", lab) + [f"s_add_u32 m0, s73, {a_}", "s_lshl4_add_u32 s31, s31, s72",
                               f"buffer_load_dwordx4 v{VW2}, s[16:19], s31 offen lds",
                               f"s_add_u32 m0, s73, {a_+1024}", "s_add_u32 s31, s31, 8192",
                               f"buffer_load_dwordx4 v{VW2}, s[16:19], s31 offen lds"]
def w2tr(slot, ws_, vtl=VTL):
    b = W2R + 8 * ws_; a_ = slot_addr(slot); hi = a_ >> 16; a_ &= 0xffff
    return [f"ds_read_b64_tr_b16 v[{b+4*db+2*sec}:{b+4*db+2*sec+1}], v{vtl+2*hi+db} offset:{a_+sec*1024}" for db in range(2) for sec in range(2)]

def param_loads(A, vt):
    A(f"""
    s_lshr_b32 s28, s39, 1
    s_lshl_b32 s30, s2, 1
    s_add_u32 s30, s30, s28
    v_lshlrev_b32 v{vt}, 1, v0
    v_mov_b32 v{vt+1}, 0
    s_lshl_b32 s29, s30, 8
    s_and_b32 s28, s20, 1
    s_lshl_b32 s28, s28, 7
    s_add_u32 s29, s29, s28
    s_lshl_b32 s30, s30, 1
    s_mov_b32 s18, 1024
    s_mov_b32 s19, 0x00020000
    """)
    for k in range(8): A(f"v_mov_b32 v{P0+k}, 0")
    A("s_waitcnt lgkmcnt(0)")
    for k in (6, 7, 0, 1, 2, 3, 4, 5):
        if k == 0: A("s_mov_b32 s18, 131072")
        A(f"s_mov_b32 s16, s{56+2*k}\ns_mov_b32 s17, s{57+2*k}")
        if k < 6: A(f"buffer_load_short_d16_hi v{P0+k}, v{vt}, s[16:19], s29 offen")
        else: A(f"buffer_load_short_d16_hi v{P0+k}, v{vt+1}, s[16:19], s30 offen")

def lnflag_load(vt):
    return ["s_lshl_b32 s29, s79, 6", "s_lshl_b32 s28, s39, 4", "s_add_u32 s29, s29, s28", "s_lshr_b32 s28, s78, 4", "s_lshl_b32 s28, s28, 9",
            "s_add_u32 s29, s29, s28", f"s_lshl_b32 s29, s29, {FS}", f"s_add_u32 s29, s29, {WS_FLY}",
            f"v_lshlrev_b32 v{vt}, {FSL}, v0", f"v_add_u32 v{vt}, {WS_FLL}, v{vt}",
            f"v_and_b32 v{vt+1}, 15, v0", f"v_lshl_add_u32 v{vt+1}, v{vt+1}, {FS}, s29", "s_mov_b32 s28, 0", "s_mov_b32 s29, -1",
            f"v_cndmask_b32 v{vt}, v{vt}, v{vt+1}, s[28:29]",
            f"buffer_load_dword v{LNF}, v{vt}, s[12:15], 0 offen {SC}"]

def u_issue(A, vl16):
    A(f"""
    s_lshr_b32 s28, s39, 1
    s_lshl_b32 s29, s2, 1
    s_add_u32 s29, s29, s28
    s_lshl_b32 s29, s29, {7 if XS else 12}
    s_add_u32 s29, s29, {WS_XNT}
    """)
    if UDMA:
        A(f"s_mul_i32 s28, s28, {CH_SIZE}")
        A(f"s_add_u32 m0, s28, {L_CH + 512}")
        if XS:
            A(f"""
            v_lshrrev_b32 v{XL}, 3, v0
            v_and_b32 v{XL+1}, 7, v0
            v_mul_u32_u24 v{XL}, {XS}, v{XL}
            v_lshl_add_u32 v{XL}, v{XL+1}, 4, v{XL}
            """)
            vl16 = XL
        for k in range(4):
            if XS and k: A(f"s_add_u32 s29, s29, {8*XS - 1024}")
            A(f"buffer_load_dwordx4 v{vl16}, s[12:15], s29 offen offset:{k*1024} {SC} lds")
    else:
        for k in range(4): A(f"buffer_load_dwordx4 v[{XL+4*k}:{XL+4*k+3}], v{vl16}, s[12:15], s29 offen offset:{k*1024} {SC}")

def u_try(A, vl16):
    A(f"""
    v_cmp_ne_u32 vcc, s76, v{LNF}
    s_mov_b32 s37, 0
    s_cbranch_vccnz L_ut_no
    s_mov_b32 s37, 1
    """)
    u_issue(A, vl16)
    A.label("L_ut_no")

def u_spin(A, vt, vl16, tag=''):
    A("s_mov_b32 s30, 0")
    A.label(f"L_us_poll{tag}")
    A(f"s_sleep {PS}")
    A.extend(lnflag_load(vt))
    A(f"""
    s_add_u32 s30, s30, 1
    s_waitcnt vmcnt(0)
    v_cmp_ne_u32 vcc, s76, v{LNF}
    s_cmp_gt_u32 s30, {SPIN}
    s_cbranch_scc1 L_us_ok{tag}
    s_cbranch_vccnz L_us_poll{tag}
    """)
    A.label(f"L_us_ok{tag}")
    u_issue(A, vl16)
    A("s_waitcnt vmcnt(0)")

def ya_addr(vd, vt):
    return [f"v_lshrrev_b32 v{vd}, 3, v0", f"v_and_b32 v{vt}, 7, v0", f"v_lshlrev_b32 v{vd}, 13, v{vd}", f"v_lshl_add_u32 v{vd}, v{vt}, 4, v{vd}",
            "s_lshr_b32 s28, s39, 1", "s_lshl_b32 s31, s2, 1", "s_add_u32 s31, s31, s28",
            "s_lshr_b32 s29, s31, 6", "s_lshl_b32 s29, s29, 18", "s_and_b32 s28, s31, 63", "s_lshl_b32 s28, s28, 7", "s_add_u32 s29, s29, s28",
            f"s_add_u32 s29, s29, {WS_YA}", "s_and_b32 s30, s39, 1", "s_lshl_b32 s30, s30, 17", "s_add_u32 s30, s30, s29", "s_add_u32 s31, s30, 65536"]
def ya_prefill(vd, vt, vm4):
    return ya_addr(vd, vt) + [f"v_mov_b32 v{vm4+k}, -1" for k in range(4)] + \
           [f"buffer_store_dwordx4 v[{vm4}:{vm4+3}], v{vd}, s[12:15], s{30+h} offen {SC}" for h in range(2)]

def publish_flag(A, soff, vt, tag, wave, both=False):
    A(f"""
    s_cmp_lg_u32 s20, {wave}
    s_cbranch_scc1 L_pub_skip{tag}
    v_mov_b32 v{vt}, 0
    v_mov_b32 v{vt+1}, s76
    s_mov_b64 exec, 1
    buffer_store_dword v{vt+1}, v{vt}, s[12:15], {soff} offen {SC}
    """)
    if both:
        A(f"""
        s_lshl_b32 s28, s2, 7
        s_add_u32 s28, s28, {WS_FLW}
        buffer_store_dword v{vt+1}, v{vt}, s[12:15], s28 offen {SC}
        """)
    A(f"""
    s_mov_b64 exec, -1
    L_pub_skip{tag}:
    """)
def mktag(A):
    A("s_mul_i32 s76, s76, 0x9E3779B1")
    A("s_add_u32 s76, s76, 0x7F4A7C15")
def arrive(A, tag):
    A(f"""
    s_cmp_lg_u32 s20, 3
    s_cbranch_scc1 L_arr{tag}
    s_atomic_add s77, s[54:55], 0 glc
    L_arr{tag}:
    """)

def coop_prefetch(A, vt):
    A(f"""
    s_lshl_b32 s28, s24, 2
    s_add_u32 s28, s28, s39
    s_lshl_b32 s30, s28, 6
    v_add_u32 v{vt}, s30, v0
    v_mul_u32_u24 v{vt+1}, 0x4925, v{vt}
    v_lshrrev_b32 v{vt+1}, 18, v{vt+1}
    v_mul_u32_u24 v{vt+2}, 14, v{vt+1}
    v_sub_u32 v{vt}, v{vt}, v{vt+2}
    v_lshlrev_b32 v{vt}, 7, v{vt}
    v_mul_u32_u24 v{vt+1}, 3584, v{vt+1}
    v_add_u32 v{vt}, v{vt}, v{vt+1}
    s_and_b32 s29, s23, 1
    s_mul_i32 s29, s29, 1792
    buffer_load_dword v{VDUM}, v{vt}, s[8:11], s29 offen
    s_lshr_b32 s29, s23, 1
    s_lshl_b32 s29, s29, 19
    s_lshl_b32 s30, s28, 13
    s_add_u32 s29, s29, s30
    v_lshlrev_b32 v{vt+2}, 7, v0
    """)
    if env("MP0", 1):
        A(f"""
        s_mul_i32 s31, s23, {28*8192}
        s_add_u32 s31, s31, s30
        s_sub_u32 s31, s31, {64*8192}
        s_cmp_lt_u32 s28, 92
        s_cselect_b32 s31, s31, 0x400000
        s_cmp_lt_u32 s28, 64
        s_cselect_b32 s29, s29, s31
        s_cselect_b32 s16, s40, s48
        s_cselect_b32 s17, s41, s49
        s_cselect_b32 s18, 0x200000, {1792*1024}
        s_mov_b32 s19, 0x00020000
        buffer_load_dword v{VDUM}, v{vt+2}, s[16:19], s29 offen
        """.replace("s_cselect_b32 s18, 0x200000, 1835008", "s_mov_b32 s18, 1835008\n        s_cselect_b32 s18, 0x200000, s18"))
    else:
        A(f"""
        s_cmp_lt_u32 s28, 64
        s_cselect_b32 s29, s29, 0x400000
        buffer_load_dword v{VDUM}, v{vt+2}, s[4:7], s29 offen
        """)
def coop_prefetch2(A, vt):
    srd(A, 16, "s48", "s49", 1792 * 1024)
    A(f"""
    s_lshl_b32 s28, s24, 2
    s_add_u32 s28, s28, s39
    s_mul_i32 s30, s28, 40
    v_add_u32 v{vt}, s30, v0
    v_mul_u32_u24 v{vt+1}, 0x4925, v{vt}
    v_lshrrev_b32 v{vt+1}, 18, v{vt+1}
    v_mul_u32_u24 v{vt+2}, 14, v{vt+1}
    v_sub_u32 v{vt}, v{vt}, v{vt+2}
    v_lshlrev_b32 v{vt}, 7, v{vt}
    v_mul_u32_u24 v{vt+1}, 3584, v{vt+1}
    v_add_u32 v{vt}, v{vt}, v{vt+1}
    s_mul_i32 s30, s28, 23
    v_add_u32 v{vt+1}, s30, v0
    v_min_u32 v{vt+1}, 2559, v{vt+1}
    v_mul_u32_u24 v{vt+2}, 13108, v{vt+1}
    v_lshrrev_b32 v{vt+2}, 16, v{vt+2}
    v_mul_u32_u24 v{vt+3}, 3, v{vt+2}
    v_add_u32 v{vt+1}, v{vt+1}, v{vt+3}
    v_lshlrev_b32 v{vt+1}, 7, v{vt+1}
    v_lshlrev_b32 v{vt+2}, 7, v0
    s_and_b32 s29, s23, 1
    s_mul_i32 s29, s29, 1792
    s_add_u32 s29, s29, {192*3584}
    s_mov_b32 exec_hi, {0 if (LW1 or not env("WT", 1)) else 255}
    s_mov_b32 exec_lo, {1 if (LW1 or not env("WT", 1)) else -1}
    buffer_load_dword v{VDUM}, v{vt}, s[8:11], s29 offen
    s_lshr_b32 s29, s23, 1
    s_lshl_b32 s29, s29, 19
    s_add_u32 s29, s29, 384
    s_mov_b64 exec, {"0x7fffff" if env("XT", 1) else "1"}
    buffer_load_dword v{VDUM}, v{vt+1}, s[4:7], s29 offen
    s_lshl_b32 s28, s2, 2
    s_add_u32 s28, s28, s39
    s_lshl_b32 s28, s28, 11
    s_mov_b64 exec, {os.environ.get("W2M", "1")}
    buffer_load_dword v{VDUM}, v{vt+2}, s[16:19], s28 offen
    s_mov_b64 exec, -1
    """)
def w2_prefetch(vt, piece):
    return ["s_lshl_b32 s28, s24, 2", "s_add_u32 s28, s28, s39", "s_lshl_b32 s28, s28, 14", f"s_add_u32 s28, s28, {piece*8192}",
            f"v_lshlrev_b32 v{vt}, 7, v0", f"buffer_load_dword v{VDUM}, v{vt}, s[16:19], s28 offen"]

def cmul(d, x, y, pk=True):
    P = lambda r: f"v[{r}:{r+1}]"
    assert d != x and d != y
    if pk:
        return [f"v_pk_mul_f32 {P(d)}, {P(x)}, {P(y)} op_sel:[0,0] op_sel_hi:[0,1]",
                f"v_pk_fma_f32 {P(d)}, {P(x)}, {P(y)}, {P(d)} op_sel:[1,1,0] op_sel_hi:[1,0,1] neg_lo:[0,1,0]"]
    return [f"v_mul_f32 v{d}, v{x}, v{y}", f"v_mul_f32 v{d+1}, v{x}, v{y+1}",
            f"v_fma_f32 v{d}, -v{x+1}, v{y+1}, v{d}", f"v_fma_f32 v{d+1}, v{x+1}, v{y}, v{d+1}"]

def kg_common(A, base, T0, Z, WA):
    ar, ai, br, bi, cr, ci, ld, dsk = range(P0, P0 + 8)
    u_ = f2u(LOG2E) & 0xFFFFFF00
    lh = struct.unpack("<f", struct.pack("<I", u_))[0]; ll = LOG2E - lh
    A(f"""
    v_mul_f32 v{T0}, {hex(f2u(lh))}, v{ld}
    v_mul_f32 v{T0+1}, {hex(f2u(ll * math.log(2)))}, v{ld}
    v_exp_f32 v{T0}, v{T0}
    s_nop 0
    v_fma_f32 v{T0}, v{T0}, v{T0+1}, v{T0}
    """)
    round_bf16(A, T0)
    A(f"""
    v_mul_f32 v{Z}, v{T0}, v{ar}
    v_mul_f32 v{Z+1}, v{T0}, v{ai}
    v_mul_f32 v{br}, v{T0}, v{br}
    v_mul_f32 v{bi}, v{T0}, v{bi}
    v_mul_f32 v{Z}, {hex(f2u(LOG2E))}, v{Z}
    v_mul_f32 v{Z+1}, 0.15915494, v{Z+1}
    """)
def kg_waddr(A, base, WA):
    A(f"s_lshl_b32 s28, s39, 13\ns_add_u32 s28, s28, {base}\nv_lshl_add_u32 v{WA}, v0, 2, s28")
    for k in range(1, 16): A(f"v_xor_b32 v{WA+k}, {16*k}, v{WA}")
def kg_raddr(base, d, t):
    o = ["s_lshl_b32 s28, s39, 13", f"s_add_u32 s28, s28, {base}", f"v_and_b32 v{t}, 15, v0", f"v_lshrrev_b32 v{t+1}, 5, v0", f"v_xor_b32 v{t}, v{t}, v{t+1}",
         f"v_and_b32 v{t+1}, 31, v0", f"v_lshlrev_b32 v{t+1}, 8, v{t+1}", f"v_lshl_add_u32 v{d}, v{t}, 4, v{t+1}", f"v_add_u32 v{d}, s28, v{d}"]
    return o + [f"v_xor_b32 v{d+k}, {32*k}, v{d}" for k in range(1, 8)]
def cexp(d, x, t, Z):
    xs = {1: None, 8: hex(f2u(8.0)), 256: hex(f2u(256.0))}[x]
    o = []
    if xs is None: o += [f"v_exp_f32 v{t}, v{Z}", f"v_fract_f32 v{t+1}, v{Z+1}"]
    else: o += [f"v_mul_f32 v{t}, {xs}, v{Z}", f"v_mul_f32 v{t+1}, {xs}, v{Z+1}", f"v_exp_f32 v{t}, v{t}", f"v_fract_f32 v{t+1}, v{t+1}"]
    o += [f"v_cos_f32 v{d}, v{t+1}", f"v_sin_f32 v{d+1}, v{t+1}", f"v_mul_f32 v{d}, v{d}, v{t}", f"v_mul_f32 v{d+1}, v{d+1}, v{t}"]
    return o
KWA = 100
KRA = 116

def gen_kgen_v(A):
    T0, Z, E8, E16, Va, Vb, PKT = 34, 144, 44, 46, 80, 84, 88
    kg_common(A, L_VS, T0, Z, KWA)
    A.extend(cexp(E8, 8, T0, Z))
    A.extend(cmul(E16, E8, E8))
    npk = [0]
    def emit(src, row):
        t = PKT + (npk[0] % 8); npk[0] += 1
        return [f"v_cvt_pk_bf16_f32 v{t}, v{src}, v{src+1}", f"ds_write_b32 v{KWA + (row & 15)}, v{t} offset:{row*256}"]
    A(f"v_mov_b32 v{PKT+7}, 0x00003f80")
    A(f"ds_write_b32 v{KWA}, v{PKT+7}")
    A.extend(emit(E8, 1)); A.extend(emit(E16, 2))
    ev, od = E16, E8
    for j in range(3, 32, 2):
        d1 = Va + 2 * (((j - 3) // 2) % 2)
        d2 = Vb + 2 * (((j - 3) // 2) % 2)
        l1 = cmul(d1, od, E16) + emit(d1, j)
        l2 = (cmul(d2, ev, E16) + emit(d2, j + 1)) if j + 1 < 32 else []
        A.extend(zipm(l1, l2))
        od, ev = d1, d2
    for st in range(8): A(f"ds_read_b128 v[{BF+4*st}:{BF+4*st+3}], v{KRA+st}")

UPK = 192
def kgen_u_lists(rebase):
    T0, Z, E1, G, Lr, Va = 34, 144, 42, 44, 58, 76
    ar, ai, br, bi, cr, ci, ld, dsk = range(P0, P0 + 8)
    cm = lambda d, x, y: cmul(d, x, y, False)
    V = []; Wr = []
    if rebase: V += [f"v_subrev_u32 v{KWA+k}, {rebase}, v{KWA+k}" for k in range(24)]
    V += zipm(cexp(E1, 1, T0 + 2, Z), cexp(G, 256, T0 + 4, Z), cm(Lr, cr, br))
    npk = [0]
    def emit(src, rows):
        t = UPK + npk[0]; npk[0] += 1
        Wr.extend(f"ds_write_b32 v{KWA + (row & 15)}, v{t} offset:{row*256}" for row in rows)
        return [f"v_cvt_pk_bf16_f32 v{t}, v{src}, -v{src+1}"]
    urow = lambda hh, r: 8 * (r >> 2) + 4 * hh + (r & 3)
    lch = emit(Lr, [urow(0, 0)])
    for a_ in range(1, 9): lch += cm(Lr + 2 * a_, Lr + 2 * (a_ - 1), E1) + emit(Lr + 2 * a_, [urow(0, a_)])
    gch = []
    for k in range(2, 8): gch += cm(G + 2 * (k - 1), G + 2 * (k - 2), G)
    V += zipm(lch, gch)
    jobs = [(0, 1, [urow(1, 0), urow(1, 1)]), (2, 1, [urow(1, 2)]), (4, 1, [urow(1, 3), urow(1, 4), urow(1, 5)]), (6, 1, [urow(1, 6)]),
            (8, 1, [urow(1, 7), urow(1, 8)]),
            (0, 2, [urow(0, 9)]), (4, 2, [urow(0, 10)]), (8, 2, [urow(0, 11)]),
            (0, 3, [urow(1, 9)]), (4, 3, [urow(1, 10)]), (8, 3, [urow(1, 11)]),
            (0, 4, [urow(0, 12)]), (8, 4, [urow(0, 13)]), (0, 5, [urow(0, 14)]), (8, 5, [urow(0, 15)]),
            (0, 6, [urow(1, 12)]), (8, 6, [urow(1, 13)]), (0, 7, [urow(1, 14)]), (8, 7, [urow(1, 15)])]
    for k in range(0, len(jobs), 2):
        ls = []
        for q_, (a_, gk, rows) in enumerate(jobs[k:k + 2]):
            d = Va + 4 * q_ + 2 * ((k // 2) % 2)
            ls.append(cm(d, Lr + 2 * a_, G + 2 * (gk - 1)) + emit(d, rows))
        V += zipm(*ls)
    assert npk[0] <= 32
    return V, Wr

def kg_atoms_m():
    at = [[f"ds_read_b128 v[{AF+4*k}:{AF+4*k+3}], v{KRA+k} offset:{L_US - L_VS}", ("tag", ("af", k))] for k in range(8)]
    mm = []
    for st in range(8):
        cin = "0" if st == 0 else f"v[{DK}:{DK+15}]"
        mm.append([("wait", ("af", st)), f"v_mfma_f32_32x32x16_bf16 v[{DK}:{DK+15}], v[{AF+4*st}:{AF+4*st+3}], v[{BF+4*st}:{BF+4*st+3}], {cin}"])
    return at, mm

XA, XR, XPAD, XFL, XZ, XONE, XFP = 146, 147, 148, 149, 150, 152, 153
def tail_pre():
    t = VT1; VEA, VEB = 254, 255
    return [f"s_lshr_b32 s30, s39, 1", f"s_mul_i32 s30, s30, {CH_SIZE}", f"s_add_u32 s38, s30, {L_CH}", "s_lshl_b32 s30, s39, 13", f"s_add_u32 s30, s30, {L_VS}",
            f"v_lshl_add_u32 v{XA}, v0, 4, s30", f"v_xor_b32 v{XR}, 8192, v{XA}",
            f"v_and_b32 v{t}, 31, v0", f"v_lshrrev_b32 v{t+1}, 5, v0", f"v_lshlrev_b32 v{t+2}, 4, v{t}",
            f"s_add_u32 s28, s38, {OFF_E + 4080 - 1024}", f"v_sub_u32 v{VEA}, s28, v{t+2}", f"v_lshlrev_b32 v{t+3}, 9, v{t+1}", f"v_sub_u32 v{VEA}, v{VEA}, v{t+3}",
            f"s_add_u32 s28, s38, {OFF_E + 4080 - 2560}", f"v_sub_u32 v{VEB}, s28, v{t+2}", f"v_lshlrev_b32 v{t+3}, 10, v{t+1}", f"v_sub_u32 v{VEB}, v{VEB}, v{t+3}",
            f"v_lshl_add_u32 v{XPAD}, v0, 3, s38", f"v_mov_b32 v{XZ}, 0", f"v_mov_b32 v{XZ+1}, 0", f"v_mov_b32 v{XONE}, 1",
            "s_lshl_b32 s28, s39, 2", f"s_add_u32 s28, s28, {L_FLAG}", f"v_mov_b32 v{XFL}, s28", f"v_xor_b32 v{XFP}, 4, v{XFL}"] + lnflag_load(154)[:-1] + \
           ["s_bitcmp0_b32 s39, 0", "s_cselect_b64 s[28:29], -1, 0", "s_mov_b64 exec, s[28:29]",
            f"ds_write_b64 v{XPAD}, v[{XZ}:{XZ+1}]", "s_and_b64 exec, s[28:29], 15",
            f"ds_write_b64 v{XPAD}, v[{XZ}:{XZ+1}] offset:{OFF_E+4096}", f"ds_write_b64 v{XPAD}, v[{XZ}:{XZ+1}] offset:{OFF_O+4096}", "s_mov_b64 exec, -1"]

def kg_atoms_x1():
    return [["s_bitcmp1_b32 s39, 0", "s_cselect_b64 exec, -1, 0"] + [f"ds_write_b128 v{XA}, v[{DK+4*q}:{DK+4*q+3}] offset:{512+q*1024}" for q in range(3)] +
            ["s_not_b64 exec, exec", f"ds_write_b128 v{XA}, v[{DK+12}:{DK+15}] offset:{512+3072}", "s_mov_b64 exec, -1"]]

def kg_atoms_x2(tag):
    VEA, VEB = 254, 255
    k_ = lambda r: DK + r
    def half(base, kk, va, off, odd):
        prs = [(8, 7), (6, 5), (4, 3), (2, 1)] if odd else [(7, 6), (5, 4), (3, 2), (1, 0)]
        return [f"v_cvt_pk_bf16_f32 v{base+i}, v{kk[lo]}, v{kk[hi]}" for i, (lo, hi) in enumerate(prs)] + \
               [f"ds_write_b128 v{va}, v[{base}:{base+3}] offset:{off + (OFF_O - OFF_E if odd else 0)}"]
    ev = [([k_(i) for i in range(9)], VEA, 1024), ([k_(9)] * 3 + [k_(10)] * 3 + [k_(11)] * 3, VEA, 0)]
    od = [([k_(12)] * 4 + [DP] + [k_(13)] * 4, VEB, 512), ([k_(14)] * 4 + [DP + 1] + [k_(15)] * 4, VEB, 0)]
    o = ["s_bitcmp1_b32 s39, 0", f"s_cbranch_scc1 L_xo{tag}"]
    o += [f"ds_read_b128 v[{DP+4*q}:{DP+4*q+3}], v{XR} offset:{512+q*1024}" for q in range(3)]
    for q in range(3):
        o += [f"s_waitcnt lgkmcnt({2-q})"] + [f"v_add_f32 v{DK+4*q+k}, v{DK+4*q+k}, v{DP+4*q+k}" for k in range(4)]
    n = 0
    for gi in range(2):
        for o_ in range(2):
            o += half(EX + 4 * n, *ev[gi], o_); n += 1
    o += ["s_mov_b64 exec, 1", f"ds_write_b16_d16_hi v{XPAD}, v{EX+3} offset:{OFF_O+4096}", "s_mov_b64 exec, -1", f"s_branch L_xd{tag}", f"L_xo{tag}:"]
    o += [f"ds_read_b128 v[{DP+12}:{DP+15}], v{XR} offset:{512+3072}"] + mask("0xaaaaaaaa") + ["s_waitcnt lgkmcnt(0)"]
    o += [f"v_add_f32 v{DK+12+k}, v{DK+12+k}, v{DP+12+k}" for k in range(4)]
    o += [f"v_cndmask_b32 v{DP}, v{DK+12}, v{DK+13}, s[28:29]", f"v_cndmask_b32 v{DP+1}, v{DK+14}, v{DK+15}, s[28:29]"]
    n = 0
    for gi in range(2):
        for o_ in range(2):
            o += half(EX + 4 * n, *od[gi], o_); n += 1
    o += [f"L_xd{tag}:", f"ds_write_b32 v{XFL}, v{XONE} offset:64"]
    return [o]

def flag_zero():
    return [[f"v_lshlrev_b32 v{VT1}, 2, v0", f"v_mov_b32 v{VT1+1}, 0", f"v_add_u32 v{VT1}, {L_FLAG}, v{VT1}", f"ds_write_b32 v{VT1}, v{VT1+1}"]]

class LQ:
    def __init__(self, A): self.A = A; self.q = []
    def emit(self, items, tag=None):
        maybe0 = any(isinstance(it, str) and "s_cselect_b64" in it for it in items)
        for it in items:
            if maybe0 and isinstance(it, str):
                self.A(it); continue
            if isinstance(it, tuple):
                if it[0] == "tag": self.q[-1] = it[1]
                elif it[0] == "wait": self.wait(it[1])
                elif it[0] == "nods": self.A(it[1])
                continue
            self.A(it)
            if it.strip().startswith("ds_"): self.q.append(tag)
            if "lgkmcnt(0)" in it: self.q = []
    def wait(self, tag):
        idx = max((k for k, t in enumerate(self.q) if t == tag), default=-1)
        if idx < 0: return
        n = min(len(self.q) - 1 - idx, 15)
        self.A(f"s_waitcnt lgkmcnt({n})")
        self.q = self.q[len(self.q) - n:] if n else []

def spread(atoms, g0, g1):
    pts = [(g, p) for g in range(g0, g1) for p in range(2)]
    tot = sum(len(a_) for a_ in atoms); out = {p: [] for p in pts}; acc = 0
    for a_ in atoms:
        out[pts[min(len(pts) - 1, acc * len(pts) // tot)]].append(a_); acc += len(a_)
    return out

VXO, VWO, VXO2 = 1, 2, 3
VXO3, VXO4 = 242, 243
VXR, VTR = 4, 8
VONE, VHO1, VB1 = 16, 18, 19
VCW, VCR, VSO = 20, 21, 22
VT1 = 28
NR = 3
W1, X1, ACC1, CS = 32, 56, 80, 144
HI = 152
GT, PK, SG = 164, 180, 188
EA, EB = 192, 196
VS, K1r, K3r = 212, 214, 216

def wave_flag(soff, vt):
    return [f"v_mov_b32 v{vt}, 0", f"v_mov_b32 v{vt+1}, s76", "s_mov_b64 exec, 1",
            f"buffer_store_dword v{vt+1}, v{vt}, s[12:15], {soff} offen {SC}", "s_mov_b64 exec, -1"]

def lds_wait(A, name, vaddr, off, vt):
    A(f"""
    {name}:
    ds_read_b32 v{vt}, v{vaddr} offset:{off}
    s_waitcnt lgkmcnt(0)
    v_readfirstlane_b32 s28, v{vt}
    s_cmp_eq_u32 s28, 1
    s_cbranch_scc0 {name}
    """)

def dma_setup(A):
    VT = VT1
    A(f"""
    v_lshrrev_b32 v{VT}, 3, v0
    v_and_b32 v{VT+1}, 7, v0
    v_lshrrev_b32 v{VT+2}, 4, v0
    v_xor_b32 v{VT+3}, v{VT+2}, v{VT+1}
    v_lshlrev_b32 v{VXO}, 10, v{VT}
    v_lshl_add_u32 v{VXO}, v{VT+3}, 4, v{VXO}
    v_xor_b32 v{VXO2}, 64, v{VXO}
    v_add_u32 v{VXO2}, 8192, v{VXO2}
    v_and_b32 v{VT+3}, 15, v0
    v_lshlrev_b32 v{VT}, 2, v{VT+2}
    v_xor_b32 v{VT+3}, v{VT+3}, v{VT}
    v_mul_u32_u24 v{VWO}, 3584, v{VT+2}
    v_lshl_add_u32 v{VWO}, v{VT+3}, 4, v{VWO}
    s_lshl_b32 s25, s21, 17
    s_lshl_b32 s28, s39, 15
    s_add_u32 s25, s25, s28
    s_mul_i32 s26, s39, {16*3584}
    s_lshl_b32 s28, s22, 8
    s_add_u32 s26, s26, s28
    s_lshl_b32 s27, s39, 12
    """)
    if KR:
        A(f"""
        v_add_u32 v{VXO3}, 16384, v{VXO}
        v_add_u32 v{VXO4}, 16384, v{VXO2}
        s_and_b32 s3, s24, 3
        s_mul_i32 s3, s3, {env("KRB", 3)}
        s_mul_i32 s28, s77, {env("KRN", 1)}
        s_add_u32 s3, s3, s28
        s_lshl_b32 s3, s3, 7
        """)
    if MIX:
        A(f"""
        v_and_b32 v{VT+3}, 8, v{VT+3}
        v_lshl_add_u32 v{VWO}, v{VT+3}, 4, v{VWO}
        s_and_b32 s28, s22, 1
        s_lshl_b32 s28, s28, 7
        s_sub_u32 s26, s26, s28
        """)

KORD = [int(x) for x in os.environ.get("KORD", "0,1,2,3,4,5,6,7").split(",")]
def g1_dma(kc, part):
    st = (kc % NS) * STAGE
    kc = KORD[kc]
    if KR:
        return [f"s_add_u32 s37, s3, {128*kc}", "s_and_b32 s37, s37, 0x380", f"s_add_u32 m0, s27, {st + part*1024}",
                "s_add_u32 s31, s25, s37",
                f"buffer_load_dwordx4 v{[VXO, VXO2, 13, 14][part] if False else (VXO if part % 2 == 0 else VXO2)}, s[4:7], s31 offen lds" if part < 2 else
                f"buffer_load_dwordx4 v{VXO3 if part % 2 == 0 else VXO4}, s[4:7], s31 offen lds",
                f"s_mul_i32 s37, s37, 1792", f"s_add_u32 m0, s27, {st + 16384 + part*1024}", "s_add_u32 s37, s37, s26", f"s_add_u32 s37, s37, {4*part*3584}",
                f"buffer_load_dwordx4 v{VWO}, s[8:11], s37 offen lds"]
    return [f"s_add_u32 m0, s27, {st + part*1024}", f"s_add_u32 s31, s25, {128*kc + (part//2)*16384}",
            f"buffer_load_dwordx4 v{VXO if part % 2 == 0 else VXO2}, s[4:7], s31 offen lds",
            f"s_add_u32 m0, s27, {st + 16384 + part*1024}", f"s_add_u32 s37, s26, {(64*kc + 4*part)*3584}",
            f"buffer_load_dwordx4 v{VWO}, s[8:11], s37 offen lds"]

def c_setup(A):
    VT = VT1
    A(f"""
    v_and_b32 v{VT}, 31, v0
    v_lshrrev_b32 v{VT+1}, 5, v0
    v_bfe_u32 v{VT+2}, v0, 1, 3
    v_xor_b32 v{VT+2}, v{VT+2}, v{VT+1}
    s_lshl_b32 s31, s34, 1
    v_xor_b32 v{VT+2}, s31, v{VT+2}
    v_lshlrev_b32 v{VXR}, 7, v{VT}
    v_lshl_add_u32 v{VXR}, v{VT+2}, 4, v{VXR}
    s_lshl_b32 s28, s34, 13
    v_add_u32 v{VXR}, s28, v{VXR}
    v_xor_b32 v{VXR+1}, 32, v{VXR}
    v_xor_b32 v{VXR+2}, 64, v{VXR}
    v_xor_b32 v{VXR+3}, 96, v{VXR}
    v_lshlrev_b32 v{VSO}, 3, v0
    v_bfe_u32 v{VT+2}, v0, 2, 2
    v_lshl_add_u32 v{VTR}, v{VT+1}, 3, v{VT+2}
    v_lshlrev_b32 v{VTR}, 8, v{VTR}
    v_bfe_u32 v{VT+3}, v0, 4, 1
    v_lshl_add_u32 v{VTR}, v{VT+3}, 5, v{VTR}
    v_and_b32 v{VT+3}, 3, v0
    v_lshl_add_u32 v{VTR}, v{VT+3}, 3, v{VTR}
    s_lshl_b32 s31, s35, 1
    v_xor_b32 v{VT+2}, s31, v{VT+2}
    v_lshl_add_u32 v{VTR}, v{VT+2}, 6, v{VTR}
    s_lshl_b32 s31, s34, 12
    s_add_u32 s31, s31, 16384
    v_add_u32 v{VTR}, s31, v{VTR}
    """)
    for i in range(4):
        for ft in range(2):
            if i == 0 and ft == 0: continue
            A(f"v_xor_b32 v{VTR+2*i+ft}, {i*4096 + ft*64}, v{VTR}")
    A(f"""
    v_mov_b32 v{VONE}, 0x3f803f80
    v_mov_b32 v{VONE+1}, 0x3f803f80
    v_lshlrev_b32 v{VHO1}, 4, v0
    s_lshl_b32 s33, s21, 1
    s_add_u32 s33, s33, s34
    s_lshl_b32 s36, s33, 9
    s_add_u32 s36, s36, {WS_STAT}
    s_mul_i32 s32, s33, {2*112*1024}
    s_lshl_b32 s28, s22, 1
    s_add_u32 s28, s28, s35
    """)
    if MIX:
        A("""
        s_add_u32 s28, s28, s35
        s_and_b32 s29, s22, 1
        s_sub_u32 s28, s28, s29
        """)
    A(f"""
    s_lshl_b32 s29, s28, 12
    s_add_u32 s32, s32, s29
    s_add_u32 s32, s32, {WS_HF}
    s_add_u32 s38, s32, {112*1024}
    """)
    if HP:
        A(f"""
        s_mul_i32 s29, s28, 37
        s_lshr_b32 s29, s29, 8
        s_lshl_b32 s33, s33, 2
        s_add_u32 s33, s33, s29
        s_lshl_b32 s33, s33, 7
        s_mul_i32 s29, s29, 7
        s_sub_u32 s29, s28, s29
        s_lshl_b32 s29, s29, 2
        s_add_u32 s33, s33, s29
        s_add_u32 s33, s33, {WS_FLH}
        """)
    else:
        A(f"""
        s_lshl_b32 s33, s33, 5
        s_add_u32 s33, s33, s28
        s_lshl_b32 s33, s33, 7
        s_add_u32 s33, s33, {WS_FLH}
        """)
    A(f"""
    s_lshl_b32 s29, s20, 8
    v_lshl_add_u32 v{VCW}, v0, 2, s29
    v_add_u32 v{VCW}, {L_CS}, v{VCW}
    v_xor_b32 v{VCR}, 256, v{VCW}
    """)
    srd(A, 16, "s46", "s47", 3584)
    A(f"""
    v_mov_b32 v{VB1}, 0
    v_lshlrev_b32 v{VT1}, 1, v0
    s_lshl_b32 s28, s28, 7
    buffer_load_short_d16_hi v{VB1}, v{VT1}, s[16:19], s28 offen
    """)
    for k in range(20): A(f"v_mov_b32 v{EA+k}, 0")
    for k in range(12): A(f"v_add_u32 v{HI+k}, 0x10000, v{VXR+k}")

def c_reads(g):
    kc, i = divmod(g, 4)
    st = kc % NS
    b = (VXR if st < 2 else HI); off = (st % 2) * STAGE
    sl = g % NR
    tr = lambda ft, sec: f"ds_read_b64_tr_b16 v[{W1+8*sl+4*ft+2*sec}:{W1+8*sl+4*ft+2*sec+1}], v{b+4+2*i+ft} offset:{off + sec*1024}"
    xr = lambda tt: f"ds_read_b128 v[{X1+8*sl+4*tt}:{X1+8*sl+4*tt+3}], v{b+i} offset:{off + tt*4096}"
    return [xr(0), tr(0, 0), tr(0, 1), tr(1, 0), tr(1, 1), xr(1)]

def gen_c1(A):
    VT = VT1
    dma_setup(A)
    A(f"""
    s_and_b32 s34, s20, 1
    s_lshr_b32 s35, s20, 1
    s_waitcnt lgkmcnt(0)
    s_add_u32 s42, s42, {WSOFF}
    s_addc_u32 s43, s43, 0
    s_load_dword s76, s[42:43], {WS_EPOCH}
    """)
    vm = VMQ()
    A.st("ka")
    srd(A, 4, "s40", "s41", 2 << 20)
    srd(A, 8, "s44", "s45", 512 * 3584)
    srd(A, 12, "s42", "s43", WS_USED)
    CSF = env("CSF", 0)
    if CSF: c_setup(A); vm.note("b1")
    if env("PFAT", 1) == -1 and OPT_PF: coop_prefetch(A, VT); vm.note("pf", 2)
    for kc in range(NC0):
        for part in range(4): A.extend(g1_dma(kc, part))
        vm.note(kc, 8)
        A.st(f"i{kc}")
        if kc == env("BP", 1): A("s_barrier")
        if kc == 0 and not CSF:
            c_setup(A); vm.note("b1")
        if kc == env("PFAT", 2) and OPT_PF == 1: coop_prefetch(A, VT); vm.note("pf", 2)
        if kc == env("PFAT", 2) and OPT_PF == 2: coop_prefetch2(A, VT); vm.note("pf", 3)
    TW = env("TW", 4)
    if TW:
        A(f"v_lshlrev_b32 v{VT+2}, 20, v0")
        if TW & 1: A("s_mov_b64 exec, 3"); A(f"global_load_dword v{VDUM}, v{VT+2}, s[52:53]"); vm.note("tw")
        if TW & 2: A("s_mov_b64 exec, 1"); A(f"buffer_load_dword v{VDUM}, v{VT+2}, s[12:15], s38 offen"); vm.note("tw")
        if TW & 4: A("s_mov_b64 exec, 1"); A(f"global_load_dword v{VDUM}, v{VT+2}, s[50:51]"); vm.note("tw")
        A("s_mov_b64 exec, -1")
    A.extend(ya_prefill(VT, VT + 1, PK)); vm.note("pre", 2)
    hpre = [f"buffer_store_dwordx4 v[{PK}:{PK+3}], v{VHO1}, s[12:15], s{32 if n < 4 else 38} offen offset:{(n%4)*1024} {SC}" for n in range(8)]
    HPRE = env("HPRE", 0)
    if HPRE == 1: A.extend(hpre); vm.note(2, 8)
    w2_setup(A, VT)
    mpf = [f"s_xor_b32 s28, s2, {env('MPX', 0)}", "s_lshl_b32 s28, s28, 2", "s_add_u32 s28, s28, s39", "s_lshl_b32 s28, s28, 11", f"v_lshlrev_b32 v{VT+2}, 7, v0", f"s_mov_b64 exec, {os.environ.get('MPM', '0xffff')}",
           f"buffer_load_dword v{VDUM}, v{VT+2}, s[16:19], s28 offen {os.environ.get('MPFL', '')}", "s_mov_b64 exec, -1"]
    MPG = env("MPG", 5)
    if MPG == -1: A.extend(mpf); vm.note("mpf")
    A.st("pre")
    A(vm.wait(0)[0] + " lgkmcnt(0)"); A.st("kg"); A("s_barrier")
    A.st("b0")
    T = GT
    lq = LQ(A)
    lq.emit(c_reads(0), 0); lq.emit(c_reads(1), 1)
    mktag(A)
    def big(g, tt, ft):
        sl = g % NR; c = ACC1 + 32 * tt + 16 * ft
        cin = "0" if g == 0 else f"v[{c}:{c+15}]"
        return f"v_mfma_f32_32x32x16_bf16 v[{c}:{c+15}], v[{W1+8*sl+4*ft}:{W1+8*sl+4*ft+3}], v[{X1+8*sl+4*tt}:{X1+8*sl+4*tt+3}], {cin}"
    for g in range(32):
        kc, i = divmod(g, 4); w = W1 + 8 * (g % NR)
        m = lambda d, b_, z: f"v_mfma_f32_4x4x4_16b_bf16 v[{d}:{d+3}], v[{VONE}:{VONE+1}], v[{b_}:{b_+1}], " + ("0" if z else f"v[{d}:{d+3}]")
        o1, o2 = [], []
        if i < 2 and False: pass
        if i in (0, 2) and g < 28 or g in (28, 29):
            o1 = [m(CS, w, g == 0), m(CS + 4, w + 4, g == 0)]; o2 = [m(CS, w + 2, False), m(CS + 4, w + 6, False)]
        A.st(f"g{g}")
        gn = g + 2
        rd = c_reads(PERM(gn))[:] if gn < 32 else []
        rd = c_reads_slot(gn) if gn < 32 else []
        x1, x2 = [], []
        if i == 2 and kc + 1 < 8: x1 += vm.wait(kc + 1) + ["s_barrier"]
        if g == 30:
            x1 += [f"v_permlane32_swap_b32 v{CS}, v{CS+4}", f"v_add_f32 v{CS}, v{CS}, v{CS+4}", f"ds_write_b32 v{VCW}, v{CS}",
                   "s_waitcnt lgkmcnt(0)", "s_barrier", f"ds_read_b32 v{T+2}, v{VCR}"][:None if not NB8 else 3]
            if NB8:
                x1 += ["s_lshl_b32 s28, s20, 2", f"s_add_u32 s28, s28, {L_FLAG+128}", f"v_mov_b32 v{T}, s28", f"v_mov_b32 v{T+1}, 1",
                       f"ds_write_b32 v{T}, v{T+1}", f"v_xor_b32 v{T}, 4, v{T}"]
        if g == STATG: x2 += [f"buffer_load_dwordx2 v[{SG}:{SG+1}], v{VSO}, s[12:15], s36 offen {SC}"]; vm.note("sg")
        if EPE and g == 23: x2 += ep_early(VT)[:9]
        if EPE and g == 24: x2 += ep_early(VT)[9:]; vm.note("ep", 2)
        if g == MPG: x2 += mpf; vm.note("mpf")
        if g == env("MPG2", -5): x2 += ["s_xor_b32 s28, s2, 3"] + mpf[1:]; vm.note("mpf")
        WM = env("WARM", 0)
        if WM and g == env("WARMG", 10):
            x2 += [f"v_lshlrev_b32 v{VT+2}, 20, v0", f"v_lshlrev_b32 v{VT+3}, 7, v0"]
            if WM & 1: x2 += ["s_mov_b64 exec, 0x3fff", f"buffer_load_dword v{VDUM}, v{VT+2}, s[12:15], 0 offen"]; vm.note("wm")
            if WM & 2: x2 += ["s_mov_b64 exec, 3", f"global_load_dword v{VDUM}, v{VT+2}, s[52:53]"]; vm.note("wm")
            if WM & 4: x2 += ["s_mov_b64 exec, 0xff", f"global_load_dword v{VDUM}, v{VT+3}, s[50:51]"]; vm.note("wm")
            x2 += ["s_mov_b64 exec, -1"]
        if HPRE >= 10 and HPRE <= g < HPRE + 8: x2 += [hpre[g - HPRE]]; vm.note("hp")
        if HPRE == 2 and g == 11:
            x2 += [f"v_and_b32 v{VT+2}, 31, v0", f"v_lshlrev_b32 v{VT+2}, 7, v{VT+2}", "s_mov_b64 exec, 0xffffffff", "s_mov_b32 exec_hi, 0",
                   f"buffer_load_dword v{VDUM}, v{VT+2}, s[12:15], s32 offen", f"buffer_load_dword v{VDUM}, v{VT+2}, s[12:15], s38 offen", "s_mov_b64 exec, -1"]; vm.note("hp", 2)
        if g in PFG:
            n_ = 128 // len(PFG); k_ = PFG.index(g)
            x2 += ["s_lshl_b32 s28, s24, 2", "s_add_u32 s28, s28, s39", "s_lshl_b32 s28, s28, 14", f"s_add_u32 s28, s28, {k_*n_*128}", f"v_lshlrev_b32 v{VT+2}, 7, v0"]
            if n_ < 64: x2 += [f"s_mov_b32 exec_lo, {hex((1 << n_) - 1)}", "s_mov_b32 exec_hi, 0"]
            x2 += [f"buffer_load_dword v{VDUM}, v{VT+2}, s[16:19], s28 offen", "s_mov_b64 exec, -1"]; vm.note("l2")
        if g == env("YFG", 16) - 1: x2 += yflag_off()
        if g == env("YFG", 16): x2 += ["s_waitcnt vmcnt(0)"] + wave_flag("s28", VT); vm.q.clear(); vm.note("yf")
        lq.wait(g)
        A(big(g, 0, 0))
        if i == 2: A.st(f"pb{kc+1}")
        lq.emit(x1)
        if i == 2: A.st(f"ab{kc+1}")
        lq.emit(rd[:2], gn)
        A(big(g, 0, 1)); lq.emit(rd[2:4], gn); A.extend(o1)
        A(big(g, 1, 0)); lq.emit(rd[4:], gn)
        A(big(g, 1, 1)); lq.emit(x2); A.extend(o2)
    A.st("loop")
    if NB8:
        lds_wait(A, "L_c_cs", T, 0, T + 1)
        A(f"ds_read_b32 v{T+2}, v{VCR}")
    A.extend(vm.wait("sg", "b1"))
    A(f"""
    v_cmp_ne_u32 vcc, s76, v{SG+1}
    s_cbranch_vccz L_g1_sok
    s_mov_b32 s30, 0
    L_g1_spoll:
    buffer_load_dwordx2 v[{SG}:{SG+1}], v{VSO}, s[12:15], s36 offen {SC}
    s_add_u32 s30, s30, 1
    s_waitcnt vmcnt(0)
    v_cmp_ne_u32 vcc, s76, v{SG+1}
    s_cmp_gt_u32 s30, {SPIN}
    s_cbranch_scc1 L_g1_sok
    s_cbranch_vccnz L_g1_spoll
    L_g1_sok:
    v_mov_b32 v{SG+1}, v{SG}
    s_mov_b32 s28, -1
    s_mov_b32 s29, 0
    v_permlane32_swap_b32 v{SG}, v{SG+1}
    s_waitcnt lgkmcnt(0)
    v_add_f32 v{T+2}, v{T+2}, v{CS}
    """)
    l1 = []
    for tt in range(2):
        l1 += [f"v_and_b32 v{VS+tt}, 0xffff0000, v{SG+tt}", f"v_and_b32 v{T+8+tt}, 0xffff, v{SG+tt}", f"v_rcp_f32 v{T+6+tt}, v{VS+tt}",
               f"v_lshl_or_b32 v{T+8+tt}, v{T+8+tt}, 16, v{T+8+tt}",
               f"v_cndmask_b32 v{EB+8*tt}, 0, v{T+8+tt}, s[28:29]", f"v_cndmask_b32 v{EB+8*tt+1}, 0, v{SG+tt}, s[28:29]",
               f"v_cndmask_b32 v{EB+8*tt+4}, v{T+8+tt}, 0, s[28:29]", f"v_cndmask_b32 v{EB+8*tt+5}, v{SG+tt}, 0, s[28:29]"]
    l2 = [f"v_and_b32 v{T+3}, 0xffff0000, v{T+2}", f"v_sub_f32 v{T+3}, v{T+2}, v{T+3}", f"v_lshrrev_b32 v{T+2}, 16, v{T+2}",
          f"v_and_b32 v{T+4}, 0xffff0000, v{T+3}", f"v_sub_f32 v{T+5}, v{T+3}, v{T+4}", f"v_or_b32 v{EA}, v{T+2}, v{T+4}",
          f"v_lshrrev_b32 v{T+5}, 16, v{T+5}", f"v_or_b32 v{EA+1}, v{T+5}, v{VB1}"]
    A.extend(zipm(l1, l2))
    l3 = []
    for tt in range(2):
        l3.append([f"v_fma_f32 v{T+10+tt}, -v{VS+tt}, v{T+6+tt}, 1.0", f"v_fma_f32 v{T+6+tt}, v{T+10+tt}, v{T+6+tt}, v{T+6+tt}",
                   f"v_mul_f32 v{K1r+tt}, {hex(f2u(GC1))}, v{T+6+tt}", f"v_mul_f32 v{T+10+tt}, v{T+6+tt}, v{T+6+tt}",
                   f"v_mul_f32 v{K3r+tt}, {hex(f2u(GC2))}, v{T+6+tt}", f"v_mul_f32 v{K3r+tt}, v{K3r+tt}, v{T+10+tt}"])
    l3 = zipm(*l3)
    for tt in range(2):
        for ft in range(2):
            c = ACC1 + 32 * tt + 16 * ft
            A(f"v_mfma_f32_32x32x16_bf16 v[{c}:{c+15}], v[{EA}:{EA+3}], v[{EB+8*tt+4*ft}:{EB+8*tt+4*ft+3}], v[{c}:{c+15}]")
            A.extend(l3[3 * (2 * tt + ft):3 * (2 * tt + ft) + 3])
    A.st("gstart")
    for n in range(8):
        tt = n // 4
        if n == env("PGN", 99): A("s_setprio 2")
        c0 = ACC1 + 8 * n
        t0 = GT + 8 * (n % 2)
        if GPK == 1 and n == NPK0:
            A(f"""
            v_mov_b32 v{VT}, {L_FLAG+80}
            L_c_km:
            ds_read_b128 v[{EA}:{EA+3}], v{VT}
            s_waitcnt lgkmcnt(0)
            v_and_b32 v{EA}, v{EA}, v{EA+1}
            v_and_b32 v{EA+2}, v{EA+2}, v{EA+3}
            v_and_b32 v{EA}, v{EA}, v{EA+2}
            s_nop 0
            v_readfirstlane_b32 s28, v{EA}
            s_cmp_eq_u32 s28, 1
            s_cbranch_scc0 L_c_km
            """)
        if GPK == 3:
            P = lambda x: f"v[{x}:{x+1}]"
            DC = 220 + 6 * tt
            if n % 4 == 0:
                for j, src in enumerate((K1r + tt, K1r + tt, K3r + tt, K3r + tt, VS + tt, VS + tt)): A(f"v_mov_b32 v{DC+j}, v{src}")
            for k in range(0, 8, 2): A(f"v_pk_mul_f32 {P(t0+k)}, {P(c0+k)}, {P(c0+k)}")
            for k in range(0, 8, 2): A(f"v_pk_fma_f32 {P(t0+k)}, {P(t0+k)}, {P(DC+2)}, {P(DC)}")
            for k in range(0, 8, 2): A(f"v_pk_mul_f32 {P(t0+k)}, {P(t0+k)}, {P(c0+k)}")
            for k in range(8): A(f"v_exp_f32 v{t0+k}, v{t0+k}")
            for k in range(0, 8, 2): A(f"v_pk_fma_f32 {P(t0+k)}, {P(t0+k)}, {P(DC+4)}, {P(DC+4)}")
            for k in range(8): A(f"v_rcp_f32 v{t0+k}, v{t0+k}")
            for k in range(0, 8, 2): A(f"v_pk_mul_f32 {P(c0+k)}, {P(c0+k)}, {P(t0+k)}")
        elif GPK == 2 or (GPK and n >= NPK0):
            P = lambda x: f"v[{x}:{x+1}]"
            sel = f"op_sel:[0,{tt},{tt}] op_sel_hi:[1,{tt},{tt}]"
            for k in range(0, 8, 2): A(f"v_pk_mul_f32 {P(t0+k)}, {P(c0+k)}, {P(c0+k)}")
            for k in range(0, 8, 2): A(f"v_pk_fma_f32 {P(t0+k)}, {P(t0+k)}, {P(K3r)}, {P(K1r)} {sel}")
            for k in range(0, 8, 2): A(f"v_pk_mul_f32 {P(t0+k)}, {P(t0+k)}, {P(c0+k)}")
            for k in range(8): A(f"v_exp_f32 v{t0+k}, v{t0+k}")
            for k in range(0, 8, 2): A(f"v_pk_fma_f32 {P(t0+k)}, {P(t0+k)}, {P(VS)}, {P(VS)} {sel}")
            for k in range(8): A(f"v_rcp_f32 v{t0+k}, v{t0+k}")
            for k in range(0, 8, 2): A(f"v_pk_mul_f32 {P(c0+k)}, {P(c0+k)}, {P(t0+k)}")
        else:
            for k in range(8): A(f"v_mul_f32 v{t0+k}, v{c0+k}, v{c0+k}")
            for k in range(8): A(f"v_fma_f32 v{t0+k}, v{t0+k}, v{K3r+tt}, v{K1r+tt}")
            for k in range(8): A(f"v_mul_f32 v{t0+k}, v{t0+k}, v{c0+k}")
            for k in range(8): A(f"v_exp_f32 v{t0+k}, v{t0+k}")
            for k in range(8): A(f"v_fma_f32 v{t0+k}, v{t0+k}, v{VS+tt}, v{VS+tt}")
            for k in range(8): A(f"v_rcp_f32 v{t0+k}, v{t0+k}")
            for k in range(8): A(f"v_mul_f32 v{c0+k}, v{c0+k}, v{t0+k}")
        pk = PK + 4 * (n % 2)
        for k in range(4): A(f"v_cvt_pk_bf16_f32 v{pk+k}, v{c0+2*k}, v{c0+2*k+1}")
        A(f"buffer_store_dwordx4 v[{pk}:{pk+3}], v{VHO1}, s[12:15], s{32 if tt == 0 else 38} offen offset:{(n%4)*1024} {SCH}")
        if env("DBL", 0): A(f"buffer_store_dwordx4 v[{pk}:{pk+3}], v{VHO1}, s[12:15], s{32 if tt == 0 else 38} offen offset:{(n%4)*1024}")
    A.st("gend")
    A("s_mov_b32 s37, 0")
    A("s_branch L_gemm2")

def PERM(g): return g
def c_reads_slot(g):
    if g < 28: return c_reads(g)
    i = [0, 2, 1, 3][g - 28]
    r = c_reads(28 + i)
    kc = 7; st = kc % NS; b = HI; off = (st % 2) * STAGE; sl = g % NR
    tr = lambda ft, sec: f"ds_read_b64_tr_b16 v[{W1+8*sl+4*ft+2*sec}:{W1+8*sl+4*ft+2*sec+1}], v{b+4+2*i+ft} offset:{off + sec*1024}"
    xr = lambda tt: f"ds_read_b128 v[{X1+8*sl+4*tt}:{X1+8*sl+4*tt+3}], v{b+i} offset:{off + tt*4096}"
    return [xr(0), tr(0, 0), tr(0, 1), tr(1, 0), tr(1, 1), xr(1)]

def yflag_off():
    return ["s_lshr_b32 s28, s39, 1", "s_lshl_b32 s29, s2, 1", "s_add_u32 s28, s28, s29", "s_and_b32 s29, s39, 1", "s_lshl_b32 s29, s29, 9",
            "s_add_u32 s28, s28, s29", f"s_lshl_b32 s28, s28, {FS}", f"s_add_u32 s28, s28, {WS_FLY}"]
def ring_ready(vt):
    return ["s_lshl_b32 s28, s39, 2", f"s_add_u32 s28, s28, {L_FLAG+16}", f"v_mov_b32 v{vt}, s28", f"v_mov_b32 v{vt+1}, 1", f"ds_write_b32 v{vt}, v{vt+1}"]

def gen_h1(A):
    VT = VT1
    vm = VMQ()
    vm.note("prm", 8)
    A(f"s_add_u32 s42, s42, {WSOFF}\ns_addc_u32 s43, s43, 0\ns_load_dword s76, s[42:43], {WS_EPOCH}")
    srd(A, 4, "s40", "s41", 2 << 20)
    srd(A, 8, "s44", "s45", 512 * 3584)
    srd(A, 12, "s42", "s43", WS_USED)
    if env("CPF", 1): vm.note("cpf")
    dma_setup(A)
    w2_setup(A, VT)
    if env("MPF", 0):
        A(f"""
        s_lshl_b32 s28, s2, 2
        s_add_u32 s28, s28, s39
        s_lshl_b32 s28, s28, 11
        v_lshlrev_b32 v{VT+2}, 7, v0
        s_mov_b64 exec, 0xffff
        buffer_load_dword v{VDUM}, v{VT+2}, s[16:19], s28 offen
        s_mov_b64 exec, -1
        """)
    if env("TLBW", 0):
        A(f"""
        v_lshlrev_b32 v{VT+2}, {env("TLBS", 20)}, v0
        s_mov_b64 exec, {hex((1 << (WS_USED >> env("TLBS", 20))) - 1)}
        buffer_load_dword v{VDUM}, v{VT+2}, s[12:15], 0 offen
        s_mov_b64 exec, 3
        buffer_load_dword v{VDUM}, v{VT+2}, s[16:19], 0 offen
        global_load_dword v{VDUM}, v{VT+2}, s[52:53]
        s_mov_b64 exec, 1
        global_load_dword v{VDUM}, v{VT+2}, s[50:51]
        s_mov_b64 exec, -1
        """)
        vm.note("tlb", 4)
    kg_waddr(A, L_VS, KWA); A.extend(kg_raddr(L_VS, KRA, VT))
    for a_ in flag_zero(): A.extend(a_)
    if env("BP", 1) >= 0: A("s_barrier")
    A.extend(tail_pre())
    A.st("pre")
    A.extend(vm.wait("prm"))
    A.st("prm")
    A.label("L_kgen_v")
    gen_kgen_v(A)
    A("s_cmp_eq_u32 s77, 7")
    A("s_cbranch_scc1 L_ln_H2")
    A.st("kg")
    A("s_waitcnt lgkmcnt(0)"); A("s_barrier")
    A.st("b0")
    mktag(A)
    UV0, UW = kgen_u_lists(0)
    UV = kgen_u_lists(L_VS)[0] if U6 else UV0
    ar_, mm_ = kg_atoms_m()
    wts = [2, 3, 3, 3, 3, 3]; cum = 0
    for k in range(7 if NB8 else 8):
        if U6 and k == 6:
            A.extend(UW)
            for a_ in ar_: A(a_[0])
            A.extend(ep_early(VT)); vm.note("ep", 2)
        elif NB8 and k == 6:
            if EPE: A.extend(ep_early(VT)); vm.note("ep", 2)
            for sl in range(env("F6N", 2)): A.extend(wdma(sl, sl))
            vm.note("f", 2 * env("F6N", 2))
        elif k <= 5:
            sl_ = UV[len(UV) * cum // sum(wts):len(UV) * (cum + wts[k]) // sum(wts)]; cum += wts[k]
            if k >= 1 or NC0 == 2:
                pcs = []
                for part in range(4):
                    dd = g1_dma(k + 2, part); pcs += [dd[:len(dd)//2], dd[len(dd)//2:]]
                vm.note(k + 2, 8)
                for q, dd in enumerate(pcs):
                    A.extend(dd); A.extend(sl_[len(sl_) * q // 8:len(sl_) * (q + 1) // 8])
            else: A.extend(sl_)
        else:
            for sl in range(4 * (k - 6), 4 * (k - 6) + 4): A.extend(wdma(sl, sl))
            vm.note("f", 8)
        A.st(f"pi{k+1}")
        A.extend(vm.wait(k + 1))
        A("s_barrier")
        A.st(f"ab{k+1}")
    if U6:
        A("s_waitcnt lgkmcnt(0)")
        for sl in range(8):
            A(mm_[sl][1]); A.extend(wdma(sl, sl))
    if NB8:
        if not U6:
            for sl in range(env("F6N", 2), 8): A.extend(wdma(sl, sl))
        A(f"""
        v_mov_b32 v{VT+2}, {L_FLAG+128}
        L_h_rd:
        ds_read_b128 v[32:35], v{VT+2}
        s_waitcnt lgkmcnt(0)
        v_and_b32 v32, v32, v33
        v_and_b32 v34, v34, v35
        v_and_b32 v32, v32, v34
        s_nop 0
        v_readfirstlane_b32 s28, v32
        s_cmp_eq_u32 s28, 1
        s_cbranch_scc0 L_h_rd
        """)
    A.st("loop")
    HT2 = env("HT2", 0)
    if not HT2 and not (U6 and env("FL8", 0)):
        for sl in range(8, 12): A.extend(wdma(sl, sl))
    if U6: A("s_branch L_h_tail2")
    A.label("L_h_tail")
    A(f"s_setprio {env('PRIOX', 0)}")
    lq = LQ(A)
    ar_, mm_ = kg_atoms_m()
    UE = env("UE", 0)
    if UE: A.extend(lnflag_load(36))
    A.st("t0")
    lq.emit(UW)
    A.st("t1")
    for a_ in ar_: lq.emit(a_)
    if GPK == 2:
        A("s_setprio 0")
        A("s_cmp_eq_u32 s77, 7")
        A("s_cbranch_scc1 L_h_gd2")
        A(f"""
        v_mov_b32 v{VT+2}, {L_FLAG+32}
        L_h_gd:
        s_sleep 1
        ds_read_b128 v[32:35], v{VT+2}
        s_waitcnt lgkmcnt(0)
        v_and_b32 v32, v32, v33
        v_and_b32 v34, v34, v35
        v_and_b32 v32, v32, v34
        s_nop 0
        v_readfirstlane_b32 s28, v32
        s_cmp_eq_u32 s28, 1
        s_cbranch_scc0 L_h_gd
        L_h_gd2:
        """)
        A.extend(lnflag_load(36))
    for a_ in mm_: lq.emit(a_)
    A.st("t2")
    if U6:
        A("s_nop 7"); A("s_nop 3")
        A.label("L_h_tail2")
    for a_ in kg_atoms_x1(): lq.emit(a_)
    A(f"ds_write_b32 v{XFL}, v{XONE} offset:80")
    HT3 = 1
    A(lnflag_load(154)[-1])
    A.st("t3")
    lds_wait(A, "L_h_x1", XFP, 80, 32)
    A.st("t4")
    lq.q = []
    if env("PX2", 0): A(f"s_setprio {env('PX2', 0)}")
    for a_ in kg_atoms_x2("g"): lq.emit(a_)
    A("s_setprio 0")
    if U6 and env("FL8", 0):
        A("s_cmp_eq_u32 s77, 7")
        A("s_cbranch_scc1 L_h_f8")
        A("s_waitcnt lgkmcnt(0)")
        for sl in range(8, 12): A.extend(wdma(sl, sl))
        A.label("L_h_f8")
    DF = env("DF", 0)
    if DF:
        A("s_waitcnt vmcnt(0)")
        if DF == 1: A.extend(ring_ready(VT))
        A("s_cmp_eq_u32 s77, 7")
        A("s_cbranch_scc1 L_h_dr2")
        A(f"""
        v_mov_b32 v{VT+2}, {L_FLAG+32}
        L_h_dr:
        s_sleep 1
        ds_read_b128 v[32:35], v{VT+2}
        s_waitcnt lgkmcnt(0)
        v_and_b32 v32, v32, v33
        v_and_b32 v34, v34, v35
        v_and_b32 v32, v32, v34
        s_nop 0
        v_readfirstlane_b32 s28, v32
        s_cmp_eq_u32 s28, 1
        s_cbranch_scc0 L_h_dr
        L_h_dr2:
        """)
    if not HT2 and not HT3 and GPK != 2: A.extend(lnflag_load(VT))
    A.st("ku")
    A(f"v_lshlrev_b32 v18, 4, v0")
    A("s_waitcnt vmcnt(0)")
    if UE: A("s_cmp_eq_u32 s37, 1"); A("s_cbranch_scc1 L_ut_no")
    RT = env("RT", 6)
    if RT:
        A(f"""
        s_mov_b32 s30, 0
        v_cmp_ne_u32 vcc, s76, v{LNF}
        s_cbranch_vccz L_rt_ok
        L_rt:
        s_sleep {PS}
        buffer_load_dword v{LNF}, v154, s[12:15], 0 offen {SC}
        s_add_u32 s30, s30, 1
        s_waitcnt vmcnt(0)
        v_cmp_ne_u32 vcc, s76, v{LNF}
        s_cmp_ge_u32 s30, {RT}
        s_cbranch_scc1 L_rt_ok
        s_cbranch_vccnz L_rt
        L_rt_ok:
        """)
    u_try(A, 18)
    if HT2:
        A("s_cmp_eq_u32 s77, 7")
        A("s_cbranch_scc1 L_h_nof")
        for sl in range(8, 12): A.extend(wdma(sl, sl))
        A("s_branch L_h_f")
        A.label("L_h_nof")
        A.extend(ring_ready(VT))
        A("s_waitcnt vmcnt(0)")
        A.label("L_h_f")
    else:
        A(f"ds_write_b32 v{XFL}, v{XONE} offset:16")
    A.st("gend")
    A("s_branch L_conv")
    A.label("L_ln_H2")
    A("s_waitcnt vmcnt(0) ; RESETSB")
    A("ds_write_b32 v5, v6")
    if EPE: A("s_waitcnt lgkmcnt(0)"); A.extend(ep_early(28))
    A.extend(UV0)
    A.extend(tail_pre())
    A(f"""
    v_mov_b32 v30, {L_FLAG+112+(64 if env('LNW', 0) else 0)}
    L_ln_hv:
    ds_read_b128 v[32:35], v30
    s_waitcnt lgkmcnt(0)
    v_and_b32 v32, v32, v33
    v_and_b32 v34, v34, v35
    v_and_b32 v32, v32, v34
    s_nop 0
    v_readfirstlane_b32 s28, v32
    s_cmp_eq_u32 s28, 1
    s_cbranch_scc0 L_ln_hv
    """)
    A("s_branch L_h_tail")

def gen_gemm1(A):
    A(f"""
    s_load_dwordx8 s[56:63], s[0:1], {KA['A_re']}
    s_load_dwordx8 s[64:71], s[0:1], {KA['C_re']}
    """)
    A("s_cmp_lt_u32 s20, 4")
    A("s_cbranch_scc1 L_g1_C")
    param_loads(A, VT1)
    if env("CPF", 1):
        A(f"""
        s_getpc_b64 s[28:29]
        L_pc0:
        s_sub_u32 s28, s28, L_pc0-{KNAME}
        s_subb_u32 s29, s29, 0
        s_lshl_b32 s30, s24, 2
        s_add_u32 s30, s30, s39
        s_mul_i32 s30, s30, 384
        v_lshl_add_u32 v{VT1+2}, v0, 7, s30
        v_min_u32 v{VT1+2}, L_exit-{KNAME}, v{VT1+2}
        s_mov_b64 exec, 7
        global_load_dword v{VDUM}, v{VT1+2}, s[28:29]
        s_mov_b64 exec, -1
        """)
    A("s_branch L_g1_H")
    A.label("L_g1_C")
    A("s_nop 0 ; RESETSB")
    gen_c1(A)
    A.label("L_g1_H")
    A("s_nop 0 ; RESETSB")
    gen_h1(A)


def gen_ln(A):
    Q, R, O, T = 16, 48, 80, 112
    A(f"""
    s_load_dwordx8 s[56:63], s[0:1], {KA['A_re']}
    s_load_dwordx8 s[64:71], s[0:1], {KA['C_re']}
    v_lshrrev_b32 v1, 3, v0
    v_and_b32 v2, 7, v0
    v_lshlrev_b32 v3, 10, v1
    v_lshl_add_u32 v3, v2, 4, v3
    v_lshlrev_b32 v4, 4, v0
    s_lshl_b32 s25, s21, 6
    s_lshl_b32 s28, s20, 3
    s_add_u32 s25, s25, s28
    s_lshl_b32 s36, s25, 3
    s_add_u32 s36, s36, {WS_STAT}
    s_lshl_b32 s25, s25, 10
    s_add_u32 s26, s25, 4096
    s_waitcnt lgkmcnt(0)
    s_add_u32 s42, s42, {WSOFF}
    s_addc_u32 s43, s43, 0
    s_load_dword s76, s[42:43], {WS_EPOCH}
    """)
    srd(A, 4, "s40", "s41", 2 << 20)
    for t in range(8): A(f"buffer_load_dwordx4 v[{R+4*t}:{R+4*t+3}], v4, s[4:7], s{25 + t//4} offen offset:{(t%4)*1024}")
    srd(A, 12, "s42", "s43", WS_USED)
    NLW = 0
    if LW1:
        srd(A, 8, "s44", "s45", 512 * 3584)
        A(f"""
        s_and_b32 s28, s24, 3
        s_lshl_b32 s28, s28, 3
        s_add_u32 s28, s28, s20
        s_mul_i32 s28, s28, 47
        s_and_b32 s29, s23, 1
        s_mul_i32 s29, s29, 1792
        s_add_u32 s29, s29, {192*3584}
        """)
        for j in range(3):
            A(f"""
            s_add_u32 s30, s28, {j*1504}
            v_add_u32 v{T}, s30, v0
            v_mul_u32_u24 v{T+1}, 0x4925, v{T}
            v_lshrrev_b32 v{T+1}, 18, v{T+1}
            v_mul_u32_u24 v{T+2}, 14, v{T+1}
            v_sub_u32 v{T}, v{T}, v{T+2}
            v_lshlrev_b32 v{T}, 7, v{T}
            v_mul_u32_u24 v{T+1}, 3584, v{T+1}
            v_add_u32 v{T}, v{T}, v{T+1}
            s_mov_b32 exec_hi, 0x7fff
            buffer_load_dword v{VDUM}, v{T}, s[8:11], s29 offen
            s_mov_b32 exec_hi, -1
            """)
        NLW = 3
    A(f"""
    v_mov_b32 v5, 0x3f803f80
    v_mov_b32 v14, 0x00003f80
    v_mov_b32 v15, 0x3f800000
    v_lshlrev_b32 v8, 3, v1
    """)
    S1, S2 = Q, Q + 8
    A("s_setprio 2")
    for t in range(8):
        A(f"s_waitcnt vmcnt({7 - t + NLW})")
        for k in range(4):
            r = R + 4 * t + k
            A(f"v_dot2_f32_bf16 v{S1+t}, v{r}, v5, {'0' if k == 0 else f'v{S1+t}'}")
            A(f"v_dot2_f32_bf16 v{S2+t}, v{r}, v{r}, {'0' if k == 0 else f'v{S2+t}'}")
    for r in range(4):
        for S in (S1, S2): A(f"v_permlane32_swap_b32 v{S+r}, v{S+r+4}")
    for r in range(4):
        for S in (S1, S2): A(f"v_add_f32 v{S+r}, v{S+r}, v{S+r+4}")
    for r in range(2):
        for S in (S1, S2): A(f"v_permlane16_swap_b32 v{S+r}, v{S+r+2}")
    for r in range(2):
        for S in (S1, S2): A(f"v_add_f32 v{S+r}, v{S+r}, v{S+r+2}")
    for r in range(2):
        for S in (S1, S2): A(f"v_add_f32_dpp v{S+r}, v{S+r}, v{S+r} row_ror:8 row_mask:0xf bank_mask:0xf")
    A.extend(mask("0xff00ff00"))
    A(f"""
    v_cndmask_b32 v6, v{S1}, v{S1+1}, s[28:29]
    v_cndmask_b32 v7, v{S2}, v{S2+1}, s[28:29]
    s_waitcnt lgkmcnt(0)
    """)
    mktag(A)
    A(f"""
    v_mov_b32 v11, s76
    v_add_f32_dpp v6, v6, v6 quad_perm:[1,0,3,2] row_mask:0xf bank_mask:0xf
    v_add_f32_dpp v7, v7, v7 quad_perm:[1,0,3,2] row_mask:0xf bank_mask:0xf
    v_add_f32_dpp v6, v6, v6 quad_perm:[2,3,0,1] row_mask:0xf bank_mask:0xf
    v_add_f32_dpp v7, v7, v7 quad_perm:[2,3,0,1] row_mask:0xf bank_mask:0xf
    v_add_f32_dpp v6, v6, v6 row_half_mirror row_mask:0xf bank_mask:0xf
    v_add_f32_dpp v7, v7, v7 row_half_mirror row_mask:0xf bank_mask:0xf
    v_mul_f32 v12, {hex(f2u(1/512))}, v6
    v_mul_f32 v13, {hex(f2u(1/512))}, v7
    v_fma_f32 v13, -v12, v12, v13
    v_max_f32 v13, 0, v13
    """)
    round_bf16(A, 13)
    A(f"v_add_f32 v13, {hex(f2u(1e-5))}, v13")
    round_bf16(A, 13)
    A(f"""
    v_sqrt_f32 v13, v13
    v_cvt_pk_bf16_f32 v10, -v12, v13
    s_mov_b32 exec_lo, 0x01010101
    s_mov_b32 exec_hi, 0x01010101
    buffer_store_dwordx2 v[10:11], v8, s[12:15], s36 offen {SC}
    s_mov_b64 exec, -1
    """)
    A.st("b0")
    A("s_setprio 0")
    param_loads(A, T)
    LPF = env("LPF", 0)
    if LPF:
        srd(A, 16, "s48", "s49", 1792 * 1024)
        A(f"""
        s_lshl_b32 s28, s21, 3
        s_add_u32 s28, s28, s20
        s_mul_i32 s28, s28, {56*128}
        v_min_u32 v{T+2}, 55, v0
        v_lshlrev_b32 v{T+2}, 7, v{T+2}
        buffer_load_dword v{VDUM}, v{T+2}, s[16:19], s28 offen
        """)
    A(f"""
    v_and_b32 v13, 0xffff0000, v10
    v_lshlrev_b32 v12, 16, v10
    v_rcp_f32 v5, v13
    s_nop 0
    v_fma_f32 v13, -v13, v5, 1.0
    v_fma_f32 v13, v13, v5, v5
    """)
    for t in range(8):
        A(f"v_readlane_b32 s{56+t}, v12, {8*t}")
        A(f"v_readlane_b32 s{64+t}, v13, {8*t}")
    A(f"""
    v_xor_b32 v5, s20, v2
    v_lshlrev_b32 v6, 10, v0
    v_lshl_add_u32 v6, v5, 4, v6
    """)

    for tp in range(4):
        t0, t1 = 2 * tp, 2 * tp + 1
        for k in range(4):
            for h in range(2):
                e = 2 * k + h
                A(f"v_dot2_f32_bf16 v{T+2*e}, v{R+4*t0+k}, v{14+h}, s{56+t0}")
                A(f"v_dot2_f32_bf16 v{T+2*e+1}, v{R+4*t1+k}, v{14+h}, s{56+t1}")
        if env("LNX", 1):
            for e in range(8): A(f"v_cvt_pk_bf16_f32 v{T+2*e+1}, v{T+2*e}, v{T+2*e+1}")
            for e in range(8):
                A(f"v_lshlrev_b32 v{T+2*e}, 16, v{T+2*e+1}")
                A(f"v_and_b32 v{T+2*e+1}, 0xffff0000, v{T+2*e+1}")
        for e in range(8): A(f"v_pk_mul_f32 v[{T+2*e}:{T+2*e+1}], v[{T+2*e}:{T+2*e+1}], s[{64+t0}:{64+t1}]")
        for e in range(8): A(f"v_cvt_pk_bf16_f32 v{O+4*e+tp}, v{T+2*e}, v{T+2*e+1}")
        if tp == env("LFP", 3):
            w2_setup(A, 28)
            LF = env("LF", 0)
            A("s_cmp_ge_u32 s20, 4")
            A("s_cbranch_scc1 L_ln_nofill")
            for sl in range(LF): A.extend(wdma(sl, sl))
            A.label("L_ln_nofill")
    for e in range(8): A(f"ds_write_b128 v6, v[{O+4*e}:{O+4*e+3}] offset:{e*128}")
    for a_ in flag_zero(): A.extend(a_)
    A.st("g8")
    A(f"""
    s_lshl_b32 s28, s20, 13
    v_lshlrev_b32 v6, 7, v1
    v_lshl_add_u32 v6, v2, 4, v6
    v_add_u32 v6, s28, v6
    v_lshlrev_b32 v7, {7 if XS else 12}, v1
    v_lshl_add_u32 v7, v2, 4, v7
    s_lshl_b32 s26, s20, {13 if XS else 18}
    s_mul_i32 s28, s21, {XS if XS else 128}
    s_add_u32 s26, s26, s28
    s_add_u32 s26, s26, {WS_XNT}
    s_lshl_b32 s33, s21, {FSL}
    s_add_u32 s33, s33, {WS_FLL}
    """)
    for i in range(8): A(f"v_xor_b32 v{8+i}, {16*i}, v6")
    A("s_waitcnt lgkmcnt(0)")
    A("s_barrier")
    for i in range(8): A(f"ds_read_b128 v[{192+4*i}:{192+4*i+3}], v{8+i} offset:{i*1024}")
    for i in range(8):
        A(f"s_waitcnt lgkmcnt({7-i})")
        A(f"s_add_u32 s25, s26, {i*(1024 if XS else 32768)}")
        A(f"buffer_store_dwordx4 v[{192+4*i}:{192+4*i+3}], v7, s[12:15], s25 offen {SC}")
    A.st("loop")
    A(f"""
    s_lshl_b32 s28, s20, 2
    s_add_u32 s28, s28, {L_FLAG+96}
    v_mov_b32 v5, s28
    v_mov_b32 v6, 1
    s_cmp_lt_u32 s20, 4
    s_cbranch_scc1 L_ln_C
    """)
    kg_waddr(A, L_VS, KWA); A.extend(kg_raddr(L_VS, KRA, 28))
    A(f"s_mov_b32 s33, {WS_DUMMY}")
    if env("LNW", 0):
        A("s_waitcnt vmcnt(0)")
        A("ds_write_b32 v5, v6")
        A("v_add_u32 v5, 64, v5")
    else:
        A("s_waitcnt vmcnt(8)")
    A("s_branch L_kgen_v")
    A.label("L_ln_C")
    A.extend(ya_prefill(T + 2, T + 3, T + 4))
    A(f"""
    v_mov_b32 v30, {L_FLAG+96}
    s_waitcnt vmcnt(0)
    ds_write_b32 v5, v6
    """)
    A.extend(yflag_off()); A.extend(wave_flag("s28", 34))
    A(f"""
    L_ln_cs:
    ds_read_b128 v[36:39], v30
    ds_read_b128 v[40:43], v30 offset:16
    s_waitcnt lgkmcnt(0)
    v_and_b32 v36, v36, v37
    v_and_b32 v38, v38, v39
    v_and_b32 v40, v40, v41
    v_and_b32 v42, v42, v43
    v_and_b32 v36, v36, v38
    v_and_b32 v40, v40, v42
    v_and_b32 v36, v36, v40
    s_nop 0
    v_readfirstlane_b32 s28, v36
    s_cmp_eq_u32 s28, 1
    s_cbranch_scc0 L_ln_cs
    """)
    publish_flag(A, "s33", 32, "l", 0)
    A.st("gstart")
    A(f"s_mov_b32 s33, {WS_DUMMY}")
    if EPE: A.extend(ep_early(28))
    TH = env("TH", 0)
    for sl in range(12):
        A.extend(wdma(sl, sl))
        if TH: A(f"s_waitcnt vmcnt({TH})")
    A("s_waitcnt vmcnt(0)")
    A.st("l1")
    for sl in range(12): A.extend(w2tr(sl, sl))
    LR = env("LR", 0)
    if LR:
        A("s_waitcnt lgkmcnt(0)")
        for sl in range(LR): A.extend(wdma(sl, 12 + sl))
    A(f"""
    v_mov_b32 v28, {L_FLAG+16}
    L_ln_cw:
    ds_read_b128 v[32:35], v28
    s_waitcnt lgkmcnt(0)
    v_and_b32 v32, v32, v33
    v_and_b32 v34, v34, v35
    v_and_b32 v32, v32, v34
    s_nop 0
    v_readfirstlane_b32 s28, v32
    s_cmp_eq_u32 s28, 1
    s_cbranch_scc0 L_ln_cw
    """)
    A.st("l2")
    for sl in range(LR, 12): A.extend(wdma(sl, 12 + sl))
    A.st("l3")
    A(f"""
    s_lshl_b32 s28, s20, 8
    s_add_u32 s28, s28, s2
    s_cmp_lg_u32 s28, 255
    s_cbranch_scc1 L_nobump
    v_lshlrev_b32 v28, {FS+1}, v0
    s_mov_b32 s30, 0
    L_bump_poll:
    """)
    for k in range(4):
        A(f"s_mov_b32 s28, {WS_FLY + k*(128 << FS)}")
        A(f"buffer_load_dword v{32+k}, v28, s[12:15], s28 offen {SC}")
    A(f"""
    s_add_u32 s30, s30, 1
    s_waitcnt vmcnt(0)
    v_xor_b32 v32, s76, v32
    v_xor_b32 v33, s76, v33
    v_xor_b32 v34, s76, v34
    v_xor_b32 v35, s76, v35
    v_or3_b32 v32, v32, v33, v34
    v_or_b32 v32, v32, v35
    v_cmp_ne_u32 vcc, 0, v32
    s_cmp_gt_u32 s30, {SPIN}
    s_cbranch_scc1 L_bump_go
    s_cbranch_vccnz L_bump_poll
    L_bump_go:
    s_mov_b32 s28, {WS_EPOCH}
    """)
    A.extend(wave_flag("s28", 28))
    A.label("L_nobump")
    A("s_mov_b32 s37, 1")
    A("s_branch L_gemm2")


def final_addr(A):
    A(f"""
    v_lshrrev_b32 v1, 3, v0
    v_and_b32 v2, 7, v0
    v_lshlrev_b32 v{VOO}, 10, v1
    v_lshl_add_u32 v{VOO}, v2, 4, v{VOO}
    v_lshlrev_b32 v3, 4, v2
    s_lshl_b32 s33, s78, 6
    s_lshl_b32 s28, s20, 3
    s_add_u32 s33, s33, s28
    s_lshl_b32 s33, s33, 10
    s_lshl_b32 s34, s79, 7
    s_add_u32 s33, s33, s34
    """)
def ep_loads():
    o = Asm()
    srd(o, 8, "s50", "s51", 1024)
    o(f"buffer_load_dwordx4 v[{VX}:{VX+3}], v{VOO}, s[4:7], s33 offen")
    o(f"buffer_load_dwordx4 v[{VB2}:{VB2+3}], v3, s[8:11], s34 offen")
    return o.lines


def ep_early(vt):
    return [f"v_lshrrev_b32 v{vt}, 3, v0", f"v_and_b32 v{vt+1}, 7, v0", f"v_lshlrev_b32 v{vt}, 10, v{vt}", f"v_lshlrev_b32 v{vt+1}, 4, v{vt+1}",
            f"v_add_u32 v{vt}, v{vt}, v{vt+1}", "s_lshl_b32 s29, s78, 6", "s_lshl_b32 s28, s20, 3", "s_add_u32 s29, s29, s28", "s_lshl_b32 s29, s29, 10",
            "s_lshl_b32 s30, s79, 7", "s_add_u32 s29, s29, s30", "s_mov_b32 s8, s50", "s_mov_b32 s9, s51", "s_mov_b32 s10, 1024", "s_mov_b32 s11, 0x00020000",
            f"buffer_load_dwordx4 v[{VX}:{VX+3}], v{vt}, s[4:7], s29 offen", f"buffer_load_dwordx4 v[{VB2}:{VB2+3}], v{vt+1}, s[8:11], s30 offen"]

def gen_gemm2(A):
    VHO, VTR2, VP, VT = 13, 14, 18, 22
    ACC, W, H = ACC2, W2R, HR
    if PRIO_G: A(f"s_setprio {PRIO_G}")
    A("s_mov_b32 s22, s33")
    final_addr(A)
    for k in range(4): A(f"v_mov_b32 v{VTR2+k}, v{VTL+k}")
    A(f"""
    v_lshlrev_b32 v{VHO}, 4, v0
    v_lshrrev_b32 v{VT}, 5, v0
    v_xor_b32 v{VT}, v{VT}, v2
    v_and_b32 v{VP}, 31, v0
    v_lshlrev_b32 v{VP}, 8, v{VP}
    v_lshl_add_u32 v{VP}, v{VT}, 4, v{VP}
    v_add_u32 v{VP}, s73, v{VP}
    v_xor_b32 v{VP+1}, 32, v{VP}
    v_xor_b32 v{VP+2}, 64, v{VP}
    v_xor_b32 v{VP+3}, 96, v{VP}
    s_mul_i32 s24, s78, {2*112*1024}
    s_mul_i32 s28, s20, {28*1024}
    s_add_u32 s24, s24, s28
    s_add_u32 s24, s24, {WS_HF}
    s_add_u32 s25, s24, {112*1024}
    s_mul_i32 s26, s20, {1 if HP else 7}
    s_lshl_b32 s28, s78, {2 if HP else 5}
    s_add_u32 s26, s26, s28
    s_lshl_b32 s26, s26, 7
    s_add_u32 s26, s26, {WS_FLH}
    v_min_u32 v{VT}, 6, v2
    v_lshlrev_b32 v{VT}, {2 if HP else 7}, v{VT}
    s_lshl_b32 s28, s20, 2
    s_add_u32 s28, s28, {L_FLAG+16}
    v_mov_b32 v{ACC+4}, s28
    v_mov_b32 v{ACC+5}, 1
    ds_write_b32 v{ACC+4}, v{ACC+5} offset:16
    s_mov_b32 s30, 0
    s_cmp_eq_u32 s37, 1
    s_cbranch_scc1 L_g2_poll
    """)
    A.st("prew")
    A("s_waitcnt vmcnt(0)")
    A.extend(wave_flag("s22", ACC))
    A.st("p2bar")
    A(f"""
    L_g2_rr:
    ds_read_b32 v{ACC+5}, v{ACC+4}
    s_waitcnt lgkmcnt(0)
    v_readfirstlane_b32 s28, v{ACC+5}
    s_cmp_eq_u32 s28, 1
    s_cbranch_scc0 L_g2_rr
    """)
    for sl in range(3): A.extend(w2tr(sl, sl, VTR2))
    for sl in range(12):
        left = min(12, sl + 3) - sl - 1
        A(f"s_waitcnt lgkmcnt({4*left})")
        if sl + 3 < 12: A.extend(w2tr(sl + 3, sl + 3, VTR2))
        if EP and sl == 12 - EP: A(f"buffer_load_dword v{ACC+2}, v{VT}, s[12:15], s26 offen {SC}")
        A.extend(wdma(sl, 12 + sl))
    if EP:
        A(f"""
        s_waitcnt vmcnt({2*EP})
        v_cmp_ne_u32 vcc, s76, v{ACC+2}
        s_cbranch_vccz L_g2_go
        """)
    A.st("s5")
    A.label("L_g2_poll")
    if PG: A(f"s_sleep {PG}")
    A(f"""
    buffer_load_dword v{ACC+2}, v{VT}, s[12:15], s26 offen {SC}
    s_add_u32 s30, s30, 1
    s_waitcnt vmcnt(0)
    v_cmp_ne_u32 vcc, s76, v{ACC+2}
    s_cmp_gt_u32 s30, {SPIN}
    s_cbranch_scc1 L_g2_go
    s_cbranch_vccnz L_g2_poll
    """)
    A.label("L_g2_go")
    vm = VMQ()
    for sl in range(12 - EP, 12): vm.note(("w", 12 + sl), 2)
    A.st("s6")
    def hload(kp):
        sl = kp % HD
        vm.note(("h", kp), 2)
        return koff("s31", ORDER[kp]) + ["s_add_u32 s27, s31, s24", "s_add_u32 s31, s31, s25",
                                  f"buffer_load_dwordx4 v[{H+8*sl}:{H+8*sl+3}], v{VHO}, s[12:15], s27 offen {SCL}",
                                  f"buffer_load_dwordx4 v[{H+8*sl+4}:{H+8*sl+7}], v{VHO}, s[12:15], s31 offen {SCL}"]
    if env("DYN", 0):
        free = [H + 8 * i for i in range(HD)]
        hb, wb = {}, {k: W + 8 * k for k in range(12)}
        lq = LQ(A)
        nh = [0]; nt = [12]
        MAXH = env("MAXH", 16)
        def hl(kp):
            r = free.pop(0); hb[kp] = r; vm.note(("h", kp), 2)
            A.extend(koff("s31", kp) + ["s_add_u32 s27, s31, s24", "s_add_u32 s31, s31, s25",
                     f"buffer_load_dwordx4 v[{r}:{r+3}], v{VHO}, s[12:15], s27 offen {SCL}",
                     f"buffer_load_dwordx4 v[{r+4}:{r+7}], v{VHO}, s[12:15], s31 offen {SCL}"])
        def tl(k):
            r = free.pop(0); wb[k] = r
            A.extend(vm.wait(("w", k)))
            a_ = slot_addr((k - 12) % 12); hi = a_ >> 16; a_ &= 0xffff
            lq.emit([f"ds_read_b64_tr_b16 v[{r+4*db+2*sec}:{r+4*db+2*sec+1}], v{VTR2+2*hi+db} offset:{a_+sec*1024}" for db in range(2) for sec in range(2)], ("t", k))
        for kp in range(HD): hl(kp); nh[0] += 1
        if PRIO_G: A(f"s_setprio {env('PRIOG2', 0)}")
        def mfm(kp, tb, db):
            c = ACC + 32 * tb + 16 * db
            cin = "0" if kp == 0 else f"v[{c}:{c+15}]"
            return f"v_mfma_f32_32x32x16_bf16 v[{c}:{c+15}], v[{wb[kp]+4*db}:{wb[kp]+4*db+3}], v[{hb[kp]+4*tb}:{hb[kp]+4*tb+3}], {cin}"
        f3 = [24]
        for kp in range(24):
            lq.wait(("t", kp))
            A.extend(vm.wait(("h", kp)))
            if kp in (4, 9, 14, 19): A.st(f"k{kp}")
            A(mfm(kp, 0, 0))
            if kp >= 1: free.extend([hb[kp - 1], wb[kp - 1]])
            ahead = env("TAH", 3) if kp < 20 else 4
            while nt[0] < 28 and nt[0] <= kp + ahead and free and (nt[0] < 24 or nt[0] < f3[0]): tl(nt[0]); nt[0] += 1
            A(mfm(kp, 0, 1))
            if nh[0] < 28 and len(free) > 1 and nh[0] - kp < MAXH: hl(nh[0]); nh[0] += 1
            A(mfm(kp, 1, 0))
            if nh[0] < 28 and len(free) > 1 and nh[0] - kp < MAXH: hl(nh[0]); nh[0] += 1
            if f3[0] < 28 and f3[0] - 12 <= kp + 1 and f3[0] - 12 < nt[0] - 1:
                lq.wait(("t", f3[0] - 12))
                A.extend(wdma(f3[0] - 24, f3[0])); vm.note(("w", f3[0]), 2); f3[0] += 1
            if kp == env("SIGK", 19):
                lq.emit(["s_lshl_b32 s28, s20, 2", f"s_add_u32 s28, s28, {L_FLAG+48}", f"v_mov_b32 v{VT}, s28", f"v_mov_b32 v{VHO}, 1", f"ds_write_b32 v{VT}, v{VHO}"])
                assert nh[0] == 28
            A(mfm(kp, 1, 1))
            if kp == 0: A.st("k0")
        assert nh[0] == 28 and nt[0] == 28, (nh, nt)
        pw = lambda tb, db: [f"ds_write_b128 v{VP+q}, v[{ACC+32*tb+16*db+4*q}:{ACC+32*tb+16*db+4*q+3}] offset:{tb*32768+db*128}" for q in range(4)]
        A("s_waitcnt lgkmcnt(0)")
        A.extend(vm.wait(("h", 27)))
        prev = []
        for tb in range(2):
            for db in range(2):
                for j, kp in enumerate(range(24, 28)):
                    A(mfm(kp, tb, db))
                    if j >= 1 and prev: A.extend(prev[:2]); prev = prev[2:]
                A.extend(prev); prev = pw(tb, db)
        A.st("s7")
        A.extend(prev)
        A("s_waitcnt vmcnt(0) lgkmcnt(0)")
        A("s_branch L_final")
        return
    H0 = env("H0", 9)
    for kp in range(H0): A.extend(hload(kp))
    nh = [H0]
    def more(kp, n):
        for _ in range(n):
            if nh[0] < 28 and nh[0] <= kp - 1 + HD:
                A.extend(hload(nh[0])); nh[0] += 1
    if PRIO_G: A(f"s_setprio {env('PRIOG2', 0)}")
    inring = lambda k: ORDER[k] >= 12
    wset = lambda k: ((k % 2) if k < 24 else k - 24) if inring(k) else ORDER[k]
    slot_of = lambda k: (ORDER[k] - 12) % 12
    for kp in range(28 - TS):
        nx = kp + 1
        if TS and kp >= 20 and kp < 24: nx = kp + 4
        if TS and kp >= 24: nx = 99
        if inring(kp): A("s_waitcnt lgkmcnt(0)")
        A.extend(vm.wait(("h", kp)))
        if kp in (4, 9, 14, 19): A.st(f"k{kp}")
        b = W + 8 * wset(kp); sl = kp % HD
        mf = []
        for tb in range(2):
            for db in range(2):
                c = ACC + 32 * tb + 16 * db
                cin = "0" if kp == 0 else f"v[{c}:{c+15}]"
                mf.append(f"v_mfma_f32_32x32x16_bf16 v[{c}:{c+15}], v[{b+4*db}:{b+4*db+3}], v[{H+8*sl+4*tb}:{H+8*sl+4*tb+3}], {cin}")
        A(mf[0])
        if nx < 28 and inring(nx):
            A.extend(vm.wait(("w", ORDER[nx])))
            A.extend(w2tr(slot_of(nx), wset(nx), VTR2))
        A(mf[1])
        more(kp, 1)
        A(mf[2])
        more(kp, 1)
        if 12 <= ORDER[kp] < 16:
            A.extend(wdma(ORDER[kp] - 12, ORDER[kp] + 12)); vm.note(("w", ORDER[kp] + 12), 2)
        if kp == 20 and not EPE:
            A.extend(ep_loads()); vm.note("ep", 2)
        if kp == env("SIGK", 19):
            A(f"""
            s_lshl_b32 s28, s20, 2
            s_add_u32 s28, s28, {L_FLAG+48}
            v_mov_b32 v{VT}, s28
            v_mov_b32 v{W}, 1
            ds_write_b32 v{VT}, v{W}
            """)
        A(mf[3])
        if kp == 0: A.st("k0")
    pw = lambda tb, db: [f"ds_write_b128 v{VP+q}, v[{ACC+32*tb+16*db+4*q}:{ACC+32*tb+16*db+4*q+3}] offset:{tb*32768+db*128}" for q in range(4)]
    if TS:
        A("s_waitcnt lgkmcnt(0)")
        A.extend(vm.wait(("h", 27)))
        prev = []
        for tb in range(2):
            for db in range(2):
                c = ACC + 32 * tb + 16 * db
                for j, kp in enumerate(range(28 - TS, 28)):
                    b_ = W + 8 * wset(kp); sl = kp % HD
                    A(f"v_mfma_f32_32x32x16_bf16 v[{c}:{c+15}], v[{b_+4*db}:{b_+4*db+3}], v[{H+8*sl+4*tb}:{H+8*sl+4*tb+3}], v[{c}:{c+15}]")
                    if j >= 1 and prev: A.extend(prev[:2]); prev = prev[2:]
                A.extend(prev); prev = pw(tb, db)
        A.st("s7")
        A.extend(prev)
    else:
        A.st("s7")
        for tb in range(2):
            for db in range(2): A.extend(pw(tb, db))
    A("s_waitcnt vmcnt(0) lgkmcnt(0)")
    A("s_branch L_final")


def gen_conv(A):
    if PRIO_C: A(f"s_setprio {PRIO_C}")
    VTA, VF = 32, 36
    VXN, VBW, VOWN, VPAR = 37, 38, 39, 40
    T0 = 42
    dsk = P0 + 7
    ACC = 48; FB = [80, 112]; TB = [144, 208]
    XN = 196
    final_addr(A)
    A(f"""
    s_mov_b32 s21, s39
    s_lshr_b32 s35, s21, 1
    s_and_b32 s36, s21, 1
    s_mul_i32 s38, s35, {CH_SIZE}
    s_add_u32 s38, s38, {L_CH}
    s_lshl_b32 s27, s21, 13
    s_add_u32 s27, s27, {L_ST2}
    s_xor_b32 s32, s27, {ST2}
    v_and_b32 v{T0}, 15, v0
    v_lshrrev_b32 v{T0+1}, 4, v0
    v_and_b32 v{T0+2}, 1, v0
    v_mul_u32_u24 v{T0+2}, {OFF_O + 2 - OFF_E}, v{T0+2}
    s_lshl_b32 s31, s36, 8
    s_sub_u32 s31, s38, s31
    s_add_u32 s29, s31, {OFF_O + 2*2032 - 512 - 192}
    v_lshlrev_b32 v{T0+3}, 1, v{T0}
    v_sub_u32 v{VTA}, s29, v{T0+3}
    v_lshl_add_u32 v{VTA}, v{T0+1}, 4, v{VTA}
    v_sub_u32 v{VTA}, v{VTA}, v{T0+2}
    v_subrev_u32 v{VTA+1}, 1024, v{VTA}
    v_subrev_u32 v{VTA+2}, 2048, v{VTA}
    v_subrev_u32 v{VTA+3}, 3072, v{VTA}
    """)
    def freads(rr, fb): return [f"ds_read_b128 v[{fb+4*m}:{fb+4*m+3}], v{VF} offset:{512*m + 64*(3-rr)}" for m in range(8)]
    def treads(rr, tb):
        o = []
        for i in range(8):
            off = 128 * (1 - (i & 1)) + 16 * (3 - rr)
            o.append(f"ds_read2_b32 v[{tb+4*i}:{tb+4*i+1}], v{VTA+i//2} offset0:{off} offset1:{off+1}")
            o.append(f"ds_read2_b32 v[{tb+4*i+2}:{tb+4*i+3}], v{VTA+i//2} offset0:{off+2} offset1:{off+3}")
        return o
    A(f"""
    v_lshl_add_u32 v19, v0, 4, s38
    s_add_u32 s29, s31, {480 - 192}
    v_lshlrev_b32 v{VF}, 5, v{T0}
    v_lshl_add_u32 v{VF}, v{T0+1}, 4, v{VF}
    v_add_u32 v{VF}, s29, v{VF}
    v_lshlrev_b32 v{VXN}, 5, v{T0}
    v_lshl_add_u32 v{VXN}, v{T0+1}, 3, v{VXN}
    v_add_u32 v{VBW}, s27, v{VXN}
    s_lshl_b32 s28, s36, 11
    s_add_u32 s28, s28, s38
    v_add_u32 v{VXN}, s28, v{VXN}
    v_lshl_add_u32 v{VOWN}, v0, 4, s27
    v_lshl_add_u32 v{VPAR}, v0, 4, s32
    v_mov_b32 v13, 1
    s_lshl_b32 s29, s21, 2
    s_add_u32 s29, s29, {L_FLAG}
    v_mov_b32 v14, s29
    s_xor_b32 s29, s29, 4
    v_mov_b32 v15, s29
    v_lshlrev_b32 v18, 4, v0
    """)
    A(f"""
    L_cv_ex:
    ds_read_b32 v16, v15 offset:64
    s_waitcnt lgkmcnt(0)
    v_readfirstlane_b32 s28, v16
    s_cmp_eq_u32 s28, 1
    s_cbranch_scc0 L_cv_ex
    """)
    A.extend(treads(0, TB[0]))
    A("s_cmp_eq_u32 s37, 1")
    A("s_cbranch_scc1 L_cv_uok")
    if env("HT2", 0): A("s_waitcnt vmcnt(0)"); A.extend(ring_ready(20))
    u_spin(A, 20, 18)
    A.label("L_cv_uok")
    A(f"s_waitcnt vmcnt({8 if env('HT2', 0) else 0})")
    if not UDMA:
        for k in range(4): A(f"ds_write_b128 v19, v[{XL+4*k}:{XL+4*k+3}] offset:{512 + k*1024}")
    A.extend(freads(0, FB[0]))
    A.st("s4")
    if GPK == 1:
        A(f"""
        v_mov_b32 v17, {L_FLAG+32}
        L_cv_gd:
        ds_read_b128 v[20:23], v17
        s_waitcnt lgkmcnt(0)
        v_and_b32 v20, v20, v21
        v_and_b32 v22, v22, v23
        v_and_b32 v20, v20, v22
        s_nop 0
        v_readfirstlane_b32 s28, v20
        s_cmp_eq_u32 s28, 1
        s_cbranch_scc0 L_cv_gd
        """)
    A.st("s5")
    for rp in range(4):
        fb, tb = FB[rp % 2], TB[rp % 2]
        mm = []
        for i in range(8):
            for j in range(i, 8):
                cin = "0" if (rp == 0 and i == 0) else f"v[{ACC+4*j}:{ACC+4*j+3}]"
                mm.append(f"v_mfma_f32_16x16x32_bf16 v[{ACC+4*j}:{ACC+4*j+3}], v[{tb+4*i}:{tb+4*i+3}], v[{fb+4*(j-i)}:{fb+4*(j-i)+3}], {cin}")
        if rp == 1:
            if env("HT2", 0): A("s_waitcnt vmcnt(0)"); A.extend(ring_ready(20))
            if not EPE: A.extend(ep_loads())
        if HT and rp == env("HTP", 3):
            A(f"""
            s_lshl_b32 s28, s24, 2
            s_add_u32 s28, s28, s21
            s_mul_i32 s28, s28, {56*128}
            s_mul_i32 s29, s23, {8*112*1024}
            s_add_u32 s28, s28, s29
            s_add_u32 s28, s28, {WS_HF}
            v_min_u32 v{T0}, 55, v0
            v_lshlrev_b32 v{T0}, 7, v{T0}
            buffer_load_dword v20, v{T0}, s[12:15], s28 offen {SC}
            """)
        if rp == 0:
            o = []
            for j in range(8): o += [f"s_waitcnt lgkmcnt({7-j})", mm[j]]
            mm = o + interleave(mm[8:], freads(1, FB[1]) + treads(1, TB[1]), 0, 22)
        else:
            A("s_waitcnt lgkmcnt(0)")
            if rp < 3: mm = interleave(mm, freads(rp + 1, FB[(rp + 1) % 2]) + treads(rp + 1, TB[(rp + 1) % 2]), 0, 26)
            else: mm = interleave(mm, [f"ds_read_b64 v[{XN+2*a_}:{XN+2*a_+1}], v{VXN} offset:{512 + a_*512}" for a_ in range(4)], 0, 8)
        A.extend(mm)
    A.st("s6")
    A("s_cmp_eq_u32 s36, 1")
    A("s_cbranch_scc1 L_cv_x1")
    for a_ in range(4): A(f"ds_write_b128 v{VOWN}, v[{ACC+16+4*a_}:{ACC+16+4*a_+3}] offset:{4096 + a_*1024}")
    A("ds_write_b32 v14, v13")
    A("s_branch L_cv_out")
    A.label("L_cv_x1")
    A("s_nop 7")
    for a_ in range(4): A(f"ds_write_b128 v{VOWN}, v[{ACC+4*a_}:{ACC+4*a_+3}] offset:{4096 + a_*1024}")
    A("ds_write_b32 v14, v13")
    for k in range(16): A(f"v_mov_b32 v{ACC+k}, v{ACC+16+k}")
    A.label("L_cv_out")
    A(f"""
    """)
    A.extend(ya_addr(41, T0))
    A(f"""
    v_mov_b32 v{T0+2}, 0xfffffffe
    s_waitcnt lgkmcnt(5)
    """)
    t = 80; z = 96; YP = 112
    for k in range(8):
        A(f"v_lshlrev_b32 v{t+2*k}, 16, v{XN+k}")
        A(f"v_and_b32 v{t+2*k+1}, 0xffff0000, v{XN+k}")
    for k in range(16): A(f"v_fma_f32 v{ACC+k}, v{t+k}, v{dsk}, v{ACC+k}")
    A.label("L_cv_ps1")
    A(f"""
    ds_read_b32 v16, v15
    s_waitcnt lgkmcnt(0)
    v_readfirstlane_b32 s28, v16
    s_cmp_eq_u32 s28, 1
    s_cbranch_scc0 L_cv_ps1
    """)
    for a_ in range(4): A(f"ds_read_b128 v[{YP+4*a_}:{YP+4*a_+3}], v{VPAR} offset:{4096 + a_*1024}")
    for a_ in range(4):
        A("s_waitcnt lgkmcnt(3)")
        for k in range(4): A(f"v_add_f32 v{ACC+4*a_+k}, v{ACC+4*a_+k}, v{YP+4*a_+k}")
        for k in range(2): A(f"v_cvt_pk_bf16_f32 v{z+2*a_+k}, v{ACC+4*a_+2*k}, v{ACC+4*a_+2*k+1}")
        for k in range(2): A(f"v_min_u32 v{z+2*a_+k}, v{z+2*a_+k}, v{T0+2}")
        A(f"ds_write_b64 v{VBW}, v[{z+2*a_}:{z+2*a_+1}] offset:{a_*512}")
    for h in range(2): A(f"ds_read_b128 v[{t+4*h}:{t+4*h+3}], v{VOWN} offset:{h*1024}")
    for h in range(2):
        A(f"s_waitcnt lgkmcnt({1-h})")
        A(f"buffer_store_dwordx4 v[{t+4*h}:{t+4*h+3}], v41, s[12:15], s{30+h} offen {SC}")
    Y = 160
    A(f"""
    v_lshlrev_b32 v{T0}, 8, v1
    v_lshl_add_u32 v{T0}, v2, 4, v{T0}
    s_lshl_b32 s28, s79, 5
    s_add_u32 s28, s28, s78
    s_lshl_b32 s28, s28, 13
    s_lshl_b32 s29, s21, 11
    s_add_u32 s28, s28, s29
    s_add_u32 s28, s28, {WS_YA}
    v_lshlrev_b32 v{T0+1}, 8, v2
    v_lshl_add_u32 v{T0+1}, v2, 4, v{T0+1}
    v_lshl_add_u32 v{T0+1}, v1, 2, v{T0+1}
    v_add_u32 v{T0+1}, s27, v{T0+1}
    v_mov_b32 v{T0+3}, 0x05040100
    v_mov_b32 v{T0+4}, 0x07060302
    s_mov_b32 s30, 0
    """)
    A.st("s7")
    A(f"""
    v_mov_b32 v17, {L_FLAG+48}
    s_setprio {env("PW", 1)}
    L_cv_w19:
    s_sleep {env("SW19", 2)}
    ds_read_b128 v[20:23], v17
    s_waitcnt lgkmcnt(0)
    v_and_b32 v20, v20, v21
    v_and_b32 v22, v22, v23
    v_and_b32 v20, v20, v22
    s_nop 0
    v_readfirstlane_b32 s29, v20
    s_cmp_eq_u32 s29, 1
    s_cbranch_scc0 L_cv_w19
    L_cv_poll2:
    buffer_load_dwordx4 v[{Y}:{Y+3}], v{T0}, s[12:15], s28 offen {SC}
    buffer_load_dwordx4 v[{Y+4}:{Y+7}], v{T0}, s[12:15], s28 offen offset:128 {SC}
    s_waitcnt vmcnt(0)
    v_max_u32 v{Y+8}, v{Y}, v{Y+1}
    v_max3_u32 v{Y+8}, v{Y+8}, v{Y+2}, v{Y+3}
    v_max3_u32 v{Y+8}, v{Y+8}, v{Y+4}, v{Y+5}
    v_max3_u32 v{Y+8}, v{Y+8}, v{Y+6}, v{Y+7}
    v_cmp_eq_u32 vcc, -1, v{Y+8}
    s_cbranch_vccz L_cv_got
    s_sleep 4
    s_add_u32 s30, s30, 1
    s_cmp_lt_u32 s30, {SPIN}
    s_cbranch_scc1 L_cv_poll2
    """)
    A.label("L_cv_got")
    A.st("got")
    for k in range(4):
        A(f"v_perm_b32 v{Y+8+2*k}, v{Y+4+k}, v{Y+k}, v{T0+3}")
        A(f"v_perm_b32 v{Y+9+2*k}, v{Y+4+k}, v{Y+k}, v{T0+4}")
    for i in range(8): A(f"ds_write_b32 v{T0+1}, v{Y+8+i} offset:{i*32}")
    A("s_waitcnt lgkmcnt(0)")


def gen_final(A):
    P = 32
    A(f"""
    v_lshlrev_b32 v13, 1, v2
    v_xor_b32 v13, v13, v1
    v_lshlrev_b32 v13, 4, v13
    v_lshl_add_u32 v13, v1, 8, v13
    s_and_b32 s28, s20, 3
    s_lshl_b32 s28, s28, 11
    s_lshr_b32 s29, s20, 2
    s_lshl_b32 s29, s29, 15
    s_add_u32 s28, s28, s29
    v_add_u32 v13, s28, v13
    v_xor_b32 v14, 16, v13
    v_lshrrev_b32 v15, 1, v2
    v_lshlrev_b32 v15, 13, v15
    v_lshl_add_u32 v15, v1, 5, v15
    v_and_b32 v16, 1, v2
    v_lshl_add_u32 v15, v16, 4, v15
    s_mul_i32 s28, s20, 272
    s_add_u32 s28, s28, {L_ST2}
    v_add_u32 v15, s28, v15
    """)
    srd(A, 8, "s52", "s53", 2 << 20)
    X, Yv, B = 64, 72, 80
    def unpack(d, s_):
        for k in range(4):
            A(f"v_lshlrev_b32 v{d+2*k}, 16, v{s_+k}")
            A(f"v_and_b32 v{d+2*k+1}, 0xffff0000, v{s_+k}")
    def pack(d, s_):
        for k in range(4): A(f"v_cvt_pk_bf16_f32 v{d+k}, v{s_+2*k}, v{s_+2*k+1}")
    unpack(X, VX); unpack(B, VB2)
    if not FR:
        for k in range(8): A(f"v_add_f32 v{X+k}, v{X+k}, v{B+k}")
    A("s_barrier")
    A.st("fin")
    A(f"ds_read_b128 v[16:19], v15")
    for w in range(4):
        A(f"ds_read_b128 v[{P+8*w}:{P+8*w+3}], v13 offset:{w*8192}")
        A(f"ds_read_b128 v[{P+8*w+4}:{P+8*w+7}], v14 offset:{w*8192}")
    A("s_waitcnt lgkmcnt(8)")
    unpack(Yv, 16)
    for k in range(8): A(f"v_add_f32 v{X+k}, v{X+k}, v{Yv+k}")
    if FR: pack(20, X); unpack(X, 20)
    A("s_waitcnt lgkmcnt(4)")
    for k in range(8): A(f"v_add_f32 v{P+k}, v{P+k}, v{P+8+k}")
    A("s_waitcnt lgkmcnt(0)")
    for k in range(8): A(f"v_add_f32 v{P+16+k}, v{P+16+k}, v{P+24+k}")
    for k in range(8): A(f"v_add_f32 v{P+k}, v{P+k}, v{P+16+k}")
    if FR:
        pack(24, P); unpack(P, 24)
        for k in range(8): A(f"v_add_f32 v{P+k}, v{P+k}, v{B+k}")
        pack(24, P); unpack(P, 24)
    for k in range(8): A(f"v_add_f32 v{P+k}, v{P+k}, v{X+k}")
    pack(28, P)
    A(f"buffer_store_dwordx4 v[28:31], v{VOO}, s[8:11], s33 offen {os.environ.get('SCO', '')}")
    if STAMPS: A("s_waitcnt vmcnt(0)")
    A.stamp_flush(0)
    A("s_endpgm")


DOC = '''; ---------------------------------------------------------------------------------------------
;  hand-offs: sc1 stores + per-wave tag flags (tag = LCG(epoch word in d_ws), epoch advanced inside the launch),
;             y via sentinel prefill; placement (wg%8) is used for cache locality only.
; ---------------------------------------------------------------------------------------------
'''

def gen():
    A = Asm()
    A.stamp(0, True); A.stamp(1)
    for k in range(2, 9): A.stamp(k)
    A(f"""
    s_cmp_ge_u32 s2, 256
    s_cbranch_scc1 L_exit
    s_add_u32 s2, s2, {env("IDR", 224)}
    s_and_b32 s2, s2, 255
    s_load_dwordx2 s[40:41], s[0:1], {KA['u']}
    s_load_dwordx8 s[44:51], s[0:1], {KA['w1']}
    s_load_dwordx4 s[52:55], s[0:1], {KA['out']}
    s_load_dwordx2 s[42:43], s[0:1], {KA['ws']}
    v_lshrrev_b32 v1, 6, v0
    v_and_b32 v0, 63, v0
    s_and_b32 s23, s2, 7
    s_lshr_b32 s24, s2, 3
    v_readfirstlane_b32 s20, v1
    s_and_b32 s25, s24, 3
    s_lshr_b32 s77, s24, 2
    s_and_b32 s79, s77, 3
    s_cmp_eq_u32 s79, 3
    s_cselect_b32 s79, {4 if env("SW", 1) else 0}, 0
    s_xor_b32 s79, s79, s77
    s_lshl_b32 s78, s23, 2
    s_add_u32 s78, s78, s25
    s_mul_i32 s74, {'s23' if ROT & 4 else 's79'}, {3584 if ROT & 5 else 0}
    s_and_b32 s74, s74, 0xfffffc00
    s_mul_i32 s75, s25, {7168 if ROT & 2 else 0}
    s_add_u32 s74, s74, s75
    s_sub_u32 s75, s74, {28*1024}
    s_min_u32 s74, s74, s75
    s_and_b32 s39, s20, 3
    s_cmp_eq_u32 s77, 7
    s_cbranch_scc1 L_ln
    """)
    if LOC:
        A("""
        s_and_b32 s21, s24, 1
        s_lshl_b32 s22, s23, 1
        s_add_u32 s21, s21, s22
        s_lshr_b32 s22, s24, 1
        """)
    else:
        A("""
        s_lshr_b32 s21, s23, 1
        s_lshl_b32 s21, s21, 2
        s_add_u32 s21, s21, s25
        s_and_b32 s22, s23, 1
        s_mul_i32 s22, s22, 7
        s_add_u32 s22, s22, s77
        """)
    gen_gemm1(A)
    A.label("L_ln")
    A("s_nop 0 ; RESETSB")
    A("s_mov_b32 s21, s78")
    gen_ln(A)
    A.label("L_gemm2")
    A("s_nop 1 ; RESETSB")
    gen_gemm2(A)
    A.label("L_conv")
    A("s_nop 1 ; RESETSB")
    gen_conv(A)
    A.label("L_final")
    A("s_nop 7")
    gen_final(A)
    A.label("L_exit")
    A("s_endpgm")
    lines = fix_hazards(A.lines, verbose=True)
    check_waits(lines, "s")
    head = open("parallel_sum__ssm_conv_s4__dense_activation_gelu__prompt.s.ref").read().split("; Override launch")[0]
    head += DOC
    head += f"; @launch grid=(256,1,1) block=(512,1,1) lds={LDS_TOTAL}\n.amdgcn_target \"amdgcn-amd-amdhsa--gfx950\"\n"
    return head + kernel_section(KNAME, lines, 256, 102, 256)

if __name__ == "__main__":
    out = sys.argv[1] if len(sys.argv) > 1 else "cur8.s"
    open(out, "w").write(gen())
    print("wrote", out)
```

```python
from asmlib import *
import struct, math, os, sys

def f2u(x): return struct.unpack("<I", struct.pack("<f", x))[0]
def env(n, d): return int(os.environ.get(n, str(d)))

KNAME = "parallel_sum__ssm_conv_s4__dense_activation_gelu__prompt_kernel"
KA = dict(u=0, A_re=8, A_im=16, B_re=24, B_im=32, C_re=40, C_im=48, log_dt=56, Dskip=64, Bx=72, w1=80, b1=88, w2=96, b2=104,
          out=112, dbg=120, ws=128)
WS_FLL = 32768
WS_EPOCH = 49152
WS_DUMMY = 53248
WS_STAT = 65536
WS_FLH = 131072
WS_FLY = 262144
WS_HF = 1 << 20
WS_XNT = 8 << 20
WS_YA = 12 << 20
WS_USED = 14 << 20

LOG2E = 1.4426950408889634
GC1 = -2.0 * LOG2E * 0.7978845608028654
GC2 = GC1 * 0.044715

NS, STAGE = 4, 32768
RSL = 12
RING = RSL * 2048
L_KST = 98304; KST = 8704
L_ST2 = 98304; ST2 = 8192
L_CH = 131072; CH_SIZE = 13056
OFF_E, OFF_O = 4608, 8768
L_FLAG = L_CH + 2 * CH_SIZE
L_CS = L_FLAG + 512
LDS_TOTAL = 163840
L_VS = 98304; L_US = 98304

OPT_PF = env("PF", 2)
PRE = env("PRE", 3)
PRIO_C = env("PRIOC", 1)
PRIO_G = env("PRIOG", 2)
PRIO_E = env("PRIOE", 0)
ROT = env("ROT", 4)
BARP = env("BARP", 2)
STATG = env("STATG", 21)
SC = os.environ.get("SC", "sc1")
PFG = [int(x) for x in os.environ.get("PFG", "").split(",") if x]
HD = 9
U6 = env('U6', 0)
FSL = env('FSL', 2)
KR = env('KR', 0)
MIX = env('MIX', 0)
XS = env('XS', 65536 + 2176)
PS = env('PS', 8)
PG = env('PG', 0)
LW1 = env('LW1', 0)
UDMA = env('UDMA', 1)
EPE = env('EPE', 1)
FS = env('FS', 2)
HP = env('HP', 1)
NB8 = env('NB8', 1)
EP = env('EP', 2)
TS = env('TS', 4)
FR = env('FR', 0)
NPK0 = env('NPK0', 3)
NC0 = env('NC0', 3)
WSOFF = env('WSOFF', 0) << 20
SCH = os.environ.get('SCH', SC)
LOC = env('LOC', 0)
GPK = env('GPK', 3)
ULN = env('ULN', 3)
HT = env('HT', 0)
SCL = os.environ.get('SCL', SC)
SPIN = 0x40000

DK, DP, EX, P0 = 224, 128, 160, 244
BF, AF, KG_G, KG_E1, KG_L, KG_V, KG_PK, KG_VW, KG_VRD = 160, 192, 108, 122, 224, 124, 132, 136, 137
L_KS2 = 131072; KS2 = 4352
XL = 180
VDUM, LNF = 252, 253
VX, VB2, VOO = 4, 8, 12
VW2 = 23
W2R, HR, ACC2 = 160, 88, 24
VTL = 24

def srd(A, d, lo, hi, size):
    A(f"s_mov_b32 s{d}, {lo}\ns_mov_b32 s{d+1}, {hi}\ns_mov_b32 s{d+2}, {size}\ns_mov_b32 s{d+3}, 0x00020000")
def round_bf16(A, r):
    A(f"v_cvt_pk_bf16_f32 v{r}, v{r}, v{r}")
    A(f"v_and_b32 v{r}, 0xffff0000, v{r}")
def zipm(*lists):
    o = []
    for k in range(max(len(l) for l in lists)):
        for l in lists:
            if k < len(l): o.append(l[k])
    return o
def mask(lo, hi=None):
    hi = lo if hi is None else hi
    return [f"s_mov_b32 s28, {lo}", f"s_mov_b32 s29, {hi}"]

class VMQ:
    def __init__(self): self.q = []
    def note(self, tag, n=1): self.q.extend([tag] * n)
    def wait(self, *tags):
        idx = max((k for k, t in enumerate(self.q) if t in tags), default=-1)
        if idx < 0: return []
        n = len(self.q) - 1 - idx
        del self.q[:idx + 1]
        return [f"s_waitcnt vmcnt({n})"]
    def younger(self): return len(self.q)

ORDER = [0, 1] + list(range(12, 24)) + list(range(2, 12)) + list(range(24, 28))

def koff(dst, lab, base="s74"):
    return [f"s_add_u32 {dst}, {base}, {lab*1024}", f"s_sub_u32 s75, {dst}, {28*1024}", f"s_min_u32 {dst}, {dst}, s75"]

def slot_addr(sl): return (sl >> 2) * 32768 + (sl & 3) * 2048

def w2_setup(A, vt):
    srd(A, 16, "s48", "s49", 1792 * 1024)
    A(f"""
    v_lshrrev_b32 v{vt}, 2, v0
    v_and_b32 v{vt}, 4, v{vt}
    v_and_b32 v{vt+1}, 7, v0
    v_xor_b32 v{vt}, v{vt}, v{vt+1}
    v_lshrrev_b32 v{vt+1}, 3, v0
    v_lshlrev_b32 v{VW2}, 10, v{vt+1}
    v_lshl_add_u32 v{VW2}, v{vt}, 4, v{VW2}
    s_mul_i32 s72, s39, {448*1024}
    s_lshl_b32 s75, s79, 7
    s_add_u32 s72, s72, s75
    s_lshl_b32 s73, s39, 13
    v_lshrrev_b32 v{vt+1}, 5, v0
    v_bfe_u32 v{vt}, v0, 2, 2
    v_lshl_add_u32 v{VTL}, v{vt+1}, 2, v{vt}
    v_lshlrev_b32 v{VTL}, 7, v{VTL}
    v_bfe_u32 v{vt}, v0, 4, 1
    v_lshl_add_u32 v{VTL}, v{vt}, 5, v{VTL}
    v_and_b32 v{vt}, 3, v0
    v_lshl_add_u32 v{VTL}, v{vt}, 3, v{VTL}
    v_bfe_u32 v{vt}, v0, 3, 1
    v_lshl_add_u32 v{VTL}, v{vt}, 6, v{VTL}
    v_add_u32 v{VTL}, s73, v{VTL}
    v_xor_b32 v{VTL+1}, 64, v{VTL}
    v_add_u32 v{VTL+2}, 0x10000, v{VTL}
    v_add_u32 v{VTL+3}, 0x10000, v{VTL+1}
    """)
def wdma(slot, lab):
    a_ = slot_addr(slot)
    return koff("s31", lab) + [f"s_add_u32 m0, s73, {a_}", "s_lshl4_add_u32 s31, s31, s72",
                               f"buffer_load_dwordx4 v{VW2}, s[16:19], s31 offen lds",
                               f"s_add_u32 m0, s73, {a_+1024}", "s_add_u32 s31, s31, 8192",
                               f"buffer_load_dwordx4 v{VW2}, s[16:19], s31 offen lds"]
def w2tr(slot, ws_, vtl=VTL):
    b = W2R + 8 * ws_; a_ = slot_addr(slot); hi = a_ >> 16; a_ &= 0xffff
    return [f"ds_read_b64_tr_b16 v[{b+4*db+2*sec}:{b+4*db+2*sec+1}], v{vtl+2*hi+db} offset:{a_+sec*1024}" for db in range(2) for sec in range(2)]

def param_loads(A, vt):
    A(f"""
    s_lshr_b32 s28, s39, 1
    s_lshl_b32 s30, s2, 1
    s_add_u32 s30, s30, s28
    v_lshlrev_b32 v{vt}, 1, v0
    v_mov_b32 v{vt+1}, 0
    s_lshl_b32 s29, s30, 8
    s_and_b32 s28, s20, 1
    s_lshl_b32 s28, s28, 7
    s_add_u32 s29, s29, s28
    s_lshl_b32 s30, s30, 1
    s_mov_b32 s18, 1024
    s_mov_b32 s19, 0x00020000
    """)
    for k in range(8): A(f"v_mov_b32 v{P0+k}, 0")
    A("s_waitcnt lgkmcnt(0)")
    for k in (6, 7, 0, 1, 2, 3, 4, 5):
        if k == 0: A("s_mov_b32 s18, 131072")
        A(f"s_mov_b32 s16, s{56+2*k}\ns_mov_b32 s17, s{57+2*k}")
        if k < 6: A(f"buffer_load_short_d16_hi v{P0+k}, v{vt}, s[16:19], s29 offen")
        else: A(f"buffer_load_short_d16_hi v{P0+k}, v{vt+1}, s[16:19], s30 offen")

def lnflag_load(vt):
    return ["s_lshl_b32 s29, s79, 6", "s_lshl_b32 s28, s39, 4", "s_add_u32 s29, s29, s28", "s_lshr_b32 s28, s78, 4", "s_lshl_b32 s28, s28, 9",
            "s_add_u32 s29, s29, s28", f"s_lshl_b32 s29, s29, {FS}", f"s_add_u32 s29, s29, {WS_FLY}",
            f"v_lshlrev_b32 v{vt}, {FSL}, v0", f"v_add_u32 v{vt}, {WS_FLL}, v{vt}",
            f"v_and_b32 v{vt+1}, 15, v0", f"v_lshl_add_u32 v{vt+1}, v{vt+1}, {FS}, s29", "s_mov_b32 s28, 0", "s_mov_b32 s29, -1",
            f"v_cndmask_b32 v{vt}, v{vt}, v{vt+1}, s[28:29]",
            f"buffer_load_dword v{LNF}, v{vt}, s[12:15], 0 offen {SC}"]

def u_issue(A, vl16):
    A(f"""
    s_lshr_b32 s28, s39, 1
    s_lshl_b32 s29, s2, 1
    s_add_u32 s29, s29, s28
    s_lshl_b32 s29, s29, {7 if XS else 12}
    s_add_u32 s29, s29, {WS_XNT}
    """)
    if UDMA:
        A(f"s_mul_i32 s28, s28, {CH_SIZE}")
        A(f"s_add_u32 m0, s28, {L_CH + 512}")
        if XS:
            A(f"""
            v_lshrrev_b32 v{XL}, 3, v0
            v_and_b32 v{XL+1}, 7, v0
            v_mul_u32_u24 v{XL}, {XS}, v{XL}
            v_lshl_add_u32 v{XL}, v{XL+1}, 4, v{XL}
            """)
            vl16 = XL
        for k in range(4):
            if XS and k: A(f"s_add_u32 s29, s29, {8*XS - 1024}")
            A(f"buffer_load_dwordx4 v{vl16}, s[12:15], s29 offen offset:{k*1024} {SC} lds")
    else:
        for k in range(4): A(f"buffer_load_dwordx4 v[{XL+4*k}:{XL+4*k+3}], v{vl16}, s[12:15], s29 offen offset:{k*1024} {SC}")

def u_try(A, vl16):
    A(f"""
    v_cmp_ne_u32 vcc, s76, v{LNF}
    s_mov_b32 s37, 0
    s_cbranch_vccnz L_ut_no
    s_mov_b32 s37, 1
    """)
    u_issue(A, vl16)
    A.label("L_ut_no")

def u_spin(A, vt, vl16, tag=''):
    A("s_mov_b32 s30, 0")
    A.label(f"L_us_poll{tag}")
    A(f"s_sleep {PS}")
    A.extend(lnflag_load(vt))
    A(f"""
    s_add_u32 s30, s30, 1
    s_waitcnt vmcnt(0)
    v_cmp_ne_u32 vcc, s76, v{LNF}
    s_cmp_gt_u32 s30, {SPIN}
    s_cbranch_scc1 L_us_ok{tag}
    s_cbranch_vccnz L_us_poll{tag}
    """)
    A.label(f"L_us_ok{tag}")
    u_issue(A, vl16)
    A("s_waitcnt vmcnt(0)")

def ya_addr(vd, vt):
    return [f"v_lshrrev_b32 v{vd}, 3, v0", f"v_and_b32 v{vt}, 7, v0", f"v_lshlrev_b32 v{vd}, 13, v{vd}", f"v_lshl_add_u32 v{vd}, v{vt}, 4, v{vd}",
            "s_lshr_b32 s28, s39, 1", "s_lshl_b32 s31, s2, 1", "s_add_u32 s31, s31, s28",
            "s_lshr_b32 s29, s31, 6", "s_lshl_b32 s29, s29, 18", "s_and_b32 s28, s31, 63", "s_lshl_b32 s28, s28, 7", "s_add_u32 s29, s29, s28",
            f"s_add_u32 s29, s29, {WS_YA}", "s_and_b32 s30, s39, 1", "s_lshl_b32 s30, s30, 17", "s_add_u32 s30, s30, s29", "s_add_u32 s31, s30, 65536"]
def ya_prefill(vd, vt, vm4):
    return ya_addr(vd, vt) + [f"v_mov_b32 v{vm4+k}, -1" for k in range(4)] + \
           [f"buffer_store_dwordx4 v[{vm4}:{vm4+3}], v{vd}, s[12:15], s{30+h} offen {SC}" for h in range(2)]

def publish_flag(A, soff, vt, tag, wave, both=False):
    A(f"""
    s_cmp_lg_u32 s20, {wave}
    s_cbranch_scc1 L_pub_skip{tag}
    v_mov_b32 v{vt}, 0
    v_mov_b32 v{vt+1}, s76
    s_mov_b64 exec, 1
    buffer_store_dword v{vt+1}, v{vt}, s[12:15], {soff} offen {SC}
    """)
    if both:
        A(f"""
        s_lshl_b32 s28, s2, 7
        s_add_u32 s28, s28, {WS_FLW}
        buffer_store_dword v{vt+1}, v{vt}, s[12:15], s28 offen {SC}
        """)
    A(f"""
    s_mov_b64 exec, -1
    L_pub_skip{tag}:
    """)
def mktag(A):
    A("s_mul_i32 s76, s76, 0x9E3779B1")
    A("s_add_u32 s76, s76, 0x7F4A7C15")
def arrive(A, tag):
    A(f"""
    s_cmp_lg_u32 s20, 3
    s_cbranch_scc1 L_arr{tag}
    s_atomic_add s77, s[54:55], 0 glc
    L_arr{tag}:
    """)

def coop_prefetch(A, vt):
    A(f"""
    s_lshl_b32 s28, s24, 2
    s_add_u32 s28, s28, s39
    s_lshl_b32 s30, s28, 6
    v_add_u32 v{vt}, s30, v0
    v_mul_u32_u24 v{vt+1}, 0x4925, v{vt}
    v_lshrrev_b32 v{vt+1}, 18, v{vt+1}
    v_mul_u32_u24 v{vt+2}, 14, v{vt+1}
    v_sub_u32 v{vt}, v{vt}, v{vt+2}
    v_lshlrev_b32 v{vt}, 7, v{vt}
    v_mul_u32_u24 v{vt+1}, 3584, v{vt+1}
    v_add_u32 v{vt}, v{vt}, v{vt+1}
    s_and_b32 s29, s23, 1
    s_mul_i32 s29, s29, 1792
    buffer_load_dword v{VDUM}, v{vt}, s[8:11], s29 offen
    s_lshr_b32 s29, s23, 1
    s_lshl_b32 s29, s29, 19
    s_lshl_b32 s30, s28, 13
    s_add_u32 s29, s29, s30
    v_lshlrev_b32 v{vt+2}, 7, v0
    """)
    if env("MP0", 1):
        A(f"""
        s_mul_i32 s31, s23, {28*8192}
        s_add_u32 s31, s31, s30
        s_sub_u32 s31, s31, {64*8192}
        s_cmp_lt_u32 s28, 92
        s_cselect_b32 s31, s31, 0x400000
        s_cmp_lt_u32 s28, 64
        s_cselect_b32 s29, s29, s31
        s_cselect_b32 s16, s40, s48
        s_cselect_b32 s17, s41, s49
        s_cselect_b32 s18, 0x200000, {1792*1024}
        s_mov_b32 s19, 0x00020000
        buffer_load_dword v{VDUM}, v{vt+2}, s[16:19], s29 offen
        """.replace("s_cselect_b32 s18, 0x200000, 1835008", "s_mov_b32 s18, 1835008\n        s_cselect_b32 s18, 0x200000, s18"))
    else:
        A(f"""
        s_cmp_lt_u32 s28, 64
        s_cselect_b32 s29, s29, 0x400000
        buffer_load_dword v{VDUM}, v{vt+2}, s[4:7], s29 offen
        """)
def coop_prefetch2(A, vt):
    srd(A, 16, "s48", "s49", 1792 * 1024)
    A(f"""
    s_lshl_b32 s28, s24, 2
    s_add_u32 s28, s28, s39
    s_mul_i32 s30, s28, 40
    v_add_u32 v{vt}, s30, v0
    v_mul_u32_u24 v{vt+1}, 0x4925, v{vt}
    v_lshrrev_b32 v{vt+1}, 18, v{vt+1}
    v_mul_u32_u24 v{vt+2}, 14, v{vt+1}
    v_sub_u32 v{vt}, v{vt}, v{vt+2}
    v_lshlrev_b32 v{vt}, 7, v{vt}
    v_mul_u32_u24 v{vt+1}, 3584, v{vt+1}
    v_add_u32 v{vt}, v{vt}, v{vt+1}
    s_mul_i32 s30, s28, 23
    v_add_u32 v{vt+1}, s30, v0
    v_min_u32 v{vt+1}, 2559, v{vt+1}
    v_mul_u32_u24 v{vt+2}, 13108, v{vt+1}
    v_lshrrev_b32 v{vt+2}, 16, v{vt+2}
    v_mul_u32_u24 v{vt+3}, 3, v{vt+2}
    v_add_u32 v{vt+1}, v{vt+1}, v{vt+3}
    v_lshlrev_b32 v{vt+1}, 7, v{vt+1}
    v_lshlrev_b32 v{vt+2}, 7, v0
    s_and_b32 s29, s23, 1
    s_mul_i32 s29, s29, 1792
    s_add_u32 s29, s29, {192*3584}
    s_mov_b32 exec_hi, {0 if (LW1 or not env("WT", 1)) else 255}
    s_mov_b32 exec_lo, {1 if (LW1 or not env("WT", 1)) else -1}
    buffer_load_dword v{VDUM}, v{vt}, s[8:11], s29 offen
    s_lshr_b32 s29, s23, 1
    s_lshl_b32 s29, s29, 19
    s_add_u32 s29, s29, 384
    s_mov_b64 exec, {"0x7fffff" if env("XT", 1) else "1"}
    buffer_load_dword v{VDUM}, v{vt+1}, s[4:7], s29 offen
    s_lshl_b32 s28, s2, 2
    s_add_u32 s28, s28, s39
    s_lshl_b32 s28, s28, 11
    s_mov_b64 exec, {os.environ.get("W2M", "1")}
    buffer_load_dword v{VDUM}, v{vt+2}, s[16:19], s28 offen
    s_mov_b64 exec, -1
    """)
def w2_prefetch(vt, piece):
    return ["s_lshl_b32 s28, s24, 2", "s_add_u32 s28, s28, s39", "s_lshl_b32 s28, s28, 14", f"s_add_u32 s28, s28, {piece*8192}",
            f"v_lshlrev_b32 v{vt}, 7, v0", f"buffer_load_dword v{VDUM}, v{vt}, s[16:19], s28 offen"]

def cmul(d, x, y, pk=True):
    P = lambda r: f"v[{r}:{r+1}]"
    assert d != x and d != y
    if pk:
        return [f"v_pk_mul_f32 {P(d)}, {P(x)}, {P(y)} op_sel:[0,0] op_sel_hi:[0,1]",
                f"v_pk_fma_f32 {P(d)}, {P(x)}, {P(y)}, {P(d)} op_sel:[1,1,0] op_sel_hi:[1,0,1] neg_lo:[0,1,0]"]
    return [f"v_mul_f32 v{d}, v{x}, v{y}", f"v_mul_f32 v{d+1}, v{x}, v{y+1}",
            f"v_fma_f32 v{d}, -v{x+1}, v{y+1}, v{d}", f"v_fma_f32 v{d+1}, v{x+1}, v{y}, v{d+1}"]

def kg_common(A, base, T0, Z, WA):
    ar, ai, br, bi, cr, ci, ld, dsk = range(P0, P0 + 8)
    u_ = f2u(LOG2E) & 0xFFFFFF00
    lh = struct.unpack("<f", struct.pack("<I", u_))[0]; ll = LOG2E - lh
    A(f"""
    v_mul_f32 v{T0}, {hex(f2u(lh))}, v{ld}
    v_mul_f32 v{T0+1}, {hex(f2u(ll * math.log(2)))}, v{ld}
    v_exp_f32 v{T0}, v{T0}
    s_nop 0
    v_fma_f32 v{T0}, v{T0}, v{T0+1}, v{T0}
    """)
    round_bf16(A, T0)
    A(f"""
    v_mul_f32 v{Z}, v{T0}, v{ar}
    v_mul_f32 v{Z+1}, v{T0}, v{ai}
    v_mul_f32 v{br}, v{T0}, v{br}
    v_mul_f32 v{bi}, v{T0}, v{bi}
    v_mul_f32 v{Z}, {hex(f2u(LOG2E))}, v{Z}
    v_mul_f32 v{Z+1}, 0.15915494, v{Z+1}
    """)
def kg_waddr(A, base, WA):
    A(f"s_lshl_b32 s28, s39, 13\ns_add_u32 s28, s28, {base}\nv_lshl_add_u32 v{WA}, v0, 2, s28")
    for k in range(1, 16): A(f"v_xor_b32 v{WA+k}, {16*k}, v{WA}")
def kg_raddr(base, d, t):
    o = ["s_lshl_b32 s28, s39, 13", f"s_add_u32 s28, s28, {base}", f"v_and_b32 v{t}, 15, v0", f"v_lshrrev_b32 v{t+1}, 5, v0", f"v_xor_b32 v{t}, v{t}, v{t+1}",
         f"v_and_b32 v{t+1}, 31, v0", f"v_lshlrev_b32 v{t+1}, 8, v{t+1}", f"v_lshl_add_u32 v{d}, v{t}, 4, v{t+1}", f"v_add_u32 v{d}, s28, v{d}"]
    return o + [f"v_xor_b32 v{d+k}, {32*k}, v{d}" for k in range(1, 8)]
def cexp(d, x, t, Z):
    xs = {1: None, 8: hex(f2u(8.0)), 256: hex(f2u(256.0))}[x]
    o = []
    if xs is None: o += [f"v_exp_f32 v{t}, v{Z}", f"v_fract_f32 v{t+1}, v{Z+1}"]
    else: o += [f"v_mul_f32 v{t}, {xs}, v{Z}", f"v_mul_f32 v{t+1}, {xs}, v{Z+1}", f"v_exp_f32 v{t}, v{t}", f"v_fract_f32 v{t+1}, v{t+1}"]
    o += [f"v_cos_f32 v{d}, v{t+1}", f"v_sin_f32 v{d+1}, v{t+1}", f"v_mul_f32 v{d}, v{d}, v{t}", f"v_mul_f32 v{d+1}, v{d+1}, v{t}"]
    return o
KWA = 100
KRA = 116

def gen_kgen_v(A):
    T0, Z, E8, E16, Va, Vb, PKT = 34, 144, 44, 46, 80, 84, 88
    kg_common(A, L_VS, T0, Z, KWA)
    A.extend(cexp(E8, 8, T0, Z))
    A.extend(cmul(E16, E8, E8))
    npk = [0]
    def emit(src, row):
        t = PKT + (npk[0] % 8); npk[0] += 1
        return [f"v_cvt_pk_bf16_f32 v{t}, v{src}, v{src+1}", f"ds_write_b32 v{KWA + (row & 15)}, v{t} offset:{row*256}"]
    A(f"v_mov_b32 v{PKT+7}, 0x00003f80")
    A(f"ds_write_b32 v{KWA}, v{PKT+7}")
    A.extend(emit(E8, 1)); A.extend(emit(E16, 2))
    ev, od = E16, E8
    for j in range(3, 32, 2):
        d1 = Va + 2 * (((j - 3) // 2) % 2)
        d2 = Vb + 2 * (((j - 3) // 2) % 2)
        l1 = cmul(d1, od, E16) + emit(d1, j)
        l2 = (cmul(d2, ev, E16) + emit(d2, j + 1)) if j + 1 < 32 else []
        A.extend(zipm(l1, l2))
        od, ev = d1, d2
    for st in range(8): A(f"ds_read_b128 v[{BF+4*st}:{BF+4*st+3}], v{KRA+st}")

UPK = 192
def kgen_u_lists(rebase):
    T0, Z, E1, G, Lr, Va = 34, 144, 42, 44, 58, 76
    ar, ai, br, bi, cr, ci, ld, dsk = range(P0, P0 + 8)
    cm = lambda d, x, y: cmul(d, x, y, False)
    V = []; Wr = []
    if rebase: V += [f"v_subrev_u32 v{KWA+k}, {rebase}, v{KWA+k}" for k in range(24)]
    V += zipm(cexp(E1, 1, T0 + 2, Z), cexp(G, 256, T0 + 4, Z), cm(Lr, cr, br))
    npk = [0]
    def emit(src, rows):
        t = UPK + npk[0]; npk[0] += 1
        Wr.extend(f"ds_write_b32 v{KWA + (row & 15)}, v{t} offset:{row*256}" for row in rows)
        return [f"v_cvt_pk_bf16_f32 v{t}, v{src}, -v{src+1}"]
    urow = lambda hh, r: 8 * (r >> 2) + 4 * hh + (r & 3)
    lch = emit(Lr, [urow(0, 0)])
    for a_ in range(1, 9): lch += cm(Lr + 2 * a_, Lr + 2 * (a_ - 1), E1) + emit(Lr + 2 * a_, [urow(0, a_)])
    gch = []
    for k in range(2, 8): gch += cm(G + 2 * (k - 1), G + 2 * (k - 2), G)
    V += zipm(lch, gch)
    jobs = [(0, 1, [urow(1, 0), urow(1, 1)]), (2, 1, [urow(1, 2)]), (4, 1, [urow(1, 3), urow(1, 4), urow(1, 5)]), (6, 1, [urow(1, 6)]),
            (8, 1, [urow(1, 7), urow(1, 8)]),
            (0, 2, [urow(0, 9)]), (4, 2, [urow(0, 10)]), (8, 2, [urow(0, 11)]),
            (0, 3, [urow(1, 9)]), (4, 3, [urow(1, 10)]), (8, 3, [urow(1, 11)]),
            (0, 4, [urow(0, 12)]), (8, 4, [urow(0, 13)]), (0, 5, [urow(0, 14)]), (8, 5, [urow(0, 15)]),
            (0, 6, [urow(1, 12)]), (8, 6, [urow(1, 13)]), (0, 7, [urow(1, 14)]), (8, 7, [urow(1, 15)])]
    for k in range(0, len(jobs), 2):
        ls = []
        for q_, (a_, gk, rows) in enumerate(jobs[k:k + 2]):
            d = Va + 4 * q_ + 2 * ((k // 2) % 2)
            ls.append(cm(d, Lr + 2 * a_, G + 2 * (gk - 1)) + emit(d, rows))
        V += zipm(*ls)
    assert npk[0] <= 32
    return V, Wr

def kg_atoms_m():
    at = [[f"ds_read_b128 v[{AF+4*k}:{AF+4*k+3}], v{KRA+k} offset:{L_US - L_VS}", ("tag", ("af", k))] for k in range(8)]
    mm = []
    for st in range(8):
        cin = "0" if st == 0 else f"v[{DK}:{DK+15}]"
        mm.append([("wait", ("af", st)), f"v_mfma_f32_32x32x16_bf16 v[{DK}:{DK+15}], v[{AF+4*st}:{AF+4*st+3}], v[{BF+4*st}:{BF+4*st+3}], {cin}"])
    return at, mm

XA, XR, XPAD, XFL, XZ, XONE, XFP = 146, 147, 148, 149, 150, 152, 153
def tail_pre():
    t = VT1; VEA, VEB = 254, 255
    return [f"s_lshr_b32 s30, s39, 1", f"s_mul_i32 s30, s30, {CH_SIZE}", f"s_add_u32 s38, s30, {L_CH}", "s_lshl_b32 s30, s39, 13", f"s_add_u32 s30, s30, {L_VS}",
            f"v_lshl_add_u32 v{XA}, v0, 4, s30", f"v_xor_b32 v{XR}, 8192, v{XA}",
            f"v_and_b32 v{t}, 31, v0", f"v_lshrrev_b32 v{t+1}, 5, v0", f"v_lshlrev_b32 v{t+2}, 4, v{t}",
            f"s_add_u32 s28, s38, {OFF_E + 4080 - 1024}", f"v_sub_u32 v{VEA}, s28, v{t+2}", f"v_lshlrev_b32 v{t+3}, 9, v{t+1}", f"v_sub_u32 v{VEA}, v{VEA}, v{t+3}",
            f"s_add_u32 s28, s38, {OFF_E + 4080 - 2560}", f"v_sub_u32 v{VEB}, s28, v{t+2}", f"v_lshlrev_b32 v{t+3}, 10, v{t+1}", f"v_sub_u32 v{VEB}, v{VEB}, v{t+3}",
            f"v_lshl_add_u32 v{XPAD}, v0, 3, s38", f"v_mov_b32 v{XZ}, 0", f"v_mov_b32 v{XZ+1}, 0", f"v_mov_b32 v{XONE}, 1",
            "s_lshl_b32 s28, s39, 2", f"s_add_u32 s28, s28, {L_FLAG}", f"v_mov_b32 v{XFL}, s28", f"v_xor_b32 v{XFP}, 4, v{XFL}"] + lnflag_load(154)[:-1] + \
           ["s_bitcmp0_b32 s39, 0", "s_cselect_b64 s[28:29], -1, 0", "s_mov_b64 exec, s[28:29]",
            f"ds_write_b64 v{XPAD}, v[{XZ}:{XZ+1}]", "s_and_b64 exec, s[28:29], 15",
            f"ds_write_b64 v{XPAD}, v[{XZ}:{XZ+1}] offset:{OFF_E+4096}", f"ds_write_b64 v{XPAD}, v[{XZ}:{XZ+1}] offset:{OFF_O+4096}", "s_mov_b64 exec, -1"]

def kg_atoms_x1():
    return [["s_bitcmp1_b32 s39, 0", "s_cselect_b64 exec, -1, 0"] + [f"ds_write_b128 v{XA}, v[{DK+4*q}:{DK+4*q+3}] offset:{512+q*1024}" for q in range(3)] +
            ["s_not_b64 exec, exec", f"ds_write_b128 v{XA}, v[{DK+12}:{DK+15}] offset:{512+3072}", "s_mov_b64 exec, -1"]]

def kg_atoms_x2(tag):
    VEA, VEB = 254, 255
    k_ = lambda r: DK + r
    def half(base, kk, va, off, odd):
        prs = [(8, 7), (6, 5), (4, 3), (2, 1)] if odd else [(7, 6), (5, 4), (3, 2), (1, 0)]
        return [f"v_cvt_pk_bf16_f32 v{base+i}, v{kk[lo]}, v{kk[hi]}" for i, (lo, hi) in enumerate(prs)] + \
               [f"ds_write_b128 v{va}, v[{base}:{base+3}] offset:{off + (OFF_O - OFF_E if odd else 0)}"]
    ev = [([k_(i) for i in range(9)], VEA, 1024), ([k_(9)] * 3 + [k_(10)] * 3 + [k_(11)] * 3, VEA, 0)]
    od = [([k_(12)] * 4 + [DP] + [k_(13)] * 4, VEB, 512), ([k_(14)] * 4 + [DP + 1] + [k_(15)] * 4, VEB, 0)]
    o = ["s_bitcmp1_b32 s39, 0", f"s_cbranch_scc1 L_xo{tag}"]
    o += [f"ds_read_b128 v[{DP+4*q}:{DP+4*q+3}], v{XR} offset:{512+q*1024}" for q in range(3)]
    for q in range(3):
        o += [f"s_waitcnt lgkmcnt({2-q})"] + [f"v_add_f32 v{DK+4*q+k}, v{DK+4*q+k}, v{DP+4*q+k}" for k in range(4)]
    n = 0
    for gi in range(2):
        for o_ in range(2):
            o += half(EX + 4 * n, *ev[gi], o_); n += 1
    o += ["s_mov_b64 exec, 1", f"ds_write_b16_d16_hi v{XPAD}, v{EX+3} offset:{OFF_O+4096}", "s_mov_b64 exec, -1", f"s_branch L_xd{tag}", f"L_xo{tag}:"]
    o += [f"ds_read_b128 v[{DP+12}:{DP+15}], v{XR} offset:{512+3072}"] + mask("0xaaaaaaaa") + ["s_waitcnt lgkmcnt(0)"]
    o += [f"v_add_f32 v{DK+12+k}, v{DK+12+k}, v{DP+12+k}" for k in range(4)]
    o += [f"v_cndmask_b32 v{DP}, v{DK+12}, v{DK+13}, s[28:29]", f"v_cndmask_b32 v{DP+1}, v{DK+14}, v{DK+15}, s[28:29]"]
    n = 0
    for gi in range(2):
        for o_ in range(2):
            o += half(EX + 4 * n, *od[gi], o_); n += 1
    o += [f"L_xd{tag}:", f"ds_write_b32 v{XFL}, v{XONE} offset:64"]
    return [o]

def flag_zero():
    return [[f"v_lshlrev_b32 v{VT1}, 2, v0", f"v_mov_b32 v{VT1+1}, 0", f"v_add_u32 v{VT1}, {L_FLAG}, v{VT1}", f"ds_write_b32 v{VT1}, v{VT1+1}"]]

class LQ:
    def __init__(self, A): self.A = A; self.q = []
    def emit(self, items, tag=None):
        maybe0 = any(isinstance(it, str) and "s_cselect_b64" in it for it in items)
        for it in items:
            if maybe0 and isinstance(it, str):
                self.A(it); continue
            if isinstance(it, tuple):
                if it[0] == "tag": self.q[-1] = it[1]
                elif it[0] == "wait": self.wait(it[1])
                elif it[0] == "nods": self.A(it[1])
                continue
            self.A(it)
            if it.strip().startswith("ds_"): self.q.append(tag)
            if "lgkmcnt(0)" in it: self.q = []
    def wait(self, tag):
        idx = max((k for k, t in enumerate(self.q) if t == tag), default=-1)
        if idx < 0: return
        n = min(len(self.q) - 1 - idx, 15)
        self.A(f"s_waitcnt lgkmcnt({n})")
        self.q = self.q[len(self.q) - n:] if n else []

def spread(atoms, g0, g1):
    pts = [(g, p) for g in range(g0, g1) for p in range(2)]
    tot = sum(len(a_) for a_ in atoms); out = {p: [] for p in pts}; acc = 0
    for a_ in atoms:
        out[pts[min(len(pts) - 1, acc * len(pts) // tot)]].append(a_); acc += len(a_)
    return out

VXO, VWO, VXO2 = 1, 2, 3
VXO3, VXO4 = 242, 243
VXR, VTR = 4, 8
VONE, VHO1, VB1 = 16, 18, 19
VCW, VCR, VSO = 20, 21, 22
VT1 = 28
NR = 3
W1, X1, ACC1, CS = 32, 56, 80, 144
HI = 152
GT, PK, SG = 164, 180, 188
EA, EB = 192, 196
VS, K1r, K3r = 212, 214, 216

def wave_flag(soff, vt):
    return [f"v_mov_b32 v{vt}, 0", f"v_mov_b32 v{vt+1}, s76", "s_mov_b64 exec, 1",
            f"buffer_store_dword v{vt+1}, v{vt}, s[12:15], {soff} offen {SC}", "s_mov_b64 exec, -1"]

def lds_wait(A, name, vaddr, off, vt):
    A(f"""
    {name}:
    ds_read_b32 v{vt}, v{vaddr} offset:{off}
    s_waitcnt lgkmcnt(0)
    v_readfirstlane_b32 s28, v{vt}
    s_cmp_eq_u32 s28, 1
    s_cbranch_scc0 {name}
    """)

def dma_setup(A):
    VT = VT1
    A(f"""
    v_lshrrev_b32 v{VT}, 3, v0
    v_and_b32 v{VT+1}, 7, v0
    v_lshrrev_b32 v{VT+2}, 4, v0
    v_xor_b32 v{VT+3}, v{VT+2}, v{VT+1}
    v_lshlrev_b32 v{VXO}, 10, v{VT}
    v_lshl_add_u32 v{VXO}, v{VT+3}, 4, v{VXO}
    v_xor_b32 v{VXO2}, 64, v{VXO}
    v_add_u32 v{VXO2}, 8192, v{VXO2}
    v_and_b32 v{VT+3}, 15, v0
    v_lshlrev_b32 v{VT}, 2, v{VT+2}
    v_xor_b32 v{VT+3}, v{VT+3}, v{VT}
    v_mul_u32_u24 v{VWO}, 3584, v{VT+2}
    v_lshl_add_u32 v{VWO}, v{VT+3}, 4, v{VWO}
    s_lshl_b32 s25, s21, 17
    s_lshl_b32 s28, s39, 15
    s_add_u32 s25, s25, s28
    s_mul_i32 s26, s39, {16*3584}
    s_lshl_b32 s28, s22, 8
    s_add_u32 s26, s26, s28
    s_lshl_b32 s27, s39, 12
    """)
    if KR:
        A(f"""
        v_add_u32 v{VXO3}, 16384, v{VXO}
        v_add_u32 v{VXO4}, 16384, v{VXO2}
        s_and_b32 s3, s24, 3
        s_mul_i32 s3, s3, {env("KRB", 3)}
        s_mul_i32 s28, s77, {env("KRN", 1)}
        s_add_u32 s3, s3, s28
        s_lshl_b32 s3, s3, 7
        """)
    if MIX:
        A(f"""
        v_and_b32 v{VT+3}, 8, v{VT+3}
        v_lshl_add_u32 v{VWO}, v{VT+3}, 4, v{VWO}
        s_and_b32 s28, s22, 1
        s_lshl_b32 s28, s28, 7
        s_sub_u32 s26, s26, s28
        """)

KORD = [int(x) for x in os.environ.get("KORD", "0,1,2,3,4,5,6,7").split(",")]
def g1_dma(kc, part):
    st = (kc % NS) * STAGE
    kc = KORD[kc]
    if KR:
        return [f"s_add_u32 s37, s3, {128*kc}", "s_and_b32 s37, s37, 0x380", f"s_add_u32 m0, s27, {st + part*1024}",
                "s_add_u32 s31, s25, s37",
                f"buffer_load_dwordx4 v{[VXO, VXO2, 13, 14][part] if False else (VXO if part % 2 == 0 else VXO2)}, s[4:7], s31 offen lds" if part < 2 else
                f"buffer_load_dwordx4 v{VXO3 if part % 2 == 0 else VXO4}, s[4:7], s31 offen lds",
                f"s_mul_i32 s37, s37, 1792", f"s_add_u32 m0, s27, {st + 16384 + part*1024}", "s_add_u32 s37, s37, s26", f"s_add_u32 s37, s37, {4*part*3584}",
                f"buffer_load_dwordx4 v{VWO}, s[8:11], s37 offen lds"]
    return [f"s_add_u32 m0, s27, {st + part*1024}", f"s_add_u32 s31, s25, {128*kc + (part//2)*16384}",
            f"buffer_load_dwordx4 v{VXO if part % 2 == 0 else VXO2}, s[4:7], s31 offen lds",
            f"s_add_u32 m0, s27, {st + 16384 + part*1024}", f"s_add_u32 s37, s26, {(64*kc + 4*part)*3584}",
            f"buffer_load_dwordx4 v{VWO}, s[8:11], s37 offen lds"]

def c_setup(A):
    VT = VT1
    A(f"""
    v_and_b32 v{VT}, 31, v0
    v_lshrrev_b32 v{VT+1}, 5, v0
    v_bfe_u32 v{VT+2}, v0, 1, 3
    v_xor_b32 v{VT+2}, v{VT+2}, v{VT+1}
    s_lshl_b32 s31, s34, 1
    v_xor_b32 v{VT+2}, s31, v{VT+2}
    v_lshlrev_b32 v{VXR}, 7, v{VT}
    v_lshl_add_u32 v{VXR}, v{VT+2}, 4, v{VXR}
    s_lshl_b32 s28, s34, 13
    v_add_u32 v{VXR}, s28, v{VXR}
    v_xor_b32 v{VXR+1}, 32, v{VXR}
    v_xor_b32 v{VXR+2}, 64, v{VXR}
    v_xor_b32 v{VXR+3}, 96, v{VXR}
    v_lshlrev_b32 v{VSO}, 3, v0
    v_bfe_u32 v{VT+2}, v0, 2, 2
    v_lshl_add_u32 v{VTR}, v{VT+1}, 3, v{VT+2}
    v_lshlrev_b32 v{VTR}, 8, v{VTR}
    v_bfe_u32 v{VT+3}, v0, 4, 1
    v_lshl_add_u32 v{VTR}, v{VT+3}, 5, v{VTR}
    v_and_b32 v{VT+3}, 3, v0
    v_lshl_add_u32 v{VTR}, v{VT+3}, 3, v{VTR}
    s_lshl_b32 s31, s35, 1
    v_xor_b32 v{VT+2}, s31, v{VT+2}
    v_lshl_add_u32 v{VTR}, v{VT+2}, 6, v{VTR}
    s_lshl_b32 s31, s34, 12
    s_add_u32 s31, s31, 16384
    v_add_u32 v{VTR}, s31, v{VTR}
    """)
    for i in range(4):
        for ft in range(2):
            if i == 0 and ft == 0: continue
            A(f"v_xor_b32 v{VTR+2*i+ft}, {i*4096 + ft*64}, v{VTR}")
    A(f"""
    v_mov_b32 v{VONE}, 0x3f803f80
    v_mov_b32 v{VONE+1}, 0x3f803f80
    v_lshlrev_b32 v{VHO1}, 4, v0
    s_lshl_b32 s33, s21, 1
    s_add_u32 s33, s33, s34
    s_lshl_b32 s36, s33, 9
    s_add_u32 s36, s36, {WS_STAT}
    s_mul_i32 s32, s33, {2*112*1024}
    s_lshl_b32 s28, s22, 1
    s_add_u32 s28, s28, s35
    """)
    if MIX:
        A("""
        s_add_u32 s28, s28, s35
        s_and_b32 s29, s22, 1
        s_sub_u32 s28, s28, s29
        """)
    A(f"""
    s_lshl_b32 s29, s28, 12
    s_add_u32 s32, s32, s29
    s_add_u32 s32, s32, {WS_HF}
    s_add_u32 s38, s32, {112*1024}
    """)
    if HP:
        A(f"""
        s_mul_i32 s29, s28, 37
        s_lshr_b32 s29, s29, 8
        s_lshl_b32 s33, s33, 2
        s_add_u32 s33, s33, s29
        s_lshl_b32 s33, s33, 7
        s_mul_i32 s29, s29, 7
        s_sub_u32 s29, s28, s29
        s_lshl_b32 s29, s29, 2
        s_add_u32 s33, s33, s29
        s_add_u32 s33, s33, {WS_FLH}
        """)
    else:
        A(f"""
        s_lshl_b32 s33, s33, 5
        s_add_u32 s33, s33, s28
        s_lshl_b32 s33, s33, 7
        s_add_u32 s33, s33, {WS_FLH}
        """)
    A(f"""
    s_lshl_b32 s29, s20, 8
    v_lshl_add_u32 v{VCW}, v0, 2, s29
    v_add_u32 v{VCW}, {L_CS}, v{VCW}
    v_xor_b32 v{VCR}, 256, v{VCW}
    """)
    srd(A, 16, "s46", "s47", 3584)
    A(f"""
    v_mov_b32 v{VB1}, 0
    v_lshlrev_b32 v{VT1}, 1, v0
    s_lshl_b32 s28, s28, 7
    buffer_load_short_d16_hi v{VB1}, v{VT1}, s[16:19], s28 offen
    """)
    for k in range(20): A(f"v_mov_b32 v{EA+k}, 0")
    for k in range(12): A(f"v_add_u32 v{HI+k}, 0x10000, v{VXR+k}")

def c_reads(g):
    kc, i = divmod(g, 4)
    st = kc % NS
    b = (VXR if st < 2 else HI); off = (st % 2) * STAGE
    sl = g % NR
    tr = lambda ft, sec: f"ds_read_b64_tr_b16 v[{W1+8*sl+4*ft+2*sec}:{W1+8*sl+4*ft+2*sec+1}], v{b+4+2*i+ft} offset:{off + sec*1024}"
    xr = lambda tt: f"ds_read_b128 v[{X1+8*sl+4*tt}:{X1+8*sl+4*tt+3}], v{b+i} offset:{off + tt*4096}"
    return [xr(0), tr(0, 0), tr(0, 1), tr(1, 0), tr(1, 1), xr(1)]

def gen_c1(A):
    VT = VT1
    dma_setup(A)
    A(f"""
    s_and_b32 s34, s20, 1
    s_lshr_b32 s35, s20, 1
    s_waitcnt lgkmcnt(0)
    s_add_u32 s42, s42, {WSOFF}
    s_addc_u32 s43, s43, 0
    s_load_dword s76, s[42:43], {WS_EPOCH}
    """)
    vm = VMQ()
    A.st("ka")
    srd(A, 4, "s40", "s41", 2 << 20)
    srd(A, 8, "s44", "s45", 512 * 3584)
    srd(A, 12, "s42", "s43", WS_USED)
    CSF = env("CSF", 0)
    if CSF: c_setup(A); vm.note("b1")
    if env("PFAT", 1) == -1 and OPT_PF: coop_prefetch(A, VT); vm.note("pf", 2)
    for kc in range(NC0):
        for part in range(4): A.extend(g1_dma(kc, part))
        vm.note(kc, 8)
        A.st(f"i{kc}")
        if kc == env("BP", 1): A("s_barrier")
        if kc == 0 and not CSF:
            c_setup(A); vm.note("b1")
        if kc == env("PFAT", 2) and OPT_PF == 1: coop_prefetch(A, VT); vm.note("pf", 2)
        if kc == env("PFAT", 2) and OPT_PF == 2: coop_prefetch2(A, VT); vm.note("pf", 3)
    TW = env("TW", 4)
    if TW:
        A(f"v_lshlrev_b32 v{VT+2}, 20, v0")
        if TW & 1: A("s_mov_b64 exec, 3"); A(f"global_load_dword v{VDUM}, v{VT+2}, s[52:53]"); vm.note("tw")
        if TW & 2: A("s_mov_b64 exec, 1"); A(f"buffer_load_dword v{VDUM}, v{VT+2}, s[12:15], s38 offen"); vm.note("tw")
        if TW & 4: A("s_mov_b64 exec, 1"); A(f"global_load_dword v{VDUM}, v{VT+2}, s[50:51]"); vm.note("tw")
        A("s_mov_b64 exec, -1")
    A.extend(ya_prefill(VT, VT + 1, PK)); vm.note("pre", 2)
    hpre = [f"buffer_store_dwordx4 v[{PK}:{PK+3}], v{VHO1}, s[12:15], s{32 if n < 4 else 38} offen offset:{(n%4)*1024} {SC}" for n in range(8)]
    HPRE = env("HPRE", 0)
    if HPRE == 1: A.extend(hpre); vm.note(2, 8)
    w2_setup(A, VT)
    mpf = [f"s_xor_b32 s28, s2, {env('MPX', 0)}", "s_lshl_b32 s28, s28, 2", "s_add_u32 s28, s28, s39", "s_lshl_b32 s28, s28, 11", f"v_lshlrev_b32 v{VT+2}, 7, v0", f"s_mov_b64 exec, {os.environ.get('MPM', '0xffff')}",
           f"buffer_load_dword v{VDUM}, v{VT+2}, s[16:19], s28 offen {os.environ.get('MPFL', '')}", "s_mov_b64 exec, -1"]
    MPG = env("MPG", 5)
    if MPG == -1: A.extend(mpf); vm.note("mpf")
    A.st("pre")
    A(vm.wait(0)[0] + " lgkmcnt(0)"); A.st("kg"); A("s_barrier")
    A.st("b0")
    T = GT
    lq = LQ(A)
    lq.emit(c_reads(0), 0); lq.emit(c_reads(1), 1)
    mktag(A)
    def big(g, tt, ft):
        sl = g % NR; c = ACC1 + 32 * tt + 16 * ft
        cin = "0" if g == 0 else f"v[{c}:{c+15}]"
        return f"v_mfma_f32_32x32x16_bf16 v[{c}:{c+15}], v[{W1+8*sl+4*ft}:{W1+8*sl+4*ft+3}], v[{X1+8*sl+4*tt}:{X1+8*sl+4*tt+3}], {cin}"
    for g in range(32):
        kc, i = divmod(g, 4); w = W1 + 8 * (g % NR)
        m = lambda d, b_, z: f"v_mfma_f32_4x4x4_16b_bf16 v[{d}:{d+3}], v[{VONE}:{VONE+1}], v[{b_}:{b_+1}], " + ("0" if z else f"v[{d}:{d+3}]")
        o1, o2 = [], []
        if i < 2 and False: pass
        if i in (0, 2) and g < 28 or g in (28, 29):
            o1 = [m(CS, w, g == 0), m(CS + 4, w + 4, g == 0)]; o2 = [m(CS, w + 2, False), m(CS + 4, w + 6, False)]
        A.st(f"g{g}")
        gn = g + 2
        rd = c_reads(PERM(gn))[:] if gn < 32 else []
        rd = c_reads_slot(gn) if gn < 32 else []
        x1, x2 = [], []
        if i == 2 and kc + 1 < 8: x1 += vm.wait(kc + 1) + ["s_barrier"]
        if g == 30:
            x1 += [f"v_permlane32_swap_b32 v{CS}, v{CS+4}", f"v_add_f32 v{CS}, v{CS}, v{CS+4}", f"ds_write_b32 v{VCW}, v{CS}",
                   "s_waitcnt lgkmcnt(0)", "s_barrier", f"ds_read_b32 v{T+2}, v{VCR}"][:None if not NB8 else 3]
            if NB8:
                x1 += ["s_lshl_b32 s28, s20, 2", f"s_add_u32 s28, s28, {L_FLAG+128}", f"v_mov_b32 v{T}, s28", f"v_mov_b32 v{T+1}, 1",
                       f"ds_write_b32 v{T}, v{T+1}", f"v_xor_b32 v{T}, 4, v{T}"]
        if g == STATG: x2 += [f"buffer_load_dwordx2 v[{SG}:{SG+1}], v{VSO}, s[12:15], s36 offen {SC}"]; vm.note("sg")
        if EPE and g == 23: x2 += ep_early(VT)[:9]
        if EPE and g == 24: x2 += ep_early(VT)[9:]; vm.note("ep", 2)
        if g == MPG: x2 += mpf; vm.note("mpf")
        if g == env("MPG2", -5): x2 += ["s_xor_b32 s28, s2, 3"] + mpf[1:]; vm.note("mpf")
        WM = env("WARM", 0)
        if WM and g == env("WARMG", 10):
            x2 += [f"v_lshlrev_b32 v{VT+2}, 20, v0", f"v_lshlrev_b32 v{VT+3}, 7, v0"]
            if WM & 1: x2 += ["s_mov_b64 exec, 0x3fff", f"buffer_load_dword v{VDUM}, v{VT+2}, s[12:15], 0 offen"]; vm.note("wm")
            if WM & 2: x2 += ["s_mov_b64 exec, 3", f"global_load_dword v{VDUM}, v{VT+2}, s[52:53]"]; vm.note("wm")
            if WM & 4: x2 += ["s_mov_b64 exec, 0xff", f"global_load_dword v{VDUM}, v{VT+3}, s[50:51]"]; vm.note("wm")
            x2 += ["s_mov_b64 exec, -1"]
        if HPRE >= 10 and HPRE <= g < HPRE + 8: x2 += [hpre[g - HPRE]]; vm.note("hp")
        if HPRE == 2 and g == 11:
            x2 += [f"v_and_b32 v{VT+2}, 31, v0", f"v_lshlrev_b32 v{VT+2}, 7, v{VT+2}", "s_mov_b64 exec, 0xffffffff", "s_mov_b32 exec_hi, 0",
                   f"buffer_load_dword v{VDUM}, v{VT+2}, s[12:15], s32 offen", f"buffer_load_dword v{VDUM}, v{VT+2}, s[12:15], s38 offen", "s_mov_b64 exec, -1"]; vm.note("hp", 2)
        if g in PFG:
            n_ = 128 // len(PFG); k_ = PFG.index(g)
            x2 += ["s_lshl_b32 s28, s24, 2", "s_add_u32 s28, s28, s39", "s_lshl_b32 s28, s28, 14", f"s_add_u32 s28, s28, {k_*n_*128}", f"v_lshlrev_b32 v{VT+2}, 7, v0"]
            if n_ < 64: x2 += [f"s_mov_b32 exec_lo, {hex((1 << n_) - 1)}", "s_mov_b32 exec_hi, 0"]
            x2 += [f"buffer_load_dword v{VDUM}, v{VT+2}, s[16:19], s28 offen", "s_mov_b64 exec, -1"]; vm.note("l2")
        if g == env("YFG", 16) - 1: x2 += yflag_off()
        if g == env("YFG", 16): x2 += ["s_waitcnt vmcnt(0)"] + wave_flag("s28", VT); vm.q.clear(); vm.note("yf")
        lq.wait(g)
        A(big(g, 0, 0))
        if i == 2: A.st(f"pb{kc+1}")
        lq.emit(x1)
        if i == 2: A.st(f"ab{kc+1}")
        lq.emit(rd[:2], gn)
        A(big(g, 0, 1)); lq.emit(rd[2:4], gn); A.extend(o1)
        A(big(g, 1, 0)); lq.emit(rd[4:], gn)
        A(big(g, 1, 1)); lq.emit(x2); A.extend(o2)
    A.st("loop")
    if NB8:
        lds_wait(A, "L_c_cs", T, 0, T + 1)
        A(f"ds_read_b32 v{T+2}, v{VCR}")
    A.extend(vm.wait("sg", "b1"))
    A(f"""
    v_cmp_ne_u32 vcc, s76, v{SG+1}
    s_cbranch_vccz L_g1_sok
    s_mov_b32 s30, 0
    L_g1_spoll:
    buffer_load_dwordx2 v[{SG}:{SG+1}], v{VSO}, s[12:15], s36 offen {SC}
    s_add_u32 s30, s30, 1
    s_waitcnt vmcnt(0)
    v_cmp_ne_u32 vcc, s76, v{SG+1}
    s_cmp_gt_u32 s30, {SPIN}
    s_cbranch_scc1 L_g1_sok
    s_cbranch_vccnz L_g1_spoll
    L_g1_sok:
    v_mov_b32 v{SG+1}, v{SG}
    s_mov_b32 s28, -1
    s_mov_b32 s29, 0
    v_permlane32_swap_b32 v{SG}, v{SG+1}
    s_waitcnt lgkmcnt(0)
    v_add_f32 v{T+2}, v{T+2}, v{CS}
    """)
    l1 = []
    for tt in range(2):
        l1 += [f"v_and_b32 v{VS+tt}, 0xffff0000, v{SG+tt}", f"v_and_b32 v{T+8+tt}, 0xffff, v{SG+tt}", f"v_rcp_f32 v{T+6+tt}, v{VS+tt}",
               f"v_lshl_or_b32 v{T+8+tt}, v{T+8+tt}, 16, v{T+8+tt}",
               f"v_cndmask_b32 v{EB+8*tt}, 0, v{T+8+tt}, s[28:29]", f"v_cndmask_b32 v{EB+8*tt+1}, 0, v{SG+tt}, s[28:29]",
               f"v_cndmask_b32 v{EB+8*tt+4}, v{T+8+tt}, 0, s[28:29]", f"v_cndmask_b32 v{EB+8*tt+5}, v{SG+tt}, 0, s[28:29]"]
    l2 = [f"v_and_b32 v{T+3}, 0xffff0000, v{T+2}", f"v_sub_f32 v{T+3}, v{T+2}, v{T+3}", f"v_lshrrev_b32 v{T+2}, 16, v{T+2}",
          f"v_and_b32 v{T+4}, 0xffff0000, v{T+3}", f"v_sub_f32 v{T+5}, v{T+3}, v{T+4}", f"v_or_b32 v{EA}, v{T+2}, v{T+4}",
          f"v_lshrrev_b32 v{T+5}, 16, v{T+5}", f"v_or_b32 v{EA+1}, v{T+5}, v{VB1}"]
    A.extend(zipm(l1, l2))
    l3 = []
    for tt in range(2):
        l3.append([f"v_fma_f32 v{T+10+tt}, -v{VS+tt}, v{T+6+tt}, 1.0", f"v_fma_f32 v{T+6+tt}, v{T+10+tt}, v{T+6+tt}, v{T+6+tt}",
                   f"v_mul_f32 v{K1r+tt}, {hex(f2u(GC1))}, v{T+6+tt}", f"v_mul_f32 v{T+10+tt}, v{T+6+tt}, v{T+6+tt}",
                   f"v_mul_f32 v{K3r+tt}, {hex(f2u(GC2))}, v{T+6+tt}", f"v_mul_f32 v{K3r+tt}, v{K3r+tt}, v{T+10+tt}"])
    l3 = zipm(*l3)
    for tt in range(2):
        for ft in range(2):
            c = ACC1 + 32 * tt + 16 * ft
            A(f"v_mfma_f32_32x32x16_bf16 v[{c}:{c+15}], v[{EA}:{EA+3}], v[{EB+8*tt+4*ft}:{EB+8*tt+4*ft+3}], v[{c}:{c+15}]")
            A.extend(l3[3 * (2 * tt + ft):3 * (2 * tt + ft) + 3])
    A.st("gstart")
    for n in range(8):
        tt = n // 4
        if n == env("PGN", 99): A("s_setprio 2")
        c0 = ACC1 + 8 * n
        t0 = GT + 8 * (n % 2)
        if GPK == 1 and n == NPK0:
            A(f"""
            v_mov_b32 v{VT}, {L_FLAG+80}
            L_c_km:
            ds_read_b128 v[{EA}:{EA+3}], v{VT}
            s_waitcnt lgkmcnt(0)
            v_and_b32 v{EA}, v{EA}, v{EA+1}
            v_and_b32 v{EA+2}, v{EA+2}, v{EA+3}
            v_and_b32 v{EA}, v{EA}, v{EA+2}
            s_nop 0
            v_readfirstlane_b32 s28, v{EA}
            s_cmp_eq_u32 s28, 1
            s_cbranch_scc0 L_c_km
            """)
        if GPK == 3:
            P = lambda x: f"v[{x}:{x+1}]"
            DC = 220 + 6 * tt
            if n % 4 == 0:
                for j, src in enumerate((K1r + tt, K1r + tt, K3r + tt, K3r + tt, VS + tt, VS + tt)): A(f"v_mov_b32 v{DC+j}, v{src}")
            for k in range(0, 8, 2): A(f"v_pk_mul_f32 {P(t0+k)}, {P(c0+k)}, {P(c0+k)}")
            for k in range(0, 8, 2): A(f"v_pk_fma_f32 {P(t0+k)}, {P(t0+k)}, {P(DC+2)}, {P(DC)}")
            for k in range(0, 8, 2): A(f"v_pk_mul_f32 {P(t0+k)}, {P(t0+k)}, {P(c0+k)}")
            for k in range(8): A(f"v_exp_f32 v{t0+k}, v{t0+k}")
            for k in range(0, 8, 2): A(f"v_pk_fma_f32 {P(t0+k)}, {P(t0+k)}, {P(DC+4)}, {P(DC+4)}")
            for k in range(8): A(f"v_rcp_f32 v{t0+k}, v{t0+k}")
            for k in range(0, 8, 2): A(f"v_pk_mul_f32 {P(c0+k)}, {P(c0+k)}, {P(t0+k)}")
        elif GPK == 2 or (GPK and n >= NPK0):
            P = lambda x: f"v[{x}:{x+1}]"
            sel = f"op_sel:[0,{tt},{tt}] op_sel_hi:[1,{tt},{tt}]"
            for k in range(0, 8, 2): A(f"v_pk_mul_f32 {P(t0+k)}, {P(c0+k)}, {P(c0+k)}")
            for k in range(0, 8, 2): A(f"v_pk_fma_f32 {P(t0+k)}, {P(t0+k)}, {P(K3r)}, {P(K1r)} {sel}")
            for k in range(0, 8, 2): A(f"v_pk_mul_f32 {P(t0+k)}, {P(t0+k)}, {P(c0+k)}")
            for k in range(8): A(f"v_exp_f32 v{t0+k}, v{t0+k}")
            for k in range(0, 8, 2): A(f"v_pk_fma_f32 {P(t0+k)}, {P(t0+k)}, {P(VS)}, {P(VS)} {sel}")
            for k in range(8): A(f"v_rcp_f32 v{t0+k}, v{t0+k}")
            for k in range(0, 8, 2): A(f"v_pk_mul_f32 {P(c0+k)}, {P(c0+k)}, {P(t0+k)}")
        else:
            for k in range(8): A(f"v_mul_f32 v{t0+k}, v{c0+k}, v{c0+k}")
            for k in range(8): A(f"v_fma_f32 v{t0+k}, v{t0+k}, v{K3r+tt}, v{K1r+tt}")
            for k in range(8): A(f"v_mul_f32 v{t0+k}, v{t0+k}, v{c0+k}")
            for k in range(8): A(f"v_exp_f32 v{t0+k}, v{t0+k}")
            for k in range(8): A(f"v_fma_f32 v{t0+k}, v{t0+k}, v{VS+tt}, v{VS+tt}")
            for k in range(8): A(f"v_rcp_f32 v{t0+k}, v{t0+k}")
            for k in range(8): A(f"v_mul_f32 v{c0+k}, v{c0+k}, v{t0+k}")
        pk = PK + 4 * (n % 2)
        for k in range(4): A(f"v_cvt_pk_bf16_f32 v{pk+k}, v{c0+2*k}, v{c0+2*k+1}")
        A(f"buffer_store_dwordx4 v[{pk}:{pk+3}], v{VHO1}, s[12:15], s{32 if tt == 0 else 38} offen offset:{(n%4)*1024} {SCH}")
        if env("DBL", 0): A(f"buffer_store_dwordx4 v[{pk}:{pk+3}], v{VHO1}, s[12:15], s{32 if tt == 0 else 38} offen offset:{(n%4)*1024}")
    A.st("gend")
    A("s_mov_b32 s37, 0")
    A("s_branch L_gemm2")

def PERM(g): return g
def c_reads_slot(g):
    if g < 28: return c_reads(g)
    i = [0, 2, 1, 3][g - 28]
    r = c_reads(28 + i)
    kc = 7; st = kc % NS; b = HI; off = (st % 2) * STAGE; sl = g % NR
    tr = lambda ft, sec: f"ds_read_b64_tr_b16 v[{W1+8*sl+4*ft+2*sec}:{W1+8*sl+4*ft+2*sec+1}], v{b+4+2*i+ft} offset:{off + sec*1024}"
    xr = lambda tt: f"ds_read_b128 v[{X1+8*sl+4*tt}:{X1+8*sl+4*tt+3}], v{b+i} offset:{off + tt*4096}"
    return [xr(0), tr(0, 0), tr(0, 1), tr(1, 0), tr(1, 1), xr(1)]

def yflag_off():
    return ["s_lshr_b32 s28, s39, 1", "s_lshl_b32 s29, s2, 1", "s_add_u32 s28, s28, s29", "s_and_b32 s29, s39, 1", "s_lshl_b32 s29, s29, 9",
            "s_add_u32 s28, s28, s29", f"s_lshl_b32 s28, s28, {FS}", f"s_add_u32 s28, s28, {WS_FLY}"]
def ring_ready(vt):
    return ["s_lshl_b32 s28, s39, 2", f"s_add_u32 s28, s28, {L_FLAG+16}", f"v_mov_b32 v{vt}, s28", f"v_mov_b32 v{vt+1}, 1", f"ds_write_b32 v{vt}, v{vt+1}"]

def gen_h1(A):
    VT = VT1
    vm = VMQ()
    vm.note("prm", 8)
    A(f"s_add_u32 s42, s42, {WSOFF}\ns_addc_u32 s43, s43, 0\ns_load_dword s76, s[42:43], {WS_EPOCH}")
    srd(A, 4, "s40", "s41", 2 << 20)
    srd(A, 8, "s44", "s45", 512 * 3584)
    srd(A, 12, "s42", "s43", WS_USED)
    if env("CPF", 1): vm.note("cpf")
    dma_setup(A)
    w2_setup(A, VT)
    if env("MPF", 0):
        A(f"""
        s_lshl_b32 s28, s2, 2
        s_add_u32 s28, s28, s39
        s_lshl_b32 s28, s28, 11
        v_lshlrev_b32 v{VT+2}, 7, v0
        s_mov_b64 exec, 0xffff
        buffer_load_dword v{VDUM}, v{VT+2}, s[16:19], s28 offen
        s_mov_b64 exec, -1
        """)
    if env("TLBW", 0):
        A(f"""
        v_lshlrev_b32 v{VT+2}, {env("TLBS", 20)}, v0
        s_mov_b64 exec, {hex((1 << (WS_USED >> env("TLBS", 20))) - 1)}
        buffer_load_dword v{VDUM}, v{VT+2}, s[12:15], 0 offen
        s_mov_b64 exec, 3
        buffer_load_dword v{VDUM}, v{VT+2}, s[16:19], 0 offen
        global_load_dword v{VDUM}, v{VT+2}, s[52:53]
        s_mov_b64 exec, 1
        global_load_dword v{VDUM}, v{VT+2}, s[50:51]
        s_mov_b64 exec, -1
        """)
        vm.note("tlb", 4)
    kg_waddr(A, L_VS, KWA); A.extend(kg_raddr(L_VS, KRA, VT))
    for a_ in flag_zero(): A.extend(a_)
    if env("BP", 1) >= 0: A("s_barrier")
    A.extend(tail_pre())
    A.st("pre")
    A.extend(vm.wait("prm"))
    A.st("prm")
    A.label("L_kgen_v")
    gen_kgen_v(A)
    A("s_cmp_eq_u32 s77, 7")
    A("s_cbranch_scc1 L_ln_H2")
    A.st("kg")
    A("s_waitcnt lgkmcnt(0)"); A("s_barrier")
    A.st("b0")
    mktag(A)
    UV0, UW = kgen_u_lists(0)
    UV = kgen_u_lists(L_VS)[0] if U6 else UV0
    ar_, mm_ = kg_atoms_m()
    wts = [2, 3, 3, 3, 3, 3]; cum = 0
    for k in range(7 if NB8 else 8):
        if U6 and k == 6:
            A.extend(UW)
            for a_ in ar_: A(a_[0])
            A.extend(ep_early(VT)); vm.note("ep", 2)
        elif NB8 and k == 6:
            if EPE: A.extend(ep_early(VT)); vm.note("ep", 2)
            for sl in range(env("F6N", 2)): A.extend(wdma(sl, sl))
            vm.note("f", 2 * env("F6N", 2))
        elif k <= 5:
            sl_ = UV[len(UV) * cum // sum(wts):len(UV) * (cum + wts[k]) // sum(wts)]; cum += wts[k]
            if k >= 1 or NC0 == 2:
                pcs = []
                for part in range(4):
                    dd = g1_dma(k + 2, part); pcs += [dd[:len(dd)//2], dd[len(dd)//2:]]
                vm.note(k + 2, 8)
                for q, dd in enumerate(pcs):
                    A.extend(dd); A.extend(sl_[len(sl_) * q // 8:len(sl_) * (q + 1) // 8])
            else: A.extend(sl_)
        else:
            for sl in range(4 * (k - 6), 4 * (k - 6) + 4): A.extend(wdma(sl, sl))
            vm.note("f", 8)
        A.st(f"pi{k+1}")
        A.extend(vm.wait(k + 1))
        A("s_barrier")
        A.st(f"ab{k+1}")
    if U6:
        A("s_waitcnt lgkmcnt(0)")
        for sl in range(8):
            A(mm_[sl][1]); A.extend(wdma(sl, sl))
    if NB8:
        if not U6:
            for sl in range(env("F6N", 2), 8): A.extend(wdma(sl, sl))
        A(f"""
        v_mov_b32 v{VT+2}, {L_FLAG+128}
        L_h_rd:
        ds_read_b128 v[32:35], v{VT+2}
        s_waitcnt lgkmcnt(0)
        v_and_b32 v32, v32, v33
        v_and_b32 v34, v34, v35
        v_and_b32 v32, v32, v34
        s_nop 0
        v_readfirstlane_b32 s28, v32
        s_cmp_eq_u32 s28, 1
        s_cbranch_scc0 L_h_rd
        """)
    A.st("loop")
    HT2 = env("HT2", 0)
    if not HT2 and not (U6 and env("FL8", 0)):
        for sl in range(8, 12): A.extend(wdma(sl, sl))
    if U6: A("s_branch L_h_tail2")
    A.label("L_h_tail")
    A(f"s_setprio {env('PRIOX', 0)}")
    lq = LQ(A)
    ar_, mm_ = kg_atoms_m()
    UE = env("UE", 0)
    if UE: A.extend(lnflag_load(36))
    A.st("t0")
    lq.emit(UW)
    A.st("t1")
    for a_ in ar_: lq.emit(a_)
    if GPK == 2:
        A("s_setprio 0")
        A("s_cmp_eq_u32 s77, 7")
        A("s_cbranch_scc1 L_h_gd2")
        A(f"""
        v_mov_b32 v{VT+2}, {L_FLAG+32}
        L_h_gd:
        s_sleep 1
        ds_read_b128 v[32:35], v{VT+2}
        s_waitcnt lgkmcnt(0)
        v_and_b32 v32, v32, v33
        v_and_b32 v34, v34, v35
        v_and_b32 v32, v32, v34
        s_nop 0
        v_readfirstlane_b32 s28, v32
        s_cmp_eq_u32 s28, 1
        s_cbranch_scc0 L_h_gd
        L_h_gd2:
        """)
        A.extend(lnflag_load(36))
    for a_ in mm_: lq.emit(a_)
    A.st("t2")
    if U6:
        A("s_nop 7"); A("s_nop 3")
        A.label("L_h_tail2")
    for a_ in kg_atoms_x1(): lq.emit(a_)
    A(f"ds_write_b32 v{XFL}, v{XONE} offset:80")
    HT3 = 1
    A(lnflag_load(154)[-1])
    A.st("t3")
    lds_wait(A, "L_h_x1", XFP, 80, 32)
    A.st("t4")
    lq.q = []
    if env("PX2", 0): A(f"s_setprio {env('PX2', 0)}")
    for a_ in kg_atoms_x2("g"): lq.emit(a_)
    A("s_setprio 0")
    if U6 and env("FL8", 0):
        A("s_cmp_eq_u32 s77, 7")
        A("s_cbranch_scc1 L_h_f8")
        A("s_waitcnt lgkmcnt(0)")
        for sl in range(8, 12): A.extend(wdma(sl, sl))
        A.label("L_h_f8")
    DF = env("DF", 0)
    if DF:
        A("s_waitcnt vmcnt(0)")
        if DF == 1: A.extend(ring_ready(VT))
        A("s_cmp_eq_u32 s77, 7")
        A("s_cbranch_scc1 L_h_dr2")
        A(f"""
        v_mov_b32 v{VT+2}, {L_FLAG+32}
        L_h_dr:
        s_sleep 1
        ds_read_b128 v[32:35], v{VT+2}
        s_waitcnt lgkmcnt(0)
        v_and_b32 v32, v32, v33
        v_and_b32 v34, v34, v35
        v_and_b32 v32, v32, v34
        s_nop 0
        v_readfirstlane_b32 s28, v32
        s_cmp_eq_u32 s28, 1
        s_cbranch_scc0 L_h_dr
        L_h_dr2:
        """)
    if not HT2 and not HT3 and GPK != 2: A.extend(lnflag_load(VT))
    A.st("ku")
    A(f"v_lshlrev_b32 v18, 4, v0")
    A("s_waitcnt vmcnt(0)")
    if UE: A("s_cmp_eq_u32 s37, 1"); A("s_cbranch_scc1 L_ut_no")
    RT = env("RT", 6)
    if RT:
        A(f"""
        s_mov_b32 s30, 0
        v_cmp_ne_u32 vcc, s76, v{LNF}
        s_cbranch_vccz L_rt_ok
        L_rt:
        s_sleep {PS}
        buffer_load_dword v{LNF}, v154, s[12:15], 0 offen {SC}
        s_add_u32 s30, s30, 1
        s_waitcnt vmcnt(0)
        v_cmp_ne_u32 vcc, s76, v{LNF}
        s_cmp_ge_u32 s30, {RT}
        s_cbranch_scc1 L_rt_ok
        s_cbranch_vccnz L_rt
        L_rt_ok:
        """)
    u_try(A, 18)
    if HT2:
        A("s_cmp_eq_u32 s77, 7")
        A("s_cbranch_scc1 L_h_nof")
        for sl in range(8, 12): A.extend(wdma(sl, sl))
        A("s_branch L_h_f")
        A.label("L_h_nof")
        A.extend(ring_ready(VT))
        A("s_waitcnt vmcnt(0)")
        A.label("L_h_f")
    else:
        A(f"ds_write_b32 v{XFL}, v{XONE} offset:16")
    A.st("gend")
    A("s_branch L_conv")
    A.label("L_ln_H2")
    A("s_waitcnt vmcnt(0) ; RESETSB")
    A("ds_write_b32 v5, v6")
    if EPE: A("s_waitcnt lgkmcnt(0)"); A.extend(ep_early(28))
    A.extend(UV0)
    A.extend(tail_pre())
    A(f"""
    v_mov_b32 v30, {L_FLAG+112+(64 if env('LNW', 0) or env('LVM', 0) else 0)}
    L_ln_hv:
    ds_read_b128 v[32:35], v30
    s_waitcnt lgkmcnt(0)
    v_and_b32 v32, v32, v33
    v_and_b32 v34, v34, v35
    v_and_b32 v32, v32, v34
    s_nop 0
    v_readfirstlane_b32 s28, v32
    s_cmp_eq_u32 s28, 1
    s_cbranch_scc0 L_ln_hv
    """)
    A("s_branch L_h_tail")

def gen_gemm1(A):
    A(f"""
    s_load_dwordx8 s[56:63], s[0:1], {KA['A_re']}
    s_load_dwordx8 s[64:71], s[0:1], {KA['C_re']}
    """)
    A("s_cmp_lt_u32 s20, 4")
    A("s_cbranch_scc1 L_g1_C")
    param_loads(A, VT1)
    if env("CPF", 1):
        A(f"""
        s_getpc_b64 s[28:29]
        L_pc0:
        s_sub_u32 s28, s28, L_pc0-{KNAME}
        s_subb_u32 s29, s29, 0
        s_lshl_b32 s30, s24, 2
        s_add_u32 s30, s30, s39
        s_mul_i32 s30, s30, 384
        v_lshl_add_u32 v{VT1+2}, v0, 7, s30
        v_min_u32 v{VT1+2}, L_exit-{KNAME}, v{VT1+2}
        s_mov_b64 exec, 7
        global_load_dword v{VDUM}, v{VT1+2}, s[28:29]
        s_mov_b64 exec, -1
        """)
    A("s_branch L_g1_H")
    A.label("L_g1_C")
    A("s_nop 0 ; RESETSB")
    gen_c1(A)
    A.label("L_g1_H")
    A("s_nop 0 ; RESETSB")
    gen_h1(A)


def gen_ln(A):
    Q, R, O, T = 16, 48, 80, 112
    A(f"""
    s_load_dwordx8 s[56:63], s[0:1], {KA['A_re']}
    s_load_dwordx8 s[64:71], s[0:1], {KA['C_re']}
    v_lshrrev_b32 v1, 3, v0
    v_and_b32 v2, 7, v0
    v_lshlrev_b32 v3, 10, v1
    v_lshl_add_u32 v3, v2, 4, v3
    v_lshlrev_b32 v4, 4, v0
    s_lshl_b32 s25, s21, 6
    s_lshl_b32 s28, s20, 3
    s_add_u32 s25, s25, s28
    s_lshl_b32 s36, s25, 3
    s_add_u32 s36, s36, {WS_STAT}
    s_lshl_b32 s25, s25, 10
    s_add_u32 s26, s25, 4096
    s_waitcnt lgkmcnt(0)
    s_add_u32 s42, s42, {WSOFF}
    s_addc_u32 s43, s43, 0
    s_load_dword s76, s[42:43], {WS_EPOCH}
    """)
    srd(A, 4, "s40", "s41", 2 << 20)
    for t in range(8): A(f"buffer_load_dwordx4 v[{R+4*t}:{R+4*t+3}], v4, s[4:7], s{25 + t//4} offen offset:{(t%4)*1024}")
    srd(A, 12, "s42", "s43", WS_USED)
    NLW = 0
    if LW1:
        srd(A, 8, "s44", "s45", 512 * 3584)
        A(f"""
        s_and_b32 s28, s24, 3
        s_lshl_b32 s28, s28, 3
        s_add_u32 s28, s28, s20
        s_mul_i32 s28, s28, 47
        s_and_b32 s29, s23, 1
        s_mul_i32 s29, s29, 1792
        s_add_u32 s29, s29, {192*3584}
        """)
        for j in range(3):
            A(f"""
            s_add_u32 s30, s28, {j*1504}
            v_add_u32 v{T}, s30, v0
            v_mul_u32_u24 v{T+1}, 0x4925, v{T}
            v_lshrrev_b32 v{T+1}, 18, v{T+1}
            v_mul_u32_u24 v{T+2}, 14, v{T+1}
            v_sub_u32 v{T}, v{T}, v{T+2}
            v_lshlrev_b32 v{T}, 7, v{T}
            v_mul_u32_u24 v{T+1}, 3584, v{T+1}
            v_add_u32 v{T}, v{T}, v{T+1}
            s_mov_b32 exec_hi, 0x7fff
            buffer_load_dword v{VDUM}, v{T}, s[8:11], s29 offen
            s_mov_b32 exec_hi, -1
            """)
        NLW = 3
    A(f"""
    v_mov_b32 v5, 0x3f803f80
    v_mov_b32 v14, 0x00003f80
    v_mov_b32 v15, 0x3f800000
    v_lshlrev_b32 v8, 3, v1
    """)
    S1, S2 = Q, Q + 8
    A("s_setprio 2")
    for t in range(8):
        A(f"s_waitcnt vmcnt({7 - t + NLW})")
        for k in range(4):
            r = R + 4 * t + k
            A(f"v_dot2_f32_bf16 v{S1+t}, v{r}, v5, {'0' if k == 0 else f'v{S1+t}'}")
            A(f"v_dot2_f32_bf16 v{S2+t}, v{r}, v{r}, {'0' if k == 0 else f'v{S2+t}'}")
    for r in range(4):
        for S in (S1, S2): A(f"v_permlane32_swap_b32 v{S+r}, v{S+r+4}")
    for r in range(4):
        for S in (S1, S2): A(f"v_add_f32 v{S+r}, v{S+r}, v{S+r+4}")
    for r in range(2):
        for S in (S1, S2): A(f"v_permlane16_swap_b32 v{S+r}, v{S+r+2}")
    for r in range(2):
        for S in (S1, S2): A(f"v_add_f32 v{S+r}, v{S+r}, v{S+r+2}")
    for r in range(2):
        for S in (S1, S2): A(f"v_add_f32_dpp v{S+r}, v{S+r}, v{S+r} row_ror:8 row_mask:0xf bank_mask:0xf")
    A.extend(mask("0xff00ff00"))
    A(f"""
    v_cndmask_b32 v6, v{S1}, v{S1+1}, s[28:29]
    v_cndmask_b32 v7, v{S2}, v{S2+1}, s[28:29]
    s_waitcnt lgkmcnt(0)
    """)
    mktag(A)
    A(f"""
    v_mov_b32 v11, s76
    v_add_f32_dpp v6, v6, v6 quad_perm:[1,0,3,2] row_mask:0xf bank_mask:0xf
    v_add_f32_dpp v7, v7, v7 quad_perm:[1,0,3,2] row_mask:0xf bank_mask:0xf
    v_add_f32_dpp v6, v6, v6 quad_perm:[2,3,0,1] row_mask:0xf bank_mask:0xf
    v_add_f32_dpp v7, v7, v7 quad_perm:[2,3,0,1] row_mask:0xf bank_mask:0xf
    v_add_f32_dpp v6, v6, v6 row_half_mirror row_mask:0xf bank_mask:0xf
    v_add_f32_dpp v7, v7, v7 row_half_mirror row_mask:0xf bank_mask:0xf
    v_mul_f32 v12, {hex(f2u(1/512))}, v6
    v_mul_f32 v13, {hex(f2u(1/512))}, v7
    v_fma_f32 v13, -v12, v12, v13
    v_max_f32 v13, 0, v13
    """)
    round_bf16(A, 13)
    A(f"v_add_f32 v13, {hex(f2u(1e-5))}, v13")
    round_bf16(A, 13)
    A(f"""
    v_sqrt_f32 v13, v13
    v_cvt_pk_bf16_f32 v10, -v12, v13
    s_mov_b32 exec_lo, 0x01010101
    s_mov_b32 exec_hi, 0x01010101
    buffer_store_dwordx2 v[10:11], v8, s[12:15], s36 offen {SC}
    s_mov_b64 exec, -1
    """)
    A.st("b0")
    A("s_setprio 0")
    param_loads(A, T)
    LPF = env("LPF", 0)
    if LPF:
        srd(A, 16, "s48", "s49", 1792 * 1024)
        A(f"""
        s_lshl_b32 s28, s21, 3
        s_add_u32 s28, s28, s20
        s_mul_i32 s28, s28, {56*128}
        v_min_u32 v{T+2}, 55, v0
        v_lshlrev_b32 v{T+2}, 7, v{T+2}
        buffer_load_dword v{VDUM}, v{T+2}, s[16:19], s28 offen
        """)
    A(f"""
    v_and_b32 v13, 0xffff0000, v10
    v_lshlrev_b32 v12, 16, v10
    v_rcp_f32 v5, v13
    s_nop 0
    v_fma_f32 v13, -v13, v5, 1.0
    v_fma_f32 v13, v13, v5, v5
    """)
    for t in range(8):
        A(f"v_readlane_b32 s{56+t}, v12, {8*t}")
        A(f"v_readlane_b32 s{64+t}, v13, {8*t}")
    A(f"""
    v_xor_b32 v5, s20, v2
    v_lshlrev_b32 v6, 10, v0
    v_lshl_add_u32 v6, v5, 4, v6
    """)

    for tp in range(4):
        t0, t1 = 2 * tp, 2 * tp + 1
        for k in range(4):
            for h in range(2):
                e = 2 * k + h
                A(f"v_dot2_f32_bf16 v{T+2*e}, v{R+4*t0+k}, v{14+h}, s{56+t0}")
                A(f"v_dot2_f32_bf16 v{T+2*e+1}, v{R+4*t1+k}, v{14+h}, s{56+t1}")
        if env("LNX", 1):
            for e in range(8): A(f"v_cvt_pk_bf16_f32 v{T+2*e+1}, v{T+2*e}, v{T+2*e+1}")
            for e in range(8):
                A(f"v_lshlrev_b32 v{T+2*e}, 16, v{T+2*e+1}")
                A(f"v_and_b32 v{T+2*e+1}, 0xffff0000, v{T+2*e+1}")
        for e in range(8): A(f"v_pk_mul_f32 v[{T+2*e}:{T+2*e+1}], v[{T+2*e}:{T+2*e+1}], s[{64+t0}:{64+t1}]")
        for e in range(8): A(f"v_cvt_pk_bf16_f32 v{O+4*e+tp}, v{T+2*e}, v{T+2*e+1}")
        if tp == env("LFP", 3):
            w2_setup(A, 28)
            LF = env("LF", 0)
            A("s_cmp_ge_u32 s20, 4")
            A("s_cbranch_scc1 L_ln_nofill")
            for sl in range(LF): A.extend(wdma(sl, sl))
            A.label("L_ln_nofill")
    for e in range(8): A(f"ds_write_b128 v6, v[{O+4*e}:{O+4*e+3}] offset:{e*128}")
    for a_ in flag_zero(): A.extend(a_)
    A.st("g8")
    A(f"""
    s_lshl_b32 s28, s20, 13
    v_lshlrev_b32 v6, 7, v1
    v_lshl_add_u32 v6, v2, 4, v6
    v_add_u32 v6, s28, v6
    v_lshlrev_b32 v7, {7 if XS else 12}, v1
    v_lshl_add_u32 v7, v2, 4, v7
    s_lshl_b32 s26, s20, {13 if XS else 18}
    s_mul_i32 s28, s21, {XS if XS else 128}
    s_add_u32 s26, s26, s28
    s_add_u32 s26, s26, {WS_XNT}
    s_lshl_b32 s33, s21, {FSL}
    s_add_u32 s33, s33, {WS_FLL}
    """)
    for i in range(8): A(f"v_xor_b32 v{8+i}, {16*i}, v6")
    A("s_waitcnt lgkmcnt(0)")
    A("s_barrier")
    for i in range(8): A(f"ds_read_b128 v[{192+4*i}:{192+4*i+3}], v{8+i} offset:{i*1024}")
    for i in range(8):
        A(f"s_waitcnt lgkmcnt({7-i})")
        A(f"s_add_u32 s25, s26, {i*(1024 if XS else 32768)}")
        A(f"buffer_store_dwordx4 v[{192+4*i}:{192+4*i+3}], v7, s[12:15], s25 offen {SC}")
    A.st("loop")
    A(f"""
    s_lshl_b32 s28, s20, 2
    s_add_u32 s28, s28, {L_FLAG+96}
    v_mov_b32 v5, s28
    v_mov_b32 v6, 1
    s_cmp_lt_u32 s20, 4
    s_cbranch_scc1 L_ln_C
    """)
    kg_waddr(A, L_VS, KWA); A.extend(kg_raddr(L_VS, KRA, 28))
    A(f"s_mov_b32 s33, {WS_DUMMY}")
    if env("LNW", 0):
        A("s_waitcnt vmcnt(0)")
        A("ds_write_b32 v5, v6")
        A("v_add_u32 v5, 64, v5")
    else:
        A("s_waitcnt vmcnt(8)")
    LVM = env("LVM", 0)
    if LVM:
        o = Asm(); gen_kgen_v(o)
        cut = len(o.lines) * LVM // 100
        A.extend(o.lines[:cut])
        A("s_waitcnt vmcnt(0)")
        A("ds_write_b32 v5, v6")
        A("v_add_u32 v5, 64, v5")
        A.extend(o.lines[cut:])
        A("s_branch L_ln_H2")
    else:
        A("s_branch L_kgen_v")
    A.label("L_ln_C")
    A.extend(ya_prefill(T + 2, T + 3, T + 4))
    A(f"""
    v_mov_b32 v30, {L_FLAG+96}
    s_waitcnt vmcnt(0)
    ds_write_b32 v5, v6
    """)
    A.extend(yflag_off()); A.extend(wave_flag("s28", 34))
    A(f"""
    L_ln_cs:
    ds_read_b128 v[36:39], v30
    ds_read_b128 v[40:43], v30 offset:16
    s_waitcnt lgkmcnt(0)
    v_and_b32 v36, v36, v37
    v_and_b32 v38, v38, v39
    v_and_b32 v40, v40, v41
    v_and_b32 v42, v42, v43
    v_and_b32 v36, v36, v38
    v_and_b32 v40, v40, v42
    v_and_b32 v36, v36, v40
    s_nop 0
    v_readfirstlane_b32 s28, v36
    s_cmp_eq_u32 s28, 1
    s_cbranch_scc0 L_ln_cs
    """)
    publish_flag(A, "s33", 32, "l", 0)
    A.st("gstart")
    A(f"s_mov_b32 s33, {WS_DUMMY}")
    if EPE: A.extend(ep_early(28))
    TH = env("TH", 0)
    for sl in range(12):
        A.extend(wdma(sl, sl))
        if TH: A(f"s_waitcnt vmcnt({TH})")
    A("s_waitcnt vmcnt(0)")
    A.st("l1")
    for sl in range(12): A.extend(w2tr(sl, sl))
    LR = env("LR", 0)
    if LR:
        A("s_waitcnt lgkmcnt(0)")
        for sl in range(LR): A.extend(wdma(sl, 12 + sl))
    A(f"""
    v_mov_b32 v28, {L_FLAG+16}
    L_ln_cw:
    ds_read_b128 v[32:35], v28
    s_waitcnt lgkmcnt(0)
    v_and_b32 v32, v32, v33
    v_and_b32 v34, v34, v35
    v_and_b32 v32, v32, v34
    s_nop 0
    v_readfirstlane_b32 s28, v32
    s_cmp_eq_u32 s28, 1
    s_cbranch_scc0 L_ln_cw
    """)
    A.st("l2")
    for sl in range(LR, 12): A.extend(wdma(sl, 12 + sl))
    A.st("l3")
    A(f"""
    s_lshl_b32 s28, s20, 8
    s_add_u32 s28, s28, s2
    s_cmp_lg_u32 s28, 255
    s_cbranch_scc1 L_nobump
    v_lshlrev_b32 v28, {FS+1}, v0
    s_mov_b32 s30, 0
    L_bump_poll:
    """)
    for k in range(4):
        A(f"s_mov_b32 s28, {WS_FLY + k*(128 << FS)}")
        A(f"buffer_load_dword v{32+k}, v28, s[12:15], s28 offen {SC}")
    A(f"""
    s_add_u32 s30, s30, 1
    s_waitcnt vmcnt(0)
    v_xor_b32 v32, s76, v32
    v_xor_b32 v33, s76, v33
    v_xor_b32 v34, s76, v34
    v_xor_b32 v35, s76, v35
    v_or3_b32 v32, v32, v33, v34
    v_or_b32 v32, v32, v35
    v_cmp_ne_u32 vcc, 0, v32
    s_cmp_gt_u32 s30, {SPIN}
    s_cbranch_scc1 L_bump_go
    s_cbranch_vccnz L_bump_poll
    L_bump_go:
    s_mov_b32 s28, {WS_EPOCH}
    """)
    A.extend(wave_flag("s28", 28))
    A.label("L_nobump")
    A("s_mov_b32 s37, 1")
    A("s_branch L_gemm2")


def final_addr(A):
    A(f"""
    v_lshrrev_b32 v1, 3, v0
    v_and_b32 v2, 7, v0
    v_lshlrev_b32 v{VOO}, 10, v1
    v_lshl_add_u32 v{VOO}, v2, 4, v{VOO}
    v_lshlrev_b32 v3, 4, v2
    s_lshl_b32 s33, s78, 6
    s_lshl_b32 s28, s20, 3
    s_add_u32 s33, s33, s28
    s_lshl_b32 s33, s33, 10
    s_lshl_b32 s34, s79, 7
    s_add_u32 s33, s33, s34
    """)
def ep_loads():
    o = Asm()
    srd(o, 8, "s50", "s51", 1024)
    o(f"buffer_load_dwordx4 v[{VX}:{VX+3}], v{VOO}, s[4:7], s33 offen")
    o(f"buffer_load_dwordx4 v[{VB2}:{VB2+3}], v3, s[8:11], s34 offen")
    return o.lines


def ep_early(vt):
    return [f"v_lshrrev_b32 v{vt}, 3, v0", f"v_and_b32 v{vt+1}, 7, v0", f"v_lshlrev_b32 v{vt}, 10, v{vt}", f"v_lshlrev_b32 v{vt+1}, 4, v{vt+1}",
            f"v_add_u32 v{vt}, v{vt}, v{vt+1}", "s_lshl_b32 s29, s78, 6", "s_lshl_b32 s28, s20, 3", "s_add_u32 s29, s29, s28", "s_lshl_b32 s29, s29, 10",
            "s_lshl_b32 s30, s79, 7", "s_add_u32 s29, s29, s30", "s_mov_b32 s8, s50", "s_mov_b32 s9, s51", "s_mov_b32 s10, 1024", "s_mov_b32 s11, 0x00020000",
            f"buffer_load_dwordx4 v[{VX}:{VX+3}], v{vt}, s[4:7], s29 offen", f"buffer_load_dwordx4 v[{VB2}:{VB2+3}], v{vt+1}, s[8:11], s30 offen"]

def gen_gemm2(A):
    VHO, VTR2, VP, VT = 13, 14, 18, 22
    ACC, W, H = ACC2, W2R, HR
    if PRIO_G: A(f"s_setprio {PRIO_G}")
    A("s_mov_b32 s22, s33")
    final_addr(A)
    for k in range(4): A(f"v_mov_b32 v{VTR2+k}, v{VTL+k}")
    A(f"""
    v_lshlrev_b32 v{VHO}, 4, v0
    v_lshrrev_b32 v{VT}, 5, v0
    v_xor_b32 v{VT}, v{VT}, v2
    v_and_b32 v{VP}, 31, v0
    v_lshlrev_b32 v{VP}, 8, v{VP}
    v_lshl_add_u32 v{VP}, v{VT}, 4, v{VP}
    v_add_u32 v{VP}, s73, v{VP}
    v_xor_b32 v{VP+1}, 32, v{VP}
    v_xor_b32 v{VP+2}, 64, v{VP}
    v_xor_b32 v{VP+3}, 96, v{VP}
    s_mul_i32 s24, s78, {2*112*1024}
    s_mul_i32 s28, s20, {28*1024}
    s_add_u32 s24, s24, s28
    s_add_u32 s24, s24, {WS_HF}
    s_add_u32 s25, s24, {112*1024}
    s_mul_i32 s26, s20, {1 if HP else 7}
    s_lshl_b32 s28, s78, {2 if HP else 5}
    s_add_u32 s26, s26, s28
    s_lshl_b32 s26, s26, 7
    s_add_u32 s26, s26, {WS_FLH}
    v_min_u32 v{VT}, 6, v2
    v_lshlrev_b32 v{VT}, {2 if HP else 7}, v{VT}
    s_lshl_b32 s28, s20, 2
    s_add_u32 s28, s28, {L_FLAG+16}
    v_mov_b32 v{ACC+4}, s28
    v_mov_b32 v{ACC+5}, 1
    ds_write_b32 v{ACC+4}, v{ACC+5} offset:16
    s_mov_b32 s30, 0
    s_cmp_eq_u32 s37, 1
    s_cbranch_scc1 L_g2_poll
    """)
    A.st("prew")
    A("s_waitcnt vmcnt(0)")
    A.extend(wave_flag("s22", ACC))
    A.st("p2bar")
    A(f"""
    L_g2_rr:
    ds_read_b32 v{ACC+5}, v{ACC+4}
    s_waitcnt lgkmcnt(0)
    v_readfirstlane_b32 s28, v{ACC+5}
    s_cmp_eq_u32 s28, 1
    s_cbranch_scc0 L_g2_rr
    """)
    for sl in range(3): A.extend(w2tr(sl, sl, VTR2))
    for sl in range(12):
        left = min(12, sl + 3) - sl - 1
        A(f"s_waitcnt lgkmcnt({4*left})")
        if sl + 3 < 12: A.extend(w2tr(sl + 3, sl + 3, VTR2))
        if EP and sl == 12 - EP: A(f"buffer_load_dword v{ACC+2}, v{VT}, s[12:15], s26 offen {SC}")
        A.extend(wdma(sl, 12 + sl))
    if EP:
        A(f"""
        s_waitcnt vmcnt({2*EP})
        v_cmp_ne_u32 vcc, s76, v{ACC+2}
        s_cbranch_vccz L_g2_go
        """)
    A.st("s5")
    A.label("L_g2_poll")
    if PG: A(f"s_sleep {PG}")
    A(f"""
    buffer_load_dword v{ACC+2}, v{VT}, s[12:15], s26 offen {SC}
    s_add_u32 s30, s30, 1
    s_waitcnt vmcnt(0)
    v_cmp_ne_u32 vcc, s76, v{ACC+2}
    s_cmp_gt_u32 s30, {SPIN}
    s_cbranch_scc1 L_g2_go
    s_cbranch_vccnz L_g2_poll
    """)
    A.label("L_g2_go")
    vm = VMQ()
    for sl in range(12 - EP, 12): vm.note(("w", 12 + sl), 2)
    A.st("s6")
    def hload(kp):
        sl = kp % HD
        vm.note(("h", kp), 2)
        return koff("s31", ORDER[kp]) + ["s_add_u32 s27, s31, s24", "s_add_u32 s31, s31, s25",
                                  f"buffer_load_dwordx4 v[{H+8*sl}:{H+8*sl+3}], v{VHO}, s[12:15], s27 offen {SCL}",
                                  f"buffer_load_dwordx4 v[{H+8*sl+4}:{H+8*sl+7}], v{VHO}, s[12:15], s31 offen {SCL}"]
    if env("DYN", 0):
        free = [H + 8 * i for i in range(HD)]
        hb, wb = {}, {k: W + 8 * k for k in range(12)}
        lq = LQ(A)
        nh = [0]; nt = [12]
        MAXH = env("MAXH", 16)
        def hl(kp):
            r = free.pop(0); hb[kp] = r; vm.note(("h", kp), 2)
            A.extend(koff("s31", kp) + ["s_add_u32 s27, s31, s24", "s_add_u32 s31, s31, s25",
                     f"buffer_load_dwordx4 v[{r}:{r+3}], v{VHO}, s[12:15], s27 offen {SCL}",
                     f"buffer_load_dwordx4 v[{r+4}:{r+7}], v{VHO}, s[12:15], s31 offen {SCL}"])
        def tl(k):
            r = free.pop(0); wb[k] = r
            A.extend(vm.wait(("w", k)))
            a_ = slot_addr((k - 12) % 12); hi = a_ >> 16; a_ &= 0xffff
            lq.emit([f"ds_read_b64_tr_b16 v[{r+4*db+2*sec}:{r+4*db+2*sec+1}], v{VTR2+2*hi+db} offset:{a_+sec*1024}" for db in range(2) for sec in range(2)], ("t", k))
        for kp in range(HD): hl(kp); nh[0] += 1
        if PRIO_G: A(f"s_setprio {env('PRIOG2', 0)}")
        def mfm(kp, tb, db):
            c = ACC + 32 * tb + 16 * db
            cin = "0" if kp == 0 else f"v[{c}:{c+15}]"
            return f"v_mfma_f32_32x32x16_bf16 v[{c}:{c+15}], v[{wb[kp]+4*db}:{wb[kp]+4*db+3}], v[{hb[kp]+4*tb}:{hb[kp]+4*tb+3}], {cin}"
        f3 = [24]
        for kp in range(24):
            lq.wait(("t", kp))
            A.extend(vm.wait(("h", kp)))
            if kp in (4, 9, 14, 19): A.st(f"k{kp}")
            A(mfm(kp, 0, 0))
            if kp >= 1: free.extend([hb[kp - 1], wb[kp - 1]])
            ahead = env("TAH", 3) if kp < 20 else 4
            while nt[0] < 28 and nt[0] <= kp + ahead and free and (nt[0] < 24 or nt[0] < f3[0]): tl(nt[0]); nt[0] += 1
            A(mfm(kp, 0, 1))
            if nh[0] < 28 and len(free) > 1 and nh[0] - kp < MAXH: hl(nh[0]); nh[0] += 1
            A(mfm(kp, 1, 0))
            if nh[0] < 28 and len(free) > 1 and nh[0] - kp < MAXH: hl(nh[0]); nh[0] += 1
            if f3[0] < 28 and f3[0] - 12 <= kp + 1 and f3[0] - 12 < nt[0] - 1:
                lq.wait(("t", f3[0] - 12))
                A.extend(wdma(f3[0] - 24, f3[0])); vm.note(("w", f3[0]), 2); f3[0] += 1
            if kp == env("SIGK", 19):
                lq.emit(["s_lshl_b32 s28, s20, 2", f"s_add_u32 s28, s28, {L_FLAG+48}", f"v_mov_b32 v{VT}, s28", f"v_mov_b32 v{VHO}, 1", f"ds_write_b32 v{VT}, v{VHO}"])
                assert nh[0] == 28
            A(mfm(kp, 1, 1))
            if kp == 0: A.st("k0")
        assert nh[0] == 28 and nt[0] == 28, (nh, nt)
        pw = lambda tb, db: [f"ds_write_b128 v{VP+q}, v[{ACC+32*tb+16*db+4*q}:{ACC+32*tb+16*db+4*q+3}] offset:{tb*32768+db*128}" for q in range(4)]
        A("s_waitcnt lgkmcnt(0)")
        A.extend(vm.wait(("h", 27)))
        prev = []
        for tb in range(2):
            for db in range(2):
                for j, kp in enumerate(range(24, 28)):
                    A(mfm(kp, tb, db))
                    if j >= 1 and prev: A.extend(prev[:2]); prev = prev[2:]
                A.extend(prev); prev = pw(tb, db)
        A.st("s7")
        A.extend(prev)
        A("s_waitcnt vmcnt(0) lgkmcnt(0)")
        A("s_branch L_final")
        return
    H0 = env("H0", 9)
    for kp in range(H0): A.extend(hload(kp))
    nh = [H0]
    def more(kp, n):
        for _ in range(n):
            if nh[0] < 28 and nh[0] <= kp - 1 + HD:
                A.extend(hload(nh[0])); nh[0] += 1
    if PRIO_G: A(f"s_setprio {env('PRIOG2', 0)}")
    inring = lambda k: ORDER[k] >= 12
    wset = lambda k: ((k % 2) if k < 24 else k - 24) if inring(k) else ORDER[k]
    slot_of = lambda k: (ORDER[k] - 12) % 12
    for kp in range(28 - TS):
        nx = kp + 1
        if TS and kp >= 20 and kp < 24: nx = kp + 4
        if TS and kp >= 24: nx = 99
        if inring(kp): A("s_waitcnt lgkmcnt(0)")
        A.extend(vm.wait(("h", kp)))
        if kp in (4, 9, 14, 19): A.st(f"k{kp}")
        b = W + 8 * wset(kp); sl = kp % HD
        mf = []
        for tb in range(2):
            for db in range(2):
                c = ACC + 32 * tb + 16 * db
                cin = "0" if kp == 0 else f"v[{c}:{c+15}]"
                mf.append(f"v_mfma_f32_32x32x16_bf16 v[{c}:{c+15}], v[{b+4*db}:{b+4*db+3}], v[{H+8*sl+4*tb}:{H+8*sl+4*tb+3}], {cin}")
        A(mf[0])
        if nx < 28 and inring(nx):
            A.extend(vm.wait(("w", ORDER[nx])))
            A.extend(w2tr(slot_of(nx), wset(nx), VTR2))
        A(mf[1])
        more(kp, 1)
        A(mf[2])
        more(kp, 1)
        if 12 <= ORDER[kp] < 16:
            A.extend(wdma(ORDER[kp] - 12, ORDER[kp] + 12)); vm.note(("w", ORDER[kp] + 12), 2)
        if kp == 20 and not EPE:
            A.extend(ep_loads()); vm.note("ep", 2)
        if kp == env("SIGK", 19):
            A(f"""
            s_lshl_b32 s28, s20, 2
            s_add_u32 s28, s28, {L_FLAG+48}
            v_mov_b32 v{VT}, s28
            v_mov_b32 v{W}, 1
            ds_write_b32 v{VT}, v{W}
            """)
        A(mf[3])
        if kp == 0: A.st("k0")
    pw = lambda tb, db: [f"ds_write_b128 v{VP+q}, v[{ACC+32*tb+16*db+4*q}:{ACC+32*tb+16*db+4*q+3}] offset:{tb*32768+db*128}" for q in range(4)]
    if TS:
        A("s_waitcnt lgkmcnt(0)")
        A.extend(vm.wait(("h", 27)))
        prev = []
        for tb in range(2):
            for db in range(2):
                c = ACC + 32 * tb + 16 * db
                for j, kp in enumerate(range(28 - TS, 28)):
                    b_ = W + 8 * wset(kp); sl = kp % HD
                    A(f"v_mfma_f32_32x32x16_bf16 v[{c}:{c+15}], v[{b_+4*db}:{b_+4*db+3}], v[{H+8*sl+4*tb}:{H+8*sl+4*tb+3}], v[{c}:{c+15}]")
                    if j >= 1 and prev: A.extend(prev[:2]); prev = prev[2:]
                A.extend(prev); prev = pw(tb, db)
        A.st("s7")
        A.extend(prev)
    else:
        A.st("s7")
        for tb in range(2):
            for db in range(2): A.extend(pw(tb, db))
    A("s_waitcnt vmcnt(0) lgkmcnt(0)")
    A("s_branch L_final")


def gen_conv(A):
    if PRIO_C: A(f"s_setprio {PRIO_C}")
    VTA, VF = 32, 36
    VXN, VBW, VOWN, VPAR = 37, 38, 39, 40
    T0 = 42
    dsk = P0 + 7
    ACC = 48; FB = [80, 112]; TB = [144, 208]
    XN = 196
    final_addr(A)
    A(f"""
    s_mov_b32 s21, s39
    s_lshr_b32 s35, s21, 1
    s_and_b32 s36, s21, 1
    s_mul_i32 s38, s35, {CH_SIZE}
    s_add_u32 s38, s38, {L_CH}
    s_lshl_b32 s27, s21, 13
    s_add_u32 s27, s27, {L_ST2}
    s_xor_b32 s32, s27, {ST2}
    v_and_b32 v{T0}, 15, v0
    v_lshrrev_b32 v{T0+1}, 4, v0
    v_and_b32 v{T0+2}, 1, v0
    v_mul_u32_u24 v{T0+2}, {OFF_O + 2 - OFF_E}, v{T0+2}
    s_lshl_b32 s31, s36, 8
    s_sub_u32 s31, s38, s31
    s_add_u32 s29, s31, {OFF_O + 2*2032 - 512 - 192}
    v_lshlrev_b32 v{T0+3}, 1, v{T0}
    v_sub_u32 v{VTA}, s29, v{T0+3}
    v_lshl_add_u32 v{VTA}, v{T0+1}, 4, v{VTA}
    v_sub_u32 v{VTA}, v{VTA}, v{T0+2}
    v_subrev_u32 v{VTA+1}, 1024, v{VTA}
    v_subrev_u32 v{VTA+2}, 2048, v{VTA}
    v_subrev_u32 v{VTA+3}, 3072, v{VTA}
    """)
    def freads(rr, fb): return [f"ds_read_b128 v[{fb+4*m}:{fb+4*m+3}], v{VF} offset:{512*m + 64*(3-rr)}" for m in range(8)]
    def treads(rr, tb):
        o = []
        for i in range(8):
            off = 128 * (1 - (i & 1)) + 16 * (3 - rr)
            o.append(f"ds_read2_b32 v[{tb+4*i}:{tb+4*i+1}], v{VTA+i//2} offset0:{off} offset1:{off+1}")
            o.append(f"ds_read2_b32 v[{tb+4*i+2}:{tb+4*i+3}], v{VTA+i//2} offset0:{off+2} offset1:{off+3}")
        return o
    A(f"""
    v_lshl_add_u32 v19, v0, 4, s38
    s_add_u32 s29, s31, {480 - 192}
    v_lshlrev_b32 v{VF}, 5, v{T0}
    v_lshl_add_u32 v{VF}, v{T0+1}, 4, v{VF}
    v_add_u32 v{VF}, s29, v{VF}
    v_lshlrev_b32 v{VXN}, 5, v{T0}
    v_lshl_add_u32 v{VXN}, v{T0+1}, 3, v{VXN}
    v_add_u32 v{VBW}, s27, v{VXN}
    s_lshl_b32 s28, s36, 11
    s_add_u32 s28, s28, s38
    v_add_u32 v{VXN}, s28, v{VXN}
    v_lshl_add_u32 v{VOWN}, v0, 4, s27
    v_lshl_add_u32 v{VPAR}, v0, 4, s32
    v_mov_b32 v13, 1
    s_lshl_b32 s29, s21, 2
    s_add_u32 s29, s29, {L_FLAG}
    v_mov_b32 v14, s29
    s_xor_b32 s29, s29, 4
    v_mov_b32 v15, s29
    v_lshlrev_b32 v18, 4, v0
    """)
    A(f"""
    L_cv_ex:
    ds_read_b32 v16, v15 offset:64
    s_waitcnt lgkmcnt(0)
    v_readfirstlane_b32 s28, v16
    s_cmp_eq_u32 s28, 1
    s_cbranch_scc0 L_cv_ex
    """)
    A.extend(treads(0, TB[0]))
    A("s_cmp_eq_u32 s37, 1")
    A("s_cbranch_scc1 L_cv_uok")
    if env("HT2", 0): A("s_waitcnt vmcnt(0)"); A.extend(ring_ready(20))
    u_spin(A, 20, 18)
    A.label("L_cv_uok")
    A(f"s_waitcnt vmcnt({8 if env('HT2', 0) else 0})")
    if not UDMA:
        for k in range(4): A(f"ds_write_b128 v19, v[{XL+4*k}:{XL+4*k+3}] offset:{512 + k*1024}")
    A.extend(freads(0, FB[0]))
    A.st("s4")
    if GPK == 1:
        A(f"""
        v_mov_b32 v17, {L_FLAG+32}
        L_cv_gd:
        ds_read_b128 v[20:23], v17
        s_waitcnt lgkmcnt(0)
        v_and_b32 v20, v20, v21
        v_and_b32 v22, v22, v23
        v_and_b32 v20, v20, v22
        s_nop 0
        v_readfirstlane_b32 s28, v20
        s_cmp_eq_u32 s28, 1
        s_cbranch_scc0 L_cv_gd
        """)
    A.st("s5")
    for rp in range(4):
        fb, tb = FB[rp % 2], TB[rp % 2]
        mm = []
        for i in range(8):
            for j in range(i, 8):
                cin = "0" if (rp == 0 and i == 0) else f"v[{ACC+4*j}:{ACC+4*j+3}]"
                mm.append(f"v_mfma_f32_16x16x32_bf16 v[{ACC+4*j}:{ACC+4*j+3}], v[{tb+4*i}:{tb+4*i+3}], v[{fb+4*(j-i)}:{fb+4*(j-i)+3}], {cin}")
        if rp == 1:
            if env("HT2", 0): A("s_waitcnt vmcnt(0)"); A.extend(ring_ready(20))
            if not EPE: A.extend(ep_loads())
        if HT and rp == env("HTP", 3):
            A(f"""
            s_lshl_b32 s28, s24, 2
            s_add_u32 s28, s28, s21
            s_mul_i32 s28, s28, {56*128}
            s_mul_i32 s29, s23, {8*112*1024}
            s_add_u32 s28, s28, s29
            s_add_u32 s28, s28, {WS_HF}
            v_min_u32 v{T0}, 55, v0
            v_lshlrev_b32 v{T0}, 7, v{T0}
            buffer_load_dword v20, v{T0}, s[12:15], s28 offen {SC}
            """)
        if rp == 0:
            o = []
            for j in range(8): o += [f"s_waitcnt lgkmcnt({7-j})", mm[j]]
            mm = o + interleave(mm[8:], freads(1, FB[1]) + treads(1, TB[1]), 0, 22)
        else:
            A("s_waitcnt lgkmcnt(0)")
            if rp < 3: mm = interleave(mm, freads(rp + 1, FB[(rp + 1) % 2]) + treads(rp + 1, TB[(rp + 1) % 2]), 0, 26)
            else: mm = interleave(mm, [f"ds_read_b64 v[{XN+2*a_}:{XN+2*a_+1}], v{VXN} offset:{512 + a_*512}" for a_ in range(4)], 0, 8)
        A.extend(mm)
    A.st("s6")
    A("s_cmp_eq_u32 s36, 1")
    A("s_cbranch_scc1 L_cv_x1")
    for a_ in range(4): A(f"ds_write_b128 v{VOWN}, v[{ACC+16+4*a_}:{ACC+16+4*a_+3}] offset:{4096 + a_*1024}")
    A("ds_write_b32 v14, v13")
    A("s_branch L_cv_out")
    A.label("L_cv_x1")
    A("s_nop 7")
    for a_ in range(4): A(f"ds_write_b128 v{VOWN}, v[{ACC+4*a_}:{ACC+4*a_+3}] offset:{4096 + a_*1024}")
    A("ds_write_b32 v14, v13")
    for k in range(16): A(f"v_mov_b32 v{ACC+k}, v{ACC+16+k}")
    A.label("L_cv_out")
    A(f"""
    """)
    A.extend(ya_addr(41, T0))
    A(f"""
    v_mov_b32 v{T0+2}, 0xfffffffe
    s_waitcnt lgkmcnt(5)
    """)
    t = 80; z = 96; YP = 112
    for k in range(8):
        A(f"v_lshlrev_b32 v{t+2*k}, 16, v{XN+k}")
        A(f"v_and_b32 v{t+2*k+1}, 0xffff0000, v{XN+k}")
    for k in range(16): A(f"v_fma_f32 v{ACC+k}, v{t+k}, v{dsk}, v{ACC+k}")
    A.label("L_cv_ps1")
    A(f"""
    ds_read_b32 v16, v15
    s_waitcnt lgkmcnt(0)
    v_readfirstlane_b32 s28, v16
    s_cmp_eq_u32 s28, 1
    s_cbranch_scc0 L_cv_ps1
    """)
    for a_ in range(4): A(f"ds_read_b128 v[{YP+4*a_}:{YP+4*a_+3}], v{VPAR} offset:{4096 + a_*1024}")
    for a_ in range(4):
        A("s_waitcnt lgkmcnt(3)")
        for k in range(4): A(f"v_add_f32 v{ACC+4*a_+k}, v{ACC+4*a_+k}, v{YP+4*a_+k}")
        for k in range(2): A(f"v_cvt_pk_bf16_f32 v{z+2*a_+k}, v{ACC+4*a_+2*k}, v{ACC+4*a_+2*k+1}")
        for k in range(2): A(f"v_min_u32 v{z+2*a_+k}, v{z+2*a_+k}, v{T0+2}")
        A(f"ds_write_b64 v{VBW}, v[{z+2*a_}:{z+2*a_+1}] offset:{a_*512}")
    for h in range(2): A(f"ds_read_b128 v[{t+4*h}:{t+4*h+3}], v{VOWN} offset:{h*1024}")
    for h in range(2):
        A(f"s_waitcnt lgkmcnt({1-h})")
        A(f"buffer_store_dwordx4 v[{t+4*h}:{t+4*h+3}], v41, s[12:15], s{30+h} offen {SC}")
    Y = 160
    A(f"""
    v_lshlrev_b32 v{T0}, 8, v1
    v_lshl_add_u32 v{T0}, v2, 4, v{T0}
    s_lshl_b32 s28, s79, 5
    s_add_u32 s28, s28, s78
    s_lshl_b32 s28, s28, 13
    s_lshl_b32 s29, s21, 11
    s_add_u32 s28, s28, s29
    s_add_u32 s28, s28, {WS_YA}
    v_lshlrev_b32 v{T0+1}, 8, v2
    v_lshl_add_u32 v{T0+1}, v2, 4, v{T0+1}
    v_lshl_add_u32 v{T0+1}, v1, 2, v{T0+1}
    v_add_u32 v{T0+1}, s27, v{T0+1}
    v_mov_b32 v{T0+3}, 0x05040100
    v_mov_b32 v{T0+4}, 0x07060302
    s_mov_b32 s30, 0
    """)
    A.st("s7")
    A(f"""
    v_mov_b32 v17, {L_FLAG+48}
    s_setprio {env("PW", 1)}
    L_cv_w19:
    s_sleep {env("SW19", 2)}
    ds_read_b128 v[20:23], v17
    s_waitcnt lgkmcnt(0)
    v_and_b32 v20, v20, v21
    v_and_b32 v22, v22, v23
    v_and_b32 v20, v20, v22
    s_nop 0
    v_readfirstlane_b32 s29, v20
    s_cmp_eq_u32 s29, 1
    s_cbranch_scc0 L_cv_w19
    L_cv_poll2:
    buffer_load_dwordx4 v[{Y}:{Y+3}], v{T0}, s[12:15], s28 offen {SC}
    buffer_load_dwordx4 v[{Y+4}:{Y+7}], v{T0}, s[12:15], s28 offen offset:128 {SC}
    s_waitcnt vmcnt(0)
    v_max_u32 v{Y+8}, v{Y}, v{Y+1}
    v_max3_u32 v{Y+8}, v{Y+8}, v{Y+2}, v{Y+3}
    v_max3_u32 v{Y+8}, v{Y+8}, v{Y+4}, v{Y+5}
    v_max3_u32 v{Y+8}, v{Y+8}, v{Y+6}, v{Y+7}
    v_cmp_eq_u32 vcc, -1, v{Y+8}
    s_cbranch_vccz L_cv_got
    s_sleep 4
    s_add_u32 s30, s30, 1
    s_cmp_lt_u32 s30, {SPIN}
    s_cbranch_scc1 L_cv_poll2
    """)
    A.label("L_cv_got")
    A.st("got")
    for k in range(4):
        A(f"v_perm_b32 v{Y+8+2*k}, v{Y+4+k}, v{Y+k}, v{T0+3}")
        A(f"v_perm_b32 v{Y+9+2*k}, v{Y+4+k}, v{Y+k}, v{T0+4}")
    for i in range(8): A(f"ds_write_b32 v{T0+1}, v{Y+8+i} offset:{i*32}")
    A("s_waitcnt lgkmcnt(0)")


def gen_final(A):
    P = 32
    A(f"""
    v_lshlrev_b32 v13, 1, v2
    v_xor_b32 v13, v13, v1
    v_lshlrev_b32 v13, 4, v13
    v_lshl_add_u32 v13, v1, 8, v13
    s_and_b32 s28, s20, 3
    s_lshl_b32 s28, s28, 11
    s_lshr_b32 s29, s20, 2
    s_lshl_b32 s29, s29, 15
    s_add_u32 s28, s28, s29
    v_add_u32 v13, s28, v13
    v_xor_b32 v14, 16, v13
    v_lshrrev_b32 v15, 1, v2
    v_lshlrev_b32 v15, 13, v15
    v_lshl_add_u32 v15, v1, 5, v15
    v_and_b32 v16, 1, v2
    v_lshl_add_u32 v15, v16, 4, v15
    s_mul_i32 s28, s20, 272
    s_add_u32 s28, s28, {L_ST2}
    v_add_u32 v15, s28, v15
    """)
    srd(A, 8, "s52", "s53", 2 << 20)
    X, Yv, B = 64, 72, 80
    def unpack(d, s_):
        for k in range(4):
            A(f"v_lshlrev_b32 v{d+2*k}, 16, v{s_+k}")
            A(f"v_and_b32 v{d+2*k+1}, 0xffff0000, v{s_+k}")
    def pack(d, s_):
        for k in range(4): A(f"v_cvt_pk_bf16_f32 v{d+k}, v{s_+2*k}, v{s_+2*k+1}")
    unpack(X, VX); unpack(B, VB2)
    if not FR:
        for k in range(8): A(f"v_add_f32 v{X+k}, v{X+k}, v{B+k}")
    A("s_barrier")
    A.st("fin")
    A(f"ds_read_b128 v[16:19], v15")
    for w in range(4):
        A(f"ds_read_b128 v[{P+8*w}:{P+8*w+3}], v13 offset:{w*8192}")
        A(f"ds_read_b128 v[{P+8*w+4}:{P+8*w+7}], v14 offset:{w*8192}")
    A("s_waitcnt lgkmcnt(8)")
    unpack(Yv, 16)
    for k in range(8): A(f"v_add_f32 v{X+k}, v{X+k}, v{Yv+k}")
    if FR: pack(20, X); unpack(X, 20)
    A("s_waitcnt lgkmcnt(4)")
    for k in range(8): A(f"v_add_f32 v{P+k}, v{P+k}, v{P+8+k}")
    A("s_waitcnt lgkmcnt(0)")
    for k in range(8): A(f"v_add_f32 v{P+16+k}, v{P+16+k}, v{P+24+k}")
    for k in range(8): A(f"v_add_f32 v{P+k}, v{P+k}, v{P+16+k}")
    if FR:
        pack(24, P); unpack(P, 24)
        for k in range(8): A(f"v_add_f32 v{P+k}, v{P+k}, v{B+k}")
        pack(24, P); unpack(P, 24)
    for k in range(8): A(f"v_add_f32 v{P+k}, v{P+k}, v{X+k}")
    pack(28, P)
    A(f"buffer_store_dwordx4 v[28:31], v{VOO}, s[8:11], s33 offen {os.environ.get('SCO', '')}")
    if STAMPS: A("s_waitcnt vmcnt(0)")
    A.stamp_flush(0)
    A("s_endpgm")


DOC = '''; ---------------------------------------------------------------------------------------------
;  hand-offs: sc1 stores + per-wave tag flags (tag = LCG(epoch word in d_ws), epoch advanced inside the launch),
;             y via sentinel prefill; placement (wg%8) is used for cache locality only.
; ---------------------------------------------------------------------------------------------
'''

def gen():
    A = Asm()
    A.stamp(0, True); A.stamp(1)
    for k in range(2, 9): A.stamp(k)
    A(f"""
    s_cmp_ge_u32 s2, 256
    s_cbranch_scc1 L_exit
    s_add_u32 s2, s2, {env("IDR", 224)}
    s_and_b32 s2, s2, 255
    s_load_dwordx2 s[40:41], s[0:1], {KA['u']}
    s_load_dwordx8 s[44:51], s[0:1], {KA['w1']}
    s_load_dwordx4 s[52:55], s[0:1], {KA['out']}
    s_load_dwordx2 s[42:43], s[0:1], {KA['ws']}
    v_lshrrev_b32 v1, 6, v0
    v_and_b32 v0, 63, v0
    s_and_b32 s23, s2, 7
    s_lshr_b32 s24, s2, 3
    v_readfirstlane_b32 s20, v1
    s_and_b32 s25, s24, 3
    s_lshr_b32 s77, s24, 2
    s_and_b32 s79, s77, 3
    s_cmp_eq_u32 s79, 3
    s_cselect_b32 s79, {4 if env("SW", 1) else 0}, 0
    s_xor_b32 s79, s79, s77
    s_lshl_b32 s78, s23, 2
    s_add_u32 s78, s78, s25
    s_mul_i32 s74, {'s23' if ROT & 4 else 's79'}, {3584 if ROT & 5 else 0}
    s_and_b32 s74, s74, 0xfffffc00
    s_mul_i32 s75, s25, {7168 if ROT & 2 else 0}
    s_add_u32 s74, s74, s75
    s_sub_u32 s75, s74, {28*1024}
    s_min_u32 s74, s74, s75
    s_and_b32 s39, s20, 3
    s_cmp_eq_u32 s77, 7
    s_cbranch_scc1 L_ln
    """)
    if LOC:
        A("""
        s_and_b32 s21, s24, 1
        s_lshl_b32 s22, s23, 1
        s_add_u32 s21, s21, s22
        s_lshr_b32 s22, s24, 1
        """)
    else:
        A("""
        s_lshr_b32 s21, s23, 1
        s_lshl_b32 s21, s21, 2
        s_add_u32 s21, s21, s25
        s_and_b32 s22, s23, 1
        s_mul_i32 s22, s22, 7
        s_add_u32 s22, s22, s77
        """)
    gen_gemm1(A)
    A.label("L_ln")
    A("s_nop 0 ; RESETSB")
    A("s_mov_b32 s21, s78")
    if env("LND", 0): A(f"s_sleep {env('LND', 0)}")
    gen_ln(A)
    A.label("L_gemm2")
    A("s_nop 1 ; RESETSB")
    gen_gemm2(A)
    A.label("L_conv")
    A("s_nop 1 ; RESETSB")
    gen_conv(A)
    A.label("L_final")
    A("s_nop 7")
    gen_final(A)
    A.label("L_exit")
    A("s_endpgm")
    lines = fix_hazards(A.lines, verbose=True)
    check_waits(lines, "s")
    head = open("parallel_sum__ssm_conv_s4__dense_activation_gelu__prompt.s.ref").read().split("; Override launch")[0]
    head += DOC
    head += f"; @launch grid=(256,1,1) block=(512,1,1) lds={LDS_TOTAL}\n.amdgcn_target \"amdgcn-amd-amdhsa--gfx950\"\n"
    return head + kernel_section(KNAME, lines, 256, 102, 256)

if __name__ == "__main__":
    out = sys.argv[1] if len(sys.argv) > 1 else "cur8.s"
    open(out, "w").write(gen())
    print("wrote", out)
```

```python
from asmlib import *
import struct, math, os, sys

def f2u(x): return struct.unpack("<I", struct.pack("<f", x))[0]
def env(n, d): return int(os.environ.get(n, str(d)))

KNAME = "parallel_sum__ssm_conv_s4__dense_activation_gelu__prompt_kernel"
KA = dict(u=0, A_re=8, A_im=16, B_re=24, B_im=32, C_re=40, C_im=48, log_dt=56, Dskip=64, Bx=72, w1=80, b1=88, w2=96, b2=104,
          out=112, dbg=120, ws=128)
WS_FLL = 32768
WS_EPOCH = 49152
WS_DUMMY = 53248
WS_STAT = 65536
WS_FLH = 131072
WS_FLY = 262144
WS_HF = 1 << 20
WS_XNT = 8 << 20
WS_YA = 12 << 20
WS_USED = 14 << 20

LOG2E = 1.4426950408889634
GC1 = -2.0 * LOG2E * 0.7978845608028654
GC2 = GC1 * 0.044715

NS, STAGE = 4, 32768
RSL = 12
RING = RSL * 2048
L_KST = 98304; KST = 8704
L_ST2 = 98304; ST2 = 8192
L_CH = 131072; CH_SIZE = 13056
OFF_E, OFF_O = 4608, 8768
L_FLAG = L_CH + 2 * CH_SIZE
L_CS = L_FLAG + 512
LDS_TOTAL = 163840
L_VS = 98304; L_US = 98304

OPT_PF = env("PF", 2)
PRE = env("PRE", 3)
PRIO_C = env("PRIOC", 1)
PRIO_G = env("PRIOG", 2)
PRIO_E = env("PRIOE", 0)
ROT = env("ROT", 4)
BARP = env("BARP", 2)
STATG = env("STATG", 21)
SC = os.environ.get("SC", "sc1")
PFG = [int(x) for x in os.environ.get("PFG", "").split(",") if x]
HD = 9
U6 = env('U6', 0)
FSL = env('FSL', 2)
KR = env('KR', 0)
MIX = env('MIX', 0)
XS = env('XS', 65536 + 2176)
PS = env('PS', 8)
PG = env('PG', 0)
LW1 = env('LW1', 0)
UDMA = env('UDMA', 1)
EPE = env('EPE', 1)
FS = env('FS', 2)
HP = env('HP', 1)
NB8 = env('NB8', 1)
EP = env('EP', 2)
TS = env('TS', 4)
FR = env('FR', 0)
NPK0 = env('NPK0', 3)
NC0 = env('NC0', 3)
WSOFF = env('WSOFF', 0) << 20
SCH = os.environ.get('SCH', SC)
LOC = env('LOC', 0)
GPK = env('GPK', 3)
ULN = env('ULN', 3)
HT = env('HT', 0)
SCL = os.environ.get('SCL', SC)
SPIN = 0x40000

DK, DP, EX, P0 = 224, 128, 160, 244
BF, AF, KG_G, KG_E1, KG_L, KG_V, KG_PK, KG_VW, KG_VRD = 160, 192, 108, 122, 224, 124, 132, 136, 137
L_KS2 = 131072; KS2 = 4352
XL = 180
VDUM, LNF = 252, 253
VX, VB2, VOO = 4, 8, 12
VW2 = 23
W2R, HR, ACC2 = 160, 88, 24
VTL = 24

def srd(A, d, lo, hi, size):
    A(f"s_mov_b32 s{d}, {lo}\ns_mov_b32 s{d+1}, {hi}\ns_mov_b32 s{d+2}, {size}\ns_mov_b32 s{d+3}, 0x00020000")
def round_bf16(A, r):
    A(f"v_cvt_pk_bf16_f32 v{r}, v{r}, v{r}")
    A(f"v_and_b32 v{r}, 0xffff0000, v{r}")
def zipm(*lists):
    o = []
    for k in range(max(len(l) for l in lists)):
        for l in lists:
            if k < len(l): o.append(l[k])
    return o
def mask(lo, hi=None):
    hi = lo if hi is None else hi
    return [f"s_mov_b32 s28, {lo}", f"s_mov_b32 s29, {hi}"]

class VMQ:
    def __init__(self): self.q = []
    def note(self, tag, n=1): self.q.extend([tag] * n)
    def wait(self, *tags):
        idx = max((k for k, t in enumerate(self.q) if t in tags), default=-1)
        if idx < 0: return []
        n = len(self.q) - 1 - idx
        del self.q[:idx + 1]
        return [f"s_waitcnt vmcnt({n})"]
    def younger(self): return len(self.q)

ORDER = [0, 1] + list(range(12, 24)) + list(range(2, 12)) + list(range(24, 28))

def koff(dst, lab, base="s74"):
    return [f"s_add_u32 {dst}, {base}, {lab*1024}", f"s_sub_u32 s75, {dst}, {28*1024}", f"s_min_u32 {dst}, {dst}, s75"]

def slot_addr(sl): return (sl >> 2) * 32768 + (sl & 3) * 2048

def w2_setup(A, vt):
    srd(A, 16, "s48", "s49", 1792 * 1024)
    A(f"""
    v_lshrrev_b32 v{vt}, 2, v0
    v_and_b32 v{vt}, 4, v{vt}
    v_and_b32 v{vt+1}, 7, v0
    v_xor_b32 v{vt}, v{vt}, v{vt+1}
    v_lshrrev_b32 v{vt+1}, 3, v0
    v_lshlrev_b32 v{VW2}, 10, v{vt+1}
    v_lshl_add_u32 v{VW2}, v{vt}, 4, v{VW2}
    s_mul_i32 s72, s39, {448*1024}
    s_lshl_b32 s75, s79, 7
    s_add_u32 s72, s72, s75
    s_lshl_b32 s73, s39, 13
    v_lshrrev_b32 v{vt+1}, 5, v0
    v_bfe_u32 v{vt}, v0, 2, 2
    v_lshl_add_u32 v{VTL}, v{vt+1}, 2, v{vt}
    v_lshlrev_b32 v{VTL}, 7, v{VTL}
    v_bfe_u32 v{vt}, v0, 4, 1
    v_lshl_add_u32 v{VTL}, v{vt}, 5, v{VTL}
    v_and_b32 v{vt}, 3, v0
    v_lshl_add_u32 v{VTL}, v{vt}, 3, v{VTL}
    v_bfe_u32 v{vt}, v0, 3, 1
    v_lshl_add_u32 v{VTL}, v{vt}, 6, v{VTL}
    v_add_u32 v{VTL}, s73, v{VTL}
    v_xor_b32 v{VTL+1}, 64, v{VTL}
    v_add_u32 v{VTL+2}, 0x10000, v{VTL}
    v_add_u32 v{VTL+3}, 0x10000, v{VTL+1}
    """)
def wdma(slot, lab):
    a_ = slot_addr(slot)
    return koff("s31", lab) + [f"s_add_u32 m0, s73, {a_}", "s_lshl4_add_u32 s31, s31, s72",
                               f"buffer_load_dwordx4 v{VW2}, s[16:19], s31 offen lds",
                               f"s_add_u32 m0, s73, {a_+1024}", "s_add_u32 s31, s31, 8192",
                               f"buffer_load_dwordx4 v{VW2}, s[16:19], s31 offen lds"]
def w2tr(slot, ws_, vtl=VTL):
    b = W2R + 8 * ws_; a_ = slot_addr(slot); hi = a_ >> 16; a_ &= 0xffff
    return [f"ds_read_b64_tr_b16 v[{b+4*db+2*sec}:{b+4*db+2*sec+1}], v{vtl+2*hi+db} offset:{a_+sec*1024}" for db in range(2) for sec in range(2)]

def param_loads(A, vt):
    A(f"""
    s_lshr_b32 s28, s39, 1
    s_lshl_b32 s30, s2, 1
    s_add_u32 s30, s30, s28
    v_lshlrev_b32 v{vt}, 1, v0
    v_mov_b32 v{vt+1}, 0
    s_lshl_b32 s29, s30, 8
    s_and_b32 s28, s20, 1
    s_lshl_b32 s28, s28, 7
    s_add_u32 s29, s29, s28
    s_lshl_b32 s30, s30, 1
    s_mov_b32 s18, 1024
    s_mov_b32 s19, 0x00020000
    """)
    for k in range(8): A(f"v_mov_b32 v{P0+k}, 0")
    A("s_waitcnt lgkmcnt(0)")
    for k in (6, 7, 0, 1, 2, 3, 4, 5):
        if k == 0: A("s_mov_b32 s18, 131072")
        A(f"s_mov_b32 s16, s{56+2*k}\ns_mov_b32 s17, s{57+2*k}")
        if k < 6: A(f"buffer_load_short_d16_hi v{P0+k}, v{vt}, s[16:19], s29 offen")
        else: A(f"buffer_load_short_d16_hi v{P0+k}, v{vt+1}, s[16:19], s30 offen")

def lnflag_load(vt):
    return ["s_lshl_b32 s29, s79, 6", "s_lshl_b32 s28, s39, 4", "s_add_u32 s29, s29, s28", "s_lshr_b32 s28, s78, 4", "s_lshl_b32 s28, s28, 9",
            "s_add_u32 s29, s29, s28", f"s_lshl_b32 s29, s29, {FS}", f"s_add_u32 s29, s29, {WS_FLY}",
            f"v_lshlrev_b32 v{vt}, {FSL}, v0", f"v_add_u32 v{vt}, {WS_FLL}, v{vt}",
            f"v_and_b32 v{vt+1}, 15, v0", f"v_lshl_add_u32 v{vt+1}, v{vt+1}, {FS}, s29", "s_mov_b32 s28, 0", "s_mov_b32 s29, -1",
            f"v_cndmask_b32 v{vt}, v{vt}, v{vt+1}, s[28:29]",
            f"buffer_load_dword v{LNF}, v{vt}, s[12:15], 0 offen {SC}"]

def u_issue(A, vl16):
    A(f"""
    s_lshr_b32 s28, s39, 1
    s_lshl_b32 s29, s2, 1
    s_add_u32 s29, s29, s28
    s_lshl_b32 s29, s29, {7 if XS else 12}
    s_add_u32 s29, s29, {WS_XNT}
    """)
    if UDMA:
        A(f"s_mul_i32 s28, s28, {CH_SIZE}")
        A(f"s_add_u32 m0, s28, {L_CH + 512}")
        if XS:
            A(f"""
            v_lshrrev_b32 v{XL}, 3, v0
            v_and_b32 v{XL+1}, 7, v0
            v_mul_u32_u24 v{XL}, {XS}, v{XL}
            v_lshl_add_u32 v{XL}, v{XL+1}, 4, v{XL}
            """)
            vl16 = XL
        for k in range(4):
            if XS and k: A(f"s_add_u32 s29, s29, {8*XS - 1024}")
            A(f"buffer_load_dwordx4 v{vl16}, s[12:15], s29 offen offset:{k*1024} {SC} lds")
    else:
        for k in range(4): A(f"buffer_load_dwordx4 v[{XL+4*k}:{XL+4*k+3}], v{vl16}, s[12:15], s29 offen offset:{k*1024} {SC}")

def u_try(A, vl16):
    A(f"""
    v_cmp_ne_u32 vcc, s76, v{LNF}
    s_mov_b32 s37, 0
    s_cbranch_vccnz L_ut_no
    s_mov_b32 s37, 1
    """)
    u_issue(A, vl16)
    A.label("L_ut_no")

def u_spin(A, vt, vl16, tag=''):
    A("s_mov_b32 s30, 0")
    A.label(f"L_us_poll{tag}")
    A(f"s_sleep {PS}")
    A.extend(lnflag_load(vt))
    A(f"""
    s_add_u32 s30, s30, 1
    s_waitcnt vmcnt(0)
    v_cmp_ne_u32 vcc, s76, v{LNF}
    s_cmp_gt_u32 s30, {SPIN}
    s_cbranch_scc1 L_us_ok{tag}
    s_cbranch_vccnz L_us_poll{tag}
    """)
    A.label(f"L_us_ok{tag}")
    u_issue(A, vl16)
    A("s_waitcnt vmcnt(0)")

def ya_addr(vd, vt):
    return [f"v_lshrrev_b32 v{vd}, 3, v0", f"v_and_b32 v{vt}, 7, v0", f"v_lshlrev_b32 v{vd}, 13, v{vd}", f"v_lshl_add_u32 v{vd}, v{vt}, 4, v{vd}",
            "s_lshr_b32 s28, s39, 1", "s_lshl_b32 s31, s2, 1", "s_add_u32 s31, s31, s28",
            "s_lshr_b32 s29, s31, 6", "s_lshl_b32 s29, s29, 18", "s_and_b32 s28, s31, 63", "s_lshl_b32 s28, s28, 7", "s_add_u32 s29, s29, s28",
            f"s_add_u32 s29, s29, {WS_YA}", "s_and_b32 s30, s39, 1", "s_lshl_b32 s30, s30, 17", "s_add_u32 s30, s30, s29", "s_add_u32 s31, s30, 65536"]
def ya_prefill(vd, vt, vm4):
    return ya_addr(vd, vt) + [f"v_mov_b32 v{vm4+k}, -1" for k in range(4)] + \
           [f"buffer_store_dwordx4 v[{vm4}:{vm4+3}], v{vd}, s[12:15], s{30+h} offen {SC}" for h in range(2)]

def publish_flag(A, soff, vt, tag, wave, both=False):
    A(f"""
    s_cmp_lg_u32 s20, {wave}
    s_cbranch_scc1 L_pub_skip{tag}
    v_mov_b32 v{vt}, 0
    v_mov_b32 v{vt+1}, s76
    s_mov_b64 exec, 1
    buffer_store_dword v{vt+1}, v{vt}, s[12:15], {soff} offen {SC}
    """)
    if both:
        A(f"""
        s_lshl_b32 s28, s2, 7
        s_add_u32 s28, s28, {WS_FLW}
        buffer_store_dword v{vt+1}, v{vt}, s[12:15], s28 offen {SC}
        """)
    A(f"""
    s_mov_b64 exec, -1
    L_pub_skip{tag}:
    """)
def mktag(A):
    A("s_mul_i32 s76, s76, 0x9E3779B1")
    A("s_add_u32 s76, s76, 0x7F4A7C15")
def arrive(A, tag):
    A(f"""
    s_cmp_lg_u32 s20, 3
    s_cbranch_scc1 L_arr{tag}
    s_atomic_add s77, s[54:55], 0 glc
    L_arr{tag}:
    """)

def coop_prefetch(A, vt):
    A(f"""
    s_lshl_b32 s28, s24, 2
    s_add_u32 s28, s28, s39
    s_lshl_b32 s30, s28, 6
    v_add_u32 v{vt}, s30, v0
    v_mul_u32_u24 v{vt+1}, 0x4925, v{vt}
    v_lshrrev_b32 v{vt+1}, 18, v{vt+1}
    v_mul_u32_u24 v{vt+2}, 14, v{vt+1}
    v_sub_u32 v{vt}, v{vt}, v{vt+2}
    v_lshlrev_b32 v{vt}, 7, v{vt}
    v_mul_u32_u24 v{vt+1}, 3584, v{vt+1}
    v_add_u32 v{vt}, v{vt}, v{vt+1}
    s_and_b32 s29, s23, 1
    s_mul_i32 s29, s29, 1792
    buffer_load_dword v{VDUM}, v{vt}, s[8:11], s29 offen
    s_lshr_b32 s29, s23, 1
    s_lshl_b32 s29, s29, 19
    s_lshl_b32 s30, s28, 13
    s_add_u32 s29, s29, s30
    v_lshlrev_b32 v{vt+2}, 7, v0
    """)
    if env("MP0", 1):
        A(f"""
        s_mul_i32 s31, s23, {28*8192}
        s_add_u32 s31, s31, s30
        s_sub_u32 s31, s31, {64*8192}
        s_cmp_lt_u32 s28, 92
        s_cselect_b32 s31, s31, 0x400000
        s_cmp_lt_u32 s28, 64
        s_cselect_b32 s29, s29, s31
        s_cselect_b32 s16, s40, s48
        s_cselect_b32 s17, s41, s49
        s_cselect_b32 s18, 0x200000, {1792*1024}
        s_mov_b32 s19, 0x00020000
        buffer_load_dword v{VDUM}, v{vt+2}, s[16:19], s29 offen
        """.replace("s_cselect_b32 s18, 0x200000, 1835008", "s_mov_b32 s18, 1835008\n        s_cselect_b32 s18, 0x200000, s18"))
    else:
        A(f"""
        s_cmp_lt_u32 s28, 64
        s_cselect_b32 s29, s29, 0x400000
        buffer_load_dword v{VDUM}, v{vt+2}, s[4:7], s29 offen
        """)
def coop_prefetch2(A, vt):
    srd(A, 16, "s48", "s49", 1792 * 1024)
    A(f"""
    s_lshl_b32 s28, s24, 2
    s_add_u32 s28, s28, s39
    s_mul_i32 s30, s28, 40
    v_add_u32 v{vt}, s30, v0
    v_mul_u32_u24 v{vt+1}, 0x4925, v{vt}
    v_lshrrev_b32 v{vt+1}, 18, v{vt+1}
    v_mul_u32_u24 v{vt+2}, 14, v{vt+1}
    v_sub_u32 v{vt}, v{vt}, v{vt+2}
    v_lshlrev_b32 v{vt}, 7, v{vt}
    v_mul_u32_u24 v{vt+1}, 3584, v{vt+1}
    v_add_u32 v{vt}, v{vt}, v{vt+1}
    s_mul_i32 s30, s28, 23
    v_add_u32 v{vt+1}, s30, v0
    v_min_u32 v{vt+1}, 2559, v{vt+1}
    v_mul_u32_u24 v{vt+2}, 13108, v{vt+1}
    v_lshrrev_b32 v{vt+2}, 16, v{vt+2}
    v_mul_u32_u24 v{vt+3}, 3, v{vt+2}
    v_add_u32 v{vt+1}, v{vt+1}, v{vt+3}
    v_lshlrev_b32 v{vt+1}, 7, v{vt+1}
    v_lshlrev_b32 v{vt+2}, 7, v0
    s_and_b32 s29, s23, 1
    s_mul_i32 s29, s29, 1792
    s_add_u32 s29, s29, {192*3584}
    s_mov_b32 exec_hi, {0 if (LW1 or not env("WT", 1)) else 255}
    s_mov_b32 exec_lo, {1 if (LW1 or not env("WT", 1)) else -1}
    buffer_load_dword v{VDUM}, v{vt}, s[8:11], s29 offen
    s_lshr_b32 s29, s23, 1
    s_lshl_b32 s29, s29, 19
    s_add_u32 s29, s29, 384
    s_mov_b64 exec, {"0x7fffff" if env("XT", 1) else "1"}
    buffer_load_dword v{VDUM}, v{vt+1}, s[4:7], s29 offen
    s_lshl_b32 s28, s2, 2
    s_add_u32 s28, s28, s39
    s_lshl_b32 s28, s28, 11
    s_mov_b64 exec, {os.environ.get("W2M", "1")}
    buffer_load_dword v{VDUM}, v{vt+2}, s[16:19], s28 offen
    s_mov_b64 exec, -1
    """)
def w2_prefetch(vt, piece):
    return ["s_lshl_b32 s28, s24, 2", "s_add_u32 s28, s28, s39", "s_lshl_b32 s28, s28, 14", f"s_add_u32 s28, s28, {piece*8192}",
            f"v_lshlrev_b32 v{vt}, 7, v0", f"buffer_load_dword v{VDUM}, v{vt}, s[16:19], s28 offen"]

def cmul(d, x, y, pk=True):
    P = lambda r: f"v[{r}:{r+1}]"
    assert d != x and d != y
    if pk:
        return [f"v_pk_mul_f32 {P(d)}, {P(x)}, {P(y)} op_sel:[0,0] op_sel_hi:[0,1]",
                f"v_pk_fma_f32 {P(d)}, {P(x)}, {P(y)}, {P(d)} op_sel:[1,1,0] op_sel_hi:[1,0,1] neg_lo:[0,1,0]"]
    return [f"v_mul_f32 v{d}, v{x}, v{y}", f"v_mul_f32 v{d+1}, v{x}, v{y+1}",
            f"v_fma_f32 v{d}, -v{x+1}, v{y+1}, v{d}", f"v_fma_f32 v{d+1}, v{x+1}, v{y}, v{d+1}"]

def kg_common(A, base, T0, Z, WA):
    ar, ai, br, bi, cr, ci, ld, dsk = range(P0, P0 + 8)
    u_ = f2u(LOG2E) & 0xFFFFFF00
    lh = struct.unpack("<f", struct.pack("<I", u_))[0]; ll = LOG2E - lh
    A(f"""
    v_mul_f32 v{T0}, {hex(f2u(lh))}, v{ld}
    v_mul_f32 v{T0+1}, {hex(f2u(ll * math.log(2)))}, v{ld}
    v_exp_f32 v{T0}, v{T0}
    s_nop 0
    v_fma_f32 v{T0}, v{T0}, v{T0+1}, v{T0}
    """)
    round_bf16(A, T0)
    A(f"""
    v_mul_f32 v{Z}, v{T0}, v{ar}
    v_mul_f32 v{Z+1}, v{T0}, v{ai}
    v_mul_f32 v{br}, v{T0}, v{br}
    v_mul_f32 v{bi}, v{T0}, v{bi}
    v_mul_f32 v{Z}, {hex(f2u(LOG2E))}, v{Z}
    v_mul_f32 v{Z+1}, 0.15915494, v{Z+1}
    """)
def kg_waddr(A, base, WA):
    A(f"s_lshl_b32 s28, s39, 13\ns_add_u32 s28, s28, {base}\nv_lshl_add_u32 v{WA}, v0, 2, s28")
    for k in range(1, 16): A(f"v_xor_b32 v{WA+k}, {16*k}, v{WA}")
def kg_raddr(base, d, t):
    o = ["s_lshl_b32 s28, s39, 13", f"s_add_u32 s28, s28, {base}", f"v_and_b32 v{t}, 15, v0", f"v_lshrrev_b32 v{t+1}, 5, v0", f"v_xor_b32 v{t}, v{t}, v{t+1}",
         f"v_and_b32 v{t+1}, 31, v0", f"v_lshlrev_b32 v{t+1}, 8, v{t+1}", f"v_lshl_add_u32 v{d}, v{t}, 4, v{t+1}", f"v_add_u32 v{d}, s28, v{d}"]
    return o + [f"v_xor_b32 v{d+k}, {32*k}, v{d}" for k in range(1, 8)]
def cexp(d, x, t, Z):
    xs = {1: None, 8: hex(f2u(8.0)), 256: hex(f2u(256.0))}[x]
    o = []
    if xs is None: o += [f"v_exp_f32 v{t}, v{Z}", f"v_fract_f32 v{t+1}, v{Z+1}"]
    else: o += [f"v_mul_f32 v{t}, {xs}, v{Z}", f"v_mul_f32 v{t+1}, {xs}, v{Z+1}", f"v_exp_f32 v{t}, v{t}", f"v_fract_f32 v{t+1}, v{t+1}"]
    o += [f"v_cos_f32 v{d}, v{t+1}", f"v_sin_f32 v{d+1}, v{t+1}", f"v_mul_f32 v{d}, v{d}, v{t}", f"v_mul_f32 v{d+1}, v{d+1}, v{t}"]
    return o
KWA = 100
KRA = 116

def gen_kgen_v(A):
    T0, Z, E8, E16, Va, Vb, PKT = 34, 144, 44, 46, 80, 84, 88
    kg_common(A, L_VS, T0, Z, KWA)
    A.extend(cexp(E8, 8, T0, Z))
    A.extend(cmul(E16, E8, E8))
    npk = [0]
    def emit(src, row):
        t = PKT + (npk[0] % 8); npk[0] += 1
        return [f"v_cvt_pk_bf16_f32 v{t}, v{src}, v{src+1}", f"ds_write_b32 v{KWA + (row & 15)}, v{t} offset:{row*256}"]
    A(f"v_mov_b32 v{PKT+7}, 0x00003f80")
    A(f"ds_write_b32 v{KWA}, v{PKT+7}")
    A.extend(emit(E8, 1)); A.extend(emit(E16, 2))
    ev, od = E16, E8
    for j in range(3, 32, 2):
        d1 = Va + 2 * (((j - 3) // 2) % 2)
        d2 = Vb + 2 * (((j - 3) // 2) % 2)
        l1 = cmul(d1, od, E16) + emit(d1, j)
        l2 = (cmul(d2, ev, E16) + emit(d2, j + 1)) if j + 1 < 32 else []
        A.extend(zipm(l1, l2))
        od, ev = d1, d2
    for st in range(8): A(f"ds_read_b128 v[{BF+4*st}:{BF+4*st+3}], v{KRA+st}")

UPK = 192
def kgen_u_lists(rebase):
    T0, Z, E1, G, Lr, Va = 34, 144, 42, 44, 58, 76
    ar, ai, br, bi, cr, ci, ld, dsk = range(P0, P0 + 8)
    cm = lambda d, x, y: cmul(d, x, y, False)
    V = []; Wr = []
    if rebase: V += [f"v_subrev_u32 v{KWA+k}, {rebase}, v{KWA+k}" for k in range(24)]
    V += zipm(cexp(E1, 1, T0 + 2, Z), cexp(G, 256, T0 + 4, Z), cm(Lr, cr, br))
    npk = [0]
    def emit(src, rows):
        t = UPK + npk[0]; npk[0] += 1
        Wr.extend(f"ds_write_b32 v{KWA + (row & 15)}, v{t} offset:{row*256}" for row in rows)
        return [f"v_cvt_pk_bf16_f32 v{t}, v{src}, -v{src+1}"]
    urow = lambda hh, r: 8 * (r >> 2) + 4 * hh + (r & 3)
    lch = emit(Lr, [urow(0, 0)])
    for a_ in range(1, 9): lch += cm(Lr + 2 * a_, Lr + 2 * (a_ - 1), E1) + emit(Lr + 2 * a_, [urow(0, a_)])
    gch = []
    for k in range(2, 8): gch += cm(G + 2 * (k - 1), G + 2 * (k - 2), G)
    V += zipm(lch, gch)
    jobs = [(0, 1, [urow(1, 0), urow(1, 1)]), (2, 1, [urow(1, 2)]), (4, 1, [urow(1, 3), urow(1, 4), urow(1, 5)]), (6, 1, [urow(1, 6)]),
            (8, 1, [urow(1, 7), urow(1, 8)]),
            (0, 2, [urow(0, 9)]), (4, 2, [urow(0, 10)]), (8, 2, [urow(0, 11)]),
            (0, 3, [urow(1, 9)]), (4, 3, [urow(1, 10)]), (8, 3, [urow(1, 11)]),
            (0, 4, [urow(0, 12)]), (8, 4, [urow(0, 13)]), (0, 5, [urow(0, 14)]), (8, 5, [urow(0, 15)]),
            (0, 6, [urow(1, 12)]), (8, 6, [urow(1, 13)]), (0, 7, [urow(1, 14)]), (8, 7, [urow(1, 15)])]
    for k in range(0, len(jobs), 2):
        ls = []
        for q_, (a_, gk, rows) in enumerate(jobs[k:k + 2]):
            d = Va + 4 * q_ + 2 * ((k // 2) % 2)
            ls.append(cm(d, Lr + 2 * a_, G + 2 * (gk - 1)) + emit(d, rows))
        V += zipm(*ls)
    assert npk[0] <= 32
    return V, Wr

def kg_atoms_m():
    at = [[f"ds_read_b128 v[{AF+4*k}:{AF+4*k+3}], v{KRA+k} offset:{L_US - L_VS}", ("tag", ("af", k))] for k in range(8)]
    mm = []
    for st in range(8):
        cin = "0" if st == 0 else f"v[{DK}:{DK+15}]"
        mm.append([("wait", ("af", st)), f"v_mfma_f32_32x32x16_bf16 v[{DK}:{DK+15}], v[{AF+4*st}:{AF+4*st+3}], v[{BF+4*st}:{BF+4*st+3}], {cin}"])
    return at, mm

XA, XR, XPAD, XFL, XZ, XONE, XFP = 146, 147, 148, 149, 150, 152, 153
def tail_pre():
    t = VT1; VEA, VEB = 254, 255
    return [f"s_lshr_b32 s30, s39, 1", f"s_mul_i32 s30, s30, {CH_SIZE}", f"s_add_u32 s38, s30, {L_CH}", "s_lshl_b32 s30, s39, 13", f"s_add_u32 s30, s30, {L_VS}",
            f"v_lshl_add_u32 v{XA}, v0, 4, s30", f"v_xor_b32 v{XR}, 8192, v{XA}",
            f"v_and_b32 v{t}, 31, v0", f"v_lshrrev_b32 v{t+1}, 5, v0", f"v_lshlrev_b32 v{t+2}, 4, v{t}",
            f"s_add_u32 s28, s38, {OFF_E + 4080 - 1024}", f"v_sub_u32 v{VEA}, s28, v{t+2}", f"v_lshlrev_b32 v{t+3}, 9, v{t+1}", f"v_sub_u32 v{VEA}, v{VEA}, v{t+3}",
            f"s_add_u32 s28, s38, {OFF_E + 4080 - 2560}", f"v_sub_u32 v{VEB}, s28, v{t+2}", f"v_lshlrev_b32 v{t+3}, 10, v{t+1}", f"v_sub_u32 v{VEB}, v{VEB}, v{t+3}",
            f"v_lshl_add_u32 v{XPAD}, v0, 3, s38", f"v_mov_b32 v{XZ}, 0", f"v_mov_b32 v{XZ+1}, 0", f"v_mov_b32 v{XONE}, 1",
            "s_lshl_b32 s28, s39, 2", f"s_add_u32 s28, s28, {L_FLAG}", f"v_mov_b32 v{XFL}, s28", f"v_xor_b32 v{XFP}, 4, v{XFL}"] + lnflag_load(154)[:-1] + \
           ["s_bitcmp0_b32 s39, 0", "s_cselect_b64 s[28:29], -1, 0", "s_mov_b64 exec, s[28:29]",
            f"ds_write_b64 v{XPAD}, v[{XZ}:{XZ+1}]", "s_and_b64 exec, s[28:29], 15",
            f"ds_write_b64 v{XPAD}, v[{XZ}:{XZ+1}] offset:{OFF_E+4096}", f"ds_write_b64 v{XPAD}, v[{XZ}:{XZ+1}] offset:{OFF_O+4096}", "s_mov_b64 exec, -1"]

def kg_atoms_x1():
    return [["s_bitcmp1_b32 s39, 0", "s_cselect_b64 exec, -1, 0"] + [f"ds_write_b128 v{XA}, v[{DK+4*q}:{DK+4*q+3}] offset:{512+q*1024}" for q in range(3)] +
            ["s_not_b64 exec, exec", f"ds_write_b128 v{XA}, v[{DK+12}:{DK+15}] offset:{512+3072}", "s_mov_b64 exec, -1"]]

def kg_atoms_x2(tag):
    VEA, VEB = 254, 255
    k_ = lambda r: DK + r
    def half(base, kk, va, off, odd):
        prs = [(8, 7), (6, 5), (4, 3), (2, 1)] if odd else [(7, 6), (5, 4), (3, 2), (1, 0)]
        return [f"v_cvt_pk_bf16_f32 v{base+i}, v{kk[lo]}, v{kk[hi]}" for i, (lo, hi) in enumerate(prs)] + \
               [f"ds_write_b128 v{va}, v[{base}:{base+3}] offset:{off + (OFF_O - OFF_E if odd else 0)}"]
    ev = [([k_(i) for i in range(9)], VEA, 1024), ([k_(9)] * 3 + [k_(10)] * 3 + [k_(11)] * 3, VEA, 0)]
    od = [([k_(12)] * 4 + [DP] + [k_(13)] * 4, VEB, 512), ([k_(14)] * 4 + [DP + 1] + [k_(15)] * 4, VEB, 0)]
    o = ["s_bitcmp1_b32 s39, 0", f"s_cbranch_scc1 L_xo{tag}"]
    o += [f"ds_read_b128 v[{DP+4*q}:{DP+4*q+3}], v{XR} offset:{512+q*1024}" for q in range(3)]
    for q in range(3):
        o += [f"s_waitcnt lgkmcnt({2-q})"] + [f"v_add_f32 v{DK+4*q+k}, v{DK+4*q+k}, v{DP+4*q+k}" for k in range(4)]
    n = 0
    for gi in range(2):
        for o_ in range(2):
            o += half(EX + 4 * n, *ev[gi], o_); n += 1
    o += ["s_mov_b64 exec, 1", f"ds_write_b16_d16_hi v{XPAD}, v{EX+3} offset:{OFF_O+4096}", "s_mov_b64 exec, -1", f"s_branch L_xd{tag}", f"L_xo{tag}:"]
    o += [f"ds_read_b128 v[{DP+12}:{DP+15}], v{XR} offset:{512+3072}"] + mask("0xaaaaaaaa") + ["s_waitcnt lgkmcnt(0)"]
    o += [f"v_add_f32 v{DK+12+k}, v{DK+12+k}, v{DP+12+k}" for k in range(4)]
    o += [f"v_cndmask_b32 v{DP}, v{DK+12}, v{DK+13}, s[28:29]", f"v_cndmask_b32 v{DP+1}, v{DK+14}, v{DK+15}, s[28:29]"]
    n = 0
    for gi in range(2):
        for o_ in range(2):
            o += half(EX + 4 * n, *od[gi], o_); n += 1
    o += [f"L_xd{tag}:", f"ds_write_b32 v{XFL}, v{XONE} offset:64"]
    return [o]

def flag_zero():
    return [[f"v_lshlrev_b32 v{VT1}, 2, v0", f"v_mov_b32 v{VT1+1}, 0", f"v_add_u32 v{VT1}, {L_FLAG}, v{VT1}", f"ds_write_b32 v{VT1}, v{VT1+1}"]]

class LQ:
    def __init__(self, A): self.A = A; self.q = []
    def emit(self, items, tag=None):
        maybe0 = any(isinstance(it, str) and "s_cselect_b64" in it for it in items)
        for it in items:
            if maybe0 and isinstance(it, str):
                self.A(it); continue
            if isinstance(it, tuple):
                if it[0] == "tag": self.q[-1] = it[1]
                elif it[0] == "wait": self.wait(it[1])
                elif it[0] == "nods": self.A(it[1])
                continue
            self.A(it)
            if it.strip().startswith("ds_"): self.q.append(tag)
            if "lgkmcnt(0)" in it: self.q = []
    def wait(self, tag):
        idx = max((k for k, t in enumerate(self.q) if t == tag), default=-1)
        if idx < 0: return
        n = min(len(self.q) - 1 - idx, 15)
        self.A(f"s_waitcnt lgkmcnt({n})")
        self.q = self.q[len(self.q) - n:] if n else []

def spread(atoms, g0, g1):
    pts = [(g, p) for g in range(g0, g1) for p in range(2)]
    tot = sum(len(a_) for a_ in atoms); out = {p: [] for p in pts}; acc = 0
    for a_ in atoms:
        out[pts[min(len(pts) - 1, acc * len(pts) // tot)]].append(a_); acc += len(a_)
    return out

VXO, VWO, VXO2 = 1, 2, 3
VXO3, VXO4 = 242, 243
VXR, VTR = 4, 8
VONE, VHO1, VB1 = 16, 18, 19
VCW, VCR, VSO = 20, 21, 22
VT1 = 28
NR = 3
W1, X1, ACC1, CS = 32, 56, 80, 144
HI = 152
GT, PK, SG = 164, 180, 188
EA, EB = 192, 196
VS, K1r, K3r = 212, 214, 216

def wave_flag(soff, vt):
    return [f"v_mov_b32 v{vt}, 0", f"v_mov_b32 v{vt+1}, s76", "s_mov_b64 exec, 1",
            f"buffer_store_dword v{vt+1}, v{vt}, s[12:15], {soff} offen {SC}", "s_mov_b64 exec, -1"]

def lds_wait(A, name, vaddr, off, vt):
    A(f"""
    {name}:
    ds_read_b32 v{vt}, v{vaddr} offset:{off}
    s_waitcnt lgkmcnt(0)
    v_readfirstlane_b32 s28, v{vt}
    s_cmp_eq_u32 s28, 1
    s_cbranch_scc0 {name}
    """)

def dma_setup(A):
    VT = VT1
    A(f"""
    v_lshrrev_b32 v{VT}, 3, v0
    v_and_b32 v{VT+1}, 7, v0
    v_lshrrev_b32 v{VT+2}, 4, v0
    v_xor_b32 v{VT+3}, v{VT+2}, v{VT+1}
    v_lshlrev_b32 v{VXO}, 10, v{VT}
    v_lshl_add_u32 v{VXO}, v{VT+3}, 4, v{VXO}
    v_xor_b32 v{VXO2}, 64, v{VXO}
    v_add_u32 v{VXO2}, 8192, v{VXO2}
    v_and_b32 v{VT+3}, 15, v0
    v_lshlrev_b32 v{VT}, 2, v{VT+2}
    v_xor_b32 v{VT+3}, v{VT+3}, v{VT}
    v_mul_u32_u24 v{VWO}, 3584, v{VT+2}
    v_lshl_add_u32 v{VWO}, v{VT+3}, 4, v{VWO}
    s_lshl_b32 s25, s21, 17
    s_lshl_b32 s28, s39, 15
    s_add_u32 s25, s25, s28
    s_mul_i32 s26, s39, {16*3584}
    s_lshl_b32 s28, s22, 8
    s_add_u32 s26, s26, s28
    s_lshl_b32 s27, s39, 12
    """)
    if KR:
        A(f"""
        v_add_u32 v{VXO3}, 16384, v{VXO}
        v_add_u32 v{VXO4}, 16384, v{VXO2}
        s_and_b32 s3, s24, 3
        s_mul_i32 s3, s3, {env("KRB", 3)}
        s_mul_i32 s28, s77, {env("KRN", 1)}
        s_add_u32 s3, s3, s28
        s_lshl_b32 s3, s3, 7
        """)
    if MIX:
        A(f"""
        v_and_b32 v{VT+3}, 8, v{VT+3}
        v_lshl_add_u32 v{VWO}, v{VT+3}, 4, v{VWO}
        s_and_b32 s28, s22, 1
        s_lshl_b32 s28, s28, 7
        s_sub_u32 s26, s26, s28
        """)

KORD = [int(x) for x in os.environ.get("KORD", "0,1,2,3,4,5,6,7").split(",")]
def g1_dma(kc, part):
    st = (kc % NS) * STAGE
    kc = KORD[kc]
    if KR:
        return [f"s_add_u32 s37, s3, {128*kc}", "s_and_b32 s37, s37, 0x380", f"s_add_u32 m0, s27, {st + part*1024}",
                "s_add_u32 s31, s25, s37",
                f"buffer_load_dwordx4 v{[VXO, VXO2, 13, 14][part] if False else (VXO if part % 2 == 0 else VXO2)}, s[4:7], s31 offen lds" if part < 2 else
                f"buffer_load_dwordx4 v{VXO3 if part % 2 == 0 else VXO4}, s[4:7], s31 offen lds",
                f"s_mul_i32 s37, s37, 1792", f"s_add_u32 m0, s27, {st + 16384 + part*1024}", "s_add_u32 s37, s37, s26", f"s_add_u32 s37, s37, {4*part*3584}",
                f"buffer_load_dwordx4 v{VWO}, s[8:11], s37 offen lds"]
    return [f"s_add_u32 m0, s27, {st + part*1024}", f"s_add_u32 s31, s25, {128*kc + (part//2)*16384}",
            f"buffer_load_dwordx4 v{VXO if part % 2 == 0 else VXO2}, s[4:7], s31 offen lds",
            f"s_add_u32 m0, s27, {st + 16384 + part*1024}", f"s_add_u32 s37, s26, {(64*kc + 4*part)*3584}",
            f"buffer_load_dwordx4 v{VWO}, s[8:11], s37 offen lds"]

def c_setup(A):
    VT = VT1
    A(f"""
    v_and_b32 v{VT}, 31, v0
    v_lshrrev_b32 v{VT+1}, 5, v0
    v_bfe_u32 v{VT+2}, v0, 1, 3
    v_xor_b32 v{VT+2}, v{VT+2}, v{VT+1}
    s_lshl_b32 s31, s34, 1
    v_xor_b32 v{VT+2}, s31, v{VT+2}
    v_lshlrev_b32 v{VXR}, 7, v{VT}
    v_lshl_add_u32 v{VXR}, v{VT+2}, 4, v{VXR}
    s_lshl_b32 s28, s34, 13
    v_add_u32 v{VXR}, s28, v{VXR}
    v_xor_b32 v{VXR+1}, 32, v{VXR}
    v_xor_b32 v{VXR+2}, 64, v{VXR}
    v_xor_b32 v{VXR+3}, 96, v{VXR}
    v_lshlrev_b32 v{VSO}, 3, v0
    v_bfe_u32 v{VT+2}, v0, 2, 2
    v_lshl_add_u32 v{VTR}, v{VT+1}, 3, v{VT+2}
    v_lshlrev_b32 v{VTR}, 8, v{VTR}
    v_bfe_u32 v{VT+3}, v0, 4, 1
    v_lshl_add_u32 v{VTR}, v{VT+3}, 5, v{VTR}
    v_and_b32 v{VT+3}, 3, v0
    v_lshl_add_u32 v{VTR}, v{VT+3}, 3, v{VTR}
    s_lshl_b32 s31, s35, 1
    v_xor_b32 v{VT+2}, s31, v{VT+2}
    v_lshl_add_u32 v{VTR}, v{VT+2}, 6, v{VTR}
    s_lshl_b32 s31, s34, 12
    s_add_u32 s31, s31, 16384
    v_add_u32 v{VTR}, s31, v{VTR}
    """)
    for i in range(4):
        for ft in range(2):
            if i == 0 and ft == 0: continue
            A(f"v_xor_b32 v{VTR+2*i+ft}, {i*4096 + ft*64}, v{VTR}")
    A(f"""
    v_mov_b32 v{VONE}, 0x3f803f80
    v_mov_b32 v{VONE+1}, 0x3f803f80
    v_lshlrev_b32 v{VHO1}, 4, v0
    s_lshl_b32 s33, s21, 1
    s_add_u32 s33, s33, s34
    s_lshl_b32 s36, s33, 9
    s_add_u32 s36, s36, {WS_STAT}
    s_mul_i32 s32, s33, {2*112*1024}
    s_lshl_b32 s28, s22, 1
    s_add_u32 s28, s28, s35
    """)
    if MIX:
        A("""
        s_add_u32 s28, s28, s35
        s_and_b32 s29, s22, 1
        s_sub_u32 s28, s28, s29
        """)
    A(f"""
    s_lshl_b32 s29, s28, 12
    s_add_u32 s32, s32, s29
    s_add_u32 s32, s32, {WS_HF}
    s_add_u32 s38, s32, {112*1024}
    """)
    if HP:
        A(f"""
        s_mul_i32 s29, s28, 37
        s_lshr_b32 s29, s29, 8
        s_lshl_b32 s33, s33, 2
        s_add_u32 s33, s33, s29
        s_lshl_b32 s33, s33, 7
        s_mul_i32 s29, s29, 7
        s_sub_u32 s29, s28, s29
        s_lshl_b32 s29, s29, 2
        s_add_u32 s33, s33, s29
        s_add_u32 s33, s33, {WS_FLH}
        """)
    else:
        A(f"""
        s_lshl_b32 s33, s33, 5
        s_add_u32 s33, s33, s28
        s_lshl_b32 s33, s33, 7
        s_add_u32 s33, s33, {WS_FLH}
        """)
    A(f"""
    s_lshl_b32 s29, s20, 8
    v_lshl_add_u32 v{VCW}, v0, 2, s29
    v_add_u32 v{VCW}, {L_CS}, v{VCW}
    v_xor_b32 v{VCR}, 256, v{VCW}
    """)
    srd(A, 16, "s46", "s47", 3584)
    A(f"""
    v_mov_b32 v{VB1}, 0
    v_lshlrev_b32 v{VT1}, 1, v0
    s_lshl_b32 s28, s28, 7
    buffer_load_short_d16_hi v{VB1}, v{VT1}, s[16:19], s28 offen
    """)
    for k in range(20): A(f"v_mov_b32 v{EA+k}, 0")
    for k in range(12): A(f"v_add_u32 v{HI+k}, 0x10000, v{VXR+k}")

def c_reads(g):
    kc, i = divmod(g, 4)
    st = kc % NS
    b = (VXR if st < 2 else HI); off = (st % 2) * STAGE
    sl = g % NR
    tr = lambda ft, sec: f"ds_read_b64_tr_b16 v[{W1+8*sl+4*ft+2*sec}:{W1+8*sl+4*ft+2*sec+1}], v{b+4+2*i+ft} offset:{off + sec*1024}"
    xr = lambda tt: f"ds_read_b128 v[{X1+8*sl+4*tt}:{X1+8*sl+4*tt+3}], v{b+i} offset:{off + tt*4096}"
    return [xr(0), tr(0, 0), tr(0, 1), tr(1, 0), tr(1, 1), xr(1)]

def gen_c1(A):
    VT = VT1
    dma_setup(A)
    A(f"""
    s_and_b32 s34, s20, 1
    s_lshr_b32 s35, s20, 1
    s_waitcnt lgkmcnt(0)
    s_add_u32 s42, s42, {WSOFF}
    s_addc_u32 s43, s43, 0
    s_load_dword s76, s[42:43], {WS_EPOCH}
    """)
    vm = VMQ()
    A.st("ka")
    srd(A, 4, "s40", "s41", 2 << 20)
    srd(A, 8, "s44", "s45", 512 * 3584)
    srd(A, 12, "s42", "s43", WS_USED)
    CSF = env("CSF", 0)
    if CSF: c_setup(A); vm.note("b1")
    if env("PFAT", 1) == -1 and OPT_PF: coop_prefetch(A, VT); vm.note("pf", 2)
    for kc in range(NC0):
        for part in range(4): A.extend(g1_dma(kc, part))
        vm.note(kc, 8)
        A.st(f"i{kc}")
        if kc == env("BP", 1): A("s_barrier")
        if kc == 0 and not CSF:
            c_setup(A); vm.note("b1")
        if kc == env("PFAT", 2) and OPT_PF == 1: coop_prefetch(A, VT); vm.note("pf", 2)
        if kc == env("PFAT", 2) and OPT_PF == 2: coop_prefetch2(A, VT); vm.note("pf", 3)
    TW = env("TW", 4)
    if TW:
        A(f"v_lshlrev_b32 v{VT+2}, 20, v0")
        if TW & 1: A("s_mov_b64 exec, 3"); A(f"global_load_dword v{VDUM}, v{VT+2}, s[52:53]"); vm.note("tw")
        if TW & 2: A("s_mov_b64 exec, 1"); A(f"buffer_load_dword v{VDUM}, v{VT+2}, s[12:15], s38 offen"); vm.note("tw")
        if TW & 4: A("s_mov_b64 exec, 1"); A(f"global_load_dword v{VDUM}, v{VT+2}, s[50:51]"); vm.note("tw")
        A("s_mov_b64 exec, -1")
    A.extend(ya_prefill(VT, VT + 1, PK)); vm.note("pre", 2)
    hpre = [f"buffer_store_dwordx4 v[{PK}:{PK+3}], v{VHO1}, s[12:15], s{32 if n < 4 else 38} offen offset:{(n%4)*1024} {SC}" for n in range(8)]
    HPRE = env("HPRE", 0)
    if HPRE == 1: A.extend(hpre); vm.note(2, 8)
    w2_setup(A, VT)
    mpf = [f"s_xor_b32 s28, s2, {env('MPX', 0)}", "s_lshl_b32 s28, s28, 2", "s_add_u32 s28, s28, s39", "s_lshl_b32 s28, s28, 11", f"v_lshlrev_b32 v{VT+2}, 7, v0", f"s_mov_b64 exec, {os.environ.get('MPM', '0xffff')}",
           f"buffer_load_dword v{VDUM}, v{VT+2}, s[16:19], s28 offen {os.environ.get('MPFL', '')}", "s_mov_b64 exec, -1"]
    MPG = env("MPG", 5)
    if MPG == -1: A.extend(mpf); vm.note("mpf")
    A.st("pre")
    A(vm.wait(0)[0] + " lgkmcnt(0)"); A.st("kg"); A("s_barrier")
    A.st("b0")
    T = GT
    lq = LQ(A)
    lq.emit(c_reads(0), 0); lq.emit(c_reads(1), 1)
    mktag(A)
    def big(g, tt, ft):
        sl = g % NR; c = ACC1 + 32 * tt + 16 * ft
        cin = "0" if g == 0 else f"v[{c}:{c+15}]"
        return f"v_mfma_f32_32x32x16_bf16 v[{c}:{c+15}], v[{W1+8*sl+4*ft}:{W1+8*sl+4*ft+3}], v[{X1+8*sl+4*tt}:{X1+8*sl+4*tt+3}], {cin}"
    for g in range(32):
        kc, i = divmod(g, 4); w = W1 + 8 * (g % NR)
        m = lambda d, b_, z: f"v_mfma_f32_4x4x4_16b_bf16 v[{d}:{d+3}], v[{VONE}:{VONE+1}], v[{b_}:{b_+1}], " + ("0" if z else f"v[{d}:{d+3}]")
        o1, o2 = [], []
        if i < 2 and False: pass
        if i in (0, 2) and g < 28 or g in (28, 29):
            o1 = [m(CS, w, g == 0), m(CS + 4, w + 4, g == 0)]; o2 = [m(CS, w + 2, False), m(CS + 4, w + 6, False)]
        A.st(f"g{g}")
        gn = g + 2
        rd = c_reads(PERM(gn))[:] if gn < 32 else []
        rd = c_reads_slot(gn) if gn < 32 else []
        x1, x2 = [], []
        if i == 2 and kc + 1 < 8: x1 += vm.wait(kc + 1) + ["s_barrier"]
        if g == 30:
            x1 += [f"v_permlane32_swap_b32 v{CS}, v{CS+4}", f"v_add_f32 v{CS}, v{CS}, v{CS+4}", f"ds_write_b32 v{VCW}, v{CS}",
                   "s_waitcnt lgkmcnt(0)", "s_barrier", f"ds_read_b32 v{T+2}, v{VCR}"][:None if not NB8 else 3]
            if NB8:
                x1 += ["s_lshl_b32 s28, s20, 2", f"s_add_u32 s28, s28, {L_FLAG+128}", f"v_mov_b32 v{T}, s28", f"v_mov_b32 v{T+1}, 1",
                       f"ds_write_b32 v{T}, v{T+1}", f"v_xor_b32 v{T}, 4, v{T}"]
        if g == STATG: x2 += [f"buffer_load_dwordx2 v[{SG}:{SG+1}], v{VSO}, s[12:15], s36 offen {SC}"]; vm.note("sg")
        if EPE and g == 23: x2 += ep_early(VT)[:9]
        if EPE and g == 24: x2 += ep_early(VT)[9:]; vm.note("ep", 2)
        if g == MPG: x2 += mpf; vm.note("mpf")
        if g == env("MPG2", -5): x2 += ["s_xor_b32 s28, s2, 3"] + mpf[1:]; vm.note("mpf")
        WM = env("WARM", 0)
        if WM and g == env("WARMG", 10):
            x2 += [f"v_lshlrev_b32 v{VT+2}, 20, v0", f"v_lshlrev_b32 v{VT+3}, 7, v0"]
            if WM & 1: x2 += ["s_mov_b64 exec, 0x3fff", f"buffer_load_dword v{VDUM}, v{VT+2}, s[12:15], 0 offen"]; vm.note("wm")
            if WM & 2: x2 += ["s_mov_b64 exec, 3", f"global_load_dword v{VDUM}, v{VT+2}, s[52:53]"]; vm.note("wm")
            if WM & 4: x2 += ["s_mov_b64 exec, 0xff", f"global_load_dword v{VDUM}, v{VT+3}, s[50:51]"]; vm.note("wm")
            x2 += ["s_mov_b64 exec, -1"]
        if HPRE >= 10 and HPRE <= g < HPRE + 8: x2 += [hpre[g - HPRE]]; vm.note("hp")
        if HPRE == 2 and g == 11:
            x2 += [f"v_and_b32 v{VT+2}, 31, v0", f"v_lshlrev_b32 v{VT+2}, 7, v{VT+2}", "s_mov_b64 exec, 0xffffffff", "s_mov_b32 exec_hi, 0",
                   f"buffer_load_dword v{VDUM}, v{VT+2}, s[12:15], s32 offen", f"buffer_load_dword v{VDUM}, v{VT+2}, s[12:15], s38 offen", "s_mov_b64 exec, -1"]; vm.note("hp", 2)
        if g in PFG:
            n_ = 128 // len(PFG); k_ = PFG.index(g)
            x2 += ["s_lshl_b32 s28, s24, 2", "s_add_u32 s28, s28, s39", "s_lshl_b32 s28, s28, 14", f"s_add_u32 s28, s28, {k_*n_*128}", f"v_lshlrev_b32 v{VT+2}, 7, v0"]
            if n_ < 64: x2 += [f"s_mov_b32 exec_lo, {hex((1 << n_) - 1)}", "s_mov_b32 exec_hi, 0"]
            x2 += [f"buffer_load_dword v{VDUM}, v{VT+2}, s[16:19], s28 offen", "s_mov_b64 exec, -1"]; vm.note("l2")
        if g == env("YFG", 16) - 1: x2 += yflag_off()
        if g == env("YFG", 16): x2 += ["s_waitcnt vmcnt(0)"] + wave_flag("s28", VT); vm.q.clear(); vm.note("yf")
        lq.wait(g)
        A(big(g, 0, 0))
        if i == 2: A.st(f"pb{kc+1}")
        lq.emit(x1)
        if i == 2: A.st(f"ab{kc+1}")
        lq.emit(rd[:2], gn)
        A(big(g, 0, 1)); lq.emit(rd[2:4], gn); A.extend(o1)
        A(big(g, 1, 0)); lq.emit(rd[4:], gn)
        A(big(g, 1, 1)); lq.emit(x2); A.extend(o2)
    A.st("loop")
    if NB8:
        lds_wait(A, "L_c_cs", T, 0, T + 1)
        A(f"ds_read_b32 v{T+2}, v{VCR}")
    A.extend(vm.wait("sg", "b1"))
    A(f"""
    v_cmp_ne_u32 vcc, s76, v{SG+1}
    s_cbranch_vccz L_g1_sok
    s_mov_b32 s30, 0
    L_g1_spoll:
    buffer_load_dwordx2 v[{SG}:{SG+1}], v{VSO}, s[12:15], s36 offen {SC}
    s_add_u32 s30, s30, 1
    s_waitcnt vmcnt(0)
    v_cmp_ne_u32 vcc, s76, v{SG+1}
    s_cmp_gt_u32 s30, {SPIN}
    s_cbranch_scc1 L_g1_sok
    s_cbranch_vccnz L_g1_spoll
    L_g1_sok:
    v_mov_b32 v{SG+1}, v{SG}
    s_mov_b32 s28, -1
    s_mov_b32 s29, 0
    v_permlane32_swap_b32 v{SG}, v{SG+1}
    s_waitcnt lgkmcnt(0)
    v_add_f32 v{T+2}, v{T+2}, v{CS}
    """)
    l1 = []
    for tt in range(2):
        l1 += [f"v_and_b32 v{VS+tt}, 0xffff0000, v{SG+tt}", f"v_and_b32 v{T+8+tt}, 0xffff, v{SG+tt}", f"v_rcp_f32 v{T+6+tt}, v{VS+tt}",
               f"v_lshl_or_b32 v{T+8+tt}, v{T+8+tt}, 16, v{T+8+tt}",
               f"v_cndmask_b32 v{EB+8*tt}, 0, v{T+8+tt}, s[28:29]", f"v_cndmask_b32 v{EB+8*tt+1}, 0, v{SG+tt}, s[28:29]",
               f"v_cndmask_b32 v{EB+8*tt+4}, v{T+8+tt}, 0, s[28:29]", f"v_cndmask_b32 v{EB+8*tt+5}, v{SG+tt}, 0, s[28:29]"]
    l2 = [f"v_and_b32 v{T+3}, 0xffff0000, v{T+2}", f"v_sub_f32 v{T+3}, v{T+2}, v{T+3}", f"v_lshrrev_b32 v{T+2}, 16, v{T+2}",
          f"v_and_b32 v{T+4}, 0xffff0000, v{T+3}", f"v_sub_f32 v{T+5}, v{T+3}, v{T+4}", f"v_or_b32 v{EA}, v{T+2}, v{T+4}",
          f"v_lshrrev_b32 v{T+5}, 16, v{T+5}", f"v_or_b32 v{EA+1}, v{T+5}, v{VB1}"]
    A.extend(zipm(l1, l2))
    l3 = []
    for tt in range(2):
        l3.append([f"v_fma_f32 v{T+10+tt}, -v{VS+tt}, v{T+6+tt}, 1.0", f"v_fma_f32 v{T+6+tt}, v{T+10+tt}, v{T+6+tt}, v{T+6+tt}",
                   f"v_mul_f32 v{K1r+tt}, {hex(f2u(GC1))}, v{T+6+tt}", f"v_mul_f32 v{T+10+tt}, v{T+6+tt}, v{T+6+tt}",
                   f"v_mul_f32 v{K3r+tt}, {hex(f2u(GC2))}, v{T+6+tt}", f"v_mul_f32 v{K3r+tt}, v{K3r+tt}, v{T+10+tt}"])
    l3 = zipm(*l3)
    for tt in range(2):
        for ft in range(2):
            c = ACC1 + 32 * tt + 16 * ft
            A(f"v_mfma_f32_32x32x16_bf16 v[{c}:{c+15}], v[{EA}:{EA+3}], v[{EB+8*tt+4*ft}:{EB+8*tt+4*ft+3}], v[{c}:{c+15}]")
            A.extend(l3[3 * (2 * tt + ft):3 * (2 * tt + ft) + 3])
    A.st("gstart")
    for n in range(8):
        tt = n // 4
        if n == env("PGN", 99): A("s_setprio 2")
        c0 = ACC1 + 8 * n
        t0 = GT + 8 * (n % 2)
        if GPK == 1 and n == NPK0:
            A(f"""
            v_mov_b32 v{VT}, {L_FLAG+80}
            L_c_km:
            ds_read_b128 v[{EA}:{EA+3}], v{VT}
            s_waitcnt lgkmcnt(0)
            v_and_b32 v{EA}, v{EA}, v{EA+1}
            v_and_b32 v{EA+2}, v{EA+2}, v{EA+3}
            v_and_b32 v{EA}, v{EA}, v{EA+2}
            s_nop 0
            v_readfirstlane_b32 s28, v{EA}
            s_cmp_eq_u32 s28, 1
            s_cbranch_scc0 L_c_km
            """)
        if GPK == 3:
            P = lambda x: f"v[{x}:{x+1}]"
            DC = 220 + 6 * tt
            if n % 4 == 0:
                for j, src in enumerate((K1r + tt, K1r + tt, K3r + tt, K3r + tt, VS + tt, VS + tt)): A(f"v_mov_b32 v{DC+j}, v{src}")
            for k in range(0, 8, 2): A(f"v_pk_mul_f32 {P(t0+k)}, {P(c0+k)}, {P(c0+k)}")
            for k in range(0, 8, 2): A(f"v_pk_fma_f32 {P(t0+k)}, {P(t0+k)}, {P(DC+2)}, {P(DC)}")
            for k in range(0, 8, 2): A(f"v_pk_mul_f32 {P(t0+k)}, {P(t0+k)}, {P(c0+k)}")
            for k in range(8): A(f"v_exp_f32 v{t0+k}, v{t0+k}")
            for k in range(0, 8, 2): A(f"v_pk_fma_f32 {P(t0+k)}, {P(t0+k)}, {P(DC+4)}, {P(DC+4)}")
            for k in range(8): A(f"v_rcp_f32 v{t0+k}, v{t0+k}")
            for k in range(0, 8, 2): A(f"v_pk_mul_f32 {P(c0+k)}, {P(c0+k)}, {P(t0+k)}")
        elif GPK == 2 or (GPK and n >= NPK0):
            P = lambda x: f"v[{x}:{x+1}]"
            sel = f"op_sel:[0,{tt},{tt}] op_sel_hi:[1,{tt},{tt}]"
            for k in range(0, 8, 2): A(f"v_pk_mul_f32 {P(t0+k)}, {P(c0+k)}, {P(c0+k)}")
            for k in range(0, 8, 2): A(f"v_pk_fma_f32 {P(t0+k)}, {P(t0+k)}, {P(K3r)}, {P(K1r)} {sel}")
            for k in range(0, 8, 2): A(f"v_pk_mul_f32 {P(t0+k)}, {P(t0+k)}, {P(c0+k)}")
            for k in range(8): A(f"v_exp_f32 v{t0+k}, v{t0+k}")
            for k in range(0, 8, 2): A(f"v_pk_fma_f32 {P(t0+k)}, {P(t0+k)}, {P(VS)}, {P(VS)} {sel}")
            for k in range(8): A(f"v_rcp_f32 v{t0+k}, v{t0+k}")
            for k in range(0, 8, 2): A(f"v_pk_mul_f32 {P(c0+k)}, {P(c0+k)}, {P(t0+k)}")
        else:
            for k in range(8): A(f"v_mul_f32 v{t0+k}, v{c0+k}, v{c0+k}")
            for k in range(8): A(f"v_fma_f32 v{t0+k}, v{t0+k}, v{K3r+tt}, v{K1r+tt}")
            for k in range(8): A(f"v_mul_f32 v{t0+k}, v{t0+k}, v{c0+k}")
            for k in range(8): A(f"v_exp_f32 v{t0+k}, v{t0+k}")
            for k in range(8): A(f"v_fma_f32 v{t0+k}, v{t0+k}, v{VS+tt}, v{VS+tt}")
            for k in range(8): A(f"v_rcp_f32 v{t0+k}, v{t0+k}")
            for k in range(8): A(f"v_mul_f32 v{c0+k}, v{c0+k}, v{t0+k}")
        pk = PK + 4 * (n % 2)
        for k in range(4): A(f"v_cvt_pk_bf16_f32 v{pk+k}, v{c0+2*k}, v{c0+2*k+1}")
        A(f"buffer_store_dwordx4 v[{pk}:{pk+3}], v{VHO1}, s[12:15], s{32 if tt == 0 else 38} offen offset:{(n%4)*1024} {SCH}")
        if env("DBL", 0): A(f"buffer_store_dwordx4 v[{pk}:{pk+3}], v{VHO1}, s[12:15], s{32 if tt == 0 else 38} offen offset:{(n%4)*1024}")
    A.st("gend")
    A("s_mov_b32 s37, 0")
    A("s_branch L_gemm2")

def PERM(g): return g
def c_reads_slot(g):
    if g < 28: return c_reads(g)
    i = [0, 2, 1, 3][g - 28]
    r = c_reads(28 + i)
    kc = 7; st = kc % NS; b = HI; off = (st % 2) * STAGE; sl = g % NR
    tr = lambda ft, sec: f"ds_read_b64_tr_b16 v[{W1+8*sl+4*ft+2*sec}:{W1+8*sl+4*ft+2*sec+1}], v{b+4+2*i+ft} offset:{off + sec*1024}"
    xr = lambda tt: f"ds_read_b128 v[{X1+8*sl+4*tt}:{X1+8*sl+4*tt+3}], v{b+i} offset:{off + tt*4096}"
    return [xr(0), tr(0, 0), tr(0, 1), tr(1, 0), tr(1, 1), xr(1)]

def yflag_off():
    return ["s_lshr_b32 s28, s39, 1", "s_lshl_b32 s29, s2, 1", "s_add_u32 s28, s28, s29", "s_and_b32 s29, s39, 1", "s_lshl_b32 s29, s29, 9",
            "s_add_u32 s28, s28, s29", f"s_lshl_b32 s28, s28, {FS}", f"s_add_u32 s28, s28, {WS_FLY}"]
def ring_ready(vt):
    return ["s_lshl_b32 s28, s39, 2", f"s_add_u32 s28, s28, {L_FLAG+16}", f"v_mov_b32 v{vt}, s28", f"v_mov_b32 v{vt+1}, 1", f"ds_write_b32 v{vt}, v{vt+1}"]

def gen_h1(A):
    VT = VT1
    vm = VMQ()
    vm.note("prm", 8)
    A(f"s_add_u32 s42, s42, {WSOFF}\ns_addc_u32 s43, s43, 0\ns_load_dword s76, s[42:43], {WS_EPOCH}")
    srd(A, 4, "s40", "s41", 2 << 20)
    srd(A, 8, "s44", "s45", 512 * 3584)
    srd(A, 12, "s42", "s43", WS_USED)
    if env("CPF", 1): vm.note("cpf")
    dma_setup(A)
    w2_setup(A, VT)
    if env("MPF", 0):
        A(f"""
        s_lshl_b32 s28, s2, 2
        s_add_u32 s28, s28, s39
        s_lshl_b32 s28, s28, 11
        v_lshlrev_b32 v{VT+2}, 7, v0
        s_mov_b64 exec, 0xffff
        buffer_load_dword v{VDUM}, v{VT+2}, s[16:19], s28 offen
        s_mov_b64 exec, -1
        """)
    if env("TLBW", 0):
        A(f"""
        v_lshlrev_b32 v{VT+2}, {env("TLBS", 20)}, v0
        s_mov_b64 exec, {hex((1 << (WS_USED >> env("TLBS", 20))) - 1)}
        buffer_load_dword v{VDUM}, v{VT+2}, s[12:15], 0 offen
        s_mov_b64 exec, 3
        buffer_load_dword v{VDUM}, v{VT+2}, s[16:19], 0 offen
        global_load_dword v{VDUM}, v{VT+2}, s[52:53]
        s_mov_b64 exec, 1
        global_load_dword v{VDUM}, v{VT+2}, s[50:51]
        s_mov_b64 exec, -1
        """)
        vm.note("tlb", 4)
    kg_waddr(A, L_VS, KWA); A.extend(kg_raddr(L_VS, KRA, VT))
    for a_ in flag_zero(): A.extend(a_)
    if env("BP", 1) >= 0: A("s_barrier")
    A.extend(tail_pre())
    A.st("pre")
    A.extend(vm.wait("prm"))
    A.st("prm")
    A.label("L_kgen_v")
    gen_kgen_v(A)
    A("s_cmp_eq_u32 s77, 7")
    A("s_cbranch_scc1 L_ln_H2")
    A.st("kg")
    A("s_waitcnt lgkmcnt(0)"); A("s_barrier")
    A.st("b0")
    mktag(A)
    UV0, UW = kgen_u_lists(0)
    UV = kgen_u_lists(L_VS)[0] if U6 else UV0
    ar_, mm_ = kg_atoms_m()
    wts = [2, 3, 3, 3, 3, 3]; cum = 0
    for k in range(7 if NB8 else 8):
        if U6 and k == 6:
            A.extend(UW)
            for a_ in ar_: A(a_[0])
            A.extend(ep_early(VT)); vm.note("ep", 2)
        elif NB8 and k == 6:
            if EPE: A.extend(ep_early(VT)); vm.note("ep", 2)
            for sl in range(env("F6N", 2)): A.extend(wdma(sl, sl))
            vm.note("f", 2 * env("F6N", 2))
        elif k <= 5:
            sl_ = UV[len(UV) * cum // sum(wts):len(UV) * (cum + wts[k]) // sum(wts)]; cum += wts[k]
            if k >= 1 or NC0 == 2:
                pcs = []
                for part in range(4):
                    dd = g1_dma(k + 2, part); pcs += [dd[:len(dd)//2], dd[len(dd)//2:]]
                vm.note(k + 2, 8)
                for q, dd in enumerate(pcs):
                    A.extend(dd); A.extend(sl_[len(sl_) * q // 8:len(sl_) * (q + 1) // 8])
            else: A.extend(sl_)
        else:
            for sl in range(4 * (k - 6), 4 * (k - 6) + 4): A.extend(wdma(sl, sl))
            vm.note("f", 8)
        A.st(f"pi{k+1}")
        A.extend(vm.wait(k + 1))
        A("s_barrier")
        A.st(f"ab{k+1}")
    if U6:
        A("s_waitcnt lgkmcnt(0)")
        for sl in range(8):
            A(mm_[sl][1]); A.extend(wdma(sl, sl))
    if NB8:
        if not U6:
            for sl in range(env("F6N", 2), 8): A.extend(wdma(sl, sl))
        A(f"""
        v_mov_b32 v{VT+2}, {L_FLAG+128}
        L_h_rd:
        ds_read_b128 v[32:35], v{VT+2}
        s_waitcnt lgkmcnt(0)
        v_and_b32 v32, v32, v33
        v_and_b32 v34, v34, v35
        v_and_b32 v32, v32, v34
        s_nop 0
        v_readfirstlane_b32 s28, v32
        s_cmp_eq_u32 s28, 1
        s_cbranch_scc0 L_h_rd
        """)
    A.st("loop")
    HT2 = env("HT2", 0)
    if not HT2 and not (U6 and env("FL8", 0)):
        for sl in range(8, 12): A.extend(wdma(sl, sl))
    if U6: A("s_branch L_h_tail2")
    A.label("L_h_tail")
    A(f"s_setprio {env('PRIOX', 0)}")
    lq = LQ(A)
    ar_, mm_ = kg_atoms_m()
    UE = env("UE", 0)
    if UE: A.extend(lnflag_load(36))
    A.st("t0")
    lq.emit(UW)
    A.st("t1")
    for a_ in ar_: lq.emit(a_)
    if GPK == 2:
        A("s_setprio 0")
        A("s_cmp_eq_u32 s77, 7")
        A("s_cbranch_scc1 L_h_gd2")
        A(f"""
        v_mov_b32 v{VT+2}, {L_FLAG+32}
        L_h_gd:
        s_sleep 1
        ds_read_b128 v[32:35], v{VT+2}
        s_waitcnt lgkmcnt(0)
        v_and_b32 v32, v32, v33
        v_and_b32 v34, v34, v35
        v_and_b32 v32, v32, v34
        s_nop 0
        v_readfirstlane_b32 s28, v32
        s_cmp_eq_u32 s28, 1
        s_cbranch_scc0 L_h_gd
        L_h_gd2:
        """)
        A.extend(lnflag_load(36))
    for a_ in mm_: lq.emit(a_)
    A.st("t2")
    if U6:
        A("s_nop 7"); A("s_nop 3")
        A.label("L_h_tail2")
    for a_ in kg_atoms_x1(): lq.emit(a_)
    A(f"ds_write_b32 v{XFL}, v{XONE} offset:80")
    HT3 = 1
    A(lnflag_load(154)[-1])
    A.st("t3")
    lds_wait(A, "L_h_x1", XFP, 80, 32)
    A.st("t4")
    lq.q = []
    if env("PX2", 0): A(f"s_setprio {env('PX2', 0)}")
    for a_ in kg_atoms_x2("g"): lq.emit(a_)
    A("s_setprio 0")
    if U6 and env("FL8", 0):
        A("s_cmp_eq_u32 s77, 7")
        A("s_cbranch_scc1 L_h_f8")
        A("s_waitcnt lgkmcnt(0)")
        for sl in range(8, 12): A.extend(wdma(sl, sl))
        A.label("L_h_f8")
    DF = env("DF", 0)
    if DF:
        A("s_waitcnt vmcnt(0)")
        if DF == 1: A.extend(ring_ready(VT))
        A("s_cmp_eq_u32 s77, 7")
        A("s_cbranch_scc1 L_h_dr2")
        A(f"""
        v_mov_b32 v{VT+2}, {L_FLAG+32}
        L_h_dr:
        s_sleep 1
        ds_read_b128 v[32:35], v{VT+2}
        s_waitcnt lgkmcnt(0)
        v_and_b32 v32, v32, v33
        v_and_b32 v34, v34, v35
        v_and_b32 v32, v32, v34
        s_nop 0
        v_readfirstlane_b32 s28, v32
        s_cmp_eq_u32 s28, 1
        s_cbranch_scc0 L_h_dr
        L_h_dr2:
        """)
    if not HT2 and not HT3 and GPK != 2: A.extend(lnflag_load(VT))
    A.st("ku")
    A(f"v_lshlrev_b32 v18, 4, v0")
    A("s_waitcnt vmcnt(0)")
    if UE: A("s_cmp_eq_u32 s37, 1"); A("s_cbranch_scc1 L_ut_no")
    RT = env("RT", 6)
    if RT:
        A(f"""
        s_mov_b32 s30, 0
        v_cmp_ne_u32 vcc, s76, v{LNF}
        s_cbranch_vccz L_rt_ok
        L_rt:
        s_sleep {PS}
        buffer_load_dword v{LNF}, v154, s[12:15], 0 offen {SC}
        s_add_u32 s30, s30, 1
        s_waitcnt vmcnt(0)
        v_cmp_ne_u32 vcc, s76, v{LNF}
        s_cmp_ge_u32 s30, {RT}
        s_cbranch_scc1 L_rt_ok
        s_cbranch_vccnz L_rt
        L_rt_ok:
        """)
    u_try(A, 18)
    if HT2:
        A("s_cmp_eq_u32 s77, 7")
        A("s_cbranch_scc1 L_h_nof")
        for sl in range(8, 12): A.extend(wdma(sl, sl))
        A("s_branch L_h_f")
        A.label("L_h_nof")
        A.extend(ring_ready(VT))
        A("s_waitcnt vmcnt(0)")
        A.label("L_h_f")
    else:
        A(f"ds_write_b32 v{XFL}, v{XONE} offset:16")
    A.st("gend")
    A("s_branch L_conv")
    A.label("L_ln_H2")
    A("s_waitcnt vmcnt(0) ; RESETSB")
    A("ds_write_b32 v5, v6")
    if EPE: A("s_waitcnt lgkmcnt(0)"); A.extend(ep_early(28))
    A.extend(UV0)
    A.extend(tail_pre())
    A(f"""
    v_mov_b32 v30, {L_FLAG+112+(64 if env('LNW', 0) or env('LVM', 0) else 0)}
    L_ln_hv:
    ds_read_b128 v[32:35], v30
    s_waitcnt lgkmcnt(0)
    v_and_b32 v32, v32, v33
    v_and_b32 v34, v34, v35
    v_and_b32 v32, v32, v34
    s_nop 0
    v_readfirstlane_b32 s28, v32
    s_cmp_eq_u32 s28, 1
    s_cbranch_scc0 L_ln_hv
    """)
    A("s_branch L_h_tail")

def gen_gemm1(A):
    A(f"""
    s_load_dwordx8 s[56:63], s[0:1], {KA['A_re']}
    s_load_dwordx8 s[64:71], s[0:1], {KA['C_re']}
    """)
    A("s_cmp_lt_u32 s20, 4")
    A("s_cbranch_scc1 L_g1_C")
    param_loads(A, VT1)
    if env("CPF", 1):
        A(f"""
        s_getpc_b64 s[28:29]
        L_pc0:
        s_sub_u32 s28, s28, L_pc0-{KNAME}
        s_subb_u32 s29, s29, 0
        s_lshl_b32 s30, s24, 2
        s_add_u32 s30, s30, s39
        s_mul_i32 s30, s30, 384
        v_lshl_add_u32 v{VT1+2}, v0, 7, s30
        v_min_u32 v{VT1+2}, L_exit-{KNAME}, v{VT1+2}
        s_mov_b64 exec, 7
        global_load_dword v{VDUM}, v{VT1+2}, s[28:29]
        s_mov_b64 exec, -1
        """)
    A("s_branch L_g1_H")
    A.label("L_g1_C")
    A("s_nop 0 ; RESETSB")
    gen_c1(A)
    A.label("L_g1_H")
    A("s_nop 0 ; RESETSB")
    gen_h1(A)


def gen_ln(A):
    Q, R, O, T = 16, 48, 80, 112
    A(f"""
    s_load_dwordx8 s[56:63], s[0:1], {KA['A_re']}
    s_load_dwordx8 s[64:71], s[0:1], {KA['C_re']}
    v_lshrrev_b32 v1, 3, v0
    v_and_b32 v2, 7, v0
    v_lshlrev_b32 v3, 10, v1
    v_lshl_add_u32 v3, v2, 4, v3
    v_lshlrev_b32 v4, 4, v0
    s_lshl_b32 s25, s21, 6
    s_lshl_b32 s28, s20, 3
    s_add_u32 s25, s25, s28
    s_lshl_b32 s36, s25, 3
    s_add_u32 s36, s36, {WS_STAT}
    s_lshl_b32 s25, s25, 10
    s_add_u32 s26, s25, 4096
    s_waitcnt lgkmcnt(0)
    s_add_u32 s42, s42, {WSOFF}
    s_addc_u32 s43, s43, 0
    s_load_dword s76, s[42:43], {WS_EPOCH}
    """)
    srd(A, 4, "s40", "s41", 2 << 20)
    for t in range(8): A(f"buffer_load_dwordx4 v[{R+4*t}:{R+4*t+3}], v4, s[4:7], s{25 + t//4} offen offset:{(t%4)*1024}")
    srd(A, 12, "s42", "s43", WS_USED)
    NLW = 0
    if LW1:
        srd(A, 8, "s44", "s45", 512 * 3584)
        A(f"""
        s_and_b32 s28, s24, 3
        s_lshl_b32 s28, s28, 3
        s_add_u32 s28, s28, s20
        s_mul_i32 s28, s28, 47
        s_and_b32 s29, s23, 1
        s_mul_i32 s29, s29, 1792
        s_add_u32 s29, s29, {192*3584}
        """)
        for j in range(3):
            A(f"""
            s_add_u32 s30, s28, {j*1504}
            v_add_u32 v{T}, s30, v0
            v_mul_u32_u24 v{T+1}, 0x4925, v{T}
            v_lshrrev_b32 v{T+1}, 18, v{T+1}
            v_mul_u32_u24 v{T+2}, 14, v{T+1}
            v_sub_u32 v{T}, v{T}, v{T+2}
            v_lshlrev_b32 v{T}, 7, v{T}
            v_mul_u32_u24 v{T+1}, 3584, v{T+1}
            v_add_u32 v{T}, v{T}, v{T+1}
            s_mov_b32 exec_hi, 0x7fff
            buffer_load_dword v{VDUM}, v{T}, s[8:11], s29 offen
            s_mov_b32 exec_hi, -1
            """)
        NLW = 3
    A(f"""
    v_mov_b32 v5, 0x3f803f80
    v_mov_b32 v14, 0x00003f80
    v_mov_b32 v15, 0x3f800000
    v_lshlrev_b32 v8, 3, v1
    """)
    S1, S2 = Q, Q + 8
    A("s_setprio 2")
    for t in range(8):
        A(f"s_waitcnt vmcnt({7 - t + NLW})")
        for k in range(4):
            r = R + 4 * t + k
            A(f"v_dot2_f32_bf16 v{S1+t}, v{r}, v5, {'0' if k == 0 else f'v{S1+t}'}")
            A(f"v_dot2_f32_bf16 v{S2+t}, v{r}, v{r}, {'0' if k == 0 else f'v{S2+t}'}")
    for r in range(4):
        for S in (S1, S2): A(f"v_permlane32_swap_b32 v{S+r}, v{S+r+4}")
    for r in range(4):
        for S in (S1, S2): A(f"v_add_f32 v{S+r}, v{S+r}, v{S+r+4}")
    for r in range(2):
        for S in (S1, S2): A(f"v_permlane16_swap_b32 v{S+r}, v{S+r+2}")
    for r in range(2):
        for S in (S1, S2): A(f"v_add_f32 v{S+r}, v{S+r}, v{S+r+2}")
    for r in range(2):
        for S in (S1, S2): A(f"v_add_f32_dpp v{S+r}, v{S+r}, v{S+r} row_ror:8 row_mask:0xf bank_mask:0xf")
    A.extend(mask("0xff00ff00"))
    A(f"""
    v_cndmask_b32 v6, v{S1}, v{S1+1}, s[28:29]
    v_cndmask_b32 v7, v{S2}, v{S2+1}, s[28:29]
    s_waitcnt lgkmcnt(0)
    """)
    mktag(A)
    A(f"""
    v_mov_b32 v11, s76
    v_add_f32_dpp v6, v6, v6 quad_perm:[1,0,3,2] row_mask:0xf bank_mask:0xf
    v_add_f32_dpp v7, v7, v7 quad_perm:[1,0,3,2] row_mask:0xf bank_mask:0xf
    v_add_f32_dpp v6, v6, v6 quad_perm:[2,3,0,1] row_mask:0xf bank_mask:0xf
    v_add_f32_dpp v7, v7, v7 quad_perm:[2,3,0,1] row_mask:0xf bank_mask:0xf
    v_add_f32_dpp v6, v6, v6 row_half_mirror row_mask:0xf bank_mask:0xf
    v_add_f32_dpp v7, v7, v7 row_half_mirror row_mask:0xf bank_mask:0xf
    v_mul_f32 v12, {hex(f2u(1/512))}, v6
    v_mul_f32 v13, {hex(f2u(1/512))}, v7
    v_fma_f32 v13, -v12, v12, v13
    v_max_f32 v13, 0, v13
    """)
    round_bf16(A, 13)
    A(f"v_add_f32 v13, {hex(f2u(1e-5))}, v13")
    round_bf16(A, 13)
    A(f"""
    v_sqrt_f32 v13, v13
    v_cvt_pk_bf16_f32 v10, -v12, v13
    s_mov_b32 exec_lo, 0x01010101
    s_mov_b32 exec_hi, 0x01010101
    buffer_store_dwordx2 v[10:11], v8, s[12:15], s36 offen {SC}
    s_mov_b64 exec, -1
    """)
    A.st("b0")
    A("s_setprio 0")
    param_loads(A, T)
    LPF = env("LPF", 0)
    if LPF:
        srd(A, 16, "s48", "s49", 1792 * 1024)
        A(f"""
        s_lshl_b32 s28, s21, 3
        s_add_u32 s28, s28, s20
        s_mul_i32 s28, s28, {56*128}
        v_min_u32 v{T+2}, 55, v0
        v_lshlrev_b32 v{T+2}, 7, v{T+2}
        buffer_load_dword v{VDUM}, v{T+2}, s[16:19], s28 offen
        """)
    A(f"""
    v_and_b32 v13, 0xffff0000, v10
    v_lshlrev_b32 v12, 16, v10
    v_rcp_f32 v5, v13
    s_nop 0
    v_fma_f32 v13, -v13, v5, 1.0
    v_fma_f32 v13, v13, v5, v5
    """)
    for t in range(8):
        A(f"v_readlane_b32 s{56+t}, v12, {8*t}")
        A(f"v_readlane_b32 s{64+t}, v13, {8*t}")
    A(f"""
    v_xor_b32 v5, s20, v2
    v_lshlrev_b32 v6, 10, v0
    v_lshl_add_u32 v6, v5, 4, v6
    """)

    for tp in range(4):
        t0, t1 = 2 * tp, 2 * tp + 1
        for k in range(4):
            for h in range(2):
                e = 2 * k + h
                A(f"v_dot2_f32_bf16 v{T+2*e}, v{R+4*t0+k}, v{14+h}, s{56+t0}")
                A(f"v_dot2_f32_bf16 v{T+2*e+1}, v{R+4*t1+k}, v{14+h}, s{56+t1}")
        if env("LNX", 0):
            for e in range(8): A(f"v_cvt_pk_bf16_f32 v{T+2*e+1}, v{T+2*e}, v{T+2*e+1}")
            for e in range(8):
                A(f"v_lshlrev_b32 v{T+2*e}, 16, v{T+2*e+1}")
                A(f"v_and_b32 v{T+2*e+1}, 0xffff0000, v{T+2*e+1}")
        for e in range(8): A(f"v_pk_mul_f32 v[{T+2*e}:{T+2*e+1}], v[{T+2*e}:{T+2*e+1}], s[{64+t0}:{64+t1}]")
        for e in range(8): A(f"v_cvt_pk_bf16_f32 v{O+4*e+tp}, v{T+2*e}, v{T+2*e+1}")
        if tp == env("LFP", 3):
            w2_setup(A, 28)
            LF = env("LF", 0)
            A("s_cmp_ge_u32 s20, 4")
            A("s_cbranch_scc1 L_ln_nofill")
            for sl in range(LF): A.extend(wdma(sl, sl))
            A.label("L_ln_nofill")
    for e in range(8): A(f"ds_write_b128 v6, v[{O+4*e}:{O+4*e+3}] offset:{e*128}")
    for a_ in flag_zero(): A.extend(a_)
    A.st("g8")
    A(f"""
    s_lshl_b32 s28, s20, 13
    v_lshlrev_b32 v6, 7, v1
    v_lshl_add_u32 v6, v2, 4, v6
    v_add_u32 v6, s28, v6
    v_lshlrev_b32 v7, {7 if XS else 12}, v1
    v_lshl_add_u32 v7, v2, 4, v7
    s_lshl_b32 s26, s20, {13 if XS else 18}
    s_mul_i32 s28, s21, {XS if XS else 128}
    s_add_u32 s26, s26, s28
    s_add_u32 s26, s26, {WS_XNT}
    s_lshl_b32 s33, s21, {FSL}
    s_add_u32 s33, s33, {WS_FLL}
    """)
    for i in range(8): A(f"v_xor_b32 v{8+i}, {16*i}, v6")
    A("s_waitcnt lgkmcnt(0)")
    A("s_barrier")
    for i in range(8): A(f"ds_read_b128 v[{192+4*i}:{192+4*i+3}], v{8+i} offset:{i*1024}")
    for i in range(8):
        A(f"s_waitcnt lgkmcnt({7-i})")
        A(f"s_add_u32 s25, s26, {i*(1024 if XS else 32768)}")
        A(f"buffer_store_dwordx4 v[{192+4*i}:{192+4*i+3}], v7, s[12:15], s25 offen {SC}")
    A.st("loop")
    A(f"""
    s_lshl_b32 s28, s20, 2
    s_add_u32 s28, s28, {L_FLAG+96}
    v_mov_b32 v5, s28
    v_mov_b32 v6, 1
    s_cmp_lt_u32 s20, 4
    s_cbranch_scc1 L_ln_C
    """)
    kg_waddr(A, L_VS, KWA); A.extend(kg_raddr(L_VS, KRA, 28))
    A(f"s_mov_b32 s33, {WS_DUMMY}")
    if env("LNW", 0):
        A("s_waitcnt vmcnt(0)")
        A("ds_write_b32 v5, v6")
        A("v_add_u32 v5, 64, v5")
    else:
        A("s_waitcnt vmcnt(8)")
    LVM = env("LVM", 0)
    if LVM:
        o = Asm(); gen_kgen_v(o)
        cut = len(o.lines) * LVM // 100
        A.extend(o.lines[:cut])
        A("s_waitcnt vmcnt(0)")
        A("ds_write_b32 v5, v6")
        A("v_add_u32 v5, 64, v5")
        A.extend(o.lines[cut:])
        A("s_branch L_ln_H2")
    else:
        A("s_branch L_kgen_v")
    A.label("L_ln_C")
    A.extend(ya_prefill(T + 2, T + 3, T + 4))
    A(f"""
    v_mov_b32 v30, {L_FLAG+96}
    s_waitcnt vmcnt(0)
    ds_write_b32 v5, v6
    """)
    A.extend(yflag_off()); A.extend(wave_flag("s28", 34))
    A(f"""
    L_ln_cs:
    ds_read_b128 v[36:39], v30
    ds_read_b128 v[40:43], v30 offset:16
    s_waitcnt lgkmcnt(0)
    v_and_b32 v36, v36, v37
    v_and_b32 v38, v38, v39
    v_and_b32 v40, v40, v41
    v_and_b32 v42, v42, v43
    v_and_b32 v36, v36, v38
    v_and_b32 v40, v40, v42
    v_and_b32 v36, v36, v40
    s_nop 0
    v_readfirstlane_b32 s28, v36
    s_cmp_eq_u32 s28, 1
    s_cbranch_scc0 L_ln_cs
    """)
    publish_flag(A, "s33", 32, "l", 0)
    A.st("gstart")
    A(f"s_mov_b32 s33, {WS_DUMMY}")
    if EPE: A.extend(ep_early(28))
    TH = env("TH", 0)
    for sl in range(12):
        A.extend(wdma(sl, sl))
        if TH: A(f"s_waitcnt vmcnt({TH})")
    A("s_waitcnt vmcnt(0)")
    A.st("l1")
    for sl in range(12): A.extend(w2tr(sl, sl))
    LR = env("LR", 0)
    if LR:
        A("s_waitcnt lgkmcnt(0)")
        for sl in range(LR): A.extend(wdma(sl, 12 + sl))
    A(f"""
    v_mov_b32 v28, {L_FLAG+16}
    L_ln_cw:
    ds_read_b128 v[32:35], v28
    s_waitcnt lgkmcnt(0)
    v_and_b32 v32, v32, v33
    v_and_b32 v34, v34, v35
    v_and_b32 v32, v32, v34
    s_nop 0
    v_readfirstlane_b32 s28, v32
    s_cmp_eq_u32 s28, 1
    s_cbranch_scc0 L_ln_cw
    """)
    A.st("l2")
    for sl in range(LR, 12): A.extend(wdma(sl, 12 + sl))
    A.st("l3")
    A(f"""
    s_lshl_b32 s28, s20, 8
    s_add_u32 s28, s28, s2
    s_cmp_lg_u32 s28, 255
    s_cbranch_scc1 L_nobump
    v_lshlrev_b32 v28, {FS+1}, v0
    s_mov_b32 s30, 0
    L_bump_poll:
    """)
    for k in range(4):
        A(f"s_mov_b32 s28, {WS_FLY + k*(128 << FS)}")
        A(f"buffer_load_dword v{32+k}, v28, s[12:15], s28 offen {SC}")
    A(f"""
    s_add_u32 s30, s30, 1
    s_waitcnt vmcnt(0)
    v_xor_b32 v32, s76, v32
    v_xor_b32 v33, s76, v33
    v_xor_b32 v34, s76, v34
    v_xor_b32 v35, s76, v35
    v_or3_b32 v32, v32, v33, v34
    v_or_b32 v32, v32, v35
    v_cmp_ne_u32 vcc, 0, v32
    s_cmp_gt_u32 s30, {SPIN}
    s_cbranch_scc1 L_bump_go
    s_cbranch_vccnz L_bump_poll
    L_bump_go:
    s_mov_b32 s28, {WS_EPOCH}
    """)
    A.extend(wave_flag("s28", 28))
    A.label("L_nobump")
    A("s_mov_b32 s37, 1")
    A("s_branch L_gemm2")


def final_addr(A):
    A(f"""
    v_lshrrev_b32 v1, 3, v0
    v_and_b32 v2, 7, v0
    v_lshlrev_b32 v{VOO}, 10, v1
    v_lshl_add_u32 v{VOO}, v2, 4, v{VOO}
    v_lshlrev_b32 v3, 4, v2
    s_lshl_b32 s33, s78, 6
    s_lshl_b32 s28, s20, 3
    s_add_u32 s33, s33, s28
    s_lshl_b32 s33, s33, 10
    s_lshl_b32 s34, s79, 7
    s_add_u32 s33, s33, s34
    """)
def ep_loads():
    o = Asm()
    srd(o, 8, "s50", "s51", 1024)
    o(f"buffer_load_dwordx4 v[{VX}:{VX+3}], v{VOO}, s[4:7], s33 offen")
    o(f"buffer_load_dwordx4 v[{VB2}:{VB2+3}], v3, s[8:11], s34 offen")
    return o.lines


def ep_early(vt):
    return [f"v_lshrrev_b32 v{vt}, 3, v0", f"v_and_b32 v{vt+1}, 7, v0", f"v_lshlrev_b32 v{vt}, 10, v{vt}", f"v_lshlrev_b32 v{vt+1}, 4, v{vt+1}",
            f"v_add_u32 v{vt}, v{vt}, v{vt+1}", "s_lshl_b32 s29, s78, 6", "s_lshl_b32 s28, s20, 3", "s_add_u32 s29, s29, s28", "s_lshl_b32 s29, s29, 10",
            "s_lshl_b32 s30, s79, 7", "s_add_u32 s29, s29, s30", "s_mov_b32 s8, s50", "s_mov_b32 s9, s51", "s_mov_b32 s10, 1024", "s_mov_b32 s11, 0x00020000",
            f"buffer_load_dwordx4 v[{VX}:{VX+3}], v{vt}, s[4:7], s29 offen", f"buffer_load_dwordx4 v[{VB2}:{VB2+3}], v{vt+1}, s[8:11], s30 offen"]

def gen_gemm2(A):
    VHO, VTR2, VP, VT = 13, 14, 18, 22
    ACC, W, H = ACC2, W2R, HR
    if PRIO_G: A(f"s_setprio {PRIO_G}")
    A("s_mov_b32 s22, s33")
    final_addr(A)
    for k in range(4): A(f"v_mov_b32 v{VTR2+k}, v{VTL+k}")
    A(f"""
    v_lshlrev_b32 v{VHO}, 4, v0
    v_lshrrev_b32 v{VT}, 5, v0
    v_xor_b32 v{VT}, v{VT}, v2
    v_and_b32 v{VP}, 31, v0
    v_lshlrev_b32 v{VP}, 8, v{VP}
    v_lshl_add_u32 v{VP}, v{VT}, 4, v{VP}
    v_add_u32 v{VP}, s73, v{VP}
    v_xor_b32 v{VP+1}, 32, v{VP}
    v_xor_b32 v{VP+2}, 64, v{VP}
    v_xor_b32 v{VP+3}, 96, v{VP}
    s_mul_i32 s24, s78, {2*112*1024}
    s_mul_i32 s28, s20, {28*1024}
    s_add_u32 s24, s24, s28
    s_add_u32 s24, s24, {WS_HF}
    s_add_u32 s25, s24, {112*1024}
    s_mul_i32 s26, s20, {1 if HP else 7}
    s_lshl_b32 s28, s78, {2 if HP else 5}
    s_add_u32 s26, s26, s28
    s_lshl_b32 s26, s26, 7
    s_add_u32 s26, s26, {WS_FLH}
    v_min_u32 v{VT}, 6, v2
    v_lshlrev_b32 v{VT}, {2 if HP else 7}, v{VT}
    s_lshl_b32 s28, s20, 2
    s_add_u32 s28, s28, {L_FLAG+16}
    v_mov_b32 v{ACC+4}, s28
    v_mov_b32 v{ACC+5}, 1
    ds_write_b32 v{ACC+4}, v{ACC+5} offset:16
    s_mov_b32 s30, 0
    s_cmp_eq_u32 s37, 1
    s_cbranch_scc1 L_g2_poll
    """)
    A.st("prew")
    A("s_waitcnt vmcnt(0)")
    A.extend(wave_flag("s22", ACC))
    A.st("p2bar")
    A(f"""
    L_g2_rr:
    ds_read_b32 v{ACC+5}, v{ACC+4}
    s_waitcnt lgkmcnt(0)
    v_readfirstlane_b32 s28, v{ACC+5}
    s_cmp_eq_u32 s28, 1
    s_cbranch_scc0 L_g2_rr
    """)
    for sl in range(3): A.extend(w2tr(sl, sl, VTR2))
    for sl in range(12):
        left = min(12, sl + 3) - sl - 1
        A(f"s_waitcnt lgkmcnt({4*left})")
        if sl + 3 < 12: A.extend(w2tr(sl + 3, sl + 3, VTR2))
        if EP and sl == 12 - EP: A(f"buffer_load_dword v{ACC+2}, v{VT}, s[12:15], s26 offen {SC}")
        A.extend(wdma(sl, 12 + sl))
    if EP:
        A(f"""
        s_waitcnt vmcnt({2*EP})
        v_cmp_ne_u32 vcc, s76, v{ACC+2}
        s_cbranch_vccz L_g2_go
        """)
    A.st("s5")
    A.label("L_g2_poll")
    if PG: A(f"s_sleep {PG}")
    A(f"""
    buffer_load_dword v{ACC+2}, v{VT}, s[12:15], s26 offen {SC}
    s_add_u32 s30, s30, 1
    s_waitcnt vmcnt(0)
    v_cmp_ne_u32 vcc, s76, v{ACC+2}
    s_cmp_gt_u32 s30, {SPIN}
    s_cbranch_scc1 L_g2_go
    s_cbranch_vccnz L_g2_poll
    """)
    A.label("L_g2_go")
    vm = VMQ()
    for sl in range(12 - EP, 12): vm.note(("w", 12 + sl), 2)
    A.st("s6")
    def hload(kp):
        sl = kp % HD
        vm.note(("h", kp), 2)
        return koff("s31", ORDER[kp]) + ["s_add_u32 s27, s31, s24", "s_add_u32 s31, s31, s25",
                                  f"buffer_load_dwordx4 v[{H+8*sl}:{H+8*sl+3}], v{VHO}, s[12:15], s27 offen {SCL}",
                                  f"buffer_load_dwordx4 v[{H+8*sl+4}:{H+8*sl+7}], v{VHO}, s[12:15], s31 offen {SCL}"]
    if env("DYN", 0):
        free = [H + 8 * i for i in range(HD)]
        hb, wb = {}, {k: W + 8 * k for k in range(12)}
        lq = LQ(A)
        nh = [0]; nt = [12]
        MAXH = env("MAXH", 16)
        def hl(kp):
            r = free.pop(0); hb[kp] = r; vm.note(("h", kp), 2)
            A.extend(koff("s31", kp) + ["s_add_u32 s27, s31, s24", "s_add_u32 s31, s31, s25",
                     f"buffer_load_dwordx4 v[{r}:{r+3}], v{VHO}, s[12:15], s27 offen {SCL}",
                     f"buffer_load_dwordx4 v[{r+4}:{r+7}], v{VHO}, s[12:15], s31 offen {SCL}"])
        def tl(k):
            r = free.pop(0); wb[k] = r
            A.extend(vm.wait(("w", k)))
            a_ = slot_addr((k - 12) % 12); hi = a_ >> 16; a_ &= 0xffff
            lq.emit([f"ds_read_b64_tr_b16 v[{r+4*db+2*sec}:{r+4*db+2*sec+1}], v{VTR2+2*hi+db} offset:{a_+sec*1024}" for db in range(2) for sec in range(2)], ("t", k))
        for kp in range(HD): hl(kp); nh[0] += 1
        if PRIO_G: A(f"s_setprio {env('PRIOG2', 0)}")
        def mfm(kp, tb, db):
            c = ACC + 32 * tb + 16 * db
            cin = "0" if kp == 0 else f"v[{c}:{c+15}]"
            return f"v_mfma_f32_32x32x16_bf16 v[{c}:{c+15}], v[{wb[kp]+4*db}:{wb[kp]+4*db+3}], v[{hb[kp]+4*tb}:{hb[kp]+4*tb+3}], {cin}"
        f3 = [24]
        for kp in range(24):
            lq.wait(("t", kp))
            A.extend(vm.wait(("h", kp)))
            if kp in (4, 9, 14, 19): A.st(f"k{kp}")
            A(mfm(kp, 0, 0))
            if kp >= 1: free.extend([hb[kp - 1], wb[kp - 1]])
            ahead = env("TAH", 3) if kp < 20 else 4
            while nt[0] < 28 and nt[0] <= kp + ahead and free and (nt[0] < 24 or nt[0] < f3[0]): tl(nt[0]); nt[0] += 1
            A(mfm(kp, 0, 1))
            if nh[0] < 28 and len(free) > 1 and nh[0] - kp < MAXH: hl(nh[0]); nh[0] += 1
            A(mfm(kp, 1, 0))
            if nh[0] < 28 and len(free) > 1 and nh[0] - kp < MAXH: hl(nh[0]); nh[0] += 1
            if f3[0] < 28 and f3[0] - 12 <= kp + 1 and f3[0] - 12 < nt[0] - 1:
                lq.wait(("t", f3[0] - 12))
                A.extend(wdma(f3[0] - 24, f3[0])); vm.note(("w", f3[0]), 2); f3[0] += 1
            if kp == env("SIGK", 19):
                lq.emit(["s_lshl_b32 s28, s20, 2", f"s_add_u32 s28, s28, {L_FLAG+48}", f"v_mov_b32 v{VT}, s28", f"v_mov_b32 v{VHO}, 1", f"ds_write_b32 v{VT}, v{VHO}"])
                assert nh[0] == 28
            A(mfm(kp, 1, 1))
            if kp == 0: A.st("k0")
        assert nh[0] == 28 and nt[0] == 28, (nh, nt)
        pw = lambda tb, db: [f"ds_write_b128 v{VP+q}, v[{ACC+32*tb+16*db+4*q}:{ACC+32*tb+16*db+4*q+3}] offset:{tb*32768+db*128}" for q in range(4)]
        A("s_waitcnt lgkmcnt(0)")
        A.extend(vm.wait(("h", 27)))
        prev = []
        for tb in range(2):
            for db in range(2):
                for j, kp in enumerate(range(24, 28)):
                    A(mfm(kp, tb, db))
                    if j >= 1 and prev: A.extend(prev[:2]); prev = prev[2:]
                A.extend(prev); prev = pw(tb, db)
        A.st("s7")
        A.extend(prev)
        A("s_waitcnt vmcnt(0) lgkmcnt(0)")
        A("s_branch L_final")
        return
    H0 = env("H0", 9)
    for kp in range(H0): A.extend(hload(kp))
    nh = [H0]
    def more(kp, n):
        for _ in range(n):
            if nh[0] < 28 and nh[0] <= kp - 1 + HD:
                A.extend(hload(nh[0])); nh[0] += 1
    if PRIO_G: A(f"s_setprio {env('PRIOG2', 0)}")
    inring = lambda k: ORDER[k] >= 12
    wset = lambda k: ((k % 2) if k < 24 else k - 24) if inring(k) else ORDER[k]
    slot_of = lambda k: (ORDER[k] - 12) % 12
    for kp in range(28 - TS):
        nx = kp + 1
        if TS and kp >= 20 and kp < 24: nx = kp + 4
        if TS and kp >= 24: nx = 99
        if inring(kp): A("s_waitcnt lgkmcnt(0)")
        A.extend(vm.wait(("h", kp)))
        if kp in (4, 9, 14, 19): A.st(f"k{kp}")
        b = W + 8 * wset(kp); sl = kp % HD
        mf = []
        for tb in range(2):
            for db in range(2):
                c = ACC + 32 * tb + 16 * db
                cin = "0" if kp == 0 else f"v[{c}:{c+15}]"
                mf.append(f"v_mfma_f32_32x32x16_bf16 v[{c}:{c+15}], v[{b+4*db}:{b+4*db+3}], v[{H+8*sl+4*tb}:{H+8*sl+4*tb+3}], {cin}")
        A(mf[0])
        if nx < 28 and inring(nx):
            A.extend(vm.wait(("w", ORDER[nx])))
            A.extend(w2tr(slot_of(nx), wset(nx), VTR2))
        A(mf[1])
        more(kp, 1)
        A(mf[2])
        more(kp, 1)
        if 12 <= ORDER[kp] < 16:
            A.extend(wdma(ORDER[kp] - 12, ORDER[kp] + 12)); vm.note(("w", ORDER[kp] + 12), 2)
        if kp == 20 and not EPE:
            A.extend(ep_loads()); vm.note("ep", 2)
        if kp == env("SIGK", 19):
            A(f"""
            s_lshl_b32 s28, s20, 2
            s_add_u32 s28, s28, {L_FLAG+48}
            v_mov_b32 v{VT}, s28
            v_mov_b32 v{W}, 1
            ds_write_b32 v{VT}, v{W}
            """)
        A(mf[3])
        if kp == 0: A.st("k0")
    pw = lambda tb, db: [f"ds_write_b128 v{VP+q}, v[{ACC+32*tb+16*db+4*q}:{ACC+32*tb+16*db+4*q+3}] offset:{tb*32768+db*128}" for q in range(4)]
    if TS:
        A("s_waitcnt lgkmcnt(0)")
        A.extend(vm.wait(("h", 27)))
        prev = []
        for tb in range(2):
            for db in range(2):
                c = ACC + 32 * tb + 16 * db
                for j, kp in enumerate(range(28 - TS, 28)):
                    b_ = W + 8 * wset(kp); sl = kp % HD
                    A(f"v_mfma_f32_32x32x16_bf16 v[{c}:{c+15}], v[{b_+4*db}:{b_+4*db+3}], v[{H+8*sl+4*tb}:{H+8*sl+4*tb+3}], v[{c}:{c+15}]")
                    if j >= 1 and prev: A.extend(prev[:2]); prev = prev[2:]
                A.extend(prev); prev = pw(tb, db)
        A.st("s7")
        A.extend(prev)
    else:
        A.st("s7")
        for tb in range(2):
            for db in range(2): A.extend(pw(tb, db))
    A("s_waitcnt vmcnt(0) lgkmcnt(0)")
    A("s_branch L_final")


def gen_conv(A):
    if PRIO_C: A(f"s_setprio {PRIO_C}")
    VTA, VF = 32, 36
    VXN, VBW, VOWN, VPAR = 37, 38, 39, 40
    T0 = 42
    dsk = P0 + 7
    ACC = 48; FB = [80, 112]; TB = [144, 208]
    XN = 196
    final_addr(A)
    A(f"""
    s_mov_b32 s21, s39
    s_lshr_b32 s35, s21, 1
    s_and_b32 s36, s21, 1
    s_mul_i32 s38, s35, {CH_SIZE}
    s_add_u32 s38, s38, {L_CH}
    s_lshl_b32 s27, s21, 13
    s_add_u32 s27, s27, {L_ST2}
    s_xor_b32 s32, s27, {ST2}
    v_and_b32 v{T0}, 15, v0
    v_lshrrev_b32 v{T0+1}, 4, v0
    v_and_b32 v{T0+2}, 1, v0
    v_mul_u32_u24 v{T0+2}, {OFF_O + 2 - OFF_E}, v{T0+2}
    s_lshl_b32 s31, s36, 8
    s_sub_u32 s31, s38, s31
    s_add_u32 s29, s31, {OFF_O + 2*2032 - 512 - 192}
    v_lshlrev_b32 v{T0+3}, 1, v{T0}
    v_sub_u32 v{VTA}, s29, v{T0+3}
    v_lshl_add_u32 v{VTA}, v{T0+1}, 4, v{VTA}
    v_sub_u32 v{VTA}, v{VTA}, v{T0+2}
    v_subrev_u32 v{VTA+1}, 1024, v{VTA}
    v_subrev_u32 v{VTA+2}, 2048, v{VTA}
    v_subrev_u32 v{VTA+3}, 3072, v{VTA}
    """)
    def freads(rr, fb): return [f"ds_read_b128 v[{fb+4*m}:{fb+4*m+3}], v{VF} offset:{512*m + 64*(3-rr)}" for m in range(8)]
    def treads(rr, tb):
        o = []
        for i in range(8):
            off = 128 * (1 - (i & 1)) + 16 * (3 - rr)
            o.append(f"ds_read2_b32 v[{tb+4*i}:{tb+4*i+1}], v{VTA+i//2} offset0:{off} offset1:{off+1}")
            o.append(f"ds_read2_b32 v[{tb+4*i+2}:{tb+4*i+3}], v{VTA+i//2} offset0:{off+2} offset1:{off+3}")
        return o
    A(f"""
    v_lshl_add_u32 v19, v0, 4, s38
    s_add_u32 s29, s31, {480 - 192}
    v_lshlrev_b32 v{VF}, 5, v{T0}
    v_lshl_add_u32 v{VF}, v{T0+1}, 4, v{VF}
    v_add_u32 v{VF}, s29, v{VF}
    v_lshlrev_b32 v{VXN}, 5, v{T0}
    v_lshl_add_u32 v{VXN}, v{T0+1}, 3, v{VXN}
    v_add_u32 v{VBW}, s27, v{VXN}
    s_lshl_b32 s28, s36, 11
    s_add_u32 s28, s28, s38
    v_add_u32 v{VXN}, s28, v{VXN}
    v_lshl_add_u32 v{VOWN}, v0, 4, s27
    v_lshl_add_u32 v{VPAR}, v0, 4, s32
    v_mov_b32 v13, 1
    s_lshl_b32 s29, s21, 2
    s_add_u32 s29, s29, {L_FLAG}
    v_mov_b32 v14, s29
    s_xor_b32 s29, s29, 4
    v_mov_b32 v15, s29
    v_lshlrev_b32 v18, 4, v0
    """)
    A(f"""
    L_cv_ex:
    ds_read_b32 v16, v15 offset:64
    s_waitcnt lgkmcnt(0)
    v_readfirstlane_b32 s28, v16
    s_cmp_eq_u32 s28, 1
    s_cbranch_scc0 L_cv_ex
    """)
    A.extend(treads(0, TB[0]))
    A("s_cmp_eq_u32 s37, 1")
    A("s_cbranch_scc1 L_cv_uok")
    if env("HT2", 0): A("s_waitcnt vmcnt(0)"); A.extend(ring_ready(20))
    u_spin(A, 20, 18)
    A.label("L_cv_uok")
    A(f"s_waitcnt vmcnt({8 if env('HT2', 0) else 0})")
    if not UDMA:
        for k in range(4): A(f"ds_write_b128 v19, v[{XL+4*k}:{XL+4*k+3}] offset:{512 + k*1024}")
    A.extend(freads(0, FB[0]))
    A.st("s4")
    if GPK == 1:
        A(f"""
        v_mov_b32 v17, {L_FLAG+32}
        L_cv_gd:
        ds_read_b128 v[20:23], v17
        s_waitcnt lgkmcnt(0)
        v_and_b32 v20, v20, v21
        v_and_b32 v22, v22, v23
        v_and_b32 v20, v20, v22
        s_nop 0
        v_readfirstlane_b32 s28, v20
        s_cmp_eq_u32 s28, 1
        s_cbranch_scc0 L_cv_gd
        """)
    A.st("s5")
    for rp in range(4):
        fb, tb = FB[rp % 2], TB[rp % 2]
        mm = []
        for i in range(8):
            for j in range(i, 8):
                cin = "0" if (rp == 0 and i == 0) else f"v[{ACC+4*j}:{ACC+4*j+3}]"
                mm.append(f"v_mfma_f32_16x16x32_bf16 v[{ACC+4*j}:{ACC+4*j+3}], v[{tb+4*i}:{tb+4*i+3}], v[{fb+4*(j-i)}:{fb+4*(j-i)+3}], {cin}")
        if rp == 1:
            if env("HT2", 0): A("s_waitcnt vmcnt(0)"); A.extend(ring_ready(20))
            if not EPE: A.extend(ep_loads())
        if HT and rp == env("HTP", 3):
            A(f"""
            s_lshl_b32 s28, s24, 2
            s_add_u32 s28, s28, s21
            s_mul_i32 s28, s28, {56*128}
            s_mul_i32 s29, s23, {8*112*1024}
            s_add_u32 s28, s28, s29
            s_add_u32 s28, s28, {WS_HF}
            v_min_u32 v{T0}, 55, v0
            v_lshlrev_b32 v{T0}, 7, v{T0}
            buffer_load_dword v20, v{T0}, s[12:15], s28 offen {SC}
            """)
        if rp == 0:
            o = []
            for j in range(8): o += [f"s_waitcnt lgkmcnt({7-j})", mm[j]]
            mm = o + interleave(mm[8:], freads(1, FB[1]) + treads(1, TB[1]), 0, 22)
        else:
            A("s_waitcnt lgkmcnt(0)")
            if rp < 3: mm = interleave(mm, freads(rp + 1, FB[(rp + 1) % 2]) + treads(rp + 1, TB[(rp + 1) % 2]), 0, 26)
            else: mm = interleave(mm, [f"ds_read_b64 v[{XN+2*a_}:{XN+2*a_+1}], v{VXN} offset:{512 + a_*512}" for a_ in range(4)], 0, 8)
        A.extend(mm)
    A.st("s6")
    A("s_cmp_eq_u32 s36, 1")
    A("s_cbranch_scc1 L_cv_x1")
    for a_ in range(4): A(f"ds_write_b128 v{VOWN}, v[{ACC+16+4*a_}:{ACC+16+4*a_+3}] offset:{4096 + a_*1024}")
    A("ds_write_b32 v14, v13")
    A("s_branch L_cv_out")
    A.label("L_cv_x1")
    A("s_nop 7")
    for a_ in range(4): A(f"ds_write_b128 v{VOWN}, v[{ACC+4*a_}:{ACC+4*a_+3}] offset:{4096 + a_*1024}")
    A("ds_write_b32 v14, v13")
    for k in range(16): A(f"v_mov_b32 v{ACC+k}, v{ACC+16+k}")
    A.label("L_cv_out")
    A(f"""
    """)
    A.extend(ya_addr(41, T0))
    A(f"""
    v_mov_b32 v{T0+2}, 0xfffffffe
    s_waitcnt lgkmcnt(5)
    """)
    t = 80; z = 96; YP = 112
    for k in range(8):
        A(f"v_lshlrev_b32 v{t+2*k}, 16, v{XN+k}")
        A(f"v_and_b32 v{t+2*k+1}, 0xffff0000, v{XN+k}")
    for k in range(16): A(f"v_fma_f32 v{ACC+k}, v{t+k}, v{dsk}, v{ACC+k}")
    A.label("L_cv_ps1")
    A(f"""
    ds_read_b32 v16, v15
    s_waitcnt lgkmcnt(0)
    v_readfirstlane_b32 s28, v16
    s_cmp_eq_u32 s28, 1
    s_cbranch_scc0 L_cv_ps1
    """)
    for a_ in range(4): A(f"ds_read_b128 v[{YP+4*a_}:{YP+4*a_+3}], v{VPAR} offset:{4096 + a_*1024}")
    for a_ in range(4):
        A("s_waitcnt lgkmcnt(3)")
        for k in range(4): A(f"v_add_f32 v{ACC+4*a_+k}, v{ACC+4*a_+k}, v{YP+4*a_+k}")
        for k in range(2): A(f"v_cvt_pk_bf16_f32 v{z+2*a_+k}, v{ACC+4*a_+2*k}, v{ACC+4*a_+2*k+1}")
        for k in range(2): A(f"v_min_u32 v{z+2*a_+k}, v{z+2*a_+k}, v{T0+2}")
        A(f"ds_write_b64 v{VBW}, v[{z+2*a_}:{z+2*a_+1}] offset:{a_*512}")
    for h in range(2): A(f"ds_read_b128 v[{t+4*h}:{t+4*h+3}], v{VOWN} offset:{h*1024}")
    for h in range(2):
        A(f"s_waitcnt lgkmcnt({1-h})")
        A(f"buffer_store_dwordx4 v[{t+4*h}:{t+4*h+3}], v41, s[12:15], s{30+h} offen {SC}")
    Y = 160
    A(f"""
    v_lshlrev_b32 v{T0}, 8, v1
    v_lshl_add_u32 v{T0}, v2, 4, v{T0}
    s_lshl_b32 s28, s79, 5
    s_add_u32 s28, s28, s78
    s_lshl_b32 s28, s28, 13
    s_lshl_b32 s29, s21, 11
    s_add_u32 s28, s28, s29
    s_add_u32 s28, s28, {WS_YA}
    v_lshlrev_b32 v{T0+1}, 8, v2
    v_lshl_add_u32 v{T0+1}, v2, 4, v{T0+1}
    v_lshl_add_u32 v{T0+1}, v1, 2, v{T0+1}
    v_add_u32 v{T0+1}, s27, v{T0+1}
    v_mov_b32 v{T0+3}, 0x05040100
    v_mov_b32 v{T0+4}, 0x07060302
    s_mov_b32 s30, 0
    """)
    A.st("s7")
    A(f"""
    v_mov_b32 v17, {L_FLAG+48}
    s_setprio {env("PW", 1)}
    L_cv_w19:
    s_sleep {env("SW19", 2)}
    ds_read_b128 v[20:23], v17
    s_waitcnt lgkmcnt(0)
    v_and_b32 v20, v20, v21
    v_and_b32 v22, v22, v23
    v_and_b32 v20, v20, v22
    s_nop 0
    v_readfirstlane_b32 s29, v20
    s_cmp_eq_u32 s29, 1
    s_cbranch_scc0 L_cv_w19
    L_cv_poll2:
    buffer_load_dwordx4 v[{Y}:{Y+3}], v{T0}, s[12:15], s28 offen {SC}
    buffer_load_dwordx4 v[{Y+4}:{Y+7}], v{T0}, s[12:15], s28 offen offset:128 {SC}
    s_waitcnt vmcnt(0)
    v_max_u32 v{Y+8}, v{Y}, v{Y+1}
    v_max3_u32 v{Y+8}, v{Y+8}, v{Y+2}, v{Y+3}
    v_max3_u32 v{Y+8}, v{Y+8}, v{Y+4}, v{Y+5}
    v_max3_u32 v{Y+8}, v{Y+8}, v{Y+6}, v{Y+7}
    v_cmp_eq_u32 vcc, -1, v{Y+8}
    s_cbranch_vccz L_cv_got
    s_sleep 4
    s_add_u32 s30, s30, 1
    s_cmp_lt_u32 s30, {SPIN}
    s_cbranch_scc1 L_cv_poll2
    """)
    A.label("L_cv_got")
    A.st("got")
    for k in range(4):
        A(f"v_perm_b32 v{Y+8+2*k}, v{Y+4+k}, v{Y+k}, v{T0+3}")
        A(f"v_perm_b32 v{Y+9+2*k}, v{Y+4+k}, v{Y+k}, v{T0+4}")
    for i in range(8): A(f"ds_write_b32 v{T0+1}, v{Y+8+i} offset:{i*32}")
    A("s_waitcnt lgkmcnt(0)")


def gen_final(A):
    P = 32
    A(f"""
    v_lshlrev_b32 v13, 1, v2
    v_xor_b32 v13, v13, v1
    v_lshlrev_b32 v13, 4, v13
    v_lshl_add_u32 v13, v1, 8, v13
    s_and_b32 s28, s20, 3
    s_lshl_b32 s28, s28, 11
    s_lshr_b32 s29, s20, 2
    s_lshl_b32 s29, s29, 15
    s_add_u32 s28, s28, s29
    v_add_u32 v13, s28, v13
    v_xor_b32 v14, 16, v13
    v_lshrrev_b32 v15, 1, v2
    v_lshlrev_b32 v15, 13, v15
    v_lshl_add_u32 v15, v1, 5, v15
    v_and_b32 v16, 1, v2
    v_lshl_add_u32 v15, v16, 4, v15
    s_mul_i32 s28, s20, 272
    s_add_u32 s28, s28, {L_ST2}
    v_add_u32 v15, s28, v15
    """)
    srd(A, 8, "s52", "s53", 2 << 20)
    X, Yv, B = 64, 72, 80
    def unpack(d, s_):
        for k in range(4):
            A(f"v_lshlrev_b32 v{d+2*k}, 16, v{s_+k}")
            A(f"v_and_b32 v{d+2*k+1}, 0xffff0000, v{s_+k}")
    def pack(d, s_):
        for k in range(4): A(f"v_cvt_pk_bf16_f32 v{d+k}, v{s_+2*k}, v{s_+2*k+1}")
    unpack(X, VX); unpack(B, VB2)
    if not FR:
        for k in range(8): A(f"v_add_f32 v{X+k}, v{X+k}, v{B+k}")
    A("s_barrier")
    A.st("fin")
    A(f"ds_read_b128 v[16:19], v15")
    for w in range(4):
        A(f"ds_read_b128 v[{P+8*w}:{P+8*w+3}], v13 offset:{w*8192}")
        A(f"ds_read_b128 v[{P+8*w+4}:{P+8*w+7}], v14 offset:{w*8192}")
    A("s_waitcnt lgkmcnt(8)")
    unpack(Yv, 16)
    for k in range(8): A(f"v_add_f32 v{X+k}, v{X+k}, v{Yv+k}")
    if FR: pack(20, X); unpack(X, 20)
    A("s_waitcnt lgkmcnt(4)")
    for k in range(8): A(f"v_add_f32 v{P+k}, v{P+k}, v{P+8+k}")
    A("s_waitcnt lgkmcnt(0)")
    for k in range(8): A(f"v_add_f32 v{P+16+k}, v{P+16+k}, v{P+24+k}")
    for k in range(8): A(f"v_add_f32 v{P+k}, v{P+k}, v{P+16+k}")
    if FR:
        pack(24, P); unpack(P, 24)
        for k in range(8): A(f"v_add_f32 v{P+k}, v{P+k}, v{B+k}")
        pack(24, P); unpack(P, 24)
    for k in range(8): A(f"v_add_f32 v{P+k}, v{P+k}, v{X+k}")
    pack(28, P)
    A(f"buffer_store_dwordx4 v[28:31], v{VOO}, s[8:11], s33 offen {os.environ.get('SCO', '')}")
    if STAMPS: A("s_waitcnt vmcnt(0)")
    A.stamp_flush(0)
    A("s_endpgm")


DOC = '''; ---------------------------------------------------------------------------------------------
;  hand-offs: sc1 stores + per-wave tag flags (tag = LCG(epoch word in d_ws), epoch advanced inside the launch),
;             y via sentinel prefill; placement (wg%8) is used for cache locality only.
; ---------------------------------------------------------------------------------------------
'''

def gen():
    A = Asm()
    A.stamp(0, True); A.stamp(1)
    for k in range(2, 9): A.stamp(k)
    A(f"""
    s_cmp_ge_u32 s2, 256
    s_cbranch_scc1 L_exit
    s_add_u32 s2, s2, {env("IDR", 224)}
    s_and_b32 s2, s2, 255
    s_load_dwordx2 s[40:41], s[0:1], {KA['u']}
    s_load_dwordx8 s[44:51], s[0:1], {KA['w1']}
    s_load_dwordx4 s[52:55], s[0:1], {KA['out']}
    s_load_dwordx2 s[42:43], s[0:1], {KA['ws']}
    v_lshrrev_b32 v1, 6, v0
    v_and_b32 v0, 63, v0
    s_and_b32 s23, s2, 7
    s_lshr_b32 s24, s2, 3
    v_readfirstlane_b32 s20, v1
    s_and_b32 s25, s24, 3
    s_lshr_b32 s77, s24, 2
    s_and_b32 s79, s77, 3
    s_cmp_eq_u32 s79, 3
    s_cselect_b32 s79, {4 if env("SW", 1) else 0}, 0
    s_xor_b32 s79, s79, s77
    s_lshl_b32 s78, s23, 2
    s_add_u32 s78, s78, s25
    s_mul_i32 s74, {'s23' if ROT & 4 else 's79'}, {3584 if ROT & 5 else 0}
    s_and_b32 s74, s74, 0xfffffc00
    s_cmp_eq_u32 s77, 7
    s_cselect_b32 s75, {env("LROT", 7168)}, {7168 if ROT & 2 else 0}
    s_mul_i32 s75, s25, s75
    s_add_u32 s74, s74, s75
    s_sub_u32 s75, s74, {28*1024}
    s_min_u32 s74, s74, s75
    s_and_b32 s39, s20, 3
    s_cmp_eq_u32 s77, 7
    s_cbranch_scc1 L_ln
    """)
    if LOC:
        A("""
        s_and_b32 s21, s24, 1
        s_lshl_b32 s22, s23, 1
        s_add_u32 s21, s21, s22
        s_lshr_b32 s22, s24, 1
        """)
    else:
        A("""
        s_lshr_b32 s21, s23, 1
        s_lshl_b32 s21, s21, 2
        s_add_u32 s21, s21, s25
        s_and_b32 s22, s23, 1
        s_mul_i32 s22, s22, 7
        s_add_u32 s22, s22, s77
        """)
    gen_gemm1(A)
    A.label("L_ln")
    A("s_nop 0 ; RESETSB")
    A("s_mov_b32 s21, s78")
    if env("LND", 0): A(f"s_sleep {env('LND', 0)}")
    gen_ln(A)
    A.label("L_gemm2")
    A("s_nop 1 ; RESETSB")
    gen_gemm2(A)
    A.label("L_conv")
    A("s_nop 1 ; RESETSB")
    gen_conv(A)
    A.label("L_final")
    A("s_nop 7")
    gen_final(A)
    A.label("L_exit")
    A("s_endpgm")
    lines = fix_hazards(A.lines, verbose=True)
    check_waits(lines, "s")
    head = open("parallel_sum__ssm_conv_s4__dense_activation_gelu__prompt.s.ref").read().split("; Override launch")[0]
    head += DOC
    head += f"; @launch grid=(256,1,1) block=(512,1,1) lds={LDS_TOTAL}\n.amdgcn_target \"amdgcn-amd-amdhsa--gfx950\"\n"
    return head + kernel_section(KNAME, lines, 256, 102, 256)

if __name__ == "__main__":
    out = sys.argv[1] if len(sys.argv) > 1 else "cur8.s"
    open(out, "w").write(gen())
    print("wrote", out)
```

```python
from asmlib import *
import struct, math, os, sys

def f2u(x): return struct.unpack("<I", struct.pack("<f", x))[0]
def env(n, d): return int(os.environ.get(n, str(d)))

KNAME = "parallel_sum__ssm_conv_s4__dense_activation_gelu__prompt_kernel"
KA = dict(u=0, A_re=8, A_im=16, B_re=24, B_im=32, C_re=40, C_im=48, log_dt=56, Dskip=64, Bx=72, w1=80, b1=88, w2=96, b2=104,
          out=112, dbg=120, ws=128)
WS_FLL = 32768
WS_EPOCH = 49152
WS_DUMMY = 53248
WS_STAT = 65536
WS_FLH = 131072
WS_FLY = 262144
WS_HF = 1 << 20
WS_XNT = 8 << 20
WS_YA = 12 << 20
WS_USED = 14 << 20

LOG2E = 1.4426950408889634
GC1 = -2.0 * LOG2E * 0.7978845608028654
GC2 = GC1 * 0.044715

NS, STAGE = 4, 32768
RSL = 12
RING = RSL * 2048
L_KST = 98304; KST = 8704
L_ST2 = 98304; ST2 = 8192
L_CH = 131072; CH_SIZE = 13056
OFF_E, OFF_O = 4608, 8768
L_FLAG = L_CH + 2 * CH_SIZE
L_CS = L_FLAG + 512
LDS_TOTAL = 163840
L_VS = 98304; L_US = 98304

OPT_PF = env("PF", 2)
PRE = env("PRE", 3)
PRIO_C = env("PRIOC", 1)
PRIO_G = env("PRIOG", 2)
PRIO_E = env("PRIOE", 0)
ROT = env("ROT", 4)
BARP = env("BARP", 2)
STATG = env("STATG", 21)
SC = os.environ.get("SC", "sc1")
PFG = [int(x) for x in os.environ.get("PFG", "").split(",") if x]
HD = 9
U6 = env('U6', 0)
FSL = env('FSL', 2)
KR = env('KR', 0)
MIX = env('MIX', 0)
XS = env('XS', 65536 + 2176)
PS = env('PS', 8)
PG = env('PG', 0)
LW1 = env('LW1', 0)
UDMA = env('UDMA', 1)
EPE = env('EPE', 1)
FS = env('FS', 2)
HP = env('HP', 1)
NB8 = env('NB8', 1)
EP = env('EP', 2)
TS = env('TS', 4)
FR = env('FR', 0)
NPK0 = env('NPK0', 3)
NC0 = env('NC0', 3)
WSOFF = env('WSOFF', 0) << 20
SCH = os.environ.get('SCH', SC)
LOC = env('LOC', 0)
GPK = env('GPK', 3)
ULN = env('ULN', 3)
HT = env('HT', 0)
SCL = os.environ.get('SCL', SC)
SPIN = 0x40000

DK, DP, EX, P0 = 224, 128, 160, 244
BF, AF, KG_G, KG_E1, KG_L, KG_V, KG_PK, KG_VW, KG_VRD = 160, 192, 108, 122, 224, 124, 132, 136, 137
L_KS2 = 131072; KS2 = 4352
XL = 180
VDUM, LNF = 252, 253
VX, VB2, VOO = 4, 8, 12
VW2 = 23
W2R, HR, ACC2 = 160, 88, 24
VTL = 24

_pc = [0]
def pert(A):
    if not env("PERT", 0): return
    k = _pc[0]; _pc[0] += 1
    A(f"s_mul_i32 s75, s20, {37 + 2*k}\ns_add_u32 s75, s75, s2\ns_bitcmp1_b32 s75, {(k + env('PERT', 0)) % 5}\ns_cbranch_scc0 L_pert{k}\ns_sleep {20 + 9*k}\nL_pert{k}:")

def srd(A, d, lo, hi, size):
    A(f"s_mov_b32 s{d}, {lo}\ns_mov_b32 s{d+1}, {hi}\ns_mov_b32 s{d+2}, {size}\ns_mov_b32 s{d+3}, 0x00020000")
def round_bf16(A, r):
    A(f"v_cvt_pk_bf16_f32 v{r}, v{r}, v{r}")
    A(f"v_and_b32 v{r}, 0xffff0000, v{r}")
def zipm(*lists):
    o = []
    for k in range(max(len(l) for l in lists)):
        for l in lists:
            if k < len(l): o.append(l[k])
    return o
def mask(lo, hi=None):
    hi = lo if hi is None else hi
    return [f"s_mov_b32 s28, {lo}", f"s_mov_b32 s29, {hi}"]

class VMQ:
    def __init__(self): self.q = []
    def note(self, tag, n=1): self.q.extend([tag] * n)
    def wait(self, *tags):
        idx = max((k for k, t in enumerate(self.q) if t in tags), default=-1)
        if idx < 0: return []
        n = len(self.q) - 1 - idx
        del self.q[:idx + 1]
        return [f"s_waitcnt vmcnt({n})"]
    def younger(self): return len(self.q)

ORDER = [0, 1] + list(range(12, 24)) + list(range(2, 12)) + list(range(24, 28))

def koff(dst, lab, base="s74"):
    return [f"s_add_u32 {dst}, {base}, {lab*1024}", f"s_sub_u32 s75, {dst}, {28*1024}", f"s_min_u32 {dst}, {dst}, s75"]

def slot_addr(sl): return (sl >> 2) * 32768 + (sl & 3) * 2048

def w2_setup(A, vt):
    srd(A, 16, "s48", "s49", 1792 * 1024)
    A(f"""
    v_lshrrev_b32 v{vt}, 2, v0
    v_and_b32 v{vt}, 4, v{vt}
    v_and_b32 v{vt+1}, 7, v0
    v_xor_b32 v{vt}, v{vt}, v{vt+1}
    v_lshrrev_b32 v{vt+1}, 3, v0
    v_lshlrev_b32 v{VW2}, 10, v{vt+1}
    v_lshl_add_u32 v{VW2}, v{vt}, 4, v{VW2}
    s_mul_i32 s72, s39, {448*1024}
    s_lshl_b32 s75, s79, 7
    s_add_u32 s72, s72, s75
    s_lshl_b32 s73, s39, 13
    v_lshrrev_b32 v{vt+1}, 5, v0
    v_bfe_u32 v{vt}, v0, 2, 2
    v_lshl_add_u32 v{VTL}, v{vt+1}, 2, v{vt}
    v_lshlrev_b32 v{VTL}, 7, v{VTL}
    v_bfe_u32 v{vt}, v0, 4, 1
    v_lshl_add_u32 v{VTL}, v{vt}, 5, v{VTL}
    v_and_b32 v{vt}, 3, v0
    v_lshl_add_u32 v{VTL}, v{vt}, 3, v{VTL}
    v_bfe_u32 v{vt}, v0, 3, 1
    v_lshl_add_u32 v{VTL}, v{vt}, 6, v{VTL}
    v_add_u32 v{VTL}, s73, v{VTL}
    v_xor_b32 v{VTL+1}, 64, v{VTL}
    v_add_u32 v{VTL+2}, 0x10000, v{VTL}
    v_add_u32 v{VTL+3}, 0x10000, v{VTL+1}
    """)
def wdma(slot, lab):
    a_ = slot_addr(slot)
    return koff("s31", lab) + [f"s_add_u32 m0, s73, {a_}", "s_lshl4_add_u32 s31, s31, s72",
                               f"buffer_load_dwordx4 v{VW2}, s[16:19], s31 offen lds",
                               f"s_add_u32 m0, s73, {a_+1024}", "s_add_u32 s31, s31, 8192",
                               f"buffer_load_dwordx4 v{VW2}, s[16:19], s31 offen lds"]
def w2tr(slot, ws_, vtl=VTL):
    b = W2R + 8 * ws_; a_ = slot_addr(slot); hi = a_ >> 16; a_ &= 0xffff
    return [f"ds_read_b64_tr_b16 v[{b+4*db+2*sec}:{b+4*db+2*sec+1}], v{vtl+2*hi+db} offset:{a_+sec*1024}" for db in range(2) for sec in range(2)]

def param_loads(A, vt):
    A(f"""
    s_lshr_b32 s28, s39, 1
    s_lshl_b32 s30, s2, 1
    s_add_u32 s30, s30, s28
    v_lshlrev_b32 v{vt}, 1, v0
    v_mov_b32 v{vt+1}, 0
    s_lshl_b32 s29, s30, 8
    s_and_b32 s28, s20, 1
    s_lshl_b32 s28, s28, 7
    s_add_u32 s29, s29, s28
    s_lshl_b32 s30, s30, 1
    s_mov_b32 s18, 1024
    s_mov_b32 s19, 0x00020000
    """)
    for k in range(8): A(f"v_mov_b32 v{P0+k}, 0")
    A("s_waitcnt lgkmcnt(0)")
    for k in (6, 7, 0, 1, 2, 3, 4, 5):
        if k == 0: A("s_mov_b32 s18, 131072")
        A(f"s_mov_b32 s16, s{56+2*k}\ns_mov_b32 s17, s{57+2*k}")
        if k < 6: A(f"buffer_load_short_d16_hi v{P0+k}, v{vt}, s[16:19], s29 offen")
        else: A(f"buffer_load_short_d16_hi v{P0+k}, v{vt+1}, s[16:19], s30 offen")

def lnflag_load(vt):
    return ["s_lshl_b32 s29, s79, 6", "s_lshl_b32 s28, s39, 4", "s_add_u32 s29, s29, s28", "s_lshr_b32 s28, s78, 4", "s_lshl_b32 s28, s28, 9",
            "s_add_u32 s29, s29, s28", f"s_lshl_b32 s29, s29, {FS}", f"s_add_u32 s29, s29, {WS_FLY}",
            f"v_lshlrev_b32 v{vt}, {FSL}, v0", f"v_add_u32 v{vt}, {WS_FLL}, v{vt}",
            f"v_and_b32 v{vt+1}, 15, v0", f"v_lshl_add_u32 v{vt+1}, v{vt+1}, {FS}, s29", "s_mov_b32 s28, 0", "s_mov_b32 s29, -1",
            f"v_cndmask_b32 v{vt}, v{vt}, v{vt+1}, s[28:29]",
            f"buffer_load_dword v{LNF}, v{vt}, s[12:15], 0 offen {SC}"]

def u_issue(A, vl16):
    A(f"""
    s_lshr_b32 s28, s39, 1
    s_lshl_b32 s29, s2, 1
    s_add_u32 s29, s29, s28
    s_lshl_b32 s29, s29, {7 if XS else 12}
    s_add_u32 s29, s29, {WS_XNT}
    """)
    if UDMA:
        A(f"s_mul_i32 s28, s28, {CH_SIZE}")
        A(f"s_add_u32 m0, s28, {L_CH + 512}")
        if XS:
            A(f"""
            v_lshrrev_b32 v{XL}, 3, v0
            v_and_b32 v{XL+1}, 7, v0
            v_mul_u32_u24 v{XL}, {XS}, v{XL}
            v_lshl_add_u32 v{XL}, v{XL+1}, 4, v{XL}
            """)
            vl16 = XL
        for k in range(4):
            if XS and k: A(f"s_add_u32 s29, s29, {8*XS - 1024}")
            A(f"buffer_load_dwordx4 v{vl16}, s[12:15], s29 offen offset:{k*1024} {SC} lds")
    else:
        for k in range(4): A(f"buffer_load_dwordx4 v[{XL+4*k}:{XL+4*k+3}], v{vl16}, s[12:15], s29 offen offset:{k*1024} {SC}")

def u_try(A, vl16):
    A(f"""
    v_cmp_ne_u32 vcc, s76, v{LNF}
    s_mov_b32 s37, 0
    s_cbranch_vccnz L_ut_no
    s_mov_b32 s37, 1
    """)
    u_issue(A, vl16)
    A.label("L_ut_no")

def u_spin(A, vt, vl16, tag=''):
    A("s_mov_b32 s30, 0")
    A.label(f"L_us_poll{tag}")
    A(f"s_sleep {PS}")
    A.extend(lnflag_load(vt))
    A(f"""
    s_add_u32 s30, s30, 1
    s_waitcnt vmcnt(0)
    v_cmp_ne_u32 vcc, s76, v{LNF}
    s_cmp_gt_u32 s30, {SPIN}
    s_cbranch_scc1 L_us_ok{tag}
    s_cbranch_vccnz L_us_poll{tag}
    """)
    A.label(f"L_us_ok{tag}")
    u_issue(A, vl16)
    A("s_waitcnt vmcnt(0)")

def ya_addr(vd, vt):
    return [f"v_lshrrev_b32 v{vd}, 3, v0", f"v_and_b32 v{vt}, 7, v0", f"v_lshlrev_b32 v{vd}, 13, v{vd}", f"v_lshl_add_u32 v{vd}, v{vt}, 4, v{vd}",
            "s_lshr_b32 s28, s39, 1", "s_lshl_b32 s31, s2, 1", "s_add_u32 s31, s31, s28",
            "s_lshr_b32 s29, s31, 6", "s_lshl_b32 s29, s29, 18", "s_and_b32 s28, s31, 63", "s_lshl_b32 s28, s28, 7", "s_add_u32 s29, s29, s28",
            f"s_add_u32 s29, s29, {WS_YA}", "s_and_b32 s30, s39, 1", "s_lshl_b32 s30, s30, 17", "s_add_u32 s30, s30, s29", "s_add_u32 s31, s30, 65536"]
def ya_prefill(vd, vt, vm4):
    return ya_addr(vd, vt) + [f"v_mov_b32 v{vm4+k}, -1" for k in range(4)] + \
           [f"buffer_store_dwordx4 v[{vm4}:{vm4+3}], v{vd}, s[12:15], s{30+h} offen {SC}" for h in range(2)]

def publish_flag(A, soff, vt, tag, wave, both=False):
    A(f"""
    s_cmp_lg_u32 s20, {wave}
    s_cbranch_scc1 L_pub_skip{tag}
    v_mov_b32 v{vt}, 0
    v_mov_b32 v{vt+1}, s76
    s_mov_b64 exec, 1
    buffer_store_dword v{vt+1}, v{vt}, s[12:15], {soff} offen {SC}
    """)
    if both:
        A(f"""
        s_lshl_b32 s28, s2, 7
        s_add_u32 s28, s28, {WS_FLW}
        buffer_store_dword v{vt+1}, v{vt}, s[12:15], s28 offen {SC}
        """)
    A(f"""
    s_mov_b64 exec, -1
    L_pub_skip{tag}:
    """)
def mktag(A):
    A("s_mul_i32 s76, s76, 0x9E3779B1")
    A("s_add_u32 s76, s76, 0x7F4A7C15")
def arrive(A, tag):
    A(f"""
    s_cmp_lg_u32 s20, 3
    s_cbranch_scc1 L_arr{tag}
    s_atomic_add s77, s[54:55], 0 glc
    L_arr{tag}:
    """)

def coop_prefetch(A, vt):
    A(f"""
    s_lshl_b32 s28, s24, 2
    s_add_u32 s28, s28, s39
    s_lshl_b32 s30, s28, 6
    v_add_u32 v{vt}, s30, v0
    v_mul_u32_u24 v{vt+1}, 0x4925, v{vt}
    v_lshrrev_b32 v{vt+1}, 18, v{vt+1}
    v_mul_u32_u24 v{vt+2}, 14, v{vt+1}
    v_sub_u32 v{vt}, v{vt}, v{vt+2}
    v_lshlrev_b32 v{vt}, 7, v{vt}
    v_mul_u32_u24 v{vt+1}, 3584, v{vt+1}
    v_add_u32 v{vt}, v{vt}, v{vt+1}
    s_and_b32 s29, s23, 1
    s_mul_i32 s29, s29, 1792
    buffer_load_dword v{VDUM}, v{vt}, s[8:11], s29 offen
    s_lshr_b32 s29, s23, 1
    s_lshl_b32 s29, s29, 19
    s_lshl_b32 s30, s28, 13
    s_add_u32 s29, s29, s30
    v_lshlrev_b32 v{vt+2}, 7, v0
    """)
    if env("MP0", 1):
        A(f"""
        s_mul_i32 s31, s23, {28*8192}
        s_add_u32 s31, s31, s30
        s_sub_u32 s31, s31, {64*8192}
        s_cmp_lt_u32 s28, 92
        s_cselect_b32 s31, s31, 0x400000
        s_cmp_lt_u32 s28, 64
        s_cselect_b32 s29, s29, s31
        s_cselect_b32 s16, s40, s48
        s_cselect_b32 s17, s41, s49
        s_cselect_b32 s18, 0x200000, {1792*1024}
        s_mov_b32 s19, 0x00020000
        buffer_load_dword v{VDUM}, v{vt+2}, s[16:19], s29 offen
        """.replace("s_cselect_b32 s18, 0x200000, 1835008", "s_mov_b32 s18, 1835008\n        s_cselect_b32 s18, 0x200000, s18"))
    else:
        A(f"""
        s_cmp_lt_u32 s28, 64
        s_cselect_b32 s29, s29, 0x400000
        buffer_load_dword v{VDUM}, v{vt+2}, s[4:7], s29 offen
        """)
def coop_prefetch2(A, vt):
    srd(A, 16, "s48", "s49", 1792 * 1024)
    A(f"""
    s_lshl_b32 s28, s24, 2
    s_add_u32 s28, s28, s39
    s_mul_i32 s30, s28, 40
    v_add_u32 v{vt}, s30, v0
    v_mul_u32_u24 v{vt+1}, 0x4925, v{vt}
    v_lshrrev_b32 v{vt+1}, 18, v{vt+1}
    v_mul_u32_u24 v{vt+2}, 14, v{vt+1}
    v_sub_u32 v{vt}, v{vt}, v{vt+2}
    v_lshlrev_b32 v{vt}, 7, v{vt}
    v_mul_u32_u24 v{vt+1}, 3584, v{vt+1}
    v_add_u32 v{vt}, v{vt}, v{vt+1}
    s_mul_i32 s30, s28, 23
    v_add_u32 v{vt+1}, s30, v0
    v_min_u32 v{vt+1}, 2559, v{vt+1}
    v_mul_u32_u24 v{vt+2}, 13108, v{vt+1}
    v_lshrrev_b32 v{vt+2}, 16, v{vt+2}
    v_mul_u32_u24 v{vt+3}, 3, v{vt+2}
    v_add_u32 v{vt+1}, v{vt+1}, v{vt+3}
    v_lshlrev_b32 v{vt+1}, 7, v{vt+1}
    v_lshlrev_b32 v{vt+2}, 7, v0
    s_and_b32 s29, s23, 1
    s_mul_i32 s29, s29, 1792
    s_add_u32 s29, s29, {192*3584}
    s_mov_b32 exec_hi, {0 if (LW1 or not env("WT", 1)) else 255}
    s_mov_b32 exec_lo, {1 if (LW1 or not env("WT", 1)) else -1}
    buffer_load_dword v{VDUM}, v{vt}, s[8:11], s29 offen
    s_lshr_b32 s29, s23, 1
    s_lshl_b32 s29, s29, 19
    s_add_u32 s29, s29, 384
    s_mov_b64 exec, {"0x7fffff" if env("XT", 1) else "1"}
    buffer_load_dword v{VDUM}, v{vt+1}, s[4:7], s29 offen
    s_lshl_b32 s28, s2, 2
    s_add_u32 s28, s28, s39
    s_lshl_b32 s28, s28, 11
    s_mov_b64 exec, {os.environ.get("W2M", "1")}
    buffer_load_dword v{VDUM}, v{vt+2}, s[16:19], s28 offen
    s_mov_b64 exec, -1
    """)
def w2_prefetch(vt, piece):
    return ["s_lshl_b32 s28, s24, 2", "s_add_u32 s28, s28, s39", "s_lshl_b32 s28, s28, 14", f"s_add_u32 s28, s28, {piece*8192}",
            f"v_lshlrev_b32 v{vt}, 7, v0", f"buffer_load_dword v{VDUM}, v{vt}, s[16:19], s28 offen"]

def cmul(d, x, y, pk=True):
    P = lambda r: f"v[{r}:{r+1}]"
    assert d != x and d != y
    if pk:
        return [f"v_pk_mul_f32 {P(d)}, {P(x)}, {P(y)} op_sel:[0,0] op_sel_hi:[0,1]",
                f"v_pk_fma_f32 {P(d)}, {P(x)}, {P(y)}, {P(d)} op_sel:[1,1,0] op_sel_hi:[1,0,1] neg_lo:[0,1,0]"]
    return [f"v_mul_f32 v{d}, v{x}, v{y}", f"v_mul_f32 v{d+1}, v{x}, v{y+1}",
            f"v_fma_f32 v{d}, -v{x+1}, v{y+1}, v{d}", f"v_fma_f32 v{d+1}, v{x+1}, v{y}, v{d+1}"]

def kg_common(A, base, T0, Z, WA):
    ar, ai, br, bi, cr, ci, ld, dsk = range(P0, P0 + 8)
    u_ = f2u(LOG2E) & 0xFFFFFF00
    lh = struct.unpack("<f", struct.pack("<I", u_))[0]; ll = LOG2E - lh
    A(f"""
    v_mul_f32 v{T0}, {hex(f2u(lh))}, v{ld}
    v_mul_f32 v{T0+1}, {hex(f2u(ll * math.log(2)))}, v{ld}
    v_exp_f32 v{T0}, v{T0}
    s_nop 0
    v_fma_f32 v{T0}, v{T0}, v{T0+1}, v{T0}
    """)
    round_bf16(A, T0)
    A(f"""
    v_mul_f32 v{Z}, v{T0}, v{ar}
    v_mul_f32 v{Z+1}, v{T0}, v{ai}
    v_mul_f32 v{br}, v{T0}, v{br}
    v_mul_f32 v{bi}, v{T0}, v{bi}
    v_mul_f32 v{Z}, {hex(f2u(LOG2E))}, v{Z}
    v_mul_f32 v{Z+1}, 0.15915494, v{Z+1}
    """)
def kg_waddr(A, base, WA):
    A(f"s_lshl_b32 s28, s39, 13\ns_add_u32 s28, s28, {base}\nv_lshl_add_u32 v{WA}, v0, 2, s28")
    for k in range(1, 16): A(f"v_xor_b32 v{WA+k}, {16*k}, v{WA}")
def kg_raddr(base, d, t):
    o = ["s_lshl_b32 s28, s39, 13", f"s_add_u32 s28, s28, {base}", f"v_and_b32 v{t}, 15, v0", f"v_lshrrev_b32 v{t+1}, 5, v0", f"v_xor_b32 v{t}, v{t}, v{t+1}",
         f"v_and_b32 v{t+1}, 31, v0", f"v_lshlrev_b32 v{t+1}, 8, v{t+1}", f"v_lshl_add_u32 v{d}, v{t}, 4, v{t+1}", f"v_add_u32 v{d}, s28, v{d}"]
    return o + [f"v_xor_b32 v{d+k}, {32*k}, v{d}" for k in range(1, 8)]
def cexp(d, x, t, Z):
    xs = {1: None, 8: hex(f2u(8.0)), 256: hex(f2u(256.0))}[x]
    o = []
    if xs is None: o += [f"v_exp_f32 v{t}, v{Z}", f"v_fract_f32 v{t+1}, v{Z+1}"]
    else: o += [f"v_mul_f32 v{t}, {xs}, v{Z}", f"v_mul_f32 v{t+1}, {xs}, v{Z+1}", f"v_exp_f32 v{t}, v{t}", f"v_fract_f32 v{t+1}, v{t+1}"]
    o += [f"v_cos_f32 v{d}, v{t+1}", f"v_sin_f32 v{d+1}, v{t+1}", f"v_mul_f32 v{d}, v{d}, v{t}", f"v_mul_f32 v{d+1}, v{d+1}, v{t}"]
    return o
KWA = 100
KRA = 116

def gen_kgen_v(A):
    T0, Z, E8, E16, Va, Vb, PKT = 34, 144, 44, 46, 80, 84, 88
    kg_common(A, L_VS, T0, Z, KWA)
    A.extend(cexp(E8, 8, T0, Z))
    A.extend(cmul(E16, E8, E8))
    npk = [0]
    def emit(src, row):
        t = PKT + (npk[0] % 8); npk[0] += 1
        return [f"v_cvt_pk_bf16_f32 v{t}, v{src}, v{src+1}", f"ds_write_b32 v{KWA + (row & 15)}, v{t} offset:{row*256}"]
    A(f"v_mov_b32 v{PKT+7}, 0x00003f80")
    A(f"ds_write_b32 v{KWA}, v{PKT+7}")
    A.extend(emit(E8, 1)); A.extend(emit(E16, 2))
    ev, od = E16, E8
    for j in range(3, 32, 2):
        d1 = Va + 2 * (((j - 3) // 2) % 2)
        d2 = Vb + 2 * (((j - 3) // 2) % 2)
        l1 = cmul(d1, od, E16) + emit(d1, j)
        l2 = (cmul(d2, ev, E16) + emit(d2, j + 1)) if j + 1 < 32 else []
        A.extend(zipm(l1, l2))
        od, ev = d1, d2
    for st in range(8): A(f"ds_read_b128 v[{BF+4*st}:{BF+4*st+3}], v{KRA+st}")

UPK = 192
def kgen_u_lists(rebase):
    T0, Z, E1, G, Lr, Va = 34, 144, 42, 44, 58, 76
    ar, ai, br, bi, cr, ci, ld, dsk = range(P0, P0 + 8)
    cm = lambda d, x, y: cmul(d, x, y, False)
    V = []; Wr = []
    if rebase: V += [f"v_subrev_u32 v{KWA+k}, {rebase}, v{KWA+k}" for k in range(24)]
    V += zipm(cexp(E1, 1, T0 + 2, Z), cexp(G, 256, T0 + 4, Z), cm(Lr, cr, br))
    npk = [0]
    def emit(src, rows):
        t = UPK + npk[0]; npk[0] += 1
        Wr.extend(f"ds_write_b32 v{KWA + (row & 15)}, v{t} offset:{row*256}" for row in rows)
        return [f"v_cvt_pk_bf16_f32 v{t}, v{src}, -v{src+1}"]
    urow = lambda hh, r: 8 * (r >> 2) + 4 * hh + (r & 3)
    lch = emit(Lr, [urow(0, 0)])
    for a_ in range(1, 9): lch += cm(Lr + 2 * a_, Lr + 2 * (a_ - 1), E1) + emit(Lr + 2 * a_, [urow(0, a_)])
    gch = []
    for k in range(2, 8): gch += cm(G + 2 * (k - 1), G + 2 * (k - 2), G)
    V += zipm(lch, gch)
    jobs = [(0, 1, [urow(1, 0), urow(1, 1)]), (2, 1, [urow(1, 2)]), (4, 1, [urow(1, 3), urow(1, 4), urow(1, 5)]), (6, 1, [urow(1, 6)]),
            (8, 1, [urow(1, 7), urow(1, 8)]),
            (0, 2, [urow(0, 9)]), (4, 2, [urow(0, 10)]), (8, 2, [urow(0, 11)]),
            (0, 3, [urow(1, 9)]), (4, 3, [urow(1, 10)]), (8, 3, [urow(1, 11)]),
            (0, 4, [urow(0, 12)]), (8, 4, [urow(0, 13)]), (0, 5, [urow(0, 14)]), (8, 5, [urow(0, 15)]),
            (0, 6, [urow(1, 12)]), (8, 6, [urow(1, 13)]), (0, 7, [urow(1, 14)]), (8, 7, [urow(1, 15)])]
    for k in range(0, len(jobs), 2):
        ls = []
        for q_, (a_, gk, rows) in enumerate(jobs[k:k + 2]):
            d = Va + 4 * q_ + 2 * ((k // 2) % 2)
            ls.append(cm(d, Lr + 2 * a_, G + 2 * (gk - 1)) + emit(d, rows))
        V += zipm(*ls)
    assert npk[0] <= 32
    return V, Wr

def kg_atoms_m():
    at = [[f"ds_read_b128 v[{AF+4*k}:{AF+4*k+3}], v{KRA+k} offset:{L_US - L_VS}", ("tag", ("af", k))] for k in range(8)]
    mm = []
    for st in range(8):
        cin = "0" if st == 0 else f"v[{DK}:{DK+15}]"
        mm.append([("wait", ("af", st)), f"v_mfma_f32_32x32x16_bf16 v[{DK}:{DK+15}], v[{AF+4*st}:{AF+4*st+3}], v[{BF+4*st}:{BF+4*st+3}], {cin}"])
    return at, mm

XA, XR, XPAD, XFL, XZ, XONE, XFP = 146, 147, 148, 149, 150, 152, 153
def tail_pre():
    t = VT1; VEA, VEB = 254, 255
    return [f"s_lshr_b32 s30, s39, 1", f"s_mul_i32 s30, s30, {CH_SIZE}", f"s_add_u32 s38, s30, {L_CH}", "s_lshl_b32 s30, s39, 13", f"s_add_u32 s30, s30, {L_VS}",
            f"v_lshl_add_u32 v{XA}, v0, 4, s30", f"v_xor_b32 v{XR}, 8192, v{XA}",
            f"v_and_b32 v{t}, 31, v0", f"v_lshrrev_b32 v{t+1}, 5, v0", f"v_lshlrev_b32 v{t+2}, 4, v{t}",
            f"s_add_u32 s28, s38, {OFF_E + 4080 - 1024}", f"v_sub_u32 v{VEA}, s28, v{t+2}", f"v_lshlrev_b32 v{t+3}, 9, v{t+1}", f"v_sub_u32 v{VEA}, v{VEA}, v{t+3}",
            f"s_add_u32 s28, s38, {OFF_E + 4080 - 2560}", f"v_sub_u32 v{VEB}, s28, v{t+2}", f"v_lshlrev_b32 v{t+3}, 10, v{t+1}", f"v_sub_u32 v{VEB}, v{VEB}, v{t+3}",
            f"v_lshl_add_u32 v{XPAD}, v0, 3, s38", f"v_mov_b32 v{XZ}, 0", f"v_mov_b32 v{XZ+1}, 0", f"v_mov_b32 v{XONE}, 1",
            "s_lshl_b32 s28, s39, 2", f"s_add_u32 s28, s28, {L_FLAG}", f"v_mov_b32 v{XFL}, s28", f"v_xor_b32 v{XFP}, 4, v{XFL}"] + lnflag_load(154)[:-1] + \
           ["s_bitcmp0_b32 s39, 0", "s_cselect_b64 s[28:29], -1, 0", "s_mov_b64 exec, s[28:29]",
            f"ds_write_b64 v{XPAD}, v[{XZ}:{XZ+1}]", "s_and_b64 exec, s[28:29], 15",
            f"ds_write_b64 v{XPAD}, v[{XZ}:{XZ+1}] offset:{OFF_E+4096}", f"ds_write_b64 v{XPAD}, v[{XZ}:{XZ+1}] offset:{OFF_O+4096}", "s_mov_b64 exec, -1"]

def kg_atoms_x1():
    return [["s_bitcmp1_b32 s39, 0", "s_cselect_b64 exec, -1, 0"] + [f"ds_write_b128 v{XA}, v[{DK+4*q}:{DK+4*q+3}] offset:{512+q*1024}" for q in range(3)] +
            ["s_not_b64 exec, exec", f"ds_write_b128 v{XA}, v[{DK+12}:{DK+15}] offset:{512+3072}", "s_mov_b64 exec, -1"]]

def kg_atoms_x2(tag):
    VEA, VEB = 254, 255
    k_ = lambda r: DK + r
    def half(base, kk, va, off, odd):
        prs = [(8, 7), (6, 5), (4, 3), (2, 1)] if odd else [(7, 6), (5, 4), (3, 2), (1, 0)]
        return [f"v_cvt_pk_bf16_f32 v{base+i}, v{kk[lo]}, v{kk[hi]}" for i, (lo, hi) in enumerate(prs)] + \
               [f"ds_write_b128 v{va}, v[{base}:{base+3}] offset:{off + (OFF_O - OFF_E if odd else 0)}"]
    ev = [([k_(i) for i in range(9)], VEA, 1024), ([k_(9)] * 3 + [k_(10)] * 3 + [k_(11)] * 3, VEA, 0)]
    od = [([k_(12)] * 4 + [DP] + [k_(13)] * 4, VEB, 512), ([k_(14)] * 4 + [DP + 1] + [k_(15)] * 4, VEB, 0)]
    o = ["s_bitcmp1_b32 s39, 0", f"s_cbranch_scc1 L_xo{tag}"]
    o += [f"ds_read_b128 v[{DP+4*q}:{DP+4*q+3}], v{XR} offset:{512+q*1024}" for q in range(3)]
    for q in range(3):
        o += [f"s_waitcnt lgkmcnt({2-q})"] + [f"v_add_f32 v{DK+4*q+k}, v{DK+4*q+k}, v{DP+4*q+k}" for k in range(4)]
    n = 0
    for gi in range(2):
        for o_ in range(2):
            o += half(EX + 4 * n, *ev[gi], o_); n += 1
    o += ["s_mov_b64 exec, 1", f"ds_write_b16_d16_hi v{XPAD}, v{EX+3} offset:{OFF_O+4096}", "s_mov_b64 exec, -1", f"s_branch L_xd{tag}", f"L_xo{tag}:"]
    o += [f"ds_read_b128 v[{DP+12}:{DP+15}], v{XR} offset:{512+3072}"] + mask("0xaaaaaaaa") + ["s_waitcnt lgkmcnt(0)"]
    o += [f"v_add_f32 v{DK+12+k}, v{DK+12+k}, v{DP+12+k}" for k in range(4)]
    o += [f"v_cndmask_b32 v{DP}, v{DK+12}, v{DK+13}, s[28:29]", f"v_cndmask_b32 v{DP+1}, v{DK+14}, v{DK+15}, s[28:29]"]
    n = 0
    for gi in range(2):
        for o_ in range(2):
            o += half(EX + 4 * n, *od[gi], o_); n += 1
    o += [f"L_xd{tag}:", f"ds_write_b32 v{XFL}, v{XONE} offset:64"]
    return [o]

def flag_zero():
    return [[f"v_lshlrev_b32 v{VT1}, 2, v0", f"v_mov_b32 v{VT1+1}, 0", f"v_add_u32 v{VT1}, {L_FLAG}, v{VT1}", f"ds_write_b32 v{VT1}, v{VT1+1}"]]

class LQ:
    def __init__(self, A): self.A = A; self.q = []
    def emit(self, items, tag=None):
        maybe0 = any(isinstance(it, str) and "s_cselect_b64" in it for it in items)
        for it in items:
            if maybe0 and isinstance(it, str):
                self.A(it); continue
            if isinstance(it, tuple):
                if it[0] == "tag": self.q[-1] = it[1]
                elif it[0] == "wait": self.wait(it[1])
                elif it[0] == "nods": self.A(it[1])
                continue
            self.A(it)
            if it.strip().startswith("ds_"): self.q.append(tag)
            if "lgkmcnt(0)" in it: self.q = []
    def wait(self, tag):
        idx = max((k for k, t in enumerate(self.q) if t == tag), default=-1)
        if idx < 0: return
        n = min(len(self.q) - 1 - idx, 15)
        self.A(f"s_waitcnt lgkmcnt({n})")
        self.q = self.q[len(self.q) - n:] if n else []

def spread(atoms, g0, g1):
    pts = [(g, p) for g in range(g0, g1) for p in range(2)]
    tot = sum(len(a_) for a_ in atoms); out = {p: [] for p in pts}; acc = 0
    for a_ in atoms:
        out[pts[min(len(pts) - 1, acc * len(pts) // tot)]].append(a_); acc += len(a_)
    return out

VXO, VWO, VXO2 = 1, 2, 3
VXO3, VXO4 = 242, 243
VXR, VTR = 4, 8
VONE, VHO1, VB1 = 16, 18, 19
VCW, VCR, VSO = 20, 21, 22
VT1 = 28
NR = 3
W1, X1, ACC1, CS = 32, 56, 80, 144
HI = 152
GT, PK, SG = 164, 180, 188
EA, EB = 192, 196
VS, K1r, K3r = 212, 214, 216

def wave_flag(soff, vt):
    return [f"v_mov_b32 v{vt}, 0", f"v_mov_b32 v{vt+1}, s76", "s_mov_b64 exec, 1",
            f"buffer_store_dword v{vt+1}, v{vt}, s[12:15], {soff} offen {SC}", "s_mov_b64 exec, -1"]

def lds_wait(A, name, vaddr, off, vt):
    A(f"""
    {name}:
    ds_read_b32 v{vt}, v{vaddr} offset:{off}
    s_waitcnt lgkmcnt(0)
    v_readfirstlane_b32 s28, v{vt}
    s_cmp_eq_u32 s28, 1
    s_cbranch_scc0 {name}
    """)

def dma_setup(A):
    VT = VT1
    A(f"""
    v_lshrrev_b32 v{VT}, 3, v0
    v_and_b32 v{VT+1}, 7, v0
    v_lshrrev_b32 v{VT+2}, 4, v0
    v_xor_b32 v{VT+3}, v{VT+2}, v{VT+1}
    v_lshlrev_b32 v{VXO}, 10, v{VT}
    v_lshl_add_u32 v{VXO}, v{VT+3}, 4, v{VXO}
    v_xor_b32 v{VXO2}, 64, v{VXO}
    v_add_u32 v{VXO2}, 8192, v{VXO2}
    v_and_b32 v{VT+3}, 15, v0
    v_lshlrev_b32 v{VT}, 2, v{VT+2}
    v_xor_b32 v{VT+3}, v{VT+3}, v{VT}
    v_mul_u32_u24 v{VWO}, 3584, v{VT+2}
    v_lshl_add_u32 v{VWO}, v{VT+3}, 4, v{VWO}
    s_lshl_b32 s25, s21, 17
    s_lshl_b32 s28, s39, 15
    s_add_u32 s25, s25, s28
    s_mul_i32 s26, s39, {16*3584}
    s_lshl_b32 s28, s22, 8
    s_add_u32 s26, s26, s28
    s_lshl_b32 s27, s39, 12
    """)
    if KR:
        A(f"""
        v_add_u32 v{VXO3}, 16384, v{VXO}
        v_add_u32 v{VXO4}, 16384, v{VXO2}
        s_and_b32 s3, s24, 3
        s_mul_i32 s3, s3, {env("KRB", 3)}
        s_mul_i32 s28, s77, {env("KRN", 1)}
        s_add_u32 s3, s3, s28
        s_lshl_b32 s3, s3, 7
        """)
    if MIX:
        A(f"""
        v_and_b32 v{VT+3}, 8, v{VT+3}
        v_lshl_add_u32 v{VWO}, v{VT+3}, 4, v{VWO}
        s_and_b32 s28, s22, 1
        s_lshl_b32 s28, s28, 7
        s_sub_u32 s26, s26, s28
        """)

KORD = [int(x) for x in os.environ.get("KORD", "0,1,2,3,4,5,6,7").split(",")]
def g1_dma(kc, part):
    st = (kc % NS) * STAGE
    kc = KORD[kc]
    if KR:
        return [f"s_add_u32 s37, s3, {128*kc}", "s_and_b32 s37, s37, 0x380", f"s_add_u32 m0, s27, {st + part*1024}",
                "s_add_u32 s31, s25, s37",
                f"buffer_load_dwordx4 v{[VXO, VXO2, 13, 14][part] if False else (VXO if part % 2 == 0 else VXO2)}, s[4:7], s31 offen lds" if part < 2 else
                f"buffer_load_dwordx4 v{VXO3 if part % 2 == 0 else VXO4}, s[4:7], s31 offen lds",
                f"s_mul_i32 s37, s37, 1792", f"s_add_u32 m0, s27, {st + 16384 + part*1024}", "s_add_u32 s37, s37, s26", f"s_add_u32 s37, s37, {4*part*3584}",
                f"buffer_load_dwordx4 v{VWO}, s[8:11], s37 offen lds"]
    return [f"s_add_u32 m0, s27, {st + part*1024}", f"s_add_u32 s31, s25, {128*kc + (part//2)*16384}",
            f"buffer_load_dwordx4 v{VXO if part % 2 == 0 else VXO2}, s[4:7], s31 offen lds",
            f"s_add_u32 m0, s27, {st + 16384 + part*1024}", f"s_add_u32 s37, s26, {(64*kc + 4*part)*3584}",
            f"buffer_load_dwordx4 v{VWO}, s[8:11], s37 offen lds"]

def c_setup(A):
    VT = VT1
    A(f"""
    v_and_b32 v{VT}, 31, v0
    v_lshrrev_b32 v{VT+1}, 5, v0
    v_bfe_u32 v{VT+2}, v0, 1, 3
    v_xor_b32 v{VT+2}, v{VT+2}, v{VT+1}
    s_lshl_b32 s31, s34, 1
    v_xor_b32 v{VT+2}, s31, v{VT+2}
    v_lshlrev_b32 v{VXR}, 7, v{VT}
    v_lshl_add_u32 v{VXR}, v{VT+2}, 4, v{VXR}
    s_lshl_b32 s28, s34, 13
    v_add_u32 v{VXR}, s28, v{VXR}
    v_xor_b32 v{VXR+1}, 32, v{VXR}
    v_xor_b32 v{VXR+2}, 64, v{VXR}
    v_xor_b32 v{VXR+3}, 96, v{VXR}
    v_lshlrev_b32 v{VSO}, 3, v0
    v_bfe_u32 v{VT+2}, v0, 2, 2
    v_lshl_add_u32 v{VTR}, v{VT+1}, 3, v{VT+2}
    v_lshlrev_b32 v{VTR}, 8, v{VTR}
    v_bfe_u32 v{VT+3}, v0, 4, 1
    v_lshl_add_u32 v{VTR}, v{VT+3}, 5, v{VTR}
    v_and_b32 v{VT+3}, 3, v0
    v_lshl_add_u32 v{VTR}, v{VT+3}, 3, v{VTR}
    s_lshl_b32 s31, s35, 1
    v_xor_b32 v{VT+2}, s31, v{VT+2}
    v_lshl_add_u32 v{VTR}, v{VT+2}, 6, v{VTR}
    s_lshl_b32 s31, s34, 12
    s_add_u32 s31, s31, 16384
    v_add_u32 v{VTR}, s31, v{VTR}
    """)
    for i in range(4):
        for ft in range(2):
            if i == 0 and ft == 0: continue
            A(f"v_xor_b32 v{VTR+2*i+ft}, {i*4096 + ft*64}, v{VTR}")
    A(f"""
    v_mov_b32 v{VONE}, 0x3f803f80
    v_mov_b32 v{VONE+1}, 0x3f803f80
    v_lshlrev_b32 v{VHO1}, 4, v0
    s_lshl_b32 s33, s21, 1
    s_add_u32 s33, s33, s34
    s_lshl_b32 s36, s33, 9
    s_add_u32 s36, s36, {WS_STAT}
    s_mul_i32 s32, s33, {2*112*1024}
    s_lshl_b32 s28, s22, 1
    s_add_u32 s28, s28, s35
    """)
    if MIX:
        A("""
        s_add_u32 s28, s28, s35
        s_and_b32 s29, s22, 1
        s_sub_u32 s28, s28, s29
        """)
    A(f"""
    s_lshl_b32 s29, s28, 12
    s_add_u32 s32, s32, s29
    s_add_u32 s32, s32, {WS_HF}
    s_add_u32 s38, s32, {112*1024}
    """)
    if HP:
        A(f"""
        s_mul_i32 s29, s28, 37
        s_lshr_b32 s29, s29, 8
        s_lshl_b32 s33, s33, 2
        s_add_u32 s33, s33, s29
        s_lshl_b32 s33, s33, 7
        s_mul_i32 s29, s29, 7
        s_sub_u32 s29, s28, s29
        s_lshl_b32 s29, s29, 2
        s_add_u32 s33, s33, s29
        s_add_u32 s33, s33, {WS_FLH}
        """)
    else:
        A(f"""
        s_lshl_b32 s33, s33, 5
        s_add_u32 s33, s33, s28
        s_lshl_b32 s33, s33, 7
        s_add_u32 s33, s33, {WS_FLH}
        """)
    A(f"""
    s_lshl_b32 s29, s20, 8
    v_lshl_add_u32 v{VCW}, v0, 2, s29
    v_add_u32 v{VCW}, {L_CS}, v{VCW}
    v_xor_b32 v{VCR}, 256, v{VCW}
    """)
    srd(A, 16, "s46", "s47", 3584)
    A(f"""
    v_mov_b32 v{VB1}, 0
    v_lshlrev_b32 v{VT1}, 1, v0
    s_lshl_b32 s28, s28, 7
    buffer_load_short_d16_hi v{VB1}, v{VT1}, s[16:19], s28 offen
    """)
    for k in range(20): A(f"v_mov_b32 v{EA+k}, 0")
    for k in range(12): A(f"v_add_u32 v{HI+k}, 0x10000, v{VXR+k}")

def c_reads(g):
    kc, i = divmod(g, 4)
    st = kc % NS
    b = (VXR if st < 2 else HI); off = (st % 2) * STAGE
    sl = g % NR
    tr = lambda ft, sec: f"ds_read_b64_tr_b16 v[{W1+8*sl+4*ft+2*sec}:{W1+8*sl+4*ft+2*sec+1}], v{b+4+2*i+ft} offset:{off + sec*1024}"
    xr = lambda tt: f"ds_read_b128 v[{X1+8*sl+4*tt}:{X1+8*sl+4*tt+3}], v{b+i} offset:{off + tt*4096}"
    return [xr(0), tr(0, 0), tr(0, 1), tr(1, 0), tr(1, 1), xr(1)]

def gen_c1(A):
    VT = VT1
    dma_setup(A)
    A(f"""
    s_and_b32 s34, s20, 1
    s_lshr_b32 s35, s20, 1
    s_waitcnt lgkmcnt(0)
    s_add_u32 s42, s42, {WSOFF}
    s_addc_u32 s43, s43, 0
    s_load_dword s76, s[42:43], {WS_EPOCH}
    """)
    vm = VMQ()
    A.st("ka")
    srd(A, 4, "s40", "s41", 2 << 20)
    srd(A, 8, "s44", "s45", 512 * 3584)
    srd(A, 12, "s42", "s43", WS_USED)
    CSF = env("CSF", 0)
    if CSF: c_setup(A); vm.note("b1")
    if env("PFAT", 1) == -1 and OPT_PF: coop_prefetch(A, VT); vm.note("pf", 2)
    for kc in range(NC0):
        for part in range(4): A.extend(g1_dma(kc, part))
        vm.note(kc, 8)
        A.st(f"i{kc}")
        if kc == env("BP", 1): A("s_barrier")
        if kc == 0 and not CSF:
            c_setup(A); vm.note("b1")
        if kc == env("PFAT", 2) and OPT_PF == 1: coop_prefetch(A, VT); vm.note("pf", 2)
        if kc == env("PFAT", 2) and OPT_PF == 2: coop_prefetch2(A, VT); vm.note("pf", 3)
    TW = env("TW", 4)
    if TW:
        A(f"v_lshlrev_b32 v{VT+2}, 20, v0")
        if TW & 1: A("s_mov_b64 exec, 3"); A(f"global_load_dword v{VDUM}, v{VT+2}, s[52:53]"); vm.note("tw")
        if TW & 2: A("s_mov_b64 exec, 1"); A(f"buffer_load_dword v{VDUM}, v{VT+2}, s[12:15], s38 offen"); vm.note("tw")
        if TW & 4: A("s_mov_b64 exec, 1"); A(f"global_load_dword v{VDUM}, v{VT+2}, s[50:51]"); vm.note("tw")
        A("s_mov_b64 exec, -1")
    A.extend(ya_prefill(VT, VT + 1, PK)); vm.note("pre", 2)
    hpre = [f"buffer_store_dwordx4 v[{PK}:{PK+3}], v{VHO1}, s[12:15], s{32 if n < 4 else 38} offen offset:{(n%4)*1024} {SC}" for n in range(8)]
    HPRE = env("HPRE", 0)
    if HPRE == 1: A.extend(hpre); vm.note(2, 8)
    w2_setup(A, VT)
    mpf = [f"s_xor_b32 s28, s2, {env('MPX', 0)}", "s_lshl_b32 s28, s28, 2", "s_add_u32 s28, s28, s39", "s_lshl_b32 s28, s28, 11", f"v_lshlrev_b32 v{VT+2}, 7, v0", f"s_mov_b64 exec, {os.environ.get('MPM', '0xffff')}",
           f"buffer_load_dword v{VDUM}, v{VT+2}, s[16:19], s28 offen {os.environ.get('MPFL', '')}", "s_mov_b64 exec, -1"]
    MPG = env("MPG", 5)
    if MPG == -1: A.extend(mpf); vm.note("mpf")
    A.st("pre")
    A(vm.wait(0)[0] + " lgkmcnt(0)"); A.st("kg"); A("s_barrier")
    A.st("b0")
    T = GT
    lq = LQ(A)
    lq.emit(c_reads(0), 0); lq.emit(c_reads(1), 1)
    mktag(A)
    def big(g, tt, ft):
        sl = g % NR; c = ACC1 + 32 * tt + 16 * ft
        cin = "0" if g == 0 else f"v[{c}:{c+15}]"
        return f"v_mfma_f32_32x32x16_bf16 v[{c}:{c+15}], v[{W1+8*sl+4*ft}:{W1+8*sl+4*ft+3}], v[{X1+8*sl+4*tt}:{X1+8*sl+4*tt+3}], {cin}"
    for g in range(32):
        kc, i = divmod(g, 4); w = W1 + 8 * (g % NR)
        m = lambda d, b_, z: f"v_mfma_f32_4x4x4_16b_bf16 v[{d}:{d+3}], v[{VONE}:{VONE+1}], v[{b_}:{b_+1}], " + ("0" if z else f"v[{d}:{d+3}]")
        o1, o2 = [], []
        if i < 2 and False: pass
        if i in (0, 2) and g < 28 or g in (28, 29):
            o1 = [m(CS, w, g == 0), m(CS + 4, w + 4, g == 0)]; o2 = [m(CS, w + 2, False), m(CS + 4, w + 6, False)]
        A.st(f"g{g}")
        gn = g + 2
        rd = c_reads(PERM(gn))[:] if gn < 32 else []
        rd = c_reads_slot(gn) if gn < 32 else []
        x1, x2 = [], []
        if i == 2 and kc + 1 < 8: x1 += vm.wait(kc + 1) + ["s_barrier"]
        if g == 30:
            x1 += [f"v_permlane32_swap_b32 v{CS}, v{CS+4}", f"v_add_f32 v{CS}, v{CS}, v{CS+4}", f"ds_write_b32 v{VCW}, v{CS}",
                   "s_waitcnt lgkmcnt(0)", "s_barrier", f"ds_read_b32 v{T+2}, v{VCR}"][:None if not NB8 else 3]
            if NB8:
                x1 += ["s_lshl_b32 s28, s20, 2", f"s_add_u32 s28, s28, {L_FLAG+128}", f"v_mov_b32 v{T}, s28", f"v_mov_b32 v{T+1}, 1",
                       f"ds_write_b32 v{T}, v{T+1}", f"v_xor_b32 v{T}, 4, v{T}"]
        if g == STATG: x2 += [f"buffer_load_dwordx2 v[{SG}:{SG+1}], v{VSO}, s[12:15], s36 offen {SC}"]; vm.note("sg")
        if EPE and g == 23: x2 += ep_early(VT)[:9]
        if EPE and g == 24: x2 += ep_early(VT)[9:]; vm.note("ep", 2)
        if g == MPG: x2 += mpf; vm.note("mpf")
        if g == env("MPG2", -5): x2 += ["s_xor_b32 s28, s2, 3"] + mpf[1:]; vm.note("mpf")
        WM = env("WARM", 0)
        if WM and g == env("WARMG", 10):
            x2 += [f"v_lshlrev_b32 v{VT+2}, 20, v0", f"v_lshlrev_b32 v{VT+3}, 7, v0"]
            if WM & 1: x2 += ["s_mov_b64 exec, 0x3fff", f"buffer_load_dword v{VDUM}, v{VT+2}, s[12:15], 0 offen"]; vm.note("wm")
            if WM & 2: x2 += ["s_mov_b64 exec, 3", f"global_load_dword v{VDUM}, v{VT+2}, s[52:53]"]; vm.note("wm")
            if WM & 4: x2 += ["s_mov_b64 exec, 0xff", f"global_load_dword v{VDUM}, v{VT+3}, s[50:51]"]; vm.note("wm")
            x2 += ["s_mov_b64 exec, -1"]
        if HPRE >= 10 and HPRE <= g < HPRE + 8: x2 += [hpre[g - HPRE]]; vm.note("hp")
        if HPRE == 2 and g == 11:
            x2 += [f"v_and_b32 v{VT+2}, 31, v0", f"v_lshlrev_b32 v{VT+2}, 7, v{VT+2}", "s_mov_b64 exec, 0xffffffff", "s_mov_b32 exec_hi, 0",
                   f"buffer_load_dword v{VDUM}, v{VT+2}, s[12:15], s32 offen", f"buffer_load_dword v{VDUM}, v{VT+2}, s[12:15], s38 offen", "s_mov_b64 exec, -1"]; vm.note("hp", 2)
        if g in PFG:
            n_ = 128 // len(PFG); k_ = PFG.index(g)
            x2 += ["s_lshl_b32 s28, s24, 2", "s_add_u32 s28, s28, s39", "s_lshl_b32 s28, s28, 14", f"s_add_u32 s28, s28, {k_*n_*128}", f"v_lshlrev_b32 v{VT+2}, 7, v0"]
            if n_ < 64: x2 += [f"s_mov_b32 exec_lo, {hex((1 << n_) - 1)}", "s_mov_b32 exec_hi, 0"]
            x2 += [f"buffer_load_dword v{VDUM}, v{VT+2}, s[16:19], s28 offen", "s_mov_b64 exec, -1"]; vm.note("l2")
        if g == env("YFG", 16) - 1: x2 += yflag_off()
        if g == env("YFG", 16): x2 += ["s_waitcnt vmcnt(0)"] + wave_flag("s28", VT); vm.q.clear(); vm.note("yf")
        lq.wait(g)
        A(big(g, 0, 0))
        if i == 2: A.st(f"pb{kc+1}")
        lq.emit(x1)
        if i == 2: A.st(f"ab{kc+1}")
        lq.emit(rd[:2], gn)
        A(big(g, 0, 1)); lq.emit(rd[2:4], gn); A.extend(o1)
        A(big(g, 1, 0)); lq.emit(rd[4:], gn)
        A(big(g, 1, 1)); lq.emit(x2); A.extend(o2)
    A.st("loop")
    if NB8:
        lds_wait(A, "L_c_cs", T, 0, T + 1)
        A(f"ds_read_b32 v{T+2}, v{VCR}")
    A.extend(vm.wait("sg", "b1"))
    A(f"""
    v_cmp_ne_u32 vcc, s76, v{SG+1}
    s_cbranch_vccz L_g1_sok
    s_mov_b32 s30, 0
    L_g1_spoll:
    buffer_load_dwordx2 v[{SG}:{SG+1}], v{VSO}, s[12:15], s36 offen {SC}
    s_add_u32 s30, s30, 1
    s_waitcnt vmcnt(0)
    v_cmp_ne_u32 vcc, s76, v{SG+1}
    s_cmp_gt_u32 s30, {SPIN}
    s_cbranch_scc1 L_g1_sok
    s_cbranch_vccnz L_g1_spoll
    L_g1_sok:
    v_mov_b32 v{SG+1}, v{SG}
    s_mov_b32 s28, -1
    s_mov_b32 s29, 0
    v_permlane32_swap_b32 v{SG}, v{SG+1}
    s_waitcnt lgkmcnt(0)
    v_add_f32 v{T+2}, v{T+2}, v{CS}
    """)
    l1 = []
    for tt in range(2):
        l1 += [f"v_and_b32 v{VS+tt}, 0xffff0000, v{SG+tt}", f"v_and_b32 v{T+8+tt}, 0xffff, v{SG+tt}", f"v_rcp_f32 v{T+6+tt}, v{VS+tt}",
               f"v_lshl_or_b32 v{T+8+tt}, v{T+8+tt}, 16, v{T+8+tt}",
               f"v_cndmask_b32 v{EB+8*tt}, 0, v{T+8+tt}, s[28:29]", f"v_cndmask_b32 v{EB+8*tt+1}, 0, v{SG+tt}, s[28:29]",
               f"v_cndmask_b32 v{EB+8*tt+4}, v{T+8+tt}, 0, s[28:29]", f"v_cndmask_b32 v{EB+8*tt+5}, v{SG+tt}, 0, s[28:29]"]
    l2 = [f"v_and_b32 v{T+3}, 0xffff0000, v{T+2}", f"v_sub_f32 v{T+3}, v{T+2}, v{T+3}", f"v_lshrrev_b32 v{T+2}, 16, v{T+2}",
          f"v_and_b32 v{T+4}, 0xffff0000, v{T+3}", f"v_sub_f32 v{T+5}, v{T+3}, v{T+4}", f"v_or_b32 v{EA}, v{T+2}, v{T+4}",
          f"v_lshrrev_b32 v{T+5}, 16, v{T+5}", f"v_or_b32 v{EA+1}, v{T+5}, v{VB1}"]
    A.extend(zipm(l1, l2))
    l3 = []
    for tt in range(2):
        l3.append([f"v_fma_f32 v{T+10+tt}, -v{VS+tt}, v{T+6+tt}, 1.0", f"v_fma_f32 v{T+6+tt}, v{T+10+tt}, v{T+6+tt}, v{T+6+tt}",
                   f"v_mul_f32 v{K1r+tt}, {hex(f2u(GC1))}, v{T+6+tt}", f"v_mul_f32 v{T+10+tt}, v{T+6+tt}, v{T+6+tt}",
                   f"v_mul_f32 v{K3r+tt}, {hex(f2u(GC2))}, v{T+6+tt}", f"v_mul_f32 v{K3r+tt}, v{K3r+tt}, v{T+10+tt}"])
    l3 = zipm(*l3)
    for tt in range(2):
        for ft in range(2):
            c = ACC1 + 32 * tt + 16 * ft
            A(f"v_mfma_f32_32x32x16_bf16 v[{c}:{c+15}], v[{EA}:{EA+3}], v[{EB+8*tt+4*ft}:{EB+8*tt+4*ft+3}], v[{c}:{c+15}]")
            A.extend(l3[3 * (2 * tt + ft):3 * (2 * tt + ft) + 3])
    A.st("gstart")
    for n in range(8):
        tt = n // 4
        if n == env("PGN", 99): A("s_setprio 2")
        c0 = ACC1 + 8 * n
        t0 = GT + 8 * (n % 2)
        if GPK == 1 and n == NPK0:
            A(f"""
            v_mov_b32 v{VT}, {L_FLAG+80}
            L_c_km:
            ds_read_b128 v[{EA}:{EA+3}], v{VT}
            s_waitcnt lgkmcnt(0)
            v_and_b32 v{EA}, v{EA}, v{EA+1}
            v_and_b32 v{EA+2}, v{EA+2}, v{EA+3}
            v_and_b32 v{EA}, v{EA}, v{EA+2}
            s_nop 0
            v_readfirstlane_b32 s28, v{EA}
            s_cmp_eq_u32 s28, 1
            s_cbranch_scc0 L_c_km
            """)
        if GPK == 3:
            P = lambda x: f"v[{x}:{x+1}]"
            DC = 220 + 6 * tt
            if n % 4 == 0:
                for j, src in enumerate((K1r + tt, K1r + tt, K3r + tt, K3r + tt, VS + tt, VS + tt)): A(f"v_mov_b32 v{DC+j}, v{src}")
            for k in range(0, 8, 2): A(f"v_pk_mul_f32 {P(t0+k)}, {P(c0+k)}, {P(c0+k)}")
            for k in range(0, 8, 2): A(f"v_pk_fma_f32 {P(t0+k)}, {P(t0+k)}, {P(DC+2)}, {P(DC)}")
            for k in range(0, 8, 2): A(f"v_pk_mul_f32 {P(t0+k)}, {P(t0+k)}, {P(c0+k)}")
            for k in range(8): A(f"v_exp_f32 v{t0+k}, v{t0+k}")
            for k in range(0, 8, 2): A(f"v_pk_fma_f32 {P(t0+k)}, {P(t0+k)}, {P(DC+4)}, {P(DC+4)}")
            for k in range(8): A(f"v_rcp_f32 v{t0+k}, v{t0+k}")
            for k in range(0, 8, 2): A(f"v_pk_mul_f32 {P(c0+k)}, {P(c0+k)}, {P(t0+k)}")
        elif GPK == 2 or (GPK and n >= NPK0):
            P = lambda x: f"v[{x}:{x+1}]"
            sel = f"op_sel:[0,{tt},{tt}] op_sel_hi:[1,{tt},{tt}]"
            for k in range(0, 8, 2): A(f"v_pk_mul_f32 {P(t0+k)}, {P(c0+k)}, {P(c0+k)}")
            for k in range(0, 8, 2): A(f"v_pk_fma_f32 {P(t0+k)}, {P(t0+k)}, {P(K3r)}, {P(K1r)} {sel}")
            for k in range(0, 8, 2): A(f"v_pk_mul_f32 {P(t0+k)}, {P(t0+k)}, {P(c0+k)}")
            for k in range(8): A(f"v_exp_f32 v{t0+k}, v{t0+k}")
            for k in range(0, 8, 2): A(f"v_pk_fma_f32 {P(t0+k)}, {P(t0+k)}, {P(VS)}, {P(VS)} {sel}")
            for k in range(8): A(f"v_rcp_f32 v{t0+k}, v{t0+k}")
            for k in range(0, 8, 2): A(f"v_pk_mul_f32 {P(c0+k)}, {P(c0+k)}, {P(t0+k)}")
        else:
            for k in range(8): A(f"v_mul_f32 v{t0+k}, v{c0+k}, v{c0+k}")
            for k in range(8): A(f"v_fma_f32 v{t0+k}, v{t0+k}, v{K3r+tt}, v{K1r+tt}")
            for k in range(8): A(f"v_mul_f32 v{t0+k}, v{t0+k}, v{c0+k}")
            for k in range(8): A(f"v_exp_f32 v{t0+k}, v{t0+k}")
            for k in range(8): A(f"v_fma_f32 v{t0+k}, v{t0+k}, v{VS+tt}, v{VS+tt}")
            for k in range(8): A(f"v_rcp_f32 v{t0+k}, v{t0+k}")
            for k in range(8): A(f"v_mul_f32 v{c0+k}, v{c0+k}, v{t0+k}")
        pk = PK + 4 * (n % 2)
        for k in range(4): A(f"v_cvt_pk_bf16_f32 v{pk+k}, v{c0+2*k}, v{c0+2*k+1}")
        A(f"buffer_store_dwordx4 v[{pk}:{pk+3}], v{VHO1}, s[12:15], s{32 if tt == 0 else 38} offen offset:{(n%4)*1024} {SCH}")
        if env("DBL", 0): A(f"buffer_store_dwordx4 v[{pk}:{pk+3}], v{VHO1}, s[12:15], s{32 if tt == 0 else 38} offen offset:{(n%4)*1024}")
    A.st("gend")
    A("s_mov_b32 s37, 0")
    A("s_branch L_gemm2")

def PERM(g): return g
def c_reads_slot(g):
    if g < 28: return c_reads(g)
    i = [0, 2, 1, 3][g - 28]
    r = c_reads(28 + i)
    kc = 7; st = kc % NS; b = HI; off = (st % 2) * STAGE; sl = g % NR
    tr = lambda ft, sec: f"ds_read_b64_tr_b16 v[{W1+8*sl+4*ft+2*sec}:{W1+8*sl+4*ft+2*sec+1}], v{b+4+2*i+ft} offset:{off + sec*1024}"
    xr = lambda tt: f"ds_read_b128 v[{X1+8*sl+4*tt}:{X1+8*sl+4*tt+3}], v{b+i} offset:{off + tt*4096}"
    return [xr(0), tr(0, 0), tr(0, 1), tr(1, 0), tr(1, 1), xr(1)]

def yflag_off():
    return ["s_lshr_b32 s28, s39, 1", "s_lshl_b32 s29, s2, 1", "s_add_u32 s28, s28, s29", "s_and_b32 s29, s39, 1", "s_lshl_b32 s29, s29, 9",
            "s_add_u32 s28, s28, s29", f"s_lshl_b32 s28, s28, {FS}", f"s_add_u32 s28, s28, {WS_FLY}"]
def ring_ready(vt):
    return ["s_lshl_b32 s28, s39, 2", f"s_add_u32 s28, s28, {L_FLAG+16}", f"v_mov_b32 v{vt}, s28", f"v_mov_b32 v{vt+1}, 1", f"ds_write_b32 v{vt}, v{vt+1}"]

def gen_h1(A):
    VT = VT1
    vm = VMQ()
    vm.note("prm", 8)
    A(f"s_add_u32 s42, s42, {WSOFF}\ns_addc_u32 s43, s43, 0\ns_load_dword s76, s[42:43], {WS_EPOCH}")
    srd(A, 4, "s40", "s41", 2 << 20)
    srd(A, 8, "s44", "s45", 512 * 3584)
    srd(A, 12, "s42", "s43", WS_USED)
    if env("CPF", 1): vm.note("cpf")
    dma_setup(A)
    w2_setup(A, VT)
    if env("MPF", 0):
        A(f"""
        s_lshl_b32 s28, s2, 2
        s_add_u32 s28, s28, s39
        s_lshl_b32 s28, s28, 11
        v_lshlrev_b32 v{VT+2}, 7, v0
        s_mov_b64 exec, 0xffff
        buffer_load_dword v{VDUM}, v{VT+2}, s[16:19], s28 offen
        s_mov_b64 exec, -1
        """)
    if env("TLBW", 0):
        A(f"""
        v_lshlrev_b32 v{VT+2}, {env("TLBS", 20)}, v0
        s_mov_b64 exec, {hex((1 << (WS_USED >> env("TLBS", 20))) - 1)}
        buffer_load_dword v{VDUM}, v{VT+2}, s[12:15], 0 offen
        s_mov_b64 exec, 3
        buffer_load_dword v{VDUM}, v{VT+2}, s[16:19], 0 offen
        global_load_dword v{VDUM}, v{VT+2}, s[52:53]
        s_mov_b64 exec, 1
        global_load_dword v{VDUM}, v{VT+2}, s[50:51]
        s_mov_b64 exec, -1
        """)
        vm.note("tlb", 4)
    kg_waddr(A, L_VS, KWA); A.extend(kg_raddr(L_VS, KRA, VT))
    for a_ in flag_zero(): A.extend(a_)
    if env("BP", 1) >= 0: A("s_barrier")
    A.extend(tail_pre())
    A.st("pre")
    A.extend(vm.wait("prm"))
    A.st("prm")
    A.label("L_kgen_v")
    gen_kgen_v(A)
    A("s_cmp_eq_u32 s77, 7")
    A("s_cbranch_scc1 L_ln_H2")
    A.st("kg")
    A("s_waitcnt lgkmcnt(0)"); A("s_barrier")
    A.st("b0")
    mktag(A)
    UV0, UW = kgen_u_lists(0)
    UV = kgen_u_lists(L_VS)[0] if U6 else UV0
    ar_, mm_ = kg_atoms_m()
    wts = [2, 3, 3, 3, 3, 3]; cum = 0
    for k in range(7 if NB8 else 8):
        if U6 and k == 6:
            A.extend(UW)
            for a_ in ar_: A(a_[0])
            A.extend(ep_early(VT)); vm.note("ep", 2)
        elif NB8 and k == 6:
            if EPE: A.extend(ep_early(VT)); vm.note("ep", 2)
            for sl in range(env("F6N", 2)): A.extend(wdma(sl, sl))
            vm.note("f", 2 * env("F6N", 2))
        elif k <= 5:
            sl_ = UV[len(UV) * cum // sum(wts):len(UV) * (cum + wts[k]) // sum(wts)]; cum += wts[k]
            if k >= 1 or NC0 == 2:
                pcs = []
                for part in range(4):
                    dd = g1_dma(k + 2, part); pcs += [dd[:len(dd)//2], dd[len(dd)//2:]]
                vm.note(k + 2, 8)
                for q, dd in enumerate(pcs):
                    A.extend(dd); A.extend(sl_[len(sl_) * q // 8:len(sl_) * (q + 1) // 8])
            else: A.extend(sl_)
        else:
            for sl in range(4 * (k - 6), 4 * (k - 6) + 4): A.extend(wdma(sl, sl))
            vm.note("f", 8)
        A.st(f"pi{k+1}")
        A.extend(vm.wait(k + 1))
        A("s_barrier")
        A.st(f"ab{k+1}")
    if U6:
        A("s_waitcnt lgkmcnt(0)")
        for sl in range(8):
            A(mm_[sl][1]); A.extend(wdma(sl, sl))
    if NB8:
        if not U6:
            for sl in range(env("F6N", 2), 8): A.extend(wdma(sl, sl))
        A(f"""
        v_mov_b32 v{VT+2}, {L_FLAG+128}
        L_h_rd:
        ds_read_b128 v[32:35], v{VT+2}
        s_waitcnt lgkmcnt(0)
        v_and_b32 v32, v32, v33
        v_and_b32 v34, v34, v35
        v_and_b32 v32, v32, v34
        s_nop 0
        v_readfirstlane_b32 s28, v32
        s_cmp_eq_u32 s28, 1
        s_cbranch_scc0 L_h_rd
        """)
    A.st("loop")
    HT2 = env("HT2", 0)
    if not HT2 and not (U6 and env("FL8", 0)):
        for sl in range(8, 12): A.extend(wdma(sl, sl))
    if U6: A("s_branch L_h_tail2")
    A.label("L_h_tail")
    A(f"s_setprio {env('PRIOX', 0)}")
    lq = LQ(A)
    ar_, mm_ = kg_atoms_m()
    UE = env("UE", 0)
    if UE: A.extend(lnflag_load(36))
    A.st("t0")
    lq.emit(UW)
    A.st("t1")
    for a_ in ar_: lq.emit(a_)
    if GPK == 2:
        A("s_setprio 0")
        A("s_cmp_eq_u32 s77, 7")
        A("s_cbranch_scc1 L_h_gd2")
        A(f"""
        v_mov_b32 v{VT+2}, {L_FLAG+32}
        L_h_gd:
        s_sleep 1
        ds_read_b128 v[32:35], v{VT+2}
        s_waitcnt lgkmcnt(0)
        v_and_b32 v32, v32, v33
        v_and_b32 v34, v34, v35
        v_and_b32 v32, v32, v34
        s_nop 0
        v_readfirstlane_b32 s28, v32
        s_cmp_eq_u32 s28, 1
        s_cbranch_scc0 L_h_gd
        L_h_gd2:
        """)
        A.extend(lnflag_load(36))
    for a_ in mm_: lq.emit(a_)
    A.st("t2")
    if U6:
        A("s_nop 7"); A("s_nop 3")
        A.label("L_h_tail2")
    for a_ in kg_atoms_x1(): lq.emit(a_)
    A(f"ds_write_b32 v{XFL}, v{XONE} offset:80")
    HT3 = 1
    A(lnflag_load(154)[-1])
    A.st("t3")
    lds_wait(A, "L_h_x1", XFP, 80, 32)
    A.st("t4")
    lq.q = []
    if env("PX2", 0): A(f"s_setprio {env('PX2', 0)}")
    for a_ in kg_atoms_x2("g"): lq.emit(a_)
    A("s_setprio 0")
    if U6 and env("FL8", 0):
        A("s_cmp_eq_u32 s77, 7")
        A("s_cbranch_scc1 L_h_f8")
        A("s_waitcnt lgkmcnt(0)")
        for sl in range(8, 12): A.extend(wdma(sl, sl))
        A.label("L_h_f8")
    DF = env("DF", 0)
    if DF:
        A("s_waitcnt vmcnt(0)")
        if DF == 1: A.extend(ring_ready(VT))
        A("s_cmp_eq_u32 s77, 7")
        A("s_cbranch_scc1 L_h_dr2")
        A(f"""
        v_mov_b32 v{VT+2}, {L_FLAG+32}
        L_h_dr:
        s_sleep 1
        ds_read_b128 v[32:35], v{VT+2}
        s_waitcnt lgkmcnt(0)
        v_and_b32 v32, v32, v33
        v_and_b32 v34, v34, v35
        v_and_b32 v32, v32, v34
        s_nop 0
        v_readfirstlane_b32 s28, v32
        s_cmp_eq_u32 s28, 1
        s_cbranch_scc0 L_h_dr
        L_h_dr2:
        """)
    if not HT2 and not HT3 and GPK != 2: A.extend(lnflag_load(VT))
    A.st("ku")
    A(f"v_lshlrev_b32 v18, 4, v0")
    A("s_waitcnt vmcnt(0)")
    if UE: A("s_cmp_eq_u32 s37, 1"); A("s_cbranch_scc1 L_ut_no")
    RT = env("RT", 6)
    if RT:
        A(f"""
        s_mov_b32 s30, 0
        v_cmp_ne_u32 vcc, s76, v{LNF}
        s_cbranch_vccz L_rt_ok
        L_rt:
        s_sleep {PS}
        buffer_load_dword v{LNF}, v154, s[12:15], 0 offen {SC}
        s_add_u32 s30, s30, 1
        s_waitcnt vmcnt(0)
        v_cmp_ne_u32 vcc, s76, v{LNF}
        s_cmp_ge_u32 s30, {RT}
        s_cbranch_scc1 L_rt_ok
        s_cbranch_vccnz L_rt
        L_rt_ok:
        """)
    u_try(A, 18)
    if HT2:
        A("s_cmp_eq_u32 s77, 7")
        A("s_cbranch_scc1 L_h_nof")
        for sl in range(8, 12): A.extend(wdma(sl, sl))
        A("s_branch L_h_f")
        A.label("L_h_nof")
        A.extend(ring_ready(VT))
        A("s_waitcnt vmcnt(0)")
        A.label("L_h_f")
    else:
        A(f"ds_write_b32 v{XFL}, v{XONE} offset:16")
    A.st("gend")
    A("s_branch L_conv")
    A.label("L_ln_H2")
    A("s_waitcnt vmcnt(0) ; RESETSB")
    A("ds_write_b32 v5, v6")
    if EPE: A("s_waitcnt lgkmcnt(0)"); A.extend(ep_early(28))
    A.extend(UV0)
    A.extend(tail_pre())
    A(f"""
    v_mov_b32 v30, {L_FLAG+112+(64 if env('LNW', 0) or env("LVM", 50) else 0)}
    L_ln_hv:
    ds_read_b128 v[32:35], v30
    s_waitcnt lgkmcnt(0)
    v_and_b32 v32, v32, v33
    v_and_b32 v34, v34, v35
    v_and_b32 v32, v32, v34
    s_nop 0
    v_readfirstlane_b32 s28, v32
    s_cmp_eq_u32 s28, 1
    s_cbranch_scc0 L_ln_hv
    """)
    A("s_branch L_h_tail")

def gen_gemm1(A):
    A(f"""
    s_load_dwordx8 s[56:63], s[0:1], {KA['A_re']}
    s_load_dwordx8 s[64:71], s[0:1], {KA['C_re']}
    """)
    A("s_cmp_lt_u32 s20, 4")
    A("s_cbranch_scc1 L_g1_C")
    param_loads(A, VT1)
    if env("CPF", 1):
        A(f"""
        s_getpc_b64 s[28:29]
        L_pc0:
        s_sub_u32 s28, s28, L_pc0-{KNAME}
        s_subb_u32 s29, s29, 0
        s_lshl_b32 s30, s24, 2
        s_add_u32 s30, s30, s39
        s_mul_i32 s30, s30, 384
        v_lshl_add_u32 v{VT1+2}, v0, 7, s30
        v_min_u32 v{VT1+2}, L_exit-{KNAME}, v{VT1+2}
        s_mov_b64 exec, 7
        global_load_dword v{VDUM}, v{VT1+2}, s[28:29]
        s_mov_b64 exec, -1
        """)
    A("s_branch L_g1_H")
    A.label("L_g1_C")
    A("s_nop 0 ; RESETSB")
    gen_c1(A)
    A.label("L_g1_H")
    A("s_nop 0 ; RESETSB")
    gen_h1(A)


def gen_ln(A):
    Q, R, O, T = 16, 48, 80, 112
    A(f"""
    s_load_dwordx8 s[56:63], s[0:1], {KA['A_re']}
    s_load_dwordx8 s[64:71], s[0:1], {KA['C_re']}
    v_lshrrev_b32 v1, 3, v0
    v_and_b32 v2, 7, v0
    v_lshlrev_b32 v3, 10, v1
    v_lshl_add_u32 v3, v2, 4, v3
    v_lshlrev_b32 v4, 4, v0
    s_lshl_b32 s25, s21, 6
    s_lshl_b32 s28, s20, 3
    s_add_u32 s25, s25, s28
    s_lshl_b32 s36, s25, 3
    s_add_u32 s36, s36, {WS_STAT}
    s_lshl_b32 s25, s25, 10
    s_add_u32 s26, s25, 4096
    s_waitcnt lgkmcnt(0)
    s_add_u32 s42, s42, {WSOFF}
    s_addc_u32 s43, s43, 0
    s_load_dword s76, s[42:43], {WS_EPOCH}
    """)
    srd(A, 4, "s40", "s41", 2 << 20)
    for t in range(8): A(f"buffer_load_dwordx4 v[{R+4*t}:{R+4*t+3}], v4, s[4:7], s{25 + t//4} offen offset:{(t%4)*1024}")
    srd(A, 12, "s42", "s43", WS_USED)
    NLW = 0
    if LW1:
        srd(A, 8, "s44", "s45", 512 * 3584)
        A(f"""
        s_and_b32 s28, s24, 3
        s_lshl_b32 s28, s28, 3
        s_add_u32 s28, s28, s20
        s_mul_i32 s28, s28, 47
        s_and_b32 s29, s23, 1
        s_mul_i32 s29, s29, 1792
        s_add_u32 s29, s29, {192*3584}
        """)
        for j in range(3):
            A(f"""
            s_add_u32 s30, s28, {j*1504}
            v_add_u32 v{T}, s30, v0
            v_mul_u32_u24 v{T+1}, 0x4925, v{T}
            v_lshrrev_b32 v{T+1}, 18, v{T+1}
            v_mul_u32_u24 v{T+2}, 14, v{T+1}
            v_sub_u32 v{T}, v{T}, v{T+2}
            v_lshlrev_b32 v{T}, 7, v{T}
            v_mul_u32_u24 v{T+1}, 3584, v{T+1}
            v_add_u32 v{T}, v{T}, v{T+1}
            s_mov_b32 exec_hi, 0x7fff
            buffer_load_dword v{VDUM}, v{T}, s[8:11], s29 offen
            s_mov_b32 exec_hi, -1
            """)
        NLW = 3
    A(f"""
    v_mov_b32 v5, 0x3f803f80
    v_mov_b32 v14, 0x00003f80
    v_mov_b32 v15, 0x3f800000
    v_lshlrev_b32 v8, 3, v1
    """)
    S1, S2 = Q, Q + 8
    A("s_setprio 2")
    for t in range(8):
        A(f"s_waitcnt vmcnt({7 - t + NLW})")
        for k in range(4):
            r = R + 4 * t + k
            A(f"v_dot2_f32_bf16 v{S1+t}, v{r}, v5, {'0' if k == 0 else f'v{S1+t}'}")
            A(f"v_dot2_f32_bf16 v{S2+t}, v{r}, v{r}, {'0' if k == 0 else f'v{S2+t}'}")
    for r in range(4):
        for S in (S1, S2): A(f"v_permlane32_swap_b32 v{S+r}, v{S+r+4}")
    for r in range(4):
        for S in (S1, S2): A(f"v_add_f32 v{S+r}, v{S+r}, v{S+r+4}")
    for r in range(2):
        for S in (S1, S2): A(f"v_permlane16_swap_b32 v{S+r}, v{S+r+2}")
    for r in range(2):
        for S in (S1, S2): A(f"v_add_f32 v{S+r}, v{S+r}, v{S+r+2}")
    for r in range(2):
        for S in (S1, S2): A(f"v_add_f32_dpp v{S+r}, v{S+r}, v{S+r} row_ror:8 row_mask:0xf bank_mask:0xf")
    A.extend(mask("0xff00ff00"))
    A(f"""
    v_cndmask_b32 v6, v{S1}, v{S1+1}, s[28:29]
    v_cndmask_b32 v7, v{S2}, v{S2+1}, s[28:29]
    s_waitcnt lgkmcnt(0)
    """)
    mktag(A)
    A(f"""
    v_mov_b32 v11, s76
    v_add_f32_dpp v6, v6, v6 quad_perm:[1,0,3,2] row_mask:0xf bank_mask:0xf
    v_add_f32_dpp v7, v7, v7 quad_perm:[1,0,3,2] row_mask:0xf bank_mask:0xf
    v_add_f32_dpp v6, v6, v6 quad_perm:[2,3,0,1] row_mask:0xf bank_mask:0xf
    v_add_f32_dpp v7, v7, v7 quad_perm:[2,3,0,1] row_mask:0xf bank_mask:0xf
    v_add_f32_dpp v6, v6, v6 row_half_mirror row_mask:0xf bank_mask:0xf
    v_add_f32_dpp v7, v7, v7 row_half_mirror row_mask:0xf bank_mask:0xf
    v_mul_f32 v12, {hex(f2u(1/512))}, v6
    v_mul_f32 v13, {hex(f2u(1/512))}, v7
    v_fma_f32 v13, -v12, v12, v13
    v_max_f32 v13, 0, v13
    """)
    round_bf16(A, 13)
    A(f"v_add_f32 v13, {hex(f2u(1e-5))}, v13")
    round_bf16(A, 13)
    A(f"""
    v_sqrt_f32 v13, v13
    v_cvt_pk_bf16_f32 v10, -v12, v13
    s_mov_b32 exec_lo, 0x01010101
    s_mov_b32 exec_hi, 0x01010101
    buffer_store_dwordx2 v[10:11], v8, s[12:15], s36 offen {SC}
    s_mov_b64 exec, -1
    """)
    A.st("b0")
    A("s_setprio 0")
    param_loads(A, T)
    LPF = env("LPF", 0)
    if LPF:
        srd(A, 16, "s48", "s49", 1792 * 1024)
        A(f"""
        s_lshl_b32 s28, s21, 3
        s_add_u32 s28, s28, s20
        s_mul_i32 s28, s28, {56*128}
        v_min_u32 v{T+2}, 55, v0
        v_lshlrev_b32 v{T+2}, 7, v{T+2}
        buffer_load_dword v{VDUM}, v{T+2}, s[16:19], s28 offen
        """)
    A(f"""
    v_and_b32 v13, 0xffff0000, v10
    v_lshlrev_b32 v12, 16, v10
    v_rcp_f32 v5, v13
    s_nop 0
    v_fma_f32 v13, -v13, v5, 1.0
    v_fma_f32 v13, v13, v5, v5
    """)
    for t in range(8):
        A(f"v_readlane_b32 s{56+t}, v12, {8*t}")
        A(f"v_readlane_b32 s{64+t}, v13, {8*t}")
    A(f"""
    v_xor_b32 v5, s20, v2
    v_lshlrev_b32 v6, 10, v0
    v_lshl_add_u32 v6, v5, 4, v6
    """)

    for tp in range(4):
        t0, t1 = 2 * tp, 2 * tp + 1
        for k in range(4):
            for h in range(2):
                e = 2 * k + h
                A(f"v_dot2_f32_bf16 v{T+2*e}, v{R+4*t0+k}, v{14+h}, s{56+t0}")
                A(f"v_dot2_f32_bf16 v{T+2*e+1}, v{R+4*t1+k}, v{14+h}, s{56+t1}")
        if env("LNX", 0):
            for e in range(8): A(f"v_cvt_pk_bf16_f32 v{T+2*e+1}, v{T+2*e}, v{T+2*e+1}")
            for e in range(8):
                A(f"v_lshlrev_b32 v{T+2*e}, 16, v{T+2*e+1}")
                A(f"v_and_b32 v{T+2*e+1}, 0xffff0000, v{T+2*e+1}")
        for e in range(8): A(f"v_pk_mul_f32 v[{T+2*e}:{T+2*e+1}], v[{T+2*e}:{T+2*e+1}], s[{64+t0}:{64+t1}]")
        for e in range(8): A(f"v_cvt_pk_bf16_f32 v{O+4*e+tp}, v{T+2*e}, v{T+2*e+1}")
        if tp == env("LFP", 3):
            w2_setup(A, 28)
            LF = env("LF", 0)
            A("s_cmp_ge_u32 s20, 4")
            A("s_cbranch_scc1 L_ln_nofill")
            for sl in range(LF): A.extend(wdma(sl, sl))
            A.label("L_ln_nofill")
    for e in range(8): A(f"ds_write_b128 v6, v[{O+4*e}:{O+4*e+3}] offset:{e*128}")
    for a_ in flag_zero(): A.extend(a_)
    A.st("g8")
    A(f"""
    s_lshl_b32 s28, s20, 13
    v_lshlrev_b32 v6, 7, v1
    v_lshl_add_u32 v6, v2, 4, v6
    v_add_u32 v6, s28, v6
    v_lshlrev_b32 v7, {7 if XS else 12}, v1
    v_lshl_add_u32 v7, v2, 4, v7
    s_lshl_b32 s26, s20, {13 if XS else 18}
    s_mul_i32 s28, s21, {XS if XS else 128}
    s_add_u32 s26, s26, s28
    s_add_u32 s26, s26, {WS_XNT}
    s_lshl_b32 s33, s21, {FSL}
    s_add_u32 s33, s33, {WS_FLL}
    """)
    for i in range(8): A(f"v_xor_b32 v{8+i}, {16*i}, v6")
    A("s_waitcnt lgkmcnt(0)")
    A("s_barrier")
    for i in range(8): A(f"ds_read_b128 v[{192+4*i}:{192+4*i+3}], v{8+i} offset:{i*1024}")
    for i in range(8):
        A(f"s_waitcnt lgkmcnt({7-i})")
        A(f"s_add_u32 s25, s26, {i*(1024 if XS else 32768)}")
        A(f"buffer_store_dwordx4 v[{192+4*i}:{192+4*i+3}], v7, s[12:15], s25 offen {SC}")
    A.st("loop")
    A(f"""
    s_lshl_b32 s28, s20, 2
    s_add_u32 s28, s28, {L_FLAG+96}
    v_mov_b32 v5, s28
    v_mov_b32 v6, 1
    s_cmp_lt_u32 s20, 4
    s_cbranch_scc1 L_ln_C
    """)
    kg_waddr(A, L_VS, KWA); A.extend(kg_raddr(L_VS, KRA, 28))
    A(f"s_mov_b32 s33, {WS_DUMMY}")
    if env("LNW", 0):
        A("s_waitcnt vmcnt(0)")
        A("ds_write_b32 v5, v6")
        A("v_add_u32 v5, 64, v5")
    else:
        A("s_waitcnt vmcnt(8)")
    LVM = env("LVM", 50)
    if LVM:
        o = Asm(); gen_kgen_v(o)
        cut = len(o.lines) * LVM // 100
        A.extend(o.lines[:cut])
        A("s_waitcnt vmcnt(0)")
        A("ds_write_b32 v5, v6")
        A("v_add_u32 v5, 64, v5")
        A.extend(o.lines[cut:])
        A("s_branch L_ln_H2")
    else:
        A("s_branch L_kgen_v")
    A.label("L_ln_C")
    A.extend(ya_prefill(T + 2, T + 3, T + 4))
    A(f"""
    v_mov_b32 v30, {L_FLAG+96}
    s_waitcnt vmcnt(0)
    ds_write_b32 v5, v6
    """)
    A.extend(yflag_off()); A.extend(wave_flag("s28", 34))
    A(f"""
    L_ln_cs:
    ds_read_b128 v[36:39], v30
    ds_read_b128 v[40:43], v30 offset:16
    s_waitcnt lgkmcnt(0)
    v_and_b32 v36, v36, v37
    v_and_b32 v38, v38, v39
    v_and_b32 v40, v40, v41
    v_and_b32 v42, v42, v43
    v_and_b32 v36, v36, v38
    v_and_b32 v40, v40, v42
    v_and_b32 v36, v36, v40
    s_nop 0
    v_readfirstlane_b32 s28, v36
    s_cmp_eq_u32 s28, 1
    s_cbranch_scc0 L_ln_cs
    """)
    publish_flag(A, "s33", 32, "l", 0)
    A.st("gstart")
    A(f"s_mov_b32 s33, {WS_DUMMY}")
    if EPE: A.extend(ep_early(28))
    TH = env("TH", 0)
    for sl in range(12):
        A.extend(wdma(sl, sl))
        if TH: A(f"s_waitcnt vmcnt({TH})")
    A("s_waitcnt vmcnt(0)")
    A.st("l1")
    for sl in range(12): A.extend(w2tr(sl, sl))
    LR = env("LR", 0)
    if LR:
        A("s_waitcnt lgkmcnt(0)")
        for sl in range(LR): A.extend(wdma(sl, 12 + sl))
    A(f"""
    v_mov_b32 v28, {L_FLAG+16}
    L_ln_cw:
    ds_read_b128 v[32:35], v28
    s_waitcnt lgkmcnt(0)
    v_and_b32 v32, v32, v33
    v_and_b32 v34, v34, v35
    v_and_b32 v32, v32, v34
    s_nop 0
    v_readfirstlane_b32 s28, v32
    s_cmp_eq_u32 s28, 1
    s_cbranch_scc0 L_ln_cw
    """)
    A.st("l2")
    for sl in range(LR, 12): A.extend(wdma(sl, 12 + sl))
    A.st("l3")
    A(f"""
    s_lshl_b32 s28, s20, 8
    s_add_u32 s28, s28, s2
    s_cmp_lg_u32 s28, 255
    s_cbranch_scc1 L_nobump
    v_lshlrev_b32 v28, {FS+1}, v0
    s_mov_b32 s30, 0
    L_bump_poll:
    """)
    for k in range(4):
        A(f"s_mov_b32 s28, {WS_FLY + k*(128 << FS)}")
        A(f"buffer_load_dword v{32+k}, v28, s[12:15], s28 offen {SC}")
    A(f"""
    s_add_u32 s30, s30, 1
    s_waitcnt vmcnt(0)
    v_xor_b32 v32, s76, v32
    v_xor_b32 v33, s76, v33
    v_xor_b32 v34, s76, v34
    v_xor_b32 v35, s76, v35
    v_or3_b32 v32, v32, v33, v34
    v_or_b32 v32, v32, v35
    v_cmp_ne_u32 vcc, 0, v32
    s_cmp_gt_u32 s30, {SPIN}
    s_cbranch_scc1 L_bump_go
    s_cbranch_vccnz L_bump_poll
    L_bump_go:
    s_mov_b32 s28, {WS_EPOCH}
    """)
    A.extend(wave_flag("s28", 28))
    A.label("L_nobump")
    A("s_mov_b32 s37, 1")
    A("s_branch L_gemm2")


def final_addr(A):
    A(f"""
    v_lshrrev_b32 v1, 3, v0
    v_and_b32 v2, 7, v0
    v_lshlrev_b32 v{VOO}, 10, v1
    v_lshl_add_u32 v{VOO}, v2, 4, v{VOO}
    v_lshlrev_b32 v3, 4, v2
    s_lshl_b32 s33, s78, 6
    s_lshl_b32 s28, s20, 3
    s_add_u32 s33, s33, s28
    s_lshl_b32 s33, s33, 10
    s_lshl_b32 s34, s79, 7
    s_add_u32 s33, s33, s34
    """)
def ep_loads():
    o = Asm()
    srd(o, 8, "s50", "s51", 1024)
    o(f"buffer_load_dwordx4 v[{VX}:{VX+3}], v{VOO}, s[4:7], s33 offen")
    o(f"buffer_load_dwordx4 v[{VB2}:{VB2+3}], v3, s[8:11], s34 offen")
    return o.lines


def ep_early(vt):
    return [f"v_lshrrev_b32 v{vt}, 3, v0", f"v_and_b32 v{vt+1}, 7, v0", f"v_lshlrev_b32 v{vt}, 10, v{vt}", f"v_lshlrev_b32 v{vt+1}, 4, v{vt+1}",
            f"v_add_u32 v{vt}, v{vt}, v{vt+1}", "s_lshl_b32 s29, s78, 6", "s_lshl_b32 s28, s20, 3", "s_add_u32 s29, s29, s28", "s_lshl_b32 s29, s29, 10",
            "s_lshl_b32 s30, s79, 7", "s_add_u32 s29, s29, s30", "s_mov_b32 s8, s50", "s_mov_b32 s9, s51", "s_mov_b32 s10, 1024", "s_mov_b32 s11, 0x00020000",
            f"buffer_load_dwordx4 v[{VX}:{VX+3}], v{vt}, s[4:7], s29 offen", f"buffer_load_dwordx4 v[{VB2}:{VB2+3}], v{vt+1}, s[8:11], s30 offen"]

def gen_gemm2(A):
    VHO, VTR2, VP, VT = 13, 14, 18, 22
    ACC, W, H = ACC2, W2R, HR
    if PRIO_G: A(f"s_setprio {PRIO_G}")
    A("s_mov_b32 s22, s33")
    final_addr(A)
    for k in range(4): A(f"v_mov_b32 v{VTR2+k}, v{VTL+k}")
    A(f"""
    v_lshlrev_b32 v{VHO}, 4, v0
    v_lshrrev_b32 v{VT}, 5, v0
    v_xor_b32 v{VT}, v{VT}, v2
    v_and_b32 v{VP}, 31, v0
    v_lshlrev_b32 v{VP}, 8, v{VP}
    v_lshl_add_u32 v{VP}, v{VT}, 4, v{VP}
    v_add_u32 v{VP}, s73, v{VP}
    v_xor_b32 v{VP+1}, 32, v{VP}
    v_xor_b32 v{VP+2}, 64, v{VP}
    v_xor_b32 v{VP+3}, 96, v{VP}
    s_mul_i32 s24, s78, {2*112*1024}
    s_mul_i32 s28, s20, {28*1024}
    s_add_u32 s24, s24, s28
    s_add_u32 s24, s24, {WS_HF}
    s_add_u32 s25, s24, {112*1024}
    s_mul_i32 s26, s20, {1 if HP else 7}
    s_lshl_b32 s28, s78, {2 if HP else 5}
    s_add_u32 s26, s26, s28
    s_lshl_b32 s26, s26, 7
    s_add_u32 s26, s26, {WS_FLH}
    v_min_u32 v{VT}, 6, v2
    v_lshlrev_b32 v{VT}, {2 if HP else 7}, v{VT}
    s_lshl_b32 s28, s20, 2
    s_add_u32 s28, s28, {L_FLAG+16}
    v_mov_b32 v{ACC+4}, s28
    v_mov_b32 v{ACC+5}, 1
    ds_write_b32 v{ACC+4}, v{ACC+5} offset:16
    s_mov_b32 s30, 0
    s_cmp_eq_u32 s37, 1
    s_cbranch_scc1 L_g2_poll
    """)
    A.st("prew")
    A("s_waitcnt vmcnt(0)")
    A.extend(wave_flag("s22", ACC))
    A.st("p2bar")
    A(f"""
    L_g2_rr:
    ds_read_b32 v{ACC+5}, v{ACC+4}
    s_waitcnt lgkmcnt(0)
    v_readfirstlane_b32 s28, v{ACC+5}
    s_cmp_eq_u32 s28, 1
    s_cbranch_scc0 L_g2_rr
    """)
    for sl in range(3): A.extend(w2tr(sl, sl, VTR2))
    for sl in range(12):
        left = min(12, sl + 3) - sl - 1
        A(f"s_waitcnt lgkmcnt({4*left})")
        if sl + 3 < 12: A.extend(w2tr(sl + 3, sl + 3, VTR2))
        if EP and sl == 12 - EP: A(f"buffer_load_dword v{ACC+2}, v{VT}, s[12:15], s26 offen {SC}")
        A.extend(wdma(sl, 12 + sl))
    if EP:
        A(f"""
        s_waitcnt vmcnt({2*EP})
        v_cmp_ne_u32 vcc, s76, v{ACC+2}
        s_cbranch_vccz L_g2_go
        """)
    A.st("s5")
    A.label("L_g2_poll")
    if PG: A(f"s_sleep {PG}")
    A(f"""
    buffer_load_dword v{ACC+2}, v{VT}, s[12:15], s26 offen {SC}
    s_add_u32 s30, s30, 1
    s_waitcnt vmcnt(0)
    v_cmp_ne_u32 vcc, s76, v{ACC+2}
    s_cmp_gt_u32 s30, {SPIN}
    s_cbranch_scc1 L_g2_go
    s_cbranch_vccnz L_g2_poll
    """)
    A.label("L_g2_go")
    vm = VMQ()
    for sl in range(12 - EP, 12): vm.note(("w", 12 + sl), 2)
    A.st("s6")
    def hload(kp):
        sl = kp % HD
        vm.note(("h", kp), 2)
        return koff("s31", ORDER[kp]) + ["s_add_u32 s27, s31, s24", "s_add_u32 s31, s31, s25",
                                  f"buffer_load_dwordx4 v[{H+8*sl}:{H+8*sl+3}], v{VHO}, s[12:15], s27 offen {SCL}",
                                  f"buffer_load_dwordx4 v[{H+8*sl+4}:{H+8*sl+7}], v{VHO}, s[12:15], s31 offen {SCL}"]
    if env("DYN", 0):
        free = [H + 8 * i for i in range(HD)]
        hb, wb = {}, {k: W + 8 * k for k in range(12)}
        lq = LQ(A)
        nh = [0]; nt = [12]
        MAXH = env("MAXH", 16)
        def hl(kp):
            r = free.pop(0); hb[kp] = r; vm.note(("h", kp), 2)
            A.extend(koff("s31", kp) + ["s_add_u32 s27, s31, s24", "s_add_u32 s31, s31, s25",
                     f"buffer_load_dwordx4 v[{r}:{r+3}], v{VHO}, s[12:15], s27 offen {SCL}",
                     f"buffer_load_dwordx4 v[{r+4}:{r+7}], v{VHO}, s[12:15], s31 offen {SCL}"])
        def tl(k):
            r = free.pop(0); wb[k] = r
            A.extend(vm.wait(("w", k)))
            a_ = slot_addr((k - 12) % 12); hi = a_ >> 16; a_ &= 0xffff
            lq.emit([f"ds_read_b64_tr_b16 v[{r+4*db+2*sec}:{r+4*db+2*sec+1}], v{VTR2+2*hi+db} offset:{a_+sec*1024}" for db in range(2) for sec in range(2)], ("t", k))
        for kp in range(HD): hl(kp); nh[0] += 1
        if PRIO_G: A(f"s_setprio {env('PRIOG2', 0)}")
        def mfm(kp, tb, db):
            c = ACC + 32 * tb + 16 * db
            cin = "0" if kp == 0 else f"v[{c}:{c+15}]"
            return f"v_mfma_f32_32x32x16_bf16 v[{c}:{c+15}], v[{wb[kp]+4*db}:{wb[kp]+4*db+3}], v[{hb[kp]+4*tb}:{hb[kp]+4*tb+3}], {cin}"
        f3 = [24]
        for kp in range(24):
            lq.wait(("t", kp))
            A.extend(vm.wait(("h", kp)))
            if kp in (4, 9, 14, 19): A.st(f"k{kp}")
            A(mfm(kp, 0, 0))
            if kp >= 1: free.extend([hb[kp - 1], wb[kp - 1]])
            ahead = env("TAH", 3) if kp < 20 else 4
            while nt[0] < 28 and nt[0] <= kp + ahead and free and (nt[0] < 24 or nt[0] < f3[0]): tl(nt[0]); nt[0] += 1
            A(mfm(kp, 0, 1))
            if nh[0] < 28 and len(free) > 1 and nh[0] - kp < MAXH: hl(nh[0]); nh[0] += 1
            A(mfm(kp, 1, 0))
            if nh[0] < 28 and len(free) > 1 and nh[0] - kp < MAXH: hl(nh[0]); nh[0] += 1
            if f3[0] < 28 and f3[0] - 12 <= kp + 1 and f3[0] - 12 < nt[0] - 1:
                lq.wait(("t", f3[0] - 12))
                A.extend(wdma(f3[0] - 24, f3[0])); vm.note(("w", f3[0]), 2); f3[0] += 1
            if kp == env("SIGK", 19):
                lq.emit(["s_lshl_b32 s28, s20, 2", f"s_add_u32 s28, s28, {L_FLAG+48}", f"v_mov_b32 v{VT}, s28", f"v_mov_b32 v{VHO}, 1", f"ds_write_b32 v{VT}, v{VHO}"])
                assert nh[0] == 28
            A(mfm(kp, 1, 1))
            if kp == 0: A.st("k0")
        assert nh[0] == 28 and nt[0] == 28, (nh, nt)
        pw = lambda tb, db: [f"ds_write_b128 v{VP+q}, v[{ACC+32*tb+16*db+4*q}:{ACC+32*tb+16*db+4*q+3}] offset:{tb*32768+db*128}" for q in range(4)]
        A("s_waitcnt lgkmcnt(0)")
        A.extend(vm.wait(("h", 27)))
        prev = []
        for tb in range(2):
            for db in range(2):
                for j, kp in enumerate(range(24, 28)):
                    A(mfm(kp, tb, db))
                    if j >= 1 and prev: A.extend(prev[:2]); prev = prev[2:]
                A.extend(prev); prev = pw(tb, db)
        A.st("s7")
        A.extend(prev)
        A("s_waitcnt vmcnt(0) lgkmcnt(0)")
        A("s_branch L_final")
        return
    H0 = env("H0", 9)
    for kp in range(H0): A.extend(hload(kp))
    nh = [H0]
    def more(kp, n):
        for _ in range(n):
            if nh[0] < 28 and nh[0] <= kp - 1 + HD:
                A.extend(hload(nh[0])); nh[0] += 1
    if PRIO_G: A(f"s_setprio {env('PRIOG2', 0)}")
    inring = lambda k: ORDER[k] >= 12
    wset = lambda k: ((k % 2) if k < 24 else k - 24) if inring(k) else ORDER[k]
    slot_of = lambda k: (ORDER[k] - 12) % 12
    for kp in range(28 - TS):
        nx = kp + 1
        if TS and kp >= 20 and kp < 24: nx = kp + 4
        if TS and kp >= 24: nx = 99
        if inring(kp): A("s_waitcnt lgkmcnt(0)")
        A.extend(vm.wait(("h", kp)))
        if kp in (4, 9, 14, 19): A.st(f"k{kp}")
        b = W + 8 * wset(kp); sl = kp % HD
        mf = []
        for tb in range(2):
            for db in range(2):
                c = ACC + 32 * tb + 16 * db
                cin = "0" if kp == 0 else f"v[{c}:{c+15}]"
                mf.append(f"v_mfma_f32_32x32x16_bf16 v[{c}:{c+15}], v[{b+4*db}:{b+4*db+3}], v[{H+8*sl+4*tb}:{H+8*sl+4*tb+3}], {cin}")
        A(mf[0])
        if nx < 28 and inring(nx):
            A.extend(vm.wait(("w", ORDER[nx])))
            A.extend(w2tr(slot_of(nx), wset(nx), VTR2))
        A(mf[1])
        more(kp, 1)
        A(mf[2])
        more(kp, 1)
        if 12 <= ORDER[kp] < 16:
            A.extend(wdma(ORDER[kp] - 12, ORDER[kp] + 12)); vm.note(("w", ORDER[kp] + 12), 2)
        if kp == 20 and not EPE:
            A.extend(ep_loads()); vm.note("ep", 2)
        if kp == env("SIGK", 19):
            A(f"""
            s_lshl_b32 s28, s20, 2
            s_add_u32 s28, s28, {L_FLAG+48}
            v_mov_b32 v{VT}, s28
            v_mov_b32 v{W}, 1
            ds_write_b32 v{VT}, v{W}
            """)
        A(mf[3])
        if kp == 0: A.st("k0")
    pw = lambda tb, db: [f"ds_write_b128 v{VP+q}, v[{ACC+32*tb+16*db+4*q}:{ACC+32*tb+16*db+4*q+3}] offset:{tb*32768+db*128}" for q in range(4)]
    if TS:
        A("s_waitcnt lgkmcnt(0)")
        A.extend(vm.wait(("h", 27)))
        prev = []
        for tb in range(2):
            for db in range(2):
                c = ACC + 32 * tb + 16 * db
                for j, kp in enumerate(range(28 - TS, 28)):
                    b_ = W + 8 * wset(kp); sl = kp % HD
                    A(f"v_mfma_f32_32x32x16_bf16 v[{c}:{c+15}], v[{b_+4*db}:{b_+4*db+3}], v[{H+8*sl+4*tb}:{H+8*sl+4*tb+3}], v[{c}:{c+15}]")
                    if j >= 1 and prev: A.extend(prev[:2]); prev = prev[2:]
                A.extend(prev); prev = pw(tb, db)
        A.st("s7")
        A.extend(prev)
    else:
        A.st("s7")
        for tb in range(2):
            for db in range(2): A.extend(pw(tb, db))
    A("s_waitcnt vmcnt(0) lgkmcnt(0)")
    A("s_branch L_final")


def gen_conv(A):
    if PRIO_C: A(f"s_setprio {PRIO_C}")
    VTA, VF = 32, 36
    VXN, VBW, VOWN, VPAR = 37, 38, 39, 40
    T0 = 42
    dsk = P0 + 7
    ACC = 48; FB = [80, 112]; TB = [144, 208]
    XN = 196
    final_addr(A)
    A(f"""
    s_mov_b32 s21, s39
    s_lshr_b32 s35, s21, 1
    s_and_b32 s36, s21, 1
    s_mul_i32 s38, s35, {CH_SIZE}
    s_add_u32 s38, s38, {L_CH}
    s_lshl_b32 s27, s21, 13
    s_add_u32 s27, s27, {L_ST2}
    s_xor_b32 s32, s27, {ST2}
    v_and_b32 v{T0}, 15, v0
    v_lshrrev_b32 v{T0+1}, 4, v0
    v_and_b32 v{T0+2}, 1, v0
    v_mul_u32_u24 v{T0+2}, {OFF_O + 2 - OFF_E}, v{T0+2}
    s_lshl_b32 s31, s36, 8
    s_sub_u32 s31, s38, s31
    s_add_u32 s29, s31, {OFF_O + 2*2032 - 512 - 192}
    v_lshlrev_b32 v{T0+3}, 1, v{T0}
    v_sub_u32 v{VTA}, s29, v{T0+3}
    v_lshl_add_u32 v{VTA}, v{T0+1}, 4, v{VTA}
    v_sub_u32 v{VTA}, v{VTA}, v{T0+2}
    v_subrev_u32 v{VTA+1}, 1024, v{VTA}
    v_subrev_u32 v{VTA+2}, 2048, v{VTA}
    v_subrev_u32 v{VTA+3}, 3072, v{VTA}
    """)
    def freads(rr, fb): return [f"ds_read_b128 v[{fb+4*m}:{fb+4*m+3}], v{VF} offset:{512*m + 64*(3-rr)}" for m in range(8)]
    def treads(rr, tb):
        o = []
        for i in range(8):
            off = 128 * (1 - (i & 1)) + 16 * (3 - rr)
            o.append(f"ds_read2_b32 v[{tb+4*i}:{tb+4*i+1}], v{VTA+i//2} offset0:{off} offset1:{off+1}")
            o.append(f"ds_read2_b32 v[{tb+4*i+2}:{tb+4*i+3}], v{VTA+i//2} offset0:{off+2} offset1:{off+3}")
        return o
    A(f"""
    v_lshl_add_u32 v19, v0, 4, s38
    s_add_u32 s29, s31, {480 - 192}
    v_lshlrev_b32 v{VF}, 5, v{T0}
    v_lshl_add_u32 v{VF}, v{T0+1}, 4, v{VF}
    v_add_u32 v{VF}, s29, v{VF}
    v_lshlrev_b32 v{VXN}, 5, v{T0}
    v_lshl_add_u32 v{VXN}, v{T0+1}, 3, v{VXN}
    v_add_u32 v{VBW}, s27, v{VXN}
    s_lshl_b32 s28, s36, 11
    s_add_u32 s28, s28, s38
    v_add_u32 v{VXN}, s28, v{VXN}
    v_lshl_add_u32 v{VOWN}, v0, 4, s27
    v_lshl_add_u32 v{VPAR}, v0, 4, s32
    v_mov_b32 v13, 1
    s_lshl_b32 s29, s21, 2
    s_add_u32 s29, s29, {L_FLAG}
    v_mov_b32 v14, s29
    s_xor_b32 s29, s29, 4
    v_mov_b32 v15, s29
    v_lshlrev_b32 v18, 4, v0
    """)
    A(f"""
    L_cv_ex:
    ds_read_b32 v16, v15 offset:64
    s_waitcnt lgkmcnt(0)
    v_readfirstlane_b32 s28, v16
    s_cmp_eq_u32 s28, 1
    s_cbranch_scc0 L_cv_ex
    """)
    A.extend(treads(0, TB[0]))
    A("s_cmp_eq_u32 s37, 1")
    A("s_cbranch_scc1 L_cv_uok")
    if env("HT2", 0): A("s_waitcnt vmcnt(0)"); A.extend(ring_ready(20))
    u_spin(A, 20, 18)
    A.label("L_cv_uok")
    A(f"s_waitcnt vmcnt({8 if env('HT2', 0) else 0})")
    if not UDMA:
        for k in range(4): A(f"ds_write_b128 v19, v[{XL+4*k}:{XL+4*k+3}] offset:{512 + k*1024}")
    A.extend(freads(0, FB[0]))
    A.st("s4")
    if GPK == 1:
        A(f"""
        v_mov_b32 v17, {L_FLAG+32}
        L_cv_gd:
        ds_read_b128 v[20:23], v17
        s_waitcnt lgkmcnt(0)
        v_and_b32 v20, v20, v21
        v_and_b32 v22, v22, v23
        v_and_b32 v20, v20, v22
        s_nop 0
        v_readfirstlane_b32 s28, v20
        s_cmp_eq_u32 s28, 1
        s_cbranch_scc0 L_cv_gd
        """)
    A.st("s5")
    for rp in range(4):
        fb, tb = FB[rp % 2], TB[rp % 2]
        mm = []
        for i in range(8):
            for j in range(i, 8):
                cin = "0" if (rp == 0 and i == 0) else f"v[{ACC+4*j}:{ACC+4*j+3}]"
                mm.append(f"v_mfma_f32_16x16x32_bf16 v[{ACC+4*j}:{ACC+4*j+3}], v[{tb+4*i}:{tb+4*i+3}], v[{fb+4*(j-i)}:{fb+4*(j-i)+3}], {cin}")
        if rp == 1:
            if env("HT2", 0): A("s_waitcnt vmcnt(0)"); A.extend(ring_ready(20))
            if not EPE: A.extend(ep_loads())
        if HT and rp == env("HTP", 3):
            A(f"""
            s_lshl_b32 s28, s24, 2
            s_add_u32 s28, s28, s21
            s_mul_i32 s28, s28, {56*128}
            s_mul_i32 s29, s23, {8*112*1024}
            s_add_u32 s28, s28, s29
            s_add_u32 s28, s28, {WS_HF}
            v_min_u32 v{T0}, 55, v0
            v_lshlrev_b32 v{T0}, 7, v{T0}
            buffer_load_dword v20, v{T0}, s[12:15], s28 offen {SC}
            """)
        if rp == 0:
            o = []
            for j in range(8): o += [f"s_waitcnt lgkmcnt({7-j})", mm[j]]
            mm = o + interleave(mm[8:], freads(1, FB[1]) + treads(1, TB[1]), 0, 22)
        else:
            A("s_waitcnt lgkmcnt(0)")
            if rp < 3: mm = interleave(mm, freads(rp + 1, FB[(rp + 1) % 2]) + treads(rp + 1, TB[(rp + 1) % 2]), 0, 26)
            else: mm = interleave(mm, [f"ds_read_b64 v[{XN+2*a_}:{XN+2*a_+1}], v{VXN} offset:{512 + a_*512}" for a_ in range(4)], 0, 8)
        A.extend(mm)
    A.st("s6")
    A("s_cmp_eq_u32 s36, 1")
    A("s_cbranch_scc1 L_cv_x1")
    for a_ in range(4): A(f"ds_write_b128 v{VOWN}, v[{ACC+16+4*a_}:{ACC+16+4*a_+3}] offset:{4096 + a_*1024}")
    A("ds_write_b32 v14, v13")
    A("s_branch L_cv_out")
    A.label("L_cv_x1")
    A("s_nop 7")
    for a_ in range(4): A(f"ds_write_b128 v{VOWN}, v[{ACC+4*a_}:{ACC+4*a_+3}] offset:{4096 + a_*1024}")
    A("ds_write_b32 v14, v13")
    for k in range(16): A(f"v_mov_b32 v{ACC+k}, v{ACC+16+k}")
    A.label("L_cv_out")
    A(f"""
    """)
    A.extend(ya_addr(41, T0))
    A(f"""
    v_mov_b32 v{T0+2}, 0xfffffffe
    s_waitcnt lgkmcnt(5)
    """)
    t = 80; z = 96; YP = 112
    for k in range(8):
        A(f"v_lshlrev_b32 v{t+2*k}, 16, v{XN+k}")
        A(f"v_and_b32 v{t+2*k+1}, 0xffff0000, v{XN+k}")
    for k in range(16): A(f"v_fma_f32 v{ACC+k}, v{t+k}, v{dsk}, v{ACC+k}")
    A.label("L_cv_ps1")
    A(f"""
    ds_read_b32 v16, v15
    s_waitcnt lgkmcnt(0)
    v_readfirstlane_b32 s28, v16
    s_cmp_eq_u32 s28, 1
    s_cbranch_scc0 L_cv_ps1
    """)
    for a_ in range(4): A(f"ds_read_b128 v[{YP+4*a_}:{YP+4*a_+3}], v{VPAR} offset:{4096 + a_*1024}")
    for a_ in range(4):
        A("s_waitcnt lgkmcnt(3)")
        for k in range(4): A(f"v_add_f32 v{ACC+4*a_+k}, v{ACC+4*a_+k}, v{YP+4*a_+k}")
        for k in range(2): A(f"v_cvt_pk_bf16_f32 v{z+2*a_+k}, v{ACC+4*a_+2*k}, v{ACC+4*a_+2*k+1}")
        for k in range(2): A(f"v_min_u32 v{z+2*a_+k}, v{z+2*a_+k}, v{T0+2}")
        A(f"ds_write_b64 v{VBW}, v[{z+2*a_}:{z+2*a_+1}] offset:{a_*512}")
    for h in range(2): A(f"ds_read_b128 v[{t+4*h}:{t+4*h+3}], v{VOWN} offset:{h*1024}")
    for h in range(2):
        A(f"s_waitcnt lgkmcnt({1-h})")
        A(f"buffer_store_dwordx4 v[{t+4*h}:{t+4*h+3}], v41, s[12:15], s{30+h} offen {SC}")
    Y = 160
    A(f"""
    v_lshlrev_b32 v{T0}, 8, v1
    v_lshl_add_u32 v{T0}, v2, 4, v{T0}
    s_lshl_b32 s28, s79, 5
    s_add_u32 s28, s28, s78
    s_lshl_b32 s28, s28, 13
    s_lshl_b32 s29, s21, 11
    s_add_u32 s28, s28, s29
    s_add_u32 s28, s28, {WS_YA}
    v_lshlrev_b32 v{T0+1}, 8, v2
    v_lshl_add_u32 v{T0+1}, v2, 4, v{T0+1}
    v_lshl_add_u32 v{T0+1}, v1, 2, v{T0+1}
    v_add_u32 v{T0+1}, s27, v{T0+1}
    v_mov_b32 v{T0+3}, 0x05040100
    v_mov_b32 v{T0+4}, 0x07060302
    s_mov_b32 s30, 0
    """)
    A.st("s7")
    A(f"""
    v_mov_b32 v17, {L_FLAG+48}
    s_setprio {env("PW", 1)}
    L_cv_w19:
    s_sleep {env("SW19", 2)}
    ds_read_b128 v[20:23], v17
    s_waitcnt lgkmcnt(0)
    v_and_b32 v20, v20, v21
    v_and_b32 v22, v22, v23
    v_and_b32 v20, v20, v22
    s_nop 0
    v_readfirstlane_b32 s29, v20
    s_cmp_eq_u32 s29, 1
    s_cbranch_scc0 L_cv_w19
    L_cv_poll2:
    buffer_load_dwordx4 v[{Y}:{Y+3}], v{T0}, s[12:15], s28 offen {SC}
    buffer_load_dwordx4 v[{Y+4}:{Y+7}], v{T0}, s[12:15], s28 offen offset:128 {SC}
    s_waitcnt vmcnt(0)
    v_max_u32 v{Y+8}, v{Y}, v{Y+1}
    v_max3_u32 v{Y+8}, v{Y+8}, v{Y+2}, v{Y+3}
    v_max3_u32 v{Y+8}, v{Y+8}, v{Y+4}, v{Y+5}
    v_max3_u32 v{Y+8}, v{Y+8}, v{Y+6}, v{Y+7}
    v_cmp_eq_u32 vcc, -1, v{Y+8}
    s_cbranch_vccz L_cv_got
    s_sleep 4
    s_add_u32 s30, s30, 1
    s_cmp_lt_u32 s30, {SPIN}
    s_cbranch_scc1 L_cv_poll2
    """)
    A.label("L_cv_got")
    A.st("got")
    for k in range(4):
        A(f"v_perm_b32 v{Y+8+2*k}, v{Y+4+k}, v{Y+k}, v{T0+3}")
        A(f"v_perm_b32 v{Y+9+2*k}, v{Y+4+k}, v{Y+k}, v{T0+4}")
    for i in range(8): A(f"ds_write_b32 v{T0+1}, v{Y+8+i} offset:{i*32}")
    A("s_waitcnt lgkmcnt(0)")


def gen_final(A):
    P = 32
    A(f"""
    v_lshlrev_b32 v13, 1, v2
    v_xor_b32 v13, v13, v1
    v_lshlrev_b32 v13, 4, v13
    v_lshl_add_u32 v13, v1, 8, v13
    s_and_b32 s28, s20, 3
    s_lshl_b32 s28, s28, 11
    s_lshr_b32 s29, s20, 2
    s_lshl_b32 s29, s29, 15
    s_add_u32 s28, s28, s29
    v_add_u32 v13, s28, v13
    v_xor_b32 v14, 16, v13
    v_lshrrev_b32 v15, 1, v2
    v_lshlrev_b32 v15, 13, v15
    v_lshl_add_u32 v15, v1, 5, v15
    v_and_b32 v16, 1, v2
    v_lshl_add_u32 v15, v16, 4, v15
    s_mul_i32 s28, s20, 272
    s_add_u32 s28, s28, {L_ST2}
    v_add_u32 v15, s28, v15
    """)
    srd(A, 8, "s52", "s53", 2 << 20)
    X, Yv, B = 64, 72, 80
    def unpack(d, s_):
        for k in range(4):
            A(f"v_lshlrev_b32 v{d+2*k}, 16, v{s_+k}")
            A(f"v_and_b32 v{d+2*k+1}, 0xffff0000, v{s_+k}")
    def pack(d, s_):
        for k in range(4): A(f"v_cvt_pk_bf16_f32 v{d+k}, v{s_+2*k}, v{s_+2*k+1}")
    unpack(X, VX); unpack(B, VB2)
    if not FR:
        for k in range(8): A(f"v_add_f32 v{X+k}, v{X+k}, v{B+k}")
    A("s_barrier")
    A.st("fin")
    A(f"ds_read_b128 v[16:19], v15")
    for w in range(4):
        A(f"ds_read_b128 v[{P+8*w}:{P+8*w+3}], v13 offset:{w*8192}")
        A(f"ds_read_b128 v[{P+8*w+4}:{P+8*w+7}], v14 offset:{w*8192}")
    A("s_waitcnt lgkmcnt(8)")
    unpack(Yv, 16)
    for k in range(8): A(f"v_add_f32 v{X+k}, v{X+k}, v{Yv+k}")
    if FR: pack(20, X); unpack(X, 20)
    A("s_waitcnt lgkmcnt(4)")
    for k in range(8): A(f"v_add_f32 v{P+k}, v{P+k}, v{P+8+k}")
    A("s_waitcnt lgkmcnt(0)")
    for k in range(8): A(f"v_add_f32 v{P+16+k}, v{P+16+k}, v{P+24+k}")
    for k in range(8): A(f"v_add_f32 v{P+k}, v{P+k}, v{P+16+k}")
    if FR:
        pack(24, P); unpack(P, 24)
        for k in range(8): A(f"v_add_f32 v{P+k}, v{P+k}, v{B+k}")
        pack(24, P); unpack(P, 24)
    for k in range(8): A(f"v_add_f32 v{P+k}, v{P+k}, v{X+k}")
    pack(28, P)
    A(f"buffer_store_dwordx4 v[28:31], v{VOO}, s[8:11], s33 offen {os.environ.get('SCO', '')}")
    if STAMPS: A("s_waitcnt vmcnt(0)")
    A.stamp_flush(0)
    A("s_endpgm")


DOC = '''; ---------------------------------------------------------------------------------------------
;  hand-offs: sc1 stores + per-wave tag flags (tag = LCG(epoch word in d_ws), epoch advanced inside the launch),
;             y via sentinel prefill; placement (wg%8) is used for cache locality only.
; ---------------------------------------------------------------------------------------------
'''

def gen():
    A = Asm()
    if env("PERT", 0):
        _st = A.st
        def st2(name):
            if name in ("b0", "loop", "gstart", "gend", "p2bar", "s4", "s6", "s7", "got", "ku", "t1", "t3", "t4", "k9", "pre", "ab3", "ab6", "l1", "l2", "g8"): pert(A)
            _st(name)
        A.st = st2
    A.stamp(0, True); A.stamp(1)
    for k in range(2, 9): A.stamp(k)
    A(f"""
    s_cmp_ge_u32 s2, 256
    s_cbranch_scc1 L_exit
    s_add_u32 s2, s2, {env("IDR", 224)}
    s_and_b32 s2, s2, 255
    s_load_dwordx2 s[40:41], s[0:1], {KA['u']}
    s_load_dwordx8 s[44:51], s[0:1], {KA['w1']}
    s_load_dwordx4 s[52:55], s[0:1], {KA['out']}
    s_load_dwordx2 s[42:43], s[0:1], {KA['ws']}
    v_lshrrev_b32 v1, 6, v0
    v_and_b32 v0, 63, v0
    s_and_b32 s23, s2, 7
    s_lshr_b32 s24, s2, 3
    v_readfirstlane_b32 s20, v1
    s_and_b32 s25, s24, 3
    s_lshr_b32 s77, s24, 2
    s_and_b32 s79, s77, 3
    s_cmp_eq_u32 s79, 3
    s_cselect_b32 s79, {4 if env("SW", 1) else 0}, 0
    s_xor_b32 s79, s79, s77
    s_lshl_b32 s78, s23, 2
    s_add_u32 s78, s78, s25
    s_mul_i32 s74, {'s23' if ROT & 4 else 's79'}, {3584 if ROT & 5 else 0}
    s_and_b32 s74, s74, 0xfffffc00
    s_cmp_eq_u32 s77, 7
    s_cselect_b32 s75, {env("LROT", 7168)}, {7168 if ROT & 2 else 0}
    s_mul_i32 s75, s25, s75
    s_add_u32 s74, s74, s75
    s_sub_u32 s75, s74, {28*1024}
    s_min_u32 s74, s74, s75
    s_and_b32 s39, s20, 3
    s_cmp_eq_u32 s77, 7
    s_cbranch_scc1 L_ln
    """)
    if LOC:
        A("""
        s_and_b32 s21, s24, 1
        s_lshl_b32 s22, s23, 1
        s_add_u32 s21, s21, s22
        s_lshr_b32 s22, s24, 1
        """)
    else:
        A("""
        s_lshr_b32 s21, s23, 1
        s_lshl_b32 s21, s21, 2
        s_add_u32 s21, s21, s25
        s_and_b32 s22, s23, 1
        s_mul_i32 s22, s22, 7
        s_add_u32 s22, s22, s77
        """)
    gen_gemm1(A)
    A.label("L_ln")
    A("s_nop 0 ; RESETSB")
    A("s_mov_b32 s21, s78")
    if env("LND", 0): A(f"s_sleep {env('LND', 0)}")
    gen_ln(A)
    A.label("L_gemm2")
    A("s_nop 1 ; RESETSB")
    gen_gemm2(A)
    A.label("L_conv")
    A("s_nop 1 ; RESETSB")
    gen_conv(A)
    A.label("L_final")
    A("s_nop 7")
    gen_final(A)
    A.label("L_exit")
    A("s_endpgm")
    lines = fix_hazards(A.lines, verbose=True)
    check_waits(lines, "s")
    head = open("parallel_sum__ssm_conv_s4__dense_activation_gelu__prompt.s.ref").read().split("; Override launch")[0]
    head += DOC
    head += f"; @launch grid=(256,1,1) block=(512,1,1) lds={LDS_TOTAL}\n.amdgcn_target \"amdgcn-amd-amdhsa--gfx950\"\n"
    return head + kernel_section(KNAME, lines, 256, 102, 256)

if __name__ == "__main__":
    out = sys.argv[1] if len(sys.argv) > 1 else "cur8.s"
    open(out, "w").write(gen())
    print("wrote", out)
```
